```python
import torch

def _softmax(x, axis=-1):
    return torch.softmax(x, dim=axis)
def _gelu(x):
    return torch.nn.functional.gelu(x, approximate="tanh")
def _silu(x):
    return torch.nn.functional.silu(x)
def _sigmoid(x):
    return torch.sigmoid(x)
def _layernorm(x, axis=-1, eps=1e-5):
    m = x.mean(dim=axis, keepdim=True)
    v = x.var(dim=axis, keepdim=True, unbiased=False)
    return (x - m) / torch.sqrt(v + eps)
def _scatter_add(tgt, idx, src, axis=0):
    return tgt.clone().index_add_(axis, idx, src)
def _segment_sum(src, seg, n):
    out = torch.zeros((n,) + src.shape[1:], dtype=src.dtype)
    return out.index_add_(0, seg, src)
def _pad(x, pw):
    flat = tuple(v for pair in reversed(pw) for v in pair)
    return torch.nn.functional.pad(x, flat)

kernel_name = 'sequential_preLN__mha_block__mixer_channel_mlp__prompt'

def setup_inputs():

    _w = (lambda a: (lambda t: t.to(torch.bfloat16) if t.is_floating_point() else t)(torch.as_tensor(a)))
    def _A_setup():
        B, S, D, H = 1, 2048, 640, 32
        return {
            "x": _w((lambda *s: torch.randn(*s, dtype=torch.bfloat16) * 0.05)(B, S, D)),
            "wqkv": _w((lambda *s: torch.randn(*s, dtype=torch.bfloat16) * 0.05)(D, 3 * D)),
            "wo": _w((lambda *s: torch.randn(*s, dtype=torch.bfloat16) * 0.05)(D, D)),
        }
    _A_in = _A_setup()

    def _B_setup():
        B, S, D, F = 1, 2048, 640, 1728
        return {
            "x": _w((lambda *s: torch.randn(*s, dtype=torch.bfloat16) * 0.05)(B, S, D)),
            "w1": _w((lambda *s: torch.randn(*s, dtype=torch.bfloat16) * 3.2)(D, F) * (D ** -0.5)),
            "b1": _w((lambda *s: torch.randn(*s, dtype=torch.bfloat16) * 1.6)(F)),
            "w2": _w((lambda *s: torch.randn(*s, dtype=torch.bfloat16) * 0.2)(F, D) * (F ** -0.5)),
            "b2": _w((lambda *s: torch.randn(*s, dtype=torch.bfloat16) * 0.4)(D)),
        }
    _B_in = _B_setup()

    return {
        "A_x": _A_in["x"],
        "A_wqkv": _A_in["wqkv"],
        "A_wo": _A_in["wo"],
        "B_x": _B_in["x"],
        "B_w1": _B_in["w1"],
        "B_b1": _B_in["b1"],
        "B_w2": _B_in["w2"],
        "B_b2": _B_in["b2"],
    }

def reference(A_x, A_wqkv, A_wo, B_x, B_w1, B_b1, B_w2, B_b2):
    def _A_ref(x, wqkv, wo):
        B, S, D = x.shape
        H = 32
        Dh = D // H
        qkv = (lambda x, *d: x.permute(*d))((x @ wqkv).reshape(B, S, 3, H, Dh), 2, 0, 3, 1, 4)
        q, k, v = qkv[0], qkv[1], qkv[2]
        scores = torch.einsum("bhqd,bhkd->bhqk", q, k) * (Dh ** -0.5)
        p = _softmax(scores, axis=-1)
        o = torch.einsum("bhqk,bhkd->bhqd", p, v)
        return (lambda x, *d: x.permute(*d))(o, 0, 2, 1, 3).reshape(B, S, D) @ wo

    def _B_ref(x, w1, b1, w2, b2):
        y = _layernorm(x, axis=-1)
        h = _gelu(torch.einsum("bsd,df->bsf", y, w1) + b1)
        return torch.einsum("bsf,fd->bsd", h, w2) + b2

    x = A_x
    h = x + _A_ref(_layernorm(x, axis=-1), A_wqkv, A_wo)
    h2 = h + _B_ref(_layernorm(h, axis=-1), B_w1, B_b1, B_w2, B_b2)
    return h2
```

```python
import re

TRANS = ("v_exp_f32", "v_log_f32", "v_rcp_f32", "v_rsq_f32", "v_sqrt_f32", "v_sin_f32", "v_cos_f32",
         "v_exp_f16", "v_rcp_f16", "v_rcp_iflag_f32")

def regs_of(tok):
    tok = tok.strip()
    neg = tok.lstrip("-")
    m = re.fullmatch(r"\|?(?:abs\()?([vsa])(\d+)\)?\|?", neg)
    if m:
        return {(m.group(1), int(m.group(2)))}
    m = re.fullmatch(r"([vsa])\[(\d+):(\d+)\]", neg)
    if m:
        return {(m.group(1), i) for i in range(int(m.group(2)), int(m.group(3)) + 1)}
    if neg in ("vcc", "vcc_lo", "vcc_hi"):
        return {("vcc", 0)}
    if neg in ("exec", "exec_lo", "exec_hi"):
        return {("exec", 0)}
    if neg == "m0":
        return {("m0", 0)}
    return set()

class Ins:
    __slots__ = ("text", "op", "ops", "mods", "kind", "rd", "wr", "passes", "srcc", "srcab", "states", "label", "target")
    def __init__(self, text):
        self.text = text
        t = text.split(";")[0].strip()
        self.label = None
        self.target = None
        self.rd = set(); self.wr = set(); self.passes = 0; self.srcc = set(); self.srcab = set()
        self.states = 1
        self.op = ""; self.ops = []; self.mods = ""
        if not t or t.startswith("."):
            self.kind = "none"; self.states = 0
            return
        if t.endswith(":"):
            self.kind = "label"; self.label = t[:-1]; self.states = 0
            return
        parts = t.split(None, 1)
        op = parts[0]; self.op = op
        rest = parts[1] if len(parts) > 1 else ""
        ops = []; depth = 0; cur = ""
        for ch in rest:
            if ch == "[": depth += 1
            if ch == "]": depth -= 1
            if ch == "," and depth == 0:
                ops.append(cur.strip()); cur = ""
            else:
                cur += ch
        if cur.strip():
            ops.append(cur.strip())
        mods = ""
        if ops:
            sp = ops[-1].split(None, 1)
            if len(sp) > 1:
                ops[-1] = sp[0]; mods = sp[1]
        self.ops = ops; self.mods = mods
        R = [regs_of(o) for o in ops]
        base = re.sub(r"_e32$|_e64$|_dpp$|_sdwa$", "", op)
        if op.startswith("v_mfma"):
            self.kind = "mfma"
            self.wr = R[0]; self.srcab = R[1] | R[2]; self.srcc = R[3]
            self.rd = self.srcab | self.srcc
            if "32x32x16" in op or "32x32x8" in op: self.passes = 8
            elif "16x16x32" in op or "16x16x16" in op: self.passes = 4
            else: raise ValueError("unknown mfma " + op)
        elif op.startswith("v_"):
            self.kind = "valu"
            if base.startswith("v_permlane"):
                self.wr = R[0] | R[1]; self.rd = R[0] | R[1]
            elif base.startswith("v_cmp"):
                self.wr = R[0]; self.rd = set().union(*R[1:])
            elif base in ("v_add_co_u32", "v_sub_co_u32", "v_addc_co_u32", "v_subb_co_u32"):
                self.wr = R[0] | R[1]; self.rd = set().union(*R[2:])
            else:
                self.wr = R[0]; self.rd = set().union(*R[1:]) if len(R) > 1 else set()
                if base in ("v_fmac_f32", "v_dot2c_f32_bf16", "v_pk_fmac_f16", "v_writelane_b32"):
                    self.rd = self.rd | R[0]
                if "UNUSED_PRESERVE" in mods:
                    self.rd = self.rd | R[0]
        elif op.startswith("ds_"):
            self.kind = "ds"
            if op.startswith("ds_read") or op.startswith("ds_bpermute") or op.startswith("ds_swizzle") or op.startswith("ds_permute"):
                self.wr = R[0]; self.rd = set().union(*R[1:])
            else:
                self.rd = set().union(*R)
        elif op.startswith("buffer_") or op.startswith("global_"):
            self.kind = "vmem"
            if "load" in op and " lds" not in (" " + mods) and "load_lds" not in op:
                self.wr = R[0]; self.rd = set().union(*R[1:])
            else:
                self.rd = set().union(*R)
                if " lds" in (" " + mods) or "load_lds" in op:
                    self.rd = self.rd | {("m0", 0)}
        elif op.startswith("s_"):
            self.kind = "salu"
            if op == "s_nop":
                self.states = int(ops[0], 0) + 1
            elif op.startswith("s_cbranch") or op == "s_branch":
                self.target = ops[0]; self.kind = "branch"
            elif op.startswith("s_cmp") or op in ("s_waitcnt", "s_barrier", "s_endpgm", "s_setprio", "s_sleep"):
                self.rd = set().union(*R) if R else set()
            elif op.startswith("s_load") or op.startswith("s_buffer_load") or op.startswith("s_memtime") or op.startswith("s_memrealtime"):
                self.kind = "smem"
                self.wr = R[0]; self.rd = set().union(*R[1:]) if len(R) > 1 else set()
            else:
                self.wr = R[0]; self.rd = set().union(*R[1:]) if len(R) > 1 else set()
                if "saveexec" in op:
                    self.wr = self.wr | {("exec", 0)}
        else:
            raise ValueError("cannot classify: " + text)

def vonly(s):
    return {r for r in s if r[0] in ("v", "a")}
def sonly(s):
    return {r for r in s if r[0] in ("s", "vcc")}

def need(p, c):
    n = 0
    pb = re.sub(r"_e32$|_e64$", "", p.op); cb = re.sub(r"_e32$|_e64$", "", c.op)
    if p.kind == "valu":
        pw = vonly(p.wr)
        isdot = pb.startswith("v_dot")
        if c.kind == "mfma" and pw & c.rd:
            n = max(n, 3 if isdot else 2)
        if c.kind == "valu":
            if pb in TRANS and cb not in TRANS and pw & c.rd: n = max(n, 1)
            if cb.startswith("v_permlane") and pw & c.rd: n = max(n, 2)
            if cb in ("v_readfirstlane_b32", "v_readlane_b32") and pw & c.rd: n = max(n, 1)
            if ("dpp" in c.op or "row_" in c.mods or "quad_perm" in c.mods) and pw & c.rd: n = max(n, 2)
            if isdot and pw & (c.rd | c.wr):
                if cb == pb and cb == "v_dot2c_f32_bf16" and not (pw & (regs_of(c.ops[1]) | regs_of(c.ops[2]))):
                    pass
                else:
                    n = max(n, 3)
            if ("sdwa" in p.op or "op_sel:" in p.mods and not pb.startswith("v_pk_")) and pw & (c.rd | c.wr): n = max(n, 1)
        if c.kind in ("vmem", "ds"):
            if pb in TRANS and pw & c.rd: n = max(n, 1)
            if isdot and pw & c.rd: n = max(n, 3)
        ps = sonly(p.wr)
        if ps:
            if c.kind in ("valu", "mfma") and ps & c.rd:
                n = max(n, 4 if cb in ("v_readlane_b32", "v_writelane_b32") else 2)
            if c.kind == "vmem" and ps & c.rd: n = max(n, 5)
            if c.kind in ("salu", "branch", "smem") and (ps & c.rd or (("vcc", 0) in ps and "vcc" in c.op)): n = max(n, 2)
        if ("exec", 0) in p.wr and c.kind in ("valu", "mfma"): n = max(n, 5)
    if p.kind == "mfma":
        t_rd = {4: 8, 8: 12}[p.passes]
        t_c = {4: 6, 8: 10}[p.passes]
        t_war = {4: 3, 8: 7}[p.passes]
        if c.kind == "mfma":
            if p.wr & c.srcab: n = max(n, t_rd)
            if p.wr & c.srcc:
                if not (p.wr == c.srcc and p.passes == c.passes): n = max(n, t_c)
            elif p.wr & c.wr:
                n = max(n, t_c)
        elif c.kind in ("valu", "vmem", "ds"):
            if p.wr & (c.rd | c.wr): n = max(n, t_rd)
            if c.kind == "valu" and p.srcc & c.wr: n = max(n, t_war)
            if c.kind in ("vmem", "ds") and p.srcc & c.wr: n = max(n, t_war)
    if p.kind == "salu" and ("m0", 0) in p.wr and c.kind == "vmem" and ("m0", 0) in c.rd:
        n = max(n, 1)
    if p.kind in ("vmem", "ds") and ("store" in p.op or "write" in p.op) and ("x4" in p.op or "x3" in p.op or "b128" in p.op or "b96" in p.op):
        data = vonly(regs_of(p.ops[0])) if p.kind == "vmem" and p.op.startswith("buffer") else vonly(regs_of(p.ops[1]))
        if data & c.wr:
            n = max(n, 2 if c.kind in ("valu", "mfma") else 1)
    return n

WINDOW = 24

def fix_hazards(lines, verbose=False):
    ins = [Ins(l) for l in lines]
    out = []
    for c in ins:
        if c.kind in ("none", "label"):
            out.append(c); continue
        dist = 0; req = 0
        for p in reversed(out):
            if p.kind in ("none", "label"): continue
            if p.kind == "branch" and p.op == "s_branch": break
            if p.op == "s_endpgm": break
            n = need(p, c)
            if n - dist > req: req = n - dist
            dist += p.states
            if dist > WINDOW: break
        while req > 0:
            k = min(req, 16)
            out.append(Ins("    s_nop %d" % (k - 1)))
            req -= k
        out.append(c)
    labels = {o.label: i for i, o in enumerate(out) if o.kind == "label"}
    problems = []
    for i, b in enumerate(out):
        if b.kind != "branch" or b.target not in labels: continue
        pre = [p for p in out[max(0, i - 3 * WINDOW):i + 1] if p.kind not in ("none", "label")]
        j = labels[b.target]; d_after = 0
        while j < len(out) and d_after <= WINDOW:
            c = out[j]; j += 1
            if c.kind in ("none", "label"): continue
            dist = d_after
            for p in reversed(pre):
                n = need(p, c)
                if n > dist:
                    problems.append("hazard across branch %s: [%s] -> [%s] needs %d has %d" % (b.text.strip(), p.text.strip(), c.text.strip(), n, dist))
                dist += p.states
                if dist > WINDOW: break
            d_after += c.states
            if c.op in ("s_branch", "s_endpgm"): break
    if problems:
        raise RuntimeError("\n".join(problems))
    return [o.text for o in out]

class K:
    def __init__(self, name):
        self.name = name; self.lines = []; self.uid = 0
    def __call__(self, s):
        for l in s.strip("\n").split("\n"):
            l = l.strip()
            if l: self.lines.append(("" if l.endswith(":") else "    ") + l)
    def label(self, n): self.lines.append(n + ":")
    def L(self, n): return "L_%s_%s" % (self.name, n)

def vr(a, n=1):
    return "v%d" % a if n == 1 else "v[%d:%d]" % (a, a + n - 1)
def sr(a, n=1):
    return "s%d" % a if n == 1 else "s[%d:%d]" % (a, a + n - 1)

def kernel_text(k, nvgpr, nsgpr=96):
    body = fix_hazards(k.lines)
    name = k.name + "_kernel"
    t = ".globl %s\n.p2align 8\n.type %s,@function\n%s:\n" % (name, name, name)
    t += "\n".join(body) + "\n"
    return t

def kernel_desc(k, nvgpr, nsgpr=96):
    name = k.name + "_kernel"
    acc = min(256, (nvgpr + 3) // 4 * 4)
    return (".p2align 6\n.amdhsa_kernel %s\n  .amdhsa_next_free_vgpr %d\n  .amdhsa_next_free_sgpr %d\n  .amdhsa_accum_offset %d\n"
            "  .amdhsa_group_segment_fixed_size 0\n  .amdhsa_kernarg_size 88\n  .amdhsa_user_sgpr_count 2\n"
            "  .amdhsa_user_sgpr_kernarg_segment_ptr 1\n  .amdhsa_system_sgpr_workgroup_id_x 1\n.end_amdhsa_kernel\n") % (name, nvgpr, nsgpr, acc)
```

```python
import sys, math, struct
from asmlib import K, vr, sr, kernel_text, kernel_desc

S = 2048; D = 640; F = 1728; H = 32; DH = 20
QK_OFF = 0x0
V_OFF = 0x500000
O_OFF = 0x780000
H_OFF = 0xA00000
G_OFF = 0xC80000
WS_END = 0x1340000
CH = S * 16
EPS = 1e-5

def f32(x):
    return "0x%08x" % struct.unpack("<I", struct.pack("<f", x))[0]

def srd(k, d, lo, hi, size):
    k(f"s_mov_b32 s{d}, s{lo}")
    k(f"s_and_b32 s{d+1}, s{hi}, 0xffff")
    k(f"s_mov_b32 s{d+2}, {size:#x}")
    k(f"s_mov_b32 s{d+3}, 0x00020000")

def lngemm(kind):
    k = K(kind)
    qkv = kind == "qkv"
    NB = 1920 if qkv else F
    BROW = NB * 2
    NS = 4; SLOT = 32768; NST = 10
    sA, sB, sW, sBi = 4, 8, 12, 16
    s_mb, s_nb, s_w, s_pj = 20, 21, 22, 23
    s_offA, s_offB, s_m0, s_it, s_delta, s_t0, s_t1, s_slot = 25, 26, 27, 28, 29, 30, 31, 32
    s_ones = 33
    v_lane, v_t, v_h = 1, 2, 3
    vAd = [4, 5, 6, 7]; vBd = [8, 9, 10, 11]
    vBr = [12, 13]
    v_sum, v_sq, v_cs, v_b1 = 14, 15, 16, 17
    vt = [18, 19, 20, 21, 22, 23]
    vAr = [[24, 25, 26, 27], [28, 29, 30, 31]]
    FA = [[32, 36], [40, 44]]
    FB = [[48, 52], [56, 60]]
    ACC = 64
    def acc(mt, nt): return ACC + (mt * 2 + nt) * 16
    EP = 128

    nbh = 8 if qkv else 7
    k(f"s_cmp_ge_u32 s2, {256 if qkv else 224}"); k(f"s_cbranch_scc1 {k.L('end')}")
    k(f"s_and_b32 s{s_t0}, s2, 7"); k(f"s_lshr_b32 s{s_t1}, s2, 3")
    k(f"s_lshr_b32 s{s_mb}, s{s_t0}, 1"); k(f"s_lshl_b32 s{s_mb}, s{s_mb}, 2")
    k(f"s_and_b32 s{s_nb}, s{s_t1}, 3"); k(f"s_add_u32 s{s_mb}, s{s_mb}, s{s_nb}")
    k(f"s_and_b32 s{s_nb}, s{s_t0}, 1"); k(f"s_mul_i32 s{s_nb}, s{s_nb}, {nbh}")
    k(f"s_lshr_b32 s{s_t1}, s{s_t1}, 2"); k(f"s_add_u32 s{s_nb}, s{s_nb}, s{s_t1}")
    if qkv:
        k(f"s_cmp_ge_u32 s{s_nb}, 15"); k(f"s_cbranch_scc1 {k.L('end')}")
        k("s_load_dwordx4 s[36:39], s[0:1], 0")
    else:
        k("s_load_dwordx4 s[36:39], s[0:1], 32")
    k("s_load_dwordx2 s[40:41], s[0:1], 80")
    k(f"v_and_b32 v{v_lane}, 63, v0")
    k(f"v_lshrrev_b32 v{vt[0]}, 6, v0")
    k(f"v_readfirstlane_b32 s{s_w}, v{vt[0]}")
    k(f"v_and_b32 v{v_t}, 31, v0")
    k(f"v_bfe_u32 v{v_h}, v0, 5, 1")
    k(f"s_lshr_b32 s{s_t0}, s{s_w}, 1"); k(f"s_and_b32 s{s_pj}, s{s_w}, 1")
    k(f"s_lshl_b32 s{s_pj}, s{s_pj}, 1"); k(f"s_add_u32 s{s_pj}, s{s_pj}, s{s_t0}")
    k(f"s_mov_b32 s{s_ones}, 0x3f803f80")
    k(f"s_mov_b32 s34, {SLOT}")
    if qkv:
        k(f"v_lshrrev_b32 v{vt[0]}, 3, v{v_lane}")
        k(f"v_and_b32 v{vt[1]}, 7, v{v_lane}")
        k(f"v_lshrrev_b32 v{vt[2]}, 1, v{vt[0]}")
        k(f"v_xor_b32 v{vt[2]}, v{vt[2]}, v{vt[1]}")
        k(f"v_xor_b32 v{vt[3]}, 4, v{vt[2]}")
        k(f"s_lshl_b32 s{s_t0}, s{s_mb}, 7"); k(f"s_lshl_b32 s{s_t1}, s{s_w}, 5"); k(f"s_add_u32 s{s_t0}, s{s_t0}, s{s_t1}")
        k(f"v_add_u32 v{vt[0]}, s{s_t0}, v{vt[0]}")
        k(f"v_mul_u32_u24 v{vt[0]}, 1280, v{vt[0]}")
        for ii in range(4):
            k(f"v_lshl_add_u32 v{vAd[ii]}, v{vt[2 + (ii & 1)]}, 4, v{vt[0]}")
            if ii: k(f"v_add_u32 v{vAd[ii]}, {ii * (8 * 1280 - 1024)}, v{vAd[ii]}")
        stepA = 128
    else:
        k(f"s_lshl_b32 s{s_t0}, s{s_mb}, 11")
        k(f"s_mul_i32 s{s_t1}, s{s_w}, {2 * CH}")
        k(f"s_add_u32 s{s_t0}, s{s_t0}, s{s_t1}")
        k(f"s_add_u32 s{s_t0}, s{s_t0}, {H_OFF}")
        k(f"v_lshl_add_u32 v{vAd[0]}, v{v_lane}, 4, s{s_t0}")
        k(f"v_mov_b32 v{vAd[1]}, v{vAd[0]}")
        k(f"v_add_u32 v{vAd[2]}, {CH - 2048}, v{vAd[0]}")
        k(f"v_add_u32 v{vAd[3]}, {CH - 2048}, v{vAd[0]}")
        stepA = 8 * CH
    k(f"v_lshrrev_b32 v{vt[0]}, 4, v{v_lane}")
    k(f"v_and_b32 v{vt[1]}, 15, v{v_lane}")
    k(f"v_lshlrev_b32 v{vt[2]}, 2, v{vt[0]}")
    k(f"v_xor_b32 v{vt[1]}, v{vt[1]}, v{vt[2]}")
    k(f"s_lshl_b32 s{s_t0}, s{s_w}, 4")
    k(f"v_add_u32 v{vt[0]}, s{s_t0}, v{vt[0]}")
    k(f"v_mul_u32_u24 v{vt[0]}, {BROW}, v{vt[0]}")
    k(f"v_lshl_add_u32 v{vt[0]}, v{vt[1]}, 4, v{vt[0]}")
    k(f"s_lshl_b32 s{s_t0}, s{s_nb}, 8")
    k(f"v_add_u32 v{vBd[0]}, s{s_t0}, v{vt[0]}")
    for ii in range(1, 4):
        k(f"v_add_u32 v{vBd[ii]}, {ii * (4 * BROW - 1024)}, v{vBd[0]}")
    stepB = 64 * BROW
    k(f"s_mov_b32 s{s_offA}, 0"); k(f"s_mov_b32 s{s_offB}, 0")
    k(f"s_lshl_b32 s{s_m0}, s{s_w}, 12")
    k("s_waitcnt lgkmcnt(0)")
    if qkv:
        srd(k, sA, 36, 37, S * D * 2); srd(k, sB, 38, 39, D * NB * 2); srd(k, sW, 40, 41, WS_END)
    else:
        srd(k, sB, 36, 37, D * NB * 2); srd(k, sBi, 38, 39, F * 2); srd(k, sW, 40, 41, WS_END)
        sA = sW

    def dma_stage():
        r = []
        r.append(f"s_mov_b32 m0, s{s_m0}")
        for ii in range(4):
            r.append(f"buffer_load_dwordx4 v{vAd[ii]}, s[{sA}:{sA+3}], s{s_offA} offen offset:{ii*1024} lds")
        r.append(f"s_add_u32 m0, s{s_m0}, 16384")
        for ii in range(4):
            r.append(f"buffer_load_dwordx4 v{vBd[ii]}, s[{sB}:{sB+3}], s{s_offB} offen offset:{ii*1024} lds")
        r.append(f"s_add_u32 s{s_offA}, s{s_offA}, {stepA}")
        r.append(f"s_add_u32 s{s_offB}, s{s_offB}, {stepB}")
        r.append(f"s_add_u32 s{s_m0}, s{s_m0}, {SLOT}")
        r.append(f"s_and_b32 s{s_m0}, s{s_m0}, {NS * SLOT - 1}")
        return r
    if not qkv:
        k(f"s_lshl_b32 s{s_t0}, s{s_pj}, 5")
        k(f"s_lshl_b32 s{s_t1}, s{s_nb}, 7"); k(f"s_add_u32 s{s_t0}, s{s_t0}, s{s_t1}")
        k(f"v_add_lshl_u32 v{vt[0]}, v{v_t}, s{s_t0}, 1")
        k(f"buffer_load_ushort v{v_b1}, v{vt[0]}, s[{sBi}:{sBi+3}], 0 offen")
    for st in range(NS):
        for l in dma_stage(): k(l)
    if qkv:
        k(f"v_bfe_u32 v{vt[0]}, v{v_t}, 1, 3")
        k(f"v_xor_b32 v{vt[0]}, v{vt[0]}, v{v_h}")
        k(f"s_lshl_b32 s{s_t0}, s{s_w}, 12")
        k(f"v_lshl_add_u32 v{vt[1]}, v{v_t}, 7, s{s_t0}")
        for ks in range(4):
            k(f"v_xor_b32 v{vt[2]}, {2*ks}, v{vt[0]}")
            k(f"v_lshl_add_u32 v{vAr[0][ks]}, v{vt[2]}, 4, v{vt[1]}")
            k(f"v_xor_b32 v{vAr[1][ks]}, 4096, v{vAr[0][ks]}")
        def a_read(dst, ks, mt): return f"ds_read_b128 {vr(dst,4)}, v{vAr[mt][ks]}"
        a_addr = vAr[0] + vAr[1]
    else:
        k(f"s_lshl_b32 s{s_t0}, s{s_w}, 9")
        k(f"v_lshl_add_u32 v{vt[0]}, v{v_t}, 4, s{s_t0}")
        k(f"v_lshl_add_u32 v{vAr[0][0]}, v{v_h}, 11, v{vt[0]}")
        k(f"v_xor_b32 v{vAr[1][0]}, 512, v{vAr[0][0]}")
        def a_read(dst, ks, mt): return f"ds_read_b128 {vr(dst,4)}, v{vAr[mt][0]} offset:{ks*4096}"
        a_addr = [vAr[0][0], vAr[1][0]]
    k(f"v_bfe_u32 v{vt[0]}, v{v_lane}, 2, 2")
    k(f"v_lshl_add_u32 v{vt[1]}, v{v_h}, 3, v{vt[0]}")
    k(f"v_lshlrev_b32 v{vt[1]}, 8, v{vt[1]}")
    k(f"v_bfe_u32 v{vt[2]}, v{v_lane}, 4, 1")
    k(f"v_lshl_add_u32 v{vt[1]}, v{vt[2]}, 5, v{vt[1]}")
    k(f"v_and_b32 v{vt[2]}, 3, v{v_lane}")
    k(f"v_lshl_add_u32 v{vt[1]}, v{vt[2]}, 3, v{vt[1]}")
    k(f"v_add_u32 v{vt[1]}, 16384, v{vt[1]}")
    k(f"v_xor_b32 v{vt[2]}, s{s_pj}, v{vt[0]}")
    k(f"v_lshl_add_u32 v{vBr[0]}, v{vt[2]}, 6, v{vt[1]}")
    k(f"v_xor_b32 v{vBr[1]}, 64, v{vBr[0]}")
    def b_read(dst, ks, nt, e): return f"ds_read_b64_tr_b16 {vr(dst + 2*e, 2)}, v{vBr[nt]} offset:{ks*4096 + e*1024}"
    for r in range(64): k(f"v_mov_b32 v{ACC + r}, 0")
    k(f"v_mov_b32 v{v_sum}, 0"); k(f"v_mov_b32 v{v_sq}, 0"); k(f"v_mov_b32 v{v_cs}, 0")
    k(f"s_mov_b32 s{s_it}, 0"); k(f"s_mov_b32 s{s_slot}, 0")

    def reads(ks, buf):
        return [a_read(FA[buf][0], ks, 0), b_read(FB[buf][0], ks, 0, 0), b_read(FB[buf][0], ks, 0, 1),
                a_read(FA[buf][1], ks, 1), b_read(FB[buf][1], ks, 1, 0), b_read(FB[buf][1], ks, 1, 1)]

    k(f"s_waitcnt vmcnt({(NS - 1) * 8})")
    k("s_barrier")
    for l in reads(0, 0): k(l)

    def mainloop(tag, vorient):
        k.label(k.L("loop" + tag))
        for ks in range(4):
            buf = ks & 1
            mf = []
            for mt in range(2):
                for nt in range(2):
                    a, b = FA[buf][mt], FB[buf][nt]
                    s0, s1 = (a, b) if vorient else (b, a)
                    mf.append(f"v_mfma_f32_32x32x16_bf16 {vr(acc(mt,nt),16)}, {vr(s0,4)}, {vr(s1,4)}, {vr(acc(mt,nt),16)}")
            dots = []
            for r in range(4):
                dots.append(f"v_dot2c_f32_bf16 v{v_sum}, s{s_ones}, v{FA[buf][0] + r}")
                dots.append(f"v_dot2c_f32_bf16 v{v_sq}, v{FA[buf][0] + r}, v{FA[buf][0] + r}")
                dots.append(f"v_dot2c_f32_bf16 v{v_cs}, s{s_ones}, v{FB[buf][0] + r}")
            k("s_waitcnt lgkmcnt(0)")
            if ks < 3:
                rd = reads(ks + 1, buf ^ 1)
                seq = [mf[0], rd[0], rd[1], rd[2], dots[0], dots[1], mf[1], rd[3], rd[4], rd[5], dots[2], dots[3],
                       mf[2]] + dots[4:8] + [mf[3]] + dots[8:12]
                for l in seq: k(l)
            else:
                k(mf[0])
                k(f"s_cmp_lt_u32 s{s_it}, {NST - 3}")
                k(f"s_cbranch_scc1 {k.L('w16' + tag)}")
                k(f"s_cmp_eq_u32 s{s_it}, {NST - 3}")
                k(f"s_cbranch_scc1 {k.L('w8' + tag)}")
                k("s_waitcnt vmcnt(0)")
                k.label(k.L("w8" + tag))
                k("s_waitcnt vmcnt(8)")
                k.label(k.L("w16" + tag))
                k("s_waitcnt vmcnt(16)")
                k("s_barrier")
                k(f"s_add_u32 s{s_slot}, s{s_slot}, 1")
                k(f"s_and_b32 s{s_slot}, s{s_slot}, {NS - 1}")
                k(f"s_cselect_b32 s{s_delta}, s34, {(-(NS - 1) * SLOT) & 0xffffffff:#x}")
                first = [a_addr[0], a_addr[len(a_addr) // 2]] + vBr
                for a in first:
                    k(f"v_add_u32 v{a}, s{s_delta}, v{a}")
                rd = reads(0, 0)
                for l in rd[:3]: k(l)
                k(mf[1])
                for l in rd[3:]: k(l)
                k(dots[0]); k(dots[1])
                k(mf[2])
                for l in dots[2:7]: k(l)
                k(mf[3])
                for l in dots[7:12]: k(l)
                for a in a_addr:
                    if a not in first: k(f"v_add_u32 v{a}, s{s_delta}, v{a}")
                k(f"s_cmp_ge_u32 s{s_it}, {NST - NS}")
                k(f"s_cbranch_scc1 {k.L('nodma' + tag)}")
                for l in dma_stage(): k(l)
                k.label(k.L("nodma" + tag))
                k(f"s_add_u32 s{s_it}, s{s_it}, 1")
                k(f"s_cmp_lt_u32 s{s_it}, {NST}")
                k(f"s_cbranch_scc1 {k.L('loop' + tag)}")
        k("s_waitcnt lgkmcnt(0)")

    SB = 3 * SLOT
    def stats(vorient):
        trip = ((v_sum, vt[0]), (v_sq, vt[1]), (v_cs, vt[2]))
        for r, t in trip: k(f"v_mov_b32 v{t}, v{r}")
        for r, t in trip: k(f"v_permlane32_swap_b32 v{r}, v{t}")
        for r, t in trip: k(f"v_add_f32 v{r}, v{r}, v{t}")
        k(f"v_mul_f32 v{vt[0]}, {f32(-1.0 / D)}, v{v_sum}")
        k(f"v_mul_f32 v{vt[2]}, {f32(1.0 / D)}, v{v_sq}")
        k(f"v_fma_f32 v{vt[2]}, -v{vt[0]}, v{vt[0]}, v{vt[2]}")
        k(f"v_max_f32 v{vt[2]}, 0, v{vt[2]}")
        k(f"v_add_f32 v{vt[3]}, {f32(EPS)}, v{vt[2]}")
        k(f"v_rsq_f32 v{vt[1]}, v{vt[3]}")
        if qkv:
            if not vorient:
                k(f"s_cmp_lt_u32 s{s_nb}, 5")
                k(f"s_cselect_b32 s{s_t0}, {f32(math.log2(math.e) / math.sqrt(DH))}, 1.0")
                k(f"v_mul_f32 v{vt[1]}, s{s_t0}, v{vt[1]}")
        else:
            k(f"v_mul_f32 v{vt[3]}, v{vt[1]}, v{vt[1]}")
            k(f"v_mul_f32 v{vt[3]}, v{vt[3]}, v{vt[2]}")
            k(f"v_add_f32 v{vt[3]}, {f32(EPS)}, v{vt[3]}")
            k(f"v_rsq_f32 v{vt[3]}, v{vt[3]}")
            k(f"v_mul_f32 v{vt[1]}, v{vt[1]}, v{vt[3]}")
        k(f"s_lshl_b32 s{s_t0}, s{s_w}, 5")
        k(f"v_add_u32 v{vt[4]}, s{s_t0}, v{v_t}")
        k(f"s_lshl_b32 s{s_t0}, s{s_pj}, 5")
        k(f"v_add_lshl_u32 v{vt[5]}, v{v_t}, s{s_t0}, 2")
        k(f"v_add_u32 v{vt[5]}, {SB}, v{vt[5]}")
        if vorient:
            k(f"v_lshlrev_b32 v{vt[4]}, 2, v{vt[4]}")
            k(f"v_add_u32 v{vt[4]}, {SB}, v{vt[4]}")
            k(f"ds_write_b32 v{vt[4]}, v{vt[0]}")
            k(f"ds_write_b32 v{vt[4]}, v{vt[1]} offset:512")
        else:
            k(f"v_lshlrev_b32 v{vt[4]}, 3, v{vt[4]}")
            k(f"v_add_u32 v{vt[4]}, {SB}, v{vt[4]}")
            k(f"ds_write_b64 v{vt[4]}, {vr(vt[0], 2)}")
        k(f"ds_write_b32 v{vt[5]}, v{v_cs} offset:1024")
        if not qkv:
            k(f"v_lshlrev_b32 v{v_b1}, 16, v{v_b1}")
            k(f"ds_write_b32 v{vt[5]}, v{v_b1} offset:1536")
        k("s_waitcnt lgkmcnt(0)")
        k("s_barrier")

    def epi_nm():
        MR = [FA[0][0], FA[0][0] + 2]
        CS = EP; B1 = EP + 32
        k(f"ds_read_b64 {vr(MR[0],2)}, v{vt[4]}")
        k(f"v_xor_b32 v{vt[0]}, 256, v{vt[4]}")
        k(f"ds_read_b64 {vr(MR[1],2)}, v{vt[0]}")
        k(f"s_lshl_b32 s{s_t0}, s{s_pj}, 7")
        k(f"s_add_u32 s{s_t0}, s{s_t0}, {SB}")
        k(f"v_lshl_add_u32 v{vt[0]}, v{v_h}, 4, s{s_t0}")
        k(f"v_xor_b32 v{vt[1]}, 128, v{vt[0]}")
        for nt in range(2):
            for rq in range(4):
                k(f"ds_read_b128 {vr(CS + nt*16 + rq*4, 4)}, v{vt[nt]} offset:{1024 + rq*32}")
        if not qkv:
            for nt in range(2):
                for rq in range(4):
                    k(f"ds_read_b128 {vr(B1 + nt*16 + rq*4, 4)}, v{vt[nt]} offset:{1536 + rq*32}")
        OFF = QK_OFF if qkv else G_OFF
        k(f"s_lshl_b32 s{s_t0}, s{s_nb}, 4")
        k(f"v_add_lshl_u32 v{vt[2]}, v{v_h}, s{s_t0}, 15")
        k(f"s_lshl_b32 s{s_t0}, s{s_mb}, 7")
        k(f"v_add_u32 v{vt[3]}, s{s_t0}, v{v_t}")
        k(f"v_lshl_add_u32 v{vt[2]}, v{vt[3]}, 4, v{vt[2]}")
        if OFF: k(f"v_add_u32 v{vt[2]}, {OFF}, v{vt[2]}")
        so = 46
        k(f"s_lshl_b32 s{s_t0}, s{s_pj}, 17"); k(f"s_lshl_b32 s{s_t1}, s{s_w}, 9")
        k(f"s_add_u32 s{so}, s{s_t0}, s{s_t1}")
        k(f"s_xor_b32 s{so+1}, s{so}, 512")
        k(f"s_xor_b32 s{so+2}, s{so}, {1 << 17}")
        k(f"s_xor_b32 s{so+3}, s{so+1}, {1 << 17}")
        k(f"v_add_u32 v{vt[3]}, {2 * CH}, v{vt[2]}")
        if not qkv:
            C0 = -2.0 * math.log2(math.e) * math.sqrt(2.0 / math.pi)
            k(f"s_mov_b32 s44, {f32(C0 * 0.044715)}"); k(f"s_mov_b32 s45, {f32(C0 * 0.044715)}")
            k(f"v_mov_b32 v{vt[4]}, {f32(C0)}"); k(f"v_mov_b32 v{vt[5]}, {f32(C0)}")
        k("s_waitcnt lgkmcnt(0)")
        T = EP + 64
        n_st = 0
        for nt in range(2):
            for mt in range(2):
                a = acc(mt, nt); mr = MR[mt]
                for p in range(8):
                    x = vr(a + 2*p, 2)
                    k(f"v_pk_fma_f32 {x}, {vr(CS + nt*16 + 2*p, 2)}, {vr(mr,2)}, {x} op_sel_hi:[1,0,1]")
                for p in range(8):
                    x = vr(a + 2*p, 2)
                    if qkv:
                        k(f"v_pk_mul_f32 {x}, {x}, {vr(mr,2)} op_sel:[0,1] op_sel_hi:[1,1]")
                    else:
                        k(f"v_pk_fma_f32 {x}, {x}, {vr(mr,2)}, {vr(B1 + nt*16 + 2*p, 2)} op_sel:[0,1,0] op_sel_hi:[1,1,1]")
                if not qkv:
                    for p in range(8):
                        x = vr(a + 2*p, 2); t = vr(T + 2*p, 2)
                        k(f"v_pk_mul_f32 {t}, {x}, {x}")
                    for p in range(8):
                        t = vr(T + 2*p, 2)
                        k(f"v_pk_fma_f32 {t}, {t}, s[44:45], {vr(vt[4],2)}")
                    for p in range(8):
                        x = vr(a + 2*p, 2); t = vr(T + 2*p, 2)
                        k(f"v_pk_mul_f32 {t}, {t}, {x}")
                    for r in range(16): k(f"v_exp_f32 v{T + r}, v{T + r}")
                    for p in range(8):
                        t = vr(T + 2*p, 2)
                        k(f"v_pk_add_f32 {t}, {t}, 1.0 op_sel_hi:[1,0]")
                    for r in range(16): k(f"v_rcp_f32 v{T + r}, v{T + r}")
                    for p in range(8):
                        x = vr(a + 2*p, 2); t = vr(T + 2*p, 2)
                        k(f"v_pk_mul_f32 {x}, {x}, {t}")
                Pk = T + 16 + (n_st % 2) * 8
                for p in range(8):
                    k(f"v_cvt_pk_bf16_f32 v{Pk + p}, v{a + 2*p}, v{a + 2*p + 1}")
                for pq in range(2):
                    b = Pk + 4*pq
                    k(f"v_permlane32_swap_b32 v{b}, v{b+2}")
                    k(f"v_permlane32_swap_b32 v{b+1}, v{b+3}")
                for pq in range(2):
                    b = Pk + 4*pq
                    k(f"buffer_store_dwordx4 {vr(b,4)}, v{vt[2 + pq]}, s[{sW}:{sW+3}], s{so + nt*2 + mt} offen")
                n_st += 1

    def epi_v():
        NM = EP; RS = EP + 32; CSV = [FA[0][0], FA[0][0] + 2]
        k(f"s_lshl_b32 s{s_t0}, s{s_w}, 7")
        k(f"s_add_u32 s{s_t0}, s{s_t0}, {SB}")
        k(f"v_lshl_add_u32 v{vt[0]}, v{v_h}, 4, s{s_t0}")
        k(f"v_xor_b32 v{vt[1]}, 128, v{vt[0]}")
        for mt in range(2):
            for rq in range(4):
                k(f"ds_read_b128 {vr(NM + mt*16 + rq*4, 4)}, v{vt[mt]} offset:{rq*32}")
                k(f"ds_read_b128 {vr(RS + mt*16 + rq*4, 4)}, v{vt[mt]} offset:{512 + rq*32}")
        k(f"ds_read_b32 v{CSV[0]}, v{vt[5]} offset:1024")
        k(f"v_xor_b32 v{vt[4]}, 128, v{vt[5]}")
        k(f"ds_read_b32 v{CSV[1]}, v{vt[4]} offset:1024")
        k(f"s_mul_i32 s{s_t0}, s{s_mb}, {4 * 1280}")
        k(f"s_sub_u32 s{s_t1}, s{s_nb}, 10"); k(f"s_lshl_b32 s{s_t1}, s{s_t1}, 7"); k(f"s_add_u32 s{s_t0}, s{s_t0}, s{s_t1}")
        k(f"v_add_lshl_u32 v{vt[2]}, v{v_t}, s{s_t0}, 5")
        k(f"v_lshl_add_u32 v{vt[2]}, v{v_h}, 4, v{vt[2]}")
        k(f"v_add_u32 v{vt[2]}, {V_OFF}, v{vt[2]}")
        k(f"v_add_u32 v{vt[3]}, {640 * 32}, v{vt[2]}")
        so = 46
        k(f"s_mul_i32 s{so}, s{s_w}, {1280 * 32}")
        k(f"s_xor_b32 s{s_t0}, s{s_w}, 1"); k(f"s_mul_i32 s{so+2}, s{s_t0}, {1280 * 32}")
        k(f"s_lshl_b32 s{s_t0}, s{s_pj}, 10"); k(f"s_xor_b32 s{s_t1}, s{s_t0}, 1024")
        k(f"s_add_u32 s{so+1}, s{so}, s{s_t1}"); k(f"s_add_u32 s{so}, s{so}, s{s_t0}")
        k(f"s_add_u32 s{so+3}, s{so+2}, s{s_t1}"); k(f"s_add_u32 s{so+2}, s{so+2}, s{s_t0}")
        k("s_waitcnt lgkmcnt(0)")
        T = EP + 64; n_st = 0
        for mt in range(2):
            for nt in range(2):
                a = acc(mt, nt)
                for p in range(8):
                    x = vr(a + 2*p, 2)
                    k(f"v_pk_fma_f32 {x}, {vr(NM + mt*16 + 2*p, 2)}, {vr(CSV[nt],2)}, {x} op_sel_hi:[1,0,1]")
                for p in range(8):
                    x = vr(a + 2*p, 2)
                    k(f"v_pk_mul_f32 {x}, {x}, {vr(RS + mt*16 + 2*p, 2)}")
                Pk = T + (n_st % 2) * 8
                for p in range(8):
                    k(f"v_cvt_pk_bf16_f32 v{Pk + p}, v{a + 2*p}, v{a + 2*p + 1}")
                for jj in range(2):
                    k(f"buffer_store_dwordx4 {vr(Pk + 4*jj, 4)}, v{vt[2 + jj]}, s[{sW}:{sW+3}], s{so + mt*2 + nt} offen")
                n_st += 1

    if qkv:
        k(f"s_cmp_ge_u32 s{s_nb}, 10")
        k(f"s_cbranch_scc1 {k.L('loopv')}")
        mainloop("q", False); stats(False); epi_nm()
        k("s_endpgm")
        mainloop("v", True); stats(True); epi_v()
    else:
        mainloop("q", False); stats(False)
        k(f"s_cmp_eq_u32 s{s_nb}, 13"); k(f"s_cselect_b32 s{s_t0}, s{s_pj}, 0")
        k(f"s_cmp_ge_u32 s{s_t0}, 2"); k(f"s_cbranch_scc1 {k.L('end')}")
        epi_nm()
    k.label(k.L("end"))
    k("s_endpgm")
    return k, EP + 64 + 32, NS * SLOT

def attn():
    k = K("attn")
    sW = 4
    s_hd, s_qb, s_w, s_qs, s_kh, s_t0, s_t1, s_it = 20, 21, 22, 23, 24, 25, 26, 27
    s_ko, s_vo, s_odd = 28, 29, 30
    s_vm = 32
    s_lo = 34
    s_c = 36
    v_lane, v_t, v_h = 1, 2, 3
    vK1, vK2, vV0, vV1 = 4, 5, 6, 7
    vt = [8, 9, 10, 11, 12, 13, 14, 15]
    vm = [16, 17]
    Q1 = [20, 24]; Q2 = [28, 30]
    NBUF = 4
    KB = [32 + 6 * i + (2 if i % 2 else 0) for i in range(NBUF)]
    K1 = [32, 36, 40, 44]; K2 = [48, 50, 52, 54]
    VB = [56, 64, 72, 80]
    C = [88, 104]; Sx = [120, 136]; P = [152, 160]; O = [168, 184]
    NV = 200
    k("s_cmp_ge_u32 s2, 256"); k(f"s_cbranch_scc1 {k.L('end')}")
    k("s_load_dwordx2 s[40:41], s[0:1], 80")
    k(f"s_and_b32 s{s_hd}, s2, 7"); k(f"s_lshl_b32 s{s_hd}, s{s_hd}, 2")
    k(f"s_bfe_u32 s{s_t0}, s2, 0x20003"); k(f"s_add_u32 s{s_hd}, s{s_hd}, s{s_t0}")
    k(f"s_lshr_b32 s{s_qb}, s2, 5")
    k(f"v_and_b32 v{v_lane}, 63, v0")
    k(f"v_lshrrev_b32 v{vt[0]}, 6, v0")
    k(f"v_readfirstlane_b32 s{s_w}, v{vt[0]}")
    k(f"v_and_b32 v{v_t}, 31, v0")
    k(f"v_bfe_u32 v{v_h}, v0, 5, 1")
    k(f"s_and_b32 s{s_qs}, s{s_w}, 3"); k(f"s_lshr_b32 s{s_kh}, s{s_w}, 2")
    k(f"s_and_b32 s{s_odd}, s{s_hd}, 1")
    k(f"s_mov_b32 s{s_vm}, 0xfffff"); k(f"s_mov_b32 s{s_vm+1}, 0xfffff")
    k(f"s_mov_b32 s{s_lo}, -1"); k(f"s_mov_b32 s{s_lo+1}, 0")
    k(f"s_lshr_b32 s{s_t0}, s{s_hd}, 1"); k(f"s_mul_i32 s{s_t0}, s{s_t0}, 5")
    k(f"s_mul_i32 s{s_t1}, s{s_odd}, 3"); k(f"s_add_u32 s{s_t1}, s{s_t1}, s{s_t0}")
    k(f"v_add_lshl_u32 v{vK1}, v{v_h}, s{s_t1}, 15")
    k(f"v_lshl_add_u32 v{vK1}, v{v_t}, 4, v{vK1}")
    k(f"s_add_u32 s{s_t0}, s{s_t0}, 2"); k(f"s_lshl_b32 s{s_t0}, s{s_t0}, 15")
    k(f"s_lshl_b32 s{s_t1}, s{s_odd}, 3"); k(f"s_add_u32 s{s_t0}, s{s_t0}, s{s_t1}")
    k(f"v_lshl_add_u32 v{vK2}, v{v_t}, 4, s{s_t0}")
    k(f"v_add_u32 v{vt[0]}, 4, v{v_t}")
    k(f"v_subrev_u32 v{vt[1]}, 16, v{v_t}")
    k(f"v_cmp_gt_u32 vcc, 16, v{v_t}")
    k(f"v_cndmask_b32 v{vt[0]}, v{vt[1]}, v{vt[0]}, vcc")
    k(f"s_cmp_eq_u32 s{s_odd}, 1")
    k(f"s_cselect_b64 vcc, -1, 0")
    k(f"v_cndmask_b32 v{vt[0]}, v{v_t}, v{vt[0]}, vcc")
    k(f"s_mul_i32 s{s_t0}, s{s_hd}, 20")
    k(f"v_add_lshl_u32 v{vV0}, v{vt[0]}, s{s_t0}, 5")
    k(f"v_lshl_add_u32 v{vV0}, v{v_h}, 4, v{vV0}")
    k(f"v_add_u32 v{vV1}, {640 * 32}, v{vV0}")
    k(f"s_lshl_b32 s{s_ko}, s{s_kh}, 14"); k(f"s_add_u32 s{s_ko}, s{s_ko}, {QK_OFF + 80 * CH}")
    k(f"s_mul_i32 s{s_vo}, s{s_kh}, {32 * 1280 * 32}"); k(f"s_add_u32 s{s_vo}, s{s_vo}, {V_OFF}")
    k(f"s_lshl_b32 s{s_t0}, s{s_qb}, 12"); k(f"s_lshl_b32 s{s_t1}, s{s_qs}, 10"); k(f"s_add_u32 s{s_t0}, s{s_t0}, s{s_t1}")
    for qt in range(2):
        k(f"v_mov_b32 v{Q2[qt]}, 0"); k(f"v_mov_b32 v{Q2[qt]+1}, 0")
    k(f"v_cmp_eq_u32 vcc, 20, v{v_t}")
    k(f"v_mov_b32 v{vt[1]}, 0x3f803f80")
    k(f"v_cndmask_b32 v{vt[1]}, 0, v{vt[1]}, vcc")
    for b in range(NBUF):
        for r in range(8): k(f"v_mov_b32 v{VB[b] + r}, v{vt[1]}")
    k("s_waitcnt lgkmcnt(0)")
    srd(k, sW, 40, 41, WS_END)
    W = f"s[{sW}:{sW+3}]"
    def kload(b):
        return [f"buffer_load_dwordx4 {vr(K1[b],4)}, v{vK1}, {W}, s{s_ko} offen",
                f"buffer_load_dwordx2 {vr(K2[b],2)}, v{vK2}, {W}, s{s_ko} offen",
                f"s_add_u32 s{s_ko}, s{s_ko}, 512"]
    def vload(b):
        return [f"s_mov_b64 exec, s[{s_vm}:{s_vm+1}]",
                f"buffer_load_dwordx4 {vr(VB[b],4)}, v{vV0}, {W}, s{s_vo} offen",
                f"buffer_load_dwordx4 {vr(VB[b]+4,4)}, v{vV1}, {W}, s{s_vo} offen",
                f"s_mov_b64 exec, -1",
                f"s_add_u32 s{s_vo}, s{s_vo}, {1280 * 32}"]
    for qt in range(2):
        k(f"buffer_load_dwordx4 {vr(Q1[qt],4)}, v{vK1}, {W}, s{s_t0} offen offset:{qt*512}")
    k(f"s_mov_b64 exec, s[{s_lo}:{s_lo+1}]")
    for qt in range(2):
        k(f"buffer_load_dwordx2 {vr(Q2[qt],2)}, v{vK2}, {W}, s{s_t0} offen offset:{qt*512}")
    k("s_mov_b64 exec, -1")
    k(f"s_mov_b32 s42, s{s_ko}"); k(f"s_mov_b32 s43, s{s_vo}")
    for l in kload(0) + kload(1) + vload(0) + kload(2) + vload(1) + kload(3) + vload(2): k(l)
    for qt in range(2):
        for r in range(16): k(f"v_mov_b32 v{O[qt] + r}, 0")
    for r in range(8): k(f"v_mov_b32 v{P[1] + r}, 0")
    def qk(qt, b, c):
        cc = "0" if c is None else vr(c, 16)
        return [f"v_mfma_f32_32x32x16_bf16 {vr(Sx[qt],16)}, {vr(K1[b],4)}, {vr(Q1[qt],4)}, {cc}",
                f"v_mfma_f32_32x32x8_bf16 {vr(Sx[qt],16)}, {vr(K2[b],2)}, {vr(Q2[qt],2)}, {vr(Sx[qt],16)}"]
    def pv(qt, b):
        return [f"v_mfma_f32_32x32x16_bf16 {vr(O[qt],16)}, {vr(VB[b],4)}, {vr(P[qt],4)}, {vr(O[qt],16)}",
                f"v_mfma_f32_32x32x16_bf16 {vr(O[qt],16)}, {vr(VB[b]+4,4)}, {vr(P[qt]+4,4)}, {vr(O[qt],16)}"]
    def rowmax(qt, dst, tmp):
        s = Sx[qt]
        k(f"v_max3_f32 v{dst}, v{s}, v{s+1}, v{s+2}")
        for r in range(3, 15, 2): k(f"v_max3_f32 v{dst}, v{dst}, v{s+r}, v{s+r+1}")
        k(f"v_max_f32 v{dst}, v{dst}, v{s+15}")
        k(f"v_mov_b32 v{tmp}, v{dst}")
        k(f"v_permlane32_swap_b32 v{dst}, v{tmp}")
        k(f"v_max_f32 v{dst}, v{dst}, v{tmp}")
    k("s_waitcnt vmcnt(12)")
    for qt in range(2):
        for l in qk(qt, 0, None): k(l)
    for qt in range(2):
        rowmax(qt, vm[qt], vt[0])
        k(f"v_sub_f32 v{vt[1]}, 0, v{vm[qt]}")
        for r in range(16): k(f"v_mov_b32 v{C[qt] + r}, v{vt[1]}")
    for l in qk(0, 0, C[0]): k(l)
    k(f"s_mov_b32 s{s_it}, 0")
    k("s_nop 7")
    k("s_nop 3")

    def slot(qt, mf, extra):
        s = Sx[qt]; p = P[qt]
        for i in range(16):
            for l in extra.get(i, []): k(l)
            if i % 4 == 0: k(mf[i // 4])
            k(f"v_exp_f32 v{s+i}, v{s+i}")
            if i % 2 == 1 and i >= 3:
                k(f"v_cvt_pk_bf16_f32 v{p + (i-3)//2}, v{s+i-3}, v{s+i-2}")
        for l in extra.get(16, []): k(l)
        k(f"v_cvt_pk_bf16_f32 v{p+7}, v{s+14}, v{s+15}")
    k.label(k.L("loop"))
    for u in range(NBUF):
        b = u; bp = (u - 1) % NBUF; bn = (u + 1) % NBUF
        slot(0, qk(1, b, C[1]) + pv(1, bp), {6: kload(b), 14: vload(bp)})
        slot(1, qk(0, bn, C[0]) + pv(0, b), {0: ["s_waitcnt vmcnt(12)"]})
    k(f"s_add_u32 s{s_it}, s{s_it}, 1")
    k(f"s_cmp_lt_u32 s{s_it}, {32 // NBUF}")
    k(f"s_cbranch_scc1 {k.L('loop')}")
    for l in pv(1, NBUF - 1): k(l)
    k("s_nop 7"); k("s_nop 7")
    k(f"v_add_f32 v{vt[0]}, |v{O[0]}|, |v{O[1]}|")
    for qt in range(2):
        for r in range(1, 12):
            k(f"v_add_f32 v{vt[0]}, v{vt[0]}, |v{O[qt]+r}|")
    k(f"v_add_f32 v{vt[1]}, v{O[0]+8}, v{O[1]+8}")
    k(f"s_mov_b32 s{s_t0}, {f32(2.0**100)}")
    k(f"v_cmp_nlt_f32 s[{s_c}:{s_c+1}], v{vt[0]}, s{s_t0}")
    k(f"s_mov_b32 s{s_t0}, {f32(2.0**60)}")
    k(f"v_cmp_nlt_f32 vcc, |v{vt[1]}|, s{s_t0}")
    k(f"s_andn2_b64 vcc, vcc, s[{s_lo}:{s_lo+1}]")
    k(f"s_or_b64 s[{s_c}:{s_c+1}], s[{s_c}:{s_c+1}], vcc")
    k("s_waitcnt vmcnt(0)")
    k(f"s_cmp_eq_u64 s[{s_c}:{s_c+1}], 0")
    k(f"s_cbranch_scc1 {k.L('merge')}")
    k(f"s_mov_b32 s{s_ko}, s42"); k(f"s_mov_b32 s{s_vo}, s43")
    for qt in range(2):
        for r in range(16): k(f"v_mov_b32 v{O[qt] + r}, 0")
        k(f"v_mov_b32 v{vm[qt]}, 0xff800000")
    k(f"s_mov_b32 s{s_it}, 0")
    k.label(k.L("fb"))
    for l in kload(0) + vload(0): k(l)
    k("s_waitcnt vmcnt(0)")
    for qt in range(2):
        for l in qk(qt, 0, None): k(l)
    for qt in range(2):
        rowmax(qt, vt[2], vt[0])
        k(f"v_max_f32 v{vt[2]}, v{vt[2]}, v{vm[qt]}")
        k(f"v_sub_f32 v{vt[3]}, v{vm[qt]}, v{vt[2]}")
        k(f"v_exp_f32 v{vt[3]}, v{vt[3]}")
        k(f"v_mov_b32 v{vm[qt]}, v{vt[2]}")
        for r in range(16): k(f"v_mul_f32 v{O[qt]+r}, v{O[qt]+r}, v{vt[3]}")
        for r in range(16): k(f"v_sub_f32 v{Sx[qt]+r}, v{Sx[qt]+r}, v{vt[2]}")
        for r in range(16): k(f"v_exp_f32 v{Sx[qt]+r}, v{Sx[qt]+r}")
        for r in range(8): k(f"v_cvt_pk_bf16_f32 v{P[qt]+r}, v{Sx[qt]+2*r}, v{Sx[qt]+2*r+1}")
        for l in pv(qt, 0): k(l)
    k("s_nop 7"); k("s_nop 7")
    k(f"s_add_u32 s{s_it}, s{s_it}, 1")
    k(f"s_cmp_lt_u32 s{s_it}, 32")
    k(f"s_cbranch_scc1 {k.L('fb')}")
    k.label(k.L("merge"))
    k(f"s_cmp_eq_u32 s{s_kh}, 0")
    k(f"s_cbranch_scc1 {k.L('noswap')}")
    for r in range(12): k(f"v_swap_b32 v{O[0]+r}, v{O[1]+r}")
    k(f"v_swap_b32 v{vm[0]}, v{vm[1]}")
    k.label(k.L("noswap"))
    k(f"v_mov_b32 v{O[1]+12}, v{vm[1]}")
    k(f"s_lshl_b32 s{s_t0}, s{s_w}, 12")
    k(f"v_lshl_add_u32 v{vt[0]}, v{v_lane}, 4, s{s_t0}")
    k(f"v_xor_b32 v{vt[1]}, {4 << 12}, v{vt[0]}")
    for q in range(4): k(f"ds_write_b128 v{vt[0]}, {vr(O[1] + 4*q, 4)} offset:{q*1024}")
    k("s_waitcnt lgkmcnt(0)")
    k("s_barrier")
    for q in range(4): k(f"ds_read_b128 {vr(Sx[0] + 4*q, 4)}, v{vt[1]} offset:{q*1024}")
    k(f"s_lshl_b32 s{s_t0}, s{s_qb}, 12"); k(f"s_lshl_b32 s{s_t1}, s{s_qs}, 10"); k(f"s_add_u32 s{s_t0}, s{s_t0}, s{s_t1}")
    k(f"s_lshl_b32 s{s_t1}, s{s_kh}, 9"); k(f"s_add_u32 s{s_t0}, s{s_t0}, s{s_t1}"); k(f"s_add_u32 s{s_t0}, s{s_t0}, {O_OFF}")
    k("s_waitcnt lgkmcnt(0)")
    mo = Sx[0] + 12
    k(f"v_max_f32 v{vt[2]}, v{vm[0]}, v{mo}")
    k(f"v_sub_f32 v{vt[3]}, v{vm[0]}, v{vt[2]}"); k(f"v_sub_f32 v{vt[4]}, v{mo}, v{vt[2]}")
    k(f"v_exp_f32 v{vt[3]}, v{vt[3]}"); k(f"v_exp_f32 v{vt[4]}, v{vt[4]}")
    for r in range(12): k(f"v_mul_f32 v{O[0]+r}, v{O[0]+r}, v{vt[3]}")
    for r in range(12): k(f"v_fmac_f32 v{O[0]+r}, v{Sx[0]+r}, v{vt[4]}")
    k(f"v_mov_b32 v{vt[5]}, v{O[0]+8}"); k(f"v_mov_b32 v{vt[6]}, v{O[0]+8}")
    k(f"v_permlane32_swap_b32 v{vt[5]}, v{vt[6]}")
    k(f"v_rcp_f32 v{vt[6]}, v{vt[6]}")
    for r in range(12): k(f"v_mul_f32 v{O[0]+r}, v{O[0]+r}, v{vt[6]}")
    for r in range(6): k(f"v_cvt_pk_bf16_f32 v{P[0]+r}, v{O[0]+2*r}, v{O[0]+2*r+1}")
    k(f"v_permlane32_swap_b32 v{P[0]}, v{P[0]+2}")
    k(f"v_permlane32_swap_b32 v{P[0]+1}, v{P[0]+3}")
    k(f"buffer_store_dwordx4 {vr(P[0],4)}, v{vK1}, {W}, s{s_t0} offen")
    k(f"s_mov_b64 exec, s[{s_lo}:{s_lo+1}]")
    k(f"buffer_store_dwordx2 {vr(P[0]+4,2)}, v{vK2}, {W}, s{s_t0} offen")
    k.label(k.L("end"))
    k("s_endpgm")
    return k, NV, 8 * 4096

def resgemm(kind):
    k = K(kind)
    op = kind == "oproj"
    KK = D if op else F
    NKS = KK // 32
    GS = 4
    NG = (NKS + GS - 1) // GS
    GB = GS * 5120
    NSLOT = 5
    A_OFF = O_OFF if op else G_OFF
    sB, sW, sR, sO, sBi = 4, 8, 12, 16, 44
    s_rb, s_cb, s_w, s_t0, s_t1, s_offB, s_offA, s_m0, s_it, s_slot, s_delta = 20, 21, 22, 23, 24, 25, 26, 27, 28, 29, 30
    v_lane, v_t, v_g = 1, 2, 3
    vBd = [4, 5, 6, 7, 8]; vA = 9; vBr = 10; vO = 11
    vt = [12, 13, 14, 15]
    RES = 16
    BI = 26
    ACC = 36
    FB = [56, 76]
    PD = NSLOT - 1
    FA = 96
    NV = FA + NSLOT * 16
    k("s_cmp_ge_u32 s2, 256"); k(f"s_cbranch_scc1 {k.L('end')}")
    if op:
        k("s_load_dwordx2 s[36:37], s[0:1], 16")
        k("s_load_dwordx2 s[38:39], s[0:1], 0")
    else:
        k("s_load_dwordx4 s[36:39], s[0:1], 48")
        k("s_load_dwordx2 s[42:43], s[0:1], 64")
    k("s_load_dwordx2 s[40:41], s[0:1], 80")
    k(f"s_and_b32 s{s_rb}, s2, 7"); k(f"s_lshl_b32 s{s_rb}, s{s_rb}, 2")
    k(f"s_bfe_u32 s{s_t0}, s2, 0x20003"); k(f"s_add_u32 s{s_rb}, s{s_rb}, s{s_t0}")
    k(f"s_lshr_b32 s{s_cb}, s2, 5")
    k(f"v_and_b32 v{v_lane}, 63, v0")
    k(f"v_lshrrev_b32 v{vt[0]}, 6, v0")
    k(f"v_readfirstlane_b32 s{s_w}, v{vt[0]}")
    k(f"v_and_b32 v{v_t}, 15, v0")
    k(f"v_bfe_u32 v{v_g}, v0, 4, 2")
    k(f"s_mul_i32 s{s_t1}, s{s_cb}, 160")
    k(f"s_mov_b32 s{s_t0}, 6554")
    for i5 in range(5):
        k(f"v_add_u32 v{vt[0]}, {64*i5}, v{v_lane}")
        k(f"v_mul_u32_u24 v{vt[1]}, s{s_t0}, v{vt[0]}")
        k(f"v_lshrrev_b32 v{vt[1]}, 16, v{vt[1]}")
        k(f"v_mul_u32_u24 v{vt[2]}, 10, v{vt[1]}")
        k(f"v_sub_u32 v{vt[0]}, v{vt[0]}, v{vt[2]}")
        k(f"v_bfe_u32 v{vt[2]}, v{vt[1]}, 2, 2")
        k(f"v_lshlrev_b32 v{vt[2]}, 3, v{vt[2]}")
        k(f"v_bfe_u32 v{vt[3]}, v{vt[1]}, 4, 1")
        k(f"v_lshl_add_u32 v{vt[2]}, v{vt[3]}, 2, v{vt[2]}")
        k(f"v_and_b32 v{vt[1]}, 3, v{vt[1]}")
        k(f"v_add_u32 v{vt[1]}, v{vt[1]}, v{vt[2]}")
        k(f"v_mul_u32_u24 v{vt[1]}, 1280, v{vt[1]}")
        k(f"v_lshl_add_u32 v{vt[1]}, v{vt[0]}, 4, v{vt[1]}")
        k(f"v_subrev_u32 v{vBd[i5]}, {(i5 % 4) * 1024}, v{vt[1]}")
    k(f"s_mul_i32 s{s_offB}, s{s_w}, {32 * 1280}"); k(f"s_add_u32 s{s_offB}, s{s_offB}, s{s_t1}")
    k(f"s_mul_i32 s{s_m0}, s{s_w}, 5120")
    k(f"s_lshl_b32 s{s_t0}, s{s_rb}, 6"); k(f"s_lshl_b32 s{s_t1}, s{s_w}, 4"); k(f"s_add_u32 s{s_t0}, s{s_t0}, s{s_t1}")
    k(f"v_add_u32 v{vt[0]}, s{s_t0}, v{v_t}")
    k(f"v_lshlrev_b32 v{vA}, 15, v{v_g}")
    k(f"v_lshl_add_u32 v{vA}, v{vt[0]}, 4, v{vA}")
    k(f"s_mov_b32 s{s_offA}, {A_OFF}")
    k(f"v_mul_u32_u24 v{vt[1]}, 1280, v{vt[0]}")
    k(f"v_lshl_add_u32 v{vt[1]}, v{v_g}, 3, v{vt[1]}")
    k(f"s_mul_i32 s{s_t1}, s{s_cb}, 160")
    k(f"v_add_u32 v{vt[1]}, s{s_t1}, v{vt[1]}")
    k(f"v_lshrrev_b32 v{vt[2]}, 1, v{v_g}")
    k(f"s_mul_i32 s{s_t0}, s{s_cb}, 10")
    k(f"v_add_lshl_u32 v{vt[2]}, v{vt[2]}, s{s_t0}, 15")
    k(f"v_lshl_add_u32 v{vt[2]}, v{vt[0]}, 4, v{vt[2]}")
    k(f"v_and_b32 v{vt[3]}, 1, v{v_g}")
    k(f"v_lshl_add_u32 v{vt[2]}, v{vt[3]}, 3, v{vt[2]}")
    k(f"v_add_u32 v{vt[2]}, {H_OFF}, v{vt[2]}")
    k(f"v_mov_b32 v{vO}, v{vt[2] if op else vt[1]}")
    k(f"v_lshrrev_b32 v{vt[0]}, 2, v{v_lane}")
    k(f"v_mul_u32_u24 v{vBr}, 160, v{vt[0]}")
    k(f"v_and_b32 v{vt[0]}, 3, v{v_lane}")
    k(f"v_lshl_add_u32 v{vBr}, v{vt[0]}, 3, v{vBr}")
    k("s_waitcnt lgkmcnt(0)")
    srd(k, sB, 36, 37, KK * D * 2); srd(k, sW, 40, 41, WS_END)
    if op:
        srd(k, sR, 38, 39, S * D * 2)
        for j in range(5):
            k(f"buffer_load_dwordx2 {vr(RES + 2*j, 2)}, v{vt[1]}, s[{sR}:{sR+3}], 0 offen offset:{32*j}")
    else:
        srd(k, sO, 42, 43, S * D * 2); srd(k, sBi, 38, 39, D * 2)
        for j in range(5):
            k(f"s_mov_b32 s{s_t0}, {2*j*CH}")
            k(f"buffer_load_dwordx2 {vr(RES + 2*j, 2)}, v{vt[2]}, s[{sW}:{sW+3}], s{s_t0} offen")
        k(f"v_lshlrev_b32 v{vt[0]}, 3, v{v_g}")
        for j in range(5):
            k(f"buffer_load_dwordx2 {vr(BI + 2*j, 2)}, v{vt[0]}, s[{sBi}:{sBi+3}], s{s_t1} offen offset:{32*j}")

    def issue(G):
        slot = G % NSLOT
        r = [f"s_add_u32 m0, s{s_m0}, {slot * GB}"]
        for i5 in range(4):
            r.append(f"buffer_load_dwordx4 v{vBd[i5]}, s[{sB}:{sB+3}], s{s_offB} offen offset:{i5*1024} lds")
        r.append(f"s_add_u32 m0, s{s_m0}, {slot * GB + 4096}")
        r.append(f"buffer_load_dwordx4 v{vBd[4]}, s[{sB}:{sB+3}], s{s_offB} offen lds")
        r.append(f"s_add_u32 s{s_offB}, s{s_offB}, {GS * 32 * 1280}")
        for q in range(GS):
            r.append(f"buffer_load_dwordx4 {vr(FA + slot*16 + q*4, 4)}, v{vA}, s[{sW}:{sW+3}], s{s_offA} offen")
            r.append(f"s_add_u32 s{s_offA}, s{s_offA}, {4 * CH}")
        return r
    for G in range(min(NSLOT, NG)):
        for l in issue(G): k(l)
    for r in range(20): k(f"v_mov_b32 v{ACC + r}, 0")
    issued = min(NSLOT, NG)
    cur_base = 0
    def breads(G, q, buf):
        nonlocal cur_base
        slot = G % NSLOT
        off = slot * GB + q * 5120
        r = []
        base = (off // 40960) * 40960
        if base != cur_base:
            r.append(f"v_add_u32 v{vBr}, {(base - cur_base) & 0xffffffff:#x}, v{vBr}")
            cur_base = base
        for j in range(5):
            for e in range(2):
                r.append(f"ds_read_b64_tr_b16 {vr(FB[buf] + 4*j + 2*e, 2)}, v{vBr} offset:{off - base + e*2560 + j*32}")
        return r
    steps = [(G, q) for G in range(NG) for q in range(GS) if G * GS + q < NKS]
    k(f"s_waitcnt vmcnt({(issued - 1) * 9})")
    k("s_barrier")
    for l in breads(0, 0, 0): k(l)
    for i, (G, q) in enumerate(steps):
        buf = i & 1
        slot = G % NSLOT
        mf = [f"v_mfma_f32_16x16x32_bf16 {vr(ACC + 4*j, 4)}, {vr(FB[buf] + 4*j, 4)}, {vr(FA + slot*16 + q*4, 4)}, {vr(ACC + 4*j, 4)}" for j in range(5)]
        k("s_waitcnt lgkmcnt(0)")
        nxt = steps[i + 1] if i + 1 < len(steps) else None
        post = []
        if nxt and nxt[0] != G:
            k(f"s_waitcnt vmcnt({(issued - 1 - nxt[0]) * 9})")
            k("s_barrier")
            if issued < NG:
                post = issue(issued); issued += 1
        rd = breads(nxt[0], nxt[1], buf ^ 1) if nxt else []
        for j in range(5):
            k(mf[j])
            n = len(rd) - 10 if j == 0 else 0
            if rd:
                for l in rd[: n + 2]: k(l)
                rd = rd[n + 2:]
        for l in post: k(l)
    T = FB[0]
    for j in range(5):
        for p in range(2):
            k(f"v_lshlrev_b32 v{T + 4*j + 2*p}, 16, v{RES + 2*j + p}")
            k(f"v_and_b32 v{T + 4*j + 2*p + 1}, 0xffff0000, v{RES + 2*j + p}")
        if not op:
            for p in range(2):
                k(f"v_lshlrev_b32 v{vt[0]}, 16, v{BI + 2*j + p}")
                k(f"v_and_b32 v{vt[1]}, 0xffff0000, v{BI + 2*j + p}")
                k(f"v_pk_add_f32 {vr(T + 4*j + 2*p, 2)}, {vr(T + 4*j + 2*p, 2)}, {vr(vt[0], 2)}")
    for j in range(5):
        for p in range(2):
            k(f"v_pk_add_f32 {vr(T + 4*j + 2*p, 2)}, {vr(T + 4*j + 2*p, 2)}, {vr(ACC + 4*j + 2*p, 2)}")
        for p in range(2):
            k(f"v_cvt_pk_bf16_f32 v{RES + 2*j + p}, v{T + 4*j + 2*p}, v{T + 4*j + 2*p + 1}")
        if op:
            k(f"s_mov_b32 s{s_t0}, {2*j*CH}")
            k(f"buffer_store_dwordx2 {vr(RES + 2*j, 2)}, v{vO}, s[{sW}:{sW+3}], s{s_t0} offen")
        else:
            k(f"buffer_store_dwordx2 {vr(RES + 2*j, 2)}, v{vO}, s[{sO}:{sO+3}], 0 offen offset:{32*j}")
    k.label(k.L("end"))
    k("s_endpgm")
    return k, NV, NSLOT * GB

HEADER = open("sequential_preLN__mha_block__mixer_channel_mlp__prompt.s.ref").read().split("; Override")[0]

def build(path):
    ks = [(lngemm("qkv"), 256, 256), (attn(), 256, 512), (resgemm("oproj"), 256, 256), (lngemm("mlp1"), 224, 256), (resgemm("mlp2"), 256, 256)]
    t = HEADER
    for (k, nv, lds), grid, block in ks:
        t += f"; @launch kernel={k.name}_kernel grid=({grid},1,1) block=({block},1,1) lds={lds}\n"
    t += '.amdgcn_target "amdgcn-amd-amdhsa--gfx950"\n.text\n'
    for (k, nv, lds), grid, block in ks:
        t += kernel_text(k, nv)
    t += '.section .rodata,"a"\n'
    for (k, nv, lds), grid, block in ks:
        t += kernel_desc(k, nv)
    open(path, "w").write(t)

if __name__ == "__main__":
    build(sys.argv[1] if len(sys.argv) > 1 else "sequential_preLN__mha_block__mixer_channel_mlp__prompt.s")
```

```python
import re

TRANS = ("v_exp_f32", "v_log_f32", "v_rcp_f32", "v_rsq_f32", "v_sqrt_f32", "v_sin_f32", "v_cos_f32",
         "v_exp_f16", "v_rcp_f16", "v_rcp_iflag_f32")

def regs_of(tok):
    tok = tok.strip()
    neg = tok.lstrip("-")
    m = re.fullmatch(r"\|?(?:abs\()?([vsa])(\d+)\)?\|?", neg)
    if m:
        return {(m.group(1), int(m.group(2)))}
    m = re.fullmatch(r"([vsa])\[(\d+):(\d+)\]", neg)
    if m:
        return {(m.group(1), i) for i in range(int(m.group(2)), int(m.group(3)) + 1)}
    if neg in ("vcc", "vcc_lo", "vcc_hi"):
        return {("vcc", 0)}
    if neg in ("exec", "exec_lo", "exec_hi"):
        return {("exec", 0)}
    if neg == "m0":
        return {("m0", 0)}
    return set()

class Ins:
    __slots__ = ("text", "op", "ops", "mods", "kind", "rd", "wr", "passes", "srcc", "srcab", "states", "label", "target")
    def __init__(self, text):
        self.text = text
        t = text.split(";")[0].strip()
        self.label = None
        self.target = None
        self.rd = set(); self.wr = set(); self.passes = 0; self.srcc = set(); self.srcab = set()
        self.states = 1
        self.op = ""; self.ops = []; self.mods = ""
        if not t or t.startswith("."):
            self.kind = "none"; self.states = 0
            return
        if t.endswith(":"):
            self.kind = "label"; self.label = t[:-1]; self.states = 0
            return
        parts = t.split(None, 1)
        op = parts[0]; self.op = op
        rest = parts[1] if len(parts) > 1 else ""
        ops = []; depth = 0; cur = ""
        for ch in rest:
            if ch == "[": depth += 1
            if ch == "]": depth -= 1
            if ch == "," and depth == 0:
                ops.append(cur.strip()); cur = ""
            else:
                cur += ch
        if cur.strip():
            ops.append(cur.strip())
        mods = ""
        if ops:
            sp = ops[-1].split(None, 1)
            if len(sp) > 1:
                ops[-1] = sp[0]; mods = sp[1]
        self.ops = ops; self.mods = mods
        R = [regs_of(o) for o in ops]
        base = re.sub(r"_e32$|_e64$|_dpp$|_sdwa$", "", op)
        if op.startswith("v_mfma"):
            self.kind = "mfma"
            self.wr = R[0]; self.srcab = R[1] | R[2]; self.srcc = R[3]
            self.rd = self.srcab | self.srcc
            if "32x32x16" in op or "32x32x8" in op: self.passes = 8
            elif "16x16x32" in op or "16x16x16" in op: self.passes = 4
            else: raise ValueError("unknown mfma " + op)
        elif op.startswith("v_"):
            self.kind = "valu"
            if base.startswith("v_permlane"):
                self.wr = R[0] | R[1]; self.rd = R[0] | R[1]
            elif base.startswith("v_cmp"):
                self.wr = R[0]; self.rd = set().union(*R[1:])
            elif base in ("v_add_co_u32", "v_sub_co_u32", "v_addc_co_u32", "v_subb_co_u32"):
                self.wr = R[0] | R[1]; self.rd = set().union(*R[2:])
            else:
                self.wr = R[0]; self.rd = set().union(*R[1:]) if len(R) > 1 else set()
                if base in ("v_fmac_f32", "v_dot2c_f32_bf16", "v_pk_fmac_f16", "v_writelane_b32"):
                    self.rd = self.rd | R[0]
                if "UNUSED_PRESERVE" in mods:
                    self.rd = self.rd | R[0]
        elif op.startswith("ds_"):
            self.kind = "ds"
            if op.startswith("ds_read") or op.startswith("ds_bpermute") or op.startswith("ds_swizzle") or op.startswith("ds_permute"):
                self.wr = R[0]; self.rd = set().union(*R[1:])
            else:
                self.rd = set().union(*R)
        elif op.startswith("buffer_") or op.startswith("global_"):
            self.kind = "vmem"
            if "load" in op and " lds" not in (" " + mods) and "load_lds" not in op:
                self.wr = R[0]; self.rd = set().union(*R[1:])
            else:
                self.rd = set().union(*R)
                if " lds" in (" " + mods) or "load_lds" in op:
                    self.rd = self.rd | {("m0", 0)}
        elif op.startswith("s_"):
            self.kind = "salu"
            if op == "s_nop":
                self.states = int(ops[0], 0) + 1
            elif op.startswith("s_cbranch") or op == "s_branch":
                self.target = ops[0]; self.kind = "branch"
            elif op.startswith("s_cmp") or op in ("s_waitcnt", "s_barrier", "s_endpgm", "s_setprio", "s_sleep"):
                self.rd = set().union(*R) if R else set()
            elif op.startswith("s_load") or op.startswith("s_buffer_load") or op.startswith("s_memtime") or op.startswith("s_memrealtime"):
                self.kind = "smem"
                self.wr = R[0]; self.rd = set().union(*R[1:]) if len(R) > 1 else set()
            else:
                self.wr = R[0]; self.rd = set().union(*R[1:]) if len(R) > 1 else set()
                if "saveexec" in op:
                    self.wr = self.wr | {("exec", 0)}
        else:
            raise ValueError("cannot classify: " + text)

def vonly(s):
    return {r for r in s if r[0] in ("v", "a")}
def sonly(s):
    return {r for r in s if r[0] in ("s", "vcc")}

def need(p, c):
    n = 0
    pb = re.sub(r"_e32$|_e64$", "", p.op); cb = re.sub(r"_e32$|_e64$", "", c.op)
    if p.kind == "valu":
        pw = vonly(p.wr)
        isdot = pb.startswith("v_dot")
        if c.kind == "mfma" and pw & c.rd:
            n = max(n, 3 if isdot else 2)
        if c.kind == "valu":
            if pb in TRANS and cb not in TRANS and pw & c.rd: n = max(n, 1)
            if cb.startswith("v_permlane") and pw & c.rd: n = max(n, 2)
            if cb in ("v_readfirstlane_b32", "v_readlane_b32") and pw & c.rd: n = max(n, 1)
            if ("dpp" in c.op or "row_" in c.mods or "quad_perm" in c.mods) and pw & c.rd: n = max(n, 2)
            if isdot and pw & (c.rd | c.wr):
                if cb == pb and cb == "v_dot2c_f32_bf16" and not (pw & (regs_of(c.ops[1]) | regs_of(c.ops[2]))):
                    pass
                else:
                    n = max(n, 3)
            if ("sdwa" in p.op or "op_sel:" in p.mods and not pb.startswith("v_pk_")) and pw & (c.rd | c.wr): n = max(n, 1)
        if c.kind in ("vmem", "ds"):
            if pb in TRANS and pw & c.rd: n = max(n, 1)
            if isdot and pw & c.rd: n = max(n, 3)
        ps = sonly(p.wr)
        if ps:
            if c.kind in ("valu", "mfma") and ps & c.rd:
                n = max(n, 4 if cb in ("v_readlane_b32", "v_writelane_b32") else 2)
            if c.kind == "vmem" and ps & c.rd: n = max(n, 5)
            if c.kind in ("salu", "branch", "smem") and (ps & c.rd or (("vcc", 0) in ps and "vcc" in c.op)): n = max(n, 2)
        if ("exec", 0) in p.wr and c.kind in ("valu", "mfma"): n = max(n, 5)
    if p.kind == "mfma":
        t_rd = {4: 8, 8: 12}[p.passes]
        t_c = {4: 6, 8: 10}[p.passes]
        t_war = {4: 3, 8: 7}[p.passes]
        if c.kind == "mfma":
            if p.wr & c.srcab: n = max(n, t_rd)
            if p.wr & c.srcc:
                if not (p.wr == c.srcc and p.passes == c.passes): n = max(n, t_c)
            elif p.wr & c.wr:
                n = max(n, t_c)
        elif c.kind in ("valu", "vmem", "ds"):
            if p.wr & (c.rd | c.wr): n = max(n, t_rd)
            if c.kind == "valu" and p.srcc & c.wr: n = max(n, t_war)
            if c.kind in ("vmem", "ds") and p.srcc & c.wr: n = max(n, t_war)
    if p.kind == "salu" and ("m0", 0) in p.wr and c.kind == "vmem" and ("m0", 0) in c.rd:
        n = max(n, 1)
    if p.kind in ("vmem", "ds") and ("store" in p.op or "write" in p.op) and ("x4" in p.op or "x3" in p.op or "b128" in p.op or "b96" in p.op):
        data = vonly(regs_of(p.ops[0])) if p.kind == "vmem" and p.op.startswith("buffer") else vonly(regs_of(p.ops[1]))
        if data & c.wr:
            n = max(n, 2 if c.kind in ("valu", "mfma") else 1)
    return n

WINDOW = 24

def fix_hazards(lines, verbose=False):
    ins = [Ins(l) for l in lines]
    out = []
    for c in ins:
        if c.kind in ("none", "label"):
            out.append(c); continue
        dist = 0; req = 0
        for p in reversed(out):
            if p.kind in ("none", "label"): continue
            if p.kind == "branch" and p.op == "s_branch": break
            if p.op == "s_endpgm": break
            n = need(p, c)
            if n - dist > req: req = n - dist
            dist += p.states
            if dist > WINDOW: break
        while req > 0:
            k = min(req, 16)
            out.append(Ins("    s_nop %d" % (k - 1)))
            req -= k
        out.append(c)
    labels = {o.label: i for i, o in enumerate(out) if o.kind == "label"}
    problems = []
    for i, b in enumerate(out):
        if b.kind != "branch" or b.target not in labels: continue
        pre = [p for p in out[max(0, i - 3 * WINDOW):i + 1] if p.kind not in ("none", "label")]
        j = labels[b.target]; d_after = 0
        while j < len(out) and d_after <= WINDOW:
            c = out[j]; j += 1
            if c.kind in ("none", "label"): continue
            dist = d_after
            for p in reversed(pre):
                n = need(p, c)
                if n > dist:
                    problems.append("hazard across branch %s: [%s] -> [%s] needs %d has %d" % (b.text.strip(), p.text.strip(), c.text.strip(), n, dist))
                dist += p.states
                if dist > WINDOW: break
            d_after += c.states
            if c.op in ("s_branch", "s_endpgm"): break
    if problems:
        raise RuntimeError("\n".join(problems))
    return [o.text for o in out]

class K:
    def __init__(self, name):
        self.name = name; self.lines = []; self.uid = 0
    def __call__(self, s):
        for l in s.strip("\n").split("\n"):
            l = l.strip()
            if l: self.lines.append(("" if l.endswith(":") else "    ") + l)
    def label(self, n): self.lines.append(n + ":")
    prof = False
    def stamp(self, i, real=False):
        if K.prof: self(("s_memrealtime" if real else "s_memtime") + " s[%d:%d]" % (60 + 2 * i, 61 + 2 * i))
    def dump(self, kidx, nst, wave_sgpr, ws_lo=40):
        if not K.prof: return
        self("s_waitcnt vmcnt(0)")
        self.stamp(nst - 2); self.stamp(nst - 1, True)
        self("s_waitcnt lgkmcnt(0)")
        self("s_mov_b64 exec, 1")
        self("s_mov_b32 s52, s%d" % ws_lo); self("s_and_b32 s53, s%d, 0xffff" % (ws_lo + 1)); self("s_mov_b32 s54, 0x4000000"); self("s_mov_b32 s55, 0x00020000")
        self("s_add_u32 s56, s2, %d" % (kidx * 512)); self("s_lshl_b32 s56, s56, 4"); self("s_add_u32 s56, s56, s%d" % wave_sgpr)
        self("s_lshl_b32 s56, s56, 6"); self("s_add_u32 s56, s56, 0x2000000")
        self("v_mov_b32 v1, 0")
        self("s_getreg_b32 s57, hwreg(HW_REG_XCC_ID)")
        self("v_mov_b32 v2, s57")
        self("buffer_store_dword v2, v1, s[52:55], s56 offen offset:60")
        self("s_getreg_b32 s57, hwreg(HW_REG_HW_ID)")
        self("v_mov_b32 v3, s57")
        self("buffer_store_dword v3, v1, s[52:55], s56 offen offset:56")
        for i in range(nst):
            self("v_mov_b32 v2, s%d" % (60 + 2 * i))
            self("buffer_store_dword v2, v1, s[52:55], s56 offen offset:%d" % (4 * i))
            self("s_nop 1")

    def L(self, n): return "L_%s_%s" % (self.name, n)

def vr(a, n=1):
    return "v%d" % a if n == 1 else "v[%d:%d]" % (a, a + n - 1)
def sr(a, n=1):
    return "s%d" % a if n == 1 else "s[%d:%d]" % (a, a + n - 1)

def kernel_text(k, nvgpr, nsgpr=96):
    body = fix_hazards(k.lines)
    name = k.name + "_kernel"
    t = ".globl %s\n.p2align 8\n.type %s,@function\n%s:\n" % (name, name, name)
    t += "\n".join(body) + "\n"
    return t

def kernel_desc(k, nvgpr, nsgpr=96):
    name = k.name + "_kernel"
    acc = min(256, (nvgpr + 3) // 4 * 4)
    return (".p2align 6\n.amdhsa_kernel %s\n  .amdhsa_next_free_vgpr %d\n  .amdhsa_next_free_sgpr %d\n  .amdhsa_accum_offset %d\n"
            "  .amdhsa_group_segment_fixed_size 0\n  .amdhsa_kernarg_size 88\n  .amdhsa_user_sgpr_count 2\n"
            "  .amdhsa_user_sgpr_kernarg_segment_ptr 1\n  .amdhsa_system_sgpr_workgroup_id_x 1\n.end_amdhsa_kernel\n") % (name, nvgpr, nsgpr, acc)
```

```python
import sys, math, struct, os
X = set(os.environ.get("EXP", "").split(","))
from asmlib import K, vr, sr, kernel_text, kernel_desc

S = 2048; D = 640; F = 1728; H = 32; DH = 20
QK_OFF = 0x0
V_OFF = 0x500000
O_OFF = 0x780000
H_OFF = 0xA00000
G_OFF = 0xC80000
HS_OFF = 0x1340000
C1_OFF = 0x1370000
WS_END = 0x1374000
G_END = 0x1340000
CH = S * 16
EPS = 1e-5

def f32(x):
    return "0x%08x" % struct.unpack("<I", struct.pack("<f", x))[0]

def srd(k, d, lo, hi, size):
    k(f"s_mov_b32 s{d}, s{lo}")
    k(f"s_and_b32 s{d+1}, s{hi}, 0xffff")
    k(f"s_mov_b32 s{d+2}, {size:#x}")
    k(f"s_mov_b32 s{d+3}, 0x00020000")

def lngemm(kind):
    k = K(kind)
    qkv = kind == "qkv"
    NB = 1920 if qkv else F
    BROW = NB * 2
    NS = 4; SLOT = 32768; NST = 10
    sA, sB, sW, sBi = 4, 8, 12, 16
    s_mb, s_nb, s_w, s_pj = 20, 21, 22, 23
    s_offA, s_offB, s_m0, s_it, s_delta, s_t0, s_t1, s_slot = 25, 26, 27, 28, 29, 30, 31, 32
    s_ones = 33
    s_wid = 35
    v_lane, v_t, v_h = 1, 2, 3
    vAd = [4, 5, 6, 7]; vBd = [8, 9, 10, 11]
    vBr = [12, 13]
    v_sum, v_sq, v_cs, v_b1 = 14, 15, 16, 17
    vt = [18, 19, 20, 21, 22, 23]
    vAr = [[24, 25, 26, 27], [28, 29, 30, 31]]
    FA = [[32 + 16 * i, 36 + 16 * i] for i in range(4)]
    FB = [[40 + 16 * i, 44 + 16 * i] for i in range(4)]
    ACC = 96
    def acc(mt, nt): return ACC + (mt * 2 + nt) * 16
    EP = 160
    v_pf = 4

    nbh = 8 if qkv else 7
    k.stamp(0); k.stamp(1, True)
    k(f"s_cmp_ge_u32 s2, {256 if qkv else 224}"); k(f"s_cbranch_scc1 {k.L('end')}")
    if qkv:
        k("s_load_dwordx4 s[36:39], s[0:1], 0")
    else:
        k("s_load_dwordx4 s[36:39], s[0:1], 32")
    k("s_load_dwordx2 s[40:41], s[0:1], 80")
    k(f"s_and_b32 s{s_t0}, s2, 7"); k(f"s_lshr_b32 s{s_t1}, s2, 3")
    if qkv:
        k(f"s_lshr_b32 s{s_mb}, s{s_t0}, 1"); k(f"s_lshl_b32 s{s_mb}, s{s_mb}, 2")
        k(f"s_and_b32 s{s_nb}, s{s_t1}, 3"); k(f"s_add_u32 s{s_mb}, s{s_mb}, s{s_nb}")
        k(f"s_and_b32 s{s_nb}, s{s_t0}, 1"); k(f"s_mul_i32 s{s_nb}, s{s_nb}, {nbh}")
        k(f"s_lshr_b32 s{s_t1}, s{s_t1}, 2"); k(f"s_add_u32 s{s_nb}, s{s_nb}, s{s_t1}")
    else:
        k("s_load_dwordx2 s[42:43], s[0:1], 48")
        k(f"s_lshl_b32 s{s_mb}, s{s_t0}, 1"); k(f"s_and_b32 s{s_nb}, s{s_t1}, 1"); k(f"s_add_u32 s{s_mb}, s{s_mb}, s{s_nb}")
        k(f"s_lshr_b32 s{s_nb}, s{s_t1}, 1")
    k(f"v_lshrrev_b32 v{vt[0]}, 6, v0")
    k(f"v_and_b32 v{v_lane}, 63, v0")
    k(f"v_readfirstlane_b32 s{s_wid}, v{vt[0]}")
    if qkv:
        k(f"s_cmp_ge_u32 s{s_nb}, 15"); k(f"s_cbranch_scc1 {k.L('aux')}")
    k(f"s_and_b32 s{s_w}, s{s_wid}, 3")
    k(f"s_cmp_lt_u32 s{s_wid}, 4")
    k(f"s_cbranch_scc1 {k.L('compute')}")
    if qkv:
        k(f"v_lshrrev_b32 v{vt[0]}, 3, v{v_lane}")
        k(f"v_and_b32 v{vt[1]}, 7, v{v_lane}")
        k(f"v_lshrrev_b32 v{vt[2]}, 1, v{vt[0]}")
        k(f"v_xor_b32 v{vt[2]}, v{vt[2]}, v{vt[1]}")
        k(f"v_xor_b32 v{vt[3]}, 4, v{vt[2]}")
        k(f"s_lshl_b32 s{s_t0}, s{s_mb}, 7"); k(f"s_lshl_b32 s{s_t1}, s{s_w}, 5"); k(f"s_add_u32 s{s_t0}, s{s_t0}, s{s_t1}")
        k(f"v_add_u32 v{vt[0]}, s{s_t0}, v{vt[0]}")
        k(f"v_mul_u32_u24 v{vt[0]}, 1280, v{vt[0]}")
        for ii in range(4):
            k(f"v_lshl_add_u32 v{vAd[ii]}, v{vt[2 + (ii & 1)]}, 4, v{vt[0]}")
            if ii: k(f"v_add_u32 v{vAd[ii]}, {ii * (8 * 1280 - 1024)}, v{vAd[ii]}")
        stepA = 128
    else:
        k(f"s_lshl_b32 s{s_t0}, s{s_mb}, 11")
        k(f"s_mul_i32 s{s_t1}, s{s_w}, {2 * CH}")
        k(f"s_add_u32 s{s_t0}, s{s_t0}, s{s_t1}")
        k(f"s_add_u32 s{s_t0}, s{s_t0}, {H_OFF}")
        k(f"v_lshl_add_u32 v{vAd[0]}, v{v_lane}, 4, s{s_t0}")
        k(f"v_mov_b32 v{vAd[1]}, v{vAd[0]}")
        k(f"v_add_u32 v{vAd[2]}, {CH - 2048}, v{vAd[0]}")
        k(f"v_add_u32 v{vAd[3]}, {CH - 2048}, v{vAd[0]}")
        stepA = 8 * CH
    k(f"v_lshrrev_b32 v{vt[0]}, 4, v{v_lane}")
    k(f"v_and_b32 v{vt[1]}, 15, v{v_lane}")
    k(f"v_lshlrev_b32 v{vt[2]}, 2, v{vt[0]}")
    k(f"v_xor_b32 v{vt[1]}, v{vt[1]}, v{vt[2]}")
    k(f"s_lshl_b32 s{s_t0}, s{s_w}, 4")
    k(f"v_add_u32 v{vt[0]}, s{s_t0}, v{vt[0]}")
    k(f"v_mul_u32_u24 v{vt[0]}, {BROW}, v{vt[0]}")
    k(f"v_lshl_add_u32 v{vt[0]}, v{vt[1]}, 4, v{vt[0]}")
    k(f"s_lshl_b32 s{s_t0}, s{s_nb}, 8")
    k(f"v_add_u32 v{vBd[0]}, s{s_t0}, v{vt[0]}")
    for ii in range(1, 4):
        k(f"v_add_u32 v{vBd[ii]}, {ii * (4 * BROW - 1024)}, v{vBd[0]}")
    stepB = 64 * BROW
    k(f"s_mov_b32 s{s_offA}, 0"); k(f"s_mov_b32 s{s_offB}, 0")
    k(f"s_lshl_b32 s{s_m0}, s{s_w}, 12")
    k(f"s_mov_b32 s{s_it}, 0")
    k("s_waitcnt lgkmcnt(0)")
    if qkv:
        srd(k, sA, 36, 37, S * D * 2); srd(k, sB, 38, 39, D * NB * 2)
    else:
        srd(k, sB, 36, 37, D * NB * 2); srd(k, sW, 40, 41, WS_END)
        sA = sW
    def dma_stage():
        r = []
        r.append(f"s_mov_b32 m0, s{s_m0}")
        for ii in range(4):
            r.append(f"buffer_load_dwordx4 v{vAd[ii]}, s[{sA}:{sA+3}], s{s_offA} offen offset:{ii*1024} lds")
        r.append(f"s_add_u32 m0, s{s_m0}, 16384")
        for ii in range(4):
            r.append(f"buffer_load_dwordx4 v{vBd[ii]}, s[{sB}:{sB+3}], s{s_offB} offen offset:{ii*1024} lds")
        r.append(f"s_add_u32 s{s_offA}, s{s_offA}, {stepA}")
        r.append(f"s_add_u32 s{s_offB}, s{s_offB}, {stepB}")
        r.append(f"s_add_u32 s{s_m0}, s{s_m0}, {SLOT}")
        r.append(f"s_and_b32 s{s_m0}, s{s_m0}, {NS * SLOT - 1}")
        return r
    if not qkv:
        srd(k, sBi, 42, 43, F * D * 2)
        k(f"s_lshr_b32 s{s_t0}, s2, 3"); k(f"s_lshl_b32 s{s_t0}, s{s_t0}, 2"); k(f"s_add_u32 s{s_t0}, s{s_t0}, s{s_w}")
        k(f"s_lshl_b32 s{s_t0}, s{s_t0}, 13")
        k(f"v_lshlrev_b32 v{vt[0]}, 7, v{v_lane}")
    k.stamp(2)
    for l in dma_stage(): k(l)
    k.label(k.L("lloop"))
    for l in dma_stage(): k(l)
    k("s_waitcnt vmcnt(8)")
    k("s_barrier")
    k(f"s_add_u32 s{s_it}, s{s_it}, 1")
    k(f"s_cmp_lt_u32 s{s_it}, {NST - 1}")
    k(f"s_cbranch_scc1 {k.L('lloop')}")
    SB = 3 * SLOT if qkv else NS * SLOT
    if qkv:
        k("s_waitcnt vmcnt(0)")
        k("s_barrier")
    else:
        PS = 32
        k(f"v_and_b32 v{v_t}, 31, v0"); k(f"v_bfe_u32 v{v_h}, v0, 5, 1")
        k(f"s_lshl_b32 s{s_offA}, s{s_mb}, 7"); k(f"s_lshl_b32 s{s_t1}, s{s_w}, 5"); k(f"s_add_u32 s{s_offA}, s{s_offA}, s{s_t1}")
        k(f"v_add_lshl_u32 v{vt[2]}, v{v_t}, s{s_offA}, 3")
        k(f"v_mul_u32_u24 v{vt[1]}, {5 * 16384}, v{v_h}")
        k(f"v_add_u32 v{vt[2]}, v{vt[2]}, v{vt[1]}")
        for i in range(5):
            k(f"s_mov_b32 s{s_offA}, {HS_OFF + i * 16384}")
            k(f"buffer_load_dwordx2 {vr(PS + 2*i, 2)}, v{vt[2]}, s[{sW}:{sW+3}], s{s_offA} offen")
        k(f"s_lshl_b32 s{s_offA}, s{s_nb}, 10"); k(f"s_lshl_b32 s{s_t1}, s{s_w}, 8"); k(f"s_add_u32 s{s_offA}, s{s_offA}, s{s_t1}")
        k(f"s_add_u32 s{s_offA}, s{s_offA}, {C1_OFF}")
        k(f"s_add_u32 m0, s{s_t1}, {SB + 1024}")
        k(f"v_lshlrev_b32 v{vt[3]}, 2, v{v_lane}")
        k(f"buffer_load_dword v{vt[3]}, s[{sW}:{sW+3}], s{s_offA} offen lds")
        k(f"v_add_lshl_u32 v{vt[3]}, v{v_t}, s{s_t1}, 0")
        k(f"v_lshl_add_u32 v{vt[3]}, v{v_t}, 3, s{s_t1}")
        k(f"v_add_u32 v{vt[3]}, {SB}, v{vt[3]}")
        k("s_waitcnt vmcnt(6)")
        k("s_barrier")
        k("s_waitcnt vmcnt(0)")
        if "now2pf" not in X:
            for j in range(int(os.environ.get("W2PF", "3"))):
                k(f"buffer_load_dword v{vt[1]}, v{vt[0]}, s[{sBi}:{sBi+3}], s{s_t0} offen")
                k(f"s_add_u32 s{s_t0}, s{s_t0}, {112 * 8192}")
        p0 = PS; mr = 44
        for i in range(1, 5):
            k(f"v_add_f32 v{p0}, v{p0}, v{p0 + 2*i}"); k(f"v_add_f32 v{p0+1}, v{p0+1}, v{p0 + 2*i + 1}")
        k(f"v_mov_b32 v{p0+2}, v{p0}"); k(f"v_mov_b32 v{p0+3}, v{p0+1}")
        k(f"v_permlane32_swap_b32 v{p0}, v{p0+2}"); k(f"v_permlane32_swap_b32 v{p0+1}, v{p0+3}")
        k(f"v_add_f32 v{p0}, v{p0}, v{p0+2}"); k(f"v_add_f32 v{p0+1}, v{p0+1}, v{p0+3}")
        k(f"v_mul_f32 v{mr}, {f32(-1.0 / D)}, v{p0}")
        k(f"v_mul_f32 v{p0+1}, {f32(1.0 / D)}, v{p0+1}")
        k(f"v_fma_f32 v{p0+1}, -v{mr}, v{mr}, v{p0+1}")
        k(f"v_max_f32 v{p0+1}, 0, v{p0+1}")
        k(f"v_add_f32 v{p0+2}, {f32(EPS)}, v{p0+1}")
        k(f"v_rsq_f32 v{mr+1}, v{p0+2}")
        k(f"v_mul_f32 v{p0+2}, v{mr+1}, v{mr+1}")
        k(f"v_mul_f32 v{p0+2}, v{p0+2}, v{p0+1}")
        k(f"v_add_f32 v{p0+2}, {f32(EPS)}, v{p0+2}")
        k(f"v_rsq_f32 v{p0+2}, v{p0+2}")
        k(f"v_mul_f32 v{mr+1}, v{mr+1}, v{p0+2}")
        k(f"ds_write_b64 v{vt[3]}, {vr(mr, 2)}")
        k("s_waitcnt lgkmcnt(0)")
        k("s_barrier")
    k.stamp(3); k.stamp(4); k.stamp(5); k.stamp(6); k.dump(0 if qkv else 3, 9, s_wid)
    k("s_endpgm")
    k.label(k.L("compute"))
    k(f"v_and_b32 v{v_t}, 31, v0")
    k(f"v_bfe_u32 v{v_h}, v0, 5, 1")
    k(f"s_lshr_b32 s{s_t0}, s{s_w}, 1"); k(f"s_and_b32 s{s_pj}, s{s_w}, 1")
    k(f"s_lshl_b32 s{s_pj}, s{s_pj}, 1"); k(f"s_add_u32 s{s_pj}, s{s_pj}, s{s_t0}")
    k(f"s_mov_b32 s{s_ones}, 0x3f803f80")
    k(f"s_mov_b32 s34, {SLOT}")
    k("s_waitcnt lgkmcnt(0)")
    srd(k, sW, 40, 41, WS_END)
    if "pf" in X:
        k(f"s_lshr_b32 s{s_t1}, s2, 3")
        NI = 32 if qkv else 28
        srd(k, sB, 38 if qkv else 36, 39 if qkv else 37, D * NB * 2)
        k(f"s_lshl_b32 s{s_t0}, s{s_t1}, 2"); k(f"s_add_u32 s{s_t0}, s{s_t0}, s{s_w}"); k(f"s_lshl_b32 s{s_t0}, s{s_t0}, 2")
        k(f"v_lshrrev_b32 v{vt[0]}, 4, v{v_lane}")
        k(f"v_add_u32 v{vt[0]}, s{s_t0}, v{vt[0]}")
        k(f"v_mul_u32_u24 v{vt[0]}, {BROW}, v{vt[0]}")
        k(f"v_and_b32 v{vt[1]}, 15, v{v_lane}")
        k(f"v_lshl_add_u32 v{vt[0]}, v{vt[1]}, 7, v{vt[0]}")
        k(f"s_and_b32 s{s_t0}, s2, 1"); k(f"s_mul_i32 s{s_t0}, s{s_t0}, {nbh * 256}")
        for j in range((640 + NI * 16 - 1) // (NI * 16)):
            k(f"buffer_load_dword v{v_pf}, v{vt[0]}, s[{sB}:{sB+3}], s{s_t0} offen")
            k(f"s_add_u32 s{s_t0}, s{s_t0}, {NI * 16 * BROW}")
        if qkv:
            srd(k, sA, 36, 37, S * D * 2)
            k(f"s_lshl_b32 s{s_t0}, s{s_t1}, 2"); k(f"s_add_u32 s{s_t0}, s{s_t0}, s{s_w}")
            k(f"s_cmp_ge_u32 s{s_t0}, 80"); k(f"s_cbranch_scc1 {k.L('nopf')}")
            k(f"s_lshl_b32 s{s_t0}, s{s_t0}, 13")
            k(f"s_bfe_u32 s{s_t1}, s2, 0x20001"); k(f"s_mul_i32 s{s_t1}, s{s_t1}, {512 * 1280}"); k(f"s_add_u32 s{s_t0}, s{s_t0}, s{s_t1}")
            k(f"v_lshlrev_b32 v{vt[0]}, 7, v{v_lane}")
            k(f"buffer_load_dword v{v_pf}, v{vt[0]}, s[{sA}:{sA+3}], s{s_t0} offen")
        else:
            k(f"s_lshl_b32 s{s_t0}, s{s_t1}, 2"); k(f"s_add_u32 s{s_t0}, s{s_t0}, s{s_w}")
            k(f"s_cmp_ge_u32 s{s_t0}, 80"); k(f"s_cbranch_scc1 {k.L('nopf')}")
            k(f"s_lshl_b32 s{s_t0}, s{s_t0}, 15")
            k(f"s_bfe_u32 s{s_t1}, s2, 0x20001"); k(f"s_lshl_b32 s{s_t1}, s{s_t1}, 13"); k(f"s_add_u32 s{s_t0}, s{s_t0}, s{s_t1}")
            k(f"s_add_u32 s{s_t0}, s{s_t0}, {H_OFF}")
            k(f"v_lshlrev_b32 v{vt[0]}, 7, v{v_lane}")
            k(f"buffer_load_dword v{v_pf}, v{vt[0]}, s[{sW}:{sW+3}], s{s_t0} offen")
        k.label(k.L("nopf"))
    if qkv:
        k(f"v_bfe_u32 v{vt[0]}, v{v_t}, 1, 3")
        k(f"v_xor_b32 v{vt[0]}, v{vt[0]}, v{v_h}")
        k(f"s_lshl_b32 s{s_t0}, s{s_w}, 12")
        k(f"v_lshl_add_u32 v{vt[1]}, v{v_t}, 7, s{s_t0}")
        for ks in range(4):
            k(f"v_xor_b32 v{vt[2]}, {2*ks}, v{vt[0]}")
            k(f"v_lshl_add_u32 v{vAr[0][ks]}, v{vt[2]}, 4, v{vt[1]}")
            k(f"v_xor_b32 v{vAr[1][ks]}, 4096, v{vAr[0][ks]}")
        def a_read(dst, ks, mt): return f"ds_read_b128 {vr(dst,4)}, v{vAr[mt][ks]}"
        def a_upd(ks): return [vAr[0][ks], vAr[1][ks]]
    else:
        k(f"s_lshl_b32 s{s_t0}, s{s_w}, 9")
        k(f"v_lshl_add_u32 v{vt[0]}, v{v_t}, 4, s{s_t0}")
        k(f"v_lshl_add_u32 v{vAr[0][0]}, v{v_h}, 11, v{vt[0]}")
        k(f"v_xor_b32 v{vAr[1][0]}, 512, v{vAr[0][0]}")
        def a_read(dst, ks, mt): return f"ds_read_b128 {vr(dst,4)}, v{vAr[mt][0]} offset:{ks*4096}"
        def a_upd(ks): return [vAr[0][0], vAr[1][0]] if ks == 0 else []
    k(f"v_bfe_u32 v{vt[0]}, v{v_lane}, 2, 2")
    k(f"v_lshl_add_u32 v{vt[1]}, v{v_h}, 3, v{vt[0]}")
    k(f"v_lshlrev_b32 v{vt[1]}, 8, v{vt[1]}")
    k(f"v_bfe_u32 v{vt[2]}, v{v_lane}, 4, 1")
    k(f"v_lshl_add_u32 v{vt[1]}, v{vt[2]}, 5, v{vt[1]}")
    k(f"v_and_b32 v{vt[2]}, 3, v{v_lane}")
    k(f"v_lshl_add_u32 v{vt[1]}, v{vt[2]}, 3, v{vt[1]}")
    k(f"v_add_u32 v{vt[1]}, 16384, v{vt[1]}")
    k(f"v_xor_b32 v{vt[2]}, s{s_pj}, v{vt[0]}")
    k(f"v_lshl_add_u32 v{vBr[0]}, v{vt[2]}, 6, v{vt[1]}")
    k(f"v_xor_b32 v{vBr[1]}, 64, v{vBr[0]}")
    def b_read(dst, ks, nt, e): return f"ds_read_b64_tr_b16 {vr(dst + 2*e, 2)}, v{vBr[nt]} offset:{ks*4096 + e*1024}"
    for r in range(64): k(f"v_mov_b32 v{ACC + r}, 0")
    k(f"s_mov_b32 s{s_it}, 0"); k(f"s_mov_b32 s{s_slot}, 0")
    if qkv:
        k(f"v_mov_b32 v{v_sum}, 0"); k(f"v_mov_b32 v{v_sq}, 0"); k(f"v_mov_b32 v{v_cs}, 0")

    def reads(ks):
        return [a_read(FA[ks][0], ks, 0), b_read(FB[ks][0], ks, 0, 0), b_read(FB[ks][0], ks, 0, 1),
                b_read(FB[ks][1], ks, 1, 0), b_read(FB[ks][1], ks, 1, 1), a_read(FA[ks][1], ks, 1)]
    k.stamp(2)
    k("s_waitcnt lgkmcnt(0)")
    k("s_barrier")
    k.stamp(3)
    if K.prof: k("s_waitcnt lgkmcnt(0)")
    for l in reads(0) + reads(1): k(l)

    def mainloop(tag, vorient):
        k.label(k.L("loop" + tag))
        for ks in range(4):
            mf = []
            for mt in range(2):
                for nt in range(2):
                    a, b = FA[ks][mt], FB[ks][nt]
                    s0, s1 = (a, b) if vorient else (b, a)
                    mf.append(f"v_mfma_f32_32x32x16_bf16 {vr(acc(mt,nt),16)}, {vr(s0,4)}, {vr(s1,4)}, {vr(acc(mt,nt),16)}")
            dots = []
            for r in range(4):
                dots.append(f"v_dot2c_f32_bf16 v{v_sum}, s{s_ones}, v{FA[ks][0] + r}")
                dots.append(f"v_dot2c_f32_bf16 v{v_sq}, v{FA[ks][0] + r}, v{FA[ks][0] + r}")
                dots.append(f"v_dot2c_f32_bf16 v{v_cs}, s{s_ones}, v{FB[ks][0] + r}")
            if "nodots" in X or not qkv: dots = [";"] * 12
            pre = []
            if ks == 2:
                k("s_barrier")
                pre += [f"s_add_u32 s{s_slot}, s{s_slot}, 1", f"s_and_b32 s{s_slot}, s{s_slot}, {NS - 1}",
                        f"s_cselect_b32 s{s_delta}, s34, {(-(NS - 1) * SLOT) & 0xffffffff:#x}"]
                pre += [f"v_add_u32 v{a}, s{s_delta}, v{a}" for a in vBr]
            nk = (ks + 2) % 4
            if ks >= 2:
                pre += [f"v_add_u32 v{a}, s{s_delta}, v{a}" for a in a_upd(nk)]
            post = []
            if ks == 3:
                post = [f"v_add_u32 v{a}, s{s_delta}, v{a}" for a in a_upd(2) + a_upd(3)]
            rd = reads(nk)
            k("s_waitcnt lgkmcnt(6)")
            seq = [mf[0]] + pre + rd[0:2] + dots[0:3] + [mf[1]] + rd[2:4] + dots[3:6] + [mf[2]] + rd[4:6] + dots[6:9] + [mf[3]] + dots[9:12] + post
            for l in seq: k(l)
        k(f"s_add_u32 s{s_it}, s{s_it}, 1")
        k(f"s_cmp_lt_u32 s{s_it}, {NST}")
        k(f"s_cbranch_scc1 {k.L('loop' + tag)}")
        k.stamp(4)
        k("s_waitcnt lgkmcnt(0) vmcnt(0)")

    def stats(vorient):
        trip = ((v_sum, vt[0]), (v_sq, vt[1]), (v_cs, vt[2]))
        for r, t in trip: k(f"v_mov_b32 v{t}, v{r}")
        for r, t in trip: k(f"v_permlane32_swap_b32 v{r}, v{t}")
        for r, t in trip: k(f"v_add_f32 v{r}, v{r}, v{t}")
        k(f"v_mul_f32 v{vt[0]}, {f32(-1.0 / D)}, v{v_sum}")
        k(f"v_mul_f32 v{vt[2]}, {f32(1.0 / D)}, v{v_sq}")
        k(f"v_fma_f32 v{vt[2]}, -v{vt[0]}, v{vt[0]}, v{vt[2]}")
        k(f"v_max_f32 v{vt[2]}, 0, v{vt[2]}")
        k(f"v_add_f32 v{vt[3]}, {f32(EPS)}, v{vt[2]}")
        k(f"v_rsq_f32 v{vt[1]}, v{vt[3]}")
        if qkv:
            if not vorient:
                k(f"s_cmp_lt_u32 s{s_nb}, 5")
                k(f"s_cselect_b32 s{s_t0}, {f32(math.log2(math.e) / math.sqrt(DH))}, 1.0")
                k(f"v_mul_f32 v{vt[1]}, s{s_t0}, v{vt[1]}")
        else:
            k(f"v_mul_f32 v{vt[3]}, v{vt[1]}, v{vt[1]}")
            k(f"v_mul_f32 v{vt[3]}, v{vt[3]}, v{vt[2]}")
            k(f"v_add_f32 v{vt[3]}, {f32(EPS)}, v{vt[3]}")
            k(f"v_rsq_f32 v{vt[3]}, v{vt[3]}")
            k(f"v_mul_f32 v{vt[1]}, v{vt[1]}, v{vt[3]}")
        k(f"s_lshl_b32 s{s_t0}, s{s_w}, 5")
        k(f"v_add_u32 v{vt[4]}, s{s_t0}, v{v_t}")
        k(f"s_lshl_b32 s{s_t0}, s{s_pj}, 5")
        k(f"v_add_lshl_u32 v{vt[5]}, v{v_t}, s{s_t0}, 2")
        k(f"v_add_u32 v{vt[5]}, {SB}, v{vt[5]}")
        if vorient:
            k(f"v_lshlrev_b32 v{vt[4]}, 2, v{vt[4]}")
            k(f"v_add_u32 v{vt[4]}, {SB}, v{vt[4]}")
            k(f"ds_write_b32 v{vt[4]}, v{vt[0]}")
            k(f"ds_write_b32 v{vt[4]}, v{vt[1]} offset:512")
        else:
            k(f"v_lshlrev_b32 v{vt[4]}, 3, v{vt[4]}")
            k(f"v_add_u32 v{vt[4]}, {SB}, v{vt[4]}")
            k(f"ds_write_b64 v{vt[4]}, {vr(vt[0], 2)}")
        k(f"ds_write_b32 v{vt[5]}, v{v_cs} offset:1024")
        if not qkv:
            k(f"v_lshlrev_b32 v{v_b1}, 16, v{v_b1}")
            k(f"ds_write_b32 v{vt[5]}, v{v_b1} offset:1536")
        k("s_waitcnt lgkmcnt(0)")
        k("s_barrier")

    def epi_nm():
        MR = [FA[0][0], FA[0][0] + 2]
        CS = EP; B1 = EP + 32
        if not qkv:
            k(f"s_lshl_b32 s{s_t0}, s{s_w}, 8"); k(f"s_add_u32 s{s_t0}, s{s_t0}, {SB}")
            k(f"v_lshl_add_u32 v{vt[4]}, v{v_t}, 3, s{s_t0}")
        k(f"ds_read_b64 {vr(MR[0],2)}, v{vt[4]}")
        k(f"v_xor_b32 v{vt[0]}, 256, v{vt[4]}")
        k(f"ds_read_b64 {vr(MR[1],2)}, v{vt[0]}")
        k(f"s_lshl_b32 s{s_t0}, s{s_pj}, 7")
        k(f"s_add_u32 s{s_t0}, s{s_t0}, {SB}")
        k(f"v_lshl_add_u32 v{vt[0]}, v{v_h}, 4, s{s_t0}")
        k(f"v_xor_b32 v{vt[1]}, 128, v{vt[0]}")
        for nt in range(2):
            for rq in range(4):
                k(f"ds_read_b128 {vr(CS + nt*16 + rq*4, 4)}, v{vt[nt]} offset:{1024 + rq*32}")
            if not qkv:
                for rq in range(4):
                    k(f"ds_read_b128 {vr(B1 + nt*16 + rq*4, 4)}, v{vt[nt]} offset:{1536 + rq*32}")
        OFF = QK_OFF if qkv else G_OFF
        k(f"s_lshl_b32 s{s_t0}, s{s_nb}, 4")
        k(f"v_add_lshl_u32 v{vt[2]}, v{v_h}, s{s_t0}, 15")
        k(f"s_lshl_b32 s{s_t0}, s{s_mb}, 7")
        k(f"v_add_u32 v{vt[3]}, s{s_t0}, v{v_t}")
        k(f"v_lshl_add_u32 v{vt[2]}, v{vt[3]}, 4, v{vt[2]}")
        if OFF: k(f"v_add_u32 v{vt[2]}, {OFF}, v{vt[2]}")
        so = 46
        k(f"s_lshl_b32 s{s_t0}, s{s_pj}, 17"); k(f"s_lshl_b32 s{s_t1}, s{s_w}, 9")
        k(f"s_add_u32 s{so}, s{s_t0}, s{s_t1}")
        k(f"s_xor_b32 s{so+1}, s{so}, 512")
        k(f"s_xor_b32 s{so+2}, s{so}, {1 << 17}")
        k(f"s_xor_b32 s{so+3}, s{so+1}, {1 << 17}")
        k(f"v_add_u32 v{vt[3]}, {2 * CH}, v{vt[2]}")
        if not qkv:
            C0 = -2.0 * math.log2(math.e) * math.sqrt(2.0 / math.pi)
            k(f"s_mov_b32 s44, {f32(C0 * 0.044715)}"); k(f"s_mov_b32 s45, {f32(C0 * 0.044715)}")
            k(f"v_mov_b32 v{vt[4]}, {f32(C0)}"); k(f"v_mov_b32 v{vt[5]}, {f32(C0)}")
        k("s_waitcnt lgkmcnt(0)")
        T = EP + 64
        n_st = 0
        for nt in range(2):
            for mt in range(2):
                a = acc(mt, nt); mr = MR[mt]
                for p in range(8):
                    x = vr(a + 2*p, 2)
                    k(f"v_pk_fma_f32 {x}, {vr(CS + nt*16 + 2*p, 2)}, {vr(mr,2)}, {x} op_sel_hi:[1,0,1]")
                for p in range(8):
                    x = vr(a + 2*p, 2)
                    if qkv:
                        k(f"v_pk_mul_f32 {x}, {x}, {vr(mr,2)} op_sel:[0,1] op_sel_hi:[1,1]")
                    else:
                        k(f"v_pk_fma_f32 {x}, {x}, {vr(mr,2)}, {vr(B1 + nt*16 + 2*p, 2)} op_sel:[0,1,0] op_sel_hi:[1,1,1]")
                if not qkv:
                    for p in range(8):
                        x = vr(a + 2*p, 2); t = vr(T + 2*p, 2)
                        k(f"v_pk_mul_f32 {t}, {x}, {x}")
                    for p in range(8):
                        t = vr(T + 2*p, 2)
                        k(f"v_pk_fma_f32 {t}, {t}, s[44:45], {vr(vt[4],2)}")
                    for p in range(8):
                        x = vr(a + 2*p, 2); t = vr(T + 2*p, 2)
                        k(f"v_pk_mul_f32 {t}, {t}, {x}")
                    for r in range(16): k(f"v_exp_f32 v{T + r}, v{T + r}")
                    for p in range(8):
                        t = vr(T + 2*p, 2)
                        k(f"v_pk_add_f32 {t}, {t}, 1.0 op_sel_hi:[1,0]")
                    for r in range(16): k(f"v_rcp_f32 v{T + r}, v{T + r}")
                    for p in range(8):
                        x = vr(a + 2*p, 2); t = vr(T + 2*p, 2)
                        k(f"v_pk_mul_f32 {x}, {x}, {t}")
                Pk = T + 16 + (n_st % 2) * 8
                for p in range(8):
                    k(f"v_cvt_pk_bf16_f32 v{Pk + p}, v{a + 2*p}, v{a + 2*p + 1}")
                for pq in range(2):
                    b = Pk + 4*pq
                    k(f"v_permlane32_swap_b32 v{b}, v{b+2}")
                    k(f"v_permlane32_swap_b32 v{b+1}, v{b+3}")
                for pq in range(2):
                    b = Pk + 4*pq
                    k(f"buffer_store_dwordx4 {vr(b,4)}, v{vt[2 + pq]}, s[{sW}:{sW+3}], s{so + nt*2 + mt} offen")
                n_st += 1

    def epi_v():
        NM = EP; RS = EP + 32; CSV = [FA[0][0], FA[0][0] + 2]
        k(f"s_lshl_b32 s{s_t0}, s{s_w}, 7")
        k(f"s_add_u32 s{s_t0}, s{s_t0}, {SB}")
        k(f"v_lshl_add_u32 v{vt[0]}, v{v_h}, 4, s{s_t0}")
        k(f"v_xor_b32 v{vt[1]}, 128, v{vt[0]}")
        for mt in range(2):
            for rq in range(4):
                k(f"ds_read_b128 {vr(NM + mt*16 + rq*4, 4)}, v{vt[mt]} offset:{rq*32}")
                k(f"ds_read_b128 {vr(RS + mt*16 + rq*4, 4)}, v{vt[mt]} offset:{512 + rq*32}")
        k(f"ds_read_b32 v{CSV[0]}, v{vt[5]} offset:1024")
        k(f"v_xor_b32 v{vt[4]}, 128, v{vt[5]}")
        k(f"ds_read_b32 v{CSV[1]}, v{vt[4]} offset:1024")
        k(f"s_mul_i32 s{s_t0}, s{s_mb}, {4 * 1280}")
        k(f"s_sub_u32 s{s_t1}, s{s_nb}, 10"); k(f"s_lshl_b32 s{s_t1}, s{s_t1}, 7"); k(f"s_add_u32 s{s_t0}, s{s_t0}, s{s_t1}")
        k(f"v_add_lshl_u32 v{vt[2]}, v{v_t}, s{s_t0}, 5")
        k(f"v_lshl_add_u32 v{vt[2]}, v{v_h}, 4, v{vt[2]}")
        k(f"v_add_u32 v{vt[2]}, {V_OFF}, v{vt[2]}")
        k(f"v_add_u32 v{vt[3]}, {640 * 32}, v{vt[2]}")
        so = 46
        k(f"s_mul_i32 s{so}, s{s_w}, {1280 * 32}")
        k(f"s_xor_b32 s{s_t0}, s{s_w}, 1"); k(f"s_mul_i32 s{so+2}, s{s_t0}, {1280 * 32}")
        k(f"s_lshl_b32 s{s_t0}, s{s_pj}, 10"); k(f"s_xor_b32 s{s_t1}, s{s_t0}, 1024")
        k(f"s_add_u32 s{so+1}, s{so}, s{s_t1}"); k(f"s_add_u32 s{so}, s{so}, s{s_t0}")
        k(f"s_add_u32 s{so+3}, s{so+2}, s{s_t1}"); k(f"s_add_u32 s{so+2}, s{so+2}, s{s_t0}")
        k("s_waitcnt lgkmcnt(0)")
        T = EP + 64; n_st = 0
        for mt in range(2):
            for nt in range(2):
                a = acc(mt, nt)
                for p in range(8):
                    x = vr(a + 2*p, 2)
                    k(f"v_pk_fma_f32 {x}, {vr(NM + mt*16 + 2*p, 2)}, {vr(CSV[nt],2)}, {x} op_sel_hi:[1,0,1]")
                for p in range(8):
                    x = vr(a + 2*p, 2)
                    k(f"v_pk_mul_f32 {x}, {x}, {vr(RS + mt*16 + 2*p, 2)}")
                Pk = T + (n_st % 2) * 8
                for p in range(8):
                    k(f"v_cvt_pk_bf16_f32 v{Pk + p}, v{a + 2*p}, v{a + 2*p + 1}")
                for jj in range(2):
                    k(f"buffer_store_dwordx4 {vr(Pk + 4*jj, 4)}, v{vt[2 + jj]}, s[{sW}:{sW+3}], s{so + mt*2 + nt} offen")
                n_st += 1

    if qkv:
        k(f"s_cmp_ge_u32 s{s_nb}, 10")
        k(f"s_cbranch_scc1 {k.L('loopv')}")
        mainloop("q", False); stats(False); k.stamp(5); epi_nm(); k.stamp(6); k.dump(0, 9, s_wid)
        k("s_endpgm")
        mainloop("v", True); stats(True); k.stamp(5); epi_v(); k.stamp(6); k.dump(0, 9, s_wid)
        k("s_endpgm")
        k.label(k.L("aux"))
        k(f"s_cmp_ge_u32 s{s_mb}, 14"); k(f"s_cbranch_scc1 {k.L('end')}")
        k("s_load_dwordx4 s[44:47], s[0:1], 32")
        k(f"v_lshrrev_b32 v{vt[0]}, 4, v{v_lane}")
        k(f"v_and_b32 v{vt[1]}, 15, v{v_lane}")
        k(f"v_mul_u32_u24 v{vt[2]}, {F * 2}, v{vt[0]}")
        k(f"v_lshl_add_u32 v{vt[2]}, v{vt[1]}, 4, v{vt[2]}")
        k(f"s_mul_i32 s{s_t0}, s{s_wid}, {80 * F * 2}"); k(f"s_lshl_b32 s{s_t1}, s{s_mb}, 8"); k(f"s_add_u32 s{s_t0}, s{s_t0}, s{s_t1}")
        k(f"v_lshlrev_b32 v{vt[3]}, 1, v0")
        k("s_waitcnt lgkmcnt(0)")
        srd(k, sB, 44, 45, D * F * 2); srd(k, sBi, 46, 47, F * 2); srd(k, sW, 40, 41, WS_END)
        k(f"buffer_load_ushort v{v_b1}, v{vt[3]}, s[{sBi}:{sBi+3}], s{s_t1} offen")
        for i in range(20):
            k(f"buffer_load_dwordx4 {vr(40 + 4*i, 4)}, v{vt[2]}, s[{sB}:{sB+3}], s{s_t0} offen")
            k(f"s_add_u32 s{s_t0}, s{s_t0}, {4 * F * 2}")
        for r in range(8): k(f"v_mov_b32 v{24 + r}, 0")
        for i in range(20):
            k(f"s_waitcnt vmcnt({19 - i})")
            for r in range(4):
                k(f"v_lshlrev_b32 v{32 + 2*r}, 16, v{40 + 4*i + r}")
                k(f"v_and_b32 v{33 + 2*r}, 0xffff0000, v{40 + 4*i + r}")
            for r in range(4):
                k(f"v_pk_add_f32 {vr(24 + 2*r, 2)}, {vr(24 + 2*r, 2)}, {vr(32 + 2*r, 2)}")
        k(f"v_lshlrev_b32 v{vt[0]}, 5, v0")
        k(f"ds_write_b128 v{vt[0]}, v[24:27]")
        k(f"ds_write_b128 v{vt[0]}, v[28:31] offset:16")
        k("s_waitcnt lgkmcnt(0)")
        k("s_barrier")
        k(f"s_cmp_ge_u32 s{s_wid}, 2"); k(f"s_cbranch_scc1 {k.L('end')}")
        k(f"v_lshlrev_b32 v{vt[0]}, 2, v0")
        for i in range(32):
            k(f"ds_read_b32 v{40 + i}, v{vt[0]} offset:{i * 512}")
            if i % 8 == 7: k("s_waitcnt lgkmcnt(0)")
        for i in range(1, 32): k(f"v_add_f32 v40, v40, v{40 + i}")
        k(f"v_lshlrev_b32 v{v_b1}, 16, v{v_b1}")
        k(f"s_lshl_b32 s{s_t0}, s{s_mb}, 10"); k(f"s_add_u32 s{s_t0}, s{s_t0}, {C1_OFF}"); k(f"s_add_u32 s{s_t1}, s{s_t0}, 512")
        k(f"buffer_store_dword v40, v{vt[0]}, s[{sW}:{sW+3}], s{s_t0} offen")
        k(f"buffer_store_dword v{v_b1}, v{vt[0]}, s[{sW}:{sW+3}], s{s_t1} offen")
    else:
        mainloop("q", False)
        k(f"s_cmp_eq_u32 s{s_nb}, 13"); k(f"s_cselect_b32 s{s_t0}, s{s_pj}, 0")
        k(f"s_cmp_ge_u32 s{s_t0}, 2"); k(f"s_cbranch_scc1 {k.L('end')}")
        k.stamp(5); epi_nm(); k.stamp(6); k.dump(3, 9, s_wid)
    k.label(k.L("end"))
    k("s_endpgm")
    return k, EP + 64 + 32, NS * SLOT + (0 if qkv else 2048)

def attn():
    k = K("attn")
    sW = 4; sP1 = 8; sP2 = 12
    s_hd, s_qb, s_w, s_qs, s_kh, s_t0, s_t1, s_it = 20, 21, 22, 23, 24, 25, 26, 27
    s_ko, s_vo, s_odd = 28, 29, 30
    s_vm = 32
    s_lo = 34
    s_c = 36
    v_lane, v_t, v_h = 1, 2, 3
    vK1, vK2, vV0, vV1 = 4, 5, 6, 7
    vt = [8, 9, 10, 11, 12, 13, 14, 15]
    vm = [16, 17]
    v_pfa, v_pfb, v_pf = 18, 19, 200
    Q1 = [20, 24]; Q2 = [28, 30]
    NBUF = 4
    K1 = [32, 36, 40, 44]; K2 = [48, 50, 52, 54]
    VB = [56, 64, 72, 80]
    C = [88, 104]; Sx = [120, 136]; P = [152, 160]; O = [168, 184]
    NV = 202
    k.stamp(0); k.stamp(1, True)
    k("s_cmp_ge_u32 s2, 256"); k(f"s_cbranch_scc1 {k.L('end')}")
    k("s_load_dwordx2 s[40:41], s[0:1], 80")
    k("s_load_dwordx2 s[44:45], s[0:1], 16")
    k("s_load_dwordx2 s[46:47], s[0:1], 32")
    k(f"v_lshrrev_b32 v{vt[0]}, 6, v0")
    k(f"v_and_b32 v{v_t}, 31, v0")
    k(f"v_readfirstlane_b32 s{s_w}, v{vt[0]}")
    k(f"v_bfe_u32 v{v_h}, v0, 5, 1")
    k(f"s_and_b32 s{s_hd}, s2, 7"); k(f"s_lshl_b32 s{s_hd}, s{s_hd}, 2")
    k(f"s_bfe_u32 s{s_t0}, s2, 0x20003"); k(f"s_add_u32 s{s_hd}, s{s_hd}, s{s_t0}")
    k(f"s_lshr_b32 s{s_qb}, s2, 5")
    k(f"s_and_b32 s{s_qs}, s{s_w}, 3"); k(f"s_lshr_b32 s{s_kh}, s{s_w}, 2")
    if "noprio" not in X:
        k(f"s_cmp_eq_u32 s{s_kh}, 0"); k(f"s_cbranch_scc1 {k.L('np')}")
        k("s_setprio 1")
        k.label(k.L("np"))
    k(f"s_and_b32 s{s_odd}, s{s_hd}, 1")
    k(f"s_mov_b32 s{s_lo}, -1"); k(f"s_mov_b32 s{s_lo+1}, 0")
    k(f"s_lshr_b32 s{s_t0}, s{s_hd}, 1"); k(f"s_mul_i32 s{s_t0}, s{s_t0}, 5")
    k(f"s_mul_i32 s{s_t1}, s{s_odd}, 3"); k(f"s_add_u32 s{s_t1}, s{s_t1}, s{s_t0}")
    k(f"v_add_lshl_u32 v{vK1}, v{v_h}, s{s_t1}, 15")
    k(f"v_lshl_add_u32 v{vK1}, v{v_t}, 4, v{vK1}")
    k(f"s_add_u32 s{s_t0}, s{s_t0}, 2"); k(f"s_lshl_b32 s{s_t0}, s{s_t0}, 15")
    k(f"s_lshl_b32 s{s_t1}, s{s_odd}, 3"); k(f"s_add_u32 s{s_t0}, s{s_t0}, s{s_t1}")
    k(f"v_lshl_add_u32 v{vK2}, v{v_t}, 4, s{s_t0}")
    k(f"s_lshl_b32 s{s_ko}, s{s_kh}, 14"); k(f"s_add_u32 s{s_ko}, s{s_ko}, {QK_OFF + 80 * CH}")
    k(f"s_lshl_b32 s{s_t0}, s{s_qb}, 12"); k(f"s_lshl_b32 s{s_t1}, s{s_qs}, 10"); k(f"s_add_u32 s{s_t0}, s{s_t0}, s{s_t1}")
    for qt in range(2):
        k(f"v_mov_b32 v{Q2[qt]}, 0"); k(f"v_mov_b32 v{Q2[qt]+1}, 0")
    k(f"s_mov_b32 s42, s{s_ko}")
    k("s_waitcnt lgkmcnt(0)")
    srd(k, sW, 40, 41, WS_END)
    W = f"s[{sW}:{sW+3}]"
    def kload(b):
        return [f"buffer_load_dwordx4 {vr(K1[b],4)}, v{vK1}, {W}, s{s_ko} offen",
                f"buffer_load_dwordx2 {vr(K2[b],2)}, v{vK2}, {W}, s{s_ko} offen",
                f"s_add_u32 s{s_ko}, s{s_ko}, 512"]
    def vload(b):
        return [f"s_mov_b64 exec, s[{s_vm}:{s_vm+1}]",
                f"buffer_load_dwordx4 {vr(VB[b],4)}, v{vV0}, {W}, s{s_vo} offen",
                f"buffer_load_dwordx4 {vr(VB[b]+4,4)}, v{vV1}, {W}, s{s_vo} offen",
                f"s_mov_b64 exec, -1",
                f"s_add_u32 s{s_vo}, s{s_vo}, {1280 * 32}"]
    for l in kload(0): k(l)
    for qt in range(2):
        k(f"buffer_load_dwordx4 {vr(Q1[qt],4)}, v{vK1}, {W}, s{s_t0} offen offset:{qt*512}")
    k(f"s_mov_b64 exec, s[{s_lo}:{s_lo+1}]")
    for qt in range(2):
        k(f"buffer_load_dwordx2 {vr(Q2[qt],2)}, v{vK2}, {W}, s{s_t0} offen offset:{qt*512}")
    k("s_mov_b64 exec, -1")
    for l in kload(1): k(l)
    k(f"v_and_b32 v{v_lane}, 63, v0")
    k(f"s_mov_b32 s{s_vm}, 0xfffff"); k(f"s_mov_b32 s{s_vm+1}, 0xfffff")
    k(f"v_add_u32 v{vt[0]}, 4, v{v_t}")
    k(f"v_subrev_u32 v{vt[1]}, 16, v{v_t}")
    k(f"v_cmp_gt_u32 vcc, 16, v{v_t}")
    k(f"v_cndmask_b32 v{vt[0]}, v{vt[1]}, v{vt[0]}, vcc")
    k(f"s_cmp_eq_u32 s{s_odd}, 1")
    k(f"s_cselect_b64 vcc, -1, 0")
    k(f"v_cndmask_b32 v{vt[0]}, v{v_t}, v{vt[0]}, vcc")
    k(f"s_mul_i32 s{s_t0}, s{s_hd}, 20")
    k(f"v_add_lshl_u32 v{vV0}, v{vt[0]}, s{s_t0}, 5")
    k(f"v_lshl_add_u32 v{vV0}, v{v_h}, 4, v{vV0}")
    k(f"v_add_u32 v{vV1}, {640 * 32}, v{vV0}")
    k(f"s_mul_i32 s{s_vo}, s{s_kh}, {32 * 1280 * 32}"); k(f"s_add_u32 s{s_vo}, s{s_vo}, {V_OFF}")
    k(f"s_mov_b32 s43, s{s_vo}")
    k(f"v_cmp_eq_u32 vcc, 20, v{v_t}")
    k(f"v_mov_b32 v{vt[1]}, 0x3f803f80")
    k(f"v_cndmask_b32 v{vt[1]}, 0, v{vt[1]}, vcc")
    for r in range(8): k(f"v_mov_b32 v{VB[0] + r}, v{vt[1]}")
    for l in vload(0): k(l)
    for b in range(1, NBUF):
        for r in range(8): k(f"v_mov_b32 v{VB[b] + r}, v{vt[1]}")
    for qt in range(2):
        for r in range(16): k(f"v_mov_b32 v{O[qt] + r}, 0")
    for r in range(8): k(f"v_mov_b32 v{P[1] + r}, 0")
    srd(k, sP1, 44, 45, D * D * 2); srd(k, sP2, 46, 47, D * F * 2)
    k(f"s_lshr_b32 s{s_t0}, s2, 3"); k(f"s_lshl_b32 s{s_t0}, s{s_t0}, 3"); k(f"s_add_u32 s{s_t0}, s{s_t0}, s{s_w}")
    k(f"s_mul_i32 s48, s{s_t0}, {26 * 128}"); k(f"s_mul_i32 s49, s{s_t0}, {68 * 128}")
    k(f"v_lshlrev_b32 v{vt[2]}, 8, v{v_lane}"); k(f"v_add_u32 v{vt[2]}, 124, v{vt[2]}")
    k(f"v_mov_b32 v{vt[3]}, 0x7ffffff0")
    k(f"v_cmp_gt_u32 vcc, 34, v{v_lane}")
    k(f"v_cndmask_b32 v{v_pfa}, v{vt[3]}, v{vt[2]}, vcc")
    k(f"v_cmp_gt_u32 vcc, 13, v{v_lane}")
    k(f"v_cndmask_b32 v{v_pfb}, v{vt[3]}, v{vt[2]}, vcc")
    k(f"s_sub_u32 s50, s{s_qs}, s{s_kh}"); k(f"s_add_u32 s50, s50, 2"); k(f"s_add_u32 s51, s50, 2")
    def qk(qt, b, c):
        cc = "0" if c is None else vr(c, 16)
        return [f"v_mfma_f32_32x32x16_bf16 {vr(Sx[qt],16)}, {vr(K1[b],4)}, {vr(Q1[qt],4)}, {cc}",
                f"v_mfma_f32_32x32x8_bf16 {vr(Sx[qt],16)}, {vr(K2[b],2)}, {vr(Q2[qt],2)}, {vr(Sx[qt],16)}"]
    def pv(qt, b):
        return [f"v_mfma_f32_32x32x16_bf16 {vr(O[qt],16)}, {vr(VB[b],4)}, {vr(P[qt],4)}, {vr(O[qt],16)}",
                f"v_mfma_f32_32x32x16_bf16 {vr(O[qt],16)}, {vr(VB[b]+4,4)}, {vr(P[qt]+4,4)}, {vr(O[qt],16)}"]
    def rowmax(qt, dst, tmp):
        s = Sx[qt]
        k(f"v_max3_f32 v{dst}, v{s}, v{s+1}, v{s+2}")
        for r in range(3, 15, 2): k(f"v_max3_f32 v{dst}, v{dst}, v{s+r}, v{s+r+1}")
        k(f"v_max_f32 v{dst}, v{dst}, v{s+15}")
        k(f"v_mov_b32 v{tmp}, v{dst}")
        k(f"v_permlane32_swap_b32 v{dst}, v{tmp}")
        k(f"v_max_f32 v{dst}, v{dst}, v{tmp}")
    k.stamp(2)
    k("s_waitcnt vmcnt(4)")
    for qt in range(2):
        for l in qk(qt, 0, None): k(l)
    for l in kload(2) + vload(1) + kload(3) + vload(2): k(l)
    rowmax(0, vm[0], vt[0])
    k(f"v_sub_f32 v{vt[1]}, 0, v{vm[0]}")
    for r in range(16): k(f"v_mov_b32 v{C[0] + r}, v{vt[1]}")
    for l in qk(0, 0, C[0]): k(l)
    rowmax(1, vm[1], vt[0])
    k(f"v_sub_f32 v{vt[1]}, 0, v{vm[1]}")
    for r in range(16): k(f"v_mov_b32 v{C[1] + r}, v{vt[1]}")
    k(f"s_mov_b32 s{s_it}, 0")
    k.stamp(3)
    k("s_nop 1")

    def slot(qt, mf, extra):
        s = Sx[qt]; p = P[qt]
        for i in range(16):
            for l in extra.get(i, []): k(l)
            if i % 4 == 0: k(mf[i // 4])
            k(f"v_exp_f32 v{s+i}, v{s+i}")
            if i % 2 == 1 and i >= 3:
                k(f"v_cvt_pk_bf16_f32 v{p + (i-3)//2}, v{s+i-3}, v{s+i-2}")
        for l in extra.get(16, []): k(l)
        k(f"v_cvt_pk_bf16_f32 v{p+7}, v{s+14}, v{s+15}")
    k(f"s_cmp_eq_u32 s{s_kh}, 0")
    k(f"s_cselect_b32 s31, 99, {int(os.environ.get('PRI', '6'))}")
    k.label(k.L("loop"))
    for u in range(NBUF):
        b = u; bp = (u - 1) % NBUF; bn = (u + 1) % NBUF
        e1 = {0: ["s_waitcnt vmcnt(12)"]}
        slot(0, qk(1, b, C[1]) + pv(1, bp), {6: kload(b), 14: vload(bp)})
        slot(1, qk(0, bn, C[0]) + pv(0, b), e1)
    k(f"s_add_u32 s{s_it}, s{s_it}, 1")
    PRI = int(os.environ.get("PRI", "6"))
    k(f"s_cmp_lg_u32 s{s_it}, s31")
    k(f"s_cbranch_scc1 {k.L('noev')}")
    k("s_setprio 0")
    k.label(k.L("noev"))
    if "nowpf" not in X:
        k(f"s_cmp_lg_u32 s{s_it}, s50"); k(f"s_cbranch_scc1 {k.L('noe2')}")
        k(f"buffer_load_dwordx2 {vr(v_pf, 2)}, v{v_pfa}, s[{sP2}:{sP2+3}], s49 offen")
        k.label(k.L("noe2"))
        k(f"s_cmp_lg_u32 s{s_it}, s51"); k(f"s_cbranch_scc1 {k.L('noe3')}")
        k(f"buffer_load_dwordx2 {vr(v_pf, 2)}, v{v_pfb}, s[{sP1}:{sP1+3}], s48 offen")
        k.label(k.L("noe3"))
    k(f"s_cmp_lt_u32 s{s_it}, {32 // NBUF}")
    k(f"s_cbranch_scc1 {k.L('loop')}")
    k.stamp(4)
    for l in pv(1, NBUF - 1): k(l)
    k("s_nop 7"); k("s_nop 7")
    k(f"v_add_f32 v{vt[0]}, |v{O[0]}|, |v{O[1]}|")
    for qt in range(2):
        for r in range(1, 12):
            k(f"v_add_f32 v{vt[0]}, v{vt[0]}, |v{O[qt]+r}|")
    k(f"v_add_f32 v{vt[1]}, v{O[0]+8}, v{O[1]+8}")
    k(f"s_mov_b32 s{s_t0}, {f32(2.0**100)}")
    k(f"v_cmp_nlt_f32 s[{s_c}:{s_c+1}], v{vt[0]}, s{s_t0}")
    k(f"s_mov_b32 s{s_t0}, {f32(2.0**60)}")
    k(f"v_cmp_nlt_f32 vcc, |v{vt[1]}|, s{s_t0}")
    k(f"s_andn2_b64 vcc, vcc, s[{s_lo}:{s_lo+1}]")
    k(f"s_or_b64 s[{s_c}:{s_c+1}], s[{s_c}:{s_c+1}], vcc")
    k("s_waitcnt vmcnt(0)")
    k(f"s_cmp_eq_u64 s[{s_c}:{s_c+1}], 0")
    k(f"s_cbranch_scc1 {k.L('merge')}")
    k(f"s_mov_b32 s{s_ko}, s42"); k(f"s_mov_b32 s{s_vo}, s43")
    for qt in range(2):
        for r in range(16): k(f"v_mov_b32 v{O[qt] + r}, 0")
        k(f"v_mov_b32 v{vm[qt]}, 0xff800000")
    k(f"s_mov_b32 s{s_it}, 0")
    k.label(k.L("fb"))
    for l in kload(0) + vload(0): k(l)
    k("s_waitcnt vmcnt(0)")
    for qt in range(2):
        for l in qk(qt, 0, None): k(l)
    for qt in range(2):
        rowmax(qt, vt[2], vt[0])
        k(f"v_max_f32 v{vt[2]}, v{vt[2]}, v{vm[qt]}")
        k(f"v_sub_f32 v{vt[3]}, v{vm[qt]}, v{vt[2]}")
        k(f"v_exp_f32 v{vt[3]}, v{vt[3]}")
        k(f"v_mov_b32 v{vm[qt]}, v{vt[2]}")
        for r in range(16): k(f"v_mul_f32 v{O[qt]+r}, v{O[qt]+r}, v{vt[3]}")
        for r in range(16): k(f"v_sub_f32 v{Sx[qt]+r}, v{Sx[qt]+r}, v{vt[2]}")
        for r in range(16): k(f"v_exp_f32 v{Sx[qt]+r}, v{Sx[qt]+r}")
        for r in range(8): k(f"v_cvt_pk_bf16_f32 v{P[qt]+r}, v{Sx[qt]+2*r}, v{Sx[qt]+2*r+1}")
        for l in pv(qt, 0): k(l)
    k("s_nop 7"); k("s_nop 7")
    k(f"s_add_u32 s{s_it}, s{s_it}, 1")
    k(f"s_cmp_lt_u32 s{s_it}, 32")
    k(f"s_cbranch_scc1 {k.L('fb')}")
    k.label(k.L("merge"))
    k(f"s_cmp_eq_u32 s{s_kh}, 0")
    k(f"s_cbranch_scc1 {k.L('noswap')}")
    for r in range(12): k(f"v_swap_b32 v{O[0]+r}, v{O[1]+r}")
    k(f"v_swap_b32 v{vm[0]}, v{vm[1]}")
    k.label(k.L("noswap"))
    k(f"v_mov_b32 v{O[1]+12}, v{vm[1]}")
    k(f"s_lshl_b32 s{s_t0}, s{s_w}, 12")
    k(f"v_lshl_add_u32 v{vt[0]}, v{v_lane}, 4, s{s_t0}")
    k(f"v_xor_b32 v{vt[1]}, {4 << 12}, v{vt[0]}")
    for q in range(4): k(f"ds_write_b128 v{vt[0]}, {vr(O[1] + 4*q, 4)} offset:{q*1024}")
    k("s_waitcnt lgkmcnt(0)")
    k("s_barrier")
    k.stamp(5)
    for q in range(4): k(f"ds_read_b128 {vr(Sx[0] + 4*q, 4)}, v{vt[1]} offset:{q*1024}")
    k(f"s_lshl_b32 s{s_t0}, s{s_qb}, 12"); k(f"s_lshl_b32 s{s_t1}, s{s_qs}, 10"); k(f"s_add_u32 s{s_t0}, s{s_t0}, s{s_t1}")
    k(f"s_lshl_b32 s{s_t1}, s{s_kh}, 9"); k(f"s_add_u32 s{s_t0}, s{s_t0}, s{s_t1}"); k(f"s_add_u32 s{s_t0}, s{s_t0}, {O_OFF}")
    k("s_waitcnt lgkmcnt(0)")
    mo = Sx[0] + 12
    k(f"v_max_f32 v{vt[2]}, v{vm[0]}, v{mo}")
    k(f"v_sub_f32 v{vt[3]}, v{vm[0]}, v{vt[2]}"); k(f"v_sub_f32 v{vt[4]}, v{mo}, v{vt[2]}")
    k(f"v_exp_f32 v{vt[3]}, v{vt[3]}"); k(f"v_exp_f32 v{vt[4]}, v{vt[4]}")
    for r in range(12): k(f"v_mul_f32 v{O[0]+r}, v{O[0]+r}, v{vt[3]}")
    for r in range(12): k(f"v_fmac_f32 v{O[0]+r}, v{Sx[0]+r}, v{vt[4]}")
    k(f"v_mov_b32 v{vt[5]}, v{O[0]+8}"); k(f"v_mov_b32 v{vt[6]}, v{O[0]+8}")
    k(f"v_permlane32_swap_b32 v{vt[5]}, v{vt[6]}")
    k(f"v_rcp_f32 v{vt[6]}, v{vt[6]}")
    for r in range(12): k(f"v_mul_f32 v{O[0]+r}, v{O[0]+r}, v{vt[6]}")
    for r in range(6): k(f"v_cvt_pk_bf16_f32 v{P[0]+r}, v{O[0]+2*r}, v{O[0]+2*r+1}")
    k(f"v_permlane32_swap_b32 v{P[0]}, v{P[0]+2}")
    k(f"v_permlane32_swap_b32 v{P[0]+1}, v{P[0]+3}")
    k(f"buffer_store_dwordx4 {vr(P[0],4)}, v{vK1}, {W}, s{s_t0} offen")
    k(f"s_mov_b64 exec, s[{s_lo}:{s_lo+1}]")
    k(f"buffer_store_dwordx2 {vr(P[0]+4,2)}, v{vK2}, {W}, s{s_t0} offen")
    k.stamp(6); k.dump(1, 9, s_w)
    k.label(k.L("end"))
    k("s_endpgm")
    return k, NV, 8 * 4096

def resgemm(kind):
    k = K(kind)
    op = kind == "oproj"
    KK = D if op else F
    NKS = KK // 16
    GS = 8
    NG = (NKS + GS - 1) // GS
    GB = 16384
    NSLOT = 5 if op else 8
    A_OFF = O_OFF if op else G_OFF
    sB, sW, sR, sO, sBi = 4, 8, 12, 16, 44
    s_r, s_cb, s_w, s_t0, s_t1, s_offB, s_offA, s_m0, s_it, s_wid = 20, 21, 22, 23, 24, 25, 26, 27, 28, 35
    v_lane, v_t, v_h = 1, 2, 3
    vBd = [4, 5, 6, 7]; vA = 8; vBr = [9, 10]; vO = 11
    vt = [12, 13, 14, 15]
    RES = 16; BI = 32; ACC = 48
    DIST = 6; NFB = 8; FB = 80
    LA = 14; NFA = 16; FA = 112
    NV = FA + NFA * 4
    T = FA
    kidx = 2 if op else 4
    k.stamp(0); k.stamp(1, True)
    k("s_cmp_ge_u32 s2, 240"); k(f"s_cbranch_scc1 {k.L('end')}")
    if op:
        k("s_load_dwordx2 s[36:37], s[0:1], 16")
        k("s_load_dwordx2 s[38:39], s[0:1], 0")
    else:
        k("s_load_dwordx4 s[36:39], s[0:1], 48")
        k("s_load_dwordx2 s[42:43], s[0:1], 64")
    k("s_load_dwordx2 s[40:41], s[0:1], 80")
    k(f"v_lshrrev_b32 v{vt[0]}, 6, v0")
    k(f"v_and_b32 v{v_lane}, 63, v0")
    k(f"v_readfirstlane_b32 s{s_wid}, v{vt[0]}")
    k(f"s_lshr_b32 s{s_t0}, s2, 3")
    k(f"s_mul_i32 s{s_cb}, s{s_t0}, 43"); k(f"s_lshr_b32 s{s_cb}, s{s_cb}, 7")
    k(f"s_mul_i32 s{s_t1}, s{s_cb}, 3"); k(f"s_sub_u32 s{s_r}, s{s_t0}, s{s_t1}")
    k(f"s_lshl_b32 s{s_t1}, s{s_cb}, 7")
    k(f"s_and_b32 s{s_w}, s{s_wid}, 3")
    k(f"s_cmp_lt_u32 s{s_wid}, 4")
    k(f"s_cbranch_scc1 {k.L('compute')}")
    k(f"v_lshrrev_b32 v{vt[0]}, 3, v{v_lane}")
    k(f"v_and_b32 v{vt[1]}, 7, v{v_lane}")
    k(f"v_bfe_u32 v{vt[2]}, v{v_lane}, 4, 1")
    k(f"v_lshlrev_b32 v{vt[2]}, 2, v{vt[2]}")
    k(f"v_xor_b32 v{vt[1]}, v{vt[1]}, v{vt[2]}")
    k(f"v_mul_u32_u24 v{vt[0]}, 1280, v{vt[0]}")
    k(f"v_lshl_add_u32 v{vBd[0]}, v{vt[1]}, 4, v{vt[0]}")
    for ii in range(1, 4):
        k(f"v_add_u32 v{vBd[ii]}, {ii * (8 * 1280 - 1024)}, v{vBd[0]}")
    k(f"s_mul_i32 s{s_offB}, s{s_w}, {32 * 1280}"); k(f"s_add_u32 s{s_offB}, s{s_offB}, s{s_t1}")
    k(f"s_lshl_b32 s{s_m0}, s{s_w}, 12")
    k(f"s_mov_b32 s{s_it}, 0")
    k("s_waitcnt lgkmcnt(0)")
    srd(k, sB, 36, 37, KK * D * 2)
    def issue():
        r = [f"s_mov_b32 m0, s{s_m0}", f"s_add_u32 s{s_m0}, s{s_m0}, {GB}"]
        for ii in range(4):
            r.append(f"buffer_load_dwordx4 v{vBd[ii]}, s[{sB}:{sB+3}], s{s_offB} offen offset:{ii*1024} lds")
        r.append(f"s_add_u32 s{s_offB}, s{s_offB}, {128 * 1280}")
        if not op: r.append(f"s_and_b32 s{s_m0}, s{s_m0}, {NSLOT * GB - 1}")
        return r
    k.stamp(2)
    for l in issue() + issue(): k(l)
    k.label(k.L("lloop"))
    for l in issue(): k(l)
    k("s_waitcnt vmcnt(8)")
    k("s_barrier")
    k(f"s_add_u32 s{s_it}, s{s_it}, 1")
    k(f"s_cmp_lt_u32 s{s_it}, {NG - 2}")
    k(f"s_cbranch_scc1 {k.L('lloop')}")
    k("s_waitcnt vmcnt(4)"); k("s_barrier")
    k("s_waitcnt vmcnt(0)"); k("s_barrier")
    k.stamp(3); k.stamp(4); k.stamp(5); k.stamp(6); k.dump(kidx, 9, s_wid)
    k("s_endpgm")
    k.label(k.L("compute"))
    k(f"s_cmp_eq_u32 s{s_w}, 3"); k(f"s_cbranch_scc1 {k.L('end')}")
    k(f"s_mul_i32 s{s_t0}, s{s_r}, 3"); k(f"s_add_u32 s{s_t0}, s{s_t0}, s{s_w}")
    k(f"s_cmp_ge_u32 s{s_t0}, 8"); k(f"s_cbranch_scc1 {k.L('end')}")
    k(f"s_and_b32 s{s_it}, s2, 7"); k(f"s_lshl_b32 s{s_it}, s{s_it}, 3"); k(f"s_add_u32 s{s_t0}, s{s_t0}, s{s_it}")
    k(f"s_lshl_b32 s{s_t0}, s{s_t0}, 5")
    k(f"v_and_b32 v{v_t}, 31, v0")
    k(f"v_bfe_u32 v{v_h}, v0, 5, 1")
    k(f"v_add_u32 v{vt[0]}, s{s_t0}, v{v_t}")
    k(f"v_lshlrev_b32 v{vA}, 15, v{v_h}")
    k(f"v_lshl_add_u32 v{vA}, v{vt[0]}, 4, v{vA}")
    k(f"s_mov_b32 s{s_offA}, {A_OFF}")
    k("s_waitcnt lgkmcnt(0)")
    srd(k, sW, 40, 41, WS_END)
    def aload(i):
        return [f"buffer_load_dwordx4 {vr(FA + (i % NFA) * 4, 4)}, v{vA}, s[{sW}:{sW+3}], s{s_offA} offen",
                f"s_add_u32 s{s_offA}, s{s_offA}, {2 * CH}"]
    for i in range(LA):
        for l in aload(i): k(l)
    k(f"v_mul_u32_u24 v{vt[1]}, 1280, v{vt[0]}")
    k(f"v_lshl_add_u32 v{vt[1]}, v{v_h}, 4, v{vt[1]}")
    k(f"v_add_u32 v{vt[1]}, s{s_t1}, v{vt[1]}")
    k(f"s_lshl_b32 s{s_t0}, s{s_cb}, 18"); k(f"s_add_u32 s{s_t0}, s{s_t0}, {H_OFF}")
    k(f"v_add_u32 v{vt[2]}, s{s_t0}, v{vA}")
    k(f"v_mov_b32 v{vO}, v{vt[2] if op else vt[1]}")
    if op:
        k(f"s_lshl_b32 s{s_t0}, s{s_cb}, 14"); k(f"s_add_u32 s{s_t0}, s{s_t0}, {HS_OFF}")
        k(f"v_lshl_add_u32 v{vBd[0]}, v{vt[0]}, 3, s{s_t0}")
    k(f"v_bfe_u32 v{vt[0]}, v{v_lane}, 2, 2")
    k(f"v_lshl_add_u32 v{vt[0]}, v{v_h}, 3, v{vt[0]}")
    k(f"v_lshlrev_b32 v{vt[0]}, 7, v{vt[0]}")
    k(f"v_bfe_u32 v{vt[3]}, v{v_lane}, 3, 1")
    k(f"v_lshl_add_u32 v{vt[0]}, v{vt[3]}, 6, v{vt[0]}")
    k(f"v_bfe_u32 v{vt[3]}, v{v_lane}, 4, 1")
    k(f"v_lshl_add_u32 v{vt[0]}, v{vt[3]}, 5, v{vt[0]}")
    k(f"v_and_b32 v{vt[3]}, 3, v{v_lane}")
    k(f"v_lshl_add_u32 v{vBr[0]}, v{vt[3]}, 3, v{vt[0]}")
    k(f"v_xor_b32 v{vBr[1]}, 64, v{vBr[0]}")
    late = []
    for c in range(4): k(f"s_mov_b32 s{48 + c}, {2*c*CH}")
    if op:
        srd(k, sR, 38, 39, S * D * 2)
        for c in range(4):
            late.append([f"buffer_load_dwordx4 {vr(RES + 4*c, 4)}, v{vt[1]}, s[{sR}:{sR+3}], 0 offen offset:{32*c}"])
    else:
        srd(k, sO, 42, 43, S * D * 2); srd(k, sBi, 38, 39, D * 2)
        k(f"v_lshlrev_b32 v{vt[0]}, 3, v{v_h}")
        for c in range(4):
            late.append([f"buffer_load_dwordx4 {vr(RES + 4*c, 4)}, v{vt[2]}, s[{sW}:{sW+3}], s{48 + c} offen"])
        for c in range(8):
            late.append([f"buffer_load_dwordx2 {vr(BI + 2*c, 2)}, v{vt[0]}, s[{sBi}:{sBi+3}], s{s_t1} offen offset:{16*c}"])
    for r in range(32): k(f"v_mov_b32 v{ACC + r}, 0")
    cur_base = 0
    NM = NKS * 2
    def bread(m):
        nonlocal cur_base
        ks, j = divmod(m, 2)
        G, q = divmod(ks, GS)
        off = (G % NSLOT) * GB + q * 2048
        r = []
        if q == 0 and j == 0: r.append("s_barrier")
        base = (off // 65536) * 65536
        if base != cur_base:
            for a in vBr: r.append(f"v_add_u32 v{a}, {(base - cur_base) & 0xffffffff:#x}, v{a}")
            cur_base = base
        for e in range(2):
            r.append(f"ds_read_b64_tr_b16 {vr(FB + (m % NFB) * 4 + 2*e, 2)}, v{vBr[j]} offset:{off - base + e*512}")
        return r
    k.stamp(2)
    if K.prof: k("s_waitcnt lgkmcnt(0)")
    for m in range(DIST):
        for l in bread(m): k(l)
    vq = [("A", i) for i in range(LA)]
    nlate = len(late)
    for m in range(NM):
        ks, j = divmod(m, 2)
        nout = 2 * (min(NM, m + DIST) - m - 1)
        if j == 0:
            pos = vq.index(("A", ks))
            k(f"s_waitcnt vmcnt({len(vq) - 1 - pos}) lgkmcnt({nout})")
        else:
            k(f"s_waitcnt lgkmcnt({nout})")
        k(f"v_mfma_f32_32x32x16_bf16 {vr(ACC + 16*j, 16)}, {vr(FB + (m % NFB) * 4, 4)}, {vr(FA + (ks % NFA) * 4, 4)}, {vr(ACC + 16*j, 16)}")
        if m + DIST < NM:
            for l in bread(m + DIST): k(l)
        if j == 0 and ks + LA < NKS:
            for l in aload(ks + LA): k(l)
            vq.append(("A", ks + LA))
        if j == 1 and late and ks >= NKS - LA - nlate - 2:
            for l in late.pop(0): k(l)
            vq.append(("R", 0))
    assert not late
    k.stamp(3); k.stamp(4); k.stamp(5)
    k("s_waitcnt vmcnt(0)")
    for c in range(4):
        k(f"v_permlane32_swap_b32 v{RES + 4*c}, v{RES + 4*c + 2}")
        k(f"v_permlane32_swap_b32 v{RES + 4*c + 1}, v{RES + 4*c + 3}")
    for r in range(16):
        k(f"v_lshlrev_b32 v{T + 2*r}, 16, v{RES + r}")
        k(f"v_and_b32 v{T + 2*r + 1}, 0xffff0000, v{RES + r}")
    if not op:
        for r in range(16):
            k(f"v_lshlrev_b32 v{T + 32 + 2*r}, 16, v{BI + r}")
            k(f"v_and_b32 v{T + 32 + 2*r + 1}, 0xffff0000, v{BI + r}")
        for r in range(16):
            k(f"v_pk_add_f32 {vr(T + 2*r, 2)}, {vr(T + 2*r, 2)}, {vr(T + 32 + 2*r, 2)}")
    else:
        k(f"v_mov_b32 v{vt[0]}, 0"); k(f"v_mov_b32 v{vt[1]}, 0"); k(f"s_mov_b32 s{s_t1}, 0x3f803f80")
    for c in range(4):
        for r in range(4*c, 4*c + 4):
            k(f"v_pk_add_f32 {vr(T + 2*r, 2)}, {vr(T + 2*r, 2)}, {vr(ACC + 2*r, 2)}")
        for r in range(4*c, 4*c + 4):
            k(f"v_cvt_pk_bf16_f32 v{RES + r}, v{T + 2*r}, v{T + 2*r + 1}")
        k(f"v_permlane32_swap_b32 v{RES + 4*c}, v{RES + 4*c + 2}")
        k(f"v_permlane32_swap_b32 v{RES + 4*c + 1}, v{RES + 4*c + 3}")
        if op:
            k(f"buffer_store_dwordx4 {vr(RES + 4*c, 4)}, v{vO}, s[{sW}:{sW+3}], s{48 + c} offen")
        else:
            k(f"buffer_store_dwordx4 {vr(RES + 4*c, 4)}, v{vO}, s[{sO}:{sO+3}], 0 offen offset:{32*c}")
    if op:
        for r in range(16):
            k(f"v_dot2c_f32_bf16 v{vt[0]}, s{s_t1}, v{RES + r}")
            k(f"v_dot2c_f32_bf16 v{vt[1]}, v{RES + r}, v{RES + r}")
        k(f"v_mov_b32 v{vt[2]}, v{vt[0]}"); k(f"v_mov_b32 v{vt[3]}, v{vt[1]}")
        k(f"v_permlane32_swap_b32 v{vt[0]}, v{vt[2]}"); k(f"v_permlane32_swap_b32 v{vt[1]}, v{vt[3]}")
        k(f"v_add_f32 v{vt[0]}, v{vt[0]}, v{vt[2]}"); k(f"v_add_f32 v{vt[1]}, v{vt[1]}, v{vt[3]}")
        k("s_mov_b32 exec_hi, 0")
        k(f"buffer_store_dwordx2 {vr(vt[0], 2)}, v{vBd[0]}, s[{sW}:{sW+3}], 0 offen")
    k.stamp(6); k.dump(kidx, 9, s_wid)
    k.label(k.L("end"))
    k("s_endpgm")
    return k, NV, NSLOT * GB

HEADER = open("sequential_preLN__mha_block__mixer_channel_mlp__prompt.s.ref").read().split("; Override")[0]

def build(path):
    ks = [(lngemm("qkv"), 256, 512), (attn(), 256, 512), (resgemm("oproj"), 240, 512), (lngemm("mlp1"), 224, 512), (resgemm("mlp2"), 240, 512)]
    t = HEADER
    for (k, nv, lds), grid, block in ks:
        t += f"; @launch kernel={k.name}_kernel grid=({grid},1,1) block=({block},1,1) lds={lds}\n"
    t += '.amdgcn_target "amdgcn-amd-amdhsa--gfx950"\n.text\n'
    for (k, nv, lds), grid, block in ks:
        t += kernel_text(k, nv)
    t += '.section .rodata,"a"\n'
    for (k, nv, lds), grid, block in ks:
        t += kernel_desc(k, nv)
    open(path, "w").write(t)

if __name__ == "__main__":
    if len(sys.argv) > 2 and sys.argv[2] == "prof": K.prof = True
    build(sys.argv[1] if len(sys.argv) > 1 else "sequential_preLN__mha_block__mixer_channel_mlp__prompt.s")
```

```python
import sys, math, struct, os
X = set(os.environ.get("EXP", "").split(","))
from asmlib import K, vr, sr, kernel_text, kernel_desc

S = 2048; D = 640; F = 1728; H = 32; DH = 20
QK_OFF = 0x0
V_OFF = 0x500000
O_OFF = 0x780000
H_OFF = 0xA00000
G_OFF = 0xC80000
HS_OFF = 0x1340000
C1_OFF = 0x1370000
WS_END = 0x1374000
G_END = 0x1340000
CH = S * 16
EPS = 1e-5

def f32(x):
    return "0x%08x" % struct.unpack("<I", struct.pack("<f", x))[0]

def srd(k, d, lo, hi, size):
    k(f"s_mov_b32 s{d}, s{lo}")
    k(f"s_and_b32 s{d+1}, s{hi}, 0xffff")
    k(f"s_mov_b32 s{d+2}, {size:#x}")
    k(f"s_mov_b32 s{d+3}, 0x00020000")

def lngemm(kind):
    k = K(kind)
    qkv = kind == "qkv"
    NB = 1920 if qkv else F
    BROW = NB * 2
    NS = 4; SLOT = 32768; NST = 10
    sA, sB, sW, sBi = 4, 8, 12, 16
    s_mb, s_nb, s_w, s_pj = 20, 21, 22, 23
    s_offA, s_offB, s_m0, s_it, s_delta, s_t0, s_t1, s_slot = 25, 26, 27, 28, 29, 30, 31, 32
    s_ones = 33
    s_wid = 35
    v_lane, v_t, v_h = 1, 2, 3
    vAd = [4, 5, 6, 7]; vBd = [8, 9, 10, 11]
    vBr = [12, 13]
    v_sum, v_sq, v_cs, v_b1 = 14, 15, 16, 17
    vt = [18, 19, 20, 21, 22, 23]
    vAr = [[24, 25, 26, 27], [28, 29, 30, 31]]
    FA = [[32 + 16 * i, 36 + 16 * i] for i in range(4)]
    FB = [[40 + 16 * i, 44 + 16 * i] for i in range(4)]
    ACC = 96
    def acc(mt, nt): return ACC + (mt * 2 + nt) * 16
    EP = 160
    v_pf = 4

    nbh = 8 if qkv else 7
    k.stamp(0); k.stamp(1, True)
    k(f"s_cmp_ge_u32 s2, {256 if qkv else 224}"); k(f"s_cbranch_scc1 {k.L('end')}")
    if qkv:
        k("s_load_dwordx4 s[36:39], s[0:1], 0")
    else:
        k("s_load_dwordx4 s[36:39], s[0:1], 32")
    k("s_load_dwordx2 s[40:41], s[0:1], 80")
    k(f"s_and_b32 s{s_t0}, s2, 7"); k(f"s_lshr_b32 s{s_t1}, s2, 3")
    if qkv:
        k(f"s_lshr_b32 s{s_mb}, s{s_t0}, 1"); k(f"s_lshl_b32 s{s_mb}, s{s_mb}, 2")
        k(f"s_and_b32 s{s_nb}, s{s_t1}, 3"); k(f"s_add_u32 s{s_mb}, s{s_mb}, s{s_nb}")
        k(f"s_and_b32 s{s_nb}, s{s_t0}, 1"); k(f"s_mul_i32 s{s_nb}, s{s_nb}, {nbh}")
        k(f"s_lshr_b32 s{s_t1}, s{s_t1}, 2"); k(f"s_add_u32 s{s_nb}, s{s_nb}, s{s_t1}")
    else:
        k("s_load_dwordx2 s[42:43], s[0:1], 48")
        k(f"s_lshl_b32 s{s_mb}, s{s_t0}, 1"); k(f"s_and_b32 s{s_nb}, s{s_t1}, 1"); k(f"s_add_u32 s{s_mb}, s{s_mb}, s{s_nb}")
        k(f"s_lshr_b32 s{s_nb}, s{s_t1}, 1")
    k(f"v_lshrrev_b32 v{vt[0]}, 6, v0")
    k(f"v_and_b32 v{v_lane}, 63, v0")
    k(f"v_readfirstlane_b32 s{s_wid}, v{vt[0]}")
    if qkv:
        k(f"s_cmp_ge_u32 s{s_nb}, 15"); k(f"s_cbranch_scc1 {k.L('aux')}")
    k(f"s_and_b32 s{s_w}, s{s_wid}, 3")
    k(f"s_cmp_lt_u32 s{s_wid}, 4")
    k(f"s_cbranch_scc1 {k.L('compute')}")
    if qkv:
        k(f"v_lshrrev_b32 v{vt[0]}, 3, v{v_lane}")
        k(f"v_and_b32 v{vt[1]}, 7, v{v_lane}")
        k(f"v_lshrrev_b32 v{vt[2]}, 1, v{vt[0]}")
        k(f"v_xor_b32 v{vt[2]}, v{vt[2]}, v{vt[1]}")
        k(f"v_xor_b32 v{vt[3]}, 4, v{vt[2]}")
        k(f"s_lshl_b32 s{s_t0}, s{s_mb}, 7"); k(f"s_lshl_b32 s{s_t1}, s{s_w}, 5"); k(f"s_add_u32 s{s_t0}, s{s_t0}, s{s_t1}")
        k(f"v_add_u32 v{vt[0]}, s{s_t0}, v{vt[0]}")
        k(f"v_mul_u32_u24 v{vt[0]}, 1280, v{vt[0]}")
        for ii in range(4):
            k(f"v_lshl_add_u32 v{vAd[ii]}, v{vt[2 + (ii & 1)]}, 4, v{vt[0]}")
            if ii: k(f"v_add_u32 v{vAd[ii]}, {ii * (8 * 1280 - 1024)}, v{vAd[ii]}")
        stepA = 128
    else:
        k(f"s_lshl_b32 s{s_t0}, s{s_mb}, 11")
        k(f"s_mul_i32 s{s_t1}, s{s_w}, {2 * CH}")
        k(f"s_add_u32 s{s_t0}, s{s_t0}, s{s_t1}")
        k(f"s_add_u32 s{s_t0}, s{s_t0}, {H_OFF}")
        k(f"v_lshl_add_u32 v{vAd[0]}, v{v_lane}, 4, s{s_t0}")
        k(f"v_mov_b32 v{vAd[1]}, v{vAd[0]}")
        k(f"v_add_u32 v{vAd[2]}, {CH - 2048}, v{vAd[0]}")
        k(f"v_add_u32 v{vAd[3]}, {CH - 2048}, v{vAd[0]}")
        stepA = 8 * CH
    k(f"v_lshrrev_b32 v{vt[0]}, 4, v{v_lane}")
    k(f"v_and_b32 v{vt[1]}, 15, v{v_lane}")
    k(f"v_lshlrev_b32 v{vt[2]}, 2, v{vt[0]}")
    k(f"v_xor_b32 v{vt[1]}, v{vt[1]}, v{vt[2]}")
    k(f"s_lshl_b32 s{s_t0}, s{s_w}, 4")
    k(f"v_add_u32 v{vt[0]}, s{s_t0}, v{vt[0]}")
    k(f"v_mul_u32_u24 v{vt[0]}, {BROW}, v{vt[0]}")
    k(f"v_lshl_add_u32 v{vt[0]}, v{vt[1]}, 4, v{vt[0]}")
    k(f"s_lshl_b32 s{s_t0}, s{s_nb}, 8")
    k(f"v_add_u32 v{vBd[0]}, s{s_t0}, v{vt[0]}")
    for ii in range(1, 4):
        k(f"v_add_u32 v{vBd[ii]}, {ii * (4 * BROW - 1024)}, v{vBd[0]}")
    stepB = 64 * BROW
    if ("rot_" + kind) not in X:
        k(f"s_mov_b32 s{s_slot}, 0")
    elif qkv:
        k(f"s_and_b32 s{s_slot}, s{s_mb}, 3"); k(f"s_mul_i32 s{s_slot}, s{s_slot}, 5"); k(f"s_lshr_b32 s{s_slot}, s{s_slot}, 1")
        k(f"s_and_b32 s{s_t0}, s{s_nb}, 7"); k(f"s_add_u32 s{s_slot}, s{s_slot}, s{s_t0}")
    else:
        k(f"s_and_b32 s{s_slot}, s{s_mb}, 1"); k(f"s_mul_i32 s{s_slot}, s{s_slot}, 5"); k(f"s_add_u32 s{s_slot}, s{s_slot}, s{s_nb}")
    k(f"s_cmp_ge_u32 s{s_slot}, 10"); k(f"s_cselect_b32 s{s_t0}, 10, 0"); k(f"s_sub_u32 s{s_slot}, s{s_slot}, s{s_t0}")
    k(f"s_mul_i32 s{s_offA}, s{s_slot}, {stepA}"); k(f"s_mul_i32 s{s_offB}, s{s_slot}, {stepB}")
    k(f"s_lshl_b32 s{s_m0}, s{s_w}, 12")
    k(f"s_mov_b32 s{s_it}, 0")
    k("s_waitcnt lgkmcnt(0)")
    if qkv:
        srd(k, sA, 36, 37, S * D * 2); srd(k, sB, 38, 39, D * NB * 2)
    else:
        srd(k, sB, 36, 37, D * NB * 2); srd(k, sW, 40, 41, WS_END)
        sA = sW
    def dma_stage():
        r = []
        r.append(f"s_mov_b32 m0, s{s_m0}")
        for ii in range(4):
            r.append(f"buffer_load_dwordx4 v{vAd[ii]}, s[{sA}:{sA+3}], s{s_offA} offen offset:{ii*1024} lds")
        r.append(f"s_add_u32 m0, s{s_m0}, 16384")
        for ii in range(4):
            r.append(f"buffer_load_dwordx4 v{vBd[ii]}, s[{sB}:{sB+3}], s{s_offB} offen offset:{ii*1024} lds")
        r.append(f"s_add_u32 s{s_offA}, s{s_offA}, {stepA}")
        r.append(f"s_add_u32 s{s_offB}, s{s_offB}, {stepB}")
        r.append(f"s_cmp_lg_u32 s{s_offA}, {10 * stepA}")
        r.append(f"s_cselect_b32 s{s_offA}, s{s_offA}, 0")
        r.append(f"s_cselect_b32 s{s_offB}, s{s_offB}, 0")
        r.append(f"s_add_u32 s{s_m0}, s{s_m0}, {SLOT}")
        r.append(f"s_and_b32 s{s_m0}, s{s_m0}, {NS * SLOT - 1}")
        return r
    if not qkv:
        srd(k, sBi, 42, 43, F * D * 2)
        k(f"s_lshr_b32 s{s_t0}, s2, 3"); k(f"s_lshl_b32 s{s_t0}, s{s_t0}, 2"); k(f"s_add_u32 s{s_t0}, s{s_t0}, s{s_w}")
        k(f"s_lshl_b32 s{s_t0}, s{s_t0}, 13")
        k(f"v_lshlrev_b32 v{vt[0]}, 7, v{v_lane}")
    k.stamp(2)
    for l in dma_stage(): k(l)
    k.label(k.L("lloop"))
    for l in dma_stage(): k(l)
    k("s_waitcnt vmcnt(8)")
    k("s_barrier")
    k(f"s_add_u32 s{s_it}, s{s_it}, 1")
    k(f"s_cmp_lt_u32 s{s_it}, {NST - 1}")
    k(f"s_cbranch_scc1 {k.L('lloop')}")
    SB = 3 * SLOT if qkv else NS * SLOT
    if qkv:
        k("s_waitcnt vmcnt(0)")
        k("s_barrier")
    else:
        PS = 32
        k(f"v_and_b32 v{v_t}, 31, v0"); k(f"v_bfe_u32 v{v_h}, v0, 5, 1")
        k(f"s_lshl_b32 s{s_offA}, s{s_mb}, 7"); k(f"s_lshl_b32 s{s_t1}, s{s_w}, 5"); k(f"s_add_u32 s{s_offA}, s{s_offA}, s{s_t1}")
        k(f"v_add_lshl_u32 v{vt[2]}, v{v_t}, s{s_offA}, 3")
        k(f"v_mul_u32_u24 v{vt[1]}, {5 * 16384}, v{v_h}")
        k(f"v_add_u32 v{vt[2]}, v{vt[2]}, v{vt[1]}")
        for i in range(5):
            k(f"s_mov_b32 s{s_offA}, {HS_OFF + i * 16384}")
            k(f"buffer_load_dwordx2 {vr(PS + 2*i, 2)}, v{vt[2]}, s[{sW}:{sW+3}], s{s_offA} offen")
        k(f"s_lshl_b32 s{s_offA}, s{s_nb}, 10"); k(f"s_lshl_b32 s{s_t1}, s{s_w}, 8"); k(f"s_add_u32 s{s_offA}, s{s_offA}, s{s_t1}")
        k(f"s_add_u32 s{s_offA}, s{s_offA}, {C1_OFF}")
        k(f"s_add_u32 m0, s{s_t1}, {SB + 1024}")
        k(f"v_lshlrev_b32 v{vt[3]}, 2, v{v_lane}")
        k(f"buffer_load_dword v{vt[3]}, s[{sW}:{sW+3}], s{s_offA} offen lds")
        k(f"v_add_lshl_u32 v{vt[3]}, v{v_t}, s{s_t1}, 0")
        k(f"v_lshl_add_u32 v{vt[3]}, v{v_t}, 3, s{s_t1}")
        k(f"v_add_u32 v{vt[3]}, {SB}, v{vt[3]}")
        k("s_waitcnt vmcnt(6)")
        k("s_barrier")
        k("s_waitcnt vmcnt(0)")
        if "now2pf" not in X:
            for j in range(int(os.environ.get("W2PF", "3"))):
                k(f"buffer_load_dword v{vt[1]}, v{vt[0]}, s[{sBi}:{sBi+3}], s{s_t0} offen")
                k(f"s_add_u32 s{s_t0}, s{s_t0}, {112 * 8192}")
        p0 = PS; mr = 44
        for i in range(1, 5):
            k(f"v_add_f32 v{p0}, v{p0}, v{p0 + 2*i}"); k(f"v_add_f32 v{p0+1}, v{p0+1}, v{p0 + 2*i + 1}")
        k(f"v_mov_b32 v{p0+2}, v{p0}"); k(f"v_mov_b32 v{p0+3}, v{p0+1}")
        k(f"v_permlane32_swap_b32 v{p0}, v{p0+2}"); k(f"v_permlane32_swap_b32 v{p0+1}, v{p0+3}")
        k(f"v_add_f32 v{p0}, v{p0}, v{p0+2}"); k(f"v_add_f32 v{p0+1}, v{p0+1}, v{p0+3}")
        k(f"v_mul_f32 v{mr}, {f32(-1.0 / D)}, v{p0}")
        k(f"v_mul_f32 v{p0+1}, {f32(1.0 / D)}, v{p0+1}")
        k(f"v_fma_f32 v{p0+1}, -v{mr}, v{mr}, v{p0+1}")
        k(f"v_max_f32 v{p0+1}, 0, v{p0+1}")
        k(f"v_add_f32 v{p0+2}, {f32(EPS)}, v{p0+1}")
        k(f"v_rsq_f32 v{mr+1}, v{p0+2}")
        k(f"v_mul_f32 v{p0+2}, v{mr+1}, v{mr+1}")
        k(f"v_mul_f32 v{p0+2}, v{p0+2}, v{p0+1}")
        k(f"v_add_f32 v{p0+2}, {f32(EPS)}, v{p0+2}")
        k(f"v_rsq_f32 v{p0+2}, v{p0+2}")
        k(f"v_mul_f32 v{mr+1}, v{mr+1}, v{p0+2}")
        k(f"ds_write_b64 v{vt[3]}, {vr(mr, 2)}")
        k("s_waitcnt lgkmcnt(0)")
        k("s_barrier")
    k.stamp(3); k.stamp(4); k.stamp(5); k.stamp(6); k.dump(0 if qkv else 3, 9, s_wid)
    k("s_endpgm")
    k.label(k.L("compute"))
    k(f"v_and_b32 v{v_t}, 31, v0")
    k(f"v_bfe_u32 v{v_h}, v0, 5, 1")
    k(f"s_lshr_b32 s{s_t0}, s{s_w}, 1"); k(f"s_and_b32 s{s_pj}, s{s_w}, 1")
    k(f"s_lshl_b32 s{s_pj}, s{s_pj}, 1"); k(f"s_add_u32 s{s_pj}, s{s_pj}, s{s_t0}")
    k(f"s_mov_b32 s{s_ones}, 0x3f803f80")
    k(f"s_mov_b32 s34, {SLOT}")
    k("s_waitcnt lgkmcnt(0)")
    srd(k, sW, 40, 41, WS_END)
    if "pf" in X:
        k(f"s_lshr_b32 s{s_t1}, s2, 3")
        NI = 32 if qkv else 28
        srd(k, sB, 38 if qkv else 36, 39 if qkv else 37, D * NB * 2)
        k(f"s_lshl_b32 s{s_t0}, s{s_t1}, 2"); k(f"s_add_u32 s{s_t0}, s{s_t0}, s{s_w}"); k(f"s_lshl_b32 s{s_t0}, s{s_t0}, 2")
        k(f"v_lshrrev_b32 v{vt[0]}, 4, v{v_lane}")
        k(f"v_add_u32 v{vt[0]}, s{s_t0}, v{vt[0]}")
        k(f"v_mul_u32_u24 v{vt[0]}, {BROW}, v{vt[0]}")
        k(f"v_and_b32 v{vt[1]}, 15, v{v_lane}")
        k(f"v_lshl_add_u32 v{vt[0]}, v{vt[1]}, 7, v{vt[0]}")
        k(f"s_and_b32 s{s_t0}, s2, 1"); k(f"s_mul_i32 s{s_t0}, s{s_t0}, {nbh * 256}")
        for j in range((640 + NI * 16 - 1) // (NI * 16)):
            k(f"buffer_load_dword v{v_pf}, v{vt[0]}, s[{sB}:{sB+3}], s{s_t0} offen")
            k(f"s_add_u32 s{s_t0}, s{s_t0}, {NI * 16 * BROW}")
        if qkv:
            srd(k, sA, 36, 37, S * D * 2)
            k(f"s_lshl_b32 s{s_t0}, s{s_t1}, 2"); k(f"s_add_u32 s{s_t0}, s{s_t0}, s{s_w}")
            k(f"s_cmp_ge_u32 s{s_t0}, 80"); k(f"s_cbranch_scc1 {k.L('nopf')}")
            k(f"s_lshl_b32 s{s_t0}, s{s_t0}, 13")
            k(f"s_bfe_u32 s{s_t1}, s2, 0x20001"); k(f"s_mul_i32 s{s_t1}, s{s_t1}, {512 * 1280}"); k(f"s_add_u32 s{s_t0}, s{s_t0}, s{s_t1}")
            k(f"v_lshlrev_b32 v{vt[0]}, 7, v{v_lane}")
            k(f"buffer_load_dword v{v_pf}, v{vt[0]}, s[{sA}:{sA+3}], s{s_t0} offen")
        else:
            k(f"s_lshl_b32 s{s_t0}, s{s_t1}, 2"); k(f"s_add_u32 s{s_t0}, s{s_t0}, s{s_w}")
            k(f"s_cmp_ge_u32 s{s_t0}, 80"); k(f"s_cbranch_scc1 {k.L('nopf')}")
            k(f"s_lshl_b32 s{s_t0}, s{s_t0}, 15")
            k(f"s_bfe_u32 s{s_t1}, s2, 0x20001"); k(f"s_lshl_b32 s{s_t1}, s{s_t1}, 13"); k(f"s_add_u32 s{s_t0}, s{s_t0}, s{s_t1}")
            k(f"s_add_u32 s{s_t0}, s{s_t0}, {H_OFF}")
            k(f"v_lshlrev_b32 v{vt[0]}, 7, v{v_lane}")
            k(f"buffer_load_dword v{v_pf}, v{vt[0]}, s[{sW}:{sW+3}], s{s_t0} offen")
        k.label(k.L("nopf"))
    if qkv:
        k(f"v_bfe_u32 v{vt[0]}, v{v_t}, 1, 3")
        k(f"v_xor_b32 v{vt[0]}, v{vt[0]}, v{v_h}")
        k(f"s_lshl_b32 s{s_t0}, s{s_w}, 12")
        k(f"v_lshl_add_u32 v{vt[1]}, v{v_t}, 7, s{s_t0}")
        for ks in range(4):
            k(f"v_xor_b32 v{vt[2]}, {2*ks}, v{vt[0]}")
            k(f"v_lshl_add_u32 v{vAr[0][ks]}, v{vt[2]}, 4, v{vt[1]}")
            k(f"v_xor_b32 v{vAr[1][ks]}, 4096, v{vAr[0][ks]}")
        def a_read(dst, ks, mt): return f"ds_read_b128 {vr(dst,4)}, v{vAr[mt][ks]}"
        def a_upd(ks): return [vAr[0][ks], vAr[1][ks]]
    else:
        k(f"s_lshl_b32 s{s_t0}, s{s_w}, 9")
        k(f"v_lshl_add_u32 v{vt[0]}, v{v_t}, 4, s{s_t0}")
        k(f"v_lshl_add_u32 v{vAr[0][0]}, v{v_h}, 11, v{vt[0]}")
        k(f"v_xor_b32 v{vAr[1][0]}, 512, v{vAr[0][0]}")
        def a_read(dst, ks, mt): return f"ds_read_b128 {vr(dst,4)}, v{vAr[mt][0]} offset:{ks*4096}"
        def a_upd(ks): return [vAr[0][0], vAr[1][0]] if ks == 0 else []
    k(f"v_bfe_u32 v{vt[0]}, v{v_lane}, 2, 2")
    k(f"v_lshl_add_u32 v{vt[1]}, v{v_h}, 3, v{vt[0]}")
    k(f"v_lshlrev_b32 v{vt[1]}, 8, v{vt[1]}")
    k(f"v_bfe_u32 v{vt[2]}, v{v_lane}, 4, 1")
    k(f"v_lshl_add_u32 v{vt[1]}, v{vt[2]}, 5, v{vt[1]}")
    k(f"v_and_b32 v{vt[2]}, 3, v{v_lane}")
    k(f"v_lshl_add_u32 v{vt[1]}, v{vt[2]}, 3, v{vt[1]}")
    k(f"v_add_u32 v{vt[1]}, 16384, v{vt[1]}")
    k(f"v_xor_b32 v{vt[2]}, s{s_pj}, v{vt[0]}")
    k(f"v_lshl_add_u32 v{vBr[0]}, v{vt[2]}, 6, v{vt[1]}")
    k(f"v_xor_b32 v{vBr[1]}, 64, v{vBr[0]}")
    def b_read(dst, ks, nt, e): return f"ds_read_b64_tr_b16 {vr(dst + 2*e, 2)}, v{vBr[nt]} offset:{ks*4096 + e*1024}"
    for r in range(64): k(f"v_mov_b32 v{ACC + r}, 0")
    k(f"s_mov_b32 s{s_it}, 0"); k(f"s_mov_b32 s{s_slot}, 0")
    if qkv:
        k(f"v_mov_b32 v{v_sum}, 0"); k(f"v_mov_b32 v{v_sq}, 0"); k(f"v_mov_b32 v{v_cs}, 0")

    def reads(ks):
        return [a_read(FA[ks][0], ks, 0), b_read(FB[ks][0], ks, 0, 0), b_read(FB[ks][0], ks, 0, 1),
                b_read(FB[ks][1], ks, 1, 0), b_read(FB[ks][1], ks, 1, 1), a_read(FA[ks][1], ks, 1)]
    k.stamp(2)
    k("s_waitcnt lgkmcnt(0)")
    k("s_barrier")
    k.stamp(3)
    if K.prof: k("s_waitcnt lgkmcnt(0)")
    for l in reads(0) + reads(1): k(l)

    def mainloop(tag, vorient):
        k.label(k.L("loop" + tag))
        for ks in range(4):
            mf = []
            for mt in range(2):
                for nt in range(2):
                    a, b = FA[ks][mt], FB[ks][nt]
                    s0, s1 = (a, b) if vorient else (b, a)
                    mf.append(f"v_mfma_f32_32x32x16_bf16 {vr(acc(mt,nt),16)}, {vr(s0,4)}, {vr(s1,4)}, {vr(acc(mt,nt),16)}")
            dots = []
            for r in range(4):
                dots.append(f"v_dot2c_f32_bf16 v{v_sum}, s{s_ones}, v{FA[ks][0] + r}")
                dots.append(f"v_dot2c_f32_bf16 v{v_sq}, v{FA[ks][0] + r}, v{FA[ks][0] + r}")
                dots.append(f"v_dot2c_f32_bf16 v{v_cs}, s{s_ones}, v{FB[ks][0] + r}")
            if "nodots" in X or not qkv: dots = [";"] * 12
            pre = []
            if ks == 2:
                k("s_barrier")
                pre += [f"s_add_u32 s{s_slot}, s{s_slot}, 1", f"s_and_b32 s{s_slot}, s{s_slot}, {NS - 1}",
                        f"s_cselect_b32 s{s_delta}, s34, {(-(NS - 1) * SLOT) & 0xffffffff:#x}"]
                pre += [f"v_add_u32 v{a}, s{s_delta}, v{a}" for a in vBr]
            nk = (ks + 2) % 4
            if ks >= 2:
                pre += [f"v_add_u32 v{a}, s{s_delta}, v{a}" for a in a_upd(nk)]
            post = []
            if ks == 3:
                post = [f"v_add_u32 v{a}, s{s_delta}, v{a}" for a in a_upd(2) + a_upd(3)]
            rd = reads(nk)
            k("s_waitcnt lgkmcnt(6)")
            seq = [mf[0]] + pre + rd[0:2] + dots[0:3] + [mf[1]] + rd[2:4] + dots[3:6] + [mf[2]] + rd[4:6] + dots[6:9] + [mf[3]] + dots[9:12] + post
            for l in seq: k(l)
        k(f"s_add_u32 s{s_it}, s{s_it}, 1")
        k(f"s_cmp_lt_u32 s{s_it}, {NST}")
        k(f"s_cbranch_scc1 {k.L('loop' + tag)}")
        k.stamp(4)
        k("s_waitcnt lgkmcnt(0) vmcnt(0)")

    def stats(vorient):
        trip = ((v_sum, vt[0]), (v_sq, vt[1]), (v_cs, vt[2]))
        for r, t in trip: k(f"v_mov_b32 v{t}, v{r}")
        for r, t in trip: k(f"v_permlane32_swap_b32 v{r}, v{t}")
        for r, t in trip: k(f"v_add_f32 v{r}, v{r}, v{t}")
        k(f"v_mul_f32 v{vt[0]}, {f32(-1.0 / D)}, v{v_sum}")
        k(f"v_mul_f32 v{vt[2]}, {f32(1.0 / D)}, v{v_sq}")
        k(f"v_fma_f32 v{vt[2]}, -v{vt[0]}, v{vt[0]}, v{vt[2]}")
        k(f"v_max_f32 v{vt[2]}, 0, v{vt[2]}")
        k(f"v_add_f32 v{vt[3]}, {f32(EPS)}, v{vt[2]}")
        k(f"v_rsq_f32 v{vt[1]}, v{vt[3]}")
        if qkv:
            if not vorient:
                k(f"s_cmp_lt_u32 s{s_nb}, 5")
                k(f"s_cselect_b32 s{s_t0}, {f32(math.log2(math.e) / math.sqrt(DH))}, 1.0")
                k(f"v_mul_f32 v{vt[1]}, s{s_t0}, v{vt[1]}")
        else:
            k(f"v_mul_f32 v{vt[3]}, v{vt[1]}, v{vt[1]}")
            k(f"v_mul_f32 v{vt[3]}, v{vt[3]}, v{vt[2]}")
            k(f"v_add_f32 v{vt[3]}, {f32(EPS)}, v{vt[3]}")
            k(f"v_rsq_f32 v{vt[3]}, v{vt[3]}")
            k(f"v_mul_f32 v{vt[1]}, v{vt[1]}, v{vt[3]}")
        k(f"s_lshl_b32 s{s_t0}, s{s_w}, 5")
        k(f"v_add_u32 v{vt[4]}, s{s_t0}, v{v_t}")
        k(f"s_lshl_b32 s{s_t0}, s{s_pj}, 5")
        k(f"v_add_lshl_u32 v{vt[5]}, v{v_t}, s{s_t0}, 2")
        k(f"v_add_u32 v{vt[5]}, {SB}, v{vt[5]}")
        if vorient:
            k(f"v_lshlrev_b32 v{vt[4]}, 2, v{vt[4]}")
            k(f"v_add_u32 v{vt[4]}, {SB}, v{vt[4]}")
            k(f"ds_write_b32 v{vt[4]}, v{vt[0]}")
            k(f"ds_write_b32 v{vt[4]}, v{vt[1]} offset:512")
        else:
            k(f"v_lshlrev_b32 v{vt[4]}, 3, v{vt[4]}")
            k(f"v_add_u32 v{vt[4]}, {SB}, v{vt[4]}")
            k(f"ds_write_b64 v{vt[4]}, {vr(vt[0], 2)}")
        k(f"ds_write_b32 v{vt[5]}, v{v_cs} offset:1024")
        if not qkv:
            k(f"v_lshlrev_b32 v{v_b1}, 16, v{v_b1}")
            k(f"ds_write_b32 v{vt[5]}, v{v_b1} offset:1536")
        k("s_waitcnt lgkmcnt(0)")
        k("s_barrier")

    def epi_nm():
        MR = [FA[0][0], FA[0][0] + 2]
        CS = EP; B1 = EP + 32
        if not qkv:
            k(f"s_lshl_b32 s{s_t0}, s{s_w}, 8"); k(f"s_add_u32 s{s_t0}, s{s_t0}, {SB}")
            k(f"v_lshl_add_u32 v{vt[4]}, v{v_t}, 3, s{s_t0}")
        k(f"ds_read_b64 {vr(MR[0],2)}, v{vt[4]}")
        k(f"v_xor_b32 v{vt[0]}, 256, v{vt[4]}")
        k(f"ds_read_b64 {vr(MR[1],2)}, v{vt[0]}")
        k(f"s_lshl_b32 s{s_t0}, s{s_pj}, 7")
        k(f"s_add_u32 s{s_t0}, s{s_t0}, {SB}")
        k(f"v_lshl_add_u32 v{vt[0]}, v{v_h}, 4, s{s_t0}")
        k(f"v_xor_b32 v{vt[1]}, 128, v{vt[0]}")
        for nt in range(2):
            for rq in range(4):
                k(f"ds_read_b128 {vr(CS + nt*16 + rq*4, 4)}, v{vt[nt]} offset:{1024 + rq*32}")
            if not qkv:
                for rq in range(4):
                    k(f"ds_read_b128 {vr(B1 + nt*16 + rq*4, 4)}, v{vt[nt]} offset:{1536 + rq*32}")
        OFF = QK_OFF if qkv else G_OFF
        k(f"s_lshl_b32 s{s_t0}, s{s_nb}, 4")
        k(f"v_add_lshl_u32 v{vt[2]}, v{v_h}, s{s_t0}, 15")
        k(f"s_lshl_b32 s{s_t0}, s{s_mb}, 7")
        k(f"v_add_u32 v{vt[3]}, s{s_t0}, v{v_t}")
        k(f"v_lshl_add_u32 v{vt[2]}, v{vt[3]}, 4, v{vt[2]}")
        if OFF: k(f"v_add_u32 v{vt[2]}, {OFF}, v{vt[2]}")
        so = 46
        k(f"s_lshl_b32 s{s_t0}, s{s_pj}, 17"); k(f"s_lshl_b32 s{s_t1}, s{s_w}, 9")
        k(f"s_add_u32 s{so}, s{s_t0}, s{s_t1}")
        k(f"s_xor_b32 s{so+1}, s{so}, 512")
        k(f"s_xor_b32 s{so+2}, s{so}, {1 << 17}")
        k(f"s_xor_b32 s{so+3}, s{so+1}, {1 << 17}")
        k(f"v_add_u32 v{vt[3]}, {2 * CH}, v{vt[2]}")
        if not qkv:
            C0 = -2.0 * math.log2(math.e) * math.sqrt(2.0 / math.pi)
            k(f"s_mov_b32 s44, {f32(C0 * 0.044715)}"); k(f"s_mov_b32 s45, {f32(C0 * 0.044715)}")
            k(f"v_mov_b32 v{vt[4]}, {f32(C0)}"); k(f"v_mov_b32 v{vt[5]}, {f32(C0)}")
        k("s_waitcnt lgkmcnt(0)")
        T = EP + 64
        n_st = 0
        for nt in range(2):
            for mt in range(2):
                a = acc(mt, nt); mr = MR[mt]
                for p in range(8):
                    x = vr(a + 2*p, 2)
                    k(f"v_pk_fma_f32 {x}, {vr(CS + nt*16 + 2*p, 2)}, {vr(mr,2)}, {x} op_sel_hi:[1,0,1]")
                for p in range(8):
                    x = vr(a + 2*p, 2)
                    if qkv:
                        k(f"v_pk_mul_f32 {x}, {x}, {vr(mr,2)} op_sel:[0,1] op_sel_hi:[1,1]")
                    else:
                        k(f"v_pk_fma_f32 {x}, {x}, {vr(mr,2)}, {vr(B1 + nt*16 + 2*p, 2)} op_sel:[0,1,0] op_sel_hi:[1,1,1]")
                if not qkv:
                    for p in range(8):
                        x = vr(a + 2*p, 2); t = vr(T + 2*p, 2)
                        k(f"v_pk_mul_f32 {t}, {x}, {x}")
                    for p in range(8):
                        t = vr(T + 2*p, 2)
                        k(f"v_pk_fma_f32 {t}, {t}, s[44:45], {vr(vt[4],2)}")
                    for p in range(8):
                        x = vr(a + 2*p, 2); t = vr(T + 2*p, 2)
                        k(f"v_pk_mul_f32 {t}, {t}, {x}")
                    for r in range(16): k(f"v_exp_f32 v{T + r}, v{T + r}")
                    for p in range(8):
                        t = vr(T + 2*p, 2)
                        k(f"v_pk_add_f32 {t}, {t}, 1.0 op_sel_hi:[1,0]")
                    for r in range(16): k(f"v_rcp_f32 v{T + r}, v{T + r}")
                    for p in range(8):
                        x = vr(a + 2*p, 2); t = vr(T + 2*p, 2)
                        k(f"v_pk_mul_f32 {x}, {x}, {t}")
                Pk = T + 16 + (n_st % 2) * 8
                for p in range(8):
                    k(f"v_cvt_pk_bf16_f32 v{Pk + p}, v{a + 2*p}, v{a + 2*p + 1}")
                for pq in range(2):
                    b = Pk + 4*pq
                    k(f"v_permlane32_swap_b32 v{b}, v{b+2}")
                    k(f"v_permlane32_swap_b32 v{b+1}, v{b+3}")
                for pq in range(2):
                    b = Pk + 4*pq
                    k(f"buffer_store_dwordx4 {vr(b,4)}, v{vt[2 + pq]}, s[{sW}:{sW+3}], s{so + nt*2 + mt} offen")
                n_st += 1

    def epi_v():
        NM = EP; RS = EP + 32; CSV = [FA[0][0], FA[0][0] + 2]
        k(f"s_lshl_b32 s{s_t0}, s{s_w}, 7")
        k(f"s_add_u32 s{s_t0}, s{s_t0}, {SB}")
        k(f"v_lshl_add_u32 v{vt[0]}, v{v_h}, 4, s{s_t0}")
        k(f"v_xor_b32 v{vt[1]}, 128, v{vt[0]}")
        for mt in range(2):
            for rq in range(4):
                k(f"ds_read_b128 {vr(NM + mt*16 + rq*4, 4)}, v{vt[mt]} offset:{rq*32}")
                k(f"ds_read_b128 {vr(RS + mt*16 + rq*4, 4)}, v{vt[mt]} offset:{512 + rq*32}")
        k(f"ds_read_b32 v{CSV[0]}, v{vt[5]} offset:1024")
        k(f"v_xor_b32 v{vt[4]}, 128, v{vt[5]}")
        k(f"ds_read_b32 v{CSV[1]}, v{vt[4]} offset:1024")
        k(f"s_mul_i32 s{s_t0}, s{s_mb}, {4 * 1280}")
        k(f"s_sub_u32 s{s_t1}, s{s_nb}, 10"); k(f"s_lshl_b32 s{s_t1}, s{s_t1}, 7"); k(f"s_add_u32 s{s_t0}, s{s_t0}, s{s_t1}")
        k(f"v_add_lshl_u32 v{vt[2]}, v{v_t}, s{s_t0}, 5")
        k(f"v_lshl_add_u32 v{vt[2]}, v{v_h}, 4, v{vt[2]}")
        k(f"v_add_u32 v{vt[2]}, {V_OFF}, v{vt[2]}")
        k(f"v_add_u32 v{vt[3]}, {640 * 32}, v{vt[2]}")
        so = 46
        k(f"s_mul_i32 s{so}, s{s_w}, {1280 * 32}")
        k(f"s_xor_b32 s{s_t0}, s{s_w}, 1"); k(f"s_mul_i32 s{so+2}, s{s_t0}, {1280 * 32}")
        k(f"s_lshl_b32 s{s_t0}, s{s_pj}, 10"); k(f"s_xor_b32 s{s_t1}, s{s_t0}, 1024")
        k(f"s_add_u32 s{so+1}, s{so}, s{s_t1}"); k(f"s_add_u32 s{so}, s{so}, s{s_t0}")
        k(f"s_add_u32 s{so+3}, s{so+2}, s{s_t1}"); k(f"s_add_u32 s{so+2}, s{so+2}, s{s_t0}")
        k("s_waitcnt lgkmcnt(0)")
        T = EP + 64; n_st = 0
        for mt in range(2):
            for nt in range(2):
                a = acc(mt, nt)
                for p in range(8):
                    x = vr(a + 2*p, 2)
                    k(f"v_pk_fma_f32 {x}, {vr(NM + mt*16 + 2*p, 2)}, {vr(CSV[nt],2)}, {x} op_sel_hi:[1,0,1]")
                for p in range(8):
                    x = vr(a + 2*p, 2)
                    k(f"v_pk_mul_f32 {x}, {x}, {vr(RS + mt*16 + 2*p, 2)}")
                Pk = T + (n_st % 2) * 8
                for p in range(8):
                    k(f"v_cvt_pk_bf16_f32 v{Pk + p}, v{a + 2*p}, v{a + 2*p + 1}")
                for jj in range(2):
                    k(f"buffer_store_dwordx4 {vr(Pk + 4*jj, 4)}, v{vt[2 + jj]}, s[{sW}:{sW+3}], s{so + mt*2 + nt} offen")
                n_st += 1

    if qkv:
        k(f"s_cmp_ge_u32 s{s_nb}, 10")
        k(f"s_cbranch_scc1 {k.L('loopv')}")
        mainloop("q", False); stats(False); k.stamp(5); epi_nm(); k.stamp(6); k.dump(0, 9, s_wid)
        k("s_endpgm")
        mainloop("v", True); stats(True); k.stamp(5); epi_v(); k.stamp(6); k.dump(0, 9, s_wid)
        k("s_endpgm")
        k.label(k.L("aux"))
        k(f"s_cmp_ge_u32 s{s_mb}, 14"); k(f"s_cbranch_scc1 {k.L('end')}")
        k("s_load_dwordx4 s[44:47], s[0:1], 32")
        k(f"v_lshrrev_b32 v{vt[0]}, 4, v{v_lane}")
        k(f"v_and_b32 v{vt[1]}, 15, v{v_lane}")
        k(f"v_mul_u32_u24 v{vt[2]}, {F * 2}, v{vt[0]}")
        k(f"v_lshl_add_u32 v{vt[2]}, v{vt[1]}, 4, v{vt[2]}")
        k(f"s_mul_i32 s{s_t0}, s{s_wid}, {80 * F * 2}"); k(f"s_lshl_b32 s{s_t1}, s{s_mb}, 8"); k(f"s_add_u32 s{s_t0}, s{s_t0}, s{s_t1}")
        k(f"v_lshlrev_b32 v{vt[3]}, 1, v0")
        k("s_waitcnt lgkmcnt(0)")
        srd(k, sB, 44, 45, D * F * 2); srd(k, sBi, 46, 47, F * 2); srd(k, sW, 40, 41, WS_END)
        k(f"buffer_load_ushort v{v_b1}, v{vt[3]}, s[{sBi}:{sBi+3}], s{s_t1} offen")
        for i in range(20):
            k(f"buffer_load_dwordx4 {vr(40 + 4*i, 4)}, v{vt[2]}, s[{sB}:{sB+3}], s{s_t0} offen")
            k(f"s_add_u32 s{s_t0}, s{s_t0}, {4 * F * 2}")
        for r in range(8): k(f"v_mov_b32 v{24 + r}, 0")
        for i in range(20):
            k(f"s_waitcnt vmcnt({19 - i})")
            for r in range(4):
                k(f"v_lshlrev_b32 v{32 + 2*r}, 16, v{40 + 4*i + r}")
                k(f"v_and_b32 v{33 + 2*r}, 0xffff0000, v{40 + 4*i + r}")
            for r in range(4):
                k(f"v_pk_add_f32 {vr(24 + 2*r, 2)}, {vr(24 + 2*r, 2)}, {vr(32 + 2*r, 2)}")
        k(f"v_lshlrev_b32 v{vt[0]}, 5, v0")
        k(f"ds_write_b128 v{vt[0]}, v[24:27]")
        k(f"ds_write_b128 v{vt[0]}, v[28:31] offset:16")
        k("s_waitcnt lgkmcnt(0)")
        k("s_barrier")
        k(f"s_cmp_ge_u32 s{s_wid}, 2"); k(f"s_cbranch_scc1 {k.L('end')}")
        k(f"v_lshlrev_b32 v{vt[0]}, 2, v0")
        for i in range(32):
            k(f"ds_read_b32 v{40 + i}, v{vt[0]} offset:{i * 512}")
            if i % 8 == 7: k("s_waitcnt lgkmcnt(0)")
        for i in range(1, 32): k(f"v_add_f32 v40, v40, v{40 + i}")
        k(f"v_lshlrev_b32 v{v_b1}, 16, v{v_b1}")
        k(f"s_lshl_b32 s{s_t0}, s{s_mb}, 10"); k(f"s_add_u32 s{s_t0}, s{s_t0}, {C1_OFF}"); k(f"s_add_u32 s{s_t1}, s{s_t0}, 512")
        k(f"buffer_store_dword v40, v{vt[0]}, s[{sW}:{sW+3}], s{s_t0} offen")
        k(f"buffer_store_dword v{v_b1}, v{vt[0]}, s[{sW}:{sW+3}], s{s_t1} offen")
    else:
        mainloop("q", False)
        k(f"s_cmp_eq_u32 s{s_nb}, 13"); k(f"s_cselect_b32 s{s_t0}, s{s_pj}, 0")
        k(f"s_cmp_ge_u32 s{s_t0}, 2"); k(f"s_cbranch_scc1 {k.L('end')}")
        k.stamp(5); epi_nm(); k.stamp(6); k.dump(3, 9, s_wid)
    k.label(k.L("end"))
    k("s_endpgm")
    return k, EP + 64 + 32, NS * SLOT + (0 if qkv else 2048)

def attn():
    k = K("attn")
    sW = 4; sP1 = 8; sP2 = 12
    s_hd, s_qb, s_w, s_qs, s_kh, s_t0, s_t1, s_it = 20, 21, 22, 23, 24, 25, 26, 27
    s_ko, s_vo, s_odd = 28, 29, 30
    s_vm = 32
    s_lo = 34
    s_c = 36
    v_lane, v_t, v_h = 1, 2, 3
    vK1, vK2, vV0, vV1 = 4, 5, 6, 7
    vt = [8, 9, 10, 11, 12, 13, 14, 15]
    vm = [16, 17]
    v_pfa, v_pfb, v_pf = 18, 19, 200
    Q1 = [20, 24]; Q2 = [28, 30]
    NBUF = 4
    K1 = [32, 36, 40, 44]; K2 = [48, 50, 52, 54]
    VB = [56, 64, 72, 80]
    C = [88, 104]; Sx = [120, 136]; P = [152, 160]; O = [168, 184]
    NV = 202
    k.stamp(0); k.stamp(1, True)
    k("s_cmp_ge_u32 s2, 256"); k(f"s_cbranch_scc1 {k.L('end')}")
    k("s_load_dwordx2 s[40:41], s[0:1], 80")
    k("s_load_dwordx2 s[44:45], s[0:1], 16")
    k("s_load_dwordx2 s[46:47], s[0:1], 32")
    k(f"v_lshrrev_b32 v{vt[0]}, 6, v0")
    k(f"v_and_b32 v{v_t}, 31, v0")
    k(f"v_readfirstlane_b32 s{s_w}, v{vt[0]}")
    k(f"v_bfe_u32 v{v_h}, v0, 5, 1")
    k(f"s_and_b32 s{s_hd}, s2, 7"); k(f"s_lshl_b32 s{s_hd}, s{s_hd}, 2")
    k(f"s_bfe_u32 s{s_t0}, s2, 0x20003"); k(f"s_add_u32 s{s_hd}, s{s_hd}, s{s_t0}")
    k(f"s_lshr_b32 s{s_qb}, s2, 5")
    k(f"s_and_b32 s{s_qs}, s{s_w}, 3"); k(f"s_lshr_b32 s{s_kh}, s{s_w}, 2")
    if "noprio" not in X:
        k(f"s_cmp_eq_u32 s{s_kh}, 0"); k(f"s_cbranch_scc1 {k.L('np')}")
        k("s_setprio 1")
        k.label(k.L("np"))
    k(f"s_and_b32 s{s_odd}, s{s_hd}, 1")
    k(f"s_mov_b32 s{s_lo}, -1"); k(f"s_mov_b32 s{s_lo+1}, 0")
    k(f"s_lshr_b32 s{s_t0}, s{s_hd}, 1"); k(f"s_mul_i32 s{s_t0}, s{s_t0}, 5")
    k(f"s_mul_i32 s{s_t1}, s{s_odd}, 3"); k(f"s_add_u32 s{s_t1}, s{s_t1}, s{s_t0}")
    k(f"v_add_lshl_u32 v{vK1}, v{v_h}, s{s_t1}, 15")
    k(f"v_lshl_add_u32 v{vK1}, v{v_t}, 4, v{vK1}")
    k(f"s_add_u32 s{s_t0}, s{s_t0}, 2"); k(f"s_lshl_b32 s{s_t0}, s{s_t0}, 15")
    k(f"s_lshl_b32 s{s_t1}, s{s_odd}, 3"); k(f"s_add_u32 s{s_t0}, s{s_t0}, s{s_t1}")
    k(f"v_lshl_add_u32 v{vK2}, v{v_t}, 4, s{s_t0}")
    k(f"s_lshl_b32 s{s_ko}, s{s_kh}, 14"); k(f"s_add_u32 s{s_ko}, s{s_ko}, {QK_OFF + 80 * CH}")
    k(f"s_lshl_b32 s{s_t0}, s{s_qb}, 12"); k(f"s_lshl_b32 s{s_t1}, s{s_qs}, 10"); k(f"s_add_u32 s{s_t0}, s{s_t0}, s{s_t1}")
    for qt in range(2):
        k(f"v_mov_b32 v{Q2[qt]}, 0"); k(f"v_mov_b32 v{Q2[qt]+1}, 0")
    k(f"s_mov_b32 s42, s{s_ko}")
    k("s_waitcnt lgkmcnt(0)")
    srd(k, sW, 40, 41, WS_END)
    W = f"s[{sW}:{sW+3}]"
    def kload(b):
        return [f"buffer_load_dwordx4 {vr(K1[b],4)}, v{vK1}, {W}, s{s_ko} offen",
                f"buffer_load_dwordx2 {vr(K2[b],2)}, v{vK2}, {W}, s{s_ko} offen",
                f"s_add_u32 s{s_ko}, s{s_ko}, 512"]
    def vload(b):
        return [f"s_mov_b64 exec, s[{s_vm}:{s_vm+1}]",
                f"buffer_load_dwordx4 {vr(VB[b],4)}, v{vV0}, {W}, s{s_vo} offen",
                f"buffer_load_dwordx4 {vr(VB[b]+4,4)}, v{vV1}, {W}, s{s_vo} offen",
                f"s_mov_b64 exec, -1",
                f"s_add_u32 s{s_vo}, s{s_vo}, {1280 * 32}"]
    for l in kload(0): k(l)
    for qt in range(2):
        k(f"buffer_load_dwordx4 {vr(Q1[qt],4)}, v{vK1}, {W}, s{s_t0} offen offset:{qt*512}")
    k(f"s_mov_b64 exec, s[{s_lo}:{s_lo+1}]")
    for qt in range(2):
        k(f"buffer_load_dwordx2 {vr(Q2[qt],2)}, v{vK2}, {W}, s{s_t0} offen offset:{qt*512}")
    k("s_mov_b64 exec, -1")
    for l in kload(1): k(l)
    k(f"v_and_b32 v{v_lane}, 63, v0")
    k(f"s_mov_b32 s{s_vm}, 0xfffff"); k(f"s_mov_b32 s{s_vm+1}, 0xfffff")
    k(f"v_add_u32 v{vt[0]}, 4, v{v_t}")
    k(f"v_subrev_u32 v{vt[1]}, 16, v{v_t}")
    k(f"v_cmp_gt_u32 vcc, 16, v{v_t}")
    k(f"v_cndmask_b32 v{vt[0]}, v{vt[1]}, v{vt[0]}, vcc")
    k(f"s_cmp_eq_u32 s{s_odd}, 1")
    k(f"s_cselect_b64 vcc, -1, 0")
    k(f"v_cndmask_b32 v{vt[0]}, v{v_t}, v{vt[0]}, vcc")
    k(f"s_mul_i32 s{s_t0}, s{s_hd}, 20")
    k(f"v_add_lshl_u32 v{vV0}, v{vt[0]}, s{s_t0}, 5")
    k(f"v_lshl_add_u32 v{vV0}, v{v_h}, 4, v{vV0}")
    k(f"v_add_u32 v{vV1}, {640 * 32}, v{vV0}")
    k(f"s_mul_i32 s{s_vo}, s{s_kh}, {32 * 1280 * 32}"); k(f"s_add_u32 s{s_vo}, s{s_vo}, {V_OFF}")
    k(f"s_mov_b32 s43, s{s_vo}")
    k(f"v_cmp_eq_u32 vcc, 20, v{v_t}")
    k(f"v_mov_b32 v{vt[1]}, 0x3f803f80")
    k(f"v_cndmask_b32 v{vt[1]}, 0, v{vt[1]}, vcc")
    for r in range(8): k(f"v_mov_b32 v{VB[0] + r}, v{vt[1]}")
    for l in vload(0): k(l)
    for b in range(1, NBUF):
        for r in range(8): k(f"v_mov_b32 v{VB[b] + r}, v{vt[1]}")
    for qt in range(2):
        for r in range(16): k(f"v_mov_b32 v{O[qt] + r}, 0")
    for r in range(8): k(f"v_mov_b32 v{P[1] + r}, 0")
    srd(k, sP1, 44, 45, D * D * 2); srd(k, sP2, 46, 47, D * F * 2)
    k(f"s_lshr_b32 s{s_t0}, s2, 3"); k(f"s_lshl_b32 s{s_t0}, s{s_t0}, 3"); k(f"s_add_u32 s{s_t0}, s{s_t0}, s{s_w}")
    k(f"s_mul_i32 s48, s{s_t0}, {26 * 128}"); k(f"s_mul_i32 s49, s{s_t0}, {68 * 128}")
    k(f"v_lshlrev_b32 v{vt[2]}, 8, v{v_lane}"); k(f"v_add_u32 v{vt[2]}, 124, v{vt[2]}")
    k(f"v_mov_b32 v{vt[3]}, 0x7ffffff0")
    k(f"v_cmp_gt_u32 vcc, 34, v{v_lane}")
    k(f"v_cndmask_b32 v{v_pfa}, v{vt[3]}, v{vt[2]}, vcc")
    k(f"v_cmp_gt_u32 vcc, 13, v{v_lane}")
    k(f"v_cndmask_b32 v{v_pfb}, v{vt[3]}, v{vt[2]}, vcc")
    k(f"s_sub_u32 s50, s{s_qs}, s{s_kh}"); k(f"s_add_u32 s50, s50, 2"); k(f"s_add_u32 s51, s50, 2")
    def qk(qt, b, c):
        cc = "0" if c is None else vr(c, 16)
        return [f"v_mfma_f32_32x32x16_bf16 {vr(Sx[qt],16)}, {vr(K1[b],4)}, {vr(Q1[qt],4)}, {cc}",
                f"v_mfma_f32_32x32x8_bf16 {vr(Sx[qt],16)}, {vr(K2[b],2)}, {vr(Q2[qt],2)}, {vr(Sx[qt],16)}"]
    def pv(qt, b):
        return [f"v_mfma_f32_32x32x16_bf16 {vr(O[qt],16)}, {vr(VB[b],4)}, {vr(P[qt],4)}, {vr(O[qt],16)}",
                f"v_mfma_f32_32x32x16_bf16 {vr(O[qt],16)}, {vr(VB[b]+4,4)}, {vr(P[qt]+4,4)}, {vr(O[qt],16)}"]
    def rowmax(qt, dst, tmp):
        s = Sx[qt]
        k(f"v_max3_f32 v{dst}, v{s}, v{s+1}, v{s+2}")
        for r in range(3, 15, 2): k(f"v_max3_f32 v{dst}, v{dst}, v{s+r}, v{s+r+1}")
        k(f"v_max_f32 v{dst}, v{dst}, v{s+15}")
        k(f"v_mov_b32 v{tmp}, v{dst}")
        k(f"v_permlane32_swap_b32 v{dst}, v{tmp}")
        k(f"v_max_f32 v{dst}, v{dst}, v{tmp}")
    k.stamp(2)
    k("s_waitcnt vmcnt(4)")
    for qt in range(2):
        for l in qk(qt, 0, None): k(l)
    for l in kload(2) + vload(1) + kload(3) + vload(2): k(l)
    rowmax(0, vm[0], vt[0])
    k(f"v_sub_f32 v{vt[1]}, 0, v{vm[0]}")
    for r in range(16): k(f"v_mov_b32 v{C[0] + r}, v{vt[1]}")
    for l in qk(0, 0, C[0]): k(l)
    rowmax(1, vm[1], vt[0])
    k(f"v_sub_f32 v{vt[1]}, 0, v{vm[1]}")
    for r in range(16): k(f"v_mov_b32 v{C[1] + r}, v{vt[1]}")
    k(f"s_mov_b32 s{s_it}, 0")
    k.stamp(3)
    k("s_nop 1")

    def slot(qt, mf, extra):
        s = Sx[qt]; p = P[qt]
        for i in range(16):
            for l in extra.get(i, []): k(l)
            if i % 4 == 0: k(mf[i // 4])
            k(f"v_exp_f32 v{s+i}, v{s+i}")
            if i % 2 == 1 and i >= 3:
                k(f"v_cvt_pk_bf16_f32 v{p + (i-3)//2}, v{s+i-3}, v{s+i-2}")
        for l in extra.get(16, []): k(l)
        k(f"v_cvt_pk_bf16_f32 v{p+7}, v{s+14}, v{s+15}")
    k(f"s_cmp_eq_u32 s{s_kh}, 0")
    k(f"s_cselect_b32 s31, 99, {int(os.environ.get('PRI', '6'))}")
    k.label(k.L("loop"))
    for u in range(NBUF):
        b = u; bp = (u - 1) % NBUF; bn = (u + 1) % NBUF
        e1 = {0: ["s_waitcnt vmcnt(12)"]}
        slot(0, qk(1, b, C[1]) + pv(1, bp), {6: kload(b), 14: vload(bp)})
        slot(1, qk(0, bn, C[0]) + pv(0, b), e1)
    k(f"s_add_u32 s{s_it}, s{s_it}, 1")
    PRI = int(os.environ.get("PRI", "6"))
    k(f"s_cmp_lg_u32 s{s_it}, s31")
    k(f"s_cbranch_scc1 {k.L('noev')}")
    k("s_setprio 0")
    k.label(k.L("noev"))
    if "nowpf" not in X:
        k(f"s_cmp_lg_u32 s{s_it}, s50"); k(f"s_cbranch_scc1 {k.L('noe2')}")
        k(f"buffer_load_dwordx2 {vr(v_pf, 2)}, v{v_pfa}, s[{sP2}:{sP2+3}], s49 offen")
        k.label(k.L("noe2"))
        k(f"s_cmp_lg_u32 s{s_it}, s51"); k(f"s_cbranch_scc1 {k.L('noe3')}")
        k(f"buffer_load_dwordx2 {vr(v_pf, 2)}, v{v_pfb}, s[{sP1}:{sP1+3}], s48 offen")
        k.label(k.L("noe3"))
    k(f"s_cmp_lt_u32 s{s_it}, {32 // NBUF}")
    k(f"s_cbranch_scc1 {k.L('loop')}")
    k.stamp(4)
    for l in pv(1, NBUF - 1): k(l)
    k("s_nop 7"); k("s_nop 7")
    k(f"v_add_f32 v{vt[0]}, |v{O[0]}|, |v{O[1]}|")
    for qt in range(2):
        for r in range(1, 12):
            k(f"v_add_f32 v{vt[0]}, v{vt[0]}, |v{O[qt]+r}|")
    k(f"v_add_f32 v{vt[1]}, v{O[0]+8}, v{O[1]+8}")
    k(f"s_mov_b32 s{s_t0}, {f32(2.0**100)}")
    k(f"v_cmp_nlt_f32 s[{s_c}:{s_c+1}], v{vt[0]}, s{s_t0}")
    k(f"s_mov_b32 s{s_t0}, {f32(2.0**60)}")
    k(f"v_cmp_nlt_f32 vcc, |v{vt[1]}|, s{s_t0}")
    k(f"s_andn2_b64 vcc, vcc, s[{s_lo}:{s_lo+1}]")
    k(f"s_or_b64 s[{s_c}:{s_c+1}], s[{s_c}:{s_c+1}], vcc")
    k("s_waitcnt vmcnt(0)")
    k(f"s_cmp_eq_u64 s[{s_c}:{s_c+1}], 0")
    k(f"s_cbranch_scc1 {k.L('merge')}")
    k(f"s_mov_b32 s{s_ko}, s42"); k(f"s_mov_b32 s{s_vo}, s43")
    for qt in range(2):
        for r in range(16): k(f"v_mov_b32 v{O[qt] + r}, 0")
        k(f"v_mov_b32 v{vm[qt]}, 0xff800000")
    k(f"s_mov_b32 s{s_it}, 0")
    k.label(k.L("fb"))
    for l in kload(0) + vload(0): k(l)
    k("s_waitcnt vmcnt(0)")
    for qt in range(2):
        for l in qk(qt, 0, None): k(l)
    for qt in range(2):
        rowmax(qt, vt[2], vt[0])
        k(f"v_max_f32 v{vt[2]}, v{vt[2]}, v{vm[qt]}")
        k(f"v_sub_f32 v{vt[3]}, v{vm[qt]}, v{vt[2]}")
        k(f"v_exp_f32 v{vt[3]}, v{vt[3]}")
        k(f"v_mov_b32 v{vm[qt]}, v{vt[2]}")
        for r in range(16): k(f"v_mul_f32 v{O[qt]+r}, v{O[qt]+r}, v{vt[3]}")
        for r in range(16): k(f"v_sub_f32 v{Sx[qt]+r}, v{Sx[qt]+r}, v{vt[2]}")
        for r in range(16): k(f"v_exp_f32 v{Sx[qt]+r}, v{Sx[qt]+r}")
        for r in range(8): k(f"v_cvt_pk_bf16_f32 v{P[qt]+r}, v{Sx[qt]+2*r}, v{Sx[qt]+2*r+1}")
        for l in pv(qt, 0): k(l)
    k("s_nop 7"); k("s_nop 7")
    k(f"s_add_u32 s{s_it}, s{s_it}, 1")
    k(f"s_cmp_lt_u32 s{s_it}, 32")
    k(f"s_cbranch_scc1 {k.L('fb')}")
    k.label(k.L("merge"))
    k(f"s_cmp_eq_u32 s{s_kh}, 0")
    k(f"s_cbranch_scc1 {k.L('noswap')}")
    for r in range(12): k(f"v_swap_b32 v{O[0]+r}, v{O[1]+r}")
    k(f"v_swap_b32 v{vm[0]}, v{vm[1]}")
    k.label(k.L("noswap"))
    k(f"v_mov_b32 v{O[1]+12}, v{vm[1]}")
    k(f"s_lshl_b32 s{s_t0}, s{s_w}, 12")
    k(f"v_lshl_add_u32 v{vt[0]}, v{v_lane}, 4, s{s_t0}")
    k(f"v_xor_b32 v{vt[1]}, {4 << 12}, v{vt[0]}")
    for q in range(4): k(f"ds_write_b128 v{vt[0]}, {vr(O[1] + 4*q, 4)} offset:{q*1024}")
    k("s_waitcnt lgkmcnt(0)")
    k("s_barrier")
    k.stamp(5)
    for q in range(4): k(f"ds_read_b128 {vr(Sx[0] + 4*q, 4)}, v{vt[1]} offset:{q*1024}")
    k(f"s_lshl_b32 s{s_t0}, s{s_qb}, 12"); k(f"s_lshl_b32 s{s_t1}, s{s_qs}, 10"); k(f"s_add_u32 s{s_t0}, s{s_t0}, s{s_t1}")
    k(f"s_lshl_b32 s{s_t1}, s{s_kh}, 9"); k(f"s_add_u32 s{s_t0}, s{s_t0}, s{s_t1}"); k(f"s_add_u32 s{s_t0}, s{s_t0}, {O_OFF}")
    k("s_waitcnt lgkmcnt(0)")
    mo = Sx[0] + 12
    k(f"v_max_f32 v{vt[2]}, v{vm[0]}, v{mo}")
    k(f"v_sub_f32 v{vt[3]}, v{vm[0]}, v{vt[2]}"); k(f"v_sub_f32 v{vt[4]}, v{mo}, v{vt[2]}")
    k(f"v_exp_f32 v{vt[3]}, v{vt[3]}"); k(f"v_exp_f32 v{vt[4]}, v{vt[4]}")
    for r in range(12): k(f"v_mul_f32 v{O[0]+r}, v{O[0]+r}, v{vt[3]}")
    for r in range(12): k(f"v_fmac_f32 v{O[0]+r}, v{Sx[0]+r}, v{vt[4]}")
    k(f"v_mov_b32 v{vt[5]}, v{O[0]+8}"); k(f"v_mov_b32 v{vt[6]}, v{O[0]+8}")
    k(f"v_permlane32_swap_b32 v{vt[5]}, v{vt[6]}")
    k(f"v_rcp_f32 v{vt[6]}, v{vt[6]}")
    for r in range(12): k(f"v_mul_f32 v{O[0]+r}, v{O[0]+r}, v{vt[6]}")
    for r in range(6): k(f"v_cvt_pk_bf16_f32 v{P[0]+r}, v{O[0]+2*r}, v{O[0]+2*r+1}")
    k(f"v_permlane32_swap_b32 v{P[0]}, v{P[0]+2}")
    k(f"v_permlane32_swap_b32 v{P[0]+1}, v{P[0]+3}")
    k(f"buffer_store_dwordx4 {vr(P[0],4)}, v{vK1}, {W}, s{s_t0} offen")
    k(f"s_mov_b64 exec, s[{s_lo}:{s_lo+1}]")
    k(f"buffer_store_dwordx2 {vr(P[0]+4,2)}, v{vK2}, {W}, s{s_t0} offen")
    k.stamp(6); k.dump(1, 9, s_w)
    k.label(k.L("end"))
    k("s_endpgm")
    return k, NV, 8 * 4096

def resgemm(kind):
    k = K(kind)
    op = kind == "oproj"
    KK = D if op else F
    GS = 8
    NG = (KK // 16 + GS - 1) // GS
    NKS = NG * GS
    s_rot = 29; sAA = 52 - 4
    GB = 16384
    NSLOT = 5 if op else 8
    A_OFF = O_OFF if op else G_OFF
    sB, sW, sR, sO, sBi = 4, 8, 12, 16, 44
    s_r, s_cb, s_w, s_t0, s_t1, s_offB, s_offA, s_m0, s_it, s_wid = 20, 21, 22, 23, 24, 25, 26, 27, 28, 35
    v_lane, v_t, v_h = 1, 2, 3
    vBd = [4, 5, 6, 7]; vA = 8; vBr = [9, 10]; vO = 11
    vt = [12, 13, 14, 15]
    RES = 16; BI = 32; ACC = 48
    DIST = 6; NFB = 8; FB = 80
    LA = 14; NFA = 16; FA = 112
    NV = FA + NFA * 4
    T = FA
    kidx = 2 if op else 4
    k.stamp(0); k.stamp(1, True)
    k("s_cmp_ge_u32 s2, 240"); k(f"s_cbranch_scc1 {k.L('end')}")
    if op:
        k("s_load_dwordx2 s[36:37], s[0:1], 16")
        k("s_load_dwordx2 s[38:39], s[0:1], 0")
    else:
        k("s_load_dwordx4 s[36:39], s[0:1], 48")
        k("s_load_dwordx2 s[42:43], s[0:1], 64")
    k("s_load_dwordx2 s[40:41], s[0:1], 80")
    k(f"v_lshrrev_b32 v{vt[0]}, 6, v0")
    k(f"v_and_b32 v{v_lane}, 63, v0")
    k(f"v_readfirstlane_b32 s{s_wid}, v{vt[0]}")
    k(f"s_lshr_b32 s{s_t0}, s2, 3")
    k(f"s_mul_i32 s{s_cb}, s{s_t0}, 43"); k(f"s_lshr_b32 s{s_cb}, s{s_cb}, 7")
    k(f"s_mul_i32 s{s_t1}, s{s_cb}, 3"); k(f"s_sub_u32 s{s_r}, s{s_t0}, s{s_t1}")
    k(f"s_lshl_b32 s{s_t1}, s{s_cb}, 7")
    if ("rot_" + kind) not in X:
        k(f"s_mov_b32 s{s_rot}, 0")
    elif op:
        k(f"s_lshl_b32 s{s_rot}, s{s_r}, 1"); k(f"s_add_u32 s{s_rot}, s{s_rot}, s{s_cb}")
        for _ in range(2):
            k(f"s_cmp_ge_u32 s{s_rot}, 5"); k(f"s_cselect_b32 s{s_t0}, 5, 0"); k(f"s_sub_u32 s{s_rot}, s{s_rot}, s{s_t0}")
    else:
        k(f"s_mul_i32 s{s_rot}, s{s_r}, 5"); k(f"s_mul_i32 s{s_t0}, s{s_cb}, 11"); k(f"s_lshr_b32 s{s_t0}, s{s_t0}, 3"); k(f"s_add_u32 s{s_rot}, s{s_rot}, s{s_t0}")
        k(f"s_cmp_ge_u32 s{s_rot}, 14"); k(f"s_cselect_b32 s{s_t0}, 14, 0"); k(f"s_sub_u32 s{s_rot}, s{s_rot}, s{s_t0}")
    k(f"s_and_b32 s{s_w}, s{s_wid}, 3")
    k(f"s_cmp_lt_u32 s{s_wid}, 4")
    k(f"s_cbranch_scc1 {k.L('compute')}")
    k(f"v_lshrrev_b32 v{vt[0]}, 3, v{v_lane}")
    k(f"v_and_b32 v{vt[1]}, 7, v{v_lane}")
    k(f"v_bfe_u32 v{vt[2]}, v{v_lane}, 4, 1")
    k(f"v_lshlrev_b32 v{vt[2]}, 2, v{vt[2]}")
    k(f"v_xor_b32 v{vt[1]}, v{vt[1]}, v{vt[2]}")
    k(f"v_mul_u32_u24 v{vt[0]}, 1280, v{vt[0]}")
    k(f"v_lshl_add_u32 v{vBd[0]}, v{vt[1]}, 4, v{vt[0]}")
    for ii in range(1, 4):
        k(f"v_add_u32 v{vBd[ii]}, {ii * (8 * 1280 - 1024)}, v{vBd[0]}")
    k(f"s_mul_i32 s{s_offA}, s{s_w}, {32 * 1280}"); k(f"s_add_u32 s{s_offA}, s{s_offA}, s{s_t1}")
    k(f"s_mul_i32 s{s_offB}, s{s_rot}, {128 * 1280}"); k(f"s_add_u32 s{s_offB}, s{s_offB}, s{s_offA}")
    k(f"s_lshl_b32 s{s_m0}, s{s_w}, 12")
    k(f"s_mov_b32 s{s_it}, 0")
    k("s_waitcnt lgkmcnt(0)")
    srd(k, sB, 36, 37, KK * D * 2)
    def issue():
        r = [f"s_mov_b32 m0, s{s_m0}", f"s_add_u32 s{s_m0}, s{s_m0}, {GB}"]
        for ii in range(4):
            r.append(f"buffer_load_dwordx4 v{vBd[ii]}, s[{sB}:{sB+3}], s{s_offB} offen offset:{ii*1024} lds")
        r.append(f"s_add_u32 s{s_offB}, s{s_offB}, {128 * 1280}")
        r.append(f"s_cmp_lt_u32 s{s_offB}, {NG * 128 * 1280}")
        r.append(f"s_cselect_b32 s{s_offB}, s{s_offB}, s{s_offA}")
        if not op: r.append(f"s_and_b32 s{s_m0}, s{s_m0}, {NSLOT * GB - 1}")
        return r
    k.stamp(2)
    for l in issue() + issue(): k(l)
    k.label(k.L("lloop"))
    for l in issue(): k(l)
    k("s_waitcnt vmcnt(8)")
    k("s_barrier")
    k(f"s_add_u32 s{s_it}, s{s_it}, 1")
    k(f"s_cmp_lt_u32 s{s_it}, {NG - 2}")
    k(f"s_cbranch_scc1 {k.L('lloop')}")
    k("s_waitcnt vmcnt(4)"); k("s_barrier")
    k("s_waitcnt vmcnt(0)"); k("s_barrier")
    k.stamp(3); k.stamp(4); k.stamp(5); k.stamp(6); k.dump(kidx, 9, s_wid)
    k("s_endpgm")
    k.label(k.L("compute"))
    k(f"s_cmp_eq_u32 s{s_w}, 3"); k(f"s_cbranch_scc1 {k.L('end')}")
    k(f"s_mul_i32 s{s_t0}, s{s_r}, 3"); k(f"s_add_u32 s{s_t0}, s{s_t0}, s{s_w}")
    k(f"s_cmp_ge_u32 s{s_t0}, 8"); k(f"s_cbranch_scc1 {k.L('end')}")
    k(f"s_and_b32 s{s_it}, s2, 7"); k(f"s_lshl_b32 s{s_it}, s{s_it}, 3"); k(f"s_add_u32 s{s_t0}, s{s_t0}, s{s_it}")
    k(f"s_lshl_b32 s{s_t0}, s{s_t0}, 5")
    k(f"v_and_b32 v{v_t}, 31, v0")
    k(f"v_bfe_u32 v{v_h}, v0, 5, 1")
    k(f"v_add_u32 v{vt[0]}, s{s_t0}, v{v_t}")
    k(f"v_lshlrev_b32 v{vA}, 15, v{v_h}")
    k(f"v_lshl_add_u32 v{vA}, v{vt[0]}, 4, v{vA}")
    k(f"s_mul_i32 s{s_offA}, s{s_rot}, {16 * CH}"); k(f"s_add_u32 s{s_offA}, s{s_offA}, {A_OFF}")
    k("s_waitcnt lgkmcnt(0)")
    srd(k, sB, 40, 41, G_END)
    srd(k, sW, 40, 41, WS_END)
    def aload(i):
        r = [f"buffer_load_dwordx4 {vr(FA + (i % NFA) * 4, 4)}, v{vA}, s[{sB}:{sB+3}], s{s_offA} offen",
             f"s_add_u32 s{s_offA}, s{s_offA}, {2 * CH}"]
        if i % GS == GS - 1:
            r += [f"s_cmp_lg_u32 s{s_offA}, {A_OFF + NG * 16 * CH}", f"s_cselect_b32 s{s_offA}, s{s_offA}, {A_OFF}"]
        return r
    for i in range(LA):
        for l in aload(i): k(l)
    k(f"v_mul_u32_u24 v{vt[1]}, 1280, v{vt[0]}")
    k(f"v_lshl_add_u32 v{vt[1]}, v{v_h}, 4, v{vt[1]}")
    k(f"v_add_u32 v{vt[1]}, s{s_t1}, v{vt[1]}")
    k(f"s_lshl_b32 s{s_t0}, s{s_cb}, 18"); k(f"s_add_u32 s{s_t0}, s{s_t0}, {H_OFF}")
    k(f"v_add_u32 v{vt[2]}, s{s_t0}, v{vA}")
    k(f"v_mov_b32 v{vO}, v{vt[2] if op else vt[1]}")
    if op:
        k(f"s_lshl_b32 s{s_t0}, s{s_cb}, 14"); k(f"s_add_u32 s{s_t0}, s{s_t0}, {HS_OFF}")
        k(f"v_lshl_add_u32 v{vBd[0]}, v{vt[0]}, 3, s{s_t0}")
    k(f"v_bfe_u32 v{vt[0]}, v{v_lane}, 2, 2")
    k(f"v_lshl_add_u32 v{vt[0]}, v{v_h}, 3, v{vt[0]}")
    k(f"v_lshlrev_b32 v{vt[0]}, 7, v{vt[0]}")
    k(f"v_bfe_u32 v{vt[3]}, v{v_lane}, 3, 1")
    k(f"v_lshl_add_u32 v{vt[0]}, v{vt[3]}, 6, v{vt[0]}")
    k(f"v_bfe_u32 v{vt[3]}, v{v_lane}, 4, 1")
    k(f"v_lshl_add_u32 v{vt[0]}, v{vt[3]}, 5, v{vt[0]}")
    k(f"v_and_b32 v{vt[3]}, 3, v{v_lane}")
    k(f"v_lshl_add_u32 v{vBr[0]}, v{vt[3]}, 3, v{vt[0]}")
    k(f"v_xor_b32 v{vBr[1]}, 64, v{vBr[0]}")
    late = []
    for c in range(4): k(f"s_mov_b32 s{48 + c}, {2*c*CH}")
    if op:
        srd(k, sR, 38, 39, S * D * 2)
        for c in range(4):
            late.append([f"buffer_load_dwordx4 {vr(RES + 4*c, 4)}, v{vt[1]}, s[{sR}:{sR+3}], 0 offen offset:{32*c}"])
    else:
        srd(k, sO, 42, 43, S * D * 2); srd(k, sBi, 38, 39, D * 2)
        k(f"v_lshlrev_b32 v{vt[0]}, 3, v{v_h}")
        for c in range(4):
            late.append([f"buffer_load_dwordx4 {vr(RES + 4*c, 4)}, v{vt[2]}, s[{sW}:{sW+3}], s{48 + c} offen"])
        for c in range(8):
            late.append([f"buffer_load_dwordx2 {vr(BI + 2*c, 2)}, v{vt[0]}, s[{sBi}:{sBi+3}], s{s_t1} offen offset:{16*c}"])
    for r in range(32): k(f"v_mov_b32 v{ACC + r}, 0")
    cur_base = 0
    NM = NKS * 2
    def bread(m):
        nonlocal cur_base
        ks, j = divmod(m, 2)
        G, q = divmod(ks, GS)
        off = (G % NSLOT) * GB + q * 2048
        r = []
        if q == 0 and j == 0: r.append("s_barrier")
        base = (off // 65536) * 65536
        if base != cur_base:
            for a in vBr: r.append(f"v_add_u32 v{a}, {(base - cur_base) & 0xffffffff:#x}, v{a}")
            cur_base = base
        for e in range(2):
            r.append(f"ds_read_b64_tr_b16 {vr(FB + (m % NFB) * 4 + 2*e, 2)}, v{vBr[j]} offset:{off - base + e*512}")
        return r
    k.stamp(2)
    if K.prof: k("s_waitcnt lgkmcnt(0)")
    for m in range(DIST):
        for l in bread(m): k(l)
    vq = [("A", i) for i in range(LA)]
    nlate = len(late)
    for m in range(NM):
        ks, j = divmod(m, 2)
        nout = 2 * (min(NM, m + DIST) - m - 1)
        if j == 0:
            pos = vq.index(("A", ks))
            k(f"s_waitcnt vmcnt({len(vq) - 1 - pos}) lgkmcnt({nout})")
        else:
            k(f"s_waitcnt lgkmcnt({nout})")
        k(f"v_mfma_f32_32x32x16_bf16 {vr(ACC + 16*j, 16)}, {vr(FB + (m % NFB) * 4, 4)}, {vr(FA + (ks % NFA) * 4, 4)}, {vr(ACC + 16*j, 16)}")
        if m + DIST < NM:
            for l in bread(m + DIST): k(l)
        if j == 0 and ks + LA < NKS:
            for l in aload(ks + LA): k(l)
            vq.append(("A", ks + LA))
        if j == 1 and late and ks >= NKS - LA - nlate - 2:
            for l in late.pop(0): k(l)
            vq.append(("R", 0))
    assert not late
    k.stamp(3); k.stamp(4); k.stamp(5)
    k("s_waitcnt vmcnt(0)")
    for c in range(4):
        k(f"v_permlane32_swap_b32 v{RES + 4*c}, v{RES + 4*c + 2}")
        k(f"v_permlane32_swap_b32 v{RES + 4*c + 1}, v{RES + 4*c + 3}")
    for r in range(16):
        k(f"v_lshlrev_b32 v{T + 2*r}, 16, v{RES + r}")
        k(f"v_and_b32 v{T + 2*r + 1}, 0xffff0000, v{RES + r}")
    if not op:
        for r in range(16):
            k(f"v_lshlrev_b32 v{T + 32 + 2*r}, 16, v{BI + r}")
            k(f"v_and_b32 v{T + 32 + 2*r + 1}, 0xffff0000, v{BI + r}")
        for r in range(16):
            k(f"v_pk_add_f32 {vr(T + 2*r, 2)}, {vr(T + 2*r, 2)}, {vr(T + 32 + 2*r, 2)}")
    else:
        k(f"v_mov_b32 v{vt[0]}, 0"); k(f"v_mov_b32 v{vt[1]}, 0"); k(f"s_mov_b32 s{s_t1}, 0x3f803f80")
    for c in range(4):
        for r in range(4*c, 4*c + 4):
            k(f"v_pk_add_f32 {vr(T + 2*r, 2)}, {vr(T + 2*r, 2)}, {vr(ACC + 2*r, 2)}")
        for r in range(4*c, 4*c + 4):
            k(f"v_cvt_pk_bf16_f32 v{RES + r}, v{T + 2*r}, v{T + 2*r + 1}")
        k(f"v_permlane32_swap_b32 v{RES + 4*c}, v{RES + 4*c + 2}")
        k(f"v_permlane32_swap_b32 v{RES + 4*c + 1}, v{RES + 4*c + 3}")
        if op:
            k(f"buffer_store_dwordx4 {vr(RES + 4*c, 4)}, v{vO}, s[{sW}:{sW+3}], s{48 + c} offen")
        else:
            k(f"buffer_store_dwordx4 {vr(RES + 4*c, 4)}, v{vO}, s[{sO}:{sO+3}], 0 offen offset:{32*c}")
    if op:
        for r in range(16):
            k(f"v_dot2c_f32_bf16 v{vt[0]}, s{s_t1}, v{RES + r}")
            k(f"v_dot2c_f32_bf16 v{vt[1]}, v{RES + r}, v{RES + r}")
        k(f"v_mov_b32 v{vt[2]}, v{vt[0]}"); k(f"v_mov_b32 v{vt[3]}, v{vt[1]}")
        k(f"v_permlane32_swap_b32 v{vt[0]}, v{vt[2]}"); k(f"v_permlane32_swap_b32 v{vt[1]}, v{vt[3]}")
        k(f"v_add_f32 v{vt[0]}, v{vt[0]}, v{vt[2]}"); k(f"v_add_f32 v{vt[1]}, v{vt[1]}, v{vt[3]}")
        k("s_mov_b32 exec_hi, 0")
        k(f"buffer_store_dwordx2 {vr(vt[0], 2)}, v{vBd[0]}, s[{sW}:{sW+3}], 0 offen")
    k.stamp(6); k.dump(kidx, 9, s_wid)
    k.label(k.L("end"))
    k("s_endpgm")
    return k, NV, NSLOT * GB

HEADER = open("sequential_preLN__mha_block__mixer_channel_mlp__prompt.s.ref").read().split("; Override")[0]

def build(path):
    ks = [(lngemm("qkv"), 256, 512), (attn(), 256, 512), (resgemm("oproj"), 240, 512), (lngemm("mlp1"), 224, 512), (resgemm("mlp2"), 240, 512)]
    t = HEADER
    for (k, nv, lds), grid, block in ks:
        t += f"; @launch kernel={k.name}_kernel grid=({grid},1,1) block=({block},1,1) lds={lds}\n"
    t += '.amdgcn_target "amdgcn-amd-amdhsa--gfx950"\n.text\n'
    for (k, nv, lds), grid, block in ks:
        t += kernel_text(k, nv)
    t += '.section .rodata,"a"\n'
    for (k, nv, lds), grid, block in ks:
        t += kernel_desc(k, nv)
    open(path, "w").write(t)

if __name__ == "__main__":
    if len(sys.argv) > 2 and sys.argv[2] == "prof": K.prof = True
    build(sys.argv[1] if len(sys.argv) > 1 else "sequential_preLN__mha_block__mixer_channel_mlp__prompt.s")
```

```python
import sys, math, struct, os
X = set(os.environ.get("EXP", "").split(","))
from asmlib import K, vr, sr, kernel_text, kernel_desc

S = 2048; D = 640; F = 1728; H = 32; DH = 20
QK_OFF = 0x0
V_OFF = 0x500000
O_OFF = 0x780000
H_OFF = 0xA00000
G_OFF = 0xC80000
HS_OFF = 0x1340000
C1_OFF = 0x1370000
WS_END = 0x1374000
G_END = 0x1340000
CH = S * 16
EPS = 1e-5

def f32(x):
    return "0x%08x" % struct.unpack("<I", struct.pack("<f", x))[0]

def srd(k, d, lo, hi, size):
    k(f"s_mov_b32 s{d}, s{lo}")
    k(f"s_and_b32 s{d+1}, s{hi}, 0xffff")
    k(f"s_mov_b32 s{d+2}, {size:#x}")
    k(f"s_mov_b32 s{d+3}, 0x00020000")

def lngemm(kind):
    k = K(kind)
    qkv = kind == "qkv"
    NB = 1920 if qkv else F
    BROW = NB * 2
    NS = 4; SLOT = 32768; NST = 10
    sA, sB, sW, sBi = 4, 8, 12, 16
    s_mb, s_nb, s_w, s_pj = 20, 21, 22, 23
    s_offA, s_offB, s_m0, s_it, s_delta, s_t0, s_t1, s_slot = 25, 26, 27, 28, 29, 30, 31, 32
    s_ones = 33
    s_wid = 35
    v_lane, v_t, v_h = 1, 2, 3
    vAd = [4, 5, 6, 7]; vBd = [8, 9, 10, 11]
    vBr = [12, 13]
    v_sum, v_sq, v_cs, v_b1 = 14, 15, 16, 17
    vt = [18, 19, 20, 21, 22, 23]
    vAr = [[24, 25, 26, 27], [28, 29, 30, 31]]
    FA = [[32 + 16 * i, 36 + 16 * i] for i in range(4)]
    FB = [[40 + 16 * i, 44 + 16 * i] for i in range(4)]
    ACC = 96
    def acc(mt, nt): return ACC + (mt * 2 + nt) * 16
    EP = 160
    v_pf = 4

    nbh = 8 if qkv else 7
    k.stamp(0); k.stamp(1, True)
    k(f"s_cmp_ge_u32 s2, {256 if qkv else 224}"); k(f"s_cbranch_scc1 {k.L('end')}")
    if qkv:
        k("s_load_dwordx4 s[36:39], s[0:1], 0")
    else:
        k("s_load_dwordx4 s[36:39], s[0:1], 32")
    k("s_load_dwordx2 s[40:41], s[0:1], 80")
    k(f"s_and_b32 s{s_t0}, s2, 7"); k(f"s_lshr_b32 s{s_t1}, s2, 3")
    if qkv:
        k(f"s_lshr_b32 s{s_mb}, s{s_t0}, 1"); k(f"s_lshl_b32 s{s_mb}, s{s_mb}, 2")
        k(f"s_and_b32 s{s_nb}, s{s_t1}, 3"); k(f"s_add_u32 s{s_mb}, s{s_mb}, s{s_nb}")
        k(f"s_and_b32 s{s_nb}, s{s_t0}, 1"); k(f"s_mul_i32 s{s_nb}, s{s_nb}, {nbh}")
        k(f"s_lshr_b32 s{s_t1}, s{s_t1}, 2"); k(f"s_add_u32 s{s_nb}, s{s_nb}, s{s_t1}")
    else:
        k("s_load_dwordx2 s[42:43], s[0:1], 48")
        k(f"s_lshl_b32 s{s_mb}, s{s_t0}, 1"); k(f"s_and_b32 s{s_nb}, s{s_t1}, 1"); k(f"s_add_u32 s{s_mb}, s{s_mb}, s{s_nb}")
        k(f"s_lshr_b32 s{s_nb}, s{s_t1}, 1")
    k(f"v_lshrrev_b32 v{vt[0]}, 6, v0")
    k(f"v_and_b32 v{v_lane}, 63, v0")
    k(f"v_readfirstlane_b32 s{s_wid}, v{vt[0]}")
    if qkv:
        k(f"s_cmp_ge_u32 s{s_nb}, 15"); k(f"s_cbranch_scc1 {k.L('aux')}")
    k(f"s_and_b32 s{s_w}, s{s_wid}, 3")
    k(f"s_cmp_lt_u32 s{s_wid}, 4")
    k(f"s_cbranch_scc1 {k.L('compute')}")
    if qkv:
        k(f"v_lshrrev_b32 v{vt[0]}, 3, v{v_lane}")
        k(f"v_and_b32 v{vt[1]}, 7, v{v_lane}")
        k(f"v_lshrrev_b32 v{vt[2]}, 1, v{vt[0]}")
        k(f"v_xor_b32 v{vt[2]}, v{vt[2]}, v{vt[1]}")
        k(f"v_xor_b32 v{vt[3]}, 4, v{vt[2]}")
        k(f"s_lshl_b32 s{s_t0}, s{s_mb}, 7"); k(f"s_lshl_b32 s{s_t1}, s{s_w}, 5"); k(f"s_add_u32 s{s_t0}, s{s_t0}, s{s_t1}")
        k(f"v_add_u32 v{vt[0]}, s{s_t0}, v{vt[0]}")
        k(f"v_mul_u32_u24 v{vt[0]}, 1280, v{vt[0]}")
        for ii in range(4):
            k(f"v_lshl_add_u32 v{vAd[ii]}, v{vt[2 + (ii & 1)]}, 4, v{vt[0]}")
            if ii: k(f"v_add_u32 v{vAd[ii]}, {ii * (8 * 1280 - 1024)}, v{vAd[ii]}")
        stepA = 128
    else:
        k(f"s_lshl_b32 s{s_t0}, s{s_mb}, 11")
        k(f"s_mul_i32 s{s_t1}, s{s_w}, {2 * CH}")
        k(f"s_add_u32 s{s_t0}, s{s_t0}, s{s_t1}")
        k(f"s_add_u32 s{s_t0}, s{s_t0}, {H_OFF}")
        k(f"v_lshl_add_u32 v{vAd[0]}, v{v_lane}, 4, s{s_t0}")
        k(f"v_mov_b32 v{vAd[1]}, v{vAd[0]}")
        k(f"v_add_u32 v{vAd[2]}, {CH - 2048}, v{vAd[0]}")
        k(f"v_add_u32 v{vAd[3]}, {CH - 2048}, v{vAd[0]}")
        stepA = 8 * CH
    k(f"v_lshrrev_b32 v{vt[0]}, 4, v{v_lane}")
    k(f"v_and_b32 v{vt[1]}, 15, v{v_lane}")
    k(f"v_lshlrev_b32 v{vt[2]}, 2, v{vt[0]}")
    k(f"v_xor_b32 v{vt[1]}, v{vt[1]}, v{vt[2]}")
    k(f"s_lshl_b32 s{s_t0}, s{s_w}, 4")
    k(f"v_add_u32 v{vt[0]}, s{s_t0}, v{vt[0]}")
    k(f"v_mul_u32_u24 v{vt[0]}, {BROW}, v{vt[0]}")
    k(f"v_lshl_add_u32 v{vt[0]}, v{vt[1]}, 4, v{vt[0]}")
    k(f"s_lshl_b32 s{s_t0}, s{s_nb}, 8")
    k(f"v_add_u32 v{vBd[0]}, s{s_t0}, v{vt[0]}")
    for ii in range(1, 4):
        k(f"v_add_u32 v{vBd[ii]}, {ii * (4 * BROW - 1024)}, v{vBd[0]}")
    stepB = 64 * BROW
    if ("rot_" + kind) not in X:
        k(f"s_mov_b32 s{s_slot}, 0")
    elif qkv:
        k(f"s_and_b32 s{s_slot}, s{s_mb}, 3"); k(f"s_mul_i32 s{s_slot}, s{s_slot}, 5"); k(f"s_lshr_b32 s{s_slot}, s{s_slot}, 1")
        k(f"s_and_b32 s{s_t0}, s{s_nb}, 7"); k(f"s_add_u32 s{s_slot}, s{s_slot}, s{s_t0}")
    else:
        k(f"s_and_b32 s{s_slot}, s{s_mb}, 1"); k(f"s_mul_i32 s{s_slot}, s{s_slot}, 5"); k(f"s_add_u32 s{s_slot}, s{s_slot}, s{s_nb}")
    k(f"s_cmp_ge_u32 s{s_slot}, 10"); k(f"s_cselect_b32 s{s_t0}, 10, 0"); k(f"s_sub_u32 s{s_slot}, s{s_slot}, s{s_t0}")
    k(f"s_mul_i32 s{s_offA}, s{s_slot}, {stepA}"); k(f"s_mul_i32 s{s_offB}, s{s_slot}, {stepB}")
    k(f"s_lshl_b32 s{s_m0}, s{s_w}, 12")
    k(f"s_mov_b32 s{s_it}, 0")
    k("s_waitcnt lgkmcnt(0)")
    if qkv:
        srd(k, sA, 36, 37, S * D * 2); srd(k, sB, 38, 39, D * NB * 2)
    else:
        srd(k, sB, 36, 37, D * NB * 2); srd(k, sW, 40, 41, WS_END)
        sA = sW
    def dma_stage():
        r = []
        r.append(f"s_mov_b32 m0, s{s_m0}")
        for ii in range(4):
            r.append(f"buffer_load_dwordx4 v{vAd[ii]}, s[{sA}:{sA+3}], s{s_offA} offen offset:{ii*1024} lds")
        r.append(f"s_add_u32 m0, s{s_m0}, 16384")
        for ii in range(4):
            r.append(f"buffer_load_dwordx4 v{vBd[ii]}, s[{sB}:{sB+3}], s{s_offB} offen offset:{ii*1024} lds")
        r.append(f"s_add_u32 s{s_offA}, s{s_offA}, {stepA}")
        r.append(f"s_add_u32 s{s_offB}, s{s_offB}, {stepB}")
        r.append(f"s_cmp_lg_u32 s{s_offA}, {10 * stepA}")
        r.append(f"s_cselect_b32 s{s_offA}, s{s_offA}, 0")
        r.append(f"s_cselect_b32 s{s_offB}, s{s_offB}, 0")
        r.append(f"s_add_u32 s{s_m0}, s{s_m0}, {SLOT}")
        r.append(f"s_and_b32 s{s_m0}, s{s_m0}, {NS * SLOT - 1}")
        return r
    if not qkv:
        srd(k, sBi, 42, 43, F * D * 2)
        k(f"s_lshr_b32 s{s_t0}, s2, 3"); k(f"s_lshl_b32 s{s_t0}, s{s_t0}, 2"); k(f"s_add_u32 s{s_t0}, s{s_t0}, s{s_w}")
        k(f"s_lshl_b32 s{s_t0}, s{s_t0}, 13")
        k(f"v_lshlrev_b32 v{vt[0]}, 7, v{v_lane}")
    k.stamp(2)
    for l in dma_stage(): k(l)
    k.label(k.L("lloop"))
    for l in dma_stage(): k(l)
    k("s_waitcnt vmcnt(8)")
    k("s_barrier")
    k(f"s_add_u32 s{s_it}, s{s_it}, 1")
    k(f"s_cmp_lt_u32 s{s_it}, {NST - 1}")
    k(f"s_cbranch_scc1 {k.L('lloop')}")
    SB = 3 * SLOT if qkv else NS * SLOT
    if qkv:
        k("s_waitcnt vmcnt(0)")
        k("s_barrier")
    else:
        PS = 32
        k(f"v_and_b32 v{v_t}, 31, v0"); k(f"v_bfe_u32 v{v_h}, v0, 5, 1")
        k(f"s_lshl_b32 s{s_offA}, s{s_mb}, 7"); k(f"s_lshl_b32 s{s_t1}, s{s_w}, 5"); k(f"s_add_u32 s{s_offA}, s{s_offA}, s{s_t1}")
        k(f"v_add_lshl_u32 v{vt[2]}, v{v_t}, s{s_offA}, 3")
        k(f"v_mul_u32_u24 v{vt[1]}, {5 * 16384}, v{v_h}")
        k(f"v_add_u32 v{vt[2]}, v{vt[2]}, v{vt[1]}")
        for i in range(5):
            k(f"s_mov_b32 s{s_offA}, {HS_OFF + i * 16384}")
            k(f"buffer_load_dwordx2 {vr(PS + 2*i, 2)}, v{vt[2]}, s[{sW}:{sW+3}], s{s_offA} offen")
        k(f"s_lshl_b32 s{s_offA}, s{s_nb}, 10"); k(f"s_lshl_b32 s{s_t1}, s{s_w}, 8"); k(f"s_add_u32 s{s_offA}, s{s_offA}, s{s_t1}")
        k(f"s_add_u32 s{s_offA}, s{s_offA}, {C1_OFF}")
        k(f"s_add_u32 m0, s{s_t1}, {SB + 1024}")
        k(f"v_lshlrev_b32 v{vt[3]}, 2, v{v_lane}")
        k(f"buffer_load_dword v{vt[3]}, s[{sW}:{sW+3}], s{s_offA} offen lds")
        k(f"v_add_lshl_u32 v{vt[3]}, v{v_t}, s{s_t1}, 0")
        k(f"v_lshl_add_u32 v{vt[3]}, v{v_t}, 3, s{s_t1}")
        k(f"v_add_u32 v{vt[3]}, {SB}, v{vt[3]}")
        k("s_waitcnt vmcnt(6)")
        k("s_barrier")
        k("s_waitcnt vmcnt(0)")
        if "now2pf" not in X:
            for j in range(int(os.environ.get("W2PF", "3"))):
                k(f"buffer_load_dword v{vt[1]}, v{vt[0]}, s[{sBi}:{sBi+3}], s{s_t0} offen")
                k(f"s_add_u32 s{s_t0}, s{s_t0}, {112 * 8192}")
        p0 = PS; mr = 44
        for i in range(1, 5):
            k(f"v_add_f32 v{p0}, v{p0}, v{p0 + 2*i}"); k(f"v_add_f32 v{p0+1}, v{p0+1}, v{p0 + 2*i + 1}")
        k(f"v_mov_b32 v{p0+2}, v{p0}"); k(f"v_mov_b32 v{p0+3}, v{p0+1}")
        k(f"v_permlane32_swap_b32 v{p0}, v{p0+2}"); k(f"v_permlane32_swap_b32 v{p0+1}, v{p0+3}")
        k(f"v_add_f32 v{p0}, v{p0}, v{p0+2}"); k(f"v_add_f32 v{p0+1}, v{p0+1}, v{p0+3}")
        k(f"v_mul_f32 v{mr}, {f32(-1.0 / D)}, v{p0}")
        k(f"v_mul_f32 v{p0+1}, {f32(1.0 / D)}, v{p0+1}")
        k(f"v_fma_f32 v{p0+1}, -v{mr}, v{mr}, v{p0+1}")
        k(f"v_max_f32 v{p0+1}, 0, v{p0+1}")
        k(f"v_add_f32 v{p0+2}, {f32(EPS)}, v{p0+1}")
        k(f"v_rsq_f32 v{mr+1}, v{p0+2}")
        k(f"v_mul_f32 v{p0+2}, v{mr+1}, v{mr+1}")
        k(f"v_mul_f32 v{p0+2}, v{p0+2}, v{p0+1}")
        k(f"v_add_f32 v{p0+2}, {f32(EPS)}, v{p0+2}")
        k(f"v_rsq_f32 v{p0+2}, v{p0+2}")
        k(f"v_mul_f32 v{mr+1}, v{mr+1}, v{p0+2}")
        k(f"ds_write_b64 v{vt[3]}, {vr(mr, 2)}")
        k("s_waitcnt lgkmcnt(0)")
        k("s_barrier")
    k.stamp(3); k.stamp(4); k.stamp(5); k.stamp(6); k.dump(0 if qkv else 3, 9, s_wid)
    k("s_endpgm")
    k.label(k.L("compute"))
    k(f"v_and_b32 v{v_t}, 31, v0")
    k(f"v_bfe_u32 v{v_h}, v0, 5, 1")
    k(f"s_lshr_b32 s{s_t0}, s{s_w}, 1"); k(f"s_and_b32 s{s_pj}, s{s_w}, 1")
    k(f"s_lshl_b32 s{s_pj}, s{s_pj}, 1"); k(f"s_add_u32 s{s_pj}, s{s_pj}, s{s_t0}")
    k(f"s_mov_b32 s{s_ones}, 0x3f803f80")
    k(f"s_mov_b32 s34, {SLOT}")
    k("s_waitcnt lgkmcnt(0)")
    srd(k, sW, 40, 41, WS_END)
    if "pf" in X:
        k(f"s_lshr_b32 s{s_t1}, s2, 3")
        NI = 32 if qkv else 28
        srd(k, sB, 38 if qkv else 36, 39 if qkv else 37, D * NB * 2)
        k(f"s_lshl_b32 s{s_t0}, s{s_t1}, 2"); k(f"s_add_u32 s{s_t0}, s{s_t0}, s{s_w}"); k(f"s_lshl_b32 s{s_t0}, s{s_t0}, 2")
        k(f"v_lshrrev_b32 v{vt[0]}, 4, v{v_lane}")
        k(f"v_add_u32 v{vt[0]}, s{s_t0}, v{vt[0]}")
        k(f"v_mul_u32_u24 v{vt[0]}, {BROW}, v{vt[0]}")
        k(f"v_and_b32 v{vt[1]}, 15, v{v_lane}")
        k(f"v_lshl_add_u32 v{vt[0]}, v{vt[1]}, 7, v{vt[0]}")
        k(f"s_and_b32 s{s_t0}, s2, 1"); k(f"s_mul_i32 s{s_t0}, s{s_t0}, {nbh * 256}")
        for j in range((640 + NI * 16 - 1) // (NI * 16)):
            k(f"buffer_load_dword v{v_pf}, v{vt[0]}, s[{sB}:{sB+3}], s{s_t0} offen")
            k(f"s_add_u32 s{s_t0}, s{s_t0}, {NI * 16 * BROW}")
        if qkv:
            srd(k, sA, 36, 37, S * D * 2)
            k(f"s_lshl_b32 s{s_t0}, s{s_t1}, 2"); k(f"s_add_u32 s{s_t0}, s{s_t0}, s{s_w}")
            k(f"s_cmp_ge_u32 s{s_t0}, 80"); k(f"s_cbranch_scc1 {k.L('nopf')}")
            k(f"s_lshl_b32 s{s_t0}, s{s_t0}, 13")
            k(f"s_bfe_u32 s{s_t1}, s2, 0x20001"); k(f"s_mul_i32 s{s_t1}, s{s_t1}, {512 * 1280}"); k(f"s_add_u32 s{s_t0}, s{s_t0}, s{s_t1}")
            k(f"v_lshlrev_b32 v{vt[0]}, 7, v{v_lane}")
            k(f"buffer_load_dword v{v_pf}, v{vt[0]}, s[{sA}:{sA+3}], s{s_t0} offen")
        else:
            k(f"s_lshl_b32 s{s_t0}, s{s_t1}, 2"); k(f"s_add_u32 s{s_t0}, s{s_t0}, s{s_w}")
            k(f"s_cmp_ge_u32 s{s_t0}, 80"); k(f"s_cbranch_scc1 {k.L('nopf')}")
            k(f"s_lshl_b32 s{s_t0}, s{s_t0}, 15")
            k(f"s_bfe_u32 s{s_t1}, s2, 0x20001"); k(f"s_lshl_b32 s{s_t1}, s{s_t1}, 13"); k(f"s_add_u32 s{s_t0}, s{s_t0}, s{s_t1}")
            k(f"s_add_u32 s{s_t0}, s{s_t0}, {H_OFF}")
            k(f"v_lshlrev_b32 v{vt[0]}, 7, v{v_lane}")
            k(f"buffer_load_dword v{v_pf}, v{vt[0]}, s[{sW}:{sW+3}], s{s_t0} offen")
        k.label(k.L("nopf"))
    if qkv:
        k(f"v_bfe_u32 v{vt[0]}, v{v_t}, 1, 3")
        k(f"v_xor_b32 v{vt[0]}, v{vt[0]}, v{v_h}")
        k(f"s_lshl_b32 s{s_t0}, s{s_w}, 12")
        k(f"v_lshl_add_u32 v{vt[1]}, v{v_t}, 7, s{s_t0}")
        for ks in range(4):
            k(f"v_xor_b32 v{vt[2]}, {2*ks}, v{vt[0]}")
            k(f"v_lshl_add_u32 v{vAr[0][ks]}, v{vt[2]}, 4, v{vt[1]}")
            k(f"v_xor_b32 v{vAr[1][ks]}, 4096, v{vAr[0][ks]}")
        def a_read(dst, ks, mt): return f"ds_read_b128 {vr(dst,4)}, v{vAr[mt][ks]}"
        def a_upd(ks): return [vAr[0][ks], vAr[1][ks]]
    else:
        k(f"s_lshl_b32 s{s_t0}, s{s_w}, 9")
        k(f"v_lshl_add_u32 v{vt[0]}, v{v_t}, 4, s{s_t0}")
        k(f"v_lshl_add_u32 v{vAr[0][0]}, v{v_h}, 11, v{vt[0]}")
        k(f"v_xor_b32 v{vAr[1][0]}, 512, v{vAr[0][0]}")
        def a_read(dst, ks, mt): return f"ds_read_b128 {vr(dst,4)}, v{vAr[mt][0]} offset:{ks*4096}"
        def a_upd(ks): return [vAr[0][0], vAr[1][0]] if ks == 0 else []
    k(f"v_bfe_u32 v{vt[0]}, v{v_lane}, 2, 2")
    k(f"v_lshl_add_u32 v{vt[1]}, v{v_h}, 3, v{vt[0]}")
    k(f"v_lshlrev_b32 v{vt[1]}, 8, v{vt[1]}")
    k(f"v_bfe_u32 v{vt[2]}, v{v_lane}, 4, 1")
    k(f"v_lshl_add_u32 v{vt[1]}, v{vt[2]}, 5, v{vt[1]}")
    k(f"v_and_b32 v{vt[2]}, 3, v{v_lane}")
    k(f"v_lshl_add_u32 v{vt[1]}, v{vt[2]}, 3, v{vt[1]}")
    k(f"v_add_u32 v{vt[1]}, 16384, v{vt[1]}")
    k(f"v_xor_b32 v{vt[2]}, s{s_pj}, v{vt[0]}")
    k(f"v_lshl_add_u32 v{vBr[0]}, v{vt[2]}, 6, v{vt[1]}")
    k(f"v_xor_b32 v{vBr[1]}, 64, v{vBr[0]}")
    def b_read(dst, ks, nt, e): return f"ds_read_b64_tr_b16 {vr(dst + 2*e, 2)}, v{vBr[nt]} offset:{ks*4096 + e*1024}"
    for r in range(64): k(f"v_mov_b32 v{ACC + r}, 0")
    k(f"s_mov_b32 s{s_it}, 0"); k(f"s_mov_b32 s{s_slot}, 0")
    if qkv:
        k(f"v_mov_b32 v{v_sum}, 0"); k(f"v_mov_b32 v{v_sq}, 0"); k(f"v_mov_b32 v{v_cs}, 0")

    def reads(ks):
        return [a_read(FA[ks][0], ks, 0), b_read(FB[ks][0], ks, 0, 0), b_read(FB[ks][0], ks, 0, 1),
                b_read(FB[ks][1], ks, 1, 0), b_read(FB[ks][1], ks, 1, 1), a_read(FA[ks][1], ks, 1)]
    k.stamp(2)
    k("s_waitcnt lgkmcnt(0)")
    k("s_barrier")
    k.stamp(3)
    if K.prof: k("s_waitcnt lgkmcnt(0)")
    for l in reads(0) + reads(1): k(l)

    def mainloop(tag, vorient):
        k.label(k.L("loop" + tag))
        for ks in range(4):
            mf = []
            for mt in range(2):
                for nt in range(2):
                    a, b = FA[ks][mt], FB[ks][nt]
                    s0, s1 = (a, b) if vorient else (b, a)
                    mf.append(f"v_mfma_f32_32x32x16_bf16 {vr(acc(mt,nt),16)}, {vr(s0,4)}, {vr(s1,4)}, {vr(acc(mt,nt),16)}")
            dots = []
            for r in range(4):
                dots.append(f"v_dot2c_f32_bf16 v{v_sum}, s{s_ones}, v{FA[ks][0] + r}")
                dots.append(f"v_dot2c_f32_bf16 v{v_sq}, v{FA[ks][0] + r}, v{FA[ks][0] + r}")
                dots.append(f"v_dot2c_f32_bf16 v{v_cs}, s{s_ones}, v{FB[ks][0] + r}")
            if "nodots" in X or not qkv: dots = [";"] * 12
            pre = []
            if ks == 2:
                k("s_barrier")
                pre += [f"s_add_u32 s{s_slot}, s{s_slot}, 1", f"s_and_b32 s{s_slot}, s{s_slot}, {NS - 1}",
                        f"s_cselect_b32 s{s_delta}, s34, {(-(NS - 1) * SLOT) & 0xffffffff:#x}"]
                pre += [f"v_add_u32 v{a}, s{s_delta}, v{a}" for a in vBr]
            nk = (ks + 2) % 4
            if ks >= 2:
                pre += [f"v_add_u32 v{a}, s{s_delta}, v{a}" for a in a_upd(nk)]
            post = []
            if ks == 3:
                post = [f"v_add_u32 v{a}, s{s_delta}, v{a}" for a in a_upd(2) + a_upd(3)]
            rd = reads(nk)
            k("s_waitcnt lgkmcnt(6)")
            seq = [mf[0]] + pre + rd[0:2] + dots[0:3] + [mf[1]] + rd[2:4] + dots[3:6] + [mf[2]] + rd[4:6] + dots[6:9] + [mf[3]] + dots[9:12] + post
            for l in seq: k(l)
        k(f"s_add_u32 s{s_it}, s{s_it}, 1")
        k(f"s_cmp_lt_u32 s{s_it}, {NST}")
        k(f"s_cbranch_scc1 {k.L('loop' + tag)}")
        k.stamp(4)
        k("s_waitcnt lgkmcnt(0) vmcnt(0)")

    def stats(vorient):
        trip = ((v_sum, vt[0]), (v_sq, vt[1]), (v_cs, vt[2]))
        for r, t in trip: k(f"v_mov_b32 v{t}, v{r}")
        for r, t in trip: k(f"v_permlane32_swap_b32 v{r}, v{t}")
        for r, t in trip: k(f"v_add_f32 v{r}, v{r}, v{t}")
        k(f"v_mul_f32 v{vt[0]}, {f32(-1.0 / D)}, v{v_sum}")
        k(f"v_mul_f32 v{vt[2]}, {f32(1.0 / D)}, v{v_sq}")
        k(f"v_fma_f32 v{vt[2]}, -v{vt[0]}, v{vt[0]}, v{vt[2]}")
        k(f"v_max_f32 v{vt[2]}, 0, v{vt[2]}")
        k(f"v_add_f32 v{vt[3]}, {f32(EPS)}, v{vt[2]}")
        k(f"v_rsq_f32 v{vt[1]}, v{vt[3]}")
        if qkv:
            if not vorient:
                k(f"s_cmp_lt_u32 s{s_nb}, 5")
                k(f"s_cselect_b32 s{s_t0}, {f32(math.log2(math.e) / math.sqrt(DH))}, 1.0")
                k(f"v_mul_f32 v{vt[1]}, s{s_t0}, v{vt[1]}")
        else:
            k(f"v_mul_f32 v{vt[3]}, v{vt[1]}, v{vt[1]}")
            k(f"v_mul_f32 v{vt[3]}, v{vt[3]}, v{vt[2]}")
            k(f"v_add_f32 v{vt[3]}, {f32(EPS)}, v{vt[3]}")
            k(f"v_rsq_f32 v{vt[3]}, v{vt[3]}")
            k(f"v_mul_f32 v{vt[1]}, v{vt[1]}, v{vt[3]}")
        k(f"s_lshl_b32 s{s_t0}, s{s_w}, 5")
        k(f"v_add_u32 v{vt[4]}, s{s_t0}, v{v_t}")
        k(f"s_lshl_b32 s{s_t0}, s{s_pj}, 5")
        k(f"v_add_lshl_u32 v{vt[5]}, v{v_t}, s{s_t0}, 2")
        k(f"v_add_u32 v{vt[5]}, {SB}, v{vt[5]}")
        if vorient:
            k(f"v_lshlrev_b32 v{vt[4]}, 2, v{vt[4]}")
            k(f"v_add_u32 v{vt[4]}, {SB}, v{vt[4]}")
            k(f"ds_write_b32 v{vt[4]}, v{vt[0]}")
            k(f"ds_write_b32 v{vt[4]}, v{vt[1]} offset:512")
        else:
            k(f"v_lshlrev_b32 v{vt[4]}, 3, v{vt[4]}")
            k(f"v_add_u32 v{vt[4]}, {SB}, v{vt[4]}")
            k(f"ds_write_b64 v{vt[4]}, {vr(vt[0], 2)}")
        k(f"ds_write_b32 v{vt[5]}, v{v_cs} offset:1024")
        if not qkv:
            k(f"v_lshlrev_b32 v{v_b1}, 16, v{v_b1}")
            k(f"ds_write_b32 v{vt[5]}, v{v_b1} offset:1536")
        k("s_waitcnt lgkmcnt(0)")
        k("s_barrier")

    def epi_nm():
        MR = [FA[0][0], FA[0][0] + 2]
        CS = EP; B1 = EP + 32
        if not qkv:
            k(f"s_lshl_b32 s{s_t0}, s{s_w}, 8"); k(f"s_add_u32 s{s_t0}, s{s_t0}, {SB}")
            k(f"v_lshl_add_u32 v{vt[4]}, v{v_t}, 3, s{s_t0}")
        k(f"ds_read_b64 {vr(MR[0],2)}, v{vt[4]}")
        k(f"v_xor_b32 v{vt[0]}, 256, v{vt[4]}")
        k(f"ds_read_b64 {vr(MR[1],2)}, v{vt[0]}")
        k(f"s_lshl_b32 s{s_t0}, s{s_pj}, 7")
        k(f"s_add_u32 s{s_t0}, s{s_t0}, {SB}")
        k(f"v_lshl_add_u32 v{vt[0]}, v{v_h}, 4, s{s_t0}")
        k(f"v_xor_b32 v{vt[1]}, 128, v{vt[0]}")
        for nt in range(2):
            for rq in range(4):
                k(f"ds_read_b128 {vr(CS + nt*16 + rq*4, 4)}, v{vt[nt]} offset:{1024 + rq*32}")
            if not qkv:
                for rq in range(4):
                    k(f"ds_read_b128 {vr(B1 + nt*16 + rq*4, 4)}, v{vt[nt]} offset:{1536 + rq*32}")
        OFF = QK_OFF if qkv else G_OFF
        k(f"s_lshl_b32 s{s_t0}, s{s_nb}, 4")
        k(f"v_add_lshl_u32 v{vt[2]}, v{v_h}, s{s_t0}, 15")
        k(f"s_lshl_b32 s{s_t0}, s{s_mb}, 7")
        k(f"v_add_u32 v{vt[3]}, s{s_t0}, v{v_t}")
        k(f"v_lshl_add_u32 v{vt[2]}, v{vt[3]}, 4, v{vt[2]}")
        if OFF: k(f"v_add_u32 v{vt[2]}, {OFF}, v{vt[2]}")
        so = 46
        k(f"s_lshl_b32 s{s_t0}, s{s_pj}, 17"); k(f"s_lshl_b32 s{s_t1}, s{s_w}, 9")
        k(f"s_add_u32 s{so}, s{s_t0}, s{s_t1}")
        k(f"s_xor_b32 s{so+1}, s{so}, 512")
        k(f"s_xor_b32 s{so+2}, s{so}, {1 << 17}")
        k(f"s_xor_b32 s{so+3}, s{so+1}, {1 << 17}")
        k(f"v_add_u32 v{vt[3]}, {2 * CH}, v{vt[2]}")
        if not qkv:
            C0 = -2.0 * math.log2(math.e) * math.sqrt(2.0 / math.pi)
            k(f"s_mov_b32 s44, {f32(C0 * 0.044715)}"); k(f"s_mov_b32 s45, {f32(C0 * 0.044715)}")
            k(f"v_mov_b32 v{vt[4]}, {f32(C0)}"); k(f"v_mov_b32 v{vt[5]}, {f32(C0)}")
        k("s_waitcnt lgkmcnt(0)")
        T = EP + 64
        n_st = 0
        for nt in range(2):
            for mt in range(2):
                a = acc(mt, nt); mr = MR[mt]
                for p in range(8):
                    x = vr(a + 2*p, 2)
                    k(f"v_pk_fma_f32 {x}, {vr(CS + nt*16 + 2*p, 2)}, {vr(mr,2)}, {x} op_sel_hi:[1,0,1]")
                for p in range(8):
                    x = vr(a + 2*p, 2)
                    if qkv:
                        k(f"v_pk_mul_f32 {x}, {x}, {vr(mr,2)} op_sel:[0,1] op_sel_hi:[1,1]")
                    else:
                        k(f"v_pk_fma_f32 {x}, {x}, {vr(mr,2)}, {vr(B1 + nt*16 + 2*p, 2)} op_sel:[0,1,0] op_sel_hi:[1,1,1]")
                if not qkv:
                    for p in range(8):
                        x = vr(a + 2*p, 2); t = vr(T + 2*p, 2)
                        k(f"v_pk_mul_f32 {t}, {x}, {x}")
                    for p in range(8):
                        t = vr(T + 2*p, 2)
                        k(f"v_pk_fma_f32 {t}, {t}, s[44:45], {vr(vt[4],2)}")
                    for p in range(8):
                        x = vr(a + 2*p, 2); t = vr(T + 2*p, 2)
                        k(f"v_pk_mul_f32 {t}, {t}, {x}")
                    for r in range(16): k(f"v_exp_f32 v{T + r}, v{T + r}")
                    for p in range(8):
                        t = vr(T + 2*p, 2)
                        k(f"v_pk_add_f32 {t}, {t}, 1.0 op_sel_hi:[1,0]")
                    for r in range(16): k(f"v_rcp_f32 v{T + r}, v{T + r}")
                    for p in range(8):
                        x = vr(a + 2*p, 2); t = vr(T + 2*p, 2)
                        k(f"v_pk_mul_f32 {x}, {x}, {t}")
                Pk = T + 16 + (n_st % 2) * 8
                for p in range(8):
                    k(f"v_cvt_pk_bf16_f32 v{Pk + p}, v{a + 2*p}, v{a + 2*p + 1}")
                for pq in range(2):
                    b = Pk + 4*pq
                    k(f"v_permlane32_swap_b32 v{b}, v{b+2}")
                    k(f"v_permlane32_swap_b32 v{b+1}, v{b+3}")
                for pq in range(2):
                    b = Pk + 4*pq
                    k(f"buffer_store_dwordx4 {vr(b,4)}, v{vt[2 + pq]}, s[{sW}:{sW+3}], s{so + nt*2 + mt} offen")
                n_st += 1

    def epi_v():
        NM = EP; RS = EP + 32; CSV = [FA[0][0], FA[0][0] + 2]
        k(f"s_lshl_b32 s{s_t0}, s{s_w}, 7")
        k(f"s_add_u32 s{s_t0}, s{s_t0}, {SB}")
        k(f"v_lshl_add_u32 v{vt[0]}, v{v_h}, 4, s{s_t0}")
        k(f"v_xor_b32 v{vt[1]}, 128, v{vt[0]}")
        for mt in range(2):
            for rq in range(4):
                k(f"ds_read_b128 {vr(NM + mt*16 + rq*4, 4)}, v{vt[mt]} offset:{rq*32}")
                k(f"ds_read_b128 {vr(RS + mt*16 + rq*4, 4)}, v{vt[mt]} offset:{512 + rq*32}")
        k(f"ds_read_b32 v{CSV[0]}, v{vt[5]} offset:1024")
        k(f"v_xor_b32 v{vt[4]}, 128, v{vt[5]}")
        k(f"ds_read_b32 v{CSV[1]}, v{vt[4]} offset:1024")
        k(f"s_mul_i32 s{s_t0}, s{s_mb}, {4 * 1280}")
        k(f"s_sub_u32 s{s_t1}, s{s_nb}, 10"); k(f"s_lshl_b32 s{s_t1}, s{s_t1}, 7"); k(f"s_add_u32 s{s_t0}, s{s_t0}, s{s_t1}")
        k(f"v_add_lshl_u32 v{vt[2]}, v{v_t}, s{s_t0}, 5")
        k(f"v_lshl_add_u32 v{vt[2]}, v{v_h}, 4, v{vt[2]}")
        k(f"v_add_u32 v{vt[2]}, {V_OFF}, v{vt[2]}")
        k(f"v_add_u32 v{vt[3]}, {640 * 32}, v{vt[2]}")
        so = 46
        k(f"s_mul_i32 s{so}, s{s_w}, {1280 * 32}")
        k(f"s_xor_b32 s{s_t0}, s{s_w}, 1"); k(f"s_mul_i32 s{so+2}, s{s_t0}, {1280 * 32}")
        k(f"s_lshl_b32 s{s_t0}, s{s_pj}, 10"); k(f"s_xor_b32 s{s_t1}, s{s_t0}, 1024")
        k(f"s_add_u32 s{so+1}, s{so}, s{s_t1}"); k(f"s_add_u32 s{so}, s{so}, s{s_t0}")
        k(f"s_add_u32 s{so+3}, s{so+2}, s{s_t1}"); k(f"s_add_u32 s{so+2}, s{so+2}, s{s_t0}")
        k("s_waitcnt lgkmcnt(0)")
        T = EP + 64; n_st = 0
        for mt in range(2):
            for nt in range(2):
                a = acc(mt, nt)
                for p in range(8):
                    x = vr(a + 2*p, 2)
                    k(f"v_pk_fma_f32 {x}, {vr(NM + mt*16 + 2*p, 2)}, {vr(CSV[nt],2)}, {x} op_sel_hi:[1,0,1]")
                for p in range(8):
                    x = vr(a + 2*p, 2)
                    k(f"v_pk_mul_f32 {x}, {x}, {vr(RS + mt*16 + 2*p, 2)}")
                Pk = T + (n_st % 2) * 8
                for p in range(8):
                    k(f"v_cvt_pk_bf16_f32 v{Pk + p}, v{a + 2*p}, v{a + 2*p + 1}")
                for jj in range(2):
                    k(f"buffer_store_dwordx4 {vr(Pk + 4*jj, 4)}, v{vt[2 + jj]}, s[{sW}:{sW+3}], s{so + mt*2 + nt} offen")
                n_st += 1

    if qkv:
        k(f"s_cmp_ge_u32 s{s_nb}, 10")
        k(f"s_cbranch_scc1 {k.L('loopv')}")
        mainloop("q", False); stats(False); k.stamp(5); epi_nm(); k.stamp(6); k.dump(0, 9, s_wid)
        k("s_endpgm")
        mainloop("v", True); stats(True); k.stamp(5); epi_v(); k.stamp(6); k.dump(0, 9, s_wid)
        k("s_endpgm")
        k.label(k.L("aux"))
        k(f"s_cmp_ge_u32 s{s_mb}, 14"); k(f"s_cbranch_scc1 {k.L('end')}")
        k("s_load_dwordx4 s[44:47], s[0:1], 32")
        k(f"v_lshrrev_b32 v{vt[0]}, 4, v{v_lane}")
        k(f"v_and_b32 v{vt[1]}, 15, v{v_lane}")
        k(f"v_mul_u32_u24 v{vt[2]}, {F * 2}, v{vt[0]}")
        k(f"v_lshl_add_u32 v{vt[2]}, v{vt[1]}, 4, v{vt[2]}")
        k(f"s_mul_i32 s{s_t0}, s{s_wid}, {80 * F * 2}"); k(f"s_lshl_b32 s{s_t1}, s{s_mb}, 8"); k(f"s_add_u32 s{s_t0}, s{s_t0}, s{s_t1}")
        k(f"v_lshlrev_b32 v{vt[3]}, 1, v0")
        k("s_waitcnt lgkmcnt(0)")
        srd(k, sB, 44, 45, D * F * 2); srd(k, sBi, 46, 47, F * 2); srd(k, sW, 40, 41, WS_END)
        k(f"buffer_load_ushort v{v_b1}, v{vt[3]}, s[{sBi}:{sBi+3}], s{s_t1} offen")
        for i in range(20):
            k(f"buffer_load_dwordx4 {vr(40 + 4*i, 4)}, v{vt[2]}, s[{sB}:{sB+3}], s{s_t0} offen")
            k(f"s_add_u32 s{s_t0}, s{s_t0}, {4 * F * 2}")
        for r in range(8): k(f"v_mov_b32 v{24 + r}, 0")
        for i in range(20):
            k(f"s_waitcnt vmcnt({19 - i})")
            for r in range(4):
                k(f"v_lshlrev_b32 v{32 + 2*r}, 16, v{40 + 4*i + r}")
                k(f"v_and_b32 v{33 + 2*r}, 0xffff0000, v{40 + 4*i + r}")
            for r in range(4):
                k(f"v_pk_add_f32 {vr(24 + 2*r, 2)}, {vr(24 + 2*r, 2)}, {vr(32 + 2*r, 2)}")
        k(f"v_lshlrev_b32 v{vt[0]}, 5, v0")
        k(f"ds_write_b128 v{vt[0]}, v[24:27]")
        k(f"ds_write_b128 v{vt[0]}, v[28:31] offset:16")
        k("s_waitcnt lgkmcnt(0)")
        k("s_barrier")
        k(f"s_cmp_ge_u32 s{s_wid}, 2"); k(f"s_cbranch_scc1 {k.L('end')}")
        k(f"v_lshlrev_b32 v{vt[0]}, 2, v0")
        for i in range(32):
            k(f"ds_read_b32 v{40 + i}, v{vt[0]} offset:{i * 512}")
            if i % 8 == 7: k("s_waitcnt lgkmcnt(0)")
        for i in range(1, 32): k(f"v_add_f32 v40, v40, v{40 + i}")
        k(f"v_lshlrev_b32 v{v_b1}, 16, v{v_b1}")
        k(f"s_lshl_b32 s{s_t0}, s{s_mb}, 10"); k(f"s_add_u32 s{s_t0}, s{s_t0}, {C1_OFF}"); k(f"s_add_u32 s{s_t1}, s{s_t0}, 512")
        k(f"buffer_store_dword v40, v{vt[0]}, s[{sW}:{sW+3}], s{s_t0} offen")
        k(f"buffer_store_dword v{v_b1}, v{vt[0]}, s[{sW}:{sW+3}], s{s_t1} offen")
    else:
        mainloop("q", False)
        k(f"s_cmp_eq_u32 s{s_nb}, 13"); k(f"s_cselect_b32 s{s_t0}, s{s_pj}, 0")
        k(f"s_cmp_ge_u32 s{s_t0}, 2"); k(f"s_cbranch_scc1 {k.L('end')}")
        k.stamp(5); epi_nm(); k.stamp(6); k.dump(3, 9, s_wid)
    k.label(k.L("end"))
    k("s_endpgm")
    return k, EP + 64 + 32, NS * SLOT + (0 if qkv else 2048)

def attn():
    k = K("attn")
    sW = 4; sP1 = 8; sP2 = 12
    s_hd, s_qb, s_w, s_qs, s_kh, s_t0, s_t1, s_it = 20, 21, 22, 23, 24, 25, 26, 27
    s_ko, s_vo, s_odd = 28, 29, 30
    s_vm = 32
    s_lo = 34
    s_c = 36
    v_lane, v_t, v_h = 1, 2, 3
    vK1, vK2, vV0, vV1 = 4, 5, 6, 7
    vt = [8, 9, 10, 11, 12, 13, 14, 15]
    vm = [16, 17]
    v_pfa, v_pfb, v_pf = 18, 19, 200
    Q1 = [20, 24]; Q2 = [28, 30]
    NBUF = 4
    K1 = [32, 36, 40, 44]; K2 = [48, 50, 52, 54]
    VB = [56, 64, 72, 80]
    C = [88, 104]; Sx = [120, 136]; P = [152, 160]; O = [168, 184]
    NV = 202
    k.stamp(0); k.stamp(1, True)
    k("s_cmp_ge_u32 s2, 256"); k(f"s_cbranch_scc1 {k.L('end')}")
    k("s_load_dwordx2 s[40:41], s[0:1], 80")
    k("s_load_dwordx2 s[44:45], s[0:1], 16")
    k("s_load_dwordx2 s[46:47], s[0:1], 32")
    k(f"v_lshrrev_b32 v{vt[0]}, 6, v0")
    k(f"v_and_b32 v{v_t}, 31, v0")
    k(f"v_readfirstlane_b32 s{s_w}, v{vt[0]}")
    k(f"v_bfe_u32 v{v_h}, v0, 5, 1")
    k(f"s_and_b32 s{s_hd}, s2, 7"); k(f"s_lshl_b32 s{s_hd}, s{s_hd}, 2")
    k(f"s_bfe_u32 s{s_t0}, s2, 0x20003"); k(f"s_add_u32 s{s_hd}, s{s_hd}, s{s_t0}")
    k(f"s_lshr_b32 s{s_qb}, s2, 5")
    k(f"s_and_b32 s{s_qs}, s{s_w}, 3"); k(f"s_lshr_b32 s{s_kh}, s{s_w}, 2")
    if "noprio" not in X:
        k(f"s_cmp_eq_u32 s{s_kh}, 0"); k(f"s_cbranch_scc1 {k.L('np')}")
        k("s_setprio 1")
        k.label(k.L("np"))
    k(f"s_and_b32 s{s_odd}, s{s_hd}, 1")
    k(f"s_mov_b32 s{s_lo}, -1"); k(f"s_mov_b32 s{s_lo+1}, 0")
    k(f"s_lshr_b32 s{s_t0}, s{s_hd}, 1"); k(f"s_mul_i32 s{s_t0}, s{s_t0}, 5")
    k(f"s_mul_i32 s{s_t1}, s{s_odd}, 3"); k(f"s_add_u32 s{s_t1}, s{s_t1}, s{s_t0}")
    k(f"v_add_lshl_u32 v{vK1}, v{v_h}, s{s_t1}, 15")
    k(f"v_lshl_add_u32 v{vK1}, v{v_t}, 4, v{vK1}")
    k(f"s_add_u32 s{s_t0}, s{s_t0}, 2"); k(f"s_lshl_b32 s{s_t0}, s{s_t0}, 15")
    k(f"s_lshl_b32 s{s_t1}, s{s_odd}, 3"); k(f"s_add_u32 s{s_t0}, s{s_t0}, s{s_t1}")
    k(f"v_lshl_add_u32 v{vK2}, v{v_t}, 4, s{s_t0}")
    k(f"s_lshl_b32 s{s_ko}, s{s_kh}, 14"); k(f"s_add_u32 s{s_ko}, s{s_ko}, {QK_OFF + 80 * CH}")
    k(f"s_lshl_b32 s{s_t0}, s{s_qb}, 12"); k(f"s_lshl_b32 s{s_t1}, s{s_qs}, 10"); k(f"s_add_u32 s{s_t0}, s{s_t0}, s{s_t1}")
    for qt in range(2):
        k(f"v_mov_b32 v{Q2[qt]}, 0"); k(f"v_mov_b32 v{Q2[qt]+1}, 0")
    k(f"s_mov_b32 s42, s{s_ko}")
    k("s_waitcnt lgkmcnt(0)")
    srd(k, sW, 40, 41, WS_END)
    W = f"s[{sW}:{sW+3}]"
    def kload(b):
        return [f"buffer_load_dwordx4 {vr(K1[b],4)}, v{vK1}, {W}, s{s_ko} offen",
                f"buffer_load_dwordx2 {vr(K2[b],2)}, v{vK2}, {W}, s{s_ko} offen",
                f"s_add_u32 s{s_ko}, s{s_ko}, 512"]
    def vload(b):
        return [f"s_mov_b64 exec, s[{s_vm}:{s_vm+1}]",
                f"buffer_load_dwordx4 {vr(VB[b],4)}, v{vV0}, {W}, s{s_vo} offen",
                f"buffer_load_dwordx4 {vr(VB[b]+4,4)}, v{vV1}, {W}, s{s_vo} offen",
                f"s_mov_b64 exec, -1",
                f"s_add_u32 s{s_vo}, s{s_vo}, {1280 * 32}"]
    for l in kload(0): k(l)
    for qt in range(2):
        k(f"buffer_load_dwordx4 {vr(Q1[qt],4)}, v{vK1}, {W}, s{s_t0} offen offset:{qt*512}")
    k(f"s_mov_b64 exec, s[{s_lo}:{s_lo+1}]")
    for qt in range(2):
        k(f"buffer_load_dwordx2 {vr(Q2[qt],2)}, v{vK2}, {W}, s{s_t0} offen offset:{qt*512}")
    k("s_mov_b64 exec, -1")
    for l in kload(1): k(l)
    k(f"v_and_b32 v{v_lane}, 63, v0")
    k(f"s_mov_b32 s{s_vm}, 0xfffff"); k(f"s_mov_b32 s{s_vm+1}, 0xfffff")
    k(f"v_add_u32 v{vt[0]}, 4, v{v_t}")
    k(f"v_subrev_u32 v{vt[1]}, 16, v{v_t}")
    k(f"v_cmp_gt_u32 vcc, 16, v{v_t}")
    k(f"v_cndmask_b32 v{vt[0]}, v{vt[1]}, v{vt[0]}, vcc")
    k(f"s_cmp_eq_u32 s{s_odd}, 1")
    k(f"s_cselect_b64 vcc, -1, 0")
    k(f"v_cndmask_b32 v{vt[0]}, v{v_t}, v{vt[0]}, vcc")
    k(f"s_mul_i32 s{s_t0}, s{s_hd}, 20")
    k(f"v_add_lshl_u32 v{vV0}, v{vt[0]}, s{s_t0}, 5")
    k(f"v_lshl_add_u32 v{vV0}, v{v_h}, 4, v{vV0}")
    k(f"v_add_u32 v{vV1}, {640 * 32}, v{vV0}")
    k(f"s_mul_i32 s{s_vo}, s{s_kh}, {32 * 1280 * 32}"); k(f"s_add_u32 s{s_vo}, s{s_vo}, {V_OFF}")
    k(f"s_mov_b32 s43, s{s_vo}")
    k(f"v_cmp_eq_u32 vcc, 20, v{v_t}")
    k(f"v_mov_b32 v{vt[1]}, 0x3f803f80")
    k(f"v_cndmask_b32 v{vt[1]}, 0, v{vt[1]}, vcc")
    for r in range(8): k(f"v_mov_b32 v{VB[0] + r}, v{vt[1]}")
    for l in vload(0): k(l)
    for b in range(1, NBUF):
        for r in range(8): k(f"v_mov_b32 v{VB[b] + r}, v{vt[1]}")
    for qt in range(2):
        for r in range(16): k(f"v_mov_b32 v{O[qt] + r}, 0")
    for r in range(8): k(f"v_mov_b32 v{P[1] + r}, 0")
    srd(k, sP1, 44, 45, D * D * 2); srd(k, sP2, 46, 47, D * F * 2)
    k(f"s_lshr_b32 s{s_t0}, s2, 3"); k(f"s_lshl_b32 s{s_t0}, s{s_t0}, 3"); k(f"s_add_u32 s{s_t0}, s{s_t0}, s{s_w}")
    k(f"s_mul_i32 s48, s{s_t0}, {26 * 128}"); k(f"s_mul_i32 s49, s{s_t0}, {68 * 128}")
    k(f"v_lshlrev_b32 v{vt[2]}, 8, v{v_lane}"); k(f"v_add_u32 v{vt[2]}, 124, v{vt[2]}")
    k(f"v_mov_b32 v{vt[3]}, 0x7ffffff0")
    k(f"v_cmp_gt_u32 vcc, 34, v{v_lane}")
    k(f"v_cndmask_b32 v{v_pfa}, v{vt[3]}, v{vt[2]}, vcc")
    k(f"v_cmp_gt_u32 vcc, 13, v{v_lane}")
    k(f"v_cndmask_b32 v{v_pfb}, v{vt[3]}, v{vt[2]}, vcc")
    k(f"s_sub_u32 s50, s{s_qs}, s{s_kh}"); k(f"s_add_u32 s50, s50, 2"); k(f"s_add_u32 s51, s50, 2")
    def qk(qt, b, c):
        cc = "0" if c is None else vr(c, 16)
        return [f"v_mfma_f32_32x32x16_bf16 {vr(Sx[qt],16)}, {vr(K1[b],4)}, {vr(Q1[qt],4)}, {cc}",
                f"v_mfma_f32_32x32x8_bf16 {vr(Sx[qt],16)}, {vr(K2[b],2)}, {vr(Q2[qt],2)}, {vr(Sx[qt],16)}"]
    def pv(qt, b):
        return [f"v_mfma_f32_32x32x16_bf16 {vr(O[qt],16)}, {vr(VB[b],4)}, {vr(P[qt],4)}, {vr(O[qt],16)}",
                f"v_mfma_f32_32x32x16_bf16 {vr(O[qt],16)}, {vr(VB[b]+4,4)}, {vr(P[qt]+4,4)}, {vr(O[qt],16)}"]
    def rowmax(qt, dst, tmp):
        s = Sx[qt]
        k(f"v_max3_f32 v{dst}, v{s}, v{s+1}, v{s+2}")
        for r in range(3, 15, 2): k(f"v_max3_f32 v{dst}, v{dst}, v{s+r}, v{s+r+1}")
        k(f"v_max_f32 v{dst}, v{dst}, v{s+15}")
        k(f"v_mov_b32 v{tmp}, v{dst}")
        k(f"v_permlane32_swap_b32 v{dst}, v{tmp}")
        k(f"v_max_f32 v{dst}, v{dst}, v{tmp}")
    k.stamp(2)
    k("s_waitcnt vmcnt(4)")
    for qt in range(2):
        for l in qk(qt, 0, None): k(l)
    for l in kload(2) + vload(1) + kload(3) + vload(2): k(l)
    rowmax(0, vm[0], vt[0])
    k(f"v_sub_f32 v{vt[1]}, 0, v{vm[0]}")
    for r in range(16): k(f"v_mov_b32 v{C[0] + r}, v{vt[1]}")
    for l in qk(0, 0, C[0]): k(l)
    rowmax(1, vm[1], vt[0])
    k(f"v_sub_f32 v{vt[1]}, 0, v{vm[1]}")
    for r in range(16): k(f"v_mov_b32 v{C[1] + r}, v{vt[1]}")
    k(f"s_mov_b32 s{s_it}, 0")
    k.stamp(3)
    k("s_nop 1")

    def slot(qt, mf, extra):
        s = Sx[qt]; p = P[qt]
        for i in range(16):
            for l in extra.get(i, []): k(l)
            if i % 4 == 0: k(mf[i // 4])
            k(f"v_exp_f32 v{s+i}, v{s+i}")
            if i % 2 == 1 and i >= 3:
                k(f"v_cvt_pk_bf16_f32 v{p + (i-3)//2}, v{s+i-3}, v{s+i-2}")
        for l in extra.get(16, []): k(l)
        k(f"v_cvt_pk_bf16_f32 v{p+7}, v{s+14}, v{s+15}")
    k(f"s_cmp_eq_u32 s{s_kh}, 0")
    k(f"s_cselect_b32 s31, 99, {int(os.environ.get('PRI', '6'))}")
    k.label(k.L("loop"))
    for u in range(NBUF):
        b = u; bp = (u - 1) % NBUF; bn = (u + 1) % NBUF
        e1 = {0: ["s_waitcnt vmcnt(12)"]}
        slot(0, qk(1, b, C[1]) + pv(1, bp), {6: kload(b), 14: vload(bp)})
        slot(1, qk(0, bn, C[0]) + pv(0, b), e1)
    k(f"s_add_u32 s{s_it}, s{s_it}, 1")
    PRI = int(os.environ.get("PRI", "6"))
    k(f"s_cmp_lg_u32 s{s_it}, s31")
    k(f"s_cbranch_scc1 {k.L('noev')}")
    k("s_setprio 0")
    k.label(k.L("noev"))
    if "nowpf" not in X:
        k(f"s_cmp_lg_u32 s{s_it}, s50"); k(f"s_cbranch_scc1 {k.L('noe2')}")
        k(f"buffer_load_dwordx2 {vr(v_pf, 2)}, v{v_pfa}, s[{sP2}:{sP2+3}], s49 offen")
        k.label(k.L("noe2"))
        k(f"s_cmp_lg_u32 s{s_it}, s51"); k(f"s_cbranch_scc1 {k.L('noe3')}")
        k(f"buffer_load_dwordx2 {vr(v_pf, 2)}, v{v_pfb}, s[{sP1}:{sP1+3}], s48 offen")
        k.label(k.L("noe3"))
    k(f"s_cmp_lt_u32 s{s_it}, {32 // NBUF}")
    k(f"s_cbranch_scc1 {k.L('loop')}")
    k.stamp(4)
    for l in pv(1, NBUF - 1): k(l)
    k("s_nop 7"); k("s_nop 7")
    k(f"v_add_f32 v{vt[0]}, |v{O[0]}|, |v{O[1]}|")
    for qt in range(2):
        for r in range(1, 12):
            k(f"v_add_f32 v{vt[0]}, v{vt[0]}, |v{O[qt]+r}|")
    k(f"v_add_f32 v{vt[1]}, v{O[0]+8}, v{O[1]+8}")
    k(f"s_mov_b32 s{s_t0}, {f32(2.0**100)}")
    k(f"v_cmp_nlt_f32 s[{s_c}:{s_c+1}], v{vt[0]}, s{s_t0}")
    k(f"s_mov_b32 s{s_t0}, {f32(2.0**60)}")
    k(f"v_cmp_nlt_f32 vcc, |v{vt[1]}|, s{s_t0}")
    k(f"s_andn2_b64 vcc, vcc, s[{s_lo}:{s_lo+1}]")
    k(f"s_or_b64 s[{s_c}:{s_c+1}], s[{s_c}:{s_c+1}], vcc")
    k("s_waitcnt vmcnt(0)")
    k(f"s_cmp_eq_u64 s[{s_c}:{s_c+1}], 0")
    k(f"s_cbranch_scc1 {k.L('merge')}")
    k(f"s_mov_b32 s{s_ko}, s42"); k(f"s_mov_b32 s{s_vo}, s43")
    for qt in range(2):
        for r in range(16): k(f"v_mov_b32 v{O[qt] + r}, 0")
        k(f"v_mov_b32 v{vm[qt]}, 0xff800000")
    k(f"s_mov_b32 s{s_it}, 0")
    k.label(k.L("fb"))
    for l in kload(0) + vload(0): k(l)
    k("s_waitcnt vmcnt(0)")
    for qt in range(2):
        for l in qk(qt, 0, None): k(l)
    for qt in range(2):
        rowmax(qt, vt[2], vt[0])
        k(f"v_max_f32 v{vt[2]}, v{vt[2]}, v{vm[qt]}")
        k(f"v_sub_f32 v{vt[3]}, v{vm[qt]}, v{vt[2]}")
        k(f"v_exp_f32 v{vt[3]}, v{vt[3]}")
        k(f"v_mov_b32 v{vm[qt]}, v{vt[2]}")
        for r in range(16): k(f"v_mul_f32 v{O[qt]+r}, v{O[qt]+r}, v{vt[3]}")
        for r in range(16): k(f"v_sub_f32 v{Sx[qt]+r}, v{Sx[qt]+r}, v{vt[2]}")
        for r in range(16): k(f"v_exp_f32 v{Sx[qt]+r}, v{Sx[qt]+r}")
        for r in range(8): k(f"v_cvt_pk_bf16_f32 v{P[qt]+r}, v{Sx[qt]+2*r}, v{Sx[qt]+2*r+1}")
        for l in pv(qt, 0): k(l)
    k("s_nop 7"); k("s_nop 7")
    k(f"s_add_u32 s{s_it}, s{s_it}, 1")
    k(f"s_cmp_lt_u32 s{s_it}, 32")
    k(f"s_cbranch_scc1 {k.L('fb')}")
    k.label(k.L("merge"))
    k(f"s_cmp_eq_u32 s{s_kh}, 0")
    k(f"s_cbranch_scc1 {k.L('noswap')}")
    for r in range(12): k(f"v_swap_b32 v{O[0]+r}, v{O[1]+r}")
    k(f"v_swap_b32 v{vm[0]}, v{vm[1]}")
    k.label(k.L("noswap"))
    k(f"v_mov_b32 v{O[1]+12}, v{vm[1]}")
    k(f"s_lshl_b32 s{s_t0}, s{s_w}, 12")
    k(f"v_lshl_add_u32 v{vt[0]}, v{v_lane}, 4, s{s_t0}")
    k(f"v_xor_b32 v{vt[1]}, {4 << 12}, v{vt[0]}")
    for q in range(4): k(f"ds_write_b128 v{vt[0]}, {vr(O[1] + 4*q, 4)} offset:{q*1024}")
    k("s_waitcnt lgkmcnt(0)")
    k("s_barrier")
    k.stamp(5)
    for q in range(4): k(f"ds_read_b128 {vr(Sx[0] + 4*q, 4)}, v{vt[1]} offset:{q*1024}")
    k(f"s_lshl_b32 s{s_t0}, s{s_qb}, 12"); k(f"s_lshl_b32 s{s_t1}, s{s_qs}, 10"); k(f"s_add_u32 s{s_t0}, s{s_t0}, s{s_t1}")
    k(f"s_lshl_b32 s{s_t1}, s{s_kh}, 9"); k(f"s_add_u32 s{s_t0}, s{s_t0}, s{s_t1}"); k(f"s_add_u32 s{s_t0}, s{s_t0}, {O_OFF}")
    k("s_waitcnt lgkmcnt(0)")
    mo = Sx[0] + 12
    k(f"v_max_f32 v{vt[2]}, v{vm[0]}, v{mo}")
    k(f"v_sub_f32 v{vt[3]}, v{vm[0]}, v{vt[2]}"); k(f"v_sub_f32 v{vt[4]}, v{mo}, v{vt[2]}")
    k(f"v_exp_f32 v{vt[3]}, v{vt[3]}"); k(f"v_exp_f32 v{vt[4]}, v{vt[4]}")
    for r in range(12): k(f"v_mul_f32 v{O[0]+r}, v{O[0]+r}, v{vt[3]}")
    for r in range(12): k(f"v_fmac_f32 v{O[0]+r}, v{Sx[0]+r}, v{vt[4]}")
    k(f"v_mov_b32 v{vt[5]}, v{O[0]+8}"); k(f"v_mov_b32 v{vt[6]}, v{O[0]+8}")
    k(f"v_permlane32_swap_b32 v{vt[5]}, v{vt[6]}")
    k(f"v_rcp_f32 v{vt[6]}, v{vt[6]}")
    for r in range(12): k(f"v_mul_f32 v{O[0]+r}, v{O[0]+r}, v{vt[6]}")
    for r in range(6): k(f"v_cvt_pk_bf16_f32 v{P[0]+r}, v{O[0]+2*r}, v{O[0]+2*r+1}")
    k(f"v_permlane32_swap_b32 v{P[0]}, v{P[0]+2}")
    k(f"v_permlane32_swap_b32 v{P[0]+1}, v{P[0]+3}")
    k(f"buffer_store_dwordx4 {vr(P[0],4)}, v{vK1}, {W}, s{s_t0} offen")
    k(f"s_mov_b64 exec, s[{s_lo}:{s_lo+1}]")
    k(f"buffer_store_dwordx2 {vr(P[0]+4,2)}, v{vK2}, {W}, s{s_t0} offen")
    k.stamp(6); k.dump(1, 9, s_w)
    k.label(k.L("end"))
    k("s_endpgm")
    return k, NV, 8 * 4096

def resgemm(kind):
    k = K(kind)
    op = kind == "oproj"
    KK = D if op else F
    GS = 8
    NG = (KK // 16 + GS - 1) // GS
    NKS = NG * GS
    s_rot = 29; sAA = 52 - 4
    GB = 16384
    NSLOT = 5 if op else 8
    A_OFF = O_OFF if op else G_OFF
    sB, sW, sR, sO, sBi = 4, 8, 12, 16, 44
    s_r, s_cb, s_w, s_t0, s_t1, s_offB, s_offA, s_m0, s_it, s_wid = 20, 21, 22, 23, 24, 25, 26, 27, 28, 35
    v_lane, v_t, v_h = 1, 2, 3
    vBd = [4, 5, 6, 7]; vA = 8; vBr = [9, 10]; vO = 11
    vt = [12, 13, 14, 15]
    RES = 16; BI = 32; ACC = 48
    DIST = 6; NFB = 8; FB = 80
    LA = 14; NFA = 16; FA = 112
    NV = FA + NFA * 4
    T = FA
    kidx = 2 if op else 4
    k.stamp(0); k.stamp(1, True)
    k("s_cmp_ge_u32 s2, 240"); k(f"s_cbranch_scc1 {k.L('end')}")
    if op:
        k("s_load_dwordx2 s[36:37], s[0:1], 16")
        k("s_load_dwordx2 s[38:39], s[0:1], 0")
    else:
        k("s_load_dwordx4 s[36:39], s[0:1], 48")
        k("s_load_dwordx2 s[42:43], s[0:1], 64")
    k("s_load_dwordx2 s[40:41], s[0:1], 80")
    k(f"v_lshrrev_b32 v{vt[0]}, 6, v0")
    k(f"v_and_b32 v{v_lane}, 63, v0")
    k(f"v_readfirstlane_b32 s{s_wid}, v{vt[0]}")
    k(f"s_lshr_b32 s{s_t0}, s2, 3")
    k(f"s_mul_i32 s{s_cb}, s{s_t0}, 43"); k(f"s_lshr_b32 s{s_cb}, s{s_cb}, 7")
    k(f"s_mul_i32 s{s_t1}, s{s_cb}, 3"); k(f"s_sub_u32 s{s_r}, s{s_t0}, s{s_t1}")
    k(f"s_lshl_b32 s{s_t1}, s{s_cb}, 7")
    if ("rot_" + kind) not in X:
        k(f"s_mov_b32 s{s_rot}, 0")
    elif op:
        k(f"s_lshl_b32 s{s_rot}, s{s_r}, 1"); k(f"s_add_u32 s{s_rot}, s{s_rot}, s{s_cb}")
        for _ in range(2):
            k(f"s_cmp_ge_u32 s{s_rot}, 5"); k(f"s_cselect_b32 s{s_t0}, 5, 0"); k(f"s_sub_u32 s{s_rot}, s{s_rot}, s{s_t0}")
    else:
        k(f"s_mul_i32 s{s_rot}, s{s_r}, 5"); k(f"s_mul_i32 s{s_t0}, s{s_cb}, 11"); k(f"s_lshr_b32 s{s_t0}, s{s_t0}, 3"); k(f"s_add_u32 s{s_rot}, s{s_rot}, s{s_t0}")
        k(f"s_cmp_ge_u32 s{s_rot}, 14"); k(f"s_cselect_b32 s{s_t0}, 14, 0"); k(f"s_sub_u32 s{s_rot}, s{s_rot}, s{s_t0}")
    k(f"s_and_b32 s{s_w}, s{s_wid}, 3")
    k(f"s_cmp_lt_u32 s{s_wid}, 4")
    k(f"s_cbranch_scc1 {k.L('compute')}")
    k(f"v_lshrrev_b32 v{vt[0]}, 3, v{v_lane}")
    k(f"v_and_b32 v{vt[1]}, 7, v{v_lane}")
    k(f"v_bfe_u32 v{vt[2]}, v{v_lane}, 4, 1")
    k(f"v_lshlrev_b32 v{vt[2]}, 2, v{vt[2]}")
    k(f"v_xor_b32 v{vt[1]}, v{vt[1]}, v{vt[2]}")
    k(f"v_mul_u32_u24 v{vt[0]}, 1280, v{vt[0]}")
    k(f"v_lshl_add_u32 v{vBd[0]}, v{vt[1]}, 4, v{vt[0]}")
    for ii in range(1, 4):
        k(f"v_add_u32 v{vBd[ii]}, {ii * (8 * 1280 - 1024)}, v{vBd[0]}")
    k(f"s_mul_i32 s{s_offA}, s{s_w}, {32 * 1280}"); k(f"s_add_u32 s{s_offA}, s{s_offA}, s{s_t1}")
    k(f"s_mul_i32 s{s_offB}, s{s_rot}, {128 * 1280}"); k(f"s_add_u32 s{s_offB}, s{s_offB}, s{s_offA}")
    k(f"s_lshl_b32 s{s_m0}, s{s_w}, 12")
    k(f"s_mov_b32 s{s_it}, 0")
    k("s_waitcnt lgkmcnt(0)")
    srd(k, sB, 36, 37, KK * D * 2)
    def issue():
        r = [f"s_mov_b32 m0, s{s_m0}", f"s_add_u32 s{s_m0}, s{s_m0}, {GB}"]
        for ii in range(4):
            r.append(f"buffer_load_dwordx4 v{vBd[ii]}, s[{sB}:{sB+3}], s{s_offB} offen offset:{ii*1024} lds")
        r.append(f"s_add_u32 s{s_offB}, s{s_offB}, {128 * 1280}")
        r.append(f"s_cmp_lt_u32 s{s_offB}, {NG * 128 * 1280}")
        r.append(f"s_cselect_b32 s{s_offB}, s{s_offB}, s{s_offA}")
        if not op: r.append(f"s_and_b32 s{s_m0}, s{s_m0}, {NSLOT * GB - 1}")
        return r
    k.stamp(2)
    for l in issue() + issue(): k(l)
    k.label(k.L("lloop"))
    for l in issue(): k(l)
    k("s_waitcnt vmcnt(8)")
    k("s_barrier")
    k(f"s_add_u32 s{s_it}, s{s_it}, 1")
    k(f"s_cmp_lt_u32 s{s_it}, {NG - 2}")
    k(f"s_cbranch_scc1 {k.L('lloop')}")
    k("s_waitcnt vmcnt(4)"); k("s_barrier")
    k("s_waitcnt vmcnt(0)"); k("s_barrier")
    k.stamp(3); k.stamp(4); k.stamp(5); k.stamp(6); k.dump(kidx, 9, s_wid)
    k("s_endpgm")
    k.label(k.L("compute"))
    k(f"s_cmp_eq_u32 s{s_w}, 3"); k(f"s_cbranch_scc1 {k.L('end')}")
    k(f"s_mul_i32 s{s_t0}, s{s_r}, 3"); k(f"s_add_u32 s{s_t0}, s{s_t0}, s{s_w}")
    k(f"s_cmp_ge_u32 s{s_t0}, 8"); k(f"s_cbranch_scc1 {k.L('end')}")
    k(f"s_and_b32 s{s_it}, s2, 7"); k(f"s_lshl_b32 s{s_it}, s{s_it}, 3"); k(f"s_add_u32 s{s_t0}, s{s_t0}, s{s_it}")
    k(f"s_lshl_b32 s{s_t0}, s{s_t0}, 5")
    k(f"v_and_b32 v{v_t}, 31, v0")
    k(f"v_bfe_u32 v{v_h}, v0, 5, 1")
    k(f"v_add_u32 v{vt[0]}, s{s_t0}, v{v_t}")
    k(f"v_lshlrev_b32 v{vA}, 15, v{v_h}")
    k(f"v_lshl_add_u32 v{vA}, v{vt[0]}, 4, v{vA}")
    k(f"s_mul_i32 s{s_offA}, s{s_rot}, {16 * CH}"); k(f"s_add_u32 s{s_offA}, s{s_offA}, {A_OFF}")
    k("s_waitcnt lgkmcnt(0)")
    srd(k, sB, 40, 41, G_END)
    srd(k, sW, 40, 41, WS_END)
    def aload(i):
        r = [f"buffer_load_dwordx4 {vr(FA + (i % NFA) * 4, 4)}, v{vA}, s[{sB}:{sB+3}], s{s_offA} offen",
             f"s_add_u32 s{s_offA}, s{s_offA}, {2 * CH}"]
        if i % GS == GS - 1:
            r += [f"s_cmp_lg_u32 s{s_offA}, {A_OFF + NG * 16 * CH}", f"s_cselect_b32 s{s_offA}, s{s_offA}, {A_OFF}"]
        return r
    for i in range(LA):
        for l in aload(i): k(l)
    k(f"v_mul_u32_u24 v{vt[1]}, 1280, v{vt[0]}")
    k(f"v_lshl_add_u32 v{vt[1]}, v{v_h}, 4, v{vt[1]}")
    k(f"v_add_u32 v{vt[1]}, s{s_t1}, v{vt[1]}")
    k(f"s_lshl_b32 s{s_t0}, s{s_cb}, 18"); k(f"s_add_u32 s{s_t0}, s{s_t0}, {H_OFF}")
    k(f"v_add_u32 v{vt[2]}, s{s_t0}, v{vA}")
    k(f"v_mov_b32 v{vO}, v{vt[2] if op else vt[1]}")
    if op:
        k(f"s_lshl_b32 s{s_t0}, s{s_cb}, 14"); k(f"s_add_u32 s{s_t0}, s{s_t0}, {HS_OFF}")
        k(f"v_lshl_add_u32 v{vBd[0]}, v{vt[0]}, 3, s{s_t0}")
    k(f"v_bfe_u32 v{vt[0]}, v{v_lane}, 2, 2")
    k(f"v_lshl_add_u32 v{vt[0]}, v{v_h}, 3, v{vt[0]}")
    k(f"v_lshlrev_b32 v{vt[0]}, 7, v{vt[0]}")
    k(f"v_bfe_u32 v{vt[3]}, v{v_lane}, 3, 1")
    k(f"v_lshl_add_u32 v{vt[0]}, v{vt[3]}, 6, v{vt[0]}")
    k(f"v_bfe_u32 v{vt[3]}, v{v_lane}, 4, 1")
    k(f"v_lshl_add_u32 v{vt[0]}, v{vt[3]}, 5, v{vt[0]}")
    k(f"v_and_b32 v{vt[3]}, 3, v{v_lane}")
    k(f"v_lshl_add_u32 v{vBr[0]}, v{vt[3]}, 3, v{vt[0]}")
    k(f"v_xor_b32 v{vBr[1]}, 64, v{vBr[0]}")
    late = []
    for c in range(4): k(f"s_mov_b32 s{48 + c}, {2*c*CH}")
    if op:
        srd(k, sR, 38, 39, S * D * 2)
        for c in range(4):
            late.append([f"buffer_load_dwordx4 {vr(RES + 4*c, 4)}, v{vt[1]}, s[{sR}:{sR+3}], 0 offen offset:{32*c}"])
    else:
        srd(k, sO, 42, 43, S * D * 2); srd(k, sBi, 38, 39, D * 2)
        k(f"v_lshlrev_b32 v{vt[0]}, 3, v{v_h}")
        for c in range(4):
            late.append([f"buffer_load_dwordx4 {vr(RES + 4*c, 4)}, v{vt[2]}, s[{sW}:{sW+3}], s{48 + c} offen"])
        for c in range(8):
            late.append([f"buffer_load_dwordx2 {vr(BI + 2*c, 2)}, v{vt[0]}, s[{sBi}:{sBi+3}], s{s_t1} offen offset:{16*c}"])
    for r in range(32): k(f"v_mov_b32 v{ACC + r}, 0")
    cur_base = 0
    NM = NKS * 2
    def bread(m):
        nonlocal cur_base
        ks, j = divmod(m, 2)
        G, q = divmod(ks, GS)
        off = (G % NSLOT) * GB + q * 2048
        r = []
        if q == 0 and j == 0: r.append("s_barrier")
        base = (off // 65536) * 65536
        if base != cur_base:
            for a in vBr: r.append(f"v_add_u32 v{a}, {(base - cur_base) & 0xffffffff:#x}, v{a}")
            cur_base = base
        for e in range(2):
            r.append(f"ds_read_b64_tr_b16 {vr(FB + (m % NFB) * 4 + 2*e, 2)}, v{vBr[j]} offset:{off - base + e*512}")
        return r
    k.stamp(2)
    if K.prof: k("s_waitcnt lgkmcnt(0)")
    for m in range(DIST):
        for l in bread(m): k(l)
    vq = [("A", i) for i in range(LA)]
    nlate = len(late)
    for m in range(NM):
        ks, j = divmod(m, 2)
        nout = 2 * (min(NM, m + DIST) - m - 1)
        if j == 0:
            pos = vq.index(("A", ks))
            k(f"s_waitcnt vmcnt({len(vq) - 1 - pos}) lgkmcnt({nout})")
        else:
            k(f"s_waitcnt lgkmcnt({nout})")
        k(f"v_mfma_f32_32x32x16_bf16 {vr(ACC + 16*j, 16)}, {vr(FB + (m % NFB) * 4, 4)}, {vr(FA + (ks % NFA) * 4, 4)}, {vr(ACC + 16*j, 16)}")
        if m + DIST < NM:
            for l in bread(m + DIST): k(l)
        if j == 0 and ks + LA < NKS:
            for l in aload(ks + LA): k(l)
            vq.append(("A", ks + LA))
        if j == 1 and late and ks >= NKS - LA - nlate - 2:
            for l in late.pop(0): k(l)
            vq.append(("R", 0))
    assert not late
    k.stamp(3); k.stamp(4); k.stamp(5)
    k("s_waitcnt vmcnt(0)")
    for c in range(4):
        k(f"v_permlane32_swap_b32 v{RES + 4*c}, v{RES + 4*c + 2}")
        k(f"v_permlane32_swap_b32 v{RES + 4*c + 1}, v{RES + 4*c + 3}")
    for r in range(16):
        k(f"v_lshlrev_b32 v{T + 2*r}, 16, v{RES + r}")
        k(f"v_and_b32 v{T + 2*r + 1}, 0xffff0000, v{RES + r}")
    if not op:
        for r in range(16):
            k(f"v_lshlrev_b32 v{T + 32 + 2*r}, 16, v{BI + r}")
            k(f"v_and_b32 v{T + 32 + 2*r + 1}, 0xffff0000, v{BI + r}")
        for r in range(16):
            k(f"v_pk_add_f32 {vr(T + 2*r, 2)}, {vr(T + 2*r, 2)}, {vr(T + 32 + 2*r, 2)}")
    else:
        k(f"v_mov_b32 v{vt[0]}, 0"); k(f"v_mov_b32 v{vt[1]}, 0"); k(f"s_mov_b32 s{s_t1}, 0x3f803f80")
    for c in range(4):
        for r in range(4*c, 4*c + 4):
            k(f"v_pk_add_f32 {vr(T + 2*r, 2)}, {vr(T + 2*r, 2)}, {vr(ACC + 2*r, 2)}")
        for r in range(4*c, 4*c + 4):
            k(f"v_cvt_pk_bf16_f32 v{RES + r}, v{T + 2*r}, v{T + 2*r + 1}")
        k(f"v_permlane32_swap_b32 v{RES + 4*c}, v{RES + 4*c + 2}")
        k(f"v_permlane32_swap_b32 v{RES + 4*c + 1}, v{RES + 4*c + 3}")
        if op:
            k(f"buffer_store_dwordx4 {vr(RES + 4*c, 4)}, v{vO}, s[{sW}:{sW+3}], s{48 + c} offen")
        else:
            k(f"buffer_store_dwordx4 {vr(RES + 4*c, 4)}, v{vO}, s[{sO}:{sO+3}], 0 offen offset:{32*c}")
    if op:
        for r in range(16):
            k(f"v_dot2c_f32_bf16 v{vt[0]}, s{s_t1}, v{RES + r}")
            k(f"v_dot2c_f32_bf16 v{vt[1]}, v{RES + r}, v{RES + r}")
        k(f"v_mov_b32 v{vt[2]}, v{vt[0]}"); k(f"v_mov_b32 v{vt[3]}, v{vt[1]}")
        k(f"v_permlane32_swap_b32 v{vt[0]}, v{vt[2]}"); k(f"v_permlane32_swap_b32 v{vt[1]}, v{vt[3]}")
        k(f"v_add_f32 v{vt[0]}, v{vt[0]}, v{vt[2]}"); k(f"v_add_f32 v{vt[1]}, v{vt[1]}, v{vt[3]}")
        k("s_mov_b32 exec_hi, 0")
        k(f"buffer_store_dwordx2 {vr(vt[0], 2)}, v{vBd[0]}, s[{sW}:{sW+3}], 0 offen")
    k.stamp(6); k.dump(kidx, 9, s_wid)
    k.label(k.L("end"))
    k("s_endpgm")
    return k, NV, NSLOT * GB

HEADER = open("sequential_preLN__mha_block__mixer_channel_mlp__prompt.s.ref").read().split("; Override")[0]

def build(path):
    ks = [(lngemm("qkv"), 256, 512), (attn(), 256, 512), (resgemm("oproj"), 240, 512), (lngemm("mlp1"), 224, 512), (resgemm("mlp2"), 240, 512)]
    def nop():
        k = K("nop"); k("s_endpgm"); return k, 8, 0
    order = list(range(len(ks)))
    if "nopend" in X: ks.append((nop(), 256, 256)); order = order + [5]
    if "nopbeg" in X: ks.append((nop(), 256, 256)); order = [5] + order
    if "nop3" in X: ks.append((nop(), 256, 256)); order = order + [5, 5, 5]
    if "dup" in X: order = order + order
    t = HEADER
    for (k, nv, lds), grid, block in [ks[i] for i in order]:
        t += f"; @launch kernel={k.name}_kernel grid=({grid},1,1) block=({block},1,1) lds={lds}\n"
    t += '.amdgcn_target "amdgcn-amd-amdhsa--gfx950"\n.text\n'
    for (k, nv, lds), grid, block in ks:
        t += kernel_text(k, nv)
    t += '.section .rodata,"a"\n'
    for (k, nv, lds), grid, block in ks:
        t += kernel_desc(k, nv)
    open(path, "w").write(t)

if __name__ == "__main__":
    if len(sys.argv) > 2 and sys.argv[2] == "prof": K.prof = True
    if len(sys.argv) > 2 and sys.argv[2] == "dbg": K.prof = "dbg"
    build(sys.argv[1] if len(sys.argv) > 1 else "sequential_preLN__mha_block__mixer_channel_mlp__prompt.s")
```

```python
import re

TRANS = ("v_exp_f32", "v_log_f32", "v_rcp_f32", "v_rsq_f32", "v_sqrt_f32", "v_sin_f32", "v_cos_f32",
         "v_exp_f16", "v_rcp_f16", "v_rcp_iflag_f32")

def regs_of(tok):
    tok = tok.strip()
    neg = tok.lstrip("-")
    m = re.fullmatch(r"\|?(?:abs\()?([vsa])(\d+)\)?\|?", neg)
    if m:
        return {(m.group(1), int(m.group(2)))}
    m = re.fullmatch(r"([vsa])\[(\d+):(\d+)\]", neg)
    if m:
        return {(m.group(1), i) for i in range(int(m.group(2)), int(m.group(3)) + 1)}
    if neg in ("vcc", "vcc_lo", "vcc_hi"):
        return {("vcc", 0)}
    if neg in ("exec", "exec_lo", "exec_hi"):
        return {("exec", 0)}
    if neg == "m0":
        return {("m0", 0)}
    return set()

class Ins:
    __slots__ = ("text", "op", "ops", "mods", "kind", "rd", "wr", "passes", "srcc", "srcab", "states", "label", "target")
    def __init__(self, text):
        self.text = text
        t = text.split(";")[0].strip()
        self.label = None
        self.target = None
        self.rd = set(); self.wr = set(); self.passes = 0; self.srcc = set(); self.srcab = set()
        self.states = 1
        self.op = ""; self.ops = []; self.mods = ""
        if not t or t.startswith("."):
            self.kind = "none"; self.states = 0
            return
        if t.endswith(":"):
            self.kind = "label"; self.label = t[:-1]; self.states = 0
            return
        parts = t.split(None, 1)
        op = parts[0]; self.op = op
        rest = parts[1] if len(parts) > 1 else ""
        ops = []; depth = 0; cur = ""
        for ch in rest:
            if ch == "[": depth += 1
            if ch == "]": depth -= 1
            if ch == "," and depth == 0:
                ops.append(cur.strip()); cur = ""
            else:
                cur += ch
        if cur.strip():
            ops.append(cur.strip())
        mods = ""
        if ops:
            sp = ops[-1].split(None, 1)
            if len(sp) > 1:
                ops[-1] = sp[0]; mods = sp[1]
        self.ops = ops; self.mods = mods
        R = [regs_of(o) for o in ops]
        base = re.sub(r"_e32$|_e64$|_dpp$|_sdwa$", "", op)
        if op.startswith("v_mfma"):
            self.kind = "mfma"
            self.wr = R[0]; self.srcab = R[1] | R[2]; self.srcc = R[3]
            self.rd = self.srcab | self.srcc
            if "32x32x16" in op or "32x32x8" in op: self.passes = 8
            elif "16x16x32" in op or "16x16x16" in op: self.passes = 4
            else: raise ValueError("unknown mfma " + op)
        elif op.startswith("v_"):
            self.kind = "valu"
            if base.startswith("v_permlane"):
                self.wr = R[0] | R[1]; self.rd = R[0] | R[1]
            elif base.startswith("v_cmp"):
                self.wr = R[0]; self.rd = set().union(*R[1:])
            elif base in ("v_add_co_u32", "v_sub_co_u32", "v_addc_co_u32", "v_subb_co_u32"):
                self.wr = R[0] | R[1]; self.rd = set().union(*R[2:])
            else:
                self.wr = R[0]; self.rd = set().union(*R[1:]) if len(R) > 1 else set()
                if base in ("v_fmac_f32", "v_dot2c_f32_bf16", "v_pk_fmac_f16", "v_writelane_b32"):
                    self.rd = self.rd | R[0]
                if "UNUSED_PRESERVE" in mods:
                    self.rd = self.rd | R[0]
        elif op.startswith("ds_"):
            self.kind = "ds"
            if op.startswith("ds_read") or "_rtn_" in op or op.startswith("ds_bpermute") or op.startswith("ds_swizzle") or op.startswith("ds_permute"):
                self.wr = R[0]; self.rd = set().union(*R[1:])
            else:
                self.rd = set().union(*R)
        elif op.startswith("buffer_") or op.startswith("global_"):
            self.kind = "vmem"
            if op.startswith("buffer_wbl2") or op.startswith("buffer_inv"):
                pass
            elif "load" in op and " lds" not in (" " + mods) and "load_lds" not in op:
                self.wr = R[0]; self.rd = set().union(*R[1:])
            else:
                self.rd = set().union(*R)
                if " lds" in (" " + mods) or "load_lds" in op:
                    self.rd = self.rd | {("m0", 0)}
        elif op.startswith("s_"):
            self.kind = "salu"
            if op == "s_nop":
                self.states = int(ops[0], 0) + 1
            elif op.startswith("s_cbranch") or op == "s_branch":
                self.target = ops[0]; self.kind = "branch"
            elif op.startswith("s_cmp") or op in ("s_waitcnt", "s_barrier", "s_endpgm", "s_setprio", "s_sleep"):
                self.rd = set().union(*R) if R else set()
            elif op.startswith("s_load") or op.startswith("s_buffer_load") or op.startswith("s_memtime") or op.startswith("s_memrealtime"):
                self.kind = "smem"
                self.wr = R[0]; self.rd = set().union(*R[1:]) if len(R) > 1 else set()
            else:
                self.wr = R[0]; self.rd = set().union(*R[1:]) if len(R) > 1 else set()
                if "saveexec" in op:
                    self.wr = self.wr | {("exec", 0)}
        else:
            raise ValueError("cannot classify: " + text)

def vonly(s):
    return {r for r in s if r[0] in ("v", "a")}
def sonly(s):
    return {r for r in s if r[0] in ("s", "vcc")}

def need(p, c):
    n = 0
    pb = re.sub(r"_e32$|_e64$", "", p.op); cb = re.sub(r"_e32$|_e64$", "", c.op)
    if p.kind == "valu":
        pw = vonly(p.wr)
        isdot = pb.startswith("v_dot")
        if c.kind == "mfma" and pw & c.rd:
            n = max(n, 3 if isdot else 2)
        if c.kind == "valu":
            if pb in TRANS and cb not in TRANS and pw & c.rd: n = max(n, 1)
            if cb.startswith("v_permlane") and pw & c.rd: n = max(n, 2)
            if cb in ("v_readfirstlane_b32", "v_readlane_b32") and pw & c.rd: n = max(n, 1)
            if ("dpp" in c.op or "row_" in c.mods or "quad_perm" in c.mods) and pw & c.rd: n = max(n, 2)
            if isdot and pw & (c.rd | c.wr):
                if cb == pb and cb == "v_dot2c_f32_bf16" and not (pw & (regs_of(c.ops[1]) | regs_of(c.ops[2]))):
                    pass
                else:
                    n = max(n, 3)
            if ("sdwa" in p.op or "op_sel:" in p.mods and not pb.startswith("v_pk_")) and pw & (c.rd | c.wr): n = max(n, 1)
        if c.kind in ("vmem", "ds"):
            if pb in TRANS and pw & c.rd: n = max(n, 1)
            if isdot and pw & c.rd: n = max(n, 3)
        ps = sonly(p.wr)
        if ps:
            if c.kind in ("valu", "mfma") and ps & c.rd:
                n = max(n, 4 if cb in ("v_readlane_b32", "v_writelane_b32") else 2)
            if c.kind == "vmem" and ps & c.rd: n = max(n, 5)
            if c.kind in ("salu", "branch", "smem") and (ps & c.rd or (("vcc", 0) in ps and "vcc" in c.op)): n = max(n, 2)
        if ("exec", 0) in p.wr and c.kind in ("valu", "mfma"): n = max(n, 5)
    if p.kind == "mfma":
        t_rd = {4: 8, 8: 12}[p.passes]
        t_c = {4: 6, 8: 10}[p.passes]
        t_war = {4: 3, 8: 7}[p.passes]
        if c.kind == "mfma":
            if p.wr & c.srcab: n = max(n, t_rd)
            if p.wr & c.srcc:
                if not (p.wr == c.srcc and p.passes == c.passes): n = max(n, t_c)
            elif p.wr & c.wr:
                n = max(n, t_c)
        elif c.kind in ("valu", "vmem", "ds"):
            if p.wr & (c.rd | c.wr): n = max(n, t_rd)
            if c.kind == "valu" and p.srcc & c.wr: n = max(n, t_war)
            if c.kind in ("vmem", "ds") and p.srcc & c.wr: n = max(n, t_war)
    if p.kind == "salu" and ("m0", 0) in p.wr and c.kind == "vmem" and ("m0", 0) in c.rd:
        n = max(n, 1)
    if p.kind in ("vmem", "ds") and ("store" in p.op or "write" in p.op) and ("x4" in p.op or "x3" in p.op or "b128" in p.op or "b96" in p.op):
        data = vonly(regs_of(p.ops[0])) if p.kind == "vmem" and p.op.startswith("buffer") else vonly(regs_of(p.ops[1]))
        if data & c.wr:
            n = max(n, 2 if c.kind in ("valu", "mfma") else 1)
    return n

WINDOW = 24

def fix_hazards(lines, verbose=False):
    ins = [Ins(l) for l in lines]
    out = []
    for c in ins:
        if c.kind in ("none", "label"):
            out.append(c); continue
        dist = 0; req = 0
        for p in reversed(out):
            if p.kind in ("none", "label"): continue
            if p.kind == "branch" and p.op == "s_branch": break
            if p.op == "s_endpgm": break
            n = need(p, c)
            if n - dist > req: req = n - dist
            dist += p.states
            if dist > WINDOW: break
        while req > 0:
            k = min(req, 16)
            out.append(Ins("    s_nop %d" % (k - 1)))
            req -= k
        out.append(c)
    labels = {o.label: i for i, o in enumerate(out) if o.kind == "label"}
    problems = []
    for i, b in enumerate(out):
        if b.kind != "branch" or b.target not in labels: continue
        pre = [p for p in out[max(0, i - 3 * WINDOW):i + 1] if p.kind not in ("none", "label")]
        j = labels[b.target]; d_after = 0
        while j < len(out) and d_after <= WINDOW:
            c = out[j]; j += 1
            if c.kind in ("none", "label"): continue
            dist = d_after
            for p in reversed(pre):
                n = need(p, c)
                if n > dist:
                    problems.append("hazard across branch %s: [%s] -> [%s] needs %d has %d" % (b.text.strip(), p.text.strip(), c.text.strip(), n, dist))
                dist += p.states
                if dist > WINDOW: break
            d_after += c.states
            if c.op in ("s_branch", "s_endpgm"): break
    if problems:
        raise RuntimeError("\n".join(problems))
    return [o.text for o in out]

class K:
    def __init__(self, name):
        self.name = name; self.lines = []; self.uid = 0
    def __call__(self, s):
        for l in s.strip("\n").split("\n"):
            l = l.strip()
            if l: self.lines.append(("" if l.endswith(":") else "    ") + l)
    def label(self, n): self.lines.append(n + ":")
    prof = False
    def stamp(self, i, real=False):
        if K.prof: self(("s_memrealtime" if real else "s_memtime") + " s[%d:%d]" % (60 + 2 * i, 61 + 2 * i))
    def dump(self, kidx, nst, wave_sgpr, ws_lo=40):
        if not K.prof: return
        if K.prof == "dbg":
            lab = "Ldbg_%s_%d" % (self.name, self.uid); self.uid += 1
            self("s_waitcnt vmcnt(0)")
            self.stamp(nst - 1, True)
            self("s_load_dwordx2 s[52:53], s[0:1], 72")
            self("s_waitcnt lgkmcnt(0)")
            self("s_cmp_lg_u32 s2, 8"); self("s_cbranch_scc1 " + lab)
            self("s_cmp_lg_u32 s%d, 0" % wave_sgpr); self("s_cbranch_scc1 " + lab)
            self("s_mov_b64 exec, 1")
            self("s_add_u32 s52, s52, %d" % ((4 - kidx) * 512)); self("s_addc_u32 s53, s53, 0")
            self("s_and_b32 s53, s53, 0xffff"); self("s_mov_b32 s54, 256"); self("s_mov_b32 s55, 0x00020000")
            self("v_mov_b32 v1, 0"); self("v_mov_b32 v2, s62"); self("v_mov_b32 v3, s%d" % (60 + 2 * (nst - 1)))
            self("s_sub_u32 s56, s66, s60"); self("v_mov_b32 v4, s56")
            self("buffer_store_dwordx2 v[2:3], v1, s[52:55], 0 offen offset:%d" % (12 * kidx))
            self("buffer_store_dword v4, v1, s[52:55], 0 offen offset:%d" % (12 * kidx + 8))
            self.label(lab)
            return
        self("s_waitcnt vmcnt(0)")
        self.stamp(nst - 2); self.stamp(nst - 1, True)
        self("s_waitcnt lgkmcnt(0)")
        self("s_mov_b64 exec, 1")
        self("s_mov_b32 s52, s%d" % ws_lo); self("s_and_b32 s53, s%d, 0xffff" % (ws_lo + 1)); self("s_mov_b32 s54, 0x4000000"); self("s_mov_b32 s55, 0x00020000")
        self("s_add_u32 s56, s2, %d" % (kidx * 512)); self("s_lshl_b32 s56, s56, 4"); self("s_add_u32 s56, s56, s%d" % wave_sgpr)
        self("s_lshl_b32 s56, s56, 6"); self("s_add_u32 s56, s56, 0x2000000")
        self("v_mov_b32 v1, 0")
        self("s_getreg_b32 s57, hwreg(HW_REG_XCC_ID)")
        self("v_mov_b32 v2, s57")
        self("buffer_store_dword v2, v1, s[52:55], s56 offen offset:60")
        self("s_getreg_b32 s57, hwreg(HW_REG_HW_ID)")
        self("v_mov_b32 v3, s57")
        self("buffer_store_dword v3, v1, s[52:55], s56 offen offset:56")
        for i in range(nst):
            self("v_mov_b32 v2, s%d" % (60 + 2 * i))
            self("buffer_store_dword v2, v1, s[52:55], s56 offen offset:%d" % (4 * i))
            self("s_nop 1")

    pref = None
    def L(self, n): return "L_%s_%s" % (self.pref or self.name, n)

def vr(a, n=1):
    return "v%d" % a if n == 1 else "v[%d:%d]" % (a, a + n - 1)
def sr(a, n=1):
    return "s%d" % a if n == 1 else "s[%d:%d]" % (a, a + n - 1)

def kernel_text(k, nvgpr, nsgpr=96):
    body = fix_hazards(k.lines)
    name = k.name + "_kernel"
    t = ".globl %s\n.p2align 8\n.type %s,@function\n%s:\n" % (name, name, name)
    t += "\n".join(body) + "\n"
    return t

def kernel_desc(k, nvgpr, nsgpr=96):
    name = k.name + "_kernel"
    acc = min(256, (nvgpr + 3) // 4 * 4)
    return (".p2align 6\n.amdhsa_kernel %s\n  .amdhsa_next_free_vgpr %d\n  .amdhsa_next_free_sgpr %d\n  .amdhsa_accum_offset %d\n"
            "  .amdhsa_group_segment_fixed_size 0\n  .amdhsa_kernarg_size 88\n  .amdhsa_user_sgpr_count 2\n"
            "  .amdhsa_user_sgpr_kernarg_segment_ptr 1\n  .amdhsa_system_sgpr_workgroup_id_x 1\n.end_amdhsa_kernel\n") % (name, nvgpr, nsgpr, acc)
```

```python
import sys, math, struct, os
X = set(os.environ.get("EXP", "").split(","))
from asmlib import K, vr, sr, kernel_text, kernel_desc

S = 2048; D = 640; F = 1728; H = 32; DH = 20
QK_OFF = 0x0
V_OFF = 0x500000
O_OFF = 0x780000
H_OFF = 0xA00000
G_OFF = 0xC80000
HS_OFF = 0x1340000
C1_OFF = 0x1370000
ST_OFF = 0x1378000
WS_END = 0x1400000
G_END = 0x1340000
CH = S * 16
EPS = 1e-5

def f32(x):
    return "0x%08x" % struct.unpack("<I", struct.pack("<f", x))[0]

def srd(k, d, lo, hi, size):
    k(f"s_mov_b32 s{d}, s{lo}")
    k(f"s_and_b32 s{d+1}, s{hi}, 0xffff")
    k(f"s_mov_b32 s{d+2}, {size:#x}")
    k(f"s_mov_b32 s{d+3}, 0x00020000")

def rowstat_math(k, s_, q_, nm, rs, t, double):
    k(f"v_mul_f32 v{nm}, {f32(-1.0 / D)}, v{s_}")
    k(f"v_mul_f32 v{q_}, {f32(1.0 / D)}, v{q_}")
    k(f"v_fma_f32 v{q_}, -v{nm}, v{nm}, v{q_}")
    k(f"v_max_f32 v{q_}, 0, v{q_}")
    k(f"v_add_f32 v{t}, {f32(EPS)}, v{q_}")
    k(f"v_rsq_f32 v{rs}, v{t}")
    if double:
        k(f"v_mul_f32 v{t}, v{rs}, v{rs}")
        k(f"v_mul_f32 v{t}, v{t}, v{q_}")
        k(f"v_add_f32 v{t}, {f32(EPS)}, v{t}")
        k(f"v_rsq_f32 v{t}, v{t}")
        k(f"v_mul_f32 v{rs}, v{rs}, v{t}")

def lngemm(kind):
    k = K(kind)
    qkv = kind == "qkv"
    NB = 1920 if qkv else F
    BROW = NB * 2
    NS = 4; SLOT = 32768; NST = 10
    SB = NS * SLOT
    SL = SB + 2048
    sA, sB, sW, sBi = 4, 8, 12, 16
    s_mb, s_nb, s_w = 20, 21, 22
    s_wm, s_wn = 23, 24
    s_offA, s_offB, s_m0, s_it, s_delta, s_t0, s_t1, s_slot = 25, 26, 27, 28, 29, 30, 31, 32
    s_ones = 33
    s_wid = 35
    v_lane, v_t, v_h = 1, 2, 3
    vAd = [4, 5, 6, 7]; vBd = [8, 9, 10, 11]
    vBr = [12, 13]
    v_b1 = 17
    vt = [18, 19, 20, 21, 22, 23]
    vAr = [24, 25, 26, 27]
    FA = [[32 + 16 * i, 36 + 16 * i] for i in range(4)]
    FB = [[40 + 16 * i, 44 + 16 * i] for i in range(4)]
    ACC = 96
    def acc(mt, nt): return ACC + (mt * 2 + nt) * 16
    EP = 160
    kidx = 0 if qkv else 3

    k.stamp(0); k.stamp(1, True)
    k(f"s_cmp_ge_u32 s2, {256 if qkv else 224}"); k(f"s_cbranch_scc1 {k.L('end')}")
    if qkv:
        k("s_load_dwordx4 s[36:39], s[0:1], 0")
        k("s_load_dwordx4 s[40:43], s[0:1], 72")
        WSL = 42
    else:
        k("s_load_dwordx2 s[36:37], s[0:1], 32")
        k("s_load_dwordx2 s[40:41], s[0:1], 80")
        WSL = 40
    k(f"s_and_b32 s{s_t0}, s2, 7"); k(f"s_lshr_b32 s{s_t1}, s2, 3")
    if qkv:
        k(f"s_lshr_b32 s{s_mb}, s{s_t0}, 1"); k(f"s_lshl_b32 s{s_mb}, s{s_mb}, 2")
        k(f"s_and_b32 s{s_nb}, s{s_t1}, 3"); k(f"s_add_u32 s{s_mb}, s{s_mb}, s{s_nb}")
        k(f"s_and_b32 s{s_nb}, s{s_t0}, 1"); k(f"s_lshl_b32 s{s_nb}, s{s_nb}, 3")
        k(f"s_lshr_b32 s{s_t1}, s{s_t1}, 2"); k(f"s_add_u32 s{s_nb}, s{s_nb}, s{s_t1}")
    else:
        k(f"s_lshl_b32 s{s_mb}, s{s_t0}, 1"); k(f"s_and_b32 s{s_nb}, s{s_t1}, 1"); k(f"s_add_u32 s{s_mb}, s{s_mb}, s{s_nb}")
        k(f"s_lshr_b32 s{s_nb}, s{s_t1}, 1")
    k(f"v_lshrrev_b32 v{vt[0]}, 6, v0")
    k(f"v_and_b32 v{v_lane}, 63, v0")
    k(f"v_readfirstlane_b32 s{s_wid}, v{vt[0]}")
    k(f"v_and_b32 v{v_t}, 31, v0")
    k(f"v_bfe_u32 v{v_h}, v0, 5, 1")
    k(f"s_and_b32 s{s_w}, s{s_wid}, 3")
    k(f"s_cmp_lt_u32 s{s_wid}, 4")
    k(f"s_cbranch_scc1 {k.L('compute')}")
    if qkv:
        k(f"s_cmp_ge_u32 s{s_nb}, 15"); k(f"s_cbranch_scc1 {k.L('auxl')}")
        k(f"v_lshrrev_b32 v{vt[0]}, 3, v{v_lane}")
        k(f"v_and_b32 v{vt[1]}, 7, v{v_lane}")
        k(f"v_lshrrev_b32 v{vt[2]}, 1, v{vt[0]}")
        k(f"v_xor_b32 v{vt[2]}, v{vt[2]}, v{vt[1]}")
        k(f"v_xor_b32 v{vt[3]}, 4, v{vt[2]}")
        k(f"s_lshl_b32 s{s_t0}, s{s_mb}, 7"); k(f"s_lshl_b32 s{s_t1}, s{s_w}, 5"); k(f"s_add_u32 s{s_t0}, s{s_t0}, s{s_t1}")
        k(f"v_add_u32 v{vt[0]}, s{s_t0}, v{vt[0]}")
        k(f"v_mul_u32_u24 v{vt[0]}, 1280, v{vt[0]}")
        for ii in range(4):
            k(f"v_lshl_add_u32 v{vAd[ii]}, v{vt[2 + (ii & 1)]}, 4, v{vt[0]}")
            if ii: k(f"v_add_u32 v{vAd[ii]}, {ii * (8 * 1280 - 1024)}, v{vAd[ii]}")
        stepA = 128
    else:
        k(f"s_lshl_b32 s{s_t0}, s{s_mb}, 11")
        k(f"s_mul_i32 s{s_t1}, s{s_w}, {2 * CH}")
        k(f"s_add_u32 s{s_t0}, s{s_t0}, s{s_t1}")
        k(f"s_add_u32 s{s_t0}, s{s_t0}, {H_OFF}")
        k(f"v_lshl_add_u32 v{vAd[0]}, v{v_lane}, 4, s{s_t0}")
        k(f"v_mov_b32 v{vAd[1]}, v{vAd[0]}")
        k(f"v_add_u32 v{vAd[2]}, {CH - 2048}, v{vAd[0]}")
        k(f"v_add_u32 v{vAd[3]}, {CH - 2048}, v{vAd[0]}")
        stepA = 8 * CH
    k(f"v_lshrrev_b32 v{vt[0]}, 4, v{v_lane}")
    k(f"v_and_b32 v{vt[1]}, 15, v{v_lane}")
    k(f"v_lshlrev_b32 v{vt[2]}, 2, v{vt[0]}")
    k(f"v_xor_b32 v{vt[1]}, v{vt[1]}, v{vt[2]}")
    k(f"s_lshl_b32 s{s_t0}, s{s_w}, 4")
    k(f"v_add_u32 v{vt[0]}, s{s_t0}, v{vt[0]}")
    k(f"v_mul_u32_u24 v{vt[0]}, {BROW}, v{vt[0]}")
    k(f"v_lshl_add_u32 v{vt[0]}, v{vt[1]}, 4, v{vt[0]}")
    k(f"s_lshl_b32 s{s_t0}, s{s_nb}, 8")
    k(f"v_add_u32 v{vBd[0]}, s{s_t0}, v{vt[0]}")
    for ii in range(1, 4):
        k(f"v_add_u32 v{vBd[ii]}, {ii * (4 * BROW - 1024)}, v{vBd[0]}")
    stepB = 64 * BROW
    k(f"s_mov_b32 s{s_offA}, 0"); k(f"s_mov_b32 s{s_offB}, 0")
    k(f"s_lshl_b32 s{s_m0}, s{s_w}, 12")
    k(f"s_mov_b32 s{s_it}, 0")
    k("s_waitcnt lgkmcnt(0)")
    if qkv:
        srd(k, sA, 36, 37, S * D * 2); srd(k, sB, 38, 39, D * NB * 2)
    else:
        srd(k, sB, 36, 37, D * NB * 2); srd(k, sW, WSL, WSL + 1, WS_END)
        sA = sW
    def dma_stage():
        r = []
        r.append(f"s_mov_b32 m0, s{s_m0}")
        for ii in range(4):
            r.append(f"buffer_load_dwordx4 v{vAd[ii]}, s[{sA}:{sA+3}], s{s_offA} offen offset:{ii*1024} lds")
        r.append(f"s_add_u32 m0, s{s_m0}, 16384")
        for ii in range(4):
            r.append(f"buffer_load_dwordx4 v{vBd[ii]}, s[{sB}:{sB+3}], s{s_offB} offen offset:{ii*1024} lds")
        r.append(f"s_add_u32 s{s_offA}, s{s_offA}, {stepA}")
        r.append(f"s_add_u32 s{s_offB}, s{s_offB}, {stepB}")
        r.append(f"s_add_u32 s{s_m0}, s{s_m0}, {SLOT}")
        r.append(f"s_and_b32 s{s_m0}, s{s_m0}, {NS * SLOT - 1}")
        return r
    def lstep(n=8, dma=True):
        if dma:
            for l in dma_stage(): k(l)
        k(f"s_waitcnt vmcnt({n})")
        k("s_barrier")
    def lloop(tag, n):
        k(f"s_mov_b32 s{s_it}, 0")
        k.label(k.L("lloop" + tag))
        lstep()
        k(f"s_add_u32 s{s_it}, s{s_it}, 1")
        k(f"s_cmp_lt_u32 s{s_it}, {n}")
        k(f"s_cbranch_scc1 {k.L('lloop' + tag)}")
    XS = 32
    v_tag = 16
    RG_OFF = ST_OFF; CG_OFF = ST_OFF + 32768
    def slice_addr_rows():
        k(f"v_lshrrev_b32 v{vt[4]}, 4, v{v_lane}")
        k(f"v_and_b32 v{vt[5]}, 15, v{v_lane}")
        k(f"v_mul_u32_u24 v{vt[4]}, 1280, v{vt[4]}")
        k(f"v_lshl_add_u32 v{vt[4]}, v{vt[5]}, 4, v{vt[4]}")
        k(f"s_lshl_b32 s{s_t0}, s{s_mb}, 5"); k(f"s_lshl_b32 s{s_t1}, s{s_nb}, 1"); k(f"s_add_u32 s{s_t0}, s{s_t0}, s{s_t1}")
        k(f"s_add_u32 s{s_delta}, s{s_t0}, s{s_w}"); k(f"s_mul_i32 s{s_t0}, s{s_delta}, {4 * 1280}")
    def slice_load_rows():
        for i in range(5):
            k(f"buffer_load_dwordx4 {vr(XS + 4*i, 4)}, v{vt[4]}, s[{sA}:{sA+3}], s{s_t0} offen offset:{256 * i}")
    def tag_load():
        k(f"v_mov_b32 v15, 0")
        k(f"buffer_load_dword v{v_tag}, v15, s[{sBi}:{sBi+3}], 0 offen sc1")
    def tag_wait(tag):
        k(f"s_mov_b32 s{s_it}, 0")
        k.label(k.L("tw" + tag))
        k(f"v_cmp_eq_u32 vcc, 0, v{v_tag}")
        k(f"s_cbranch_vccz {k.L('tr' + tag)}")
        k("s_sleep 2")
        k(f"buffer_load_dword v{v_tag}, v15, s[{sBi}:{sBi+3}], 0 offen sc1")
        k(f"s_add_u32 s{s_it}, s{s_it}, 1")
        k("s_waitcnt vmcnt(0)")
        k(f"s_cmp_lt_u32 s{s_it}, 0x4000")
        k(f"s_cbranch_scc1 {k.L('tw' + tag)}")
        k.label(k.L("tr" + tag))
    def slice_rows(part):
        if part == 0:
            k("v_mov_b32 v56, 0"); k("v_mov_b32 v57, 0"); k("v_mov_b32 v58, 0"); k("v_mov_b32 v59, 0")
        for r in (range(13) if part == 0 else range(13, 20)):
            k(f"v_lshlrev_b32 v52, 16, v{XS + r}")
            k(f"v_and_b32 v53, 0xffff0000, v{XS + r}")
            k("v_add_f32 v56, v56, v52"); k("v_fmac_f32 v57, v52, v52")
            k("v_add_f32 v58, v58, v53"); k("v_fmac_f32 v59, v53, v53")
        if part == 0: return
        k("v_add_f32 v56, v56, v58"); k("v_add_f32 v57, v57, v59")
        for sh in (8, 4, 2, 1):
            k(f"v_add_f32_dpp v56, v56, v56 row_ror:{sh} row_mask:0xf bank_mask:0xf")
            k(f"v_add_f32_dpp v57, v57, v57 row_ror:{sh} row_mask:0xf bank_mask:0xf")
        rowstat_math(k, 56, 57, 60, 62, 52, False)
        k(f"v_mov_b32 v61, v{v_tag}"); k(f"v_mov_b32 v63, v{v_tag}")
        k(f"s_lshl_b32 s{s_t0}, s{s_delta}, 6"); k(f"s_add_u32 s{s_t0}, s{s_t0}, {RG_OFF}")
        k("s_mov_b32 exec_lo, 0x00010001"); k("s_mov_b32 exec_hi, 0x00010001")
        k(f"buffer_store_dwordx4 v[60:63], v{v_lane}, s[{sW}:{sW+3}], s{s_t0} offen sc1")
        k("s_mov_b64 exec, -1")
    def slice_cols(part):
        if part == 0:
            for r in range(4):
                k(f"v_lshlrev_b32 v{56 + 2*r}, 16, v{XS + r}"); k(f"v_and_b32 v{57 + 2*r}, 0xffff0000, v{XS + r}")
            for i in range(1, 5):
                for r in range(4):
                    k(f"v_lshlrev_b32 v52, 16, v{XS + 4*i + r}"); k(f"v_and_b32 v53, 0xffff0000, v{XS + 4*i + r}")
                    k(f"v_add_f32 v{56 + 2*r}, v{56 + 2*r}, v52"); k(f"v_add_f32 v{57 + 2*r}, v{57 + 2*r}, v53")
            return
        for r in range(4): k(f"v_permlane32_swap_b32 v{56 + r}, v{60 + r}")
        for r in range(4): k(f"v_add_f32 v{56 + r}, v{56 + r}, v{60 + r}")
        for r in range(2): k(f"v_permlane16_swap_b32 v{56 + r}, v{58 + r}")
        k("v_add_f32 v56, v56, v58"); k("v_add_f32 v58, v57, v59")
        k(f"v_mov_b32 v57, v{v_tag}"); k(f"v_mov_b32 v59, v{v_tag}")
        k(f"v_and_b32 v{vt[4]}, 48, v{v_lane}")
        k(f"v_lshl_add_u32 v{vt[4]}, v{vt[5]}, 6, v{vt[4]}")
        k(f"s_mul_i32 s{s_t0}, s{s_delta}, 15360"); k(f"s_lshl_b32 s{s_t1}, s{s_nb}, 10"); k(f"s_add_u32 s{s_t0}, s{s_t0}, s{s_t1}")
        k(f"s_add_u32 s{s_t0}, s{s_t0}, {CG_OFF}")
        k(f"buffer_store_dwordx4 v[56:59], v{vt[4]}, s[{sW}:{sW+3}], s{s_t0} offen sc1")
    def slice_part(part):
        k(f"s_cmp_ge_u32 s{s_w}, 2"); k(f"s_cbranch_scc1 {k.L('slc%d' % part)}")
        slice_rows(part)
        k(f"s_branch {k.L('sld%d' % part)}")
        k.label(k.L("slc%d" % part))
        slice_cols(part)
        k.label(k.L("sld%d" % part))
    k.stamp(2)
    for l in dma_stage(): k(l)
    if qkv:
        for l in dma_stage(): k(l)
        k(f"s_cmp_ge_u32 s{s_w}, 2"); k(f"s_cbranch_scc1 {k.L('slc')}")
        slice_addr_rows(); slice_load_rows()
        k(f"s_branch {k.L('sll')}")
        k.label(k.L("slc"))
        k(f"v_lshrrev_b32 v{vt[4]}, 4, v{v_lane}")
        k(f"v_and_b32 v{vt[5]}, 15, v{v_lane}")
        k(f"v_mul_u32_u24 v{vt[4]}, {BROW}, v{vt[4]}")
        k(f"v_lshl_add_u32 v{vt[4]}, v{vt[5]}, 4, v{vt[4]}")
        k(f"s_lshl_b32 s{s_delta}, s{s_mb}, 1"); k(f"s_add_u32 s{s_delta}, s{s_delta}, s{s_w}"); k(f"s_sub_u32 s{s_delta}, s{s_delta}, 2")
        k(f"s_mul_i32 s{s_t0}, s{s_delta}, {20 * BROW}"); k(f"s_lshl_b32 s{s_t1}, s{s_nb}, 8"); k(f"s_add_u32 s{s_t0}, s{s_t0}, s{s_t1}")
        for i in range(5):
            k(f"buffer_load_dwordx4 {vr(XS + 4*i, 4)}, v{vt[4]}, s[{sB}:{sB+3}], s{s_t0} offen")
            k(f"s_add_u32 s{s_t0}, s{s_t0}, {4 * BROW}")
        k.label(k.L("sll"))
        srd(k, sW, WSL, WSL + 1, WS_END); srd(k, sBi, 40, 41, 256)
        lstep(13, False)
        tag_load()
        lstep(14)
        lstep(8)
        k.stamp(3)
        for l in dma_stage(): k(l)
        slice_part(0)
        lstep(8, False)
        for l in dma_stage(): k(l)
        tag_wait("a")
        slice_part(1)
        lstep(9, False)
        k.stamp(4)
        lstep(9)
        lstep(); lstep()
        for l in dma_stage(): k(l)
        k(f"s_lshl_b32 s{s_t0}, s{s_mb}, 11"); k(f"s_lshl_b32 s{s_t1}, s{s_w}, 9"); k(f"s_add_u32 s{s_t0}, s{s_t0}, s{s_t1}")
        k(f"s_add_u32 s{s_offA}, s{s_t0}, {RG_OFF}")
        k(f"v_lshlrev_b32 v{vt[0]}, 4, v{v_t}")
        k(f"v_lshrrev_b32 v{vt[1]}, 4, v{v_lane}")
        k(f"v_mul_u32_u24 v{vt[1]}, {8 * 15360}, v{vt[1]}")
        k(f"v_lshl_add_u32 v{vt[1]}, v{vt[5]}, 4, v{vt[1]}")
        k(f"s_lshl_b32 s{s_t0}, s{s_nb}, 10"); k(f"s_lshl_b32 s{s_t1}, s{s_w}, 8"); k(f"s_add_u32 s{s_t0}, s{s_t0}, s{s_t1}")
        k(f"s_add_u32 s{s_offB}, s{s_t0}, {CG_OFF}")
        def gather():
            k(f"buffer_load_dwordx4 v[64:67], v{vt[0]}, s[{sW}:{sW+3}], s{s_offA} offen sc1")
            k(f"s_mov_b32 s{s_t0}, s{s_offB}")
            for i in range(8):
                k(f"buffer_load_dwordx4 {vr(32 + 4*i, 4)}, v{vt[1]}, s[{sW}:{sW+3}], s{s_t0} offen sc1")
                k(f"s_add_u32 s{s_t0}, s{s_t0}, 15360")
        gather()
        lstep(17, False)
        lstep(9, False)
        k.stamp(5)
        k(f"s_mov_b32 s{s_it}, 0")
        k.label(k.L("poll"))
        k("s_waitcnt vmcnt(0)")
        k(f"v_and_b32 v68, v65, v67"); k(f"v_or_b32 v69, v65, v67")
        for i in range(16):
            k(f"v_and_b32 v68, v68, v{33 + 2*i}"); k(f"v_or_b32 v69, v69, v{33 + 2*i}")
        k(f"v_xor_b32 v68, v68, v{v_tag}"); k(f"v_xor_b32 v69, v69, v{v_tag}"); k("v_or_b32 v68, v68, v69")
        k(f"v_cmp_ne_u32 vcc, 0, v68")
        k(f"s_cbranch_vccz {k.L('ready')}")
        k("s_sleep 2")
        gather()
        k(f"s_add_u32 s{s_it}, s{s_it}, 1")
        k(f"s_cmp_lt_u32 s{s_it}, 0x2000")
        k(f"s_cbranch_scc1 {k.L('poll')}")
        k("s_waitcnt vmcnt(0)")
        k.label(k.L("ready"))
        k.stamp(6)
        k("v_add_f32 v33, v34, v38")
        for i in range(1, 8):
            k(f"v_add_f32 v32, v32, v{32 + 4*i}")
            if i > 1: k(f"v_add_f32 v33, v33, v{34 + 4*i}")
        k(f"s_cmp_lt_u32 s{s_nb}, 5")
        k(f"s_cselect_b32 s{s_t0}, {f32(math.log2(math.e) / math.sqrt(DH))}, 1.0")
        k(f"v_mul_f32 v65, s{s_t0}, v66")
        k(f"s_lshl_b32 s{s_t1}, s{s_w}, 7"); k(f"s_add_u32 s{s_t1}, s{s_t1}, {SB}")
        k(f"v_lshl_add_u32 v{vt[0]}, v{v_t}, 2, s{s_t1}")
        k(f"ds_write2_b32 v{vt[0]}, v64, v65 offset0:0 offset1:128")
        for sw in ("v_permlane32_swap_b32", "v_permlane16_swap_b32"):
            k("v_mov_b32 v34, v32"); k("v_mov_b32 v35, v33")
            k(f"{sw} v32, v34"); k(f"{sw} v33, v35")
            k("v_add_f32 v32, v32, v34"); k("v_add_f32 v33, v33, v35")
        k(f"v_lshl_add_u32 v{vt[1]}, v{vt[5]}, 3, s{s_t1}")
        k(f"ds_write_b64 v{vt[1]}, v[32:33] offset:1024")
        k("s_waitcnt lgkmcnt(0)")
        k("s_barrier")
    else:
        lloop("", 8)
        for l in dma_stage(): k(l)
        PS = 32
        k(f"s_lshl_b32 s{s_t0}, s{s_mb}, 7"); k(f"s_lshl_b32 s{s_t1}, s{s_w}, 5"); k(f"s_add_u32 s{s_t0}, s{s_t0}, s{s_t1}")
        k(f"v_add_lshl_u32 v{vt[2]}, v{v_t}, s{s_t0}, 3")
        k(f"v_mul_u32_u24 v{vt[1]}, {5 * 16384}, v{v_h}")
        k(f"v_add_u32 v{vt[2]}, v{vt[2]}, v{vt[1]}")
        for i in range(5):
            k(f"s_mov_b32 s{s_t0}, {HS_OFF + i * 16384}")
            k(f"buffer_load_dwordx2 {vr(PS + 2*i, 2)}, v{vt[2]}, s[{sW}:{sW+3}], s{s_t0} offen")
        k(f"s_lshl_b32 s{s_t0}, s{s_nb}, 10"); k(f"s_lshl_b32 s{s_t1}, s{s_w}, 8"); k(f"s_add_u32 s{s_t0}, s{s_t0}, s{s_t1}")
        k(f"s_add_u32 s{s_t0}, s{s_t0}, {C1_OFF}")
        k(f"s_add_u32 m0, s{s_t1}, {SB + 1024}")
        k(f"v_lshlrev_b32 v{vt[3]}, 2, v{v_lane}")
        k(f"buffer_load_dword v{vt[3]}, s[{sW}:{sW+3}], s{s_t0} offen lds")
        lstep(14, False)
        lstep(6, False)
        k("s_waitcnt vmcnt(0)")
        for i in range(1, 5):
            k(f"v_add_f32 v{PS}, v{PS}, v{PS + 2*i}"); k(f"v_add_f32 v{PS+1}, v{PS+1}, v{PS + 2*i + 1}")
        k(f"v_mov_b32 v{PS+2}, v{PS}"); k(f"v_mov_b32 v{PS+3}, v{PS+1}")
        k(f"v_permlane32_swap_b32 v{PS}, v{PS+2}"); k(f"v_permlane32_swap_b32 v{PS+1}, v{PS+3}")
        k(f"v_add_f32 v{PS}, v{PS}, v{PS+2}"); k(f"v_add_f32 v{PS+1}, v{PS+1}, v{PS+3}")
        rowstat_math(k, PS, PS + 1, 44, 45, PS + 2, True)
        k(f"s_lshl_b32 s{s_t1}, s{s_w}, 7"); k(f"s_add_u32 s{s_t1}, s{s_t1}, {SB}")
        k(f"v_lshl_add_u32 v{vt[3]}, v{v_t}, 2, s{s_t1}")
        k(f"ds_write_b32 v{vt[3]}, v44")
        k(f"ds_write_b32 v{vt[3]}, v45 offset:512")
        k("s_waitcnt lgkmcnt(0)")
        k("s_barrier")
    if not qkv: k.stamp(3); k.stamp(4); k.stamp(5); k.stamp(6)
    k.dump(kidx, 9, s_wid, WSL)
    k("s_endpgm")
    k.label(k.L("compute"))
    if qkv:
        k(f"s_or_b32 s{s_t0}, s2, s{s_w}")
        k(f"s_cbranch_scc1 {k.L('notag')}")
        k("s_memrealtime s[44:45]")
        k("s_waitcnt lgkmcnt(0)")
        srd(k, sBi, 40, 41, 256)
        k("s_mul_i32 s44, s44, 0x9e3779b1"); k("s_or_b32 s44, s44, 1")
        k(f"v_mov_b32 v{vt[0]}, 0"); k(f"v_mov_b32 v{vt[1]}, s44")
        k("s_mov_b64 exec, 1")
        k(f"buffer_store_dword v{vt[1]}, v{vt[0]}, s[{sBi}:{sBi+3}], 0 offen sc1")
        k("s_mov_b64 exec, -1")
        k.label(k.L("notag"))
        k(f"s_cmp_ge_u32 s{s_nb}, 15"); k(f"s_cbranch_scc1 {k.L('aux')}")
    k(f"s_lshr_b32 s{s_wm}, s{s_w}, 1"); k(f"s_and_b32 s{s_wn}, s{s_w}, 1")
    k(f"s_mov_b32 s34, {SLOT}")
    if qkv:
        k(f"v_bfe_u32 v{vt[0]}, v{v_t}, 1, 3")
        k(f"v_xor_b32 v{vt[0]}, v{vt[0]}, v{v_h}")
        k(f"s_lshl_b32 s{s_t0}, s{s_wm}, 13")
        k(f"v_lshl_add_u32 v{vt[1]}, v{v_t}, 7, s{s_t0}")
        for ks in range(4):
            k(f"v_xor_b32 v{vt[2]}, {2*ks}, v{vt[0]}")
            k(f"v_lshl_add_u32 v{vAr[ks]}, v{vt[2]}, 4, v{vt[1]}")
        def a_read(dst, ks, mt): return f"ds_read_b128 {vr(dst,4)}, v{vAr[ks]} offset:{mt*4096}"
        def a_upd(ks): return [vAr[ks]]
    else:
        k(f"s_lshl_b32 s{s_t0}, s{s_wm}, 10")
        k(f"v_lshl_add_u32 v{vt[0]}, v{v_t}, 4, s{s_t0}")
        k(f"v_lshl_add_u32 v{vAr[0]}, v{v_h}, 11, v{vt[0]}")
        def a_read(dst, ks, mt): return f"ds_read_b128 {vr(dst,4)}, v{vAr[0]} offset:{ks*4096 + mt*512}"
        def a_upd(ks): return [vAr[0]] if ks == 0 else []
    k(f"v_bfe_u32 v{vt[0]}, v{v_lane}, 2, 2")
    k(f"v_lshl_add_u32 v{vt[1]}, v{v_h}, 3, v{vt[0]}")
    k(f"v_lshlrev_b32 v{vt[1]}, 8, v{vt[1]}")
    k(f"v_bfe_u32 v{vt[2]}, v{v_lane}, 4, 1")
    k(f"v_lshl_add_u32 v{vt[1]}, v{vt[2]}, 5, v{vt[1]}")
    k(f"v_and_b32 v{vt[2]}, 3, v{v_lane}")
    k(f"v_lshl_add_u32 v{vt[1]}, v{vt[2]}, 3, v{vt[1]}")
    k(f"v_add_u32 v{vt[1]}, 16384, v{vt[1]}")
    k(f"s_lshl_b32 s{s_t0}, s{s_wn}, 1")
    k(f"v_xor_b32 v{vt[2]}, s{s_t0}, v{vt[0]}")
    k(f"v_lshl_add_u32 v{vBr[0]}, v{vt[2]}, 6, v{vt[1]}")
    k(f"v_xor_b32 v{vBr[1]}, 64, v{vBr[0]}")
    def b_read(dst, ks, nt, e): return f"ds_read_b64_tr_b16 {vr(dst + 2*e, 2)}, v{vBr[nt]} offset:{ks*4096 + e*1024}"
    for r in range(64): k(f"v_mov_b32 v{ACC + r}, 0")
    k(f"s_mov_b32 s{s_it}, 0"); k(f"s_mov_b32 s{s_slot}, 0")
    k("s_waitcnt lgkmcnt(0)")
    srd(k, sW, WSL, WSL + 1, WS_END)

    def reads(ks):
        return [a_read(FA[ks][0], ks, 0), b_read(FB[ks][0], ks, 0, 0), b_read(FB[ks][0], ks, 0, 1),
                b_read(FB[ks][1], ks, 1, 0), b_read(FB[ks][1], ks, 1, 1), a_read(FA[ks][1], ks, 1)]
    k.stamp(2)
    k("s_waitcnt lgkmcnt(0)")
    k("s_barrier")
    k.stamp(3)
    if K.prof: k("s_waitcnt lgkmcnt(0)")
    for l in reads(0) + reads(1): k(l)

    def mainloop(tag, vorient):
        k.label(k.L("loop" + tag))
        for ks in range(4):
            mf = []
            for mt in range(2):
                for nt in range(2):
                    a, b = FA[ks][mt], FB[ks][nt]
                    s0, s1 = (a, b) if vorient else (b, a)
                    mf.append(f"v_mfma_f32_32x32x16_bf16 {vr(acc(mt,nt),16)}, {vr(s0,4)}, {vr(s1,4)}, {vr(acc(mt,nt),16)}")
            pre = []
            if ks == 2:
                k("s_barrier")
                pre += [f"s_add_u32 s{s_slot}, s{s_slot}, 1", f"s_and_b32 s{s_slot}, s{s_slot}, {NS - 1}",
                        f"s_cselect_b32 s{s_delta}, s34, {(-(NS - 1) * SLOT) & 0xffffffff:#x}"]
                pre += [f"v_add_u32 v{a}, s{s_delta}, v{a}" for a in vBr]
            nk = (ks + 2) % 4
            if ks >= 2:
                pre += [f"v_add_u32 v{a}, s{s_delta}, v{a}" for a in a_upd(nk)]
            post = []
            if ks == 3:
                post = [f"v_add_u32 v{a}, s{s_delta}, v{a}" for a in a_upd(2) + a_upd(3)]
                post += [f"s_add_u32 s{s_it}, s{s_it}, 1", f"s_cmp_lt_u32 s{s_it}, {NST}"]
            rd = reads(nk)
            k("s_waitcnt lgkmcnt(6)")
            seq = [mf[0]] + pre + rd[0:2] + [mf[1]] + rd[2:4] + [mf[2]] + rd[4:6] + post + [mf[3]]
            for l in seq: k(l)
        k(f"s_cbranch_scc1 {k.L('loop' + tag)}")
        k.stamp(4)

    def epi_nm():
        MR = [28, 30]
        CS = EP; B1 = EP + 32
        k(f"s_lshl_b32 s{s_t0}, s{s_wm}, 8"); k(f"s_add_u32 s{s_t0}, s{s_t0}, {SB}")
        k(f"v_lshl_add_u32 v{vt[4]}, v{v_t}, 2, s{s_t0}")
        for mt in range(2):
            k(f"ds_read2_b32 {vr(MR[mt],2)}, v{vt[4]} offset0:{mt*32} offset1:{128 + mt*32}")
        k(f"s_lshl_b32 s{s_t0}, s{s_wn}, 8"); k(f"s_add_u32 s{s_t0}, s{s_t0}, {SB}")
        k(f"v_lshl_add_u32 v{vt[0]}, v{v_h}, 4, s{s_t0}")
        for nt in range(2):
            for rq in range(4):
                k(f"ds_read_b128 {vr(CS + nt*16 + rq*4, 4)}, v{vt[0]} offset:{1024 + nt*128 + rq*32}")
            if not qkv:
                for rq in range(4):
                    k(f"ds_read_b128 {vr(B1 + nt*16 + rq*4, 4)}, v{vt[0]} offset:{1536 + nt*128 + rq*32}")
        OFF = QK_OFF if qkv else G_OFF
        k(f"s_lshl_b32 s{s_t0}, s{s_nb}, 4"); k(f"s_lshl_b32 s{s_t1}, s{s_wn}, 3"); k(f"s_add_u32 s{s_t0}, s{s_t0}, s{s_t1}")
        k(f"v_add_lshl_u32 v{vt[2]}, v{v_h}, s{s_t0}, 15")
        k(f"s_lshl_b32 s{s_t0}, s{s_mb}, 7"); k(f"s_lshl_b32 s{s_t1}, s{s_wm}, 6"); k(f"s_add_u32 s{s_t0}, s{s_t0}, s{s_t1}")
        k(f"v_add_u32 v{vt[3]}, s{s_t0}, v{v_t}")
        k(f"v_lshl_add_u32 v{vt[2]}, v{vt[3]}, 4, v{vt[2]}")
        so = 46
        for c in range(4): k(f"s_mov_b32 s{so + c}, {OFF + 2*c*CH}")
        if not qkv:
            C0 = -2.0 * math.log2(math.e) * math.sqrt(2.0 / math.pi)
            k(f"s_mov_b32 s44, {f32(C0 * 0.044715)}"); k(f"s_mov_b32 s45, {f32(C0 * 0.044715)}")
            k(f"v_mov_b32 v{vt[4]}, {f32(C0)}"); k(f"v_mov_b32 v{vt[5]}, {f32(C0)}")
        k("s_waitcnt lgkmcnt(0)")
        T = EP + 64
        n_st = 0
        for nt in range(2):
            for mt in range(2):
                a = acc(mt, nt); mr = MR[mt]
                for p in range(8):
                    x = vr(a + 2*p, 2)
                    k(f"v_pk_fma_f32 {x}, {vr(CS + nt*16 + 2*p, 2)}, {vr(mr,2)}, {x} op_sel_hi:[1,0,1]")
                for p in range(8):
                    x = vr(a + 2*p, 2)
                    if qkv:
                        k(f"v_pk_mul_f32 {x}, {x}, {vr(mr,2)} op_sel:[0,1] op_sel_hi:[1,1]")
                    else:
                        k(f"v_pk_fma_f32 {x}, {x}, {vr(mr,2)}, {vr(B1 + nt*16 + 2*p, 2)} op_sel:[0,1,0] op_sel_hi:[1,1,1]")
                if not qkv:
                    for p in range(8):
                        x = vr(a + 2*p, 2); t = vr(T + 2*p, 2)
                        k(f"v_pk_mul_f32 {t}, {x}, {x}")
                    for p in range(8):
                        t = vr(T + 2*p, 2)
                        k(f"v_pk_fma_f32 {t}, {t}, s[44:45], {vr(vt[4],2)}")
                    for p in range(8):
                        x = vr(a + 2*p, 2); t = vr(T + 2*p, 2)
                        k(f"v_pk_mul_f32 {t}, {t}, {x}")
                    for r in range(16): k(f"v_exp_f32 v{T + r}, v{T + r}")
                    for p in range(8):
                        t = vr(T + 2*p, 2)
                        k(f"v_pk_add_f32 {t}, {t}, 1.0 op_sel_hi:[1,0]")
                    for r in range(16): k(f"v_rcp_f32 v{T + r}, v{T + r}")
                    for p in range(8):
                        x = vr(a + 2*p, 2); t = vr(T + 2*p, 2)
                        k(f"v_pk_mul_f32 {x}, {x}, {t}")
                Pk = T + 16 + (n_st % 2) * 8
                for p in range(8):
                    k(f"v_cvt_pk_bf16_f32 v{Pk + p}, v{a + 2*p}, v{a + 2*p + 1}")
                for pq in range(2):
                    b = Pk + 4*pq
                    k(f"v_permlane32_swap_b32 v{b}, v{b+2}")
                    k(f"v_permlane32_swap_b32 v{b+1}, v{b+3}")
                for pq in range(2):
                    b = Pk + 4*pq
                    k(f"buffer_store_dwordx4 {vr(b,4)}, v{vt[2]}, s[{sW}:{sW+3}], s{so + nt*2 + pq} offen offset:{mt*512}")
                n_st += 1

    def epi_v():
        NM = EP; RS = EP + 32; CSV = [28, 30]
        k(f"s_lshl_b32 s{s_t0}, s{s_wm}, 8"); k(f"s_add_u32 s{s_t0}, s{s_t0}, {SB}")
        k(f"v_lshl_add_u32 v{vt[0]}, v{v_h}, 4, s{s_t0}")
        k(f"s_lshl_b32 s{s_t0}, s{s_wn}, 8"); k(f"s_add_u32 s{s_t0}, s{s_t0}, {SB}")
        k(f"v_lshl_add_u32 v{vt[1]}, v{v_t}, 2, s{s_t0}")
        for nt in range(2):
            k(f"ds_read_b32 v{CSV[nt]}, v{vt[1]} offset:{1024 + nt*128}")
        for mt in range(2):
            for rq in range(4):
                k(f"ds_read_b128 {vr(NM + mt*16 + rq*4, 4)}, v{vt[0]} offset:{mt*128 + rq*32}")
                k(f"ds_read_b128 {vr(RS + mt*16 + rq*4, 4)}, v{vt[0]} offset:{512 + mt*128 + rq*32}")
        k(f"s_lshl_b32 s{s_t0}, s{s_mb}, 1"); k(f"s_add_u32 s{s_t0}, s{s_t0}, s{s_wm}"); k(f"s_mul_i32 s{s_t0}, s{s_t0}, 2560")
        k(f"s_lshl_b32 s{s_t1}, s{s_nb}, 7"); k(f"s_add_u32 s{s_t0}, s{s_t0}, s{s_t1}"); k(f"s_sub_u32 s{s_t0}, s{s_t0}, 1280")
        k(f"s_lshl_b32 s{s_t1}, s{s_wn}, 6"); k(f"s_add_u32 s{s_t0}, s{s_t0}, s{s_t1}")
        k(f"v_add_lshl_u32 v{vt[2]}, v{v_t}, s{s_t0}, 5")
        k(f"v_lshl_add_u32 v{vt[2]}, v{v_h}, 4, v{vt[2]}")
        so = 46
        for c in range(4): k(f"s_mov_b32 s{so + c}, {V_OFF + c * 640 * 32}")
        k("s_waitcnt lgkmcnt(0)")
        T = EP + 64; n_st = 0
        for mt in range(2):
            for nt in range(2):
                a = acc(mt, nt)
                for p in range(8):
                    x = vr(a + 2*p, 2)
                    k(f"v_pk_fma_f32 {x}, {vr(NM + mt*16 + 2*p, 2)}, {vr(CSV[nt],2)}, {x} op_sel_hi:[1,0,1]")
                for p in range(8):
                    x = vr(a + 2*p, 2)
                    k(f"v_pk_mul_f32 {x}, {x}, {vr(RS + mt*16 + 2*p, 2)}")
                Pk = T + (n_st % 2) * 8
                for p in range(8):
                    k(f"v_cvt_pk_bf16_f32 v{Pk + p}, v{a + 2*p}, v{a + 2*p + 1}")
                for jj in range(2):
                    k(f"buffer_store_dwordx4 {vr(Pk + 4*jj, 4)}, v{vt[2]}, s[{sW}:{sW+3}], s{so + mt*2 + jj} offen offset:{nt*1024}")
                n_st += 1

    if qkv:
        k(f"s_cmp_ge_u32 s{s_nb}, 10")
        k(f"s_cbranch_scc1 {k.L('loopv')}")
        mainloop("q", False); k.stamp(5); epi_nm(); k.stamp(6); k.dump(0, 9, s_wid, WSL)
        k("s_endpgm")
        mainloop("v", True); k.stamp(5); epi_v(); k.stamp(6); k.dump(0, 9, s_wid, WSL)
        k("s_endpgm")
        k.label(k.L("auxl"))
        k(f"s_cmp_ge_u32 s{s_w}, 2"); k(f"s_cbranch_scc1 {k.L('aux')}")
        slice_addr_rows()
        k("s_waitcnt lgkmcnt(0)")
        srd(k, sA, 36, 37, S * D * 2); srd(k, sW, WSL, WSL + 1, WS_END); srd(k, sBi, 40, 41, 256)
        slice_load_rows()
        k("s_waitcnt vmcnt(0)")
        tag_load()
        slice_rows(0)
        k("s_waitcnt vmcnt(0)")
        tag_wait("x")
        slice_rows(1)
        k.label(k.L("aux"))
        k("s_load_dwordx4 s[44:47], s[0:1], 32")
        k(f"v_lshrrev_b32 v{vt[0]}, 4, v{v_lane}")
        k(f"v_and_b32 v{vt[1]}, 15, v{v_lane}")
        k(f"v_mul_u32_u24 v{vt[2]}, {F * 2}, v{vt[0]}")
        k(f"v_lshl_add_u32 v{vt[2]}, v{vt[1]}, 4, v{vt[2]}")
        k(f"v_lshlrev_b32 v{vt[3]}, 1, v0")
        k("s_waitcnt lgkmcnt(0)")
        srd(k, sW, WSL, WSL + 1, WS_END)
        k(f"s_cmp_ge_u32 s{s_mb}, 14"); k(f"s_cbranch_scc1 {k.L('end')}")
        srd(k, sB, 44, 45, D * F * 2); srd(k, sA, 46, 47, F * 2)
        k(f"s_mul_i32 s{s_t0}, s{s_wid}, {80 * F * 2}"); k(f"s_lshl_b32 s{s_t1}, s{s_mb}, 8"); k(f"s_add_u32 s{s_t0}, s{s_t0}, s{s_t1}")
        k(f"buffer_load_ushort v{v_b1}, v{vt[3]}, s[{sA}:{sA+3}], s{s_t1} offen")
        for i in range(20):
            k(f"buffer_load_dwordx4 {vr(40 + 4*i, 4)}, v{vt[2]}, s[{sB}:{sB+3}], s{s_t0} offen")
            k(f"s_add_u32 s{s_t0}, s{s_t0}, {4 * F * 2}")
        for r in range(8): k(f"v_mov_b32 v{24 + r}, 0")
        for i in range(20):
            k(f"s_waitcnt vmcnt({19 - i})")
            for r in range(4):
                k(f"v_lshlrev_b32 v{32 + 2*r}, 16, v{40 + 4*i + r}")
                k(f"v_and_b32 v{33 + 2*r}, 0xffff0000, v{40 + 4*i + r}")
            for r in range(4):
                k(f"v_pk_add_f32 {vr(24 + 2*r, 2)}, {vr(24 + 2*r, 2)}, {vr(32 + 2*r, 2)}")
        k(f"v_lshlrev_b32 v{vt[0]}, 5, v0")
        k(f"ds_write_b128 v{vt[0]}, v[24:27]")
        k(f"ds_write_b128 v{vt[0]}, v[28:31] offset:16")
        k("s_waitcnt lgkmcnt(0)")
        k("s_barrier")
        k(f"s_cmp_ge_u32 s{s_wid}, 2"); k(f"s_cbranch_scc1 {k.L('end')}")
        k(f"v_lshlrev_b32 v{vt[0]}, 2, v0")
        for i in range(32):
            k(f"ds_read_b32 v{40 + i}, v{vt[0]} offset:{i * 512}")
            if i % 8 == 7: k("s_waitcnt lgkmcnt(0)")
        for i in range(1, 32): k(f"v_add_f32 v40, v40, v{40 + i}")
        k(f"v_lshlrev_b32 v{v_b1}, 16, v{v_b1}")
        k(f"s_lshl_b32 s{s_t0}, s{s_mb}, 10"); k(f"s_add_u32 s{s_t0}, s{s_t0}, {C1_OFF}"); k(f"s_add_u32 s{s_t1}, s{s_t0}, 512")
        k(f"buffer_store_dword v40, v{vt[0]}, s[{sW}:{sW+3}], s{s_t0} offen")
        k(f"buffer_store_dword v{v_b1}, v{vt[0]}, s[{sW}:{sW+3}], s{s_t1} offen")
    else:
        mainloop("q", False)
        k(f"s_cmp_eq_u32 s{s_nb}, 13"); k(f"s_cselect_b32 s{s_t0}, s{s_wn}, 0")
        k(f"s_cmp_ge_u32 s{s_t0}, 1"); k(f"s_cbranch_scc1 {k.L('end')}")
        k.stamp(5); epi_nm(); k.stamp(6); k.dump(3, 9, s_wid, WSL)
    k.label(k.L("end"))
    k("s_endpgm")
    return k, EP + 64 + 32, NS * SLOT + 2048

def attn():
    k = K("attn")
    sW = 4; sP1 = 8; sP2 = 12
    s_hd, s_qb, s_w, s_qs, s_kh, s_t0, s_t1, s_it = 20, 21, 22, 23, 24, 25, 26, 27
    s_ko, s_vo, s_odd = 28, 29, 30
    s_vm = 32
    s_lo = 34
    s_c = 36
    v_lane, v_t, v_h = 1, 2, 3
    vK1, vK2, vV0, vV1 = 4, 5, 6, 7
    vt = [8, 9, 10, 11, 12, 13, 14, 15]
    vm = [16, 17]
    v_pfa, v_pfb, v_pf, v_pfc = 18, 19, 200, 202
    Q1 = [20, 24]; Q2 = [28, 30]
    NBUF = 4
    K1 = [32, 36, 40, 44]; K2 = [48, 50, 52, 54]
    VB = [56, 64, 72, 80]
    C = [88, 104]; Sx = [120, 136]; P = [152, 160]; O = [168, 184]
    NV = 203
    k.stamp(0); k.stamp(1, True)
    k("s_cmp_ge_u32 s2, 256"); k(f"s_cbranch_scc1 {k.L('end')}")
    k("s_load_dwordx2 s[40:41], s[0:1], 80")
    k("s_load_dwordx2 s[44:45], s[0:1], 16")
    k("s_load_dwordx2 s[46:47], s[0:1], 32")
    k("s_load_dwordx2 s[38:39], s[0:1], 48")
    k(f"v_lshrrev_b32 v{vt[0]}, 6, v0")
    k(f"v_and_b32 v{v_t}, 31, v0")
    k(f"v_readfirstlane_b32 s{s_w}, v{vt[0]}")
    k(f"v_bfe_u32 v{v_h}, v0, 5, 1")
    k(f"s_and_b32 s{s_hd}, s2, 7"); k(f"s_lshl_b32 s{s_hd}, s{s_hd}, 2")
    k(f"s_bfe_u32 s{s_t0}, s2, 0x20003"); k(f"s_add_u32 s{s_hd}, s{s_hd}, s{s_t0}")
    k(f"s_lshr_b32 s{s_qb}, s2, 5")
    k(f"s_and_b32 s{s_qs}, s{s_w}, 3"); k(f"s_lshr_b32 s{s_kh}, s{s_w}, 2")
    if "noprio" not in X:
        k(f"s_cmp_eq_u32 s{s_kh}, 0"); k(f"s_cbranch_scc1 {k.L('np')}")
        k("s_setprio 1")
        k.label(k.L("np"))
    k(f"s_and_b32 s{s_odd}, s{s_hd}, 1")
    k(f"s_mov_b32 s{s_lo}, -1"); k(f"s_mov_b32 s{s_lo+1}, 0")
    k(f"s_lshr_b32 s{s_t0}, s{s_hd}, 1"); k(f"s_mul_i32 s{s_t0}, s{s_t0}, 5")
    k(f"s_mul_i32 s{s_t1}, s{s_odd}, 3"); k(f"s_add_u32 s{s_t1}, s{s_t1}, s{s_t0}")
    k(f"v_add_lshl_u32 v{vK1}, v{v_h}, s{s_t1}, 15")
    k(f"v_lshl_add_u32 v{vK1}, v{v_t}, 4, v{vK1}")
    k(f"s_add_u32 s{s_t0}, s{s_t0}, 2"); k(f"s_lshl_b32 s{s_t0}, s{s_t0}, 15")
    k(f"s_lshl_b32 s{s_t1}, s{s_odd}, 3"); k(f"s_add_u32 s{s_t0}, s{s_t0}, s{s_t1}")
    k(f"v_lshl_add_u32 v{vK2}, v{v_t}, 4, s{s_t0}")
    k(f"s_lshl_b32 s{s_ko}, s{s_kh}, 14"); k(f"s_add_u32 s{s_ko}, s{s_ko}, {QK_OFF + 80 * CH}")
    k(f"s_lshl_b32 s{s_t0}, s{s_qb}, 12"); k(f"s_lshl_b32 s{s_t1}, s{s_qs}, 10"); k(f"s_add_u32 s{s_t0}, s{s_t0}, s{s_t1}")
    for qt in range(2):
        k(f"v_mov_b32 v{Q2[qt]}, 0"); k(f"v_mov_b32 v{Q2[qt]+1}, 0")
    k(f"s_mov_b32 s42, s{s_ko}")
    k("s_waitcnt lgkmcnt(0)")
    srd(k, sW, 40, 41, WS_END)
    W = f"s[{sW}:{sW+3}]"
    def kload(b):
        return [f"buffer_load_dwordx4 {vr(K1[b],4)}, v{vK1}, {W}, s{s_ko} offen",
                f"buffer_load_dwordx2 {vr(K2[b],2)}, v{vK2}, {W}, s{s_ko} offen",
                f"s_add_u32 s{s_ko}, s{s_ko}, 512"]
    def vload(b):
        return [f"s_mov_b64 exec, s[{s_vm}:{s_vm+1}]",
                f"buffer_load_dwordx4 {vr(VB[b],4)}, v{vV0}, {W}, s{s_vo} offen",
                f"buffer_load_dwordx4 {vr(VB[b]+4,4)}, v{vV1}, {W}, s{s_vo} offen",
                f"s_mov_b64 exec, -1",
                f"s_add_u32 s{s_vo}, s{s_vo}, {1280 * 32}"]
    for l in kload(0): k(l)
    for qt in range(2):
        k(f"buffer_load_dwordx4 {vr(Q1[qt],4)}, v{vK1}, {W}, s{s_t0} offen offset:{qt*512}")
    k(f"s_mov_b64 exec, s[{s_lo}:{s_lo+1}]")
    for qt in range(2):
        k(f"buffer_load_dwordx2 {vr(Q2[qt],2)}, v{vK2}, {W}, s{s_t0} offen offset:{qt*512}")
    k("s_mov_b64 exec, -1")
    for l in kload(1): k(l)
    k(f"v_and_b32 v{v_lane}, 63, v0")
    k(f"s_mov_b32 s{s_vm}, 0xfffff"); k(f"s_mov_b32 s{s_vm+1}, 0xfffff")
    k(f"v_add_u32 v{vt[0]}, 4, v{v_t}")
    k(f"v_subrev_u32 v{vt[1]}, 16, v{v_t}")
    k(f"v_cmp_gt_u32 vcc, 16, v{v_t}")
    k(f"v_cndmask_b32 v{vt[0]}, v{vt[1]}, v{vt[0]}, vcc")
    k(f"s_cmp_eq_u32 s{s_odd}, 1")
    k(f"s_cselect_b64 vcc, -1, 0")
    k(f"v_cndmask_b32 v{vt[0]}, v{v_t}, v{vt[0]}, vcc")
    k(f"s_mul_i32 s{s_t0}, s{s_hd}, 20")
    k(f"v_add_lshl_u32 v{vV0}, v{vt[0]}, s{s_t0}, 5")
    k(f"v_lshl_add_u32 v{vV0}, v{v_h}, 4, v{vV0}")
    k(f"v_add_u32 v{vV1}, {640 * 32}, v{vV0}")
    k(f"s_mul_i32 s{s_vo}, s{s_kh}, {32 * 1280 * 32}"); k(f"s_add_u32 s{s_vo}, s{s_vo}, {V_OFF}")
    k(f"s_mov_b32 s43, s{s_vo}")
    k(f"v_cmp_eq_u32 vcc, 20, v{v_t}")
    k(f"v_mov_b32 v{vt[1]}, 0x3f803f80")
    k(f"v_cndmask_b32 v{vt[1]}, 0, v{vt[1]}, vcc")
    for r in range(8): k(f"v_mov_b32 v{VB[0] + r}, v{vt[1]}")
    for l in vload(0): k(l)
    for b in range(1, NBUF):
        for r in range(8): k(f"v_mov_b32 v{VB[b] + r}, v{vt[1]}")
    for qt in range(2):
        for r in range(16): k(f"v_mov_b32 v{O[qt] + r}, 0")
    for r in range(8): k(f"v_mov_b32 v{P[1] + r}, 0")
    srd(k, sP1, 44, 45, D * D * 2); srd(k, sP2, 46, 47, D * F * 2)
    k(f"s_lshr_b32 s{s_t0}, s2, 3"); k(f"s_lshl_b32 s{s_t0}, s{s_t0}, 3"); k(f"s_add_u32 s{s_t0}, s{s_t0}, s{s_w}")
    k(f"s_mul_i32 s48, s{s_t0}, {26 * 128}"); k(f"s_mul_i32 s49, s{s_t0}, {68 * 128}")
    k(f"v_lshlrev_b32 v{vt[2]}, 8, v{v_lane}"); k(f"v_add_u32 v{vt[2]}, 124, v{vt[2]}")
    k(f"v_mov_b32 v{vt[3]}, 0x7ffffff0")
    k(f"v_cmp_gt_u32 vcc, 34, v{v_lane}")
    k(f"v_cndmask_b32 v{v_pfa}, v{vt[3]}, v{vt[2]}, vcc")
    k(f"v_cmp_gt_u32 vcc, 13, v{v_lane}")
    k(f"v_cndmask_b32 v{v_pfb}, v{vt[3]}, v{vt[2]}, vcc")
    srd(k, 16, 38, 39, D * F * 2)
    k(f"s_lshl_b32 s38, s2, 3"); k(f"s_add_u32 s38, s38, s{s_w}"); k(f"s_mul_i32 s38, s38, {10 * 128}")
    k(f"v_cmp_gt_u32 vcc, 5, v{v_lane}")
    k(f"v_cndmask_b32 v{v_pfc}, v{vt[3]}, v{vt[2]}, vcc")
    k(f"s_sub_u32 s50, s{s_qs}, s{s_kh}"); k(f"s_add_u32 s50, s50, 2"); k(f"s_add_u32 s51, s50, 2")
    def qk(qt, b, c):
        cc = "0" if c is None else vr(c, 16)
        return [f"v_mfma_f32_32x32x16_bf16 {vr(Sx[qt],16)}, {vr(K1[b],4)}, {vr(Q1[qt],4)}, {cc}",
                f"v_mfma_f32_32x32x8_bf16 {vr(Sx[qt],16)}, {vr(K2[b],2)}, {vr(Q2[qt],2)}, {vr(Sx[qt],16)}"]
    def pv(qt, b):
        return [f"v_mfma_f32_32x32x16_bf16 {vr(O[qt],16)}, {vr(VB[b],4)}, {vr(P[qt],4)}, {vr(O[qt],16)}",
                f"v_mfma_f32_32x32x16_bf16 {vr(O[qt],16)}, {vr(VB[b]+4,4)}, {vr(P[qt]+4,4)}, {vr(O[qt],16)}"]
    def rowmax(qt, dst, tmp):
        s = Sx[qt]
        k(f"v_max3_f32 v{dst}, v{s}, v{s+1}, v{s+2}")
        for r in range(3, 15, 2): k(f"v_max3_f32 v{dst}, v{dst}, v{s+r}, v{s+r+1}")
        k(f"v_max_f32 v{dst}, v{dst}, v{s+15}")
        k(f"v_mov_b32 v{tmp}, v{dst}")
        k(f"v_permlane32_swap_b32 v{dst}, v{tmp}")
        k(f"v_max_f32 v{dst}, v{dst}, v{tmp}")
    k.stamp(2)
    k("s_waitcnt vmcnt(4)")
    for qt in range(2):
        for l in qk(qt, 0, None): k(l)
    for l in kload(2) + vload(1) + kload(3) + vload(2): k(l)
    rowmax(0, vm[0], vt[0])
    k(f"v_sub_f32 v{vt[1]}, 0, v{vm[0]}")
    for r in range(16): k(f"v_mov_b32 v{C[0] + r}, v{vt[1]}")
    for l in qk(0, 0, C[0]): k(l)
    rowmax(1, vm[1], vt[0])
    k(f"v_sub_f32 v{vt[1]}, 0, v{vm[1]}")
    for r in range(16): k(f"v_mov_b32 v{C[1] + r}, v{vt[1]}")
    k(f"s_mov_b32 s{s_it}, 0")
    k.stamp(3)
    k("s_nop 1")

    def slot(qt, mf, extra):
        s = Sx[qt]; p = P[qt]
        for i in range(16):
            for l in extra.get(i, []): k(l)
            if i % 4 == 0: k(mf[i // 4])
            k(f"v_exp_f32 v{s+i}, v{s+i}")
            if i % 2 == 1 and i >= 3:
                k(f"v_cvt_pk_bf16_f32 v{p + (i-3)//2}, v{s+i-3}, v{s+i-2}")
        for l in extra.get(16, []): k(l)
        k(f"v_cvt_pk_bf16_f32 v{p+7}, v{s+14}, v{s+15}")
    k(f"s_cmp_eq_u32 s{s_kh}, 0")
    k(f"s_cselect_b32 s31, 99, {int(os.environ.get('PRI', '6'))}")
    k.label(k.L("loop"))
    for u in range(NBUF):
        b = u; bp = (u - 1) % NBUF; bn = (u + 1) % NBUF
        e1 = {0: ["s_waitcnt vmcnt(12)"]}
        slot(0, qk(1, b, C[1]) + pv(1, bp), {6: kload(b), 14: vload(bp)})
        slot(1, qk(0, bn, C[0]) + pv(0, b), e1)
    k(f"s_add_u32 s{s_it}, s{s_it}, 1")
    PRI = int(os.environ.get("PRI", "6"))
    k(f"s_cmp_lg_u32 s{s_it}, s31")
    k(f"s_cbranch_scc1 {k.L('noev')}")
    k("s_setprio 0")
    k.label(k.L("noev"))
    if "nowpf" not in X:
        k(f"s_cmp_lg_u32 s{s_it}, s50"); k(f"s_cbranch_scc1 {k.L('noe2')}")
        k(f"buffer_load_dwordx2 {vr(v_pf, 2)}, v{v_pfa}, s[{sP2}:{sP2+3}], s49 offen")
        k.label(k.L("noe2"))
        k(f"s_cmp_lg_u32 s{s_it}, s51"); k(f"s_cbranch_scc1 {k.L('noe3')}")
        k(f"buffer_load_dwordx2 {vr(v_pf, 2)}, v{v_pfb}, s[{sP1}:{sP1+3}], s48 offen")
        k(f"buffer_load_dwordx2 {vr(v_pf, 2)}, v{v_pfc}, s[16:19], s38 offen")
        k.label(k.L("noe3"))
    k(f"s_cmp_lt_u32 s{s_it}, {32 // NBUF}")
    k(f"s_cbranch_scc1 {k.L('loop')}")
    k.stamp(4)
    for l in pv(1, NBUF - 1): k(l)
    k("s_nop 7"); k("s_nop 7")
    k(f"v_add_f32 v{vt[0]}, |v{O[0]}|, |v{O[1]}|")
    for qt in range(2):
        for r in range(1, 12):
            k(f"v_add_f32 v{vt[0]}, v{vt[0]}, |v{O[qt]+r}|")
    k(f"v_add_f32 v{vt[1]}, v{O[0]+8}, v{O[1]+8}")
    k(f"s_mov_b32 s{s_t0}, {f32(2.0**100)}")
    k(f"v_cmp_nlt_f32 s[{s_c}:{s_c+1}], v{vt[0]}, s{s_t0}")
    k(f"s_mov_b32 s{s_t0}, {f32(2.0**60)}")
    k(f"v_cmp_nlt_f32 vcc, |v{vt[1]}|, s{s_t0}")
    k(f"s_andn2_b64 vcc, vcc, s[{s_lo}:{s_lo+1}]")
    k(f"s_or_b64 s[{s_c}:{s_c+1}], s[{s_c}:{s_c+1}], vcc")
    k("s_waitcnt vmcnt(0)")
    k(f"s_cmp_eq_u64 s[{s_c}:{s_c+1}], 0")
    k(f"s_cbranch_scc1 {k.L('merge')}")
    k(f"s_mov_b32 s{s_ko}, s42"); k(f"s_mov_b32 s{s_vo}, s43")
    for qt in range(2):
        for r in range(16): k(f"v_mov_b32 v{O[qt] + r}, 0")
        k(f"v_mov_b32 v{vm[qt]}, 0xff800000")
    k(f"s_mov_b32 s{s_it}, 0")
    k.label(k.L("fb"))
    for l in kload(0) + vload(0): k(l)
    k("s_waitcnt vmcnt(0)")
    for qt in range(2):
        for l in qk(qt, 0, None): k(l)
    for qt in range(2):
        rowmax(qt, vt[2], vt[0])
        k(f"v_max_f32 v{vt[2]}, v{vt[2]}, v{vm[qt]}")
        k(f"v_sub_f32 v{vt[3]}, v{vm[qt]}, v{vt[2]}")
        k(f"v_exp_f32 v{vt[3]}, v{vt[3]}")
        k(f"v_mov_b32 v{vm[qt]}, v{vt[2]}")
        for r in range(16): k(f"v_mul_f32 v{O[qt]+r}, v{O[qt]+r}, v{vt[3]}")
        for r in range(16): k(f"v_sub_f32 v{Sx[qt]+r}, v{Sx[qt]+r}, v{vt[2]}")
        for r in range(16): k(f"v_exp_f32 v{Sx[qt]+r}, v{Sx[qt]+r}")
        for r in range(8): k(f"v_cvt_pk_bf16_f32 v{P[qt]+r}, v{Sx[qt]+2*r}, v{Sx[qt]+2*r+1}")
        for l in pv(qt, 0): k(l)
    k("s_nop 7"); k("s_nop 7")
    k(f"s_add_u32 s{s_it}, s{s_it}, 1")
    k(f"s_cmp_lt_u32 s{s_it}, 32")
    k(f"s_cbranch_scc1 {k.L('fb')}")
    k.label(k.L("merge"))
    k(f"s_cmp_eq_u32 s{s_kh}, 0")
    k(f"s_cbranch_scc1 {k.L('noswap')}")
    for r in range(12): k(f"v_swap_b32 v{O[0]+r}, v{O[1]+r}")
    k(f"v_swap_b32 v{vm[0]}, v{vm[1]}")
    k.label(k.L("noswap"))
    k(f"v_mov_b32 v{O[1]+12}, v{vm[1]}")
    k(f"s_lshl_b32 s{s_t0}, s{s_w}, 12")
    k(f"v_lshl_add_u32 v{vt[0]}, v{v_lane}, 4, s{s_t0}")
    k(f"v_xor_b32 v{vt[1]}, {4 << 12}, v{vt[0]}")
    for q in range(4): k(f"ds_write_b128 v{vt[0]}, {vr(O[1] + 4*q, 4)} offset:{q*1024}")
    k("s_waitcnt lgkmcnt(0)")
    k("s_barrier")
    k.stamp(5)
    for q in range(4): k(f"ds_read_b128 {vr(Sx[0] + 4*q, 4)}, v{vt[1]} offset:{q*1024}")
    k(f"s_lshl_b32 s{s_t0}, s{s_qb}, 12"); k(f"s_lshl_b32 s{s_t1}, s{s_qs}, 10"); k(f"s_add_u32 s{s_t0}, s{s_t0}, s{s_t1}")
    k(f"s_lshl_b32 s{s_t1}, s{s_kh}, 9"); k(f"s_add_u32 s{s_t0}, s{s_t0}, s{s_t1}"); k(f"s_add_u32 s{s_t0}, s{s_t0}, {O_OFF}")
    k("s_waitcnt lgkmcnt(0)")
    mo = Sx[0] + 12
    k(f"v_max_f32 v{vt[2]}, v{vm[0]}, v{mo}")
    k(f"v_sub_f32 v{vt[3]}, v{vm[0]}, v{vt[2]}"); k(f"v_sub_f32 v{vt[4]}, v{mo}, v{vt[2]}")
    k(f"v_exp_f32 v{vt[3]}, v{vt[3]}"); k(f"v_exp_f32 v{vt[4]}, v{vt[4]}")
    for r in range(12): k(f"v_mul_f32 v{O[0]+r}, v{O[0]+r}, v{vt[3]}")
    for r in range(12): k(f"v_fmac_f32 v{O[0]+r}, v{Sx[0]+r}, v{vt[4]}")
    k(f"v_mov_b32 v{vt[5]}, v{O[0]+8}"); k(f"v_mov_b32 v{vt[6]}, v{O[0]+8}")
    k(f"v_permlane32_swap_b32 v{vt[5]}, v{vt[6]}")
    k(f"v_rcp_f32 v{vt[6]}, v{vt[6]}")
    for r in range(12): k(f"v_mul_f32 v{O[0]+r}, v{O[0]+r}, v{vt[6]}")
    for r in range(6): k(f"v_cvt_pk_bf16_f32 v{P[0]+r}, v{O[0]+2*r}, v{O[0]+2*r+1}")
    k(f"v_permlane32_swap_b32 v{P[0]}, v{P[0]+2}")
    k(f"v_permlane32_swap_b32 v{P[0]+1}, v{P[0]+3}")
    k(f"buffer_store_dwordx4 {vr(P[0],4)}, v{vK1}, {W}, s{s_t0} offen")
    k(f"s_mov_b64 exec, s[{s_lo}:{s_lo+1}]")
    k(f"buffer_store_dwordx2 {vr(P[0]+4,2)}, v{vK2}, {W}, s{s_t0} offen")
    k.stamp(6); k.dump(1, 9, s_w)
    k.label(k.L("end"))
    k("s_endpgm")
    return k, NV, 8 * 4096

def resgemm(kind):
    k = K(kind)
    op = kind == "oproj"
    KK = D if op else F
    GS = 8
    NG = (KK // 16 + GS - 1) // GS
    NKS = NG * GS
    s_rot = 29; sAA = 52 - 4
    GB = 16384
    NSLOT = 5 if op else 8
    A_OFF = O_OFF if op else G_OFF
    sB, sW, sR, sO, sBi = 4, 8, 12, 16, 44
    s_r, s_cb, s_w, s_t0, s_t1, s_offB, s_offA, s_m0, s_it, s_wid = 20, 21, 22, 23, 24, 25, 26, 27, 28, 35
    v_lane, v_t, v_h = 1, 2, 3
    vBd = [4, 5, 6, 7]; vA = 8; vBr = [9, 10]; vO = 11
    vt = [12, 13, 14, 15]
    RES = 16; BI = 32; ACC = 48
    DIST = 6; NFB = 8; FB = 80
    LA = 14; NFA = 16; FA = 112
    NV = FA + NFA * 4
    T = FA
    kidx = 2 if op else 4
    k.stamp(0); k.stamp(1, True)
    k("s_cmp_ge_u32 s2, 240"); k(f"s_cbranch_scc1 {k.L('end')}")
    if op:
        k("s_load_dwordx2 s[36:37], s[0:1], 16")
        k("s_load_dwordx2 s[38:39], s[0:1], 0")
    else:
        k("s_load_dwordx4 s[36:39], s[0:1], 48")
        k("s_load_dwordx2 s[42:43], s[0:1], 64")
    k("s_load_dwordx2 s[40:41], s[0:1], 80")
    k(f"v_lshrrev_b32 v{vt[0]}, 6, v0")
    k(f"v_and_b32 v{v_lane}, 63, v0")
    k(f"v_readfirstlane_b32 s{s_wid}, v{vt[0]}")
    k(f"s_lshr_b32 s{s_t0}, s2, 3")
    k(f"s_mul_i32 s{s_cb}, s{s_t0}, 43"); k(f"s_lshr_b32 s{s_cb}, s{s_cb}, 7")
    k(f"s_mul_i32 s{s_t1}, s{s_cb}, 3"); k(f"s_sub_u32 s{s_r}, s{s_t0}, s{s_t1}")
    k(f"s_lshl_b32 s{s_t1}, s{s_cb}, 7")
    if ("rot_" + kind) not in X:
        k(f"s_mov_b32 s{s_rot}, 0")
    elif op:
        k(f"s_lshl_b32 s{s_rot}, s{s_r}, 1"); k(f"s_add_u32 s{s_rot}, s{s_rot}, s{s_cb}")
        for _ in range(2):
            k(f"s_cmp_ge_u32 s{s_rot}, 5"); k(f"s_cselect_b32 s{s_t0}, 5, 0"); k(f"s_sub_u32 s{s_rot}, s{s_rot}, s{s_t0}")
    else:
        k(f"s_mul_i32 s{s_rot}, s{s_r}, 5"); k(f"s_mul_i32 s{s_t0}, s{s_cb}, 11"); k(f"s_lshr_b32 s{s_t0}, s{s_t0}, 3"); k(f"s_add_u32 s{s_rot}, s{s_rot}, s{s_t0}")
        k(f"s_cmp_ge_u32 s{s_rot}, 14"); k(f"s_cselect_b32 s{s_t0}, 14, 0"); k(f"s_sub_u32 s{s_rot}, s{s_rot}, s{s_t0}")
    k(f"s_and_b32 s{s_w}, s{s_wid}, 3")
    k(f"s_cmp_lt_u32 s{s_wid}, 4")
    k(f"s_cbranch_scc1 {k.L('compute')}")
    k(f"v_lshrrev_b32 v{vt[0]}, 3, v{v_lane}")
    k(f"v_and_b32 v{vt[1]}, 7, v{v_lane}")
    k(f"v_bfe_u32 v{vt[2]}, v{v_lane}, 4, 1")
    k(f"v_lshlrev_b32 v{vt[2]}, 2, v{vt[2]}")
    k(f"v_xor_b32 v{vt[1]}, v{vt[1]}, v{vt[2]}")
    k(f"v_mul_u32_u24 v{vt[0]}, 1280, v{vt[0]}")
    k(f"v_lshl_add_u32 v{vBd[0]}, v{vt[1]}, 4, v{vt[0]}")
    for ii in range(1, 4):
        k(f"v_add_u32 v{vBd[ii]}, {ii * (8 * 1280 - 1024)}, v{vBd[0]}")
    k(f"s_mul_i32 s{s_offA}, s{s_w}, {32 * 1280}"); k(f"s_add_u32 s{s_offA}, s{s_offA}, s{s_t1}")
    k(f"s_mul_i32 s{s_offB}, s{s_rot}, {128 * 1280}"); k(f"s_add_u32 s{s_offB}, s{s_offB}, s{s_offA}")
    k(f"s_lshl_b32 s{s_m0}, s{s_w}, 12")
    k(f"s_mov_b32 s{s_it}, 0")
    k("s_waitcnt lgkmcnt(0)")
    srd(k, sB, 36, 37, KK * D * 2)
    def issue():
        r = [f"s_mov_b32 m0, s{s_m0}", f"s_add_u32 s{s_m0}, s{s_m0}, {GB}"]
        for ii in range(4):
            r.append(f"buffer_load_dwordx4 v{vBd[ii]}, s[{sB}:{sB+3}], s{s_offB} offen offset:{ii*1024} lds")
        r.append(f"s_add_u32 s{s_offB}, s{s_offB}, {128 * 1280}")
        r.append(f"s_cmp_lt_u32 s{s_offB}, {NG * 128 * 1280}")
        r.append(f"s_cselect_b32 s{s_offB}, s{s_offB}, s{s_offA}")
        if not op: r.append(f"s_and_b32 s{s_m0}, s{s_m0}, {NSLOT * GB - 1}")
        return r
    k.stamp(2)
    for l in issue() + issue(): k(l)
    k.label(k.L("lloop"))
    for l in issue(): k(l)
    k("s_waitcnt vmcnt(8)")
    k("s_barrier")
    k(f"s_add_u32 s{s_it}, s{s_it}, 1")
    k(f"s_cmp_lt_u32 s{s_it}, {NG - 2}")
    k(f"s_cbranch_scc1 {k.L('lloop')}")
    k("s_waitcnt vmcnt(4)"); k("s_barrier")
    k("s_waitcnt vmcnt(0)"); k("s_barrier")
    k.stamp(3); k.stamp(4); k.stamp(5); k.stamp(6); k.dump(kidx, 9, s_wid)
    k("s_endpgm")
    k.label(k.L("compute"))
    k(f"s_cmp_eq_u32 s{s_w}, 3"); k(f"s_cbranch_scc1 {k.L('end')}")
    k(f"s_mul_i32 s{s_t0}, s{s_r}, 3"); k(f"s_add_u32 s{s_t0}, s{s_t0}, s{s_w}")
    k(f"s_cmp_ge_u32 s{s_t0}, 8"); k(f"s_cbranch_scc1 {k.L('end')}")
    k(f"s_and_b32 s{s_it}, s2, 7"); k(f"s_lshl_b32 s{s_it}, s{s_it}, 3"); k(f"s_add_u32 s{s_t0}, s{s_t0}, s{s_it}")
    k(f"s_lshl_b32 s{s_t0}, s{s_t0}, 5")
    k(f"v_and_b32 v{v_t}, 31, v0")
    k(f"v_bfe_u32 v{v_h}, v0, 5, 1")
    k(f"v_add_u32 v{vt[0]}, s{s_t0}, v{v_t}")
    k(f"v_lshlrev_b32 v{vA}, 15, v{v_h}")
    k(f"v_lshl_add_u32 v{vA}, v{vt[0]}, 4, v{vA}")
    k(f"s_mul_i32 s{s_offA}, s{s_rot}, {16 * CH}"); k(f"s_add_u32 s{s_offA}, s{s_offA}, {A_OFF}")
    k("s_waitcnt lgkmcnt(0)")
    srd(k, sB, 40, 41, G_END)
    srd(k, sW, 40, 41, WS_END)
    def aload(i):
        r = [f"buffer_load_dwordx4 {vr(FA + (i % NFA) * 4, 4)}, v{vA}, s[{sB}:{sB+3}], s{s_offA} offen",
             f"s_add_u32 s{s_offA}, s{s_offA}, {2 * CH}"]
        if i % GS == GS - 1:
            r += [f"s_cmp_lg_u32 s{s_offA}, {A_OFF + NG * 16 * CH}", f"s_cselect_b32 s{s_offA}, s{s_offA}, {A_OFF}"]
        return r
    for i in range(LA):
        for l in aload(i): k(l)
    k(f"v_mul_u32_u24 v{vt[1]}, 1280, v{vt[0]}")
    k(f"v_lshl_add_u32 v{vt[1]}, v{v_h}, 4, v{vt[1]}")
    k(f"v_add_u32 v{vt[1]}, s{s_t1}, v{vt[1]}")
    k(f"s_lshl_b32 s{s_t0}, s{s_cb}, 18"); k(f"s_add_u32 s{s_t0}, s{s_t0}, {H_OFF}")
    k(f"v_add_u32 v{vt[2]}, s{s_t0}, v{vA}")
    k(f"v_mov_b32 v{vO}, v{vt[2] if op else vt[1]}")
    if op:
        k(f"s_lshl_b32 s{s_t0}, s{s_cb}, 14"); k(f"s_add_u32 s{s_t0}, s{s_t0}, {HS_OFF}")
        k(f"v_lshl_add_u32 v{vBd[0]}, v{vt[0]}, 3, s{s_t0}")
    k(f"v_bfe_u32 v{vt[0]}, v{v_lane}, 2, 2")
    k(f"v_lshl_add_u32 v{vt[0]}, v{v_h}, 3, v{vt[0]}")
    k(f"v_lshlrev_b32 v{vt[0]}, 7, v{vt[0]}")
    k(f"v_bfe_u32 v{vt[3]}, v{v_lane}, 3, 1")
    k(f"v_lshl_add_u32 v{vt[0]}, v{vt[3]}, 6, v{vt[0]}")
    k(f"v_bfe_u32 v{vt[3]}, v{v_lane}, 4, 1")
    k(f"v_lshl_add_u32 v{vt[0]}, v{vt[3]}, 5, v{vt[0]}")
    k(f"v_and_b32 v{vt[3]}, 3, v{v_lane}")
    k(f"v_lshl_add_u32 v{vBr[0]}, v{vt[3]}, 3, v{vt[0]}")
    k(f"v_xor_b32 v{vBr[1]}, 64, v{vBr[0]}")
    late = []
    for c in range(4): k(f"s_mov_b32 s{48 + c}, {2*c*CH}")
    if op:
        srd(k, sR, 38, 39, S * D * 2)
        for c in range(4):
            late.append([f"buffer_load_dwordx4 {vr(RES + 4*c, 4)}, v{vt[1]}, s[{sR}:{sR+3}], 0 offen offset:{32*c}"])
    else:
        srd(k, sO, 42, 43, S * D * 2); srd(k, sBi, 38, 39, D * 2)
        k(f"v_lshlrev_b32 v{vt[0]}, 3, v{v_h}")
        for c in range(4):
            late.append([f"buffer_load_dwordx4 {vr(RES + 4*c, 4)}, v{vt[2]}, s[{sW}:{sW+3}], s{48 + c} offen"])
        for c in range(8):
            late.append([f"buffer_load_dwordx2 {vr(BI + 2*c, 2)}, v{vt[0]}, s[{sBi}:{sBi+3}], s{s_t1} offen offset:{16*c}"])
    for r in range(32): k(f"v_mov_b32 v{ACC + r}, 0")
    cur_base = 0
    NM = NKS * 2
    def bread(m):
        nonlocal cur_base
        ks, j = divmod(m, 2)
        G, q = divmod(ks, GS)
        off = (G % NSLOT) * GB + q * 2048
        r = []
        if q == 0 and j == 0: r.append("s_barrier")
        base = (off // 65536) * 65536
        if base != cur_base:
            for a in vBr: r.append(f"v_add_u32 v{a}, {(base - cur_base) & 0xffffffff:#x}, v{a}")
            cur_base = base
        for e in range(2):
            r.append(f"ds_read_b64_tr_b16 {vr(FB + (m % NFB) * 4 + 2*e, 2)}, v{vBr[j]} offset:{off - base + e*512}")
        return r
    k.stamp(2)
    if K.prof: k("s_waitcnt lgkmcnt(0)")
    for m in range(DIST):
        for l in bread(m): k(l)
    vq = [("A", i) for i in range(LA)]
    nlate = len(late)
    for m in range(NM):
        ks, j = divmod(m, 2)
        nout = 2 * (min(NM, m + DIST) - m - 1)
        if j == 0:
            pos = vq.index(("A", ks))
            k(f"s_waitcnt vmcnt({len(vq) - 1 - pos}) lgkmcnt({nout})")
        else:
            k(f"s_waitcnt lgkmcnt({nout})")
        k(f"v_mfma_f32_32x32x16_bf16 {vr(ACC + 16*j, 16)}, {vr(FB + (m % NFB) * 4, 4)}, {vr(FA + (ks % NFA) * 4, 4)}, {vr(ACC + 16*j, 16)}")
        if m + DIST < NM:
            for l in bread(m + DIST): k(l)
        if j == 0 and ks + LA < NKS:
            for l in aload(ks + LA): k(l)
            vq.append(("A", ks + LA))
        if j == 1 and late and ks >= NKS - LA - nlate - 2:
            for l in late.pop(0): k(l)
            vq.append(("R", 0))
    assert not late
    k.stamp(3); k.stamp(4); k.stamp(5)
    k("s_waitcnt vmcnt(0)")
    for c in range(4):
        k(f"v_permlane32_swap_b32 v{RES + 4*c}, v{RES + 4*c + 2}")
        k(f"v_permlane32_swap_b32 v{RES + 4*c + 1}, v{RES + 4*c + 3}")
    for r in range(16):
        k(f"v_lshlrev_b32 v{T + 2*r}, 16, v{RES + r}")
        k(f"v_and_b32 v{T + 2*r + 1}, 0xffff0000, v{RES + r}")
    if not op:
        for r in range(16):
            k(f"v_lshlrev_b32 v{T + 32 + 2*r}, 16, v{BI + r}")
            k(f"v_and_b32 v{T + 32 + 2*r + 1}, 0xffff0000, v{BI + r}")
        for r in range(16):
            k(f"v_pk_add_f32 {vr(T + 2*r, 2)}, {vr(T + 2*r, 2)}, {vr(T + 32 + 2*r, 2)}")
    else:
        k(f"v_mov_b32 v{vt[0]}, 0"); k(f"v_mov_b32 v{vt[1]}, 0"); k(f"s_mov_b32 s{s_t1}, 0x3f803f80")
    for c in range(4):
        for r in range(4*c, 4*c + 4):
            k(f"v_pk_add_f32 {vr(T + 2*r, 2)}, {vr(T + 2*r, 2)}, {vr(ACC + 2*r, 2)}")
        for r in range(4*c, 4*c + 4):
            k(f"v_cvt_pk_bf16_f32 v{RES + r}, v{T + 2*r}, v{T + 2*r + 1}")
        k(f"v_permlane32_swap_b32 v{RES + 4*c}, v{RES + 4*c + 2}")
        k(f"v_permlane32_swap_b32 v{RES + 4*c + 1}, v{RES + 4*c + 3}")
        if op:
            k(f"buffer_store_dwordx4 {vr(RES + 4*c, 4)}, v{vO}, s[{sW}:{sW+3}], s{48 + c} offen")
        else:
            k(f"buffer_store_dwordx4 {vr(RES + 4*c, 4)}, v{vO}, s[{sO}:{sO+3}], 0 offen offset:{32*c}")
    if op:
        for r in range(16):
            k(f"v_dot2c_f32_bf16 v{vt[0]}, s{s_t1}, v{RES + r}")
            k(f"v_dot2c_f32_bf16 v{vt[1]}, v{RES + r}, v{RES + r}")
        k(f"v_mov_b32 v{vt[2]}, v{vt[0]}"); k(f"v_mov_b32 v{vt[3]}, v{vt[1]}")
        k(f"v_permlane32_swap_b32 v{vt[0]}, v{vt[2]}"); k(f"v_permlane32_swap_b32 v{vt[1]}, v{vt[3]}")
        k(f"v_add_f32 v{vt[0]}, v{vt[0]}, v{vt[2]}"); k(f"v_add_f32 v{vt[1]}, v{vt[1]}, v{vt[3]}")
        k("s_mov_b32 exec_hi, 0")
        k(f"buffer_store_dwordx2 {vr(vt[0], 2)}, v{vBd[0]}, s[{sW}:{sW+3}], 0 offen")
    k.stamp(6); k.dump(kidx, 9, s_wid)
    k.label(k.L("end"))
    k("s_endpgm")
    return k, NV, NSLOT * GB

HEADER = open("sequential_preLN__mha_block__mixer_channel_mlp__prompt.s.ref").read().split("; Override")[0]

def build(path):
    ks = [(lngemm("qkv"), 256, 512), (attn(), 256, 512), (resgemm("oproj"), 240, 512), (lngemm("mlp1"), 224, 512), (resgemm("mlp2"), 240, 512)]
    def nop():
        k = K("nop"); k("s_endpgm"); return k, 8, 0
    order = list(range(len(ks)))
    if "nopend" in X: ks.append((nop(), 256, 256)); order = order + [5]
    if "nopbeg" in X: ks.append((nop(), 256, 256)); order = [5] + order
    if "nop3" in X: ks.append((nop(), 256, 256)); order = order + [5, 5, 5]
    if "dup" in X: order = order + order
    t = HEADER
    for (k, nv, lds), grid, block in [ks[i] for i in order]:
        t += f"; @launch kernel={k.name}_kernel grid=({grid},1,1) block=({block},1,1) lds={lds}\n"
    t += '.amdgcn_target "amdgcn-amd-amdhsa--gfx950"\n.text\n'
    for (k, nv, lds), grid, block in ks:
        t += kernel_text(k, nv)
    t += '.section .rodata,"a"\n'
    for (k, nv, lds), grid, block in ks:
        t += kernel_desc(k, nv)
    open(path, "w").write(t)

if __name__ == "__main__":
    if len(sys.argv) > 2 and sys.argv[2] == "prof": K.prof = True
    if len(sys.argv) > 2 and sys.argv[2] == "dbg": K.prof = "dbg"
    build(sys.argv[1] if len(sys.argv) > 1 else "sequential_preLN__mha_block__mixer_channel_mlp__prompt.s")
```

```python
import sys, math, struct, os
X = set(os.environ.get("EXP", "").split(","))
from asmlib import K, vr, sr, kernel_text, kernel_desc

S = 2048; D = 640; F = 1728; H = 32; DH = 20
QK_OFF = 0x0
V_OFF = 0x500000
O_OFF = 0x780000
H_OFF = 0xA00000
G_OFF = 0xC80000
HS_OFF = 0x1340000
C1_OFF = 0x1370000
ST_OFF = 0x1378000
WS_END = 0x1400000
G_END = 0x1340000
CH = S * 16
EPS = 1e-5

def f32(x):
    return "0x%08x" % struct.unpack("<I", struct.pack("<f", x))[0]

def srd(k, d, lo, hi, size):
    k(f"s_mov_b32 s{d}, s{lo}")
    k(f"s_and_b32 s{d+1}, s{hi}, 0xffff")
    k(f"s_mov_b32 s{d+2}, {size:#x}")
    k(f"s_mov_b32 s{d+3}, 0x00020000")

def code_prefetch(k, first, sd, st, vaddr, vdst, v_lane, per=12):
    lab = k.L("pc%d" % k.uid); k.uid += 1
    k(f"s_getpc_b64 s[{sd}:{sd+1}]")
    k.label(lab)
    k(f"s_add_u32 s{sd}, s{sd}, {first}-{lab}")
    k(f"s_addc_u32 s{sd+1}, s{sd+1}, {'-1' if first == k.name + '_kernel' else '0'}")
    k(f"s_and_b32 s{sd+1}, s{sd+1}, 0xffff")
    k(f"s_mov_b32 s{sd+2}, L_code_end-{first}")
    k(f"s_mov_b32 s{sd+3}, 0x00020000")
    k(f"s_lshr_b32 s{st}, s2, 3"); k(f"s_mul_i32 s{st}, s{st}, {per * 128}")
    k(f"v_lshlrev_b32 v{vaddr}, 7, v{v_lane}")
    k(f"s_mov_b64 exec, {(1 << per) - 1:#x}")
    k(f"buffer_load_dword v{vdst}, v{vaddr}, s[{sd}:{sd+3}], s{st} offen")
    k("s_mov_b64 exec, -1")

def rowstat_math(k, s_, q_, nm, rs, t, double):
    k(f"v_mul_f32 v{nm}, {f32(-1.0 / D)}, v{s_}")
    k(f"v_mul_f32 v{q_}, {f32(1.0 / D)}, v{q_}")
    k(f"v_fma_f32 v{q_}, -v{nm}, v{nm}, v{q_}")
    k(f"v_max_f32 v{q_}, 0, v{q_}")
    k(f"v_add_f32 v{t}, {f32(EPS)}, v{q_}")
    k(f"v_rsq_f32 v{rs}, v{t}")
    if double:
        k(f"v_mul_f32 v{t}, v{rs}, v{rs}")
        k(f"v_mul_f32 v{t}, v{t}, v{q_}")
        k(f"v_add_f32 v{t}, {f32(EPS)}, v{t}")
        k(f"v_rsq_f32 v{t}, v{t}")
        k(f"v_mul_f32 v{rs}, v{rs}, v{t}")

def lngemm(kind):
    k = K(kind)
    qkv = kind == "qkv"
    NB = 1920 if qkv else F
    BROW = NB * 2
    NS = 4; SLOT = 32768; NST = 10
    SB = NS * SLOT
    SL = SB + 2048
    sA, sB, sW, sBi = 4, 8, 12, 16
    s_mb, s_nb, s_w = 20, 21, 22
    s_wm, s_wn = 23, 24
    s_offA, s_offB, s_m0, s_it, s_delta, s_t0, s_t1, s_slot = 25, 26, 27, 28, 29, 30, 31, 32
    s_ones = 33
    s_wid = 35
    v_lane, v_t, v_h = 1, 2, 3
    vAd = [4, 5, 6, 7]; vBd = [8, 9, 10, 11]
    vBr = [12, 13]
    v_b1 = 17
    vt = [18, 19, 20, 21, 22, 23]
    vAr = [24, 25, 26, 27]
    FA = [[32 + 16 * i, 36 + 16 * i] for i in range(4)]
    FB = [[40 + 16 * i, 44 + 16 * i] for i in range(4)]
    ACC = 96
    def acc(mt, nt): return ACC + (mt * 2 + nt) * 16
    EP = 160
    kidx = 0 if qkv else 3

    k.stamp(0); k.stamp(1, True)
    k(f"s_cmp_ge_u32 s2, {256 if qkv else 224}"); k(f"s_cbranch_scc1 {k.L('end')}")
    if qkv:
        k("s_load_dwordx4 s[36:39], s[0:1], 0")
        k("s_load_dwordx4 s[40:43], s[0:1], 72")
        WSL = 42
    else:
        k("s_load_dwordx2 s[36:37], s[0:1], 32")
        k("s_load_dwordx2 s[40:41], s[0:1], 80")
        WSL = 40
    k(f"s_and_b32 s{s_t0}, s2, 7"); k(f"s_lshr_b32 s{s_t1}, s2, 3")
    if qkv:
        k(f"s_lshr_b32 s{s_mb}, s{s_t0}, 1"); k(f"s_lshl_b32 s{s_mb}, s{s_mb}, 2")
        k(f"s_and_b32 s{s_nb}, s{s_t1}, 3"); k(f"s_add_u32 s{s_mb}, s{s_mb}, s{s_nb}")
        k(f"s_and_b32 s{s_nb}, s{s_t0}, 1"); k(f"s_lshl_b32 s{s_nb}, s{s_nb}, 3")
        k(f"s_lshr_b32 s{s_t1}, s{s_t1}, 2"); k(f"s_add_u32 s{s_nb}, s{s_nb}, s{s_t1}")
    else:
        k(f"s_lshl_b32 s{s_mb}, s{s_t0}, 1"); k(f"s_and_b32 s{s_nb}, s{s_t1}, 1"); k(f"s_add_u32 s{s_mb}, s{s_mb}, s{s_nb}")
        k(f"s_lshr_b32 s{s_nb}, s{s_t1}, 1")
    k(f"v_lshrrev_b32 v{vt[0]}, 6, v0")
    k(f"v_and_b32 v{v_lane}, 63, v0")
    k(f"v_readfirstlane_b32 s{s_wid}, v{vt[0]}")
    k(f"v_and_b32 v{v_t}, 31, v0")
    k(f"v_bfe_u32 v{v_h}, v0, 5, 1")
    k(f"s_and_b32 s{s_w}, s{s_wid}, 3")
    k(f"s_cmp_lt_u32 s{s_wid}, 4")
    k(f"s_cbranch_scc1 {k.L('compute')}")
    if qkv:
        k(f"s_cmp_ge_u32 s{s_nb}, 15"); k(f"s_cbranch_scc1 {k.L('auxl')}")
        k(f"v_lshrrev_b32 v{vt[0]}, 3, v{v_lane}")
        k(f"v_and_b32 v{vt[1]}, 7, v{v_lane}")
        k(f"v_lshrrev_b32 v{vt[2]}, 1, v{vt[0]}")
        k(f"v_xor_b32 v{vt[2]}, v{vt[2]}, v{vt[1]}")
        k(f"v_xor_b32 v{vt[3]}, 4, v{vt[2]}")
        k(f"s_lshl_b32 s{s_t0}, s{s_mb}, 7"); k(f"s_lshl_b32 s{s_t1}, s{s_w}, 5"); k(f"s_add_u32 s{s_t0}, s{s_t0}, s{s_t1}")
        k(f"v_add_u32 v{vt[0]}, s{s_t0}, v{vt[0]}")
        k(f"v_mul_u32_u24 v{vt[0]}, 1280, v{vt[0]}")
        for ii in range(4):
            k(f"v_lshl_add_u32 v{vAd[ii]}, v{vt[2 + (ii & 1)]}, 4, v{vt[0]}")
            if ii: k(f"v_add_u32 v{vAd[ii]}, {ii * (8 * 1280 - 1024)}, v{vAd[ii]}")
        stepA = 128
    else:
        k(f"s_lshl_b32 s{s_t0}, s{s_mb}, 11")
        k(f"s_mul_i32 s{s_t1}, s{s_w}, {2 * CH}")
        k(f"s_add_u32 s{s_t0}, s{s_t0}, s{s_t1}")
        k(f"s_add_u32 s{s_t0}, s{s_t0}, {H_OFF}")
        k(f"v_lshl_add_u32 v{vAd[0]}, v{v_lane}, 4, s{s_t0}")
        k(f"v_mov_b32 v{vAd[1]}, v{vAd[0]}")
        k(f"v_add_u32 v{vAd[2]}, {CH - 2048}, v{vAd[0]}")
        k(f"v_add_u32 v{vAd[3]}, {CH - 2048}, v{vAd[0]}")
        stepA = 8 * CH
    k(f"v_lshrrev_b32 v{vt[0]}, 4, v{v_lane}")
    k(f"v_and_b32 v{vt[1]}, 15, v{v_lane}")
    k(f"v_lshlrev_b32 v{vt[2]}, 2, v{vt[0]}")
    k(f"v_xor_b32 v{vt[1]}, v{vt[1]}, v{vt[2]}")
    k(f"s_lshl_b32 s{s_t0}, s{s_w}, 4")
    k(f"v_add_u32 v{vt[0]}, s{s_t0}, v{vt[0]}")
    k(f"v_mul_u32_u24 v{vt[0]}, {BROW}, v{vt[0]}")
    k(f"v_lshl_add_u32 v{vt[0]}, v{vt[1]}, 4, v{vt[0]}")
    k(f"s_lshl_b32 s{s_t0}, s{s_nb}, 8")
    k(f"v_add_u32 v{vBd[0]}, s{s_t0}, v{vt[0]}")
    for ii in range(1, 4):
        k(f"v_add_u32 v{vBd[ii]}, {ii * (4 * BROW - 1024)}, v{vBd[0]}")
    stepB = 64 * BROW
    k(f"s_mov_b32 s{s_offA}, 0"); k(f"s_mov_b32 s{s_offB}, 0")
    k(f"s_lshl_b32 s{s_m0}, s{s_w}, 12")
    k(f"s_mov_b32 s{s_it}, 0")
    k("s_waitcnt lgkmcnt(0)")
    if qkv:
        srd(k, sA, 36, 37, S * D * 2); srd(k, sB, 38, 39, D * NB * 2)
    else:
        srd(k, sB, 36, 37, D * NB * 2); srd(k, sW, WSL, WSL + 1, WS_END)
        sA = sW
    def dma_stage():
        r = []
        r.append(f"s_mov_b32 m0, s{s_m0}")
        for ii in range(4):
            r.append(f"buffer_load_dwordx4 v{vAd[ii]}, s[{sA}:{sA+3}], s{s_offA} offen offset:{ii*1024} lds")
        r.append(f"s_add_u32 m0, s{s_m0}, 16384")
        for ii in range(4):
            r.append(f"buffer_load_dwordx4 v{vBd[ii]}, s[{sB}:{sB+3}], s{s_offB} offen offset:{ii*1024} lds")
        r.append(f"s_add_u32 s{s_offA}, s{s_offA}, {stepA}")
        r.append(f"s_add_u32 s{s_offB}, s{s_offB}, {stepB}")
        r.append(f"s_add_u32 s{s_m0}, s{s_m0}, {SLOT}")
        r.append(f"s_and_b32 s{s_m0}, s{s_m0}, {NS * SLOT - 1}")
        return r
    def lstep(n=8, dma=True):
        if dma:
            for l in dma_stage(): k(l)
        k(f"s_waitcnt vmcnt({n})")
        k("s_barrier")
    def lloop(tag, n):
        k(f"s_mov_b32 s{s_it}, 0")
        k.label(k.L("lloop" + tag))
        lstep()
        k(f"s_add_u32 s{s_it}, s{s_it}, 1")
        k(f"s_cmp_lt_u32 s{s_it}, {n}")
        k(f"s_cbranch_scc1 {k.L('lloop' + tag)}")
    XS = 32
    v_tag = 16
    RG_OFF = ST_OFF; CG_OFF = ST_OFF + 32768
    def slice_addr_rows():
        k(f"v_lshrrev_b32 v{vt[4]}, 4, v{v_lane}")
        k(f"v_and_b32 v{vt[5]}, 15, v{v_lane}")
        k(f"v_mul_u32_u24 v{vt[4]}, 1280, v{vt[4]}")
        k(f"v_lshl_add_u32 v{vt[4]}, v{vt[5]}, 4, v{vt[4]}")
        k(f"s_lshl_b32 s{s_t0}, s{s_mb}, 5"); k(f"s_lshl_b32 s{s_t1}, s{s_nb}, 1"); k(f"s_add_u32 s{s_t0}, s{s_t0}, s{s_t1}")
        k(f"s_add_u32 s{s_delta}, s{s_t0}, s{s_w}"); k(f"s_mul_i32 s{s_t0}, s{s_delta}, {4 * 1280}")
    def slice_load_rows():
        for i in range(5):
            k(f"buffer_load_dwordx4 {vr(XS + 4*i, 4)}, v{vt[4]}, s[{sA}:{sA+3}], s{s_t0} offen offset:{256 * i}")
    def tag_load():
        k(f"v_mov_b32 v15, 0")
        k(f"buffer_load_dword v{v_tag}, v15, s[{sBi}:{sBi+3}], 0 offen sc1")
    def tag_wait(tag):
        k(f"s_mov_b32 s{s_it}, 0")
        k.label(k.L("tw" + tag))
        k(f"v_cmp_eq_u32 vcc, 0, v{v_tag}")
        k(f"s_cbranch_vccz {k.L('tr' + tag)}")
        k("s_sleep 2")
        k(f"buffer_load_dword v{v_tag}, v15, s[{sBi}:{sBi+3}], 0 offen sc1")
        k(f"s_add_u32 s{s_it}, s{s_it}, 1")
        k("s_waitcnt vmcnt(0)")
        k(f"s_cmp_lt_u32 s{s_it}, 0x4000")
        k(f"s_cbranch_scc1 {k.L('tw' + tag)}")
        k.label(k.L("tr" + tag))
    def slice_rows(part):
        if part == 0:
            k("v_mov_b32 v56, 0"); k("v_mov_b32 v57, 0"); k("v_mov_b32 v58, 0"); k("v_mov_b32 v59, 0")
        for r in (range(13) if part == 0 else range(13, 20)):
            k(f"v_lshlrev_b32 v52, 16, v{XS + r}")
            k(f"v_and_b32 v53, 0xffff0000, v{XS + r}")
            k("v_add_f32 v56, v56, v52"); k("v_fmac_f32 v57, v52, v52")
            k("v_add_f32 v58, v58, v53"); k("v_fmac_f32 v59, v53, v53")
        if part == 0: return
        k("v_add_f32 v56, v56, v58"); k("v_add_f32 v57, v57, v59")
        for sh in (8, 4, 2, 1):
            k(f"v_add_f32_dpp v56, v56, v56 row_ror:{sh} row_mask:0xf bank_mask:0xf")
            k(f"v_add_f32_dpp v57, v57, v57 row_ror:{sh} row_mask:0xf bank_mask:0xf")
        rowstat_math(k, 56, 57, 60, 62, 52, False)
        k(f"v_mov_b32 v61, v{v_tag}"); k(f"v_mov_b32 v63, v{v_tag}")
        k(f"s_lshl_b32 s{s_t0}, s{s_delta}, 6"); k(f"s_add_u32 s{s_t0}, s{s_t0}, {RG_OFF}")
        k("s_mov_b32 exec_lo, 0x00010001"); k("s_mov_b32 exec_hi, 0x00010001")
        k(f"buffer_store_dwordx4 v[60:63], v{v_lane}, s[{sW}:{sW+3}], s{s_t0} offen sc1")
        k("s_mov_b64 exec, -1")
    def slice_cols(part):
        if part == 0:
            for r in range(4):
                k(f"v_lshlrev_b32 v{56 + 2*r}, 16, v{XS + r}"); k(f"v_and_b32 v{57 + 2*r}, 0xffff0000, v{XS + r}")
            for i in range(1, 5):
                for r in range(4):
                    k(f"v_lshlrev_b32 v52, 16, v{XS + 4*i + r}"); k(f"v_and_b32 v53, 0xffff0000, v{XS + 4*i + r}")
                    k(f"v_add_f32 v{56 + 2*r}, v{56 + 2*r}, v52"); k(f"v_add_f32 v{57 + 2*r}, v{57 + 2*r}, v53")
            return
        for r in range(4): k(f"v_permlane32_swap_b32 v{56 + r}, v{60 + r}")
        for r in range(4): k(f"v_add_f32 v{56 + r}, v{56 + r}, v{60 + r}")
        for r in range(2): k(f"v_permlane16_swap_b32 v{56 + r}, v{58 + r}")
        k("v_add_f32 v56, v56, v58"); k("v_add_f32 v58, v57, v59")
        k(f"v_mov_b32 v57, v{v_tag}"); k(f"v_mov_b32 v59, v{v_tag}")
        k(f"v_and_b32 v{vt[4]}, 48, v{v_lane}")
        k(f"v_lshl_add_u32 v{vt[4]}, v{vt[5]}, 6, v{vt[4]}")
        k(f"s_mul_i32 s{s_t0}, s{s_delta}, 15360"); k(f"s_lshl_b32 s{s_t1}, s{s_nb}, 10"); k(f"s_add_u32 s{s_t0}, s{s_t0}, s{s_t1}")
        k(f"s_add_u32 s{s_t0}, s{s_t0}, {CG_OFF}")
        k(f"buffer_store_dwordx4 v[56:59], v{vt[4]}, s[{sW}:{sW+3}], s{s_t0} offen sc1")
    def slice_part(part):
        k(f"s_cmp_ge_u32 s{s_w}, 2"); k(f"s_cbranch_scc1 {k.L('slc%d' % part)}")
        slice_rows(part)
        k(f"s_branch {k.L('sld%d' % part)}")
        k.label(k.L("slc%d" % part))
        slice_cols(part)
        k.label(k.L("sld%d" % part))
    k.stamp(2)
    for l in dma_stage(): k(l)
    if qkv:
        for l in dma_stage(): k(l)
        k(f"s_cmp_ge_u32 s{s_w}, 2"); k(f"s_cbranch_scc1 {k.L('slc')}")
        slice_addr_rows(); slice_load_rows()
        k(f"s_branch {k.L('sll')}")
        k.label(k.L("slc"))
        k(f"v_lshrrev_b32 v{vt[4]}, 4, v{v_lane}")
        k(f"v_and_b32 v{vt[5]}, 15, v{v_lane}")
        k(f"v_mul_u32_u24 v{vt[4]}, {BROW}, v{vt[4]}")
        k(f"v_lshl_add_u32 v{vt[4]}, v{vt[5]}, 4, v{vt[4]}")
        k(f"s_lshl_b32 s{s_delta}, s{s_mb}, 1"); k(f"s_add_u32 s{s_delta}, s{s_delta}, s{s_w}"); k(f"s_sub_u32 s{s_delta}, s{s_delta}, 2")
        k(f"s_mul_i32 s{s_t0}, s{s_delta}, {20 * BROW}"); k(f"s_lshl_b32 s{s_t1}, s{s_nb}, 8"); k(f"s_add_u32 s{s_t0}, s{s_t0}, s{s_t1}")
        for i in range(5):
            k(f"buffer_load_dwordx4 {vr(XS + 4*i, 4)}, v{vt[4]}, s[{sB}:{sB+3}], s{s_t0} offen")
            k(f"s_add_u32 s{s_t0}, s{s_t0}, {4 * BROW}")
        k.label(k.L("sll"))
        srd(k, sW, WSL, WSL + 1, WS_END); srd(k, sBi, 40, 41, 256)
        lstep(13, False)
        tag_load()
        lstep(14)
        lstep(8)
        k.stamp(3)
        for l in dma_stage(): k(l)
        slice_part(0)
        lstep(8, False)
        for l in dma_stage(): k(l)
        tag_wait("a")
        slice_part(1)
        lstep(9, False)
        k.stamp(4)
        lstep(9)
        lstep(); lstep()
        for l in dma_stage(): k(l)
        k(f"s_lshl_b32 s{s_t0}, s{s_mb}, 11"); k(f"s_lshl_b32 s{s_t1}, s{s_w}, 9"); k(f"s_add_u32 s{s_t0}, s{s_t0}, s{s_t1}")
        k(f"s_add_u32 s{s_offA}, s{s_t0}, {RG_OFF}")
        k(f"v_lshlrev_b32 v{vt[0]}, 4, v{v_t}")
        k(f"v_lshrrev_b32 v{vt[1]}, 4, v{v_lane}")
        k(f"v_mul_u32_u24 v{vt[1]}, {8 * 15360}, v{vt[1]}")
        k(f"v_lshl_add_u32 v{vt[1]}, v{vt[5]}, 4, v{vt[1]}")
        k(f"s_lshl_b32 s{s_t0}, s{s_nb}, 10"); k(f"s_lshl_b32 s{s_t1}, s{s_w}, 8"); k(f"s_add_u32 s{s_t0}, s{s_t0}, s{s_t1}")
        k(f"s_add_u32 s{s_offB}, s{s_t0}, {CG_OFF}")
        def gather():
            k(f"buffer_load_dwordx4 v[64:67], v{vt[0]}, s[{sW}:{sW+3}], s{s_offA} offen sc1")
            k(f"s_mov_b32 s{s_t0}, s{s_offB}")
            for i in range(8):
                k(f"buffer_load_dwordx4 {vr(32 + 4*i, 4)}, v{vt[1]}, s[{sW}:{sW+3}], s{s_t0} offen sc1")
                k(f"s_add_u32 s{s_t0}, s{s_t0}, 15360")
        gather()
        lstep(17, False)
        lstep(9, False)
        k.stamp(5)
        k(f"s_mov_b32 s{s_it}, 0")
        k.label(k.L("poll"))
        k("s_waitcnt vmcnt(0)")
        k(f"v_and_b32 v68, v65, v67"); k(f"v_or_b32 v69, v65, v67")
        for i in range(16):
            k(f"v_and_b32 v68, v68, v{33 + 2*i}"); k(f"v_or_b32 v69, v69, v{33 + 2*i}")
        k(f"v_xor_b32 v68, v68, v{v_tag}"); k(f"v_xor_b32 v69, v69, v{v_tag}"); k("v_or_b32 v68, v68, v69")
        k(f"v_cmp_ne_u32 vcc, 0, v68")
        k(f"s_cbranch_vccz {k.L('ready')}")
        k("s_sleep 2")
        gather()
        k(f"s_add_u32 s{s_it}, s{s_it}, 1")
        k(f"s_cmp_lt_u32 s{s_it}, 0x2000")
        k(f"s_cbranch_scc1 {k.L('poll')}")
        k("s_waitcnt vmcnt(0)")
        k.label(k.L("ready"))
        k.stamp(6)
        k("v_add_f32 v33, v34, v38")
        for i in range(1, 8):
            k(f"v_add_f32 v32, v32, v{32 + 4*i}")
            if i > 1: k(f"v_add_f32 v33, v33, v{34 + 4*i}")
        k(f"s_cmp_lt_u32 s{s_nb}, 5")
        k(f"s_cselect_b32 s{s_t0}, {f32(math.log2(math.e) / math.sqrt(DH))}, 1.0")
        k(f"v_mul_f32 v65, s{s_t0}, v66")
        k(f"s_lshl_b32 s{s_t1}, s{s_w}, 7"); k(f"s_add_u32 s{s_t1}, s{s_t1}, {SB}")
        k(f"v_lshl_add_u32 v{vt[0]}, v{v_t}, 2, s{s_t1}")
        k(f"ds_write2_b32 v{vt[0]}, v64, v65 offset0:0 offset1:128")
        for sw in ("v_permlane32_swap_b32", "v_permlane16_swap_b32"):
            k("v_mov_b32 v34, v32"); k("v_mov_b32 v35, v33")
            k(f"{sw} v32, v34"); k(f"{sw} v33, v35")
            k("v_add_f32 v32, v32, v34"); k("v_add_f32 v33, v33, v35")
        k(f"v_lshl_add_u32 v{vt[1]}, v{vt[5]}, 3, s{s_t1}")
        k(f"ds_write_b64 v{vt[1]}, v[32:33] offset:1024")
        k("s_waitcnt lgkmcnt(0)")
        k("s_barrier")
    else:
        lloop("", 8)
        for l in dma_stage(): k(l)
        PS = 32
        k(f"s_lshl_b32 s{s_t0}, s{s_mb}, 7"); k(f"s_lshl_b32 s{s_t1}, s{s_w}, 5"); k(f"s_add_u32 s{s_t0}, s{s_t0}, s{s_t1}")
        k(f"v_add_lshl_u32 v{vt[2]}, v{v_t}, s{s_t0}, 3")
        k(f"v_mul_u32_u24 v{vt[1]}, {5 * 16384}, v{v_h}")
        k(f"v_add_u32 v{vt[2]}, v{vt[2]}, v{vt[1]}")
        for i in range(5):
            k(f"s_mov_b32 s{s_t0}, {HS_OFF + i * 16384}")
            k(f"buffer_load_dwordx2 {vr(PS + 2*i, 2)}, v{vt[2]}, s[{sW}:{sW+3}], s{s_t0} offen")
        k(f"s_lshl_b32 s{s_t0}, s{s_nb}, 10"); k(f"s_lshl_b32 s{s_t1}, s{s_w}, 8"); k(f"s_add_u32 s{s_t0}, s{s_t0}, s{s_t1}")
        k(f"s_add_u32 s{s_t0}, s{s_t0}, {C1_OFF}")
        k(f"s_add_u32 m0, s{s_t1}, {SB + 1024}")
        k(f"v_lshlrev_b32 v{vt[3]}, 2, v{v_lane}")
        k(f"buffer_load_dword v{vt[3]}, s[{sW}:{sW+3}], s{s_t0} offen lds")
        lstep(14, False)
        lstep(6, False)
        k("s_waitcnt vmcnt(0)")
        for i in range(1, 5):
            k(f"v_add_f32 v{PS}, v{PS}, v{PS + 2*i}"); k(f"v_add_f32 v{PS+1}, v{PS+1}, v{PS + 2*i + 1}")
        k(f"v_mov_b32 v{PS+2}, v{PS}"); k(f"v_mov_b32 v{PS+3}, v{PS+1}")
        k(f"v_permlane32_swap_b32 v{PS}, v{PS+2}"); k(f"v_permlane32_swap_b32 v{PS+1}, v{PS+3}")
        k(f"v_add_f32 v{PS}, v{PS}, v{PS+2}"); k(f"v_add_f32 v{PS+1}, v{PS+1}, v{PS+3}")
        rowstat_math(k, PS, PS + 1, 44, 45, PS + 2, True)
        k(f"s_lshl_b32 s{s_t1}, s{s_w}, 7"); k(f"s_add_u32 s{s_t1}, s{s_t1}, {SB}")
        k(f"v_lshl_add_u32 v{vt[3]}, v{v_t}, 2, s{s_t1}")
        k(f"ds_write_b32 v{vt[3]}, v44")
        k(f"ds_write_b32 v{vt[3]}, v45 offset:512")
        k("s_waitcnt lgkmcnt(0)")
        k("s_barrier")
    if not qkv: k.stamp(3); k.stamp(4); k.stamp(5); k.stamp(6)
    k.dump(kidx, 9, s_wid, WSL)
    k("s_endpgm")
    k.label(k.L("compute"))
    if qkv:
        k(f"s_or_b32 s{s_t0}, s2, s{s_w}")
        k(f"s_cbranch_scc1 {k.L('notag')}")
        k("s_memrealtime s[44:45]")
        k("s_waitcnt lgkmcnt(0)")
        srd(k, sBi, 40, 41, 256)
        k("s_mul_i32 s44, s44, 0x9e3779b1"); k("s_or_b32 s44, s44, 1")
        k(f"v_mov_b32 v{vt[0]}, 0"); k(f"v_mov_b32 v{vt[1]}, s44")
        k("s_mov_b64 exec, 1")
        k(f"buffer_store_dword v{vt[1]}, v{vt[0]}, s[{sBi}:{sBi+3}], 0 offen sc1")
        k("s_mov_b64 exec, -1")
        k.label(k.L("notag"))
        if "nocpf" not in X:
            k(f"s_cmp_lg_u32 s{s_w}, 1"); k(f"s_cbranch_scc1 {k.L('nocpf')}")
            code_prefetch(k, "qkv_kernel", sB, s_t0, vt[0], 14, v_lane)
            k.label(k.L("nocpf"))
        k(f"s_cmp_ge_u32 s{s_nb}, 15"); k(f"s_cbranch_scc1 {k.L('aux')}")
    k(f"s_lshr_b32 s{s_wm}, s{s_w}, 1"); k(f"s_and_b32 s{s_wn}, s{s_w}, 1")
    k(f"s_mov_b32 s34, {SLOT}")
    if qkv:
        k(f"v_bfe_u32 v{vt[0]}, v{v_t}, 1, 3")
        k(f"v_xor_b32 v{vt[0]}, v{vt[0]}, v{v_h}")
        k(f"s_lshl_b32 s{s_t0}, s{s_wm}, 13")
        k(f"v_lshl_add_u32 v{vt[1]}, v{v_t}, 7, s{s_t0}")
        for ks in range(4):
            k(f"v_xor_b32 v{vt[2]}, {2*ks}, v{vt[0]}")
            k(f"v_lshl_add_u32 v{vAr[ks]}, v{vt[2]}, 4, v{vt[1]}")
        def a_read(dst, ks, mt): return f"ds_read_b128 {vr(dst,4)}, v{vAr[ks]} offset:{mt*4096}"
        def a_upd(ks): return [vAr[ks]]
    else:
        k(f"s_lshl_b32 s{s_t0}, s{s_wm}, 10")
        k(f"v_lshl_add_u32 v{vt[0]}, v{v_t}, 4, s{s_t0}")
        k(f"v_lshl_add_u32 v{vAr[0]}, v{v_h}, 11, v{vt[0]}")
        def a_read(dst, ks, mt): return f"ds_read_b128 {vr(dst,4)}, v{vAr[0]} offset:{ks*4096 + mt*512}"
        def a_upd(ks): return [vAr[0]] if ks == 0 else []
    k(f"v_bfe_u32 v{vt[0]}, v{v_lane}, 2, 2")
    k(f"v_lshl_add_u32 v{vt[1]}, v{v_h}, 3, v{vt[0]}")
    k(f"v_lshlrev_b32 v{vt[1]}, 8, v{vt[1]}")
    k(f"v_bfe_u32 v{vt[2]}, v{v_lane}, 4, 1")
    k(f"v_lshl_add_u32 v{vt[1]}, v{vt[2]}, 5, v{vt[1]}")
    k(f"v_and_b32 v{vt[2]}, 3, v{v_lane}")
    k(f"v_lshl_add_u32 v{vt[1]}, v{vt[2]}, 3, v{vt[1]}")
    k(f"v_add_u32 v{vt[1]}, 16384, v{vt[1]}")
    k(f"s_lshl_b32 s{s_t0}, s{s_wn}, 1")
    k(f"v_xor_b32 v{vt[2]}, s{s_t0}, v{vt[0]}")
    k(f"v_lshl_add_u32 v{vBr[0]}, v{vt[2]}, 6, v{vt[1]}")
    k(f"v_xor_b32 v{vBr[1]}, 64, v{vBr[0]}")
    def b_read(dst, ks, nt, e): return f"ds_read_b64_tr_b16 {vr(dst + 2*e, 2)}, v{vBr[nt]} offset:{ks*4096 + e*1024}"
    for r in range(64): k(f"v_mov_b32 v{ACC + r}, 0")
    k(f"s_mov_b32 s{s_it}, 0"); k(f"s_mov_b32 s{s_slot}, 0")
    k("s_waitcnt lgkmcnt(0)")
    srd(k, sW, WSL, WSL + 1, WS_END)

    def reads(ks):
        return [a_read(FA[ks][0], ks, 0), b_read(FB[ks][0], ks, 0, 0), b_read(FB[ks][0], ks, 0, 1),
                b_read(FB[ks][1], ks, 1, 0), b_read(FB[ks][1], ks, 1, 1), a_read(FA[ks][1], ks, 1)]
    k.stamp(2)
    k("s_waitcnt lgkmcnt(0)")
    k("s_barrier")
    k.stamp(3)
    if K.prof: k("s_waitcnt lgkmcnt(0)")
    for l in reads(0) + reads(1): k(l)

    def mainloop(tag, vorient):
        k.label(k.L("loop" + tag))
        for ks in range(4):
            mf = []
            for mt in range(2):
                for nt in range(2):
                    a, b = FA[ks][mt], FB[ks][nt]
                    s0, s1 = (a, b) if vorient else (b, a)
                    mf.append(f"v_mfma_f32_32x32x16_bf16 {vr(acc(mt,nt),16)}, {vr(s0,4)}, {vr(s1,4)}, {vr(acc(mt,nt),16)}")
            pre = []
            if ks == 2:
                k("s_barrier")
                pre += [f"s_add_u32 s{s_slot}, s{s_slot}, 1", f"s_and_b32 s{s_slot}, s{s_slot}, {NS - 1}",
                        f"s_cselect_b32 s{s_delta}, s34, {(-(NS - 1) * SLOT) & 0xffffffff:#x}"]
                pre += [f"v_add_u32 v{a}, s{s_delta}, v{a}" for a in vBr]
            nk = (ks + 2) % 4
            if ks >= 2:
                pre += [f"v_add_u32 v{a}, s{s_delta}, v{a}" for a in a_upd(nk)]
            post = []
            if ks == 3:
                post = [f"v_add_u32 v{a}, s{s_delta}, v{a}" for a in a_upd(2) + a_upd(3)]
                post += [f"s_add_u32 s{s_it}, s{s_it}, 1", f"s_cmp_lt_u32 s{s_it}, {NST}"]
            rd = reads(nk)
            k("s_waitcnt lgkmcnt(6)")
            seq = [mf[0]] + pre + rd[0:2] + [mf[1]] + rd[2:4] + [mf[2]] + rd[4:6] + post + [mf[3]]
            for l in seq: k(l)
        k(f"s_cbranch_scc1 {k.L('loop' + tag)}")
        k.stamp(4)

    def epi_nm():
        MR = [28, 30]
        CS = EP; B1 = EP + 32
        k(f"s_lshl_b32 s{s_t0}, s{s_wm}, 8"); k(f"s_add_u32 s{s_t0}, s{s_t0}, {SB}")
        k(f"v_lshl_add_u32 v{vt[4]}, v{v_t}, 2, s{s_t0}")
        for mt in range(2):
            k(f"ds_read2_b32 {vr(MR[mt],2)}, v{vt[4]} offset0:{mt*32} offset1:{128 + mt*32}")
        k(f"s_lshl_b32 s{s_t0}, s{s_wn}, 8"); k(f"s_add_u32 s{s_t0}, s{s_t0}, {SB}")
        k(f"v_lshl_add_u32 v{vt[0]}, v{v_h}, 4, s{s_t0}")
        for nt in range(2):
            for rq in range(4):
                k(f"ds_read_b128 {vr(CS + nt*16 + rq*4, 4)}, v{vt[0]} offset:{1024 + nt*128 + rq*32}")
            if not qkv:
                for rq in range(4):
                    k(f"ds_read_b128 {vr(B1 + nt*16 + rq*4, 4)}, v{vt[0]} offset:{1536 + nt*128 + rq*32}")
        OFF = QK_OFF if qkv else G_OFF
        k(f"s_lshl_b32 s{s_t0}, s{s_nb}, 4"); k(f"s_lshl_b32 s{s_t1}, s{s_wn}, 3"); k(f"s_add_u32 s{s_t0}, s{s_t0}, s{s_t1}")
        k(f"v_add_lshl_u32 v{vt[2]}, v{v_h}, s{s_t0}, 15")
        k(f"s_lshl_b32 s{s_t0}, s{s_mb}, 7"); k(f"s_lshl_b32 s{s_t1}, s{s_wm}, 6"); k(f"s_add_u32 s{s_t0}, s{s_t0}, s{s_t1}")
        k(f"v_add_u32 v{vt[3]}, s{s_t0}, v{v_t}")
        k(f"v_lshl_add_u32 v{vt[2]}, v{vt[3]}, 4, v{vt[2]}")
        so = 46
        for c in range(4): k(f"s_mov_b32 s{so + c}, {OFF + 2*c*CH}")
        if not qkv:
            C0 = -2.0 * math.log2(math.e) * math.sqrt(2.0 / math.pi)
            k(f"s_mov_b32 s44, {f32(C0 * 0.044715)}"); k(f"s_mov_b32 s45, {f32(C0 * 0.044715)}")
            k(f"v_mov_b32 v{vt[4]}, {f32(C0)}"); k(f"v_mov_b32 v{vt[5]}, {f32(C0)}")
        k("s_waitcnt lgkmcnt(0)")
        T = EP + 64
        n_st = 0
        for nt in range(2):
            for mt in range(2):
                a = acc(mt, nt); mr = MR[mt]
                for p in range(8):
                    x = vr(a + 2*p, 2)
                    k(f"v_pk_fma_f32 {x}, {vr(CS + nt*16 + 2*p, 2)}, {vr(mr,2)}, {x} op_sel_hi:[1,0,1]")
                for p in range(8):
                    x = vr(a + 2*p, 2)
                    if qkv:
                        k(f"v_pk_mul_f32 {x}, {x}, {vr(mr,2)} op_sel:[0,1] op_sel_hi:[1,1]")
                    else:
                        k(f"v_pk_fma_f32 {x}, {x}, {vr(mr,2)}, {vr(B1 + nt*16 + 2*p, 2)} op_sel:[0,1,0] op_sel_hi:[1,1,1]")
                if not qkv:
                    for p in range(8):
                        x = vr(a + 2*p, 2); t = vr(T + 2*p, 2)
                        k(f"v_pk_mul_f32 {t}, {x}, {x}")
                    for p in range(8):
                        t = vr(T + 2*p, 2)
                        k(f"v_pk_fma_f32 {t}, {t}, s[44:45], {vr(vt[4],2)}")
                    for p in range(8):
                        x = vr(a + 2*p, 2); t = vr(T + 2*p, 2)
                        k(f"v_pk_mul_f32 {t}, {t}, {x}")
                    for r in range(16): k(f"v_exp_f32 v{T + r}, v{T + r}")
                    for p in range(8):
                        t = vr(T + 2*p, 2)
                        k(f"v_pk_add_f32 {t}, {t}, 1.0 op_sel_hi:[1,0]")
                    for r in range(16): k(f"v_rcp_f32 v{T + r}, v{T + r}")
                    for p in range(8):
                        x = vr(a + 2*p, 2); t = vr(T + 2*p, 2)
                        k(f"v_pk_mul_f32 {x}, {x}, {t}")
                Pk = T + 16 + (n_st % 2) * 8
                for p in range(8):
                    k(f"v_cvt_pk_bf16_f32 v{Pk + p}, v{a + 2*p}, v{a + 2*p + 1}")
                for pq in range(2):
                    b = Pk + 4*pq
                    k(f"v_permlane32_swap_b32 v{b}, v{b+2}")
                    k(f"v_permlane32_swap_b32 v{b+1}, v{b+3}")
                for pq in range(2):
                    b = Pk + 4*pq
                    k(f"buffer_store_dwordx4 {vr(b,4)}, v{vt[2]}, s[{sW}:{sW+3}], s{so + nt*2 + pq} offen offset:{mt*512}")
                n_st += 1

    def epi_v():
        NM = EP; RS = EP + 32; CSV = [28, 30]
        k(f"s_lshl_b32 s{s_t0}, s{s_wm}, 8"); k(f"s_add_u32 s{s_t0}, s{s_t0}, {SB}")
        k(f"v_lshl_add_u32 v{vt[0]}, v{v_h}, 4, s{s_t0}")
        k(f"s_lshl_b32 s{s_t0}, s{s_wn}, 8"); k(f"s_add_u32 s{s_t0}, s{s_t0}, {SB}")
        k(f"v_lshl_add_u32 v{vt[1]}, v{v_t}, 2, s{s_t0}")
        for nt in range(2):
            k(f"ds_read_b32 v{CSV[nt]}, v{vt[1]} offset:{1024 + nt*128}")
        for mt in range(2):
            for rq in range(4):
                k(f"ds_read_b128 {vr(NM + mt*16 + rq*4, 4)}, v{vt[0]} offset:{mt*128 + rq*32}")
                k(f"ds_read_b128 {vr(RS + mt*16 + rq*4, 4)}, v{vt[0]} offset:{512 + mt*128 + rq*32}")
        k(f"s_lshl_b32 s{s_t0}, s{s_mb}, 1"); k(f"s_add_u32 s{s_t0}, s{s_t0}, s{s_wm}"); k(f"s_mul_i32 s{s_t0}, s{s_t0}, 2560")
        k(f"s_lshl_b32 s{s_t1}, s{s_nb}, 7"); k(f"s_add_u32 s{s_t0}, s{s_t0}, s{s_t1}"); k(f"s_sub_u32 s{s_t0}, s{s_t0}, 1280")
        k(f"s_lshl_b32 s{s_t1}, s{s_wn}, 6"); k(f"s_add_u32 s{s_t0}, s{s_t0}, s{s_t1}")
        k(f"v_add_lshl_u32 v{vt[2]}, v{v_t}, s{s_t0}, 5")
        k(f"v_lshl_add_u32 v{vt[2]}, v{v_h}, 4, v{vt[2]}")
        so = 46
        for c in range(4): k(f"s_mov_b32 s{so + c}, {V_OFF + c * 640 * 32}")
        k("s_waitcnt lgkmcnt(0)")
        T = EP + 64; n_st = 0
        for mt in range(2):
            for nt in range(2):
                a = acc(mt, nt)
                for p in range(8):
                    x = vr(a + 2*p, 2)
                    k(f"v_pk_fma_f32 {x}, {vr(NM + mt*16 + 2*p, 2)}, {vr(CSV[nt],2)}, {x} op_sel_hi:[1,0,1]")
                for p in range(8):
                    x = vr(a + 2*p, 2)
                    k(f"v_pk_mul_f32 {x}, {x}, {vr(RS + mt*16 + 2*p, 2)}")
                Pk = T + (n_st % 2) * 8
                for p in range(8):
                    k(f"v_cvt_pk_bf16_f32 v{Pk + p}, v{a + 2*p}, v{a + 2*p + 1}")
                for jj in range(2):
                    k(f"buffer_store_dwordx4 {vr(Pk + 4*jj, 4)}, v{vt[2]}, s[{sW}:{sW+3}], s{so + mt*2 + jj} offen offset:{nt*1024}")
                n_st += 1

    if qkv:
        k(f"s_cmp_ge_u32 s{s_nb}, 10")
        k(f"s_cbranch_scc1 {k.L('loopv')}")
        mainloop("q", False); k.stamp(5); epi_nm(); k.stamp(6); k.dump(0, 9, s_wid, WSL)
        k("s_endpgm")
        mainloop("v", True); k.stamp(5); epi_v(); k.stamp(6); k.dump(0, 9, s_wid, WSL)
        k("s_endpgm")
        k.label(k.L("auxl"))
        k(f"s_cmp_ge_u32 s{s_w}, 2"); k(f"s_cbranch_scc1 {k.L('aux')}")
        slice_addr_rows()
        k("s_waitcnt lgkmcnt(0)")
        srd(k, sA, 36, 37, S * D * 2); srd(k, sW, WSL, WSL + 1, WS_END); srd(k, sBi, 40, 41, 256)
        slice_load_rows()
        k("s_waitcnt vmcnt(0)")
        tag_load()
        slice_rows(0)
        k("s_waitcnt vmcnt(0)")
        tag_wait("x")
        slice_rows(1)
        k.label(k.L("aux"))
        k("s_load_dwordx4 s[44:47], s[0:1], 32")
        k(f"v_lshrrev_b32 v{vt[0]}, 4, v{v_lane}")
        k(f"v_and_b32 v{vt[1]}, 15, v{v_lane}")
        k(f"v_mul_u32_u24 v{vt[2]}, {F * 2}, v{vt[0]}")
        k(f"v_lshl_add_u32 v{vt[2]}, v{vt[1]}, 4, v{vt[2]}")
        k(f"v_lshlrev_b32 v{vt[3]}, 1, v0")
        k("s_waitcnt lgkmcnt(0)")
        srd(k, sW, WSL, WSL + 1, WS_END)
        k(f"s_cmp_ge_u32 s{s_mb}, 14"); k(f"s_cbranch_scc1 {k.L('end')}")
        srd(k, sB, 44, 45, D * F * 2); srd(k, sA, 46, 47, F * 2)
        k(f"s_mul_i32 s{s_t0}, s{s_wid}, {80 * F * 2}"); k(f"s_lshl_b32 s{s_t1}, s{s_mb}, 8"); k(f"s_add_u32 s{s_t0}, s{s_t0}, s{s_t1}")
        k(f"buffer_load_ushort v{v_b1}, v{vt[3]}, s[{sA}:{sA+3}], s{s_t1} offen")
        for i in range(20):
            k(f"buffer_load_dwordx4 {vr(40 + 4*i, 4)}, v{vt[2]}, s[{sB}:{sB+3}], s{s_t0} offen")
            k(f"s_add_u32 s{s_t0}, s{s_t0}, {4 * F * 2}")
        for r in range(8): k(f"v_mov_b32 v{24 + r}, 0")
        for i in range(20):
            k(f"s_waitcnt vmcnt({19 - i})")
            for r in range(4):
                k(f"v_lshlrev_b32 v{32 + 2*r}, 16, v{40 + 4*i + r}")
                k(f"v_and_b32 v{33 + 2*r}, 0xffff0000, v{40 + 4*i + r}")
            for r in range(4):
                k(f"v_pk_add_f32 {vr(24 + 2*r, 2)}, {vr(24 + 2*r, 2)}, {vr(32 + 2*r, 2)}")
        k(f"v_lshlrev_b32 v{vt[0]}, 5, v0")
        k(f"ds_write_b128 v{vt[0]}, v[24:27]")
        k(f"ds_write_b128 v{vt[0]}, v[28:31] offset:16")
        k("s_waitcnt lgkmcnt(0)")
        k("s_barrier")
        k(f"s_cmp_ge_u32 s{s_wid}, 2"); k(f"s_cbranch_scc1 {k.L('end')}")
        k(f"v_lshlrev_b32 v{vt[0]}, 2, v0")
        for i in range(32):
            k(f"ds_read_b32 v{40 + i}, v{vt[0]} offset:{i * 512}")
            if i % 8 == 7: k("s_waitcnt lgkmcnt(0)")
        for i in range(1, 32): k(f"v_add_f32 v40, v40, v{40 + i}")
        k(f"v_lshlrev_b32 v{v_b1}, 16, v{v_b1}")
        k(f"s_lshl_b32 s{s_t0}, s{s_mb}, 10"); k(f"s_add_u32 s{s_t0}, s{s_t0}, {C1_OFF}"); k(f"s_add_u32 s{s_t1}, s{s_t0}, 512")
        k(f"buffer_store_dword v40, v{vt[0]}, s[{sW}:{sW+3}], s{s_t0} offen")
        k(f"buffer_store_dword v{v_b1}, v{vt[0]}, s[{sW}:{sW+3}], s{s_t1} offen")
    else:
        mainloop("q", False)
        k(f"s_cmp_eq_u32 s{s_nb}, 13"); k(f"s_cselect_b32 s{s_t0}, s{s_wn}, 0")
        k(f"s_cmp_ge_u32 s{s_t0}, 1"); k(f"s_cbranch_scc1 {k.L('end')}")
        k.stamp(5); epi_nm(); k.stamp(6); k.dump(3, 9, s_wid, WSL)
    k.label(k.L("end"))
    k("s_endpgm")
    return k, EP + 64 + 32, NS * SLOT + 2048

def attn():
    k = K("attn")
    sW = 4; sP1 = 8; sP2 = 12
    s_hd, s_qb, s_w, s_qs, s_kh, s_t0, s_t1, s_it = 20, 21, 22, 23, 24, 25, 26, 27
    s_ko, s_vo, s_odd = 28, 29, 30
    s_vm = 32
    s_lo = 34
    s_c = 36
    v_lane, v_t, v_h = 1, 2, 3
    vK1, vK2, vV0, vV1 = 4, 5, 6, 7
    vt = [8, 9, 10, 11, 12, 13, 14, 15]
    vm = [16, 17]
    v_pfa, v_pfb, v_pf, v_pfc = 18, 19, 200, 202
    Q1 = [20, 24]; Q2 = [28, 30]
    NBUF = 4
    K1 = [32, 36, 40, 44]; K2 = [48, 50, 52, 54]
    VB = [56, 64, 72, 80]
    C = [88, 104]; Sx = [120, 136]; P = [152, 160]; O = [168, 184]
    NV = 203
    k.stamp(0); k.stamp(1, True)
    k("s_cmp_ge_u32 s2, 256"); k(f"s_cbranch_scc1 {k.L('end')}")
    k("s_load_dwordx2 s[40:41], s[0:1], 80")
    k("s_load_dwordx2 s[44:45], s[0:1], 16")
    k("s_load_dwordx2 s[46:47], s[0:1], 32")
    k("s_load_dwordx2 s[38:39], s[0:1], 48")
    k(f"v_lshrrev_b32 v{vt[0]}, 6, v0")
    k(f"v_and_b32 v{v_t}, 31, v0")
    k(f"v_readfirstlane_b32 s{s_w}, v{vt[0]}")
    k(f"v_bfe_u32 v{v_h}, v0, 5, 1")
    k(f"s_and_b32 s{s_hd}, s2, 7"); k(f"s_lshl_b32 s{s_hd}, s{s_hd}, 2")
    k(f"s_bfe_u32 s{s_t0}, s2, 0x20003"); k(f"s_add_u32 s{s_hd}, s{s_hd}, s{s_t0}")
    k(f"s_lshr_b32 s{s_qb}, s2, 5")
    k(f"s_and_b32 s{s_qs}, s{s_w}, 3"); k(f"s_lshr_b32 s{s_kh}, s{s_w}, 2")
    if "noprio" not in X:
        k(f"s_cmp_eq_u32 s{s_kh}, 0"); k(f"s_cbranch_scc1 {k.L('np')}")
        k("s_setprio 1")
        k.label(k.L("np"))
    k(f"s_and_b32 s{s_odd}, s{s_hd}, 1")
    k(f"s_mov_b32 s{s_lo}, -1"); k(f"s_mov_b32 s{s_lo+1}, 0")
    k(f"s_lshr_b32 s{s_t0}, s{s_hd}, 1"); k(f"s_mul_i32 s{s_t0}, s{s_t0}, 5")
    k(f"s_mul_i32 s{s_t1}, s{s_odd}, 3"); k(f"s_add_u32 s{s_t1}, s{s_t1}, s{s_t0}")
    k(f"v_add_lshl_u32 v{vK1}, v{v_h}, s{s_t1}, 15")
    k(f"v_lshl_add_u32 v{vK1}, v{v_t}, 4, v{vK1}")
    k(f"s_add_u32 s{s_t0}, s{s_t0}, 2"); k(f"s_lshl_b32 s{s_t0}, s{s_t0}, 15")
    k(f"s_lshl_b32 s{s_t1}, s{s_odd}, 3"); k(f"s_add_u32 s{s_t0}, s{s_t0}, s{s_t1}")
    k(f"v_lshl_add_u32 v{vK2}, v{v_t}, 4, s{s_t0}")
    k(f"s_lshl_b32 s{s_ko}, s{s_kh}, 14"); k(f"s_add_u32 s{s_ko}, s{s_ko}, {QK_OFF + 80 * CH}")
    k(f"s_lshl_b32 s{s_t0}, s{s_qb}, 12"); k(f"s_lshl_b32 s{s_t1}, s{s_qs}, 10"); k(f"s_add_u32 s{s_t0}, s{s_t0}, s{s_t1}")
    for qt in range(2):
        k(f"v_mov_b32 v{Q2[qt]}, 0"); k(f"v_mov_b32 v{Q2[qt]+1}, 0")
    k(f"s_mov_b32 s42, s{s_ko}")
    k("s_waitcnt lgkmcnt(0)")
    srd(k, sW, 40, 41, WS_END)
    W = f"s[{sW}:{sW+3}]"
    def kload(b):
        return [f"buffer_load_dwordx4 {vr(K1[b],4)}, v{vK1}, {W}, s{s_ko} offen",
                f"buffer_load_dwordx2 {vr(K2[b],2)}, v{vK2}, {W}, s{s_ko} offen",
                f"s_add_u32 s{s_ko}, s{s_ko}, 512"]
    def vload(b):
        return [f"s_mov_b64 exec, s[{s_vm}:{s_vm+1}]",
                f"buffer_load_dwordx4 {vr(VB[b],4)}, v{vV0}, {W}, s{s_vo} offen",
                f"buffer_load_dwordx4 {vr(VB[b]+4,4)}, v{vV1}, {W}, s{s_vo} offen",
                f"s_mov_b64 exec, -1",
                f"s_add_u32 s{s_vo}, s{s_vo}, {1280 * 32}"]
    for l in kload(0): k(l)
    for qt in range(2):
        k(f"buffer_load_dwordx4 {vr(Q1[qt],4)}, v{vK1}, {W}, s{s_t0} offen offset:{qt*512}")
    k(f"s_mov_b64 exec, s[{s_lo}:{s_lo+1}]")
    for qt in range(2):
        k(f"buffer_load_dwordx2 {vr(Q2[qt],2)}, v{vK2}, {W}, s{s_t0} offen offset:{qt*512}")
    k("s_mov_b64 exec, -1")
    for l in kload(1): k(l)
    k(f"v_and_b32 v{v_lane}, 63, v0")
    k(f"s_mov_b32 s{s_vm}, 0xfffff"); k(f"s_mov_b32 s{s_vm+1}, 0xfffff")
    k(f"v_add_u32 v{vt[0]}, 4, v{v_t}")
    k(f"v_subrev_u32 v{vt[1]}, 16, v{v_t}")
    k(f"v_cmp_gt_u32 vcc, 16, v{v_t}")
    k(f"v_cndmask_b32 v{vt[0]}, v{vt[1]}, v{vt[0]}, vcc")
    k(f"s_cmp_eq_u32 s{s_odd}, 1")
    k(f"s_cselect_b64 vcc, -1, 0")
    k(f"v_cndmask_b32 v{vt[0]}, v{v_t}, v{vt[0]}, vcc")
    k(f"s_mul_i32 s{s_t0}, s{s_hd}, 20")
    k(f"v_add_lshl_u32 v{vV0}, v{vt[0]}, s{s_t0}, 5")
    k(f"v_lshl_add_u32 v{vV0}, v{v_h}, 4, v{vV0}")
    k(f"v_add_u32 v{vV1}, {640 * 32}, v{vV0}")
    k(f"s_mul_i32 s{s_vo}, s{s_kh}, {32 * 1280 * 32}"); k(f"s_add_u32 s{s_vo}, s{s_vo}, {V_OFF}")
    k(f"s_mov_b32 s43, s{s_vo}")
    k(f"v_cmp_eq_u32 vcc, 20, v{v_t}")
    k(f"v_mov_b32 v{vt[1]}, 0x3f803f80")
    k(f"v_cndmask_b32 v{vt[1]}, 0, v{vt[1]}, vcc")
    for r in range(8): k(f"v_mov_b32 v{VB[0] + r}, v{vt[1]}")
    for l in vload(0): k(l)
    for b in range(1, NBUF):
        for r in range(8): k(f"v_mov_b32 v{VB[b] + r}, v{vt[1]}")
    for qt in range(2):
        for r in range(16): k(f"v_mov_b32 v{O[qt] + r}, 0")
    for r in range(8): k(f"v_mov_b32 v{P[1] + r}, 0")
    srd(k, sP1, 44, 45, D * D * 2); srd(k, sP2, 46, 47, D * F * 2)
    k(f"s_lshr_b32 s{s_t0}, s2, 3"); k(f"s_lshl_b32 s{s_t0}, s{s_t0}, 3"); k(f"s_add_u32 s{s_t0}, s{s_t0}, s{s_w}")
    k(f"s_mul_i32 s48, s{s_t0}, {26 * 128}"); k(f"s_mul_i32 s49, s{s_t0}, {68 * 128}")
    k(f"v_lshlrev_b32 v{vt[2]}, 8, v{v_lane}"); k(f"v_add_u32 v{vt[2]}, 124, v{vt[2]}")
    k(f"v_mov_b32 v{vt[3]}, 0x7ffffff0")
    k(f"v_cmp_gt_u32 vcc, 34, v{v_lane}")
    k(f"v_cndmask_b32 v{v_pfa}, v{vt[3]}, v{vt[2]}, vcc")
    k(f"v_cmp_gt_u32 vcc, 13, v{v_lane}")
    k(f"v_cndmask_b32 v{v_pfb}, v{vt[3]}, v{vt[2]}, vcc")
    srd(k, 16, 38, 39, D * F * 2)
    k(f"s_lshl_b32 s38, s2, 3"); k(f"s_add_u32 s38, s38, s{s_w}"); k(f"s_mul_i32 s38, s38, {10 * 128}")
    k(f"v_cmp_gt_u32 vcc, 5, v{v_lane}")
    k(f"v_cndmask_b32 v{v_pfc}, v{vt[3]}, v{vt[2]}, vcc")
    k(f"s_sub_u32 s50, s{s_qs}, s{s_kh}"); k(f"s_add_u32 s50, s50, 2"); k(f"s_add_u32 s51, s50, 2")
    def qk(qt, b, c):
        cc = "0" if c is None else vr(c, 16)
        return [f"v_mfma_f32_32x32x16_bf16 {vr(Sx[qt],16)}, {vr(K1[b],4)}, {vr(Q1[qt],4)}, {cc}",
                f"v_mfma_f32_32x32x8_bf16 {vr(Sx[qt],16)}, {vr(K2[b],2)}, {vr(Q2[qt],2)}, {vr(Sx[qt],16)}"]
    def pv(qt, b):
        return [f"v_mfma_f32_32x32x16_bf16 {vr(O[qt],16)}, {vr(VB[b],4)}, {vr(P[qt],4)}, {vr(O[qt],16)}",
                f"v_mfma_f32_32x32x16_bf16 {vr(O[qt],16)}, {vr(VB[b]+4,4)}, {vr(P[qt]+4,4)}, {vr(O[qt],16)}"]
    def rowmax(qt, dst, tmp):
        s = Sx[qt]
        k(f"v_max3_f32 v{dst}, v{s}, v{s+1}, v{s+2}")
        for r in range(3, 15, 2): k(f"v_max3_f32 v{dst}, v{dst}, v{s+r}, v{s+r+1}")
        k(f"v_max_f32 v{dst}, v{dst}, v{s+15}")
        k(f"v_mov_b32 v{tmp}, v{dst}")
        k(f"v_permlane32_swap_b32 v{dst}, v{tmp}")
        k(f"v_max_f32 v{dst}, v{dst}, v{tmp}")
    k.stamp(2)
    k("s_waitcnt vmcnt(4)")
    for qt in range(2):
        for l in qk(qt, 0, None): k(l)
    for l in kload(2) + vload(1) + kload(3) + vload(2): k(l)
    rowmax(0, vm[0], vt[0])
    k(f"v_sub_f32 v{vt[1]}, 0, v{vm[0]}")
    for r in range(16): k(f"v_mov_b32 v{C[0] + r}, v{vt[1]}")
    for l in qk(0, 0, C[0]): k(l)
    rowmax(1, vm[1], vt[0])
    k(f"v_sub_f32 v{vt[1]}, 0, v{vm[1]}")
    for r in range(16): k(f"v_mov_b32 v{C[1] + r}, v{vt[1]}")
    k(f"s_mov_b32 s{s_it}, 0")
    k.stamp(3)
    k("s_nop 1")

    def slot(qt, mf, extra):
        s = Sx[qt]; p = P[qt]
        for i in range(16):
            for l in extra.get(i, []): k(l)
            if i % 4 == 0: k(mf[i // 4])
            k(f"v_exp_f32 v{s+i}, v{s+i}")
            if i % 2 == 1 and i >= 3:
                k(f"v_cvt_pk_bf16_f32 v{p + (i-3)//2}, v{s+i-3}, v{s+i-2}")
        for l in extra.get(16, []): k(l)
        k(f"v_cvt_pk_bf16_f32 v{p+7}, v{s+14}, v{s+15}")
    k(f"s_cmp_eq_u32 s{s_kh}, 0")
    k(f"s_cselect_b32 s31, 99, {int(os.environ.get('PRI', '6'))}")
    k.label(k.L("loop"))
    for u in range(NBUF):
        b = u; bp = (u - 1) % NBUF; bn = (u + 1) % NBUF
        e1 = {0: ["s_waitcnt vmcnt(12)"]}
        slot(0, qk(1, b, C[1]) + pv(1, bp), {6: kload(b), 14: vload(bp)})
        slot(1, qk(0, bn, C[0]) + pv(0, b), e1)
    k(f"s_add_u32 s{s_it}, s{s_it}, 1")
    PRI = int(os.environ.get("PRI", "6"))
    k(f"s_cmp_lg_u32 s{s_it}, s31")
    k(f"s_cbranch_scc1 {k.L('noev')}")
    k("s_setprio 0")
    k.label(k.L("noev"))
    if "nowpf" not in X:
        k(f"s_cmp_lg_u32 s{s_it}, s50"); k(f"s_cbranch_scc1 {k.L('noe2')}")
        k(f"buffer_load_dwordx2 {vr(v_pf, 2)}, v{v_pfa}, s[{sP2}:{sP2+3}], s49 offen")
        k.label(k.L("noe2"))
        k(f"s_cmp_lg_u32 s{s_it}, s51"); k(f"s_cbranch_scc1 {k.L('noe3')}")
        k(f"buffer_load_dwordx2 {vr(v_pf, 2)}, v{v_pfb}, s[{sP1}:{sP1+3}], s48 offen")
        k(f"buffer_load_dwordx2 {vr(v_pf, 2)}, v{v_pfc}, s[16:19], s38 offen")
        if "nocpf" not in X:
            k(f"s_cmp_lg_u32 s{s_w}, 3"); k(f"s_cbranch_scc1 {k.L('noe3')}")
            code_prefetch(k, "oproj_kernel", 16, s_t0, vt[0], v_pf, v_lane, per=8)
        k.label(k.L("noe3"))
    k(f"s_cmp_lt_u32 s{s_it}, {32 // NBUF}")
    k(f"s_cbranch_scc1 {k.L('loop')}")
    k.stamp(4)
    for l in pv(1, NBUF - 1): k(l)
    k("s_nop 7"); k("s_nop 7")
    k(f"v_add_f32 v{vt[0]}, |v{O[0]}|, |v{O[1]}|")
    for qt in range(2):
        for r in range(1, 12):
            k(f"v_add_f32 v{vt[0]}, v{vt[0]}, |v{O[qt]+r}|")
    k(f"v_add_f32 v{vt[1]}, v{O[0]+8}, v{O[1]+8}")
    k(f"s_mov_b32 s{s_t0}, {f32(2.0**100)}")
    k(f"v_cmp_nlt_f32 s[{s_c}:{s_c+1}], v{vt[0]}, s{s_t0}")
    k(f"s_mov_b32 s{s_t0}, {f32(2.0**60)}")
    k(f"v_cmp_nlt_f32 vcc, |v{vt[1]}|, s{s_t0}")
    k(f"s_andn2_b64 vcc, vcc, s[{s_lo}:{s_lo+1}]")
    k(f"s_or_b64 s[{s_c}:{s_c+1}], s[{s_c}:{s_c+1}], vcc")
    k("s_waitcnt vmcnt(0)")
    k(f"s_cmp_eq_u64 s[{s_c}:{s_c+1}], 0")
    k(f"s_cbranch_scc1 {k.L('merge')}")
    k(f"s_mov_b32 s{s_ko}, s42"); k(f"s_mov_b32 s{s_vo}, s43")
    for qt in range(2):
        for r in range(16): k(f"v_mov_b32 v{O[qt] + r}, 0")
        k(f"v_mov_b32 v{vm[qt]}, 0xff800000")
    k(f"s_mov_b32 s{s_it}, 0")
    k.label(k.L("fb"))
    for l in kload(0) + vload(0): k(l)
    k("s_waitcnt vmcnt(0)")
    for qt in range(2):
        for l in qk(qt, 0, None): k(l)
    for qt in range(2):
        rowmax(qt, vt[2], vt[0])
        k(f"v_max_f32 v{vt[2]}, v{vt[2]}, v{vm[qt]}")
        k(f"v_sub_f32 v{vt[3]}, v{vm[qt]}, v{vt[2]}")
        k(f"v_exp_f32 v{vt[3]}, v{vt[3]}")
        k(f"v_mov_b32 v{vm[qt]}, v{vt[2]}")
        for r in range(16): k(f"v_mul_f32 v{O[qt]+r}, v{O[qt]+r}, v{vt[3]}")
        for r in range(16): k(f"v_sub_f32 v{Sx[qt]+r}, v{Sx[qt]+r}, v{vt[2]}")
        for r in range(16): k(f"v_exp_f32 v{Sx[qt]+r}, v{Sx[qt]+r}")
        for r in range(8): k(f"v_cvt_pk_bf16_f32 v{P[qt]+r}, v{Sx[qt]+2*r}, v{Sx[qt]+2*r+1}")
        for l in pv(qt, 0): k(l)
    k("s_nop 7"); k("s_nop 7")
    k(f"s_add_u32 s{s_it}, s{s_it}, 1")
    k(f"s_cmp_lt_u32 s{s_it}, 32")
    k(f"s_cbranch_scc1 {k.L('fb')}")
    k.label(k.L("merge"))
    k(f"s_cmp_eq_u32 s{s_kh}, 0")
    k(f"s_cbranch_scc1 {k.L('noswap')}")
    for r in range(12): k(f"v_swap_b32 v{O[0]+r}, v{O[1]+r}")
    k(f"v_swap_b32 v{vm[0]}, v{vm[1]}")
    k.label(k.L("noswap"))
    k(f"v_mov_b32 v{O[1]+12}, v{vm[1]}")
    k(f"s_lshl_b32 s{s_t0}, s{s_w}, 12")
    k(f"v_lshl_add_u32 v{vt[0]}, v{v_lane}, 4, s{s_t0}")
    k(f"v_xor_b32 v{vt[1]}, {4 << 12}, v{vt[0]}")
    for q in range(4): k(f"ds_write_b128 v{vt[0]}, {vr(O[1] + 4*q, 4)} offset:{q*1024}")
    k("s_waitcnt lgkmcnt(0)")
    k("s_barrier")
    k.stamp(5)
    for q in range(4): k(f"ds_read_b128 {vr(Sx[0] + 4*q, 4)}, v{vt[1]} offset:{q*1024}")
    k(f"s_lshl_b32 s{s_t0}, s{s_qb}, 12"); k(f"s_lshl_b32 s{s_t1}, s{s_qs}, 10"); k(f"s_add_u32 s{s_t0}, s{s_t0}, s{s_t1}")
    k(f"s_lshl_b32 s{s_t1}, s{s_kh}, 9"); k(f"s_add_u32 s{s_t0}, s{s_t0}, s{s_t1}"); k(f"s_add_u32 s{s_t0}, s{s_t0}, {O_OFF}")
    k("s_waitcnt lgkmcnt(0)")
    mo = Sx[0] + 12
    k(f"v_max_f32 v{vt[2]}, v{vm[0]}, v{mo}")
    k(f"v_sub_f32 v{vt[3]}, v{vm[0]}, v{vt[2]}"); k(f"v_sub_f32 v{vt[4]}, v{mo}, v{vt[2]}")
    k(f"v_exp_f32 v{vt[3]}, v{vt[3]}"); k(f"v_exp_f32 v{vt[4]}, v{vt[4]}")
    for r in range(12): k(f"v_mul_f32 v{O[0]+r}, v{O[0]+r}, v{vt[3]}")
    for r in range(12): k(f"v_fmac_f32 v{O[0]+r}, v{Sx[0]+r}, v{vt[4]}")
    k(f"v_mov_b32 v{vt[5]}, v{O[0]+8}"); k(f"v_mov_b32 v{vt[6]}, v{O[0]+8}")
    k(f"v_permlane32_swap_b32 v{vt[5]}, v{vt[6]}")
    k(f"v_rcp_f32 v{vt[6]}, v{vt[6]}")
    for r in range(12): k(f"v_mul_f32 v{O[0]+r}, v{O[0]+r}, v{vt[6]}")
    for r in range(6): k(f"v_cvt_pk_bf16_f32 v{P[0]+r}, v{O[0]+2*r}, v{O[0]+2*r+1}")
    k(f"v_permlane32_swap_b32 v{P[0]}, v{P[0]+2}")
    k(f"v_permlane32_swap_b32 v{P[0]+1}, v{P[0]+3}")
    k(f"buffer_store_dwordx4 {vr(P[0],4)}, v{vK1}, {W}, s{s_t0} offen")
    k(f"s_mov_b64 exec, s[{s_lo}:{s_lo+1}]")
    k(f"buffer_store_dwordx2 {vr(P[0]+4,2)}, v{vK2}, {W}, s{s_t0} offen")
    k.stamp(6); k.dump(1, 9, s_w)
    k.label(k.L("end"))
    k("s_endpgm")
    return k, NV, 8 * 4096

def wgemm(kind):
    k = K(kind)
    op = kind == "oproj"; m1 = kind == "mlp1"; m2 = kind == "mlp2"
    KK = F if m2 else D
    NT = 4 if m1 else 2
    BROW = (F if m1 else D) * 2
    GS = 16 // NT
    GR = GS * 16
    NG = (KK + GR - 1) // GR
    NKS = KK // 16
    GB = 16384
    NSLOT = 5 if op else 8
    SB = NSLOT * GB
    A_OFF = {"oproj": O_OFF, "mlp1": H_OFF, "mlp2": G_OFF}[kind]
    sB, sW, sR, sO, sBi = 4, 8, 12, 16, 44
    s_r, s_cb, s_w, s_t0, s_t1, s_offB, s_offA, s_m0, s_it, s_wid = 20, 21, 22, 23, 24, 25, 26, 27, 28, 35
    v_lane, v_t, v_h = 1, 2, 3
    vBd = [4, 5, 6, 7]; vBr = [4, 5, 6, 7]; vA = 8; vS = 9; vO = 11
    vt = [12, 13, 14, 15]
    RES = 16; BI = 32; ACC = 48
    DIST = 6; NFB = 8; FB = ACC + 16 * NT
    LA = int(os.environ.get("LA", "14")); NFA = 16; FA = FB + NFB * 4
    NV = FA + NFA * 4
    kidx = {"oproj": 2, "mlp1": 3, "mlp2": 4}[kind]
    k.stamp(0); k.stamp(1, True)
    k(f"s_cmp_ge_u32 s2, {224 if m1 else 240}"); k(f"s_cbranch_scc1 {k.L('end')}")
    if op:
        k("s_load_dwordx2 s[36:37], s[0:1], 16")
        k("s_load_dwordx2 s[38:39], s[0:1], 0")
    elif m1:
        k("s_load_dwordx2 s[36:37], s[0:1], 32")
    else:
        k("s_load_dwordx4 s[36:39], s[0:1], 48")
        k("s_load_dwordx2 s[42:43], s[0:1], 64")
    k("s_load_dwordx2 s[40:41], s[0:1], 80")
    k(f"v_lshrrev_b32 v{vt[0]}, 6, v0")
    k(f"v_and_b32 v{v_lane}, 63, v0")
    k(f"v_readfirstlane_b32 s{s_wid}, v{vt[0]}")
    k(f"s_lshr_b32 s{s_t0}, s2, 3")
    if m1:
        k(f"s_and_b32 s{s_r}, s{s_t0}, 1"); k(f"s_lshr_b32 s{s_cb}, s{s_t0}, 1")
        k(f"s_lshl_b32 s{s_t1}, s{s_cb}, 8")
    else:
        k(f"s_mul_i32 s{s_cb}, s{s_t0}, 43"); k(f"s_lshr_b32 s{s_cb}, s{s_cb}, 7")
        k(f"s_mul_i32 s{s_t1}, s{s_cb}, 3"); k(f"s_sub_u32 s{s_r}, s{s_t0}, s{s_t1}")
        k(f"s_lshl_b32 s{s_t1}, s{s_cb}, 7")
    k(f"s_and_b32 s{s_w}, s{s_wid}, 3")
    k(f"s_cmp_lt_u32 s{s_wid}, 4")
    k(f"s_cbranch_scc1 {k.L('compute')}")
    if m1:
        k(f"v_lshrrev_b32 v{vt[0]}, 4, v{v_lane}")
        k(f"v_and_b32 v{vt[1]}, 15, v{v_lane}")
        k(f"v_lshlrev_b32 v{vt[2]}, 2, v{vt[0]}")
    else:
        k(f"v_lshrrev_b32 v{vt[0]}, 3, v{v_lane}")
        k(f"v_and_b32 v{vt[1]}, 7, v{v_lane}")
        k(f"v_bfe_u32 v{vt[2]}, v{v_lane}, 4, 1")
        k(f"v_lshlrev_b32 v{vt[2]}, 2, v{vt[2]}")
    k(f"v_xor_b32 v{vt[1]}, v{vt[1]}, v{vt[2]}")
    k(f"v_mul_u32_u24 v{vt[0]}, {BROW}, v{vt[0]}")
    k(f"v_lshl_add_u32 v{vBd[0]}, v{vt[1]}, 4, v{vt[0]}")
    for ii in range(1, 4):
        k(f"v_add_u32 v{vBd[ii]}, {ii * (GR // 16 * BROW - 1024)}, v{vBd[0]}")
    k(f"s_mul_i32 s{s_offB}, s{s_w}, {GR // 4 * BROW}"); k(f"s_add_u32 s{s_offB}, s{s_offB}, s{s_t1}")
    k(f"s_lshl_b32 s{s_m0}, s{s_w}, 12")
    k(f"s_mov_b32 s{s_it}, 0")
    k("s_waitcnt lgkmcnt(0)")
    srd(k, sB, 36, 37, D * F * 2 if not op else D * D * 2)
    def issue():
        r = [f"s_mov_b32 m0, s{s_m0}", f"s_add_u32 s{s_m0}, s{s_m0}, {GB}"]
        for ii in range(4):
            r.append(f"buffer_load_dwordx4 v{vBd[ii]}, s[{sB}:{sB+3}], s{s_offB} offen offset:{ii*1024} lds")
        r.append(f"s_add_u32 s{s_offB}, s{s_offB}, {GR * BROW}")
        if not op: r.append(f"s_and_b32 s{s_m0}, s{s_m0}, {NSLOT * GB - 1}")
        return r
    k.stamp(2)
    for l in issue() + issue(): k(l)
    k.label(k.L("lloop"))
    for l in issue(): k(l)
    k("s_waitcnt vmcnt(8)")
    k("s_barrier")
    k(f"s_add_u32 s{s_it}, s{s_it}, 1")
    k(f"s_cmp_lt_u32 s{s_it}, {NG - 2}")
    k(f"s_cbranch_scc1 {k.L('lloop')}")
    ex = 0
    if m1:
        srd(k, sW, 40, 41, WS_END)
        k(f"s_lshl_b32 s{s_t0}, s{s_cb}, 10"); k(f"s_lshl_b32 s{s_t1}, s{s_w}, 8"); k(f"s_add_u32 s{s_t0}, s{s_t0}, s{s_t1}")
        k(f"s_add_u32 s{s_t0}, s{s_t0}, {C1_OFF}")
        k(f"s_add_u32 m0, s{s_t1}, {SB}")
        k(f"v_lshlrev_b32 v{vt[3]}, 2, v{v_lane}")
        k(f"buffer_load_dword v{vt[3]}, s[{sW}:{sW+3}], s{s_t0} offen lds")
        ex = 1
    k(f"s_waitcnt vmcnt({4 + ex})"); k("s_barrier")
    k(f"s_waitcnt vmcnt({ex})"); k("s_barrier")
    if m1:
        k("s_waitcnt vmcnt(0)"); k("s_barrier")
    k.stamp(3); k.stamp(4); k.stamp(5); k.stamp(6); k.dump(kidx, 9, s_wid)
    k("s_endpgm")
    k.label(k.L("compute"))
    if m1:
        k(f"s_lshl_b32 s{s_t0}, s{s_r}, 2"); k(f"s_add_u32 s{s_t0}, s{s_t0}, s{s_w}")
    else:
        k(f"s_cmp_eq_u32 s{s_w}, 3"); k(f"s_cbranch_scc1 {k.L('end')}")
        k(f"s_mul_i32 s{s_t0}, s{s_r}, 3"); k(f"s_add_u32 s{s_t0}, s{s_t0}, s{s_w}")
        k(f"s_cmp_ge_u32 s{s_t0}, 8"); k(f"s_cbranch_scc1 {k.L('end')}")
    k(f"s_and_b32 s{s_it}, s2, 7"); k(f"s_lshl_b32 s{s_it}, s{s_it}, 3"); k(f"s_add_u32 s{s_t0}, s{s_t0}, s{s_it}")
    k(f"s_lshl_b32 s{s_t0}, s{s_t0}, 5")
    k(f"v_and_b32 v{v_t}, 31, v0")
    k(f"v_bfe_u32 v{v_h}, v0, 5, 1")
    k(f"v_add_u32 v{vt[0]}, s{s_t0}, v{v_t}")
    k(f"v_lshlrev_b32 v{vA}, 15, v{v_h}")
    k(f"v_lshl_add_u32 v{vA}, v{vt[0]}, 4, v{vA}")
    k(f"s_mov_b32 s{s_offA}, {A_OFF}")
    k("s_waitcnt lgkmcnt(0)")
    srd(k, sW, 40, 41, WS_END)
    def aload(i):
        return [f"buffer_load_dwordx4 {vr(FA + (i % NFA) * 4, 4)}, v{vA}, s[{sW}:{sW+3}], s{s_offA} offen",
                f"s_add_u32 s{s_offA}, s{s_offA}, {2 * CH}"]
    LA0 = LA if not m1 else int(os.environ.get("LA1", "10"))
    LA = LA0
    for i in range(LA):
        for l in aload(i): k(l)
    late = []
    if m1:
        k(f"s_lshl_b32 s{s_t0}, s{s_cb}, 19"); k(f"s_add_u32 s{s_t0}, s{s_t0}, {G_OFF}")
        k(f"v_add_u32 v{vO}, s{s_t0}, v{vA}")
        k(f"v_mul_u32_u24 v{vt[1]}, {5 * 16384}, v{v_h}")
        k(f"v_lshl_add_u32 v{vS}, v{vt[0]}, 3, v{vt[1]}")
        for i in range(5):
            late.append([f"s_mov_b32 s{s_t0}, {HS_OFF + i * 16384}",
                         f"buffer_load_dwordx2 {vr(RES + 2*i, 2)}, v{vS}, s[{sW}:{sW+3}], s{s_t0} offen"])
        k(f"v_bfe_u32 v{vt[0]}, v{v_lane}, 2, 2")
        k(f"v_lshl_add_u32 v{vt[1]}, v{v_h}, 3, v{vt[0]}")
        k(f"v_lshlrev_b32 v{vt[1]}, 8, v{vt[1]}")
        k(f"v_lshl_add_u32 v{vt[0]}, v{vt[0]}, 6, v{vt[1]}")
    else:
        k(f"v_mul_u32_u24 v{vt[1]}, 1280, v{vt[0]}")
        k(f"v_lshl_add_u32 v{vt[1]}, v{v_h}, 4, v{vt[1]}")
        k(f"v_add_u32 v{vt[1]}, s{s_t1}, v{vt[1]}")
        k(f"s_lshl_b32 s{s_t0}, s{s_cb}, 18"); k(f"s_add_u32 s{s_t0}, s{s_t0}, {H_OFF}")
        k(f"v_add_u32 v{vt[2]}, s{s_t0}, v{vA}")
        k(f"v_mov_b32 v{vO}, v{vt[2] if op else vt[1]}")
        if op:
            k(f"s_lshl_b32 s{s_t0}, s{s_cb}, 14"); k(f"s_add_u32 s{s_t0}, s{s_t0}, {HS_OFF}")
            k(f"v_lshl_add_u32 v{vS}, v{vt[0]}, 3, s{s_t0}")
        k(f"v_bfe_u32 v{vt[0]}, v{v_lane}, 2, 2")
        k(f"v_lshl_add_u32 v{vt[0]}, v{v_h}, 3, v{vt[0]}")
        k(f"v_lshlrev_b32 v{vt[0]}, 7, v{vt[0]}")
        k(f"v_bfe_u32 v{vt[3]}, v{v_lane}, 3, 1")
        k(f"v_lshl_add_u32 v{vt[0]}, v{vt[3]}, 6, v{vt[0]}")
    k(f"v_bfe_u32 v{vt[3]}, v{v_lane}, 4, 1")
    k(f"v_lshl_add_u32 v{vt[0]}, v{vt[3]}, 5, v{vt[0]}")
    k(f"v_and_b32 v{vt[3]}, 3, v{v_lane}")
    k(f"v_lshl_add_u32 v{vBr[0]}, v{vt[3]}, 3, v{vt[0]}")
    for j in range(1, NT): k(f"v_xor_b32 v{vBr[j]}, {64 * j}, v{vBr[0]}")
    for c in range(4): k(f"s_mov_b32 s{48 + c}, {2*c*CH}")
    if op:
        srd(k, sR, 38, 39, S * D * 2)
        for c in range(4):
            late.append([f"buffer_load_dwordx4 {vr(RES + 4*c, 4)}, v{vt[1]}, s[{sR}:{sR+3}], 0 offen offset:{32*c}"])
    elif m2:
        srd(k, sO, 42, 43, S * D * 2); srd(k, sBi, 38, 39, D * 2)
        k(f"v_lshlrev_b32 v{vt[0]}, 3, v{v_h}")
        for c in range(4):
            late.append([f"buffer_load_dwordx4 {vr(RES + 4*c, 4)}, v{vt[2]}, s[{sW}:{sW+3}], s{48 + c} offen"])
        for c in range(8):
            late.append([f"buffer_load_dwordx2 {vr(BI + 2*c, 2)}, v{vt[0]}, s[{sBi}:{sBi+3}], s{s_t1} offen offset:{16*c}"])
    cur_base = 0
    NM = NKS * NT
    KSB = GB // GS
    def bread(m):
        nonlocal cur_base
        ks, j = divmod(m, NT)
        G, q = divmod(ks, GS)
        off = (G % NSLOT) * GB + q * KSB
        r = []
        if q == 0 and j == 0: r.append("s_barrier")
        base = (off // 65536) * 65536
        if base != cur_base:
            for a in vBr[:NT]: r.append(f"v_add_u32 v{a}, {(base - cur_base) & 0xffffffff:#x}, v{a}")
            cur_base = base
        for e in range(2):
            r.append(f"ds_read_b64_tr_b16 {vr(FB + (m % NFB) * 4 + 2*e, 2)}, v{vBr[j]} offset:{off - base + e * (KSB // 4)}")
        return r
    k.stamp(2)
    if K.prof: k("s_waitcnt lgkmcnt(0)")
    for m in range(DIST):
        for l in bread(m): k(l)
    vq = [("A", i) for i in range(LA)]
    for m in range(NM):
        ks, j = divmod(m, NT)
        nout = 2 * (min(NM, m + DIST) - m - 1)
        if j == 0:
            pos = vq.index(("A", ks))
            k(f"s_waitcnt vmcnt({len(vq) - 1 - pos}) lgkmcnt({nout})")
        else:
            k(f"s_waitcnt lgkmcnt({nout})")
        cc = vr(ACC + 16*j, 16) if ks else "0"
        k(f"v_mfma_f32_32x32x16_bf16 {vr(ACC + 16*j, 16)}, {vr(FB + (m % NFB) * 4, 4)}, {vr(FA + (ks % NFA) * 4, 4)}, {cc}")
        if m + DIST < NM:
            for l in bread(m + DIST): k(l)
        if j == 0 and ks + LA < NKS:
            for l in aload(ks + LA): k(l)
            vq.append(("A", ks + LA))
        if j == 0 and late and ks + LA >= NKS:
            for _ in range(2):
                if late:
                    for l in late.pop(0): k(l)
                    vq.append(("R", 0))
    assert not late
    k.stamp(3)
    if m1:
        k("s_barrier")
        T = FB; CSB = [FB + 32, FB + 64]
        k(f"v_lshlrev_b32 v{vt[0]}, 4, v{v_h}"); k(f"v_add_u32 v{vt[0]}, {SB}, v{vt[0]}")
        def csread(nt):
            for rq in range(8):
                k(f"ds_read_b128 {vr(CSB[nt % 2] + rq*4, 4)}, v{vt[0]} offset:{(rq // 4) * 512 + nt*128 + (rq % 4)*32}")
        csread(0)
        k("s_waitcnt vmcnt(0)")
        PS = RES; MR = 28
        for i in range(1, 5): k(f"v_pk_add_f32 {vr(PS,2)}, {vr(PS,2)}, {vr(PS + 2*i, 2)}")
        k(f"v_mov_b32 v{PS+2}, v{PS}"); k(f"v_mov_b32 v{PS+3}, v{PS+1}")
        k(f"v_permlane32_swap_b32 v{PS}, v{PS+2}"); k(f"v_permlane32_swap_b32 v{PS+1}, v{PS+3}")
        k(f"v_pk_add_f32 {vr(PS,2)}, {vr(PS,2)}, {vr(PS + 2, 2)}")
        rowstat_math(k, PS, PS + 1, MR, MR + 1, PS + 2, True)
        C0 = -2.0 * math.log2(math.e) * math.sqrt(2.0 / math.pi)
        k(f"s_mov_b32 s44, {f32(C0 * 0.044715)}"); k(f"s_mov_b32 s45, {f32(C0 * 0.044715)}")
        k(f"v_mov_b32 v{vt[2]}, {f32(C0)}"); k(f"v_mov_b32 v{vt[3]}, {f32(C0)}")
        k.stamp(4); k.stamp(5)
        for nt in range(4):
            if nt == 2:
                k(f"s_cmp_eq_u32 s{s_cb}, 13"); k(f"s_cbranch_scc1 {k.L('done')}")
                k(f"v_add_u32 v{vO}, {8 * CH}, v{vO}")
            k("s_waitcnt lgkmcnt(0)")
            if nt < 3: csread(nt + 1)
            a = ACC + 16 * nt; CS = CSB[nt % 2]; B1 = CS + 16
            for p in range(8):
                x = vr(a + 2*p, 2)
                k(f"v_pk_fma_f32 {x}, {vr(CS + 2*p, 2)}, {vr(MR,2)}, {x} op_sel_hi:[1,0,1]")
            for p in range(8):
                x = vr(a + 2*p, 2)
                k(f"v_pk_fma_f32 {x}, {x}, {vr(MR,2)}, {vr(B1 + 2*p, 2)} op_sel:[0,1,0] op_sel_hi:[1,1,1]")
            for p in range(8):
                x = vr(a + 2*p, 2); t = vr(T + 2*p, 2)
                k(f"v_pk_mul_f32 {t}, {x}, {x}")
            for p in range(8):
                t = vr(T + 2*p, 2)
                k(f"v_pk_fma_f32 {t}, {t}, s[44:45], {vr(vt[2],2)}")
            for p in range(8):
                x = vr(a + 2*p, 2); t = vr(T + 2*p, 2)
                k(f"v_pk_mul_f32 {t}, {t}, {x}")
            for r in range(16): k(f"v_exp_f32 v{T + r}, v{T + r}")
            for p in range(8):
                t = vr(T + 2*p, 2)
                k(f"v_pk_add_f32 {t}, {t}, 1.0 op_sel_hi:[1,0]")
            for r in range(16): k(f"v_rcp_f32 v{T + r}, v{T + r}")
            for p in range(8):
                x = vr(a + 2*p, 2); t = vr(T + 2*p, 2)
                k(f"v_pk_mul_f32 {x}, {x}, {t}")
            Pk = T + 16 + (nt % 2) * 8
            for p in range(8):
                k(f"v_cvt_pk_bf16_f32 v{Pk + p}, v{a + 2*p}, v{a + 2*p + 1}")
            for pq in range(2):
                b = Pk + 4*pq
                k(f"v_permlane32_swap_b32 v{b}, v{b+2}")
                k(f"v_permlane32_swap_b32 v{b+1}, v{b+3}")
            for pq in range(2):
                k(f"buffer_store_dwordx4 {vr(Pk + 4*pq,4)}, v{vO}, s[{sW}:{sW+3}], s{48 + (nt % 2)*2 + pq} offen")
        k.label(k.L("done"))
    else:
        T = FA
        k.stamp(4); k.stamp(5)
        k("s_waitcnt vmcnt(0)")
        for c in range(4):
            k(f"v_permlane32_swap_b32 v{RES + 4*c}, v{RES + 4*c + 2}")
            k(f"v_permlane32_swap_b32 v{RES + 4*c + 1}, v{RES + 4*c + 3}")
        for r in range(16):
            k(f"v_lshlrev_b32 v{T + 2*r}, 16, v{RES + r}")
            k(f"v_and_b32 v{T + 2*r + 1}, 0xffff0000, v{RES + r}")
        if m2:
            for r in range(16):
                k(f"v_lshlrev_b32 v{T + 32 + 2*r}, 16, v{BI + r}")
                k(f"v_and_b32 v{T + 32 + 2*r + 1}, 0xffff0000, v{BI + r}")
            for r in range(16):
                k(f"v_pk_add_f32 {vr(T + 2*r, 2)}, {vr(T + 2*r, 2)}, {vr(T + 32 + 2*r, 2)}")
        else:
            k(f"v_mov_b32 v{vt[0]}, 0"); k(f"v_mov_b32 v{vt[1]}, 0"); k(f"s_mov_b32 s{s_t1}, 0x3f803f80")
        for c in range(4):
            for r in range(4*c, 4*c + 4):
                k(f"v_pk_add_f32 {vr(T + 2*r, 2)}, {vr(T + 2*r, 2)}, {vr(ACC + 2*r, 2)}")
            for r in range(4*c, 4*c + 4):
                k(f"v_cvt_pk_bf16_f32 v{RES + r}, v{T + 2*r}, v{T + 2*r + 1}")
            k(f"v_permlane32_swap_b32 v{RES + 4*c}, v{RES + 4*c + 2}")
            k(f"v_permlane32_swap_b32 v{RES + 4*c + 1}, v{RES + 4*c + 3}")
            if op:
                k(f"buffer_store_dwordx4 {vr(RES + 4*c, 4)}, v{vO}, s[{sW}:{sW+3}], s{48 + c} offen")
            else:
                k(f"buffer_store_dwordx4 {vr(RES + 4*c, 4)}, v{vO}, s[{sO}:{sO+3}], 0 offen offset:{32*c}")
        if op:
            for r in range(16):
                k(f"v_dot2c_f32_bf16 v{vt[0]}, s{s_t1}, v{RES + r}")
                k(f"v_dot2c_f32_bf16 v{vt[1]}, v{RES + r}, v{RES + r}")
            k(f"v_mov_b32 v{vt[2]}, v{vt[0]}"); k(f"v_mov_b32 v{vt[3]}, v{vt[1]}")
            k(f"v_permlane32_swap_b32 v{vt[0]}, v{vt[2]}"); k(f"v_permlane32_swap_b32 v{vt[1]}, v{vt[3]}")
            k(f"v_add_f32 v{vt[0]}, v{vt[0]}, v{vt[2]}"); k(f"v_add_f32 v{vt[1]}, v{vt[1]}, v{vt[3]}")
            k("s_mov_b32 exec_hi, 0")
            k(f"buffer_store_dwordx2 {vr(vt[0], 2)}, v{vS}, s[{sW}:{sW+3}], 0 offen")
    k.stamp(6); k.dump(kidx, 9, s_wid)
    k.label(k.L("end"))
    k("s_endpgm")
    return k, NV, SB + (1024 if m1 else 0)

HEADER = open("sequential_preLN__mha_block__mixer_channel_mlp__prompt.s.ref").read().split("; Override")[0]

def build(path):
    ks = [(lngemm("qkv"), 256, 512), (attn(), 256, 512), (wgemm("oproj"), 240, 512), ((lngemm if "oldm1" in X else wgemm)("mlp1"), 224, 512), (wgemm("mlp2"), 240, 512)]
    def nop():
        k = K("nop"); k("s_endpgm"); return k, 8, 0
    order = list(range(len(ks)))
    if "nopend" in X: ks.append((nop(), 256, 256)); order = order + [5]
    if "nopbeg" in X: ks.append((nop(), 256, 256)); order = [5] + order
    if "nop3" in X: ks.append((nop(), 256, 256)); order = order + [5, 5, 5]
    if "dup" in X: order = order + order
    t = HEADER
    for (k, nv, lds), grid, block in [ks[i] for i in order]:
        t += f"; @launch kernel={k.name}_kernel grid=({grid},1,1) block=({block},1,1) lds={lds}\n"
    t += '.amdgcn_target "amdgcn-amd-amdhsa--gfx950"\n.text\n'
    for (k, nv, lds), grid, block in ks:
        t += kernel_text(k, nv)
    t += "L_code_end:\n"
    t += '.section .rodata,"a"\n'
    for (k, nv, lds), grid, block in ks:
        t += kernel_desc(k, nv)
    open(path, "w").write(t)

if __name__ == "__main__":
    if len(sys.argv) > 2 and sys.argv[2] == "prof": K.prof = True
    if len(sys.argv) > 2 and sys.argv[2] == "dbg": K.prof = "dbg"
    build(sys.argv[1] if len(sys.argv) > 1 else "sequential_preLN__mha_block__mixer_channel_mlp__prompt.s")
```

```python
import sys, math, struct, os
X = set(os.environ.get("EXP", "").split(","))
from asmlib import K, vr, sr, kernel_text, kernel_desc

S = 2048; D = 640; F = 1728; H = 32; DH = 20
QK_OFF = 0x0
V_OFF = 0x500000
O_OFF = 0x780000
H_OFF = 0xA00000
G_OFF = 0xC80000
HS_OFF = 0x1340000
C1_OFF = 0x1370000
ST_OFF = 0x1378000
WS_END = 0x1400000
G_END = 0x1340000
CH = S * 16
EPS = 1e-5

def f32(x):
    return "0x%08x" % struct.unpack("<I", struct.pack("<f", x))[0]

def srd(k, d, lo, hi, size):
    k(f"s_mov_b32 s{d}, s{lo}")
    k(f"s_and_b32 s{d+1}, s{hi}, 0xffff")
    k(f"s_mov_b32 s{d+2}, {size:#x}")
    k(f"s_mov_b32 s{d+3}, 0x00020000")

def code_prefetch(k, first, sd, st, vaddr, vdst, v_lane, per=12):
    lab = k.L("pc%d" % k.uid); k.uid += 1
    k(f"s_getpc_b64 s[{sd}:{sd+1}]")
    k.label(lab)
    k(f"s_add_u32 s{sd}, s{sd}, {first}-{lab}")
    k(f"s_addc_u32 s{sd+1}, s{sd+1}, {'-1' if first == k.name + '_kernel' else '0'}")
    k(f"s_and_b32 s{sd+1}, s{sd+1}, 0xffff")
    k(f"s_mov_b32 s{sd+2}, L_code_end-{first}")
    k(f"s_mov_b32 s{sd+3}, 0x00020000")
    k(f"s_lshr_b32 s{st}, s2, 3"); k(f"s_mul_i32 s{st}, s{st}, {per * 128}")
    k(f"v_lshlrev_b32 v{vaddr}, 7, v{v_lane}")
    k(f"s_mov_b64 exec, {(1 << per) - 1:#x}")
    k(f"buffer_load_dword v{vdst}, v{vaddr}, s[{sd}:{sd+3}], s{st} offen")
    k("s_mov_b64 exec, -1")

def rowstat_math(k, s_, q_, nm, rs, t, double):
    k(f"v_mul_f32 v{nm}, {f32(-1.0 / D)}, v{s_}")
    k(f"v_mul_f32 v{q_}, {f32(1.0 / D)}, v{q_}")
    k(f"v_fma_f32 v{q_}, -v{nm}, v{nm}, v{q_}")
    k(f"v_max_f32 v{q_}, 0, v{q_}")
    k(f"v_add_f32 v{t}, {f32(EPS)}, v{q_}")
    k(f"v_rsq_f32 v{rs}, v{t}")
    if double:
        k(f"v_mul_f32 v{t}, v{rs}, v{rs}")
        k(f"v_mul_f32 v{t}, v{t}, v{q_}")
        k(f"v_add_f32 v{t}, {f32(EPS)}, v{t}")
        k(f"v_rsq_f32 v{t}, v{t}")
        k(f"v_mul_f32 v{rs}, v{rs}, v{t}")

def lngemm(kind):
    k = K(kind)
    qkv = kind == "qkv"
    NB = 1920 if qkv else F
    BROW = NB * 2
    NS = 4; SLOT = 32768; NST = 10
    SB = NS * SLOT
    SL = SB + 2048
    sA, sB, sW, sBi = 4, 8, 12, 16
    s_mb, s_nb, s_w = 20, 21, 22
    s_wm, s_wn = 23, 24
    s_offA, s_offB, s_m0, s_it, s_delta, s_t0, s_t1, s_slot = 25, 26, 27, 28, 29, 30, 31, 32
    s_ones = 33
    s_wid = 35
    v_lane, v_t, v_h = 1, 2, 3
    vAd = [4, 5, 6, 7]; vBd = [8, 9, 10, 11]
    vBr = [12, 13]
    v_b1 = 17
    vt = [18, 19, 20, 21, 22, 23]
    vAr = [24, 25, 26, 27]
    FA = [[32 + 16 * i, 36 + 16 * i] for i in range(4)]
    FB = [[40 + 16 * i, 44 + 16 * i] for i in range(4)]
    ACC = 96
    def acc(mt, nt): return ACC + (mt * 2 + nt) * 16
    EP = 160
    kidx = 0 if qkv else 3

    k.stamp(0); k.stamp(1, True)
    k(f"s_cmp_ge_u32 s2, {256 if qkv else 224}"); k(f"s_cbranch_scc1 {k.L('end')}")
    if qkv:
        k("s_load_dwordx4 s[36:39], s[0:1], 0")
        k("s_load_dwordx4 s[40:43], s[0:1], 72")
        WSL = 42
    else:
        k("s_load_dwordx2 s[36:37], s[0:1], 32")
        k("s_load_dwordx2 s[40:41], s[0:1], 80")
        WSL = 40
    k(f"s_and_b32 s{s_t0}, s2, 7"); k(f"s_lshr_b32 s{s_t1}, s2, 3")
    if qkv:
        k(f"s_lshr_b32 s{s_mb}, s{s_t0}, 1"); k(f"s_lshl_b32 s{s_mb}, s{s_mb}, 2")
        k(f"s_and_b32 s{s_nb}, s{s_t1}, 3"); k(f"s_add_u32 s{s_mb}, s{s_mb}, s{s_nb}")
        k(f"s_and_b32 s{s_nb}, s{s_t0}, 1"); k(f"s_lshl_b32 s{s_nb}, s{s_nb}, 3")
        k(f"s_lshr_b32 s{s_t1}, s{s_t1}, 2"); k(f"s_add_u32 s{s_nb}, s{s_nb}, s{s_t1}")
    else:
        k(f"s_lshl_b32 s{s_mb}, s{s_t0}, 1"); k(f"s_and_b32 s{s_nb}, s{s_t1}, 1"); k(f"s_add_u32 s{s_mb}, s{s_mb}, s{s_nb}")
        k(f"s_lshr_b32 s{s_nb}, s{s_t1}, 1")
    k(f"v_lshrrev_b32 v{vt[0]}, 6, v0")
    k(f"v_and_b32 v{v_lane}, 63, v0")
    k(f"v_readfirstlane_b32 s{s_wid}, v{vt[0]}")
    k(f"v_and_b32 v{v_t}, 31, v0")
    k(f"v_bfe_u32 v{v_h}, v0, 5, 1")
    k(f"s_and_b32 s{s_w}, s{s_wid}, 3")
    k(f"s_cmp_lt_u32 s{s_wid}, 4")
    k(f"s_cbranch_scc1 {k.L('compute')}")
    if qkv:
        k(f"s_cmp_ge_u32 s{s_nb}, 15"); k(f"s_cbranch_scc1 {k.L('auxl')}")
        k(f"v_lshrrev_b32 v{vt[0]}, 3, v{v_lane}")
        k(f"v_and_b32 v{vt[1]}, 7, v{v_lane}")
        k(f"v_lshrrev_b32 v{vt[2]}, 1, v{vt[0]}")
        k(f"v_xor_b32 v{vt[2]}, v{vt[2]}, v{vt[1]}")
        k(f"v_xor_b32 v{vt[3]}, 4, v{vt[2]}")
        k(f"s_lshl_b32 s{s_t0}, s{s_mb}, 7"); k(f"s_lshl_b32 s{s_t1}, s{s_w}, 5"); k(f"s_add_u32 s{s_t0}, s{s_t0}, s{s_t1}")
        k(f"v_add_u32 v{vt[0]}, s{s_t0}, v{vt[0]}")
        k(f"v_mul_u32_u24 v{vt[0]}, 1280, v{vt[0]}")
        for ii in range(4):
            k(f"v_lshl_add_u32 v{vAd[ii]}, v{vt[2 + (ii & 1)]}, 4, v{vt[0]}")
            if ii: k(f"v_add_u32 v{vAd[ii]}, {ii * (8 * 1280 - 1024)}, v{vAd[ii]}")
        stepA = 128
    else:
        k(f"s_lshl_b32 s{s_t0}, s{s_mb}, 11")
        k(f"s_mul_i32 s{s_t1}, s{s_w}, {2 * CH}")
        k(f"s_add_u32 s{s_t0}, s{s_t0}, s{s_t1}")
        k(f"s_add_u32 s{s_t0}, s{s_t0}, {H_OFF}")
        k(f"v_lshl_add_u32 v{vAd[0]}, v{v_lane}, 4, s{s_t0}")
        k(f"v_mov_b32 v{vAd[1]}, v{vAd[0]}")
        k(f"v_add_u32 v{vAd[2]}, {CH - 2048}, v{vAd[0]}")
        k(f"v_add_u32 v{vAd[3]}, {CH - 2048}, v{vAd[0]}")
        stepA = 8 * CH
    k(f"v_lshrrev_b32 v{vt[0]}, 4, v{v_lane}")
    k(f"v_and_b32 v{vt[1]}, 15, v{v_lane}")
    k(f"v_lshlrev_b32 v{vt[2]}, 2, v{vt[0]}")
    k(f"v_xor_b32 v{vt[1]}, v{vt[1]}, v{vt[2]}")
    k(f"s_lshl_b32 s{s_t0}, s{s_w}, 4")
    k(f"v_add_u32 v{vt[0]}, s{s_t0}, v{vt[0]}")
    k(f"v_mul_u32_u24 v{vt[0]}, {BROW}, v{vt[0]}")
    k(f"v_lshl_add_u32 v{vt[0]}, v{vt[1]}, 4, v{vt[0]}")
    k(f"s_lshl_b32 s{s_t0}, s{s_nb}, 8")
    k(f"v_add_u32 v{vBd[0]}, s{s_t0}, v{vt[0]}")
    for ii in range(1, 4):
        k(f"v_add_u32 v{vBd[ii]}, {ii * (4 * BROW - 1024)}, v{vBd[0]}")
    stepB = 64 * BROW
    k(f"s_mov_b32 s{s_offA}, 0"); k(f"s_mov_b32 s{s_offB}, 0")
    k(f"s_lshl_b32 s{s_m0}, s{s_w}, 12")
    k(f"s_mov_b32 s{s_it}, 0")
    k("s_waitcnt lgkmcnt(0)")
    if qkv:
        srd(k, sA, 36, 37, S * D * 2); srd(k, sB, 38, 39, D * NB * 2)
    else:
        srd(k, sB, 36, 37, D * NB * 2); srd(k, sW, WSL, WSL + 1, WS_END)
        sA = sW
    def dma_stage():
        r = []
        r.append(f"s_mov_b32 m0, s{s_m0}")
        for ii in range(4):
            r.append(f"buffer_load_dwordx4 v{vAd[ii]}, s[{sA}:{sA+3}], s{s_offA} offen offset:{ii*1024} lds")
        r.append(f"s_add_u32 m0, s{s_m0}, 16384")
        for ii in range(4):
            r.append(f"buffer_load_dwordx4 v{vBd[ii]}, s[{sB}:{sB+3}], s{s_offB} offen offset:{ii*1024} lds")
        r.append(f"s_add_u32 s{s_offA}, s{s_offA}, {stepA}")
        r.append(f"s_add_u32 s{s_offB}, s{s_offB}, {stepB}")
        r.append(f"s_add_u32 s{s_m0}, s{s_m0}, {SLOT}")
        r.append(f"s_and_b32 s{s_m0}, s{s_m0}, {NS * SLOT - 1}")
        return r
    def lstep(n=8, dma=True):
        if dma:
            for l in dma_stage(): k(l)
        k(f"s_waitcnt vmcnt({n})")
        k("s_barrier")
    def lloop(tag, n):
        k(f"s_mov_b32 s{s_it}, 0")
        k.label(k.L("lloop" + tag))
        lstep()
        k(f"s_add_u32 s{s_it}, s{s_it}, 1")
        k(f"s_cmp_lt_u32 s{s_it}, {n}")
        k(f"s_cbranch_scc1 {k.L('lloop' + tag)}")
    XS = 32
    v_tag = 16
    RG_OFF = ST_OFF; CG_OFF = ST_OFF + 32768
    def slice_addr_rows():
        k(f"v_lshrrev_b32 v{vt[4]}, 4, v{v_lane}")
        k(f"v_and_b32 v{vt[5]}, 15, v{v_lane}")
        k(f"v_mul_u32_u24 v{vt[4]}, 1280, v{vt[4]}")
        k(f"v_lshl_add_u32 v{vt[4]}, v{vt[5]}, 4, v{vt[4]}")
        k(f"s_lshl_b32 s{s_t0}, s{s_mb}, 5"); k(f"s_lshl_b32 s{s_t1}, s{s_nb}, 1"); k(f"s_add_u32 s{s_t0}, s{s_t0}, s{s_t1}")
        k(f"s_add_u32 s{s_delta}, s{s_t0}, s{s_w}"); k(f"s_mul_i32 s{s_t0}, s{s_delta}, {4 * 1280}")
    def slice_load_rows():
        for i in range(5):
            k(f"buffer_load_dwordx4 {vr(XS + 4*i, 4)}, v{vt[4]}, s[{sA}:{sA+3}], s{s_t0} offen offset:{256 * i}")
    def tag_load():
        k(f"v_mov_b32 v15, 0")
        k(f"buffer_load_dword v{v_tag}, v15, s[{sBi}:{sBi+3}], 0 offen sc1")
    def tag_wait(tag):
        k(f"s_mov_b32 s{s_it}, 0")
        k.label(k.L("tw" + tag))
        k(f"v_cmp_eq_u32 vcc, 0, v{v_tag}")
        k(f"s_cbranch_vccz {k.L('tr' + tag)}")
        k("s_sleep 2")
        k(f"buffer_load_dword v{v_tag}, v15, s[{sBi}:{sBi+3}], 0 offen sc1")
        k(f"s_add_u32 s{s_it}, s{s_it}, 1")
        k("s_waitcnt vmcnt(0)")
        k(f"s_cmp_lt_u32 s{s_it}, 0x4000")
        k(f"s_cbranch_scc1 {k.L('tw' + tag)}")
        k.label(k.L("tr" + tag))
    def slice_rows(part):
        if part == 0:
            k("v_mov_b32 v56, 0"); k("v_mov_b32 v57, 0"); k("v_mov_b32 v58, 0"); k("v_mov_b32 v59, 0")
        for r in (range(13) if part == 0 else range(13, 20)):
            k(f"v_lshlrev_b32 v52, 16, v{XS + r}")
            k(f"v_and_b32 v53, 0xffff0000, v{XS + r}")
            k("v_add_f32 v56, v56, v52"); k("v_fmac_f32 v57, v52, v52")
            k("v_add_f32 v58, v58, v53"); k("v_fmac_f32 v59, v53, v53")
        if part == 0: return
        k("v_add_f32 v56, v56, v58"); k("v_add_f32 v57, v57, v59")
        for sh in (8, 4, 2, 1):
            k(f"v_add_f32_dpp v56, v56, v56 row_ror:{sh} row_mask:0xf bank_mask:0xf")
            k(f"v_add_f32_dpp v57, v57, v57 row_ror:{sh} row_mask:0xf bank_mask:0xf")
        rowstat_math(k, 56, 57, 60, 62, 52, False)
        k(f"v_mov_b32 v61, v{v_tag}"); k(f"v_mov_b32 v63, v{v_tag}")
        k(f"s_lshl_b32 s{s_t0}, s{s_delta}, 6"); k(f"s_add_u32 s{s_t0}, s{s_t0}, {RG_OFF}")
        k("s_mov_b32 exec_lo, 0x00010001"); k("s_mov_b32 exec_hi, 0x00010001")
        k(f"buffer_store_dwordx4 v[60:63], v{v_lane}, s[{sW}:{sW+3}], s{s_t0} offen sc1")
        k("s_mov_b64 exec, -1")
    def slice_cols(part):
        if part == 0:
            for r in range(4):
                k(f"v_lshlrev_b32 v{56 + 2*r}, 16, v{XS + r}"); k(f"v_and_b32 v{57 + 2*r}, 0xffff0000, v{XS + r}")
            for i in range(1, 5):
                for r in range(4):
                    k(f"v_lshlrev_b32 v52, 16, v{XS + 4*i + r}"); k(f"v_and_b32 v53, 0xffff0000, v{XS + 4*i + r}")
                    k(f"v_add_f32 v{56 + 2*r}, v{56 + 2*r}, v52"); k(f"v_add_f32 v{57 + 2*r}, v{57 + 2*r}, v53")
            return
        for r in range(4): k(f"v_permlane32_swap_b32 v{56 + r}, v{60 + r}")
        for r in range(4): k(f"v_add_f32 v{56 + r}, v{56 + r}, v{60 + r}")
        for r in range(2): k(f"v_permlane16_swap_b32 v{56 + r}, v{58 + r}")
        k("v_add_f32 v56, v56, v58"); k("v_add_f32 v58, v57, v59")
        k(f"v_mov_b32 v57, v{v_tag}"); k(f"v_mov_b32 v59, v{v_tag}")
        k(f"v_and_b32 v{vt[4]}, 48, v{v_lane}")
        k(f"v_lshl_add_u32 v{vt[4]}, v{vt[5]}, 6, v{vt[4]}")
        k(f"s_mul_i32 s{s_t0}, s{s_delta}, 15360"); k(f"s_lshl_b32 s{s_t1}, s{s_nb}, 10"); k(f"s_add_u32 s{s_t0}, s{s_t0}, s{s_t1}")
        k(f"s_add_u32 s{s_t0}, s{s_t0}, {CG_OFF}")
        k(f"buffer_store_dwordx4 v[56:59], v{vt[4]}, s[{sW}:{sW+3}], s{s_t0} offen sc1")
    def slice_part(part):
        k(f"s_cmp_ge_u32 s{s_w}, 2"); k(f"s_cbranch_scc1 {k.L('slc%d' % part)}")
        slice_rows(part)
        k(f"s_branch {k.L('sld%d' % part)}")
        k.label(k.L("slc%d" % part))
        slice_cols(part)
        k.label(k.L("sld%d" % part))
    k.stamp(2)
    for l in dma_stage(): k(l)
    if qkv:
        for l in dma_stage(): k(l)
        k(f"s_cmp_ge_u32 s{s_w}, 2"); k(f"s_cbranch_scc1 {k.L('slc')}")
        slice_addr_rows(); slice_load_rows()
        k(f"s_branch {k.L('sll')}")
        k.label(k.L("slc"))
        k(f"v_lshrrev_b32 v{vt[4]}, 4, v{v_lane}")
        k(f"v_and_b32 v{vt[5]}, 15, v{v_lane}")
        k(f"v_mul_u32_u24 v{vt[4]}, {BROW}, v{vt[4]}")
        k(f"v_lshl_add_u32 v{vt[4]}, v{vt[5]}, 4, v{vt[4]}")
        k(f"s_lshl_b32 s{s_delta}, s{s_mb}, 1"); k(f"s_add_u32 s{s_delta}, s{s_delta}, s{s_w}"); k(f"s_sub_u32 s{s_delta}, s{s_delta}, 2")
        k(f"s_mul_i32 s{s_t0}, s{s_delta}, {20 * BROW}"); k(f"s_lshl_b32 s{s_t1}, s{s_nb}, 8"); k(f"s_add_u32 s{s_t0}, s{s_t0}, s{s_t1}")
        for i in range(5):
            k(f"buffer_load_dwordx4 {vr(XS + 4*i, 4)}, v{vt[4]}, s[{sB}:{sB+3}], s{s_t0} offen")
            k(f"s_add_u32 s{s_t0}, s{s_t0}, {4 * BROW}")
        k.label(k.L("sll"))
        srd(k, sW, WSL, WSL + 1, WS_END); srd(k, sBi, 40, 41, 256)
        lstep(13, False)
        tag_load()
        lstep(14)
        lstep(8)
        k.stamp(3)
        for l in dma_stage(): k(l)
        slice_part(0)
        lstep(8, False)
        for l in dma_stage(): k(l)
        tag_wait("a")
        slice_part(1)
        lstep(9, False)
        k.stamp(4)
        lstep(9)
        lstep(); lstep()
        for l in dma_stage(): k(l)
        k(f"s_lshl_b32 s{s_t0}, s{s_mb}, 11"); k(f"s_lshl_b32 s{s_t1}, s{s_w}, 9"); k(f"s_add_u32 s{s_t0}, s{s_t0}, s{s_t1}")
        k(f"s_add_u32 s{s_offA}, s{s_t0}, {RG_OFF}")
        k(f"v_lshlrev_b32 v{vt[0]}, 4, v{v_t}")
        k(f"v_lshrrev_b32 v{vt[1]}, 4, v{v_lane}")
        k(f"v_mul_u32_u24 v{vt[1]}, {8 * 15360}, v{vt[1]}")
        k(f"v_lshl_add_u32 v{vt[1]}, v{vt[5]}, 4, v{vt[1]}")
        k(f"s_lshl_b32 s{s_t0}, s{s_nb}, 10"); k(f"s_lshl_b32 s{s_t1}, s{s_w}, 8"); k(f"s_add_u32 s{s_t0}, s{s_t0}, s{s_t1}")
        k(f"s_add_u32 s{s_offB}, s{s_t0}, {CG_OFF}")
        def gather():
            k(f"buffer_load_dwordx4 v[64:67], v{vt[0]}, s[{sW}:{sW+3}], s{s_offA} offen sc1")
            k(f"s_mov_b32 s{s_t0}, s{s_offB}")
            for i in range(8):
                k(f"buffer_load_dwordx4 {vr(32 + 4*i, 4)}, v{vt[1]}, s[{sW}:{sW+3}], s{s_t0} offen sc1")
                k(f"s_add_u32 s{s_t0}, s{s_t0}, 15360")
        gather()
        lstep(17, False)
        lstep(9, False)
        k.stamp(5)
        k(f"s_mov_b32 s{s_it}, 0")
        k.label(k.L("poll"))
        k("s_waitcnt vmcnt(0)")
        k(f"v_and_b32 v68, v65, v67"); k(f"v_or_b32 v69, v65, v67")
        for i in range(16):
            k(f"v_and_b32 v68, v68, v{33 + 2*i}"); k(f"v_or_b32 v69, v69, v{33 + 2*i}")
        k(f"v_xor_b32 v68, v68, v{v_tag}"); k(f"v_xor_b32 v69, v69, v{v_tag}"); k("v_or_b32 v68, v68, v69")
        k(f"v_cmp_ne_u32 vcc, 0, v68")
        k(f"s_cbranch_vccz {k.L('ready')}")
        k("s_sleep 2")
        gather()
        k(f"s_add_u32 s{s_it}, s{s_it}, 1")
        k(f"s_cmp_lt_u32 s{s_it}, 0x2000")
        k(f"s_cbranch_scc1 {k.L('poll')}")
        k("s_waitcnt vmcnt(0)")
        k.label(k.L("ready"))
        k.stamp(6)
        k("v_add_f32 v33, v34, v38")
        for i in range(1, 8):
            k(f"v_add_f32 v32, v32, v{32 + 4*i}")
            if i > 1: k(f"v_add_f32 v33, v33, v{34 + 4*i}")
        k(f"s_cmp_lt_u32 s{s_nb}, 5")
        k(f"s_cselect_b32 s{s_t0}, {f32(math.log2(math.e) / math.sqrt(DH))}, 1.0")
        k(f"v_mul_f32 v65, s{s_t0}, v66")
        k(f"s_lshl_b32 s{s_t1}, s{s_w}, 7"); k(f"s_add_u32 s{s_t1}, s{s_t1}, {SB}")
        k(f"v_lshl_add_u32 v{vt[0]}, v{v_t}, 2, s{s_t1}")
        k(f"ds_write2_b32 v{vt[0]}, v64, v65 offset0:0 offset1:128")
        for sw in ("v_permlane32_swap_b32", "v_permlane16_swap_b32"):
            k("v_mov_b32 v34, v32"); k("v_mov_b32 v35, v33")
            k(f"{sw} v32, v34"); k(f"{sw} v33, v35")
            k("v_add_f32 v32, v32, v34"); k("v_add_f32 v33, v33, v35")
        k(f"v_lshl_add_u32 v{vt[1]}, v{vt[5]}, 3, s{s_t1}")
        k(f"ds_write_b64 v{vt[1]}, v[32:33] offset:1024")
        k("s_waitcnt lgkmcnt(0)")
        k("s_barrier")
    else:
        lloop("", 8)
        for l in dma_stage(): k(l)
        PS = 32
        k(f"s_lshl_b32 s{s_t0}, s{s_mb}, 7"); k(f"s_lshl_b32 s{s_t1}, s{s_w}, 5"); k(f"s_add_u32 s{s_t0}, s{s_t0}, s{s_t1}")
        k(f"v_add_lshl_u32 v{vt[2]}, v{v_t}, s{s_t0}, 3")
        k(f"v_mul_u32_u24 v{vt[1]}, {5 * 16384}, v{v_h}")
        k(f"v_add_u32 v{vt[2]}, v{vt[2]}, v{vt[1]}")
        for i in range(5):
            k(f"s_mov_b32 s{s_t0}, {HS_OFF + i * 16384}")
            k(f"buffer_load_dwordx2 {vr(PS + 2*i, 2)}, v{vt[2]}, s[{sW}:{sW+3}], s{s_t0} offen")
        k(f"s_lshl_b32 s{s_t0}, s{s_nb}, 10"); k(f"s_lshl_b32 s{s_t1}, s{s_w}, 8"); k(f"s_add_u32 s{s_t0}, s{s_t0}, s{s_t1}")
        k(f"s_add_u32 s{s_t0}, s{s_t0}, {C1_OFF}")
        k(f"s_add_u32 m0, s{s_t1}, {SB + 1024}")
        k(f"v_lshlrev_b32 v{vt[3]}, 2, v{v_lane}")
        k(f"buffer_load_dword v{vt[3]}, s[{sW}:{sW+3}], s{s_t0} offen lds")
        lstep(14, False)
        lstep(6, False)
        k("s_waitcnt vmcnt(0)")
        for i in range(1, 5):
            k(f"v_add_f32 v{PS}, v{PS}, v{PS + 2*i}"); k(f"v_add_f32 v{PS+1}, v{PS+1}, v{PS + 2*i + 1}")
        k(f"v_mov_b32 v{PS+2}, v{PS}"); k(f"v_mov_b32 v{PS+3}, v{PS+1}")
        k(f"v_permlane32_swap_b32 v{PS}, v{PS+2}"); k(f"v_permlane32_swap_b32 v{PS+1}, v{PS+3}")
        k(f"v_add_f32 v{PS}, v{PS}, v{PS+2}"); k(f"v_add_f32 v{PS+1}, v{PS+1}, v{PS+3}")
        rowstat_math(k, PS, PS + 1, 44, 45, PS + 2, True)
        k(f"s_lshl_b32 s{s_t1}, s{s_w}, 7"); k(f"s_add_u32 s{s_t1}, s{s_t1}, {SB}")
        k(f"v_lshl_add_u32 v{vt[3]}, v{v_t}, 2, s{s_t1}")
        k(f"ds_write_b32 v{vt[3]}, v44")
        k(f"ds_write_b32 v{vt[3]}, v45 offset:512")
        k("s_waitcnt lgkmcnt(0)")
        k("s_barrier")
    if not qkv: k.stamp(3); k.stamp(4); k.stamp(5); k.stamp(6)
    k.dump(kidx, 9, s_wid, WSL)
    k("s_endpgm")
    k.label(k.L("compute"))
    if qkv:
        k(f"s_or_b32 s{s_t0}, s2, s{s_w}")
        k(f"s_cbranch_scc1 {k.L('notag')}")
        k("s_memrealtime s[44:45]")
        k("s_waitcnt lgkmcnt(0)")
        srd(k, sBi, 40, 41, 256)
        k("s_mul_i32 s44, s44, 0x9e3779b1"); k("s_or_b32 s44, s44, 1")
        k(f"v_mov_b32 v{vt[0]}, 0"); k(f"v_mov_b32 v{vt[1]}, s44")
        k("s_mov_b64 exec, 1")
        k(f"buffer_store_dword v{vt[1]}, v{vt[0]}, s[{sBi}:{sBi+3}], 0 offen sc1")
        k("s_mov_b64 exec, -1")
        k.label(k.L("notag"))
        if "nocpf" not in X:
            k(f"s_cmp_lg_u32 s{s_w}, 1"); k(f"s_cbranch_scc1 {k.L('nocpf')}")
            code_prefetch(k, "qkv_kernel", sB, s_t0, vt[0], 14, v_lane)
            k.label(k.L("nocpf"))
        k(f"s_cmp_ge_u32 s{s_nb}, 15"); k(f"s_cbranch_scc1 {k.L('aux')}")
    k(f"s_lshr_b32 s{s_wm}, s{s_w}, 1"); k(f"s_and_b32 s{s_wn}, s{s_w}, 1")
    k(f"s_mov_b32 s34, {SLOT}")
    if qkv:
        k(f"v_bfe_u32 v{vt[0]}, v{v_t}, 1, 3")
        k(f"v_xor_b32 v{vt[0]}, v{vt[0]}, v{v_h}")
        k(f"s_lshl_b32 s{s_t0}, s{s_wm}, 13")
        k(f"v_lshl_add_u32 v{vt[1]}, v{v_t}, 7, s{s_t0}")
        for ks in range(4):
            k(f"v_xor_b32 v{vt[2]}, {2*ks}, v{vt[0]}")
            k(f"v_lshl_add_u32 v{vAr[ks]}, v{vt[2]}, 4, v{vt[1]}")
        def a_read(dst, ks, mt): return f"ds_read_b128 {vr(dst,4)}, v{vAr[ks]} offset:{mt*4096}"
        def a_upd(ks): return [vAr[ks]]
    else:
        k(f"s_lshl_b32 s{s_t0}, s{s_wm}, 10")
        k(f"v_lshl_add_u32 v{vt[0]}, v{v_t}, 4, s{s_t0}")
        k(f"v_lshl_add_u32 v{vAr[0]}, v{v_h}, 11, v{vt[0]}")
        def a_read(dst, ks, mt): return f"ds_read_b128 {vr(dst,4)}, v{vAr[0]} offset:{ks*4096 + mt*512}"
        def a_upd(ks): return [vAr[0]] if ks == 0 else []
    k(f"v_bfe_u32 v{vt[0]}, v{v_lane}, 2, 2")
    k(f"v_lshl_add_u32 v{vt[1]}, v{v_h}, 3, v{vt[0]}")
    k(f"v_lshlrev_b32 v{vt[1]}, 8, v{vt[1]}")
    k(f"v_bfe_u32 v{vt[2]}, v{v_lane}, 4, 1")
    k(f"v_lshl_add_u32 v{vt[1]}, v{vt[2]}, 5, v{vt[1]}")
    k(f"v_and_b32 v{vt[2]}, 3, v{v_lane}")
    k(f"v_lshl_add_u32 v{vt[1]}, v{vt[2]}, 3, v{vt[1]}")
    k(f"v_add_u32 v{vt[1]}, 16384, v{vt[1]}")
    k(f"s_lshl_b32 s{s_t0}, s{s_wn}, 1")
    k(f"v_xor_b32 v{vt[2]}, s{s_t0}, v{vt[0]}")
    k(f"v_lshl_add_u32 v{vBr[0]}, v{vt[2]}, 6, v{vt[1]}")
    k(f"v_xor_b32 v{vBr[1]}, 64, v{vBr[0]}")
    def b_read(dst, ks, nt, e): return f"ds_read_b64_tr_b16 {vr(dst + 2*e, 2)}, v{vBr[nt]} offset:{ks*4096 + e*1024}"
    for r in range(64): k(f"v_mov_b32 v{ACC + r}, 0")
    k(f"s_mov_b32 s{s_it}, 0"); k(f"s_mov_b32 s{s_slot}, 0")
    k("s_waitcnt lgkmcnt(0)")
    srd(k, sW, WSL, WSL + 1, WS_END)

    def reads(ks):
        return [a_read(FA[ks][0], ks, 0), b_read(FB[ks][0], ks, 0, 0), b_read(FB[ks][0], ks, 0, 1),
                b_read(FB[ks][1], ks, 1, 0), b_read(FB[ks][1], ks, 1, 1), a_read(FA[ks][1], ks, 1)]
    k.stamp(2)
    k("s_waitcnt lgkmcnt(0)")
    k("s_barrier")
    k.stamp(3)
    if K.prof: k("s_waitcnt lgkmcnt(0)")
    for l in reads(0) + reads(1): k(l)

    def mainloop(tag, vorient):
        k.label(k.L("loop" + tag))
        for ks in range(4):
            mf = []
            for mt in range(2):
                for nt in range(2):
                    a, b = FA[ks][mt], FB[ks][nt]
                    s0, s1 = (a, b) if vorient else (b, a)
                    mf.append(f"v_mfma_f32_32x32x16_bf16 {vr(acc(mt,nt),16)}, {vr(s0,4)}, {vr(s1,4)}, {vr(acc(mt,nt),16)}")
            pre = []
            if ks == 2:
                k("s_barrier")
                pre += [f"s_add_u32 s{s_slot}, s{s_slot}, 1", f"s_and_b32 s{s_slot}, s{s_slot}, {NS - 1}",
                        f"s_cselect_b32 s{s_delta}, s34, {(-(NS - 1) * SLOT) & 0xffffffff:#x}"]
                pre += [f"v_add_u32 v{a}, s{s_delta}, v{a}" for a in vBr]
            nk = (ks + 2) % 4
            if ks >= 2:
                pre += [f"v_add_u32 v{a}, s{s_delta}, v{a}" for a in a_upd(nk)]
            post = []
            if ks == 3:
                post = [f"v_add_u32 v{a}, s{s_delta}, v{a}" for a in a_upd(2) + a_upd(3)]
                post += [f"s_add_u32 s{s_it}, s{s_it}, 1", f"s_cmp_lt_u32 s{s_it}, {NST}"]
            rd = reads(nk)
            k("s_waitcnt lgkmcnt(6)")
            seq = [mf[0]] + pre + rd[0:2] + [mf[1]] + rd[2:4] + [mf[2]] + rd[4:6] + post + [mf[3]]
            for l in seq: k(l)
        k(f"s_cbranch_scc1 {k.L('loop' + tag)}")
        k.stamp(4)

    def epi_nm():
        MR = [28, 30]
        CS = EP; B1 = EP + 32
        k(f"s_lshl_b32 s{s_t0}, s{s_wm}, 8"); k(f"s_add_u32 s{s_t0}, s{s_t0}, {SB}")
        k(f"v_lshl_add_u32 v{vt[4]}, v{v_t}, 2, s{s_t0}")
        for mt in range(2):
            k(f"ds_read2_b32 {vr(MR[mt],2)}, v{vt[4]} offset0:{mt*32} offset1:{128 + mt*32}")
        k(f"s_lshl_b32 s{s_t0}, s{s_wn}, 8"); k(f"s_add_u32 s{s_t0}, s{s_t0}, {SB}")
        k(f"v_lshl_add_u32 v{vt[0]}, v{v_h}, 4, s{s_t0}")
        for nt in range(2):
            for rq in range(4):
                k(f"ds_read_b128 {vr(CS + nt*16 + rq*4, 4)}, v{vt[0]} offset:{1024 + nt*128 + rq*32}")
            if not qkv:
                for rq in range(4):
                    k(f"ds_read_b128 {vr(B1 + nt*16 + rq*4, 4)}, v{vt[0]} offset:{1536 + nt*128 + rq*32}")
        OFF = QK_OFF if qkv else G_OFF
        k(f"s_lshl_b32 s{s_t0}, s{s_nb}, 4"); k(f"s_lshl_b32 s{s_t1}, s{s_wn}, 3"); k(f"s_add_u32 s{s_t0}, s{s_t0}, s{s_t1}")
        k(f"v_add_lshl_u32 v{vt[2]}, v{v_h}, s{s_t0}, 15")
        k(f"s_lshl_b32 s{s_t0}, s{s_mb}, 7"); k(f"s_lshl_b32 s{s_t1}, s{s_wm}, 6"); k(f"s_add_u32 s{s_t0}, s{s_t0}, s{s_t1}")
        k(f"v_add_u32 v{vt[3]}, s{s_t0}, v{v_t}")
        k(f"v_lshl_add_u32 v{vt[2]}, v{vt[3]}, 4, v{vt[2]}")
        so = 46
        for c in range(4): k(f"s_mov_b32 s{so + c}, {OFF + 2*c*CH}")
        if not qkv:
            C0 = -2.0 * math.log2(math.e) * math.sqrt(2.0 / math.pi)
            k(f"s_mov_b32 s44, {f32(C0 * 0.044715)}"); k(f"s_mov_b32 s45, {f32(C0 * 0.044715)}")
            k(f"v_mov_b32 v{vt[4]}, {f32(C0)}"); k(f"v_mov_b32 v{vt[5]}, {f32(C0)}")
        k("s_waitcnt lgkmcnt(0)")
        T = EP + 64
        n_st = 0
        for nt in range(2):
            for mt in range(2):
                a = acc(mt, nt); mr = MR[mt]
                for p in range(8):
                    x = vr(a + 2*p, 2)
                    k(f"v_pk_fma_f32 {x}, {vr(CS + nt*16 + 2*p, 2)}, {vr(mr,2)}, {x} op_sel_hi:[1,0,1]")
                for p in range(8):
                    x = vr(a + 2*p, 2)
                    if qkv:
                        k(f"v_pk_mul_f32 {x}, {x}, {vr(mr,2)} op_sel:[0,1] op_sel_hi:[1,1]")
                    else:
                        k(f"v_pk_fma_f32 {x}, {x}, {vr(mr,2)}, {vr(B1 + nt*16 + 2*p, 2)} op_sel:[0,1,0] op_sel_hi:[1,1,1]")
                if not qkv:
                    for p in range(8):
                        x = vr(a + 2*p, 2); t = vr(T + 2*p, 2)
                        k(f"v_pk_mul_f32 {t}, {x}, {x}")
                    for p in range(8):
                        t = vr(T + 2*p, 2)
                        k(f"v_pk_fma_f32 {t}, {t}, s[44:45], {vr(vt[4],2)}")
                    for p in range(8):
                        x = vr(a + 2*p, 2); t = vr(T + 2*p, 2)
                        k(f"v_pk_mul_f32 {t}, {t}, {x}")
                    for r in range(16): k(f"v_exp_f32 v{T + r}, v{T + r}")
                    for p in range(8):
                        t = vr(T + 2*p, 2)
                        k(f"v_pk_add_f32 {t}, {t}, 1.0 op_sel_hi:[1,0]")
                    for r in range(16): k(f"v_rcp_f32 v{T + r}, v{T + r}")
                    for p in range(8):
                        x = vr(a + 2*p, 2); t = vr(T + 2*p, 2)
                        k(f"v_pk_mul_f32 {x}, {x}, {t}")
                Pk = T + 16 + (n_st % 2) * 8
                for p in range(8):
                    k(f"v_cvt_pk_bf16_f32 v{Pk + p}, v{a + 2*p}, v{a + 2*p + 1}")
                for pq in range(2):
                    b = Pk + 4*pq
                    k(f"v_permlane32_swap_b32 v{b}, v{b+2}")
                    k(f"v_permlane32_swap_b32 v{b+1}, v{b+3}")
                for pq in range(2):
                    b = Pk + 4*pq
                    k(f"buffer_store_dwordx4 {vr(b,4)}, v{vt[2]}, s[{sW}:{sW+3}], s{so + nt*2 + pq} offen offset:{mt*512} sc1")
                n_st += 1

    def epi_v():
        NM = EP; RS = EP + 32; CSV = [28, 30]
        k(f"s_lshl_b32 s{s_t0}, s{s_wm}, 8"); k(f"s_add_u32 s{s_t0}, s{s_t0}, {SB}")
        k(f"v_lshl_add_u32 v{vt[0]}, v{v_h}, 4, s{s_t0}")
        k(f"s_lshl_b32 s{s_t0}, s{s_wn}, 8"); k(f"s_add_u32 s{s_t0}, s{s_t0}, {SB}")
        k(f"v_lshl_add_u32 v{vt[1]}, v{v_t}, 2, s{s_t0}")
        for nt in range(2):
            k(f"ds_read_b32 v{CSV[nt]}, v{vt[1]} offset:{1024 + nt*128}")
        for mt in range(2):
            for rq in range(4):
                k(f"ds_read_b128 {vr(NM + mt*16 + rq*4, 4)}, v{vt[0]} offset:{mt*128 + rq*32}")
                k(f"ds_read_b128 {vr(RS + mt*16 + rq*4, 4)}, v{vt[0]} offset:{512 + mt*128 + rq*32}")
        k(f"s_lshl_b32 s{s_t0}, s{s_mb}, 1"); k(f"s_add_u32 s{s_t0}, s{s_t0}, s{s_wm}"); k(f"s_mul_i32 s{s_t0}, s{s_t0}, 2560")
        k(f"s_lshl_b32 s{s_t1}, s{s_nb}, 7"); k(f"s_add_u32 s{s_t0}, s{s_t0}, s{s_t1}"); k(f"s_sub_u32 s{s_t0}, s{s_t0}, 1280")
        k(f"s_lshl_b32 s{s_t1}, s{s_wn}, 6"); k(f"s_add_u32 s{s_t0}, s{s_t0}, s{s_t1}")
        k(f"v_add_lshl_u32 v{vt[2]}, v{v_t}, s{s_t0}, 5")
        k(f"v_lshl_add_u32 v{vt[2]}, v{v_h}, 4, v{vt[2]}")
        so = 46
        for c in range(4): k(f"s_mov_b32 s{so + c}, {V_OFF + c * 640 * 32}")
        k("s_waitcnt lgkmcnt(0)")
        T = EP + 64; n_st = 0
        for mt in range(2):
            for nt in range(2):
                a = acc(mt, nt)
                for p in range(8):
                    x = vr(a + 2*p, 2)
                    k(f"v_pk_fma_f32 {x}, {vr(NM + mt*16 + 2*p, 2)}, {vr(CSV[nt],2)}, {x} op_sel_hi:[1,0,1]")
                for p in range(8):
                    x = vr(a + 2*p, 2)
                    k(f"v_pk_mul_f32 {x}, {x}, {vr(RS + mt*16 + 2*p, 2)}")
                Pk = T + (n_st % 2) * 8
                for p in range(8):
                    k(f"v_cvt_pk_bf16_f32 v{Pk + p}, v{a + 2*p}, v{a + 2*p + 1}")
                for jj in range(2):
                    k(f"buffer_store_dwordx4 {vr(Pk + 4*jj, 4)}, v{vt[2]}, s[{sW}:{sW+3}], s{so + mt*2 + jj} offen offset:{nt*1024} sc1")
                n_st += 1

    if qkv:
        k(f"s_cmp_ge_u32 s{s_nb}, 10")
        k(f"s_cbranch_scc1 {k.L('loopv')}")
        mainloop("q", False); k.stamp(5); epi_nm(); k.stamp(6); k.dump(0, 9, s_wid, WSL)
        k("s_endpgm")
        mainloop("v", True); k.stamp(5); epi_v(); k.stamp(6); k.dump(0, 9, s_wid, WSL)
        k("s_endpgm")
        k.label(k.L("auxl"))
        k(f"s_cmp_ge_u32 s{s_w}, 2"); k(f"s_cbranch_scc1 {k.L('aux')}")
        slice_addr_rows()
        k("s_waitcnt lgkmcnt(0)")
        srd(k, sA, 36, 37, S * D * 2); srd(k, sW, WSL, WSL + 1, WS_END); srd(k, sBi, 40, 41, 256)
        slice_load_rows()
        k("s_waitcnt vmcnt(0)")
        tag_load()
        slice_rows(0)
        k("s_waitcnt vmcnt(0)")
        tag_wait("x")
        slice_rows(1)
        k.label(k.L("aux"))
        k("s_load_dwordx4 s[44:47], s[0:1], 32")
        k(f"v_lshrrev_b32 v{vt[0]}, 4, v{v_lane}")
        k(f"v_and_b32 v{vt[1]}, 15, v{v_lane}")
        k(f"v_mul_u32_u24 v{vt[2]}, {F * 2}, v{vt[0]}")
        k(f"v_lshl_add_u32 v{vt[2]}, v{vt[1]}, 4, v{vt[2]}")
        k(f"v_lshlrev_b32 v{vt[3]}, 1, v0")
        k("s_waitcnt lgkmcnt(0)")
        srd(k, sW, WSL, WSL + 1, WS_END)
        k(f"s_cmp_ge_u32 s{s_mb}, 14"); k(f"s_cbranch_scc1 {k.L('end')}")
        srd(k, sB, 44, 45, D * F * 2); srd(k, sA, 46, 47, F * 2)
        k(f"s_mul_i32 s{s_t0}, s{s_wid}, {80 * F * 2}"); k(f"s_lshl_b32 s{s_t1}, s{s_mb}, 8"); k(f"s_add_u32 s{s_t0}, s{s_t0}, s{s_t1}")
        k(f"buffer_load_ushort v{v_b1}, v{vt[3]}, s[{sA}:{sA+3}], s{s_t1} offen")
        for i in range(20):
            k(f"buffer_load_dwordx4 {vr(40 + 4*i, 4)}, v{vt[2]}, s[{sB}:{sB+3}], s{s_t0} offen")
            k(f"s_add_u32 s{s_t0}, s{s_t0}, {4 * F * 2}")
        for r in range(8): k(f"v_mov_b32 v{24 + r}, 0")
        for i in range(20):
            k(f"s_waitcnt vmcnt({19 - i})")
            for r in range(4):
                k(f"v_lshlrev_b32 v{32 + 2*r}, 16, v{40 + 4*i + r}")
                k(f"v_and_b32 v{33 + 2*r}, 0xffff0000, v{40 + 4*i + r}")
            for r in range(4):
                k(f"v_pk_add_f32 {vr(24 + 2*r, 2)}, {vr(24 + 2*r, 2)}, {vr(32 + 2*r, 2)}")
        k(f"v_lshlrev_b32 v{vt[0]}, 5, v0")
        k(f"ds_write_b128 v{vt[0]}, v[24:27]")
        k(f"ds_write_b128 v{vt[0]}, v[28:31] offset:16")
        k("s_waitcnt lgkmcnt(0)")
        k("s_barrier")
        k(f"s_cmp_ge_u32 s{s_wid}, 2"); k(f"s_cbranch_scc1 {k.L('end')}")
        k(f"v_lshlrev_b32 v{vt[0]}, 2, v0")
        for i in range(32):
            k(f"ds_read_b32 v{40 + i}, v{vt[0]} offset:{i * 512}")
            if i % 8 == 7: k("s_waitcnt lgkmcnt(0)")
        for i in range(1, 32): k(f"v_add_f32 v40, v40, v{40 + i}")
        k(f"v_lshlrev_b32 v{v_b1}, 16, v{v_b1}")
        k(f"s_lshl_b32 s{s_t0}, s{s_mb}, 10"); k(f"s_add_u32 s{s_t0}, s{s_t0}, {C1_OFF}"); k(f"s_add_u32 s{s_t1}, s{s_t0}, 512")
        k(f"buffer_store_dword v40, v{vt[0]}, s[{sW}:{sW+3}], s{s_t0} offen")
        k(f"buffer_store_dword v{v_b1}, v{vt[0]}, s[{sW}:{sW+3}], s{s_t1} offen")
    else:
        mainloop("q", False)
        k(f"s_cmp_eq_u32 s{s_nb}, 13"); k(f"s_cselect_b32 s{s_t0}, s{s_wn}, 0")
        k(f"s_cmp_ge_u32 s{s_t0}, 1"); k(f"s_cbranch_scc1 {k.L('end')}")
        k.stamp(5); epi_nm(); k.stamp(6); k.dump(3, 9, s_wid, WSL)
    k.label(k.L("end"))
    k("s_endpgm")
    return k, EP + 64 + 32, NS * SLOT + 2048

def attn():
    k = K("attn")
    sW = 4; sP1 = 8; sP2 = 12
    s_hd, s_qb, s_w, s_qs, s_kh, s_t0, s_t1, s_it = 20, 21, 22, 23, 24, 25, 26, 27
    s_ko, s_vo, s_odd = 28, 29, 30
    s_vm = 32
    s_lo = 34
    s_c = 36
    v_lane, v_t, v_h = 1, 2, 3
    vK1, vK2, vV0, vV1 = 4, 5, 6, 7
    vt = [8, 9, 10, 11, 12, 13, 14, 15]
    vm = [16, 17]
    v_pfa, v_pfb, v_pf, v_pfc = 18, 19, 200, 202
    Q1 = [20, 24]; Q2 = [28, 30]
    NBUF = 4
    K1 = [32, 36, 40, 44]; K2 = [48, 50, 52, 54]
    VB = [56, 64, 72, 80]
    C = [88, 104]; Sx = [120, 136]; P = [152, 160]; O = [168, 184]
    NV = 203
    k.stamp(0); k.stamp(1, True)
    k("s_cmp_ge_u32 s2, 256"); k(f"s_cbranch_scc1 {k.L('end')}")
    k("s_load_dwordx2 s[40:41], s[0:1], 80")
    k("s_load_dwordx2 s[44:45], s[0:1], 16")
    k("s_load_dwordx2 s[46:47], s[0:1], 32")
    k("s_load_dwordx2 s[38:39], s[0:1], 48")
    k(f"v_lshrrev_b32 v{vt[0]}, 6, v0")
    k(f"v_and_b32 v{v_t}, 31, v0")
    k(f"v_readfirstlane_b32 s{s_w}, v{vt[0]}")
    k(f"v_bfe_u32 v{v_h}, v0, 5, 1")
    k(f"s_and_b32 s{s_hd}, s2, 7"); k(f"s_lshl_b32 s{s_hd}, s{s_hd}, 2")
    k(f"s_bfe_u32 s{s_t0}, s2, 0x20003"); k(f"s_add_u32 s{s_hd}, s{s_hd}, s{s_t0}")
    k(f"s_lshr_b32 s{s_qb}, s2, 5")
    k(f"s_and_b32 s{s_qs}, s{s_w}, 3"); k(f"s_lshr_b32 s{s_kh}, s{s_w}, 2")
    if "noprio" not in X:
        k(f"s_cmp_eq_u32 s{s_kh}, 0"); k(f"s_cbranch_scc1 {k.L('np')}")
        k("s_setprio 1")
        k.label(k.L("np"))
    k(f"s_and_b32 s{s_odd}, s{s_hd}, 1")
    k(f"s_mov_b32 s{s_lo}, -1"); k(f"s_mov_b32 s{s_lo+1}, 0")
    k(f"s_lshr_b32 s{s_t0}, s{s_hd}, 1"); k(f"s_mul_i32 s{s_t0}, s{s_t0}, 5")
    k(f"s_mul_i32 s{s_t1}, s{s_odd}, 3"); k(f"s_add_u32 s{s_t1}, s{s_t1}, s{s_t0}")
    k(f"v_add_lshl_u32 v{vK1}, v{v_h}, s{s_t1}, 15")
    k(f"v_lshl_add_u32 v{vK1}, v{v_t}, 4, v{vK1}")
    k(f"s_add_u32 s{s_t0}, s{s_t0}, 2"); k(f"s_lshl_b32 s{s_t0}, s{s_t0}, 15")
    k(f"s_lshl_b32 s{s_t1}, s{s_odd}, 3"); k(f"s_add_u32 s{s_t0}, s{s_t0}, s{s_t1}")
    k(f"v_lshl_add_u32 v{vK2}, v{v_t}, 4, s{s_t0}")
    k(f"s_lshl_b32 s{s_ko}, s{s_kh}, 14"); k(f"s_add_u32 s{s_ko}, s{s_ko}, {QK_OFF + 80 * CH}")
    k(f"s_lshl_b32 s{s_t0}, s{s_qb}, 12"); k(f"s_lshl_b32 s{s_t1}, s{s_qs}, 10"); k(f"s_add_u32 s{s_t0}, s{s_t0}, s{s_t1}")
    for qt in range(2):
        k(f"v_mov_b32 v{Q2[qt]}, 0"); k(f"v_mov_b32 v{Q2[qt]+1}, 0")
    k(f"s_mov_b32 s42, s{s_ko}")
    k("s_waitcnt lgkmcnt(0)")
    srd(k, sW, 40, 41, WS_END)
    W = f"s[{sW}:{sW+3}]"
    def kload(b):
        return [f"buffer_load_dwordx4 {vr(K1[b],4)}, v{vK1}, {W}, s{s_ko} offen",
                f"buffer_load_dwordx2 {vr(K2[b],2)}, v{vK2}, {W}, s{s_ko} offen",
                f"s_add_u32 s{s_ko}, s{s_ko}, 512"]
    def vload(b):
        return [f"s_mov_b64 exec, s[{s_vm}:{s_vm+1}]",
                f"buffer_load_dwordx4 {vr(VB[b],4)}, v{vV0}, {W}, s{s_vo} offen",
                f"buffer_load_dwordx4 {vr(VB[b]+4,4)}, v{vV1}, {W}, s{s_vo} offen",
                f"s_mov_b64 exec, -1",
                f"s_add_u32 s{s_vo}, s{s_vo}, {1280 * 32}"]
    for l in kload(0): k(l)
    for qt in range(2):
        k(f"buffer_load_dwordx4 {vr(Q1[qt],4)}, v{vK1}, {W}, s{s_t0} offen offset:{qt*512}")
    k(f"s_mov_b64 exec, s[{s_lo}:{s_lo+1}]")
    for qt in range(2):
        k(f"buffer_load_dwordx2 {vr(Q2[qt],2)}, v{vK2}, {W}, s{s_t0} offen offset:{qt*512}")
    k("s_mov_b64 exec, -1")
    for l in kload(1): k(l)
    k(f"v_and_b32 v{v_lane}, 63, v0")
    k(f"s_mov_b32 s{s_vm}, 0xfffff"); k(f"s_mov_b32 s{s_vm+1}, 0xfffff")
    k(f"v_add_u32 v{vt[0]}, 4, v{v_t}")
    k(f"v_subrev_u32 v{vt[1]}, 16, v{v_t}")
    k(f"v_cmp_gt_u32 vcc, 16, v{v_t}")
    k(f"v_cndmask_b32 v{vt[0]}, v{vt[1]}, v{vt[0]}, vcc")
    k(f"s_cmp_eq_u32 s{s_odd}, 1")
    k(f"s_cselect_b64 vcc, -1, 0")
    k(f"v_cndmask_b32 v{vt[0]}, v{v_t}, v{vt[0]}, vcc")
    k(f"s_mul_i32 s{s_t0}, s{s_hd}, 20")
    k(f"v_add_lshl_u32 v{vV0}, v{vt[0]}, s{s_t0}, 5")
    k(f"v_lshl_add_u32 v{vV0}, v{v_h}, 4, v{vV0}")
    k(f"v_add_u32 v{vV1}, {640 * 32}, v{vV0}")
    k(f"s_mul_i32 s{s_vo}, s{s_kh}, {32 * 1280 * 32}"); k(f"s_add_u32 s{s_vo}, s{s_vo}, {V_OFF}")
    k(f"s_mov_b32 s43, s{s_vo}")
    k(f"v_cmp_eq_u32 vcc, 20, v{v_t}")
    k(f"v_mov_b32 v{vt[1]}, 0x3f803f80")
    k(f"v_cndmask_b32 v{vt[1]}, 0, v{vt[1]}, vcc")
    for r in range(8): k(f"v_mov_b32 v{VB[0] + r}, v{vt[1]}")
    for l in vload(0): k(l)
    for b in range(1, NBUF):
        for r in range(8): k(f"v_mov_b32 v{VB[b] + r}, v{vt[1]}")
    for qt in range(2):
        for r in range(16): k(f"v_mov_b32 v{O[qt] + r}, 0")
    for r in range(8): k(f"v_mov_b32 v{P[1] + r}, 0")
    srd(k, sP1, 44, 45, D * D * 2); srd(k, sP2, 46, 47, D * F * 2)
    k(f"s_lshr_b32 s{s_t0}, s2, 3"); k(f"s_lshl_b32 s{s_t0}, s{s_t0}, 3"); k(f"s_add_u32 s{s_t0}, s{s_t0}, s{s_w}")
    k(f"s_mul_i32 s48, s{s_t0}, {26 * 128}"); k(f"s_mul_i32 s49, s{s_t0}, {68 * 128}")
    k(f"v_lshlrev_b32 v{vt[2]}, 8, v{v_lane}"); k(f"v_add_u32 v{vt[2]}, 124, v{vt[2]}")
    k(f"v_mov_b32 v{vt[3]}, 0x7ffffff0")
    k(f"v_cmp_gt_u32 vcc, 34, v{v_lane}")
    k(f"v_cndmask_b32 v{v_pfa}, v{vt[3]}, v{vt[2]}, vcc")
    k(f"v_cmp_gt_u32 vcc, 13, v{v_lane}")
    k(f"v_cndmask_b32 v{v_pfb}, v{vt[3]}, v{vt[2]}, vcc")
    srd(k, 16, 38, 39, D * F * 2)
    k(f"s_lshl_b32 s38, s2, 3"); k(f"s_add_u32 s38, s38, s{s_w}"); k(f"s_mul_i32 s38, s38, {10 * 128}")
    k(f"v_cmp_gt_u32 vcc, 5, v{v_lane}")
    k(f"v_cndmask_b32 v{v_pfc}, v{vt[3]}, v{vt[2]}, vcc")
    k(f"s_sub_u32 s50, s{s_qs}, s{s_kh}"); k(f"s_add_u32 s50, s50, 2"); k(f"s_add_u32 s51, s50, 2")
    def qk(qt, b, c):
        cc = "0" if c is None else vr(c, 16)
        return [f"v_mfma_f32_32x32x16_bf16 {vr(Sx[qt],16)}, {vr(K1[b],4)}, {vr(Q1[qt],4)}, {cc}",
                f"v_mfma_f32_32x32x8_bf16 {vr(Sx[qt],16)}, {vr(K2[b],2)}, {vr(Q2[qt],2)}, {vr(Sx[qt],16)}"]
    def pv(qt, b):
        return [f"v_mfma_f32_32x32x16_bf16 {vr(O[qt],16)}, {vr(VB[b],4)}, {vr(P[qt],4)}, {vr(O[qt],16)}",
                f"v_mfma_f32_32x32x16_bf16 {vr(O[qt],16)}, {vr(VB[b]+4,4)}, {vr(P[qt]+4,4)}, {vr(O[qt],16)}"]
    def rowmax(qt, dst, tmp):
        s = Sx[qt]
        k(f"v_max3_f32 v{dst}, v{s}, v{s+1}, v{s+2}")
        for r in range(3, 15, 2): k(f"v_max3_f32 v{dst}, v{dst}, v{s+r}, v{s+r+1}")
        k(f"v_max_f32 v{dst}, v{dst}, v{s+15}")
        k(f"v_mov_b32 v{tmp}, v{dst}")
        k(f"v_permlane32_swap_b32 v{dst}, v{tmp}")
        k(f"v_max_f32 v{dst}, v{dst}, v{tmp}")
    k.stamp(2)
    k("s_waitcnt vmcnt(4)")
    for qt in range(2):
        for l in qk(qt, 0, None): k(l)
    for l in kload(2) + vload(1) + kload(3) + vload(2): k(l)
    rowmax(0, vm[0], vt[0])
    k(f"v_sub_f32 v{vt[1]}, 0, v{vm[0]}")
    for r in range(16): k(f"v_mov_b32 v{C[0] + r}, v{vt[1]}")
    for l in qk(0, 0, C[0]): k(l)
    rowmax(1, vm[1], vt[0])
    k(f"v_sub_f32 v{vt[1]}, 0, v{vm[1]}")
    for r in range(16): k(f"v_mov_b32 v{C[1] + r}, v{vt[1]}")
    k(f"s_mov_b32 s{s_it}, 0")
    k.stamp(3)
    k("s_nop 1")

    def slot(qt, mf, extra):
        s = Sx[qt]; p = P[qt]
        for i in range(16):
            for l in extra.get(i, []): k(l)
            if i % 4 == 0: k(mf[i // 4])
            k(f"v_exp_f32 v{s+i}, v{s+i}")
            if i % 2 == 1 and i >= 3:
                k(f"v_cvt_pk_bf16_f32 v{p + (i-3)//2}, v{s+i-3}, v{s+i-2}")
        for l in extra.get(16, []): k(l)
        k(f"v_cvt_pk_bf16_f32 v{p+7}, v{s+14}, v{s+15}")
    k(f"s_cmp_eq_u32 s{s_kh}, 0")
    k(f"s_cselect_b32 s31, 99, {int(os.environ.get('PRI', '6'))}")
    k.label(k.L("loop"))
    for u in range(NBUF):
        b = u; bp = (u - 1) % NBUF; bn = (u + 1) % NBUF
        e1 = {0: ["s_waitcnt vmcnt(12)"]}
        slot(0, qk(1, b, C[1]) + pv(1, bp), {6: kload(b), 14: vload(bp)})
        slot(1, qk(0, bn, C[0]) + pv(0, b), e1)
    k(f"s_add_u32 s{s_it}, s{s_it}, 1")
    PRI = int(os.environ.get("PRI", "6"))
    k(f"s_cmp_lg_u32 s{s_it}, s31")
    k(f"s_cbranch_scc1 {k.L('noev')}")
    k("s_setprio 0")
    k.label(k.L("noev"))
    if "nowpf" not in X:
        k(f"s_cmp_lg_u32 s{s_it}, s50"); k(f"s_cbranch_scc1 {k.L('noe2')}")
        k(f"buffer_load_dwordx2 {vr(v_pf, 2)}, v{v_pfa}, s[{sP2}:{sP2+3}], s49 offen")
        k.label(k.L("noe2"))
        k(f"s_cmp_lg_u32 s{s_it}, s51"); k(f"s_cbranch_scc1 {k.L('noe3')}")
        k(f"buffer_load_dwordx2 {vr(v_pf, 2)}, v{v_pfb}, s[{sP1}:{sP1+3}], s48 offen")
        k(f"buffer_load_dwordx2 {vr(v_pf, 2)}, v{v_pfc}, s[16:19], s38 offen")
        if "nocpf" not in X:
            k(f"s_cmp_lg_u32 s{s_w}, 3"); k(f"s_cbranch_scc1 {k.L('noe3')}")
            code_prefetch(k, "oproj_kernel", 16, s_t0, vt[0], v_pf, v_lane, per=8)
        k.label(k.L("noe3"))
    k(f"s_cmp_lt_u32 s{s_it}, {32 // NBUF}")
    k(f"s_cbranch_scc1 {k.L('loop')}")
    k.stamp(4)
    for l in pv(1, NBUF - 1): k(l)
    k("s_nop 7"); k("s_nop 7")
    k(f"v_add_f32 v{vt[0]}, |v{O[0]}|, |v{O[1]}|")
    for qt in range(2):
        for r in range(1, 12):
            k(f"v_add_f32 v{vt[0]}, v{vt[0]}, |v{O[qt]+r}|")
    k(f"v_add_f32 v{vt[1]}, v{O[0]+8}, v{O[1]+8}")
    k(f"s_mov_b32 s{s_t0}, {f32(2.0**100)}")
    k(f"v_cmp_nlt_f32 s[{s_c}:{s_c+1}], v{vt[0]}, s{s_t0}")
    k(f"s_mov_b32 s{s_t0}, {f32(2.0**60)}")
    k(f"v_cmp_nlt_f32 vcc, |v{vt[1]}|, s{s_t0}")
    k(f"s_andn2_b64 vcc, vcc, s[{s_lo}:{s_lo+1}]")
    k(f"s_or_b64 s[{s_c}:{s_c+1}], s[{s_c}:{s_c+1}], vcc")
    k("s_waitcnt vmcnt(0)")
    k(f"s_cmp_eq_u64 s[{s_c}:{s_c+1}], 0")
    k(f"s_cbranch_scc1 {k.L('merge')}")
    k(f"s_mov_b32 s{s_ko}, s42"); k(f"s_mov_b32 s{s_vo}, s43")
    for qt in range(2):
        for r in range(16): k(f"v_mov_b32 v{O[qt] + r}, 0")
        k(f"v_mov_b32 v{vm[qt]}, 0xff800000")
    k(f"s_mov_b32 s{s_it}, 0")
    k.label(k.L("fb"))
    for l in kload(0) + vload(0): k(l)
    k("s_waitcnt vmcnt(0)")
    for qt in range(2):
        for l in qk(qt, 0, None): k(l)
    for qt in range(2):
        rowmax(qt, vt[2], vt[0])
        k(f"v_max_f32 v{vt[2]}, v{vt[2]}, v{vm[qt]}")
        k(f"v_sub_f32 v{vt[3]}, v{vm[qt]}, v{vt[2]}")
        k(f"v_exp_f32 v{vt[3]}, v{vt[3]}")
        k(f"v_mov_b32 v{vm[qt]}, v{vt[2]}")
        for r in range(16): k(f"v_mul_f32 v{O[qt]+r}, v{O[qt]+r}, v{vt[3]}")
        for r in range(16): k(f"v_sub_f32 v{Sx[qt]+r}, v{Sx[qt]+r}, v{vt[2]}")
        for r in range(16): k(f"v_exp_f32 v{Sx[qt]+r}, v{Sx[qt]+r}")
        for r in range(8): k(f"v_cvt_pk_bf16_f32 v{P[qt]+r}, v{Sx[qt]+2*r}, v{Sx[qt]+2*r+1}")
        for l in pv(qt, 0): k(l)
    k("s_nop 7"); k("s_nop 7")
    k(f"s_add_u32 s{s_it}, s{s_it}, 1")
    k(f"s_cmp_lt_u32 s{s_it}, 32")
    k(f"s_cbranch_scc1 {k.L('fb')}")
    k.label(k.L("merge"))
    k(f"s_cmp_eq_u32 s{s_kh}, 0")
    k(f"s_cbranch_scc1 {k.L('noswap')}")
    for r in range(12): k(f"v_swap_b32 v{O[0]+r}, v{O[1]+r}")
    k(f"v_swap_b32 v{vm[0]}, v{vm[1]}")
    k.label(k.L("noswap"))
    k(f"v_mov_b32 v{O[1]+12}, v{vm[1]}")
    k(f"s_lshl_b32 s{s_t0}, s{s_w}, 12")
    k(f"v_lshl_add_u32 v{vt[0]}, v{v_lane}, 4, s{s_t0}")
    k(f"v_xor_b32 v{vt[1]}, {4 << 12}, v{vt[0]}")
    for q in range(4): k(f"ds_write_b128 v{vt[0]}, {vr(O[1] + 4*q, 4)} offset:{q*1024}")
    k("s_waitcnt lgkmcnt(0)")
    k("s_barrier")
    k.stamp(5)
    for q in range(4): k(f"ds_read_b128 {vr(Sx[0] + 4*q, 4)}, v{vt[1]} offset:{q*1024}")
    k(f"s_lshl_b32 s{s_t0}, s{s_qb}, 12"); k(f"s_lshl_b32 s{s_t1}, s{s_qs}, 10"); k(f"s_add_u32 s{s_t0}, s{s_t0}, s{s_t1}")
    k(f"s_lshl_b32 s{s_t1}, s{s_kh}, 9"); k(f"s_add_u32 s{s_t0}, s{s_t0}, s{s_t1}"); k(f"s_add_u32 s{s_t0}, s{s_t0}, {O_OFF}")
    k("s_waitcnt lgkmcnt(0)")
    mo = Sx[0] + 12
    k(f"v_max_f32 v{vt[2]}, v{vm[0]}, v{mo}")
    k(f"v_sub_f32 v{vt[3]}, v{vm[0]}, v{vt[2]}"); k(f"v_sub_f32 v{vt[4]}, v{mo}, v{vt[2]}")
    k(f"v_exp_f32 v{vt[3]}, v{vt[3]}"); k(f"v_exp_f32 v{vt[4]}, v{vt[4]}")
    for r in range(12): k(f"v_mul_f32 v{O[0]+r}, v{O[0]+r}, v{vt[3]}")
    for r in range(12): k(f"v_fmac_f32 v{O[0]+r}, v{Sx[0]+r}, v{vt[4]}")
    k(f"v_mov_b32 v{vt[5]}, v{O[0]+8}"); k(f"v_mov_b32 v{vt[6]}, v{O[0]+8}")
    k(f"v_permlane32_swap_b32 v{vt[5]}, v{vt[6]}")
    k(f"v_rcp_f32 v{vt[6]}, v{vt[6]}")
    for r in range(12): k(f"v_mul_f32 v{O[0]+r}, v{O[0]+r}, v{vt[6]}")
    for r in range(6): k(f"v_cvt_pk_bf16_f32 v{P[0]+r}, v{O[0]+2*r}, v{O[0]+2*r+1}")
    k(f"v_permlane32_swap_b32 v{P[0]}, v{P[0]+2}")
    k(f"v_permlane32_swap_b32 v{P[0]+1}, v{P[0]+3}")
    k(f"buffer_store_dwordx4 {vr(P[0],4)}, v{vK1}, {W}, s{s_t0} offen{' sc1' if 'osc1' in X else ''}")
    k(f"s_mov_b64 exec, s[{s_lo}:{s_lo+1}]")
    k(f"buffer_store_dwordx2 {vr(P[0]+4,2)}, v{vK2}, {W}, s{s_t0} offen")
    k.stamp(6); k.dump(1, 9, s_w)
    k.label(k.L("end"))
    k("s_endpgm")
    return k, NV, 8 * 4096

def wgemm(kind):
    k = K(kind)
    op = kind == "oproj"; m1 = kind == "mlp1"; m2 = kind == "mlp2"
    KK = F if m2 else D
    NT = 4 if m1 else 2
    BROW = (F if m1 else D) * 2
    GS = 16 // NT
    GR = GS * 16
    NG = (KK + GR - 1) // GR
    NKS = KK // 16
    GB = 16384
    NSLOT = 5 if op else 8
    SB = NSLOT * GB
    A_OFF = {"oproj": O_OFF, "mlp1": H_OFF, "mlp2": G_OFF}[kind]
    sB, sW, sR, sO, sBi = 4, 8, 12, 16, 44
    s_r, s_cb, s_w, s_t0, s_t1, s_offB, s_offA, s_m0, s_it, s_wid = 20, 21, 22, 23, 24, 25, 26, 27, 28, 35
    v_lane, v_t, v_h = 1, 2, 3
    vBd = [4, 5, 6, 7]; vBr = [4, 5, 6, 7]; vA = 8; vS = 9; vO = 11
    vt = [12, 13, 14, 15]
    RES = 16; BI = 32; ACC = 48
    DIST = 6; NFB = 8; FB = ACC + 16 * NT
    LA = int(os.environ.get("LA", "14")); NFA = 16; FA = FB + NFB * 4
    NV = FA + NFA * 4
    kidx = {"oproj": 2, "mlp1": 3, "mlp2": 4}[kind]
    k.stamp(0); k.stamp(1, True)
    k(f"s_cmp_ge_u32 s2, {224 if m1 else 240}"); k(f"s_cbranch_scc1 {k.L('end')}")
    if op:
        k("s_load_dwordx2 s[36:37], s[0:1], 16")
        k("s_load_dwordx2 s[38:39], s[0:1], 0")
    elif m1:
        k("s_load_dwordx2 s[36:37], s[0:1], 32")
    else:
        k("s_load_dwordx4 s[36:39], s[0:1], 48")
        k("s_load_dwordx2 s[42:43], s[0:1], 64")
    k("s_load_dwordx2 s[40:41], s[0:1], 80")
    k(f"v_lshrrev_b32 v{vt[0]}, 6, v0")
    k(f"v_and_b32 v{v_lane}, 63, v0")
    k(f"v_readfirstlane_b32 s{s_wid}, v{vt[0]}")
    k(f"s_lshr_b32 s{s_t0}, s2, 3")
    if m1:
        k(f"s_and_b32 s{s_r}, s{s_t0}, 1"); k(f"s_lshr_b32 s{s_cb}, s{s_t0}, 1")
        k(f"s_lshl_b32 s{s_t1}, s{s_cb}, 8")
    else:
        k(f"s_mul_i32 s{s_cb}, s{s_t0}, 43"); k(f"s_lshr_b32 s{s_cb}, s{s_cb}, 7")
        k(f"s_mul_i32 s{s_t1}, s{s_cb}, 3"); k(f"s_sub_u32 s{s_r}, s{s_t0}, s{s_t1}")
        k(f"s_lshl_b32 s{s_t1}, s{s_cb}, 7")
    k(f"s_and_b32 s{s_w}, s{s_wid}, 3")
    k(f"s_cmp_lt_u32 s{s_wid}, 4")
    k(f"s_cbranch_scc1 {k.L('compute')}")
    if m1:
        k(f"v_lshrrev_b32 v{vt[0]}, 4, v{v_lane}")
        k(f"v_and_b32 v{vt[1]}, 15, v{v_lane}")
        k(f"v_lshlrev_b32 v{vt[2]}, 2, v{vt[0]}")
    else:
        k(f"v_lshrrev_b32 v{vt[0]}, 3, v{v_lane}")
        k(f"v_and_b32 v{vt[1]}, 7, v{v_lane}")
        k(f"v_bfe_u32 v{vt[2]}, v{v_lane}, 4, 1")
        k(f"v_lshlrev_b32 v{vt[2]}, 2, v{vt[2]}")
    k(f"v_xor_b32 v{vt[1]}, v{vt[1]}, v{vt[2]}")
    k(f"v_mul_u32_u24 v{vt[0]}, {BROW}, v{vt[0]}")
    k(f"v_lshl_add_u32 v{vBd[0]}, v{vt[1]}, 4, v{vt[0]}")
    for ii in range(1, 4):
        k(f"v_add_u32 v{vBd[ii]}, {ii * (GR // 16 * BROW - 1024)}, v{vBd[0]}")
    k(f"s_mul_i32 s{s_offB}, s{s_w}, {GR // 4 * BROW}"); k(f"s_add_u32 s{s_offB}, s{s_offB}, s{s_t1}")
    k(f"s_lshl_b32 s{s_m0}, s{s_w}, 12")
    k(f"s_mov_b32 s{s_it}, 0")
    k("s_waitcnt lgkmcnt(0)")
    srd(k, sB, 36, 37, D * F * 2 if not op else D * D * 2)
    def issue():
        r = [f"s_mov_b32 m0, s{s_m0}", f"s_add_u32 s{s_m0}, s{s_m0}, {GB}"]
        for ii in range(4):
            r.append(f"buffer_load_dwordx4 v{vBd[ii]}, s[{sB}:{sB+3}], s{s_offB} offen offset:{ii*1024} lds")
        r.append(f"s_add_u32 s{s_offB}, s{s_offB}, {GR * BROW}")
        if not op: r.append(f"s_and_b32 s{s_m0}, s{s_m0}, {NSLOT * GB - 1}")
        return r
    k.stamp(2)
    for l in issue() + issue(): k(l)
    k.label(k.L("lloop"))
    for l in issue(): k(l)
    k("s_waitcnt vmcnt(8)")
    k("s_barrier")
    k(f"s_add_u32 s{s_it}, s{s_it}, 1")
    k(f"s_cmp_lt_u32 s{s_it}, {NG - 2}")
    k(f"s_cbranch_scc1 {k.L('lloop')}")
    ex = 0
    if m1:
        srd(k, sW, 40, 41, WS_END)
        k(f"s_lshl_b32 s{s_t0}, s{s_cb}, 10"); k(f"s_lshl_b32 s{s_t1}, s{s_w}, 8"); k(f"s_add_u32 s{s_t0}, s{s_t0}, s{s_t1}")
        k(f"s_add_u32 s{s_t0}, s{s_t0}, {C1_OFF}")
        k(f"s_add_u32 m0, s{s_t1}, {SB}")
        k(f"v_lshlrev_b32 v{vt[3]}, 2, v{v_lane}")
        k(f"buffer_load_dword v{vt[3]}, s[{sW}:{sW+3}], s{s_t0} offen lds")
        ex = 1
    k(f"s_waitcnt vmcnt({4 + ex})"); k("s_barrier")
    k(f"s_waitcnt vmcnt({ex})"); k("s_barrier")
    if m1:
        k("s_waitcnt vmcnt(0)"); k("s_barrier")
    k.stamp(3); k.stamp(4); k.stamp(5); k.stamp(6); k.dump(kidx, 9, s_wid)
    k("s_endpgm")
    k.label(k.L("compute"))
    if m1:
        k(f"s_lshl_b32 s{s_t0}, s{s_r}, 2"); k(f"s_add_u32 s{s_t0}, s{s_t0}, s{s_w}")
    else:
        k(f"s_cmp_eq_u32 s{s_w}, 3"); k(f"s_cbranch_scc1 {k.L('end')}")
        k(f"s_mul_i32 s{s_t0}, s{s_r}, 3"); k(f"s_add_u32 s{s_t0}, s{s_t0}, s{s_w}")
        k(f"s_cmp_ge_u32 s{s_t0}, 8"); k(f"s_cbranch_scc1 {k.L('end')}")
    k(f"s_and_b32 s{s_it}, s2, 7"); k(f"s_lshl_b32 s{s_it}, s{s_it}, 3"); k(f"s_add_u32 s{s_t0}, s{s_t0}, s{s_it}")
    k(f"s_lshl_b32 s{s_t0}, s{s_t0}, 5")
    k(f"v_and_b32 v{v_t}, 31, v0")
    k(f"v_bfe_u32 v{v_h}, v0, 5, 1")
    k(f"v_add_u32 v{vt[0]}, s{s_t0}, v{v_t}")
    k(f"v_lshlrev_b32 v{vA}, 15, v{v_h}")
    k(f"v_lshl_add_u32 v{vA}, v{vt[0]}, 4, v{vA}")
    k(f"s_mov_b32 s{s_offA}, {A_OFF}")
    k("s_waitcnt lgkmcnt(0)")
    srd(k, sW, 40, 41, WS_END)
    def aload(i):
        return [f"buffer_load_dwordx4 {vr(FA + (i % NFA) * 4, 4)}, v{vA}, s[{sW}:{sW+3}], s{s_offA} offen",
                f"s_add_u32 s{s_offA}, s{s_offA}, {2 * CH}"]
    LA0 = LA if not m1 else int(os.environ.get("LA1", "10"))
    LA = LA0
    for i in range(LA):
        for l in aload(i): k(l)
    late = []
    if m1:
        k(f"s_lshl_b32 s{s_t0}, s{s_cb}, 19"); k(f"s_add_u32 s{s_t0}, s{s_t0}, {G_OFF}")
        k(f"v_add_u32 v{vO}, s{s_t0}, v{vA}")
        k(f"v_mul_u32_u24 v{vt[1]}, {5 * 16384}, v{v_h}")
        k(f"v_lshl_add_u32 v{vS}, v{vt[0]}, 3, v{vt[1]}")
        for i in range(5):
            late.append([f"s_mov_b32 s{s_t0}, {HS_OFF + i * 16384}",
                         f"buffer_load_dwordx2 {vr(RES + 2*i, 2)}, v{vS}, s[{sW}:{sW+3}], s{s_t0} offen"])
        k(f"v_bfe_u32 v{vt[0]}, v{v_lane}, 2, 2")
        k(f"v_lshl_add_u32 v{vt[1]}, v{v_h}, 3, v{vt[0]}")
        k(f"v_lshlrev_b32 v{vt[1]}, 8, v{vt[1]}")
        k(f"v_lshl_add_u32 v{vt[0]}, v{vt[0]}, 6, v{vt[1]}")
    else:
        k(f"v_mul_u32_u24 v{vt[1]}, 1280, v{vt[0]}")
        k(f"v_lshl_add_u32 v{vt[1]}, v{v_h}, 4, v{vt[1]}")
        k(f"v_add_u32 v{vt[1]}, s{s_t1}, v{vt[1]}")
        k(f"s_lshl_b32 s{s_t0}, s{s_cb}, 18"); k(f"s_add_u32 s{s_t0}, s{s_t0}, {H_OFF}")
        k(f"v_add_u32 v{vt[2]}, s{s_t0}, v{vA}")
        k(f"v_mov_b32 v{vO}, v{vt[2] if op else vt[1]}")
        if op:
            k(f"s_lshl_b32 s{s_t0}, s{s_cb}, 14"); k(f"s_add_u32 s{s_t0}, s{s_t0}, {HS_OFF}")
            k(f"v_lshl_add_u32 v{vS}, v{vt[0]}, 3, s{s_t0}")
        k(f"v_bfe_u32 v{vt[0]}, v{v_lane}, 2, 2")
        k(f"v_lshl_add_u32 v{vt[0]}, v{v_h}, 3, v{vt[0]}")
        k(f"v_lshlrev_b32 v{vt[0]}, 7, v{vt[0]}")
        k(f"v_bfe_u32 v{vt[3]}, v{v_lane}, 3, 1")
        k(f"v_lshl_add_u32 v{vt[0]}, v{vt[3]}, 6, v{vt[0]}")
    k(f"v_bfe_u32 v{vt[3]}, v{v_lane}, 4, 1")
    k(f"v_lshl_add_u32 v{vt[0]}, v{vt[3]}, 5, v{vt[0]}")
    k(f"v_and_b32 v{vt[3]}, 3, v{v_lane}")
    k(f"v_lshl_add_u32 v{vBr[0]}, v{vt[3]}, 3, v{vt[0]}")
    for j in range(1, NT): k(f"v_xor_b32 v{vBr[j]}, {64 * j}, v{vBr[0]}")
    for c in range(4): k(f"s_mov_b32 s{48 + c}, {2*c*CH}")
    if op:
        srd(k, sR, 38, 39, S * D * 2)
        for c in range(4):
            late.append([f"buffer_load_dwordx4 {vr(RES + 4*c, 4)}, v{vt[1]}, s[{sR}:{sR+3}], 0 offen offset:{32*c}"])
    elif m2:
        srd(k, sO, 42, 43, S * D * 2); srd(k, sBi, 38, 39, D * 2)
        k(f"v_lshlrev_b32 v{vt[0]}, 3, v{v_h}")
        for c in range(4):
            late.append([f"buffer_load_dwordx4 {vr(RES + 4*c, 4)}, v{vt[2]}, s[{sW}:{sW+3}], s{48 + c} offen"])
        for c in range(8):
            late.append([f"buffer_load_dwordx2 {vr(BI + 2*c, 2)}, v{vt[0]}, s[{sBi}:{sBi+3}], s{s_t1} offen offset:{16*c}"])
    cur_base = 0
    NM = NKS * NT
    KSB = GB // GS
    def bread(m):
        nonlocal cur_base
        ks, j = divmod(m, NT)
        G, q = divmod(ks, GS)
        off = (G % NSLOT) * GB + q * KSB
        r = []
        if q == 0 and j == 0: r.append("s_barrier")
        base = (off // 65536) * 65536
        if base != cur_base:
            for a in vBr[:NT]: r.append(f"v_add_u32 v{a}, {(base - cur_base) & 0xffffffff:#x}, v{a}")
            cur_base = base
        for e in range(2):
            r.append(f"ds_read_b64_tr_b16 {vr(FB + (m % NFB) * 4 + 2*e, 2)}, v{vBr[j]} offset:{off - base + e * (KSB // 4)}")
        return r
    k.stamp(2)
    if K.prof: k("s_waitcnt lgkmcnt(0)")
    for m in range(DIST):
        for l in bread(m): k(l)
    vq = [("A", i) for i in range(LA)]
    for m in range(NM):
        ks, j = divmod(m, NT)
        nout = 2 * (min(NM, m + DIST) - m - 1)
        if j == 0:
            pos = vq.index(("A", ks))
            k(f"s_waitcnt vmcnt({len(vq) - 1 - pos}) lgkmcnt({nout})")
        else:
            k(f"s_waitcnt lgkmcnt({nout})")
        cc = vr(ACC + 16*j, 16) if ks else "0"
        k(f"v_mfma_f32_32x32x16_bf16 {vr(ACC + 16*j, 16)}, {vr(FB + (m % NFB) * 4, 4)}, {vr(FA + (ks % NFA) * 4, 4)}, {cc}")
        if m + DIST < NM:
            for l in bread(m + DIST): k(l)
        if j == 0 and ks + LA < NKS:
            for l in aload(ks + LA): k(l)
            vq.append(("A", ks + LA))
        if j == 0 and late and ks + LA >= NKS:
            for _ in range(2):
                if late:
                    for l in late.pop(0): k(l)
                    vq.append(("R", 0))
    assert not late
    k.stamp(3)
    if m1:
        k("s_barrier")
        T = FB; CSB = [FB + 32, FB + 64]
        k(f"v_lshlrev_b32 v{vt[0]}, 4, v{v_h}"); k(f"v_add_u32 v{vt[0]}, {SB}, v{vt[0]}")
        def csread(nt):
            for rq in range(8):
                k(f"ds_read_b128 {vr(CSB[nt % 2] + rq*4, 4)}, v{vt[0]} offset:{(rq // 4) * 512 + nt*128 + (rq % 4)*32}")
        csread(0)
        k("s_waitcnt vmcnt(0)")
        PS = RES; MR = 28
        for i in range(1, 5): k(f"v_pk_add_f32 {vr(PS,2)}, {vr(PS,2)}, {vr(PS + 2*i, 2)}")
        k(f"v_mov_b32 v{PS+2}, v{PS}"); k(f"v_mov_b32 v{PS+3}, v{PS+1}")
        k(f"v_permlane32_swap_b32 v{PS}, v{PS+2}"); k(f"v_permlane32_swap_b32 v{PS+1}, v{PS+3}")
        k(f"v_pk_add_f32 {vr(PS,2)}, {vr(PS,2)}, {vr(PS + 2, 2)}")
        rowstat_math(k, PS, PS + 1, MR, MR + 1, PS + 2, True)
        C0 = -2.0 * math.log2(math.e) * math.sqrt(2.0 / math.pi)
        k(f"s_mov_b32 s44, {f32(C0 * 0.044715)}"); k(f"s_mov_b32 s45, {f32(C0 * 0.044715)}")
        k(f"v_mov_b32 v{vt[2]}, {f32(C0)}"); k(f"v_mov_b32 v{vt[3]}, {f32(C0)}")
        k.stamp(4); k.stamp(5)
        for nt in range(4):
            if nt == 2:
                k(f"s_cmp_eq_u32 s{s_cb}, 13"); k(f"s_cbranch_scc1 {k.L('done')}")
                k(f"v_add_u32 v{vO}, {8 * CH}, v{vO}")
            k("s_waitcnt lgkmcnt(0)")
            if nt < 3: csread(nt + 1)
            a = ACC + 16 * nt; CS = CSB[nt % 2]; B1 = CS + 16
            for p in range(8):
                x = vr(a + 2*p, 2)
                k(f"v_pk_fma_f32 {x}, {vr(CS + 2*p, 2)}, {vr(MR,2)}, {x} op_sel_hi:[1,0,1]")
            for p in range(8):
                x = vr(a + 2*p, 2)
                k(f"v_pk_fma_f32 {x}, {x}, {vr(MR,2)}, {vr(B1 + 2*p, 2)} op_sel:[0,1,0] op_sel_hi:[1,1,1]")
            for p in range(8):
                x = vr(a + 2*p, 2); t = vr(T + 2*p, 2)
                k(f"v_pk_mul_f32 {t}, {x}, {x}")
            for p in range(8):
                t = vr(T + 2*p, 2)
                k(f"v_pk_fma_f32 {t}, {t}, s[44:45], {vr(vt[2],2)}")
            for p in range(8):
                x = vr(a + 2*p, 2); t = vr(T + 2*p, 2)
                k(f"v_pk_mul_f32 {t}, {t}, {x}")
            for r in range(16): k(f"v_exp_f32 v{T + r}, v{T + r}")
            for p in range(8):
                t = vr(T + 2*p, 2)
                k(f"v_pk_add_f32 {t}, {t}, 1.0 op_sel_hi:[1,0]")
            for r in range(16): k(f"v_rcp_f32 v{T + r}, v{T + r}")
            for p in range(8):
                x = vr(a + 2*p, 2); t = vr(T + 2*p, 2)
                k(f"v_pk_mul_f32 {x}, {x}, {t}")
            Pk = T + 16 + (nt % 2) * 8
            for p in range(8):
                k(f"v_cvt_pk_bf16_f32 v{Pk + p}, v{a + 2*p}, v{a + 2*p + 1}")
            for pq in range(2):
                b = Pk + 4*pq
                k(f"v_permlane32_swap_b32 v{b}, v{b+2}")
                k(f"v_permlane32_swap_b32 v{b+1}, v{b+3}")
            for pq in range(2):
                k(f"buffer_store_dwordx4 {vr(Pk + 4*pq,4)}, v{vO}, s[{sW}:{sW+3}], s{48 + (nt % 2)*2 + pq} offen sc1")
        k.label(k.L("done"))
    else:
        T = FA
        k.stamp(4); k.stamp(5)
        k("s_waitcnt vmcnt(0)")
        for c in range(4):
            k(f"v_permlane32_swap_b32 v{RES + 4*c}, v{RES + 4*c + 2}")
            k(f"v_permlane32_swap_b32 v{RES + 4*c + 1}, v{RES + 4*c + 3}")
        for r in range(16):
            k(f"v_lshlrev_b32 v{T + 2*r}, 16, v{RES + r}")
            k(f"v_and_b32 v{T + 2*r + 1}, 0xffff0000, v{RES + r}")
        if m2:
            for r in range(16):
                k(f"v_lshlrev_b32 v{T + 32 + 2*r}, 16, v{BI + r}")
                k(f"v_and_b32 v{T + 32 + 2*r + 1}, 0xffff0000, v{BI + r}")
            for r in range(16):
                k(f"v_pk_add_f32 {vr(T + 2*r, 2)}, {vr(T + 2*r, 2)}, {vr(T + 32 + 2*r, 2)}")
        else:
            k(f"v_mov_b32 v{vt[0]}, 0"); k(f"v_mov_b32 v{vt[1]}, 0"); k(f"s_mov_b32 s{s_t1}, 0x3f803f80")
        for c in range(4):
            for r in range(4*c, 4*c + 4):
                k(f"v_pk_add_f32 {vr(T + 2*r, 2)}, {vr(T + 2*r, 2)}, {vr(ACC + 2*r, 2)}")
            for r in range(4*c, 4*c + 4):
                k(f"v_cvt_pk_bf16_f32 v{RES + r}, v{T + 2*r}, v{T + 2*r + 1}")
            k(f"v_permlane32_swap_b32 v{RES + 4*c}, v{RES + 4*c + 2}")
            k(f"v_permlane32_swap_b32 v{RES + 4*c + 1}, v{RES + 4*c + 3}")
            if op:
                k(f"buffer_store_dwordx4 {vr(RES + 4*c, 4)}, v{vO}, s[{sW}:{sW+3}], s{48 + c} offen sc1")
            else:
                k(f"buffer_store_dwordx4 {vr(RES + 4*c, 4)}, v{vO}, s[{sO}:{sO+3}], 0 offen offset:{32*c}{' sc1' if 'outsc1' in X else ''}")
        if op:
            for r in range(16):
                k(f"v_dot2c_f32_bf16 v{vt[0]}, s{s_t1}, v{RES + r}")
                k(f"v_dot2c_f32_bf16 v{vt[1]}, v{RES + r}, v{RES + r}")
            k(f"v_mov_b32 v{vt[2]}, v{vt[0]}"); k(f"v_mov_b32 v{vt[3]}, v{vt[1]}")
            k(f"v_permlane32_swap_b32 v{vt[0]}, v{vt[2]}"); k(f"v_permlane32_swap_b32 v{vt[1]}, v{vt[3]}")
            k(f"v_add_f32 v{vt[0]}, v{vt[0]}, v{vt[2]}"); k(f"v_add_f32 v{vt[1]}, v{vt[1]}, v{vt[3]}")
            k("s_mov_b32 exec_hi, 0")
            k(f"buffer_store_dwordx2 {vr(vt[0], 2)}, v{vS}, s[{sW}:{sW+3}], 0 offen sc1")
    k.stamp(6); k.dump(kidx, 9, s_wid)
    k.label(k.L("end"))
    k("s_endpgm")
    return k, NV, SB + (1024 if m1 else 0)

HEADER = open("sequential_preLN__mha_block__mixer_channel_mlp__prompt.s.ref").read().split("; Override")[0]

def build(path):
    ks = [(lngemm("qkv"), 256, 512), (attn(), 256, 512), (wgemm("oproj"), 240, 512), ((lngemm if "oldm1" in X else wgemm)("mlp1"), 224, 512), (wgemm("mlp2"), 240, 512)]
    def nop():
        k = K("nop"); k("s_endpgm"); return k, 8, 0
    order = list(range(len(ks)))
    if "nopend" in X: ks.append((nop(), 256, 256)); order = order + [5]
    if "nopbeg" in X: ks.append((nop(), 256, 256)); order = [5] + order
    if "nop3" in X: ks.append((nop(), 256, 256)); order = order + [5, 5, 5]
    if "dup" in X: order = order + order
    t = HEADER
    for (k, nv, lds), grid, block in [ks[i] for i in order]:
        t += f"; @launch kernel={k.name}_kernel grid=({grid},1,1) block=({block},1,1) lds={lds}\n"
    t += '.amdgcn_target "amdgcn-amd-amdhsa--gfx950"\n.text\n'
    for (k, nv, lds), grid, block in ks:
        t += kernel_text(k, nv)
    t += "L_code_end:\n"
    t += '.section .rodata,"a"\n'
    for (k, nv, lds), grid, block in ks:
        t += kernel_desc(k, nv)
    open(path, "w").write(t)

if __name__ == "__main__":
    if len(sys.argv) > 2 and sys.argv[2] == "prof": K.prof = True
    if len(sys.argv) > 2 and sys.argv[2] == "dbg": K.prof = "dbg"
    build(sys.argv[1] if len(sys.argv) > 1 else "sequential_preLN__mha_block__mixer_channel_mlp__prompt.s")
```

```python
import sys, math, struct, os
X = set(os.environ.get("EXP", "").split(","))
from asmlib import K, vr, sr, kernel_text, kernel_desc

S = 2048; D = 640; F = 1728; H = 32; DH = 20
QK_OFF = 0x0
V_OFF = 0x500000
O_OFF = 0x780000
H_OFF = 0xA00000
G_OFF = 0xC80000
HS_OFF = 0x1340000
C1_OFF = 0x1370000
ST_OFF = 0x1378000
FL_OFF = 0x1400000
TAG_OFF = 0x1420000
WS_END = 0x1420100
G_END = 0x1340000
CH = S * 16
EPS = 1e-5

def f32(x):
    return "0x%08x" % struct.unpack("<I", struct.pack("<f", x))[0]

def srd(k, d, lo, hi, size):
    k(f"s_mov_b32 s{d}, s{lo}")
    k(f"s_and_b32 s{d+1}, s{hi}, 0xffff")
    k(f"s_mov_b32 s{d+2}, {size:#x}")
    k(f"s_mov_b32 s{d+3}, 0x00020000")

def code_prefetch(k, first, sd, st, vaddr, vdst, v_lane, per=12):
    lab = k.L("pc%d" % k.uid); k.uid += 1
    k(f"s_getpc_b64 s[{sd}:{sd+1}]")
    k.label(lab)
    k(f"s_add_u32 s{sd}, s{sd}, {first}-{lab}")
    k(f"s_addc_u32 s{sd+1}, s{sd+1}, {'-1' if first == k.name + '_kernel' else '0'}")
    k(f"s_and_b32 s{sd+1}, s{sd+1}, 0xffff")
    k(f"s_mov_b32 s{sd+2}, L_code_end-{first}")
    k(f"s_mov_b32 s{sd+3}, 0x00020000")
    k(f"s_lshr_b32 s{st}, s2, 3"); k(f"s_mul_i32 s{st}, s{st}, {per * 128}")
    k(f"v_lshlrev_b32 v{vaddr}, 7, v{v_lane}")
    k(f"s_mov_b64 exec, {(1 << per) - 1:#x}")
    k(f"buffer_load_dword v{vdst}, v{vaddr}, s[{sd}:{sd+3}], s{st} offen")
    k("s_mov_b64 exec, -1")

def rowstat_math(k, s_, q_, nm, rs, t, double):
    k(f"v_mul_f32 v{nm}, {f32(-1.0 / D)}, v{s_}")
    k(f"v_mul_f32 v{q_}, {f32(1.0 / D)}, v{q_}")
    k(f"v_fma_f32 v{q_}, -v{nm}, v{nm}, v{q_}")
    k(f"v_max_f32 v{q_}, 0, v{q_}")
    k(f"v_add_f32 v{t}, {f32(EPS)}, v{q_}")
    k(f"v_rsq_f32 v{rs}, v{t}")
    if double:
        k(f"v_mul_f32 v{t}, v{rs}, v{rs}")
        k(f"v_mul_f32 v{t}, v{t}, v{q_}")
        k(f"v_add_f32 v{t}, {f32(EPS)}, v{t}")
        k(f"v_rsq_f32 v{t}, v{t}")
        k(f"v_mul_f32 v{rs}, v{rs}, v{t}")

def lngemm(kind):
    k = K(kind)
    qkv = kind == "qkv"
    NB = 1920 if qkv else F
    BROW = NB * 2
    NS = 4; SLOT = 32768; NST = 10
    SB = NS * SLOT
    SL = SB + 2048
    sA, sB, sW, sBi = 4, 8, 12, 16
    s_mb, s_nb, s_w = 20, 21, 22
    s_wm, s_wn = 23, 24
    s_offA, s_offB, s_m0, s_it, s_delta, s_t0, s_t1, s_slot = 25, 26, 27, 28, 29, 30, 31, 32
    s_ones = 33
    s_wid = 35
    v_lane, v_t, v_h = 1, 2, 3
    vAd = [4, 5, 6, 7]; vBd = [8, 9, 10, 11]
    vBr = [12, 13]
    v_b1 = 17
    vt = [18, 19, 20, 21, 22, 23]
    vAr = [24, 25, 26, 27]
    FA = [[32 + 16 * i, 36 + 16 * i] for i in range(4)]
    FB = [[40 + 16 * i, 44 + 16 * i] for i in range(4)]
    ACC = 96
    def acc(mt, nt): return ACC + (mt * 2 + nt) * 16
    EP = 160
    kidx = 0 if qkv else 3

    k.stamp(0); k.stamp(1, True)
    k(f"s_cmp_ge_u32 s2, {256 if qkv else 224}"); k(f"s_cbranch_scc1 {k.L('end')}")
    if qkv:
        k("s_load_dwordx4 s[36:39], s[0:1], 0")
        k("s_load_dwordx4 s[40:43], s[0:1], 72")
        WSL = 42
    else:
        k("s_load_dwordx2 s[36:37], s[0:1], 32")
        k("s_load_dwordx2 s[40:41], s[0:1], 80")
        WSL = 40
    k(f"s_and_b32 s{s_t0}, s2, 7"); k(f"s_lshr_b32 s{s_t1}, s2, 3")
    if qkv:
        k(f"s_lshr_b32 s{s_mb}, s{s_t0}, 1"); k(f"s_lshl_b32 s{s_mb}, s{s_mb}, 2")
        k(f"s_and_b32 s{s_nb}, s{s_t1}, 3"); k(f"s_add_u32 s{s_mb}, s{s_mb}, s{s_nb}")
        k(f"s_and_b32 s{s_nb}, s{s_t0}, 1"); k(f"s_lshl_b32 s{s_nb}, s{s_nb}, 3")
        k(f"s_lshr_b32 s{s_t1}, s{s_t1}, 2"); k(f"s_add_u32 s{s_nb}, s{s_nb}, s{s_t1}")
    else:
        k(f"s_lshl_b32 s{s_mb}, s{s_t0}, 1"); k(f"s_and_b32 s{s_nb}, s{s_t1}, 1"); k(f"s_add_u32 s{s_mb}, s{s_mb}, s{s_nb}")
        k(f"s_lshr_b32 s{s_nb}, s{s_t1}, 1")
    k(f"v_lshrrev_b32 v{vt[0]}, 6, v0")
    k(f"v_and_b32 v{v_lane}, 63, v0")
    k(f"v_readfirstlane_b32 s{s_wid}, v{vt[0]}")
    k(f"v_and_b32 v{v_t}, 31, v0")
    k(f"v_bfe_u32 v{v_h}, v0, 5, 1")
    k(f"s_and_b32 s{s_w}, s{s_wid}, 3")
    k(f"s_cmp_lt_u32 s{s_wid}, 4")
    k(f"s_cbranch_scc1 {k.L('compute')}")
    if qkv:
        k(f"s_cmp_ge_u32 s{s_nb}, 15"); k(f"s_cbranch_scc1 {k.L('auxl')}")
        k(f"v_lshrrev_b32 v{vt[0]}, 3, v{v_lane}")
        k(f"v_and_b32 v{vt[1]}, 7, v{v_lane}")
        k(f"v_lshrrev_b32 v{vt[2]}, 1, v{vt[0]}")
        k(f"v_xor_b32 v{vt[2]}, v{vt[2]}, v{vt[1]}")
        k(f"v_xor_b32 v{vt[3]}, 4, v{vt[2]}")
        k(f"s_lshl_b32 s{s_t0}, s{s_mb}, 7"); k(f"s_lshl_b32 s{s_t1}, s{s_w}, 5"); k(f"s_add_u32 s{s_t0}, s{s_t0}, s{s_t1}")
        k(f"v_add_u32 v{vt[0]}, s{s_t0}, v{vt[0]}")
        k(f"v_mul_u32_u24 v{vt[0]}, 1280, v{vt[0]}")
        for ii in range(4):
            k(f"v_lshl_add_u32 v{vAd[ii]}, v{vt[2 + (ii & 1)]}, 4, v{vt[0]}")
            if ii: k(f"v_add_u32 v{vAd[ii]}, {ii * (8 * 1280 - 1024)}, v{vAd[ii]}")
        stepA = 128
    else:
        k(f"s_lshl_b32 s{s_t0}, s{s_mb}, 11")
        k(f"s_mul_i32 s{s_t1}, s{s_w}, {2 * CH}")
        k(f"s_add_u32 s{s_t0}, s{s_t0}, s{s_t1}")
        k(f"s_add_u32 s{s_t0}, s{s_t0}, {H_OFF}")
        k(f"v_lshl_add_u32 v{vAd[0]}, v{v_lane}, 4, s{s_t0}")
        k(f"v_mov_b32 v{vAd[1]}, v{vAd[0]}")
        k(f"v_add_u32 v{vAd[2]}, {CH - 2048}, v{vAd[0]}")
        k(f"v_add_u32 v{vAd[3]}, {CH - 2048}, v{vAd[0]}")
        stepA = 8 * CH
    k(f"v_lshrrev_b32 v{vt[0]}, 4, v{v_lane}")
    k(f"v_and_b32 v{vt[1]}, 15, v{v_lane}")
    k(f"v_lshlrev_b32 v{vt[2]}, 2, v{vt[0]}")
    k(f"v_xor_b32 v{vt[1]}, v{vt[1]}, v{vt[2]}")
    k(f"s_lshl_b32 s{s_t0}, s{s_w}, 4")
    k(f"v_add_u32 v{vt[0]}, s{s_t0}, v{vt[0]}")
    k(f"v_mul_u32_u24 v{vt[0]}, {BROW}, v{vt[0]}")
    k(f"v_lshl_add_u32 v{vt[0]}, v{vt[1]}, 4, v{vt[0]}")
    k(f"s_lshl_b32 s{s_t0}, s{s_nb}, 8")
    k(f"v_add_u32 v{vBd[0]}, s{s_t0}, v{vt[0]}")
    for ii in range(1, 4):
        k(f"v_add_u32 v{vBd[ii]}, {ii * (4 * BROW - 1024)}, v{vBd[0]}")
    stepB = 64 * BROW
    k(f"s_mov_b32 s{s_offA}, 0"); k(f"s_mov_b32 s{s_offB}, 0")
    k(f"s_lshl_b32 s{s_m0}, s{s_w}, 12")
    k(f"s_mov_b32 s{s_it}, 0")
    k("s_waitcnt lgkmcnt(0)")
    if qkv:
        srd(k, sA, 36, 37, S * D * 2); srd(k, sB, 38, 39, D * NB * 2)
    else:
        srd(k, sB, 36, 37, D * NB * 2); srd(k, sW, WSL, WSL + 1, WS_END)
        sA = sW
    def dma_stage():
        r = []
        r.append(f"s_mov_b32 m0, s{s_m0}")
        for ii in range(4):
            r.append(f"buffer_load_dwordx4 v{vAd[ii]}, s[{sA}:{sA+3}], s{s_offA} offen offset:{ii*1024} lds")
        r.append(f"s_add_u32 m0, s{s_m0}, 16384")
        for ii in range(4):
            r.append(f"buffer_load_dwordx4 v{vBd[ii]}, s[{sB}:{sB+3}], s{s_offB} offen offset:{ii*1024} lds")
        r.append(f"s_add_u32 s{s_offA}, s{s_offA}, {stepA}")
        r.append(f"s_add_u32 s{s_offB}, s{s_offB}, {stepB}")
        r.append(f"s_add_u32 s{s_m0}, s{s_m0}, {SLOT}")
        r.append(f"s_and_b32 s{s_m0}, s{s_m0}, {NS * SLOT - 1}")
        return r
    def lstep(n=8, dma=True):
        if dma:
            for l in dma_stage(): k(l)
        k(f"s_waitcnt vmcnt({n})")
        k("s_barrier")
    def lloop(tag, n):
        k(f"s_mov_b32 s{s_it}, 0")
        k.label(k.L("lloop" + tag))
        lstep()
        k(f"s_add_u32 s{s_it}, s{s_it}, 1")
        k(f"s_cmp_lt_u32 s{s_it}, {n}")
        k(f"s_cbranch_scc1 {k.L('lloop' + tag)}")
    XS = 32
    v_tag = 16
    RG_OFF = ST_OFF; CG_OFF = ST_OFF + 32768
    def slice_addr_rows():
        k(f"v_lshrrev_b32 v{vt[4]}, 4, v{v_lane}")
        k(f"v_and_b32 v{vt[5]}, 15, v{v_lane}")
        k(f"v_mul_u32_u24 v{vt[4]}, 1280, v{vt[4]}")
        k(f"v_lshl_add_u32 v{vt[4]}, v{vt[5]}, 4, v{vt[4]}")
        k(f"s_lshl_b32 s{s_t0}, s{s_mb}, 5"); k(f"s_lshl_b32 s{s_t1}, s{s_nb}, 1"); k(f"s_add_u32 s{s_t0}, s{s_t0}, s{s_t1}")
        k(f"s_add_u32 s{s_delta}, s{s_t0}, s{s_w}"); k(f"s_mul_i32 s{s_t0}, s{s_delta}, {4 * 1280}")
    def slice_load_rows():
        for i in range(5):
            k(f"buffer_load_dwordx4 {vr(XS + 4*i, 4)}, v{vt[4]}, s[{sA}:{sA+3}], s{s_t0} offen offset:{256 * i}")
    def tag_load():
        k(f"v_mov_b32 v15, 0")
        k(f"buffer_load_dword v{v_tag}, v15, s[{sBi}:{sBi+3}], 0 offen sc1")
    def tag_wait(tag):
        k(f"s_mov_b32 s{s_it}, 0")
        k.label(k.L("tw" + tag))
        k(f"v_cmp_eq_u32 vcc, 0, v{v_tag}")
        k(f"s_cbranch_vccz {k.L('tr' + tag)}")
        k("s_sleep 2")
        k(f"buffer_load_dword v{v_tag}, v15, s[{sBi}:{sBi+3}], 0 offen sc1")
        k(f"s_add_u32 s{s_it}, s{s_it}, 1")
        k("s_waitcnt vmcnt(0)")
        k(f"s_cmp_lt_u32 s{s_it}, 0x4000")
        k(f"s_cbranch_scc1 {k.L('tw' + tag)}")
        k.label(k.L("tr" + tag))
    def slice_rows(part):
        if part == 0:
            k("v_mov_b32 v56, 0"); k("v_mov_b32 v57, 0"); k("v_mov_b32 v58, 0"); k("v_mov_b32 v59, 0")
        for r in (range(13) if part == 0 else range(13, 20)):
            k(f"v_lshlrev_b32 v52, 16, v{XS + r}")
            k(f"v_and_b32 v53, 0xffff0000, v{XS + r}")
            k("v_add_f32 v56, v56, v52"); k("v_fmac_f32 v57, v52, v52")
            k("v_add_f32 v58, v58, v53"); k("v_fmac_f32 v59, v53, v53")
        if part == 0: return
        k("v_add_f32 v56, v56, v58"); k("v_add_f32 v57, v57, v59")
        for sh in (8, 4, 2, 1):
            k(f"v_add_f32_dpp v56, v56, v56 row_ror:{sh} row_mask:0xf bank_mask:0xf")
            k(f"v_add_f32_dpp v57, v57, v57 row_ror:{sh} row_mask:0xf bank_mask:0xf")
        rowstat_math(k, 56, 57, 60, 62, 52, False)
        k(f"v_mov_b32 v61, v{v_tag}"); k(f"v_mov_b32 v63, v{v_tag}")
        k(f"s_lshl_b32 s{s_t0}, s{s_delta}, 6"); k(f"s_add_u32 s{s_t0}, s{s_t0}, {RG_OFF}")
        k("s_mov_b32 exec_lo, 0x00010001"); k("s_mov_b32 exec_hi, 0x00010001")
        k(f"buffer_store_dwordx4 v[60:63], v{v_lane}, s[{sW}:{sW+3}], s{s_t0} offen sc1")
        k("s_mov_b64 exec, -1")
    def slice_cols(part):
        if part == 0:
            for r in range(4):
                k(f"v_lshlrev_b32 v{56 + 2*r}, 16, v{XS + r}"); k(f"v_and_b32 v{57 + 2*r}, 0xffff0000, v{XS + r}")
            for i in range(1, 5):
                for r in range(4):
                    k(f"v_lshlrev_b32 v52, 16, v{XS + 4*i + r}"); k(f"v_and_b32 v53, 0xffff0000, v{XS + 4*i + r}")
                    k(f"v_add_f32 v{56 + 2*r}, v{56 + 2*r}, v52"); k(f"v_add_f32 v{57 + 2*r}, v{57 + 2*r}, v53")
            return
        for r in range(4): k(f"v_permlane32_swap_b32 v{56 + r}, v{60 + r}")
        for r in range(4): k(f"v_add_f32 v{56 + r}, v{56 + r}, v{60 + r}")
        for r in range(2): k(f"v_permlane16_swap_b32 v{56 + r}, v{58 + r}")
        k("v_add_f32 v56, v56, v58"); k("v_add_f32 v58, v57, v59")
        k(f"v_mov_b32 v57, v{v_tag}"); k(f"v_mov_b32 v59, v{v_tag}")
        k(f"v_and_b32 v{vt[4]}, 48, v{v_lane}")
        k(f"v_lshl_add_u32 v{vt[4]}, v{vt[5]}, 6, v{vt[4]}")
        k(f"s_mul_i32 s{s_t0}, s{s_delta}, 15360"); k(f"s_lshl_b32 s{s_t1}, s{s_nb}, 10"); k(f"s_add_u32 s{s_t0}, s{s_t0}, s{s_t1}")
        k(f"s_add_u32 s{s_t0}, s{s_t0}, {CG_OFF}")
        k(f"buffer_store_dwordx4 v[56:59], v{vt[4]}, s[{sW}:{sW+3}], s{s_t0} offen sc1")
    def slice_part(part):
        k(f"s_cmp_ge_u32 s{s_w}, 2"); k(f"s_cbranch_scc1 {k.L('slc%d' % part)}")
        slice_rows(part)
        k(f"s_branch {k.L('sld%d' % part)}")
        k.label(k.L("slc%d" % part))
        slice_cols(part)
        k.label(k.L("sld%d" % part))
    k.stamp(2)
    for l in dma_stage(): k(l)
    if qkv:
        for l in dma_stage(): k(l)
        k(f"s_cmp_ge_u32 s{s_w}, 2"); k(f"s_cbranch_scc1 {k.L('slc')}")
        slice_addr_rows(); slice_load_rows()
        k(f"s_branch {k.L('sll')}")
        k.label(k.L("slc"))
        k(f"v_lshrrev_b32 v{vt[4]}, 4, v{v_lane}")
        k(f"v_and_b32 v{vt[5]}, 15, v{v_lane}")
        k(f"v_mul_u32_u24 v{vt[4]}, {BROW}, v{vt[4]}")
        k(f"v_lshl_add_u32 v{vt[4]}, v{vt[5]}, 4, v{vt[4]}")
        k(f"s_lshl_b32 s{s_delta}, s{s_mb}, 1"); k(f"s_add_u32 s{s_delta}, s{s_delta}, s{s_w}"); k(f"s_sub_u32 s{s_delta}, s{s_delta}, 2")
        k(f"s_mul_i32 s{s_t0}, s{s_delta}, {20 * BROW}"); k(f"s_lshl_b32 s{s_t1}, s{s_nb}, 8"); k(f"s_add_u32 s{s_t0}, s{s_t0}, s{s_t1}")
        for i in range(5):
            k(f"buffer_load_dwordx4 {vr(XS + 4*i, 4)}, v{vt[4]}, s[{sB}:{sB+3}], s{s_t0} offen")
            k(f"s_add_u32 s{s_t0}, s{s_t0}, {4 * BROW}")
        k.label(k.L("sll"))
        srd(k, sW, WSL, WSL + 1, WS_END); srd(k, sBi, 40, 41, 256)
        lstep(13, False)
        tag_load()
        lstep(14)
        lstep(8)
        k.stamp(3)
        for l in dma_stage(): k(l)
        slice_part(0)
        lstep(8, False)
        for l in dma_stage(): k(l)
        tag_wait("a")
        slice_part(1)
        lstep(9, False)
        k.stamp(4)
        lstep(9)
        lstep(); lstep()
        for l in dma_stage(): k(l)
        k(f"s_lshl_b32 s{s_t0}, s{s_mb}, 11"); k(f"s_lshl_b32 s{s_t1}, s{s_w}, 9"); k(f"s_add_u32 s{s_t0}, s{s_t0}, s{s_t1}")
        k(f"s_add_u32 s{s_offA}, s{s_t0}, {RG_OFF}")
        k(f"v_lshlrev_b32 v{vt[0]}, 4, v{v_t}")
        k(f"v_lshrrev_b32 v{vt[1]}, 4, v{v_lane}")
        k(f"v_mul_u32_u24 v{vt[1]}, {8 * 15360}, v{vt[1]}")
        k(f"v_lshl_add_u32 v{vt[1]}, v{vt[5]}, 4, v{vt[1]}")
        k(f"s_lshl_b32 s{s_t0}, s{s_nb}, 10"); k(f"s_lshl_b32 s{s_t1}, s{s_w}, 8"); k(f"s_add_u32 s{s_t0}, s{s_t0}, s{s_t1}")
        k(f"s_add_u32 s{s_offB}, s{s_t0}, {CG_OFF}")
        def gather():
            k(f"buffer_load_dwordx4 v[64:67], v{vt[0]}, s[{sW}:{sW+3}], s{s_offA} offen sc1")
            k(f"s_mov_b32 s{s_t0}, s{s_offB}")
            for i in range(8):
                k(f"buffer_load_dwordx4 {vr(32 + 4*i, 4)}, v{vt[1]}, s[{sW}:{sW+3}], s{s_t0} offen sc1")
                k(f"s_add_u32 s{s_t0}, s{s_t0}, 15360")
        gather()
        lstep(17, False)
        lstep(9, False)
        k.stamp(5)
        k(f"s_mov_b32 s{s_it}, 0")
        k.label(k.L("poll"))
        k("s_waitcnt vmcnt(0)")
        k(f"v_and_b32 v68, v65, v67"); k(f"v_or_b32 v69, v65, v67")
        for i in range(16):
            k(f"v_and_b32 v68, v68, v{33 + 2*i}"); k(f"v_or_b32 v69, v69, v{33 + 2*i}")
        k(f"v_xor_b32 v68, v68, v{v_tag}"); k(f"v_xor_b32 v69, v69, v{v_tag}"); k("v_or_b32 v68, v68, v69")
        k(f"v_cmp_ne_u32 vcc, 0, v68")
        k(f"s_cbranch_vccz {k.L('ready')}")
        k("s_sleep 2")
        gather()
        k(f"s_add_u32 s{s_it}, s{s_it}, 1")
        k(f"s_cmp_lt_u32 s{s_it}, 0x2000")
        k(f"s_cbranch_scc1 {k.L('poll')}")
        k("s_waitcnt vmcnt(0)")
        k.label(k.L("ready"))
        k.stamp(6)
        k("v_add_f32 v33, v34, v38")
        for i in range(1, 8):
            k(f"v_add_f32 v32, v32, v{32 + 4*i}")
            if i > 1: k(f"v_add_f32 v33, v33, v{34 + 4*i}")
        k(f"s_cmp_lt_u32 s{s_nb}, 5")
        k(f"s_cselect_b32 s{s_t0}, {f32(math.log2(math.e) / math.sqrt(DH))}, 1.0")
        k(f"v_mul_f32 v65, s{s_t0}, v66")
        k(f"s_lshl_b32 s{s_t1}, s{s_w}, 7"); k(f"s_add_u32 s{s_t1}, s{s_t1}, {SB}")
        k(f"v_lshl_add_u32 v{vt[0]}, v{v_t}, 2, s{s_t1}")
        k(f"ds_write2_b32 v{vt[0]}, v64, v65 offset0:0 offset1:128")
        for sw in ("v_permlane32_swap_b32", "v_permlane16_swap_b32"):
            k("v_mov_b32 v34, v32"); k("v_mov_b32 v35, v33")
            k(f"{sw} v32, v34"); k(f"{sw} v33, v35")
            k("v_add_f32 v32, v32, v34"); k("v_add_f32 v33, v33, v35")
        k(f"v_lshl_add_u32 v{vt[1]}, v{vt[5]}, 3, s{s_t1}")
        k(f"ds_write_b64 v{vt[1]}, v[32:33] offset:1024")
        k("s_waitcnt lgkmcnt(0)")
        k("s_barrier")
    else:
        lloop("", 8)
        for l in dma_stage(): k(l)
        PS = 32
        k(f"s_lshl_b32 s{s_t0}, s{s_mb}, 7"); k(f"s_lshl_b32 s{s_t1}, s{s_w}, 5"); k(f"s_add_u32 s{s_t0}, s{s_t0}, s{s_t1}")
        k(f"v_add_lshl_u32 v{vt[2]}, v{v_t}, s{s_t0}, 3")
        k(f"v_mul_u32_u24 v{vt[1]}, {5 * 16384}, v{v_h}")
        k(f"v_add_u32 v{vt[2]}, v{vt[2]}, v{vt[1]}")
        for i in range(5):
            k(f"s_mov_b32 s{s_t0}, {HS_OFF + i * 16384}")
            k(f"buffer_load_dwordx2 {vr(PS + 2*i, 2)}, v{vt[2]}, s[{sW}:{sW+3}], s{s_t0} offen")
        k(f"s_lshl_b32 s{s_t0}, s{s_nb}, 10"); k(f"s_lshl_b32 s{s_t1}, s{s_w}, 8"); k(f"s_add_u32 s{s_t0}, s{s_t0}, s{s_t1}")
        k(f"s_add_u32 s{s_t0}, s{s_t0}, {C1_OFF}")
        k(f"s_add_u32 m0, s{s_t1}, {SB + 1024}")
        k(f"v_lshlrev_b32 v{vt[3]}, 2, v{v_lane}")
        k(f"buffer_load_dword v{vt[3]}, s[{sW}:{sW+3}], s{s_t0} offen lds")
        lstep(14, False)
        lstep(6, False)
        k("s_waitcnt vmcnt(0)")
        for i in range(1, 5):
            k(f"v_add_f32 v{PS}, v{PS}, v{PS + 2*i}"); k(f"v_add_f32 v{PS+1}, v{PS+1}, v{PS + 2*i + 1}")
        k(f"v_mov_b32 v{PS+2}, v{PS}"); k(f"v_mov_b32 v{PS+3}, v{PS+1}")
        k(f"v_permlane32_swap_b32 v{PS}, v{PS+2}"); k(f"v_permlane32_swap_b32 v{PS+1}, v{PS+3}")
        k(f"v_add_f32 v{PS}, v{PS}, v{PS+2}"); k(f"v_add_f32 v{PS+1}, v{PS+1}, v{PS+3}")
        rowstat_math(k, PS, PS + 1, 44, 45, PS + 2, True)
        k(f"s_lshl_b32 s{s_t1}, s{s_w}, 7"); k(f"s_add_u32 s{s_t1}, s{s_t1}, {SB}")
        k(f"v_lshl_add_u32 v{vt[3]}, v{v_t}, 2, s{s_t1}")
        k(f"ds_write_b32 v{vt[3]}, v44")
        k(f"ds_write_b32 v{vt[3]}, v45 offset:512")
        k("s_waitcnt lgkmcnt(0)")
        k("s_barrier")
    if not qkv: k.stamp(3); k.stamp(4); k.stamp(5); k.stamp(6)
    k.dump(kidx, 9, s_wid, WSL)
    k("s_endpgm")
    k.label(k.L("compute"))
    if qkv:
        k(f"s_or_b32 s{s_t0}, s2, s{s_w}")
        k(f"s_cbranch_scc1 {k.L('notag')}")
        k("s_memrealtime s[44:45]")
        k("s_waitcnt lgkmcnt(0)")
        srd(k, sBi, 40, 41, 256)
        k("s_mul_i32 s44, s44, 0x9e3779b1"); k("s_or_b32 s44, s44, 1")
        k(f"v_mov_b32 v{vt[0]}, 0"); k(f"v_mov_b32 v{vt[1]}, s44")
        k("s_mov_b64 exec, 1")
        k(f"buffer_store_dword v{vt[1]}, v{vt[0]}, s[{sBi}:{sBi+3}], 0 offen sc1")
        srd(k, sW, WSL, WSL + 1, WS_END)
        k(f"s_mov_b32 s{s_t0}, {TAG_OFF}")
        k(f"buffer_store_dword v{vt[1]}, v{vt[0]}, s[{sW}:{sW+3}], s{s_t0} offen sc1")
        k("s_mov_b64 exec, -1")
        k.label(k.L("notag"))
        if "nocpf" not in X:
            k(f"s_cmp_lg_u32 s{s_w}, 1"); k(f"s_cbranch_scc1 {k.L('nocpf')}")
            code_prefetch(k, "qkv_kernel", sB, s_t0, vt[0], 14, v_lane)
            k.label(k.L("nocpf"))
        k(f"s_cmp_ge_u32 s{s_nb}, 15"); k(f"s_cbranch_scc1 {k.L('aux')}")
    k(f"s_lshr_b32 s{s_wm}, s{s_w}, 1"); k(f"s_and_b32 s{s_wn}, s{s_w}, 1")
    k(f"s_mov_b32 s34, {SLOT}")
    if qkv:
        k(f"v_bfe_u32 v{vt[0]}, v{v_t}, 1, 3")
        k(f"v_xor_b32 v{vt[0]}, v{vt[0]}, v{v_h}")
        k(f"s_lshl_b32 s{s_t0}, s{s_wm}, 13")
        k(f"v_lshl_add_u32 v{vt[1]}, v{v_t}, 7, s{s_t0}")
        for ks in range(4):
            k(f"v_xor_b32 v{vt[2]}, {2*ks}, v{vt[0]}")
            k(f"v_lshl_add_u32 v{vAr[ks]}, v{vt[2]}, 4, v{vt[1]}")
        def a_read(dst, ks, mt): return f"ds_read_b128 {vr(dst,4)}, v{vAr[ks]} offset:{mt*4096}"
        def a_upd(ks): return [vAr[ks]]
    else:
        k(f"s_lshl_b32 s{s_t0}, s{s_wm}, 10")
        k(f"v_lshl_add_u32 v{vt[0]}, v{v_t}, 4, s{s_t0}")
        k(f"v_lshl_add_u32 v{vAr[0]}, v{v_h}, 11, v{vt[0]}")
        def a_read(dst, ks, mt): return f"ds_read_b128 {vr(dst,4)}, v{vAr[0]} offset:{ks*4096 + mt*512}"
        def a_upd(ks): return [vAr[0]] if ks == 0 else []
    k(f"v_bfe_u32 v{vt[0]}, v{v_lane}, 2, 2")
    k(f"v_lshl_add_u32 v{vt[1]}, v{v_h}, 3, v{vt[0]}")
    k(f"v_lshlrev_b32 v{vt[1]}, 8, v{vt[1]}")
    k(f"v_bfe_u32 v{vt[2]}, v{v_lane}, 4, 1")
    k(f"v_lshl_add_u32 v{vt[1]}, v{vt[2]}, 5, v{vt[1]}")
    k(f"v_and_b32 v{vt[2]}, 3, v{v_lane}")
    k(f"v_lshl_add_u32 v{vt[1]}, v{vt[2]}, 3, v{vt[1]}")
    k(f"v_add_u32 v{vt[1]}, 16384, v{vt[1]}")
    k(f"s_lshl_b32 s{s_t0}, s{s_wn}, 1")
    k(f"v_xor_b32 v{vt[2]}, s{s_t0}, v{vt[0]}")
    k(f"v_lshl_add_u32 v{vBr[0]}, v{vt[2]}, 6, v{vt[1]}")
    k(f"v_xor_b32 v{vBr[1]}, 64, v{vBr[0]}")
    def b_read(dst, ks, nt, e): return f"ds_read_b64_tr_b16 {vr(dst + 2*e, 2)}, v{vBr[nt]} offset:{ks*4096 + e*1024}"
    for r in range(64): k(f"v_mov_b32 v{ACC + r}, 0")
    k(f"s_mov_b32 s{s_it}, 0"); k(f"s_mov_b32 s{s_slot}, 0")
    k("s_waitcnt lgkmcnt(0)")
    srd(k, sW, WSL, WSL + 1, WS_END)

    def reads(ks):
        return [a_read(FA[ks][0], ks, 0), b_read(FB[ks][0], ks, 0, 0), b_read(FB[ks][0], ks, 0, 1),
                b_read(FB[ks][1], ks, 1, 0), b_read(FB[ks][1], ks, 1, 1), a_read(FA[ks][1], ks, 1)]
    k.stamp(2)
    k("s_waitcnt lgkmcnt(0)")
    k("s_barrier")
    k.stamp(3)
    if K.prof: k("s_waitcnt lgkmcnt(0)")
    for l in reads(0) + reads(1): k(l)

    def mainloop(tag, vorient):
        k.label(k.L("loop" + tag))
        for ks in range(4):
            mf = []
            for mt in range(2):
                for nt in range(2):
                    a, b = FA[ks][mt], FB[ks][nt]
                    s0, s1 = (a, b) if vorient else (b, a)
                    mf.append(f"v_mfma_f32_32x32x16_bf16 {vr(acc(mt,nt),16)}, {vr(s0,4)}, {vr(s1,4)}, {vr(acc(mt,nt),16)}")
            pre = []
            if ks == 2:
                k("s_barrier")
                pre += [f"s_add_u32 s{s_slot}, s{s_slot}, 1", f"s_and_b32 s{s_slot}, s{s_slot}, {NS - 1}",
                        f"s_cselect_b32 s{s_delta}, s34, {(-(NS - 1) * SLOT) & 0xffffffff:#x}"]
                pre += [f"v_add_u32 v{a}, s{s_delta}, v{a}" for a in vBr]
            nk = (ks + 2) % 4
            if ks >= 2:
                pre += [f"v_add_u32 v{a}, s{s_delta}, v{a}" for a in a_upd(nk)]
            post = []
            if ks == 3:
                post = [f"v_add_u32 v{a}, s{s_delta}, v{a}" for a in a_upd(2) + a_upd(3)]
                post += [f"s_add_u32 s{s_it}, s{s_it}, 1", f"s_cmp_lt_u32 s{s_it}, {NST}"]
            rd = reads(nk)
            k("s_waitcnt lgkmcnt(6)")
            seq = [mf[0]] + pre + rd[0:2] + [mf[1]] + rd[2:4] + [mf[2]] + rd[4:6] + post + [mf[3]]
            for l in seq: k(l)
        k(f"s_cbranch_scc1 {k.L('loop' + tag)}")
        k.stamp(4)

    def epi_nm():
        MR = [28, 30]
        CS = EP; B1 = EP + 32
        k(f"s_lshl_b32 s{s_t0}, s{s_wm}, 8"); k(f"s_add_u32 s{s_t0}, s{s_t0}, {SB}")
        k(f"v_lshl_add_u32 v{vt[4]}, v{v_t}, 2, s{s_t0}")
        for mt in range(2):
            k(f"ds_read2_b32 {vr(MR[mt],2)}, v{vt[4]} offset0:{mt*32} offset1:{128 + mt*32}")
        k(f"s_lshl_b32 s{s_t0}, s{s_wn}, 8"); k(f"s_add_u32 s{s_t0}, s{s_t0}, {SB}")
        k(f"v_lshl_add_u32 v{vt[0]}, v{v_h}, 4, s{s_t0}")
        for nt in range(2):
            for rq in range(4):
                k(f"ds_read_b128 {vr(CS + nt*16 + rq*4, 4)}, v{vt[0]} offset:{1024 + nt*128 + rq*32}")
            if not qkv:
                for rq in range(4):
                    k(f"ds_read_b128 {vr(B1 + nt*16 + rq*4, 4)}, v{vt[0]} offset:{1536 + nt*128 + rq*32}")
        OFF = QK_OFF if qkv else G_OFF
        k(f"s_lshl_b32 s{s_t0}, s{s_nb}, 4"); k(f"s_lshl_b32 s{s_t1}, s{s_wn}, 3"); k(f"s_add_u32 s{s_t0}, s{s_t0}, s{s_t1}")
        k(f"v_add_lshl_u32 v{vt[2]}, v{v_h}, s{s_t0}, 15")
        k(f"s_lshl_b32 s{s_t0}, s{s_mb}, 7"); k(f"s_lshl_b32 s{s_t1}, s{s_wm}, 6"); k(f"s_add_u32 s{s_t0}, s{s_t0}, s{s_t1}")
        k(f"v_add_u32 v{vt[3]}, s{s_t0}, v{v_t}")
        k(f"v_lshl_add_u32 v{vt[2]}, v{vt[3]}, 4, v{vt[2]}")
        so = 46
        for c in range(4): k(f"s_mov_b32 s{so + c}, {OFF + 2*c*CH}")
        if not qkv:
            C0 = -2.0 * math.log2(math.e) * math.sqrt(2.0 / math.pi)
            k(f"s_mov_b32 s44, {f32(C0 * 0.044715)}"); k(f"s_mov_b32 s45, {f32(C0 * 0.044715)}")
            k(f"v_mov_b32 v{vt[4]}, {f32(C0)}"); k(f"v_mov_b32 v{vt[5]}, {f32(C0)}")
        k("s_waitcnt lgkmcnt(0)")
        T = EP + 64
        n_st = 0
        for nt in range(2):
            for mt in range(2):
                a = acc(mt, nt); mr = MR[mt]
                for p in range(8):
                    x = vr(a + 2*p, 2)
                    k(f"v_pk_fma_f32 {x}, {vr(CS + nt*16 + 2*p, 2)}, {vr(mr,2)}, {x} op_sel_hi:[1,0,1]")
                for p in range(8):
                    x = vr(a + 2*p, 2)
                    if qkv:
                        k(f"v_pk_mul_f32 {x}, {x}, {vr(mr,2)} op_sel:[0,1] op_sel_hi:[1,1]")
                    else:
                        k(f"v_pk_fma_f32 {x}, {x}, {vr(mr,2)}, {vr(B1 + nt*16 + 2*p, 2)} op_sel:[0,1,0] op_sel_hi:[1,1,1]")
                if not qkv:
                    for p in range(8):
                        x = vr(a + 2*p, 2); t = vr(T + 2*p, 2)
                        k(f"v_pk_mul_f32 {t}, {x}, {x}")
                    for p in range(8):
                        t = vr(T + 2*p, 2)
                        k(f"v_pk_fma_f32 {t}, {t}, s[44:45], {vr(vt[4],2)}")
                    for p in range(8):
                        x = vr(a + 2*p, 2); t = vr(T + 2*p, 2)
                        k(f"v_pk_mul_f32 {t}, {t}, {x}")
                    for r in range(16): k(f"v_exp_f32 v{T + r}, v{T + r}")
                    for p in range(8):
                        t = vr(T + 2*p, 2)
                        k(f"v_pk_add_f32 {t}, {t}, 1.0 op_sel_hi:[1,0]")
                    for r in range(16): k(f"v_rcp_f32 v{T + r}, v{T + r}")
                    for p in range(8):
                        x = vr(a + 2*p, 2); t = vr(T + 2*p, 2)
                        k(f"v_pk_mul_f32 {x}, {x}, {t}")
                Pk = T + 16 + (n_st % 2) * 8
                for p in range(8):
                    k(f"v_cvt_pk_bf16_f32 v{Pk + p}, v{a + 2*p}, v{a + 2*p + 1}")
                for pq in range(2):
                    b = Pk + 4*pq
                    k(f"v_permlane32_swap_b32 v{b}, v{b+2}")
                    k(f"v_permlane32_swap_b32 v{b+1}, v{b+3}")
                for pq in range(2):
                    b = Pk + 4*pq
                    k(f"buffer_store_dwordx4 {vr(b,4)}, v{vt[2]}, s[{sW}:{sW+3}], s{so + nt*2 + pq} offen offset:{mt*512} sc1")
                n_st += 1

    def epi_v():
        NM = EP; RS = EP + 32; CSV = [28, 30]
        k(f"s_lshl_b32 s{s_t0}, s{s_wm}, 8"); k(f"s_add_u32 s{s_t0}, s{s_t0}, {SB}")
        k(f"v_lshl_add_u32 v{vt[0]}, v{v_h}, 4, s{s_t0}")
        k(f"s_lshl_b32 s{s_t0}, s{s_wn}, 8"); k(f"s_add_u32 s{s_t0}, s{s_t0}, {SB}")
        k(f"v_lshl_add_u32 v{vt[1]}, v{v_t}, 2, s{s_t0}")
        for nt in range(2):
            k(f"ds_read_b32 v{CSV[nt]}, v{vt[1]} offset:{1024 + nt*128}")
        for mt in range(2):
            for rq in range(4):
                k(f"ds_read_b128 {vr(NM + mt*16 + rq*4, 4)}, v{vt[0]} offset:{mt*128 + rq*32}")
                k(f"ds_read_b128 {vr(RS + mt*16 + rq*4, 4)}, v{vt[0]} offset:{512 + mt*128 + rq*32}")
        k(f"s_lshl_b32 s{s_t0}, s{s_mb}, 1"); k(f"s_add_u32 s{s_t0}, s{s_t0}, s{s_wm}"); k(f"s_mul_i32 s{s_t0}, s{s_t0}, 2560")
        k(f"s_lshl_b32 s{s_t1}, s{s_nb}, 7"); k(f"s_add_u32 s{s_t0}, s{s_t0}, s{s_t1}"); k(f"s_sub_u32 s{s_t0}, s{s_t0}, 1280")
        k(f"s_lshl_b32 s{s_t1}, s{s_wn}, 6"); k(f"s_add_u32 s{s_t0}, s{s_t0}, s{s_t1}")
        k(f"v_add_lshl_u32 v{vt[2]}, v{v_t}, s{s_t0}, 5")
        k(f"v_lshl_add_u32 v{vt[2]}, v{v_h}, 4, v{vt[2]}")
        so = 46
        for c in range(4): k(f"s_mov_b32 s{so + c}, {V_OFF + c * 640 * 32}")
        k("s_waitcnt lgkmcnt(0)")
        T = EP + 64; n_st = 0
        for mt in range(2):
            for nt in range(2):
                a = acc(mt, nt)
                for p in range(8):
                    x = vr(a + 2*p, 2)
                    k(f"v_pk_fma_f32 {x}, {vr(NM + mt*16 + 2*p, 2)}, {vr(CSV[nt],2)}, {x} op_sel_hi:[1,0,1]")
                for p in range(8):
                    x = vr(a + 2*p, 2)
                    k(f"v_pk_mul_f32 {x}, {x}, {vr(RS + mt*16 + 2*p, 2)}")
                Pk = T + (n_st % 2) * 8
                for p in range(8):
                    k(f"v_cvt_pk_bf16_f32 v{Pk + p}, v{a + 2*p}, v{a + 2*p + 1}")
                for jj in range(2):
                    k(f"buffer_store_dwordx4 {vr(Pk + 4*jj, 4)}, v{vt[2]}, s[{sW}:{sW+3}], s{so + mt*2 + jj} offen offset:{nt*1024} sc1")
                n_st += 1

    if qkv:
        k(f"s_cmp_ge_u32 s{s_nb}, 10")
        k(f"s_cbranch_scc1 {k.L('loopv')}")
        mainloop("q", False); k.stamp(5); epi_nm(); k.stamp(6); k.dump(0, 9, s_wid, WSL)
        k("s_endpgm")
        mainloop("v", True); k.stamp(5); epi_v(); k.stamp(6); k.dump(0, 9, s_wid, WSL)
        k("s_endpgm")
        k.label(k.L("auxl"))
        k(f"s_cmp_ge_u32 s{s_w}, 2"); k(f"s_cbranch_scc1 {k.L('aux')}")
        slice_addr_rows()
        k("s_waitcnt lgkmcnt(0)")
        srd(k, sA, 36, 37, S * D * 2); srd(k, sW, WSL, WSL + 1, WS_END); srd(k, sBi, 40, 41, 256)
        slice_load_rows()
        k("s_waitcnt vmcnt(0)")
        tag_load()
        slice_rows(0)
        k("s_waitcnt vmcnt(0)")
        tag_wait("x")
        slice_rows(1)
        k.label(k.L("aux"))
        k("s_load_dwordx4 s[44:47], s[0:1], 32")
        k(f"v_lshrrev_b32 v{vt[0]}, 4, v{v_lane}")
        k(f"v_and_b32 v{vt[1]}, 15, v{v_lane}")
        k(f"v_mul_u32_u24 v{vt[2]}, {F * 2}, v{vt[0]}")
        k(f"v_lshl_add_u32 v{vt[2]}, v{vt[1]}, 4, v{vt[2]}")
        k(f"v_lshlrev_b32 v{vt[3]}, 1, v0")
        k("s_waitcnt lgkmcnt(0)")
        srd(k, sW, WSL, WSL + 1, WS_END)
        k(f"s_cmp_ge_u32 s{s_mb}, 14"); k(f"s_cbranch_scc1 {k.L('end')}")
        srd(k, sB, 44, 45, D * F * 2); srd(k, sA, 46, 47, F * 2)
        k(f"s_mul_i32 s{s_t0}, s{s_wid}, {80 * F * 2}"); k(f"s_lshl_b32 s{s_t1}, s{s_mb}, 8"); k(f"s_add_u32 s{s_t0}, s{s_t0}, s{s_t1}")
        k(f"buffer_load_ushort v{v_b1}, v{vt[3]}, s[{sA}:{sA+3}], s{s_t1} offen")
        for i in range(20):
            k(f"buffer_load_dwordx4 {vr(40 + 4*i, 4)}, v{vt[2]}, s[{sB}:{sB+3}], s{s_t0} offen")
            k(f"s_add_u32 s{s_t0}, s{s_t0}, {4 * F * 2}")
        for r in range(8): k(f"v_mov_b32 v{24 + r}, 0")
        for i in range(20):
            k(f"s_waitcnt vmcnt({19 - i})")
            for r in range(4):
                k(f"v_lshlrev_b32 v{32 + 2*r}, 16, v{40 + 4*i + r}")
                k(f"v_and_b32 v{33 + 2*r}, 0xffff0000, v{40 + 4*i + r}")
            for r in range(4):
                k(f"v_pk_add_f32 {vr(24 + 2*r, 2)}, {vr(24 + 2*r, 2)}, {vr(32 + 2*r, 2)}")
        k(f"v_lshlrev_b32 v{vt[0]}, 5, v0")
        k(f"ds_write_b128 v{vt[0]}, v[24:27]")
        k(f"ds_write_b128 v{vt[0]}, v[28:31] offset:16")
        k("s_waitcnt lgkmcnt(0)")
        k("s_barrier")
        k(f"s_cmp_ge_u32 s{s_wid}, 2"); k(f"s_cbranch_scc1 {k.L('end')}")
        k(f"v_lshlrev_b32 v{vt[0]}, 2, v0")
        for i in range(32):
            k(f"ds_read_b32 v{40 + i}, v{vt[0]} offset:{i * 512}")
            if i % 8 == 7: k("s_waitcnt lgkmcnt(0)")
        for i in range(1, 32): k(f"v_add_f32 v40, v40, v{40 + i}")
        k(f"v_lshlrev_b32 v{v_b1}, 16, v{v_b1}")
        k(f"s_lshl_b32 s{s_t0}, s{s_mb}, 10"); k(f"s_add_u32 s{s_t0}, s{s_t0}, {C1_OFF}"); k(f"s_add_u32 s{s_t1}, s{s_t0}, 512")
        k(f"buffer_store_dword v40, v{vt[0]}, s[{sW}:{sW+3}], s{s_t0} offen")
        k(f"buffer_store_dword v{v_b1}, v{vt[0]}, s[{sW}:{sW+3}], s{s_t1} offen")
    else:
        mainloop("q", False)
        k(f"s_cmp_eq_u32 s{s_nb}, 13"); k(f"s_cselect_b32 s{s_t0}, s{s_wn}, 0")
        k(f"s_cmp_ge_u32 s{s_t0}, 1"); k(f"s_cbranch_scc1 {k.L('end')}")
        k.stamp(5); epi_nm(); k.stamp(6); k.dump(3, 9, s_wid, WSL)
    k.label(k.L("end"))
    k("s_endpgm")
    return k, EP + 64 + 32, NS * SLOT + 2048

def attn():
    k = K("attn")
    sW = 4; sP1 = 8; sP2 = 12
    s_hd, s_qb, s_w, s_qs, s_kh, s_t0, s_t1, s_it = 20, 21, 22, 23, 24, 25, 26, 27
    s_ko, s_vo, s_odd = 28, 29, 30
    s_vm = 32
    s_lo = 34
    s_c = 36
    v_lane, v_t, v_h = 1, 2, 3
    vK1, vK2, vV0, vV1 = 4, 5, 6, 7
    vt = [8, 9, 10, 11, 12, 13, 14, 15]
    vm = [16, 17]
    v_pfa, v_pfb, v_pf, v_pfc = 18, 19, 200, 202
    Q1 = [20, 24]; Q2 = [28, 30]
    NBUF = 4
    K1 = [32, 36, 40, 44]; K2 = [48, 50, 52, 54]
    VB = [56, 64, 72, 80]
    C = [88, 104]; Sx = [120, 136]; P = [152, 160]; O = [168, 184]
    NV = 203
    k.stamp(0); k.stamp(1, True)
    k("s_cmp_ge_u32 s2, 256"); k(f"s_cbranch_scc1 {k.L('end')}")
    k("s_load_dwordx2 s[40:41], s[0:1], 80")
    k("s_load_dwordx2 s[44:45], s[0:1], 16")
    k("s_load_dwordx2 s[46:47], s[0:1], 32")
    k("s_load_dwordx2 s[38:39], s[0:1], 48")
    k(f"v_lshrrev_b32 v{vt[0]}, 6, v0")
    k(f"v_and_b32 v{v_t}, 31, v0")
    k(f"v_readfirstlane_b32 s{s_w}, v{vt[0]}")
    k(f"v_bfe_u32 v{v_h}, v0, 5, 1")
    k(f"s_and_b32 s{s_hd}, s2, 7"); k(f"s_lshl_b32 s{s_hd}, s{s_hd}, 2")
    k(f"s_bfe_u32 s{s_t0}, s2, 0x20003"); k(f"s_add_u32 s{s_hd}, s{s_hd}, s{s_t0}")
    k(f"s_lshr_b32 s{s_qb}, s2, 5")
    k(f"s_and_b32 s{s_qs}, s{s_w}, 3"); k(f"s_lshr_b32 s{s_kh}, s{s_w}, 2")
    if "noprio" not in X:
        k(f"s_cmp_eq_u32 s{s_kh}, 0"); k(f"s_cbranch_scc1 {k.L('np')}")
        k("s_setprio 1")
        k.label(k.L("np"))
    k(f"s_and_b32 s{s_odd}, s{s_hd}, 1")
    k(f"s_mov_b32 s{s_lo}, -1"); k(f"s_mov_b32 s{s_lo+1}, 0")
    k(f"s_lshr_b32 s{s_t0}, s{s_hd}, 1"); k(f"s_mul_i32 s{s_t0}, s{s_t0}, 5")
    k(f"s_mul_i32 s{s_t1}, s{s_odd}, 3"); k(f"s_add_u32 s{s_t1}, s{s_t1}, s{s_t0}")
    k(f"v_add_lshl_u32 v{vK1}, v{v_h}, s{s_t1}, 15")
    k(f"v_lshl_add_u32 v{vK1}, v{v_t}, 4, v{vK1}")
    k(f"s_add_u32 s{s_t0}, s{s_t0}, 2"); k(f"s_lshl_b32 s{s_t0}, s{s_t0}, 15")
    k(f"s_lshl_b32 s{s_t1}, s{s_odd}, 3"); k(f"s_add_u32 s{s_t0}, s{s_t0}, s{s_t1}")
    k(f"v_lshl_add_u32 v{vK2}, v{v_t}, 4, s{s_t0}")
    k(f"s_lshl_b32 s{s_ko}, s{s_kh}, 14"); k(f"s_add_u32 s{s_ko}, s{s_ko}, {QK_OFF + 80 * CH}")
    k(f"s_lshl_b32 s{s_t0}, s{s_qb}, 12"); k(f"s_lshl_b32 s{s_t1}, s{s_qs}, 10"); k(f"s_add_u32 s{s_t0}, s{s_t0}, s{s_t1}")
    for qt in range(2):
        k(f"v_mov_b32 v{Q2[qt]}, 0"); k(f"v_mov_b32 v{Q2[qt]+1}, 0")
    k(f"s_mov_b32 s42, s{s_ko}")
    k("s_waitcnt lgkmcnt(0)")
    srd(k, sW, 40, 41, WS_END)
    W = f"s[{sW}:{sW+3}]"
    def kload(b):
        return [f"buffer_load_dwordx4 {vr(K1[b],4)}, v{vK1}, {W}, s{s_ko} offen",
                f"buffer_load_dwordx2 {vr(K2[b],2)}, v{vK2}, {W}, s{s_ko} offen",
                f"s_add_u32 s{s_ko}, s{s_ko}, 512"]
    def vload(b):
        return [f"s_mov_b64 exec, s[{s_vm}:{s_vm+1}]",
                f"buffer_load_dwordx4 {vr(VB[b],4)}, v{vV0}, {W}, s{s_vo} offen",
                f"buffer_load_dwordx4 {vr(VB[b]+4,4)}, v{vV1}, {W}, s{s_vo} offen",
                f"s_mov_b64 exec, -1",
                f"s_add_u32 s{s_vo}, s{s_vo}, {1280 * 32}"]
    for l in kload(0): k(l)
    for qt in range(2):
        k(f"buffer_load_dwordx4 {vr(Q1[qt],4)}, v{vK1}, {W}, s{s_t0} offen offset:{qt*512}")
    k(f"s_mov_b64 exec, s[{s_lo}:{s_lo+1}]")
    for qt in range(2):
        k(f"buffer_load_dwordx2 {vr(Q2[qt],2)}, v{vK2}, {W}, s{s_t0} offen offset:{qt*512}")
    k("s_mov_b64 exec, -1")
    for l in kload(1): k(l)
    k(f"v_and_b32 v{v_lane}, 63, v0")
    k(f"s_mov_b32 s{s_vm}, 0xfffff"); k(f"s_mov_b32 s{s_vm+1}, 0xfffff")
    k(f"v_add_u32 v{vt[0]}, 4, v{v_t}")
    k(f"v_subrev_u32 v{vt[1]}, 16, v{v_t}")
    k(f"v_cmp_gt_u32 vcc, 16, v{v_t}")
    k(f"v_cndmask_b32 v{vt[0]}, v{vt[1]}, v{vt[0]}, vcc")
    k(f"s_cmp_eq_u32 s{s_odd}, 1")
    k(f"s_cselect_b64 vcc, -1, 0")
    k(f"v_cndmask_b32 v{vt[0]}, v{v_t}, v{vt[0]}, vcc")
    k(f"s_mul_i32 s{s_t0}, s{s_hd}, 20")
    k(f"v_add_lshl_u32 v{vV0}, v{vt[0]}, s{s_t0}, 5")
    k(f"v_lshl_add_u32 v{vV0}, v{v_h}, 4, v{vV0}")
    k(f"v_add_u32 v{vV1}, {640 * 32}, v{vV0}")
    k(f"s_mul_i32 s{s_vo}, s{s_kh}, {32 * 1280 * 32}"); k(f"s_add_u32 s{s_vo}, s{s_vo}, {V_OFF}")
    k(f"s_mov_b32 s43, s{s_vo}")
    k(f"v_cmp_eq_u32 vcc, 20, v{v_t}")
    k(f"v_mov_b32 v{vt[1]}, 0x3f803f80")
    k(f"v_cndmask_b32 v{vt[1]}, 0, v{vt[1]}, vcc")
    for r in range(8): k(f"v_mov_b32 v{VB[0] + r}, v{vt[1]}")
    for l in vload(0): k(l)
    for b in range(1, NBUF):
        for r in range(8): k(f"v_mov_b32 v{VB[b] + r}, v{vt[1]}")
    for qt in range(2):
        for r in range(16): k(f"v_mov_b32 v{O[qt] + r}, 0")
    for r in range(8): k(f"v_mov_b32 v{P[1] + r}, 0")
    srd(k, sP1, 44, 45, D * D * 2); srd(k, sP2, 46, 47, D * F * 2)
    k(f"s_lshr_b32 s{s_t0}, s2, 3"); k(f"s_lshl_b32 s{s_t0}, s{s_t0}, 3"); k(f"s_add_u32 s{s_t0}, s{s_t0}, s{s_w}")
    k(f"s_mul_i32 s48, s{s_t0}, {26 * 128}"); k(f"s_mul_i32 s49, s{s_t0}, {68 * 128}")
    k(f"v_lshlrev_b32 v{vt[2]}, 8, v{v_lane}"); k(f"v_add_u32 v{vt[2]}, 124, v{vt[2]}")
    k(f"v_mov_b32 v{vt[3]}, 0x7ffffff0")
    k(f"v_cmp_gt_u32 vcc, 34, v{v_lane}")
    k(f"v_cndmask_b32 v{v_pfa}, v{vt[3]}, v{vt[2]}, vcc")
    k(f"v_cmp_gt_u32 vcc, 13, v{v_lane}")
    k(f"v_cndmask_b32 v{v_pfb}, v{vt[3]}, v{vt[2]}, vcc")
    srd(k, 16, 38, 39, D * F * 2)
    k(f"s_lshl_b32 s38, s2, 3"); k(f"s_add_u32 s38, s38, s{s_w}"); k(f"s_mul_i32 s38, s38, {10 * 128}")
    k(f"v_cmp_gt_u32 vcc, 5, v{v_lane}")
    k(f"v_cndmask_b32 v{v_pfc}, v{vt[3]}, v{vt[2]}, vcc")
    k(f"s_sub_u32 s50, s{s_qs}, s{s_kh}"); k(f"s_add_u32 s50, s50, 2"); k(f"s_add_u32 s51, s50, 2")
    def qk(qt, b, c):
        cc = "0" if c is None else vr(c, 16)
        return [f"v_mfma_f32_32x32x16_bf16 {vr(Sx[qt],16)}, {vr(K1[b],4)}, {vr(Q1[qt],4)}, {cc}",
                f"v_mfma_f32_32x32x8_bf16 {vr(Sx[qt],16)}, {vr(K2[b],2)}, {vr(Q2[qt],2)}, {vr(Sx[qt],16)}"]
    def pv(qt, b):
        return [f"v_mfma_f32_32x32x16_bf16 {vr(O[qt],16)}, {vr(VB[b],4)}, {vr(P[qt],4)}, {vr(O[qt],16)}",
                f"v_mfma_f32_32x32x16_bf16 {vr(O[qt],16)}, {vr(VB[b]+4,4)}, {vr(P[qt]+4,4)}, {vr(O[qt],16)}"]
    def rowmax(qt, dst, tmp):
        s = Sx[qt]
        k(f"v_max3_f32 v{dst}, v{s}, v{s+1}, v{s+2}")
        for r in range(3, 15, 2): k(f"v_max3_f32 v{dst}, v{dst}, v{s+r}, v{s+r+1}")
        k(f"v_max_f32 v{dst}, v{dst}, v{s+15}")
        k(f"v_mov_b32 v{tmp}, v{dst}")
        k(f"v_permlane32_swap_b32 v{dst}, v{tmp}")
        k(f"v_max_f32 v{dst}, v{dst}, v{tmp}")
    k.stamp(2)
    k("s_waitcnt vmcnt(4)")
    for qt in range(2):
        for l in qk(qt, 0, None): k(l)
    for l in kload(2) + vload(1) + kload(3) + vload(2): k(l)
    rowmax(0, vm[0], vt[0])
    k(f"v_sub_f32 v{vt[1]}, 0, v{vm[0]}")
    for r in range(16): k(f"v_mov_b32 v{C[0] + r}, v{vt[1]}")
    for l in qk(0, 0, C[0]): k(l)
    rowmax(1, vm[1], vt[0])
    k(f"v_sub_f32 v{vt[1]}, 0, v{vm[1]}")
    for r in range(16): k(f"v_mov_b32 v{C[1] + r}, v{vt[1]}")
    k(f"s_mov_b32 s{s_it}, 0")
    k.stamp(3)
    k("s_nop 1")

    def slot(qt, mf, extra):
        s = Sx[qt]; p = P[qt]
        for i in range(16):
            for l in extra.get(i, []): k(l)
            if i % 4 == 0: k(mf[i // 4])
            k(f"v_exp_f32 v{s+i}, v{s+i}")
            if i % 2 == 1 and i >= 3:
                k(f"v_cvt_pk_bf16_f32 v{p + (i-3)//2}, v{s+i-3}, v{s+i-2}")
        for l in extra.get(16, []): k(l)
        k(f"v_cvt_pk_bf16_f32 v{p+7}, v{s+14}, v{s+15}")
    k(f"s_cmp_eq_u32 s{s_kh}, 0")
    k(f"s_cselect_b32 s31, 99, {int(os.environ.get('PRI', '6'))}")
    k.label(k.L("loop"))
    for u in range(NBUF):
        b = u; bp = (u - 1) % NBUF; bn = (u + 1) % NBUF
        e1 = {0: ["s_waitcnt vmcnt(12)"]}
        slot(0, qk(1, b, C[1]) + pv(1, bp), {6: kload(b), 14: vload(bp)})
        slot(1, qk(0, bn, C[0]) + pv(0, b), e1)
    k(f"s_add_u32 s{s_it}, s{s_it}, 1")
    PRI = int(os.environ.get("PRI", "6"))
    k(f"s_cmp_lg_u32 s{s_it}, s31")
    k(f"s_cbranch_scc1 {k.L('noev')}")
    k("s_setprio 0")
    k.label(k.L("noev"))
    if "nowpf" not in X:
        k(f"s_cmp_lg_u32 s{s_it}, s50"); k(f"s_cbranch_scc1 {k.L('noe2')}")
        k(f"buffer_load_dwordx2 {vr(v_pf, 2)}, v{v_pfa}, s[{sP2}:{sP2+3}], s49 offen")
        k.label(k.L("noe2"))
        k(f"s_cmp_lg_u32 s{s_it}, s51"); k(f"s_cbranch_scc1 {k.L('noe3')}")
        k(f"buffer_load_dwordx2 {vr(v_pf, 2)}, v{v_pfb}, s[{sP1}:{sP1+3}], s48 offen")
        k(f"buffer_load_dwordx2 {vr(v_pf, 2)}, v{v_pfc}, s[16:19], s38 offen")
        if "nocpf" not in X:
            k(f"s_cmp_lg_u32 s{s_w}, 3"); k(f"s_cbranch_scc1 {k.L('noe3')}")
            code_prefetch(k, "oproj_kernel" if "sep" in X else "tail_kernel", 16, s_t0, vt[0], v_pf, v_lane, per=8)
        k.label(k.L("noe3"))
    k(f"s_cmp_lt_u32 s{s_it}, {32 // NBUF}")
    k(f"s_cbranch_scc1 {k.L('loop')}")
    k.stamp(4)
    for l in pv(1, NBUF - 1): k(l)
    k("s_nop 7"); k("s_nop 7")
    k(f"v_add_f32 v{vt[0]}, |v{O[0]}|, |v{O[1]}|")
    for qt in range(2):
        for r in range(1, 12):
            k(f"v_add_f32 v{vt[0]}, v{vt[0]}, |v{O[qt]+r}|")
    k(f"v_add_f32 v{vt[1]}, v{O[0]+8}, v{O[1]+8}")
    k(f"s_mov_b32 s{s_t0}, {f32(2.0**100)}")
    k(f"v_cmp_nlt_f32 s[{s_c}:{s_c+1}], v{vt[0]}, s{s_t0}")
    k(f"s_mov_b32 s{s_t0}, {f32(2.0**60)}")
    k(f"v_cmp_nlt_f32 vcc, |v{vt[1]}|, s{s_t0}")
    k(f"s_andn2_b64 vcc, vcc, s[{s_lo}:{s_lo+1}]")
    k(f"s_or_b64 s[{s_c}:{s_c+1}], s[{s_c}:{s_c+1}], vcc")
    k("s_waitcnt vmcnt(0)")
    k(f"s_cmp_eq_u64 s[{s_c}:{s_c+1}], 0")
    k(f"s_cbranch_scc1 {k.L('merge')}")
    k(f"s_mov_b32 s{s_ko}, s42"); k(f"s_mov_b32 s{s_vo}, s43")
    for qt in range(2):
        for r in range(16): k(f"v_mov_b32 v{O[qt] + r}, 0")
        k(f"v_mov_b32 v{vm[qt]}, 0xff800000")
    k(f"s_mov_b32 s{s_it}, 0")
    k.label(k.L("fb"))
    for l in kload(0) + vload(0): k(l)
    k("s_waitcnt vmcnt(0)")
    for qt in range(2):
        for l in qk(qt, 0, None): k(l)
    for qt in range(2):
        rowmax(qt, vt[2], vt[0])
        k(f"v_max_f32 v{vt[2]}, v{vt[2]}, v{vm[qt]}")
        k(f"v_sub_f32 v{vt[3]}, v{vm[qt]}, v{vt[2]}")
        k(f"v_exp_f32 v{vt[3]}, v{vt[3]}")
        k(f"v_mov_b32 v{vm[qt]}, v{vt[2]}")
        for r in range(16): k(f"v_mul_f32 v{O[qt]+r}, v{O[qt]+r}, v{vt[3]}")
        for r in range(16): k(f"v_sub_f32 v{Sx[qt]+r}, v{Sx[qt]+r}, v{vt[2]}")
        for r in range(16): k(f"v_exp_f32 v{Sx[qt]+r}, v{Sx[qt]+r}")
        for r in range(8): k(f"v_cvt_pk_bf16_f32 v{P[qt]+r}, v{Sx[qt]+2*r}, v{Sx[qt]+2*r+1}")
        for l in pv(qt, 0): k(l)
    k("s_nop 7"); k("s_nop 7")
    k(f"s_add_u32 s{s_it}, s{s_it}, 1")
    k(f"s_cmp_lt_u32 s{s_it}, 32")
    k(f"s_cbranch_scc1 {k.L('fb')}")
    k.label(k.L("merge"))
    k(f"s_cmp_eq_u32 s{s_kh}, 0")
    k(f"s_cbranch_scc1 {k.L('noswap')}")
    for r in range(12): k(f"v_swap_b32 v{O[0]+r}, v{O[1]+r}")
    k(f"v_swap_b32 v{vm[0]}, v{vm[1]}")
    k.label(k.L("noswap"))
    k(f"v_mov_b32 v{O[1]+12}, v{vm[1]}")
    k(f"s_lshl_b32 s{s_t0}, s{s_w}, 12")
    k(f"v_lshl_add_u32 v{vt[0]}, v{v_lane}, 4, s{s_t0}")
    k(f"v_xor_b32 v{vt[1]}, {4 << 12}, v{vt[0]}")
    for q in range(4): k(f"ds_write_b128 v{vt[0]}, {vr(O[1] + 4*q, 4)} offset:{q*1024}")
    k("s_waitcnt lgkmcnt(0)")
    k("s_barrier")
    k.stamp(5)
    for q in range(4): k(f"ds_read_b128 {vr(Sx[0] + 4*q, 4)}, v{vt[1]} offset:{q*1024}")
    k(f"s_lshl_b32 s{s_t0}, s{s_qb}, 12"); k(f"s_lshl_b32 s{s_t1}, s{s_qs}, 10"); k(f"s_add_u32 s{s_t0}, s{s_t0}, s{s_t1}")
    k(f"s_lshl_b32 s{s_t1}, s{s_kh}, 9"); k(f"s_add_u32 s{s_t0}, s{s_t0}, s{s_t1}"); k(f"s_add_u32 s{s_t0}, s{s_t0}, {O_OFF}")
    k("s_waitcnt lgkmcnt(0)")
    mo = Sx[0] + 12
    k(f"v_max_f32 v{vt[2]}, v{vm[0]}, v{mo}")
    k(f"v_sub_f32 v{vt[3]}, v{vm[0]}, v{vt[2]}"); k(f"v_sub_f32 v{vt[4]}, v{mo}, v{vt[2]}")
    k(f"v_exp_f32 v{vt[3]}, v{vt[3]}"); k(f"v_exp_f32 v{vt[4]}, v{vt[4]}")
    for r in range(12): k(f"v_mul_f32 v{O[0]+r}, v{O[0]+r}, v{vt[3]}")
    for r in range(12): k(f"v_fmac_f32 v{O[0]+r}, v{Sx[0]+r}, v{vt[4]}")
    k(f"v_mov_b32 v{vt[5]}, v{O[0]+8}"); k(f"v_mov_b32 v{vt[6]}, v{O[0]+8}")
    k(f"v_permlane32_swap_b32 v{vt[5]}, v{vt[6]}")
    k(f"v_rcp_f32 v{vt[6]}, v{vt[6]}")
    for r in range(12): k(f"v_mul_f32 v{O[0]+r}, v{O[0]+r}, v{vt[6]}")
    for r in range(6): k(f"v_cvt_pk_bf16_f32 v{P[0]+r}, v{O[0]+2*r}, v{O[0]+2*r+1}")
    k(f"v_permlane32_swap_b32 v{P[0]}, v{P[0]+2}")
    k(f"v_permlane32_swap_b32 v{P[0]+1}, v{P[0]+3}")
    k(f"buffer_store_dwordx4 {vr(P[0],4)}, v{vK1}, {W}, s{s_t0} offen{' sc1' if 'osc1' in X else ''}")
    k(f"s_mov_b64 exec, s[{s_lo}:{s_lo+1}]")
    k(f"buffer_store_dwordx2 {vr(P[0]+4,2)}, v{vK2}, {W}, s{s_t0} offen")
    k.stamp(6); k.dump(1, 9, s_w)
    k.label(k.L("end"))
    k("s_endpgm")
    return k, NV, 8 * 4096

def wgemm(kind):
    k = K(kind)
    op = kind == "oproj"; m1 = kind == "mlp1"; m2 = kind == "mlp2"
    KK = F if m2 else D
    NT = 4 if m1 else 2
    BROW = (F if m1 else D) * 2
    GS = 16 // NT
    GR = GS * 16
    NG = (KK + GR - 1) // GR
    NKS = KK // 16
    GB = 16384
    NSLOT = 5 if op else 8
    SB = NSLOT * GB
    A_OFF = {"oproj": O_OFF, "mlp1": H_OFF, "mlp2": G_OFF}[kind]
    sB, sW, sR, sO, sBi = 4, 8, 12, 16, 44
    s_r, s_cb, s_w, s_t0, s_t1, s_offB, s_offA, s_m0, s_it, s_wid = 20, 21, 22, 23, 24, 25, 26, 27, 28, 35
    v_lane, v_t, v_h = 1, 2, 3
    vBd = [4, 5, 6, 7]; vBr = [4, 5, 6, 7]; vA = 8; vS = 9; vO = 11
    vt = [12, 13, 14, 15]
    RES = 16; BI = 32; ACC = 48
    DIST = 6; NFB = 8; FB = ACC + 16 * NT
    LA = int(os.environ.get("LA", "14")); NFA = 16; FA = FB + NFB * 4
    NV = FA + NFA * 4
    kidx = {"oproj": 2, "mlp1": 3, "mlp2": 4}[kind]
    k.stamp(0); k.stamp(1, True)
    k(f"s_cmp_ge_u32 s2, {224 if m1 else 240}"); k(f"s_cbranch_scc1 {k.L('end')}")
    if op:
        k("s_load_dwordx2 s[36:37], s[0:1], 16")
        k("s_load_dwordx2 s[38:39], s[0:1], 0")
    elif m1:
        k("s_load_dwordx2 s[36:37], s[0:1], 32")
    else:
        k("s_load_dwordx4 s[36:39], s[0:1], 48")
        k("s_load_dwordx2 s[42:43], s[0:1], 64")
    k("s_load_dwordx2 s[40:41], s[0:1], 80")
    k(f"v_lshrrev_b32 v{vt[0]}, 6, v0")
    k(f"v_and_b32 v{v_lane}, 63, v0")
    k(f"v_readfirstlane_b32 s{s_wid}, v{vt[0]}")
    k(f"s_lshr_b32 s{s_t0}, s2, 3")
    if m1:
        k(f"s_and_b32 s{s_r}, s{s_t0}, 1"); k(f"s_lshr_b32 s{s_cb}, s{s_t0}, 1")
        k(f"s_lshl_b32 s{s_t1}, s{s_cb}, 8")
    else:
        k(f"s_mul_i32 s{s_cb}, s{s_t0}, 43"); k(f"s_lshr_b32 s{s_cb}, s{s_cb}, 7")
        k(f"s_mul_i32 s{s_t1}, s{s_cb}, 3"); k(f"s_sub_u32 s{s_r}, s{s_t0}, s{s_t1}")
        k(f"s_lshl_b32 s{s_t1}, s{s_cb}, 7")
    k(f"s_and_b32 s{s_w}, s{s_wid}, 3")
    k(f"s_cmp_lt_u32 s{s_wid}, 4")
    k(f"s_cbranch_scc1 {k.L('compute')}")
    if m1:
        k(f"v_lshrrev_b32 v{vt[0]}, 4, v{v_lane}")
        k(f"v_and_b32 v{vt[1]}, 15, v{v_lane}")
        k(f"v_lshlrev_b32 v{vt[2]}, 2, v{vt[0]}")
    else:
        k(f"v_lshrrev_b32 v{vt[0]}, 3, v{v_lane}")
        k(f"v_and_b32 v{vt[1]}, 7, v{v_lane}")
        k(f"v_bfe_u32 v{vt[2]}, v{v_lane}, 4, 1")
        k(f"v_lshlrev_b32 v{vt[2]}, 2, v{vt[2]}")
    k(f"v_xor_b32 v{vt[1]}, v{vt[1]}, v{vt[2]}")
    k(f"v_mul_u32_u24 v{vt[0]}, {BROW}, v{vt[0]}")
    k(f"v_lshl_add_u32 v{vBd[0]}, v{vt[1]}, 4, v{vt[0]}")
    for ii in range(1, 4):
        k(f"v_add_u32 v{vBd[ii]}, {ii * (GR // 16 * BROW - 1024)}, v{vBd[0]}")
    k(f"s_mul_i32 s{s_offB}, s{s_w}, {GR // 4 * BROW}"); k(f"s_add_u32 s{s_offB}, s{s_offB}, s{s_t1}")
    k(f"s_lshl_b32 s{s_m0}, s{s_w}, 12")
    k(f"s_mov_b32 s{s_it}, 0")
    k("s_waitcnt lgkmcnt(0)")
    srd(k, sB, 36, 37, D * F * 2 if not op else D * D * 2)
    def issue():
        r = [f"s_mov_b32 m0, s{s_m0}", f"s_add_u32 s{s_m0}, s{s_m0}, {GB}"]
        for ii in range(4):
            r.append(f"buffer_load_dwordx4 v{vBd[ii]}, s[{sB}:{sB+3}], s{s_offB} offen offset:{ii*1024} lds")
        r.append(f"s_add_u32 s{s_offB}, s{s_offB}, {GR * BROW}")
        if not op: r.append(f"s_and_b32 s{s_m0}, s{s_m0}, {NSLOT * GB - 1}")
        return r
    k.stamp(2)
    for l in issue() + issue(): k(l)
    k.label(k.L("lloop"))
    for l in issue(): k(l)
    k("s_waitcnt vmcnt(8)")
    k("s_barrier")
    k(f"s_add_u32 s{s_it}, s{s_it}, 1")
    k(f"s_cmp_lt_u32 s{s_it}, {NG - 2}")
    k(f"s_cbranch_scc1 {k.L('lloop')}")
    ex = 0
    if m1:
        srd(k, sW, 40, 41, WS_END)
        k(f"s_lshl_b32 s{s_t0}, s{s_cb}, 10"); k(f"s_lshl_b32 s{s_t1}, s{s_w}, 8"); k(f"s_add_u32 s{s_t0}, s{s_t0}, s{s_t1}")
        k(f"s_add_u32 s{s_t0}, s{s_t0}, {C1_OFF}")
        k(f"s_add_u32 m0, s{s_t1}, {SB}")
        k(f"v_lshlrev_b32 v{vt[3]}, 2, v{v_lane}")
        k(f"buffer_load_dword v{vt[3]}, s[{sW}:{sW+3}], s{s_t0} offen lds")
        ex = 1
    k(f"s_waitcnt vmcnt({4 + ex})"); k("s_barrier")
    k(f"s_waitcnt vmcnt({ex})"); k("s_barrier")
    if m1:
        k("s_waitcnt vmcnt(0)"); k("s_barrier")
    k.stamp(3); k.stamp(4); k.stamp(5); k.stamp(6); k.dump(kidx, 9, s_wid)
    k("s_endpgm")
    k.label(k.L("compute"))
    if m1:
        k(f"s_lshl_b32 s{s_t0}, s{s_r}, 2"); k(f"s_add_u32 s{s_t0}, s{s_t0}, s{s_w}")
    else:
        k(f"s_cmp_eq_u32 s{s_w}, 3"); k(f"s_cbranch_scc1 {k.L('end')}")
        k(f"s_mul_i32 s{s_t0}, s{s_r}, 3"); k(f"s_add_u32 s{s_t0}, s{s_t0}, s{s_w}")
        k(f"s_cmp_ge_u32 s{s_t0}, 8"); k(f"s_cbranch_scc1 {k.L('end')}")
    k(f"s_and_b32 s{s_it}, s2, 7"); k(f"s_lshl_b32 s{s_it}, s{s_it}, 3"); k(f"s_add_u32 s{s_t0}, s{s_t0}, s{s_it}")
    k(f"s_lshl_b32 s{s_t0}, s{s_t0}, 5")
    k(f"v_and_b32 v{v_t}, 31, v0")
    k(f"v_bfe_u32 v{v_h}, v0, 5, 1")
    k(f"v_add_u32 v{vt[0]}, s{s_t0}, v{v_t}")
    k(f"v_lshlrev_b32 v{vA}, 15, v{v_h}")
    k(f"v_lshl_add_u32 v{vA}, v{vt[0]}, 4, v{vA}")
    k(f"s_mov_b32 s{s_offA}, {A_OFF}")
    k("s_waitcnt lgkmcnt(0)")
    srd(k, sW, 40, 41, WS_END)
    def aload(i):
        return [f"buffer_load_dwordx4 {vr(FA + (i % NFA) * 4, 4)}, v{vA}, s[{sW}:{sW+3}], s{s_offA} offen",
                f"s_add_u32 s{s_offA}, s{s_offA}, {2 * CH}"]
    LA0 = LA if not m1 else int(os.environ.get("LA1", "10"))
    LA = LA0
    for i in range(LA):
        for l in aload(i): k(l)
    late = []
    if m1:
        k(f"s_lshl_b32 s{s_t0}, s{s_cb}, 19"); k(f"s_add_u32 s{s_t0}, s{s_t0}, {G_OFF}")
        k(f"v_add_u32 v{vO}, s{s_t0}, v{vA}")
        k(f"v_mul_u32_u24 v{vt[1]}, {5 * 16384}, v{v_h}")
        k(f"v_lshl_add_u32 v{vS}, v{vt[0]}, 3, v{vt[1]}")
        for i in range(5):
            late.append([f"s_mov_b32 s{s_t0}, {HS_OFF + i * 16384}",
                         f"buffer_load_dwordx2 {vr(RES + 2*i, 2)}, v{vS}, s[{sW}:{sW+3}], s{s_t0} offen"])
        k(f"v_bfe_u32 v{vt[0]}, v{v_lane}, 2, 2")
        k(f"v_lshl_add_u32 v{vt[1]}, v{v_h}, 3, v{vt[0]}")
        k(f"v_lshlrev_b32 v{vt[1]}, 8, v{vt[1]}")
        k(f"v_lshl_add_u32 v{vt[0]}, v{vt[0]}, 6, v{vt[1]}")
    else:
        k(f"v_mul_u32_u24 v{vt[1]}, 1280, v{vt[0]}")
        k(f"v_lshl_add_u32 v{vt[1]}, v{v_h}, 4, v{vt[1]}")
        k(f"v_add_u32 v{vt[1]}, s{s_t1}, v{vt[1]}")
        k(f"s_lshl_b32 s{s_t0}, s{s_cb}, 18"); k(f"s_add_u32 s{s_t0}, s{s_t0}, {H_OFF}")
        k(f"v_add_u32 v{vt[2]}, s{s_t0}, v{vA}")
        k(f"v_mov_b32 v{vO}, v{vt[2] if op else vt[1]}")
        if op:
            k(f"s_lshl_b32 s{s_t0}, s{s_cb}, 14"); k(f"s_add_u32 s{s_t0}, s{s_t0}, {HS_OFF}")
            k(f"v_lshl_add_u32 v{vS}, v{vt[0]}, 3, s{s_t0}")
        k(f"v_bfe_u32 v{vt[0]}, v{v_lane}, 2, 2")
        k(f"v_lshl_add_u32 v{vt[0]}, v{v_h}, 3, v{vt[0]}")
        k(f"v_lshlrev_b32 v{vt[0]}, 7, v{vt[0]}")
        k(f"v_bfe_u32 v{vt[3]}, v{v_lane}, 3, 1")
        k(f"v_lshl_add_u32 v{vt[0]}, v{vt[3]}, 6, v{vt[0]}")
    k(f"v_bfe_u32 v{vt[3]}, v{v_lane}, 4, 1")
    k(f"v_lshl_add_u32 v{vt[0]}, v{vt[3]}, 5, v{vt[0]}")
    k(f"v_and_b32 v{vt[3]}, 3, v{v_lane}")
    k(f"v_lshl_add_u32 v{vBr[0]}, v{vt[3]}, 3, v{vt[0]}")
    for j in range(1, NT): k(f"v_xor_b32 v{vBr[j]}, {64 * j}, v{vBr[0]}")
    for c in range(4): k(f"s_mov_b32 s{48 + c}, {2*c*CH}")
    if op:
        srd(k, sR, 38, 39, S * D * 2)
        for c in range(4):
            late.append([f"buffer_load_dwordx4 {vr(RES + 4*c, 4)}, v{vt[1]}, s[{sR}:{sR+3}], 0 offen offset:{32*c}"])
    elif m2:
        srd(k, sO, 42, 43, S * D * 2); srd(k, sBi, 38, 39, D * 2)
        k(f"v_lshlrev_b32 v{vt[0]}, 3, v{v_h}")
        for c in range(4):
            late.append([f"buffer_load_dwordx4 {vr(RES + 4*c, 4)}, v{vt[2]}, s[{sW}:{sW+3}], s{48 + c} offen"])
        for c in range(8):
            late.append([f"buffer_load_dwordx2 {vr(BI + 2*c, 2)}, v{vt[0]}, s[{sBi}:{sBi+3}], s{s_t1} offen offset:{16*c}"])
    cur_base = 0
    NM = NKS * NT
    KSB = GB // GS
    def bread(m):
        nonlocal cur_base
        ks, j = divmod(m, NT)
        G, q = divmod(ks, GS)
        off = (G % NSLOT) * GB + q * KSB
        r = []
        if q == 0 and j == 0: r.append("s_barrier")
        base = (off // 65536) * 65536
        if base != cur_base:
            for a in vBr[:NT]: r.append(f"v_add_u32 v{a}, {(base - cur_base) & 0xffffffff:#x}, v{a}")
            cur_base = base
        for e in range(2):
            r.append(f"ds_read_b64_tr_b16 {vr(FB + (m % NFB) * 4 + 2*e, 2)}, v{vBr[j]} offset:{off - base + e * (KSB // 4)}")
        return r
    k.stamp(2)
    if K.prof: k("s_waitcnt lgkmcnt(0)")
    for m in range(DIST):
        for l in bread(m): k(l)
    vq = [("A", i) for i in range(LA)]
    for m in range(NM):
        ks, j = divmod(m, NT)
        nout = 2 * (min(NM, m + DIST) - m - 1)
        if j == 0:
            pos = vq.index(("A", ks))
            k(f"s_waitcnt vmcnt({len(vq) - 1 - pos}) lgkmcnt({nout})")
        else:
            k(f"s_waitcnt lgkmcnt({nout})")
        cc = vr(ACC + 16*j, 16) if ks else "0"
        k(f"v_mfma_f32_32x32x16_bf16 {vr(ACC + 16*j, 16)}, {vr(FB + (m % NFB) * 4, 4)}, {vr(FA + (ks % NFA) * 4, 4)}, {cc}")
        if m + DIST < NM:
            for l in bread(m + DIST): k(l)
        if j == 0 and ks + LA < NKS:
            for l in aload(ks + LA): k(l)
            vq.append(("A", ks + LA))
        if j == 0 and late and ks + LA >= NKS:
            for _ in range(2):
                if late:
                    for l in late.pop(0): k(l)
                    vq.append(("R", 0))
    assert not late
    k.stamp(3)
    if m1:
        k("s_barrier")
        T = FB; CSB = [FB + 32, FB + 64]
        k(f"v_lshlrev_b32 v{vt[0]}, 4, v{v_h}"); k(f"v_add_u32 v{vt[0]}, {SB}, v{vt[0]}")
        def csread(nt):
            for rq in range(8):
                k(f"ds_read_b128 {vr(CSB[nt % 2] + rq*4, 4)}, v{vt[0]} offset:{(rq // 4) * 512 + nt*128 + (rq % 4)*32}")
        csread(0)
        k("s_waitcnt vmcnt(0)")
        PS = RES; MR = 28
        for i in range(1, 5): k(f"v_pk_add_f32 {vr(PS,2)}, {vr(PS,2)}, {vr(PS + 2*i, 2)}")
        k(f"v_mov_b32 v{PS+2}, v{PS}"); k(f"v_mov_b32 v{PS+3}, v{PS+1}")
        k(f"v_permlane32_swap_b32 v{PS}, v{PS+2}"); k(f"v_permlane32_swap_b32 v{PS+1}, v{PS+3}")
        k(f"v_pk_add_f32 {vr(PS,2)}, {vr(PS,2)}, {vr(PS + 2, 2)}")
        rowstat_math(k, PS, PS + 1, MR, MR + 1, PS + 2, True)
        C0 = -2.0 * math.log2(math.e) * math.sqrt(2.0 / math.pi)
        k(f"s_mov_b32 s44, {f32(C0 * 0.044715)}"); k(f"s_mov_b32 s45, {f32(C0 * 0.044715)}")
        k(f"v_mov_b32 v{vt[2]}, {f32(C0)}"); k(f"v_mov_b32 v{vt[3]}, {f32(C0)}")
        k.stamp(4); k.stamp(5)
        for nt in range(4):
            if nt == 2:
                k(f"s_cmp_eq_u32 s{s_cb}, 13"); k(f"s_cbranch_scc1 {k.L('done')}")
                k(f"v_add_u32 v{vO}, {8 * CH}, v{vO}")
            k("s_waitcnt lgkmcnt(0)")
            if nt < 3: csread(nt + 1)
            a = ACC + 16 * nt; CS = CSB[nt % 2]; B1 = CS + 16
            for p in range(8):
                x = vr(a + 2*p, 2)
                k(f"v_pk_fma_f32 {x}, {vr(CS + 2*p, 2)}, {vr(MR,2)}, {x} op_sel_hi:[1,0,1]")
            for p in range(8):
                x = vr(a + 2*p, 2)
                k(f"v_pk_fma_f32 {x}, {x}, {vr(MR,2)}, {vr(B1 + 2*p, 2)} op_sel:[0,1,0] op_sel_hi:[1,1,1]")
            for p in range(8):
                x = vr(a + 2*p, 2); t = vr(T + 2*p, 2)
                k(f"v_pk_mul_f32 {t}, {x}, {x}")
            for p in range(8):
                t = vr(T + 2*p, 2)
                k(f"v_pk_fma_f32 {t}, {t}, s[44:45], {vr(vt[2],2)}")
            for p in range(8):
                x = vr(a + 2*p, 2); t = vr(T + 2*p, 2)
                k(f"v_pk_mul_f32 {t}, {t}, {x}")
            for r in range(16): k(f"v_exp_f32 v{T + r}, v{T + r}")
            for p in range(8):
                t = vr(T + 2*p, 2)
                k(f"v_pk_add_f32 {t}, {t}, 1.0 op_sel_hi:[1,0]")
            for r in range(16): k(f"v_rcp_f32 v{T + r}, v{T + r}")
            for p in range(8):
                x = vr(a + 2*p, 2); t = vr(T + 2*p, 2)
                k(f"v_pk_mul_f32 {x}, {x}, {t}")
            Pk = T + 16 + (nt % 2) * 8
            for p in range(8):
                k(f"v_cvt_pk_bf16_f32 v{Pk + p}, v{a + 2*p}, v{a + 2*p + 1}")
            for pq in range(2):
                b = Pk + 4*pq
                k(f"v_permlane32_swap_b32 v{b}, v{b+2}")
                k(f"v_permlane32_swap_b32 v{b+1}, v{b+3}")
            for pq in range(2):
                k(f"buffer_store_dwordx4 {vr(Pk + 4*pq,4)}, v{vO}, s[{sW}:{sW+3}], s{48 + (nt % 2)*2 + pq} offen sc1")
        k.label(k.L("done"))
    else:
        T = FA
        k.stamp(4); k.stamp(5)
        k("s_waitcnt vmcnt(0)")
        for c in range(4):
            k(f"v_permlane32_swap_b32 v{RES + 4*c}, v{RES + 4*c + 2}")
            k(f"v_permlane32_swap_b32 v{RES + 4*c + 1}, v{RES + 4*c + 3}")
        for r in range(16):
            k(f"v_lshlrev_b32 v{T + 2*r}, 16, v{RES + r}")
            k(f"v_and_b32 v{T + 2*r + 1}, 0xffff0000, v{RES + r}")
        if m2:
            for r in range(16):
                k(f"v_lshlrev_b32 v{T + 32 + 2*r}, 16, v{BI + r}")
                k(f"v_and_b32 v{T + 32 + 2*r + 1}, 0xffff0000, v{BI + r}")
            for r in range(16):
                k(f"v_pk_add_f32 {vr(T + 2*r, 2)}, {vr(T + 2*r, 2)}, {vr(T + 32 + 2*r, 2)}")
        else:
            k(f"v_mov_b32 v{vt[0]}, 0"); k(f"v_mov_b32 v{vt[1]}, 0"); k(f"s_mov_b32 s{s_t1}, 0x3f803f80")
        for c in range(4):
            for r in range(4*c, 4*c + 4):
                k(f"v_pk_add_f32 {vr(T + 2*r, 2)}, {vr(T + 2*r, 2)}, {vr(ACC + 2*r, 2)}")
            for r in range(4*c, 4*c + 4):
                k(f"v_cvt_pk_bf16_f32 v{RES + r}, v{T + 2*r}, v{T + 2*r + 1}")
            k(f"v_permlane32_swap_b32 v{RES + 4*c}, v{RES + 4*c + 2}")
            k(f"v_permlane32_swap_b32 v{RES + 4*c + 1}, v{RES + 4*c + 3}")
            if op:
                k(f"buffer_store_dwordx4 {vr(RES + 4*c, 4)}, v{vO}, s[{sW}:{sW+3}], s{48 + c} offen sc1")
            else:
                k(f"buffer_store_dwordx4 {vr(RES + 4*c, 4)}, v{vO}, s[{sO}:{sO+3}], 0 offen offset:{32*c}{' sc1' if 'outsc1' in X else ''}")
        if op:
            for r in range(16):
                k(f"v_dot2c_f32_bf16 v{vt[0]}, s{s_t1}, v{RES + r}")
                k(f"v_dot2c_f32_bf16 v{vt[1]}, v{RES + r}, v{RES + r}")
            k(f"v_mov_b32 v{vt[2]}, v{vt[0]}"); k(f"v_mov_b32 v{vt[3]}, v{vt[1]}")
            k(f"v_permlane32_swap_b32 v{vt[0]}, v{vt[2]}"); k(f"v_permlane32_swap_b32 v{vt[1]}, v{vt[3]}")
            k(f"v_add_f32 v{vt[0]}, v{vt[0]}, v{vt[2]}"); k(f"v_add_f32 v{vt[1]}, v{vt[1]}, v{vt[3]}")
            k("s_mov_b32 exec_hi, 0")
            k(f"buffer_store_dwordx2 {vr(vt[0], 2)}, v{vS}, s[{sW}:{sW+3}], 0 offen sc1")
    k.stamp(6); k.dump(kidx, 9, s_wid)
    k.label(k.L("end"))
    k("s_endpgm")
    return k, NV, SB + (1024 if m1 else 0)

def tail():
    k = K("tail")
    GB = 16384; NSLOT = 8; SB = NSLOT * GB
    PH = {3: dict(NT=2, KK=D, A_OFF=O_OFF, base=0), 4: dict(NT=4, KK=D, A_OFF=H_OFF, base=5), 5: dict(NT=2, KK=F, A_OFF=G_OFF, base=7)}
    for p in PH.values():
        p["GS"] = 16 // p["NT"]; p["GR"] = p["GS"] * 16; p["NG"] = (p["KK"] + p["GR"] - 1) // p["GR"]; p["NKS"] = p["KK"] // 16
    sW, sB3, sB4, sB5, sX, sO, sBi = 4, 8, 12, 16, 8, 12, 16
    s_r, s_cb, s_w, s_t0, s_t1, s_offA, s_it, s_wid, s_r4, s_cb4, s_idx, s_x = 20, 21, 22, 23, 24, 26, 28, 35, 29, 30, 31, 32
    s_ob = {3: 25, 4: 26, 5: 27}; s_m0 = 33
    v_lane, v_t, v_h = 1, 2, 3
    vt = [12, 13, 14, 15]
    k.stamp(0); k.stamp(1, True)
    k("s_cmp_ge_u32 s2, 240"); k(f"s_cbranch_scc1 {k.L('end')}")
    k("s_load_dwordx2 s[36:37], s[0:1], 16")
    k("s_load_dwordx2 s[38:39], s[0:1], 0")
    k("s_load_dwordx2 s[40:41], s[0:1], 80")
    k("s_load_dwordx2 s[42:43], s[0:1], 32")
    k("s_load_dwordx4 s[44:47], s[0:1], 48")
    k("s_load_dwordx2 s[56:57], s[0:1], 64")
    k(f"v_lshrrev_b32 v{vt[0]}, 6, v0")
    k(f"v_and_b32 v{v_lane}, 63, v0")
    k(f"v_readfirstlane_b32 s{s_wid}, v{vt[0]}")
    k(f"s_lshr_b32 s{s_idx}, s2, 3"); k(f"s_and_b32 s{s_x}, s2, 7")
    k(f"s_mul_i32 s{s_cb}, s{s_idx}, 43"); k(f"s_lshr_b32 s{s_cb}, s{s_cb}, 7")
    k(f"s_mul_i32 s{s_t1}, s{s_cb}, 3"); k(f"s_sub_u32 s{s_r}, s{s_idx}, s{s_t1}")
    k(f"s_and_b32 s{s_r4}, s{s_idx}, 1"); k(f"s_lshr_b32 s{s_cb4}, s{s_idx}, 1")
    k(f"s_and_b32 s{s_w}, s{s_wid}, 3")
    k(f"s_cmp_lt_u32 s{s_wid}, 4")
    k(f"s_cbranch_scc1 {k.L('compute')}")
    vB2 = [4, 5, 6, 7]; vB4 = [8, 9, 10, 11]
    k(f"v_lshrrev_b32 v{vt[0]}, 3, v{v_lane}")
    k(f"v_and_b32 v{vt[1]}, 7, v{v_lane}")
    k(f"v_bfe_u32 v{vt[2]}, v{v_lane}, 4, 1")
    k(f"v_lshlrev_b32 v{vt[2]}, 2, v{vt[2]}")
    k(f"v_xor_b32 v{vt[1]}, v{vt[1]}, v{vt[2]}")
    k(f"v_mul_u32_u24 v{vt[0]}, 1280, v{vt[0]}")
    k(f"v_lshl_add_u32 v{vB2[0]}, v{vt[1]}, 4, v{vt[0]}")
    for ii in range(1, 4): k(f"v_add_u32 v{vB2[ii]}, {ii * (8 * 1280 - 1024)}, v{vB2[0]}")
    k(f"s_mul_i32 s{s_ob[3]}, s{s_w}, {32 * 1280}"); k(f"s_lshl_b32 s{s_t1}, s{s_cb}, 7"); k(f"s_add_u32 s{s_ob[3]}, s{s_ob[3]}, s{s_t1}")
    k(f"s_lshl_b32 s{s_m0}, s{s_w}, 12")
    k("s_waitcnt lgkmcnt(0)")
    srd(k, sB3, 36, 37, D * D * 2)
    q = []
    def issue(p, j):
        P = PH[p]; slot = (P["base"] + j) % NSLOT
        vB = vB4 if p == 4 else vB2; sB = {3: sB3, 4: sB4, 5: sB5}[p]
        k(f"s_add_u32 m0, s{s_m0}, {slot * GB}")
        for ii in range(4):
            k(f"buffer_load_dwordx4 v{vB[ii]}, s[{sB}:{sB+3}], s{s_ob[p]} offen offset:{ii*1024} lds")
            q.append((p, j))
        k(f"s_add_u32 s{s_ob[p]}, s{s_ob[p]}, {P['GR'] * (F if p == 4 else D) * 2}")
    def bar(need=None):
        if need is not None and need in q:
            last = len(q) - 1 - q[::-1].index(need)
            k(f"s_waitcnt vmcnt({len(q) - 1 - last})")
            del q[:last + 1]
        k("s_barrier")
    k.stamp(2)
    issue(3, 0); issue(3, 1)
    k(f"s_mov_b32 s{s_ob[5]}, s{s_ob[3]}"); k(f"s_sub_u32 s{s_ob[5]}, s{s_ob[5]}, {2 * 128 * 1280}")
    k(f"v_lshrrev_b32 v{vt[0]}, 4, v{v_lane}")
    k(f"v_and_b32 v{vt[1]}, 15, v{v_lane}")
    k(f"v_lshlrev_b32 v{vt[2]}, 2, v{vt[0]}")
    k(f"v_xor_b32 v{vt[1]}, v{vt[1]}, v{vt[2]}")
    k(f"v_mul_u32_u24 v{vt[0]}, {F * 2}, v{vt[0]}")
    k(f"v_lshl_add_u32 v{vB4[0]}, v{vt[1]}, 4, v{vt[0]}")
    for ii in range(1, 4): k(f"v_add_u32 v{vB4[ii]}, {ii * (4 * F * 2 - 1024)}, v{vB4[0]}")
    k(f"s_mul_i32 s{s_ob[4]}, s{s_w}, {16 * F * 2}"); k(f"s_lshl_b32 s{s_t1}, s{s_cb4}, 8"); k(f"s_add_u32 s{s_ob[4]}, s{s_ob[4]}, s{s_t1}")
    srd(k, sB4, 42, 43, D * F * 2); srd(k, sB5, 44, 45, D * F * 2); srd(k, sW, 40, 41, WS_END)
    for j in range(5):
        if j + 2 < 5: issue(3, j + 2)
        bar((3, j))
    k(f"s_cmp_ge_u32 s{s_idx}, 28"); k(f"s_cbranch_scc1 {k.L('lskip4')}")
    q0 = list(q)
    NPRE = int(os.environ.get("NPRE", "3")); E5 = int(os.environ.get("E5", "9")); N5 = int(os.environ.get("N5", "8"))
    for j in range(NPRE): issue(4, j)
    k(f"s_lshl_b32 s{s_t0}, s{s_cb4}, 10"); k(f"s_lshl_b32 s{s_t1}, s{s_w}, 8"); k(f"s_add_u32 s{s_t0}, s{s_t0}, s{s_t1}")
    k(f"s_add_u32 s{s_t0}, s{s_t0}, {C1_OFF}")
    k(f"v_lshlrev_b32 v{vt[3]}, 2, v{v_lane}")
    bar()
    bar()
    nxt4 = NPRE; nxt5 = 0
    for j in range(10):
        bar((4, j))
        if j == 1:
            k(f"s_add_u32 m0, s{s_t1}, {SB}")
            k(f"buffer_load_dword v{vt[3]}, s[{sW}:{sW+3}], s{s_t0} offen lds"); q.append(("c", 0))
        if nxt4 < 10 and (nxt4 < 8 or nxt4 - 8 + 2 <= j):
            issue(4, nxt4); nxt4 += 1
        elif nxt4 == 10 and nxt5 + 2 + 2 <= j and j >= E5:
            issue(5, nxt5); nxt5 += 1
    assert nxt4 == 10
    while nxt5 < min(N5, 3): issue(5, nxt5); nxt5 += 1
    bar(("c", 0))
    while nxt5 < N5: issue(5, nxt5); nxt5 += 1
    bar()
    k(f"s_branch {k.L('l5')}")
    k.label(k.L("lskip4"))
    q[:] = q0
    bar()
    for j in range(N5): issue(5, j)
    k.label(k.L("l5"))
    q[:] = [(5, j) for j in range(N5) for _ in range(4)]
    bar()
    for j in range(14):
        bar((5, j))
        if nxt5 < 14 and (nxt5 < 8 or nxt5 - 8 + 2 <= j):
            issue(5, nxt5); nxt5 += 1
    k("s_endpgm")

    k.label(k.L("compute"))
    vBr = [4, 5, 6, 7]; vA = 8; vS = 9; vO = 10; v_tag = 11
    RES = 16; BI = 32; ACC = 48
    DIST = 6; NFB = 8; NFA = 16
    k(f"v_and_b32 v{v_t}, 31, v0")
    k(f"v_bfe_u32 v{v_h}, v0, 5, 1")
    s_tok3 = 34; s_act = 25
    k(f"s_mul_i32 s{s_t0}, s{s_r}, 3"); k(f"s_add_u32 s{s_t0}, s{s_t0}, s{s_w}")
    k(f"s_cmp_eq_u32 s{s_w}, 3"); k(f"s_cselect_b32 s{s_act}, 8, s{s_t0}")
    k(f"s_lshl_b32 s{s_t1}, s{s_x}, 3"); k(f"s_add_u32 s{s_t0}, s{s_t0}, s{s_t1}"); k(f"s_lshl_b32 s{s_tok3}, s{s_t0}, 5")
    for c in range(4): k(f"s_mov_b32 s{48 + c}, {2*c*CH}")
    def nbar(n):
        for _ in range(n): k("s_barrier")
    def setup(p):
        if p == 4:
            k(f"s_lshl_b32 s{s_t0}, s{s_x}, 1"); k(f"s_add_u32 s{s_t0}, s{s_t0}, s{s_r4}"); k(f"s_lshl_b32 s{s_t0}, s{s_t0}, 2")
            k(f"s_add_u32 s{s_t0}, s{s_t0}, s{s_w}"); k(f"s_lshl_b32 s{s_t0}, s{s_t0}, 5")
            k(f"v_add_u32 v{vt[0]}, s{s_t0}, v{v_t}")
        else:
            k(f"v_add_u32 v{vt[0]}, s{s_tok3}, v{v_t}")
        k(f"v_lshlrev_b32 v{vA}, 15, v{v_h}")
        k(f"v_lshl_add_u32 v{vA}, v{vt[0]}, 4, v{vA}")
        k(f"s_mov_b32 s{s_offA}, {PH[p]['A_OFF']}")
    def setup2(p):
        late = []
        if p == 4:
            k(f"s_lshl_b32 s{s_t0}, s{s_cb4}, 19"); k(f"s_add_u32 s{s_t0}, s{s_t0}, {G_OFF}")
            k(f"v_add_u32 v{vO}, s{s_t0}, v{vA}")
            k(f"v_mul_u32_u24 v{vt[1]}, {5 * 16384}, v{v_h}")
            k(f"v_lshl_add_u32 v{vS}, v{vt[0]}, 3, v{vt[1]}")
            for i in range(5):
                late.append([f"s_mov_b32 s{s_t0}, {HS_OFF + i * 16384}",
                             f"buffer_load_dwordx2 {vr(BI + 2*i, 2)}, v{vS}, s[{sW}:{sW+3}], s{s_t0} offen sc1"])
            k(f"v_bfe_u32 v{vt[0]}, v{v_lane}, 2, 2")
            k(f"v_lshl_add_u32 v{vt[1]}, v{v_h}, 3, v{vt[0]}")
            k(f"v_lshlrev_b32 v{vt[1]}, 8, v{vt[1]}")
            k(f"v_lshl_add_u32 v{vt[0]}, v{vt[0]}, 6, v{vt[1]}")
        else:
            k(f"s_lshl_b32 s{s_t1}, s{s_cb}, 7")
            k(f"v_mul_u32_u24 v{vt[1]}, 1280, v{vt[0]}")
            k(f"v_lshl_add_u32 v{vt[1]}, v{v_h}, 4, v{vt[1]}")
            if p == 3:
                k(f"v_add_u32 v{vt[1]}, s{s_t1}, v{vt[1]}")
                k(f"s_lshl_b32 s{s_t0}, s{s_cb}, 18"); k(f"s_add_u32 s{s_t0}, s{s_t0}, {H_OFF}")
                k(f"v_add_u32 v{vO}, s{s_t0}, v{vA}")
                k(f"s_lshl_b32 s{s_t0}, s{s_cb}, 14"); k(f"s_add_u32 s{s_t0}, s{s_t0}, {HS_OFF}")
                k(f"v_lshl_add_u32 v{vS}, v{vt[0]}, 3, s{s_t0}")
                srd(k, sX, 38, 39, S * D * 2)
                for c in range(4):
                    late.append([f"buffer_load_dwordx4 {vr(RES + 4*c, 4)}, v{vt[1]}, s[{sX}:{sX+3}], 0 offen offset:{32*c}"])
            else:
                k(f"v_add_u32 v{vO}, s{s_t1}, v{vt[1]}")
                srd(k, sO, 56, 57, S * D * 2); srd(k, sBi, 46, 47, D * 2)
                k(f"v_lshlrev_b32 v{vt[2]}, 3, v{v_h}")
                for c in range(8):
                    k(f"buffer_load_dwordx2 {vr(BI + 2*c, 2)}, v{vt[2]}, s[{sBi}:{sBi+3}], s{s_t1} offen offset:{16*c}")
            k(f"v_bfe_u32 v{vt[0]}, v{v_lane}, 2, 2")
            k(f"v_lshl_add_u32 v{vt[0]}, v{v_h}, 3, v{vt[0]}")
            k(f"v_lshlrev_b32 v{vt[0]}, 7, v{vt[0]}")
            k(f"v_bfe_u32 v{vt[3]}, v{v_lane}, 3, 1")
            k(f"v_lshl_add_u32 v{vt[0]}, v{vt[3]}, 6, v{vt[0]}")
        k(f"v_bfe_u32 v{vt[3]}, v{v_lane}, 4, 1")
        k(f"v_lshl_add_u32 v{vt[0]}, v{vt[3]}, 5, v{vt[0]}")
        k(f"v_and_b32 v{vt[3]}, 3, v{v_lane}")
        k(f"v_lshl_add_u32 v{vBr[0]}, v{vt[3]}, 3, v{vt[0]}")
        for j in range(1, PH[p]["NT"]): k(f"v_xor_b32 v{vBr[j]}, {64 * j}, v{vBr[0]}")
        return late
    def aload(p, i, FA):
        return [f"buffer_load_dwordx4 {vr(FA + (i % NFA) * 4, 4)}, v{vA}, s[{sW}:{sW+3}], s{s_offA} offen{'' if p == 3 else ' sc1'}",
                f"s_add_u32 s{s_offA}, s{s_offA}, {2 * CH}"]
    def gemm(p, late, pre_issued):
        P = PH[p]; NT = P["NT"]; GS = P["GS"]; NKS = P["NKS"]
        FB = ACC + 16 * NT; FA = FB + NFB * 4
        LA = 14
        if not pre_issued:
            for i in range(LA):
                for l in aload(p, i, FA): k(l)
        cur = [0]
        NM = NKS * NT; KSB = GB // GS
        def bread(m):
            ks, j = divmod(m, NT)
            G, qq = divmod(ks, GS)
            off = ((P["base"] + G) % NSLOT) * GB + qq * KSB
            r = []
            if qq == 0 and j == 0: r.append("s_barrier")
            base = (off // 65536) * 65536
            if base != cur[0]:
                for a in vBr[:NT]: r.append(f"v_add_u32 v{a}, {(base - cur[0]) & 0xffffffff:#x}, v{a}")
                cur[0] = base
            for e in range(2):
                r.append(f"ds_read_b64_tr_b16 {vr(FB + (m % NFB) * 4 + 2*e, 2)}, v{vBr[j]} offset:{off - base + e * (KSB // 4)}")
            return r
        if K.prof: k("s_waitcnt lgkmcnt(0)")
        for m in range(DIST):
            for l in bread(m): k(l)
        vq = [("A", i) for i in range(LA)]
        for m in range(NM):
            ks, j = divmod(m, NT)
            nout = 2 * (min(NM, m + DIST) - m - 1)
            if j == 0:
                pos = vq.index(("A", ks))
                k(f"s_waitcnt vmcnt({len(vq) - 1 - pos}) lgkmcnt({nout})")
            else:
                k(f"s_waitcnt lgkmcnt({nout})")
            cc = vr(ACC + 16*j, 16) if ks else "0"
            k(f"v_mfma_f32_32x32x16_bf16 {vr(ACC + 16*j, 16)}, {vr(FB + (m % NFB) * 4, 4)}, {vr(FA + (ks % NFA) * 4, 4)}, {cc}")
            if m + DIST < NM:
                for l in bread(m + DIST): k(l)
            if j == 0 and ks + LA < NKS:
                for l in aload(p, ks + LA, FA): k(l)
                vq.append(("A", ks + LA))
            if j == 0 and late and ks + LA + 4 >= NKS:
                for l in late.pop(0): k(l)
                vq.append(("R", 0))
        assert not late
        return FB, FA
    def publish(pdone):
        k(f"s_lshl_b32 s{s_t0}, s{s_x}, 5"); k(f"s_add_u32 s{s_t0}, s{s_t0}, s{s_idx}"); k(f"s_lshl_b32 s{s_t0}, s{s_t0}, 7")
        k(f"s_add_u32 s{s_t0}, s{s_t0}, {FL_OFF + (pdone - 3) * 32768}")
        k(f"v_mov_b32 v{vt[0]}, 0")
        k("s_mov_b64 exec, 1")
        k(f"buffer_store_dword v{v_tag}, v{vt[0]}, s[{sW}:{sW+3}], s{s_t0} offen sc1")
        k("s_mov_b64 exec, -1")
    def wait(pwait, nflags, tagname, slp=0):
        k(f"s_lshl_b32 s{s_t0}, s{s_x}, 12"); k(f"s_add_u32 s{s_t0}, s{s_t0}, {FL_OFF + (pwait - 3) * 32768}")
        k(f"v_lshlrev_b32 v{vt[0]}, 7, v{v_lane}")
        k(f"s_mov_b32 s{s_it}, 0")
        k(f"s_mov_b64 exec, {(1 << nflags) - 1:#x}")
        k.label(k.L("poll" + tagname))
        k(f"buffer_load_dword v{vt[1]}, v{vt[0]}, s[{sW}:{sW+3}], s{s_t0} offen sc1")
        k(f"s_add_u32 s{s_it}, s{s_it}, 1")
        k("s_waitcnt vmcnt(0)")
        k(f"v_cmp_ne_u32 vcc, v{vt[1]}, v{v_tag}")
        k(f"s_cbranch_vccz {k.L('go' + tagname)}")
        if slp: k(f"s_sleep {slp}")
        k(f"s_cmp_lt_u32 s{s_it}, 0x8000")
        k(f"s_cbranch_scc1 {k.L('poll' + tagname)}")
        k.label(k.L("go" + tagname))
        k("s_mov_b64 exec, -1")

    setup(3)
    k("s_waitcnt lgkmcnt(0)")
    srd(k, sW, 40, 41, WS_END)
    k(f"s_cmp_ge_u32 s{s_act}, 8"); k(f"s_cbranch_scc1 {k.L('idle3')}")
    FB3 = ACC + 32; FA3 = FB3 + NFB * 4
    for i in range(14):
        for l in aload(3, i, FA3): k(l)
    late = setup2(3)
    k.stamp(2)
    FB, FA = gemm(3, late, True)
    k.stamp(3)
    T = FA
    k("s_waitcnt vmcnt(0)")
    for c in range(4):
        k(f"v_permlane32_swap_b32 v{RES + 4*c}, v{RES + 4*c + 2}")
        k(f"v_permlane32_swap_b32 v{RES + 4*c + 1}, v{RES + 4*c + 3}")
    for r in range(16):
        k(f"v_lshlrev_b32 v{T + 2*r}, 16, v{RES + r}")
        k(f"v_and_b32 v{T + 2*r + 1}, 0xffff0000, v{RES + r}")
    k(f"v_mov_b32 v{vt[0]}, 0"); k(f"v_mov_b32 v{vt[1]}, 0"); k(f"s_mov_b32 s{s_t1}, 0x3f803f80")
    for c in range(4):
        for r in range(4*c, 4*c + 4):
            k(f"v_pk_add_f32 {vr(T + 2*r, 2)}, {vr(T + 2*r, 2)}, {vr(ACC + 2*r, 2)}")
        for r in range(4*c, 4*c + 4):
            k(f"v_cvt_pk_bf16_f32 v{RES + r}, v{T + 2*r}, v{T + 2*r + 1}")
        k(f"v_permlane32_swap_b32 v{RES + 4*c}, v{RES + 4*c + 2}")
        k(f"v_permlane32_swap_b32 v{RES + 4*c + 1}, v{RES + 4*c + 3}")
        k(f"buffer_store_dwordx4 {vr(RES + 4*c, 4)}, v{vO}, s[{sW}:{sW+3}], s{48 + c} offen sc1")
    for r in range(16):
        k(f"v_dot2c_f32_bf16 v{vt[0]}, s{s_t1}, v{RES + r}")
        k(f"v_dot2c_f32_bf16 v{vt[1]}, v{RES + r}, v{RES + r}")
    k(f"v_mov_b32 v{vt[2]}, v{vt[0]}"); k(f"v_mov_b32 v{vt[3]}, v{vt[1]}")
    k(f"v_permlane32_swap_b32 v{vt[0]}, v{vt[2]}"); k(f"v_permlane32_swap_b32 v{vt[1]}, v{vt[3]}")
    k(f"v_add_f32 v{vt[0]}, v{vt[0]}, v{vt[2]}"); k(f"v_add_f32 v{vt[1]}, v{vt[1]}, v{vt[3]}")
    k("s_mov_b32 exec_hi, 0")
    k(f"buffer_store_dwordx2 {vr(vt[0], 2)}, v{vS}, s[{sW}:{sW+3}], 0 offen sc1")
    k("s_mov_b32 exec_hi, -1")
    k(f"s_branch {k.L('pb3')}")
    k.label(k.L("idle3"))
    k(f"v_mov_b32 v{vt[0]}, 0"); k(f"s_mov_b32 s{s_t0}, {TAG_OFF}")
    k(f"buffer_load_dword v{v_tag}, v{vt[0]}, s[{sW}:{sW+3}], s{s_t0} offen")
    k.stamp(2)
    nbar(5)
    k.label(k.L("pb3"))
    k("s_waitcnt vmcnt(0)")
    k("s_barrier")
    k.stamp(4)
    k(f"s_cmp_ge_u32 s{s_idx}, 28"); k(f"s_cbranch_scc1 {k.L('skip4')}")
    k(f"s_cmp_lg_u32 s{s_w}, 3"); k(f"s_cbranch_scc1 {k.L('ns4')}")
    publish(3)
    k.label(k.L("ns4"))
    setup(4)
    late = setup2(4)
    k(f"s_cmp_lg_u32 s{s_w}, 3"); k(f"s_cbranch_scc1 {k.L('ns4b')}")
    wait(3, 30, "a")
    k.label(k.L("ns4b"))
    k("s_barrier")
    k.stamp(5)
    FB, FA = gemm(4, late, False)
    k.stamp(6)
    k("s_barrier")
    T = FB; CSB = [FB + 32, FB + 64]
    k(f"v_lshlrev_b32 v{vt[0]}, 4, v{v_h}"); k(f"v_add_u32 v{vt[0]}, {SB}, v{vt[0]}")
    def csread(nt):
        for rq in range(8):
            k(f"ds_read_b128 {vr(CSB[nt % 2] + rq*4, 4)}, v{vt[0]} offset:{(rq // 4) * 512 + nt*128 + (rq % 4)*32}")
    csread(0)
    k("s_waitcnt vmcnt(0)")
    PS = BI; MR = BI + 12
    for i in range(1, 5): k(f"v_pk_add_f32 {vr(PS,2)}, {vr(PS,2)}, {vr(PS + 2*i, 2)}")
    k(f"v_mov_b32 v{PS+2}, v{PS}"); k(f"v_mov_b32 v{PS+3}, v{PS+1}")
    k(f"v_permlane32_swap_b32 v{PS}, v{PS+2}"); k(f"v_permlane32_swap_b32 v{PS+1}, v{PS+3}")
    k(f"v_pk_add_f32 {vr(PS,2)}, {vr(PS,2)}, {vr(PS + 2, 2)}")
    rowstat_math(k, PS, PS + 1, MR, MR + 1, PS + 2, True)
    C0 = -2.0 * math.log2(math.e) * math.sqrt(2.0 / math.pi)
    k(f"s_mov_b32 s58, {f32(C0 * 0.044715)}"); k(f"s_mov_b32 s59, {f32(C0 * 0.044715)}")
    k(f"v_mov_b32 v{vt[2]}, {f32(C0)}"); k(f"v_mov_b32 v{vt[3]}, {f32(C0)}")
    for nt in range(4):
        if nt == 2:
            k(f"s_cmp_eq_u32 s{s_cb4}, 13"); k(f"s_cbranch_scc1 {k.L('done4')}")
            k(f"v_add_u32 v{vO}, {8 * CH}, v{vO}")
        k("s_waitcnt lgkmcnt(0)")
        if nt < 3: csread(nt + 1)
        a = ACC + 16 * nt; CS = CSB[nt % 2]; B1 = CS + 16
        for p in range(8):
            x = vr(a + 2*p, 2)
            k(f"v_pk_fma_f32 {x}, {vr(CS + 2*p, 2)}, {vr(MR,2)}, {x} op_sel_hi:[1,0,1]")
        for p in range(8):
            x = vr(a + 2*p, 2)
            k(f"v_pk_fma_f32 {x}, {x}, {vr(MR,2)}, {vr(B1 + 2*p, 2)} op_sel:[0,1,0] op_sel_hi:[1,1,1]")
        for p in range(8):
            x = vr(a + 2*p, 2); t = vr(T + 2*p, 2)
            k(f"v_pk_mul_f32 {t}, {x}, {x}")
        for p in range(8):
            t = vr(T + 2*p, 2)
            k(f"v_pk_fma_f32 {t}, {t}, s[58:59], {vr(vt[2],2)}")
        for p in range(8):
            x = vr(a + 2*p, 2); t = vr(T + 2*p, 2)
            k(f"v_pk_mul_f32 {t}, {t}, {x}")
        for r in range(16): k(f"v_exp_f32 v{T + r}, v{T + r}")
        for p in range(8):
            t = vr(T + 2*p, 2)
            k(f"v_pk_add_f32 {t}, {t}, 1.0 op_sel_hi:[1,0]")
        for r in range(16): k(f"v_rcp_f32 v{T + r}, v{T + r}")
        for p in range(8):
            x = vr(a + 2*p, 2); t = vr(T + 2*p, 2)
            k(f"v_pk_mul_f32 {x}, {x}, {t}")
        Pk = T + 16 + (nt % 2) * 8
        for p in range(8):
            k(f"v_cvt_pk_bf16_f32 v{Pk + p}, v{a + 2*p}, v{a + 2*p + 1}")
        for pq in range(2):
            b = Pk + 4*pq
            k(f"v_permlane32_swap_b32 v{b}, v{b+2}")
            k(f"v_permlane32_swap_b32 v{b+1}, v{b+3}")
        for pq in range(2):
            k(f"buffer_store_dwordx4 {vr(Pk + 4*pq,4)}, v{vO}, s[{sW}:{sW+3}], s{48 + (nt % 2)*2 + pq} offen sc1")
    k.label(k.L("done4"))
    k.stamp(7)
    k("s_waitcnt vmcnt(0) lgkmcnt(0)")
    k("s_barrier")
    k.stamp(8)
    k(f"s_cmp_lg_u32 s{s_w}, 3"); k(f"s_cbranch_scc1 {k.L('p5')}")
    publish(4)
    wait(4, 28, "b")
    k(f"s_branch {k.L('p5')}")
    k.label(k.L("skip4"))
    k(f"s_cmp_lg_u32 s{s_w}, 3"); k(f"s_cbranch_scc1 {k.L('p5')}")
    publish(3)
    wait(4, 28, "c", 8)
    k.label(k.L("p5"))
    k(f"s_cmp_ge_u32 s{s_act}, 8"); k(f"s_cbranch_scc1 {k.L('idle5')}")
    setup(5)
    late = setup2(5)
    k("s_barrier")
    k.stamp(9)
    FB, FA = gemm(5, late, False)
    k.stamp(10)
    T = FA
    for c in range(4):
        k(f"v_permlane32_swap_b32 v{RES + 4*c}, v{RES + 4*c + 2}")
        k(f"v_permlane32_swap_b32 v{RES + 4*c + 1}, v{RES + 4*c + 3}")
    for r in range(16):
        k(f"v_lshlrev_b32 v{T + 2*r}, 16, v{RES + r}")
        k(f"v_and_b32 v{T + 2*r + 1}, 0xffff0000, v{RES + r}")
    for r in range(16):
        k(f"v_lshlrev_b32 v{T + 32 + 2*r}, 16, v{BI + r}")
        k(f"v_and_b32 v{T + 32 + 2*r + 1}, 0xffff0000, v{BI + r}")
    for r in range(16):
        k(f"v_pk_add_f32 {vr(T + 2*r, 2)}, {vr(T + 2*r, 2)}, {vr(T + 32 + 2*r, 2)}")
    for c in range(4):
        for r in range(4*c, 4*c + 4):
            k(f"v_pk_add_f32 {vr(T + 2*r, 2)}, {vr(T + 2*r, 2)}, {vr(ACC + 2*r, 2)}")
        for r in range(4*c, 4*c + 4):
            k(f"v_cvt_pk_bf16_f32 v{RES + r}, v{T + 2*r}, v{T + 2*r + 1}")
        k(f"v_permlane32_swap_b32 v{RES + 4*c}, v{RES + 4*c + 2}")
        k(f"v_permlane32_swap_b32 v{RES + 4*c + 1}, v{RES + 4*c + 3}")
        k(f"buffer_store_dwordx4 {vr(RES + 4*c, 4)}, v{vO}, s[{sO}:{sO+3}], 0 offen offset:{32*c}")
    k.stamp(11)
    k.dump(2, 14, s_wid)
    k("s_endpgm")
    k.label(k.L("idle5"))
    k("s_barrier")
    k.label(k.L("end"))
    k("s_endpgm")
    return k, ACC + 64 + 32 + 64, SB + 1024 + 16

HEADER = open("sequential_preLN__mha_block__mixer_channel_mlp__prompt.s.ref").read().split("; Override")[0]

def build(path):
    ks = [(lngemm("qkv"), 256, 512), (attn(), 256, 512), (wgemm("oproj"), 240, 512), ((lngemm if "oldm1" in X else wgemm)("mlp1"), 224, 512), (wgemm("mlp2"), 240, 512)]
    if "sep" not in X:
        ks = ks[:2] + [(tail(), 240, 512)]
    def nop():
        k = K("nop"); k("s_endpgm"); return k, 8, 0
    order = list(range(len(ks)))
    if "nopend" in X: ks.append((nop(), 256, 256)); order = order + [5]
    if "nopbeg" in X: ks.append((nop(), 256, 256)); order = [5] + order
    if "nop3" in X: ks.append((nop(), 256, 256)); order = order + [5, 5, 5]
    if "dup" in X: order = order + order
    t = HEADER
    for (k, nv, lds), grid, block in [ks[i] for i in order]:
        t += f"; @launch kernel={k.name}_kernel grid=({grid},1,1) block=({block},1,1) lds={lds}\n"
    t += '.amdgcn_target "amdgcn-amd-amdhsa--gfx950"\n.text\n'
    for (k, nv, lds), grid, block in ks:
        t += kernel_text(k, nv)
    t += "L_code_end:\n"
    t += '.section .rodata,"a"\n'
    for (k, nv, lds), grid, block in ks:
        t += kernel_desc(k, nv)
    open(path, "w").write(t)

if __name__ == "__main__":
    if len(sys.argv) > 2 and sys.argv[2] == "prof": K.prof = True
    if len(sys.argv) > 2 and sys.argv[2] == "dbg": K.prof = "dbg"
    build(sys.argv[1] if len(sys.argv) > 1 else "sequential_preLN__mha_block__mixer_channel_mlp__prompt.s")
```

```python
import sys, math, struct, os
X = set(os.environ.get("EXP", "").split(","))
from asmlib import K, vr, sr, kernel_text, kernel_desc

S = 2048; D = 640; F = 1728; H = 32; DH = 20
QK_OFF = 0x0
V_OFF = 0x500000
O_OFF = 0x780000
H_OFF = 0xA00000
G_OFF = 0xC80000
HS_OFF = 0x1340000
C1_OFF = 0x1370000
ST_OFF = 0x1378000
FL_OFF = 0x1400000
TAG_OFF = 0x1420000
WS_END = 0x1420100
G_END = 0x1340000
CH = S * 16
EPS = 1e-5

def f32(x):
    return "0x%08x" % struct.unpack("<I", struct.pack("<f", x))[0]

def srd(k, d, lo, hi, size):
    k(f"s_mov_b32 s{d}, s{lo}")
    k(f"s_and_b32 s{d+1}, s{hi}, 0xffff")
    k(f"s_mov_b32 s{d+2}, {size:#x}")
    k(f"s_mov_b32 s{d+3}, 0x00020000")

def code_prefetch(k, first, sd, st, vaddr, vdst, v_lane, per=12):
    lab = k.L("pc%d" % k.uid); k.uid += 1
    k(f"s_getpc_b64 s[{sd}:{sd+1}]")
    k.label(lab)
    k(f"s_add_u32 s{sd}, s{sd}, {first}-{lab}")
    k(f"s_addc_u32 s{sd+1}, s{sd+1}, {'-1' if first == k.name + '_kernel' else '0'}")
    k(f"s_and_b32 s{sd+1}, s{sd+1}, 0xffff")
    k(f"s_mov_b32 s{sd+2}, L_code_end-{first}")
    k(f"s_mov_b32 s{sd+3}, 0x00020000")
    k(f"s_lshr_b32 s{st}, s2, 3"); k(f"s_mul_i32 s{st}, s{st}, {per * 128}")
    k(f"v_lshlrev_b32 v{vaddr}, 7, v{v_lane}")
    k(f"s_mov_b64 exec, {(1 << per) - 1:#x}")
    k(f"buffer_load_dword v{vdst}, v{vaddr}, s[{sd}:{sd+3}], s{st} offen")
    k("s_mov_b64 exec, -1")

def gate(k, us):
    lab = k.L("gate%d" % k.uid); k.uid += 1
    k("s_load_dwordx2 s[80:81], s[0:1], 80"); k("s_waitcnt lgkmcnt(0)")
    k(f"s_add_u32 s80, s80, {TAG_OFF + 4}"); k("s_addc_u32 s81, s81, 0")
    k("s_load_dword s82, s[80:81], 0"); k("s_waitcnt lgkmcnt(0)")
    k.label(lab)
    k("s_memrealtime s[84:85]"); k("s_waitcnt lgkmcnt(0)")
    k("s_sub_u32 s84, s84, s82")
    k(f"s_cmp_lt_u32 s84, {us * 100}"); k(f"s_cbranch_scc1 {lab}")

def rowstat_math(k, s_, q_, nm, rs, t, double):
    k(f"v_mul_f32 v{nm}, {f32(-1.0 / D)}, v{s_}")
    k(f"v_mul_f32 v{q_}, {f32(1.0 / D)}, v{q_}")
    k(f"v_fma_f32 v{q_}, -v{nm}, v{nm}, v{q_}")
    k(f"v_max_f32 v{q_}, 0, v{q_}")
    k(f"v_add_f32 v{t}, {f32(EPS)}, v{q_}")
    k(f"v_rsq_f32 v{rs}, v{t}")
    if double:
        k(f"v_mul_f32 v{t}, v{rs}, v{rs}")
        k(f"v_mul_f32 v{t}, v{t}, v{q_}")
        k(f"v_add_f32 v{t}, {f32(EPS)}, v{t}")
        k(f"v_rsq_f32 v{t}, v{t}")
        k(f"v_mul_f32 v{rs}, v{rs}, v{t}")

def lngemm(kind):
    k = K(kind)
    qkv = kind == "qkv"
    NB = 1920 if qkv else F
    BROW = NB * 2
    NS = 4; SLOT = 32768; NST = 10
    SB = NS * SLOT
    SL = SB + 2048
    sA, sB, sW, sBi = 4, 8, 12, 16
    s_mb, s_nb, s_w = 20, 21, 22
    s_wm, s_wn = 23, 24
    s_offA, s_offB, s_m0, s_it, s_delta, s_t0, s_t1, s_slot = 25, 26, 27, 28, 29, 30, 31, 32
    s_ones = 33
    s_wid = 35
    v_lane, v_t, v_h = 1, 2, 3
    vAd = [4, 5, 6, 7]; vBd = [8, 9, 10, 11]
    vBr = [12, 13]
    v_b1 = 17
    vt = [18, 19, 20, 21, 22, 23]
    vAr = [24, 25, 26, 27]
    FA = [[32 + 16 * i, 36 + 16 * i] for i in range(4)]
    FB = [[40 + 16 * i, 44 + 16 * i] for i in range(4)]
    ACC = 96
    def acc(mt, nt): return ACC + (mt * 2 + nt) * 16
    EP = 160
    kidx = 0 if qkv else 3

    if "early" in X: k("s_memrealtime s[86:87]")
    k.stamp(0); k.stamp(1, True)
    k(f"s_cmp_ge_u32 s2, {256 if qkv else 224}"); k(f"s_cbranch_scc1 {k.L('end')}")
    if qkv:
        k("s_load_dwordx4 s[36:39], s[0:1], 0")
        k("s_load_dwordx4 s[40:43], s[0:1], 72")
        WSL = 42
    else:
        k("s_load_dwordx2 s[36:37], s[0:1], 32")
        k("s_load_dwordx2 s[40:41], s[0:1], 80")
        WSL = 40
    k(f"s_and_b32 s{s_t0}, s2, 7"); k(f"s_lshr_b32 s{s_t1}, s2, 3")
    if qkv:
        k(f"s_lshr_b32 s{s_mb}, s{s_t0}, 1"); k(f"s_lshl_b32 s{s_mb}, s{s_mb}, 2")
        k(f"s_and_b32 s{s_nb}, s{s_t1}, 3"); k(f"s_add_u32 s{s_mb}, s{s_mb}, s{s_nb}")
        k(f"s_and_b32 s{s_nb}, s{s_t0}, 1"); k(f"s_lshl_b32 s{s_nb}, s{s_nb}, 3")
        k(f"s_lshr_b32 s{s_t1}, s{s_t1}, 2"); k(f"s_add_u32 s{s_nb}, s{s_nb}, s{s_t1}")
    else:
        k(f"s_lshl_b32 s{s_mb}, s{s_t0}, 1"); k(f"s_and_b32 s{s_nb}, s{s_t1}, 1"); k(f"s_add_u32 s{s_mb}, s{s_mb}, s{s_nb}")
        k(f"s_lshr_b32 s{s_nb}, s{s_t1}, 1")
    k(f"v_lshrrev_b32 v{vt[0]}, 6, v0")
    k(f"v_and_b32 v{v_lane}, 63, v0")
    k(f"v_readfirstlane_b32 s{s_wid}, v{vt[0]}")
    k(f"v_and_b32 v{v_t}, 31, v0")
    k(f"v_bfe_u32 v{v_h}, v0, 5, 1")
    k(f"s_and_b32 s{s_w}, s{s_wid}, 3")
    k(f"s_cmp_lt_u32 s{s_wid}, 4")
    k(f"s_cbranch_scc1 {k.L('compute')}")
    if qkv:
        k(f"s_cmp_ge_u32 s{s_nb}, 15"); k(f"s_cbranch_scc1 {k.L('auxl')}")
        k(f"v_lshrrev_b32 v{vt[0]}, 3, v{v_lane}")
        k(f"v_and_b32 v{vt[1]}, 7, v{v_lane}")
        k(f"v_lshrrev_b32 v{vt[2]}, 1, v{vt[0]}")
        k(f"v_xor_b32 v{vt[2]}, v{vt[2]}, v{vt[1]}")
        k(f"v_xor_b32 v{vt[3]}, 4, v{vt[2]}")
        k(f"s_lshl_b32 s{s_t0}, s{s_mb}, 7"); k(f"s_lshl_b32 s{s_t1}, s{s_w}, 5"); k(f"s_add_u32 s{s_t0}, s{s_t0}, s{s_t1}")
        k(f"v_add_u32 v{vt[0]}, s{s_t0}, v{vt[0]}")
        k(f"v_mul_u32_u24 v{vt[0]}, 1280, v{vt[0]}")
        for ii in range(4):
            k(f"v_lshl_add_u32 v{vAd[ii]}, v{vt[2 + (ii & 1)]}, 4, v{vt[0]}")
            if ii: k(f"v_add_u32 v{vAd[ii]}, {ii * (8 * 1280 - 1024)}, v{vAd[ii]}")
        stepA = 128
    else:
        k(f"s_lshl_b32 s{s_t0}, s{s_mb}, 11")
        k(f"s_mul_i32 s{s_t1}, s{s_w}, {2 * CH}")
        k(f"s_add_u32 s{s_t0}, s{s_t0}, s{s_t1}")
        k(f"s_add_u32 s{s_t0}, s{s_t0}, {H_OFF}")
        k(f"v_lshl_add_u32 v{vAd[0]}, v{v_lane}, 4, s{s_t0}")
        k(f"v_mov_b32 v{vAd[1]}, v{vAd[0]}")
        k(f"v_add_u32 v{vAd[2]}, {CH - 2048}, v{vAd[0]}")
        k(f"v_add_u32 v{vAd[3]}, {CH - 2048}, v{vAd[0]}")
        stepA = 8 * CH
    k(f"v_lshrrev_b32 v{vt[0]}, 4, v{v_lane}")
    k(f"v_and_b32 v{vt[1]}, 15, v{v_lane}")
    k(f"v_lshlrev_b32 v{vt[2]}, 2, v{vt[0]}")
    k(f"v_xor_b32 v{vt[1]}, v{vt[1]}, v{vt[2]}")
    k(f"s_lshl_b32 s{s_t0}, s{s_w}, 4")
    k(f"v_add_u32 v{vt[0]}, s{s_t0}, v{vt[0]}")
    k(f"v_mul_u32_u24 v{vt[0]}, {BROW}, v{vt[0]}")
    k(f"v_lshl_add_u32 v{vt[0]}, v{vt[1]}, 4, v{vt[0]}")
    k(f"s_lshl_b32 s{s_t0}, s{s_nb}, 8")
    k(f"v_add_u32 v{vBd[0]}, s{s_t0}, v{vt[0]}")
    for ii in range(1, 4):
        k(f"v_add_u32 v{vBd[ii]}, {ii * (4 * BROW - 1024)}, v{vBd[0]}")
    stepB = 64 * BROW
    k(f"s_mov_b32 s{s_offA}, 0"); k(f"s_mov_b32 s{s_offB}, 0")
    k(f"s_lshl_b32 s{s_m0}, s{s_w}, 12")
    k(f"s_mov_b32 s{s_it}, 0")
    k("s_waitcnt lgkmcnt(0)")
    if qkv:
        srd(k, sA, 36, 37, S * D * 2); srd(k, sB, 38, 39, D * NB * 2)
    else:
        srd(k, sB, 36, 37, D * NB * 2); srd(k, sW, WSL, WSL + 1, WS_END)
        sA = sW
    def dma_stage():
        r = []
        r.append(f"s_mov_b32 m0, s{s_m0}")
        for ii in range(4):
            r.append(f"buffer_load_dwordx4 v{vAd[ii]}, s[{sA}:{sA+3}], s{s_offA} offen offset:{ii*1024} lds")
        r.append(f"s_add_u32 m0, s{s_m0}, 16384")
        for ii in range(4):
            r.append(f"buffer_load_dwordx4 v{vBd[ii]}, s[{sB}:{sB+3}], s{s_offB} offen offset:{ii*1024} lds")
        r.append(f"s_add_u32 s{s_offA}, s{s_offA}, {stepA}")
        r.append(f"s_add_u32 s{s_offB}, s{s_offB}, {stepB}")
        r.append(f"s_add_u32 s{s_m0}, s{s_m0}, {SLOT}")
        r.append(f"s_and_b32 s{s_m0}, s{s_m0}, {NS * SLOT - 1}")
        return r
    def lstep(n=8, dma=True):
        if dma:
            for l in dma_stage(): k(l)
        k(f"s_waitcnt vmcnt({n})")
        k("s_barrier")
    def lloop(tag, n):
        k(f"s_mov_b32 s{s_it}, 0")
        k.label(k.L("lloop" + tag))
        lstep()
        k(f"s_add_u32 s{s_it}, s{s_it}, 1")
        k(f"s_cmp_lt_u32 s{s_it}, {n}")
        k(f"s_cbranch_scc1 {k.L('lloop' + tag)}")
    XS = 32
    v_tag = 16
    RG_OFF = ST_OFF; CG_OFF = ST_OFF + 32768
    def slice_addr_rows():
        k(f"v_lshrrev_b32 v{vt[4]}, 4, v{v_lane}")
        k(f"v_and_b32 v{vt[5]}, 15, v{v_lane}")
        k(f"v_mul_u32_u24 v{vt[4]}, 1280, v{vt[4]}")
        k(f"v_lshl_add_u32 v{vt[4]}, v{vt[5]}, 4, v{vt[4]}")
        k(f"s_lshl_b32 s{s_t0}, s{s_mb}, 5"); k(f"s_lshl_b32 s{s_t1}, s{s_nb}, 1"); k(f"s_add_u32 s{s_t0}, s{s_t0}, s{s_t1}")
        k(f"s_add_u32 s{s_delta}, s{s_t0}, s{s_w}"); k(f"s_mul_i32 s{s_t0}, s{s_delta}, {4 * 1280}")
    def slice_load_rows():
        for i in range(5):
            k(f"buffer_load_dwordx4 {vr(XS + 4*i, 4)}, v{vt[4]}, s[{sA}:{sA+3}], s{s_t0} offen offset:{256 * i}")
    def tag_load():
        k(f"v_mov_b32 v15, 0")
        k(f"buffer_load_dword v{v_tag}, v15, s[{sBi}:{sBi+3}], 0 offen sc1")
    def tag_wait(tag):
        k(f"s_mov_b32 s{s_it}, 0")
        k.label(k.L("tw" + tag))
        k(f"v_cmp_eq_u32 vcc, 0, v{v_tag}")
        k(f"s_cbranch_vccz {k.L('tr' + tag)}")
        k("s_sleep 2")
        k(f"buffer_load_dword v{v_tag}, v15, s[{sBi}:{sBi+3}], 0 offen sc1")
        k(f"s_add_u32 s{s_it}, s{s_it}, 1")
        k("s_waitcnt vmcnt(0)")
        k(f"s_cmp_lt_u32 s{s_it}, 0x4000")
        k(f"s_cbranch_scc1 {k.L('tw' + tag)}")
        k.label(k.L("tr" + tag))
    def slice_rows(part):
        if part == 0:
            k("v_mov_b32 v56, 0"); k("v_mov_b32 v57, 0"); k("v_mov_b32 v58, 0"); k("v_mov_b32 v59, 0")
        for r in (range(13) if part == 0 else range(13, 20)):
            k(f"v_lshlrev_b32 v52, 16, v{XS + r}")
            k(f"v_and_b32 v53, 0xffff0000, v{XS + r}")
            k("v_add_f32 v56, v56, v52"); k("v_fmac_f32 v57, v52, v52")
            k("v_add_f32 v58, v58, v53"); k("v_fmac_f32 v59, v53, v53")
        if part == 0: return
        k("v_add_f32 v56, v56, v58"); k("v_add_f32 v57, v57, v59")
        for sh in (8, 4, 2, 1):
            k(f"v_add_f32_dpp v56, v56, v56 row_ror:{sh} row_mask:0xf bank_mask:0xf")
            k(f"v_add_f32_dpp v57, v57, v57 row_ror:{sh} row_mask:0xf bank_mask:0xf")
        rowstat_math(k, 56, 57, 60, 62, 52, False)
        k(f"v_mov_b32 v61, v{v_tag}"); k(f"v_mov_b32 v63, v{v_tag}")
        k(f"s_lshl_b32 s{s_t0}, s{s_delta}, 6"); k(f"s_add_u32 s{s_t0}, s{s_t0}, {RG_OFF}")
        k("s_mov_b32 exec_lo, 0x00010001"); k("s_mov_b32 exec_hi, 0x00010001")
        k(f"buffer_store_dwordx4 v[60:63], v{v_lane}, s[{sW}:{sW+3}], s{s_t0} offen sc1")
        k("s_mov_b64 exec, -1")
    def slice_cols(part):
        if part == 0:
            for r in range(4):
                k(f"v_lshlrev_b32 v{56 + 2*r}, 16, v{XS + r}"); k(f"v_and_b32 v{57 + 2*r}, 0xffff0000, v{XS + r}")
            for i in range(1, 5):
                for r in range(4):
                    k(f"v_lshlrev_b32 v52, 16, v{XS + 4*i + r}"); k(f"v_and_b32 v53, 0xffff0000, v{XS + 4*i + r}")
                    k(f"v_add_f32 v{56 + 2*r}, v{56 + 2*r}, v52"); k(f"v_add_f32 v{57 + 2*r}, v{57 + 2*r}, v53")
            return
        for r in range(4): k(f"v_permlane32_swap_b32 v{56 + r}, v{60 + r}")
        for r in range(4): k(f"v_add_f32 v{56 + r}, v{56 + r}, v{60 + r}")
        for r in range(2): k(f"v_permlane16_swap_b32 v{56 + r}, v{58 + r}")
        k("v_add_f32 v56, v56, v58"); k("v_add_f32 v58, v57, v59")
        k(f"v_mov_b32 v57, v{v_tag}"); k(f"v_mov_b32 v59, v{v_tag}")
        k(f"v_and_b32 v{vt[4]}, 48, v{v_lane}")
        k(f"v_lshl_add_u32 v{vt[4]}, v{vt[5]}, 6, v{vt[4]}")
        k(f"s_mul_i32 s{s_t0}, s{s_delta}, 15360"); k(f"s_lshl_b32 s{s_t1}, s{s_nb}, 10"); k(f"s_add_u32 s{s_t0}, s{s_t0}, s{s_t1}")
        k(f"s_add_u32 s{s_t0}, s{s_t0}, {CG_OFF}")
        k(f"buffer_store_dwordx4 v[56:59], v{vt[4]}, s[{sW}:{sW+3}], s{s_t0} offen sc1")
    def slice_part(part):
        k(f"s_cmp_ge_u32 s{s_w}, 2"); k(f"s_cbranch_scc1 {k.L('slc%d' % part)}")
        slice_rows(part)
        k(f"s_branch {k.L('sld%d' % part)}")
        k.label(k.L("slc%d" % part))
        slice_cols(part)
        k.label(k.L("sld%d" % part))
    k.stamp(2)
    for l in dma_stage(): k(l)
    if qkv:
        for l in dma_stage(): k(l)
        k(f"s_cmp_ge_u32 s{s_w}, 2"); k(f"s_cbranch_scc1 {k.L('slc')}")
        slice_addr_rows(); slice_load_rows()
        k(f"s_branch {k.L('sll')}")
        k.label(k.L("slc"))
        k(f"v_lshrrev_b32 v{vt[4]}, 4, v{v_lane}")
        k(f"v_and_b32 v{vt[5]}, 15, v{v_lane}")
        k(f"v_mul_u32_u24 v{vt[4]}, {BROW}, v{vt[4]}")
        k(f"v_lshl_add_u32 v{vt[4]}, v{vt[5]}, 4, v{vt[4]}")
        k(f"s_lshl_b32 s{s_delta}, s{s_mb}, 1"); k(f"s_add_u32 s{s_delta}, s{s_delta}, s{s_w}"); k(f"s_sub_u32 s{s_delta}, s{s_delta}, 2")
        k(f"s_mul_i32 s{s_t0}, s{s_delta}, {20 * BROW}"); k(f"s_lshl_b32 s{s_t1}, s{s_nb}, 8"); k(f"s_add_u32 s{s_t0}, s{s_t0}, s{s_t1}")
        for i in range(5):
            k(f"buffer_load_dwordx4 {vr(XS + 4*i, 4)}, v{vt[4]}, s[{sB}:{sB+3}], s{s_t0} offen")
            k(f"s_add_u32 s{s_t0}, s{s_t0}, {4 * BROW}")
        k.label(k.L("sll"))
        srd(k, sW, WSL, WSL + 1, WS_END); srd(k, sBi, 40, 41, 256)
        lstep(13, False)
        tag_load()
        lstep(14)
        lstep(8)
        k.stamp(3)
        for l in dma_stage(): k(l)
        slice_part(0)
        lstep(8, False)
        for l in dma_stage(): k(l)
        tag_wait("a")
        slice_part(1)
        lstep(9, False)
        k.stamp(4)
        lstep(9)
        lstep(); lstep()
        for l in dma_stage(): k(l)
        k(f"s_lshl_b32 s{s_t0}, s{s_mb}, 11"); k(f"s_lshl_b32 s{s_t1}, s{s_w}, 9"); k(f"s_add_u32 s{s_t0}, s{s_t0}, s{s_t1}")
        k(f"s_add_u32 s{s_offA}, s{s_t0}, {RG_OFF}")
        k(f"v_lshlrev_b32 v{vt[0]}, 4, v{v_t}")
        k(f"v_lshrrev_b32 v{vt[1]}, 4, v{v_lane}")
        k(f"v_mul_u32_u24 v{vt[1]}, {8 * 15360}, v{vt[1]}")
        k(f"v_lshl_add_u32 v{vt[1]}, v{vt[5]}, 4, v{vt[1]}")
        k(f"s_lshl_b32 s{s_t0}, s{s_nb}, 10"); k(f"s_lshl_b32 s{s_t1}, s{s_w}, 8"); k(f"s_add_u32 s{s_t0}, s{s_t0}, s{s_t1}")
        k(f"s_add_u32 s{s_offB}, s{s_t0}, {CG_OFF}")
        def gather():
            k(f"buffer_load_dwordx4 v[64:67], v{vt[0]}, s[{sW}:{sW+3}], s{s_offA} offen sc1")
            k(f"s_mov_b32 s{s_t0}, s{s_offB}")
            for i in range(8):
                k(f"buffer_load_dwordx4 {vr(32 + 4*i, 4)}, v{vt[1]}, s[{sW}:{sW+3}], s{s_t0} offen sc1")
                k(f"s_add_u32 s{s_t0}, s{s_t0}, 15360")
        gather()
        lstep(17, False)
        lstep(9, False)
        k.stamp(5)
        k(f"s_mov_b32 s{s_it}, 0")
        k.label(k.L("poll"))
        k("s_waitcnt vmcnt(0)")
        k(f"v_and_b32 v68, v65, v67"); k(f"v_or_b32 v69, v65, v67")
        for i in range(16):
            k(f"v_and_b32 v68, v68, v{33 + 2*i}"); k(f"v_or_b32 v69, v69, v{33 + 2*i}")
        k(f"v_xor_b32 v68, v68, v{v_tag}"); k(f"v_xor_b32 v69, v69, v{v_tag}"); k("v_or_b32 v68, v68, v69")
        k(f"v_cmp_ne_u32 vcc, 0, v68")
        k(f"s_cbranch_vccz {k.L('ready')}")
        k("s_sleep 2")
        gather()
        k(f"s_add_u32 s{s_it}, s{s_it}, 1")
        k(f"s_cmp_lt_u32 s{s_it}, 0x2000")
        k(f"s_cbranch_scc1 {k.L('poll')}")
        k("s_waitcnt vmcnt(0)")
        k.label(k.L("ready"))
        k.stamp(6)
        k("v_add_f32 v33, v34, v38")
        for i in range(1, 8):
            k(f"v_add_f32 v32, v32, v{32 + 4*i}")
            if i > 1: k(f"v_add_f32 v33, v33, v{34 + 4*i}")
        k(f"s_cmp_lt_u32 s{s_nb}, 5")
        k(f"s_cselect_b32 s{s_t0}, {f32(math.log2(math.e) / math.sqrt(DH))}, 1.0")
        k(f"v_mul_f32 v65, s{s_t0}, v66")
        k(f"s_lshl_b32 s{s_t1}, s{s_w}, 7"); k(f"s_add_u32 s{s_t1}, s{s_t1}, {SB}")
        k(f"v_lshl_add_u32 v{vt[0]}, v{v_t}, 2, s{s_t1}")
        k(f"ds_write2_b32 v{vt[0]}, v64, v65 offset0:0 offset1:128")
        for sw in ("v_permlane32_swap_b32", "v_permlane16_swap_b32"):
            k("v_mov_b32 v34, v32"); k("v_mov_b32 v35, v33")
            k(f"{sw} v32, v34"); k(f"{sw} v33, v35")
            k("v_add_f32 v32, v32, v34"); k("v_add_f32 v33, v33, v35")
        k(f"v_lshl_add_u32 v{vt[1]}, v{vt[5]}, 3, s{s_t1}")
        k(f"ds_write_b64 v{vt[1]}, v[32:33] offset:1024")
        k("s_waitcnt lgkmcnt(0)")
        k("s_barrier")
    else:
        lloop("", 8)
        for l in dma_stage(): k(l)
        PS = 32
        k(f"s_lshl_b32 s{s_t0}, s{s_mb}, 7"); k(f"s_lshl_b32 s{s_t1}, s{s_w}, 5"); k(f"s_add_u32 s{s_t0}, s{s_t0}, s{s_t1}")
        k(f"v_add_lshl_u32 v{vt[2]}, v{v_t}, s{s_t0}, 3")
        k(f"v_mul_u32_u24 v{vt[1]}, {5 * 16384}, v{v_h}")
        k(f"v_add_u32 v{vt[2]}, v{vt[2]}, v{vt[1]}")
        for i in range(5):
            k(f"s_mov_b32 s{s_t0}, {HS_OFF + i * 16384}")
            k(f"buffer_load_dwordx2 {vr(PS + 2*i, 2)}, v{vt[2]}, s[{sW}:{sW+3}], s{s_t0} offen")
        k(f"s_lshl_b32 s{s_t0}, s{s_nb}, 10"); k(f"s_lshl_b32 s{s_t1}, s{s_w}, 8"); k(f"s_add_u32 s{s_t0}, s{s_t0}, s{s_t1}")
        k(f"s_add_u32 s{s_t0}, s{s_t0}, {C1_OFF}")
        k(f"s_add_u32 m0, s{s_t1}, {SB + 1024}")
        k(f"v_lshlrev_b32 v{vt[3]}, 2, v{v_lane}")
        k(f"buffer_load_dword v{vt[3]}, s[{sW}:{sW+3}], s{s_t0} offen lds")
        lstep(14, False)
        lstep(6, False)
        k("s_waitcnt vmcnt(0)")
        for i in range(1, 5):
            k(f"v_add_f32 v{PS}, v{PS}, v{PS + 2*i}"); k(f"v_add_f32 v{PS+1}, v{PS+1}, v{PS + 2*i + 1}")
        k(f"v_mov_b32 v{PS+2}, v{PS}"); k(f"v_mov_b32 v{PS+3}, v{PS+1}")
        k(f"v_permlane32_swap_b32 v{PS}, v{PS+2}"); k(f"v_permlane32_swap_b32 v{PS+1}, v{PS+3}")
        k(f"v_add_f32 v{PS}, v{PS}, v{PS+2}"); k(f"v_add_f32 v{PS+1}, v{PS+1}, v{PS+3}")
        rowstat_math(k, PS, PS + 1, 44, 45, PS + 2, True)
        k(f"s_lshl_b32 s{s_t1}, s{s_w}, 7"); k(f"s_add_u32 s{s_t1}, s{s_t1}, {SB}")
        k(f"v_lshl_add_u32 v{vt[3]}, v{v_t}, 2, s{s_t1}")
        k(f"ds_write_b32 v{vt[3]}, v44")
        k(f"ds_write_b32 v{vt[3]}, v45 offset:512")
        k("s_waitcnt lgkmcnt(0)")
        k("s_barrier")
    if not qkv: k.stamp(3); k.stamp(4); k.stamp(5); k.stamp(6)
    k.dump(kidx, 9, s_wid, WSL)
    k("s_endpgm")
    k.label(k.L("compute"))
    if qkv:
        k(f"s_or_b32 s{s_t0}, s2, s{s_w}")
        k(f"s_cbranch_scc1 {k.L('notag')}")
        k("s_memrealtime s[44:45]")
        k("s_waitcnt lgkmcnt(0)")
        srd(k, sBi, 40, 41, 256)
        if "gate" in X: k(f"v_mov_b32 v{vt[2]}, s{86 if 'early' in X else 44}")
        k("s_mul_i32 s44, s44, 0x9e3779b1"); k("s_or_b32 s44, s44, 1")
        k(f"v_mov_b32 v{vt[0]}, 0"); k(f"v_mov_b32 v{vt[1]}, s44")
        k("s_mov_b64 exec, 1")
        k(f"buffer_store_dword v{vt[1]}, v{vt[0]}, s[{sBi}:{sBi+3}], 0 offen sc1")
        srd(k, sW, WSL, WSL + 1, WS_END)
        k(f"s_mov_b32 s{s_t0}, {TAG_OFF}")
        k(f"buffer_store_dword v{vt[1]}, v{vt[0]}, s[{sW}:{sW+3}], s{s_t0} offen sc1")
        if "gate" in X: k(f"buffer_store_dword v{vt[2]}, v{vt[0]}, s[{sW}:{sW+3}], s{s_t0} offen offset:4 sc1")
        k("s_mov_b64 exec, -1")
        k.label(k.L("notag"))
        if "nocpf" not in X:
            k(f"s_cmp_lg_u32 s{s_w}, 1"); k(f"s_cbranch_scc1 {k.L('nocpf')}")
            code_prefetch(k, "qkv_kernel", sB, s_t0, vt[0], 14, v_lane)
            k.label(k.L("nocpf"))
        k(f"s_cmp_ge_u32 s{s_nb}, 15"); k(f"s_cbranch_scc1 {k.L('aux')}")
    k(f"s_lshr_b32 s{s_wm}, s{s_w}, 1"); k(f"s_and_b32 s{s_wn}, s{s_w}, 1")
    k(f"s_mov_b32 s34, {SLOT}")
    if qkv:
        k(f"v_bfe_u32 v{vt[0]}, v{v_t}, 1, 3")
        k(f"v_xor_b32 v{vt[0]}, v{vt[0]}, v{v_h}")
        k(f"s_lshl_b32 s{s_t0}, s{s_wm}, 13")
        k(f"v_lshl_add_u32 v{vt[1]}, v{v_t}, 7, s{s_t0}")
        for ks in range(4):
            k(f"v_xor_b32 v{vt[2]}, {2*ks}, v{vt[0]}")
            k(f"v_lshl_add_u32 v{vAr[ks]}, v{vt[2]}, 4, v{vt[1]}")
        def a_read(dst, ks, mt): return f"ds_read_b128 {vr(dst,4)}, v{vAr[ks]} offset:{mt*4096}"
        def a_upd(ks): return [vAr[ks]]
    else:
        k(f"s_lshl_b32 s{s_t0}, s{s_wm}, 10")
        k(f"v_lshl_add_u32 v{vt[0]}, v{v_t}, 4, s{s_t0}")
        k(f"v_lshl_add_u32 v{vAr[0]}, v{v_h}, 11, v{vt[0]}")
        def a_read(dst, ks, mt): return f"ds_read_b128 {vr(dst,4)}, v{vAr[0]} offset:{ks*4096 + mt*512}"
        def a_upd(ks): return [vAr[0]] if ks == 0 else []
    k(f"v_bfe_u32 v{vt[0]}, v{v_lane}, 2, 2")
    k(f"v_lshl_add_u32 v{vt[1]}, v{v_h}, 3, v{vt[0]}")
    k(f"v_lshlrev_b32 v{vt[1]}, 8, v{vt[1]}")
    k(f"v_bfe_u32 v{vt[2]}, v{v_lane}, 4, 1")
    k(f"v_lshl_add_u32 v{vt[1]}, v{vt[2]}, 5, v{vt[1]}")
    k(f"v_and_b32 v{vt[2]}, 3, v{v_lane}")
    k(f"v_lshl_add_u32 v{vt[1]}, v{vt[2]}, 3, v{vt[1]}")
    k(f"v_add_u32 v{vt[1]}, 16384, v{vt[1]}")
    k(f"s_lshl_b32 s{s_t0}, s{s_wn}, 1")
    k(f"v_xor_b32 v{vt[2]}, s{s_t0}, v{vt[0]}")
    k(f"v_lshl_add_u32 v{vBr[0]}, v{vt[2]}, 6, v{vt[1]}")
    k(f"v_xor_b32 v{vBr[1]}, 64, v{vBr[0]}")
    def b_read(dst, ks, nt, e): return f"ds_read_b64_tr_b16 {vr(dst + 2*e, 2)}, v{vBr[nt]} offset:{ks*4096 + e*1024}"
    for r in range(64): k(f"v_mov_b32 v{ACC + r}, 0")
    k(f"s_mov_b32 s{s_it}, 0"); k(f"s_mov_b32 s{s_slot}, 0")
    k("s_waitcnt lgkmcnt(0)")
    srd(k, sW, WSL, WSL + 1, WS_END)

    def reads(ks):
        return [a_read(FA[ks][0], ks, 0), b_read(FB[ks][0], ks, 0, 0), b_read(FB[ks][0], ks, 0, 1),
                b_read(FB[ks][1], ks, 1, 0), b_read(FB[ks][1], ks, 1, 1), a_read(FA[ks][1], ks, 1)]
    k.stamp(2)
    k("s_waitcnt lgkmcnt(0)")
    k("s_barrier")
    k.stamp(3)
    if K.prof: k("s_waitcnt lgkmcnt(0)")
    for l in reads(0) + reads(1): k(l)

    def mainloop(tag, vorient):
        k.label(k.L("loop" + tag))
        for ks in range(4):
            mf = []
            for mt in range(2):
                for nt in range(2):
                    a, b = FA[ks][mt], FB[ks][nt]
                    s0, s1 = (a, b) if vorient else (b, a)
                    mf.append(f"v_mfma_f32_32x32x16_bf16 {vr(acc(mt,nt),16)}, {vr(s0,4)}, {vr(s1,4)}, {vr(acc(mt,nt),16)}")
            pre = []
            if ks == 2:
                k("s_barrier")
                pre += [f"s_add_u32 s{s_slot}, s{s_slot}, 1", f"s_and_b32 s{s_slot}, s{s_slot}, {NS - 1}",
                        f"s_cselect_b32 s{s_delta}, s34, {(-(NS - 1) * SLOT) & 0xffffffff:#x}"]
                pre += [f"v_add_u32 v{a}, s{s_delta}, v{a}" for a in vBr]
            nk = (ks + 2) % 4
            if ks >= 2:
                pre += [f"v_add_u32 v{a}, s{s_delta}, v{a}" for a in a_upd(nk)]
            post = []
            if ks == 3:
                post = [f"v_add_u32 v{a}, s{s_delta}, v{a}" for a in a_upd(2) + a_upd(3)]
                post += [f"s_add_u32 s{s_it}, s{s_it}, 1", f"s_cmp_lt_u32 s{s_it}, {NST}"]
            rd = reads(nk)
            k("s_waitcnt lgkmcnt(6)")
            seq = [mf[0]] + pre + rd[0:2] + [mf[1]] + rd[2:4] + [mf[2]] + rd[4:6] + post + [mf[3]]
            for l in seq: k(l)
        k(f"s_cbranch_scc1 {k.L('loop' + tag)}")
        k.stamp(4)

    def epi_nm():
        MR = [28, 30]
        CS = EP; B1 = EP + 32
        k(f"s_lshl_b32 s{s_t0}, s{s_wm}, 8"); k(f"s_add_u32 s{s_t0}, s{s_t0}, {SB}")
        k(f"v_lshl_add_u32 v{vt[4]}, v{v_t}, 2, s{s_t0}")
        for mt in range(2):
            k(f"ds_read2_b32 {vr(MR[mt],2)}, v{vt[4]} offset0:{mt*32} offset1:{128 + mt*32}")
        k(f"s_lshl_b32 s{s_t0}, s{s_wn}, 8"); k(f"s_add_u32 s{s_t0}, s{s_t0}, {SB}")
        k(f"v_lshl_add_u32 v{vt[0]}, v{v_h}, 4, s{s_t0}")
        for nt in range(2):
            for rq in range(4):
                k(f"ds_read_b128 {vr(CS + nt*16 + rq*4, 4)}, v{vt[0]} offset:{1024 + nt*128 + rq*32}")
            if not qkv:
                for rq in range(4):
                    k(f"ds_read_b128 {vr(B1 + nt*16 + rq*4, 4)}, v{vt[0]} offset:{1536 + nt*128 + rq*32}")
        OFF = QK_OFF if qkv else G_OFF
        k(f"s_lshl_b32 s{s_t0}, s{s_nb}, 4"); k(f"s_lshl_b32 s{s_t1}, s{s_wn}, 3"); k(f"s_add_u32 s{s_t0}, s{s_t0}, s{s_t1}")
        k(f"v_add_lshl_u32 v{vt[2]}, v{v_h}, s{s_t0}, 15")
        k(f"s_lshl_b32 s{s_t0}, s{s_mb}, 7"); k(f"s_lshl_b32 s{s_t1}, s{s_wm}, 6"); k(f"s_add_u32 s{s_t0}, s{s_t0}, s{s_t1}")
        k(f"v_add_u32 v{vt[3]}, s{s_t0}, v{v_t}")
        k(f"v_lshl_add_u32 v{vt[2]}, v{vt[3]}, 4, v{vt[2]}")
        so = 46
        for c in range(4): k(f"s_mov_b32 s{so + c}, {OFF + 2*c*CH}")
        if not qkv:
            C0 = -2.0 * math.log2(math.e) * math.sqrt(2.0 / math.pi)
            k(f"s_mov_b32 s44, {f32(C0 * 0.044715)}"); k(f"s_mov_b32 s45, {f32(C0 * 0.044715)}")
            k(f"v_mov_b32 v{vt[4]}, {f32(C0)}"); k(f"v_mov_b32 v{vt[5]}, {f32(C0)}")
        k("s_waitcnt lgkmcnt(0)")
        T = EP + 64
        n_st = 0
        for nt in range(2):
            for mt in range(2):
                a = acc(mt, nt); mr = MR[mt]
                for p in range(8):
                    x = vr(a + 2*p, 2)
                    k(f"v_pk_fma_f32 {x}, {vr(CS + nt*16 + 2*p, 2)}, {vr(mr,2)}, {x} op_sel_hi:[1,0,1]")
                for p in range(8):
                    x = vr(a + 2*p, 2)
                    if qkv:
                        k(f"v_pk_mul_f32 {x}, {x}, {vr(mr,2)} op_sel:[0,1] op_sel_hi:[1,1]")
                    else:
                        k(f"v_pk_fma_f32 {x}, {x}, {vr(mr,2)}, {vr(B1 + nt*16 + 2*p, 2)} op_sel:[0,1,0] op_sel_hi:[1,1,1]")
                if not qkv:
                    for p in range(8):
                        x = vr(a + 2*p, 2); t = vr(T + 2*p, 2)
                        k(f"v_pk_mul_f32 {t}, {x}, {x}")
                    for p in range(8):
                        t = vr(T + 2*p, 2)
                        k(f"v_pk_fma_f32 {t}, {t}, s[44:45], {vr(vt[4],2)}")
                    for p in range(8):
                        x = vr(a + 2*p, 2); t = vr(T + 2*p, 2)
                        k(f"v_pk_mul_f32 {t}, {t}, {x}")
                    for r in range(16): k(f"v_exp_f32 v{T + r}, v{T + r}")
                    for p in range(8):
                        t = vr(T + 2*p, 2)
                        k(f"v_pk_add_f32 {t}, {t}, 1.0 op_sel_hi:[1,0]")
                    for r in range(16): k(f"v_rcp_f32 v{T + r}, v{T + r}")
                    for p in range(8):
                        x = vr(a + 2*p, 2); t = vr(T + 2*p, 2)
                        k(f"v_pk_mul_f32 {x}, {x}, {t}")
                Pk = T + 16 + (n_st % 2) * 8
                for p in range(8):
                    k(f"v_cvt_pk_bf16_f32 v{Pk + p}, v{a + 2*p}, v{a + 2*p + 1}")
                for pq in range(2):
                    b = Pk + 4*pq
                    k(f"v_permlane32_swap_b32 v{b}, v{b+2}")
                    k(f"v_permlane32_swap_b32 v{b+1}, v{b+3}")
                for pq in range(2):
                    b = Pk + 4*pq
                    k(f"buffer_store_dwordx4 {vr(b,4)}, v{vt[2]}, s[{sW}:{sW+3}], s{so + nt*2 + pq} offen offset:{mt*512} sc1")
                n_st += 1

    def epi_v():
        NM = EP; RS = EP + 32; CSV = [28, 30]
        k(f"s_lshl_b32 s{s_t0}, s{s_wm}, 8"); k(f"s_add_u32 s{s_t0}, s{s_t0}, {SB}")
        k(f"v_lshl_add_u32 v{vt[0]}, v{v_h}, 4, s{s_t0}")
        k(f"s_lshl_b32 s{s_t0}, s{s_wn}, 8"); k(f"s_add_u32 s{s_t0}, s{s_t0}, {SB}")
        k(f"v_lshl_add_u32 v{vt[1]}, v{v_t}, 2, s{s_t0}")
        for nt in range(2):
            k(f"ds_read_b32 v{CSV[nt]}, v{vt[1]} offset:{1024 + nt*128}")
        for mt in range(2):
            for rq in range(4):
                k(f"ds_read_b128 {vr(NM + mt*16 + rq*4, 4)}, v{vt[0]} offset:{mt*128 + rq*32}")
                k(f"ds_read_b128 {vr(RS + mt*16 + rq*4, 4)}, v{vt[0]} offset:{512 + mt*128 + rq*32}")
        k(f"s_lshl_b32 s{s_t0}, s{s_mb}, 1"); k(f"s_add_u32 s{s_t0}, s{s_t0}, s{s_wm}"); k(f"s_mul_i32 s{s_t0}, s{s_t0}, 2560")
        k(f"s_lshl_b32 s{s_t1}, s{s_nb}, 7"); k(f"s_add_u32 s{s_t0}, s{s_t0}, s{s_t1}"); k(f"s_sub_u32 s{s_t0}, s{s_t0}, 1280")
        k(f"s_lshl_b32 s{s_t1}, s{s_wn}, 6"); k(f"s_add_u32 s{s_t0}, s{s_t0}, s{s_t1}")
        k(f"v_add_lshl_u32 v{vt[2]}, v{v_t}, s{s_t0}, 5")
        k(f"v_lshl_add_u32 v{vt[2]}, v{v_h}, 4, v{vt[2]}")
        so = 46
        for c in range(4): k(f"s_mov_b32 s{so + c}, {V_OFF + c * 640 * 32}")
        k("s_waitcnt lgkmcnt(0)")
        T = EP + 64; n_st = 0
        for mt in range(2):
            for nt in range(2):
                a = acc(mt, nt)
                for p in range(8):
                    x = vr(a + 2*p, 2)
                    k(f"v_pk_fma_f32 {x}, {vr(NM + mt*16 + 2*p, 2)}, {vr(CSV[nt],2)}, {x} op_sel_hi:[1,0,1]")
                for p in range(8):
                    x = vr(a + 2*p, 2)
                    k(f"v_pk_mul_f32 {x}, {x}, {vr(RS + mt*16 + 2*p, 2)}")
                Pk = T + (n_st % 2) * 8
                for p in range(8):
                    k(f"v_cvt_pk_bf16_f32 v{Pk + p}, v{a + 2*p}, v{a + 2*p + 1}")
                for jj in range(2):
                    k(f"buffer_store_dwordx4 {vr(Pk + 4*jj, 4)}, v{vt[2]}, s[{sW}:{sW+3}], s{so + mt*2 + jj} offen offset:{nt*1024} sc1")
                n_st += 1

    if qkv:
        k(f"s_cmp_ge_u32 s{s_nb}, 10")
        k(f"s_cbranch_scc1 {k.L('loopv')}")
        mainloop("q", False); k.stamp(5); epi_nm(); k.stamp(6); k.dump(0, 9, s_wid, WSL)
        k("s_endpgm")
        mainloop("v", True); k.stamp(5); epi_v(); k.stamp(6); k.dump(0, 9, s_wid, WSL)
        k("s_endpgm")
        k.label(k.L("auxl"))
        k(f"s_cmp_ge_u32 s{s_w}, 2"); k(f"s_cbranch_scc1 {k.L('aux')}")
        slice_addr_rows()
        k("s_waitcnt lgkmcnt(0)")
        srd(k, sA, 36, 37, S * D * 2); srd(k, sW, WSL, WSL + 1, WS_END); srd(k, sBi, 40, 41, 256)
        slice_load_rows()
        k("s_waitcnt vmcnt(0)")
        tag_load()
        slice_rows(0)
        k("s_waitcnt vmcnt(0)")
        tag_wait("x")
        slice_rows(1)
        k.label(k.L("aux"))
        k("s_load_dwordx4 s[44:47], s[0:1], 32")
        k(f"v_lshrrev_b32 v{vt[0]}, 4, v{v_lane}")
        k(f"v_and_b32 v{vt[1]}, 15, v{v_lane}")
        k(f"v_mul_u32_u24 v{vt[2]}, {F * 2}, v{vt[0]}")
        k(f"v_lshl_add_u32 v{vt[2]}, v{vt[1]}, 4, v{vt[2]}")
        k(f"v_lshlrev_b32 v{vt[3]}, 1, v0")
        k("s_waitcnt lgkmcnt(0)")
        srd(k, sW, WSL, WSL + 1, WS_END)
        k(f"s_cmp_ge_u32 s{s_mb}, 14"); k(f"s_cbranch_scc1 {k.L('end')}")
        srd(k, sB, 44, 45, D * F * 2); srd(k, sA, 46, 47, F * 2)
        k(f"s_mul_i32 s{s_t0}, s{s_wid}, {80 * F * 2}"); k(f"s_lshl_b32 s{s_t1}, s{s_mb}, 8"); k(f"s_add_u32 s{s_t0}, s{s_t0}, s{s_t1}")
        k(f"buffer_load_ushort v{v_b1}, v{vt[3]}, s[{sA}:{sA+3}], s{s_t1} offen")
        for i in range(20):
            k(f"buffer_load_dwordx4 {vr(40 + 4*i, 4)}, v{vt[2]}, s[{sB}:{sB+3}], s{s_t0} offen")
            k(f"s_add_u32 s{s_t0}, s{s_t0}, {4 * F * 2}")
        for r in range(8): k(f"v_mov_b32 v{24 + r}, 0")
        for i in range(20):
            k(f"s_waitcnt vmcnt({19 - i})")
            for r in range(4):
                k(f"v_lshlrev_b32 v{32 + 2*r}, 16, v{40 + 4*i + r}")
                k(f"v_and_b32 v{33 + 2*r}, 0xffff0000, v{40 + 4*i + r}")
            for r in range(4):
                k(f"v_pk_add_f32 {vr(24 + 2*r, 2)}, {vr(24 + 2*r, 2)}, {vr(32 + 2*r, 2)}")
        k(f"v_lshlrev_b32 v{vt[0]}, 5, v0")
        k(f"ds_write_b128 v{vt[0]}, v[24:27]")
        k(f"ds_write_b128 v{vt[0]}, v[28:31] offset:16")
        k("s_waitcnt lgkmcnt(0)")
        k("s_barrier")
        k(f"s_cmp_ge_u32 s{s_wid}, 2"); k(f"s_cbranch_scc1 {k.L('end')}")
        k(f"v_lshlrev_b32 v{vt[0]}, 2, v0")
        for i in range(32):
            k(f"ds_read_b32 v{40 + i}, v{vt[0]} offset:{i * 512}")
            if i % 8 == 7: k("s_waitcnt lgkmcnt(0)")
        for i in range(1, 32): k(f"v_add_f32 v40, v40, v{40 + i}")
        k(f"v_lshlrev_b32 v{v_b1}, 16, v{v_b1}")
        k(f"s_lshl_b32 s{s_t0}, s{s_mb}, 10"); k(f"s_add_u32 s{s_t0}, s{s_t0}, {C1_OFF}"); k(f"s_add_u32 s{s_t1}, s{s_t0}, 512")
        k(f"buffer_store_dword v40, v{vt[0]}, s[{sW}:{sW+3}], s{s_t0} offen")
        k(f"buffer_store_dword v{v_b1}, v{vt[0]}, s[{sW}:{sW+3}], s{s_t1} offen")
    else:
        mainloop("q", False)
        k(f"s_cmp_eq_u32 s{s_nb}, 13"); k(f"s_cselect_b32 s{s_t0}, s{s_wn}, 0")
        k(f"s_cmp_ge_u32 s{s_t0}, 1"); k(f"s_cbranch_scc1 {k.L('end')}")
        k.stamp(5); epi_nm(); k.stamp(6); k.dump(3, 9, s_wid, WSL)
    k.label(k.L("end"))
    k("s_endpgm")
    return k, EP + 64 + 32, NS * SLOT + 2048

def attn():
    k = K("attn")
    sW = 4; sP1 = 8; sP2 = 12
    s_hd, s_qb, s_w, s_qs, s_kh, s_t0, s_t1, s_it = 20, 21, 22, 23, 24, 25, 26, 27
    s_ko, s_vo, s_odd = 28, 29, 30
    s_vm = 32
    s_lo = 34
    s_c = 36
    v_lane, v_t, v_h = 1, 2, 3
    vK1, vK2, vV0, vV1 = 4, 5, 6, 7
    vt = [8, 9, 10, 11, 12, 13, 14, 15]
    vm = [16, 17]
    v_pfa, v_pfb, v_pf, v_pfc = 18, 19, 200, 202
    Q1 = [20, 24]; Q2 = [28, 30]
    NBUF = 4
    K1 = [32, 36, 40, 44]; K2 = [48, 50, 52, 54]
    VB = [56, 64, 72, 80]
    C = [88, 104]; Sx = [120, 136]; P = [152, 160]; O = [168, 184]
    NV = 203
    if "g1" in X: gate(k, 20)
    k.stamp(0); k.stamp(1, True)
    k("s_cmp_ge_u32 s2, 256"); k(f"s_cbranch_scc1 {k.L('end')}")
    k("s_load_dwordx2 s[40:41], s[0:1], 80")
    k("s_load_dwordx2 s[44:45], s[0:1], 16")
    k("s_load_dwordx2 s[46:47], s[0:1], 32")
    k("s_load_dwordx2 s[38:39], s[0:1], 48")
    k(f"v_lshrrev_b32 v{vt[0]}, 6, v0")
    k(f"v_and_b32 v{v_t}, 31, v0")
    k(f"v_readfirstlane_b32 s{s_w}, v{vt[0]}")
    k(f"v_bfe_u32 v{v_h}, v0, 5, 1")
    k(f"s_and_b32 s{s_hd}, s2, 7"); k(f"s_lshl_b32 s{s_hd}, s{s_hd}, 2")
    k(f"s_bfe_u32 s{s_t0}, s2, 0x20003"); k(f"s_add_u32 s{s_hd}, s{s_hd}, s{s_t0}")
    k(f"s_lshr_b32 s{s_qb}, s2, 5")
    k(f"s_and_b32 s{s_qs}, s{s_w}, 3"); k(f"s_lshr_b32 s{s_kh}, s{s_w}, 2")
    if "noprio" not in X:
        k(f"s_cmp_eq_u32 s{s_kh}, 0"); k(f"s_cbranch_scc1 {k.L('np')}")
        k("s_setprio 1")
        k.label(k.L("np"))
    k(f"s_and_b32 s{s_odd}, s{s_hd}, 1")
    k(f"s_mov_b32 s{s_lo}, -1"); k(f"s_mov_b32 s{s_lo+1}, 0")
    k(f"s_lshr_b32 s{s_t0}, s{s_hd}, 1"); k(f"s_mul_i32 s{s_t0}, s{s_t0}, 5")
    k(f"s_mul_i32 s{s_t1}, s{s_odd}, 3"); k(f"s_add_u32 s{s_t1}, s{s_t1}, s{s_t0}")
    k(f"v_add_lshl_u32 v{vK1}, v{v_h}, s{s_t1}, 15")
    k(f"v_lshl_add_u32 v{vK1}, v{v_t}, 4, v{vK1}")
    k(f"s_add_u32 s{s_t0}, s{s_t0}, 2"); k(f"s_lshl_b32 s{s_t0}, s{s_t0}, 15")
    k(f"s_lshl_b32 s{s_t1}, s{s_odd}, 3"); k(f"s_add_u32 s{s_t0}, s{s_t0}, s{s_t1}")
    k(f"v_lshl_add_u32 v{vK2}, v{v_t}, 4, s{s_t0}")
    k(f"s_lshl_b32 s{s_ko}, s{s_kh}, 14"); k(f"s_add_u32 s{s_ko}, s{s_ko}, {QK_OFF + 80 * CH}")
    k(f"s_lshl_b32 s{s_t0}, s{s_qb}, 12"); k(f"s_lshl_b32 s{s_t1}, s{s_qs}, 10"); k(f"s_add_u32 s{s_t0}, s{s_t0}, s{s_t1}")
    for qt in range(2):
        k(f"v_mov_b32 v{Q2[qt]}, 0"); k(f"v_mov_b32 v{Q2[qt]+1}, 0")
    k(f"s_mov_b32 s42, s{s_ko}")
    k("s_waitcnt lgkmcnt(0)")
    srd(k, sW, 40, 41, WS_END)
    W = f"s[{sW}:{sW+3}]"
    def kload(b):
        return [f"buffer_load_dwordx4 {vr(K1[b],4)}, v{vK1}, {W}, s{s_ko} offen",
                f"buffer_load_dwordx2 {vr(K2[b],2)}, v{vK2}, {W}, s{s_ko} offen",
                f"s_add_u32 s{s_ko}, s{s_ko}, 512"]
    def vload(b):
        return [f"s_mov_b64 exec, s[{s_vm}:{s_vm+1}]",
                f"buffer_load_dwordx4 {vr(VB[b],4)}, v{vV0}, {W}, s{s_vo} offen",
                f"buffer_load_dwordx4 {vr(VB[b]+4,4)}, v{vV1}, {W}, s{s_vo} offen",
                f"s_mov_b64 exec, -1",
                f"s_add_u32 s{s_vo}, s{s_vo}, {1280 * 32}"]
    for l in kload(0): k(l)
    for qt in range(2):
        k(f"buffer_load_dwordx4 {vr(Q1[qt],4)}, v{vK1}, {W}, s{s_t0} offen offset:{qt*512}")
    k(f"s_mov_b64 exec, s[{s_lo}:{s_lo+1}]")
    for qt in range(2):
        k(f"buffer_load_dwordx2 {vr(Q2[qt],2)}, v{vK2}, {W}, s{s_t0} offen offset:{qt*512}")
    k("s_mov_b64 exec, -1")
    for l in kload(1): k(l)
    k(f"v_and_b32 v{v_lane}, 63, v0")
    k(f"s_mov_b32 s{s_vm}, 0xfffff"); k(f"s_mov_b32 s{s_vm+1}, 0xfffff")
    k(f"v_add_u32 v{vt[0]}, 4, v{v_t}")
    k(f"v_subrev_u32 v{vt[1]}, 16, v{v_t}")
    k(f"v_cmp_gt_u32 vcc, 16, v{v_t}")
    k(f"v_cndmask_b32 v{vt[0]}, v{vt[1]}, v{vt[0]}, vcc")
    k(f"s_cmp_eq_u32 s{s_odd}, 1")
    k(f"s_cselect_b64 vcc, -1, 0")
    k(f"v_cndmask_b32 v{vt[0]}, v{v_t}, v{vt[0]}, vcc")
    k(f"s_mul_i32 s{s_t0}, s{s_hd}, 20")
    k(f"v_add_lshl_u32 v{vV0}, v{vt[0]}, s{s_t0}, 5")
    k(f"v_lshl_add_u32 v{vV0}, v{v_h}, 4, v{vV0}")
    k(f"v_add_u32 v{vV1}, {640 * 32}, v{vV0}")
    k(f"s_mul_i32 s{s_vo}, s{s_kh}, {32 * 1280 * 32}"); k(f"s_add_u32 s{s_vo}, s{s_vo}, {V_OFF}")
    k(f"s_mov_b32 s43, s{s_vo}")
    k(f"v_cmp_eq_u32 vcc, 20, v{v_t}")
    k(f"v_mov_b32 v{vt[1]}, 0x3f803f80")
    k(f"v_cndmask_b32 v{vt[1]}, 0, v{vt[1]}, vcc")
    for r in range(8): k(f"v_mov_b32 v{VB[0] + r}, v{vt[1]}")
    for l in vload(0): k(l)
    for b in range(1, NBUF):
        for r in range(8): k(f"v_mov_b32 v{VB[b] + r}, v{vt[1]}")
    for qt in range(2):
        for r in range(16): k(f"v_mov_b32 v{O[qt] + r}, 0")
    for r in range(8): k(f"v_mov_b32 v{P[1] + r}, 0")
    srd(k, sP1, 44, 45, D * D * 2); srd(k, sP2, 46, 47, D * F * 2)
    k(f"s_lshr_b32 s{s_t0}, s2, 3"); k(f"s_lshl_b32 s{s_t0}, s{s_t0}, 3"); k(f"s_add_u32 s{s_t0}, s{s_t0}, s{s_w}")
    k(f"s_mul_i32 s48, s{s_t0}, {26 * 128}"); k(f"s_mul_i32 s49, s{s_t0}, {68 * 128}")
    k(f"v_lshlrev_b32 v{vt[2]}, 8, v{v_lane}"); k(f"v_add_u32 v{vt[2]}, 124, v{vt[2]}")
    k(f"v_mov_b32 v{vt[3]}, 0x7ffffff0")
    k(f"v_cmp_gt_u32 vcc, 34, v{v_lane}")
    k(f"v_cndmask_b32 v{v_pfa}, v{vt[3]}, v{vt[2]}, vcc")
    k(f"v_cmp_gt_u32 vcc, 13, v{v_lane}")
    k(f"v_cndmask_b32 v{v_pfb}, v{vt[3]}, v{vt[2]}, vcc")
    srd(k, 16, 38, 39, D * F * 2)
    k(f"s_lshl_b32 s38, s2, 3"); k(f"s_add_u32 s38, s38, s{s_w}"); k(f"s_mul_i32 s38, s38, {10 * 128}")
    k(f"v_cmp_gt_u32 vcc, 5, v{v_lane}")
    k(f"v_cndmask_b32 v{v_pfc}, v{vt[3]}, v{vt[2]}, vcc")
    k(f"s_sub_u32 s50, s{s_qs}, s{s_kh}"); k(f"s_add_u32 s50, s50, 2"); k(f"s_add_u32 s51, s50, 2")
    def qk(qt, b, c):
        cc = "0" if c is None else vr(c, 16)
        return [f"v_mfma_f32_32x32x16_bf16 {vr(Sx[qt],16)}, {vr(K1[b],4)}, {vr(Q1[qt],4)}, {cc}",
                f"v_mfma_f32_32x32x8_bf16 {vr(Sx[qt],16)}, {vr(K2[b],2)}, {vr(Q2[qt],2)}, {vr(Sx[qt],16)}"]
    def pv(qt, b):
        return [f"v_mfma_f32_32x32x16_bf16 {vr(O[qt],16)}, {vr(VB[b],4)}, {vr(P[qt],4)}, {vr(O[qt],16)}",
                f"v_mfma_f32_32x32x16_bf16 {vr(O[qt],16)}, {vr(VB[b]+4,4)}, {vr(P[qt]+4,4)}, {vr(O[qt],16)}"]
    def rowmax(qt, dst, tmp):
        s = Sx[qt]
        k(f"v_max3_f32 v{dst}, v{s}, v{s+1}, v{s+2}")
        for r in range(3, 15, 2): k(f"v_max3_f32 v{dst}, v{dst}, v{s+r}, v{s+r+1}")
        k(f"v_max_f32 v{dst}, v{dst}, v{s+15}")
        k(f"v_mov_b32 v{tmp}, v{dst}")
        k(f"v_permlane32_swap_b32 v{dst}, v{tmp}")
        k(f"v_max_f32 v{dst}, v{dst}, v{tmp}")
    k.stamp(2)
    k("s_waitcnt vmcnt(4)")
    for qt in range(2):
        for l in qk(qt, 0, None): k(l)
    for l in kload(2) + vload(1) + kload(3) + vload(2): k(l)
    rowmax(0, vm[0], vt[0])
    k(f"v_sub_f32 v{vt[1]}, 0, v{vm[0]}")
    for r in range(16): k(f"v_mov_b32 v{C[0] + r}, v{vt[1]}")
    for l in qk(0, 0, C[0]): k(l)
    rowmax(1, vm[1], vt[0])
    k(f"v_sub_f32 v{vt[1]}, 0, v{vm[1]}")
    for r in range(16): k(f"v_mov_b32 v{C[1] + r}, v{vt[1]}")
    k(f"s_mov_b32 s{s_it}, 0")
    k.stamp(3)
    k("s_nop 1")

    def slot(qt, mf, extra):
        s = Sx[qt]; p = P[qt]
        for i in range(16):
            for l in extra.get(i, []): k(l)
            if i % 4 == 0: k(mf[i // 4])
            k(f"v_exp_f32 v{s+i}, v{s+i}")
            if i % 2 == 1 and i >= 3:
                k(f"v_cvt_pk_bf16_f32 v{p + (i-3)//2}, v{s+i-3}, v{s+i-2}")
        for l in extra.get(16, []): k(l)
        k(f"v_cvt_pk_bf16_f32 v{p+7}, v{s+14}, v{s+15}")
    k(f"s_cmp_eq_u32 s{s_kh}, 0")
    k(f"s_cselect_b32 s31, 99, {int(os.environ.get('PRI', '6'))}")
    k.label(k.L("loop"))
    for u in range(NBUF):
        b = u; bp = (u - 1) % NBUF; bn = (u + 1) % NBUF
        e1 = {0: ["s_waitcnt vmcnt(12)"]}
        slot(0, qk(1, b, C[1]) + pv(1, bp), {6: kload(b), 14: vload(bp)})
        slot(1, qk(0, bn, C[0]) + pv(0, b), e1)
    k(f"s_add_u32 s{s_it}, s{s_it}, 1")
    PRI = int(os.environ.get("PRI", "6"))
    k(f"s_cmp_lg_u32 s{s_it}, s31")
    k(f"s_cbranch_scc1 {k.L('noev')}")
    k("s_setprio 0")
    k.label(k.L("noev"))
    if "nowpf" not in X:
        k(f"s_cmp_lg_u32 s{s_it}, s50"); k(f"s_cbranch_scc1 {k.L('noe2')}")
        k(f"buffer_load_dwordx2 {vr(v_pf, 2)}, v{v_pfa}, s[{sP2}:{sP2+3}], s49 offen")
        k.label(k.L("noe2"))
        k(f"s_cmp_lg_u32 s{s_it}, s51"); k(f"s_cbranch_scc1 {k.L('noe3')}")
        k(f"buffer_load_dwordx2 {vr(v_pf, 2)}, v{v_pfb}, s[{sP1}:{sP1+3}], s48 offen")
        k(f"buffer_load_dwordx2 {vr(v_pf, 2)}, v{v_pfc}, s[16:19], s38 offen")
        if "nocpf" not in X:
            k(f"s_cmp_lg_u32 s{s_w}, 3"); k(f"s_cbranch_scc1 {k.L('noe3')}")
            code_prefetch(k, "oproj_kernel" if "sep" in X else "tail_kernel", 16, s_t0, vt[0], v_pf, v_lane, per=8)
        k.label(k.L("noe3"))
    k(f"s_cmp_lt_u32 s{s_it}, {32 // NBUF}")
    k(f"s_cbranch_scc1 {k.L('loop')}")
    k.stamp(4)
    for l in pv(1, NBUF - 1): k(l)
    k("s_nop 7"); k("s_nop 7")
    k(f"v_add_f32 v{vt[0]}, |v{O[0]}|, |v{O[1]}|")
    for qt in range(2):
        for r in range(1, 12):
            k(f"v_add_f32 v{vt[0]}, v{vt[0]}, |v{O[qt]+r}|")
    k(f"v_add_f32 v{vt[1]}, v{O[0]+8}, v{O[1]+8}")
    k(f"s_mov_b32 s{s_t0}, {f32(2.0**100)}")
    k(f"v_cmp_nlt_f32 s[{s_c}:{s_c+1}], v{vt[0]}, s{s_t0}")
    k(f"s_mov_b32 s{s_t0}, {f32(2.0**60)}")
    k(f"v_cmp_nlt_f32 vcc, |v{vt[1]}|, s{s_t0}")
    k(f"s_andn2_b64 vcc, vcc, s[{s_lo}:{s_lo+1}]")
    k(f"s_or_b64 s[{s_c}:{s_c+1}], s[{s_c}:{s_c+1}], vcc")
    k("s_waitcnt vmcnt(0)")
    k(f"s_cmp_eq_u64 s[{s_c}:{s_c+1}], 0")
    k(f"s_cbranch_scc1 {k.L('merge')}")
    k(f"s_mov_b32 s{s_ko}, s42"); k(f"s_mov_b32 s{s_vo}, s43")
    for qt in range(2):
        for r in range(16): k(f"v_mov_b32 v{O[qt] + r}, 0")
        k(f"v_mov_b32 v{vm[qt]}, 0xff800000")
    k(f"s_mov_b32 s{s_it}, 0")
    k.label(k.L("fb"))
    for l in kload(0) + vload(0): k(l)
    k("s_waitcnt vmcnt(0)")
    for qt in range(2):
        for l in qk(qt, 0, None): k(l)
    for qt in range(2):
        rowmax(qt, vt[2], vt[0])
        k(f"v_max_f32 v{vt[2]}, v{vt[2]}, v{vm[qt]}")
        k(f"v_sub_f32 v{vt[3]}, v{vm[qt]}, v{vt[2]}")
        k(f"v_exp_f32 v{vt[3]}, v{vt[3]}")
        k(f"v_mov_b32 v{vm[qt]}, v{vt[2]}")
        for r in range(16): k(f"v_mul_f32 v{O[qt]+r}, v{O[qt]+r}, v{vt[3]}")
        for r in range(16): k(f"v_sub_f32 v{Sx[qt]+r}, v{Sx[qt]+r}, v{vt[2]}")
        for r in range(16): k(f"v_exp_f32 v{Sx[qt]+r}, v{Sx[qt]+r}")
        for r in range(8): k(f"v_cvt_pk_bf16_f32 v{P[qt]+r}, v{Sx[qt]+2*r}, v{Sx[qt]+2*r+1}")
        for l in pv(qt, 0): k(l)
    k("s_nop 7"); k("s_nop 7")
    k(f"s_add_u32 s{s_it}, s{s_it}, 1")
    k(f"s_cmp_lt_u32 s{s_it}, 32")
    k(f"s_cbranch_scc1 {k.L('fb')}")
    k.label(k.L("merge"))
    k(f"s_cmp_eq_u32 s{s_kh}, 0")
    k(f"s_cbranch_scc1 {k.L('noswap')}")
    for r in range(12): k(f"v_swap_b32 v{O[0]+r}, v{O[1]+r}")
    k(f"v_swap_b32 v{vm[0]}, v{vm[1]}")
    k.label(k.L("noswap"))
    k(f"v_mov_b32 v{O[1]+12}, v{vm[1]}")
    k(f"s_lshl_b32 s{s_t0}, s{s_w}, 12")
    k(f"v_lshl_add_u32 v{vt[0]}, v{v_lane}, 4, s{s_t0}")
    k(f"v_xor_b32 v{vt[1]}, {4 << 12}, v{vt[0]}")
    for q in range(4): k(f"ds_write_b128 v{vt[0]}, {vr(O[1] + 4*q, 4)} offset:{q*1024}")
    k("s_waitcnt lgkmcnt(0)")
    k("s_barrier")
    k.stamp(5)
    for q in range(4): k(f"ds_read_b128 {vr(Sx[0] + 4*q, 4)}, v{vt[1]} offset:{q*1024}")
    k(f"s_lshl_b32 s{s_t0}, s{s_qb}, 12"); k(f"s_lshl_b32 s{s_t1}, s{s_qs}, 10"); k(f"s_add_u32 s{s_t0}, s{s_t0}, s{s_t1}")
    k(f"s_lshl_b32 s{s_t1}, s{s_kh}, 9"); k(f"s_add_u32 s{s_t0}, s{s_t0}, s{s_t1}"); k(f"s_add_u32 s{s_t0}, s{s_t0}, {O_OFF}")
    k("s_waitcnt lgkmcnt(0)")
    mo = Sx[0] + 12
    k(f"v_max_f32 v{vt[2]}, v{vm[0]}, v{mo}")
    k(f"v_sub_f32 v{vt[3]}, v{vm[0]}, v{vt[2]}"); k(f"v_sub_f32 v{vt[4]}, v{mo}, v{vt[2]}")
    k(f"v_exp_f32 v{vt[3]}, v{vt[3]}"); k(f"v_exp_f32 v{vt[4]}, v{vt[4]}")
    for r in range(12): k(f"v_mul_f32 v{O[0]+r}, v{O[0]+r}, v{vt[3]}")
    for r in range(12): k(f"v_fmac_f32 v{O[0]+r}, v{Sx[0]+r}, v{vt[4]}")
    k(f"v_mov_b32 v{vt[5]}, v{O[0]+8}"); k(f"v_mov_b32 v{vt[6]}, v{O[0]+8}")
    k(f"v_permlane32_swap_b32 v{vt[5]}, v{vt[6]}")
    k(f"v_rcp_f32 v{vt[6]}, v{vt[6]}")
    for r in range(12): k(f"v_mul_f32 v{O[0]+r}, v{O[0]+r}, v{vt[6]}")
    for r in range(6): k(f"v_cvt_pk_bf16_f32 v{P[0]+r}, v{O[0]+2*r}, v{O[0]+2*r+1}")
    k(f"v_permlane32_swap_b32 v{P[0]}, v{P[0]+2}")
    k(f"v_permlane32_swap_b32 v{P[0]+1}, v{P[0]+3}")
    k(f"buffer_store_dwordx4 {vr(P[0],4)}, v{vK1}, {W}, s{s_t0} offen{' sc1' if 'osc1' in X else ''}")
    k(f"s_mov_b64 exec, s[{s_lo}:{s_lo+1}]")
    k(f"buffer_store_dwordx2 {vr(P[0]+4,2)}, v{vK2}, {W}, s{s_t0} offen")
    k.stamp(6); k.dump(1, 9, s_w)
    k.label(k.L("end"))
    k("s_endpgm")
    return k, NV, 8 * 4096

def wgemm(kind):
    k = K(kind)
    op = kind == "oproj"; m1 = kind == "mlp1"; m2 = kind == "mlp2"
    KK = F if m2 else D
    NT = 4 if m1 else 2
    BROW = (F if m1 else D) * 2
    GS = 16 // NT
    GR = GS * 16
    NG = (KK + GR - 1) // GR
    NKS = KK // 16
    GB = 16384
    NSLOT = 5 if op else 8
    SB = NSLOT * GB
    A_OFF = {"oproj": O_OFF, "mlp1": H_OFF, "mlp2": G_OFF}[kind]
    sB, sW, sR, sO, sBi = 4, 8, 12, 16, 44
    s_r, s_cb, s_w, s_t0, s_t1, s_offB, s_offA, s_m0, s_it, s_wid = 20, 21, 22, 23, 24, 25, 26, 27, 28, 35
    v_lane, v_t, v_h = 1, 2, 3
    vBd = [4, 5, 6, 7]; vBr = [4, 5, 6, 7]; vA = 8; vS = 9; vO = 11
    vt = [12, 13, 14, 15]
    RES = 16; BI = 32; ACC = 48
    DIST = 6; NFB = 8; FB = ACC + 16 * NT
    LA = int(os.environ.get("LA", "14")); NFA = 16; FA = FB + NFB * 4
    NV = FA + NFA * 4
    kidx = {"oproj": 2, "mlp1": 3, "mlp2": 4}[kind]
    k.stamp(0); k.stamp(1, True)
    k(f"s_cmp_ge_u32 s2, {224 if m1 else 240}"); k(f"s_cbranch_scc1 {k.L('end')}")
    if op:
        k("s_load_dwordx2 s[36:37], s[0:1], 16")
        k("s_load_dwordx2 s[38:39], s[0:1], 0")
    elif m1:
        k("s_load_dwordx2 s[36:37], s[0:1], 32")
    else:
        k("s_load_dwordx4 s[36:39], s[0:1], 48")
        k("s_load_dwordx2 s[42:43], s[0:1], 64")
    k("s_load_dwordx2 s[40:41], s[0:1], 80")
    k(f"v_lshrrev_b32 v{vt[0]}, 6, v0")
    k(f"v_and_b32 v{v_lane}, 63, v0")
    k(f"v_readfirstlane_b32 s{s_wid}, v{vt[0]}")
    k(f"s_lshr_b32 s{s_t0}, s2, 3")
    if m1:
        k(f"s_and_b32 s{s_r}, s{s_t0}, 1"); k(f"s_lshr_b32 s{s_cb}, s{s_t0}, 1")
        k(f"s_lshl_b32 s{s_t1}, s{s_cb}, 8")
    else:
        k(f"s_mul_i32 s{s_cb}, s{s_t0}, 43"); k(f"s_lshr_b32 s{s_cb}, s{s_cb}, 7")
        k(f"s_mul_i32 s{s_t1}, s{s_cb}, 3"); k(f"s_sub_u32 s{s_r}, s{s_t0}, s{s_t1}")
        k(f"s_lshl_b32 s{s_t1}, s{s_cb}, 7")
    k(f"s_and_b32 s{s_w}, s{s_wid}, 3")
    k(f"s_cmp_lt_u32 s{s_wid}, 4")
    k(f"s_cbranch_scc1 {k.L('compute')}")
    if m1:
        k(f"v_lshrrev_b32 v{vt[0]}, 4, v{v_lane}")
        k(f"v_and_b32 v{vt[1]}, 15, v{v_lane}")
        k(f"v_lshlrev_b32 v{vt[2]}, 2, v{vt[0]}")
    else:
        k(f"v_lshrrev_b32 v{vt[0]}, 3, v{v_lane}")
        k(f"v_and_b32 v{vt[1]}, 7, v{v_lane}")
        k(f"v_bfe_u32 v{vt[2]}, v{v_lane}, 4, 1")
        k(f"v_lshlrev_b32 v{vt[2]}, 2, v{vt[2]}")
    k(f"v_xor_b32 v{vt[1]}, v{vt[1]}, v{vt[2]}")
    k(f"v_mul_u32_u24 v{vt[0]}, {BROW}, v{vt[0]}")
    k(f"v_lshl_add_u32 v{vBd[0]}, v{vt[1]}, 4, v{vt[0]}")
    for ii in range(1, 4):
        k(f"v_add_u32 v{vBd[ii]}, {ii * (GR // 16 * BROW - 1024)}, v{vBd[0]}")
    k(f"s_mul_i32 s{s_offB}, s{s_w}, {GR // 4 * BROW}"); k(f"s_add_u32 s{s_offB}, s{s_offB}, s{s_t1}")
    k(f"s_lshl_b32 s{s_m0}, s{s_w}, 12")
    k(f"s_mov_b32 s{s_it}, 0")
    k("s_waitcnt lgkmcnt(0)")
    srd(k, sB, 36, 37, D * F * 2 if not op else D * D * 2)
    def issue():
        r = [f"s_mov_b32 m0, s{s_m0}", f"s_add_u32 s{s_m0}, s{s_m0}, {GB}"]
        for ii in range(4):
            r.append(f"buffer_load_dwordx4 v{vBd[ii]}, s[{sB}:{sB+3}], s{s_offB} offen offset:{ii*1024} lds")
        r.append(f"s_add_u32 s{s_offB}, s{s_offB}, {GR * BROW}")
        if not op: r.append(f"s_and_b32 s{s_m0}, s{s_m0}, {NSLOT * GB - 1}")
        return r
    k.stamp(2)
    for l in issue() + issue(): k(l)
    k.label(k.L("lloop"))
    for l in issue(): k(l)
    k("s_waitcnt vmcnt(8)")
    k("s_barrier")
    k(f"s_add_u32 s{s_it}, s{s_it}, 1")
    k(f"s_cmp_lt_u32 s{s_it}, {NG - 2}")
    k(f"s_cbranch_scc1 {k.L('lloop')}")
    ex = 0
    if m1:
        srd(k, sW, 40, 41, WS_END)
        k(f"s_lshl_b32 s{s_t0}, s{s_cb}, 10"); k(f"s_lshl_b32 s{s_t1}, s{s_w}, 8"); k(f"s_add_u32 s{s_t0}, s{s_t0}, s{s_t1}")
        k(f"s_add_u32 s{s_t0}, s{s_t0}, {C1_OFF}")
        k(f"s_add_u32 m0, s{s_t1}, {SB}")
        k(f"v_lshlrev_b32 v{vt[3]}, 2, v{v_lane}")
        k(f"buffer_load_dword v{vt[3]}, s[{sW}:{sW+3}], s{s_t0} offen lds")
        ex = 1
    k(f"s_waitcnt vmcnt({4 + ex})"); k("s_barrier")
    k(f"s_waitcnt vmcnt({ex})"); k("s_barrier")
    if m1:
        k("s_waitcnt vmcnt(0)"); k("s_barrier")
    k.stamp(3); k.stamp(4); k.stamp(5); k.stamp(6); k.dump(kidx, 9, s_wid)
    k("s_endpgm")
    k.label(k.L("compute"))
    if m1:
        k(f"s_lshl_b32 s{s_t0}, s{s_r}, 2"); k(f"s_add_u32 s{s_t0}, s{s_t0}, s{s_w}")
    else:
        k(f"s_cmp_eq_u32 s{s_w}, 3"); k(f"s_cbranch_scc1 {k.L('end')}")
        k(f"s_mul_i32 s{s_t0}, s{s_r}, 3"); k(f"s_add_u32 s{s_t0}, s{s_t0}, s{s_w}")
        k(f"s_cmp_ge_u32 s{s_t0}, 8"); k(f"s_cbranch_scc1 {k.L('end')}")
    k(f"s_and_b32 s{s_it}, s2, 7"); k(f"s_lshl_b32 s{s_it}, s{s_it}, 3"); k(f"s_add_u32 s{s_t0}, s{s_t0}, s{s_it}")
    k(f"s_lshl_b32 s{s_t0}, s{s_t0}, 5")
    k(f"v_and_b32 v{v_t}, 31, v0")
    k(f"v_bfe_u32 v{v_h}, v0, 5, 1")
    k(f"v_add_u32 v{vt[0]}, s{s_t0}, v{v_t}")
    k(f"v_lshlrev_b32 v{vA}, 15, v{v_h}")
    k(f"v_lshl_add_u32 v{vA}, v{vt[0]}, 4, v{vA}")
    k(f"s_mov_b32 s{s_offA}, {A_OFF}")
    k("s_waitcnt lgkmcnt(0)")
    srd(k, sW, 40, 41, WS_END)
    def aload(i):
        return [f"buffer_load_dwordx4 {vr(FA + (i % NFA) * 4, 4)}, v{vA}, s[{sW}:{sW+3}], s{s_offA} offen",
                f"s_add_u32 s{s_offA}, s{s_offA}, {2 * CH}"]
    LA0 = LA if not m1 else int(os.environ.get("LA1", "10"))
    LA = LA0
    for i in range(LA):
        for l in aload(i): k(l)
    late = []
    if m1:
        k(f"s_lshl_b32 s{s_t0}, s{s_cb}, 19"); k(f"s_add_u32 s{s_t0}, s{s_t0}, {G_OFF}")
        k(f"v_add_u32 v{vO}, s{s_t0}, v{vA}")
        k(f"v_mul_u32_u24 v{vt[1]}, {5 * 16384}, v{v_h}")
        k(f"v_lshl_add_u32 v{vS}, v{vt[0]}, 3, v{vt[1]}")
        for i in range(5):
            late.append([f"s_mov_b32 s{s_t0}, {HS_OFF + i * 16384}",
                         f"buffer_load_dwordx2 {vr(RES + 2*i, 2)}, v{vS}, s[{sW}:{sW+3}], s{s_t0} offen"])
        k(f"v_bfe_u32 v{vt[0]}, v{v_lane}, 2, 2")
        k(f"v_lshl_add_u32 v{vt[1]}, v{v_h}, 3, v{vt[0]}")
        k(f"v_lshlrev_b32 v{vt[1]}, 8, v{vt[1]}")
        k(f"v_lshl_add_u32 v{vt[0]}, v{vt[0]}, 6, v{vt[1]}")
    else:
        k(f"v_mul_u32_u24 v{vt[1]}, 1280, v{vt[0]}")
        k(f"v_lshl_add_u32 v{vt[1]}, v{v_h}, 4, v{vt[1]}")
        k(f"v_add_u32 v{vt[1]}, s{s_t1}, v{vt[1]}")
        k(f"s_lshl_b32 s{s_t0}, s{s_cb}, 18"); k(f"s_add_u32 s{s_t0}, s{s_t0}, {H_OFF}")
        k(f"v_add_u32 v{vt[2]}, s{s_t0}, v{vA}")
        k(f"v_mov_b32 v{vO}, v{vt[2] if op else vt[1]}")
        if op:
            k(f"s_lshl_b32 s{s_t0}, s{s_cb}, 14"); k(f"s_add_u32 s{s_t0}, s{s_t0}, {HS_OFF}")
            k(f"v_lshl_add_u32 v{vS}, v{vt[0]}, 3, s{s_t0}")
        k(f"v_bfe_u32 v{vt[0]}, v{v_lane}, 2, 2")
        k(f"v_lshl_add_u32 v{vt[0]}, v{v_h}, 3, v{vt[0]}")
        k(f"v_lshlrev_b32 v{vt[0]}, 7, v{vt[0]}")
        k(f"v_bfe_u32 v{vt[3]}, v{v_lane}, 3, 1")
        k(f"v_lshl_add_u32 v{vt[0]}, v{vt[3]}, 6, v{vt[0]}")
    k(f"v_bfe_u32 v{vt[3]}, v{v_lane}, 4, 1")
    k(f"v_lshl_add_u32 v{vt[0]}, v{vt[3]}, 5, v{vt[0]}")
    k(f"v_and_b32 v{vt[3]}, 3, v{v_lane}")
    k(f"v_lshl_add_u32 v{vBr[0]}, v{vt[3]}, 3, v{vt[0]}")
    for j in range(1, NT): k(f"v_xor_b32 v{vBr[j]}, {64 * j}, v{vBr[0]}")
    for c in range(4): k(f"s_mov_b32 s{48 + c}, {2*c*CH}")
    if op:
        srd(k, sR, 38, 39, S * D * 2)
        for c in range(4):
            late.append([f"buffer_load_dwordx4 {vr(RES + 4*c, 4)}, v{vt[1]}, s[{sR}:{sR+3}], 0 offen offset:{32*c}"])
    elif m2:
        srd(k, sO, 42, 43, S * D * 2); srd(k, sBi, 38, 39, D * 2)
        k(f"v_lshlrev_b32 v{vt[0]}, 3, v{v_h}")
        for c in range(4):
            late.append([f"buffer_load_dwordx4 {vr(RES + 4*c, 4)}, v{vt[2]}, s[{sW}:{sW+3}], s{48 + c} offen"])
        for c in range(8):
            late.append([f"buffer_load_dwordx2 {vr(BI + 2*c, 2)}, v{vt[0]}, s[{sBi}:{sBi+3}], s{s_t1} offen offset:{16*c}"])
    cur_base = 0
    NM = NKS * NT
    KSB = GB // GS
    def bread(m):
        nonlocal cur_base
        ks, j = divmod(m, NT)
        G, q = divmod(ks, GS)
        off = (G % NSLOT) * GB + q * KSB
        r = []
        if q == 0 and j == 0: r.append("s_barrier")
        base = (off // 65536) * 65536
        if base != cur_base:
            for a in vBr[:NT]: r.append(f"v_add_u32 v{a}, {(base - cur_base) & 0xffffffff:#x}, v{a}")
            cur_base = base
        for e in range(2):
            r.append(f"ds_read_b64_tr_b16 {vr(FB + (m % NFB) * 4 + 2*e, 2)}, v{vBr[j]} offset:{off - base + e * (KSB // 4)}")
        return r
    k.stamp(2)
    if K.prof: k("s_waitcnt lgkmcnt(0)")
    for m in range(DIST):
        for l in bread(m): k(l)
    vq = [("A", i) for i in range(LA)]
    for m in range(NM):
        ks, j = divmod(m, NT)
        nout = 2 * (min(NM, m + DIST) - m - 1)
        if j == 0:
            pos = vq.index(("A", ks))
            k(f"s_waitcnt vmcnt({len(vq) - 1 - pos}) lgkmcnt({nout})")
        else:
            k(f"s_waitcnt lgkmcnt({nout})")
        cc = vr(ACC + 16*j, 16) if ks else "0"
        k(f"v_mfma_f32_32x32x16_bf16 {vr(ACC + 16*j, 16)}, {vr(FB + (m % NFB) * 4, 4)}, {vr(FA + (ks % NFA) * 4, 4)}, {cc}")
        if m + DIST < NM:
            for l in bread(m + DIST): k(l)
        if j == 0 and ks + LA < NKS:
            for l in aload(ks + LA): k(l)
            vq.append(("A", ks + LA))
        if j == 0 and late and ks + LA >= NKS:
            for _ in range(2):
                if late:
                    for l in late.pop(0): k(l)
                    vq.append(("R", 0))
    assert not late
    k.stamp(3)
    if m1:
        k("s_barrier")
        T = FB; CSB = [FB + 32, FB + 64]
        k(f"v_lshlrev_b32 v{vt[0]}, 4, v{v_h}"); k(f"v_add_u32 v{vt[0]}, {SB}, v{vt[0]}")
        def csread(nt):
            for rq in range(8):
                k(f"ds_read_b128 {vr(CSB[nt % 2] + rq*4, 4)}, v{vt[0]} offset:{(rq // 4) * 512 + nt*128 + (rq % 4)*32}")
        csread(0)
        k("s_waitcnt vmcnt(0)")
        PS = RES; MR = 28
        for i in range(1, 5): k(f"v_pk_add_f32 {vr(PS,2)}, {vr(PS,2)}, {vr(PS + 2*i, 2)}")
        k(f"v_mov_b32 v{PS+2}, v{PS}"); k(f"v_mov_b32 v{PS+3}, v{PS+1}")
        k(f"v_permlane32_swap_b32 v{PS}, v{PS+2}"); k(f"v_permlane32_swap_b32 v{PS+1}, v{PS+3}")
        k(f"v_pk_add_f32 {vr(PS,2)}, {vr(PS,2)}, {vr(PS + 2, 2)}")
        rowstat_math(k, PS, PS + 1, MR, MR + 1, PS + 2, True)
        C0 = -2.0 * math.log2(math.e) * math.sqrt(2.0 / math.pi)
        k(f"s_mov_b32 s44, {f32(C0 * 0.044715)}"); k(f"s_mov_b32 s45, {f32(C0 * 0.044715)}")
        k(f"v_mov_b32 v{vt[2]}, {f32(C0)}"); k(f"v_mov_b32 v{vt[3]}, {f32(C0)}")
        k.stamp(4); k.stamp(5)
        for nt in range(4):
            if nt == 2:
                k(f"s_cmp_eq_u32 s{s_cb}, 13"); k(f"s_cbranch_scc1 {k.L('done')}")
                k(f"v_add_u32 v{vO}, {8 * CH}, v{vO}")
            k("s_waitcnt lgkmcnt(0)")
            if nt < 3: csread(nt + 1)
            a = ACC + 16 * nt; CS = CSB[nt % 2]; B1 = CS + 16
            for p in range(8):
                x = vr(a + 2*p, 2)
                k(f"v_pk_fma_f32 {x}, {vr(CS + 2*p, 2)}, {vr(MR,2)}, {x} op_sel_hi:[1,0,1]")
            for p in range(8):
                x = vr(a + 2*p, 2)
                k(f"v_pk_fma_f32 {x}, {x}, {vr(MR,2)}, {vr(B1 + 2*p, 2)} op_sel:[0,1,0] op_sel_hi:[1,1,1]")
            for p in range(8):
                x = vr(a + 2*p, 2); t = vr(T + 2*p, 2)
                k(f"v_pk_mul_f32 {t}, {x}, {x}")
            for p in range(8):
                t = vr(T + 2*p, 2)
                k(f"v_pk_fma_f32 {t}, {t}, s[44:45], {vr(vt[2],2)}")
            for p in range(8):
                x = vr(a + 2*p, 2); t = vr(T + 2*p, 2)
                k(f"v_pk_mul_f32 {t}, {t}, {x}")
            for r in range(16): k(f"v_exp_f32 v{T + r}, v{T + r}")
            for p in range(8):
                t = vr(T + 2*p, 2)
                k(f"v_pk_add_f32 {t}, {t}, 1.0 op_sel_hi:[1,0]")
            for r in range(16): k(f"v_rcp_f32 v{T + r}, v{T + r}")
            for p in range(8):
                x = vr(a + 2*p, 2); t = vr(T + 2*p, 2)
                k(f"v_pk_mul_f32 {x}, {x}, {t}")
            Pk = T + 16 + (nt % 2) * 8
            for p in range(8):
                k(f"v_cvt_pk_bf16_f32 v{Pk + p}, v{a + 2*p}, v{a + 2*p + 1}")
            for pq in range(2):
                b = Pk + 4*pq
                k(f"v_permlane32_swap_b32 v{b}, v{b+2}")
                k(f"v_permlane32_swap_b32 v{b+1}, v{b+3}")
            for pq in range(2):
                k(f"buffer_store_dwordx4 {vr(Pk + 4*pq,4)}, v{vO}, s[{sW}:{sW+3}], s{48 + (nt % 2)*2 + pq} offen sc1")
        k.label(k.L("done"))
    else:
        T = FA
        k.stamp(4); k.stamp(5)
        k("s_waitcnt vmcnt(0)")
        for c in range(4):
            k(f"v_permlane32_swap_b32 v{RES + 4*c}, v{RES + 4*c + 2}")
            k(f"v_permlane32_swap_b32 v{RES + 4*c + 1}, v{RES + 4*c + 3}")
        for r in range(16):
            k(f"v_lshlrev_b32 v{T + 2*r}, 16, v{RES + r}")
            k(f"v_and_b32 v{T + 2*r + 1}, 0xffff0000, v{RES + r}")
        if m2:
            for r in range(16):
                k(f"v_lshlrev_b32 v{T + 32 + 2*r}, 16, v{BI + r}")
                k(f"v_and_b32 v{T + 32 + 2*r + 1}, 0xffff0000, v{BI + r}")
            for r in range(16):
                k(f"v_pk_add_f32 {vr(T + 2*r, 2)}, {vr(T + 2*r, 2)}, {vr(T + 32 + 2*r, 2)}")
        else:
            k(f"v_mov_b32 v{vt[0]}, 0"); k(f"v_mov_b32 v{vt[1]}, 0"); k(f"s_mov_b32 s{s_t1}, 0x3f803f80")
        for c in range(4):
            for r in range(4*c, 4*c + 4):
                k(f"v_pk_add_f32 {vr(T + 2*r, 2)}, {vr(T + 2*r, 2)}, {vr(ACC + 2*r, 2)}")
            for r in range(4*c, 4*c + 4):
                k(f"v_cvt_pk_bf16_f32 v{RES + r}, v{T + 2*r}, v{T + 2*r + 1}")
            k(f"v_permlane32_swap_b32 v{RES + 4*c}, v{RES + 4*c + 2}")
            k(f"v_permlane32_swap_b32 v{RES + 4*c + 1}, v{RES + 4*c + 3}")
            if op:
                k(f"buffer_store_dwordx4 {vr(RES + 4*c, 4)}, v{vO}, s[{sW}:{sW+3}], s{48 + c} offen sc1")
            else:
                k(f"buffer_store_dwordx4 {vr(RES + 4*c, 4)}, v{vO}, s[{sO}:{sO+3}], 0 offen offset:{32*c}{' sc1' if 'outsc1' in X else ''}")
        if op:
            for r in range(16):
                k(f"v_dot2c_f32_bf16 v{vt[0]}, s{s_t1}, v{RES + r}")
                k(f"v_dot2c_f32_bf16 v{vt[1]}, v{RES + r}, v{RES + r}")
            k(f"v_mov_b32 v{vt[2]}, v{vt[0]}"); k(f"v_mov_b32 v{vt[3]}, v{vt[1]}")
            k(f"v_permlane32_swap_b32 v{vt[0]}, v{vt[2]}"); k(f"v_permlane32_swap_b32 v{vt[1]}, v{vt[3]}")
            k(f"v_add_f32 v{vt[0]}, v{vt[0]}, v{vt[2]}"); k(f"v_add_f32 v{vt[1]}, v{vt[1]}, v{vt[3]}")
            k("s_mov_b32 exec_hi, 0")
            k(f"buffer_store_dwordx2 {vr(vt[0], 2)}, v{vS}, s[{sW}:{sW+3}], 0 offen sc1")
    k.stamp(6); k.dump(kidx, 9, s_wid)
    k.label(k.L("end"))
    k("s_endpgm")
    return k, NV, SB + (1024 if m1 else 0)

def tail():
    k = K("tail")
    GB = 16384; NSLOT = 8; SB = NSLOT * GB
    PH = {3: dict(NT=2, KK=D, A_OFF=O_OFF, base=0), 4: dict(NT=4, KK=D, A_OFF=H_OFF, base=5), 5: dict(NT=2, KK=F, A_OFF=G_OFF, base=7)}
    for p in PH.values():
        p["GS"] = 16 // p["NT"]; p["GR"] = p["GS"] * 16; p["NG"] = (p["KK"] + p["GR"] - 1) // p["GR"]; p["NKS"] = p["KK"] // 16
    sW, sB3, sB4, sB5, sX, sO, sBi = 4, 8, 12, 16, 8, 12, 16
    s_r, s_cb, s_w, s_t0, s_t1, s_offA, s_it, s_wid, s_r4, s_cb4, s_idx, s_x = 20, 21, 22, 23, 24, 26, 28, 35, 29, 30, 31, 32
    s_ob = {3: 25, 4: 26, 5: 27}; s_m0 = 33
    v_lane, v_t, v_h = 1, 2, 3
    vt = [12, 13, 14, 15]
    if "g2" in X: gate(k, 45)
    k.stamp(0); k.stamp(1, True)
    k("s_cmp_ge_u32 s2, 240"); k(f"s_cbranch_scc1 {k.L('end')}")
    k("s_load_dwordx2 s[36:37], s[0:1], 16")
    k("s_load_dwordx2 s[38:39], s[0:1], 0")
    k("s_load_dwordx2 s[40:41], s[0:1], 80")
    k("s_load_dwordx2 s[42:43], s[0:1], 32")
    k("s_load_dwordx4 s[44:47], s[0:1], 48")
    k("s_load_dwordx2 s[56:57], s[0:1], 64")
    k(f"v_lshrrev_b32 v{vt[0]}, 6, v0")
    k(f"v_and_b32 v{v_lane}, 63, v0")
    k(f"v_readfirstlane_b32 s{s_wid}, v{vt[0]}")
    k(f"s_lshr_b32 s{s_idx}, s2, 3"); k(f"s_and_b32 s{s_x}, s2, 7")
    k(f"s_mul_i32 s{s_cb}, s{s_idx}, 43"); k(f"s_lshr_b32 s{s_cb}, s{s_cb}, 7")
    k(f"s_mul_i32 s{s_t1}, s{s_cb}, 3"); k(f"s_sub_u32 s{s_r}, s{s_idx}, s{s_t1}")
    k(f"s_and_b32 s{s_r4}, s{s_idx}, 1"); k(f"s_lshr_b32 s{s_cb4}, s{s_idx}, 1")
    k(f"s_and_b32 s{s_w}, s{s_wid}, 3")
    k(f"s_cmp_lt_u32 s{s_wid}, 4")
    k(f"s_cbranch_scc1 {k.L('compute')}")
    vB2 = [4, 5, 6, 7]; vB4 = [8, 9, 10, 11]
    k(f"v_lshrrev_b32 v{vt[0]}, 3, v{v_lane}")
    k(f"v_and_b32 v{vt[1]}, 7, v{v_lane}")
    k(f"v_bfe_u32 v{vt[2]}, v{v_lane}, 4, 1")
    k(f"v_lshlrev_b32 v{vt[2]}, 2, v{vt[2]}")
    k(f"v_xor_b32 v{vt[1]}, v{vt[1]}, v{vt[2]}")
    k(f"v_mul_u32_u24 v{vt[0]}, 1280, v{vt[0]}")
    k(f"v_lshl_add_u32 v{vB2[0]}, v{vt[1]}, 4, v{vt[0]}")
    for ii in range(1, 4): k(f"v_add_u32 v{vB2[ii]}, {ii * (8 * 1280 - 1024)}, v{vB2[0]}")
    k(f"s_mul_i32 s{s_ob[3]}, s{s_w}, {32 * 1280}"); k(f"s_lshl_b32 s{s_t1}, s{s_cb}, 7"); k(f"s_add_u32 s{s_ob[3]}, s{s_ob[3]}, s{s_t1}")
    k(f"s_lshl_b32 s{s_m0}, s{s_w}, 12")
    k("s_waitcnt lgkmcnt(0)")
    srd(k, sB3, 36, 37, D * D * 2)
    q = []
    def issue(p, j):
        P = PH[p]; slot = (P["base"] + j) % NSLOT
        vB = vB4 if p == 4 else vB2; sB = {3: sB3, 4: sB4, 5: sB5}[p]
        k(f"s_add_u32 m0, s{s_m0}, {slot * GB}")
        for ii in range(4):
            k(f"buffer_load_dwordx4 v{vB[ii]}, s[{sB}:{sB+3}], s{s_ob[p]} offen offset:{ii*1024} lds")
            q.append((p, j))
        k(f"s_add_u32 s{s_ob[p]}, s{s_ob[p]}, {P['GR'] * (F if p == 4 else D) * 2}")
    def bar(need=None):
        if need is not None and need in q:
            last = len(q) - 1 - q[::-1].index(need)
            k(f"s_waitcnt vmcnt({len(q) - 1 - last})")
            del q[:last + 1]
        k("s_barrier")
    k.stamp(2)
    issue(3, 0); issue(3, 1)
    k(f"s_mov_b32 s{s_ob[5]}, s{s_ob[3]}"); k(f"s_sub_u32 s{s_ob[5]}, s{s_ob[5]}, {2 * 128 * 1280}")
    k(f"v_lshrrev_b32 v{vt[0]}, 4, v{v_lane}")
    k(f"v_and_b32 v{vt[1]}, 15, v{v_lane}")
    k(f"v_lshlrev_b32 v{vt[2]}, 2, v{vt[0]}")
    k(f"v_xor_b32 v{vt[1]}, v{vt[1]}, v{vt[2]}")
    k(f"v_mul_u32_u24 v{vt[0]}, {F * 2}, v{vt[0]}")
    k(f"v_lshl_add_u32 v{vB4[0]}, v{vt[1]}, 4, v{vt[0]}")
    for ii in range(1, 4): k(f"v_add_u32 v{vB4[ii]}, {ii * (4 * F * 2 - 1024)}, v{vB4[0]}")
    k(f"s_mul_i32 s{s_ob[4]}, s{s_w}, {16 * F * 2}"); k(f"s_lshl_b32 s{s_t1}, s{s_cb4}, 8"); k(f"s_add_u32 s{s_ob[4]}, s{s_ob[4]}, s{s_t1}")
    srd(k, sB4, 42, 43, D * F * 2); srd(k, sB5, 44, 45, D * F * 2); srd(k, sW, 40, 41, WS_END)
    for j in range(5):
        if j + 2 < 5: issue(3, j + 2)
        bar((3, j))
    k(f"s_cmp_ge_u32 s{s_idx}, 28"); k(f"s_cbranch_scc1 {k.L('lskip4')}")
    q0 = list(q)
    NPRE = int(os.environ.get("NPRE", "3")); E5 = int(os.environ.get("E5", "9")); N5 = int(os.environ.get("N5", "8"))
    for j in range(NPRE): issue(4, j)
    k(f"s_lshl_b32 s{s_t0}, s{s_cb4}, 10"); k(f"s_lshl_b32 s{s_t1}, s{s_w}, 8"); k(f"s_add_u32 s{s_t0}, s{s_t0}, s{s_t1}")
    k(f"s_add_u32 s{s_t0}, s{s_t0}, {C1_OFF}")
    k(f"v_lshlrev_b32 v{vt[3]}, 2, v{v_lane}")
    bar()
    bar()
    nxt4 = NPRE; nxt5 = 0
    for j in range(10):
        bar((4, j))
        if j == 1:
            k(f"s_add_u32 m0, s{s_t1}, {SB}")
            k(f"buffer_load_dword v{vt[3]}, s[{sW}:{sW+3}], s{s_t0} offen lds"); q.append(("c", 0))
        if nxt4 < 10 and (nxt4 < 8 or nxt4 - 8 + 2 <= j):
            issue(4, nxt4); nxt4 += 1
        elif nxt4 == 10 and nxt5 + 2 + 2 <= j and j >= E5:
            issue(5, nxt5); nxt5 += 1
    assert nxt4 == 10
    while nxt5 < min(N5, 3): issue(5, nxt5); nxt5 += 1
    bar(("c", 0))
    while nxt5 < N5: issue(5, nxt5); nxt5 += 1
    bar()
    k(f"s_branch {k.L('l5')}")
    k.label(k.L("lskip4"))
    q[:] = q0
    bar()
    for j in range(N5): issue(5, j)
    k.label(k.L("l5"))
    q[:] = [(5, j) for j in range(N5) for _ in range(4)]
    bar()
    for j in range(14):
        bar((5, j))
        if nxt5 < 14 and (nxt5 < 8 or nxt5 - 8 + 2 <= j):
            issue(5, nxt5); nxt5 += 1
    k("s_endpgm")

    k.label(k.L("compute"))
    vBr = [4, 5, 6, 7]; vA = 8; vS = 9; vO = 10; v_tag = 11
    RES = 16; BI = 32; ACC = 48
    DIST = 6; NFB = 8; NFA = 16
    k(f"v_and_b32 v{v_t}, 31, v0")
    k(f"v_bfe_u32 v{v_h}, v0, 5, 1")
    s_tok3 = 34; s_act = 25
    k(f"s_mul_i32 s{s_t0}, s{s_r}, 3"); k(f"s_add_u32 s{s_t0}, s{s_t0}, s{s_w}")
    k(f"s_cmp_eq_u32 s{s_w}, 3"); k(f"s_cselect_b32 s{s_act}, 8, s{s_t0}")
    k(f"s_lshl_b32 s{s_t1}, s{s_x}, 3"); k(f"s_add_u32 s{s_t0}, s{s_t0}, s{s_t1}"); k(f"s_lshl_b32 s{s_tok3}, s{s_t0}, 5")
    for c in range(4): k(f"s_mov_b32 s{48 + c}, {2*c*CH}")
    def nbar(n):
        for _ in range(n): k("s_barrier")
    def setup(p):
        if p == 4:
            k(f"s_lshl_b32 s{s_t0}, s{s_x}, 1"); k(f"s_add_u32 s{s_t0}, s{s_t0}, s{s_r4}"); k(f"s_lshl_b32 s{s_t0}, s{s_t0}, 2")
            k(f"s_add_u32 s{s_t0}, s{s_t0}, s{s_w}"); k(f"s_lshl_b32 s{s_t0}, s{s_t0}, 5")
            k(f"v_add_u32 v{vt[0]}, s{s_t0}, v{v_t}")
        else:
            k(f"v_add_u32 v{vt[0]}, s{s_tok3}, v{v_t}")
        k(f"v_lshlrev_b32 v{vA}, 15, v{v_h}")
        k(f"v_lshl_add_u32 v{vA}, v{vt[0]}, 4, v{vA}")
        k(f"s_mov_b32 s{s_offA}, {PH[p]['A_OFF']}")
    def setup2(p):
        late = []
        if p == 4:
            k(f"s_lshl_b32 s{s_t0}, s{s_cb4}, 19"); k(f"s_add_u32 s{s_t0}, s{s_t0}, {G_OFF}")
            k(f"v_add_u32 v{vO}, s{s_t0}, v{vA}")
            k(f"v_mul_u32_u24 v{vt[1]}, {5 * 16384}, v{v_h}")
            k(f"v_lshl_add_u32 v{vS}, v{vt[0]}, 3, v{vt[1]}")
            for i in range(5):
                late.append([f"s_mov_b32 s{s_t0}, {HS_OFF + i * 16384}",
                             f"buffer_load_dwordx2 {vr(BI + 2*i, 2)}, v{vS}, s[{sW}:{sW+3}], s{s_t0} offen sc1"])
            k(f"v_bfe_u32 v{vt[0]}, v{v_lane}, 2, 2")
            k(f"v_lshl_add_u32 v{vt[1]}, v{v_h}, 3, v{vt[0]}")
            k(f"v_lshlrev_b32 v{vt[1]}, 8, v{vt[1]}")
            k(f"v_lshl_add_u32 v{vt[0]}, v{vt[0]}, 6, v{vt[1]}")
        else:
            k(f"s_lshl_b32 s{s_t1}, s{s_cb}, 7")
            k(f"v_mul_u32_u24 v{vt[1]}, 1280, v{vt[0]}")
            k(f"v_lshl_add_u32 v{vt[1]}, v{v_h}, 4, v{vt[1]}")
            if p == 3:
                k(f"v_add_u32 v{vt[1]}, s{s_t1}, v{vt[1]}")
                k(f"s_lshl_b32 s{s_t0}, s{s_cb}, 18"); k(f"s_add_u32 s{s_t0}, s{s_t0}, {H_OFF}")
                k(f"v_add_u32 v{vO}, s{s_t0}, v{vA}")
                k(f"s_lshl_b32 s{s_t0}, s{s_cb}, 14"); k(f"s_add_u32 s{s_t0}, s{s_t0}, {HS_OFF}")
                k(f"v_lshl_add_u32 v{vS}, v{vt[0]}, 3, s{s_t0}")
                srd(k, sX, 38, 39, S * D * 2)
                for c in range(4):
                    late.append([f"buffer_load_dwordx4 {vr(RES + 4*c, 4)}, v{vt[1]}, s[{sX}:{sX+3}], 0 offen offset:{32*c}"])
            else:
                k(f"v_add_u32 v{vO}, s{s_t1}, v{vt[1]}")
                srd(k, sO, 56, 57, S * D * 2); srd(k, sBi, 46, 47, D * 2)
                k(f"v_lshlrev_b32 v{vt[2]}, 3, v{v_h}")
                for c in range(8):
                    k(f"buffer_load_dwordx2 {vr(BI + 2*c, 2)}, v{vt[2]}, s[{sBi}:{sBi+3}], s{s_t1} offen offset:{16*c}")
            k(f"v_bfe_u32 v{vt[0]}, v{v_lane}, 2, 2")
            k(f"v_lshl_add_u32 v{vt[0]}, v{v_h}, 3, v{vt[0]}")
            k(f"v_lshlrev_b32 v{vt[0]}, 7, v{vt[0]}")
            k(f"v_bfe_u32 v{vt[3]}, v{v_lane}, 3, 1")
            k(f"v_lshl_add_u32 v{vt[0]}, v{vt[3]}, 6, v{vt[0]}")
        k(f"v_bfe_u32 v{vt[3]}, v{v_lane}, 4, 1")
        k(f"v_lshl_add_u32 v{vt[0]}, v{vt[3]}, 5, v{vt[0]}")
        k(f"v_and_b32 v{vt[3]}, 3, v{v_lane}")
        k(f"v_lshl_add_u32 v{vBr[0]}, v{vt[3]}, 3, v{vt[0]}")
        for j in range(1, PH[p]["NT"]): k(f"v_xor_b32 v{vBr[j]}, {64 * j}, v{vBr[0]}")
        return late
    def aload(p, i, FA):
        return [f"buffer_load_dwordx4 {vr(FA + (i % NFA) * 4, 4)}, v{vA}, s[{sW}:{sW+3}], s{s_offA} offen{'' if p == 3 else ' sc1'}",
                f"s_add_u32 s{s_offA}, s{s_offA}, {2 * CH}"]
    def gemm(p, late, pre_issued):
        P = PH[p]; NT = P["NT"]; GS = P["GS"]; NKS = P["NKS"]
        FB = ACC + 16 * NT; FA = FB + NFB * 4
        LA = 14
        if not pre_issued:
            for i in range(LA):
                for l in aload(p, i, FA): k(l)
        cur = [0]
        NM = NKS * NT; KSB = GB // GS
        def bread(m):
            ks, j = divmod(m, NT)
            G, qq = divmod(ks, GS)
            off = ((P["base"] + G) % NSLOT) * GB + qq * KSB
            r = []
            if qq == 0 and j == 0: r.append("s_barrier")
            base = (off // 65536) * 65536
            if base != cur[0]:
                for a in vBr[:NT]: r.append(f"v_add_u32 v{a}, {(base - cur[0]) & 0xffffffff:#x}, v{a}")
                cur[0] = base
            for e in range(2):
                r.append(f"ds_read_b64_tr_b16 {vr(FB + (m % NFB) * 4 + 2*e, 2)}, v{vBr[j]} offset:{off - base + e * (KSB // 4)}")
            return r
        if K.prof: k("s_waitcnt lgkmcnt(0)")
        for m in range(DIST):
            for l in bread(m): k(l)
        vq = [("A", i) for i in range(LA)]
        for m in range(NM):
            ks, j = divmod(m, NT)
            nout = 2 * (min(NM, m + DIST) - m - 1)
            if j == 0:
                pos = vq.index(("A", ks))
                k(f"s_waitcnt vmcnt({len(vq) - 1 - pos}) lgkmcnt({nout})")
            else:
                k(f"s_waitcnt lgkmcnt({nout})")
            cc = vr(ACC + 16*j, 16) if ks else "0"
            k(f"v_mfma_f32_32x32x16_bf16 {vr(ACC + 16*j, 16)}, {vr(FB + (m % NFB) * 4, 4)}, {vr(FA + (ks % NFA) * 4, 4)}, {cc}")
            if m + DIST < NM:
                for l in bread(m + DIST): k(l)
            if j == 0 and ks + LA < NKS:
                for l in aload(p, ks + LA, FA): k(l)
                vq.append(("A", ks + LA))
            if j == 0 and late and ks + LA + 4 >= NKS:
                for l in late.pop(0): k(l)
                vq.append(("R", 0))
        assert not late
        return FB, FA
    def publish(pdone):
        k(f"s_lshl_b32 s{s_t0}, s{s_x}, 5"); k(f"s_add_u32 s{s_t0}, s{s_t0}, s{s_idx}"); k(f"s_lshl_b32 s{s_t0}, s{s_t0}, 7")
        k(f"s_add_u32 s{s_t0}, s{s_t0}, {FL_OFF + (pdone - 3) * 32768}")
        k(f"v_mov_b32 v{vt[0]}, 0")
        k("s_mov_b64 exec, 1")
        k(f"buffer_store_dword v{v_tag}, v{vt[0]}, s[{sW}:{sW+3}], s{s_t0} offen sc1")
        k("s_mov_b64 exec, -1")
    def wait(pwait, nflags, tagname, slp=0):
        k(f"s_lshl_b32 s{s_t0}, s{s_x}, 12"); k(f"s_add_u32 s{s_t0}, s{s_t0}, {FL_OFF + (pwait - 3) * 32768}")
        k(f"v_lshlrev_b32 v{vt[0]}, 7, v{v_lane}")
        k(f"s_mov_b32 s{s_it}, 0")
        k(f"s_mov_b64 exec, {(1 << nflags) - 1:#x}")
        k.label(k.L("poll" + tagname))
        k(f"buffer_load_dword v{vt[1]}, v{vt[0]}, s[{sW}:{sW+3}], s{s_t0} offen sc1")
        k(f"s_add_u32 s{s_it}, s{s_it}, 1")
        k("s_waitcnt vmcnt(0)")
        k(f"v_cmp_ne_u32 vcc, v{vt[1]}, v{v_tag}")
        k(f"s_cbranch_vccz {k.L('go' + tagname)}")
        if slp: k(f"s_sleep {slp}")
        k(f"s_cmp_lt_u32 s{s_it}, 0x8000")
        k(f"s_cbranch_scc1 {k.L('poll' + tagname)}")
        k.label(k.L("go" + tagname))
        k("s_mov_b64 exec, -1")

    setup(3)
    k("s_waitcnt lgkmcnt(0)")
    srd(k, sW, 40, 41, WS_END)
    k(f"s_cmp_ge_u32 s{s_act}, 8"); k(f"s_cbranch_scc1 {k.L('idle3')}")
    FB3 = ACC + 32; FA3 = FB3 + NFB * 4
    for i in range(14):
        for l in aload(3, i, FA3): k(l)
    late = setup2(3)
    k.stamp(2)
    FB, FA = gemm(3, late, True)
    k.stamp(3)
    T = FA
    k("s_waitcnt vmcnt(0)")
    for c in range(4):
        k(f"v_permlane32_swap_b32 v{RES + 4*c}, v{RES + 4*c + 2}")
        k(f"v_permlane32_swap_b32 v{RES + 4*c + 1}, v{RES + 4*c + 3}")
    for r in range(16):
        k(f"v_lshlrev_b32 v{T + 2*r}, 16, v{RES + r}")
        k(f"v_and_b32 v{T + 2*r + 1}, 0xffff0000, v{RES + r}")
    k(f"v_mov_b32 v{vt[0]}, 0"); k(f"v_mov_b32 v{vt[1]}, 0"); k(f"s_mov_b32 s{s_t1}, 0x3f803f80")
    for c in range(4):
        for r in range(4*c, 4*c + 4):
            k(f"v_pk_add_f32 {vr(T + 2*r, 2)}, {vr(T + 2*r, 2)}, {vr(ACC + 2*r, 2)}")
        for r in range(4*c, 4*c + 4):
            k(f"v_cvt_pk_bf16_f32 v{RES + r}, v{T + 2*r}, v{T + 2*r + 1}")
        k(f"v_permlane32_swap_b32 v{RES + 4*c}, v{RES + 4*c + 2}")
        k(f"v_permlane32_swap_b32 v{RES + 4*c + 1}, v{RES + 4*c + 3}")
        k(f"buffer_store_dwordx4 {vr(RES + 4*c, 4)}, v{vO}, s[{sW}:{sW+3}], s{48 + c} offen sc1")
    for r in range(16):
        k(f"v_dot2c_f32_bf16 v{vt[0]}, s{s_t1}, v{RES + r}")
        k(f"v_dot2c_f32_bf16 v{vt[1]}, v{RES + r}, v{RES + r}")
    k(f"v_mov_b32 v{vt[2]}, v{vt[0]}"); k(f"v_mov_b32 v{vt[3]}, v{vt[1]}")
    k(f"v_permlane32_swap_b32 v{vt[0]}, v{vt[2]}"); k(f"v_permlane32_swap_b32 v{vt[1]}, v{vt[3]}")
    k(f"v_add_f32 v{vt[0]}, v{vt[0]}, v{vt[2]}"); k(f"v_add_f32 v{vt[1]}, v{vt[1]}, v{vt[3]}")
    k("s_mov_b32 exec_hi, 0")
    k(f"buffer_store_dwordx2 {vr(vt[0], 2)}, v{vS}, s[{sW}:{sW+3}], 0 offen sc1")
    k("s_mov_b32 exec_hi, -1")
    k(f"s_branch {k.L('pb3')}")
    k.label(k.L("idle3"))
    k(f"v_mov_b32 v{vt[0]}, 0"); k(f"s_mov_b32 s{s_t0}, {TAG_OFF}")
    k(f"buffer_load_dword v{v_tag}, v{vt[0]}, s[{sW}:{sW+3}], s{s_t0} offen")
    k.stamp(2)
    nbar(5)
    k.label(k.L("pb3"))
    k("s_waitcnt vmcnt(0)")
    k("s_barrier")
    k.stamp(4)
    k(f"s_cmp_ge_u32 s{s_idx}, 28"); k(f"s_cbranch_scc1 {k.L('skip4')}")
    k(f"s_cmp_lg_u32 s{s_w}, 3"); k(f"s_cbranch_scc1 {k.L('ns4')}")
    publish(3)
    k.label(k.L("ns4"))
    setup(4)
    late = setup2(4)
    k(f"s_cmp_lg_u32 s{s_w}, 3"); k(f"s_cbranch_scc1 {k.L('ns4b')}")
    wait(3, 30, "a")
    k.label(k.L("ns4b"))
    if "g4" in X: gate(k, 50)
    k("s_barrier")
    k.stamp(5)
    FB, FA = gemm(4, late, False)
    k.stamp(6)
    k("s_barrier")
    T = FB; CSB = [FB + 32, FB + 64]
    k(f"v_lshlrev_b32 v{vt[0]}, 4, v{v_h}"); k(f"v_add_u32 v{vt[0]}, {SB}, v{vt[0]}")
    def csread(nt):
        for rq in range(8):
            k(f"ds_read_b128 {vr(CSB[nt % 2] + rq*4, 4)}, v{vt[0]} offset:{(rq // 4) * 512 + nt*128 + (rq % 4)*32}")
    csread(0)
    k("s_waitcnt vmcnt(0)")
    PS = BI; MR = BI + 12
    for i in range(1, 5): k(f"v_pk_add_f32 {vr(PS,2)}, {vr(PS,2)}, {vr(PS + 2*i, 2)}")
    k(f"v_mov_b32 v{PS+2}, v{PS}"); k(f"v_mov_b32 v{PS+3}, v{PS+1}")
    k(f"v_permlane32_swap_b32 v{PS}, v{PS+2}"); k(f"v_permlane32_swap_b32 v{PS+1}, v{PS+3}")
    k(f"v_pk_add_f32 {vr(PS,2)}, {vr(PS,2)}, {vr(PS + 2, 2)}")
    rowstat_math(k, PS, PS + 1, MR, MR + 1, PS + 2, True)
    C0 = -2.0 * math.log2(math.e) * math.sqrt(2.0 / math.pi)
    k(f"s_mov_b32 s58, {f32(C0 * 0.044715)}"); k(f"s_mov_b32 s59, {f32(C0 * 0.044715)}")
    k(f"v_mov_b32 v{vt[2]}, {f32(C0)}"); k(f"v_mov_b32 v{vt[3]}, {f32(C0)}")
    for nt in range(4):
        if nt == 2:
            k(f"s_cmp_eq_u32 s{s_cb4}, 13"); k(f"s_cbranch_scc1 {k.L('done4')}")
            k(f"v_add_u32 v{vO}, {8 * CH}, v{vO}")
        k("s_waitcnt lgkmcnt(0)")
        if nt < 3: csread(nt + 1)
        a = ACC + 16 * nt; CS = CSB[nt % 2]; B1 = CS + 16
        for p in range(8):
            x = vr(a + 2*p, 2)
            k(f"v_pk_fma_f32 {x}, {vr(CS + 2*p, 2)}, {vr(MR,2)}, {x} op_sel_hi:[1,0,1]")
        for p in range(8):
            x = vr(a + 2*p, 2)
            k(f"v_pk_fma_f32 {x}, {x}, {vr(MR,2)}, {vr(B1 + 2*p, 2)} op_sel:[0,1,0] op_sel_hi:[1,1,1]")
        for p in range(8):
            x = vr(a + 2*p, 2); t = vr(T + 2*p, 2)
            k(f"v_pk_mul_f32 {t}, {x}, {x}")
        for p in range(8):
            t = vr(T + 2*p, 2)
            k(f"v_pk_fma_f32 {t}, {t}, s[58:59], {vr(vt[2],2)}")
        for p in range(8):
            x = vr(a + 2*p, 2); t = vr(T + 2*p, 2)
            k(f"v_pk_mul_f32 {t}, {t}, {x}")
        for r in range(16): k(f"v_exp_f32 v{T + r}, v{T + r}")
        for p in range(8):
            t = vr(T + 2*p, 2)
            k(f"v_pk_add_f32 {t}, {t}, 1.0 op_sel_hi:[1,0]")
        for r in range(16): k(f"v_rcp_f32 v{T + r}, v{T + r}")
        for p in range(8):
            x = vr(a + 2*p, 2); t = vr(T + 2*p, 2)
            k(f"v_pk_mul_f32 {x}, {x}, {t}")
        Pk = T + 16 + (nt % 2) * 8
        for p in range(8):
            k(f"v_cvt_pk_bf16_f32 v{Pk + p}, v{a + 2*p}, v{a + 2*p + 1}")
        for pq in range(2):
            b = Pk + 4*pq
            k(f"v_permlane32_swap_b32 v{b}, v{b+2}")
            k(f"v_permlane32_swap_b32 v{b+1}, v{b+3}")
        for pq in range(2):
            k(f"buffer_store_dwordx4 {vr(Pk + 4*pq,4)}, v{vO}, s[{sW}:{sW+3}], s{48 + (nt % 2)*2 + pq} offen sc1")
    k.label(k.L("done4"))
    k.stamp(7)
    k("s_waitcnt vmcnt(0) lgkmcnt(0)")
    k("s_barrier")
    k.stamp(8)
    k(f"s_cmp_lg_u32 s{s_w}, 3"); k(f"s_cbranch_scc1 {k.L('p5')}")
    publish(4)
    wait(4, 28, "b")
    k(f"s_branch {k.L('p5')}")
    k.label(k.L("skip4"))
    k(f"s_cmp_lg_u32 s{s_w}, 3"); k(f"s_cbranch_scc1 {k.L('p5')}")
    publish(3)
    wait(4, 28, "c", 8)
    k.label(k.L("p5"))
    k(f"s_cmp_ge_u32 s{s_act}, 8"); k(f"s_cbranch_scc1 {k.L('idle5')}")
    setup(5)
    late = setup2(5)
    if "g5" in X: gate(k, 60)
    k("s_barrier")
    k.stamp(9)
    FB, FA = gemm(5, late, False)
    k.stamp(10)
    T = FA
    for c in range(4):
        k(f"v_permlane32_swap_b32 v{RES + 4*c}, v{RES + 4*c + 2}")
        k(f"v_permlane32_swap_b32 v{RES + 4*c + 1}, v{RES + 4*c + 3}")
    for r in range(16):
        k(f"v_lshlrev_b32 v{T + 2*r}, 16, v{RES + r}")
        k(f"v_and_b32 v{T + 2*r + 1}, 0xffff0000, v{RES + r}")
    for r in range(16):
        k(f"v_lshlrev_b32 v{T + 32 + 2*r}, 16, v{BI + r}")
        k(f"v_and_b32 v{T + 32 + 2*r + 1}, 0xffff0000, v{BI + r}")
    for r in range(16):
        k(f"v_pk_add_f32 {vr(T + 2*r, 2)}, {vr(T + 2*r, 2)}, {vr(T + 32 + 2*r, 2)}")
    for c in range(4):
        for r in range(4*c, 4*c + 4):
            k(f"v_pk_add_f32 {vr(T + 2*r, 2)}, {vr(T + 2*r, 2)}, {vr(ACC + 2*r, 2)}")
        for r in range(4*c, 4*c + 4):
            k(f"v_cvt_pk_bf16_f32 v{RES + r}, v{T + 2*r}, v{T + 2*r + 1}")
        k(f"v_permlane32_swap_b32 v{RES + 4*c}, v{RES + 4*c + 2}")
        k(f"v_permlane32_swap_b32 v{RES + 4*c + 1}, v{RES + 4*c + 3}")
        k(f"buffer_store_dwordx4 {vr(RES + 4*c, 4)}, v{vO}, s[{sO}:{sO+3}], 0 offen offset:{32*c}")
    k.stamp(11)
    if "g3" in X: gate(k, 70)
    k.dump(2, 14, s_wid)
    k("s_endpgm")
    k.label(k.L("idle5"))
    k("s_barrier")
    k.label(k.L("end"))
    k("s_endpgm")
    return k, ACC + 64 + 32 + 64, SB + 1024 + 16

HEADER = open("sequential_preLN__mha_block__mixer_channel_mlp__prompt.s.ref").read().split("; Override")[0]

def build(path):
    ks = [(lngemm("qkv"), 256, 512), (attn(), 256, 512), (wgemm("oproj"), 240, 512), ((lngemm if "oldm1" in X else wgemm)("mlp1"), 224, 512), (wgemm("mlp2"), 240, 512)]
    if "sep" not in X:
        ks = ks[:2] + [(tail(), 240, 512)]
    def nop():
        k = K("nop"); k("s_endpgm"); return k, 8, 0
    order = list(range(len(ks)))
    if "nopend" in X: ks.append((nop(), 256, 256)); order = order + [5]
    if "nopbeg" in X: ks.append((nop(), 256, 256)); order = [5] + order
    if "nop3" in X: ks.append((nop(), 256, 256)); order = order + [5, 5, 5]
    if "dup" in X: order = order + order
    t = HEADER
    for (k, nv, lds), grid, block in [ks[i] for i in order]:
        t += f"; @launch kernel={k.name}_kernel grid=({grid},1,1) block=({block},1,1) lds={lds}\n"
    t += '.amdgcn_target "amdgcn-amd-amdhsa--gfx950"\n.text\n'
    for (k, nv, lds), grid, block in ks:
        t += kernel_text(k, nv)
    t += "L_code_end:\n"
    t += '.section .rodata,"a"\n'
    for (k, nv, lds), grid, block in ks:
        t += kernel_desc(k, nv)
    open(path, "w").write(t)

if __name__ == "__main__":
    if len(sys.argv) > 2 and sys.argv[2] == "prof": K.prof = True
    if len(sys.argv) > 2 and sys.argv[2] == "dbg": K.prof = "dbg"
    build(sys.argv[1] if len(sys.argv) > 1 else "sequential_preLN__mha_block__mixer_channel_mlp__prompt.s")
```

```python
import sys, math, struct, os
X = set(os.environ.get("EXP", "").split(","))
from asmlib import K, vr, sr, kernel_text, kernel_desc

S = 2048; D = 640; F = 1728; H = 32; DH = 20
QK_OFF = 0x0
V_OFF = 0x500000
O_OFF = 0x780000
H_OFF = 0xA00000
G_OFF = 0xC80000
HS_OFF = 0x1340000
C1_OFF = 0x1370000
ST_OFF = 0x1378000
FL_OFF = 0x1400000
TAG_OFF = 0x1420000
WS_END = 0x1420100
S_TAG = 88; S_WID = 89
MRG = 131072 + 2048
G_END = 0x1340000
CH = S * 16
EPS = 1e-5

def f32(x):
    return "0x%08x" % struct.unpack("<I", struct.pack("<f", x))[0]

def srd(k, d, lo, hi, size):
    k(f"s_mov_b32 s{d}, s{lo}")
    k(f"s_and_b32 s{d+1}, s{hi}, 0xffff")
    k(f"s_mov_b32 s{d+2}, {size:#x}")
    k(f"s_mov_b32 s{d+3}, 0x00020000")

def code_prefetch(k, first, sd, st, vaddr, vdst, v_lane, per=12):
    lab = k.L("pc%d" % k.uid); k.uid += 1
    k(f"s_getpc_b64 s[{sd}:{sd+1}]")
    k.label(lab)
    k(f"s_add_u32 s{sd}, s{sd}, {first}-{lab}")
    k(f"s_addc_u32 s{sd+1}, s{sd+1}, {'-1' if first == k.name + '_kernel' else '0'}")
    k(f"s_and_b32 s{sd+1}, s{sd+1}, 0xffff")
    k(f"s_mov_b32 s{sd+2}, L_code_end-{first}")
    k(f"s_mov_b32 s{sd+3}, 0x00020000")
    k(f"s_lshr_b32 s{st}, s2, 3"); k(f"s_mul_i32 s{st}, s{st}, {per * 128}")
    k(f"v_lshlrev_b32 v{vaddr}, 7, v{v_lane}")
    k(f"s_mov_b64 exec, {(1 << per) - 1:#x}")
    k(f"buffer_load_dword v{vdst}, v{vaddr}, s[{sd}:{sd+3}], s{st} offen")
    k("s_mov_b64 exec, -1")

def gate(k, us):
    lab = k.L("gate%d" % k.uid); k.uid += 1
    k("s_load_dwordx2 s[80:81], s[0:1], 80"); k("s_waitcnt lgkmcnt(0)")
    k(f"s_add_u32 s80, s80, {TAG_OFF + 4}"); k("s_addc_u32 s81, s81, 0")
    k("s_load_dword s82, s[80:81], 0"); k("s_waitcnt lgkmcnt(0)")
    k.label(lab)
    k("s_memrealtime s[84:85]"); k("s_waitcnt lgkmcnt(0)")
    k("s_sub_u32 s84, s84, s82")
    k(f"s_cmp_lt_u32 s84, {us * 100}"); k(f"s_cbranch_scc1 {lab}")

def rowstat_math(k, s_, q_, nm, rs, t, double):
    k(f"v_mul_f32 v{nm}, {f32(-1.0 / D)}, v{s_}")
    k(f"v_mul_f32 v{q_}, {f32(1.0 / D)}, v{q_}")
    k(f"v_fma_f32 v{q_}, -v{nm}, v{nm}, v{q_}")
    k(f"v_max_f32 v{q_}, 0, v{q_}")
    k(f"v_add_f32 v{t}, {f32(EPS)}, v{q_}")
    k(f"v_rsq_f32 v{rs}, v{t}")
    if double:
        k(f"v_mul_f32 v{t}, v{rs}, v{rs}")
        k(f"v_mul_f32 v{t}, v{t}, v{q_}")
        k(f"v_add_f32 v{t}, {f32(EPS)}, v{t}")
        k(f"v_rsq_f32 v{t}, v{t}")
        k(f"v_mul_f32 v{rs}, v{rs}, v{t}")


def publish(k, sW, ph, s_idx, s_t, v0_, v1_):
    k(f"s_lshl_b32 s{s_t}, s{s_idx}, 7"); k(f"s_add_u32 s{s_t}, s{s_t}, {FL_OFF + (ph - 1) * 32768}")
    k(f"v_mov_b32 v{v0_}, 0"); k(f"v_mov_b32 v{v1_}, s{S_TAG}")
    k("s_mov_b64 exec, 1")
    k(f"buffer_store_dword v{v1_}, v{v0_}, s[{sW}:{sW+3}], s{s_t} offen sc1")
    k("s_mov_b64 exec, -1")

def poll(k, sW, vaddrs, vdsts, s_it, name, slp=0):
    k(f"s_mov_b32 s{s_it}, 0")
    k.label(k.L("poll" + name))
    for va, vd in zip(vaddrs, vdsts):
        k(f"buffer_load_dword v{vd}, v{va}, s[{sW}:{sW+3}], 0 offen sc1")
    k(f"s_add_u32 s{s_it}, s{s_it}, 1")
    k("s_waitcnt vmcnt(0)")
    k(f"v_cmp_ne_u32 vcc, s{S_TAG}, v{vdsts[0]}")
    for vd in vdsts[1:]:
        k(f"v_cmp_ne_u32 s[90:91], s{S_TAG}, v{vd}")
        k("s_or_b64 vcc, vcc, s[90:91]")
    k(f"s_cbranch_vccz {k.L('go' + name)}")
    if slp: k(f"s_sleep {slp}")
    k(f"s_cmp_lt_u32 s{s_it}, 0x8000")
    k(f"s_cbranch_scc1 {k.L('poll' + name)}")
    k.label(k.L("go" + name))

def phase1(k):
    k.pref = "p1"
    kind = "qkv"; qkv = True
    NB = 1920 if qkv else F
    BROW = NB * 2
    NS = 4; SLOT = 32768; NST = 10
    SB = NS * SLOT
    SL = SB + 2048
    sA, sB, sW, sBi = 4, 8, 12, 16
    s_mb, s_nb, s_w = 20, 21, 22
    s_wm, s_wn = 23, 24
    s_offA, s_offB, s_m0, s_it, s_delta, s_t0, s_t1, s_slot = 25, 26, 27, 28, 29, 30, 31, 32
    s_ones = 33
    s_wid = S_WID
    v_lane, v_t, v_h = 1, 2, 3
    vAd = [4, 5, 6, 7]; vBd = [8, 9, 10, 11]
    vBr = [12, 13]
    v_b1 = 17
    vt = [18, 19, 20, 21, 22, 23]
    vAr = [24, 25, 26, 27]
    FA = [[32 + 16 * i, 36 + 16 * i] for i in range(4)]
    FB = [[40 + 16 * i, 44 + 16 * i] for i in range(4)]
    ACC = 96
    def acc(mt, nt): return ACC + (mt * 2 + nt) * 16
    EP = 160
    kidx = 0 if qkv else 3

    if "early" in X: k("s_memrealtime s[86:87]")
    k.stamp(0); k.stamp(1, True)
    k(f"s_cmp_ge_u32 s2, 256"); k(f"s_cbranch_scc1 L_exit")
    if qkv:
        k("s_load_dwordx4 s[36:39], s[0:1], 0")
        k("s_load_dwordx4 s[40:43], s[0:1], 72")
        WSL = 42
    else:
        k("s_load_dwordx2 s[36:37], s[0:1], 32")
        k("s_load_dwordx2 s[40:41], s[0:1], 80")
        WSL = 40
    k(f"s_and_b32 s{s_t0}, s2, 7"); k(f"s_lshr_b32 s{s_t1}, s2, 3")
    if qkv:
        k(f"s_lshr_b32 s{s_mb}, s{s_t0}, 1"); k(f"s_lshl_b32 s{s_mb}, s{s_mb}, 2")
        k(f"s_and_b32 s{s_nb}, s{s_t1}, 3"); k(f"s_add_u32 s{s_mb}, s{s_mb}, s{s_nb}")
        k(f"s_and_b32 s{s_nb}, s{s_t0}, 1"); k(f"s_lshl_b32 s{s_nb}, s{s_nb}, 3")
        k(f"s_lshr_b32 s{s_t1}, s{s_t1}, 2"); k(f"s_add_u32 s{s_nb}, s{s_nb}, s{s_t1}")
    else:
        k(f"s_lshl_b32 s{s_mb}, s{s_t0}, 1"); k(f"s_and_b32 s{s_nb}, s{s_t1}, 1"); k(f"s_add_u32 s{s_mb}, s{s_mb}, s{s_nb}")
        k(f"s_lshr_b32 s{s_nb}, s{s_t1}, 1")
    k(f"v_lshrrev_b32 v{vt[0]}, 6, v0")
    k(f"v_and_b32 v{v_lane}, 63, v0")
    k(f"v_readfirstlane_b32 s{s_wid}, v{vt[0]}")
    k(f"v_and_b32 v{v_t}, 31, v0")
    k(f"v_bfe_u32 v{v_h}, v0, 5, 1")
    k(f"s_and_b32 s{s_w}, s{s_wid}, 3")
    k(f"s_cmp_lt_u32 s{s_wid}, 4")
    k(f"s_cbranch_scc1 {k.L('compute')}")
    if qkv:
        k(f"s_cmp_ge_u32 s{s_nb}, 15"); k(f"s_cbranch_scc1 {k.L('auxl')}")
        k(f"v_lshrrev_b32 v{vt[0]}, 3, v{v_lane}")
        k(f"v_and_b32 v{vt[1]}, 7, v{v_lane}")
        k(f"v_lshrrev_b32 v{vt[2]}, 1, v{vt[0]}")
        k(f"v_xor_b32 v{vt[2]}, v{vt[2]}, v{vt[1]}")
        k(f"v_xor_b32 v{vt[3]}, 4, v{vt[2]}")
        k(f"s_lshl_b32 s{s_t0}, s{s_mb}, 7"); k(f"s_lshl_b32 s{s_t1}, s{s_w}, 5"); k(f"s_add_u32 s{s_t0}, s{s_t0}, s{s_t1}")
        k(f"v_add_u32 v{vt[0]}, s{s_t0}, v{vt[0]}")
        k(f"v_mul_u32_u24 v{vt[0]}, 1280, v{vt[0]}")
        for ii in range(4):
            k(f"v_lshl_add_u32 v{vAd[ii]}, v{vt[2 + (ii & 1)]}, 4, v{vt[0]}")
            if ii: k(f"v_add_u32 v{vAd[ii]}, {ii * (8 * 1280 - 1024)}, v{vAd[ii]}")
        stepA = 128
    else:
        k(f"s_lshl_b32 s{s_t0}, s{s_mb}, 11")
        k(f"s_mul_i32 s{s_t1}, s{s_w}, {2 * CH}")
        k(f"s_add_u32 s{s_t0}, s{s_t0}, s{s_t1}")
        k(f"s_add_u32 s{s_t0}, s{s_t0}, {H_OFF}")
        k(f"v_lshl_add_u32 v{vAd[0]}, v{v_lane}, 4, s{s_t0}")
        k(f"v_mov_b32 v{vAd[1]}, v{vAd[0]}")
        k(f"v_add_u32 v{vAd[2]}, {CH - 2048}, v{vAd[0]}")
        k(f"v_add_u32 v{vAd[3]}, {CH - 2048}, v{vAd[0]}")
        stepA = 8 * CH
    k(f"v_lshrrev_b32 v{vt[0]}, 4, v{v_lane}")
    k(f"v_and_b32 v{vt[1]}, 15, v{v_lane}")
    k(f"v_lshlrev_b32 v{vt[2]}, 2, v{vt[0]}")
    k(f"v_xor_b32 v{vt[1]}, v{vt[1]}, v{vt[2]}")
    k(f"s_lshl_b32 s{s_t0}, s{s_w}, 4")
    k(f"v_add_u32 v{vt[0]}, s{s_t0}, v{vt[0]}")
    k(f"v_mul_u32_u24 v{vt[0]}, {BROW}, v{vt[0]}")
    k(f"v_lshl_add_u32 v{vt[0]}, v{vt[1]}, 4, v{vt[0]}")
    k(f"s_lshl_b32 s{s_t0}, s{s_nb}, 8")
    k(f"v_add_u32 v{vBd[0]}, s{s_t0}, v{vt[0]}")
    for ii in range(1, 4):
        k(f"v_add_u32 v{vBd[ii]}, {ii * (4 * BROW - 1024)}, v{vBd[0]}")
    stepB = 64 * BROW
    k(f"s_mov_b32 s{s_offA}, 0"); k(f"s_mov_b32 s{s_offB}, 0")
    k(f"s_lshl_b32 s{s_m0}, s{s_w}, 12")
    k(f"s_mov_b32 s{s_it}, 0")
    k("s_waitcnt lgkmcnt(0)")
    if qkv:
        srd(k, sA, 36, 37, S * D * 2); srd(k, sB, 38, 39, D * NB * 2)
    else:
        srd(k, sB, 36, 37, D * NB * 2); srd(k, sW, WSL, WSL + 1, WS_END)
        sA = sW
    def dma_stage():
        r = []
        r.append(f"s_mov_b32 m0, s{s_m0}")
        for ii in range(4):
            r.append(f"buffer_load_dwordx4 v{vAd[ii]}, s[{sA}:{sA+3}], s{s_offA} offen offset:{ii*1024} lds")
        r.append(f"s_add_u32 m0, s{s_m0}, 16384")
        for ii in range(4):
            r.append(f"buffer_load_dwordx4 v{vBd[ii]}, s[{sB}:{sB+3}], s{s_offB} offen offset:{ii*1024} lds")
        r.append(f"s_add_u32 s{s_offA}, s{s_offA}, {stepA}")
        r.append(f"s_add_u32 s{s_offB}, s{s_offB}, {stepB}")
        r.append(f"s_add_u32 s{s_m0}, s{s_m0}, {SLOT}")
        r.append(f"s_and_b32 s{s_m0}, s{s_m0}, {NS * SLOT - 1}")
        return r
    def lstep(n=8, dma=True):
        if dma:
            for l in dma_stage(): k(l)
        k(f"s_waitcnt vmcnt({n})")
        k("s_barrier")
    def lloop(tag, n):
        k(f"s_mov_b32 s{s_it}, 0")
        k.label(k.L("lloop" + tag))
        lstep()
        k(f"s_add_u32 s{s_it}, s{s_it}, 1")
        k(f"s_cmp_lt_u32 s{s_it}, {n}")
        k(f"s_cbranch_scc1 {k.L('lloop' + tag)}")
    XS = 32
    v_tag = 16
    RG_OFF = ST_OFF; CG_OFF = ST_OFF + 32768
    def slice_addr_rows():
        k(f"v_lshrrev_b32 v{vt[4]}, 4, v{v_lane}")
        k(f"v_and_b32 v{vt[5]}, 15, v{v_lane}")
        k(f"v_mul_u32_u24 v{vt[4]}, 1280, v{vt[4]}")
        k(f"v_lshl_add_u32 v{vt[4]}, v{vt[5]}, 4, v{vt[4]}")
        k(f"s_lshl_b32 s{s_t0}, s{s_mb}, 5"); k(f"s_lshl_b32 s{s_t1}, s{s_nb}, 1"); k(f"s_add_u32 s{s_t0}, s{s_t0}, s{s_t1}")
        k(f"s_add_u32 s{s_delta}, s{s_t0}, s{s_w}"); k(f"s_mul_i32 s{s_t0}, s{s_delta}, {4 * 1280}")
    def slice_load_rows():
        for i in range(5):
            k(f"buffer_load_dwordx4 {vr(XS + 4*i, 4)}, v{vt[4]}, s[{sA}:{sA+3}], s{s_t0} offen offset:{256 * i}")
    def tag_load():
        k(f"v_mov_b32 v15, 0")
        k(f"buffer_load_dword v{v_tag}, v15, s[{sBi}:{sBi+3}], 0 offen sc1")
    def tag_wait(tag):
        k(f"s_mov_b32 s{s_it}, 0")
        k.label(k.L("tw" + tag))
        k(f"v_cmp_eq_u32 vcc, 0, v{v_tag}")
        k(f"s_cbranch_vccz {k.L('tr' + tag)}")
        k("s_sleep 2")
        k(f"buffer_load_dword v{v_tag}, v15, s[{sBi}:{sBi+3}], 0 offen sc1")
        k(f"s_add_u32 s{s_it}, s{s_it}, 1")
        k("s_waitcnt vmcnt(0)")
        k(f"s_cmp_lt_u32 s{s_it}, 0x4000")
        k(f"s_cbranch_scc1 {k.L('tw' + tag)}")
        k.label(k.L("tr" + tag))
    def slice_rows(part):
        if part == 0:
            k("v_mov_b32 v56, 0"); k("v_mov_b32 v57, 0"); k("v_mov_b32 v58, 0"); k("v_mov_b32 v59, 0")
        for r in (range(13) if part == 0 else range(13, 20)):
            k(f"v_lshlrev_b32 v52, 16, v{XS + r}")
            k(f"v_and_b32 v53, 0xffff0000, v{XS + r}")
            k("v_add_f32 v56, v56, v52"); k("v_fmac_f32 v57, v52, v52")
            k("v_add_f32 v58, v58, v53"); k("v_fmac_f32 v59, v53, v53")
        if part == 0: return
        k("v_add_f32 v56, v56, v58"); k("v_add_f32 v57, v57, v59")
        for sh in (8, 4, 2, 1):
            k(f"v_add_f32_dpp v56, v56, v56 row_ror:{sh} row_mask:0xf bank_mask:0xf")
            k(f"v_add_f32_dpp v57, v57, v57 row_ror:{sh} row_mask:0xf bank_mask:0xf")
        rowstat_math(k, 56, 57, 60, 62, 52, False)
        k(f"v_mov_b32 v61, v{v_tag}"); k(f"v_mov_b32 v63, v{v_tag}")
        k(f"s_lshl_b32 s{s_t0}, s{s_delta}, 6"); k(f"s_add_u32 s{s_t0}, s{s_t0}, {RG_OFF}")
        k("s_mov_b32 exec_lo, 0x00010001"); k("s_mov_b32 exec_hi, 0x00010001")
        k(f"buffer_store_dwordx4 v[60:63], v{v_lane}, s[{sW}:{sW+3}], s{s_t0} offen sc1")
        k("s_mov_b64 exec, -1")
    def slice_cols(part):
        if part == 0:
            for r in range(4):
                k(f"v_lshlrev_b32 v{56 + 2*r}, 16, v{XS + r}"); k(f"v_and_b32 v{57 + 2*r}, 0xffff0000, v{XS + r}")
            for i in range(1, 5):
                for r in range(4):
                    k(f"v_lshlrev_b32 v52, 16, v{XS + 4*i + r}"); k(f"v_and_b32 v53, 0xffff0000, v{XS + 4*i + r}")
                    k(f"v_add_f32 v{56 + 2*r}, v{56 + 2*r}, v52"); k(f"v_add_f32 v{57 + 2*r}, v{57 + 2*r}, v53")
            return
        for r in range(4): k(f"v_permlane32_swap_b32 v{56 + r}, v{60 + r}")
        for r in range(4): k(f"v_add_f32 v{56 + r}, v{56 + r}, v{60 + r}")
        for r in range(2): k(f"v_permlane16_swap_b32 v{56 + r}, v{58 + r}")
        k("v_add_f32 v56, v56, v58"); k("v_add_f32 v58, v57, v59")
        k(f"v_mov_b32 v57, v{v_tag}"); k(f"v_mov_b32 v59, v{v_tag}")
        k(f"v_and_b32 v{vt[4]}, 48, v{v_lane}")
        k(f"v_lshl_add_u32 v{vt[4]}, v{vt[5]}, 6, v{vt[4]}")
        k(f"s_mul_i32 s{s_t0}, s{s_delta}, 15360"); k(f"s_lshl_b32 s{s_t1}, s{s_nb}, 10"); k(f"s_add_u32 s{s_t0}, s{s_t0}, s{s_t1}")
        k(f"s_add_u32 s{s_t0}, s{s_t0}, {CG_OFF}")
        k(f"buffer_store_dwordx4 v[56:59], v{vt[4]}, s[{sW}:{sW+3}], s{s_t0} offen sc1")
    def slice_part(part):
        k(f"s_cmp_ge_u32 s{s_w}, 2"); k(f"s_cbranch_scc1 {k.L('slc%d' % part)}")
        slice_rows(part)
        k(f"s_branch {k.L('sld%d' % part)}")
        k.label(k.L("slc%d" % part))
        slice_cols(part)
        k.label(k.L("sld%d" % part))
    for l in dma_stage(): k(l)
    if qkv:
        for l in dma_stage(): k(l)
        k(f"s_cmp_ge_u32 s{s_w}, 2"); k(f"s_cbranch_scc1 {k.L('slc')}")
        slice_addr_rows(); slice_load_rows()
        k(f"s_branch {k.L('sll')}")
        k.label(k.L("slc"))
        k(f"v_lshrrev_b32 v{vt[4]}, 4, v{v_lane}")
        k(f"v_and_b32 v{vt[5]}, 15, v{v_lane}")
        k(f"v_mul_u32_u24 v{vt[4]}, {BROW}, v{vt[4]}")
        k(f"v_lshl_add_u32 v{vt[4]}, v{vt[5]}, 4, v{vt[4]}")
        k(f"s_lshl_b32 s{s_delta}, s{s_mb}, 1"); k(f"s_add_u32 s{s_delta}, s{s_delta}, s{s_w}"); k(f"s_sub_u32 s{s_delta}, s{s_delta}, 2")
        k(f"s_mul_i32 s{s_t0}, s{s_delta}, {20 * BROW}"); k(f"s_lshl_b32 s{s_t1}, s{s_nb}, 8"); k(f"s_add_u32 s{s_t0}, s{s_t0}, s{s_t1}")
        for i in range(5):
            k(f"buffer_load_dwordx4 {vr(XS + 4*i, 4)}, v{vt[4]}, s[{sB}:{sB+3}], s{s_t0} offen")
            k(f"s_add_u32 s{s_t0}, s{s_t0}, {4 * BROW}")
        k.label(k.L("sll"))
        srd(k, sW, WSL, WSL + 1, WS_END); srd(k, sBi, 40, 41, 256)
        lstep(13, False)
        tag_load()
        lstep(14)
        lstep(8)
        for l in dma_stage(): k(l)
        slice_part(0)
        lstep(8, False)
        for l in dma_stage(): k(l)
        tag_wait("a")
        slice_part(1)
        lstep(9, False)
        lstep(9)
        lstep(); lstep()
        for l in dma_stage(): k(l)
        k(f"s_lshl_b32 s{s_t0}, s{s_mb}, 11"); k(f"s_lshl_b32 s{s_t1}, s{s_w}, 9"); k(f"s_add_u32 s{s_t0}, s{s_t0}, s{s_t1}")
        k(f"s_add_u32 s{s_offA}, s{s_t0}, {RG_OFF}")
        k(f"v_lshlrev_b32 v{vt[0]}, 4, v{v_t}")
        k(f"v_lshrrev_b32 v{vt[1]}, 4, v{v_lane}")
        k(f"v_mul_u32_u24 v{vt[1]}, {8 * 15360}, v{vt[1]}")
        k(f"v_lshl_add_u32 v{vt[1]}, v{vt[5]}, 4, v{vt[1]}")
        k(f"s_lshl_b32 s{s_t0}, s{s_nb}, 10"); k(f"s_lshl_b32 s{s_t1}, s{s_w}, 8"); k(f"s_add_u32 s{s_t0}, s{s_t0}, s{s_t1}")
        k(f"s_add_u32 s{s_offB}, s{s_t0}, {CG_OFF}")
        def gather():
            k(f"buffer_load_dwordx4 v[64:67], v{vt[0]}, s[{sW}:{sW+3}], s{s_offA} offen sc1")
            k(f"s_mov_b32 s{s_t0}, s{s_offB}")
            for i in range(8):
                k(f"buffer_load_dwordx4 {vr(32 + 4*i, 4)}, v{vt[1]}, s[{sW}:{sW+3}], s{s_t0} offen sc1")
                k(f"s_add_u32 s{s_t0}, s{s_t0}, 15360")
        gather()
        lstep(17, False)
        lstep(9, False)
        k(f"s_mov_b32 s{s_it}, 0")
        k.label(k.L("poll"))
        k("s_waitcnt vmcnt(0)")
        k(f"v_and_b32 v68, v65, v67"); k(f"v_or_b32 v69, v65, v67")
        for i in range(16):
            k(f"v_and_b32 v68, v68, v{33 + 2*i}"); k(f"v_or_b32 v69, v69, v{33 + 2*i}")
        k(f"v_xor_b32 v68, v68, v{v_tag}"); k(f"v_xor_b32 v69, v69, v{v_tag}"); k("v_or_b32 v68, v68, v69")
        k(f"v_cmp_ne_u32 vcc, 0, v68")
        k(f"s_cbranch_vccz {k.L('ready')}")
        k("s_sleep 2")
        gather()
        k(f"s_add_u32 s{s_it}, s{s_it}, 1")
        k(f"s_cmp_lt_u32 s{s_it}, 0x2000")
        k(f"s_cbranch_scc1 {k.L('poll')}")
        k("s_waitcnt vmcnt(0)")
        k.label(k.L("ready"))
        k("v_add_f32 v33, v34, v38")
        for i in range(1, 8):
            k(f"v_add_f32 v32, v32, v{32 + 4*i}")
            if i > 1: k(f"v_add_f32 v33, v33, v{34 + 4*i}")
        k(f"s_cmp_lt_u32 s{s_nb}, 5")
        k(f"s_cselect_b32 s{s_t0}, {f32(math.log2(math.e) / math.sqrt(DH))}, 1.0")
        k(f"v_mul_f32 v65, s{s_t0}, v66")
        k(f"s_lshl_b32 s{s_t1}, s{s_w}, 7"); k(f"s_add_u32 s{s_t1}, s{s_t1}, {SB}")
        k(f"v_lshl_add_u32 v{vt[0]}, v{v_t}, 2, s{s_t1}")
        k(f"ds_write2_b32 v{vt[0]}, v64, v65 offset0:0 offset1:128")
        for sw in ("v_permlane32_swap_b32", "v_permlane16_swap_b32"):
            k("v_mov_b32 v34, v32"); k("v_mov_b32 v35, v33")
            k(f"{sw} v32, v34"); k(f"{sw} v33, v35")
            k("v_add_f32 v32, v32, v34"); k("v_add_f32 v33, v33, v35")
        k(f"v_lshl_add_u32 v{vt[1]}, v{vt[5]}, 3, s{s_t1}")
        k(f"ds_write_b64 v{vt[1]}, v[32:33] offset:1024")
        k("s_waitcnt lgkmcnt(0)")
        k("s_barrier")
    else:
        lloop("", 8)
        for l in dma_stage(): k(l)
        PS = 32
        k(f"s_lshl_b32 s{s_t0}, s{s_mb}, 7"); k(f"s_lshl_b32 s{s_t1}, s{s_w}, 5"); k(f"s_add_u32 s{s_t0}, s{s_t0}, s{s_t1}")
        k(f"v_add_lshl_u32 v{vt[2]}, v{v_t}, s{s_t0}, 3")
        k(f"v_mul_u32_u24 v{vt[1]}, {5 * 16384}, v{v_h}")
        k(f"v_add_u32 v{vt[2]}, v{vt[2]}, v{vt[1]}")
        for i in range(5):
            k(f"s_mov_b32 s{s_t0}, {HS_OFF + i * 16384}")
            k(f"buffer_load_dwordx2 {vr(PS + 2*i, 2)}, v{vt[2]}, s[{sW}:{sW+3}], s{s_t0} offen")
        k(f"s_lshl_b32 s{s_t0}, s{s_nb}, 10"); k(f"s_lshl_b32 s{s_t1}, s{s_w}, 8"); k(f"s_add_u32 s{s_t0}, s{s_t0}, s{s_t1}")
        k(f"s_add_u32 s{s_t0}, s{s_t0}, {C1_OFF}")
        k(f"s_add_u32 m0, s{s_t1}, {SB + 1024}")
        k(f"v_lshlrev_b32 v{vt[3]}, 2, v{v_lane}")
        k(f"buffer_load_dword v{vt[3]}, s[{sW}:{sW+3}], s{s_t0} offen lds")
        lstep(14, False)
        lstep(6, False)
        k("s_waitcnt vmcnt(0)")
        for i in range(1, 5):
            k(f"v_add_f32 v{PS}, v{PS}, v{PS + 2*i}"); k(f"v_add_f32 v{PS+1}, v{PS+1}, v{PS + 2*i + 1}")
        k(f"v_mov_b32 v{PS+2}, v{PS}"); k(f"v_mov_b32 v{PS+3}, v{PS+1}")
        k(f"v_permlane32_swap_b32 v{PS}, v{PS+2}"); k(f"v_permlane32_swap_b32 v{PS+1}, v{PS+3}")
        k(f"v_add_f32 v{PS}, v{PS}, v{PS+2}"); k(f"v_add_f32 v{PS+1}, v{PS+1}, v{PS+3}")
        rowstat_math(k, PS, PS + 1, 44, 45, PS + 2, True)
        k(f"s_lshl_b32 s{s_t1}, s{s_w}, 7"); k(f"s_add_u32 s{s_t1}, s{s_t1}, {SB}")
        k(f"v_lshl_add_u32 v{vt[3]}, v{v_t}, 2, s{s_t1}")
        k(f"ds_write_b32 v{vt[3]}, v44")
        k(f"ds_write_b32 v{vt[3]}, v45 offset:512")
        k("s_waitcnt lgkmcnt(0)")
        k("s_barrier")
    if not qkv: k.stamp(3); k.stamp(4); k.stamp(5); k.stamp(6)
    k(f"s_branch {k.L('end')}")
    k.label(k.L("compute"))
    if qkv:
        k(f"s_or_b32 s{s_t0}, s2, s{s_w}")
        k(f"s_cbranch_scc1 {k.L('notag')}")
        k("s_memrealtime s[44:45]")
        k("s_waitcnt lgkmcnt(0)")
        srd(k, sBi, 40, 41, 256)
        if "gate" in X: k(f"v_mov_b32 v{vt[2]}, s{86 if 'early' in X else 44}")
        k("s_mul_i32 s44, s44, 0x9e3779b1"); k("s_or_b32 s44, s44, 1")
        k(f"v_mov_b32 v{vt[0]}, 0"); k(f"v_mov_b32 v{vt[1]}, s44")
        k("s_mov_b64 exec, 1")
        k(f"buffer_store_dword v{vt[1]}, v{vt[0]}, s[{sBi}:{sBi+3}], 0 offen sc1")
        srd(k, sW, WSL, WSL + 1, WS_END)
        k(f"s_mov_b32 s{s_t0}, {TAG_OFF}")
        k(f"buffer_store_dword v{vt[1]}, v{vt[0]}, s[{sW}:{sW+3}], s{s_t0} offen sc1")
        if "gate" in X: k(f"buffer_store_dword v{vt[2]}, v{vt[0]}, s[{sW}:{sW+3}], s{s_t0} offen offset:4 sc1")
        k("s_mov_b64 exec, -1")
        k.label(k.L("notag"))
        if "nocpf" not in X:
            k(f"s_cmp_lg_u32 s{s_w}, 1"); k(f"s_cbranch_scc1 {k.L('nocpf')}")
            code_prefetch(k, k.name + "_kernel", sB, s_t0, vt[0], 14, v_lane)
            k.label(k.L("nocpf"))
        k(f"s_cmp_ge_u32 s{s_nb}, 15"); k(f"s_cbranch_scc1 {k.L('aux')}")
    k(f"s_lshr_b32 s{s_wm}, s{s_w}, 1"); k(f"s_and_b32 s{s_wn}, s{s_w}, 1")
    k(f"s_mov_b32 s34, {SLOT}")
    if qkv:
        k(f"v_bfe_u32 v{vt[0]}, v{v_t}, 1, 3")
        k(f"v_xor_b32 v{vt[0]}, v{vt[0]}, v{v_h}")
        k(f"s_lshl_b32 s{s_t0}, s{s_wm}, 13")
        k(f"v_lshl_add_u32 v{vt[1]}, v{v_t}, 7, s{s_t0}")
        for ks in range(4):
            k(f"v_xor_b32 v{vt[2]}, {2*ks}, v{vt[0]}")
            k(f"v_lshl_add_u32 v{vAr[ks]}, v{vt[2]}, 4, v{vt[1]}")
        def a_read(dst, ks, mt): return f"ds_read_b128 {vr(dst,4)}, v{vAr[ks]} offset:{mt*4096}"
        def a_upd(ks): return [vAr[ks]]
    else:
        k(f"s_lshl_b32 s{s_t0}, s{s_wm}, 10")
        k(f"v_lshl_add_u32 v{vt[0]}, v{v_t}, 4, s{s_t0}")
        k(f"v_lshl_add_u32 v{vAr[0]}, v{v_h}, 11, v{vt[0]}")
        def a_read(dst, ks, mt): return f"ds_read_b128 {vr(dst,4)}, v{vAr[0]} offset:{ks*4096 + mt*512}"
        def a_upd(ks): return [vAr[0]] if ks == 0 else []
    k(f"v_bfe_u32 v{vt[0]}, v{v_lane}, 2, 2")
    k(f"v_lshl_add_u32 v{vt[1]}, v{v_h}, 3, v{vt[0]}")
    k(f"v_lshlrev_b32 v{vt[1]}, 8, v{vt[1]}")
    k(f"v_bfe_u32 v{vt[2]}, v{v_lane}, 4, 1")
    k(f"v_lshl_add_u32 v{vt[1]}, v{vt[2]}, 5, v{vt[1]}")
    k(f"v_and_b32 v{vt[2]}, 3, v{v_lane}")
    k(f"v_lshl_add_u32 v{vt[1]}, v{vt[2]}, 3, v{vt[1]}")
    k(f"v_add_u32 v{vt[1]}, 16384, v{vt[1]}")
    k(f"s_lshl_b32 s{s_t0}, s{s_wn}, 1")
    k(f"v_xor_b32 v{vt[2]}, s{s_t0}, v{vt[0]}")
    k(f"v_lshl_add_u32 v{vBr[0]}, v{vt[2]}, 6, v{vt[1]}")
    k(f"v_xor_b32 v{vBr[1]}, 64, v{vBr[0]}")
    def b_read(dst, ks, nt, e): return f"ds_read_b64_tr_b16 {vr(dst + 2*e, 2)}, v{vBr[nt]} offset:{ks*4096 + e*1024}"
    for r in range(64): k(f"v_mov_b32 v{ACC + r}, 0")
    k(f"s_mov_b32 s{s_it}, 0"); k(f"s_mov_b32 s{s_slot}, 0")
    k("s_waitcnt lgkmcnt(0)")
    srd(k, sW, WSL, WSL + 1, WS_END)

    def reads(ks):
        return [a_read(FA[ks][0], ks, 0), b_read(FB[ks][0], ks, 0, 0), b_read(FB[ks][0], ks, 0, 1),
                b_read(FB[ks][1], ks, 1, 0), b_read(FB[ks][1], ks, 1, 1), a_read(FA[ks][1], ks, 1)]
    k("s_waitcnt lgkmcnt(0)")
    k("s_barrier")
    for l in reads(0) + reads(1): k(l)

    def mainloop(tag, vorient):
        k.label(k.L("loop" + tag))
        for ks in range(4):
            mf = []
            for mt in range(2):
                for nt in range(2):
                    a, b = FA[ks][mt], FB[ks][nt]
                    s0, s1 = (a, b) if vorient else (b, a)
                    mf.append(f"v_mfma_f32_32x32x16_bf16 {vr(acc(mt,nt),16)}, {vr(s0,4)}, {vr(s1,4)}, {vr(acc(mt,nt),16)}")
            pre = []
            if ks == 2:
                k("s_barrier")
                pre += [f"s_add_u32 s{s_slot}, s{s_slot}, 1", f"s_and_b32 s{s_slot}, s{s_slot}, {NS - 1}",
                        f"s_cselect_b32 s{s_delta}, s34, {(-(NS - 1) * SLOT) & 0xffffffff:#x}"]
                pre += [f"v_add_u32 v{a}, s{s_delta}, v{a}" for a in vBr]
            nk = (ks + 2) % 4
            if ks >= 2:
                pre += [f"v_add_u32 v{a}, s{s_delta}, v{a}" for a in a_upd(nk)]
            post = []
            if ks == 3:
                post = [f"v_add_u32 v{a}, s{s_delta}, v{a}" for a in a_upd(2) + a_upd(3)]
                post += [f"s_add_u32 s{s_it}, s{s_it}, 1", f"s_cmp_lt_u32 s{s_it}, {NST}"]
            rd = reads(nk)
            k("s_waitcnt lgkmcnt(6)")
            seq = [mf[0]] + pre + rd[0:2] + [mf[1]] + rd[2:4] + [mf[2]] + rd[4:6] + post + [mf[3]]
            for l in seq: k(l)
        k(f"s_cbranch_scc1 {k.L('loop' + tag)}")

    def epi_nm():
        MR = [28, 30]
        CS = EP; B1 = EP + 32
        k(f"s_lshl_b32 s{s_t0}, s{s_wm}, 8"); k(f"s_add_u32 s{s_t0}, s{s_t0}, {SB}")
        k(f"v_lshl_add_u32 v{vt[4]}, v{v_t}, 2, s{s_t0}")
        for mt in range(2):
            k(f"ds_read2_b32 {vr(MR[mt],2)}, v{vt[4]} offset0:{mt*32} offset1:{128 + mt*32}")
        k(f"s_lshl_b32 s{s_t0}, s{s_wn}, 8"); k(f"s_add_u32 s{s_t0}, s{s_t0}, {SB}")
        k(f"v_lshl_add_u32 v{vt[0]}, v{v_h}, 4, s{s_t0}")
        for nt in range(2):
            for rq in range(4):
                k(f"ds_read_b128 {vr(CS + nt*16 + rq*4, 4)}, v{vt[0]} offset:{1024 + nt*128 + rq*32}")
            if not qkv:
                for rq in range(4):
                    k(f"ds_read_b128 {vr(B1 + nt*16 + rq*4, 4)}, v{vt[0]} offset:{1536 + nt*128 + rq*32}")
        OFF = QK_OFF if qkv else G_OFF
        k(f"s_lshl_b32 s{s_t0}, s{s_nb}, 4"); k(f"s_lshl_b32 s{s_t1}, s{s_wn}, 3"); k(f"s_add_u32 s{s_t0}, s{s_t0}, s{s_t1}")
        k(f"v_add_lshl_u32 v{vt[2]}, v{v_h}, s{s_t0}, 15")
        k(f"s_lshl_b32 s{s_t0}, s{s_mb}, 7"); k(f"s_lshl_b32 s{s_t1}, s{s_wm}, 6"); k(f"s_add_u32 s{s_t0}, s{s_t0}, s{s_t1}")
        k(f"v_add_u32 v{vt[3]}, s{s_t0}, v{v_t}")
        k(f"v_lshl_add_u32 v{vt[2]}, v{vt[3]}, 4, v{vt[2]}")
        so = 46
        for c in range(4): k(f"s_mov_b32 s{so + c}, {OFF + 2*c*CH}")
        if not qkv:
            C0 = -2.0 * math.log2(math.e) * math.sqrt(2.0 / math.pi)
            k(f"s_mov_b32 s44, {f32(C0 * 0.044715)}"); k(f"s_mov_b32 s45, {f32(C0 * 0.044715)}")
            k(f"v_mov_b32 v{vt[4]}, {f32(C0)}"); k(f"v_mov_b32 v{vt[5]}, {f32(C0)}")
        k("s_waitcnt lgkmcnt(0)")
        T = EP + 64
        n_st = 0
        for nt in range(2):
            for mt in range(2):
                a = acc(mt, nt); mr = MR[mt]
                for p in range(8):
                    x = vr(a + 2*p, 2)
                    k(f"v_pk_fma_f32 {x}, {vr(CS + nt*16 + 2*p, 2)}, {vr(mr,2)}, {x} op_sel_hi:[1,0,1]")
                for p in range(8):
                    x = vr(a + 2*p, 2)
                    if qkv:
                        k(f"v_pk_mul_f32 {x}, {x}, {vr(mr,2)} op_sel:[0,1] op_sel_hi:[1,1]")
                    else:
                        k(f"v_pk_fma_f32 {x}, {x}, {vr(mr,2)}, {vr(B1 + nt*16 + 2*p, 2)} op_sel:[0,1,0] op_sel_hi:[1,1,1]")
                if not qkv:
                    for p in range(8):
                        x = vr(a + 2*p, 2); t = vr(T + 2*p, 2)
                        k(f"v_pk_mul_f32 {t}, {x}, {x}")
                    for p in range(8):
                        t = vr(T + 2*p, 2)
                        k(f"v_pk_fma_f32 {t}, {t}, s[44:45], {vr(vt[4],2)}")
                    for p in range(8):
                        x = vr(a + 2*p, 2); t = vr(T + 2*p, 2)
                        k(f"v_pk_mul_f32 {t}, {t}, {x}")
                    for r in range(16): k(f"v_exp_f32 v{T + r}, v{T + r}")
                    for p in range(8):
                        t = vr(T + 2*p, 2)
                        k(f"v_pk_add_f32 {t}, {t}, 1.0 op_sel_hi:[1,0]")
                    for r in range(16): k(f"v_rcp_f32 v{T + r}, v{T + r}")
                    for p in range(8):
                        x = vr(a + 2*p, 2); t = vr(T + 2*p, 2)
                        k(f"v_pk_mul_f32 {x}, {x}, {t}")
                Pk = T + 16 + (n_st % 2) * 8
                for p in range(8):
                    k(f"v_cvt_pk_bf16_f32 v{Pk + p}, v{a + 2*p}, v{a + 2*p + 1}")
                for pq in range(2):
                    b = Pk + 4*pq
                    k(f"v_permlane32_swap_b32 v{b}, v{b+2}")
                    k(f"v_permlane32_swap_b32 v{b+1}, v{b+3}")
                for pq in range(2):
                    b = Pk + 4*pq
                    k(f"buffer_store_dwordx4 {vr(b,4)}, v{vt[2]}, s[{sW}:{sW+3}], s{so + nt*2 + pq} offen offset:{mt*512} sc1")
                n_st += 1

    def epi_v():
        NM = EP; RS = EP + 32; CSV = [28, 30]
        k(f"s_lshl_b32 s{s_t0}, s{s_wm}, 8"); k(f"s_add_u32 s{s_t0}, s{s_t0}, {SB}")
        k(f"v_lshl_add_u32 v{vt[0]}, v{v_h}, 4, s{s_t0}")
        k(f"s_lshl_b32 s{s_t0}, s{s_wn}, 8"); k(f"s_add_u32 s{s_t0}, s{s_t0}, {SB}")
        k(f"v_lshl_add_u32 v{vt[1]}, v{v_t}, 2, s{s_t0}")
        for nt in range(2):
            k(f"ds_read_b32 v{CSV[nt]}, v{vt[1]} offset:{1024 + nt*128}")
        for mt in range(2):
            for rq in range(4):
                k(f"ds_read_b128 {vr(NM + mt*16 + rq*4, 4)}, v{vt[0]} offset:{mt*128 + rq*32}")
                k(f"ds_read_b128 {vr(RS + mt*16 + rq*4, 4)}, v{vt[0]} offset:{512 + mt*128 + rq*32}")
        k(f"s_lshl_b32 s{s_t0}, s{s_mb}, 1"); k(f"s_add_u32 s{s_t0}, s{s_t0}, s{s_wm}"); k(f"s_mul_i32 s{s_t0}, s{s_t0}, 2560")
        k(f"s_lshl_b32 s{s_t1}, s{s_nb}, 7"); k(f"s_add_u32 s{s_t0}, s{s_t0}, s{s_t1}"); k(f"s_sub_u32 s{s_t0}, s{s_t0}, 1280")
        k(f"s_lshl_b32 s{s_t1}, s{s_wn}, 6"); k(f"s_add_u32 s{s_t0}, s{s_t0}, s{s_t1}")
        k(f"v_add_lshl_u32 v{vt[2]}, v{v_t}, s{s_t0}, 5")
        k(f"v_lshl_add_u32 v{vt[2]}, v{v_h}, 4, v{vt[2]}")
        so = 46
        for c in range(4): k(f"s_mov_b32 s{so + c}, {V_OFF + c * 640 * 32}")
        k("s_waitcnt lgkmcnt(0)")
        T = EP + 64; n_st = 0
        for mt in range(2):
            for nt in range(2):
                a = acc(mt, nt)
                for p in range(8):
                    x = vr(a + 2*p, 2)
                    k(f"v_pk_fma_f32 {x}, {vr(NM + mt*16 + 2*p, 2)}, {vr(CSV[nt],2)}, {x} op_sel_hi:[1,0,1]")
                for p in range(8):
                    x = vr(a + 2*p, 2)
                    k(f"v_pk_mul_f32 {x}, {x}, {vr(RS + mt*16 + 2*p, 2)}")
                Pk = T + (n_st % 2) * 8
                for p in range(8):
                    k(f"v_cvt_pk_bf16_f32 v{Pk + p}, v{a + 2*p}, v{a + 2*p + 1}")
                for jj in range(2):
                    k(f"buffer_store_dwordx4 {vr(Pk + 4*jj, 4)}, v{vt[2]}, s[{sW}:{sW+3}], s{so + mt*2 + jj} offen offset:{nt*1024} sc1")
                n_st += 1

    if qkv:
        k(f"s_cmp_ge_u32 s{s_nb}, 10")
        k(f"s_cbranch_scc1 {k.L('loopv')}")
        mainloop("q", False); epi_nm()
        k(f"s_branch {k.L('end')}")
        mainloop("v", True); epi_v()
        k(f"s_branch {k.L('end')}")
        k.label(k.L("auxl"))
        k(f"s_cmp_ge_u32 s{s_w}, 2"); k(f"s_cbranch_scc1 {k.L('aux')}")
        slice_addr_rows()
        k("s_waitcnt lgkmcnt(0)")
        srd(k, sA, 36, 37, S * D * 2); srd(k, sW, WSL, WSL + 1, WS_END); srd(k, sBi, 40, 41, 256)
        slice_load_rows()
        k("s_waitcnt vmcnt(0)")
        tag_load()
        slice_rows(0)
        k("s_waitcnt vmcnt(0)")
        tag_wait("x")
        slice_rows(1)
        k.label(k.L("aux"))
        k("s_load_dwordx4 s[44:47], s[0:1], 32")
        k(f"v_lshrrev_b32 v{vt[0]}, 4, v{v_lane}")
        k(f"v_and_b32 v{vt[1]}, 15, v{v_lane}")
        k(f"v_mul_u32_u24 v{vt[2]}, {F * 2}, v{vt[0]}")
        k(f"v_lshl_add_u32 v{vt[2]}, v{vt[1]}, 4, v{vt[2]}")
        k(f"v_lshlrev_b32 v{vt[3]}, 1, v0")
        k("s_waitcnt lgkmcnt(0)")
        srd(k, sW, WSL, WSL + 1, WS_END)
        k(f"s_cmp_ge_u32 s{s_mb}, 14"); k(f"s_cbranch_scc1 {k.L('end')}")
        srd(k, sB, 44, 45, D * F * 2); srd(k, sA, 46, 47, F * 2)
        k(f"s_mul_i32 s{s_t0}, s{s_wid}, {80 * F * 2}"); k(f"s_lshl_b32 s{s_t1}, s{s_mb}, 8"); k(f"s_add_u32 s{s_t0}, s{s_t0}, s{s_t1}")
        k(f"buffer_load_ushort v{v_b1}, v{vt[3]}, s[{sA}:{sA+3}], s{s_t1} offen")
        for i in range(20):
            k(f"buffer_load_dwordx4 {vr(40 + 4*i, 4)}, v{vt[2]}, s[{sB}:{sB+3}], s{s_t0} offen")
            k(f"s_add_u32 s{s_t0}, s{s_t0}, {4 * F * 2}")
        for r in range(8): k(f"v_mov_b32 v{24 + r}, 0")
        for i in range(20):
            k(f"s_waitcnt vmcnt({19 - i})")
            for r in range(4):
                k(f"v_lshlrev_b32 v{32 + 2*r}, 16, v{40 + 4*i + r}")
                k(f"v_and_b32 v{33 + 2*r}, 0xffff0000, v{40 + 4*i + r}")
            for r in range(4):
                k(f"v_pk_add_f32 {vr(24 + 2*r, 2)}, {vr(24 + 2*r, 2)}, {vr(32 + 2*r, 2)}")
        k(f"v_lshlrev_b32 v{vt[0]}, 5, v0")
        k(f"ds_write_b128 v{vt[0]}, v[24:27]")
        k(f"ds_write_b128 v{vt[0]}, v[28:31] offset:16")
        k("s_waitcnt lgkmcnt(0)")
        k("s_barrier")
        k(f"s_cmp_ge_u32 s{s_wid}, 2"); k(f"s_cbranch_scc1 {k.L('end')}")
        k(f"v_lshlrev_b32 v{vt[0]}, 2, v0")
        for i in range(32):
            k(f"ds_read_b32 v{40 + i}, v{vt[0]} offset:{i * 512}")
            if i % 8 == 7: k("s_waitcnt lgkmcnt(0)")
        for i in range(1, 32): k(f"v_add_f32 v40, v40, v{40 + i}")
        k(f"v_lshlrev_b32 v{v_b1}, 16, v{v_b1}")
        k(f"s_lshl_b32 s{s_t0}, s{s_mb}, 10"); k(f"s_add_u32 s{s_t0}, s{s_t0}, {C1_OFF}"); k(f"s_add_u32 s{s_t1}, s{s_t0}, 512")
        k(f"buffer_store_dword v40, v{vt[0]}, s[{sW}:{sW+3}], s{s_t0} offen sc1")
        k(f"buffer_store_dword v{v_b1}, v{vt[0]}, s[{sW}:{sW+3}], s{s_t1} offen sc1")
    k.label(k.L("end"))
    k(f"s_lshl_b32 s94, s{s_mb}, 4"); k(f"s_add_u32 s94, s94, s{s_nb}")
    k("s_mov_b32 s92, s40"); k("s_mov_b32 s93, s41")
    k.stamp(2)

def phase2(k):
    k.pref = "p2"
    sW = 4; sP1 = 8; sP2 = 12; sP3 = 16; sWW = 52
    s_hd, s_qb, s_w, s_qs, s_kh, s_t0, s_t1, s_it = 20, 21, S_WID, 23, 24, 25, 26, 27
    s_ko, s_vo, s_odd = 28, 29, 30
    s_vm = 32; s_lo = 34; s_c = 36
    s_do, s_dm, s_qo = 56, 57, 58
    v_lane, v_t, v_h = 1, 2, 3
    vK1, vK2, vV0, vV1 = 4, 5, 6, 7
    vt = [8, 9, 10, 11, 12, 13, 14, 15]
    vm = [16, 17]
    v_pfa, v_pfc, v_pf = 18, 19, 200
    vD = [202, 203, 204, 205]
    Q1 = [20, 24]; Q2 = [28, 30]
    NBUF = 4
    K1 = [32, 36, 40, 44]; K2 = [48, 50, 52, 54]
    VB = [56, 64, 72, 80]
    C = [88, 104]; Sx = [120, 136]; P = [152, 160]; O = [168, 184]
    k("s_load_dwordx2 s[40:41], s[0:1], 80")
    k("s_load_dwordx2 s[44:45], s[0:1], 16")
    k("s_load_dwordx2 s[46:47], s[0:1], 32")
    k("s_load_dwordx2 s[38:39], s[0:1], 48")
    k(f"s_and_b32 s{s_hd}, s2, 7"); k(f"s_lshl_b32 s{s_hd}, s{s_hd}, 2")
    k(f"s_bfe_u32 s{s_t0}, s2, 0x20003"); k(f"s_add_u32 s{s_hd}, s{s_hd}, s{s_t0}")
    k(f"s_lshr_b32 s{s_qb}, s2, 5")
    k(f"s_and_b32 s{s_qs}, s{s_w}, 3"); k(f"s_lshr_b32 s{s_kh}, s{s_w}, 2")
    k(f"s_and_b32 s{s_odd}, s{s_hd}, 1")
    k(f"s_mov_b32 s{s_lo}, -1"); k(f"s_mov_b32 s{s_lo+1}, 0")
    k(f"s_lshr_b32 s{s_t0}, s{s_hd}, 1"); k(f"s_mul_i32 s{s_t0}, s{s_t0}, 5")
    k(f"s_mul_i32 s{s_t1}, s{s_odd}, 3"); k(f"s_add_u32 s{s_t1}, s{s_t1}, s{s_t0}")
    k(f"v_add_lshl_u32 v{vK1}, v{v_h}, s{s_t1}, 15")
    k(f"v_lshl_add_u32 v{vK1}, v{v_t}, 4, v{vK1}")
    k(f"s_add_u32 s{s_t0}, s{s_t0}, 2"); k(f"s_lshl_b32 s{s_t0}, s{s_t0}, 15")
    k(f"s_lshl_b32 s{s_t1}, s{s_odd}, 3"); k(f"s_add_u32 s{s_t0}, s{s_t0}, s{s_t1}")
    k(f"v_lshl_add_u32 v{vK2}, v{v_t}, 4, s{s_t0}")
    k(f"s_lshl_b32 s{s_ko}, s{s_kh}, 14"); k(f"s_add_u32 s{s_ko}, s{s_ko}, {QK_OFF + 80 * CH}")
    k(f"s_lshl_b32 s{s_qo}, s{s_qb}, 12"); k(f"s_lshl_b32 s{s_t1}, s{s_qs}, 10"); k(f"s_add_u32 s{s_qo}, s{s_qo}, s{s_t1}")
    for qt in range(2):
        k(f"v_mov_b32 v{Q2[qt]}, 0"); k(f"v_mov_b32 v{Q2[qt]+1}, 0")
    k(f"s_mov_b32 s42, s{s_ko}")
    k(f"s_mov_b32 s{s_vm}, 0xfffff"); k(f"s_mov_b32 s{s_vm+1}, 0xfffff")
    k(f"v_add_u32 v{vt[0]}, 4, v{v_t}")
    k(f"v_subrev_u32 v{vt[1]}, 16, v{v_t}")
    k(f"v_cmp_gt_u32 vcc, 16, v{v_t}")
    k(f"v_cndmask_b32 v{vt[0]}, v{vt[1]}, v{vt[0]}, vcc")
    k(f"s_cmp_eq_u32 s{s_odd}, 1")
    k(f"s_cselect_b64 vcc, -1, 0")
    k(f"v_cndmask_b32 v{vt[0]}, v{v_t}, v{vt[0]}, vcc")
    k(f"s_mul_i32 s{s_t0}, s{s_hd}, 20")
    k(f"v_add_lshl_u32 v{vV0}, v{vt[0]}, s{s_t0}, 5")
    k(f"v_lshl_add_u32 v{vV0}, v{v_h}, 4, v{vV0}")
    k(f"v_add_u32 v{vV1}, {640 * 32}, v{vV0}")
    k(f"s_mul_i32 s{s_vo}, s{s_kh}, {32 * 1280 * 32}"); k(f"s_add_u32 s{s_vo}, s{s_vo}, {V_OFF}")
    k(f"s_mov_b32 s43, s{s_vo}")
    k(f"v_cmp_eq_u32 vcc, 20, v{v_t}")
    k(f"v_mov_b32 v{vt[1]}, 0x3f803f80")
    k(f"v_cndmask_b32 v{vt[1]}, 0, v{vt[1]}, vcc")
    for b in range(NBUF):
        for r in range(8): k(f"v_mov_b32 v{VB[b] + r}, v{vt[1]}")
    for qt in range(2):
        for r in range(16): k(f"v_mov_b32 v{O[qt] + r}, 0")
    for r in range(8): k(f"v_mov_b32 v{P[1] + r}, 0")
    k(f"s_lshr_b32 s{s_t0}, s2, 3"); k(f"s_lshl_b32 s{s_t0}, s{s_t0}, 3"); k(f"s_add_u32 s{s_t0}, s{s_t0}, s{s_w}")
    k(f"s_mul_i32 s49, s{s_t0}, {48 * 128}"); k(f"s_add_u32 s49, s49, {192 * F * 2}")
    k(f"v_lshlrev_b32 v{vt[2]}, 8, v{v_lane}"); k(f"v_add_u32 v{vt[2]}, 124, v{vt[2]}")
    k(f"v_mov_b32 v{vt[3]}, 0x7ffffff0")
    k(f"v_cmp_gt_u32 vcc, 24, v{v_lane}")
    k(f"v_cndmask_b32 v{v_pfa}, v{vt[3]}, v{vt[2]}, vcc")
    k(f"s_lshl_b32 s48, s2, 3"); k(f"s_add_u32 s48, s48, s{s_w}"); k(f"s_mul_i32 s48, s48, {10 * 128}")
    k(f"v_cmp_gt_u32 vcc, 5, v{v_lane}")
    k(f"v_cndmask_b32 v{v_pfc}, v{vt[3]}, v{vt[2]}, vcc")
    k(f"s_sub_u32 s50, s{s_qs}, s{s_kh}"); k(f"s_add_u32 s50, s50, 3")
    k(f"v_lshrrev_b32 v{vt[0]}, 3, v{v_lane}")
    k(f"v_and_b32 v{vt[1]}, 7, v{v_lane}")
    k(f"v_bfe_u32 v{vt[2]}, v{v_lane}, 4, 1")
    k(f"v_lshlrev_b32 v{vt[2]}, 2, v{vt[2]}")
    k(f"v_xor_b32 v{vt[1]}, v{vt[1]}, v{vt[2]}")
    k(f"v_mul_u32_u24 v{vt[0]}, 1280, v{vt[0]}")
    k(f"v_lshl_add_u32 v{vD[0]}, v{vt[1]}, 4, v{vt[0]}")
    k(f"v_add_u32 v{vD[1]}, {8 * 1280 - 1024}, v{vD[0]}")
    k(f"v_lshrrev_b32 v{vt[0]}, 4, v{v_lane}")
    k(f"v_and_b32 v{vt[1]}, 15, v{v_lane}")
    k(f"v_lshlrev_b32 v{vt[2]}, 2, v{vt[0]}")
    k(f"v_xor_b32 v{vt[1]}, v{vt[1]}, v{vt[2]}")
    k(f"v_mul_u32_u24 v{vt[0]}, {F * 2}, v{vt[0]}")
    k(f"v_lshl_add_u32 v{vD[2]}, v{vt[1]}, 4, v{vt[0]}")
    k(f"v_add_u32 v{vD[3]}, {4 * F * 2 - 1024}, v{vD[2]}")
    k(f"s_lshr_b32 s{s_t0}, s2, 3")
    k(f"s_mul_i32 s{s_t1}, s{s_t0}, 43"); k(f"s_lshr_b32 s{s_t1}, s{s_t1}, 7"); k(f"s_lshl_b32 s{s_t1}, s{s_t1}, 7")
    k(f"s_mul_i32 s{s_do}, s{s_w}, {16 * 1280}"); k(f"s_add_u32 s{s_do}, s{s_do}, s{s_t1}")
    k(f"s_lshr_b32 s{s_t0}, s{s_t0}, 1"); k(f"s_lshl_b32 s{s_t0}, s{s_t0}, 8")
    k(f"s_mul_i32 s59, s{s_w}, {8 * F * 2}"); k(f"s_add_u32 s59, s59, s{s_t0}")
    k(f"s_lshl_b32 s{s_dm}, s{s_w}, 11")
    k("s_waitcnt lgkmcnt(0)")
    srd(k, sW, 40, 41, O_OFF); srd(k, sWW, 40, 41, WS_END)
    srd(k, sP1, 44, 45, D * D * 2); srd(k, sP2, 46, 47, D * F * 2)
    W = f"s[{sW}:{sW+3}]"
    k(f"s_cmp_lg_u32 s{s_w}, 3"); k(f"s_cbranch_scc1 {k.L('nt')}")
    srd(k, sP3, 92, 93, 256)
    k(f"v_mov_b32 v{vt[4]}, 0")
    k(f"s_mov_b32 s{s_it}, 0")
    k.label(k.L("tg"))
    k(f"buffer_load_dword v{vt[5]}, v{vt[4]}, s[{sP3}:{sP3+3}], 0 offen sc1")
    k(f"s_add_u32 s{s_it}, s{s_it}, 1")
    k("s_waitcnt vmcnt(0)")
    k(f"v_readfirstlane_b32 s{S_TAG}, v{vt[5]}")
    k(f"s_cmp_lg_u32 s{S_TAG}, 0"); k(f"s_cbranch_scc1 {k.L('tg2')}")
    k(f"s_cmp_lt_u32 s{s_it}, 0x4000"); k(f"s_cbranch_scc1 {k.L('tg')}")
    k.label(k.L("tg2"))
    k(f"s_lshr_b32 s{s_t0}, s{s_hd}, 1"); k(f"s_mul_i32 s{s_t0}, s{s_t0}, 5"); k(f"s_add_u32 s{s_t0}, s{s_t0}, s{s_odd}"); k(f"s_add_u32 s{s_t0}, s{s_t0}, s{s_odd}")
    k(f"s_add_u32 s{s_t1}, s{s_t0}, 2"); k(f"s_lshr_b32 s{s_t0}, s{s_t0}, 4"); k(f"s_lshr_b32 s{s_t1}, s{s_t1}, 4")
    k(f"v_mov_b32 v{vt[0]}, s{s_t0}"); k(f"v_mov_b32 v{vt[1]}, s{s_t1}")
    k(f"v_and_b32 v{vt[2]}, 16, v{v_lane}"); k(f"v_cmp_eq_u32 vcc, 0, v{vt[2]}")
    k(f"v_cndmask_b32 v{vt[3]}, v{vt[1]}, v{vt[0]}, vcc")
    k(f"s_mul_i32 s{s_t0}, s{s_hd}, 20"); k(f"s_add_u32 s{s_t1}, s{s_t0}, 19"); k(f"s_lshr_b32 s{s_t0}, s{s_t0}, 7"); k(f"s_lshr_b32 s{s_t1}, s{s_t1}, 7")
    k(f"v_mov_b32 v{vt[0]}, s{s_t0}"); k(f"v_mov_b32 v{vt[1]}, s{s_t1}")
    k(f"v_cndmask_b32 v{vt[0]}, v{vt[1]}, v{vt[0]}, vcc")
    k(f"v_add_u32 v{vt[0]}, 5, v{vt[0]}")
    k(f"v_cmp_gt_u32 vcc, 32, v{v_lane}")
    k(f"v_cndmask_b32 v{vt[0]}, v{vt[0]}, v{vt[3]}, vcc")
    k(f"v_and_b32 v{vt[1]}, 15, v{v_lane}")
    k(f"v_lshl_add_u32 v{vt[0]}, v{vt[1]}, 4, v{vt[0]}")
    k(f"v_lshlrev_b32 v{vt[0]}, 7, v{vt[0]}"); k(f"v_add_u32 v{vt[0]}, {FL_OFF + 5 * 128}, v{vt[0]}")
    k(f"v_and_b32 v{vt[1]}, 1, v{v_lane}"); k(f"s_lshl_b32 s{s_t0}, s{s_qb}, 1"); k(f"v_add_u32 v{vt[1]}, s{s_t0}, v{vt[1]}")
    k(f"v_lshl_add_u32 v{vt[1]}, v{vt[1]}, 4, v{vt[3]}")
    k(f"v_lshlrev_b32 v{vt[1]}, 7, v{vt[1]}"); k(f"v_add_u32 v{vt[1]}, {FL_OFF}, v{vt[1]}")
    k.label(k.L("nt"))
    srd(k, sP3, 38, 39, D * F * 2)
    k("s_waitcnt vmcnt(0)")
    k("s_barrier")
    k.stamp(3)
    k(f"s_cmp_lg_u32 s{s_w}, 3"); k(f"s_cbranch_scc1 {k.L('nw')}")
    publish(k, sWW, 1, 94, s_t0, vt[4], vt[5])
    poll(k, sWW, [vt[0], vt[1]], [vt[2], vt[3]], s_it, "1")
    k.label(k.L("nw"))
    k(f"s_cmp_eq_u32 s{s_kh}, 0"); k(f"s_cbranch_scc1 {k.L('np')}")
    k("s_setprio 1")
    k.label(k.L("np"))
    k("s_barrier")
    k.stamp(4)
    SC = " sc1" if "kvsc1" in X else ""
    def kload(b):
        return [f"buffer_load_dwordx4 {vr(K1[b],4)}, v{vK1}, {W}, s{s_ko} offen{SC}",
                f"buffer_load_dwordx2 {vr(K2[b],2)}, v{vK2}, {W}, s{s_ko} offen{SC}",
                f"s_add_u32 s{s_ko}, s{s_ko}, 512"]
    def vload(b):
        return [f"s_mov_b64 exec, s[{s_vm}:{s_vm+1}]",
                f"buffer_load_dwordx4 {vr(VB[b],4)}, v{vV0}, {W}, s{s_vo} offen{SC}",
                f"buffer_load_dwordx4 {vr(VB[b]+4,4)}, v{vV1}, {W}, s{s_vo} offen{SC}",
                f"s_mov_b64 exec, -1",
                f"s_add_u32 s{s_vo}, s{s_vo}, {1280 * 32}"]
    def wdma(which):
        a, b_, sr_, so, step = (vD[0], vD[1], sP1, s_do, 128 * 1280) if which == 0 else (vD[2], vD[3], sP2, 59, 64 * F * 2)
        return [f"s_mov_b32 m0, s{s_dm}", f"s_add_u32 s{s_dm}, s{s_dm}, 16384",
                f"buffer_load_dwordx4 v{a}, s[{sr_}:{sr_+3}], s{so} offen lds",
                f"buffer_load_dwordx4 v{b_}, s[{sr_}:{sr_+3}], s{so} offen offset:1024 lds",
                f"s_add_u32 s{so}, s{so}, {step}"]
    for l in kload(0): k(l)
    for qt in range(2):
        k(f"buffer_load_dwordx4 {vr(Q1[qt],4)}, v{vK1}, {W}, s{s_qo} offen offset:{qt*512} sc1")
    k(f"s_mov_b64 exec, s[{s_lo}:{s_lo+1}]")
    for qt in range(2):
        k(f"buffer_load_dwordx2 {vr(Q2[qt],2)}, v{vK2}, {W}, s{s_qo} offen offset:{qt*512} sc1")
    k("s_mov_b64 exec, -1")
    for l in kload(1) + vload(0): k(l)
    def qk(qt, b, c):
        cc = "0" if c is None else vr(c, 16)
        return [f"v_mfma_f32_32x32x16_bf16 {vr(Sx[qt],16)}, {vr(K1[b],4)}, {vr(Q1[qt],4)}, {cc}",
                f"v_mfma_f32_32x32x8_bf16 {vr(Sx[qt],16)}, {vr(K2[b],2)}, {vr(Q2[qt],2)}, {vr(Sx[qt],16)}"]
    def pv(qt, b):
        return [f"v_mfma_f32_32x32x16_bf16 {vr(O[qt],16)}, {vr(VB[b],4)}, {vr(P[qt],4)}, {vr(O[qt],16)}",
                f"v_mfma_f32_32x32x16_bf16 {vr(O[qt],16)}, {vr(VB[b]+4,4)}, {vr(P[qt]+4,4)}, {vr(O[qt],16)}"]
    def rowmax(qt, dst, tmp):
        s = Sx[qt]
        k(f"v_max3_f32 v{dst}, v{s}, v{s+1}, v{s+2}")
        for r in range(3, 15, 2): k(f"v_max3_f32 v{dst}, v{dst}, v{s+r}, v{s+r+1}")
        k(f"v_max_f32 v{dst}, v{dst}, v{s+15}")
        k(f"v_mov_b32 v{tmp}, v{dst}")
        k(f"v_permlane32_swap_b32 v{dst}, v{tmp}")
        k(f"v_max_f32 v{dst}, v{dst}, v{tmp}")
    k("s_waitcnt vmcnt(4)")
    for qt in range(2):
        for l in qk(qt, 0, None): k(l)
    for l in kload(2) + vload(1) + kload(3) + vload(2) + wdma(0): k(l)
    rowmax(0, vm[0], vt[0])
    k(f"v_sub_f32 v{vt[1]}, 0, v{vm[0]}")
    for r in range(16): k(f"v_mov_b32 v{C[0] + r}, v{vt[1]}")
    for l in qk(0, 0, C[0]): k(l)
    rowmax(1, vm[1], vt[0])
    k(f"v_sub_f32 v{vt[1]}, 0, v{vm[1]}")
    for r in range(16): k(f"v_mov_b32 v{C[1] + r}, v{vt[1]}")
    k(f"s_mov_b32 s{s_it}, 0")
    k("s_nop 1")
    def slot(qt, mf, extra):
        s = Sx[qt]; p = P[qt]
        for i in range(16):
            for l in extra.get(i, []): k(l)
            if i % 4 == 0: k(mf[i // 4])
            k(f"v_exp_f32 v{s+i}, v{s+i}")
            if i % 2 == 1 and i >= 3:
                k(f"v_cvt_pk_bf16_f32 v{p + (i-3)//2}, v{s+i-3}, v{s+i-2}")
        for l in extra.get(16, []): k(l)
        k(f"v_cvt_pk_bf16_f32 v{p+7}, v{s+14}, v{s+15}")
    k(f"s_cmp_eq_u32 s{s_kh}, 0")
    k(f"s_cselect_b32 s31, 99, {int(os.environ.get('PRI', '6'))}")
    k.label(k.L("loop"))
    for u in range(NBUF):
        b = u; bp = (u - 1) % NBUF; bn = (u + 1) % NBUF
        slot(0, qk(1, b, C[1]) + pv(1, bp), {6: kload(b), 14: vload(bp)})
        slot(1, qk(0, bn, C[0]) + pv(0, b), {0: [f"s_waitcnt vmcnt({14 if u < 3 else 12})"]})
    k(f"s_add_u32 s{s_it}, s{s_it}, 1")
    k(f"s_cmp_lg_u32 s{s_it}, s31")
    k(f"s_cbranch_scc1 {k.L('noev')}")
    k("s_setprio 0")
    k.label(k.L("noev"))
    k(f"s_cmp_lg_u32 s{s_it}, s50"); k(f"s_cbranch_scc1 {k.L('noe2')}")
    k(f"buffer_load_dwordx2 {vr(v_pf, 2)}, v{v_pfa}, s[{sP2}:{sP2+3}], s49 offen")
    k(f"buffer_load_dwordx2 {vr(v_pf, 2)}, v{v_pfc}, s[{sP3}:{sP3+3}], s48 offen")
    k(f"s_cmp_lg_u32 s{s_w}, 3"); k(f"s_cbranch_scc1 {k.L('noe2')}")
    code_prefetch(k, "L_p2_merge", sP3, s_t0, vt[0], v_pf, v_lane, per=8)
    k.label(k.L("noe2"))
    k(f"s_cmp_ge_u32 s{s_it}, 5"); k(f"s_cbranch_scc1 {k.L('d1')}")
    for l in wdma(0): k(l)
    k(f"s_branch {k.L('loop')}")
    k.label(k.L("d1"))
    k(f"s_cmp_ge_u32 s{s_it}, 8"); k(f"s_cbranch_scc1 {k.L('lend')}")
    for l in wdma(1): k(l)
    k(f"s_branch {k.L('loop')}")
    k.label(k.L("lend"))
    k.stamp(5)
    for l in pv(1, NBUF - 1): k(l)
    k("s_nop 7"); k("s_nop 7")
    k(f"v_add_f32 v{vt[0]}, |v{O[0]}|, |v{O[1]}|")
    for qt in range(2):
        for r in range(1, 12):
            k(f"v_add_f32 v{vt[0]}, v{vt[0]}, |v{O[qt]+r}|")
    k(f"v_add_f32 v{vt[1]}, v{O[0]+8}, v{O[1]+8}")
    k(f"s_mov_b32 s{s_t0}, {f32(2.0**100)}")
    k(f"v_cmp_nlt_f32 s[{s_c}:{s_c+1}], v{vt[0]}, s{s_t0}")
    k(f"s_mov_b32 s{s_t0}, {f32(2.0**60)}")
    k(f"v_cmp_nlt_f32 vcc, |v{vt[1]}|, s{s_t0}")
    k(f"s_andn2_b64 vcc, vcc, s[{s_lo}:{s_lo+1}]")
    k(f"s_or_b64 s[{s_c}:{s_c+1}], s[{s_c}:{s_c+1}], vcc")
    k("s_waitcnt vmcnt(0)")
    k(f"s_cmp_eq_u64 s[{s_c}:{s_c+1}], 0")
    k(f"s_cbranch_scc1 {k.L('merge')}")
    k(f"s_mov_b32 s{s_ko}, s42"); k(f"s_mov_b32 s{s_vo}, s43")
    for qt in range(2):
        for r in range(16): k(f"v_mov_b32 v{O[qt] + r}, 0")
        k(f"v_mov_b32 v{vm[qt]}, 0xff800000")
    k(f"s_mov_b32 s{s_it}, 0")
    k.label(k.L("fb"))
    for l in kload(0) + vload(0): k(l)
    k("s_waitcnt vmcnt(0)")
    for qt in range(2):
        for l in qk(qt, 0, None): k(l)
    for qt in range(2):
        rowmax(qt, vt[2], vt[0])
        k(f"v_max_f32 v{vt[2]}, v{vt[2]}, v{vm[qt]}")
        k(f"v_sub_f32 v{vt[3]}, v{vm[qt]}, v{vt[2]}")
        k(f"v_exp_f32 v{vt[3]}, v{vt[3]}")
        k(f"v_mov_b32 v{vm[qt]}, v{vt[2]}")
        for r in range(16): k(f"v_mul_f32 v{O[qt]+r}, v{O[qt]+r}, v{vt[3]}")
        for r in range(16): k(f"v_sub_f32 v{Sx[qt]+r}, v{Sx[qt]+r}, v{vt[2]}")
        for r in range(16): k(f"v_exp_f32 v{Sx[qt]+r}, v{Sx[qt]+r}")
        for r in range(8): k(f"v_cvt_pk_bf16_f32 v{P[qt]+r}, v{Sx[qt]+2*r}, v{Sx[qt]+2*r+1}")
        for l in pv(qt, 0): k(l)
    k("s_nop 7"); k("s_nop 7")
    k(f"s_add_u32 s{s_it}, s{s_it}, 1")
    k(f"s_cmp_lt_u32 s{s_it}, 32")
    k(f"s_cbranch_scc1 {k.L('fb')}")
    k.label(k.L("merge"))
    k(f"s_cmp_eq_u32 s{s_kh}, 0")
    k(f"s_cbranch_scc1 {k.L('noswap')}")
    for r in range(12): k(f"v_swap_b32 v{O[0]+r}, v{O[1]+r}")
    k(f"v_swap_b32 v{vm[0]}, v{vm[1]}")
    k.label(k.L("noswap"))
    k(f"s_mul_i32 s{s_t0}, s{s_w}, 3328"); k(f"s_add_u32 s{s_t0}, s{s_t0}, {MRG}")
    k(f"s_xor_b32 s{s_t1}, s{s_w}, 4"); k(f"s_mul_i32 s{s_t1}, s{s_t1}, 3328"); k(f"s_add_u32 s{s_t1}, s{s_t1}, {MRG}")
    k(f"v_lshl_add_u32 v{vt[0]}, v{v_lane}, 4, s{s_t0}")
    k(f"v_lshl_add_u32 v{vt[2]}, v{v_lane}, 2, s{s_t0}")
    for q in range(3): k(f"ds_write_b128 v{vt[0]}, {vr(O[1] + 4*q, 4)} offset:{q*1024}")
    k(f"ds_write_b32 v{vt[2]}, v{vm[1]} offset:3072")
    k(f"v_lshl_add_u32 v{vt[1]}, v{v_lane}, 4, s{s_t1}")
    k(f"v_lshl_add_u32 v{vt[3]}, v{v_lane}, 2, s{s_t1}")
    k("s_waitcnt lgkmcnt(0)")
    k("s_barrier")
    mo = Sx[0] + 12
    k(f"ds_read_b32 v{mo}, v{vt[3]} offset:3072")
    for q in range(3): k(f"ds_read_b128 {vr(Sx[0] + 4*q, 4)}, v{vt[1]} offset:{q*1024}")
    k(f"s_lshl_b32 s{s_t1}, s{s_kh}, 9"); k(f"s_add_u32 s{s_t0}, s{s_qo}, s{s_t1}"); k(f"s_add_u32 s{s_t0}, s{s_t0}, {O_OFF}")
    k("s_waitcnt lgkmcnt(3)")
    k(f"v_max_f32 v{vt[2]}, v{vm[0]}, v{mo}")
    k(f"v_sub_f32 v{vt[3]}, v{vm[0]}, v{vt[2]}"); k(f"v_sub_f32 v{vt[4]}, v{mo}, v{vt[2]}")
    k(f"v_exp_f32 v{vt[3]}, v{vt[3]}"); k(f"v_exp_f32 v{vt[4]}, v{vt[4]}")
    k(f"v_mul_f32 v{vt[5]}, v{O[0]+8}, v{vt[3]}")
    k("s_waitcnt lgkmcnt(0)")
    k(f"v_fmac_f32 v{vt[5]}, v{Sx[0]+8}, v{vt[4]}")
    k(f"v_mov_b32 v{vt[6]}, v{vt[5]}")
    k(f"v_permlane32_swap_b32 v{vt[5]}, v{vt[6]}")
    k(f"v_rcp_f32 v{vt[6]}, v{vt[6]}")
    k(f"v_mul_f32 v{vt[3]}, v{vt[3]}, v{vt[6]}"); k(f"v_mul_f32 v{vt[4]}, v{vt[4]}, v{vt[6]}")
    for r in range(12): k(f"v_mul_f32 v{O[0]+r}, v{O[0]+r}, v{vt[3]}")
    for r in range(12): k(f"v_fmac_f32 v{O[0]+r}, v{Sx[0]+r}, v{vt[4]}")
    for r in range(6): k(f"v_cvt_pk_bf16_f32 v{P[0]+r}, v{O[0]+2*r}, v{O[0]+2*r+1}")
    k(f"v_permlane32_swap_b32 v{P[0]}, v{P[0]+2}")
    k(f"v_permlane32_swap_b32 v{P[0]+1}, v{P[0]+3}")
    k(f"s_mov_b64 exec, s[{s_lo}:{s_lo+1}]")
    k(f"buffer_store_dwordx2 {vr(P[0]+4,2)}, v{vK2}, s[{sWW}:{sWW+3}], s{s_t0} offen sc1")
    k("s_mov_b64 exec, -1")
    k(f"buffer_store_dwordx4 {vr(P[0],4)}, v{vK1}, s[{sWW}:{sWW+3}], s{s_t0} offen sc1")
    k(f"s_lshl_b32 s94, s{s_qb}, 5"); k(f"s_add_u32 s94, s94, s{s_hd}")
    k.stamp(6)

def phase345(k):
    k.pref = "p3"
    GB = 16384; NSLOT = 8; SB = NSLOT * GB
    PH = {3: dict(NT=2, KK=D, A_OFF=O_OFF, base=0), 4: dict(NT=4, KK=D, A_OFF=H_OFF, base=5), 5: dict(NT=2, KK=F, A_OFF=G_OFF, base=7)}
    for p in PH.values():
        p["GS"] = 16 // p["NT"]; p["GR"] = p["GS"] * 16; p["NG"] = (p["KK"] + p["GR"] - 1) // p["GR"]; p["NKS"] = p["KK"] // 16
    sW, sB3, sB4, sB5, sX, sO, sBi = 4, 8, 12, 16, 8, 12, 16
    s_r, s_cb, s_w, s_t0, s_t1, s_offA, s_it, s_wid, s_r4, s_cb4, s_idx, s_x = 20, 21, 22, 23, 24, 26, 28, S_WID, 29, 30, 31, 32
    s_ob = {3: 25, 4: 26, 5: 27}; s_m0 = 33
    v_lane, v_t, v_h = 1, 2, 3
    vt = [12, 13, 14, 15]
    k("s_load_dwordx2 s[38:39], s[0:1], 0")
    k("s_load_dwordx2 s[42:43], s[0:1], 32")
    k("s_load_dwordx4 s[44:47], s[0:1], 48")
    k("s_load_dwordx2 s[56:57], s[0:1], 64")
    k(f"s_lshr_b32 s{s_idx}, s2, 3"); k(f"s_and_b32 s{s_x}, s2, 7")
    k(f"s_mul_i32 s{s_cb}, s{s_idx}, 43"); k(f"s_lshr_b32 s{s_cb}, s{s_cb}, 7")
    k(f"s_mul_i32 s{s_t1}, s{s_cb}, 3"); k(f"s_sub_u32 s{s_r}, s{s_idx}, s{s_t1}")
    k(f"s_and_b32 s{s_r4}, s{s_idx}, 1"); k(f"s_lshr_b32 s{s_cb4}, s{s_idx}, 1")
    k(f"s_and_b32 s{s_w}, s{s_wid}, 3")
    k(f"s_cmp_lt_u32 s{s_wid}, 4")
    k(f"s_cbranch_scc1 {k.L('compute')}")
    vB2 = [4, 5, 6, 7]; vB4 = [8, 9, 10, 11]
    k(f"v_lshrrev_b32 v{vt[0]}, 3, v{v_lane}")
    k(f"v_and_b32 v{vt[1]}, 7, v{v_lane}")
    k(f"v_bfe_u32 v{vt[2]}, v{v_lane}, 4, 1")
    k(f"v_lshlrev_b32 v{vt[2]}, 2, v{vt[2]}")
    k(f"v_xor_b32 v{vt[1]}, v{vt[1]}, v{vt[2]}")
    k(f"v_mul_u32_u24 v{vt[0]}, 1280, v{vt[0]}")
    k(f"v_lshl_add_u32 v{vB2[0]}, v{vt[1]}, 4, v{vt[0]}")
    for ii in range(1, 4): k(f"v_add_u32 v{vB2[ii]}, {ii * (8 * 1280 - 1024)}, v{vB2[0]}")
    k(f"s_mul_i32 s{s_ob[5]}, s{s_w}, {32 * 1280}"); k(f"s_lshl_b32 s{s_t1}, s{s_cb}, 7"); k(f"s_add_u32 s{s_ob[5]}, s{s_ob[5]}, s{s_t1}")
    k(f"s_lshl_b32 s{s_m0}, s{s_w}, 12")
    k(f"v_lshrrev_b32 v{vt[0]}, 4, v{v_lane}")
    k(f"v_and_b32 v{vt[1]}, 15, v{v_lane}")
    k(f"v_lshlrev_b32 v{vt[2]}, 2, v{vt[0]}")
    k(f"v_xor_b32 v{vt[1]}, v{vt[1]}, v{vt[2]}")
    k(f"v_mul_u32_u24 v{vt[0]}, {F * 2}, v{vt[0]}")
    k(f"v_lshl_add_u32 v{vB4[0]}, v{vt[1]}, 4, v{vt[0]}")
    for ii in range(1, 4): k(f"v_add_u32 v{vB4[ii]}, {ii * (4 * F * 2 - 1024)}, v{vB4[0]}")
    k(f"s_mul_i32 s{s_ob[4]}, s{s_w}, {16 * F * 2}"); k(f"s_lshl_b32 s{s_t1}, s{s_cb4}, 8"); k(f"s_add_u32 s{s_ob[4]}, s{s_ob[4]}, s{s_t1}")
    k(f"s_add_u32 s{s_ob[4]}, s{s_ob[4]}, {192 * F * 2}")
    k(f"s_lshl_b32 s{s_t0}, s{s_cb4}, 10"); k(f"s_lshl_b32 s{s_t1}, s{s_w}, 8"); k(f"s_add_u32 s{s_t0}, s{s_t0}, s{s_t1}")
    k(f"s_add_u32 s{s_t0}, s{s_t0}, {C1_OFF}")
    k(f"v_lshlrev_b32 v{vt[3]}, 2, v{v_lane}")
    k(f"v_add_u32 v{vt[2]}, s{s_t1}, v{vt[3]}"); k(f"v_add_u32 v{vt[2]}, {SB}, v{vt[2]}")
    k("s_waitcnt lgkmcnt(0)")
    srd(k, sB4, 42, 43, D * F * 2); srd(k, sB5, 44, 45, D * F * 2); srd(k, sW, 40, 41, WS_END)
    q = []
    def issue(p, j):
        P = PH[p]; slot = (P["base"] + j) % NSLOT
        vB = vB4 if p == 4 else vB2; sB = {4: sB4, 5: sB5}[p]
        k(f"s_add_u32 m0, s{s_m0}, {slot * GB}")
        for ii in range(4):
            k(f"buffer_load_dwordx4 v{vB[ii]}, s[{sB}:{sB+3}], s{s_ob[p]} offen offset:{ii*1024} lds")
            q.append((p, j))
        k(f"s_add_u32 s{s_ob[p]}, s{s_ob[p]}, {P['GR'] * (F if p == 4 else D) * 2}")
    def need(item):
        if item in q:
            last = len(q) - 1 - q[::-1].index(item)
            k(f"s_waitcnt vmcnt({len(q) - 1 - last})")
            del q[:last + 1]
    def bar(item=None):
        if item is not None: need(item)
        k("s_barrier")
    k("s_waitcnt vmcnt(0)")
    bar()
    k(f"s_cmp_ge_u32 s{s_idx}, 30"); k(f"s_cbranch_scc1 L_exit")
    bar()
    k(f"s_cmp_ge_u32 s{s_idx}, 28"); k(f"s_cbranch_scc1 {k.L('lskip4')}")
    E4 = int(os.environ.get("E4", "2")); E5 = int(os.environ.get("E5", "9")); N5 = int(os.environ.get("N5", "8"))
    nxt4 = 3
    for j in range(5):
        bar()
        if j >= E4 and nxt4 - 3 + 2 <= j:
            issue(4, nxt4); nxt4 += 1
    bar()
    bar()
    k(f"buffer_load_dword v{vt[1]}, v{vt[3]}, s[{sW}:{sW+3}], s{s_t0} offen sc1"); q.append(("c", 0))
    nxt5 = 0
    for j in range(10):
        bar((4, j))
        if j == 6:
            need(("c", 0))
            k(f"ds_write_b32 v{vt[2]}, v{vt[1]}")
        if nxt4 < 10 and (nxt4 < 8 or nxt4 - 8 + 2 <= j):
            issue(4, nxt4); nxt4 += 1
        elif nxt4 == 10 and nxt5 + 2 + 2 <= j and j >= E5:
            issue(5, nxt5); nxt5 += 1
    assert nxt4 == 10
    while nxt5 < min(N5, 3): issue(5, nxt5); nxt5 += 1
    k("s_waitcnt lgkmcnt(0)")
    bar()
    while nxt5 < N5: issue(5, nxt5); nxt5 += 1
    bar()
    k(f"s_branch {k.L('l5')}")
    k.label(k.L("lskip4"))
    for j in range(6): bar()
    for j in range(N5): issue(5, j)
    k.label(k.L("l5"))
    q[:] = [(5, j) for j in range(N5) for _ in range(4)]
    bar()
    for j in range(14):
        bar((5, j))
        if nxt5 < 14 and (nxt5 < 8 or nxt5 - 8 + 2 <= j):
            issue(5, nxt5); nxt5 += 1
    k("s_endpgm")

    k.label(k.L("compute"))
    vBr = [4, 5, 6, 7]; vA = 8; vS = 9; vO = 10; v_tag = 11
    RES = 16; BI = 32; ACC = 48
    DIST = 6; NFB = 8; NFA = 16
    s_tok3 = 34; s_act = 25
    k(f"s_mul_i32 s{s_t0}, s{s_r}, 3"); k(f"s_add_u32 s{s_t0}, s{s_t0}, s{s_w}")
    k(f"s_cmp_eq_u32 s{s_w}, 3"); k(f"s_cselect_b32 s{s_act}, 8, s{s_t0}")
    k(f"s_lshl_b32 s{s_t1}, s{s_x}, 3"); k(f"s_add_u32 s{s_t0}, s{s_t0}, s{s_t1}"); k(f"s_lshl_b32 s{s_tok3}, s{s_t0}, 5")
    for c in range(4): k(f"s_mov_b32 s{48 + c}, {2*c*CH}")
    def nbar(n):
        for _ in range(n): k("s_barrier")
    def setup(p):
        if p == 4:
            k(f"s_lshl_b32 s{s_t0}, s{s_x}, 1"); k(f"s_add_u32 s{s_t0}, s{s_t0}, s{s_r4}"); k(f"s_lshl_b32 s{s_t0}, s{s_t0}, 2")
            k(f"s_add_u32 s{s_t0}, s{s_t0}, s{s_w}"); k(f"s_lshl_b32 s{s_t0}, s{s_t0}, 5")
            k(f"v_add_u32 v{vt[0]}, s{s_t0}, v{v_t}")
        else:
            k(f"v_add_u32 v{vt[0]}, s{s_tok3}, v{v_t}")
        k(f"v_lshlrev_b32 v{vA}, 15, v{v_h}")
        k(f"v_lshl_add_u32 v{vA}, v{vt[0]}, 4, v{vA}")
        k(f"s_mov_b32 s{s_offA}, {PH[p]['A_OFF']}")
    def setup2(p):
        late = []
        if p == 4:
            k(f"s_lshl_b32 s{s_t0}, s{s_cb4}, 19"); k(f"s_add_u32 s{s_t0}, s{s_t0}, {G_OFF}")
            k(f"v_add_u32 v{vO}, s{s_t0}, v{vA}")
            k(f"v_mul_u32_u24 v{vt[1]}, {5 * 16384}, v{v_h}")
            k(f"v_lshl_add_u32 v{vS}, v{vt[0]}, 3, v{vt[1]}")
            for i in range(5):
                late.append([f"s_mov_b32 s{s_t0}, {HS_OFF + i * 16384}",
                             f"buffer_load_dwordx2 {vr(BI + 2*i, 2)}, v{vS}, s[{sW}:{sW+3}], s{s_t0} offen sc1"])
            k(f"v_bfe_u32 v{vt[0]}, v{v_lane}, 2, 2")
            k(f"v_lshl_add_u32 v{vt[1]}, v{v_h}, 3, v{vt[0]}")
            k(f"v_lshlrev_b32 v{vt[1]}, 8, v{vt[1]}")
            k(f"v_lshl_add_u32 v{vt[0]}, v{vt[0]}, 6, v{vt[1]}")
        else:
            k(f"s_lshl_b32 s{s_t1}, s{s_cb}, 7")
            k(f"v_mul_u32_u24 v{vt[1]}, 1280, v{vt[0]}")
            k(f"v_lshl_add_u32 v{vt[1]}, v{v_h}, 4, v{vt[1]}")
            if p == 3:
                k(f"v_add_u32 v{vt[1]}, s{s_t1}, v{vt[1]}")
                k(f"s_lshl_b32 s{s_t0}, s{s_cb}, 18"); k(f"s_add_u32 s{s_t0}, s{s_t0}, {H_OFF}")
                k(f"v_add_u32 v{vO}, s{s_t0}, v{vA}")
                k(f"s_lshl_b32 s{s_t0}, s{s_cb}, 14"); k(f"s_add_u32 s{s_t0}, s{s_t0}, {HS_OFF}")
                k(f"v_lshl_add_u32 v{vS}, v{vt[0]}, 3, s{s_t0}")
                srd(k, sX, 38, 39, S * D * 2)
                for c in range(4):
                    late.append([f"buffer_load_dwordx4 {vr(RES + 4*c, 4)}, v{vt[1]}, s[{sX}:{sX+3}], 0 offen offset:{32*c}"])
            else:
                k(f"v_add_u32 v{vO}, s{s_t1}, v{vt[1]}")
                srd(k, sO, 56, 57, S * D * 2); srd(k, sBi, 46, 47, D * 2)
                k(f"v_lshlrev_b32 v{vt[2]}, 3, v{v_h}")
                for c in range(8):
                    k(f"buffer_load_dwordx2 {vr(BI + 2*c, 2)}, v{vt[2]}, s[{sBi}:{sBi+3}], s{s_t1} offen offset:{16*c}")
            k(f"v_bfe_u32 v{vt[0]}, v{v_lane}, 2, 2")
            k(f"v_lshl_add_u32 v{vt[0]}, v{v_h}, 3, v{vt[0]}")
            k(f"v_lshlrev_b32 v{vt[0]}, 7, v{vt[0]}")
            k(f"v_bfe_u32 v{vt[3]}, v{v_lane}, 3, 1")
            k(f"v_lshl_add_u32 v{vt[0]}, v{vt[3]}, 6, v{vt[0]}")
        k(f"v_bfe_u32 v{vt[3]}, v{v_lane}, 4, 1")
        k(f"v_lshl_add_u32 v{vt[0]}, v{vt[3]}, 5, v{vt[0]}")
        k(f"v_and_b32 v{vt[3]}, 3, v{v_lane}")
        k(f"v_lshl_add_u32 v{vBr[0]}, v{vt[3]}, 3, v{vt[0]}")
        for j in range(1, PH[p]["NT"]): k(f"v_xor_b32 v{vBr[j]}, {64 * j}, v{vBr[0]}")
        return late
    def aload(p, i, FA):
        return [f"buffer_load_dwordx4 {vr(FA + (i % NFA) * 4, 4)}, v{vA}, s[{sW}:{sW+3}], s{s_offA} offen sc1",
                f"s_add_u32 s{s_offA}, s{s_offA}, {2 * CH}"]
    def gemm(p, late, pre_issued):
        P = PH[p]; NT = P["NT"]; GS = P["GS"]; NKS = P["NKS"]
        FB = ACC + 16 * NT; FA = FB + NFB * 4
        LA = 14
        if not pre_issued:
            for i in range(LA):
                for l in aload(p, i, FA): k(l)
        cur = [0]
        NM = NKS * NT; KSB = GB // GS
        def bread(m):
            ks, j = divmod(m, NT)
            G, qq = divmod(ks, GS)
            off = ((P["base"] + G) % NSLOT) * GB + qq * KSB
            r = []
            if qq == 0 and j == 0: r.append("s_barrier")
            base = (off // 65536) * 65536
            if base != cur[0]:
                for a in vBr[:NT]: r.append(f"v_add_u32 v{a}, {(base - cur[0]) & 0xffffffff:#x}, v{a}")
                cur[0] = base
            for e in range(2):
                r.append(f"ds_read_b64_tr_b16 {vr(FB + (m % NFB) * 4 + 2*e, 2)}, v{vBr[j]} offset:{off - base + e * (KSB // 4)}")
            return r
        if K.prof: k("s_waitcnt lgkmcnt(0)")
        for m in range(DIST):
            for l in bread(m): k(l)
        vq = [("A", i) for i in range(LA)]
        for m in range(NM):
            ks, j = divmod(m, NT)
            nout = 2 * (min(NM, m + DIST) - m - 1)
            if j == 0:
                pos = vq.index(("A", ks))
                k(f"s_waitcnt vmcnt({len(vq) - 1 - pos}) lgkmcnt({nout})")
            else:
                k(f"s_waitcnt lgkmcnt({nout})")
            cc = vr(ACC + 16*j, 16) if ks else "0"
            k(f"v_mfma_f32_32x32x16_bf16 {vr(ACC + 16*j, 16)}, {vr(FB + (m % NFB) * 4, 4)}, {vr(FA + (ks % NFA) * 4, 4)}, {cc}")
            if m + DIST < NM:
                for l in bread(m + DIST): k(l)
            if j == 0 and ks + LA < NKS:
                for l in aload(p, ks + LA, FA): k(l)
                vq.append(("A", ks + LA))
            if j == 0 and late and ks + LA + 4 >= NKS:
                for l in late.pop(0): k(l)
                vq.append(("R", 0))
        assert not late
        return FB, FA
    def sync(pdone, pwait, nflags, name, slp=0, extra=False):
        publish(k, sW, pdone, 94, s_t0, vt[0], vt[1])
        k(f"v_min_u32 v{vt[0]}, {nflags - 1}, v{v_lane}")
        k(f"s_lshl_b32 s{s_t0}, s{s_x}, 12"); k(f"s_add_u32 s{s_t0}, s{s_t0}, {FL_OFF + (pwait - 1) * 32768}")
        k(f"v_lshl_add_u32 v{vt[0]}, v{vt[0]}, 7, s{s_t0}")
        if extra:
            k(f"s_lshl_b32 s{s_t0}, s{s_cb4}, 11"); k(f"s_add_u32 s{s_t0}, s{s_t0}, {FL_OFF + 15 * 128}")
            k(f"v_writelane_b32 v{vt[0]}, s{s_t0}, 63")
        poll(k, sW, [vt[0]], [vt[1]], s_it, name, slp)

    setup(3)
    k("s_waitcnt lgkmcnt(0)")
    srd(k, sW, 40, 41, WS_END)
    late = setup2(3)
    k(f"s_cmp_ge_u32 s{s_act}, 8"); k(f"s_cbranch_scc1 {k.L('nores')}")
    k("s_waitcnt vmcnt(0)")
    k("s_barrier")
    k(f"s_cmp_ge_u32 s{s_idx}, 30"); k(f"s_cbranch_scc1 L_exit")
    for ll in late:
        for l in ll: k(l)
    late = []
    k("s_barrier")
    k.stamp(7)
    FB, FA = gemm(3, late, False)
    T = FA
    k("s_waitcnt vmcnt(0)")
    for c in range(4):
        k(f"v_permlane32_swap_b32 v{RES + 4*c}, v{RES + 4*c + 2}")
        k(f"v_permlane32_swap_b32 v{RES + 4*c + 1}, v{RES + 4*c + 3}")
    for r in range(16):
        k(f"v_lshlrev_b32 v{T + 2*r}, 16, v{RES + r}")
        k(f"v_and_b32 v{T + 2*r + 1}, 0xffff0000, v{RES + r}")
    k(f"v_mov_b32 v{vt[0]}, 0"); k(f"v_mov_b32 v{vt[1]}, 0"); k(f"s_mov_b32 s{s_t1}, 0x3f803f80")
    for c in range(4):
        for r in range(4*c, 4*c + 4):
            k(f"v_pk_add_f32 {vr(T + 2*r, 2)}, {vr(T + 2*r, 2)}, {vr(ACC + 2*r, 2)}")
        for r in range(4*c, 4*c + 4):
            k(f"v_cvt_pk_bf16_f32 v{RES + r}, v{T + 2*r}, v{T + 2*r + 1}")
        k(f"v_permlane32_swap_b32 v{RES + 4*c}, v{RES + 4*c + 2}")
        k(f"v_permlane32_swap_b32 v{RES + 4*c + 1}, v{RES + 4*c + 3}")
        k(f"buffer_store_dwordx4 {vr(RES + 4*c, 4)}, v{vO}, s[{sW}:{sW+3}], s{48 + c} offen sc1")
    for r in range(16):
        k(f"v_dot2c_f32_bf16 v{vt[0]}, s{s_t1}, v{RES + r}")
        k(f"v_dot2c_f32_bf16 v{vt[1]}, v{RES + r}, v{RES + r}")
    k(f"v_mov_b32 v{vt[2]}, v{vt[0]}"); k(f"v_mov_b32 v{vt[3]}, v{vt[1]}")
    k(f"v_permlane32_swap_b32 v{vt[0]}, v{vt[2]}"); k(f"v_permlane32_swap_b32 v{vt[1]}, v{vt[3]}")
    k(f"v_add_f32 v{vt[0]}, v{vt[0]}, v{vt[2]}"); k(f"v_add_f32 v{vt[1]}, v{vt[1]}, v{vt[3]}")
    k("s_mov_b32 exec_hi, 0")
    k(f"buffer_store_dwordx2 {vr(vt[0], 2)}, v{vS}, s[{sW}:{sW+3}], 0 offen sc1")
    k("s_mov_b32 exec_hi, -1")
    k(f"s_branch {k.L('pb3')}")
    k.label(k.L("nores"))
    k("s_waitcnt vmcnt(0)")
    k("s_barrier")
    k(f"s_cmp_lg_u32 s{s_w}, 3"); k(f"s_cbranch_scc1 {k.L('ns3')}")
    k(f"s_cmp_lt_u32 s{s_idx}, 30"); k(f"s_cbranch_scc1 {k.L('s3')}")
    publish(k, sW, 2, 94, s_t0, vt[0], vt[1])
    k("s_endpgm")
    k.label(k.L("s3"))
    sync(2, 2, 32, "3")
    k.label(k.L("ns3"))
    k(f"s_cmp_ge_u32 s{s_idx}, 30"); k(f"s_cbranch_scc1 L_exit")
    nbar(6)
    k.label(k.L("pb3"))
    k(f"s_lshl_b32 s94, s{s_x}, 5"); k(f"s_add_u32 s94, s94, s{s_idx}")
    k(f"s_cmp_ge_u32 s{s_idx}, 28"); k(f"s_cbranch_scc1 {k.L('skip4')}")
    setup(4)
    late = setup2(4)
    k("s_waitcnt vmcnt(0)")
    k("s_barrier")
    k.stamp(8)
    k(f"s_cmp_lg_u32 s{s_w}, 3"); k(f"s_cbranch_scc1 {k.L('ns4')}")
    sync(3, 3, 30, "4", extra=True)
    k.label(k.L("ns4"))
    k("s_barrier")
    k.stamp(9)
    FB, FA = gemm(4, late, False)
    k("s_barrier")
    T = FB; CSB = [FB + 32, FB + 64]
    k(f"v_lshlrev_b32 v{vt[0]}, 4, v{v_h}"); k(f"v_add_u32 v{vt[0]}, {SB}, v{vt[0]}")
    def csread(nt):
        for rq in range(8):
            k(f"ds_read_b128 {vr(CSB[nt % 2] + rq*4, 4)}, v{vt[0]} offset:{(rq // 4) * 512 + nt*128 + (rq % 4)*32}")
    csread(0)
    k("s_waitcnt vmcnt(0)")
    PS = BI; MR = BI + 12
    for i in range(1, 5): k(f"v_pk_add_f32 {vr(PS,2)}, {vr(PS,2)}, {vr(PS + 2*i, 2)}")
    k(f"v_mov_b32 v{PS+2}, v{PS}"); k(f"v_mov_b32 v{PS+3}, v{PS+1}")
    k(f"v_permlane32_swap_b32 v{PS}, v{PS+2}"); k(f"v_permlane32_swap_b32 v{PS+1}, v{PS+3}")
    k(f"v_pk_add_f32 {vr(PS,2)}, {vr(PS,2)}, {vr(PS + 2, 2)}")
    rowstat_math(k, PS, PS + 1, MR, MR + 1, PS + 2, True)
    C0 = -2.0 * math.log2(math.e) * math.sqrt(2.0 / math.pi)
    k(f"s_mov_b32 s58, {f32(C0 * 0.044715)}"); k(f"s_mov_b32 s59, {f32(C0 * 0.044715)}")
    k(f"v_mov_b32 v{vt[2]}, {f32(C0)}"); k(f"v_mov_b32 v{vt[3]}, {f32(C0)}")
    for nt in range(4):
        if nt == 2:
            k(f"s_cmp_eq_u32 s{s_cb4}, 13"); k(f"s_cbranch_scc1 {k.L('done4')}")
            k(f"v_add_u32 v{vO}, {8 * CH}, v{vO}")
        k("s_waitcnt lgkmcnt(0)")
        if nt < 3: csread(nt + 1)
        a = ACC + 16 * nt; CS = CSB[nt % 2]; B1 = CS + 16
        for p in range(8):
            x = vr(a + 2*p, 2)
            k(f"v_pk_fma_f32 {x}, {vr(CS + 2*p, 2)}, {vr(MR,2)}, {x} op_sel_hi:[1,0,1]")
        for p in range(8):
            x = vr(a + 2*p, 2)
            k(f"v_pk_fma_f32 {x}, {x}, {vr(MR,2)}, {vr(B1 + 2*p, 2)} op_sel:[0,1,0] op_sel_hi:[1,1,1]")
        for p in range(8):
            x = vr(a + 2*p, 2); t = vr(T + 2*p, 2)
            k(f"v_pk_mul_f32 {t}, {x}, {x}")
        for p in range(8):
            t = vr(T + 2*p, 2)
            k(f"v_pk_fma_f32 {t}, {t}, s[58:59], {vr(vt[2],2)}")
        for p in range(8):
            x = vr(a + 2*p, 2); t = vr(T + 2*p, 2)
            k(f"v_pk_mul_f32 {t}, {t}, {x}")
        for r in range(16): k(f"v_exp_f32 v{T + r}, v{T + r}")
        for p in range(8):
            t = vr(T + 2*p, 2)
            k(f"v_pk_add_f32 {t}, {t}, 1.0 op_sel_hi:[1,0]")
        for r in range(16): k(f"v_rcp_f32 v{T + r}, v{T + r}")
        for p in range(8):
            x = vr(a + 2*p, 2); t = vr(T + 2*p, 2)
            k(f"v_pk_mul_f32 {x}, {x}, {t}")
        Pk = T + 16 + (nt % 2) * 8
        for p in range(8):
            k(f"v_cvt_pk_bf16_f32 v{Pk + p}, v{a + 2*p}, v{a + 2*p + 1}")
        for pq in range(2):
            b = Pk + 4*pq
            k(f"v_permlane32_swap_b32 v{b}, v{b+2}")
            k(f"v_permlane32_swap_b32 v{b+1}, v{b+3}")
        for pq in range(2):
            k(f"buffer_store_dwordx4 {vr(Pk + 4*pq,4)}, v{vO}, s[{sW}:{sW+3}], s{48 + (nt % 2)*2 + pq} offen sc1")
    k.label(k.L("done4"))
    k("s_waitcnt vmcnt(0) lgkmcnt(0)")
    k("s_barrier")
    k.stamp(10)
    k(f"s_cmp_lg_u32 s{s_w}, 3"); k(f"s_cbranch_scc1 {k.L('p5')}")
    sync(4, 4, 28, "5")
    k(f"s_branch {k.L('p5')}")
    k.label(k.L("skip4"))
    k("s_waitcnt vmcnt(0)")
    k("s_barrier")
    k(f"s_cmp_lg_u32 s{s_w}, 3"); k(f"s_cbranch_scc1 {k.L('p5')}")
    sync(3, 4, 28, "6", 8)
    k.label(k.L("p5"))
    k(f"s_cmp_ge_u32 s{s_act}, 8"); k(f"s_cbranch_scc1 {k.L('idle5')}")
    setup(5)
    late = setup2(5)
    k("s_barrier")
    k.stamp(11)
    FB, FA = gemm(5, late, False)
    T = FA
    for c in range(4):
        k(f"v_permlane32_swap_b32 v{RES + 4*c}, v{RES + 4*c + 2}")
        k(f"v_permlane32_swap_b32 v{RES + 4*c + 1}, v{RES + 4*c + 3}")
    for r in range(16):
        k(f"v_lshlrev_b32 v{T + 2*r}, 16, v{RES + r}")
        k(f"v_and_b32 v{T + 2*r + 1}, 0xffff0000, v{RES + r}")
    for r in range(16):
        k(f"v_lshlrev_b32 v{T + 32 + 2*r}, 16, v{BI + r}")
        k(f"v_and_b32 v{T + 32 + 2*r + 1}, 0xffff0000, v{BI + r}")
    for r in range(16):
        k(f"v_pk_add_f32 {vr(T + 2*r, 2)}, {vr(T + 2*r, 2)}, {vr(T + 32 + 2*r, 2)}")
    for c in range(4):
        for r in range(4*c, 4*c + 4):
            k(f"v_pk_add_f32 {vr(T + 2*r, 2)}, {vr(T + 2*r, 2)}, {vr(ACC + 2*r, 2)}")
        for r in range(4*c, 4*c + 4):
            k(f"v_cvt_pk_bf16_f32 v{RES + r}, v{T + 2*r}, v{T + 2*r + 1}")
        k(f"v_permlane32_swap_b32 v{RES + 4*c}, v{RES + 4*c + 2}")
        k(f"v_permlane32_swap_b32 v{RES + 4*c + 1}, v{RES + 4*c + 3}")
        k(f"buffer_store_dwordx4 {vr(RES + 4*c, 4)}, v{vO}, s[{sO}:{sO+3}], 0 offen offset:{32*c}")
    if "g3" in X: gate(k, 70)
    k.dump(0, 14, s_wid)
    k("s_endpgm")
    k.label(k.L("idle5"))
    k("s_barrier")
    k.label("L_exit")
    k("s_endpgm")

NAME = "sequential_preLN__mha_block__mixer_channel_mlp__prompt"
HEADER = open(f"cdna_kernels/{NAME}.s.ref").read().split("; Override")[0]

def build(path):
    k = K(NAME)
    phase1(k); phase2(k); phase345(k)
    lds = MRG + 8 * 3328
    t = HEADER
    if "aslist" in X:
        t += f"; @launch kernel={k.name}_kernel grid=(256,1,1) block=(512,1,1) lds={lds}\n"
    else:
        t += f"; @launch grid=(256,1,1) block=(512,1,1) lds={lds}\n"
    t += '.amdgcn_target "amdgcn-amd-amdhsa--gfx950"\n.text\n'
    t += kernel_text(k, 256)
    t += "L_code_end:\n"
    t += '.section .rodata,"a"\n'
    t += kernel_desc(k, 256)
    open(path, "w").write(t)

if __name__ == "__main__":
    if len(sys.argv) > 2 and sys.argv[2] == "prof": K.prof = True
    build(sys.argv[1] if len(sys.argv) > 1 else f"cdna_kernels/{NAME}.s")
```

```python
import sys, math, struct, os
X = set(os.environ.get("EXP", "").split(","))
from asmlib import K, vr, sr, kernel_text, kernel_desc

S = 2048; D = 640; F = 1728; H = 32; DH = 20
QK_OFF = 0x0
V_OFF = 0x500000
O_OFF = 0x780000
H_OFF = 0xA00000
G_OFF = 0xC80000
HS_OFF = 0x1340000
C1_OFF = 0x1370000
ST_OFF = 0x1378000
FL_OFF = 0x1400000
FX_OFF = 0x1420000
TAG_OFF = 0x1428000
WS_END = 0x1428100
S_LOC = 95
LOCW = 131072 + 1024
S_TAG = 88; S_WID = 89
MRG = 131072 + 2048
G_END = 0x1340000
CH = S * 16
EPS = 1e-5

def f32(x):
    return "0x%08x" % struct.unpack("<I", struct.pack("<f", x))[0]

def srd(k, d, lo, hi, size):
    k(f"s_mov_b32 s{d}, s{lo}")
    k(f"s_and_b32 s{d+1}, s{hi}, 0xffff")
    k(f"s_mov_b32 s{d+2}, {size:#x}")
    k(f"s_mov_b32 s{d+3}, 0x00020000")

def code_prefetch(k, first, sd, st, vaddr, vdst, v_lane, per=12):
    lab = k.L("pc%d" % k.uid); k.uid += 1
    k(f"s_getpc_b64 s[{sd}:{sd+1}]")
    k.label(lab)
    k(f"s_add_u32 s{sd}, s{sd}, {first}-{lab}")
    k(f"s_addc_u32 s{sd+1}, s{sd+1}, {'-1' if first == k.name + '_kernel' else '0'}")
    k(f"s_and_b32 s{sd+1}, s{sd+1}, 0xffff")
    k(f"s_mov_b32 s{sd+2}, L_code_end-{first}")
    k(f"s_mov_b32 s{sd+3}, 0x00020000")
    k(f"s_lshr_b32 s{st}, s2, 3"); k(f"s_mul_i32 s{st}, s{st}, {per * 128}")
    k(f"v_lshlrev_b32 v{vaddr}, 7, v{v_lane}")
    k(f"s_mov_b64 exec, {(1 << per) - 1:#x}")
    k(f"buffer_load_dword v{vdst}, v{vaddr}, s[{sd}:{sd+3}], s{st} offen")
    k("s_mov_b64 exec, -1")

def gate(k, us):
    lab = k.L("gate%d" % k.uid); k.uid += 1
    k("s_load_dwordx2 s[80:81], s[0:1], 80"); k("s_waitcnt lgkmcnt(0)")
    k(f"s_add_u32 s80, s80, {TAG_OFF + 4}"); k("s_addc_u32 s81, s81, 0")
    k("s_load_dword s82, s[80:81], 0"); k("s_waitcnt lgkmcnt(0)")
    k.label(lab)
    k("s_memrealtime s[84:85]"); k("s_waitcnt lgkmcnt(0)")
    k("s_sub_u32 s84, s84, s82")
    k(f"s_cmp_lt_u32 s84, {us * 100}"); k(f"s_cbranch_scc1 {lab}")

def rowstat_math(k, s_, q_, nm, rs, t, double):
    k(f"v_mul_f32 v{nm}, {f32(-1.0 / D)}, v{s_}")
    k(f"v_mul_f32 v{q_}, {f32(1.0 / D)}, v{q_}")
    k(f"v_fma_f32 v{q_}, -v{nm}, v{nm}, v{q_}")
    k(f"v_max_f32 v{q_}, 0, v{q_}")
    k(f"v_add_f32 v{t}, {f32(EPS)}, v{q_}")
    k(f"v_rsq_f32 v{rs}, v{t}")
    if double:
        k(f"v_mul_f32 v{t}, v{rs}, v{rs}")
        k(f"v_mul_f32 v{t}, v{t}, v{q_}")
        k(f"v_add_f32 v{t}, {f32(EPS)}, v{t}")
        k(f"v_rsq_f32 v{t}, v{t}")
        k(f"v_mul_f32 v{rs}, v{rs}, v{t}")


def dual_srd(k, sP, sS, lo):
    if "noloc" in X: k(f"s_mov_b32 s{S_LOC}, 0")
    srd(k, sP, lo, lo + 1, WS_END); srd(k, sS, lo, lo + 1, WS_END)
    k(f"s_cmp_eq_u32 s{S_LOC}, 0")
    k(f"s_cselect_b32 s{sP+2}, 0, s{sP+2}"); k(f"s_cselect_b32 s{sS+2}, s{sS+2}, 0")

def dstore(k, op, data, vaddr, sP, sS, soff):
    k(f"{op} {data}, v{vaddr}, s[{sP}:{sP+3}], {soff} offen")
    k(f"{op} {data}, v{vaddr}, s[{sS}:{sS+3}], {soff} offen sc1")

def publish(k, sW, ph, s_idx, s_t, v0_, v1_, sP=None):
    k(f"s_lshl_b32 s{s_t}, s{s_idx}, 7"); k(f"s_add_u32 s{s_t}, s{s_t}, {FL_OFF + (ph - 1) * 32768}")
    k(f"v_mov_b32 v{v0_}, 0"); k(f"v_mov_b32 v{v1_}, s{S_TAG}")
    k("s_mov_b64 exec, 1")
    if sP is not None: k(f"buffer_store_dword v{v1_}, v{v0_}, s[{sP}:{sP+3}], s{s_t} offen")
    k(f"buffer_store_dword v{v1_}, v{v0_}, s[{sW}:{sW+3}], s{s_t} offen sc1")
    k("s_mov_b64 exec, -1")

def poll(k, sW, vaddrs, vdsts, s_it, name, slp=0):
    if len(vaddrs) > 1 and "nopp" not in X:
        k(f"buffer_load_dword v{vdsts[1]}, v{vaddrs[1]}, s[{sW}:{sW+3}], 0 offen sc1")
    if "nopp" not in X:
        ND = int(os.environ.get("PPD", "0")); R = [248 + i for i in range(ND + 1)]
        gap = slp or int(os.environ.get("PPS", "1"))
        k(f"s_mov_b32 s{s_it}, 0")
        k("s_mov_b64 s[90:91], -1")
        for i in range(ND):
            k(f"buffer_load_dword v{R[i]}, v{vaddrs[0]}, s[{sW}:{sW+3}], 0 offen sc1")
            k(f"s_sleep {gap}")
        k.label(k.L("poll" + name))
        for i in range(ND + 1):
            k(f"buffer_load_dword v{R[(i + ND) % (ND + 1)]}, v{vaddrs[0]}, s[{sW}:{sW+3}], 0 offen sc1")
            k(f"s_waitcnt vmcnt({ND})")
            k(f"v_cmp_ne_u32 vcc, s{S_TAG}, v{R[i]}")
            k("s_and_b64 exec, exec, vcc")
            k(f"s_cbranch_execz {k.L('go' + name)}")
            k(f"s_sleep {gap}")
        k(f"s_add_u32 s{s_it}, s{s_it}, 1")
        k(f"s_cmp_lt_u32 s{s_it}, 0x4000")
        k(f"s_cbranch_scc1 {k.L('poll' + name)}")
        k.label(k.L("go" + name))
        k("s_mov_b64 exec, -1")
        if len(vaddrs) == 1: return
        vaddrs = vaddrs[1:]; vdsts = vdsts[1:]; name += "b"
        k(f"v_cmp_ne_u32 vcc, s{S_TAG}, v{vdsts[0]}")
        k(f"s_cbranch_vccz {k.L('go' + name)}")
    k(f"s_mov_b32 s{s_it}, 0")
    k.label(k.L("poll" + name))
    for va, vd in zip(vaddrs, vdsts):
        k(f"buffer_load_dword v{vd}, v{va}, s[{sW}:{sW+3}], 0 offen sc1")
    k(f"s_add_u32 s{s_it}, s{s_it}, 1")
    k("s_waitcnt vmcnt(0)")
    k(f"v_cmp_ne_u32 vcc, s{S_TAG}, v{vdsts[0]}")
    for vd in vdsts[1:]:
        k(f"v_cmp_ne_u32 s[90:91], s{S_TAG}, v{vd}")
        k("s_or_b64 vcc, vcc, s[90:91]")
    k(f"s_cbranch_vccz {k.L('go' + name)}")
    if slp: k(f"s_sleep {slp}")
    k(f"s_cmp_lt_u32 s{s_it}, 0x8000")
    k(f"s_cbranch_scc1 {k.L('poll' + name)}")
    k.label(k.L("go" + name))

def phase1(k):
    k.pref = "p1"
    kind = "qkv"; qkv = True
    NB = 1920 if qkv else F
    BROW = NB * 2
    NS = 4; SLOT = 32768; NST = 10
    SB = NS * SLOT
    SL = SB + 2048
    sA, sB, sW, sBi = 4, 8, 12, 16
    s_mb, s_nb, s_w = 20, 21, 22
    s_wm, s_wn = 23, 24
    s_offA, s_offB, s_m0, s_it, s_delta, s_t0, s_t1, s_slot = 25, 26, 27, 28, 29, 30, 31, 32
    s_ones = 33
    s_wid = S_WID
    v_lane, v_t, v_h = 1, 2, 3
    vAd = [4, 5, 6, 7]; vBd = [8, 9, 10, 11]
    vBr = [12, 13]
    v_b1 = 17
    vt = [18, 19, 20, 21, 22, 23]
    vAr = [24, 25, 26, 27]
    FA = [[32 + 16 * i, 36 + 16 * i] for i in range(4)]
    FB = [[40 + 16 * i, 44 + 16 * i] for i in range(4)]
    ACC = 96
    def acc(mt, nt): return ACC + (mt * 2 + nt) * 16
    EP = 160
    kidx = 0 if qkv else 3

    if "early" in X: k("s_memrealtime s[86:87]")
    k.stamp(0); k.stamp(1, True)
    k(f"s_cmp_ge_u32 s2, 256"); k(f"s_cbranch_scc1 L_exit")
    if qkv:
        k("s_load_dwordx4 s[36:39], s[0:1], 0")
        k("s_load_dwordx4 s[40:43], s[0:1], 72")
        WSL = 42
    else:
        k("s_load_dwordx2 s[36:37], s[0:1], 32")
        k("s_load_dwordx2 s[40:41], s[0:1], 80")
        WSL = 40
    k(f"s_and_b32 s{s_t0}, s2, 7"); k(f"s_lshr_b32 s{s_t1}, s2, 3")
    if qkv:
        k(f"s_lshr_b32 s{s_mb}, s{s_t0}, 1"); k(f"s_lshl_b32 s{s_mb}, s{s_mb}, 2")
        k(f"s_and_b32 s{s_nb}, s{s_t1}, 3"); k(f"s_add_u32 s{s_mb}, s{s_mb}, s{s_nb}")
        k(f"s_and_b32 s{s_nb}, s{s_t0}, 1"); k(f"s_lshl_b32 s{s_nb}, s{s_nb}, 3")
        k(f"s_lshr_b32 s{s_t1}, s{s_t1}, 2"); k(f"s_add_u32 s{s_nb}, s{s_nb}, s{s_t1}")
    else:
        k(f"s_lshl_b32 s{s_mb}, s{s_t0}, 1"); k(f"s_and_b32 s{s_nb}, s{s_t1}, 1"); k(f"s_add_u32 s{s_mb}, s{s_mb}, s{s_nb}")
        k(f"s_lshr_b32 s{s_nb}, s{s_t1}, 1")
    k(f"v_lshrrev_b32 v{vt[0]}, 6, v0")
    k(f"v_and_b32 v{v_lane}, 63, v0")
    k(f"v_readfirstlane_b32 s{s_wid}, v{vt[0]}")
    k(f"v_and_b32 v{v_t}, 31, v0")
    k(f"v_bfe_u32 v{v_h}, v0, 5, 1")
    k(f"s_and_b32 s{s_w}, s{s_wid}, 3")
    k(f"s_cmp_lt_u32 s{s_wid}, 4")
    k(f"s_cbranch_scc1 {k.L('compute')}")
    if qkv:
        k(f"s_cmp_ge_u32 s{s_nb}, 15"); k(f"s_cbranch_scc1 {k.L('auxl')}")
        k(f"v_lshrrev_b32 v{vt[0]}, 3, v{v_lane}")
        k(f"v_and_b32 v{vt[1]}, 7, v{v_lane}")
        k(f"v_lshrrev_b32 v{vt[2]}, 1, v{vt[0]}")
        k(f"v_xor_b32 v{vt[2]}, v{vt[2]}, v{vt[1]}")
        k(f"v_xor_b32 v{vt[3]}, 4, v{vt[2]}")
        k(f"s_lshl_b32 s{s_t0}, s{s_mb}, 7"); k(f"s_lshl_b32 s{s_t1}, s{s_w}, 5"); k(f"s_add_u32 s{s_t0}, s{s_t0}, s{s_t1}")
        k(f"v_add_u32 v{vt[0]}, s{s_t0}, v{vt[0]}")
        k(f"v_mul_u32_u24 v{vt[0]}, 1280, v{vt[0]}")
        for ii in range(4):
            k(f"v_lshl_add_u32 v{vAd[ii]}, v{vt[2 + (ii & 1)]}, 4, v{vt[0]}")
            if ii: k(f"v_add_u32 v{vAd[ii]}, {ii * (8 * 1280 - 1024)}, v{vAd[ii]}")
        stepA = 128
    else:
        k(f"s_lshl_b32 s{s_t0}, s{s_mb}, 11")
        k(f"s_mul_i32 s{s_t1}, s{s_w}, {2 * CH}")
        k(f"s_add_u32 s{s_t0}, s{s_t0}, s{s_t1}")
        k(f"s_add_u32 s{s_t0}, s{s_t0}, {H_OFF}")
        k(f"v_lshl_add_u32 v{vAd[0]}, v{v_lane}, 4, s{s_t0}")
        k(f"v_mov_b32 v{vAd[1]}, v{vAd[0]}")
        k(f"v_add_u32 v{vAd[2]}, {CH - 2048}, v{vAd[0]}")
        k(f"v_add_u32 v{vAd[3]}, {CH - 2048}, v{vAd[0]}")
        stepA = 8 * CH
    k(f"v_lshrrev_b32 v{vt[0]}, 4, v{v_lane}")
    k(f"v_and_b32 v{vt[1]}, 15, v{v_lane}")
    k(f"v_lshlrev_b32 v{vt[2]}, 2, v{vt[0]}")
    k(f"v_xor_b32 v{vt[1]}, v{vt[1]}, v{vt[2]}")
    k(f"s_lshl_b32 s{s_t0}, s{s_w}, 4")
    k(f"v_add_u32 v{vt[0]}, s{s_t0}, v{vt[0]}")
    k(f"v_mul_u32_u24 v{vt[0]}, {BROW}, v{vt[0]}")
    k(f"v_lshl_add_u32 v{vt[0]}, v{vt[1]}, 4, v{vt[0]}")
    k(f"s_lshl_b32 s{s_t0}, s{s_nb}, 8")
    k(f"v_add_u32 v{vBd[0]}, s{s_t0}, v{vt[0]}")
    for ii in range(1, 4):
        k(f"v_add_u32 v{vBd[ii]}, {ii * (4 * BROW - 1024)}, v{vBd[0]}")
    stepB = 64 * BROW
    k(f"s_mov_b32 s{s_offA}, 0"); k(f"s_mov_b32 s{s_offB}, 0")
    k(f"s_lshl_b32 s{s_m0}, s{s_w}, 12")
    k(f"s_mov_b32 s{s_it}, 0")
    k("s_waitcnt lgkmcnt(0)")
    if qkv:
        srd(k, sA, 36, 37, S * D * 2); srd(k, sB, 38, 39, D * NB * 2)
    else:
        srd(k, sB, 36, 37, D * NB * 2); srd(k, sW, WSL, WSL + 1, WS_END)
        sA = sW
    def dma_stage():
        r = []
        r.append(f"s_mov_b32 m0, s{s_m0}")
        for ii in range(4):
            r.append(f"buffer_load_dwordx4 v{vAd[ii]}, s[{sA}:{sA+3}], s{s_offA} offen offset:{ii*1024} lds")
        r.append(f"s_add_u32 m0, s{s_m0}, 16384")
        for ii in range(4):
            r.append(f"buffer_load_dwordx4 v{vBd[ii]}, s[{sB}:{sB+3}], s{s_offB} offen offset:{ii*1024} lds")
        r.append(f"s_add_u32 s{s_offA}, s{s_offA}, {stepA}")
        r.append(f"s_add_u32 s{s_offB}, s{s_offB}, {stepB}")
        r.append(f"s_add_u32 s{s_m0}, s{s_m0}, {SLOT}")
        r.append(f"s_and_b32 s{s_m0}, s{s_m0}, {NS * SLOT - 1}")
        return r
    def lstep(n=8, dma=True):
        if dma:
            for l in dma_stage(): k(l)
        k(f"s_waitcnt vmcnt({n})")
        k("s_barrier")
    def lloop(tag, n):
        k(f"s_mov_b32 s{s_it}, 0")
        k.label(k.L("lloop" + tag))
        lstep()
        k(f"s_add_u32 s{s_it}, s{s_it}, 1")
        k(f"s_cmp_lt_u32 s{s_it}, {n}")
        k(f"s_cbranch_scc1 {k.L('lloop' + tag)}")
    XS = 32
    v_tag = 16
    RG_OFF = ST_OFF; CG_OFF = ST_OFF + 32768
    def slice_addr_rows():
        k(f"v_lshrrev_b32 v{vt[4]}, 4, v{v_lane}")
        k(f"v_and_b32 v{vt[5]}, 15, v{v_lane}")
        k(f"v_mul_u32_u24 v{vt[4]}, 1280, v{vt[4]}")
        k(f"v_lshl_add_u32 v{vt[4]}, v{vt[5]}, 4, v{vt[4]}")
        k(f"s_lshl_b32 s{s_t0}, s{s_mb}, 5"); k(f"s_lshl_b32 s{s_t1}, s{s_nb}, 1"); k(f"s_add_u32 s{s_t0}, s{s_t0}, s{s_t1}")
        k(f"s_add_u32 s{s_delta}, s{s_t0}, s{s_w}"); k(f"s_mul_i32 s{s_t0}, s{s_delta}, {4 * 1280}")
    def slice_load_rows():
        for i in range(5):
            k(f"buffer_load_dwordx4 {vr(XS + 4*i, 4)}, v{vt[4]}, s[{sA}:{sA+3}], s{s_t0} offen offset:{256 * i}")
    def tag_load():
        k(f"v_mov_b32 v15, 0")
        k(f"buffer_load_dword v{v_tag}, v15, s[{sBi}:{sBi+3}], 0 offen sc1")
    def tag_wait(tag):
        k(f"s_mov_b32 s{s_it}, 0")
        k.label(k.L("tw" + tag))
        k(f"v_cmp_eq_u32 vcc, 0, v{v_tag}")
        k(f"s_cbranch_vccz {k.L('tr' + tag)}")
        k("s_sleep 2")
        k(f"buffer_load_dword v{v_tag}, v15, s[{sBi}:{sBi+3}], 0 offen sc1")
        k(f"s_add_u32 s{s_it}, s{s_it}, 1")
        k("s_waitcnt vmcnt(0)")
        k(f"s_cmp_lt_u32 s{s_it}, 0x4000")
        k(f"s_cbranch_scc1 {k.L('tw' + tag)}")
        k.label(k.L("tr" + tag))
    def slice_rows(part):
        if part == 0:
            k("v_mov_b32 v56, 0"); k("v_mov_b32 v57, 0"); k("v_mov_b32 v58, 0"); k("v_mov_b32 v59, 0")
        for r in (range(13) if part == 0 else range(13, 20)):
            k(f"v_lshlrev_b32 v52, 16, v{XS + r}")
            k(f"v_and_b32 v53, 0xffff0000, v{XS + r}")
            k("v_add_f32 v56, v56, v52"); k("v_fmac_f32 v57, v52, v52")
            k("v_add_f32 v58, v58, v53"); k("v_fmac_f32 v59, v53, v53")
        if part == 0: return
        k("v_add_f32 v56, v56, v58"); k("v_add_f32 v57, v57, v59")
        for sh in (8, 4, 2, 1):
            k(f"v_add_f32_dpp v56, v56, v56 row_ror:{sh} row_mask:0xf bank_mask:0xf")
            k(f"v_add_f32_dpp v57, v57, v57 row_ror:{sh} row_mask:0xf bank_mask:0xf")
        rowstat_math(k, 56, 57, 60, 62, 52, False)
        k(f"v_mov_b32 v61, v{v_tag}"); k(f"v_mov_b32 v63, v{v_tag}")
        k(f"s_lshl_b32 s{s_t0}, s{s_delta}, 6"); k(f"s_add_u32 s{s_t0}, s{s_t0}, {RG_OFF}")
        k("s_mov_b32 exec_lo, 0x00010001"); k("s_mov_b32 exec_hi, 0x00010001")
        k(f"buffer_store_dwordx4 v[60:63], v{v_lane}, s[{sW}:{sW+3}], s{s_t0} offen sc1")
        k("s_mov_b64 exec, -1")
    def slice_cols(part):
        if part == 0:
            for r in range(4):
                k(f"v_lshlrev_b32 v{56 + 2*r}, 16, v{XS + r}"); k(f"v_and_b32 v{57 + 2*r}, 0xffff0000, v{XS + r}")
            for i in range(1, 5):
                for r in range(4):
                    k(f"v_lshlrev_b32 v52, 16, v{XS + 4*i + r}"); k(f"v_and_b32 v53, 0xffff0000, v{XS + 4*i + r}")
                    k(f"v_add_f32 v{56 + 2*r}, v{56 + 2*r}, v52"); k(f"v_add_f32 v{57 + 2*r}, v{57 + 2*r}, v53")
            return
        for r in range(4): k(f"v_permlane32_swap_b32 v{56 + r}, v{60 + r}")
        for r in range(4): k(f"v_add_f32 v{56 + r}, v{56 + r}, v{60 + r}")
        for r in range(2): k(f"v_permlane16_swap_b32 v{56 + r}, v{58 + r}")
        k("v_add_f32 v56, v56, v58"); k("v_add_f32 v58, v57, v59")
        k(f"v_mov_b32 v57, v{v_tag}"); k(f"v_mov_b32 v59, v{v_tag}")
        k(f"v_and_b32 v{vt[4]}, 48, v{v_lane}")
        k(f"v_lshl_add_u32 v{vt[4]}, v{vt[5]}, 6, v{vt[4]}")
        k(f"s_mul_i32 s{s_t0}, s{s_delta}, 15360"); k(f"s_lshl_b32 s{s_t1}, s{s_nb}, 10"); k(f"s_add_u32 s{s_t0}, s{s_t0}, s{s_t1}")
        k(f"s_add_u32 s{s_t0}, s{s_t0}, {CG_OFF}")
        k(f"buffer_store_dwordx4 v[56:59], v{vt[4]}, s[{sW}:{sW+3}], s{s_t0} offen sc1")
    def slice_part(part):
        k(f"s_cmp_ge_u32 s{s_w}, 2"); k(f"s_cbranch_scc1 {k.L('slc%d' % part)}")
        slice_rows(part)
        k(f"s_branch {k.L('sld%d' % part)}")
        k.label(k.L("slc%d" % part))
        slice_cols(part)
        k.label(k.L("sld%d" % part))
    SLO = int(os.environ.get("SLO", "2"))
    for _ in range(SLO):
        for l in dma_stage(): k(l)
    if qkv:
        k(f"s_cmp_ge_u32 s{s_w}, 2"); k(f"s_cbranch_scc1 {k.L('slc')}")
        slice_addr_rows(); slice_load_rows()
        k(f"s_branch {k.L('sll')}")
        k.label(k.L("slc"))
        k(f"v_lshrrev_b32 v{vt[4]}, 4, v{v_lane}")
        k(f"v_and_b32 v{vt[5]}, 15, v{v_lane}")
        k(f"v_mul_u32_u24 v{vt[4]}, {BROW}, v{vt[4]}")
        k(f"v_lshl_add_u32 v{vt[4]}, v{vt[5]}, 4, v{vt[4]}")
        k(f"s_lshl_b32 s{s_delta}, s{s_mb}, 1"); k(f"s_add_u32 s{s_delta}, s{s_delta}, s{s_w}"); k(f"s_sub_u32 s{s_delta}, s{s_delta}, 2")
        k(f"s_mul_i32 s{s_t0}, s{s_delta}, {20 * BROW}"); k(f"s_lshl_b32 s{s_t1}, s{s_nb}, 8"); k(f"s_add_u32 s{s_t0}, s{s_t0}, s{s_t1}")
        for i in range(5):
            k(f"buffer_load_dwordx4 {vr(XS + 4*i, 4)}, v{vt[4]}, s[{sB}:{sB+3}], s{s_t0} offen")
            k(f"s_add_u32 s{s_t0}, s{s_t0}, {4 * BROW}")
        k.label(k.L("sll"))
        for _ in range(2 - SLO):
            for l in dma_stage(): k(l)
        srd(k, sW, WSL, WSL + 1, WS_END); srd(k, sBi, 40, 41, 256)
        lstep(13 if SLO else 8, False)
        tag_load()
        lstep(14 if SLO == 2 else 9)
        lstep(8)
        for l in dma_stage(): k(l)
        slice_part(0)
        lstep(8, False)
        for l in dma_stage(): k(l)
        tag_wait("a")
        slice_part(1)
        lstep(9, False)
        lstep(9)
        lstep(); lstep()
        for l in dma_stage(): k(l)
        k(f"s_lshl_b32 s{s_t0}, s{s_mb}, 11"); k(f"s_lshl_b32 s{s_t1}, s{s_w}, 9"); k(f"s_add_u32 s{s_t0}, s{s_t0}, s{s_t1}")
        k(f"s_add_u32 s{s_offA}, s{s_t0}, {RG_OFF}")
        k(f"v_lshlrev_b32 v{vt[0]}, 4, v{v_t}")
        k(f"v_lshrrev_b32 v{vt[1]}, 4, v{v_lane}")
        k(f"v_mul_u32_u24 v{vt[1]}, {8 * 15360}, v{vt[1]}")
        k(f"v_lshl_add_u32 v{vt[1]}, v{vt[5]}, 4, v{vt[1]}")
        k(f"s_lshl_b32 s{s_t0}, s{s_nb}, 10"); k(f"s_lshl_b32 s{s_t1}, s{s_w}, 8"); k(f"s_add_u32 s{s_t0}, s{s_t0}, s{s_t1}")
        k(f"s_add_u32 s{s_offB}, s{s_t0}, {CG_OFF}")
        def gather():
            k(f"buffer_load_dwordx4 v[64:67], v{vt[0]}, s[{sW}:{sW+3}], s{s_offA} offen sc1")
            k(f"s_mov_b32 s{s_t0}, s{s_offB}")
            for i in range(8):
                k(f"buffer_load_dwordx4 {vr(32 + 4*i, 4)}, v{vt[1]}, s[{sW}:{sW+3}], s{s_t0} offen sc1")
                k(f"s_add_u32 s{s_t0}, s{s_t0}, 15360")
        gather()
        lstep(17, False)
        lstep(9, False)
        k(f"s_mov_b32 s{s_it}, 0")
        k.label(k.L("poll"))
        k("s_waitcnt vmcnt(0)")
        k(f"v_and_b32 v68, v65, v67"); k(f"v_or_b32 v69, v65, v67")
        for i in range(16):
            k(f"v_and_b32 v68, v68, v{33 + 2*i}"); k(f"v_or_b32 v69, v69, v{33 + 2*i}")
        k(f"v_xor_b32 v68, v68, v{v_tag}"); k(f"v_xor_b32 v69, v69, v{v_tag}"); k("v_or_b32 v68, v68, v69")
        k(f"v_cmp_ne_u32 vcc, 0, v68")
        k(f"s_cbranch_vccz {k.L('ready')}")
        k("s_sleep 2")
        gather()
        k(f"s_add_u32 s{s_it}, s{s_it}, 1")
        k(f"s_cmp_lt_u32 s{s_it}, 0x2000")
        k(f"s_cbranch_scc1 {k.L('poll')}")
        k("s_waitcnt vmcnt(0)")
        k.label(k.L("ready"))
        k("v_add_f32 v33, v34, v38")
        for i in range(1, 8):
            k(f"v_add_f32 v32, v32, v{32 + 4*i}")
            if i > 1: k(f"v_add_f32 v33, v33, v{34 + 4*i}")
        k(f"s_cmp_lt_u32 s{s_nb}, 5")
        k(f"s_cselect_b32 s{s_t0}, {f32(math.log2(math.e) / math.sqrt(DH))}, 1.0")
        k(f"v_mul_f32 v65, s{s_t0}, v66")
        k(f"s_lshl_b32 s{s_t1}, s{s_w}, 7"); k(f"s_add_u32 s{s_t1}, s{s_t1}, {SB}")
        k(f"v_lshl_add_u32 v{vt[0]}, v{v_t}, 2, s{s_t1}")
        k(f"ds_write2_b32 v{vt[0]}, v64, v65 offset0:0 offset1:128")
        for sw in ("v_permlane32_swap_b32", "v_permlane16_swap_b32"):
            k("v_mov_b32 v34, v32"); k("v_mov_b32 v35, v33")
            k(f"{sw} v32, v34"); k(f"{sw} v33, v35")
            k("v_add_f32 v32, v32, v34"); k("v_add_f32 v33, v33, v35")
        k(f"v_lshl_add_u32 v{vt[1]}, v{vt[5]}, 3, s{s_t1}")
        k(f"ds_write_b64 v{vt[1]}, v[32:33] offset:1024")
        k("s_waitcnt lgkmcnt(0)")
        k("s_barrier")
    else:
        lloop("", 8)
        for l in dma_stage(): k(l)
        PS = 32
        k(f"s_lshl_b32 s{s_t0}, s{s_mb}, 7"); k(f"s_lshl_b32 s{s_t1}, s{s_w}, 5"); k(f"s_add_u32 s{s_t0}, s{s_t0}, s{s_t1}")
        k(f"v_add_lshl_u32 v{vt[2]}, v{v_t}, s{s_t0}, 3")
        k(f"v_mul_u32_u24 v{vt[1]}, {5 * 16384}, v{v_h}")
        k(f"v_add_u32 v{vt[2]}, v{vt[2]}, v{vt[1]}")
        for i in range(5):
            k(f"s_mov_b32 s{s_t0}, {HS_OFF + i * 16384}")
            k(f"buffer_load_dwordx2 {vr(PS + 2*i, 2)}, v{vt[2]}, s[{sW}:{sW+3}], s{s_t0} offen")
        k(f"s_lshl_b32 s{s_t0}, s{s_nb}, 10"); k(f"s_lshl_b32 s{s_t1}, s{s_w}, 8"); k(f"s_add_u32 s{s_t0}, s{s_t0}, s{s_t1}")
        k(f"s_add_u32 s{s_t0}, s{s_t0}, {C1_OFF}")
        k(f"s_add_u32 m0, s{s_t1}, {SB + 1024}")
        k(f"v_lshlrev_b32 v{vt[3]}, 2, v{v_lane}")
        k(f"buffer_load_dword v{vt[3]}, s[{sW}:{sW+3}], s{s_t0} offen lds")
        lstep(14, False)
        lstep(6, False)
        k("s_waitcnt vmcnt(0)")
        for i in range(1, 5):
            k(f"v_add_f32 v{PS}, v{PS}, v{PS + 2*i}"); k(f"v_add_f32 v{PS+1}, v{PS+1}, v{PS + 2*i + 1}")
        k(f"v_mov_b32 v{PS+2}, v{PS}"); k(f"v_mov_b32 v{PS+3}, v{PS+1}")
        k(f"v_permlane32_swap_b32 v{PS}, v{PS+2}"); k(f"v_permlane32_swap_b32 v{PS+1}, v{PS+3}")
        k(f"v_add_f32 v{PS}, v{PS}, v{PS+2}"); k(f"v_add_f32 v{PS+1}, v{PS+1}, v{PS+3}")
        rowstat_math(k, PS, PS + 1, 44, 45, PS + 2, True)
        k(f"s_lshl_b32 s{s_t1}, s{s_w}, 7"); k(f"s_add_u32 s{s_t1}, s{s_t1}, {SB}")
        k(f"v_lshl_add_u32 v{vt[3]}, v{v_t}, 2, s{s_t1}")
        k(f"ds_write_b32 v{vt[3]}, v44")
        k(f"ds_write_b32 v{vt[3]}, v45 offset:512")
        k("s_waitcnt lgkmcnt(0)")
        k("s_barrier")
    if not qkv: k.stamp(3); k.stamp(4); k.stamp(5); k.stamp(6)
    k(f"s_branch {k.L('end')}")
    k.label(k.L("compute"))
    if qkv:
        k(f"s_or_b32 s{s_t0}, s2, s{s_w}")
        k(f"s_cbranch_scc1 {k.L('notag')}")
        k("s_memrealtime s[44:45]")
        k("s_waitcnt lgkmcnt(0)")
        srd(k, sBi, 40, 41, 256)
        if "gate" in X: k(f"v_mov_b32 v{vt[2]}, s{86 if 'early' in X else 44}")
        k("s_mul_i32 s44, s44, 0x9e3779b1"); k("s_or_b32 s44, s44, 1")
        k(f"v_mov_b32 v{vt[0]}, 0"); k(f"v_mov_b32 v{vt[1]}, s44")
        k("s_mov_b64 exec, 1")
        k(f"buffer_store_dword v{vt[1]}, v{vt[0]}, s[{sBi}:{sBi+3}], 0 offen sc1")
        srd(k, sW, WSL, WSL + 1, WS_END)
        k(f"s_mov_b32 s{s_t0}, {TAG_OFF}")
        k(f"buffer_store_dword v{vt[1]}, v{vt[0]}, s[{sW}:{sW+3}], s{s_t0} offen sc1")
        if "gate" in X: k(f"buffer_store_dword v{vt[2]}, v{vt[0]}, s[{sW}:{sW+3}], s{s_t0} offen offset:4 sc1")
        k("s_mov_b64 exec, -1")
        k.label(k.L("notag"))
        if "nocpf" not in X:
            k(f"s_cmp_lg_u32 s{s_w}, 1"); k(f"s_cbranch_scc1 {k.L('nocpf')}")
            code_prefetch(k, k.name + "_kernel", sB, s_t0, vt[0], 14, v_lane)
            k.label(k.L("nocpf"))
        k(f"s_cmp_ge_u32 s{s_nb}, 15"); k(f"s_cbranch_scc1 {k.L('aux')}")
    k(f"s_lshr_b32 s{s_wm}, s{s_w}, 1"); k(f"s_and_b32 s{s_wn}, s{s_w}, 1")
    k(f"s_mov_b32 s34, {SLOT}")
    if qkv:
        k(f"v_bfe_u32 v{vt[0]}, v{v_t}, 1, 3")
        k(f"v_xor_b32 v{vt[0]}, v{vt[0]}, v{v_h}")
        k(f"s_lshl_b32 s{s_t0}, s{s_wm}, 13")
        k(f"v_lshl_add_u32 v{vt[1]}, v{v_t}, 7, s{s_t0}")
        for ks in range(4):
            k(f"v_xor_b32 v{vt[2]}, {2*ks}, v{vt[0]}")
            k(f"v_lshl_add_u32 v{vAr[ks]}, v{vt[2]}, 4, v{vt[1]}")
        def a_read(dst, ks, mt): return f"ds_read_b128 {vr(dst,4)}, v{vAr[ks]} offset:{mt*4096}"
        def a_upd(ks): return [vAr[ks]]
    else:
        k(f"s_lshl_b32 s{s_t0}, s{s_wm}, 10")
        k(f"v_lshl_add_u32 v{vt[0]}, v{v_t}, 4, s{s_t0}")
        k(f"v_lshl_add_u32 v{vAr[0]}, v{v_h}, 11, v{vt[0]}")
        def a_read(dst, ks, mt): return f"ds_read_b128 {vr(dst,4)}, v{vAr[0]} offset:{ks*4096 + mt*512}"
        def a_upd(ks): return [vAr[0]] if ks == 0 else []
    k(f"v_bfe_u32 v{vt[0]}, v{v_lane}, 2, 2")
    k(f"v_lshl_add_u32 v{vt[1]}, v{v_h}, 3, v{vt[0]}")
    k(f"v_lshlrev_b32 v{vt[1]}, 8, v{vt[1]}")
    k(f"v_bfe_u32 v{vt[2]}, v{v_lane}, 4, 1")
    k(f"v_lshl_add_u32 v{vt[1]}, v{vt[2]}, 5, v{vt[1]}")
    k(f"v_and_b32 v{vt[2]}, 3, v{v_lane}")
    k(f"v_lshl_add_u32 v{vt[1]}, v{vt[2]}, 3, v{vt[1]}")
    k(f"v_add_u32 v{vt[1]}, 16384, v{vt[1]}")
    k(f"s_lshl_b32 s{s_t0}, s{s_wn}, 1")
    k(f"v_xor_b32 v{vt[2]}, s{s_t0}, v{vt[0]}")
    k(f"v_lshl_add_u32 v{vBr[0]}, v{vt[2]}, 6, v{vt[1]}")
    k(f"v_xor_b32 v{vBr[1]}, 64, v{vBr[0]}")
    def b_read(dst, ks, nt, e): return f"ds_read_b64_tr_b16 {vr(dst + 2*e, 2)}, v{vBr[nt]} offset:{ks*4096 + e*1024}"
    for r in range(64): k(f"v_mov_b32 v{ACC + r}, 0")
    k(f"s_mov_b32 s{s_it}, 0"); k(f"s_mov_b32 s{s_slot}, 0")
    k("s_waitcnt lgkmcnt(0)")
    srd(k, sW, WSL, WSL + 1, WS_END)

    def reads(ks):
        return [a_read(FA[ks][0], ks, 0), b_read(FB[ks][0], ks, 0, 0), b_read(FB[ks][0], ks, 0, 1),
                b_read(FB[ks][1], ks, 1, 0), b_read(FB[ks][1], ks, 1, 1), a_read(FA[ks][1], ks, 1)]
    k("s_waitcnt lgkmcnt(0)")
    k("s_barrier")
    for l in reads(0) + reads(1): k(l)

    def mainloop(tag, vorient):
        k.label(k.L("loop" + tag))
        for ks in range(4):
            mf = []
            for mt in range(2):
                for nt in range(2):
                    a, b = FA[ks][mt], FB[ks][nt]
                    s0, s1 = (a, b) if vorient else (b, a)
                    mf.append(f"v_mfma_f32_32x32x16_bf16 {vr(acc(mt,nt),16)}, {vr(s0,4)}, {vr(s1,4)}, {vr(acc(mt,nt),16)}")
            pre = []
            if ks == 2:
                k("s_barrier")
                pre += [f"s_add_u32 s{s_slot}, s{s_slot}, 1", f"s_and_b32 s{s_slot}, s{s_slot}, {NS - 1}",
                        f"s_cselect_b32 s{s_delta}, s34, {(-(NS - 1) * SLOT) & 0xffffffff:#x}"]
                pre += [f"v_add_u32 v{a}, s{s_delta}, v{a}" for a in vBr]
            nk = (ks + 2) % 4
            if ks >= 2:
                pre += [f"v_add_u32 v{a}, s{s_delta}, v{a}" for a in a_upd(nk)]
            post = []
            if ks == 3:
                post = [f"v_add_u32 v{a}, s{s_delta}, v{a}" for a in a_upd(2) + a_upd(3)]
                post += [f"s_add_u32 s{s_it}, s{s_it}, 1", f"s_cmp_lt_u32 s{s_it}, {NST}"]
            rd = reads(nk)
            k("s_waitcnt lgkmcnt(6)")
            seq = [mf[0]] + pre + rd[0:2] + [mf[1]] + rd[2:4] + [mf[2]] + rd[4:6] + post + [mf[3]]
            for l in seq: k(l)
        k(f"s_cbranch_scc1 {k.L('loop' + tag)}")

    def epi_nm():
        MR = [28, 30]
        CS = EP; B1 = EP + 32
        k(f"s_lshl_b32 s{s_t0}, s{s_wm}, 8"); k(f"s_add_u32 s{s_t0}, s{s_t0}, {SB}")
        k(f"v_lshl_add_u32 v{vt[4]}, v{v_t}, 2, s{s_t0}")
        for mt in range(2):
            k(f"ds_read2_b32 {vr(MR[mt],2)}, v{vt[4]} offset0:{mt*32} offset1:{128 + mt*32}")
        k(f"s_lshl_b32 s{s_t0}, s{s_wn}, 8"); k(f"s_add_u32 s{s_t0}, s{s_t0}, {SB}")
        k(f"v_lshl_add_u32 v{vt[0]}, v{v_h}, 4, s{s_t0}")
        for nt in range(2):
            for rq in range(4):
                k(f"ds_read_b128 {vr(CS + nt*16 + rq*4, 4)}, v{vt[0]} offset:{1024 + nt*128 + rq*32}")
            if not qkv:
                for rq in range(4):
                    k(f"ds_read_b128 {vr(B1 + nt*16 + rq*4, 4)}, v{vt[0]} offset:{1536 + nt*128 + rq*32}")
        OFF = QK_OFF if qkv else G_OFF
        k(f"s_lshl_b32 s{s_t0}, s{s_nb}, 4"); k(f"s_lshl_b32 s{s_t1}, s{s_wn}, 3"); k(f"s_add_u32 s{s_t0}, s{s_t0}, s{s_t1}")
        k(f"v_add_lshl_u32 v{vt[2]}, v{v_h}, s{s_t0}, 15")
        k(f"s_lshl_b32 s{s_t0}, s{s_mb}, 7"); k(f"s_lshl_b32 s{s_t1}, s{s_wm}, 6"); k(f"s_add_u32 s{s_t0}, s{s_t0}, s{s_t1}")
        k(f"v_add_u32 v{vt[3]}, s{s_t0}, v{v_t}")
        k(f"v_lshl_add_u32 v{vt[2]}, v{vt[3]}, 4, v{vt[2]}")
        so = 46
        for c in range(4): k(f"s_mov_b32 s{so + c}, {OFF + 2*c*CH}")
        if not qkv:
            C0 = -2.0 * math.log2(math.e) * math.sqrt(2.0 / math.pi)
            k(f"s_mov_b32 s44, {f32(C0 * 0.044715)}"); k(f"s_mov_b32 s45, {f32(C0 * 0.044715)}")
            k(f"v_mov_b32 v{vt[4]}, {f32(C0)}"); k(f"v_mov_b32 v{vt[5]}, {f32(C0)}")
        k("s_waitcnt lgkmcnt(0)")
        T = EP + 64
        n_st = 0
        for nt in range(2):
            for mt in range(2):
                a = acc(mt, nt); mr = MR[mt]
                for p in range(8):
                    x = vr(a + 2*p, 2)
                    k(f"v_pk_fma_f32 {x}, {vr(CS + nt*16 + 2*p, 2)}, {vr(mr,2)}, {x} op_sel_hi:[1,0,1]")
                for p in range(8):
                    x = vr(a + 2*p, 2)
                    if qkv:
                        k(f"v_pk_mul_f32 {x}, {x}, {vr(mr,2)} op_sel:[0,1] op_sel_hi:[1,1]")
                    else:
                        k(f"v_pk_fma_f32 {x}, {x}, {vr(mr,2)}, {vr(B1 + nt*16 + 2*p, 2)} op_sel:[0,1,0] op_sel_hi:[1,1,1]")
                if not qkv:
                    for p in range(8):
                        x = vr(a + 2*p, 2); t = vr(T + 2*p, 2)
                        k(f"v_pk_mul_f32 {t}, {x}, {x}")
                    for p in range(8):
                        t = vr(T + 2*p, 2)
                        k(f"v_pk_fma_f32 {t}, {t}, s[44:45], {vr(vt[4],2)}")
                    for p in range(8):
                        x = vr(a + 2*p, 2); t = vr(T + 2*p, 2)
                        k(f"v_pk_mul_f32 {t}, {t}, {x}")
                    for r in range(16): k(f"v_exp_f32 v{T + r}, v{T + r}")
                    for p in range(8):
                        t = vr(T + 2*p, 2)
                        k(f"v_pk_add_f32 {t}, {t}, 1.0 op_sel_hi:[1,0]")
                    for r in range(16): k(f"v_rcp_f32 v{T + r}, v{T + r}")
                    for p in range(8):
                        x = vr(a + 2*p, 2); t = vr(T + 2*p, 2)
                        k(f"v_pk_mul_f32 {x}, {x}, {t}")
                Pk = T + 16 + (n_st % 2) * 8
                for p in range(8):
                    k(f"v_cvt_pk_bf16_f32 v{Pk + p}, v{a + 2*p}, v{a + 2*p + 1}")
                for pq in range(2):
                    b = Pk + 4*pq
                    k(f"v_permlane32_swap_b32 v{b}, v{b+2}")
                    k(f"v_permlane32_swap_b32 v{b+1}, v{b+3}")
                for pq in range(2):
                    b = Pk + 4*pq
                    k(f"buffer_store_dwordx4 {vr(b,4)}, v{vt[2]}, s[{sW}:{sW+3}], s{so + nt*2 + pq} offen offset:{mt*512} sc1")
                n_st += 1

    def epi_v():
        NM = EP; RS = EP + 32; CSV = [28, 30]
        k(f"s_lshl_b32 s{s_t0}, s{s_wm}, 8"); k(f"s_add_u32 s{s_t0}, s{s_t0}, {SB}")
        k(f"v_lshl_add_u32 v{vt[0]}, v{v_h}, 4, s{s_t0}")
        k(f"s_lshl_b32 s{s_t0}, s{s_wn}, 8"); k(f"s_add_u32 s{s_t0}, s{s_t0}, {SB}")
        k(f"v_lshl_add_u32 v{vt[1]}, v{v_t}, 2, s{s_t0}")
        for nt in range(2):
            k(f"ds_read_b32 v{CSV[nt]}, v{vt[1]} offset:{1024 + nt*128}")
        for mt in range(2):
            for rq in range(4):
                k(f"ds_read_b128 {vr(NM + mt*16 + rq*4, 4)}, v{vt[0]} offset:{mt*128 + rq*32}")
                k(f"ds_read_b128 {vr(RS + mt*16 + rq*4, 4)}, v{vt[0]} offset:{512 + mt*128 + rq*32}")
        k(f"s_lshl_b32 s{s_t0}, s{s_mb}, 1"); k(f"s_add_u32 s{s_t0}, s{s_t0}, s{s_wm}"); k(f"s_mul_i32 s{s_t0}, s{s_t0}, 2560")
        k(f"s_lshl_b32 s{s_t1}, s{s_nb}, 7"); k(f"s_add_u32 s{s_t0}, s{s_t0}, s{s_t1}"); k(f"s_sub_u32 s{s_t0}, s{s_t0}, 1280")
        k(f"s_lshl_b32 s{s_t1}, s{s_wn}, 6"); k(f"s_add_u32 s{s_t0}, s{s_t0}, s{s_t1}")
        k(f"v_add_lshl_u32 v{vt[2]}, v{v_t}, s{s_t0}, 5")
        k(f"v_lshl_add_u32 v{vt[2]}, v{v_h}, 4, v{vt[2]}")
        so = 46
        for c in range(4): k(f"s_mov_b32 s{so + c}, {V_OFF + c * 640 * 32}")
        k("s_waitcnt lgkmcnt(0)")
        T = EP + 64; n_st = 0
        for mt in range(2):
            for nt in range(2):
                a = acc(mt, nt)
                for p in range(8):
                    x = vr(a + 2*p, 2)
                    k(f"v_pk_fma_f32 {x}, {vr(NM + mt*16 + 2*p, 2)}, {vr(CSV[nt],2)}, {x} op_sel_hi:[1,0,1]")
                for p in range(8):
                    x = vr(a + 2*p, 2)
                    k(f"v_pk_mul_f32 {x}, {x}, {vr(RS + mt*16 + 2*p, 2)}")
                Pk = T + (n_st % 2) * 8
                for p in range(8):
                    k(f"v_cvt_pk_bf16_f32 v{Pk + p}, v{a + 2*p}, v{a + 2*p + 1}")
                for jj in range(2):
                    k(f"buffer_store_dwordx4 {vr(Pk + 4*jj, 4)}, v{vt[2]}, s[{sW}:{sW+3}], s{so + mt*2 + jj} offen offset:{nt*1024} sc1")
                n_st += 1

    if qkv:
        k(f"s_cmp_ge_u32 s{s_nb}, 10")
        k(f"s_cbranch_scc1 {k.L('loopv')}")
        mainloop("q", False); epi_nm()
        k(f"s_branch {k.L('end')}")
        mainloop("v", True); epi_v()
        k(f"s_branch {k.L('end')}")
        k.label(k.L("auxl"))
        k(f"s_cmp_ge_u32 s{s_w}, 2"); k(f"s_cbranch_scc1 {k.L('aux')}")
        slice_addr_rows()
        k("s_waitcnt lgkmcnt(0)")
        srd(k, sA, 36, 37, S * D * 2); srd(k, sW, WSL, WSL + 1, WS_END); srd(k, sBi, 40, 41, 256)
        slice_load_rows()
        k("s_waitcnt vmcnt(0)")
        tag_load()
        slice_rows(0)
        k("s_waitcnt vmcnt(0)")
        tag_wait("x")
        slice_rows(1)
        k.label(k.L("aux"))
        k("s_load_dwordx4 s[44:47], s[0:1], 32")
        k(f"v_lshrrev_b32 v{vt[0]}, 4, v{v_lane}")
        k(f"v_and_b32 v{vt[1]}, 15, v{v_lane}")
        k(f"v_mul_u32_u24 v{vt[2]}, {F * 2}, v{vt[0]}")
        k(f"v_lshl_add_u32 v{vt[2]}, v{vt[1]}, 4, v{vt[2]}")
        k(f"v_lshlrev_b32 v{vt[3]}, 1, v0")
        k("s_waitcnt lgkmcnt(0)")
        srd(k, sW, WSL, WSL + 1, WS_END)
        k(f"s_cmp_ge_u32 s{s_mb}, 14"); k(f"s_cbranch_scc1 {k.L('end')}")
        srd(k, sB, 44, 45, D * F * 2); srd(k, sA, 46, 47, F * 2)
        k(f"s_mul_i32 s{s_t0}, s{s_wid}, {80 * F * 2}"); k(f"s_lshl_b32 s{s_t1}, s{s_mb}, 8"); k(f"s_add_u32 s{s_t0}, s{s_t0}, s{s_t1}")
        k(f"buffer_load_ushort v{v_b1}, v{vt[3]}, s[{sA}:{sA+3}], s{s_t1} offen")
        for i in range(20):
            k(f"buffer_load_dwordx4 {vr(40 + 4*i, 4)}, v{vt[2]}, s[{sB}:{sB+3}], s{s_t0} offen")
            k(f"s_add_u32 s{s_t0}, s{s_t0}, {4 * F * 2}")
        for r in range(8): k(f"v_mov_b32 v{24 + r}, 0")
        for i in range(20):
            k(f"s_waitcnt vmcnt({19 - i})")
            for r in range(4):
                k(f"v_lshlrev_b32 v{32 + 2*r}, 16, v{40 + 4*i + r}")
                k(f"v_and_b32 v{33 + 2*r}, 0xffff0000, v{40 + 4*i + r}")
            for r in range(4):
                k(f"v_pk_add_f32 {vr(24 + 2*r, 2)}, {vr(24 + 2*r, 2)}, {vr(32 + 2*r, 2)}")
        k(f"v_lshlrev_b32 v{vt[0]}, 5, v0")
        k(f"ds_write_b128 v{vt[0]}, v[24:27]")
        k(f"ds_write_b128 v{vt[0]}, v[28:31] offset:16")
        k("s_waitcnt lgkmcnt(0)")
        k("s_barrier")
        k(f"s_cmp_ge_u32 s{s_wid}, 2"); k(f"s_cbranch_scc1 {k.L('end')}")
        k(f"v_lshlrev_b32 v{vt[0]}, 2, v0")
        for i in range(32):
            k(f"ds_read_b32 v{40 + i}, v{vt[0]} offset:{i * 512}")
            if i % 8 == 7: k("s_waitcnt lgkmcnt(0)")
        for i in range(1, 32): k(f"v_add_f32 v40, v40, v{40 + i}")
        k(f"v_lshlrev_b32 v{v_b1}, 16, v{v_b1}")
        k(f"s_lshl_b32 s{s_t0}, s{s_mb}, 10"); k(f"s_add_u32 s{s_t0}, s{s_t0}, {C1_OFF}"); k(f"s_add_u32 s{s_t1}, s{s_t0}, 512")
        k(f"buffer_store_dword v40, v{vt[0]}, s[{sW}:{sW+3}], s{s_t0} offen sc1")
        k(f"buffer_store_dword v{v_b1}, v{vt[0]}, s[{sW}:{sW+3}], s{s_t1} offen sc1")
    k.label(k.L("end"))
    k(f"s_lshl_b32 s94, s{s_mb}, 4"); k(f"s_add_u32 s94, s94, s{s_nb}")
    k(f"v_readfirstlane_b32 s{S_TAG}, v{v_tag}")
    k.stamp(2)

def phase2(k):
    k.pref = "p2"
    sW = 4; sP1 = 8; sP2 = 12; sP3 = 16; sWW = 52
    s_hd, s_qb, s_w, s_qs, s_kh, s_t0, s_t1, s_it = 20, 21, S_WID, 23, 24, 25, 26, 27
    s_ko, s_vo, s_odd = 28, 29, 30
    s_vm = 32; s_lo = 34; s_c = 36
    s_do, s_dm, s_qo = 56, 57, 58
    v_lane, v_t, v_h = 1, 2, 3
    vK1, vK2, vV0, vV1 = 4, 5, 6, 7
    vt = [8, 9, 10, 11, 12, 13, 14, 15]
    vm = [16, 17]
    v_pfa, v_pfc, v_pf = 18, 19, 200
    vD = [202, 203, 204, 205]
    v_fx, vX, v_pt = 206, 208, 207
    Q1 = [20, 24]; Q2 = [28, 30]
    NBUF = 4
    K1 = [32, 36, 40, 44]; K2 = [48, 50, 52, 54]
    VB = [56, 64, 72, 80]
    C = [88, 104]; Sx = [120, 136]; P = [152, 160]; O = [168, 184]
    k("s_load_dwordx2 s[40:41], s[0:1], 80")
    k("s_load_dwordx2 s[44:45], s[0:1], 16")
    k("s_load_dwordx2 s[46:47], s[0:1], 32")
    k("s_load_dwordx2 s[38:39], s[0:1], 48")
    if "headmap" in X:
        k(f"s_and_b32 s{s_hd}, s2, 7"); k(f"s_lshl_b32 s{s_hd}, s{s_hd}, 2")
        k(f"s_bfe_u32 s{s_t0}, s2, 0x20003"); k(f"s_add_u32 s{s_hd}, s{s_hd}, s{s_t0}")
        k(f"s_lshr_b32 s{s_qb}, s2, 5")
    else:
        k(f"s_lshr_b32 s{s_hd}, s2, 3"); k(f"s_and_b32 s{s_qb}, s2, 7")
    k(f"s_and_b32 s{s_qs}, s{s_w}, 3"); k(f"s_lshr_b32 s{s_kh}, s{s_w}, 2")
    k(f"s_and_b32 s{s_odd}, s{s_hd}, 1")
    k(f"s_mov_b32 s{s_lo}, -1"); k(f"s_mov_b32 s{s_lo+1}, 0")
    k(f"s_lshr_b32 s{s_t0}, s{s_hd}, 1"); k(f"s_mul_i32 s{s_t0}, s{s_t0}, 5")
    k(f"s_mul_i32 s{s_t1}, s{s_odd}, 3"); k(f"s_add_u32 s{s_t1}, s{s_t1}, s{s_t0}")
    k(f"v_add_lshl_u32 v{vK1}, v{v_h}, s{s_t1}, 15")
    k(f"v_lshl_add_u32 v{vK1}, v{v_t}, 4, v{vK1}")
    k(f"s_add_u32 s{s_t0}, s{s_t0}, 2"); k(f"s_lshl_b32 s{s_t0}, s{s_t0}, 15")
    k(f"s_lshl_b32 s{s_t1}, s{s_odd}, 3"); k(f"s_add_u32 s{s_t0}, s{s_t0}, s{s_t1}")
    k(f"v_lshl_add_u32 v{vK2}, v{v_t}, 4, s{s_t0}")
    k(f"s_lshl_b32 s{s_ko}, s{s_kh}, 14"); k(f"s_add_u32 s{s_ko}, s{s_ko}, {QK_OFF + 80 * CH}")
    k(f"s_lshl_b32 s{s_qo}, s{s_qb}, 12"); k(f"s_lshl_b32 s{s_t1}, s{s_qs}, 10"); k(f"s_add_u32 s{s_qo}, s{s_qo}, s{s_t1}")
    for qt in range(2):
        k(f"v_mov_b32 v{Q2[qt]}, 0"); k(f"v_mov_b32 v{Q2[qt]+1}, 0")
    k(f"s_mov_b32 s42, s{s_ko}")
    k(f"s_mov_b32 s{s_vm}, 0xfffff"); k(f"s_mov_b32 s{s_vm+1}, 0xfffff")
    k(f"v_add_u32 v{vt[0]}, 4, v{v_t}")
    k(f"v_subrev_u32 v{vt[1]}, 16, v{v_t}")
    k(f"v_cmp_gt_u32 vcc, 16, v{v_t}")
    k(f"v_cndmask_b32 v{vt[0]}, v{vt[1]}, v{vt[0]}, vcc")
    k(f"s_cmp_eq_u32 s{s_odd}, 1")
    k(f"s_cselect_b64 vcc, -1, 0")
    k(f"v_cndmask_b32 v{vt[0]}, v{v_t}, v{vt[0]}, vcc")
    k(f"s_mul_i32 s{s_t0}, s{s_hd}, 20")
    k(f"v_add_lshl_u32 v{vV0}, v{vt[0]}, s{s_t0}, 5")
    k(f"v_lshl_add_u32 v{vV0}, v{v_h}, 4, v{vV0}")
    k(f"v_add_u32 v{vV1}, {640 * 32}, v{vV0}")
    k(f"s_mul_i32 s{s_vo}, s{s_kh}, {32 * 1280 * 32}"); k(f"s_add_u32 s{s_vo}, s{s_vo}, {V_OFF}")
    k(f"s_mov_b32 s43, s{s_vo}")
    k(f"v_cmp_eq_u32 vcc, 20, v{v_t}")
    k(f"v_mov_b32 v{vt[1]}, 0x3f803f80")
    k(f"v_cndmask_b32 v{vt[1]}, 0, v{vt[1]}, vcc")
    for b in range(NBUF):
        for r in range(8): k(f"v_mov_b32 v{VB[b] + r}, v{vt[1]}")
    for qt in range(2):
        for r in range(16): k(f"v_mov_b32 v{O[qt] + r}, 0")
    for r in range(8): k(f"v_mov_b32 v{P[1] + r}, 0")
    k(f"s_lshr_b32 s{s_t0}, s2, 3"); k(f"s_lshl_b32 s{s_t0}, s{s_t0}, 3"); k(f"s_add_u32 s{s_t0}, s{s_t0}, s{s_w}")
    k(f"s_mul_i32 s49, s{s_t0}, {48 * 128}"); k(f"s_add_u32 s49, s49, {192 * F * 2}")
    k(f"v_lshlrev_b32 v{vt[2]}, 8, v{v_lane}"); k(f"v_add_u32 v{vt[2]}, 124, v{vt[2]}")
    k(f"v_mov_b32 v{vt[3]}, 0x7ffffff0")
    k(f"v_cmp_gt_u32 vcc, 24, v{v_lane}")
    k(f"v_cndmask_b32 v{v_pfa}, v{vt[3]}, v{vt[2]}, vcc")
    k(f"s_lshl_b32 s48, s2, 3"); k(f"s_add_u32 s48, s48, s{s_w}"); k(f"s_mul_i32 s48, s48, {10 * 128}")
    k(f"v_cmp_gt_u32 vcc, 5, v{v_lane}")
    k(f"v_cndmask_b32 v{v_pfc}, v{vt[3]}, v{vt[2]}, vcc")
    k(f"s_sub_u32 s50, s{s_qs}, s{s_kh}"); k(f"s_add_u32 s50, s50, 3")
    k(f"s_lshl_b32 s92, s2, 3"); k(f"s_add_u32 s92, s92, s{s_w}"); k(f"s_mul_i32 s92, s92, 6144"); k(f"s_add_u32 s92, s92, {O_OFF}")
    k(f"v_lshrrev_b32 v{vt[0]}, 3, v{v_lane}")
    k(f"v_and_b32 v{vt[1]}, 7, v{v_lane}")
    k(f"v_bfe_u32 v{vt[2]}, v{v_lane}, 4, 1")
    k(f"v_lshlrev_b32 v{vt[2]}, 2, v{vt[2]}")
    k(f"v_xor_b32 v{vt[1]}, v{vt[1]}, v{vt[2]}")
    k(f"v_mul_u32_u24 v{vt[0]}, 1280, v{vt[0]}")
    k(f"v_lshl_add_u32 v{vD[0]}, v{vt[1]}, 4, v{vt[0]}")
    k(f"v_add_u32 v{vD[1]}, {8 * 1280 - 1024}, v{vD[0]}")
    k(f"v_lshrrev_b32 v{vt[0]}, 4, v{v_lane}")
    k(f"v_and_b32 v{vt[1]}, 15, v{v_lane}")
    k(f"v_lshlrev_b32 v{vt[2]}, 2, v{vt[0]}")
    k(f"v_xor_b32 v{vt[1]}, v{vt[1]}, v{vt[2]}")
    k(f"v_mul_u32_u24 v{vt[0]}, {F * 2}, v{vt[0]}")
    k(f"v_lshl_add_u32 v{vD[2]}, v{vt[1]}, 4, v{vt[0]}")
    k(f"v_add_u32 v{vD[3]}, {4 * F * 2 - 1024}, v{vD[2]}")
    k(f"s_lshr_b32 s{s_t0}, s2, 3")
    k(f"s_mul_i32 s{s_t1}, s{s_t0}, 43"); k(f"s_lshr_b32 s{s_t1}, s{s_t1}, 7"); k(f"s_lshl_b32 s{s_t1}, s{s_t1}, 7")
    k(f"s_mul_i32 s{s_do}, s{s_w}, {16 * 1280}"); k(f"s_add_u32 s{s_do}, s{s_do}, s{s_t1}")
    k(f"s_lshr_b32 s{s_t0}, s{s_t0}, 1"); k(f"s_lshl_b32 s{s_t0}, s{s_t0}, 8")
    k(f"s_mul_i32 s59, s{s_w}, {8 * F * 2}"); k(f"s_add_u32 s59, s59, s{s_t0}")
    k(f"s_lshl_b32 s{s_dm}, s{s_w}, 11")
    k("s_waitcnt lgkmcnt(0)")
    srd(k, sW, 40, 41, O_OFF); srd(k, sWW, 40, 41, WS_END)
    srd(k, sP1, 44, 45, D * D * 2); srd(k, sP2, 46, 47, D * F * 2)
    W = f"s[{sW}:{sW+3}]"
    srd(k, sP3, 38, 39, D * F * 2)
    k(f"s_getreg_b32 s51, hwreg(HW_REG_XCC_ID)"); k(f"s_and_b32 s51, s51, 15")
    k(f"s_and_b32 s{s_t0}, s2, 7"); k(f"s_lshl_b32 s{s_t0}, s{s_t0}, 7"); k(f"s_add_u32 s{s_t0}, s{s_t0}, {FX_OFF}")
    k(f"v_lshl_add_u32 v{v_fx}, v{v_t}, 10, s{s_t0}")
    k(f"s_and_b32 s{s_t0}, s{s_w}, 6"); k(f"s_cmp_lg_u32 s{s_t0}, 4"); k(f"s_cbranch_scc1 {k.L('nt')}")
    k(f"s_lshr_b32 s{s_t0}, s{s_hd}, 1"); k(f"s_mul_i32 s{s_t0}, s{s_t0}, 5"); k(f"s_add_u32 s{s_t0}, s{s_t0}, s{s_odd}"); k(f"s_add_u32 s{s_t0}, s{s_t0}, s{s_odd}")
    k(f"s_add_u32 s{s_t1}, s{s_t0}, 2"); k(f"s_lshr_b32 s{s_t0}, s{s_t0}, 4"); k(f"s_lshr_b32 s{s_t1}, s{s_t1}, 4")
    k(f"s_cmp_eq_u32 s{s_w}, 4"); k(f"s_cbranch_scc1 {k.L('fk')}")
    k(f"s_lshl_b32 s{s_t0}, s2, 7"); k(f"s_add_u32 s{s_t0}, s{s_t0}, {FX_OFF}")
    k(f"v_mov_b32 v{vt[2]}, s{S_TAG}"); k(f"v_mov_b32 v{vt[3]}, s51"); k(f"v_mov_b32 v{vt[4]}, 0")
    k("s_mov_b64 exec, 1")
    k(f"buffer_store_dwordx2 {vr(vt[2], 2)}, v{vt[4]}, s[{sWW}:{sWW+3}], s{s_t0} offen sc1")
    k("s_mov_b64 exec, -1")
    k(f"s_mul_i32 s{s_t0}, s{s_hd}, 20"); k(f"s_add_u32 s{s_t1}, s{s_t0}, {19 + 640}"); k(f"s_add_u32 s{s_t0}, s{s_t0}, 640")
    k(f"s_lshr_b32 s{s_t0}, s{s_t0}, 7"); k(f"s_lshr_b32 s{s_t1}, s{s_t1}, 7")
    k.label(k.L("fk"))
    k(f"v_mov_b32 v{vt[0]}, s{s_t0}"); k(f"v_mov_b32 v{vt[1]}, s{s_t1}")
    k(f"v_and_b32 v{vt[5]}, 16, v{v_lane}"); k(f"v_cmp_eq_u32 vcc, 0, v{vt[5]}")
    k(f"v_cndmask_b32 v{vt[5]}, v{vt[1]}, v{vt[0]}, vcc")
    k(f"v_and_b32 v{vt[1]}, 15, v{v_lane}")
    k(f"v_lshl_add_u32 v{vt[0]}, v{vt[1]}, 4, v{vt[5]}")
    k(f"v_add_u32 v{vt[0]}, 5, v{vt[0]}")
    k(f"v_and_b32 v{vt[1]}, 1, v{v_lane}"); k(f"s_lshl_b32 s{s_t0}, s{s_qb}, 1"); k(f"v_add_u32 v{vt[1]}, s{s_t0}, v{vt[1]}")
    k(f"v_lshl_add_u32 v{vt[1]}, v{vt[1]}, 4, v{vt[5]}")
    k(f"s_cmp_eq_u32 s{s_w}, 4"); k(f"s_cselect_b32 s{s_t0}, 32, 64")
    k(f"v_cmp_gt_u32 vcc, s{s_t0}, v{v_lane}")
    k(f"v_cndmask_b32 v{vt[0]}, v{vt[1]}, v{vt[0]}, vcc")
    k(f"v_lshlrev_b32 v{vt[0]}, 7, v{vt[0]}"); k(f"v_add_u32 v{vt[0]}, {FL_OFF}, v{vt[0]}")
    k.label(k.L("nt"))
    k("s_waitcnt vmcnt(0)")
    k("s_barrier")
    k.stamp(3)
    k(f"s_and_b32 s{s_t0}, s{s_w}, 6"); k(f"s_cmp_lg_u32 s{s_t0}, 4"); k(f"s_cbranch_scc1 {k.L('nw')}")
    k(f"s_cmp_lg_u32 s{s_w}, 4"); k(f"s_cbranch_scc1 {k.L('npb')}")
    publish(k, sWW, 1, 94, s_t0, vt[4], vt[5])
    k.label(k.L("npb"))
    poll(k, sWW, [vt[0]], [vt[2]], s_it, "1")
    k.label(k.L("nw"))
    k(f"s_cmp_eq_u32 s{s_kh}, 0"); k(f"s_cbranch_scc1 {k.L('np')}")
    k("s_setprio 1")
    k.label(k.L("np"))
    k("s_barrier")
    k.stamp(4)
    SC = " sc1" if "kvsc1" in X else ""
    def kload(b):
        return [f"buffer_load_dwordx4 {vr(K1[b],4)}, v{vK1}, {W}, s{s_ko} offen{SC}",
                f"buffer_load_dwordx2 {vr(K2[b],2)}, v{vK2}, {W}, s{s_ko} offen{SC}",
                f"s_add_u32 s{s_ko}, s{s_ko}, 512"]
    def vload(b):
        return [f"s_mov_b64 exec, s[{s_vm}:{s_vm+1}]",
                f"buffer_load_dwordx4 {vr(VB[b],4)}, v{vV0}, {W}, s{s_vo} offen{SC}",
                f"buffer_load_dwordx4 {vr(VB[b]+4,4)}, v{vV1}, {W}, s{s_vo} offen{SC}",
                f"s_mov_b64 exec, -1",
                f"s_add_u32 s{s_vo}, s{s_vo}, {1280 * 32}"]
    def wdma(which):
        a, b_, sr_, so, step = (vD[0], vD[1], sP1, s_do, 128 * 1280) if which == 0 else (vD[2], vD[3], sP2, 59, 64 * F * 2)
        return [f"s_mov_b32 m0, s{s_dm}", f"s_add_u32 s{s_dm}, s{s_dm}, 16384",
                f"buffer_load_dwordx4 v{a}, s[{sr_}:{sr_+3}], s{so} offen lds",
                f"buffer_load_dwordx4 v{b_}, s[{sr_}:{sr_+3}], s{so} offen offset:1024 lds",
                f"s_add_u32 s{so}, s{so}, {step}"]
    for l in kload(0): k(l)
    for qt in range(2):
        k(f"buffer_load_dwordx4 {vr(Q1[qt],4)}, v{vK1}, {W}, s{s_qo} offen offset:{qt*512} sc1")
    k(f"s_mov_b64 exec, s[{s_lo}:{s_lo+1}]")
    for qt in range(2):
        k(f"buffer_load_dwordx2 {vr(Q2[qt],2)}, v{vK2}, {W}, s{s_qo} offen offset:{qt*512} sc1")
    k("s_mov_b64 exec, -1")
    for l in kload(1) + vload(0): k(l)
    def qk(qt, b, c):
        cc = "0" if c is None else vr(c, 16)
        return [f"v_mfma_f32_32x32x16_bf16 {vr(Sx[qt],16)}, {vr(K1[b],4)}, {vr(Q1[qt],4)}, {cc}",
                f"v_mfma_f32_32x32x8_bf16 {vr(Sx[qt],16)}, {vr(K2[b],2)}, {vr(Q2[qt],2)}, {vr(Sx[qt],16)}"]
    def pv(qt, b):
        return [f"v_mfma_f32_32x32x16_bf16 {vr(O[qt],16)}, {vr(VB[b],4)}, {vr(P[qt],4)}, {vr(O[qt],16)}",
                f"v_mfma_f32_32x32x16_bf16 {vr(O[qt],16)}, {vr(VB[b]+4,4)}, {vr(P[qt]+4,4)}, {vr(O[qt],16)}"]
    def rowmax(qt, dst, tmp):
        s = Sx[qt]
        k(f"v_max3_f32 v{dst}, v{s}, v{s+1}, v{s+2}")
        for r in range(3, 15, 2): k(f"v_max3_f32 v{dst}, v{dst}, v{s+r}, v{s+r+1}")
        k(f"v_max_f32 v{dst}, v{dst}, v{s+15}")
        k(f"v_mov_b32 v{tmp}, v{dst}")
        k(f"v_permlane32_swap_b32 v{dst}, v{tmp}")
        k(f"v_max_f32 v{dst}, v{dst}, v{tmp}")
    k("s_waitcnt vmcnt(4)")
    for qt in range(2):
        for l in qk(qt, 0, None): k(l)
    for l in kload(2) + vload(1) + kload(3) + vload(2) + wdma(0): k(l)
    rowmax(0, vm[0], vt[0])
    k(f"v_sub_f32 v{vt[1]}, 0, v{vm[0]}")
    for r in range(16): k(f"v_mov_b32 v{C[0] + r}, v{vt[1]}")
    for l in qk(0, 0, C[0]): k(l)
    rowmax(1, vm[1], vt[0])
    k(f"v_sub_f32 v{vt[1]}, 0, v{vm[1]}")
    for r in range(16): k(f"v_mov_b32 v{C[1] + r}, v{vt[1]}")
    k(f"s_mov_b32 s{s_it}, 0")
    k("s_nop 1")
    def slot(qt, mf, extra):
        s = Sx[qt]; p = P[qt]
        for i in range(16):
            for l in extra.get(i, []): k(l)
            if i % 4 == 0: k(mf[i // 4])
            k(f"v_exp_f32 v{s+i}, v{s+i}")
            if i % 2 == 1 and i >= 3:
                k(f"v_cvt_pk_bf16_f32 v{p + (i-3)//2}, v{s+i-3}, v{s+i-2}")
        for l in extra.get(16, []): k(l)
        k(f"v_cvt_pk_bf16_f32 v{p+7}, v{s+14}, v{s+15}")
    k(f"s_cmp_eq_u32 s{s_kh}, 0")
    k(f"s_cselect_b32 s31, 99, {int(os.environ.get('PRI', '6'))}")
    k.label(k.L("loop"))
    for u in range(NBUF):
        b = u; bp = (u - 1) % NBUF; bn = (u + 1) % NBUF
        e1 = {0: [f"s_waitcnt vmcnt({14 if u < 3 else 12})"]}
        if "nopt" not in X:
            for j, pos in enumerate((3, 7, 11)):
                e1[pos] = [f"s_buffer_load_dword s93, s[{sWW}:{sWW+3}], s92 offset:{(3 * u + j) * 64}"]
        slot(0, qk(1, b, C[1]) + pv(1, bp), {6: kload(b), 14: vload(bp)})
        slot(1, qk(0, bn, C[0]) + pv(0, b), e1)
    k(f"s_add_u32 s{s_it}, s{s_it}, 1")
    k(f"s_cmp_lg_u32 s{s_it}, s31")
    k(f"s_cbranch_scc1 {k.L('noev')}")
    k("s_setprio 0")
    k.label(k.L("noev"))
    k(f"s_cmp_lg_u32 s{s_it}, s50"); k(f"s_cbranch_scc1 {k.L('noe2')}")
    k(f"buffer_load_dwordx2 {vr(v_pf, 2)}, v{v_pfa}, s[{sP2}:{sP2+3}], s49 offen")
    k(f"buffer_load_dwordx2 {vr(v_pf, 2)}, v{v_pfc}, s[{sP3}:{sP3+3}], s48 offen")
    k(f"s_cmp_lg_u32 s{s_w}, 5"); k(f"s_cbranch_scc1 {k.L('noe1')}")
    k(f"s_lshl_b32 s{s_t0}, s2, 7"); k(f"s_add_u32 s{s_t0}, s{s_t0}, {FL_OFF + 32768}")
    for j in range(3): k(f"s_buffer_load_dword s93, s[{sWW}:{sWW+3}], s{s_t0} offset:{j * 32768}")
    k(f"buffer_load_dwordx2 {vr(vX, 2)}, v{v_fx}, s[{sWW}:{sWW+3}], 0 offen sc1")
    k.label(k.L("noe1"))
    k(f"s_cmp_lg_u32 s{s_w}, 3"); k(f"s_cbranch_scc1 {k.L('noe2')}")
    code_prefetch(k, "L_p2_merge", sP3, s_t0, vt[0], v_pf, v_lane, per=8)
    k.label(k.L("noe2"))
    if "nopt" not in X: k("s_add_u32 s92, s92, 768")
    k(f"s_cmp_ge_u32 s{s_it}, 5"); k(f"s_cbranch_scc1 {k.L('d1')}")
    for l in wdma(0): k(l)
    k(f"s_branch {k.L('loop')}")
    k.label(k.L("d1"))
    k(f"s_cmp_ge_u32 s{s_it}, 8"); k(f"s_cbranch_scc1 {k.L('lend')}")
    for l in wdma(1): k(l)
    k(f"s_branch {k.L('loop')}")
    k.label(k.L("lend"))
    k.stamp(5)
    for l in pv(1, NBUF - 1): k(l)
    k("s_nop 7"); k("s_nop 7")
    k(f"v_add_f32 v{vt[0]}, |v{O[0]}|, |v{O[1]}|")
    for qt in range(2):
        for r in range(1, 12):
            k(f"v_add_f32 v{vt[0]}, v{vt[0]}, |v{O[qt]+r}|")
    k(f"v_add_f32 v{vt[1]}, v{O[0]+8}, v{O[1]+8}")
    k(f"s_mov_b32 s{s_t0}, {f32(2.0**100)}")
    k(f"v_cmp_nlt_f32 s[{s_c}:{s_c+1}], v{vt[0]}, s{s_t0}")
    k(f"s_mov_b32 s{s_t0}, {f32(2.0**60)}")
    k(f"v_cmp_nlt_f32 vcc, |v{vt[1]}|, s{s_t0}")
    k(f"s_andn2_b64 vcc, vcc, s[{s_lo}:{s_lo+1}]")
    k(f"s_or_b64 s[{s_c}:{s_c+1}], s[{s_c}:{s_c+1}], vcc")
    k("s_waitcnt vmcnt(0)")
    k(f"s_cmp_eq_u64 s[{s_c}:{s_c+1}], 0")
    k(f"s_cbranch_scc1 {k.L('merge')}")
    k(f"s_mov_b32 s{s_ko}, s42"); k(f"s_mov_b32 s{s_vo}, s43")
    for qt in range(2):
        for r in range(16): k(f"v_mov_b32 v{O[qt] + r}, 0")
        k(f"v_mov_b32 v{vm[qt]}, 0xff800000")
    k(f"s_mov_b32 s{s_it}, 0")
    k.label(k.L("fb"))
    for l in kload(0) + vload(0): k(l)
    k("s_waitcnt vmcnt(0)")
    for qt in range(2):
        for l in qk(qt, 0, None): k(l)
    for qt in range(2):
        rowmax(qt, vt[2], vt[0])
        k(f"v_max_f32 v{vt[2]}, v{vt[2]}, v{vm[qt]}")
        k(f"v_sub_f32 v{vt[3]}, v{vm[qt]}, v{vt[2]}")
        k(f"v_exp_f32 v{vt[3]}, v{vt[3]}")
        k(f"v_mov_b32 v{vm[qt]}, v{vt[2]}")
        for r in range(16): k(f"v_mul_f32 v{O[qt]+r}, v{O[qt]+r}, v{vt[3]}")
        for r in range(16): k(f"v_sub_f32 v{Sx[qt]+r}, v{Sx[qt]+r}, v{vt[2]}")
        for r in range(16): k(f"v_exp_f32 v{Sx[qt]+r}, v{Sx[qt]+r}")
        for r in range(8): k(f"v_cvt_pk_bf16_f32 v{P[qt]+r}, v{Sx[qt]+2*r}, v{Sx[qt]+2*r+1}")
        for l in pv(qt, 0): k(l)
    k("s_nop 7"); k("s_nop 7")
    k(f"s_add_u32 s{s_it}, s{s_it}, 1")
    k(f"s_cmp_lt_u32 s{s_it}, 32")
    k(f"s_cbranch_scc1 {k.L('fb')}")
    k.label(k.L("merge"))
    k(f"s_cmp_eq_u32 s{s_kh}, 0")
    k(f"s_cbranch_scc1 {k.L('noswap')}")
    for r in range(12): k(f"v_swap_b32 v{O[0]+r}, v{O[1]+r}")
    k(f"v_swap_b32 v{vm[0]}, v{vm[1]}")
    k.label(k.L("noswap"))
    k(f"s_mul_i32 s{s_t0}, s{s_w}, 3328"); k(f"s_add_u32 s{s_t0}, s{s_t0}, {MRG}")
    k(f"s_xor_b32 s{s_t1}, s{s_w}, 4"); k(f"s_mul_i32 s{s_t1}, s{s_t1}, 3328"); k(f"s_add_u32 s{s_t1}, s{s_t1}, {MRG}")
    k(f"v_lshl_add_u32 v{vt[0]}, v{v_lane}, 4, s{s_t0}")
    k(f"v_lshl_add_u32 v{vt[2]}, v{v_lane}, 2, s{s_t0}")
    for q in range(3): k(f"ds_write_b128 v{vt[0]}, {vr(O[1] + 4*q, 4)} offset:{q*1024}")
    k(f"ds_write_b32 v{vt[2]}, v{vm[1]} offset:3072")
    k(f"v_lshl_add_u32 v{vt[1]}, v{v_lane}, 4, s{s_t1}")
    k(f"v_lshl_add_u32 v{vt[3]}, v{v_lane}, 2, s{s_t1}")
    k(f"v_mov_b32 v{vt[7]}, {LOCW}")
    k(f"s_cmp_lg_u32 s{s_w}, 5"); k(f"s_cbranch_scc1 {k.L('nl')}")
    k(f"v_cmp_ne_u32 vcc, s{S_TAG}, v{vX}")
    k(f"v_cmp_ne_u32 s[90:91], s51, v{vX+1}")
    k("s_or_b64 vcc, vcc, s[90:91]")
    k(f"s_cselect_b32 s{s_t0}, 0, 1")
    k(f"v_mov_b32 v{vX}, s{s_t0}"); k(f"v_mov_b32 v{vX+1}, s{S_TAG}")
    k(f"ds_write_b64 v{vt[7]}, {vr(vX, 2)}")
    k.label(k.L("nl"))
    k("s_waitcnt lgkmcnt(0)")
    k("s_barrier")
    mo = Sx[0] + 12
    k(f"ds_read_b32 v{mo}, v{vt[3]} offset:3072")
    for q in range(3): k(f"ds_read_b128 {vr(Sx[0] + 4*q, 4)}, v{vt[1]} offset:{q*1024}")
    k(f"ds_read_b64 {vr(vX, 2)}, v{vt[7]}")
    k(f"s_lshl_b32 s{s_t1}, s{s_kh}, 9"); k(f"s_add_u32 s{s_t0}, s{s_qo}, s{s_t1}"); k(f"s_add_u32 s{s_t0}, s{s_t0}, {O_OFF}")
    k("s_waitcnt lgkmcnt(4)")
    k(f"v_max_f32 v{vt[2]}, v{vm[0]}, v{mo}")
    k(f"v_sub_f32 v{vt[3]}, v{vm[0]}, v{vt[2]}"); k(f"v_sub_f32 v{vt[4]}, v{mo}, v{vt[2]}")
    k(f"v_exp_f32 v{vt[3]}, v{vt[3]}"); k(f"v_exp_f32 v{vt[4]}, v{vt[4]}")
    k(f"v_mul_f32 v{vt[5]}, v{O[0]+8}, v{vt[3]}")
    k("s_waitcnt lgkmcnt(0)")
    k(f"v_fmac_f32 v{vt[5]}, v{Sx[0]+8}, v{vt[4]}")
    k(f"v_readfirstlane_b32 s{S_LOC}, v{vX}"); k(f"v_readfirstlane_b32 s{S_TAG}, v{vX+1}")
    if "headmap" in X:
        srd(k, sP1, 40, 41, 0)
    else:
        dual_srd(k, sP1, sWW, 40)
    k(f"v_mov_b32 v{vt[6]}, v{vt[5]}")
    k(f"v_permlane32_swap_b32 v{vt[5]}, v{vt[6]}")
    k(f"v_rcp_f32 v{vt[6]}, v{vt[6]}")
    k(f"v_mul_f32 v{vt[3]}, v{vt[3]}, v{vt[6]}"); k(f"v_mul_f32 v{vt[4]}, v{vt[4]}, v{vt[6]}")
    for r in range(12): k(f"v_mul_f32 v{O[0]+r}, v{O[0]+r}, v{vt[3]}")
    for r in range(12): k(f"v_fmac_f32 v{O[0]+r}, v{Sx[0]+r}, v{vt[4]}")
    for r in range(6): k(f"v_cvt_pk_bf16_f32 v{P[0]+r}, v{O[0]+2*r}, v{O[0]+2*r+1}")
    k(f"v_permlane32_swap_b32 v{P[0]}, v{P[0]+2}")
    k(f"v_permlane32_swap_b32 v{P[0]+1}, v{P[0]+3}")
    k(f"s_mov_b64 exec, s[{s_lo}:{s_lo+1}]")
    dstore(k, "buffer_store_dwordx2", vr(P[0]+4,2), vK2, sP1, sWW, f"s{s_t0}")
    k("s_mov_b64 exec, -1")
    dstore(k, "buffer_store_dwordx4", vr(P[0],4), vK1, sP1, sWW, f"s{s_t0}")
    k(f"s_lshl_b32 s94, s{s_qb}, 5"); k(f"s_add_u32 s94, s94, s{s_hd}")
    k.stamp(6)

def phase345(k):
    k.pref = "p3"
    GB = 16384; NSLOT = 8; SB = NSLOT * GB
    PH = {3: dict(NT=2, KK=D, A_OFF=O_OFF, base=0), 4: dict(NT=4, KK=D, A_OFF=H_OFF, base=5), 5: dict(NT=2, KK=F, A_OFF=G_OFF, base=7)}
    for p in PH.values():
        p["GS"] = 16 // p["NT"]; p["GR"] = p["GS"] * 16; p["NG"] = (p["KK"] + p["GR"] - 1) // p["GR"]; p["NKS"] = p["KK"] // 16
    sW, sB3, sB4, sB5, sX, sO, sBi = 4, 8, 12, 16, 8, 12, 16
    s_r, s_cb, s_w, s_t0, s_t1, s_offA, s_it, s_wid, s_r4, s_cb4, s_idx, s_x = 20, 21, 22, 23, 24, 26, 28, S_WID, 29, 30, 31, 32
    s_ob = {3: 25, 4: 26, 5: 27}; s_m0 = 33
    sPl, sSc = 96, 52
    ASC = os.environ.get("ASC", " sc1")
    v_lane, v_t, v_h = 1, 2, 3
    vt = [12, 13, 14, 15]
    k("s_load_dwordx2 s[38:39], s[0:1], 0")
    k("s_load_dwordx2 s[42:43], s[0:1], 32")
    k("s_load_dwordx4 s[44:47], s[0:1], 48")
    k("s_load_dwordx2 s[56:57], s[0:1], 64")
    k(f"s_lshr_b32 s{s_idx}, s2, 3"); k(f"s_and_b32 s{s_x}, s2, 7")
    k(f"s_mul_i32 s{s_cb}, s{s_idx}, 43"); k(f"s_lshr_b32 s{s_cb}, s{s_cb}, 7")
    k(f"s_mul_i32 s{s_t1}, s{s_cb}, 3"); k(f"s_sub_u32 s{s_r}, s{s_idx}, s{s_t1}")
    k(f"s_and_b32 s{s_r4}, s{s_idx}, 1"); k(f"s_lshr_b32 s{s_cb4}, s{s_idx}, 1")
    k(f"s_and_b32 s{s_w}, s{s_wid}, 3")
    k(f"s_cmp_lt_u32 s{s_wid}, 4")
    k(f"s_cbranch_scc1 {k.L('compute')}")
    vB2 = [4, 5, 6, 7]; vB4 = [8, 9, 10, 11]
    k(f"v_lshrrev_b32 v{vt[0]}, 3, v{v_lane}")
    k(f"v_and_b32 v{vt[1]}, 7, v{v_lane}")
    k(f"v_bfe_u32 v{vt[2]}, v{v_lane}, 4, 1")
    k(f"v_lshlrev_b32 v{vt[2]}, 2, v{vt[2]}")
    k(f"v_xor_b32 v{vt[1]}, v{vt[1]}, v{vt[2]}")
    k(f"v_mul_u32_u24 v{vt[0]}, 1280, v{vt[0]}")
    k(f"v_lshl_add_u32 v{vB2[0]}, v{vt[1]}, 4, v{vt[0]}")
    for ii in range(1, 4): k(f"v_add_u32 v{vB2[ii]}, {ii * (8 * 1280 - 1024)}, v{vB2[0]}")
    k(f"s_mul_i32 s{s_ob[5]}, s{s_w}, {32 * 1280}"); k(f"s_lshl_b32 s{s_t1}, s{s_cb}, 7"); k(f"s_add_u32 s{s_ob[5]}, s{s_ob[5]}, s{s_t1}")
    k(f"s_lshl_b32 s{s_m0}, s{s_w}, 12")
    k(f"v_lshrrev_b32 v{vt[0]}, 4, v{v_lane}")
    k(f"v_and_b32 v{vt[1]}, 15, v{v_lane}")
    k(f"v_lshlrev_b32 v{vt[2]}, 2, v{vt[0]}")
    k(f"v_xor_b32 v{vt[1]}, v{vt[1]}, v{vt[2]}")
    k(f"v_mul_u32_u24 v{vt[0]}, {F * 2}, v{vt[0]}")
    k(f"v_lshl_add_u32 v{vB4[0]}, v{vt[1]}, 4, v{vt[0]}")
    for ii in range(1, 4): k(f"v_add_u32 v{vB4[ii]}, {ii * (4 * F * 2 - 1024)}, v{vB4[0]}")
    k(f"s_mul_i32 s{s_ob[4]}, s{s_w}, {16 * F * 2}"); k(f"s_lshl_b32 s{s_t1}, s{s_cb4}, 8"); k(f"s_add_u32 s{s_ob[4]}, s{s_ob[4]}, s{s_t1}")
    k(f"s_add_u32 s{s_ob[4]}, s{s_ob[4]}, {192 * F * 2}")
    k(f"s_lshl_b32 s{s_t0}, s{s_cb4}, 10"); k(f"s_lshl_b32 s{s_t1}, s{s_w}, 8"); k(f"s_add_u32 s{s_t0}, s{s_t0}, s{s_t1}")
    k(f"s_add_u32 s{s_t0}, s{s_t0}, {C1_OFF}")
    k(f"v_lshlrev_b32 v{vt[3]}, 2, v{v_lane}")
    k(f"v_add_u32 v{vt[2]}, s{s_t1}, v{vt[3]}"); k(f"v_add_u32 v{vt[2]}, {SB}, v{vt[2]}")
    k("s_waitcnt lgkmcnt(0)")
    srd(k, sB4, 42, 43, D * F * 2); srd(k, sB5, 44, 45, D * F * 2); srd(k, sW, 40, 41, WS_END)
    q = []
    def issue(p, j):
        P = PH[p]; slot = (P["base"] + j) % NSLOT
        vB = vB4 if p == 4 else vB2; sB = {4: sB4, 5: sB5}[p]
        k(f"s_add_u32 m0, s{s_m0}, {slot * GB}")
        for ii in range(4):
            k(f"buffer_load_dwordx4 v{vB[ii]}, s[{sB}:{sB+3}], s{s_ob[p]} offen offset:{ii*1024} lds")
            q.append((p, j))
        k(f"s_add_u32 s{s_ob[p]}, s{s_ob[p]}, {P['GR'] * (F if p == 4 else D) * 2}")
    def need(item):
        if item in q:
            last = len(q) - 1 - q[::-1].index(item)
            k(f"s_waitcnt vmcnt({len(q) - 1 - last})")
            del q[:last + 1]
    def bar(item=None):
        if item is not None: need(item)
        k("s_barrier")
    vP = 16; s_q = 34
    k(f"s_lshl_b32 s{s_q}, s{s_idx}, 2"); k(f"s_add_u32 s{s_q}, s{s_q}, s{s_w}")
    k(f"s_lshl_b32 s{s_it}, s{s_x}, 12")
    k(f"v_lshl_add_u32 v{vP}, v{v_t}, 7, s{s_it}")
    k(f"v_lshl_add_u32 v{vP+1}, v{v_h}, 15, v{vP}")
    def apf(p):
        if ("apf%d" % p) not in X: return
        lab = k.L("apf%d_%d" % (p, k.uid)); k.uid += 1
        k(f"s_cmp_ge_u32 s{s_q}, {108 if p == 5 else 80}"); k(f"s_cbranch_scc1 {lab}")
        k(f"s_lshl_b32 s{s_it}, s{s_q}, {16 if p == 5 else 15}"); k(f"s_add_u32 s{s_it}, s{s_it}, {PH[p]['A_OFF']}")
        k(f"buffer_load_dword v{vP+2}, v{vP + (1 if p == 5 else 0)}, s[{sW}:{sW+3}], s{s_it} offen sc1")
        k.label(lab)
    k("s_waitcnt vmcnt(0)")
    bar()
    k(f"s_cmp_ge_u32 s{s_idx}, 30"); k(f"s_cbranch_scc1 L_exit")
    bar()
    apf(3)
    k(f"s_cmp_ge_u32 s{s_idx}, 28"); k(f"s_cbranch_scc1 {k.L('lskip4')}")
    E4 = int(os.environ.get("E4", "2")); E5 = int(os.environ.get("E5", "7")); N5 = int(os.environ.get("N5", "8"))
    nxt4 = 3
    for j in range(5):
        bar()
        if j >= E4 and nxt4 - 3 + 2 <= j:
            issue(4, nxt4); nxt4 += 1
    bar()
    k("s_waitcnt vmcnt(0)"); q[:] = []
    bar()
    apf(4)
    k(f"buffer_load_dword v{vt[1]}, v{vt[3]}, s[{sW}:{sW+3}], s{s_t0} offen sc1"); q.append(("c", 0))
    nxt5 = 0
    for j in range(10):
        bar((4, j))
        if j == 6:
            need(("c", 0))
            k(f"ds_write_b32 v{vt[2]}, v{vt[1]}")
        if nxt4 < 10 and (nxt4 < 8 or nxt4 - 8 + 2 <= j):
            issue(4, nxt4); nxt4 += 1
        elif nxt4 == 10 and nxt5 + 2 + 2 <= j and j >= E5:
            issue(5, nxt5); nxt5 += 1
    assert nxt4 == 10
    while nxt5 < min(N5, 3): issue(5, nxt5); nxt5 += 1
    k("s_waitcnt lgkmcnt(0)")
    bar()
    while nxt5 < N5: issue(5, nxt5); nxt5 += 1
    bar()
    k(f"s_branch {k.L('l5')}")
    k.label(k.L("lskip4"))
    for j in range(6): bar()
    for j in range(N5): issue(5, j)
    k.label(k.L("l5"))
    k("s_waitcnt vmcnt(0)"); q[:] = []
    bar()
    apf(5)
    for j in range(14):
        bar((5, j))
        if nxt5 < 14 and (nxt5 < 8 or nxt5 - 8 + 2 <= j):
            issue(5, nxt5); nxt5 += 1
    k("s_endpgm")

    k.label(k.L("compute"))
    vBr = [4, 5, 6, 7]; vA = 8; vS = 9; vO = 10; v_tag = 11
    RES = 16; BI = 32; ACC = 48
    DIST = 6; NFB = 8
    NFAS = {3: 32, 4: int(os.environ.get('NFA4', '24')), 5: int(os.environ.get('NFA5', '32'))}
    s_tok3 = 34; s_act = 25
    k(f"s_mul_i32 s{s_t0}, s{s_r}, 3"); k(f"s_add_u32 s{s_t0}, s{s_t0}, s{s_w}")
    k(f"s_cmp_eq_u32 s{s_w}, 3"); k(f"s_cselect_b32 s{s_act}, 8, s{s_t0}")
    k(f"s_lshl_b32 s{s_t1}, s{s_x}, 3"); k(f"s_add_u32 s{s_t0}, s{s_t0}, s{s_t1}"); k(f"s_lshl_b32 s{s_tok3}, s{s_t0}, 5")
    for c in range(4): k(f"s_mov_b32 s{48 + c}, {2*c*CH}")
    def nbar(n):
        for _ in range(n): k("s_barrier")
    def setup(p):
        if p == 4:
            k(f"s_lshl_b32 s{s_t0}, s{s_x}, 1"); k(f"s_add_u32 s{s_t0}, s{s_t0}, s{s_r4}"); k(f"s_lshl_b32 s{s_t0}, s{s_t0}, 2")
            k(f"s_add_u32 s{s_t0}, s{s_t0}, s{s_w}"); k(f"s_lshl_b32 s{s_t0}, s{s_t0}, 5")
            k(f"v_add_u32 v{vt[0]}, s{s_t0}, v{v_t}")
        else:
            k(f"v_add_u32 v{vt[0]}, s{s_tok3}, v{v_t}")
        k(f"v_lshlrev_b32 v{vA}, 15, v{v_h}")
        k(f"v_lshl_add_u32 v{vA}, v{vt[0]}, 4, v{vA}")
        k(f"s_mov_b32 s{s_offA}, {PH[p]['A_OFF']}")
    def setup2(p):
        late = []
        if p == 4:
            k(f"s_lshl_b32 s{s_t0}, s{s_cb4}, 19"); k(f"s_add_u32 s{s_t0}, s{s_t0}, {G_OFF}")
            k(f"v_add_u32 v{vO}, s{s_t0}, v{vA}")
            k(f"v_mul_u32_u24 v{vt[1]}, {5 * 16384}, v{v_h}")
            k(f"v_lshl_add_u32 v{vS}, v{vt[0]}, 3, v{vt[1]}")
            for i in range(5):
                late.append([f"s_mov_b32 s{s_t0}, {HS_OFF + i * 16384}",
                             f"buffer_load_dwordx2 {vr(BI + 2*i, 2)}, v{vS}, s[{sW}:{sW+3}], s{s_t0} offen sc1"])
            k(f"v_bfe_u32 v{vt[0]}, v{v_lane}, 2, 2")
            k(f"v_lshl_add_u32 v{vt[1]}, v{v_h}, 3, v{vt[0]}")
            k(f"v_lshlrev_b32 v{vt[1]}, 8, v{vt[1]}")
            k(f"v_lshl_add_u32 v{vt[0]}, v{vt[0]}, 6, v{vt[1]}")
        else:
            k(f"s_lshl_b32 s{s_t1}, s{s_cb}, 7")
            k(f"v_mul_u32_u24 v{vt[1]}, 1280, v{vt[0]}")
            k(f"v_lshl_add_u32 v{vt[1]}, v{v_h}, 4, v{vt[1]}")
            if p == 3:
                k(f"v_add_u32 v{vt[1]}, s{s_t1}, v{vt[1]}")
                k(f"s_lshl_b32 s{s_t0}, s{s_cb}, 18"); k(f"s_add_u32 s{s_t0}, s{s_t0}, {H_OFF}")
                k(f"v_add_u32 v{vO}, s{s_t0}, v{vA}")
                k(f"s_lshl_b32 s{s_t0}, s{s_cb}, 14"); k(f"s_add_u32 s{s_t0}, s{s_t0}, {HS_OFF}")
                k(f"v_lshl_add_u32 v{vS}, v{vt[0]}, 3, s{s_t0}")
                srd(k, sX, 38, 39, S * D * 2)
                for c in range(4):
                    late.append([f"buffer_load_dwordx4 {vr(RES + 4*c, 4)}, v{vt[1]}, s[{sX}:{sX+3}], 0 offen offset:{32*c}"])
            else:
                k(f"v_add_u32 v{vO}, s{s_t1}, v{vt[1]}")
                srd(k, sO, 56, 57, S * D * 2); srd(k, sBi, 46, 47, D * 2)
                k(f"v_lshlrev_b32 v{vt[2]}, 3, v{v_h}")
                for c in range(8):
                    k(f"buffer_load_dwordx2 {vr(BI + 2*c, 2)}, v{vt[2]}, s[{sBi}:{sBi+3}], s{s_t1} offen offset:{16*c}")
            k(f"v_bfe_u32 v{vt[0]}, v{v_lane}, 2, 2")
            k(f"v_lshl_add_u32 v{vt[0]}, v{v_h}, 3, v{vt[0]}")
            k(f"v_lshlrev_b32 v{vt[0]}, 7, v{vt[0]}")
            k(f"v_bfe_u32 v{vt[3]}, v{v_lane}, 3, 1")
            k(f"v_lshl_add_u32 v{vt[0]}, v{vt[3]}, 6, v{vt[0]}")
        k(f"v_bfe_u32 v{vt[3]}, v{v_lane}, 4, 1")
        k(f"v_lshl_add_u32 v{vt[0]}, v{vt[3]}, 5, v{vt[0]}")
        k(f"v_and_b32 v{vt[3]}, 3, v{v_lane}")
        k(f"v_lshl_add_u32 v{vBr[0]}, v{vt[3]}, 3, v{vt[0]}")
        for j in range(1, PH[p]["NT"]): k(f"v_xor_b32 v{vBr[j]}, {64 * j}, v{vBr[0]}")
        return late
    def aload(p, i, FA):
        NFA = NFAS[p]
        return [f"buffer_load_dwordx4 {vr(FA + (i % NFA) * 4, 4)}, v{vA}, s[{sW}:{sW+3}], s{s_offA} offen{ASC}",
                f"s_add_u32 s{s_offA}, s{s_offA}, {2 * CH}"]
    def gemm(p, late, pre_issued, mid={}):
        P = PH[p]; NT = P["NT"]; GS = P["GS"]; NKS = P["NKS"]
        FB = ACC + 16 * NT; FA = FB + NFB * 4
        NFA = NFAS[p]; LA = min(NFA - 2, int(os.environ.get("LA%d" % p, "14"))); LA0 = min(LA, int(os.environ.get("LA0", "10")))
        for i in range(LA0):
            for l in aload(p, i, FA): k(l)
        cur = [0]
        NM = NKS * NT; KSB = GB // GS
        def bread(m):
            ks, j = divmod(m, NT)
            G, qq = divmod(ks, GS)
            off = ((P["base"] + G) % NSLOT) * GB + qq * KSB
            r = []
            if qq == 0 and j == 0: r.append("s_barrier")
            base = (off // 65536) * 65536
            if base != cur[0]:
                for a in vBr[:NT]: r.append(f"v_add_u32 v{a}, {(base - cur[0]) & 0xffffffff:#x}, v{a}")
                cur[0] = base
            for e in range(2):
                r.append(f"ds_read_b64_tr_b16 {vr(FB + (m % NFB) * 4 + 2*e, 2)}, v{vBr[j]} offset:{off - base + e * (KSB // 4)}")
            return r
        if K.prof: k("s_waitcnt lgkmcnt(0)")
        for m in range(DIST):
            for l in bread(m): k(l)
        for i in range(LA0, LA):
            for l in aload(p, i, FA): k(l)
        vq = [("A", i) for i in range(LA)]
        for m in range(NM):
            ks, j = divmod(m, NT)
            nout = 2 * (min(NM, m + DIST) - m - 1)
            if j == 0:
                pos = vq.index(("A", ks))
                k(f"s_waitcnt vmcnt({len(vq) - 1 - pos}) lgkmcnt({nout})")
            else:
                k(f"s_waitcnt lgkmcnt({nout})")
            cc = vr(ACC + 16*j, 16) if (ks or p != 4) else "0"
            k(f"v_mfma_f32_32x32x16_bf16 {vr(ACC + 16*j, 16)}, {vr(FB + (m % NFB) * 4, 4)}, {vr(FA + (ks % NFA) * 4, 4)}, {cc}")
            if m + DIST < NM:
                for l in bread(m + DIST): k(l)
            if m in mid:
                for l in mid[m](len(vq) - 1 - max(i for i, e in enumerate(vq) if e[0] == "R") if any(e[0] == "R" for e in vq) else 0): k(l)
            if j == 0 and ks + LA < NKS:
                if "noal" not in X:
                    for l in aload(p, ks + LA, FA): k(l)
                vq.append(("A", ks + LA))
            if j == 0 and late and ks + LA + 4 >= NKS:
                for l in late.pop(0): k(l)
                vq.append(("R", 0))
        assert not late
        return FB, FA
    def sync(pdone, pwait, nflags, name, slp=0, extra=False):
        if pdone == 2 and "headmap" in X: publish(k, sW, pdone, 94, s_t0, vt[0], vt[1])
        else: publish(k, sSc, pdone, 94, s_t0, vt[0], vt[1], sPl)
        k(f"v_min_u32 v{vt[0]}, {nflags - 1}, v{v_lane}")
        k(f"s_lshl_b32 s{s_t0}, s{s_x}, 12"); k(f"s_add_u32 s{s_t0}, s{s_t0}, {FL_OFF + (pwait - 1) * 32768}")
        k(f"v_lshl_add_u32 v{vt[0]}, v{vt[0]}, 7, s{s_t0}")
        if extra:
            k(f"s_lshl_b32 s{s_t0}, s{s_cb4}, 11"); k(f"s_add_u32 s{s_t0}, s{s_t0}, {FL_OFF + 15 * 128}")
            k(f"v_writelane_b32 v{vt[0]}, s{s_t0}, 63")
        poll(k, sW, [vt[0]], [vt[1]], s_it, name, slp)

    setup(3)
    k("s_waitcnt lgkmcnt(0)")
    srd(k, sW, 40, 41, WS_END)
    dual_srd(k, sPl, sSc, 40)
    late = setup2(3)
    k(f"s_cmp_ge_u32 s{s_act}, 8"); k(f"s_cbranch_scc1 {k.L('nores')}")
    k("s_waitcnt vmcnt(0)")
    k("s_barrier")
    k(f"s_cmp_ge_u32 s{s_idx}, 30"); k(f"s_cbranch_scc1 L_exit")
    for ll in late:
        for l in ll: k(l)
    late = []
    def res_to_acc():
        for c in range(4):
            k(f"v_permlane32_swap_b32 v{RES + 4*c}, v{RES + 4*c + 2}")
            k(f"v_permlane32_swap_b32 v{RES + 4*c + 1}, v{RES + 4*c + 3}")
        for r in range(16):
            k(f"v_lshlrev_b32 v{ACC + 2*r}, 16, v{RES + r}")
            k(f"v_and_b32 v{ACC + 2*r + 1}, 0xffff0000, v{RES + r}")
    k("s_waitcnt vmcnt(0)")
    res_to_acc()
    k("s_barrier")
    k.stamp(7)
    FB, FA = gemm(3, late, False)
    if "st45" in X: k.stamp(2)
    k(f"v_mov_b32 v{vt[0]}, 0"); k(f"v_mov_b32 v{vt[1]}, 0"); k(f"s_mov_b32 s{s_t1}, 0x3f803f80")
    for c in range(4):
        for r in range(4*c, 4*c + 4):
            k(f"v_cvt_pk_bf16_f32 v{RES + r}, v{ACC + 2*r}, v{ACC + 2*r + 1}")
        k(f"v_permlane32_swap_b32 v{RES + 4*c}, v{RES + 4*c + 2}")
        k(f"v_permlane32_swap_b32 v{RES + 4*c + 1}, v{RES + 4*c + 3}")
        dstore(k, "buffer_store_dwordx4", vr(RES + 4*c, 4), vO, sPl, sSc, f"s{48 + c}")
    for r in range(16):
        k(f"v_dot2c_f32_bf16 v{vt[0]}, s{s_t1}, v{RES + r}")
        k(f"v_dot2c_f32_bf16 v{vt[1]}, v{RES + r}, v{RES + r}")
    k(f"v_mov_b32 v{vt[2]}, v{vt[0]}"); k(f"v_mov_b32 v{vt[3]}, v{vt[1]}")
    k(f"v_permlane32_swap_b32 v{vt[0]}, v{vt[2]}"); k(f"v_permlane32_swap_b32 v{vt[1]}, v{vt[3]}")
    k(f"v_add_f32 v{vt[0]}, v{vt[0]}, v{vt[2]}"); k(f"v_add_f32 v{vt[1]}, v{vt[1]}, v{vt[3]}")
    k("s_mov_b32 exec_hi, 0")
    dstore(k, "buffer_store_dwordx2", vr(vt[0], 2), vS, sPl, sSc, "0")
    k("s_mov_b32 exec_hi, -1")
    k(f"s_branch {k.L('pb3')}")
    k.label(k.L("nores"))
    k("s_waitcnt vmcnt(0)")
    k("s_barrier")
    k(f"s_cmp_lg_u32 s{s_w}, 3"); k(f"s_cbranch_scc1 {k.L('ns3')}")
    k(f"s_cmp_lt_u32 s{s_idx}, 30"); k(f"s_cbranch_scc1 {k.L('s3')}")
    publish(k, *((sW, 2, 94, s_t0, vt[0], vt[1]) if "headmap" in X else (sSc, 2, 94, s_t0, vt[0], vt[1], sPl)))
    k("s_endpgm")
    k.label(k.L("s3"))
    sync(2, 2, 32, "3")
    k.label(k.L("ns3"))
    k(f"s_cmp_ge_u32 s{s_idx}, 30"); k(f"s_cbranch_scc1 L_exit")
    nbar(6)
    k.label(k.L("pb3"))
    k(f"s_lshl_b32 s94, s{s_x}, 5"); k(f"s_add_u32 s94, s94, s{s_idx}")
    k(f"s_cmp_ge_u32 s{s_idx}, 28"); k(f"s_cbranch_scc1 {k.L('skip4')}")
    setup(4)
    late = setup2(4)
    k("s_waitcnt vmcnt(0)")
    k("s_barrier")
    if "st2" not in X: k.stamp(8)
    k(f"s_cmp_lg_u32 s{s_w}, 3"); k(f"s_cbranch_scc1 {k.L('ns4')}")
    sync(3, 3, 30, "4", extra=True)
    k.label(k.L("ns4"))
    k("s_barrier")
    if "st2" not in X: k.stamp(9)
    PS = BI; MR = BI + 12
    kk = K("tmp")
    for i in range(1, 5): kk(f"v_add_f32 v{PS}, v{PS}, v{PS + 2*i}"); kk(f"v_add_f32 v{PS+1}, v{PS+1}, v{PS + 2*i + 1}")
    kk(f"v_mov_b32 v{PS+2}, v{PS}"); kk(f"v_mov_b32 v{PS+3}, v{PS+1}")
    kk(f"v_permlane32_swap_b32 v{PS}, v{PS+2}"); kk(f"v_permlane32_swap_b32 v{PS+1}, v{PS+3}")
    kk(f"v_add_f32 v{PS}, v{PS}, v{PS+2}"); kk(f"v_add_f32 v{PS+1}, v{PS+1}, v{PS+3}")
    rowstat_math(kk, PS, PS + 1, MR, MR + 1, PS + 2, True)
    kk(f"v_lshlrev_b32 v{vt[0]}, 4, v{v_h}"); kk(f"v_add_u32 v{vt[0]}, {SB}, v{vt[0]}")
    st = kk.lines; mid = {}
    m0_ = 160 - (len(st) + 1) // 2 - 1
    for i in range(0, len(st), 2):
        mid[m0_ + i // 2] = (lambda n, i=i: ([f"s_waitcnt vmcnt({n})"] if i == 0 else []) + st[i:i + 2])
    FB, FA = gemm(4, late, False, mid)
    if "st45" in X: k.stamp(3)
    k("s_barrier")
    T = FB; CSB = [FB + 32, FB + 64]
    def csread(nt):
        for rq in range(8):
            k(f"ds_read_b128 {vr(CSB[nt % 2] + rq*4, 4)}, v{vt[0]} offset:{(rq // 4) * 512 + nt*128 + (rq % 4)*32}")
    csread(0)
    C0 = -2.0 * math.log2(math.e) * math.sqrt(2.0 / math.pi)
    k(f"s_mov_b32 s58, {f32(C0 * 0.044715)}"); k(f"s_mov_b32 s59, {f32(C0 * 0.044715)}")
    k(f"v_mov_b32 v{vt[2]}, {f32(C0)}"); k(f"v_mov_b32 v{vt[3]}, {f32(C0)}")
    for nt in range(4):
        if nt == 2:
            k(f"s_cmp_eq_u32 s{s_cb4}, 13"); k(f"s_cbranch_scc1 {k.L('done4')}")
            k(f"v_add_u32 v{vO}, {8 * CH}, v{vO}")
        k("s_waitcnt lgkmcnt(0)")
        if nt < 3: csread(nt + 1)
        a = ACC + 16 * nt; CS = CSB[nt % 2]; B1 = CS + 16
        for p in range(8):
            x = vr(a + 2*p, 2)
            k(f"v_pk_fma_f32 {x}, {vr(CS + 2*p, 2)}, {vr(MR,2)}, {x} op_sel_hi:[1,0,1]")
        for p in range(8):
            x = vr(a + 2*p, 2)
            k(f"v_pk_fma_f32 {x}, {x}, {vr(MR,2)}, {vr(B1 + 2*p, 2)} op_sel:[0,1,0] op_sel_hi:[1,1,1]")
        for p in range(8):
            x = vr(a + 2*p, 2); t = vr(T + 2*p, 2)
            k(f"v_pk_mul_f32 {t}, {x}, {x}")
        for p in range(8):
            t = vr(T + 2*p, 2)
            k(f"v_pk_fma_f32 {t}, {t}, s[58:59], {vr(vt[2],2)}")
        for p in range(8):
            x = vr(a + 2*p, 2); t = vr(T + 2*p, 2)
            k(f"v_pk_mul_f32 {t}, {t}, {x}")
        for r in range(16): k(f"v_exp_f32 v{T + r}, v{T + r}")
        for p in range(8):
            t = vr(T + 2*p, 2)
            k(f"v_pk_add_f32 {t}, {t}, 1.0 op_sel_hi:[1,0]")
        for r in range(16): k(f"v_rcp_f32 v{T + r}, v{T + r}")
        for p in range(8):
            x = vr(a + 2*p, 2); t = vr(T + 2*p, 2)
            k(f"v_pk_mul_f32 {x}, {x}, {t}")
        Pk = T + 16 + (nt % 2) * 8
        for p in range(8):
            k(f"v_cvt_pk_bf16_f32 v{Pk + p}, v{a + 2*p}, v{a + 2*p + 1}")
        for pq in range(2):
            b = Pk + 4*pq
            k(f"v_permlane32_swap_b32 v{b}, v{b+2}")
            k(f"v_permlane32_swap_b32 v{b+1}, v{b+3}")
        for pq in range(2):
            dstore(k, "buffer_store_dwordx4", vr(Pk + 4*pq,4), vO, sPl, sSc, f"s{48 + (nt % 2)*2 + pq}")
    k.label(k.L("done4"))
    k("s_waitcnt vmcnt(0) lgkmcnt(0)")
    k("s_barrier")
    k.stamp(10)
    k(f"s_cmp_lg_u32 s{s_w}, 3"); k(f"s_cbranch_scc1 {k.L('p5')}")
    sync(4, 4, 28, "5")
    k(f"s_branch {k.L('p5')}")
    k.label(k.L("skip4"))
    k("s_waitcnt vmcnt(0)")
    k("s_barrier")
    k(f"s_cmp_lg_u32 s{s_w}, 3"); k(f"s_cbranch_scc1 {k.L('p5')}")
    sync(3, 4, 28, "6", 8)
    k.label(k.L("p5"))
    k(f"s_cmp_ge_u32 s{s_act}, 8"); k(f"s_cbranch_scc1 {k.L('idle5')}")
    setup(5)
    late = setup2(5)
    res_to_acc()
    k("s_waitcnt vmcnt(0)")
    T = ACC + 64
    for r in range(16):
        k(f"v_lshlrev_b32 v{T + 2*r}, 16, v{BI + r}")
        k(f"v_and_b32 v{T + 2*r + 1}, 0xffff0000, v{BI + r}")
    for r in range(16):
        k(f"v_pk_add_f32 {vr(ACC + 2*r, 2)}, {vr(ACC + 2*r, 2)}, {vr(T + 2*r, 2)}")
    k("s_barrier")
    k.stamp(11)
    FB, FA = gemm(5, late, False)
    if "st45" in X: k.stamp(4)
    for c in range(4):
        for r in range(4*c, 4*c + 4):
            k(f"v_cvt_pk_bf16_f32 v{RES + r}, v{ACC + 2*r}, v{ACC + 2*r + 1}")
        k(f"v_permlane32_swap_b32 v{RES + 4*c}, v{RES + 4*c + 2}")
        k(f"v_permlane32_swap_b32 v{RES + 4*c + 1}, v{RES + 4*c + 3}")
        k(f"buffer_store_dwordx4 {vr(RES + 4*c, 4)}, v{vO}, s[{sO}:{sO+3}], 0 offen offset:{32*c}")
    if "g3" in X: gate(k, 70)
    k.dump(0, 14, s_wid)
    k("s_endpgm")
    k.label(k.L("idle5"))
    k("s_barrier")
    k.label("L_exit")
    k("s_endpgm")

NAME = "sequential_preLN__mha_block__mixer_channel_mlp__prompt"
HEADER = open(f"cdna_kernels/{NAME}.s.ref").read().split("; Override")[0]

def build(path):
    k = K(NAME)
    phase1(k); phase2(k); phase345(k)
    lds = MRG + 8 * 3328
    t = HEADER
    if "aslist" in X:
        t += f"; @launch kernel={k.name}_kernel grid=(256,1,1) block=(512,1,1) lds={lds}\n"
    else:
        t += f"; @launch grid=(256,1,1) block=(512,1,1) lds={lds}\n"
    t += '.amdgcn_target "amdgcn-amd-amdhsa--gfx950"\n.text\n'
    t += kernel_text(k, 256)
    t += "L_code_end:\n"
    t += '.section .rodata,"a"\n'
    t += kernel_desc(k, 256, 100)
    open(path, "w").write(t)

if __name__ == "__main__":
    if len(sys.argv) > 2 and sys.argv[2] == "prof": K.prof = True
    build(sys.argv[1] if len(sys.argv) > 1 else f"cdna_kernels/{NAME}.s")
```

```python
import sys, math, struct, os
X = set(os.environ.get("EXP", "").split(","))
from asmlib import K, vr, sr, kernel_text, kernel_desc

S = 2048; D = 640; F = 1728; H = 32; DH = 20
QK_OFF = 0x0
V_OFF = 0x500000
QKV_END = 0x780000
O_OFF = 0x0
H_OFF = 0x780000
G_OFF = 0x0
HS_OFF = 0xA00000
C1_OFF = 0x1370000
ST_OFF = 0x1378000
FL_OFF = 0x1400000
FX_OFF = 0x1420000
TAG_OFF = 0x1428000
GD_OFF = 0x1428400
WS_END = 0x1428800
S_LOC = 95
LOCW = 131072 + 1024
S_TAG = 88; S_WID = 89
MRG = 131072 + 2048
G_END = 0x1340000
CH = S * 16
EPS = 1e-5

def f32(x):
    return "0x%08x" % struct.unpack("<I", struct.pack("<f", x))[0]

def srd(k, d, lo, hi, size):
    k(f"s_mov_b32 s{d}, s{lo}")
    k(f"s_and_b32 s{d+1}, s{hi}, 0xffff")
    k(f"s_mov_b32 s{d+2}, {size:#x}")
    k(f"s_mov_b32 s{d+3}, 0x00020000")

def code_prefetch(k, first, sd, st, vaddr, vdst, v_lane, per=12):
    lab = k.L("pc%d" % k.uid); k.uid += 1
    k(f"s_getpc_b64 s[{sd}:{sd+1}]")
    k.label(lab)
    k(f"s_add_u32 s{sd}, s{sd}, {first}-{lab}")
    k(f"s_addc_u32 s{sd+1}, s{sd+1}, {'-1' if first == k.name + '_kernel' else '0'}")
    k(f"s_and_b32 s{sd+1}, s{sd+1}, 0xffff")
    k(f"s_mov_b32 s{sd+2}, L_code_end-{first}")
    k(f"s_mov_b32 s{sd+3}, 0x00020000")
    k(f"s_lshr_b32 s{st}, s2, 3"); k(f"s_mul_i32 s{st}, s{st}, {per * 128}")
    k(f"v_lshlrev_b32 v{vaddr}, 7, v{v_lane}")
    k(f"s_mov_b64 exec, {(1 << per) - 1:#x}")
    k(f"buffer_load_dword v{vdst}, v{vaddr}, s[{sd}:{sd+3}], s{st} offen")
    k("s_mov_b64 exec, -1")

def gate(k, us):
    lab = k.L("gate%d" % k.uid); k.uid += 1
    k("s_load_dwordx2 s[80:81], s[0:1], 80"); k("s_waitcnt lgkmcnt(0)")
    k(f"s_add_u32 s80, s80, {TAG_OFF + 4}"); k("s_addc_u32 s81, s81, 0")
    k("s_load_dword s82, s[80:81], 0"); k("s_waitcnt lgkmcnt(0)")
    k.label(lab)
    k("s_memrealtime s[84:85]"); k("s_waitcnt lgkmcnt(0)")
    k("s_sub_u32 s84, s84, s82")
    k(f"s_cmp_lt_u32 s84, {us * 100}"); k(f"s_cbranch_scc1 {lab}")

def rowstat_math(k, s_, q_, nm, rs, t, double):
    k(f"v_mul_f32 v{nm}, {f32(-1.0 / D)}, v{s_}")
    k(f"v_mul_f32 v{q_}, {f32(1.0 / D)}, v{q_}")
    k(f"v_fma_f32 v{q_}, -v{nm}, v{nm}, v{q_}")
    k(f"v_max_f32 v{q_}, 0, v{q_}")
    k(f"v_add_f32 v{t}, {f32(EPS)}, v{q_}")
    k(f"v_rsq_f32 v{rs}, v{t}")
    if double:
        k(f"v_mul_f32 v{t}, v{rs}, v{rs}")
        k(f"v_mul_f32 v{t}, v{t}, v{q_}")
        k(f"v_add_f32 v{t}, {f32(EPS)}, v{t}")
        k(f"v_rsq_f32 v{t}, v{t}")
        k(f"v_mul_f32 v{rs}, v{rs}, v{t}")


def dual_srd(k, sP, sS, lo):
    if "noloc" in X: k(f"s_mov_b32 s{S_LOC}, 0")
    srd(k, sP, lo, lo + 1, WS_END); srd(k, sS, lo, lo + 1, WS_END)
    k(f"s_cmp_eq_u32 s{S_LOC}, 0")
    k(f"s_cselect_b32 s{sP+2}, 0, s{sP+2}"); k(f"s_cselect_b32 s{sS+2}, s{sS+2}, 0")

def dstore(k, op, data, vaddr, sP, sS, soff):
    k(f"{op} {data}, v{vaddr}, s[{sP}:{sP+3}], {soff} offen")
    k(f"{op} {data}, v{vaddr}, s[{sS}:{sS+3}], {soff} offen sc1")

def publish(k, sW, ph, s_idx, s_t, v0_, v1_, sP=None):
    k(f"s_lshl_b32 s{s_t}, s{s_idx}, 7"); k(f"s_add_u32 s{s_t}, s{s_t}, {FL_OFF + (ph - 1) * 32768}")
    k(f"v_mov_b32 v{v0_}, 0"); k(f"v_mov_b32 v{v1_}, s{S_TAG}")
    k("s_mov_b64 exec, 1")
    if sP is not None: k(f"buffer_store_dword v{v1_}, v{v0_}, s[{sP}:{sP+3}], s{s_t} offen")
    k(f"buffer_store_dword v{v1_}, v{v0_}, s[{sW}:{sW+3}], s{s_t} offen sc1")
    k("s_mov_b64 exec, -1")

def poll(k, sW, vaddrs, vdsts, s_it, name, slp=0):
    if len(vaddrs) > 1 and "nopp" not in X:
        k(f"buffer_load_dword v{vdsts[1]}, v{vaddrs[1]}, s[{sW}:{sW+3}], 0 offen sc1")
    if "nopp" not in X:
        ND = int(os.environ.get("PPD", "0")); R = [248 + i for i in range(ND + 1)]
        gap = slp or int(os.environ.get("PPS", "1"))
        k(f"s_mov_b32 s{s_it}, 0")
        k("s_mov_b64 s[90:91], -1")
        for i in range(ND):
            k(f"buffer_load_dword v{R[i]}, v{vaddrs[0]}, s[{sW}:{sW+3}], 0 offen sc1")
            k(f"s_sleep {gap}")
        k.label(k.L("poll" + name))
        for i in range(ND + 1):
            k(f"buffer_load_dword v{R[(i + ND) % (ND + 1)]}, v{vaddrs[0]}, s[{sW}:{sW+3}], 0 offen sc1")
            k(f"s_waitcnt vmcnt({ND})")
            k(f"v_cmp_ne_u32 vcc, s{S_TAG}, v{R[i]}")
            k("s_and_b64 exec, exec, vcc")
            k(f"s_cbranch_execz {k.L('go' + name)}")
            k(f"s_sleep {gap}")
        k(f"s_add_u32 s{s_it}, s{s_it}, 1")
        k(f"s_cmp_lt_u32 s{s_it}, 0x4000")
        k(f"s_cbranch_scc1 {k.L('poll' + name)}")
        k.label(k.L("go" + name))
        k("s_mov_b64 exec, -1")
        if len(vaddrs) == 1: return
        vaddrs = vaddrs[1:]; vdsts = vdsts[1:]; name += "b"
        k(f"v_cmp_ne_u32 vcc, s{S_TAG}, v{vdsts[0]}")
        k(f"s_cbranch_vccz {k.L('go' + name)}")
    k(f"s_mov_b32 s{s_it}, 0")
    k.label(k.L("poll" + name))
    for va, vd in zip(vaddrs, vdsts):
        k(f"buffer_load_dword v{vd}, v{va}, s[{sW}:{sW+3}], 0 offen sc1")
    k(f"s_add_u32 s{s_it}, s{s_it}, 1")
    k("s_waitcnt vmcnt(0)")
    k(f"v_cmp_ne_u32 vcc, s{S_TAG}, v{vdsts[0]}")
    for vd in vdsts[1:]:
        k(f"v_cmp_ne_u32 s[90:91], s{S_TAG}, v{vd}")
        k("s_or_b64 vcc, vcc, s[90:91]")
    k(f"s_cbranch_vccz {k.L('go' + name)}")
    if slp: k(f"s_sleep {slp}")
    k(f"s_cmp_lt_u32 s{s_it}, 0x8000")
    k(f"s_cbranch_scc1 {k.L('poll' + name)}")
    k.label(k.L("go" + name))

def phase1(k):
    k.pref = "p1"
    kind = "qkv"; qkv = True
    NB = 1920 if qkv else F
    BROW = NB * 2
    NS = 4; SLOT = 32768; NST = 10
    SB = NS * SLOT
    SL = SB + 2048
    sA, sB, sW, sBi = 4, 8, 12, 16
    s_mb, s_nb, s_w = 20, 21, 22
    s_wm, s_wn = 23, 24
    s_offA, s_offB, s_m0, s_it, s_delta, s_t0, s_t1, s_slot = 25, 26, 27, 28, 29, 30, 31, 32
    s_ones = 33
    s_wid = S_WID
    v_lane, v_t, v_h = 1, 2, 3
    vAd = [4, 5, 6, 7]; vBd = [8, 9, 10, 11]
    vBr = [12, 13]
    v_b1 = 17
    vt = [18, 19, 20, 21, 22, 23]
    vAr = [24, 25, 26, 27]
    FA = [[32 + 16 * i, 36 + 16 * i] for i in range(4)]
    FB = [[40 + 16 * i, 44 + 16 * i] for i in range(4)]
    ACC = 96
    def acc(mt, nt): return ACC + (mt * 2 + nt) * 16
    EP = 160
    kidx = 0 if qkv else 3

    if "early" in X: k("s_memrealtime s[86:87]")
    k.stamp(0); k.stamp(1, True)
    k(f"s_cmp_ge_u32 s2, 256"); k(f"s_cbranch_scc1 L_exit")
    if qkv:
        k("s_load_dwordx4 s[36:39], s[0:1], 0")
        k("s_load_dwordx4 s[40:43], s[0:1], 72")
        WSL = 42
    else:
        k("s_load_dwordx2 s[36:37], s[0:1], 32")
        k("s_load_dwordx2 s[40:41], s[0:1], 80")
        WSL = 40
    k(f"s_and_b32 s{s_t0}, s2, 7"); k(f"s_lshr_b32 s{s_t1}, s2, 3")
    if qkv:
        k(f"s_lshr_b32 s{s_mb}, s{s_t0}, 1"); k(f"s_lshl_b32 s{s_mb}, s{s_mb}, 2")
        k(f"s_and_b32 s{s_nb}, s{s_t1}, 3"); k(f"s_add_u32 s{s_mb}, s{s_mb}, s{s_nb}")
        k(f"s_and_b32 s{s_nb}, s{s_t0}, 1"); k(f"s_lshl_b32 s{s_nb}, s{s_nb}, 3")
        k(f"s_lshr_b32 s{s_t1}, s{s_t1}, 2"); k(f"s_add_u32 s{s_nb}, s{s_nb}, s{s_t1}")
    else:
        k(f"s_lshl_b32 s{s_mb}, s{s_t0}, 1"); k(f"s_and_b32 s{s_nb}, s{s_t1}, 1"); k(f"s_add_u32 s{s_mb}, s{s_mb}, s{s_nb}")
        k(f"s_lshr_b32 s{s_nb}, s{s_t1}, 1")
    k(f"v_lshrrev_b32 v{vt[0]}, 6, v0")
    k(f"v_and_b32 v{v_lane}, 63, v0")
    k(f"v_readfirstlane_b32 s{s_wid}, v{vt[0]}")
    k(f"v_and_b32 v{v_t}, 31, v0")
    k(f"v_bfe_u32 v{v_h}, v0, 5, 1")
    k(f"s_and_b32 s{s_w}, s{s_wid}, 3")
    k(f"s_cmp_lt_u32 s{s_wid}, 4")
    k(f"s_cbranch_scc1 {k.L('compute')}")
    if qkv:
        k(f"s_cmp_ge_u32 s{s_nb}, 15"); k(f"s_cbranch_scc1 {k.L('auxl')}")
        k(f"v_lshrrev_b32 v{vt[0]}, 3, v{v_lane}")
        k(f"v_and_b32 v{vt[1]}, 7, v{v_lane}")
        k(f"v_lshrrev_b32 v{vt[2]}, 1, v{vt[0]}")
        k(f"v_xor_b32 v{vt[2]}, v{vt[2]}, v{vt[1]}")
        k(f"v_xor_b32 v{vt[3]}, 4, v{vt[2]}")
        k(f"s_lshl_b32 s{s_t0}, s{s_mb}, 7"); k(f"s_lshl_b32 s{s_t1}, s{s_w}, 5"); k(f"s_add_u32 s{s_t0}, s{s_t0}, s{s_t1}")
        k(f"v_add_u32 v{vt[0]}, s{s_t0}, v{vt[0]}")
        k(f"v_mul_u32_u24 v{vt[0]}, 1280, v{vt[0]}")
        for ii in range(4):
            k(f"v_lshl_add_u32 v{vAd[ii]}, v{vt[2 + (ii & 1)]}, 4, v{vt[0]}")
            if ii: k(f"v_add_u32 v{vAd[ii]}, {ii * (8 * 1280 - 1024)}, v{vAd[ii]}")
        stepA = 128
    else:
        k(f"s_lshl_b32 s{s_t0}, s{s_mb}, 11")
        k(f"s_mul_i32 s{s_t1}, s{s_w}, {2 * CH}")
        k(f"s_add_u32 s{s_t0}, s{s_t0}, s{s_t1}")
        k(f"s_add_u32 s{s_t0}, s{s_t0}, {H_OFF}")
        k(f"v_lshl_add_u32 v{vAd[0]}, v{v_lane}, 4, s{s_t0}")
        k(f"v_mov_b32 v{vAd[1]}, v{vAd[0]}")
        k(f"v_add_u32 v{vAd[2]}, {CH - 2048}, v{vAd[0]}")
        k(f"v_add_u32 v{vAd[3]}, {CH - 2048}, v{vAd[0]}")
        stepA = 8 * CH
    k(f"v_lshrrev_b32 v{vt[0]}, 4, v{v_lane}")
    k(f"v_and_b32 v{vt[1]}, 15, v{v_lane}")
    k(f"v_lshlrev_b32 v{vt[2]}, 2, v{vt[0]}")
    k(f"v_xor_b32 v{vt[1]}, v{vt[1]}, v{vt[2]}")
    k(f"s_lshl_b32 s{s_t0}, s{s_w}, 4")
    k(f"v_add_u32 v{vt[0]}, s{s_t0}, v{vt[0]}")
    k(f"v_mul_u32_u24 v{vt[0]}, {BROW}, v{vt[0]}")
    k(f"v_lshl_add_u32 v{vt[0]}, v{vt[1]}, 4, v{vt[0]}")
    k(f"s_lshl_b32 s{s_t0}, s{s_nb}, 8")
    k(f"v_add_u32 v{vBd[0]}, s{s_t0}, v{vt[0]}")
    for ii in range(1, 4):
        k(f"v_add_u32 v{vBd[ii]}, {ii * (4 * BROW - 1024)}, v{vBd[0]}")
    stepB = 64 * BROW
    k(f"s_mov_b32 s{s_offA}, 0"); k(f"s_mov_b32 s{s_offB}, 0")
    k(f"s_lshl_b32 s{s_m0}, s{s_w}, 12")
    k(f"s_mov_b32 s{s_it}, 0")
    k("s_waitcnt lgkmcnt(0)")
    if qkv:
        srd(k, sA, 36, 37, S * D * 2); srd(k, sB, 38, 39, D * NB * 2)
    else:
        srd(k, sB, 36, 37, D * NB * 2); srd(k, sW, WSL, WSL + 1, WS_END)
        sA = sW
    def dma_stage():
        r = []
        r.append(f"s_mov_b32 m0, s{s_m0}")
        for ii in range(4):
            r.append(f"buffer_load_dwordx4 v{vAd[ii]}, s[{sA}:{sA+3}], s{s_offA} offen offset:{ii*1024} lds")
        r.append(f"s_add_u32 m0, s{s_m0}, 16384")
        for ii in range(4):
            r.append(f"buffer_load_dwordx4 v{vBd[ii]}, s[{sB}:{sB+3}], s{s_offB} offen offset:{ii*1024} lds")
        r.append(f"s_add_u32 s{s_offA}, s{s_offA}, {stepA}")
        r.append(f"s_add_u32 s{s_offB}, s{s_offB}, {stepB}")
        r.append(f"s_add_u32 s{s_m0}, s{s_m0}, {SLOT}")
        r.append(f"s_and_b32 s{s_m0}, s{s_m0}, {NS * SLOT - 1}")
        return r
    def lstep(n=8, dma=True):
        if dma:
            for l in dma_stage(): k(l)
        k(f"s_waitcnt vmcnt({n})")
        k("s_barrier")
    def lloop(tag, n):
        k(f"s_mov_b32 s{s_it}, 0")
        k.label(k.L("lloop" + tag))
        lstep()
        k(f"s_add_u32 s{s_it}, s{s_it}, 1")
        k(f"s_cmp_lt_u32 s{s_it}, {n}")
        k(f"s_cbranch_scc1 {k.L('lloop' + tag)}")
    XS = 32
    v_tag = 16
    RG_OFF = ST_OFF; CG_OFF = ST_OFF + 32768
    def slice_addr_rows():
        k(f"v_lshrrev_b32 v{vt[4]}, 4, v{v_lane}")
        k(f"v_and_b32 v{vt[5]}, 15, v{v_lane}")
        k(f"v_mul_u32_u24 v{vt[4]}, 1280, v{vt[4]}")
        k(f"v_lshl_add_u32 v{vt[4]}, v{vt[5]}, 4, v{vt[4]}")
        k(f"s_lshl_b32 s{s_t0}, s{s_mb}, 5"); k(f"s_lshl_b32 s{s_t1}, s{s_nb}, 1"); k(f"s_add_u32 s{s_t0}, s{s_t0}, s{s_t1}")
        k(f"s_add_u32 s{s_delta}, s{s_t0}, s{s_w}"); k(f"s_mul_i32 s{s_t0}, s{s_delta}, {4 * 1280}")
    def slice_load_rows():
        for i in range(5):
            k(f"buffer_load_dwordx4 {vr(XS + 4*i, 4)}, v{vt[4]}, s[{sA}:{sA+3}], s{s_t0} offen offset:{256 * i}")
    def tag_load():
        k(f"v_mov_b32 v15, 0")
        k(f"buffer_load_dword v{v_tag}, v15, s[{sBi}:{sBi+3}], 0 offen sc1")
    def tag_wait(tag):
        k(f"s_mov_b32 s{s_it}, 0")
        k.label(k.L("tw" + tag))
        k(f"v_cmp_eq_u32 vcc, 0, v{v_tag}")
        k(f"s_cbranch_vccz {k.L('tr' + tag)}")
        k("s_sleep 2")
        k(f"buffer_load_dword v{v_tag}, v15, s[{sBi}:{sBi+3}], 0 offen sc1")
        k(f"s_add_u32 s{s_it}, s{s_it}, 1")
        k("s_waitcnt vmcnt(0)")
        k(f"s_cmp_lt_u32 s{s_it}, 0x4000")
        k(f"s_cbranch_scc1 {k.L('tw' + tag)}")
        k.label(k.L("tr" + tag))
    def slice_rows(part):
        if part == 0:
            k("v_mov_b32 v56, 0"); k("v_mov_b32 v57, 0"); k("v_mov_b32 v58, 0"); k("v_mov_b32 v59, 0")
        for r in (range(13) if part == 0 else range(13, 20)):
            k(f"v_lshlrev_b32 v52, 16, v{XS + r}")
            k(f"v_and_b32 v53, 0xffff0000, v{XS + r}")
            k("v_add_f32 v56, v56, v52"); k("v_fmac_f32 v57, v52, v52")
            k("v_add_f32 v58, v58, v53"); k("v_fmac_f32 v59, v53, v53")
        if part == 0: return
        k("v_add_f32 v56, v56, v58"); k("v_add_f32 v57, v57, v59")
        for sh in (8, 4, 2, 1):
            k(f"v_add_f32_dpp v56, v56, v56 row_ror:{sh} row_mask:0xf bank_mask:0xf")
            k(f"v_add_f32_dpp v57, v57, v57 row_ror:{sh} row_mask:0xf bank_mask:0xf")
        rowstat_math(k, 56, 57, 60, 62, 52, False)
        k(f"v_mov_b32 v61, v{v_tag}"); k(f"v_mov_b32 v63, v{v_tag}")
        k(f"s_lshl_b32 s{s_t0}, s{s_delta}, 6"); k(f"s_add_u32 s{s_t0}, s{s_t0}, {RG_OFF}")
        k("s_mov_b32 exec_lo, 0x00010001"); k("s_mov_b32 exec_hi, 0x00010001")
        k(f"buffer_store_dwordx4 v[60:63], v{v_lane}, s[{sW}:{sW+3}], s{s_t0} offen sc1")
        k("s_mov_b64 exec, -1")
    def slice_cols(part):
        if part == 0:
            for r in range(4):
                k(f"v_lshlrev_b32 v{56 + 2*r}, 16, v{XS + r}"); k(f"v_and_b32 v{57 + 2*r}, 0xffff0000, v{XS + r}")
            for i in range(1, 5):
                for r in range(4):
                    k(f"v_lshlrev_b32 v52, 16, v{XS + 4*i + r}"); k(f"v_and_b32 v53, 0xffff0000, v{XS + 4*i + r}")
                    k(f"v_add_f32 v{56 + 2*r}, v{56 + 2*r}, v52"); k(f"v_add_f32 v{57 + 2*r}, v{57 + 2*r}, v53")
            return
        for r in range(4): k(f"v_permlane32_swap_b32 v{56 + r}, v{60 + r}")
        for r in range(4): k(f"v_add_f32 v{56 + r}, v{56 + r}, v{60 + r}")
        for r in range(2): k(f"v_permlane16_swap_b32 v{56 + r}, v{58 + r}")
        k("v_add_f32 v56, v56, v58"); k("v_add_f32 v58, v57, v59")
        k(f"v_mov_b32 v57, v{v_tag}"); k(f"v_mov_b32 v59, v{v_tag}")
        k(f"v_and_b32 v{vt[4]}, 48, v{v_lane}")
        k(f"v_lshl_add_u32 v{vt[4]}, v{vt[5]}, 6, v{vt[4]}")
        k(f"s_mul_i32 s{s_t0}, s{s_delta}, 15360"); k(f"s_lshl_b32 s{s_t1}, s{s_nb}, 10"); k(f"s_add_u32 s{s_t0}, s{s_t0}, s{s_t1}")
        k(f"s_add_u32 s{s_t0}, s{s_t0}, {CG_OFF}")
        k(f"buffer_store_dwordx4 v[56:59], v{vt[4]}, s[{sW}:{sW+3}], s{s_t0} offen sc1")
    def slice_part(part):
        k(f"s_cmp_ge_u32 s{s_w}, 2"); k(f"s_cbranch_scc1 {k.L('slc%d' % part)}")
        slice_rows(part)
        k(f"s_branch {k.L('sld%d' % part)}")
        k.label(k.L("slc%d" % part))
        slice_cols(part)
        k.label(k.L("sld%d" % part))
    SLO = int(os.environ.get("SLO", "2"))
    for _ in range(SLO):
        for l in dma_stage(): k(l)
    if qkv:
        k(f"s_cmp_ge_u32 s{s_w}, 2"); k(f"s_cbranch_scc1 {k.L('slc')}")
        slice_addr_rows(); slice_load_rows()
        k(f"s_branch {k.L('sll')}")
        k.label(k.L("slc"))
        k(f"v_lshrrev_b32 v{vt[4]}, 4, v{v_lane}")
        k(f"v_and_b32 v{vt[5]}, 15, v{v_lane}")
        k(f"v_mul_u32_u24 v{vt[4]}, {BROW}, v{vt[4]}")
        k(f"v_lshl_add_u32 v{vt[4]}, v{vt[5]}, 4, v{vt[4]}")
        k(f"s_lshl_b32 s{s_delta}, s{s_mb}, 1"); k(f"s_add_u32 s{s_delta}, s{s_delta}, s{s_w}"); k(f"s_sub_u32 s{s_delta}, s{s_delta}, 2")
        k(f"s_mul_i32 s{s_t0}, s{s_delta}, {20 * BROW}"); k(f"s_lshl_b32 s{s_t1}, s{s_nb}, 8"); k(f"s_add_u32 s{s_t0}, s{s_t0}, s{s_t1}")
        for i in range(5):
            k(f"buffer_load_dwordx4 {vr(XS + 4*i, 4)}, v{vt[4]}, s[{sB}:{sB+3}], s{s_t0} offen")
            k(f"s_add_u32 s{s_t0}, s{s_t0}, {4 * BROW}")
        k.label(k.L("sll"))
        for _ in range(2 - SLO):
            for l in dma_stage(): k(l)
        srd(k, sW, WSL, WSL + 1, WS_END); srd(k, sBi, 40, 41, 256)
        lstep(13 if SLO else 8, False)
        tag_load()
        lstep(14 if SLO == 2 else 9)
        lstep(8)
        for l in dma_stage(): k(l)
        slice_part(0)
        lstep(8, False)
        for l in dma_stage(): k(l)
        tag_wait("a")
        slice_part(1)
        lstep(9, False)
        lstep(9)
        lstep(); lstep()
        for l in dma_stage(): k(l)
        k(f"s_lshl_b32 s{s_t0}, s{s_mb}, 11"); k(f"s_lshl_b32 s{s_t1}, s{s_w}, 9"); k(f"s_add_u32 s{s_t0}, s{s_t0}, s{s_t1}")
        k(f"s_add_u32 s{s_offA}, s{s_t0}, {RG_OFF}")
        k(f"v_lshlrev_b32 v{vt[0]}, 4, v{v_t}")
        k(f"v_lshrrev_b32 v{vt[1]}, 4, v{v_lane}")
        k(f"v_mul_u32_u24 v{vt[1]}, {8 * 15360}, v{vt[1]}")
        k(f"v_lshl_add_u32 v{vt[1]}, v{vt[5]}, 4, v{vt[1]}")
        k(f"s_lshl_b32 s{s_t0}, s{s_nb}, 10"); k(f"s_lshl_b32 s{s_t1}, s{s_w}, 8"); k(f"s_add_u32 s{s_t0}, s{s_t0}, s{s_t1}")
        k(f"s_add_u32 s{s_offB}, s{s_t0}, {CG_OFF}")
        def gather():
            k(f"buffer_load_dwordx4 v[64:67], v{vt[0]}, s[{sW}:{sW+3}], s{s_offA} offen sc1")
            k(f"s_mov_b32 s{s_t0}, s{s_offB}")
            for i in range(8):
                k(f"buffer_load_dwordx4 {vr(32 + 4*i, 4)}, v{vt[1]}, s[{sW}:{sW+3}], s{s_t0} offen sc1")
                k(f"s_add_u32 s{s_t0}, s{s_t0}, 15360")
        gather()
        lstep(17, False)
        lstep(9, False)
        k(f"s_mov_b32 s{s_it}, 0")
        k.label(k.L("poll"))
        k("s_waitcnt vmcnt(0)")
        k(f"v_and_b32 v68, v65, v67"); k(f"v_or_b32 v69, v65, v67")
        for i in range(16):
            k(f"v_and_b32 v68, v68, v{33 + 2*i}"); k(f"v_or_b32 v69, v69, v{33 + 2*i}")
        k(f"v_xor_b32 v68, v68, v{v_tag}"); k(f"v_xor_b32 v69, v69, v{v_tag}"); k("v_or_b32 v68, v68, v69")
        k(f"v_cmp_ne_u32 vcc, 0, v68")
        k(f"s_cbranch_vccz {k.L('ready')}")
        k("s_sleep 2")
        gather()
        k(f"s_add_u32 s{s_it}, s{s_it}, 1")
        k(f"s_cmp_lt_u32 s{s_it}, 0x2000")
        k(f"s_cbranch_scc1 {k.L('poll')}")
        k("s_waitcnt vmcnt(0)")
        k.label(k.L("ready"))
        k("v_add_f32 v33, v34, v38")
        for i in range(1, 8):
            k(f"v_add_f32 v32, v32, v{32 + 4*i}")
            if i > 1: k(f"v_add_f32 v33, v33, v{34 + 4*i}")
        k(f"s_cmp_lt_u32 s{s_nb}, 5")
        k(f"s_cselect_b32 s{s_t0}, {f32(math.log2(math.e) / math.sqrt(DH))}, 1.0")
        k(f"v_mul_f32 v65, s{s_t0}, v66")
        k(f"s_lshl_b32 s{s_t1}, s{s_w}, 7"); k(f"s_add_u32 s{s_t1}, s{s_t1}, {SB}")
        k(f"v_lshl_add_u32 v{vt[0]}, v{v_t}, 2, s{s_t1}")
        k(f"ds_write2_b32 v{vt[0]}, v64, v65 offset0:0 offset1:128")
        for sw in ("v_permlane32_swap_b32", "v_permlane16_swap_b32"):
            k("v_mov_b32 v34, v32"); k("v_mov_b32 v35, v33")
            k(f"{sw} v32, v34"); k(f"{sw} v33, v35")
            k("v_add_f32 v32, v32, v34"); k("v_add_f32 v33, v33, v35")
        k(f"v_lshl_add_u32 v{vt[1]}, v{vt[5]}, 3, s{s_t1}")
        k(f"ds_write_b64 v{vt[1]}, v[32:33] offset:1024")
        k("s_waitcnt lgkmcnt(0)")
        k("s_barrier")
    else:
        lloop("", 8)
        for l in dma_stage(): k(l)
        PS = 32
        k(f"s_lshl_b32 s{s_t0}, s{s_mb}, 7"); k(f"s_lshl_b32 s{s_t1}, s{s_w}, 5"); k(f"s_add_u32 s{s_t0}, s{s_t0}, s{s_t1}")
        k(f"v_add_lshl_u32 v{vt[2]}, v{v_t}, s{s_t0}, 3")
        k(f"v_mul_u32_u24 v{vt[1]}, {5 * 16384}, v{v_h}")
        k(f"v_add_u32 v{vt[2]}, v{vt[2]}, v{vt[1]}")
        for i in range(5):
            k(f"s_mov_b32 s{s_t0}, {HS_OFF + i * 16384}")
            k(f"buffer_load_dwordx2 {vr(PS + 2*i, 2)}, v{vt[2]}, s[{sW}:{sW+3}], s{s_t0} offen")
        k(f"s_lshl_b32 s{s_t0}, s{s_nb}, 10"); k(f"s_lshl_b32 s{s_t1}, s{s_w}, 8"); k(f"s_add_u32 s{s_t0}, s{s_t0}, s{s_t1}")
        k(f"s_add_u32 s{s_t0}, s{s_t0}, {C1_OFF}")
        k(f"s_add_u32 m0, s{s_t1}, {SB + 1024}")
        k(f"v_lshlrev_b32 v{vt[3]}, 2, v{v_lane}")
        k(f"buffer_load_dword v{vt[3]}, s[{sW}:{sW+3}], s{s_t0} offen lds")
        lstep(14, False)
        lstep(6, False)
        k("s_waitcnt vmcnt(0)")
        for i in range(1, 5):
            k(f"v_add_f32 v{PS}, v{PS}, v{PS + 2*i}"); k(f"v_add_f32 v{PS+1}, v{PS+1}, v{PS + 2*i + 1}")
        k(f"v_mov_b32 v{PS+2}, v{PS}"); k(f"v_mov_b32 v{PS+3}, v{PS+1}")
        k(f"v_permlane32_swap_b32 v{PS}, v{PS+2}"); k(f"v_permlane32_swap_b32 v{PS+1}, v{PS+3}")
        k(f"v_add_f32 v{PS}, v{PS}, v{PS+2}"); k(f"v_add_f32 v{PS+1}, v{PS+1}, v{PS+3}")
        rowstat_math(k, PS, PS + 1, 44, 45, PS + 2, True)
        k(f"s_lshl_b32 s{s_t1}, s{s_w}, 7"); k(f"s_add_u32 s{s_t1}, s{s_t1}, {SB}")
        k(f"v_lshl_add_u32 v{vt[3]}, v{v_t}, 2, s{s_t1}")
        k(f"ds_write_b32 v{vt[3]}, v44")
        k(f"ds_write_b32 v{vt[3]}, v45 offset:512")
        k("s_waitcnt lgkmcnt(0)")
        k("s_barrier")
    if not qkv: k.stamp(3); k.stamp(4); k.stamp(5); k.stamp(6)
    k(f"s_branch {k.L('end')}")
    k.label(k.L("compute"))
    if qkv:
        k(f"s_or_b32 s{s_t0}, s2, s{s_w}")
        k(f"s_cbranch_scc1 {k.L('notag')}")
        k("s_memrealtime s[44:45]")
        k("s_waitcnt lgkmcnt(0)")
        srd(k, sBi, 40, 41, 256)
        if "gate" in X: k(f"v_mov_b32 v{vt[2]}, s{86 if 'early' in X else 44}")
        k("s_mul_i32 s44, s44, 0x9e3779b1"); k("s_or_b32 s44, s44, 1")
        k(f"v_mov_b32 v{vt[0]}, 0"); k(f"v_mov_b32 v{vt[1]}, s44")
        k("s_mov_b64 exec, 1")
        k(f"buffer_store_dword v{vt[1]}, v{vt[0]}, s[{sBi}:{sBi+3}], 0 offen sc1")
        srd(k, sW, WSL, WSL + 1, WS_END)
        k(f"s_mov_b32 s{s_t0}, {TAG_OFF}")
        k(f"buffer_store_dword v{vt[1]}, v{vt[0]}, s[{sW}:{sW+3}], s{s_t0} offen sc1")
        if "gate" in X: k(f"buffer_store_dword v{vt[2]}, v{vt[0]}, s[{sW}:{sW+3}], s{s_t0} offen offset:4 sc1")
        k("s_mov_b64 exec, -1")
        k.label(k.L("notag"))
        if "nocpf" not in X:
            k(f"s_cmp_lg_u32 s{s_w}, 1"); k(f"s_cbranch_scc1 {k.L('nocpf')}")
            code_prefetch(k, k.name + "_kernel", sB, s_t0, vt[0], 14, v_lane)
            k.label(k.L("nocpf"))
        k(f"s_cmp_ge_u32 s{s_nb}, 15"); k(f"s_cbranch_scc1 {k.L('aux')}")
    k(f"s_lshr_b32 s{s_wm}, s{s_w}, 1"); k(f"s_and_b32 s{s_wn}, s{s_w}, 1")
    k(f"s_mov_b32 s34, {SLOT}")
    if qkv:
        k(f"v_bfe_u32 v{vt[0]}, v{v_t}, 1, 3")
        k(f"v_xor_b32 v{vt[0]}, v{vt[0]}, v{v_h}")
        k(f"s_lshl_b32 s{s_t0}, s{s_wm}, 13")
        k(f"v_lshl_add_u32 v{vt[1]}, v{v_t}, 7, s{s_t0}")
        for ks in range(4):
            k(f"v_xor_b32 v{vt[2]}, {2*ks}, v{vt[0]}")
            k(f"v_lshl_add_u32 v{vAr[ks]}, v{vt[2]}, 4, v{vt[1]}")
        def a_read(dst, ks, mt): return f"ds_read_b128 {vr(dst,4)}, v{vAr[ks]} offset:{mt*4096}"
        def a_upd(ks): return [vAr[ks]]
    else:
        k(f"s_lshl_b32 s{s_t0}, s{s_wm}, 10")
        k(f"v_lshl_add_u32 v{vt[0]}, v{v_t}, 4, s{s_t0}")
        k(f"v_lshl_add_u32 v{vAr[0]}, v{v_h}, 11, v{vt[0]}")
        def a_read(dst, ks, mt): return f"ds_read_b128 {vr(dst,4)}, v{vAr[0]} offset:{ks*4096 + mt*512}"
        def a_upd(ks): return [vAr[0]] if ks == 0 else []
    k(f"v_bfe_u32 v{vt[0]}, v{v_lane}, 2, 2")
    k(f"v_lshl_add_u32 v{vt[1]}, v{v_h}, 3, v{vt[0]}")
    k(f"v_lshlrev_b32 v{vt[1]}, 8, v{vt[1]}")
    k(f"v_bfe_u32 v{vt[2]}, v{v_lane}, 4, 1")
    k(f"v_lshl_add_u32 v{vt[1]}, v{vt[2]}, 5, v{vt[1]}")
    k(f"v_and_b32 v{vt[2]}, 3, v{v_lane}")
    k(f"v_lshl_add_u32 v{vt[1]}, v{vt[2]}, 3, v{vt[1]}")
    k(f"v_add_u32 v{vt[1]}, 16384, v{vt[1]}")
    k(f"s_lshl_b32 s{s_t0}, s{s_wn}, 1")
    k(f"v_xor_b32 v{vt[2]}, s{s_t0}, v{vt[0]}")
    k(f"v_lshl_add_u32 v{vBr[0]}, v{vt[2]}, 6, v{vt[1]}")
    k(f"v_xor_b32 v{vBr[1]}, 64, v{vBr[0]}")
    def b_read(dst, ks, nt, e): return f"ds_read_b64_tr_b16 {vr(dst + 2*e, 2)}, v{vBr[nt]} offset:{ks*4096 + e*1024}"
    for r in range(64): k(f"v_mov_b32 v{ACC + r}, 0")
    k(f"s_mov_b32 s{s_it}, 0"); k(f"s_mov_b32 s{s_slot}, 0")
    k("s_waitcnt lgkmcnt(0)")
    srd(k, sW, WSL, WSL + 1, WS_END)

    def reads(ks):
        return [a_read(FA[ks][0], ks, 0), b_read(FB[ks][0], ks, 0, 0), b_read(FB[ks][0], ks, 0, 1),
                b_read(FB[ks][1], ks, 1, 0), b_read(FB[ks][1], ks, 1, 1), a_read(FA[ks][1], ks, 1)]
    k("s_waitcnt lgkmcnt(0)")
    k("s_barrier")
    for l in reads(0) + reads(1): k(l)

    def mainloop(tag, vorient):
        k.label(k.L("loop" + tag))
        for ks in range(4):
            mf = []
            for mt in range(2):
                for nt in range(2):
                    a, b = FA[ks][mt], FB[ks][nt]
                    s0, s1 = (a, b) if vorient else (b, a)
                    mf.append(f"v_mfma_f32_32x32x16_bf16 {vr(acc(mt,nt),16)}, {vr(s0,4)}, {vr(s1,4)}, {vr(acc(mt,nt),16)}")
            pre = []
            if ks == 2:
                k("s_barrier")
                pre += [f"s_add_u32 s{s_slot}, s{s_slot}, 1", f"s_and_b32 s{s_slot}, s{s_slot}, {NS - 1}",
                        f"s_cselect_b32 s{s_delta}, s34, {(-(NS - 1) * SLOT) & 0xffffffff:#x}"]
                pre += [f"v_add_u32 v{a}, s{s_delta}, v{a}" for a in vBr]
            nk = (ks + 2) % 4
            if ks >= 2:
                pre += [f"v_add_u32 v{a}, s{s_delta}, v{a}" for a in a_upd(nk)]
            post = []
            if ks == 3:
                post = [f"v_add_u32 v{a}, s{s_delta}, v{a}" for a in a_upd(2) + a_upd(3)]
                post += [f"s_add_u32 s{s_it}, s{s_it}, 1", f"s_cmp_lt_u32 s{s_it}, {NST}"]
            rd = reads(nk)
            k("s_waitcnt lgkmcnt(6)")
            seq = [mf[0]] + pre + rd[0:2] + [mf[1]] + rd[2:4] + [mf[2]] + rd[4:6] + post + [mf[3]]
            for l in seq: k(l)
        k(f"s_cbranch_scc1 {k.L('loop' + tag)}")

    def epi_nm():
        MR = [28, 30]
        CS = EP; B1 = EP + 32
        k(f"s_lshl_b32 s{s_t0}, s{s_wm}, 8"); k(f"s_add_u32 s{s_t0}, s{s_t0}, {SB}")
        k(f"v_lshl_add_u32 v{vt[4]}, v{v_t}, 2, s{s_t0}")
        for mt in range(2):
            k(f"ds_read2_b32 {vr(MR[mt],2)}, v{vt[4]} offset0:{mt*32} offset1:{128 + mt*32}")
        k(f"s_lshl_b32 s{s_t0}, s{s_wn}, 8"); k(f"s_add_u32 s{s_t0}, s{s_t0}, {SB}")
        k(f"v_lshl_add_u32 v{vt[0]}, v{v_h}, 4, s{s_t0}")
        for nt in range(2):
            for rq in range(4):
                k(f"ds_read_b128 {vr(CS + nt*16 + rq*4, 4)}, v{vt[0]} offset:{1024 + nt*128 + rq*32}")
            if not qkv:
                for rq in range(4):
                    k(f"ds_read_b128 {vr(B1 + nt*16 + rq*4, 4)}, v{vt[0]} offset:{1536 + nt*128 + rq*32}")
        OFF = QK_OFF if qkv else G_OFF
        k(f"s_lshl_b32 s{s_t0}, s{s_nb}, 4"); k(f"s_lshl_b32 s{s_t1}, s{s_wn}, 3"); k(f"s_add_u32 s{s_t0}, s{s_t0}, s{s_t1}")
        k(f"v_add_lshl_u32 v{vt[2]}, v{v_h}, s{s_t0}, 15")
        k(f"s_lshl_b32 s{s_t0}, s{s_mb}, 7"); k(f"s_lshl_b32 s{s_t1}, s{s_wm}, 6"); k(f"s_add_u32 s{s_t0}, s{s_t0}, s{s_t1}")
        k(f"v_add_u32 v{vt[3]}, s{s_t0}, v{v_t}")
        k(f"v_lshl_add_u32 v{vt[2]}, v{vt[3]}, 4, v{vt[2]}")
        so = 46
        for c in range(4): k(f"s_mov_b32 s{so + c}, {OFF + 2*c*CH}")
        if not qkv:
            C0 = -2.0 * math.log2(math.e) * math.sqrt(2.0 / math.pi)
            k(f"s_mov_b32 s44, {f32(C0 * 0.044715)}"); k(f"s_mov_b32 s45, {f32(C0 * 0.044715)}")
            k(f"v_mov_b32 v{vt[4]}, {f32(C0)}"); k(f"v_mov_b32 v{vt[5]}, {f32(C0)}")
        k("s_waitcnt lgkmcnt(0)")
        T = EP + 64
        n_st = 0
        for nt in range(2):
            for mt in range(2):
                a = acc(mt, nt); mr = MR[mt]
                for p in range(8):
                    x = vr(a + 2*p, 2)
                    k(f"v_pk_fma_f32 {x}, {vr(CS + nt*16 + 2*p, 2)}, {vr(mr,2)}, {x} op_sel_hi:[1,0,1]")
                for p in range(8):
                    x = vr(a + 2*p, 2)
                    if qkv:
                        k(f"v_pk_mul_f32 {x}, {x}, {vr(mr,2)} op_sel:[0,1] op_sel_hi:[1,1]")
                    else:
                        k(f"v_pk_fma_f32 {x}, {x}, {vr(mr,2)}, {vr(B1 + nt*16 + 2*p, 2)} op_sel:[0,1,0] op_sel_hi:[1,1,1]")
                if not qkv:
                    for p in range(8):
                        x = vr(a + 2*p, 2); t = vr(T + 2*p, 2)
                        k(f"v_pk_mul_f32 {t}, {x}, {x}")
                    for p in range(8):
                        t = vr(T + 2*p, 2)
                        k(f"v_pk_fma_f32 {t}, {t}, s[44:45], {vr(vt[4],2)}")
                    for p in range(8):
                        x = vr(a + 2*p, 2); t = vr(T + 2*p, 2)
                        k(f"v_pk_mul_f32 {t}, {t}, {x}")
                    for r in range(16): k(f"v_exp_f32 v{T + r}, v{T + r}")
                    for p in range(8):
                        t = vr(T + 2*p, 2)
                        k(f"v_pk_add_f32 {t}, {t}, 1.0 op_sel_hi:[1,0]")
                    for r in range(16): k(f"v_rcp_f32 v{T + r}, v{T + r}")
                    for p in range(8):
                        x = vr(a + 2*p, 2); t = vr(T + 2*p, 2)
                        k(f"v_pk_mul_f32 {x}, {x}, {t}")
                Pk = T + 16 + (n_st % 2) * 8
                for p in range(8):
                    k(f"v_cvt_pk_bf16_f32 v{Pk + p}, v{a + 2*p}, v{a + 2*p + 1}")
                for pq in range(2):
                    b = Pk + 4*pq
                    k(f"v_permlane32_swap_b32 v{b}, v{b+2}")
                    k(f"v_permlane32_swap_b32 v{b+1}, v{b+3}")
                for pq in range(2):
                    b = Pk + 4*pq
                    k(f"buffer_store_dwordx4 {vr(b,4)}, v{vt[2]}, s[{sW}:{sW+3}], s{so + nt*2 + pq} offen offset:{mt*512} sc1")
                n_st += 1

    def epi_v():
        NM = EP; RS = EP + 32; CSV = [28, 30]
        k(f"s_lshl_b32 s{s_t0}, s{s_wm}, 8"); k(f"s_add_u32 s{s_t0}, s{s_t0}, {SB}")
        k(f"v_lshl_add_u32 v{vt[0]}, v{v_h}, 4, s{s_t0}")
        k(f"s_lshl_b32 s{s_t0}, s{s_wn}, 8"); k(f"s_add_u32 s{s_t0}, s{s_t0}, {SB}")
        k(f"v_lshl_add_u32 v{vt[1]}, v{v_t}, 2, s{s_t0}")
        for nt in range(2):
            k(f"ds_read_b32 v{CSV[nt]}, v{vt[1]} offset:{1024 + nt*128}")
        for mt in range(2):
            for rq in range(4):
                k(f"ds_read_b128 {vr(NM + mt*16 + rq*4, 4)}, v{vt[0]} offset:{mt*128 + rq*32}")
                k(f"ds_read_b128 {vr(RS + mt*16 + rq*4, 4)}, v{vt[0]} offset:{512 + mt*128 + rq*32}")
        k(f"s_lshl_b32 s{s_t0}, s{s_mb}, 1"); k(f"s_add_u32 s{s_t0}, s{s_t0}, s{s_wm}"); k(f"s_mul_i32 s{s_t0}, s{s_t0}, 2560")
        k(f"s_lshl_b32 s{s_t1}, s{s_nb}, 7"); k(f"s_add_u32 s{s_t0}, s{s_t0}, s{s_t1}"); k(f"s_sub_u32 s{s_t0}, s{s_t0}, 1280")
        k(f"s_lshl_b32 s{s_t1}, s{s_wn}, 6"); k(f"s_add_u32 s{s_t0}, s{s_t0}, s{s_t1}")
        k(f"v_add_lshl_u32 v{vt[2]}, v{v_t}, s{s_t0}, 5")
        k(f"v_lshl_add_u32 v{vt[2]}, v{v_h}, 4, v{vt[2]}")
        so = 46
        for c in range(4): k(f"s_mov_b32 s{so + c}, {V_OFF + c * 640 * 32}")
        k("s_waitcnt lgkmcnt(0)")
        T = EP + 64; n_st = 0
        for mt in range(2):
            for nt in range(2):
                a = acc(mt, nt)
                for p in range(8):
                    x = vr(a + 2*p, 2)
                    k(f"v_pk_fma_f32 {x}, {vr(NM + mt*16 + 2*p, 2)}, {vr(CSV[nt],2)}, {x} op_sel_hi:[1,0,1]")
                for p in range(8):
                    x = vr(a + 2*p, 2)
                    k(f"v_pk_mul_f32 {x}, {x}, {vr(RS + mt*16 + 2*p, 2)}")
                Pk = T + (n_st % 2) * 8
                for p in range(8):
                    k(f"v_cvt_pk_bf16_f32 v{Pk + p}, v{a + 2*p}, v{a + 2*p + 1}")
                for jj in range(2):
                    k(f"buffer_store_dwordx4 {vr(Pk + 4*jj, 4)}, v{vt[2]}, s[{sW}:{sW+3}], s{so + mt*2 + jj} offen offset:{nt*1024} sc1")
                n_st += 1

    if qkv:
        k(f"s_cmp_ge_u32 s{s_nb}, 10")
        k(f"s_cbranch_scc1 {k.L('loopv')}")
        mainloop("q", False); epi_nm()
        k(f"s_branch {k.L('end')}")
        mainloop("v", True); epi_v()
        k(f"s_branch {k.L('end')}")
        k.label(k.L("auxl"))
        k(f"s_cmp_ge_u32 s{s_w}, 2"); k(f"s_cbranch_scc1 {k.L('aux')}")
        slice_addr_rows()
        k("s_waitcnt lgkmcnt(0)")
        srd(k, sA, 36, 37, S * D * 2); srd(k, sW, WSL, WSL + 1, WS_END); srd(k, sBi, 40, 41, 256)
        slice_load_rows()
        k("s_waitcnt vmcnt(0)")
        tag_load()
        slice_rows(0)
        k("s_waitcnt vmcnt(0)")
        tag_wait("x")
        slice_rows(1)
        k.label(k.L("aux"))
        k("s_load_dwordx4 s[44:47], s[0:1], 32")
        k(f"v_lshrrev_b32 v{vt[0]}, 4, v{v_lane}")
        k(f"v_and_b32 v{vt[1]}, 15, v{v_lane}")
        k(f"v_mul_u32_u24 v{vt[2]}, {F * 2}, v{vt[0]}")
        k(f"v_lshl_add_u32 v{vt[2]}, v{vt[1]}, 4, v{vt[2]}")
        k(f"v_lshlrev_b32 v{vt[3]}, 1, v0")
        k("s_waitcnt lgkmcnt(0)")
        srd(k, sW, WSL, WSL + 1, WS_END)
        k(f"s_cmp_ge_u32 s{s_mb}, 14"); k(f"s_cbranch_scc1 {k.L('end')}")
        srd(k, sB, 44, 45, D * F * 2); srd(k, sA, 46, 47, F * 2)
        k(f"s_mul_i32 s{s_t0}, s{s_wid}, {80 * F * 2}"); k(f"s_lshl_b32 s{s_t1}, s{s_mb}, 8"); k(f"s_add_u32 s{s_t0}, s{s_t0}, s{s_t1}")
        k(f"buffer_load_ushort v{v_b1}, v{vt[3]}, s[{sA}:{sA+3}], s{s_t1} offen")
        for i in range(20):
            k(f"buffer_load_dwordx4 {vr(40 + 4*i, 4)}, v{vt[2]}, s[{sB}:{sB+3}], s{s_t0} offen")
            k(f"s_add_u32 s{s_t0}, s{s_t0}, {4 * F * 2}")
        for r in range(8): k(f"v_mov_b32 v{24 + r}, 0")
        for i in range(20):
            k(f"s_waitcnt vmcnt({19 - i})")
            for r in range(4):
                k(f"v_lshlrev_b32 v{32 + 2*r}, 16, v{40 + 4*i + r}")
                k(f"v_and_b32 v{33 + 2*r}, 0xffff0000, v{40 + 4*i + r}")
            for r in range(4):
                k(f"v_pk_add_f32 {vr(24 + 2*r, 2)}, {vr(24 + 2*r, 2)}, {vr(32 + 2*r, 2)}")
        k(f"v_lshlrev_b32 v{vt[0]}, 5, v0")
        k(f"ds_write_b128 v{vt[0]}, v[24:27]")
        k(f"ds_write_b128 v{vt[0]}, v[28:31] offset:16")
        k("s_waitcnt lgkmcnt(0)")
        k("s_barrier")
        k(f"s_cmp_ge_u32 s{s_wid}, 2"); k(f"s_cbranch_scc1 {k.L('end')}")
        k(f"v_lshlrev_b32 v{vt[0]}, 2, v0")
        for i in range(32):
            k(f"ds_read_b32 v{40 + i}, v{vt[0]} offset:{i * 512}")
            if i % 8 == 7: k("s_waitcnt lgkmcnt(0)")
        for i in range(1, 32): k(f"v_add_f32 v40, v40, v{40 + i}")
        k(f"v_lshlrev_b32 v{v_b1}, 16, v{v_b1}")
        k(f"s_lshl_b32 s{s_t0}, s{s_mb}, 10"); k(f"s_add_u32 s{s_t0}, s{s_t0}, {C1_OFF}"); k(f"s_add_u32 s{s_t1}, s{s_t0}, 512")
        k(f"buffer_store_dword v40, v{vt[0]}, s[{sW}:{sW+3}], s{s_t0} offen sc1")
        k(f"buffer_store_dword v{v_b1}, v{vt[0]}, s[{sW}:{sW+3}], s{s_t1} offen sc1")
    k.label(k.L("end"))
    k(f"s_lshl_b32 s94, s{s_mb}, 4"); k(f"s_add_u32 s94, s94, s{s_nb}")
    k(f"v_readfirstlane_b32 s{S_TAG}, v{v_tag}")
    k.stamp(2)

def phase2(k):
    k.pref = "p2"
    sW = 4; sP1 = 8; sP2 = 12; sP3 = 16; sWW = 52
    s_hd, s_qb, s_w, s_qs, s_kh, s_t0, s_t1, s_it = 20, 21, S_WID, 23, 24, 25, 26, 27
    s_ko, s_vo, s_odd = 28, 29, 30
    s_vm = 32; s_lo = 34; s_c = 36
    s_do, s_dm, s_qo = 56, 57, 58
    v_lane, v_t, v_h = 1, 2, 3
    vK1, vK2, vV0, vV1 = 4, 5, 6, 7
    vt = [8, 9, 10, 11, 12, 13, 14, 15]
    vm = [16, 17]
    v_pfa, v_pfc, v_pf = 18, 19, 200
    vD = [202, 203, 204, 205]
    v_fx, vX, v_pt = 206, 208, 207
    Q1 = [20, 24]; Q2 = [28, 30]
    NBUF = 4
    K1 = [32, 36, 40, 44]; K2 = [48, 50, 52, 54]
    VB = [56, 64, 72, 80]
    C = [88, 104]; Sx = [120, 136]; P = [152, 160]; O = [168, 184]
    k("s_load_dwordx2 s[40:41], s[0:1], 80")
    k("s_load_dwordx2 s[44:45], s[0:1], 16")
    k("s_load_dwordx2 s[46:47], s[0:1], 32")
    k("s_load_dwordx2 s[38:39], s[0:1], 48")
    if "headmap" in X:
        k(f"s_and_b32 s{s_hd}, s2, 7"); k(f"s_lshl_b32 s{s_hd}, s{s_hd}, 2")
        k(f"s_bfe_u32 s{s_t0}, s2, 0x20003"); k(f"s_add_u32 s{s_hd}, s{s_hd}, s{s_t0}")
        k(f"s_lshr_b32 s{s_qb}, s2, 5")
    else:
        k(f"s_lshr_b32 s{s_hd}, s2, 3"); k(f"s_and_b32 s{s_qb}, s2, 7")
    k(f"s_and_b32 s{s_qs}, s{s_w}, 3"); k(f"s_lshr_b32 s{s_kh}, s{s_w}, 2")
    k(f"s_and_b32 s{s_odd}, s{s_hd}, 1")
    k(f"s_mov_b32 s{s_lo}, -1"); k(f"s_mov_b32 s{s_lo+1}, 0")
    k(f"s_lshr_b32 s{s_t0}, s{s_hd}, 1"); k(f"s_mul_i32 s{s_t0}, s{s_t0}, 5")
    k(f"s_mul_i32 s{s_t1}, s{s_odd}, 3"); k(f"s_add_u32 s{s_t1}, s{s_t1}, s{s_t0}")
    k(f"v_add_lshl_u32 v{vK1}, v{v_h}, s{s_t1}, 15")
    k(f"v_lshl_add_u32 v{vK1}, v{v_t}, 4, v{vK1}")
    k(f"s_add_u32 s{s_t0}, s{s_t0}, 2"); k(f"s_lshl_b32 s{s_t0}, s{s_t0}, 15")
    k(f"s_lshl_b32 s{s_t1}, s{s_odd}, 3"); k(f"s_add_u32 s{s_t0}, s{s_t0}, s{s_t1}")
    k(f"v_lshl_add_u32 v{vK2}, v{v_t}, 4, s{s_t0}")
    k(f"s_lshl_b32 s{s_ko}, s{s_kh}, 14"); k(f"s_add_u32 s{s_ko}, s{s_ko}, {QK_OFF + 80 * CH}")
    k(f"s_lshl_b32 s{s_qo}, s{s_qb}, 12"); k(f"s_lshl_b32 s{s_t1}, s{s_qs}, 10"); k(f"s_add_u32 s{s_qo}, s{s_qo}, s{s_t1}")
    for qt in range(2):
        k(f"v_mov_b32 v{Q2[qt]}, 0"); k(f"v_mov_b32 v{Q2[qt]+1}, 0")
    k(f"s_mov_b32 s42, s{s_ko}")
    k(f"s_mov_b32 s{s_vm}, 0xfffff"); k(f"s_mov_b32 s{s_vm+1}, 0xfffff")
    k(f"v_add_u32 v{vt[0]}, 4, v{v_t}")
    k(f"v_subrev_u32 v{vt[1]}, 16, v{v_t}")
    k(f"v_cmp_gt_u32 vcc, 16, v{v_t}")
    k(f"v_cndmask_b32 v{vt[0]}, v{vt[1]}, v{vt[0]}, vcc")
    k(f"s_cmp_eq_u32 s{s_odd}, 1")
    k(f"s_cselect_b64 vcc, -1, 0")
    k(f"v_cndmask_b32 v{vt[0]}, v{v_t}, v{vt[0]}, vcc")
    k(f"s_mul_i32 s{s_t0}, s{s_hd}, 20")
    k(f"v_add_lshl_u32 v{vV0}, v{vt[0]}, s{s_t0}, 5")
    k(f"v_lshl_add_u32 v{vV0}, v{v_h}, 4, v{vV0}")
    k(f"v_add_u32 v{vV1}, {640 * 32}, v{vV0}")
    k(f"s_mul_i32 s{s_vo}, s{s_kh}, {32 * 1280 * 32}"); k(f"s_add_u32 s{s_vo}, s{s_vo}, {V_OFF}")
    k(f"s_mov_b32 s43, s{s_vo}")
    k(f"v_cmp_eq_u32 vcc, 20, v{v_t}")
    k(f"v_mov_b32 v{vt[1]}, 0x3f803f80")
    k(f"v_cndmask_b32 v{vt[1]}, 0, v{vt[1]}, vcc")
    for b in range(NBUF):
        for r in range(8): k(f"v_mov_b32 v{VB[b] + r}, v{vt[1]}")
    for qt in range(2):
        for r in range(16): k(f"v_mov_b32 v{O[qt] + r}, 0")
    for r in range(8): k(f"v_mov_b32 v{P[1] + r}, 0")
    k(f"s_lshr_b32 s{s_t0}, s2, 3"); k(f"s_lshl_b32 s{s_t0}, s{s_t0}, 3"); k(f"s_add_u32 s{s_t0}, s{s_t0}, s{s_w}")
    k(f"s_mul_i32 s49, s{s_t0}, {48 * 128}"); k(f"s_add_u32 s49, s49, {192 * F * 2}")
    k(f"v_lshlrev_b32 v{vt[2]}, 8, v{v_lane}"); k(f"v_add_u32 v{vt[2]}, 124, v{vt[2]}")
    k(f"v_mov_b32 v{vt[3]}, 0x7ffffff0")
    k(f"v_cmp_gt_u32 vcc, 24, v{v_lane}")
    k(f"v_cndmask_b32 v{v_pfa}, v{vt[3]}, v{vt[2]}, vcc")
    k(f"s_lshl_b32 s48, s2, 3"); k(f"s_add_u32 s48, s48, s{s_w}"); k(f"s_mul_i32 s48, s48, {10 * 128}")
    k(f"v_cmp_gt_u32 vcc, 5, v{v_lane}")
    k(f"v_cndmask_b32 v{v_pfc}, v{vt[3]}, v{vt[2]}, vcc")
    k(f"s_sub_u32 s50, s{s_qs}, s{s_kh}"); k(f"s_add_u32 s50, s50, 3")
    k(f"s_lshl_b32 s92, s2, 3"); k(f"s_add_u32 s92, s92, s{s_w}"); k(f"s_mul_i32 s92, s92, 1536"); k(f"s_add_u32 s92, s92, {H_OFF}")
    k(f"v_lshrrev_b32 v{vt[0]}, 3, v{v_lane}")
    k(f"v_and_b32 v{vt[1]}, 7, v{v_lane}")
    k(f"v_bfe_u32 v{vt[2]}, v{v_lane}, 4, 1")
    k(f"v_lshlrev_b32 v{vt[2]}, 2, v{vt[2]}")
    k(f"v_xor_b32 v{vt[1]}, v{vt[1]}, v{vt[2]}")
    k(f"v_mul_u32_u24 v{vt[0]}, 1280, v{vt[0]}")
    k(f"v_lshl_add_u32 v{vD[0]}, v{vt[1]}, 4, v{vt[0]}")
    k(f"v_add_u32 v{vD[1]}, {8 * 1280 - 1024}, v{vD[0]}")
    k(f"v_lshrrev_b32 v{vt[0]}, 4, v{v_lane}")
    k(f"v_and_b32 v{vt[1]}, 15, v{v_lane}")
    k(f"v_lshlrev_b32 v{vt[2]}, 2, v{vt[0]}")
    k(f"v_xor_b32 v{vt[1]}, v{vt[1]}, v{vt[2]}")
    k(f"v_mul_u32_u24 v{vt[0]}, {F * 2}, v{vt[0]}")
    k(f"v_lshl_add_u32 v{vD[2]}, v{vt[1]}, 4, v{vt[0]}")
    k(f"v_add_u32 v{vD[3]}, {4 * F * 2 - 1024}, v{vD[2]}")
    k(f"s_lshr_b32 s{s_t0}, s2, 3")
    k(f"s_mul_i32 s{s_t1}, s{s_t0}, 43"); k(f"s_lshr_b32 s{s_t1}, s{s_t1}, 7"); k(f"s_lshl_b32 s{s_t1}, s{s_t1}, 7")
    k(f"s_mul_i32 s{s_do}, s{s_w}, {16 * 1280}"); k(f"s_add_u32 s{s_do}, s{s_do}, s{s_t1}")
    k(f"s_lshr_b32 s{s_t0}, s{s_t0}, 1"); k(f"s_lshl_b32 s{s_t0}, s{s_t0}, 8")
    k(f"s_mul_i32 s59, s{s_w}, {8 * F * 2}"); k(f"s_add_u32 s59, s59, s{s_t0}")
    k(f"s_lshl_b32 s{s_dm}, s{s_w}, 11")
    k("s_waitcnt lgkmcnt(0)")
    srd(k, sW, 40, 41, QKV_END); srd(k, sWW, 40, 41, WS_END)
    srd(k, sP1, 44, 45, D * D * 2); srd(k, sP2, 46, 47, D * F * 2)
    W = f"s[{sW}:{sW+3}]"
    srd(k, sP3, 38, 39, D * F * 2)
    k(f"s_getreg_b32 s51, hwreg(HW_REG_XCC_ID)"); k(f"s_and_b32 s51, s51, 15")
    k(f"s_and_b32 s{s_t0}, s2, 7"); k(f"s_lshl_b32 s{s_t0}, s{s_t0}, 7"); k(f"s_add_u32 s{s_t0}, s{s_t0}, {FX_OFF}")
    k(f"v_lshl_add_u32 v{v_fx}, v{v_t}, 10, s{s_t0}")
    k(f"s_and_b32 s{s_t0}, s{s_w}, 6"); k(f"s_cmp_lg_u32 s{s_t0}, 4"); k(f"s_cbranch_scc1 {k.L('nt')}")
    k(f"s_lshr_b32 s{s_t0}, s{s_hd}, 1"); k(f"s_mul_i32 s{s_t0}, s{s_t0}, 5"); k(f"s_add_u32 s{s_t0}, s{s_t0}, s{s_odd}"); k(f"s_add_u32 s{s_t0}, s{s_t0}, s{s_odd}")
    k(f"s_add_u32 s{s_t1}, s{s_t0}, 2"); k(f"s_lshr_b32 s{s_t0}, s{s_t0}, 4"); k(f"s_lshr_b32 s{s_t1}, s{s_t1}, 4")
    k(f"s_cmp_eq_u32 s{s_w}, 4"); k(f"s_cbranch_scc1 {k.L('fk')}")
    k(f"s_lshl_b32 s{s_t0}, s2, 7"); k(f"s_add_u32 s{s_t0}, s{s_t0}, {FX_OFF}")
    k(f"v_mov_b32 v{vt[2]}, s{S_TAG}"); k(f"v_mov_b32 v{vt[3]}, s51"); k(f"v_mov_b32 v{vt[4]}, 0")
    k("s_mov_b64 exec, 1")
    k(f"buffer_store_dwordx2 {vr(vt[2], 2)}, v{vt[4]}, s[{sWW}:{sWW+3}], s{s_t0} offen sc1")
    k("s_mov_b64 exec, -1")
    k(f"s_mul_i32 s{s_t0}, s{s_hd}, 20"); k(f"s_add_u32 s{s_t1}, s{s_t0}, {19 + 640}"); k(f"s_add_u32 s{s_t0}, s{s_t0}, 640")
    k(f"s_lshr_b32 s{s_t0}, s{s_t0}, 7"); k(f"s_lshr_b32 s{s_t1}, s{s_t1}, 7")
    k.label(k.L("fk"))
    k(f"v_mov_b32 v{vt[0]}, s{s_t0}"); k(f"v_mov_b32 v{vt[1]}, s{s_t1}")
    k(f"v_and_b32 v{vt[5]}, 16, v{v_lane}"); k(f"v_cmp_eq_u32 vcc, 0, v{vt[5]}")
    k(f"v_cndmask_b32 v{vt[5]}, v{vt[1]}, v{vt[0]}, vcc")
    k(f"v_and_b32 v{vt[1]}, 15, v{v_lane}")
    k(f"v_lshl_add_u32 v{vt[0]}, v{vt[1]}, 4, v{vt[5]}")
    k(f"v_add_u32 v{vt[0]}, 5, v{vt[0]}")
    k(f"v_and_b32 v{vt[1]}, 1, v{v_lane}"); k(f"s_lshl_b32 s{s_t0}, s{s_qb}, 1"); k(f"v_add_u32 v{vt[1]}, s{s_t0}, v{vt[1]}")
    k(f"v_lshl_add_u32 v{vt[1]}, v{vt[1]}, 4, v{vt[5]}")
    k(f"s_cmp_eq_u32 s{s_w}, 4"); k(f"s_cselect_b32 s{s_t0}, 32, 64")
    k(f"v_cmp_gt_u32 vcc, s{s_t0}, v{v_lane}")
    k(f"v_cndmask_b32 v{vt[0]}, v{vt[1]}, v{vt[0]}, vcc")
    k(f"v_lshlrev_b32 v{vt[0]}, 7, v{vt[0]}"); k(f"v_add_u32 v{vt[0]}, {FL_OFF}, v{vt[0]}")
    k.label(k.L("nt"))
    k("s_waitcnt vmcnt(0)")
    k("s_barrier")
    k.stamp(3)
    k(f"s_and_b32 s{s_t0}, s{s_w}, 6"); k(f"s_cmp_lg_u32 s{s_t0}, 4"); k(f"s_cbranch_scc1 {k.L('nw')}")
    k(f"s_cmp_lg_u32 s{s_w}, 4"); k(f"s_cbranch_scc1 {k.L('npb')}")
    publish(k, sWW, 1, 94, s_t0, vt[4], vt[5])
    k.label(k.L("npb"))
    poll(k, sWW, [vt[0]], [vt[2]], s_it, "1")
    k.label(k.L("nw"))
    k(f"s_cmp_eq_u32 s{s_kh}, 0"); k(f"s_cbranch_scc1 {k.L('np')}")
    k("s_setprio 1")
    k.label(k.L("np"))
    k("s_barrier")
    k.stamp(4)
    SC = " sc1" if "kvsc1" in X else ""
    def kload(b):
        return [f"buffer_load_dwordx4 {vr(K1[b],4)}, v{vK1}, {W}, s{s_ko} offen{SC}",
                f"buffer_load_dwordx2 {vr(K2[b],2)}, v{vK2}, {W}, s{s_ko} offen{SC}",
                f"s_add_u32 s{s_ko}, s{s_ko}, 512"]
    def vload(b):
        return [f"s_mov_b64 exec, s[{s_vm}:{s_vm+1}]",
                f"buffer_load_dwordx4 {vr(VB[b],4)}, v{vV0}, {W}, s{s_vo} offen{SC}",
                f"buffer_load_dwordx4 {vr(VB[b]+4,4)}, v{vV1}, {W}, s{s_vo} offen{SC}",
                f"s_mov_b64 exec, -1",
                f"s_add_u32 s{s_vo}, s{s_vo}, {1280 * 32}"]
    def wdma(which):
        a, b_, sr_, so, step = (vD[0], vD[1], sP1, s_do, 128 * 1280) if which == 0 else (vD[2], vD[3], sP2, 59, 64 * F * 2)
        return [f"s_mov_b32 m0, s{s_dm}", f"s_add_u32 s{s_dm}, s{s_dm}, 16384",
                f"buffer_load_dwordx4 v{a}, s[{sr_}:{sr_+3}], s{so} offen lds",
                f"buffer_load_dwordx4 v{b_}, s[{sr_}:{sr_+3}], s{so} offen offset:1024 lds",
                f"s_add_u32 s{so}, s{so}, {step}"]
    for l in kload(0): k(l)
    for qt in range(2):
        k(f"buffer_load_dwordx4 {vr(Q1[qt],4)}, v{vK1}, {W}, s{s_qo} offen offset:{qt*512} sc1")
    k(f"s_mov_b64 exec, s[{s_lo}:{s_lo+1}]")
    for qt in range(2):
        k(f"buffer_load_dwordx2 {vr(Q2[qt],2)}, v{vK2}, {W}, s{s_qo} offen offset:{qt*512} sc1")
    k("s_mov_b64 exec, -1")
    for l in kload(1) + vload(0): k(l)
    def qk(qt, b, c):
        cc = "0" if c is None else vr(c, 16)
        return [f"v_mfma_f32_32x32x16_bf16 {vr(Sx[qt],16)}, {vr(K1[b],4)}, {vr(Q1[qt],4)}, {cc}",
                f"v_mfma_f32_32x32x8_bf16 {vr(Sx[qt],16)}, {vr(K2[b],2)}, {vr(Q2[qt],2)}, {vr(Sx[qt],16)}"]
    def pv(qt, b):
        return [f"v_mfma_f32_32x32x16_bf16 {vr(O[qt],16)}, {vr(VB[b],4)}, {vr(P[qt],4)}, {vr(O[qt],16)}",
                f"v_mfma_f32_32x32x16_bf16 {vr(O[qt],16)}, {vr(VB[b]+4,4)}, {vr(P[qt]+4,4)}, {vr(O[qt],16)}"]
    def rowmax(qt, dst, tmp):
        s = Sx[qt]
        k(f"v_max3_f32 v{dst}, v{s}, v{s+1}, v{s+2}")
        for r in range(3, 15, 2): k(f"v_max3_f32 v{dst}, v{dst}, v{s+r}, v{s+r+1}")
        k(f"v_max_f32 v{dst}, v{dst}, v{s+15}")
        k(f"v_mov_b32 v{tmp}, v{dst}")
        k(f"v_permlane32_swap_b32 v{dst}, v{tmp}")
        k(f"v_max_f32 v{dst}, v{dst}, v{tmp}")
    k("s_waitcnt vmcnt(4)")
    for qt in range(2):
        for l in qk(qt, 0, None): k(l)
    for l in kload(2) + vload(1) + kload(3) + vload(2) + wdma(0): k(l)
    rowmax(0, vm[0], vt[0])
    k(f"v_sub_f32 v{vt[1]}, 0, v{vm[0]}")
    for r in range(16): k(f"v_mov_b32 v{C[0] + r}, v{vt[1]}")
    for l in qk(0, 0, C[0]): k(l)
    rowmax(1, vm[1], vt[0])
    k(f"v_sub_f32 v{vt[1]}, 0, v{vm[1]}")
    for r in range(16): k(f"v_mov_b32 v{C[1] + r}, v{vt[1]}")
    k(f"s_mov_b32 s{s_it}, 0")
    k("s_nop 1")
    def slot(qt, mf, extra):
        s = Sx[qt]; p = P[qt]
        for i in range(16):
            for l in extra.get(i, []): k(l)
            if i % 4 == 0: k(mf[i // 4])
            k(f"v_exp_f32 v{s+i}, v{s+i}")
            if i % 2 == 1 and i >= 3:
                k(f"v_cvt_pk_bf16_f32 v{p + (i-3)//2}, v{s+i-3}, v{s+i-2}")
        for l in extra.get(16, []): k(l)
        k(f"v_cvt_pk_bf16_f32 v{p+7}, v{s+14}, v{s+15}")
    k(f"s_cmp_eq_u32 s{s_kh}, 0")
    k(f"s_cselect_b32 s31, 99, {int(os.environ.get('PRI', '6'))}")
    k.label(k.L("loop"))
    for u in range(NBUF):
        b = u; bp = (u - 1) % NBUF; bn = (u + 1) % NBUF
        e1 = {0: [f"s_waitcnt vmcnt({14 if u < 3 else 12})"]}
        if "nopt" not in X:
            if u < 3: e1[7] = [f"s_buffer_load_dword s93, s[{sWW}:{sWW+3}], s92 offset:{u * 64}"]
        slot(0, qk(1, b, C[1]) + pv(1, bp), {6: kload(b), 14: vload(bp)})
        slot(1, qk(0, bn, C[0]) + pv(0, b), e1)
    k(f"s_add_u32 s{s_it}, s{s_it}, 1")
    k(f"s_cmp_lg_u32 s{s_it}, s31")
    k(f"s_cbranch_scc1 {k.L('noev')}")
    k("s_setprio 0")
    k.label(k.L("noev"))
    k(f"s_cmp_lg_u32 s{s_it}, s50"); k(f"s_cbranch_scc1 {k.L('noe2')}")
    k(f"buffer_load_dwordx2 {vr(v_pf, 2)}, v{v_pfa}, s[{sP2}:{sP2+3}], s49 offen")
    k(f"buffer_load_dwordx2 {vr(v_pf, 2)}, v{v_pfc}, s[{sP3}:{sP3+3}], s48 offen")
    k(f"s_cmp_lg_u32 s{s_w}, 5"); k(f"s_cbranch_scc1 {k.L('noe1')}")
    k(f"s_lshl_b32 s{s_t0}, s2, 7"); k(f"s_add_u32 s{s_t0}, s{s_t0}, {FL_OFF + 32768}")
    for j in range(3): k(f"s_buffer_load_dword s93, s[{sWW}:{sWW+3}], s{s_t0} offset:{j * 32768}")
    k(f"buffer_load_dwordx2 {vr(vX, 2)}, v{v_fx}, s[{sWW}:{sWW+3}], 0 offen sc1")
    k.label(k.L("noe1"))
    k(f"s_cmp_lg_u32 s{s_w}, 3"); k(f"s_cbranch_scc1 {k.L('noe2')}")
    code_prefetch(k, "L_p2_merge", sP3, s_t0, vt[0], v_pf, v_lane, per=8)
    k.label(k.L("noe2"))
    if "nopt" not in X: k("s_add_u32 s92, s92, 192")
    k(f"s_cmp_ge_u32 s{s_it}, 5"); k(f"s_cbranch_scc1 {k.L('d1')}")
    for l in wdma(0): k(l)
    k(f"s_branch {k.L('loop')}")
    k.label(k.L("d1"))
    k(f"s_cmp_ge_u32 s{s_it}, 8"); k(f"s_cbranch_scc1 {k.L('lend')}")
    for l in wdma(1): k(l)
    k(f"s_branch {k.L('loop')}")
    k.label(k.L("lend"))
    k.stamp(5)
    for l in pv(1, NBUF - 1): k(l)
    k("s_nop 7"); k("s_nop 7")
    k(f"v_add_f32 v{vt[0]}, |v{O[0]}|, |v{O[1]}|")
    for qt in range(2):
        for r in range(1, 12):
            k(f"v_add_f32 v{vt[0]}, v{vt[0]}, |v{O[qt]+r}|")
    k(f"v_add_f32 v{vt[1]}, v{O[0]+8}, v{O[1]+8}")
    k(f"s_mov_b32 s{s_t0}, {f32(2.0**100)}")
    k(f"v_cmp_nlt_f32 s[{s_c}:{s_c+1}], v{vt[0]}, s{s_t0}")
    k(f"s_mov_b32 s{s_t0}, {f32(2.0**60)}")
    k(f"v_cmp_nlt_f32 vcc, |v{vt[1]}|, s{s_t0}")
    k(f"s_andn2_b64 vcc, vcc, s[{s_lo}:{s_lo+1}]")
    k(f"s_or_b64 s[{s_c}:{s_c+1}], s[{s_c}:{s_c+1}], vcc")
    k("s_waitcnt vmcnt(0)")
    k(f"s_cmp_eq_u64 s[{s_c}:{s_c+1}], 0")
    k(f"s_cbranch_scc1 {k.L('merge')}")
    k(f"s_mov_b32 s{s_ko}, s42"); k(f"s_mov_b32 s{s_vo}, s43")
    for qt in range(2):
        for r in range(16): k(f"v_mov_b32 v{O[qt] + r}, 0")
        k(f"v_mov_b32 v{vm[qt]}, 0xff800000")
    k(f"s_mov_b32 s{s_it}, 0")
    k.label(k.L("fb"))
    for l in kload(0) + vload(0): k(l)
    k("s_waitcnt vmcnt(0)")
    for qt in range(2):
        for l in qk(qt, 0, None): k(l)
    for qt in range(2):
        rowmax(qt, vt[2], vt[0])
        k(f"v_max_f32 v{vt[2]}, v{vt[2]}, v{vm[qt]}")
        k(f"v_sub_f32 v{vt[3]}, v{vm[qt]}, v{vt[2]}")
        k(f"v_exp_f32 v{vt[3]}, v{vt[3]}")
        k(f"v_mov_b32 v{vm[qt]}, v{vt[2]}")
        for r in range(16): k(f"v_mul_f32 v{O[qt]+r}, v{O[qt]+r}, v{vt[3]}")
        for r in range(16): k(f"v_sub_f32 v{Sx[qt]+r}, v{Sx[qt]+r}, v{vt[2]}")
        for r in range(16): k(f"v_exp_f32 v{Sx[qt]+r}, v{Sx[qt]+r}")
        for r in range(8): k(f"v_cvt_pk_bf16_f32 v{P[qt]+r}, v{Sx[qt]+2*r}, v{Sx[qt]+2*r+1}")
        for l in pv(qt, 0): k(l)
    k("s_nop 7"); k("s_nop 7")
    k(f"s_add_u32 s{s_it}, s{s_it}, 1")
    k(f"s_cmp_lt_u32 s{s_it}, 32")
    k(f"s_cbranch_scc1 {k.L('fb')}")
    k.label(k.L("merge"))
    k(f"s_cmp_eq_u32 s{s_kh}, 0")
    k(f"s_cbranch_scc1 {k.L('noswap')}")
    for r in range(12): k(f"v_swap_b32 v{O[0]+r}, v{O[1]+r}")
    k(f"v_swap_b32 v{vm[0]}, v{vm[1]}")
    k.label(k.L("noswap"))
    k(f"s_mul_i32 s{s_t0}, s{s_w}, 3328"); k(f"s_add_u32 s{s_t0}, s{s_t0}, {MRG}")
    k(f"s_xor_b32 s{s_t1}, s{s_w}, 4"); k(f"s_mul_i32 s{s_t1}, s{s_t1}, 3328"); k(f"s_add_u32 s{s_t1}, s{s_t1}, {MRG}")
    k(f"v_lshl_add_u32 v{vt[0]}, v{v_lane}, 4, s{s_t0}")
    k(f"v_lshl_add_u32 v{vt[2]}, v{v_lane}, 2, s{s_t0}")
    for q in range(3): k(f"ds_write_b128 v{vt[0]}, {vr(O[1] + 4*q, 4)} offset:{q*1024}")
    k(f"ds_write_b32 v{vt[2]}, v{vm[1]} offset:3072")
    k(f"v_lshl_add_u32 v{vt[1]}, v{v_lane}, 4, s{s_t1}")
    k(f"v_lshl_add_u32 v{vt[3]}, v{v_lane}, 2, s{s_t1}")
    k(f"v_mov_b32 v{vt[7]}, {LOCW}")
    k(f"s_cmp_lg_u32 s{s_w}, 5"); k(f"s_cbranch_scc1 {k.L('nl')}")
    k(f"v_cmp_ne_u32 vcc, s{S_TAG}, v{vX}")
    k(f"v_cmp_ne_u32 s[90:91], s51, v{vX+1}")
    k("s_or_b64 vcc, vcc, s[90:91]")
    k(f"s_cselect_b32 s{s_t0}, 0, 1")
    k(f"v_mov_b32 v{vX}, s{s_t0}"); k(f"v_mov_b32 v{vX+1}, s{S_TAG}")
    k(f"ds_write_b64 v{vt[7]}, {vr(vX, 2)}")
    k.label(k.L("nl"))
    k("s_waitcnt lgkmcnt(0)")
    k("s_barrier")
    mo = Sx[0] + 12
    k(f"ds_read_b32 v{mo}, v{vt[3]} offset:3072")
    for q in range(3): k(f"ds_read_b128 {vr(Sx[0] + 4*q, 4)}, v{vt[1]} offset:{q*1024}")
    k(f"ds_read_b64 {vr(vX, 2)}, v{vt[7]}")
    k(f"s_lshl_b32 s{s_t1}, s{s_kh}, 9"); k(f"s_add_u32 s{s_t0}, s{s_qo}, s{s_t1}"); k(f"s_add_u32 s{s_t0}, s{s_t0}, {O_OFF}")
    k("s_waitcnt lgkmcnt(4)")
    k(f"v_max_f32 v{vt[2]}, v{vm[0]}, v{mo}")
    k(f"v_sub_f32 v{vt[3]}, v{vm[0]}, v{vt[2]}"); k(f"v_sub_f32 v{vt[4]}, v{mo}, v{vt[2]}")
    k(f"v_exp_f32 v{vt[3]}, v{vt[3]}"); k(f"v_exp_f32 v{vt[4]}, v{vt[4]}")
    k(f"v_mul_f32 v{vt[5]}, v{O[0]+8}, v{vt[3]}")
    k("s_waitcnt lgkmcnt(0)")
    k(f"v_fmac_f32 v{vt[5]}, v{Sx[0]+8}, v{vt[4]}")
    k(f"v_readfirstlane_b32 s{S_LOC}, v{vX}"); k(f"v_readfirstlane_b32 s{S_TAG}, v{vX+1}")
    if "headmap" in X:
        srd(k, sP1, 40, 41, 0)
    else:
        dual_srd(k, sP1, sWW, 40)
    k(f"v_mov_b32 v{vt[6]}, v{vt[5]}")
    k(f"v_permlane32_swap_b32 v{vt[5]}, v{vt[6]}")
    k(f"v_rcp_f32 v{vt[6]}, v{vt[6]}")
    k(f"v_mul_f32 v{vt[3]}, v{vt[3]}, v{vt[6]}"); k(f"v_mul_f32 v{vt[4]}, v{vt[4]}, v{vt[6]}")
    for r in range(12): k(f"v_mul_f32 v{O[0]+r}, v{O[0]+r}, v{vt[3]}")
    for r in range(12): k(f"v_fmac_f32 v{O[0]+r}, v{Sx[0]+r}, v{vt[4]}")
    for r in range(6): k(f"v_cvt_pk_bf16_f32 v{P[0]+r}, v{O[0]+2*r}, v{O[0]+2*r+1}")
    k(f"v_permlane32_swap_b32 v{P[0]}, v{P[0]+2}")
    k(f"v_permlane32_swap_b32 v{P[0]+1}, v{P[0]+3}")
    k(f"s_mov_b64 exec, s[{s_lo}:{s_lo+1}]")
    dstore(k, "buffer_store_dwordx2", vr(P[0]+4,2), vK2, sP1, sWW, f"s{s_t0}")
    k("s_mov_b64 exec, -1")
    dstore(k, "buffer_store_dwordx4", vr(P[0],4), vK1, sP1, sWW, f"s{s_t0}")
    k(f"s_lshl_b32 s94, s{s_qb}, 5"); k(f"s_add_u32 s94, s94, s{s_hd}")
    k.stamp(6)

def phase345(k):
    k.pref = "p3"
    GB = 16384; NSLOT = 8; SB = NSLOT * GB
    PH = {3: dict(NT=2, KK=D, A_OFF=O_OFF, base=0), 4: dict(NT=4, KK=D, A_OFF=H_OFF, base=5), 5: dict(NT=2, KK=F, A_OFF=G_OFF, base=7)}
    for p in PH.values():
        p["GS"] = 16 // p["NT"]; p["GR"] = p["GS"] * 16; p["NG"] = (p["KK"] + p["GR"] - 1) // p["GR"]; p["NKS"] = p["KK"] // 16
    sW, sB3, sB4, sB5, sX, sO, sBi = 4, 8, 12, 16, 8, 12, 16
    s_r, s_cb, s_w, s_t0, s_t1, s_offA, s_it, s_wid, s_r4, s_cb4, s_idx, s_x = 20, 21, 22, 23, 24, 26, 28, S_WID, 29, 30, 31, 32
    s_ob = {3: 25, 4: 26, 5: 27}; s_m0 = 33
    sPl, sSc = 96, 52
    ASC = os.environ.get("ASC", " sc1")
    v_lane, v_t, v_h = 1, 2, 3
    vt = [12, 13, 14, 15]
    k("s_load_dwordx2 s[38:39], s[0:1], 0")
    k("s_load_dwordx2 s[42:43], s[0:1], 32")
    k("s_load_dwordx4 s[44:47], s[0:1], 48")
    k("s_load_dwordx2 s[56:57], s[0:1], 64")
    k(f"s_lshr_b32 s{s_idx}, s2, 3"); k(f"s_and_b32 s{s_x}, s2, 7")
    k(f"s_mul_i32 s{s_cb}, s{s_idx}, 43"); k(f"s_lshr_b32 s{s_cb}, s{s_cb}, 7")
    k(f"s_mul_i32 s{s_t1}, s{s_cb}, 3"); k(f"s_sub_u32 s{s_r}, s{s_idx}, s{s_t1}")
    k(f"s_and_b32 s{s_r4}, s{s_idx}, 1"); k(f"s_lshr_b32 s{s_cb4}, s{s_idx}, 1")
    k(f"s_and_b32 s{s_w}, s{s_wid}, 3")
    k(f"s_cmp_lt_u32 s{s_wid}, 4")
    k(f"s_cbranch_scc1 {k.L('compute')}")
    vB2 = [4, 5, 6, 7]; vB4 = [8, 9, 10, 11]
    k(f"v_lshrrev_b32 v{vt[0]}, 3, v{v_lane}")
    k(f"v_and_b32 v{vt[1]}, 7, v{v_lane}")
    k(f"v_bfe_u32 v{vt[2]}, v{v_lane}, 4, 1")
    k(f"v_lshlrev_b32 v{vt[2]}, 2, v{vt[2]}")
    k(f"v_xor_b32 v{vt[1]}, v{vt[1]}, v{vt[2]}")
    k(f"v_mul_u32_u24 v{vt[0]}, 1280, v{vt[0]}")
    k(f"v_lshl_add_u32 v{vB2[0]}, v{vt[1]}, 4, v{vt[0]}")
    for ii in range(1, 4): k(f"v_add_u32 v{vB2[ii]}, {ii * (8 * 1280 - 1024)}, v{vB2[0]}")
    k(f"s_mul_i32 s{s_ob[5]}, s{s_w}, {32 * 1280}"); k(f"s_lshl_b32 s{s_t1}, s{s_cb}, 7"); k(f"s_add_u32 s{s_ob[5]}, s{s_ob[5]}, s{s_t1}")
    k(f"s_lshl_b32 s{s_m0}, s{s_w}, 12")
    k(f"v_lshrrev_b32 v{vt[0]}, 4, v{v_lane}")
    k(f"v_and_b32 v{vt[1]}, 15, v{v_lane}")
    k(f"v_lshlrev_b32 v{vt[2]}, 2, v{vt[0]}")
    k(f"v_xor_b32 v{vt[1]}, v{vt[1]}, v{vt[2]}")
    k(f"v_mul_u32_u24 v{vt[0]}, {F * 2}, v{vt[0]}")
    k(f"v_lshl_add_u32 v{vB4[0]}, v{vt[1]}, 4, v{vt[0]}")
    for ii in range(1, 4): k(f"v_add_u32 v{vB4[ii]}, {ii * (4 * F * 2 - 1024)}, v{vB4[0]}")
    k(f"s_mul_i32 s{s_ob[4]}, s{s_w}, {16 * F * 2}"); k(f"s_lshl_b32 s{s_t1}, s{s_cb4}, 8"); k(f"s_add_u32 s{s_ob[4]}, s{s_ob[4]}, s{s_t1}")
    k(f"s_add_u32 s{s_ob[4]}, s{s_ob[4]}, {192 * F * 2}")
    k(f"s_lshl_b32 s{s_t0}, s{s_cb4}, 10"); k(f"s_lshl_b32 s{s_t1}, s{s_w}, 8"); k(f"s_add_u32 s{s_t0}, s{s_t0}, s{s_t1}")
    k(f"s_add_u32 s{s_t0}, s{s_t0}, {C1_OFF}")
    k(f"v_lshlrev_b32 v{vt[3]}, 2, v{v_lane}")
    k(f"v_add_u32 v{vt[2]}, s{s_t1}, v{vt[3]}"); k(f"v_add_u32 v{vt[2]}, {SB}, v{vt[2]}")
    k("s_waitcnt lgkmcnt(0)")
    srd(k, sB4, 42, 43, D * F * 2); srd(k, sB5, 44, 45, D * F * 2); srd(k, sW, 40, 41, WS_END)
    q = []
    def issue(p, j):
        P = PH[p]; slot = (P["base"] + j) % NSLOT
        vB = vB4 if p == 4 else vB2; sB = {4: sB4, 5: sB5}[p]
        k(f"s_add_u32 m0, s{s_m0}, {slot * GB}")
        for ii in range(4):
            k(f"buffer_load_dwordx4 v{vB[ii]}, s[{sB}:{sB+3}], s{s_ob[p]} offen offset:{ii*1024} lds")
            q.append((p, j))
        k(f"s_add_u32 s{s_ob[p]}, s{s_ob[p]}, {P['GR'] * (F if p == 4 else D) * 2}")
    def need(item):
        if item in q:
            last = len(q) - 1 - q[::-1].index(item)
            k(f"s_waitcnt vmcnt({len(q) - 1 - last})")
            del q[:last + 1]
    def bar(item=None):
        if item is not None: need(item)
        k("s_barrier")
    vP = 16; s_q = 34
    k(f"s_lshl_b32 s{s_q}, s{s_idx}, 2"); k(f"s_add_u32 s{s_q}, s{s_q}, s{s_w}")
    k(f"s_lshl_b32 s{s_it}, s{s_x}, 12")
    k(f"v_lshl_add_u32 v{vP}, v{v_t}, 7, s{s_it}")
    k(f"v_lshl_add_u32 v{vP+1}, v{v_h}, 15, v{vP}")
    def apf(p):
        if ("apf%d" % p) not in X: return
        lab = k.L("apf%d_%d" % (p, k.uid)); k.uid += 1
        k(f"s_cmp_ge_u32 s{s_q}, {108 if p == 5 else 80}"); k(f"s_cbranch_scc1 {lab}")
        k(f"s_lshl_b32 s{s_it}, s{s_q}, {16 if p == 5 else 15}"); k(f"s_add_u32 s{s_it}, s{s_it}, {PH[p]['A_OFF']}")
        k(f"buffer_load_dword v{vP+2}, v{vP + (1 if p == 5 else 0)}, s[{sW}:{sW+3}], s{s_it} offen sc1")
        k.label(lab)
    k("s_waitcnt vmcnt(0)")
    bar()
    k(f"s_cmp_ge_u32 s{s_idx}, 30"); k(f"s_cbranch_scc1 L_exit")
    bar()
    apf(3)
    k(f"s_cmp_ge_u32 s{s_idx}, 28"); k(f"s_cbranch_scc1 {k.L('lskip4')}")
    E4 = int(os.environ.get("E4", "2")); E5 = int(os.environ.get("E5", "7")); N5 = int(os.environ.get("N5", "8"))
    nxt4 = 3
    for j in range(5):
        bar()
        if j >= E4 and nxt4 - 3 + 2 <= j:
            issue(4, nxt4); nxt4 += 1
    bar()
    k("s_waitcnt vmcnt(0)"); q[:] = []
    bar()
    apf(4)
    k(f"buffer_load_dword v{vt[1]}, v{vt[3]}, s[{sW}:{sW+3}], s{s_t0} offen sc1"); q.append(("c", 0))
    nxt5 = 0
    for j in range(10):
        bar((4, j))
        if j == 6:
            need(("c", 0))
            k(f"ds_write_b32 v{vt[2]}, v{vt[1]}")
            k(f"v_and_b32 v20, 7, v{v_lane}"); k(f"v_lshlrev_b32 v20, 7, v20"); k(f"v_add_u32 v20, {GD_OFF}, v20")
            k(f"buffer_load_dword v21, v20, s[{sW}:{sW+3}], 0 offen sc1"); q.append(("g", 0))
        if nxt4 < 10 and (nxt4 < 8 or nxt4 - 8 + 2 <= j):
            issue(4, nxt4); nxt4 += 1
        elif nxt4 == 10 and nxt5 + 2 + 2 <= j and j >= E5:
            issue(5, nxt5); nxt5 += 1
    assert nxt4 == 10
    while nxt5 < min(N5, 3): issue(5, nxt5); nxt5 += 1
    need(("g", 0))
    k(f"v_cmp_ne_u32 vcc, s{S_TAG}, v21")
    k(f"s_cbranch_vccz {k.L('gdok')}")
    poll(k, sW, [20], [21], s_it, "gd", 2)
    k.label(k.L("gdok"))
    k("s_waitcnt lgkmcnt(0)")
    bar()
    while nxt5 < N5: issue(5, nxt5); nxt5 += 1
    bar()
    k(f"s_branch {k.L('l5')}")
    k.label(k.L("lskip4"))
    for j in range(6): bar()
    for j in range(N5): issue(5, j)
    k.label(k.L("l5"))
    k("s_waitcnt vmcnt(0)"); q[:] = []
    bar()
    apf(5)
    for j in range(14):
        bar((5, j))
        if nxt5 < 14 and (nxt5 < 8 or nxt5 - 8 + 2 <= j):
            issue(5, nxt5); nxt5 += 1
    k("s_endpgm")

    k.label(k.L("compute"))
    vBr = [4, 5, 6, 7]; vA = 8; vS = 9; vO = 10; v_tag = 11
    RES = 16; BI = 32; ACC = 48
    DIST = 6; NFB = 8
    NFAS = {3: 32, 4: int(os.environ.get('NFA4', '24')), 5: int(os.environ.get('NFA5', '32'))}
    s_tok3 = 34; s_act = 25
    k(f"s_mul_i32 s{s_t0}, s{s_r}, 3"); k(f"s_add_u32 s{s_t0}, s{s_t0}, s{s_w}")
    k(f"s_cmp_eq_u32 s{s_w}, 3"); k(f"s_cselect_b32 s{s_act}, 8, s{s_t0}")
    k(f"s_lshl_b32 s{s_t1}, s{s_x}, 3"); k(f"s_add_u32 s{s_t0}, s{s_t0}, s{s_t1}"); k(f"s_lshl_b32 s{s_tok3}, s{s_t0}, 5")
    for c in range(4): k(f"s_mov_b32 s{48 + c}, {2*c*CH}")
    def nbar(n):
        for _ in range(n): k("s_barrier")
    def setup(p):
        if p == 4:
            k(f"s_lshl_b32 s{s_t0}, s{s_x}, 1"); k(f"s_add_u32 s{s_t0}, s{s_t0}, s{s_r4}"); k(f"s_lshl_b32 s{s_t0}, s{s_t0}, 2")
            k(f"s_add_u32 s{s_t0}, s{s_t0}, s{s_w}"); k(f"s_lshl_b32 s{s_t0}, s{s_t0}, 5")
            k(f"v_add_u32 v{vt[0]}, s{s_t0}, v{v_t}")
        else:
            k(f"v_add_u32 v{vt[0]}, s{s_tok3}, v{v_t}")
        k(f"v_lshlrev_b32 v{vA}, 15, v{v_h}")
        k(f"v_lshl_add_u32 v{vA}, v{vt[0]}, 4, v{vA}")
        k(f"s_mov_b32 s{s_offA}, {PH[p]['A_OFF']}")
    def setup2(p):
        late = []
        if p == 4:
            k(f"s_lshl_b32 s{s_t0}, s{s_cb4}, 19"); k(f"s_add_u32 s{s_t0}, s{s_t0}, {G_OFF}")
            k(f"v_add_u32 v{vO}, s{s_t0}, v{vA}")
            k(f"v_mul_u32_u24 v{vt[1]}, {5 * 16384}, v{v_h}")
            k(f"v_lshl_add_u32 v{vS}, v{vt[0]}, 3, v{vt[1]}")
            for i in range(5):
                late.append([f"s_mov_b32 s{s_t0}, {HS_OFF + i * 16384}",
                             f"buffer_load_dwordx2 {vr(BI + 2*i, 2)}, v{vS}, s[{sW}:{sW+3}], s{s_t0} offen sc1"])
            k(f"v_bfe_u32 v{vt[0]}, v{v_lane}, 2, 2")
            k(f"v_lshl_add_u32 v{vt[1]}, v{v_h}, 3, v{vt[0]}")
            k(f"v_lshlrev_b32 v{vt[1]}, 8, v{vt[1]}")
            k(f"v_lshl_add_u32 v{vt[0]}, v{vt[0]}, 6, v{vt[1]}")
        else:
            k(f"s_lshl_b32 s{s_t1}, s{s_cb}, 7")
            k(f"v_mul_u32_u24 v{vt[1]}, 1280, v{vt[0]}")
            k(f"v_lshl_add_u32 v{vt[1]}, v{v_h}, 4, v{vt[1]}")
            if p == 3:
                k(f"v_add_u32 v{vt[1]}, s{s_t1}, v{vt[1]}")
                k(f"s_lshl_b32 s{s_t0}, s{s_cb}, 18"); k(f"s_add_u32 s{s_t0}, s{s_t0}, {H_OFF}")
                k(f"v_add_u32 v{vO}, s{s_t0}, v{vA}")
                k(f"s_lshl_b32 s{s_t0}, s{s_cb}, 14"); k(f"s_add_u32 s{s_t0}, s{s_t0}, {HS_OFF}")
                k(f"v_lshl_add_u32 v{vS}, v{vt[0]}, 3, s{s_t0}")
                srd(k, sX, 38, 39, S * D * 2)
                for c in range(4):
                    late.append([f"buffer_load_dwordx4 {vr(RES + 4*c, 4)}, v{vt[1]}, s[{sX}:{sX+3}], 0 offen offset:{32*c}"])
            else:
                k(f"v_add_u32 v{vO}, s{s_t1}, v{vt[1]}")
                srd(k, sO, 56, 57, S * D * 2); srd(k, sBi, 46, 47, D * 2)
                k(f"v_lshlrev_b32 v{vt[2]}, 3, v{v_h}")
                for c in range(8):
                    k(f"buffer_load_dwordx2 {vr(BI + 2*c, 2)}, v{vt[2]}, s[{sBi}:{sBi+3}], s{s_t1} offen offset:{16*c}")
            k(f"v_bfe_u32 v{vt[0]}, v{v_lane}, 2, 2")
            k(f"v_lshl_add_u32 v{vt[0]}, v{v_h}, 3, v{vt[0]}")
            k(f"v_lshlrev_b32 v{vt[0]}, 7, v{vt[0]}")
            k(f"v_bfe_u32 v{vt[3]}, v{v_lane}, 3, 1")
            k(f"v_lshl_add_u32 v{vt[0]}, v{vt[3]}, 6, v{vt[0]}")
        k(f"v_bfe_u32 v{vt[3]}, v{v_lane}, 4, 1")
        k(f"v_lshl_add_u32 v{vt[0]}, v{vt[3]}, 5, v{vt[0]}")
        k(f"v_and_b32 v{vt[3]}, 3, v{v_lane}")
        k(f"v_lshl_add_u32 v{vBr[0]}, v{vt[3]}, 3, v{vt[0]}")
        for j in range(1, PH[p]["NT"]): k(f"v_xor_b32 v{vBr[j]}, {64 * j}, v{vBr[0]}")
        return late
    def aload(p, i, FA):
        NFA = NFAS[p]
        return [f"buffer_load_dwordx4 {vr(FA + (i % NFA) * 4, 4)}, v{vA}, s[{sW}:{sW+3}], s{s_offA} offen{ASC}",
                f"s_add_u32 s{s_offA}, s{s_offA}, {2 * CH}"]
    def gemm(p, late, pre_issued, mid={}):
        P = PH[p]; NT = P["NT"]; GS = P["GS"]; NKS = P["NKS"]
        FB = ACC + 16 * NT; FA = FB + NFB * 4
        NFA = NFAS[p]; LA = min(NFA - 2, int(os.environ.get("LA%d" % p, "14"))); LA0 = min(LA, int(os.environ.get("LA0", "10")))
        for i in range(LA0):
            for l in aload(p, i, FA): k(l)
        cur = [0]
        NM = NKS * NT; KSB = GB // GS
        def bread(m):
            ks, j = divmod(m, NT)
            G, qq = divmod(ks, GS)
            off = ((P["base"] + G) % NSLOT) * GB + qq * KSB
            r = []
            if qq == 0 and j == 0: r.append("s_barrier")
            base = (off // 65536) * 65536
            if base != cur[0]:
                for a in vBr[:NT]: r.append(f"v_add_u32 v{a}, {(base - cur[0]) & 0xffffffff:#x}, v{a}")
                cur[0] = base
            for e in range(2):
                r.append(f"ds_read_b64_tr_b16 {vr(FB + (m % NFB) * 4 + 2*e, 2)}, v{vBr[j]} offset:{off - base + e * (KSB // 4)}")
            return r
        if K.prof: k("s_waitcnt lgkmcnt(0)")
        for m in range(DIST):
            for l in bread(m): k(l)
        for i in range(LA0, LA):
            for l in aload(p, i, FA): k(l)
        vq = [("A", i) for i in range(LA)]
        for m in range(NM):
            ks, j = divmod(m, NT)
            nout = 2 * (min(NM, m + DIST) - m - 1)
            if j == 0:
                pos = vq.index(("A", ks))
                k(f"s_waitcnt vmcnt({len(vq) - 1 - pos}) lgkmcnt({nout})")
            else:
                k(f"s_waitcnt lgkmcnt({nout})")
            cc = vr(ACC + 16*j, 16) if (ks or p != 4) else "0"
            k(f"v_mfma_f32_32x32x16_bf16 {vr(ACC + 16*j, 16)}, {vr(FB + (m % NFB) * 4, 4)}, {vr(FA + (ks % NFA) * 4, 4)}, {cc}")
            if m + DIST < NM:
                for l in bread(m + DIST): k(l)
            if m in mid:
                for l in mid[m](len(vq) - 1 - max(i for i, e in enumerate(vq) if e[0] == "R") if any(e[0] == "R" for e in vq) else 0): k(l)
            if j == 0 and ks + LA < NKS:
                if "noal" not in X:
                    for l in aload(p, ks + LA, FA): k(l)
                vq.append(("A", ks + LA))
            if j == 0 and late and ks + LA + 4 >= NKS:
                for l in late.pop(0): k(l)
                vq.append(("R", 0))
        assert not late
        return FB, FA
    def sync(pdone, pwait, nflags, name, slp=0, extra=False):
        if pdone == 2 and "headmap" in X: publish(k, sW, pdone, 94, s_t0, vt[0], vt[1])
        else: publish(k, sSc, pdone, 94, s_t0, vt[0], vt[1], sPl)
        k(f"v_min_u32 v{vt[0]}, {nflags - 1}, v{v_lane}")
        k(f"s_lshl_b32 s{s_t0}, s{s_x}, 12"); k(f"s_add_u32 s{s_t0}, s{s_t0}, {FL_OFF + (pwait - 1) * 32768}")
        k(f"v_lshl_add_u32 v{vt[0]}, v{vt[0]}, 7, s{s_t0}")
        if extra:
            k(f"s_lshl_b32 s{s_t0}, s{s_cb4}, 11"); k(f"s_add_u32 s{s_t0}, s{s_t0}, {FL_OFF + 15 * 128}")
            k(f"v_writelane_b32 v{vt[0]}, s{s_t0}, 63")
        poll(k, sW, [vt[0]], [vt[1]], s_it, name, slp)

    setup(3)
    k("s_waitcnt lgkmcnt(0)")
    srd(k, sW, 40, 41, WS_END)
    dual_srd(k, sPl, sSc, 40)
    late = setup2(3)
    k(f"s_cmp_ge_u32 s{s_act}, 8"); k(f"s_cbranch_scc1 {k.L('nores')}")
    k("s_waitcnt vmcnt(0)")
    k("s_barrier")
    k(f"s_cmp_ge_u32 s{s_idx}, 30"); k(f"s_cbranch_scc1 L_exit")
    for ll in late:
        for l in ll: k(l)
    late = []
    def res_to_acc():
        for c in range(4):
            k(f"v_permlane32_swap_b32 v{RES + 4*c}, v{RES + 4*c + 2}")
            k(f"v_permlane32_swap_b32 v{RES + 4*c + 1}, v{RES + 4*c + 3}")
        for r in range(16):
            k(f"v_lshlrev_b32 v{ACC + 2*r}, 16, v{RES + r}")
            k(f"v_and_b32 v{ACC + 2*r + 1}, 0xffff0000, v{RES + r}")
    k("s_waitcnt vmcnt(0)")
    res_to_acc()
    k("s_barrier")
    k.stamp(7)
    FB, FA = gemm(3, late, False)
    if "st45" in X: k.stamp(2)
    k(f"v_mov_b32 v{vt[0]}, 0"); k(f"v_mov_b32 v{vt[1]}, 0"); k(f"s_mov_b32 s{s_t1}, 0x3f803f80")
    for c in range(4):
        for r in range(4*c, 4*c + 4):
            k(f"v_cvt_pk_bf16_f32 v{RES + r}, v{ACC + 2*r}, v{ACC + 2*r + 1}")
        k(f"v_permlane32_swap_b32 v{RES + 4*c}, v{RES + 4*c + 2}")
        k(f"v_permlane32_swap_b32 v{RES + 4*c + 1}, v{RES + 4*c + 3}")
        dstore(k, "buffer_store_dwordx4", vr(RES + 4*c, 4), vO, sPl, sSc, f"s{48 + c}")
    for r in range(16):
        k(f"v_dot2c_f32_bf16 v{vt[0]}, s{s_t1}, v{RES + r}")
        k(f"v_dot2c_f32_bf16 v{vt[1]}, v{RES + r}, v{RES + r}")
    k(f"v_mov_b32 v{vt[2]}, v{vt[0]}"); k(f"v_mov_b32 v{vt[3]}, v{vt[1]}")
    k(f"v_permlane32_swap_b32 v{vt[0]}, v{vt[2]}"); k(f"v_permlane32_swap_b32 v{vt[1]}, v{vt[3]}")
    k(f"v_add_f32 v{vt[0]}, v{vt[0]}, v{vt[2]}"); k(f"v_add_f32 v{vt[1]}, v{vt[1]}, v{vt[3]}")
    k("s_mov_b32 exec_hi, 0")
    dstore(k, "buffer_store_dwordx2", vr(vt[0], 2), vS, sPl, sSc, "0")
    k("s_mov_b32 exec_hi, -1")
    k(f"s_branch {k.L('pb3')}")
    k.label(k.L("nores"))
    k("s_waitcnt vmcnt(0)")
    k("s_barrier")
    k(f"s_cmp_lg_u32 s{s_w}, 3"); k(f"s_cbranch_scc1 {k.L('ns3')}")
    k(f"s_cmp_lt_u32 s{s_idx}, 30"); k(f"s_cbranch_scc1 {k.L('s3')}")
    publish(k, *((sW, 2, 94, s_t0, vt[0], vt[1]) if "headmap" in X else (sSc, 2, 94, s_t0, vt[0], vt[1], sPl)))
    k("s_endpgm")
    k.label(k.L("s3"))
    sync(2, 2, 32, "3")
    k(f"s_cmp_lg_u32 s{s_idx}, 0"); k(f"s_cbranch_scc1 {k.L('ns3')}")
    k(f"s_lshl_b32 s{s_t0}, s{s_x}, 7"); k(f"s_add_u32 s{s_t0}, s{s_t0}, {GD_OFF}")
    k(f"v_mov_b32 v{vt[0]}, 0"); k(f"v_mov_b32 v{vt[1]}, s{S_TAG}")
    k("s_mov_b64 exec, 1")
    k(f"buffer_store_dword v{vt[1]}, v{vt[0]}, s[{sW}:{sW+3}], s{s_t0} offen sc1")
    k("s_mov_b64 exec, -1")
    k.label(k.L("ns3"))
    k(f"s_cmp_ge_u32 s{s_idx}, 30"); k(f"s_cbranch_scc1 L_exit")
    nbar(6)
    k.label(k.L("pb3"))
    k(f"s_lshl_b32 s94, s{s_x}, 5"); k(f"s_add_u32 s94, s94, s{s_idx}")
    k(f"s_cmp_ge_u32 s{s_idx}, 28"); k(f"s_cbranch_scc1 {k.L('skip4')}")
    setup(4)
    late = setup2(4)
    k("s_waitcnt vmcnt(0)")
    k("s_barrier")
    if "st2" not in X: k.stamp(8)
    k(f"s_cmp_lg_u32 s{s_w}, 3"); k(f"s_cbranch_scc1 {k.L('ns4')}")
    sync(3, 3, 30, "4", extra=True)
    k.label(k.L("ns4"))
    k("s_barrier")
    if "st2" not in X: k.stamp(9)
    PS = BI; MR = BI + 12
    kk = K("tmp")
    for i in range(1, 5): kk(f"v_add_f32 v{PS}, v{PS}, v{PS + 2*i}"); kk(f"v_add_f32 v{PS+1}, v{PS+1}, v{PS + 2*i + 1}")
    kk(f"v_mov_b32 v{PS+2}, v{PS}"); kk(f"v_mov_b32 v{PS+3}, v{PS+1}")
    kk(f"v_permlane32_swap_b32 v{PS}, v{PS+2}"); kk(f"v_permlane32_swap_b32 v{PS+1}, v{PS+3}")
    kk(f"v_add_f32 v{PS}, v{PS}, v{PS+2}"); kk(f"v_add_f32 v{PS+1}, v{PS+1}, v{PS+3}")
    rowstat_math(kk, PS, PS + 1, MR, MR + 1, PS + 2, True)
    kk(f"v_lshlrev_b32 v{vt[0]}, 4, v{v_h}"); kk(f"v_add_u32 v{vt[0]}, {SB}, v{vt[0]}")
    st = kk.lines; mid = {}
    m0_ = 160 - (len(st) + 1) // 2 - 1
    for i in range(0, len(st), 2):
        mid[m0_ + i // 2] = (lambda n, i=i: ([f"s_waitcnt vmcnt({n})"] if i == 0 else []) + st[i:i + 2])
    FB, FA = gemm(4, late, False, mid)
    if "st45" in X: k.stamp(3)
    k("s_barrier")
    T = FB; CSB = [FB + 32, FB + 64]
    def csread(nt):
        for rq in range(8):
            k(f"ds_read_b128 {vr(CSB[nt % 2] + rq*4, 4)}, v{vt[0]} offset:{(rq // 4) * 512 + nt*128 + (rq % 4)*32}")
    csread(0)
    C0 = -2.0 * math.log2(math.e) * math.sqrt(2.0 / math.pi)
    k(f"s_mov_b32 s58, {f32(C0 * 0.044715)}"); k(f"s_mov_b32 s59, {f32(C0 * 0.044715)}")
    k(f"v_mov_b32 v{vt[2]}, {f32(C0)}"); k(f"v_mov_b32 v{vt[3]}, {f32(C0)}")
    for nt in range(4):
        if nt == 2:
            k(f"s_cmp_eq_u32 s{s_cb4}, 13"); k(f"s_cbranch_scc1 {k.L('done4')}")
            k(f"v_add_u32 v{vO}, {8 * CH}, v{vO}")
        k("s_waitcnt lgkmcnt(0)")
        if nt < 3: csread(nt + 1)
        a = ACC + 16 * nt; CS = CSB[nt % 2]; B1 = CS + 16
        for p in range(8):
            x = vr(a + 2*p, 2)
            k(f"v_pk_fma_f32 {x}, {vr(CS + 2*p, 2)}, {vr(MR,2)}, {x} op_sel_hi:[1,0,1]")
        for p in range(8):
            x = vr(a + 2*p, 2)
            k(f"v_pk_fma_f32 {x}, {x}, {vr(MR,2)}, {vr(B1 + 2*p, 2)} op_sel:[0,1,0] op_sel_hi:[1,1,1]")
        for p in range(8):
            x = vr(a + 2*p, 2); t = vr(T + 2*p, 2)
            k(f"v_pk_mul_f32 {t}, {x}, {x}")
        for p in range(8):
            t = vr(T + 2*p, 2)
            k(f"v_pk_fma_f32 {t}, {t}, s[58:59], {vr(vt[2],2)}")
        for p in range(8):
            x = vr(a + 2*p, 2); t = vr(T + 2*p, 2)
            k(f"v_pk_mul_f32 {t}, {t}, {x}")
        for r in range(16): k(f"v_exp_f32 v{T + r}, v{T + r}")
        for p in range(8):
            t = vr(T + 2*p, 2)
            k(f"v_pk_add_f32 {t}, {t}, 1.0 op_sel_hi:[1,0]")
        for r in range(16): k(f"v_rcp_f32 v{T + r}, v{T + r}")
        for p in range(8):
            x = vr(a + 2*p, 2); t = vr(T + 2*p, 2)
            k(f"v_pk_mul_f32 {x}, {x}, {t}")
        Pk = T + 16 + (nt % 2) * 8
        for p in range(8):
            k(f"v_cvt_pk_bf16_f32 v{Pk + p}, v{a + 2*p}, v{a + 2*p + 1}")
        for pq in range(2):
            b = Pk + 4*pq
            k(f"v_permlane32_swap_b32 v{b}, v{b+2}")
            k(f"v_permlane32_swap_b32 v{b+1}, v{b+3}")
        for pq in range(2):
            dstore(k, "buffer_store_dwordx4", vr(Pk + 4*pq,4), vO, sPl, sSc, f"s{48 + (nt % 2)*2 + pq}")
    k.label(k.L("done4"))
    k("s_waitcnt vmcnt(0) lgkmcnt(0)")
    k("s_barrier")
    k.stamp(10)
    k(f"s_cmp_lg_u32 s{s_w}, 3"); k(f"s_cbranch_scc1 {k.L('p5')}")
    sync(4, 4, 28, "5")
    k(f"s_branch {k.L('p5')}")
    k.label(k.L("skip4"))
    k("s_waitcnt vmcnt(0)")
    k("s_barrier")
    k(f"s_cmp_lg_u32 s{s_w}, 3"); k(f"s_cbranch_scc1 {k.L('p5')}")
    sync(3, 4, 28, "6", 8)
    k.label(k.L("p5"))
    k(f"s_cmp_ge_u32 s{s_act}, 8"); k(f"s_cbranch_scc1 {k.L('idle5')}")
    setup(5)
    late = setup2(5)
    res_to_acc()
    k("s_waitcnt vmcnt(0)")
    T = ACC + 64
    for r in range(16):
        k(f"v_lshlrev_b32 v{T + 2*r}, 16, v{BI + r}")
        k(f"v_and_b32 v{T + 2*r + 1}, 0xffff0000, v{BI + r}")
    for r in range(16):
        k(f"v_pk_add_f32 {vr(ACC + 2*r, 2)}, {vr(ACC + 2*r, 2)}, {vr(T + 2*r, 2)}")
    k("s_barrier")
    k.stamp(11)
    FB, FA = gemm(5, late, False)
    if "st45" in X: k.stamp(4)
    for c in range(4):
        for r in range(4*c, 4*c + 4):
            k(f"v_cvt_pk_bf16_f32 v{RES + r}, v{ACC + 2*r}, v{ACC + 2*r + 1}")
        k(f"v_permlane32_swap_b32 v{RES + 4*c}, v{RES + 4*c + 2}")
        k(f"v_permlane32_swap_b32 v{RES + 4*c + 1}, v{RES + 4*c + 3}")
        k(f"buffer_store_dwordx4 {vr(RES + 4*c, 4)}, v{vO}, s[{sO}:{sO+3}], 0 offen offset:{32*c}")
    if "g3" in X: gate(k, 70)
    k.dump(0, 14, s_wid)
    k("s_endpgm")
    k.label(k.L("idle5"))
    k("s_barrier")
    if "wbl2" in X:
        k(f"s_cmp_lg_u32 s{s_idx}, 0"); k("s_cbranch_scc1 L_exit")
        k("buffer_wbl2 sc1")
    k.label("L_exit")
    k("s_endpgm")

NAME = "sequential_preLN__mha_block__mixer_channel_mlp__prompt"
HEADER = open(f"cdna_kernels/{NAME}.s.ref").read().split("; Override")[0]

def build(path):
    k = K(NAME)
    phase1(k); phase2(k); phase345(k)
    lds = MRG + 8 * 3328
    t = HEADER
    if "aslist" in X:
        t += f"; @launch kernel={k.name}_kernel grid=(256,1,1) block=(512,1,1) lds={lds}\n"
    else:
        t += f"; @launch grid=(256,1,1) block=(512,1,1) lds={lds}\n"
    t += '.amdgcn_target "amdgcn-amd-amdhsa--gfx950"\n.text\n'
    t += kernel_text(k, 256)
    t += "L_code_end:\n"
    t += '.section .rodata,"a"\n'
    t += kernel_desc(k, 256, 100)
    open(path, "w").write(t)

if __name__ == "__main__":
    if len(sys.argv) > 2 and sys.argv[2] == "prof": K.prof = True
    build(sys.argv[1] if len(sys.argv) > 1 else f"cdna_kernels/{NAME}.s")
```

```python
import sys, math, struct, os
X = set(os.environ.get("EXP", "").split(","))
from asmlib import K, vr, sr, kernel_text, kernel_desc

S = 2048; D = 640; F = 1728; H = 32; DH = 20
QK_OFF = 0x0
V_OFF = 0x500000
QKV_END = 0x780000
O_OFF = 0x0
H_OFF = 0x780000
G_OFF = 0x0
HS_OFF = 0xA00000
C1_OFF = 0x1370000
ST_OFF = 0x1378000
FL_OFF = 0x1400000
FX_OFF = 0x1420000
TAG_OFF = 0x1428000
GD_OFF = 0x1428400
WS_END = 0x1428800
S_LOC = 95
LOCW = 131072 + 1024
S_TAG = 88; S_WID = 89
XR = 216; XRA = 215
MRG = 131072 + 2048
G_END = 0x1340000
CH = S * 16
EPS = 1e-5
GC0 = 2.0 * math.log2(math.e) * math.sqrt(2.0 / math.pi)
GS = (GC0 * 0.044715) ** (1.0 / 3.0)

def f32(x):
    return "0x%08x" % struct.unpack("<I", struct.pack("<f", x))[0]

def srd(k, d, lo, hi, size):
    k(f"s_mov_b32 s{d}, s{lo}")
    k(f"s_and_b32 s{d+1}, s{hi}, 0xffff")
    k(f"s_mov_b32 s{d+2}, {size:#x}")
    k(f"s_mov_b32 s{d+3}, 0x00020000")

def code_prefetch(k, first, sd, st, vaddr, vdst, v_lane, per=12):
    lab = k.L("pc%d" % k.uid); k.uid += 1
    k(f"s_getpc_b64 s[{sd}:{sd+1}]")
    k.label(lab)
    k(f"s_add_u32 s{sd}, s{sd}, {first}-{lab}")
    k(f"s_addc_u32 s{sd+1}, s{sd+1}, {'-1' if first == k.name + '_kernel' else '0'}")
    k(f"s_and_b32 s{sd+1}, s{sd+1}, 0xffff")
    k(f"s_mov_b32 s{sd+2}, L_code_end-{first}")
    k(f"s_mov_b32 s{sd+3}, 0x00020000")
    k(f"s_lshr_b32 s{st}, s2, 3"); k(f"s_mul_i32 s{st}, s{st}, {per * 128}")
    k(f"v_lshlrev_b32 v{vaddr}, 7, v{v_lane}")
    k(f"s_mov_b64 exec, {(1 << per) - 1:#x}")
    k(f"buffer_load_dword v{vdst}, v{vaddr}, s[{sd}:{sd+3}], s{st} offen")
    k("s_mov_b64 exec, -1")

def gate(k, us):
    lab = k.L("gate%d" % k.uid); k.uid += 1
    k("s_load_dwordx2 s[80:81], s[0:1], 80"); k("s_waitcnt lgkmcnt(0)")
    k(f"s_add_u32 s80, s80, {TAG_OFF + 4}"); k("s_addc_u32 s81, s81, 0")
    k("s_load_dword s82, s[80:81], 0"); k("s_waitcnt lgkmcnt(0)")
    k.label(lab)
    k("s_memrealtime s[84:85]"); k("s_waitcnt lgkmcnt(0)")
    k("s_sub_u32 s84, s84, s82")
    k(f"s_cmp_lt_u32 s84, {us * 100}"); k(f"s_cbranch_scc1 {lab}")

def rowstat_math(k, s_, q_, nm, rs, t, double):
    k(f"v_mul_f32 v{nm}, {f32(-1.0 / D)}, v{s_}")
    k(f"v_mul_f32 v{q_}, {f32(1.0 / D)}, v{q_}")
    k(f"v_fma_f32 v{q_}, -v{nm}, v{nm}, v{q_}")
    k(f"v_max_f32 v{q_}, 0, v{q_}")
    k(f"v_add_f32 v{t}, {f32(EPS)}, v{q_}")
    k(f"v_rsq_f32 v{rs}, v{t}")
    if double:
        k(f"v_mul_f32 v{t}, v{rs}, v{rs}")
        k(f"v_mul_f32 v{t}, v{t}, v{q_}")
        k(f"v_add_f32 v{t}, {f32(EPS)}, v{t}")
        k(f"v_rsq_f32 v{t}, v{t}")
        k(f"v_mul_f32 v{rs}, v{rs}, v{t}")


SLOW = []

def loc_vcc(k):
    if "noloc" in X: k(f"s_mov_b32 s{S_LOC}, 0")
    k(f"s_cmp_lg_u32 s{S_LOC}, 0"); k("s_cselect_b64 vcc, -1, 0")

def dstores(k, lines):
    n = len(SLOW)
    k(f"s_cbranch_vccz L_slow{n}")
    for l in lines: k(l)
    k.label(f"L_back{n}")
    SLOW.append([l + (" sc1" if l.startswith("buffer") else "") for l in lines])

def emit_slow(k):
    for n, lines in enumerate(SLOW):
        k.label(f"L_slow{n}")
        for l in lines: k(l)
        k(f"s_branch L_back{n}")

def publish(k, sW, ph, s_idx, s_t, v0_, v1_, local=False):
    k(f"s_lshl_b32 s{s_t}, s{s_idx}, 7"); k(f"s_add_u32 s{s_t}, s{s_t}, {FL_OFF + (ph - 1) * 32768}")
    k(f"v_mov_b32 v{v0_}, 0"); k(f"v_mov_b32 v{v1_}, s{S_TAG}")
    k("s_mov_b64 exec, 1")
    st = f"buffer_store_dword v{v1_}, v{v0_}, s[{sW}:{sW+3}], s{s_t} offen"
    if local:
        loc_vcc(k); dstores(k, [st])
    else:
        k(st + " sc1")
    k("s_mov_b64 exec, -1")

def poll(k, sW, vaddrs, vdsts, s_it, name, slp=0):
    if len(vaddrs) > 1 and "nopp" not in X:
        k(f"buffer_load_dword v{vdsts[1]}, v{vaddrs[1]}, s[{sW}:{sW+3}], 0 offen sc1")
    if "nopp" not in X:
        ND = int(os.environ.get("PPD", "0")); R = [248 + i for i in range(ND + 1)]
        gap = slp or int(os.environ.get("PPS", "1"))
        k(f"s_mov_b32 s{s_it}, 0")
        k("s_mov_b64 s[90:91], -1")
        for i in range(ND):
            k(f"buffer_load_dword v{R[i]}, v{vaddrs[0]}, s[{sW}:{sW+3}], 0 offen sc1")
            k(f"s_sleep {gap}")
        k.label(k.L("poll" + name))
        for i in range(ND + 1):
            k(f"buffer_load_dword v{R[(i + ND) % (ND + 1)]}, v{vaddrs[0]}, s[{sW}:{sW+3}], 0 offen sc1")
            k(f"s_waitcnt vmcnt({ND})")
            k(f"v_cmp_ne_u32 vcc, s{S_TAG}, v{R[i]}")
            k("s_and_b64 exec, exec, vcc")
            k(f"s_cbranch_execz {k.L('go' + name)}")
            k(f"s_sleep {gap}")
        k(f"s_add_u32 s{s_it}, s{s_it}, 1")
        k(f"s_cmp_lt_u32 s{s_it}, 0x4000")
        k(f"s_cbranch_scc1 {k.L('poll' + name)}")
        k.label(k.L("go" + name))
        k("s_mov_b64 exec, -1")
        if len(vaddrs) == 1: return
        vaddrs = vaddrs[1:]; vdsts = vdsts[1:]; name += "b"
        k(f"v_cmp_ne_u32 vcc, s{S_TAG}, v{vdsts[0]}")
        k(f"s_cbranch_vccz {k.L('go' + name)}")
    k(f"s_mov_b32 s{s_it}, 0")
    k.label(k.L("poll" + name))
    for va, vd in zip(vaddrs, vdsts):
        k(f"buffer_load_dword v{vd}, v{va}, s[{sW}:{sW+3}], 0 offen sc1")
    k(f"s_add_u32 s{s_it}, s{s_it}, 1")
    k("s_waitcnt vmcnt(0)")
    k(f"v_cmp_ne_u32 vcc, s{S_TAG}, v{vdsts[0]}")
    for vd in vdsts[1:]:
        k(f"v_cmp_ne_u32 s[90:91], s{S_TAG}, v{vd}")
        k("s_or_b64 vcc, vcc, s[90:91]")
    k(f"s_cbranch_vccz {k.L('go' + name)}")
    if slp: k(f"s_sleep {slp}")
    k(f"s_cmp_lt_u32 s{s_it}, 0x8000")
    k(f"s_cbranch_scc1 {k.L('poll' + name)}")
    k.label(k.L("go" + name))

def phase1(k):
    k.pref = "p1"
    kind = "qkv"; qkv = True
    NB = 1920 if qkv else F
    BROW = NB * 2
    NS = 4; SLOT = 32768; NST = 10
    SB = NS * SLOT
    SL = SB + 2048
    sA, sB, sW, sBi = 4, 8, 12, 16
    s_mb, s_nb, s_w = 20, 21, 22
    s_wm, s_wn = 23, 24
    s_offA, s_offB, s_m0, s_it, s_delta, s_t0, s_t1, s_slot = 25, 26, 27, 28, 29, 30, 31, 32
    s_ones = 33
    s_wid = S_WID
    v_lane, v_t, v_h = 1, 2, 3
    vAd = [4, 5, 6, 7]; vBd = [8, 9, 10, 11]
    vBr = [12, 13]
    v_b1 = 17
    vt = [18, 19, 20, 21, 22, 23]
    vAr = [24, 25, 26, 27]
    FA = [[32 + 16 * i, 36 + 16 * i] for i in range(4)]
    FB = [[40 + 16 * i, 44 + 16 * i] for i in range(4)]
    ACC = 96
    def acc(mt, nt): return ACC + (mt * 2 + nt) * 16
    EP = 160
    kidx = 0 if qkv else 3

    if "early" in X: k("s_memrealtime s[86:87]")
    k.stamp(0); k.stamp(1, True)
    k(f"s_cmp_ge_u32 s2, 256"); k(f"s_cbranch_scc1 L_exit")
    if qkv:
        k("s_load_dwordx4 s[36:39], s[0:1], 0")
        k("s_load_dwordx4 s[40:43], s[0:1], 72")
        WSL = 42
    else:
        k("s_load_dwordx2 s[36:37], s[0:1], 32")
        k("s_load_dwordx2 s[40:41], s[0:1], 80")
        WSL = 40
    k(f"s_and_b32 s{s_t0}, s2, 7"); k(f"s_lshr_b32 s{s_t1}, s2, 3")
    if qkv:
        k(f"s_lshr_b32 s{s_mb}, s{s_t0}, 1"); k(f"s_lshl_b32 s{s_mb}, s{s_mb}, 2")
        k(f"s_and_b32 s{s_nb}, s{s_t1}, 3"); k(f"s_add_u32 s{s_mb}, s{s_mb}, s{s_nb}")
        k(f"s_and_b32 s{s_nb}, s{s_t0}, 1"); k(f"s_lshl_b32 s{s_nb}, s{s_nb}, 3")
        k(f"s_lshr_b32 s{s_t1}, s{s_t1}, 2"); k(f"s_add_u32 s{s_nb}, s{s_nb}, s{s_t1}")
    else:
        k(f"s_lshl_b32 s{s_mb}, s{s_t0}, 1"); k(f"s_and_b32 s{s_nb}, s{s_t1}, 1"); k(f"s_add_u32 s{s_mb}, s{s_mb}, s{s_nb}")
        k(f"s_lshr_b32 s{s_nb}, s{s_t1}, 1")
    k(f"v_lshrrev_b32 v{vt[0]}, 6, v0")
    k(f"v_and_b32 v{v_lane}, 63, v0")
    k(f"v_readfirstlane_b32 s{s_wid}, v{vt[0]}")
    k(f"v_and_b32 v{v_t}, 31, v0")
    k(f"v_bfe_u32 v{v_h}, v0, 5, 1")
    k(f"s_and_b32 s{s_w}, s{s_wid}, 3")
    k(f"s_cmp_lt_u32 s{s_wid}, 4")
    k(f"s_cbranch_scc1 {k.L('compute')}")
    if qkv:
        k(f"s_cmp_ge_u32 s{s_nb}, 15"); k(f"s_cbranch_scc1 {k.L('auxl')}")
        k(f"v_lshrrev_b32 v{vt[0]}, 3, v{v_lane}")
        k(f"v_and_b32 v{vt[1]}, 7, v{v_lane}")
        k(f"v_lshrrev_b32 v{vt[2]}, 1, v{vt[0]}")
        k(f"v_xor_b32 v{vt[2]}, v{vt[2]}, v{vt[1]}")
        k(f"v_xor_b32 v{vt[3]}, 4, v{vt[2]}")
        k(f"s_lshl_b32 s{s_t0}, s{s_mb}, 7"); k(f"s_lshl_b32 s{s_t1}, s{s_w}, 5"); k(f"s_add_u32 s{s_t0}, s{s_t0}, s{s_t1}")
        k(f"v_add_u32 v{vt[0]}, s{s_t0}, v{vt[0]}")
        k(f"v_mul_u32_u24 v{vt[0]}, 1280, v{vt[0]}")
        for ii in range(4):
            k(f"v_lshl_add_u32 v{vAd[ii]}, v{vt[2 + (ii & 1)]}, 4, v{vt[0]}")
            if ii: k(f"v_add_u32 v{vAd[ii]}, {ii * (8 * 1280 - 1024)}, v{vAd[ii]}")
        stepA = 128
    else:
        k(f"s_lshl_b32 s{s_t0}, s{s_mb}, 11")
        k(f"s_mul_i32 s{s_t1}, s{s_w}, {2 * CH}")
        k(f"s_add_u32 s{s_t0}, s{s_t0}, s{s_t1}")
        k(f"s_add_u32 s{s_t0}, s{s_t0}, {H_OFF}")
        k(f"v_lshl_add_u32 v{vAd[0]}, v{v_lane}, 4, s{s_t0}")
        k(f"v_mov_b32 v{vAd[1]}, v{vAd[0]}")
        k(f"v_add_u32 v{vAd[2]}, {CH - 2048}, v{vAd[0]}")
        k(f"v_add_u32 v{vAd[3]}, {CH - 2048}, v{vAd[0]}")
        stepA = 8 * CH
    k(f"v_lshrrev_b32 v{vt[0]}, 4, v{v_lane}")
    k(f"v_and_b32 v{vt[1]}, 15, v{v_lane}")
    k(f"v_lshlrev_b32 v{vt[2]}, 2, v{vt[0]}")
    k(f"v_xor_b32 v{vt[1]}, v{vt[1]}, v{vt[2]}")
    k(f"s_lshl_b32 s{s_t0}, s{s_w}, 4")
    k(f"v_add_u32 v{vt[0]}, s{s_t0}, v{vt[0]}")
    k(f"v_mul_u32_u24 v{vt[0]}, {BROW}, v{vt[0]}")
    k(f"v_lshl_add_u32 v{vt[0]}, v{vt[1]}, 4, v{vt[0]}")
    k(f"s_lshl_b32 s{s_t0}, s{s_nb}, 8")
    k(f"v_add_u32 v{vBd[0]}, s{s_t0}, v{vt[0]}")
    for ii in range(1, 4):
        k(f"v_add_u32 v{vBd[ii]}, {ii * (4 * BROW - 1024)}, v{vBd[0]}")
    stepB = 64 * BROW
    ROT = os.environ.get("ROT", "2x1")
    if ROT:
        ncls, stp = (int(v) for v in ROT.split("x"))
        k(f"s_add_u32 s{s_slot}, s{s_mb}, s{s_nb}"); k(f"s_and_b32 s{s_slot}, s{s_slot}, {ncls - 1}"); k(f"s_mul_i32 s{s_slot}, s{s_slot}, {stp}")
        k(f"s_mul_i32 s{s_offA}, s{s_slot}, {stepA}"); k(f"s_mul_i32 s{s_offB}, s{s_slot}, {stepB}")
    else:
        k(f"s_mov_b32 s{s_offA}, 0"); k(f"s_mov_b32 s{s_offB}, 0")
    k(f"s_lshl_b32 s{s_m0}, s{s_w}, 12")
    k(f"s_mov_b32 s{s_it}, 0")
    k("s_waitcnt lgkmcnt(0)")
    if qkv:
        srd(k, sA, 36, 37, S * D * 2); srd(k, sB, 38, 39, D * NB * 2)
    else:
        srd(k, sB, 36, 37, D * NB * 2); srd(k, sW, WSL, WSL + 1, WS_END)
        sA = sW
    def dma_stage():
        r = []
        r.append(f"s_mov_b32 m0, s{s_m0}")
        for ii in range(4):
            r.append(f"buffer_load_dwordx4 v{vAd[ii]}, s[{sA}:{sA+3}], s{s_offA} offen offset:{ii*1024} lds")
        r.append(f"s_add_u32 m0, s{s_m0}, 16384")
        for ii in range(4):
            r.append(f"buffer_load_dwordx4 v{vBd[ii]}, s[{sB}:{sB+3}], s{s_offB} offen offset:{ii*1024} lds")
        r.append(f"s_add_u32 s{s_offA}, s{s_offA}, {stepA}")
        r.append(f"s_add_u32 s{s_offB}, s{s_offB}, {stepB}")
        if ROT:
            r.append(f"s_cmp_lg_u32 s{s_offA}, {10 * stepA}")
            r.append(f"s_cselect_b32 s{s_offA}, s{s_offA}, 0")
            r.append(f"s_cselect_b32 s{s_offB}, s{s_offB}, 0")
        r.append(f"s_add_u32 s{s_m0}, s{s_m0}, {SLOT}")
        r.append(f"s_and_b32 s{s_m0}, s{s_m0}, {NS * SLOT - 1}")
        return r
    def lstep(n=8, dma=True):
        if dma:
            for l in dma_stage(): k(l)
        k(f"s_waitcnt vmcnt({n})")
        k("s_barrier")
    def lloop(tag, n):
        k(f"s_mov_b32 s{s_it}, 0")
        k.label(k.L("lloop" + tag))
        lstep()
        k(f"s_add_u32 s{s_it}, s{s_it}, 1")
        k(f"s_cmp_lt_u32 s{s_it}, {n}")
        k(f"s_cbranch_scc1 {k.L('lloop' + tag)}")
    XS = 32
    v_tag = 16
    RG_OFF = ST_OFF; CG_OFF = ST_OFF + 32768
    def slice_addr_rows():
        k(f"v_lshrrev_b32 v{vt[4]}, 4, v{v_lane}")
        k(f"v_and_b32 v{vt[5]}, 15, v{v_lane}")
        k(f"v_mul_u32_u24 v{vt[4]}, 1280, v{vt[4]}")
        k(f"v_lshl_add_u32 v{vt[4]}, v{vt[5]}, 4, v{vt[4]}")
        k(f"s_lshl_b32 s{s_t0}, s{s_mb}, 5"); k(f"s_lshl_b32 s{s_t1}, s{s_nb}, 1"); k(f"s_add_u32 s{s_t0}, s{s_t0}, s{s_t1}")
        k(f"s_add_u32 s{s_delta}, s{s_t0}, s{s_w}"); k(f"s_mul_i32 s{s_t0}, s{s_delta}, {4 * 1280}")
    def slice_load_rows():
        for i in range(5):
            k(f"buffer_load_dwordx4 {vr(XS + 4*i, 4)}, v{vt[4]}, s[{sA}:{sA+3}], s{s_t0} offen offset:{256 * i}")
    def tag_load():
        k(f"v_mov_b32 v15, 0")
        k(f"buffer_load_dword v{v_tag}, v15, s[{sBi}:{sBi+3}], 0 offen sc1")
    def tag_wait(tag):
        k(f"s_mov_b32 s{s_it}, 0")
        k.label(k.L("tw" + tag))
        k(f"v_cmp_eq_u32 vcc, 0, v{v_tag}")
        k(f"s_cbranch_vccz {k.L('tr' + tag)}")
        k("s_sleep 2")
        k(f"buffer_load_dword v{v_tag}, v15, s[{sBi}:{sBi+3}], 0 offen sc1")
        k(f"s_add_u32 s{s_it}, s{s_it}, 1")
        k("s_waitcnt vmcnt(0)")
        k(f"s_cmp_lt_u32 s{s_it}, 0x4000")
        k(f"s_cbranch_scc1 {k.L('tw' + tag)}")
        k.label(k.L("tr" + tag))
    def slice_rows(part):
        if part == 0:
            k("v_mov_b32 v56, 0"); k("v_mov_b32 v57, 0"); k("v_mov_b32 v58, 0"); k("v_mov_b32 v59, 0")
        for r in (range(13) if part == 0 else range(13, 20)):
            k(f"v_lshlrev_b32 v52, 16, v{XS + r}")
            k(f"v_and_b32 v53, 0xffff0000, v{XS + r}")
            k("v_add_f32 v56, v56, v52"); k("v_fmac_f32 v57, v52, v52")
            k("v_add_f32 v58, v58, v53"); k("v_fmac_f32 v59, v53, v53")
        if part == 0: return
        k("v_add_f32 v56, v56, v58"); k("v_add_f32 v57, v57, v59")
        for sh in (8, 4, 2, 1):
            k(f"v_add_f32_dpp v56, v56, v56 row_ror:{sh} row_mask:0xf bank_mask:0xf")
            k(f"v_add_f32_dpp v57, v57, v57 row_ror:{sh} row_mask:0xf bank_mask:0xf")
        rowstat_math(k, 56, 57, 60, 62, 52, False)
        k(f"v_mov_b32 v61, v{v_tag}"); k(f"v_mov_b32 v63, v{v_tag}")
        k(f"s_lshl_b32 s{s_t0}, s{s_delta}, 6"); k(f"s_add_u32 s{s_t0}, s{s_t0}, {RG_OFF}")
        k("s_mov_b32 exec_lo, 0x00010001"); k("s_mov_b32 exec_hi, 0x00010001")
        k(f"buffer_store_dwordx4 v[60:63], v{v_lane}, s[{sW}:{sW+3}], s{s_t0} offen sc1")
        k("s_mov_b64 exec, -1")
    def slice_cols(part):
        if part == 0:
            for r in range(4):
                k(f"v_lshlrev_b32 v{56 + 2*r}, 16, v{XS + r}"); k(f"v_and_b32 v{57 + 2*r}, 0xffff0000, v{XS + r}")
            for i in range(1, 5):
                for r in range(4):
                    k(f"v_lshlrev_b32 v52, 16, v{XS + 4*i + r}"); k(f"v_and_b32 v53, 0xffff0000, v{XS + 4*i + r}")
                    k(f"v_add_f32 v{56 + 2*r}, v{56 + 2*r}, v52"); k(f"v_add_f32 v{57 + 2*r}, v{57 + 2*r}, v53")
            return
        for r in range(4): k(f"v_permlane32_swap_b32 v{56 + r}, v{60 + r}")
        for r in range(4): k(f"v_add_f32 v{56 + r}, v{56 + r}, v{60 + r}")
        for r in range(2): k(f"v_permlane16_swap_b32 v{56 + r}, v{58 + r}")
        k("v_add_f32 v56, v56, v58"); k("v_add_f32 v58, v57, v59")
        k(f"v_mov_b32 v57, v{v_tag}"); k(f"v_mov_b32 v59, v{v_tag}")
        k(f"v_and_b32 v{vt[4]}, 48, v{v_lane}")
        k(f"v_lshl_add_u32 v{vt[4]}, v{vt[5]}, 6, v{vt[4]}")
        k(f"s_mul_i32 s{s_t0}, s{s_delta}, 15360"); k(f"s_lshl_b32 s{s_t1}, s{s_nb}, 10"); k(f"s_add_u32 s{s_t0}, s{s_t0}, s{s_t1}")
        k(f"s_add_u32 s{s_t0}, s{s_t0}, {CG_OFF}")
        k(f"buffer_store_dwordx4 v[56:59], v{vt[4]}, s[{sW}:{sW+3}], s{s_t0} offen sc1")
    def slice_part(part):
        k(f"s_cmp_ge_u32 s{s_w}, 2"); k(f"s_cbranch_scc1 {k.L('slc%d' % part)}")
        slice_rows(part)
        k(f"s_branch {k.L('sld%d' % part)}")
        k.label(k.L("slc%d" % part))
        slice_cols(part)
        k.label(k.L("sld%d" % part))
    SLO = int(os.environ.get("SLO", "2"))
    for _ in range(SLO):
        for l in dma_stage(): k(l)
    if qkv:
        k(f"s_cmp_ge_u32 s{s_w}, 2"); k(f"s_cbranch_scc1 {k.L('slc')}")
        slice_addr_rows(); slice_load_rows()
        k(f"s_branch {k.L('sll')}")
        k.label(k.L("slc"))
        k(f"v_lshrrev_b32 v{vt[4]}, 4, v{v_lane}")
        k(f"v_and_b32 v{vt[5]}, 15, v{v_lane}")
        k(f"v_mul_u32_u24 v{vt[4]}, {BROW}, v{vt[4]}")
        k(f"v_lshl_add_u32 v{vt[4]}, v{vt[5]}, 4, v{vt[4]}")
        k(f"s_lshl_b32 s{s_delta}, s{s_mb}, 1"); k(f"s_add_u32 s{s_delta}, s{s_delta}, s{s_w}"); k(f"s_sub_u32 s{s_delta}, s{s_delta}, 2")
        k(f"s_mul_i32 s{s_t0}, s{s_delta}, {20 * BROW}"); k(f"s_lshl_b32 s{s_t1}, s{s_nb}, 8"); k(f"s_add_u32 s{s_t0}, s{s_t0}, s{s_t1}")
        for i in range(5):
            k(f"buffer_load_dwordx4 {vr(XS + 4*i, 4)}, v{vt[4]}, s[{sB}:{sB+3}], s{s_t0} offen")
            k(f"s_add_u32 s{s_t0}, s{s_t0}, {4 * BROW}")
        k.label(k.L("sll"))
        for _ in range(2 - SLO):
            for l in dma_stage(): k(l)
        srd(k, sW, WSL, WSL + 1, WS_END); srd(k, sBi, 40, 41, 256)
        lstep(13 if SLO else 8, False)
        tag_load()
        lstep(14 if SLO == 2 else 9)
        lstep(8)
        for l in dma_stage(): k(l)
        slice_part(0)
        lstep(8, False)
        for l in dma_stage(): k(l)
        tag_wait("a")
        slice_part(1)
        lstep(9, False)
        lstep(9)
        lstep(); lstep()
        for l in dma_stage(): k(l)
        k(f"s_lshl_b32 s{s_t0}, s{s_mb}, 11"); k(f"s_lshl_b32 s{s_t1}, s{s_w}, 9"); k(f"s_add_u32 s{s_t0}, s{s_t0}, s{s_t1}")
        k(f"s_add_u32 s{s_offA}, s{s_t0}, {RG_OFF}")
        k(f"v_lshlrev_b32 v{vt[0]}, 4, v{v_t}")
        k(f"v_lshrrev_b32 v{vt[1]}, 4, v{v_lane}")
        k(f"v_mul_u32_u24 v{vt[1]}, {8 * 15360}, v{vt[1]}")
        k(f"v_lshl_add_u32 v{vt[1]}, v{vt[5]}, 4, v{vt[1]}")
        k(f"s_lshl_b32 s{s_t0}, s{s_nb}, 10"); k(f"s_lshl_b32 s{s_t1}, s{s_w}, 8"); k(f"s_add_u32 s{s_t0}, s{s_t0}, s{s_t1}")
        k(f"s_add_u32 s{s_offB}, s{s_t0}, {CG_OFF}")
        def gather():
            k(f"buffer_load_dwordx4 v[64:67], v{vt[0]}, s[{sW}:{sW+3}], s{s_offA} offen sc1")
            k(f"s_mov_b32 s{s_t0}, s{s_offB}")
            for i in range(8):
                k(f"buffer_load_dwordx4 {vr(32 + 4*i, 4)}, v{vt[1]}, s[{sW}:{sW+3}], s{s_t0} offen sc1")
                k(f"s_add_u32 s{s_t0}, s{s_t0}, 15360")
        gather()
        lstep(17, False)
        lstep(9, False)
        k(f"s_mov_b32 s{s_it}, 0")
        k.label(k.L("poll"))
        k("s_waitcnt vmcnt(0)")
        k(f"v_and_b32 v68, v65, v67"); k(f"v_or_b32 v69, v65, v67")
        for i in range(16):
            k(f"v_and_b32 v68, v68, v{33 + 2*i}"); k(f"v_or_b32 v69, v69, v{33 + 2*i}")
        k(f"v_xor_b32 v68, v68, v{v_tag}"); k(f"v_xor_b32 v69, v69, v{v_tag}"); k("v_or_b32 v68, v68, v69")
        k(f"v_cmp_ne_u32 vcc, 0, v68")
        k(f"s_cbranch_vccz {k.L('ready')}")
        k("s_sleep 2")
        gather()
        k(f"s_add_u32 s{s_it}, s{s_it}, 1")
        k(f"s_cmp_lt_u32 s{s_it}, 0x2000")
        k(f"s_cbranch_scc1 {k.L('poll')}")
        k("s_waitcnt vmcnt(0)")
        k.label(k.L("ready"))
        k("v_add_f32 v33, v34, v38")
        for i in range(1, 8):
            k(f"v_add_f32 v32, v32, v{32 + 4*i}")
            if i > 1: k(f"v_add_f32 v33, v33, v{34 + 4*i}")
        k(f"s_cmp_lt_u32 s{s_nb}, 5")
        k(f"s_cselect_b32 s{s_t0}, {f32(math.log2(math.e) / math.sqrt(DH))}, 1.0")
        k(f"v_mul_f32 v65, s{s_t0}, v66")
        k(f"s_lshl_b32 s{s_t1}, s{s_w}, 7"); k(f"s_add_u32 s{s_t1}, s{s_t1}, {SB}")
        k(f"v_lshl_add_u32 v{vt[0]}, v{v_t}, 2, s{s_t1}")
        k(f"ds_write2_b32 v{vt[0]}, v64, v65 offset0:0 offset1:128")
        for sw in ("v_permlane32_swap_b32", "v_permlane16_swap_b32"):
            k("v_mov_b32 v34, v32"); k("v_mov_b32 v35, v33")
            k(f"{sw} v32, v34"); k(f"{sw} v33, v35")
            k("v_add_f32 v32, v32, v34"); k("v_add_f32 v33, v33, v35")
        k(f"v_lshl_add_u32 v{vt[1]}, v{vt[5]}, 3, s{s_t1}")
        k(f"ds_write_b64 v{vt[1]}, v[32:33] offset:1024")
        k("s_waitcnt lgkmcnt(0)")
        k("s_barrier")
    else:
        lloop("", 8)
        for l in dma_stage(): k(l)
        PS = 32
        k(f"s_lshl_b32 s{s_t0}, s{s_mb}, 7"); k(f"s_lshl_b32 s{s_t1}, s{s_w}, 5"); k(f"s_add_u32 s{s_t0}, s{s_t0}, s{s_t1}")
        k(f"v_add_lshl_u32 v{vt[2]}, v{v_t}, s{s_t0}, 3")
        k(f"v_mul_u32_u24 v{vt[1]}, {5 * 16384}, v{v_h}")
        k(f"v_add_u32 v{vt[2]}, v{vt[2]}, v{vt[1]}")
        for i in range(5):
            k(f"s_mov_b32 s{s_t0}, {HS_OFF + i * 16384}")
            k(f"buffer_load_dwordx2 {vr(PS + 2*i, 2)}, v{vt[2]}, s[{sW}:{sW+3}], s{s_t0} offen")
        k(f"s_lshl_b32 s{s_t0}, s{s_nb}, 10"); k(f"s_lshl_b32 s{s_t1}, s{s_w}, 8"); k(f"s_add_u32 s{s_t0}, s{s_t0}, s{s_t1}")
        k(f"s_add_u32 s{s_t0}, s{s_t0}, {C1_OFF}")
        k(f"s_add_u32 m0, s{s_t1}, {SB + 1024}")
        k(f"v_lshlrev_b32 v{vt[3]}, 2, v{v_lane}")
        k(f"buffer_load_dword v{vt[3]}, s[{sW}:{sW+3}], s{s_t0} offen lds")
        lstep(14, False)
        lstep(6, False)
        k("s_waitcnt vmcnt(0)")
        for i in range(1, 5):
            k(f"v_add_f32 v{PS}, v{PS}, v{PS + 2*i}"); k(f"v_add_f32 v{PS+1}, v{PS+1}, v{PS + 2*i + 1}")
        k(f"v_mov_b32 v{PS+2}, v{PS}"); k(f"v_mov_b32 v{PS+3}, v{PS+1}")
        k(f"v_permlane32_swap_b32 v{PS}, v{PS+2}"); k(f"v_permlane32_swap_b32 v{PS+1}, v{PS+3}")
        k(f"v_add_f32 v{PS}, v{PS}, v{PS+2}"); k(f"v_add_f32 v{PS+1}, v{PS+1}, v{PS+3}")
        rowstat_math(k, PS, PS + 1, 44, 45, PS + 2, True)
        k(f"s_lshl_b32 s{s_t1}, s{s_w}, 7"); k(f"s_add_u32 s{s_t1}, s{s_t1}, {SB}")
        k(f"v_lshl_add_u32 v{vt[3]}, v{v_t}, 2, s{s_t1}")
        k(f"ds_write_b32 v{vt[3]}, v44")
        k(f"ds_write_b32 v{vt[3]}, v45 offset:512")
        k("s_waitcnt lgkmcnt(0)")
        k("s_barrier")
    if not qkv: k.stamp(3); k.stamp(4); k.stamp(5); k.stamp(6)
    k(f"s_branch {k.L('end')}")
    k.label(k.L("compute"))
    if qkv:
        k(f"s_or_b32 s{s_t0}, s2, s{s_w}")
        k(f"s_cbranch_scc1 {k.L('notag')}")
        k("s_memrealtime s[44:45]")
        k("s_waitcnt lgkmcnt(0)")
        srd(k, sBi, 40, 41, 256)
        if "gate" in X: k(f"v_mov_b32 v{vt[2]}, s{86 if 'early' in X else 44}")
        k("s_mul_i32 s44, s44, 0x9e3779b1"); k("s_or_b32 s44, s44, 1")
        k(f"v_mov_b32 v{vt[0]}, 0"); k(f"v_mov_b32 v{vt[1]}, s44")
        k("s_mov_b64 exec, 1")
        k(f"buffer_store_dword v{vt[1]}, v{vt[0]}, s[{sBi}:{sBi+3}], 0 offen sc1")
        srd(k, sW, WSL, WSL + 1, WS_END)
        k(f"s_mov_b32 s{s_t0}, {TAG_OFF}")
        k(f"buffer_store_dword v{vt[1]}, v{vt[0]}, s[{sW}:{sW+3}], s{s_t0} offen sc1")
        if "gate" in X: k(f"buffer_store_dword v{vt[2]}, v{vt[0]}, s[{sW}:{sW+3}], s{s_t0} offen offset:4 sc1")
        k("s_mov_b64 exec, -1")
        k.label(k.L("notag"))
        if "nocpf" not in X:
            k(f"s_cmp_lg_u32 s{s_w}, 1"); k(f"s_cbranch_scc1 {k.L('nocpf')}")
            code_prefetch(k, k.name + "_kernel", sB, s_t0, vt[0], 14, v_lane)
            k.label(k.L("nocpf"))
        k(f"s_cmp_ge_u32 s{s_nb}, 15"); k(f"s_cbranch_scc1 {k.L('aux')}")
    k(f"s_lshr_b32 s{s_wm}, s{s_w}, 1"); k(f"s_and_b32 s{s_wn}, s{s_w}, 1")
    k(f"s_mov_b32 s34, {SLOT}")
    if qkv:
        k(f"v_bfe_u32 v{vt[0]}, v{v_t}, 1, 3")
        k(f"v_xor_b32 v{vt[0]}, v{vt[0]}, v{v_h}")
        k(f"s_lshl_b32 s{s_t0}, s{s_wm}, 13")
        k(f"v_lshl_add_u32 v{vt[1]}, v{v_t}, 7, s{s_t0}")
        for ks in range(4):
            k(f"v_xor_b32 v{vt[2]}, {2*ks}, v{vt[0]}")
            k(f"v_lshl_add_u32 v{vAr[ks]}, v{vt[2]}, 4, v{vt[1]}")
        def a_read(dst, ks, mt): return f"ds_read_b128 {vr(dst,4)}, v{vAr[ks]} offset:{mt*4096}"
        def a_upd(ks): return [vAr[ks]]
    else:
        k(f"s_lshl_b32 s{s_t0}, s{s_wm}, 10")
        k(f"v_lshl_add_u32 v{vt[0]}, v{v_t}, 4, s{s_t0}")
        k(f"v_lshl_add_u32 v{vAr[0]}, v{v_h}, 11, v{vt[0]}")
        def a_read(dst, ks, mt): return f"ds_read_b128 {vr(dst,4)}, v{vAr[0]} offset:{ks*4096 + mt*512}"
        def a_upd(ks): return [vAr[0]] if ks == 0 else []
    k(f"v_bfe_u32 v{vt[0]}, v{v_lane}, 2, 2")
    k(f"v_lshl_add_u32 v{vt[1]}, v{v_h}, 3, v{vt[0]}")
    k(f"v_lshlrev_b32 v{vt[1]}, 8, v{vt[1]}")
    k(f"v_bfe_u32 v{vt[2]}, v{v_lane}, 4, 1")
    k(f"v_lshl_add_u32 v{vt[1]}, v{vt[2]}, 5, v{vt[1]}")
    k(f"v_and_b32 v{vt[2]}, 3, v{v_lane}")
    k(f"v_lshl_add_u32 v{vt[1]}, v{vt[2]}, 3, v{vt[1]}")
    k(f"v_add_u32 v{vt[1]}, 16384, v{vt[1]}")
    k(f"s_lshl_b32 s{s_t0}, s{s_wn}, 1")
    k(f"v_xor_b32 v{vt[2]}, s{s_t0}, v{vt[0]}")
    k(f"v_lshl_add_u32 v{vBr[0]}, v{vt[2]}, 6, v{vt[1]}")
    k(f"v_xor_b32 v{vBr[1]}, 64, v{vBr[0]}")
    def b_read(dst, ks, nt, e): return f"ds_read_b64_tr_b16 {vr(dst + 2*e, 2)}, v{vBr[nt]} offset:{ks*4096 + e*1024}"
    for r in range(64): k(f"v_mov_b32 v{ACC + r}, 0")
    k(f"s_mov_b32 s{s_it}, 0"); k(f"s_mov_b32 s{s_slot}, 0")
    k("s_waitcnt lgkmcnt(0)")
    srd(k, sW, WSL, WSL + 1, WS_END)

    def reads(ks):
        return [a_read(FA[ks][0], ks, 0), b_read(FB[ks][0], ks, 0, 0), b_read(FB[ks][0], ks, 0, 1),
                b_read(FB[ks][1], ks, 1, 0), b_read(FB[ks][1], ks, 1, 1), a_read(FA[ks][1], ks, 1)]
    k("s_waitcnt lgkmcnt(0)")
    k("s_barrier")
    for l in reads(0) + reads(1): k(l)

    def mainloop(tag, vorient):
        k.label(k.L("loop" + tag))
        for ks in range(4):
            mf = []
            for mt in range(2):
                for nt in range(2):
                    a, b = FA[ks][mt], FB[ks][nt]
                    s0, s1 = (a, b) if vorient else (b, a)
                    mf.append(f"v_mfma_f32_32x32x16_bf16 {vr(acc(mt,nt),16)}, {vr(s0,4)}, {vr(s1,4)}, {vr(acc(mt,nt),16)}")
            pre = []
            if ks == 2:
                k("s_barrier")
                pre += [f"s_add_u32 s{s_slot}, s{s_slot}, 1", f"s_and_b32 s{s_slot}, s{s_slot}, {NS - 1}",
                        f"s_cselect_b32 s{s_delta}, s34, {(-(NS - 1) * SLOT) & 0xffffffff:#x}"]
                pre += [f"v_add_u32 v{a}, s{s_delta}, v{a}" for a in vBr]
            nk = (ks + 2) % 4
            if ks >= 2:
                pre += [f"v_add_u32 v{a}, s{s_delta}, v{a}" for a in a_upd(nk)]
            post = []
            if ks == 3:
                post = [f"v_add_u32 v{a}, s{s_delta}, v{a}" for a in a_upd(2) + a_upd(3)]
                post += [f"s_add_u32 s{s_it}, s{s_it}, 1", f"s_cmp_lt_u32 s{s_it}, {NST}"]
            rd = reads(nk)
            k("s_waitcnt lgkmcnt(6)")
            seq = [mf[0]] + pre + rd[0:2] + [mf[1]] + rd[2:4] + [mf[2]] + rd[4:6] + post + [mf[3]]
            for l in seq: k(l)
        k(f"s_cbranch_scc1 {k.L('loop' + tag)}")

    def epi_nm():
        MR = [28, 30]
        CS = EP; B1 = EP + 32
        k(f"s_lshl_b32 s{s_t0}, s{s_wm}, 8"); k(f"s_add_u32 s{s_t0}, s{s_t0}, {SB}")
        k(f"v_lshl_add_u32 v{vt[4]}, v{v_t}, 2, s{s_t0}")
        for mt in range(2):
            k(f"ds_read2_b32 {vr(MR[mt],2)}, v{vt[4]} offset0:{mt*32} offset1:{128 + mt*32}")
        k(f"s_lshl_b32 s{s_t0}, s{s_wn}, 8"); k(f"s_add_u32 s{s_t0}, s{s_t0}, {SB}")
        k(f"v_lshl_add_u32 v{vt[0]}, v{v_h}, 4, s{s_t0}")
        for nt in range(2):
            for rq in range(4):
                k(f"ds_read_b128 {vr(CS + nt*16 + rq*4, 4)}, v{vt[0]} offset:{1024 + nt*128 + rq*32}")
            if not qkv:
                for rq in range(4):
                    k(f"ds_read_b128 {vr(B1 + nt*16 + rq*4, 4)}, v{vt[0]} offset:{1536 + nt*128 + rq*32}")
        OFF = QK_OFF if qkv else G_OFF
        k(f"s_lshl_b32 s{s_t0}, s{s_nb}, 4"); k(f"s_lshl_b32 s{s_t1}, s{s_wn}, 3"); k(f"s_add_u32 s{s_t0}, s{s_t0}, s{s_t1}")
        k(f"v_add_lshl_u32 v{vt[2]}, v{v_h}, s{s_t0}, 15")
        k(f"s_lshl_b32 s{s_t0}, s{s_mb}, 7"); k(f"s_lshl_b32 s{s_t1}, s{s_wm}, 6"); k(f"s_add_u32 s{s_t0}, s{s_t0}, s{s_t1}")
        k(f"v_add_u32 v{vt[3]}, s{s_t0}, v{v_t}")
        k(f"v_lshl_add_u32 v{vt[2]}, v{vt[3]}, 4, v{vt[2]}")
        so = 46
        for c in range(4): k(f"s_mov_b32 s{so + c}, {OFF + 2*c*CH}")
        if not qkv:
            C0 = -2.0 * math.log2(math.e) * math.sqrt(2.0 / math.pi)
            k(f"s_mov_b32 s44, {f32(C0 * 0.044715)}"); k(f"s_mov_b32 s45, {f32(C0 * 0.044715)}")
            k(f"v_mov_b32 v{vt[4]}, {f32(C0)}"); k(f"v_mov_b32 v{vt[5]}, {f32(C0)}")
        k("s_waitcnt lgkmcnt(0)")
        T = EP + 64
        n_st = 0
        for nt in range(2):
            for mt in range(2):
                a = acc(mt, nt); mr = MR[mt]
                for p in range(8):
                    x = vr(a + 2*p, 2)
                    k(f"v_pk_fma_f32 {x}, {vr(CS + nt*16 + 2*p, 2)}, {vr(mr,2)}, {x} op_sel_hi:[1,0,1]")
                for p in range(8):
                    x = vr(a + 2*p, 2)
                    if qkv:
                        k(f"v_pk_mul_f32 {x}, {x}, {vr(mr,2)} op_sel:[0,1] op_sel_hi:[1,1]")
                    else:
                        k(f"v_pk_fma_f32 {x}, {x}, {vr(mr,2)}, {vr(B1 + nt*16 + 2*p, 2)} op_sel:[0,1,0] op_sel_hi:[1,1,1]")
                if not qkv:
                    for p in range(8):
                        x = vr(a + 2*p, 2); t = vr(T + 2*p, 2)
                        k(f"v_pk_mul_f32 {t}, {x}, {x}")
                    for p in range(8):
                        t = vr(T + 2*p, 2)
                        k(f"v_pk_fma_f32 {t}, {t}, s[44:45], {vr(vt[4],2)}")
                    for p in range(8):
                        x = vr(a + 2*p, 2); t = vr(T + 2*p, 2)
                        k(f"v_pk_mul_f32 {t}, {t}, {x}")
                    for r in range(16): k(f"v_exp_f32 v{T + r}, v{T + r}")
                    for p in range(8):
                        t = vr(T + 2*p, 2)
                        k(f"v_pk_add_f32 {t}, {t}, 1.0 op_sel_hi:[1,0]")
                    for r in range(16): k(f"v_rcp_f32 v{T + r}, v{T + r}")
                    for p in range(8):
                        x = vr(a + 2*p, 2); t = vr(T + 2*p, 2)
                        k(f"v_pk_mul_f32 {x}, {x}, {t}")
                Pk = T + 16 + (n_st % 2) * 8
                for p in range(8):
                    k(f"v_cvt_pk_bf16_f32 v{Pk + p}, v{a + 2*p}, v{a + 2*p + 1}")
                for pq in range(2):
                    b = Pk + 4*pq
                    k(f"v_permlane32_swap_b32 v{b}, v{b+2}")
                    k(f"v_permlane32_swap_b32 v{b+1}, v{b+3}")
                for pq in range(2):
                    b = Pk + 4*pq
                    k(f"buffer_store_dwordx4 {vr(b,4)}, v{vt[2]}, s[{sW}:{sW+3}], s{so + nt*2 + pq} offen offset:{mt*512} sc1")
                n_st += 1

    def epi_v():
        NM = EP; RS = EP + 32; CSV = [28, 30]
        k(f"s_lshl_b32 s{s_t0}, s{s_wm}, 8"); k(f"s_add_u32 s{s_t0}, s{s_t0}, {SB}")
        k(f"v_lshl_add_u32 v{vt[0]}, v{v_h}, 4, s{s_t0}")
        k(f"s_lshl_b32 s{s_t0}, s{s_wn}, 8"); k(f"s_add_u32 s{s_t0}, s{s_t0}, {SB}")
        k(f"v_lshl_add_u32 v{vt[1]}, v{v_t}, 2, s{s_t0}")
        for nt in range(2):
            k(f"ds_read_b32 v{CSV[nt]}, v{vt[1]} offset:{1024 + nt*128}")
        for mt in range(2):
            for rq in range(4):
                k(f"ds_read_b128 {vr(NM + mt*16 + rq*4, 4)}, v{vt[0]} offset:{mt*128 + rq*32}")
                k(f"ds_read_b128 {vr(RS + mt*16 + rq*4, 4)}, v{vt[0]} offset:{512 + mt*128 + rq*32}")
        k(f"s_lshl_b32 s{s_t0}, s{s_mb}, 1"); k(f"s_add_u32 s{s_t0}, s{s_t0}, s{s_wm}"); k(f"s_mul_i32 s{s_t0}, s{s_t0}, 5120")
        k(f"s_lshl_b32 s{s_t1}, s{s_nb}, 7"); k(f"s_add_u32 s{s_t0}, s{s_t0}, s{s_t1}"); k(f"s_sub_u32 s{s_t0}, s{s_t0}, 1280")
        k(f"s_lshl_b32 s{s_t1}, s{s_wn}, 6"); k(f"s_add_u32 s{s_t0}, s{s_t0}, s{s_t1}")
        k(f"v_mul_u32_u24 v{vt[3]}, 640, v{v_h}")
        k(f"v_add3_u32 v{vt[2]}, v{v_t}, s{s_t0}, v{vt[3]}")
        k(f"v_lshlrev_b32 v{vt[2]}, 4, v{vt[2]}")
        so = 46
        for c in range(4): k(f"s_mov_b32 s{so + c}, {V_OFF + c * 640 * 32}")
        k("s_waitcnt lgkmcnt(0)")
        T = EP + 64; n_st = 0
        for mt in range(2):
            for nt in range(2):
                a = acc(mt, nt)
                for p in range(8):
                    x = vr(a + 2*p, 2)
                    k(f"v_pk_fma_f32 {x}, {vr(NM + mt*16 + 2*p, 2)}, {vr(CSV[nt],2)}, {x} op_sel_hi:[1,0,1]")
                for p in range(8):
                    x = vr(a + 2*p, 2)
                    k(f"v_pk_mul_f32 {x}, {x}, {vr(RS + mt*16 + 2*p, 2)}")
                Pk = T + (n_st % 2) * 8
                for p in range(8):
                    k(f"v_cvt_pk_bf16_f32 v{Pk + p}, v{a + 2*p}, v{a + 2*p + 1}")
                for jj in range(2):
                    k(f"buffer_store_dwordx4 {vr(Pk + 4*jj, 4)}, v{vt[2]}, s[{sW}:{sW+3}], s{so + mt*2 + jj} offen offset:{nt*512} sc1")
                n_st += 1

    if qkv:
        k(f"s_cmp_ge_u32 s{s_nb}, 10")
        k(f"s_cbranch_scc1 {k.L('loopv')}")
        mainloop("q", False); epi_nm()
        k(f"s_branch {k.L('end')}")
        mainloop("v", True); epi_v()
        k(f"s_branch {k.L('end')}")
        k.label(k.L("auxl"))
        k(f"s_cmp_ge_u32 s{s_w}, 2"); k(f"s_cbranch_scc1 {k.L('aux')}")
        slice_addr_rows()
        k("s_waitcnt lgkmcnt(0)")
        srd(k, sA, 36, 37, S * D * 2); srd(k, sW, WSL, WSL + 1, WS_END); srd(k, sBi, 40, 41, 256)
        slice_load_rows()
        k("s_waitcnt vmcnt(0)")
        tag_load()
        slice_rows(0)
        k("s_waitcnt vmcnt(0)")
        tag_wait("x")
        slice_rows(1)
        k.label(k.L("aux"))
        k("s_load_dwordx4 s[44:47], s[0:1], 32")
        k(f"v_lshrrev_b32 v{vt[0]}, 4, v{v_lane}")
        k(f"v_and_b32 v{vt[1]}, 15, v{v_lane}")
        k(f"v_mul_u32_u24 v{vt[2]}, {F * 2}, v{vt[0]}")
        k(f"v_lshl_add_u32 v{vt[2]}, v{vt[1]}, 4, v{vt[2]}")
        k(f"v_lshlrev_b32 v{vt[3]}, 1, v0")
        k("s_waitcnt lgkmcnt(0)")
        srd(k, sW, WSL, WSL + 1, WS_END)
        k(f"s_cmp_ge_u32 s{s_mb}, 14"); k(f"s_cbranch_scc1 {k.L('end')}")
        srd(k, sB, 44, 45, D * F * 2); srd(k, sA, 46, 47, F * 2)
        k(f"s_mul_i32 s{s_t0}, s{s_wid}, {80 * F * 2}"); k(f"s_lshl_b32 s{s_t1}, s{s_mb}, 8"); k(f"s_add_u32 s{s_t0}, s{s_t0}, s{s_t1}")
        k(f"buffer_load_ushort v{v_b1}, v{vt[3]}, s[{sA}:{sA+3}], s{s_t1} offen")
        for i in range(20):
            k(f"buffer_load_dwordx4 {vr(40 + 4*i, 4)}, v{vt[2]}, s[{sB}:{sB+3}], s{s_t0} offen")
            k(f"s_add_u32 s{s_t0}, s{s_t0}, {4 * F * 2}")
        for r in range(8): k(f"v_mov_b32 v{24 + r}, 0")
        for i in range(20):
            k(f"s_waitcnt vmcnt({19 - i})")
            for r in range(4):
                k(f"v_lshlrev_b32 v{32 + 2*r}, 16, v{40 + 4*i + r}")
                k(f"v_and_b32 v{33 + 2*r}, 0xffff0000, v{40 + 4*i + r}")
            for r in range(4):
                k(f"v_pk_add_f32 {vr(24 + 2*r, 2)}, {vr(24 + 2*r, 2)}, {vr(32 + 2*r, 2)}")
        k(f"v_lshlrev_b32 v{vt[0]}, 5, v0")
        k(f"ds_write_b128 v{vt[0]}, v[24:27]")
        k(f"ds_write_b128 v{vt[0]}, v[28:31] offset:16")
        k("s_waitcnt lgkmcnt(0)")
        k("s_barrier")
        k(f"s_cmp_ge_u32 s{s_wid}, 2"); k(f"s_cbranch_scc1 {k.L('end')}")
        k(f"v_lshlrev_b32 v{vt[0]}, 2, v0")
        for i in range(32):
            k(f"ds_read_b32 v{40 + i}, v{vt[0]} offset:{i * 512}")
            if i % 8 == 7: k("s_waitcnt lgkmcnt(0)")
        for i in range(1, 32): k(f"v_add_f32 v40, v40, v{40 + i}")
        k(f"v_lshlrev_b32 v{v_b1}, 16, v{v_b1}")
        k(f"v_mul_f32 v{v_b1}, {f32(GS)}, v{v_b1}")
        k(f"s_lshl_b32 s{s_t0}, s{s_mb}, 10"); k(f"s_add_u32 s{s_t0}, s{s_t0}, {C1_OFF}"); k(f"s_add_u32 s{s_t1}, s{s_t0}, 512")
        k(f"buffer_store_dword v40, v{vt[0]}, s[{sW}:{sW+3}], s{s_t0} offen sc1")
        k(f"buffer_store_dword v{v_b1}, v{vt[0]}, s[{sW}:{sW+3}], s{s_t1} offen sc1")
    k.label(k.L("end"))
    k(f"s_lshl_b32 s94, s{s_mb}, 4"); k(f"s_add_u32 s94, s94, s{s_nb}")
    k(f"v_readfirstlane_b32 s{S_TAG}, v{v_tag}")
    k.stamp(2)

def phase2(k):
    k.pref = "p2"
    sW = 4; sP1 = 8; sP2 = 12; sP3 = 16; sWW = 52
    s_hd, s_qb, s_w, s_qs, s_kh, s_t0, s_t1, s_it = 20, 21, S_WID, 23, 24, 25, 26, 27
    s_ko, s_vo, s_odd = 28, 29, 30
    s_vm = 32; s_lo = 34; s_c = 36
    s_do, s_dm, s_qo = 56, 57, 58
    v_lane, v_t, v_h = 1, 2, 3
    vK1, vK2, vV0, vV1 = 4, 5, 6, 7
    vt = [8, 9, 10, 11, 12, 13, 14, 15]
    vm = [16, 17]
    v_pfa, v_pfc, v_pf = 18, 19, 200
    vD = [202, 203, 204, 205]
    v_fx, vX, vOne = 206, 208, 210
    Q1 = [20, 24]; Q2 = [28, 30]
    NBUF = 4
    K1 = [32, 36, 40, 44]; K2 = [48, 50]; Q2B = [52, 54]; vK2p = 207
    VB = [56, 64, 72, 80]
    C = [88, 104]; Sx = [120, 136]; P = [152, 160]; O = [168, 184]
    k("s_load_dwordx2 s[40:41], s[0:1], 80")
    k("s_load_dwordx2 s[44:45], s[0:1], 16")
    k("s_load_dwordx2 s[46:47], s[0:1], 32")
    k("s_load_dwordx2 s[38:39], s[0:1], 48")
    if "headmap" in X:
        k(f"s_and_b32 s{s_hd}, s2, 7"); k(f"s_lshl_b32 s{s_hd}, s{s_hd}, 2")
        k(f"s_bfe_u32 s{s_t0}, s2, 0x20003"); k(f"s_add_u32 s{s_hd}, s{s_hd}, s{s_t0}")
        k(f"s_lshr_b32 s{s_qb}, s2, 5")
    else:
        k(f"s_lshr_b32 s{s_hd}, s2, 3"); k(f"s_and_b32 s{s_qb}, s2, 7")
    k(f"s_and_b32 s{s_qs}, s{s_w}, 3"); k(f"s_lshr_b32 s{s_kh}, s{s_w}, 2")
    k(f"s_and_b32 s{s_odd}, s{s_hd}, 1")
    k(f"s_mov_b32 s{s_lo}, -1"); k(f"s_mov_b32 s{s_lo+1}, 0")
    k(f"s_lshr_b32 s{s_t0}, s{s_hd}, 1"); k(f"s_mul_i32 s{s_t0}, s{s_t0}, 5")
    k(f"s_mul_i32 s{s_t1}, s{s_odd}, 3"); k(f"s_add_u32 s{s_t1}, s{s_t1}, s{s_t0}")
    k(f"v_add_lshl_u32 v{vK1}, v{v_h}, s{s_t1}, 15")
    k(f"v_lshl_add_u32 v{vK1}, v{v_t}, 4, v{vK1}")
    k(f"s_add_u32 s{s_t0}, s{s_t0}, 2"); k(f"s_lshl_b32 s{s_t0}, s{s_t0}, 15")
    k(f"s_lshl_b32 s{s_t1}, s{s_odd}, 3"); k(f"s_add_u32 s{s_t0}, s{s_t0}, s{s_t1}")
    k(f"v_lshl_add_u32 v{vK2}, v{v_t}, 4, s{s_t0}")
    k(f"s_sub_u32 s{s_t0}, s{s_t0}, 512")
    k(f"v_lshl_add_u32 v{vK2p}, v{v_lane}, 4, s{s_t0}")
    k(f"s_lshl_b32 s{s_ko}, s{s_kh}, 14"); k(f"s_add_u32 s{s_ko}, s{s_ko}, {QK_OFF + 80 * CH}")
    k(f"s_lshl_b32 s{s_qo}, s{s_qb}, 12"); k(f"s_lshl_b32 s{s_t1}, s{s_qs}, 10"); k(f"s_add_u32 s{s_qo}, s{s_qo}, s{s_t1}")
    for qt in range(2):
        k(f"v_mov_b32 v{Q2[qt]}, 0"); k(f"v_mov_b32 v{Q2[qt]+1}, 0")
    k(f"s_mov_b32 s42, s{s_ko}")
    k(f"s_mov_b32 s{s_vm}, 0xfffff"); k(f"s_mov_b32 s{s_vm+1}, 0xfffff")
    k(f"v_add_u32 v{vt[0]}, 4, v{v_t}")
    k(f"v_subrev_u32 v{vt[1]}, 16, v{v_t}")
    k(f"v_cmp_gt_u32 vcc, 16, v{v_t}")
    k(f"v_cndmask_b32 v{vt[0]}, v{vt[1]}, v{vt[0]}, vcc")
    k(f"s_cmp_eq_u32 s{s_odd}, 1")
    k(f"s_cselect_b64 vcc, -1, 0")
    k(f"v_cndmask_b32 v{vt[0]}, v{v_t}, v{vt[0]}, vcc")
    k(f"s_mul_i32 s{s_t0}, s{s_hd}, 20")
    k(f"v_mul_u32_u24 v{vt[1]}, 640, v{v_h}")
    k(f"v_add3_u32 v{vV0}, v{vt[0]}, s{s_t0}, v{vt[1]}")
    k(f"v_lshlrev_b32 v{vV0}, 4, v{vV0}")
    k(f"v_add_u32 v{vV1}, {640 * 32}, v{vV0}")
    k(f"s_mul_i32 s{s_vo}, s{s_kh}, {32 * 1280 * 32}"); k(f"s_add_u32 s{s_vo}, s{s_vo}, {V_OFF}")
    k(f"s_mov_b32 s43, s{s_vo}"); k(f"s_mov_b32 s22, {1280 * 32}")
    k(f"v_cmp_eq_u32 vcc, 0, v{v_h}"); k(f"v_mov_b32 v{vOne}, 0x3f80"); k(f"v_cndmask_b32 v{vOne}, 0, v{vOne}, vcc")
    k(f"v_mov_b32 v{vOne+1}, 0"); k(f"v_mov_b32 v{vOne+3}, 0")
    k(f"v_cmp_eq_u32 vcc, 20, v{v_t}")
    k(f"v_mov_b32 v{vt[1]}, 0x3f803f80")
    k(f"v_cndmask_b32 v{vt[1]}, 0, v{vt[1]}, vcc")
    for b in range(NBUF):
        for r in range(8): k(f"v_mov_b32 v{VB[b] + r}, v{vt[1]}")
    for qt in range(2):
        for r in range(16): k(f"v_mov_b32 v{O[qt] + r}, 0")
    for r in range(8): k(f"v_mov_b32 v{P[1] + r}, 0")
    k(f"s_lshr_b32 s{s_t0}, s2, 3"); k(f"s_lshl_b32 s{s_t0}, s{s_t0}, 3"); k(f"s_add_u32 s{s_t0}, s{s_t0}, s{s_w}")
    k(f"s_mul_i32 s49, s{s_t0}, {48 * 128}"); k(f"s_add_u32 s49, s49, {192 * F * 2}")
    k(f"v_lshlrev_b32 v{vt[2]}, 8, v{v_lane}"); k(f"v_add_u32 v{vt[2]}, 124, v{vt[2]}")
    k(f"v_mov_b32 v{vt[3]}, 0x7ffffff0")
    k(f"v_cmp_gt_u32 vcc, 24, v{v_lane}")
    k(f"v_cndmask_b32 v{v_pfa}, v{vt[3]}, v{vt[2]}, vcc")
    W2L = int(os.environ.get("W2L", "0"))
    if W2L:
        k(f"s_mul_i32 s48, s{s_t0}, {2 * W2L * 128}")
    else:
        k(f"s_lshl_b32 s48, s2, 3"); k(f"s_add_u32 s48, s48, s{s_w}"); k(f"s_mul_i32 s48, s48, {10 * 128}")
    k(f"v_cmp_gt_u32 vcc, {W2L or 5}, v{v_lane}")
    k(f"v_cndmask_b32 v{v_pfc}, v{vt[3]}, v{vt[2]}, vcc")
    k(f"s_sub_u32 s50, s{s_qs}, s{s_kh}"); k(f"s_add_u32 s50, s50, 3")
    k(f"s_lshl_b32 s92, s2, 3"); k(f"s_add_u32 s92, s92, s{s_w}"); k(f"s_mul_i32 s92, s92, 1536"); k(f"s_add_u32 s92, s92, {H_OFF}")
    k(f"v_lshrrev_b32 v{vt[0]}, 3, v{v_lane}")
    k(f"v_and_b32 v{vt[1]}, 7, v{v_lane}")
    k(f"v_bfe_u32 v{vt[2]}, v{v_lane}, 4, 1")
    k(f"v_lshlrev_b32 v{vt[2]}, 2, v{vt[2]}")
    k(f"v_xor_b32 v{vt[1]}, v{vt[1]}, v{vt[2]}")
    k(f"v_mul_u32_u24 v{vt[0]}, 1280, v{vt[0]}")
    k(f"v_lshl_add_u32 v{vD[0]}, v{vt[1]}, 4, v{vt[0]}")
    k(f"v_add_u32 v{vD[1]}, {8 * 1280 - 1024}, v{vD[0]}")
    k(f"v_lshrrev_b32 v{vt[0]}, 4, v{v_lane}")
    k(f"v_and_b32 v{vt[1]}, 15, v{v_lane}")
    k(f"v_lshlrev_b32 v{vt[2]}, 2, v{vt[0]}")
    k(f"v_xor_b32 v{vt[1]}, v{vt[1]}, v{vt[2]}")
    k(f"v_mul_u32_u24 v{vt[0]}, {F * 2}, v{vt[0]}")
    k(f"v_lshl_add_u32 v{vD[2]}, v{vt[1]}, 4, v{vt[0]}")
    k(f"v_add_u32 v{vD[3]}, {4 * F * 2 - 1024}, v{vD[2]}")
    k(f"s_lshr_b32 s{s_t0}, s2, 3")
    k(f"s_mul_i32 s{s_t1}, s{s_t0}, 43"); k(f"s_lshr_b32 s{s_t1}, s{s_t1}, 7"); k(f"s_lshl_b32 s{s_t1}, s{s_t1}, 7")
    k(f"s_mul_i32 s{s_do}, s{s_w}, {16 * 1280}"); k(f"s_add_u32 s{s_do}, s{s_do}, s{s_t1}")
    k(f"s_lshr_b32 s{s_t0}, s{s_t0}, 1"); k(f"s_lshl_b32 s{s_t0}, s{s_t0}, 8")
    k(f"s_mul_i32 s59, s{s_w}, {8 * F * 2}"); k(f"s_add_u32 s59, s59, s{s_t0}")
    k(f"s_lshl_b32 s{s_dm}, s{s_w}, 11")
    k("s_waitcnt lgkmcnt(0)")
    srd(k, sW, 40, 41, QKV_END); srd(k, sWW, 40, 41, WS_END)
    srd(k, sP1, 44, 45, D * D * 2); srd(k, sP2, 46, 47, D * F * 2)
    W = f"s[{sW}:{sW+3}]"
    k("s_load_dwordx2 s[44:45], s[0:1], 0")
    k(f"s_lshr_b32 s{s_t0}, s2, 3"); k(f"s_mul_i32 s{s_t1}, s{s_t0}, 43"); k(f"s_lshr_b32 s{s_t1}, s{s_t1}, 7")
    k(f"s_mul_i32 s46, s{s_t1}, 3"); k(f"s_sub_u32 s{s_t0}, s{s_t0}, s46"); k(f"s_mul_i32 s{s_t0}, s{s_t0}, 3"); k(f"s_add_u32 s{s_t0}, s{s_t0}, s{s_w}")
    k(f"s_and_b32 s46, s2, 7"); k(f"s_lshl_b32 s46, s46, 3"); k(f"s_add_u32 s{s_t0}, s{s_t0}, s46"); k(f"s_lshl_b32 s{s_t0}, s{s_t0}, 5")
    k(f"v_add_u32 v{XRA}, s{s_t0}, v{v_t}"); k(f"v_mul_u32_u24 v{XRA}, 1280, v{XRA}")
    k(f"v_lshl_add_u32 v{XRA}, v{v_h}, 4, v{XRA}")
    k(f"s_lshl_b32 s{s_t1}, s{s_t1}, 7"); k(f"v_add_u32 v{XRA}, s{s_t1}, v{XRA}")
    srd(k, sP3, 38, 39, D * F * 2)
    k(f"s_getreg_b32 s51, hwreg(HW_REG_XCC_ID)"); k(f"s_and_b32 s51, s51, 15")
    k(f"s_and_b32 s{s_t0}, s2, 7"); k(f"s_lshl_b32 s{s_t0}, s{s_t0}, 7"); k(f"s_add_u32 s{s_t0}, s{s_t0}, {FX_OFF}")
    k(f"v_lshl_add_u32 v{v_fx}, v{v_t}, 10, s{s_t0}")
    k(f"s_and_b32 s{s_t0}, s{s_w}, 6"); k(f"s_cmp_lg_u32 s{s_t0}, 4"); k(f"s_cbranch_scc1 {k.L('nt')}")
    k(f"s_lshr_b32 s{s_t0}, s{s_hd}, 1"); k(f"s_mul_i32 s{s_t0}, s{s_t0}, 5"); k(f"s_add_u32 s{s_t0}, s{s_t0}, s{s_odd}"); k(f"s_add_u32 s{s_t0}, s{s_t0}, s{s_odd}")
    k(f"s_add_u32 s{s_t1}, s{s_t0}, 2"); k(f"s_lshr_b32 s{s_t0}, s{s_t0}, 4"); k(f"s_lshr_b32 s{s_t1}, s{s_t1}, 4")
    k(f"s_cmp_eq_u32 s{s_w}, 4"); k(f"s_cbranch_scc1 {k.L('fk')}")
    k(f"s_lshl_b32 s{s_t0}, s2, 7"); k(f"s_add_u32 s{s_t0}, s{s_t0}, {FX_OFF}")
    k(f"v_mov_b32 v{vt[2]}, s{S_TAG}"); k(f"v_mov_b32 v{vt[3]}, s51"); k(f"v_mov_b32 v{vt[4]}, 0")
    k("s_mov_b64 exec, 1")
    k(f"buffer_store_dwordx2 {vr(vt[2], 2)}, v{vt[4]}, s[{sWW}:{sWW+3}], s{s_t0} offen sc1")
    k("s_mov_b64 exec, -1")
    k(f"s_mul_i32 s{s_t0}, s{s_hd}, 20"); k(f"s_add_u32 s{s_t1}, s{s_t0}, {19 + 640}"); k(f"s_add_u32 s{s_t0}, s{s_t0}, 640")
    k(f"s_lshr_b32 s{s_t0}, s{s_t0}, 7"); k(f"s_lshr_b32 s{s_t1}, s{s_t1}, 7")
    k.label(k.L("fk"))
    k(f"v_mov_b32 v{vt[0]}, s{s_t0}"); k(f"v_mov_b32 v{vt[1]}, s{s_t1}")
    k(f"v_and_b32 v{vt[5]}, 16, v{v_lane}"); k(f"v_cmp_eq_u32 vcc, 0, v{vt[5]}")
    k(f"v_cndmask_b32 v{vt[5]}, v{vt[1]}, v{vt[0]}, vcc")
    k(f"v_and_b32 v{vt[1]}, 15, v{v_lane}")
    k(f"v_lshl_add_u32 v{vt[0]}, v{vt[1]}, 4, v{vt[5]}")
    k(f"v_add_u32 v{vt[0]}, 5, v{vt[0]}")
    k(f"v_and_b32 v{vt[1]}, 1, v{v_lane}"); k(f"s_lshl_b32 s{s_t0}, s{s_qb}, 1"); k(f"v_add_u32 v{vt[1]}, s{s_t0}, v{vt[1]}")
    k(f"v_lshl_add_u32 v{vt[1]}, v{vt[1]}, 4, v{vt[5]}")
    k(f"s_cmp_eq_u32 s{s_w}, 4"); k(f"s_cselect_b32 s{s_t0}, 32, 64")
    k(f"v_cmp_gt_u32 vcc, s{s_t0}, v{v_lane}")
    k(f"v_cndmask_b32 v{vt[0]}, v{vt[1]}, v{vt[0]}, vcc")
    k(f"v_lshlrev_b32 v{vt[0]}, 7, v{vt[0]}"); k(f"v_add_u32 v{vt[0]}, {FL_OFF}, v{vt[0]}")
    k.label(k.L("nt"))
    k("s_waitcnt vmcnt(0) lgkmcnt(0)")
    k("s_barrier")
    k.stamp(3)
    k(f"s_and_b32 s{s_t0}, s{s_w}, 6"); k(f"s_cmp_lg_u32 s{s_t0}, 4"); k(f"s_cbranch_scc1 {k.L('nw')}")
    k(f"s_cmp_lg_u32 s{s_w}, 4"); k(f"s_cbranch_scc1 {k.L('npb')}")
    publish(k, sWW, 1, 94, s_t0, vt[4], vt[5])
    k.label(k.L("npb"))
    poll(k, sWW, [vt[0]], [vt[2]], s_it, "1")
    k.label(k.L("nw"))
    k("s_barrier")
    k.stamp(4)
    SC = " sc1" if "kvsc1" in X else (" nt" if "kvnt" in X else "")
    def kload(b, pair=True):
        r = [f"buffer_load_dwordx4 {vr(K1[b],4)}, v{vK1}, {W}, s{s_ko} offen{SC}"]
        if b % 2 and pair: r.append(f"buffer_load_dwordx2 {vr(K2[b // 2],2)}, v{vK2p}, {W}, s{s_ko} offen{SC}")
        return r + [f"s_add_u32 s{s_ko}, s{s_ko}, 512"]
    def vload(b):
        return [f"s_mov_b64 exec, s[{s_vm}:{s_vm+1}]",
                f"buffer_load_dwordx4 {vr(VB[b],4)}, v{vV0}, {W}, s{s_vo} offen{SC}",
                f"buffer_load_dwordx4 {vr(VB[b]+4,4)}, v{vV1}, {W}, s{s_vo} offen{SC}",
                f"s_mov_b64 exec, -1",
                f"s_add_u32 s{s_vo}, s{s_vo}, s22"]
    def wdma(which):
        a, b_, sr_, so, step = (vD[0], vD[1], sP1, s_do, 128 * 1280) if which == 0 else (vD[2], vD[3], sP2, 59, 64 * F * 2)
        return [f"s_mov_b32 m0, s{s_dm}", f"s_add_u32 s{s_dm}, s{s_dm}, 16384",
                f"buffer_load_dwordx4 v{a}, s[{sr_}:{sr_+3}], s{so} offen lds",
                f"buffer_load_dwordx4 v{b_}, s[{sr_}:{sr_+3}], s{so} offen offset:1024 lds",
                f"s_add_u32 s{so}, s{so}, {step}"]
    k(f"buffer_load_dwordx2 {vr(K2[0],2)}, v{vK2p}, {W}, s{s_ko} offen offset:512{SC}")
    for l in kload(0): k(l)
    for qt in range(2):
        k(f"buffer_load_dwordx4 {vr(Q1[qt],4)}, v{vK1}, {W}, s{s_qo} offen offset:{qt*512} sc1")
        k(f"buffer_load_dwordx2 {vr(Q2B[qt],2)}, v{vK2}, {W}, s{s_qo} offen offset:{qt*512} sc1")
    rest = kload(1, False) + vload(0) + kload(2) + vload(1) + kload(3) + vload(2) + [f"buffer_load_dword v{v_pf}, v{vt[7]}, {W}, 0 offen"] * 2
    k(f"v_mov_b32 v{vt[7]}, 0x7ffffff0")
    NPRO = int(os.environ.get("NPRO", "3"))
    n = 0
    while n < NPRO or rest[0].startswith("s_mov_b64 exec, -1"):
        l = rest.pop(0); k(l); n += l.startswith("buffer")
        if not rest: break
    def qk(qt, b, c):
        cc = "0" if c is None else vr(c, 16)
        return [f"v_mfma_f32_32x32x16_bf16 {vr(Sx[qt],16)}, {vr(K1[b],4)}, {vr(Q1[qt],4)}, {cc}",
                f"v_mfma_f32_32x32x8_bf16 {vr(Sx[qt],16)}, {vr(K2[b // 2],2)}, {vr((Q2B if b % 2 else Q2)[qt],2)}, {vr(Sx[qt],16)}"]
    def pv(qt, b):
        return [f"v_mfma_f32_32x32x16_bf16 {vr(O[qt],16)}, {vr(VB[b],4)}, {vr(P[qt],4)}, {vr(O[qt],16)}",
                f"v_mfma_f32_32x32x16_bf16 {vr(O[qt],16)}, {vr(VB[b]+4,4)}, {vr(P[qt]+4,4)}, {vr(O[qt],16)}"]
    def rowmax(qt, dst, tmp):
        s = Sx[qt]
        k(f"v_max3_f32 v{dst}, v{s}, v{s+1}, v{s+2}")
        for r in range(3, 15, 2): k(f"v_max3_f32 v{dst}, v{dst}, v{s+r}, v{s+r+1}")
        k(f"v_max_f32 v{dst}, v{dst}, v{s+15}")
        k(f"v_mov_b32 v{tmp}, v{dst}")
        k(f"v_permlane32_swap_b32 v{dst}, v{tmp}")
        k(f"v_max_f32 v{dst}, v{dst}, v{tmp}")
    k(f"s_waitcnt vmcnt({n})")
    if "sta" in X: k.stamp(0)
    k("s_mov_b32 exec_hi, 0")
    for r in range(4): k(f"v_mov_b32 v{Q2[0] + r}, v{Q2B[0] + r}")
    for r in range(4): k(f"v_mov_b32 v{Q2B[0] + r}, 0")
    k("s_mov_b32 exec_hi, -1")
    for qt in range(2):
        for l in qk(qt, 0, None): k(l)
    for l in rest: k(l)
    for qt in range(2):
        rowmax(qt, vm[qt], vt[0])
        k(f"v_cvt_pk_bf16_f32 v{vOne+2}, -v{vm[qt]}, 0")
        k(f"v_mfma_f32_32x32x8_bf16 {vr(C[qt],16)}, {vr(vOne,2)}, {vr(vOne+2,2)}, 0")
        k(f"v_lshlrev_b32 v{vm[qt]}, 16, v{vOne+2}")
        k(f"v_xor_b32 v{vm[qt]}, 0x80000000, v{vm[qt]}")
    for l in qk(0, 0, C[0]): k(l)
    k("s_nop 7")
    k(f"s_mov_b32 s{s_it}, 0")
    if "sta" in X: k.stamp(2)
    k("s_nop 1")
    def slot(qt, mf, extra):
        s = Sx[qt]; p = P[qt]
        for i in range(16):
            for l in extra.get(i, []): k(l)
            if i % 4 == 0: k(mf[i // 4])
            k(f"v_exp_f32 v{s+i}, v{s+i}")
            if i % 2 == 1 and i >= 3:
                k(f"v_cvt_pk_bf16_f32 v{p + (i-3)//2}, v{s+i-3}, v{s+i-2}")
        for l in extra.get(16, []): k(l)
        k(f"v_cvt_pk_bf16_f32 v{p+7}, v{s+14}, v{s+15}")
    k(f"s_cmp_eq_u32 s{s_kh}, 0")
    k(f"s_cselect_b32 s31, 99, {int(os.environ.get('PRI', '6'))}")
    k(f"s_cbranch_scc1 {k.L('np')}")
    k("s_setprio 1")
    k.label(k.L("np"))
    k.label(k.L("loop"))
    for u in range(NBUF):
        b = u; bp = (u - 1) % NBUF; bn = (u + 1) % NBUF
        seq = []
        for i in range(3):
            for uu in range(4):
                kt = 4 * i + uu
                seq.append(("K", kt + 4))
                if uu % 2: seq.append(("P", (kt + 4) // 2))
                seq += [("V", kt + 3)] * 2
                if i == 2 and uu == u: break
            else:
                seq += [("W", i)] * 2
        kt = 8 + u
        last = max(len(seq) - 1 - seq[::-1].index(e) for e in (("K", kt + 1), ("P", (kt + 1) // 2), ("V", kt)))
        e1 = {0: [f"s_waitcnt vmcnt({len(seq) - 1 - last})"]}
        if "nopt" not in X:
            if u < 3: e1[7] = [f"s_buffer_load_dword s93, s[{sWW}:{sWW+3}], s92 offset:{u * 64}"]
        PU = int(os.environ.get("PU", "2"))
        if u == PU:
            k(f"s_cmp_lg_u32 s{s_it}, s31"); k(f"s_cbranch_scc1 {k.L('nph')}"); k("s_setprio 0"); k.label(k.L("nph"))
        slot(0, qk(1, b, C[1]) + pv(1, bp), {6: kload(b), 14: vload(bp)})
        slot(1, qk(0, bn, C[0]) + pv(0, b), e1)
    k(f"s_add_u32 s{s_it}, s{s_it}, 1")
    if PU == 4:
        k(f"s_cmp_lg_u32 s{s_it}, s31")
        k(f"s_cbranch_scc1 {k.L('noev')}")
        k("s_setprio 0")
        k.label(k.L("noev"))
    if W2L:
        k(f"s_sub_u32 s{s_t0}, s50, 1")
        k(f"s_cmp_lg_u32 s{s_it}, s{s_t0}"); k(f"s_cbranch_scc1 {k.L('noe0')}")
        k(f"buffer_load_dwordx2 {vr(v_pf, 2)}, v{v_pfc}, s[{sP3}:{sP3+3}], s48 offen")
        k.label(k.L("noe0"))
    k(f"s_cmp_lg_u32 s{s_it}, s50"); k(f"s_cbranch_scc1 {k.L('noe2')}")
    k(f"buffer_load_dwordx2 {vr(v_pf, 2)}, v{v_pfa}, s[{sP2}:{sP2+3}], s49 offen")
    if not W2L: k(f"buffer_load_dwordx2 {vr(v_pf, 2)}, v{v_pfc}, s[{sP3}:{sP3+3}], s48 offen")
    k(f"s_cmp_lg_u32 s{s_w}, 5"); k(f"s_cbranch_scc1 {k.L('noe1')}")
    k(f"s_lshl_b32 s{s_t0}, s2, 7"); k(f"s_add_u32 s{s_t0}, s{s_t0}, {FL_OFF + 32768}")
    for j in range(3): k(f"s_buffer_load_dword s93, s[{sWW}:{sWW+3}], s{s_t0} offset:{j * 32768}")
    k(f"buffer_load_dwordx2 {vr(vX, 2)}, v{v_fx}, s[{sWW}:{sWW+3}], 0 offen sc1")
    k.label(k.L("noe1"))
    k(f"s_cmp_lg_u32 s{s_w}, 3"); k(f"s_cbranch_scc1 {k.L('noe2')}")
    code_prefetch(k, "L_p2_merge", sP3, s_t0, vt[0], v_pf, v_lane, per=8)
    k.label(k.L("noe2"))
    if "nopt" not in X: k("s_add_u32 s92, s92, 192")
    k(f"s_cmp_ge_u32 s{s_it}, 6"); k(f"s_cbranch_scc1 {k.L('d1')}")
    for l in wdma(0): k(l)
    k(f"s_branch {k.L('loop')}")
    k.label(k.L("d1"))
    k(f"s_cmp_eq_u32 s{s_it}, 7")
    k(f"s_cselect_b32 s{s_ko}, 0x10000000, s{s_ko}"); k(f"s_cselect_b32 s22, 0x10000000, s22")
    for l in wdma(1): k(l)
    k(f"s_cmp_lt_u32 s{s_it}, 8"); k(f"s_cbranch_scc1 {k.L('loop')}")
    k.label(k.L("lend"))
    k.stamp(5)
    for l in pv(1, NBUF - 1): k(l)
    k(f"s_cmp_ge_u32 s{s_w}, 3"); k(f"s_cbranch_scc1 {k.L('d2')}")
    srd(k, sP3, 44, 45, S * D * 2)
    for c in range(4):
        k(f"buffer_load_dwordx4 {vr(XR + 4*c, 4)}, v{XRA}, s[{sP3}:{sP3+3}], 0 offen offset:{32*c}")
    k.label(k.L("d2"))
    k("s_nop 4")
    k(f"v_pk_add_f32 {vr(vt[0],2)}, {vr(O[0],2)}, {vr(O[0]+2,2)}")
    for r in range(4, 12, 2): k(f"v_pk_add_f32 {vr(vt[0],2)}, {vr(vt[0],2)}, {vr(O[0]+r,2)}")
    for r in range(0, 12, 2): k(f"v_pk_add_f32 {vr(vt[0],2)}, {vr(vt[0],2)}, {vr(O[1]+r,2)}")
    k(f"v_add_f32 v{vt[0]}, v{vt[0]}, v{vt[1]}")
    k(f"v_add_f32 v{vt[1]}, v{O[0]+8}, v{O[1]+8}")
    k(f"s_mov_b32 s{s_t0}, {f32(2.0**120)}")
    k(f"v_cmp_nlt_f32 s[{s_c}:{s_c+1}], |v{vt[0]}|, s{s_t0}")
    k(f"s_mov_b32 s{s_t0}, {f32(2.0**60)}")
    k(f"v_cmp_nlt_f32 vcc, |v{vt[1]}|, s{s_t0}")
    k(f"s_andn2_b64 vcc, vcc, s[{s_lo}:{s_lo+1}]")
    k(f"s_or_b64 s[{s_c}:{s_c+1}], s[{s_c}:{s_c+1}], vcc")
    k(f"s_cbranch_scc0 {k.L('merge')}")
    k("s_waitcnt vmcnt(0)")
    k(f"s_mov_b32 s22, {1280 * 32}")
    k(f"s_mov_b32 s{s_ko}, s42"); k(f"s_mov_b32 s{s_vo}, s43")
    for qt in range(2):
        for r in range(16): k(f"v_mov_b32 v{O[qt] + r}, 0")
        k(f"v_mov_b32 v{vm[qt]}, 0xff800000")
    k(f"s_mov_b32 s{s_it}, 0")
    k.label(k.L("fb"))
    k(f"buffer_load_dwordx2 {vr(K2[0],2)}, v{vK2}, {W}, s{s_ko} offen")
    for l in kload(0) + vload(0): k(l)
    k("s_waitcnt vmcnt(0)")
    for qt in range(2):
        for l in qk(qt, 0, None): k(l)
    for qt in range(2):
        rowmax(qt, vt[2], vt[0])
        k(f"v_max_f32 v{vt[2]}, v{vt[2]}, v{vm[qt]}")
        k(f"v_sub_f32 v{vt[3]}, v{vm[qt]}, v{vt[2]}")
        k(f"v_exp_f32 v{vt[3]}, v{vt[3]}")
        k(f"v_mov_b32 v{vm[qt]}, v{vt[2]}")
        for r in range(16): k(f"v_mul_f32 v{O[qt]+r}, v{O[qt]+r}, v{vt[3]}")
        for r in range(16): k(f"v_sub_f32 v{Sx[qt]+r}, v{Sx[qt]+r}, v{vt[2]}")
        for r in range(16): k(f"v_exp_f32 v{Sx[qt]+r}, v{Sx[qt]+r}")
        for r in range(8): k(f"v_cvt_pk_bf16_f32 v{P[qt]+r}, v{Sx[qt]+2*r}, v{Sx[qt]+2*r+1}")
        for l in pv(qt, 0): k(l)
    k("s_nop 7"); k("s_nop 7")
    k(f"s_add_u32 s{s_it}, s{s_it}, 1")
    k(f"s_cmp_lt_u32 s{s_it}, 32")
    k(f"s_cbranch_scc1 {k.L('fb')}")
    k.label(k.L("merge"))
    k(f"s_cmp_eq_u32 s{s_kh}, 0")
    k(f"s_cbranch_scc1 {k.L('noswap')}")
    for r in range(12): k(f"v_swap_b32 v{O[0]+r}, v{O[1]+r}")
    k(f"v_swap_b32 v{vm[0]}, v{vm[1]}")
    k.label(k.L("noswap"))
    k(f"s_mul_i32 s{s_t0}, s{s_w}, 3328"); k(f"s_add_u32 s{s_t0}, s{s_t0}, {MRG}")
    k(f"s_xor_b32 s{s_t1}, s{s_w}, 4"); k(f"s_mul_i32 s{s_t1}, s{s_t1}, 3328"); k(f"s_add_u32 s{s_t1}, s{s_t1}, {MRG}")
    k(f"v_lshl_add_u32 v{vt[0]}, v{v_lane}, 4, s{s_t0}")
    k(f"v_lshl_add_u32 v{vt[2]}, v{v_lane}, 2, s{s_t0}")
    for q in range(3): k(f"ds_write_b128 v{vt[0]}, {vr(O[1] + 4*q, 4)} offset:{q*1024}")
    k(f"ds_write_b32 v{vt[2]}, v{vm[1]} offset:3072")
    k(f"v_lshl_add_u32 v{vt[1]}, v{v_lane}, 4, s{s_t1}")
    k(f"v_lshl_add_u32 v{vt[3]}, v{v_lane}, 2, s{s_t1}")
    k(f"v_mov_b32 v{vt[7]}, {LOCW}")
    k(f"s_cmp_lg_u32 s{s_w}, 5"); k(f"s_cbranch_scc1 {k.L('nl')}")
    k(f"v_cmp_ne_u32 vcc, s{S_TAG}, v{vX}")
    k(f"v_cmp_ne_u32 s[90:91], s51, v{vX+1}")
    k("s_or_b64 vcc, vcc, s[90:91]")
    k(f"s_cselect_b32 s{s_t0}, 0, 1")
    k(f"v_mov_b32 v{vX}, s{s_t0}"); k(f"v_mov_b32 v{vX+1}, s{S_TAG}")
    k(f"ds_write_b64 v{vt[7]}, {vr(vX, 2)}")
    k.label(k.L("nl"))
    k("s_waitcnt lgkmcnt(0)")
    k("s_barrier")
    if "sta" in X: k.stamp(3); k("s_waitcnt lgkmcnt(0)")
    mo = Sx[0] + 12
    k(f"ds_read_b32 v{mo}, v{vt[3]} offset:3072")
    for q in range(3): k(f"ds_read_b128 {vr(Sx[0] + 4*q, 4)}, v{vt[1]} offset:{q*1024}")
    k(f"ds_read_b64 {vr(vX, 2)}, v{vt[7]}")
    k(f"s_lshl_b32 s{s_t1}, s{s_kh}, 9"); k(f"s_add_u32 s{s_t0}, s{s_qo}, s{s_t1}"); k(f"s_add_u32 s{s_t0}, s{s_t0}, {O_OFF}")
    k("s_waitcnt lgkmcnt(4)")
    k(f"v_max_f32 v{vt[2]}, v{vm[0]}, v{mo}")
    k(f"v_sub_f32 v{vt[3]}, v{vm[0]}, v{vt[2]}"); k(f"v_sub_f32 v{vt[4]}, v{mo}, v{vt[2]}")
    k(f"v_exp_f32 v{vt[3]}, v{vt[3]}"); k(f"v_exp_f32 v{vt[4]}, v{vt[4]}")
    k(f"v_mul_f32 v{vt[5]}, v{O[0]+8}, v{vt[3]}")
    k("s_waitcnt lgkmcnt(0)")
    k(f"v_fmac_f32 v{vt[5]}, v{Sx[0]+8}, v{vt[4]}")
    k(f"v_readfirstlane_b32 s{S_LOC}, v{vX}"); k(f"v_readfirstlane_b32 s{S_TAG}, v{vX+1}")
    if "headmap" in X: k("s_mov_b64 vcc, 0")
    else: loc_vcc(k)
    k(f"v_mov_b32 v{vt[6]}, v{vt[5]}")
    k(f"v_permlane32_swap_b32 v{vt[5]}, v{vt[6]}")
    k(f"v_rcp_f32 v{vt[6]}, v{vt[6]}")
    k(f"v_mul_f32 v{vt[2]}, v{vt[3]}, v{vt[6]}"); k(f"v_mul_f32 v{vt[3]}, v{vt[4]}, v{vt[6]}")
    for r in range(0, 12, 2): k(f"v_pk_mul_f32 {vr(O[0]+r,2)}, {vr(O[0]+r,2)}, {vr(vt[2],2)} op_sel_hi:[1,0]")
    for r in range(0, 12, 2): k(f"v_pk_fma_f32 {vr(O[0]+r,2)}, {vr(Sx[0]+r,2)}, {vr(vt[2],2)}, {vr(O[0]+r,2)} op_sel:[0,1,0] op_sel_hi:[1,1,1]")
    for r in range(6): k(f"v_cvt_pk_bf16_f32 v{P[0]+r}, v{O[0]+2*r}, v{O[0]+2*r+1}")
    k(f"v_permlane32_swap_b32 v{P[0]}, v{P[0]+2}")
    k(f"v_permlane32_swap_b32 v{P[0]+1}, v{P[0]+3}")
    dstores(k, [f"buffer_store_dwordx4 {vr(P[0],4)}, v{vK1}, s[{sWW}:{sWW+3}], s{s_t0} offen",
                "s_mov_b32 exec_hi, 0",
                f"buffer_store_dwordx2 {vr(P[0]+4,2)}, v{vK2}, s[{sWW}:{sWW+3}], s{s_t0} offen",
                "s_mov_b32 exec_hi, -1"])
    k(f"s_lshl_b32 s94, s{s_qb}, 5"); k(f"s_add_u32 s94, s94, s{s_hd}")
    k.stamp(6)

def phase345(k):
    k.pref = "p3"
    GB = 16384; NSLOT = 8; SB = NSLOT * GB
    PH = {3: dict(NT=2, KK=D, A_OFF=O_OFF, base=0), 4: dict(NT=4, KK=D, A_OFF=H_OFF, base=5), 5: dict(NT=2, KK=F, A_OFF=G_OFF, base=7)}
    for p in PH.values():
        p["GS"] = 16 // p["NT"]; p["GR"] = p["GS"] * 16; p["NG"] = (p["KK"] + p["GR"] - 1) // p["GR"]; p["NKS"] = p["KK"] // 16
    sW, sB3, sB4, sB5, sX, sO, sBi = 4, 8, 12, 16, 8, 12, 16
    s_r, s_cb, s_w, s_t0, s_t1, s_offA, s_it, s_wid, s_r4, s_cb4, s_idx, s_x = 20, 21, 22, 23, 24, 26, 28, S_WID, 29, 30, 31, 32
    s_ob = {3: 25, 4: 26, 5: 27}; s_m0 = 33
    sPl, sSc = 96, 52
    ASC = os.environ.get("ASC", " sc1")
    v_lane, v_t, v_h = 1, 2, 3
    vt = [12, 13, 14, 15]
    k("s_load_dwordx2 s[42:43], s[0:1], 32")
    k("s_load_dwordx4 s[44:47], s[0:1], 48")
    k("s_load_dwordx2 s[56:57], s[0:1], 64")
    k(f"s_lshr_b32 s{s_idx}, s2, 3"); k(f"s_and_b32 s{s_x}, s2, 7")
    k(f"s_mul_i32 s{s_cb}, s{s_idx}, 43"); k(f"s_lshr_b32 s{s_cb}, s{s_cb}, 7")
    k(f"s_mul_i32 s{s_t1}, s{s_cb}, 3"); k(f"s_sub_u32 s{s_r}, s{s_idx}, s{s_t1}")
    k(f"s_and_b32 s{s_r4}, s{s_idx}, 1"); k(f"s_lshr_b32 s{s_cb4}, s{s_idx}, 1")
    k(f"s_and_b32 s{s_w}, s{s_wid}, 3")
    k(f"s_cmp_lt_u32 s{s_wid}, 4")
    k(f"s_cbranch_scc1 {k.L('compute')}")
    vB2 = [4, 5, 6, 7]; vB4 = [8, 9, 10, 11]
    k(f"v_lshrrev_b32 v{vt[0]}, 3, v{v_lane}")
    k(f"v_and_b32 v{vt[1]}, 7, v{v_lane}")
    k(f"v_bfe_u32 v{vt[2]}, v{v_lane}, 4, 1")
    k(f"v_lshlrev_b32 v{vt[2]}, 2, v{vt[2]}")
    k(f"v_xor_b32 v{vt[1]}, v{vt[1]}, v{vt[2]}")
    k(f"v_mul_u32_u24 v{vt[0]}, 1280, v{vt[0]}")
    k(f"v_lshl_add_u32 v{vB2[0]}, v{vt[1]}, 4, v{vt[0]}")
    for ii in range(1, 4): k(f"v_add_u32 v{vB2[ii]}, {ii * (8 * 1280 - 1024)}, v{vB2[0]}")
    k(f"s_mul_i32 s{s_ob[5]}, s{s_w}, {32 * 1280}"); k(f"s_lshl_b32 s{s_t1}, s{s_cb}, 7"); k(f"s_add_u32 s{s_ob[5]}, s{s_ob[5]}, s{s_t1}")
    k(f"s_lshl_b32 s{s_m0}, s{s_w}, 12")
    k(f"v_lshrrev_b32 v{vt[0]}, 4, v{v_lane}")
    k(f"v_and_b32 v{vt[1]}, 15, v{v_lane}")
    k(f"v_lshlrev_b32 v{vt[2]}, 2, v{vt[0]}")
    k(f"v_xor_b32 v{vt[1]}, v{vt[1]}, v{vt[2]}")
    k(f"v_mul_u32_u24 v{vt[0]}, {F * 2}, v{vt[0]}")
    k(f"v_lshl_add_u32 v{vB4[0]}, v{vt[1]}, 4, v{vt[0]}")
    for ii in range(1, 4): k(f"v_add_u32 v{vB4[ii]}, {ii * (4 * F * 2 - 1024)}, v{vB4[0]}")
    k(f"s_mul_i32 s{s_ob[4]}, s{s_w}, {16 * F * 2}"); k(f"s_lshl_b32 s{s_t1}, s{s_cb4}, 8"); k(f"s_add_u32 s{s_ob[4]}, s{s_ob[4]}, s{s_t1}")
    k(f"s_add_u32 s{s_ob[4]}, s{s_ob[4]}, {192 * F * 2}")
    k(f"s_lshl_b32 s{s_t0}, s{s_cb4}, 10"); k(f"s_lshl_b32 s{s_t1}, s{s_w}, 8"); k(f"s_add_u32 s{s_t0}, s{s_t0}, s{s_t1}")
    k(f"s_add_u32 s{s_t0}, s{s_t0}, {C1_OFF}")
    k(f"v_lshlrev_b32 v{vt[3]}, 2, v{v_lane}")
    k(f"v_add_u32 v{vt[2]}, s{s_t1}, v{vt[3]}"); k(f"v_add_u32 v{vt[2]}, {SB}, v{vt[2]}")
    k("s_waitcnt lgkmcnt(0)")
    srd(k, sB4, 42, 43, D * F * 2); srd(k, sB5, 44, 45, D * F * 2); srd(k, sW, 40, 41, WS_END)
    q = []
    def issue(p, j):
        P = PH[p]; slot = (P["base"] + j) % NSLOT
        vB = vB4 if p == 4 else vB2; sB = {4: sB4, 5: sB5}[p]
        k(f"s_add_u32 m0, s{s_m0}, {slot * GB}")
        for ii in range(4):
            k(f"buffer_load_dwordx4 v{vB[ii]}, s[{sB}:{sB+3}], s{s_ob[p]} offen offset:{ii*1024} lds")
            q.append((p, j))
        k(f"s_add_u32 s{s_ob[p]}, s{s_ob[p]}, {P['GR'] * (F if p == 4 else D) * 2}")
    def need(item):
        if item in q:
            last = len(q) - 1 - q[::-1].index(item)
            k(f"s_waitcnt vmcnt({len(q) - 1 - last})")
            del q[:last + 1]
    def bar(item=None):
        if item is not None: need(item)
        k("s_barrier")
    vP = 16; s_q = 34
    k(f"s_lshl_b32 s{s_q}, s{s_idx}, 2"); k(f"s_add_u32 s{s_q}, s{s_q}, s{s_w}")
    k(f"s_lshl_b32 s{s_it}, s{s_x}, 12")
    k(f"v_lshl_add_u32 v{vP}, v{v_t}, 7, s{s_it}")
    k(f"v_lshl_add_u32 v{vP+1}, v{v_h}, 15, v{vP}")
    def apf(p):
        if ("apf%d" % p) not in X: return
        lab = k.L("apf%d_%d" % (p, k.uid)); k.uid += 1
        k(f"s_cmp_ge_u32 s{s_q}, {108 if p == 5 else 80}"); k(f"s_cbranch_scc1 {lab}")
        k(f"s_lshl_b32 s{s_it}, s{s_q}, {16 if p == 5 else 15}"); k(f"s_add_u32 s{s_it}, s{s_it}, {PH[p]['A_OFF']}")
        k(f"buffer_load_dword v{vP+2}, v{vP + (1 if p == 5 else 0)}, s[{sW}:{sW+3}], s{s_it} offen sc1")
        k.label(lab)
    k("s_waitcnt vmcnt(0)")
    bar()
    k(f"s_cmp_ge_u32 s{s_idx}, 30"); k(f"s_cbranch_scc1 L_exit")
    bar()
    apf(3)
    k(f"s_cmp_ge_u32 s{s_idx}, 28"); k(f"s_cbranch_scc1 {k.L('lskip4')}")
    E4 = int(os.environ.get("E4", "2")); E5 = int(os.environ.get("E5", "7")); N5 = int(os.environ.get("N5", "8"))
    nxt4 = 3
    for j in range(5):
        bar()
        if j >= E4 and nxt4 - 3 + 2 <= j:
            issue(4, nxt4); nxt4 += 1
    bar()
    k("s_waitcnt vmcnt(0)"); q[:] = []
    bar()
    apf(4)
    k(f"buffer_load_dword v{vt[1]}, v{vt[3]}, s[{sW}:{sW+3}], s{s_t0} offen sc1"); q.append(("c", 0))
    nxt5 = 0
    for j in range(10):
        bar((4, j))
        if j == 6:
            need(("c", 0))
            k(f"ds_write_b32 v{vt[2]}, v{vt[1]}")
            k(f"v_and_b32 v20, 7, v{v_lane}"); k(f"v_lshlrev_b32 v20, 7, v20"); k(f"v_add_u32 v20, {GD_OFF}, v20")
            k(f"buffer_load_dword v21, v20, s[{sW}:{sW+3}], 0 offen sc1"); q.append(("g", 0))
        if nxt4 < 10 and (nxt4 < 8 or nxt4 - 8 + 2 <= j):
            issue(4, nxt4); nxt4 += 1
        elif nxt4 == 10 and nxt5 + 2 + 2 <= j and j >= E5:
            issue(5, nxt5); nxt5 += 1
    assert nxt4 == 10
    while nxt5 < min(N5, 3): issue(5, nxt5); nxt5 += 1
    need(("g", 0))
    k(f"v_cmp_ne_u32 vcc, s{S_TAG}, v21")
    k(f"s_cbranch_vccz {k.L('gdok')}")
    poll(k, sW, [20], [21], s_it, "gd", 2)
    k.label(k.L("gdok"))
    k("s_waitcnt lgkmcnt(0)")
    bar()
    THIN = int(os.environ.get("THIN", "4"))
    while nxt5 < N5:
        if THIN >= 0: k(f"s_waitcnt vmcnt({THIN})")
        issue(5, nxt5); nxt5 += 1
    bar()
    k(f"s_branch {k.L('l5')}")
    k.label(k.L("lskip4"))
    for j in range(6): bar()
    for j in range(N5): issue(5, j)
    k.label(k.L("l5"))
    k("s_waitcnt vmcnt(0)"); q[:] = []
    bar()
    apf(5)
    for j in range(14):
        bar((5, j))
        if nxt5 < 14 and (nxt5 < 8 or nxt5 - 8 + 2 <= j):
            issue(5, nxt5); nxt5 += 1
    if "sta" in X: k.dump(0, 14, s_wid)
    k("s_endpgm")

    k.label(k.L("compute"))
    vBr = [4, 5, 6, 7]; vA = 8; vS = 9; vO = 10; v_tag = 11
    RES = 16; BI = 32; ACC = 48
    DIST = 6; NFB = 8
    NFAS = {3: 32, 4: int(os.environ.get('NFA4', '24')), 5: int(os.environ.get('NFA5', '32'))}
    s_tok3 = 34; s_act = 25
    k(f"s_mul_i32 s{s_t0}, s{s_r}, 3"); k(f"s_add_u32 s{s_t0}, s{s_t0}, s{s_w}")
    k(f"s_cmp_eq_u32 s{s_w}, 3"); k(f"s_cselect_b32 s{s_act}, 8, s{s_t0}")
    k(f"s_lshl_b32 s{s_t1}, s{s_x}, 3"); k(f"s_add_u32 s{s_t0}, s{s_t0}, s{s_t1}"); k(f"s_lshl_b32 s{s_tok3}, s{s_t0}, 5")
    for c in range(4): k(f"s_mov_b32 s{48 + c}, {2*c*CH}")
    def nbar(n):
        for _ in range(n): k("s_barrier")
    def setup(p):
        if p == 4:
            k(f"s_lshl_b32 s{s_t0}, s{s_x}, 1"); k(f"s_add_u32 s{s_t0}, s{s_t0}, s{s_r4}"); k(f"s_lshl_b32 s{s_t0}, s{s_t0}, 2")
            k(f"s_add_u32 s{s_t0}, s{s_t0}, s{s_w}"); k(f"s_lshl_b32 s{s_t0}, s{s_t0}, 5")
            k(f"v_add_u32 v{vt[0]}, s{s_t0}, v{v_t}")
        else:
            k(f"v_add_u32 v{vt[0]}, s{s_tok3}, v{v_t}")
        k(f"v_lshlrev_b32 v{vA}, 15, v{v_h}")
        k(f"v_lshl_add_u32 v{vA}, v{vt[0]}, 4, v{vA}")
        k(f"s_mov_b32 s{s_offA}, {PH[p]['A_OFF']}")
    def setup2(p):
        late = []
        if p == 4:
            k(f"s_lshl_b32 s{s_t0}, s{s_cb4}, 19"); k(f"s_add_u32 s{s_t0}, s{s_t0}, {G_OFF}")
            k(f"v_add_u32 v{vO}, s{s_t0}, v{vA}")
            k(f"v_mul_u32_u24 v{vt[1]}, {5 * 16384}, v{v_h}")
            k(f"v_lshl_add_u32 v{vS}, v{vt[0]}, 3, v{vt[1]}")
            for i in range(5):
                late.append([f"s_mov_b32 s{s_t0}, {HS_OFF + i * 16384}",
                             f"buffer_load_dwordx2 {vr(BI + 2*i, 2)}, v{vS}, s[{sW}:{sW+3}], s{s_t0} offen sc1"])
            k(f"v_bfe_u32 v{vt[0]}, v{v_lane}, 2, 2")
            k(f"v_lshl_add_u32 v{vt[1]}, v{v_h}, 2, v{vt[0]}")
            k(f"v_lshlrev_b32 v{vt[1]}, 8, v{vt[1]}")
            k(f"v_lshl_add_u32 v{vt[0]}, v{vt[0]}, 6, v{vt[1]}")
        else:
            k(f"s_lshl_b32 s{s_t1}, s{s_cb}, 7")
            k(f"v_mul_u32_u24 v{vt[1]}, 1280, v{vt[0]}")
            k(f"v_lshl_add_u32 v{vt[1]}, v{v_h}, 4, v{vt[1]}")
            if p == 3:
                k(f"v_add_u32 v{vt[1]}, s{s_t1}, v{vt[1]}")
                k(f"s_lshl_b32 s{s_t0}, s{s_cb}, 18"); k(f"s_add_u32 s{s_t0}, s{s_t0}, {H_OFF}")
                k(f"v_add_u32 v{vO}, s{s_t0}, v{vA}")
                k(f"s_lshl_b32 s{s_t0}, s{s_cb}, 14"); k(f"s_add_u32 s{s_t0}, s{s_t0}, {HS_OFF}")
                k(f"v_lshl_add_u32 v{vS}, v{vt[0]}, 3, s{s_t0}")
            else:
                k(f"v_add_u32 v{vO}, s{s_t1}, v{vt[1]}")
                srd(k, sO, 56, 57, S * D * 2); srd(k, sBi, 46, 47, D * 2)
                k(f"v_lshlrev_b32 v{vt[2]}, 3, v{v_h}")
                for c in range(8):
                    k(f"buffer_load_dwordx2 {vr(BI + 2*c, 2)}, v{vt[2]}, s[{sBi}:{sBi+3}], s{s_t1} offen offset:{16*c}")
            k(f"v_bfe_u32 v{vt[0]}, v{v_lane}, 2, 2")
            k(f"v_lshl_add_u32 v{vt[0]}, v{v_h}, {3 if p == 3 else 2}, v{vt[0]}")
            k(f"v_lshlrev_b32 v{vt[0]}, 7, v{vt[0]}")
            k(f"v_bfe_u32 v{vt[3]}, v{v_lane}, 3, 1")
            k(f"v_lshl_add_u32 v{vt[0]}, v{vt[3]}, 6, v{vt[0]}")
        k(f"v_bfe_u32 v{vt[3]}, v{v_lane}, 4, 1")
        k(f"v_lshl_add_u32 v{vt[0]}, v{vt[3]}, 5, v{vt[0]}")
        k(f"v_and_b32 v{vt[3]}, 3, v{v_lane}")
        k(f"v_lshl_add_u32 v{vBr[0]}, v{vt[3]}, 3, v{vt[0]}")
        for j in range(1, PH[p]["NT"]): k(f"v_xor_b32 v{vBr[j]}, {64 * j}, v{vBr[0]}")
        return late
    def aload(p, i, FA):
        NFA = NFAS[p]
        return [f"buffer_load_dwordx4 {vr(FA + (i % NFA) * 4, 4)}, v{vA}, s[{sW}:{sW+3}], s{s_offA} offen{ASC}",
                f"s_add_u32 s{s_offA}, s{s_offA}, {2 * CH}"]
    def gemm(p, late, pre_issued, mid={}):
        P = PH[p]; NT = P["NT"]; GS = P["GS"]; NKS = P["NKS"]
        FB = ACC + 16 * NT; FA = FB + NFB * 4
        NFA = NFAS[p]; LA = min(NFA - 2, int(os.environ.get("LA%d" % p, "14"))); LA0 = min(LA, int(os.environ.get("LA0", "10")))
        for i in range(LA0):
            for l in aload(p, i, FA): k(l)
        cur = [0]
        NM = NKS * NT; KSB = GB // GS
        def bread(m):
            ks, j = divmod(m, NT)
            G, qq = divmod(ks, GS)
            off = ((P["base"] + G) % NSLOT) * GB + qq * KSB
            r = []
            if qq == 0 and j == 0: r.append("s_barrier")
            base = (off // 65536) * 65536
            if base != cur[0]:
                for a in vBr[:NT]: r.append(f"v_add_u32 v{a}, {(base - cur[0]) & 0xffffffff:#x}, v{a}")
                cur[0] = base
            for e in range(2):
                r.append(f"ds_read_b64_tr_b16 {vr(FB + (m % NFB) * 4 + 2*e, 2)}, v{vBr[j]} offset:{off - base + e * (KSB // (4 if p == 3 else 2))}")
            return r
        if K.prof: k("s_waitcnt lgkmcnt(0)")
        for m in range(DIST):
            for l in bread(m): k(l)
        for i in range(LA0, LA):
            for l in aload(p, i, FA): k(l)
        vq = [("A", i) for i in range(LA)]
        for m in range(NM):
            ks, j = divmod(m, NT)
            nout = 2 * (min(NM, m + DIST) - m - 1)
            if j == 0:
                pos = vq.index(("A", ks))
                k(f"s_waitcnt vmcnt({len(vq) - 1 - pos}) lgkmcnt({nout})")
            else:
                k(f"s_waitcnt lgkmcnt({nout})")
            cc = vr(ACC + 16*j, 16) if (ks or p != 4) else "0"
            k(f"v_mfma_f32_32x32x16_bf16 {vr(ACC + 16*j, 16)}, {vr(FB + (m % NFB) * 4, 4)}, {vr(FA + (ks % NFA) * 4, 4)}, {cc}")
            if m + DIST < NM:
                for l in bread(m + DIST): k(l)
            if m in mid:
                for l in mid[m](len(vq) - 1 - max(i for i, e in enumerate(vq) if e[0] == "R") if any(e[0] == "R" for e in vq) else 0): k(l)
            if j == 0 and ks + LA < NKS:
                if "noal" not in X:
                    for l in aload(p, ks + LA, FA): k(l)
                vq.append(("A", ks + LA))
            if j == 0 and late and ks + LA + 4 >= NKS:
                for l in late.pop(0): k(l)
                vq.append(("R", 0))
        assert not late
        return FB, FA
    def sync(pdone, pwait, nflags, name, slp=0, extra=False):
        publish(k, sW, pdone, 94, s_t0, vt[0], vt[1], not (pdone == 2 and "headmap" in X))
        k(f"v_min_u32 v{vt[0]}, {nflags - 1}, v{v_lane}")
        k(f"s_lshl_b32 s{s_t0}, s{s_x}, 12"); k(f"s_add_u32 s{s_t0}, s{s_t0}, {FL_OFF + (pwait - 1) * 32768}")
        k(f"v_lshl_add_u32 v{vt[0]}, v{vt[0]}, 7, s{s_t0}")
        if extra:
            k(f"s_lshl_b32 s{s_t0}, s{s_cb4}, 11"); k(f"s_add_u32 s{s_t0}, s{s_t0}, {FL_OFF + 15 * 128}")
            k(f"v_writelane_b32 v{vt[0]}, s{s_t0}, 63")
        poll(k, sW, [vt[0]], [vt[1]], s_it, name, slp)

    setup(3)
    k("s_waitcnt lgkmcnt(0)")
    srd(k, sW, 40, 41, WS_END)
    late = setup2(3)
    k(f"s_cmp_ge_u32 s{s_act}, 8"); k(f"s_cbranch_scc1 {k.L('nores')}")
    def res_to_acc(R):
        for c in range(4 if R == XR else 0):
            k(f"v_permlane32_swap_b32 v{R + 4*c}, v{R + 4*c + 2}")
            k(f"v_permlane32_swap_b32 v{R + 4*c + 1}, v{R + 4*c + 3}")
        for r in range(16):
            k(f"v_lshlrev_b32 v{ACC + 2*r}, 16, v{R + r}")
            k(f"v_and_b32 v{ACC + 2*r + 1}, 0xffff0000, v{R + r}")
    k("s_waitcnt vmcnt(0)")
    k("s_barrier")
    k(f"s_cmp_ge_u32 s{s_idx}, 30"); k(f"s_cbranch_scc1 L_exit")
    res_to_acc(XR)
    k("s_barrier")
    k.stamp(7)
    FB, FA = gemm(3, late, False)
    if "st45" in X: k.stamp(2)
    k(f"v_mov_b32 v{vt[0]}, 0"); k(f"v_mov_b32 v{vt[1]}, 0"); k(f"s_mov_b32 s{s_t1}, 0x3f803f80")
    loc_vcc(k)
    for hf in range(2):
        for r in range(8*hf, 8*hf + 8):
            k(f"v_cvt_pk_bf16_f32 v{RES + r}, v{ACC + 2*r}, v{ACC + 2*r + 1}")
        dstores(k, [f"buffer_store_dwordx4 {vr(RES + 4*c, 4)}, v{vO}, s[{sW}:{sW+3}], s{48 + c} offen" for c in (2*hf, 2*hf + 1)])
    for r in range(16):
        k(f"v_dot2c_f32_bf16 v{vt[0]}, s{s_t1}, v{RES + r}")
        k(f"v_dot2c_f32_bf16 v{vt[1]}, v{RES + r}, v{RES + r}")
    k(f"v_mov_b32 v{vt[2]}, v{vt[0]}"); k(f"v_mov_b32 v{vt[3]}, v{vt[1]}")
    k(f"v_permlane32_swap_b32 v{vt[0]}, v{vt[2]}"); k(f"v_permlane32_swap_b32 v{vt[1]}, v{vt[3]}")
    k(f"v_add_f32 v{vt[0]}, v{vt[0]}, v{vt[2]}"); k(f"v_add_f32 v{vt[1]}, v{vt[1]}, v{vt[3]}")
    k("s_mov_b32 exec_hi, 0")
    dstores(k, [f"buffer_store_dwordx2 {vr(vt[0], 2)}, v{vS}, s[{sW}:{sW+3}], 0 offen"])
    k("s_mov_b32 exec_hi, -1")
    k(f"s_branch {k.L('pb3')}")
    k.label(k.L("nores"))
    k("s_waitcnt vmcnt(0)")
    k("s_barrier")
    k(f"s_cmp_lg_u32 s{s_w}, 3"); k(f"s_cbranch_scc1 {k.L('ns3')}")
    k(f"s_cmp_lt_u32 s{s_idx}, 30"); k(f"s_cbranch_scc1 {k.L('s3')}")
    publish(k, sW, 2, 94, s_t0, vt[0], vt[1], "headmap" not in X)
    k("s_endpgm")
    k.label(k.L("s3"))
    sync(2, 2, 32, "3")
    k(f"s_cmp_lg_u32 s{s_idx}, 0"); k(f"s_cbranch_scc1 {k.L('ns3')}")
    k(f"s_lshl_b32 s{s_t0}, s{s_x}, 7"); k(f"s_add_u32 s{s_t0}, s{s_t0}, {GD_OFF}")
    k(f"v_mov_b32 v{vt[0]}, 0"); k(f"v_mov_b32 v{vt[1]}, s{S_TAG}")
    k("s_mov_b64 exec, 1")
    k(f"buffer_store_dword v{vt[1]}, v{vt[0]}, s[{sW}:{sW+3}], s{s_t0} offen sc1")
    k("s_mov_b64 exec, -1")
    k.label(k.L("ns3"))
    k(f"s_cmp_ge_u32 s{s_idx}, 30"); k(f"s_cbranch_scc1 L_exit")
    nbar(6)
    k.label(k.L("pb3"))
    k(f"s_lshl_b32 s94, s{s_x}, 5"); k(f"s_add_u32 s94, s94, s{s_idx}")
    k(f"s_cmp_ge_u32 s{s_idx}, 28"); k(f"s_cbranch_scc1 {k.L('skip4')}")
    setup(4)
    late = setup2(4)
    k("s_waitcnt vmcnt(0)")
    k("s_barrier")
    if "st2" not in X: k.stamp(8)
    k(f"s_cmp_lg_u32 s{s_w}, 3"); k(f"s_cbranch_scc1 {k.L('ns4')}")
    sync(3, 3, 30, "4", extra=True)
    k.label(k.L("ns4"))
    k("s_barrier")
    if "st2" not in X: k.stamp(9)
    PS = BI; MR = BI + 12
    kk = K("tmp")
    for i in range(1, 5): kk(f"v_add_f32 v{PS}, v{PS}, v{PS + 2*i}"); kk(f"v_add_f32 v{PS+1}, v{PS+1}, v{PS + 2*i + 1}")
    kk(f"v_mov_b32 v{PS+2}, v{PS}"); kk(f"v_mov_b32 v{PS+3}, v{PS+1}")
    kk(f"v_permlane32_swap_b32 v{PS}, v{PS+2}"); kk(f"v_permlane32_swap_b32 v{PS+1}, v{PS+3}")
    kk(f"v_add_f32 v{PS}, v{PS}, v{PS+2}"); kk(f"v_add_f32 v{PS+1}, v{PS+1}, v{PS+3}")
    rowstat_math(kk, PS, PS + 1, MR, MR + 1, PS + 2, True)
    kk(f"v_mul_f32 v{MR+1}, {f32(GS)}, v{MR+1}")
    kk(f"v_lshlrev_b32 v{vt[0]}, 4, v{v_h}"); kk(f"v_add_u32 v{vt[0]}, {SB}, v{vt[0]}")
    st = kk.lines; mid = {}
    m0_ = 160 - (len(st) + 1) // 2 - 1
    for i in range(0, len(st), 2):
        mid[m0_ + i // 2] = (lambda n, i=i: ([f"s_waitcnt vmcnt({n})"] if i == 0 else []) + st[i:i + 2])
    FB, FA = gemm(4, late, False, mid)
    if "st45" in X: k.stamp(3)
    if "st4" in X: k.stamp(2)
    k("s_barrier")
    if "st4" in X: k.stamp(3)
    T = FB; CSB = [FB + 32, FB + 64]
    def csread(nt):
        for rq in range(8):
            k(f"ds_read_b128 {vr(CSB[nt % 2] + rq*4, 4)}, v{vt[0]} offset:{(rq // 4) * 512 + nt*128 + (rq % 4)*32}")
    csread(0)
    k(f"s_mov_b32 s58, {f32(GC0 / GS)}"); k(f"s_mov_b32 s59, {f32(math.log2(GS))}")
    k(f"s_mov_b32 s36, {f32(GS)}")
    loc_vcc(k)
    for nt in range(4):
        if nt == 2:
            k(f"s_cmp_eq_u32 s{s_cb4}, 13"); k(f"s_cbranch_scc1 {k.L('done4')}")
            k(f"v_add_u32 v{vO}, {8 * CH}, v{vO}")
        k("s_waitcnt lgkmcnt(0)")
        if nt < 3: csread(nt + 1)
        a = ACC + 16 * nt; CS = CSB[nt % 2]; B1 = CS + 16
        for p in range(8):
            x = vr(a + 2*p, 2)
            k(f"v_pk_fma_f32 {x}, {vr(CS + 2*p, 2)}, {vr(MR,2)}, {x} op_sel_hi:[1,0,1]")
        for p in range(8):
            x = vr(a + 2*p, 2)
            k(f"v_pk_fma_f32 {x}, {x}, {vr(MR,2)}, {vr(B1 + 2*p, 2)} op_sel:[0,1,0] op_sel_hi:[1,1,1]")
        for p in range(8):
            x = vr(a + 2*p, 2); t = vr(T + 2*p, 2)
            k(f"v_pk_fma_f32 {t}, {x}, {x}, s[58:59] op_sel_hi:[1,1,0]")
        for p in range(8):
            x = vr(a + 2*p, 2); t = vr(T + 2*p, 2)
            k(f"v_pk_fma_f32 {t}, {t}, {x}, s[58:59] op_sel:[0,0,1] op_sel_hi:[1,1,1] neg_lo:[0,1,0] neg_hi:[0,1,0]")
        for r in range(16): k(f"v_exp_f32 v{T + r}, v{T + r}")
        for p in range(8):
            t = vr(T + 2*p, 2)
            k(f"v_pk_add_f32 {t}, {t}, s[36:37] op_sel_hi:[1,0]")
        for r in range(16): k(f"v_rcp_f32 v{T + r}, v{T + r}")
        for p in range(8):
            x = vr(a + 2*p, 2); t = vr(T + 2*p, 2)
            k(f"v_pk_mul_f32 {x}, {x}, {t}")
        Pk = T + 16 + (nt % 2) * 8
        for p in range(8):
            k(f"v_cvt_pk_bf16_f32 v{Pk + p}, v{a + 2*p}, v{a + 2*p + 1}")
        dstores(k, [f"buffer_store_dwordx4 {vr(Pk + 4*pq,4)}, v{vO}, s[{sW}:{sW+3}], s{48 + (nt % 2)*2 + pq} offen" for pq in range(2)])
    k.label(k.L("done4"))
    if "st4" in X: k.stamp(4)
    k("s_waitcnt vmcnt(0) lgkmcnt(0)")
    if "st4" in X: k.stamp(5)
    k("s_barrier")
    k.stamp(10)
    k(f"s_cmp_lg_u32 s{s_w}, 3"); k(f"s_cbranch_scc1 {k.L('p5')}")
    sync(4, 4, 28, "5")
    k(f"s_branch {k.L('p5')}")
    k.label(k.L("skip4"))
    k("s_waitcnt vmcnt(0)")
    k("s_barrier")
    k(f"s_cmp_lg_u32 s{s_w}, 3"); k(f"s_cbranch_scc1 {k.L('p5')}")
    sync(3, 4, 28, "6", 8)
    k.label(k.L("p5"))
    k(f"s_cmp_ge_u32 s{s_act}, 8"); k(f"s_cbranch_scc1 {k.L('idle5')}")
    setup(5)
    late = setup2(5)
    res_to_acc(RES)
    k("s_waitcnt vmcnt(0)")
    T = ACC + 64
    for r in range(16):
        k(f"v_lshlrev_b32 v{T + 2*r}, 16, v{BI + r}")
        k(f"v_and_b32 v{T + 2*r + 1}, 0xffff0000, v{BI + r}")
    for r in range(16):
        k(f"v_pk_add_f32 {vr(ACC + 2*r, 2)}, {vr(ACC + 2*r, 2)}, {vr(T + 2*r, 2)}")
    k("s_barrier")
    k.stamp(11)
    FB, FA = gemm(5, late, False)
    if "st4" in X: k.stamp(6)
    if "st45" in X: k.stamp(4)
    for c in range(4):
        for r in range(4*c, 4*c + 4):
            k(f"v_cvt_pk_bf16_f32 v{RES + r}, v{ACC + 2*r}, v{ACC + 2*r + 1}")
        k(f"v_permlane32_swap_b32 v{RES + 4*c}, v{RES + 4*c + 2}")
        k(f"v_permlane32_swap_b32 v{RES + 4*c + 1}, v{RES + 4*c + 3}")
        k(f"buffer_store_dwordx4 {vr(RES + 4*c, 4)}, v{vO}, s[{sO}:{sO+3}], 0 offen offset:{32*c}")
    if "g3" in X: gate(k, 70)
    k.dump(0, 14, s_wid)
    k("s_endpgm")
    k.label(k.L("idle5"))
    k("s_barrier")
    if "wbl2" in X:
        k(f"s_cmp_lg_u32 s{s_idx}, 0"); k("s_cbranch_scc1 L_exit")
        k("buffer_wbl2 sc1")
    k.label("L_exit")
    k("s_endpgm")
    emit_slow(k)

NAME = "sequential_preLN__mha_block__mixer_channel_mlp__prompt"
HEADER = open(f"cdna_kernels/{NAME}.s.ref").read().split("; Override")[0]

def build(path):
    k = K(NAME)
    phase1(k); phase2(k); phase345(k)
    lds = MRG + 8 * 3328
    t = HEADER
    if "aslist" in X:
        t += f"; @launch kernel={k.name}_kernel grid=(256,1,1) block=(512,1,1) lds={lds}\n"
    else:
        t += f"; @launch grid=(256,1,1) block=(512,1,1) lds={lds}\n"
    t += '.amdgcn_target "amdgcn-amd-amdhsa--gfx950"\n.text\n'
    t += kernel_text(k, 256)
    t += "L_code_end:\n"
    t += '.section .rodata,"a"\n'
    t += kernel_desc(k, 256, 96)
    open(path, "w").write(t)

if __name__ == "__main__":
    if len(sys.argv) > 2 and sys.argv[2] == "prof": K.prof = True
    build(sys.argv[1] if len(sys.argv) > 1 else f"cdna_kernels/{NAME}.s")
```

```python
import sys, math, struct, os
X = set(os.environ.get("EXP", "").split(","))
from asmlib import K, vr, sr, kernel_text, kernel_desc

S = 2048; D = 640; F = 1728; H = 32; DH = 20
QK_OFF = 0x0
V_OFF = 0x500000
QKV_END = 0x780000
O_OFF = 0x0
H_OFF = 0x780000
G_OFF = 0x0
HS_OFF = 0xA00000
C1_OFF = 0x1370000
ST_OFF = 0x1378000
FL_OFF = 0x1400000
FX_OFF = 0x1420000
TAG_OFF = 0x1428000
GD_OFF = 0x1428400
WS_END = 0x1428800
S_LOC = 95
LOCW = 131072 + 1024
S_TAG = 88; S_WID = 89
XR = 216; XRA = 215
MRG = 131072 + 2048
G_END = 0x1340000
CH = S * 16
EPS = 1e-5
GC0 = 2.0 * math.log2(math.e) * math.sqrt(2.0 / math.pi)
GS = (GC0 * 0.044715) ** (1.0 / 3.0)

def f32(x):
    return "0x%08x" % struct.unpack("<I", struct.pack("<f", x))[0]

def srd(k, d, lo, hi, size):
    k(f"s_mov_b32 s{d}, s{lo}")
    k(f"s_and_b32 s{d+1}, s{hi}, 0xffff")
    k(f"s_mov_b32 s{d+2}, {size:#x}")
    k(f"s_mov_b32 s{d+3}, 0x00020000")

def code_prefetch(k, first, sd, st, vaddr, vdst, v_lane, per=12):
    lab = k.L("pc%d" % k.uid); k.uid += 1
    k(f"s_getpc_b64 s[{sd}:{sd+1}]")
    k.label(lab)
    k(f"s_add_u32 s{sd}, s{sd}, {first}-{lab}")
    k(f"s_addc_u32 s{sd+1}, s{sd+1}, {'-1' if first == k.name + '_kernel' else '0'}")
    k(f"s_and_b32 s{sd+1}, s{sd+1}, 0xffff")
    k(f"s_mov_b32 s{sd+2}, L_code_end-{first}")
    k(f"s_mov_b32 s{sd+3}, 0x00020000")
    k(f"s_lshr_b32 s{st}, s2, 3"); k(f"s_mul_i32 s{st}, s{st}, {per * 128}")
    k(f"v_lshlrev_b32 v{vaddr}, 7, v{v_lane}")
    k(f"s_mov_b64 exec, {(1 << per) - 1:#x}")
    k(f"buffer_load_dword v{vdst}, v{vaddr}, s[{sd}:{sd+3}], s{st} offen")
    k("s_mov_b64 exec, -1")

def gate(k, us):
    lab = k.L("gate%d" % k.uid); k.uid += 1
    k("s_load_dwordx2 s[80:81], s[0:1], 80"); k("s_waitcnt lgkmcnt(0)")
    k(f"s_add_u32 s80, s80, {TAG_OFF + 4}"); k("s_addc_u32 s81, s81, 0")
    k("s_load_dword s82, s[80:81], 0"); k("s_waitcnt lgkmcnt(0)")
    k.label(lab)
    k("s_memrealtime s[84:85]"); k("s_waitcnt lgkmcnt(0)")
    k("s_sub_u32 s84, s84, s82")
    k(f"s_cmp_lt_u32 s84, {us * 100}"); k(f"s_cbranch_scc1 {lab}")

def rowstat_math(k, s_, q_, nm, rs, t, double):
    k(f"v_mul_f32 v{nm}, {f32(-1.0 / D)}, v{s_}")
    k(f"v_mul_f32 v{q_}, {f32(1.0 / D)}, v{q_}")
    k(f"v_fma_f32 v{q_}, -v{nm}, v{nm}, v{q_}")
    k(f"v_max_f32 v{q_}, 0, v{q_}")
    k(f"v_add_f32 v{t}, {f32(EPS)}, v{q_}")
    k(f"v_rsq_f32 v{rs}, v{t}")
    if double:
        k(f"v_mul_f32 v{t}, v{rs}, v{rs}")
        k(f"v_mul_f32 v{t}, v{t}, v{q_}")
        k(f"v_add_f32 v{t}, {f32(EPS)}, v{t}")
        k(f"v_rsq_f32 v{t}, v{t}")
        k(f"v_mul_f32 v{rs}, v{rs}, v{t}")


SLOW = []

def loc_vcc(k):
    if "noloc" in X: k(f"s_mov_b32 s{S_LOC}, 0")
    k(f"s_cmp_lg_u32 s{S_LOC}, 0"); k("s_cselect_b64 vcc, -1, 0")

def dstores(k, lines):
    n = len(SLOW)
    k(f"s_cbranch_vccz L_slow{n}")
    for l in lines: k(l)
    k.label(f"L_back{n}")
    SLOW.append([l + (" sc1" if l.startswith("buffer") else "") for l in lines])

def emit_slow(k):
    for n, lines in enumerate(SLOW):
        k.label(f"L_slow{n}")
        for l in lines: k(l)
        k(f"s_branch L_back{n}")

def publish(k, sW, ph, s_idx, s_t, v0_, v1_, local=False):
    k(f"s_lshl_b32 s{s_t}, s{s_idx}, 7"); k(f"s_add_u32 s{s_t}, s{s_t}, {FL_OFF + (ph - 1) * 32768}")
    k(f"v_mov_b32 v{v0_}, 0"); k(f"v_mov_b32 v{v1_}, s{S_TAG}")
    k("s_mov_b64 exec, 1")
    st = f"buffer_store_dword v{v1_}, v{v0_}, s[{sW}:{sW+3}], s{s_t} offen"
    if local:
        loc_vcc(k); dstores(k, [st])
    else:
        k(st + " sc1")
    k("s_mov_b64 exec, -1")

def poll(k, sW, vaddrs, vdsts, s_it, name, slp=0):
    if len(vaddrs) > 1 and "nopp" not in X:
        k(f"buffer_load_dword v{vdsts[1]}, v{vaddrs[1]}, s[{sW}:{sW+3}], 0 offen sc1")
    if "nopp" not in X:
        ND = int(os.environ.get("PPD", "0")); R = [248 + i for i in range(ND + 1)]
        gap = slp or int(os.environ.get("PPS", "1"))
        k(f"s_mov_b32 s{s_it}, 0")
        k("s_mov_b64 s[90:91], -1")
        for i in range(ND):
            k(f"buffer_load_dword v{R[i]}, v{vaddrs[0]}, s[{sW}:{sW+3}], 0 offen sc1")
            k(f"s_sleep {gap}")
        k.label(k.L("poll" + name))
        for i in range(ND + 1):
            k(f"buffer_load_dword v{R[(i + ND) % (ND + 1)]}, v{vaddrs[0]}, s[{sW}:{sW+3}], 0 offen sc1")
            k(f"s_waitcnt vmcnt({ND})")
            k(f"v_cmp_ne_u32 vcc, s{S_TAG}, v{R[i]}")
            k("s_and_b64 exec, exec, vcc")
            k(f"s_cbranch_execz {k.L('go' + name)}")
            k(f"s_sleep {gap}")
        k(f"s_add_u32 s{s_it}, s{s_it}, 1")
        k(f"s_cmp_lt_u32 s{s_it}, 0x4000")
        k(f"s_cbranch_scc1 {k.L('poll' + name)}")
        k.label(k.L("go" + name))
        k("s_mov_b64 exec, -1")
        if len(vaddrs) == 1: return
        vaddrs = vaddrs[1:]; vdsts = vdsts[1:]; name += "b"
        k(f"v_cmp_ne_u32 vcc, s{S_TAG}, v{vdsts[0]}")
        k(f"s_cbranch_vccz {k.L('go' + name)}")
    k(f"s_mov_b32 s{s_it}, 0")
    k.label(k.L("poll" + name))
    for va, vd in zip(vaddrs, vdsts):
        k(f"buffer_load_dword v{vd}, v{va}, s[{sW}:{sW+3}], 0 offen sc1")
    k(f"s_add_u32 s{s_it}, s{s_it}, 1")
    k("s_waitcnt vmcnt(0)")
    k(f"v_cmp_ne_u32 vcc, s{S_TAG}, v{vdsts[0]}")
    for vd in vdsts[1:]:
        k(f"v_cmp_ne_u32 s[90:91], s{S_TAG}, v{vd}")
        k("s_or_b64 vcc, vcc, s[90:91]")
    k(f"s_cbranch_vccz {k.L('go' + name)}")
    if slp: k(f"s_sleep {slp}")
    k(f"s_cmp_lt_u32 s{s_it}, 0x8000")
    k(f"s_cbranch_scc1 {k.L('poll' + name)}")
    k.label(k.L("go" + name))

def phase1(k):
    k.pref = "p1"
    kind = "qkv"; qkv = True
    NB = 1920 if qkv else F
    BROW = NB * 2
    NS = 4; SLOT = 32768; NST = 10
    SB = NS * SLOT
    SL = SB + 2048
    sA, sB, sW, sBi = 4, 8, 12, 16
    s_mb, s_nb, s_w = 20, 21, 22
    s_wm, s_wn = 23, 24
    s_offA, s_offB, s_m0, s_it, s_delta, s_t0, s_t1, s_slot = 25, 26, 27, 28, 29, 30, 31, 32
    s_ones = 33
    s_wid = S_WID
    v_lane, v_t, v_h = 1, 2, 3
    vAd = [4, 5, 6, 7]; vBd = [8, 9, 10, 11]
    vBr = [12, 13]
    v_b1 = 17
    vt = [18, 19, 20, 21, 22, 23]
    vAr = [24, 25, 26, 27]
    FA = [[32 + 16 * i, 36 + 16 * i] for i in range(4)]
    FB = [[40 + 16 * i, 44 + 16 * i] for i in range(4)]
    ACC = 96
    def acc(mt, nt): return ACC + (mt * 2 + nt) * 16
    EP = 160
    kidx = 0 if qkv else 3

    if "early" in X: k("s_memrealtime s[86:87]")
    if "perm" in X:
        k("s_lshr_b32 s3, s2, 3"); k("s_and_b32 s3, s3, 7"); k("s_xor_b32 s2, s2, s3")
    k.stamp(0); k.stamp(1, True)
    k(f"s_cmp_ge_u32 s2, 256"); k(f"s_cbranch_scc1 L_exit")
    if qkv:
        k("s_load_dwordx4 s[36:39], s[0:1], 0")
        k("s_load_dwordx4 s[40:43], s[0:1], 72")
        WSL = 42
    else:
        k("s_load_dwordx2 s[36:37], s[0:1], 32")
        k("s_load_dwordx2 s[40:41], s[0:1], 80")
        WSL = 40
    k(f"s_and_b32 s{s_t0}, s2, 7"); k(f"s_lshr_b32 s{s_t1}, s2, 3")
    if qkv:
        k(f"s_lshr_b32 s{s_mb}, s{s_t0}, 1"); k(f"s_lshl_b32 s{s_mb}, s{s_mb}, 2")
        k(f"s_and_b32 s{s_nb}, s{s_t1}, 3"); k(f"s_add_u32 s{s_mb}, s{s_mb}, s{s_nb}")
        k(f"s_and_b32 s{s_nb}, s{s_t0}, 1"); k(f"s_lshl_b32 s{s_nb}, s{s_nb}, 3")
        k(f"s_lshr_b32 s{s_t1}, s{s_t1}, 2"); k(f"s_add_u32 s{s_nb}, s{s_nb}, s{s_t1}")
    else:
        k(f"s_lshl_b32 s{s_mb}, s{s_t0}, 1"); k(f"s_and_b32 s{s_nb}, s{s_t1}, 1"); k(f"s_add_u32 s{s_mb}, s{s_mb}, s{s_nb}")
        k(f"s_lshr_b32 s{s_nb}, s{s_t1}, 1")
    k(f"v_lshrrev_b32 v{vt[0]}, 6, v0")
    k(f"v_and_b32 v{v_lane}, 63, v0")
    k(f"v_readfirstlane_b32 s{s_wid}, v{vt[0]}")
    k(f"v_and_b32 v{v_t}, 31, v0")
    k(f"v_bfe_u32 v{v_h}, v0, 5, 1")
    k(f"s_and_b32 s{s_w}, s{s_wid}, 3")
    k(f"s_cmp_lt_u32 s{s_wid}, 4")
    k(f"s_cbranch_scc1 {k.L('compute')}")
    if qkv:
        k(f"s_cmp_ge_u32 s{s_nb}, 15"); k(f"s_cbranch_scc1 {k.L('auxl')}")
        k(f"v_lshrrev_b32 v{vt[0]}, 3, v{v_lane}")
        k(f"v_and_b32 v{vt[1]}, 7, v{v_lane}")
        k(f"v_lshrrev_b32 v{vt[2]}, 1, v{vt[0]}")
        k(f"v_xor_b32 v{vt[2]}, v{vt[2]}, v{vt[1]}")
        k(f"v_xor_b32 v{vt[3]}, 4, v{vt[2]}")
        k(f"s_lshl_b32 s{s_t0}, s{s_mb}, 7"); k(f"s_lshl_b32 s{s_t1}, s{s_w}, 5"); k(f"s_add_u32 s{s_t0}, s{s_t0}, s{s_t1}")
        k(f"v_add_u32 v{vt[0]}, s{s_t0}, v{vt[0]}")
        k(f"v_mul_u32_u24 v{vt[0]}, 1280, v{vt[0]}")
        for ii in range(4):
            k(f"v_lshl_add_u32 v{vAd[ii]}, v{vt[2 + (ii & 1)]}, 4, v{vt[0]}")
            if ii: k(f"v_add_u32 v{vAd[ii]}, {ii * (8 * 1280 - 1024)}, v{vAd[ii]}")
        stepA = 128
    else:
        k(f"s_lshl_b32 s{s_t0}, s{s_mb}, 11")
        k(f"s_mul_i32 s{s_t1}, s{s_w}, {2 * CH}")
        k(f"s_add_u32 s{s_t0}, s{s_t0}, s{s_t1}")
        k(f"s_add_u32 s{s_t0}, s{s_t0}, {H_OFF}")
        k(f"v_lshl_add_u32 v{vAd[0]}, v{v_lane}, 4, s{s_t0}")
        k(f"v_mov_b32 v{vAd[1]}, v{vAd[0]}")
        k(f"v_add_u32 v{vAd[2]}, {CH - 2048}, v{vAd[0]}")
        k(f"v_add_u32 v{vAd[3]}, {CH - 2048}, v{vAd[0]}")
        stepA = 8 * CH
    k(f"v_lshrrev_b32 v{vt[0]}, 4, v{v_lane}")
    k(f"v_and_b32 v{vt[1]}, 15, v{v_lane}")
    k(f"v_lshlrev_b32 v{vt[2]}, 2, v{vt[0]}")
    k(f"v_xor_b32 v{vt[1]}, v{vt[1]}, v{vt[2]}")
    k(f"s_lshl_b32 s{s_t0}, s{s_w}, 4")
    k(f"v_add_u32 v{vt[0]}, s{s_t0}, v{vt[0]}")
    k(f"v_mul_u32_u24 v{vt[0]}, {BROW}, v{vt[0]}")
    k(f"v_lshl_add_u32 v{vt[0]}, v{vt[1]}, 4, v{vt[0]}")
    k(f"s_lshl_b32 s{s_t0}, s{s_nb}, 8")
    k(f"v_add_u32 v{vBd[0]}, s{s_t0}, v{vt[0]}")
    for ii in range(1, 4):
        k(f"v_add_u32 v{vBd[ii]}, {ii * (4 * BROW - 1024)}, v{vBd[0]}")
    stepB = 64 * BROW
    ROT = os.environ.get("ROT", "2x1")
    if ROT:
        ncls, stp = (int(v) for v in ROT.split("x"))
        k(f"s_add_u32 s{s_slot}, s{s_mb}, s{s_nb}"); k(f"s_and_b32 s{s_slot}, s{s_slot}, {ncls - 1}"); k(f"s_mul_i32 s{s_slot}, s{s_slot}, {stp}")
        k(f"s_mul_i32 s{s_offA}, s{s_slot}, {stepA}"); k(f"s_mul_i32 s{s_offB}, s{s_slot}, {stepB}")
    else:
        k(f"s_mov_b32 s{s_offA}, 0"); k(f"s_mov_b32 s{s_offB}, 0")
    k(f"s_lshl_b32 s{s_m0}, s{s_w}, 12")
    k(f"s_mov_b32 s{s_it}, 0")
    k("s_waitcnt lgkmcnt(0)")
    if qkv:
        srd(k, sA, 36, 37, S * D * 2); srd(k, sB, 38, 39, D * NB * 2)
    else:
        srd(k, sB, 36, 37, D * NB * 2); srd(k, sW, WSL, WSL + 1, WS_END)
        sA = sW
    def dma_stage():
        r = []
        r.append(f"s_mov_b32 m0, s{s_m0}")
        for ii in range(4):
            r.append(f"buffer_load_dwordx4 v{vAd[ii]}, s[{sA}:{sA+3}], s{s_offA} offen offset:{ii*1024} lds")
        r.append(f"s_add_u32 m0, s{s_m0}, 16384")
        for ii in range(4):
            r.append(f"buffer_load_dwordx4 v{vBd[ii]}, s[{sB}:{sB+3}], s{s_offB} offen offset:{ii*1024} lds")
        r.append(f"s_add_u32 s{s_offA}, s{s_offA}, {stepA}")
        r.append(f"s_add_u32 s{s_offB}, s{s_offB}, {stepB}")
        if ROT:
            r.append(f"s_cmp_lg_u32 s{s_offA}, {10 * stepA}")
            r.append(f"s_cselect_b32 s{s_offA}, s{s_offA}, 0")
            r.append(f"s_cselect_b32 s{s_offB}, s{s_offB}, 0")
        r.append(f"s_add_u32 s{s_m0}, s{s_m0}, {SLOT}")
        r.append(f"s_and_b32 s{s_m0}, s{s_m0}, {NS * SLOT - 1}")
        return r
    def lstep(n=8, dma=True):
        if dma:
            for l in dma_stage(): k(l)
        k(f"s_waitcnt vmcnt({n})")
        k("s_barrier")
    def lloop(tag, n):
        k(f"s_mov_b32 s{s_it}, 0")
        k.label(k.L("lloop" + tag))
        lstep()
        k(f"s_add_u32 s{s_it}, s{s_it}, 1")
        k(f"s_cmp_lt_u32 s{s_it}, {n}")
        k(f"s_cbranch_scc1 {k.L('lloop' + tag)}")
    XS = 32
    v_tag = 16
    RG_OFF = ST_OFF; CG_OFF = ST_OFF + 32768
    def slice_addr_rows():
        k(f"v_lshrrev_b32 v{vt[4]}, 4, v{v_lane}")
        k(f"v_and_b32 v{vt[5]}, 15, v{v_lane}")
        k(f"v_mul_u32_u24 v{vt[4]}, 1280, v{vt[4]}")
        k(f"v_lshl_add_u32 v{vt[4]}, v{vt[5]}, 4, v{vt[4]}")
        k(f"s_lshl_b32 s{s_t0}, s{s_mb}, 5"); k(f"s_lshl_b32 s{s_t1}, s{s_nb}, 1"); k(f"s_add_u32 s{s_t0}, s{s_t0}, s{s_t1}")
        k(f"s_add_u32 s{s_delta}, s{s_t0}, s{s_w}"); k(f"s_mul_i32 s{s_t0}, s{s_delta}, {4 * 1280}")
    def slice_load_rows():
        for i in range(5):
            k(f"buffer_load_dwordx4 {vr(XS + 4*i, 4)}, v{vt[4]}, s[{sA}:{sA+3}], s{s_t0} offen offset:{256 * i}")
    def tag_load():
        k(f"v_mov_b32 v15, 0")
        k(f"buffer_load_dword v{v_tag}, v15, s[{sBi}:{sBi+3}], 0 offen sc1")
    def tag_wait(tag):
        k(f"s_mov_b32 s{s_it}, 0")
        k.label(k.L("tw" + tag))
        k(f"v_cmp_eq_u32 vcc, 0, v{v_tag}")
        k(f"s_cbranch_vccz {k.L('tr' + tag)}")
        k("s_sleep 2")
        k(f"buffer_load_dword v{v_tag}, v15, s[{sBi}:{sBi+3}], 0 offen sc1")
        k(f"s_add_u32 s{s_it}, s{s_it}, 1")
        k("s_waitcnt vmcnt(0)")
        k(f"s_cmp_lt_u32 s{s_it}, 0x4000")
        k(f"s_cbranch_scc1 {k.L('tw' + tag)}")
        k.label(k.L("tr" + tag))
    def slice_rows(part):
        if part == 0:
            k("v_mov_b32 v56, 0"); k("v_mov_b32 v57, 0"); k("v_mov_b32 v58, 0"); k("v_mov_b32 v59, 0")
        for r in (range(13) if part == 0 else range(13, 20)):
            k(f"v_lshlrev_b32 v52, 16, v{XS + r}")
            k(f"v_and_b32 v53, 0xffff0000, v{XS + r}")
            k("v_add_f32 v56, v56, v52"); k("v_fmac_f32 v57, v52, v52")
            k("v_add_f32 v58, v58, v53"); k("v_fmac_f32 v59, v53, v53")
        if part == 0: return
        k("v_add_f32 v56, v56, v58"); k("v_add_f32 v57, v57, v59")
        for sh in (8, 4, 2, 1):
            k(f"v_add_f32_dpp v56, v56, v56 row_ror:{sh} row_mask:0xf bank_mask:0xf")
            k(f"v_add_f32_dpp v57, v57, v57 row_ror:{sh} row_mask:0xf bank_mask:0xf")
        rowstat_math(k, 56, 57, 60, 62, 52, False)
        k(f"v_mov_b32 v61, v{v_tag}"); k(f"v_mov_b32 v63, v{v_tag}")
        k(f"s_lshl_b32 s{s_t0}, s{s_delta}, 6"); k(f"s_add_u32 s{s_t0}, s{s_t0}, {RG_OFF}")
        k("s_mov_b32 exec_lo, 0x00010001"); k("s_mov_b32 exec_hi, 0x00010001")
        k(f"buffer_store_dwordx4 v[60:63], v{v_lane}, s[{sW}:{sW+3}], s{s_t0} offen sc1")
        k("s_mov_b64 exec, -1")
    def slice_cols(part):
        if part == 0:
            for r in range(4):
                k(f"v_lshlrev_b32 v{56 + 2*r}, 16, v{XS + r}"); k(f"v_and_b32 v{57 + 2*r}, 0xffff0000, v{XS + r}")
            for i in range(1, 5):
                for r in range(4):
                    k(f"v_lshlrev_b32 v52, 16, v{XS + 4*i + r}"); k(f"v_and_b32 v53, 0xffff0000, v{XS + 4*i + r}")
                    k(f"v_add_f32 v{56 + 2*r}, v{56 + 2*r}, v52"); k(f"v_add_f32 v{57 + 2*r}, v{57 + 2*r}, v53")
            return
        for r in range(4): k(f"v_permlane32_swap_b32 v{56 + r}, v{60 + r}")
        for r in range(4): k(f"v_add_f32 v{56 + r}, v{56 + r}, v{60 + r}")
        for r in range(2): k(f"v_permlane16_swap_b32 v{56 + r}, v{58 + r}")
        k("v_add_f32 v56, v56, v58"); k("v_add_f32 v58, v57, v59")
        k(f"v_mov_b32 v57, v{v_tag}"); k(f"v_mov_b32 v59, v{v_tag}")
        k(f"v_and_b32 v{vt[4]}, 48, v{v_lane}")
        k(f"v_lshl_add_u32 v{vt[4]}, v{vt[5]}, 6, v{vt[4]}")
        k(f"s_mul_i32 s{s_t0}, s{s_delta}, 15360"); k(f"s_lshl_b32 s{s_t1}, s{s_nb}, 10"); k(f"s_add_u32 s{s_t0}, s{s_t0}, s{s_t1}")
        k(f"s_add_u32 s{s_t0}, s{s_t0}, {CG_OFF}")
        k(f"buffer_store_dwordx4 v[56:59], v{vt[4]}, s[{sW}:{sW+3}], s{s_t0} offen sc1")
    def slice_part(part):
        k(f"s_cmp_ge_u32 s{s_w}, 2"); k(f"s_cbranch_scc1 {k.L('slc%d' % part)}")
        slice_rows(part)
        k(f"s_branch {k.L('sld%d' % part)}")
        k.label(k.L("slc%d" % part))
        slice_cols(part)
        k.label(k.L("sld%d" % part))
    SLO = int(os.environ.get("SLO", "2"))
    for _ in range(SLO):
        for l in dma_stage(): k(l)
    if qkv:
        k(f"s_cmp_ge_u32 s{s_w}, 2"); k(f"s_cbranch_scc1 {k.L('slc')}")
        slice_addr_rows(); slice_load_rows()
        k(f"s_branch {k.L('sll')}")
        k.label(k.L("slc"))
        k(f"v_lshrrev_b32 v{vt[4]}, 4, v{v_lane}")
        k(f"v_and_b32 v{vt[5]}, 15, v{v_lane}")
        k(f"v_mul_u32_u24 v{vt[4]}, {BROW}, v{vt[4]}")
        k(f"v_lshl_add_u32 v{vt[4]}, v{vt[5]}, 4, v{vt[4]}")
        k(f"s_lshl_b32 s{s_delta}, s{s_mb}, 1"); k(f"s_add_u32 s{s_delta}, s{s_delta}, s{s_w}"); k(f"s_sub_u32 s{s_delta}, s{s_delta}, 2")
        k(f"s_mul_i32 s{s_t0}, s{s_delta}, {20 * BROW}"); k(f"s_lshl_b32 s{s_t1}, s{s_nb}, 8"); k(f"s_add_u32 s{s_t0}, s{s_t0}, s{s_t1}")
        for i in range(5):
            k(f"buffer_load_dwordx4 {vr(XS + 4*i, 4)}, v{vt[4]}, s[{sB}:{sB+3}], s{s_t0} offen")
            k(f"s_add_u32 s{s_t0}, s{s_t0}, {4 * BROW}")
        k.label(k.L("sll"))
        for _ in range(2 - SLO):
            for l in dma_stage(): k(l)
        srd(k, sW, WSL, WSL + 1, WS_END); srd(k, sBi, 40, 41, 256)
        lstep(13 if SLO else 8, False)
        tag_load()
        lstep(14 if SLO == 2 else 9)
        lstep(8)
        for l in dma_stage(): k(l)
        slice_part(0)
        lstep(8, False)
        for l in dma_stage(): k(l)
        tag_wait("a")
        slice_part(1)
        lstep(9, False)
        lstep(9)
        lstep(); lstep()
        for l in dma_stage(): k(l)
        k(f"s_lshl_b32 s{s_t0}, s{s_mb}, 11"); k(f"s_lshl_b32 s{s_t1}, s{s_w}, 9"); k(f"s_add_u32 s{s_t0}, s{s_t0}, s{s_t1}")
        k(f"s_add_u32 s{s_offA}, s{s_t0}, {RG_OFF}")
        k(f"v_lshlrev_b32 v{vt[0]}, 4, v{v_t}")
        k(f"v_lshrrev_b32 v{vt[1]}, 4, v{v_lane}")
        k(f"v_mul_u32_u24 v{vt[1]}, {8 * 15360}, v{vt[1]}")
        k(f"v_lshl_add_u32 v{vt[1]}, v{vt[5]}, 4, v{vt[1]}")
        k(f"s_lshl_b32 s{s_t0}, s{s_nb}, 10"); k(f"s_lshl_b32 s{s_t1}, s{s_w}, 8"); k(f"s_add_u32 s{s_t0}, s{s_t0}, s{s_t1}")
        k(f"s_add_u32 s{s_offB}, s{s_t0}, {CG_OFF}")
        def gather():
            k(f"buffer_load_dwordx4 v[64:67], v{vt[0]}, s[{sW}:{sW+3}], s{s_offA} offen sc1")
            k(f"s_mov_b32 s{s_t0}, s{s_offB}")
            for i in range(8):
                k(f"buffer_load_dwordx4 {vr(32 + 4*i, 4)}, v{vt[1]}, s[{sW}:{sW+3}], s{s_t0} offen sc1")
                k(f"s_add_u32 s{s_t0}, s{s_t0}, 15360")
        gather()
        lstep(17, False)
        lstep(9, False)
        k(f"s_mov_b32 s{s_it}, 0")
        k.label(k.L("poll"))
        k("s_waitcnt vmcnt(0)")
        k(f"v_and_b32 v68, v65, v67"); k(f"v_or_b32 v69, v65, v67")
        for i in range(16):
            k(f"v_and_b32 v68, v68, v{33 + 2*i}"); k(f"v_or_b32 v69, v69, v{33 + 2*i}")
        k(f"v_xor_b32 v68, v68, v{v_tag}"); k(f"v_xor_b32 v69, v69, v{v_tag}"); k("v_or_b32 v68, v68, v69")
        k(f"v_cmp_ne_u32 vcc, 0, v68")
        k(f"s_cbranch_vccz {k.L('ready')}")
        k("s_sleep 2")
        gather()
        k(f"s_add_u32 s{s_it}, s{s_it}, 1")
        k(f"s_cmp_lt_u32 s{s_it}, 0x2000")
        k(f"s_cbranch_scc1 {k.L('poll')}")
        k("s_waitcnt vmcnt(0)")
        k.label(k.L("ready"))
        k("v_add_f32 v33, v34, v38")
        for i in range(1, 8):
            k(f"v_add_f32 v32, v32, v{32 + 4*i}")
            if i > 1: k(f"v_add_f32 v33, v33, v{34 + 4*i}")
        k(f"s_cmp_lt_u32 s{s_nb}, 5")
        k(f"s_cselect_b32 s{s_t0}, {f32(math.log2(math.e) / math.sqrt(DH))}, 1.0")
        k(f"v_mul_f32 v65, s{s_t0}, v66")
        k(f"s_lshl_b32 s{s_t1}, s{s_w}, 7"); k(f"s_add_u32 s{s_t1}, s{s_t1}, {SB}")
        k(f"v_lshl_add_u32 v{vt[0]}, v{v_t}, 2, s{s_t1}")
        k(f"ds_write2_b32 v{vt[0]}, v64, v65 offset0:0 offset1:128")
        for sw in ("v_permlane32_swap_b32", "v_permlane16_swap_b32"):
            k("v_mov_b32 v34, v32"); k("v_mov_b32 v35, v33")
            k(f"{sw} v32, v34"); k(f"{sw} v33, v35")
            k("v_add_f32 v32, v32, v34"); k("v_add_f32 v33, v33, v35")
        k(f"v_lshl_add_u32 v{vt[1]}, v{vt[5]}, 3, s{s_t1}")
        k(f"ds_write_b64 v{vt[1]}, v[32:33] offset:1024")
        k("s_waitcnt lgkmcnt(0)")
        k("s_barrier")
    else:
        lloop("", 8)
        for l in dma_stage(): k(l)
        PS = 32
        k(f"s_lshl_b32 s{s_t0}, s{s_mb}, 7"); k(f"s_lshl_b32 s{s_t1}, s{s_w}, 5"); k(f"s_add_u32 s{s_t0}, s{s_t0}, s{s_t1}")
        k(f"v_add_lshl_u32 v{vt[2]}, v{v_t}, s{s_t0}, 3")
        k(f"v_mul_u32_u24 v{vt[1]}, {5 * 16384}, v{v_h}")
        k(f"v_add_u32 v{vt[2]}, v{vt[2]}, v{vt[1]}")
        for i in range(5):
            k(f"s_mov_b32 s{s_t0}, {HS_OFF + i * 16384}")
            k(f"buffer_load_dwordx2 {vr(PS + 2*i, 2)}, v{vt[2]}, s[{sW}:{sW+3}], s{s_t0} offen")
        k(f"s_lshl_b32 s{s_t0}, s{s_nb}, 10"); k(f"s_lshl_b32 s{s_t1}, s{s_w}, 8"); k(f"s_add_u32 s{s_t0}, s{s_t0}, s{s_t1}")
        k(f"s_add_u32 s{s_t0}, s{s_t0}, {C1_OFF}")
        k(f"s_add_u32 m0, s{s_t1}, {SB + 1024}")
        k(f"v_lshlrev_b32 v{vt[3]}, 2, v{v_lane}")
        k(f"buffer_load_dword v{vt[3]}, s[{sW}:{sW+3}], s{s_t0} offen lds")
        lstep(14, False)
        lstep(6, False)
        k("s_waitcnt vmcnt(0)")
        for i in range(1, 5):
            k(f"v_add_f32 v{PS}, v{PS}, v{PS + 2*i}"); k(f"v_add_f32 v{PS+1}, v{PS+1}, v{PS + 2*i + 1}")
        k(f"v_mov_b32 v{PS+2}, v{PS}"); k(f"v_mov_b32 v{PS+3}, v{PS+1}")
        k(f"v_permlane32_swap_b32 v{PS}, v{PS+2}"); k(f"v_permlane32_swap_b32 v{PS+1}, v{PS+3}")
        k(f"v_add_f32 v{PS}, v{PS}, v{PS+2}"); k(f"v_add_f32 v{PS+1}, v{PS+1}, v{PS+3}")
        rowstat_math(k, PS, PS + 1, 44, 45, PS + 2, True)
        k(f"s_lshl_b32 s{s_t1}, s{s_w}, 7"); k(f"s_add_u32 s{s_t1}, s{s_t1}, {SB}")
        k(f"v_lshl_add_u32 v{vt[3]}, v{v_t}, 2, s{s_t1}")
        k(f"ds_write_b32 v{vt[3]}, v44")
        k(f"ds_write_b32 v{vt[3]}, v45 offset:512")
        k("s_waitcnt lgkmcnt(0)")
        k("s_barrier")
    if not qkv: k.stamp(3); k.stamp(4); k.stamp(5); k.stamp(6)
    k(f"s_branch {k.L('end')}")
    k.label(k.L("compute"))
    if qkv:
        k(f"s_or_b32 s{s_t0}, s2, s{s_w}")
        k(f"s_cbranch_scc1 {k.L('notag')}")
        k("s_memrealtime s[44:45]")
        k("s_waitcnt lgkmcnt(0)")
        srd(k, sBi, 40, 41, 256)
        if "gate" in X: k(f"v_mov_b32 v{vt[2]}, s{86 if 'early' in X else 44}")
        k("s_mul_i32 s44, s44, 0x9e3779b1"); k("s_or_b32 s44, s44, 1")
        k(f"v_mov_b32 v{vt[0]}, 0"); k(f"v_mov_b32 v{vt[1]}, s44")
        k("s_mov_b64 exec, 1")
        k(f"buffer_store_dword v{vt[1]}, v{vt[0]}, s[{sBi}:{sBi+3}], 0 offen sc1")
        srd(k, sW, WSL, WSL + 1, WS_END)
        k(f"s_mov_b32 s{s_t0}, {TAG_OFF}")
        k(f"buffer_store_dword v{vt[1]}, v{vt[0]}, s[{sW}:{sW+3}], s{s_t0} offen sc1")
        if "gate" in X: k(f"buffer_store_dword v{vt[2]}, v{vt[0]}, s[{sW}:{sW+3}], s{s_t0} offen offset:4 sc1")
        k("s_mov_b64 exec, -1")
        k.label(k.L("notag"))
        if "nocpf" not in X:
            k(f"s_cmp_lg_u32 s{s_w}, 1"); k(f"s_cbranch_scc1 {k.L('nocpf')}")
            code_prefetch(k, k.name + "_kernel", sB, s_t0, vt[0], 14, v_lane)
            k.label(k.L("nocpf"))
        k(f"s_cmp_ge_u32 s{s_nb}, 15"); k(f"s_cbranch_scc1 {k.L('aux')}")
    k(f"s_lshr_b32 s{s_wm}, s{s_w}, 1"); k(f"s_and_b32 s{s_wn}, s{s_w}, 1")
    k(f"s_mov_b32 s34, {SLOT}")
    if qkv:
        k(f"v_bfe_u32 v{vt[0]}, v{v_t}, 1, 3")
        k(f"v_xor_b32 v{vt[0]}, v{vt[0]}, v{v_h}")
        k(f"s_lshl_b32 s{s_t0}, s{s_wm}, 13")
        k(f"v_lshl_add_u32 v{vt[1]}, v{v_t}, 7, s{s_t0}")
        for ks in range(4):
            k(f"v_xor_b32 v{vt[2]}, {2*ks}, v{vt[0]}")
            k(f"v_lshl_add_u32 v{vAr[ks]}, v{vt[2]}, 4, v{vt[1]}")
        def a_read(dst, ks, mt): return f"ds_read_b128 {vr(dst,4)}, v{vAr[ks]} offset:{mt*4096}"
        def a_upd(ks): return [vAr[ks]]
    else:
        k(f"s_lshl_b32 s{s_t0}, s{s_wm}, 10")
        k(f"v_lshl_add_u32 v{vt[0]}, v{v_t}, 4, s{s_t0}")
        k(f"v_lshl_add_u32 v{vAr[0]}, v{v_h}, 11, v{vt[0]}")
        def a_read(dst, ks, mt): return f"ds_read_b128 {vr(dst,4)}, v{vAr[0]} offset:{ks*4096 + mt*512}"
        def a_upd(ks): return [vAr[0]] if ks == 0 else []
    k(f"v_bfe_u32 v{vt[0]}, v{v_lane}, 2, 2")
    k(f"v_lshl_add_u32 v{vt[1]}, v{v_h}, 3, v{vt[0]}")
    k(f"v_lshlrev_b32 v{vt[1]}, 8, v{vt[1]}")
    k(f"v_bfe_u32 v{vt[2]}, v{v_lane}, 4, 1")
    k(f"v_lshl_add_u32 v{vt[1]}, v{vt[2]}, 5, v{vt[1]}")
    k(f"v_and_b32 v{vt[2]}, 3, v{v_lane}")
    k(f"v_lshl_add_u32 v{vt[1]}, v{vt[2]}, 3, v{vt[1]}")
    k(f"v_add_u32 v{vt[1]}, 16384, v{vt[1]}")
    k(f"s_lshl_b32 s{s_t0}, s{s_wn}, 1")
    k(f"v_xor_b32 v{vt[2]}, s{s_t0}, v{vt[0]}")
    k(f"v_lshl_add_u32 v{vBr[0]}, v{vt[2]}, 6, v{vt[1]}")
    k(f"v_xor_b32 v{vBr[1]}, 64, v{vBr[0]}")
    def b_read(dst, ks, nt, e): return f"ds_read_b64_tr_b16 {vr(dst + 2*e, 2)}, v{vBr[nt]} offset:{ks*4096 + e*1024}"
    for r in range(64): k(f"v_mov_b32 v{ACC + r}, 0")
    k(f"s_mov_b32 s{s_it}, 0"); k(f"s_mov_b32 s{s_slot}, 0")
    k("s_waitcnt lgkmcnt(0)")
    srd(k, sW, WSL, WSL + 1, WS_END)

    def reads(ks):
        return [a_read(FA[ks][0], ks, 0), b_read(FB[ks][0], ks, 0, 0), b_read(FB[ks][0], ks, 0, 1),
                b_read(FB[ks][1], ks, 1, 0), b_read(FB[ks][1], ks, 1, 1), a_read(FA[ks][1], ks, 1)]
    k("s_waitcnt lgkmcnt(0)")
    k("s_barrier")
    for l in reads(0) + reads(1): k(l)

    def mainloop(tag, vorient):
        k.label(k.L("loop" + tag))
        for ks in range(4):
            mf = []
            for mt in range(2):
                for nt in range(2):
                    a, b = FA[ks][mt], FB[ks][nt]
                    s0, s1 = (a, b) if vorient else (b, a)
                    mf.append(f"v_mfma_f32_32x32x16_bf16 {vr(acc(mt,nt),16)}, {vr(s0,4)}, {vr(s1,4)}, {vr(acc(mt,nt),16)}")
            pre = []
            if ks == 2:
                k("s_barrier")
                pre += [f"s_add_u32 s{s_slot}, s{s_slot}, 1", f"s_and_b32 s{s_slot}, s{s_slot}, {NS - 1}",
                        f"s_cselect_b32 s{s_delta}, s34, {(-(NS - 1) * SLOT) & 0xffffffff:#x}"]
                pre += [f"v_add_u32 v{a}, s{s_delta}, v{a}" for a in vBr]
            nk = (ks + 2) % 4
            if ks >= 2:
                pre += [f"v_add_u32 v{a}, s{s_delta}, v{a}" for a in a_upd(nk)]
            post = []
            if ks == 3:
                post = [f"v_add_u32 v{a}, s{s_delta}, v{a}" for a in a_upd(2) + a_upd(3)]
                post += [f"s_add_u32 s{s_it}, s{s_it}, 1", f"s_cmp_lt_u32 s{s_it}, {NST}"]
            rd = reads(nk)
            k("s_waitcnt lgkmcnt(6)")
            seq = [mf[0]] + pre + rd[0:2] + [mf[1]] + rd[2:4] + [mf[2]] + rd[4:6] + post + [mf[3]]
            for l in seq: k(l)
        k(f"s_cbranch_scc1 {k.L('loop' + tag)}")
        if "st1" in X: k.stamp(0, True)

    def epi_nm():
        MR = [28, 30]
        CS = EP; B1 = EP + 32
        k(f"s_lshl_b32 s{s_t0}, s{s_wm}, 8"); k(f"s_add_u32 s{s_t0}, s{s_t0}, {SB}")
        k(f"v_lshl_add_u32 v{vt[4]}, v{v_t}, 2, s{s_t0}")
        for mt in range(2):
            k(f"ds_read2_b32 {vr(MR[mt],2)}, v{vt[4]} offset0:{mt*32} offset1:{128 + mt*32}")
        k(f"s_lshl_b32 s{s_t0}, s{s_wn}, 8"); k(f"s_add_u32 s{s_t0}, s{s_t0}, {SB}")
        k(f"v_lshl_add_u32 v{vt[0]}, v{v_h}, 4, s{s_t0}")
        for nt in range(2):
            for rq in range(4):
                k(f"ds_read_b128 {vr(CS + nt*16 + rq*4, 4)}, v{vt[0]} offset:{1024 + nt*128 + rq*32}")
            if not qkv:
                for rq in range(4):
                    k(f"ds_read_b128 {vr(B1 + nt*16 + rq*4, 4)}, v{vt[0]} offset:{1536 + nt*128 + rq*32}")
        OFF = QK_OFF if qkv else G_OFF
        k(f"s_lshl_b32 s{s_t0}, s{s_nb}, 4"); k(f"s_lshl_b32 s{s_t1}, s{s_wn}, 3"); k(f"s_add_u32 s{s_t0}, s{s_t0}, s{s_t1}")
        k(f"v_add_lshl_u32 v{vt[2]}, v{v_h}, s{s_t0}, 15")
        k(f"s_lshl_b32 s{s_t0}, s{s_mb}, 7"); k(f"s_lshl_b32 s{s_t1}, s{s_wm}, 6"); k(f"s_add_u32 s{s_t0}, s{s_t0}, s{s_t1}")
        k(f"v_add_u32 v{vt[3]}, s{s_t0}, v{v_t}")
        k(f"v_lshl_add_u32 v{vt[2]}, v{vt[3]}, 4, v{vt[2]}")
        so = 46
        for c in range(4): k(f"s_mov_b32 s{so + c}, {OFF + 2*c*CH}")
        if not qkv:
            C0 = -2.0 * math.log2(math.e) * math.sqrt(2.0 / math.pi)
            k(f"s_mov_b32 s44, {f32(C0 * 0.044715)}"); k(f"s_mov_b32 s45, {f32(C0 * 0.044715)}")
            k(f"v_mov_b32 v{vt[4]}, {f32(C0)}"); k(f"v_mov_b32 v{vt[5]}, {f32(C0)}")
        k("s_waitcnt lgkmcnt(0)")
        T = EP + 64
        n_st = 0
        for nt in range(2):
            for mt in range(2):
                a = acc(mt, nt); mr = MR[mt]
                for p in range(8):
                    x = vr(a + 2*p, 2)
                    k(f"v_pk_fma_f32 {x}, {vr(CS + nt*16 + 2*p, 2)}, {vr(mr,2)}, {x} op_sel_hi:[1,0,1]")
                for p in range(8):
                    x = vr(a + 2*p, 2)
                    if qkv:
                        k(f"v_pk_mul_f32 {x}, {x}, {vr(mr,2)} op_sel:[0,1] op_sel_hi:[1,1]")
                    else:
                        k(f"v_pk_fma_f32 {x}, {x}, {vr(mr,2)}, {vr(B1 + nt*16 + 2*p, 2)} op_sel:[0,1,0] op_sel_hi:[1,1,1]")
                if not qkv:
                    for p in range(8):
                        x = vr(a + 2*p, 2); t = vr(T + 2*p, 2)
                        k(f"v_pk_mul_f32 {t}, {x}, {x}")
                    for p in range(8):
                        t = vr(T + 2*p, 2)
                        k(f"v_pk_fma_f32 {t}, {t}, s[44:45], {vr(vt[4],2)}")
                    for p in range(8):
                        x = vr(a + 2*p, 2); t = vr(T + 2*p, 2)
                        k(f"v_pk_mul_f32 {t}, {t}, {x}")
                    for r in range(16): k(f"v_exp_f32 v{T + r}, v{T + r}")
                    for p in range(8):
                        t = vr(T + 2*p, 2)
                        k(f"v_pk_add_f32 {t}, {t}, 1.0 op_sel_hi:[1,0]")
                    for r in range(16): k(f"v_rcp_f32 v{T + r}, v{T + r}")
                    for p in range(8):
                        x = vr(a + 2*p, 2); t = vr(T + 2*p, 2)
                        k(f"v_pk_mul_f32 {x}, {x}, {t}")
                Pk = T + 16 + (n_st % 2) * 8
                for p in range(8):
                    k(f"v_cvt_pk_bf16_f32 v{Pk + p}, v{a + 2*p}, v{a + 2*p + 1}")
                for pq in range(2):
                    b = Pk + 4*pq
                    k(f"v_permlane32_swap_b32 v{b}, v{b+2}")
                    k(f"v_permlane32_swap_b32 v{b+1}, v{b+3}")
                for pq in range(2):
                    b = Pk + 4*pq
                    k(f"buffer_store_dwordx4 {vr(b,4)}, v{vt[2]}, s[{sW}:{sW+3}], s{so + nt*2 + pq} offen offset:{mt*512} sc1")
                n_st += 1

    def epi_v():
        NM = EP; RS = EP + 32; CSV = [28, 30]
        k(f"s_lshl_b32 s{s_t0}, s{s_wm}, 8"); k(f"s_add_u32 s{s_t0}, s{s_t0}, {SB}")
        k(f"v_lshl_add_u32 v{vt[0]}, v{v_h}, 4, s{s_t0}")
        k(f"s_lshl_b32 s{s_t0}, s{s_wn}, 8"); k(f"s_add_u32 s{s_t0}, s{s_t0}, {SB}")
        k(f"v_lshl_add_u32 v{vt[1]}, v{v_t}, 2, s{s_t0}")
        for nt in range(2):
            k(f"ds_read_b32 v{CSV[nt]}, v{vt[1]} offset:{1024 + nt*128}")
        for mt in range(2):
            for rq in range(4):
                k(f"ds_read_b128 {vr(NM + mt*16 + rq*4, 4)}, v{vt[0]} offset:{mt*128 + rq*32}")
                k(f"ds_read_b128 {vr(RS + mt*16 + rq*4, 4)}, v{vt[0]} offset:{512 + mt*128 + rq*32}")
        k(f"s_lshl_b32 s{s_t0}, s{s_mb}, 1"); k(f"s_add_u32 s{s_t0}, s{s_t0}, s{s_wm}"); k(f"s_mul_i32 s{s_t0}, s{s_t0}, 5120")
        k(f"s_lshl_b32 s{s_t1}, s{s_nb}, 7"); k(f"s_add_u32 s{s_t0}, s{s_t0}, s{s_t1}"); k(f"s_sub_u32 s{s_t0}, s{s_t0}, 1280")
        k(f"s_lshl_b32 s{s_t1}, s{s_wn}, 6"); k(f"s_add_u32 s{s_t0}, s{s_t0}, s{s_t1}")
        k(f"v_mul_u32_u24 v{vt[3]}, 640, v{v_h}")
        k(f"v_add3_u32 v{vt[2]}, v{v_t}, s{s_t0}, v{vt[3]}")
        k(f"v_lshlrev_b32 v{vt[2]}, 4, v{vt[2]}")
        so = 46
        for c in range(4): k(f"s_mov_b32 s{so + c}, {V_OFF + c * 640 * 32}")
        k("s_waitcnt lgkmcnt(0)")
        T = EP + 64; n_st = 0
        for mt in range(2):
            for nt in range(2):
                a = acc(mt, nt)
                for p in range(8):
                    x = vr(a + 2*p, 2)
                    k(f"v_pk_fma_f32 {x}, {vr(NM + mt*16 + 2*p, 2)}, {vr(CSV[nt],2)}, {x} op_sel_hi:[1,0,1]")
                for p in range(8):
                    x = vr(a + 2*p, 2)
                    k(f"v_pk_mul_f32 {x}, {x}, {vr(RS + mt*16 + 2*p, 2)}")
                Pk = T + (n_st % 2) * 8
                for p in range(8):
                    k(f"v_cvt_pk_bf16_f32 v{Pk + p}, v{a + 2*p}, v{a + 2*p + 1}")
                for jj in range(2):
                    k(f"buffer_store_dwordx4 {vr(Pk + 4*jj, 4)}, v{vt[2]}, s[{sW}:{sW+3}], s{so + mt*2 + jj} offen offset:{nt*512} sc1")
                n_st += 1

    if qkv:
        k(f"s_cmp_ge_u32 s{s_nb}, 10")
        k(f"s_cbranch_scc1 {k.L('loopv')}")
        mainloop("q", False); epi_nm()
        k(f"s_branch {k.L('end')}")
        mainloop("v", True); epi_v()
        k(f"s_branch {k.L('end')}")
        k.label(k.L("auxl"))
        k(f"s_cmp_ge_u32 s{s_w}, 2"); k(f"s_cbranch_scc1 {k.L('aux')}")
        slice_addr_rows()
        k("s_waitcnt lgkmcnt(0)")
        srd(k, sA, 36, 37, S * D * 2); srd(k, sW, WSL, WSL + 1, WS_END); srd(k, sBi, 40, 41, 256)
        slice_load_rows()
        k("s_waitcnt vmcnt(0)")
        tag_load()
        slice_rows(0)
        k("s_waitcnt vmcnt(0)")
        tag_wait("x")
        slice_rows(1)
        k.label(k.L("aux"))
        k("s_load_dwordx4 s[44:47], s[0:1], 32")
        k(f"v_lshrrev_b32 v{vt[0]}, 4, v{v_lane}")
        k(f"v_and_b32 v{vt[1]}, 15, v{v_lane}")
        k(f"v_mul_u32_u24 v{vt[2]}, {F * 2}, v{vt[0]}")
        k(f"v_lshl_add_u32 v{vt[2]}, v{vt[1]}, 4, v{vt[2]}")
        k(f"v_lshlrev_b32 v{vt[3]}, 1, v0")
        k("s_waitcnt lgkmcnt(0)")
        srd(k, sW, WSL, WSL + 1, WS_END)
        k(f"s_cmp_ge_u32 s{s_mb}, 14"); k(f"s_cbranch_scc1 {k.L('end')}")
        srd(k, sB, 44, 45, D * F * 2); srd(k, sA, 46, 47, F * 2)
        k(f"s_mul_i32 s{s_t0}, s{s_wid}, {80 * F * 2}"); k(f"s_lshl_b32 s{s_t1}, s{s_mb}, 8"); k(f"s_add_u32 s{s_t0}, s{s_t0}, s{s_t1}")
        k(f"buffer_load_ushort v{v_b1}, v{vt[3]}, s[{sA}:{sA+3}], s{s_t1} offen")
        for i in range(20):
            k(f"buffer_load_dwordx4 {vr(40 + 4*i, 4)}, v{vt[2]}, s[{sB}:{sB+3}], s{s_t0} offen")
            k(f"s_add_u32 s{s_t0}, s{s_t0}, {4 * F * 2}")
        for r in range(8): k(f"v_mov_b32 v{24 + r}, 0")
        for i in range(20):
            k(f"s_waitcnt vmcnt({19 - i})")
            for r in range(4):
                k(f"v_lshlrev_b32 v{32 + 2*r}, 16, v{40 + 4*i + r}")
                k(f"v_and_b32 v{33 + 2*r}, 0xffff0000, v{40 + 4*i + r}")
            for r in range(4):
                k(f"v_pk_add_f32 {vr(24 + 2*r, 2)}, {vr(24 + 2*r, 2)}, {vr(32 + 2*r, 2)}")
        k(f"v_lshlrev_b32 v{vt[0]}, 5, v0")
        k(f"ds_write_b128 v{vt[0]}, v[24:27]")
        k(f"ds_write_b128 v{vt[0]}, v[28:31] offset:16")
        k("s_waitcnt lgkmcnt(0)")
        k("s_barrier")
        k(f"s_cmp_ge_u32 s{s_wid}, 2"); k(f"s_cbranch_scc1 {k.L('end')}")
        k(f"v_lshlrev_b32 v{vt[0]}, 2, v0")
        for i in range(32):
            k(f"ds_read_b32 v{40 + i}, v{vt[0]} offset:{i * 512}")
            if i % 8 == 7: k("s_waitcnt lgkmcnt(0)")
        for i in range(1, 32): k(f"v_add_f32 v40, v40, v{40 + i}")
        k(f"v_lshlrev_b32 v{v_b1}, 16, v{v_b1}")
        k(f"v_mul_f32 v{v_b1}, {f32(GS)}, v{v_b1}")
        k(f"s_lshl_b32 s{s_t0}, s{s_mb}, 10"); k(f"s_add_u32 s{s_t0}, s{s_t0}, {C1_OFF}"); k(f"s_add_u32 s{s_t1}, s{s_t0}, 512")
        k(f"buffer_store_dword v40, v{vt[0]}, s[{sW}:{sW+3}], s{s_t0} offen sc1")
        k(f"buffer_store_dword v{v_b1}, v{vt[0]}, s[{sW}:{sW+3}], s{s_t1} offen sc1")
    k.label(k.L("end"))
    k(f"s_lshl_b32 s94, s{s_mb}, 4"); k(f"s_add_u32 s94, s94, s{s_nb}")
    k(f"v_readfirstlane_b32 s{S_TAG}, v{v_tag}")
    k.stamp(2, "st1" in X)

def phase2(k):
    k.pref = "p2"
    sW = 4; sP1 = 8; sP2 = 12; sP3 = 16; sWW = 52
    s_hd, s_qb, s_w, s_qs, s_kh, s_t0, s_t1, s_it = 20, 21, S_WID, 23, 24, 25, 26, 27
    s_ko, s_vo, s_odd = 28, 29, 30
    s_vm = 32; s_lo = 34; s_c = 36
    s_do, s_dm, s_qo = 56, 57, 58
    v_lane, v_t, v_h = 1, 2, 3
    vK1, vK2, vV0, vV1 = 4, 5, 6, 7
    vt = [8, 9, 10, 11, 12, 13, 14, 15]
    vm = [16, 17]
    v_pfa, v_pfc, v_pf = 18, 19, 200
    vD = [202, 203, 204, 205]
    v_fx, vX, vOne = 206, 208, 210
    Q1 = [20, 24]; Q2 = [28, 30]
    NBUF = 4
    K1 = [32, 36, 40, 44]; K2 = [48, 50]; Q2B = [52, 54]; vK2p = 207
    VB = [56, 64, 72, 80]
    C = [88, 104]; Sx = [120, 136]; P = [152, 160]; O = [168, 184]
    k("s_load_dwordx2 s[40:41], s[0:1], 80")
    k("s_load_dwordx2 s[44:45], s[0:1], 16")
    k("s_load_dwordx2 s[46:47], s[0:1], 32")
    k("s_load_dwordx2 s[38:39], s[0:1], 48")
    if "headmap" in X:
        k(f"s_and_b32 s{s_hd}, s2, 7"); k(f"s_lshl_b32 s{s_hd}, s{s_hd}, 2")
        k(f"s_bfe_u32 s{s_t0}, s2, 0x20003"); k(f"s_add_u32 s{s_hd}, s{s_hd}, s{s_t0}")
        k(f"s_lshr_b32 s{s_qb}, s2, 5")
    else:
        k(f"s_lshr_b32 s{s_hd}, s2, 3"); k(f"s_and_b32 s{s_qb}, s2, 7")
    k(f"s_and_b32 s{s_qs}, s{s_w}, 3"); k(f"s_lshr_b32 s{s_kh}, s{s_w}, 2")
    k(f"s_and_b32 s{s_odd}, s{s_hd}, 1")
    k(f"s_mov_b32 s{s_lo}, -1"); k(f"s_mov_b32 s{s_lo+1}, 0")
    k(f"s_lshr_b32 s{s_t0}, s{s_hd}, 1"); k(f"s_mul_i32 s{s_t0}, s{s_t0}, 5")
    k(f"s_mul_i32 s{s_t1}, s{s_odd}, 3"); k(f"s_add_u32 s{s_t1}, s{s_t1}, s{s_t0}")
    k(f"v_add_lshl_u32 v{vK1}, v{v_h}, s{s_t1}, 15")
    k(f"v_lshl_add_u32 v{vK1}, v{v_t}, 4, v{vK1}")
    k(f"s_add_u32 s{s_t0}, s{s_t0}, 2"); k(f"s_lshl_b32 s{s_t0}, s{s_t0}, 15")
    k(f"s_lshl_b32 s{s_t1}, s{s_odd}, 3"); k(f"s_add_u32 s{s_t0}, s{s_t0}, s{s_t1}")
    k(f"v_lshl_add_u32 v{vK2}, v{v_t}, 4, s{s_t0}")
    k(f"s_sub_u32 s{s_t0}, s{s_t0}, 512")
    k(f"v_lshl_add_u32 v{vK2p}, v{v_lane}, 4, s{s_t0}")
    k(f"s_lshl_b32 s{s_ko}, s{s_kh}, 14"); k(f"s_add_u32 s{s_ko}, s{s_ko}, {QK_OFF + 80 * CH}")
    k(f"s_lshl_b32 s{s_qo}, s{s_qb}, 12"); k(f"s_lshl_b32 s{s_t1}, s{s_qs}, 10"); k(f"s_add_u32 s{s_qo}, s{s_qo}, s{s_t1}")
    for qt in range(2):
        k(f"v_mov_b32 v{Q2[qt]}, 0"); k(f"v_mov_b32 v{Q2[qt]+1}, 0")
    k(f"s_mov_b32 s42, s{s_ko}")
    k(f"s_mov_b32 s{s_vm}, 0xfffff"); k(f"s_mov_b32 s{s_vm+1}, 0xfffff")
    k(f"v_add_u32 v{vt[0]}, 4, v{v_t}")
    k(f"v_subrev_u32 v{vt[1]}, 16, v{v_t}")
    k(f"v_cmp_gt_u32 vcc, 16, v{v_t}")
    k(f"v_cndmask_b32 v{vt[0]}, v{vt[1]}, v{vt[0]}, vcc")
    k(f"s_cmp_eq_u32 s{s_odd}, 1")
    k(f"s_cselect_b64 vcc, -1, 0")
    k(f"v_cndmask_b32 v{vt[0]}, v{v_t}, v{vt[0]}, vcc")
    k(f"s_mul_i32 s{s_t0}, s{s_hd}, 20")
    k(f"v_mul_u32_u24 v{vt[1]}, 640, v{v_h}")
    k(f"v_add3_u32 v{vV0}, v{vt[0]}, s{s_t0}, v{vt[1]}")
    k(f"v_lshlrev_b32 v{vV0}, 4, v{vV0}")
    k(f"v_add_u32 v{vV1}, {640 * 32}, v{vV0}")
    k(f"s_mul_i32 s{s_vo}, s{s_kh}, {32 * 1280 * 32}"); k(f"s_add_u32 s{s_vo}, s{s_vo}, {V_OFF}")
    k(f"s_mov_b32 s43, s{s_vo}"); k(f"s_mov_b32 s22, {1280 * 32}")
    k(f"v_cmp_eq_u32 vcc, 0, v{v_h}"); k(f"v_mov_b32 v{vOne}, 0x3f80"); k(f"v_cndmask_b32 v{vOne}, 0, v{vOne}, vcc")
    k(f"v_mov_b32 v{vOne+1}, 0"); k(f"v_mov_b32 v{vOne+3}, 0")
    k(f"v_cmp_eq_u32 vcc, 20, v{v_t}")
    k(f"v_mov_b32 v{vt[1]}, 0x3f803f80")
    k(f"v_cndmask_b32 v{vt[1]}, 0, v{vt[1]}, vcc")
    for b in range(NBUF):
        for r in range(8): k(f"v_mov_b32 v{VB[b] + r}, v{vt[1]}")
    for qt in range(2):
        for r in range(16): k(f"v_mov_b32 v{O[qt] + r}, 0")
    for r in range(8): k(f"v_mov_b32 v{P[1] + r}, 0")
    k(f"s_lshr_b32 s{s_t0}, s2, 3"); k(f"s_lshl_b32 s{s_t0}, s{s_t0}, 3"); k(f"s_add_u32 s{s_t0}, s{s_t0}, s{s_w}")
    k(f"s_mul_i32 s49, s{s_t0}, {48 * 128}"); k(f"s_add_u32 s49, s49, {192 * F * 2}")
    k(f"v_lshlrev_b32 v{vt[2]}, 8, v{v_lane}"); k(f"v_add_u32 v{vt[2]}, 124, v{vt[2]}")
    k(f"v_mov_b32 v{vt[3]}, 0x7ffffff0")
    k(f"v_cmp_gt_u32 vcc, 24, v{v_lane}")
    k(f"v_cndmask_b32 v{v_pfa}, v{vt[3]}, v{vt[2]}, vcc")
    W2L = int(os.environ.get("W2L", "0"))
    if W2L:
        k(f"s_mul_i32 s48, s{s_t0}, {2 * W2L * 128}")
    else:
        k(f"s_lshl_b32 s48, s2, 3"); k(f"s_add_u32 s48, s48, s{s_w}"); k(f"s_mul_i32 s48, s48, {10 * 128}")
    k(f"v_cmp_gt_u32 vcc, {W2L or 5}, v{v_lane}")
    k(f"v_cndmask_b32 v{v_pfc}, v{vt[3]}, v{vt[2]}, vcc")
    k(f"s_sub_u32 s50, s{s_qs}, s{s_kh}"); k(f"s_add_u32 s50, s50, 3")
    k(f"s_lshl_b32 s92, s2, 3"); k(f"s_add_u32 s92, s92, s{s_w}"); k(f"s_mul_i32 s92, s92, 1536"); k(f"s_add_u32 s92, s92, {H_OFF}")
    k(f"v_lshrrev_b32 v{vt[0]}, 3, v{v_lane}")
    k(f"v_and_b32 v{vt[1]}, 7, v{v_lane}")
    k(f"v_bfe_u32 v{vt[2]}, v{v_lane}, 4, 1")
    k(f"v_lshlrev_b32 v{vt[2]}, 2, v{vt[2]}")
    k(f"v_xor_b32 v{vt[1]}, v{vt[1]}, v{vt[2]}")
    k(f"v_mul_u32_u24 v{vt[0]}, 1280, v{vt[0]}")
    k(f"v_lshl_add_u32 v{vD[0]}, v{vt[1]}, 4, v{vt[0]}")
    k(f"v_add_u32 v{vD[1]}, {8 * 1280 - 1024}, v{vD[0]}")
    k(f"v_lshrrev_b32 v{vt[0]}, 4, v{v_lane}")
    k(f"v_and_b32 v{vt[1]}, 15, v{v_lane}")
    k(f"v_lshlrev_b32 v{vt[2]}, 2, v{vt[0]}")
    k(f"v_xor_b32 v{vt[1]}, v{vt[1]}, v{vt[2]}")
    k(f"v_mul_u32_u24 v{vt[0]}, {F * 2}, v{vt[0]}")
    k(f"v_lshl_add_u32 v{vD[2]}, v{vt[1]}, 4, v{vt[0]}")
    k(f"v_add_u32 v{vD[3]}, {4 * F * 2 - 1024}, v{vD[2]}")
    k(f"s_lshr_b32 s{s_t0}, s2, 3")
    k(f"s_mul_i32 s{s_t1}, s{s_t0}, 43"); k(f"s_lshr_b32 s{s_t1}, s{s_t1}, 7"); k(f"s_lshl_b32 s{s_t1}, s{s_t1}, 7")
    k(f"s_mul_i32 s{s_do}, s{s_w}, {16 * 1280}"); k(f"s_add_u32 s{s_do}, s{s_do}, s{s_t1}")
    k(f"s_lshr_b32 s{s_t0}, s{s_t0}, 1"); k(f"s_lshl_b32 s{s_t0}, s{s_t0}, 8")
    k(f"s_mul_i32 s59, s{s_w}, {8 * F * 2}"); k(f"s_add_u32 s59, s59, s{s_t0}")
    k(f"s_lshl_b32 s{s_dm}, s{s_w}, 11")
    k("s_waitcnt lgkmcnt(0)")
    srd(k, sW, 40, 41, QKV_END); srd(k, sWW, 40, 41, WS_END)
    srd(k, sP1, 44, 45, D * D * 2); srd(k, sP2, 46, 47, D * F * 2)
    W = f"s[{sW}:{sW+3}]"
    k("s_load_dwordx2 s[44:45], s[0:1], 0")
    k(f"s_lshr_b32 s{s_t0}, s2, 3"); k(f"s_mul_i32 s{s_t1}, s{s_t0}, 43"); k(f"s_lshr_b32 s{s_t1}, s{s_t1}, 7")
    k(f"s_mul_i32 s46, s{s_t1}, 3"); k(f"s_sub_u32 s{s_t0}, s{s_t0}, s46"); k(f"s_mul_i32 s{s_t0}, s{s_t0}, 3"); k(f"s_add_u32 s{s_t0}, s{s_t0}, s{s_w}")
    k(f"s_and_b32 s46, s2, 7"); k(f"s_lshl_b32 s46, s46, 3"); k(f"s_add_u32 s{s_t0}, s{s_t0}, s46"); k(f"s_lshl_b32 s{s_t0}, s{s_t0}, 5")
    k(f"v_add_u32 v{XRA}, s{s_t0}, v{v_t}"); k(f"v_mul_u32_u24 v{XRA}, 1280, v{XRA}")
    k(f"v_lshl_add_u32 v{XRA}, v{v_h}, 4, v{XRA}")
    k(f"s_lshl_b32 s{s_t1}, s{s_t1}, 7"); k(f"v_add_u32 v{XRA}, s{s_t1}, v{XRA}")
    srd(k, sP3, 38, 39, D * F * 2)
    k(f"s_getreg_b32 s51, hwreg(HW_REG_XCC_ID)"); k(f"s_and_b32 s51, s51, 15")
    k(f"s_and_b32 s{s_t0}, s2, 7"); k(f"s_lshl_b32 s{s_t0}, s{s_t0}, 7"); k(f"s_add_u32 s{s_t0}, s{s_t0}, {FX_OFF}")
    k(f"v_lshl_add_u32 v{v_fx}, v{v_t}, 10, s{s_t0}")
    k(f"s_and_b32 s{s_t0}, s{s_w}, 6"); k(f"s_cmp_lg_u32 s{s_t0}, 4"); k(f"s_cbranch_scc1 {k.L('nt')}")
    k(f"s_lshr_b32 s{s_t0}, s{s_hd}, 1"); k(f"s_mul_i32 s{s_t0}, s{s_t0}, 5"); k(f"s_add_u32 s{s_t0}, s{s_t0}, s{s_odd}"); k(f"s_add_u32 s{s_t0}, s{s_t0}, s{s_odd}")
    k(f"s_add_u32 s{s_t1}, s{s_t0}, 2"); k(f"s_lshr_b32 s{s_t0}, s{s_t0}, 4"); k(f"s_lshr_b32 s{s_t1}, s{s_t1}, 4")
    k(f"s_cmp_eq_u32 s{s_w}, 4"); k(f"s_cbranch_scc1 {k.L('fk')}")
    k(f"s_lshl_b32 s{s_t0}, s2, 7"); k(f"s_add_u32 s{s_t0}, s{s_t0}, {FX_OFF}")
    k(f"v_mov_b32 v{vt[2]}, s{S_TAG}"); k(f"v_mov_b32 v{vt[3]}, s51"); k(f"v_mov_b32 v{vt[4]}, 0")
    k("s_mov_b64 exec, 1")
    k(f"buffer_store_dwordx2 {vr(vt[2], 2)}, v{vt[4]}, s[{sWW}:{sWW+3}], s{s_t0} offen sc1")
    k("s_mov_b64 exec, -1")
    k(f"s_mul_i32 s{s_t0}, s{s_hd}, 20"); k(f"s_add_u32 s{s_t1}, s{s_t0}, {19 + 640}"); k(f"s_add_u32 s{s_t0}, s{s_t0}, 640")
    k(f"s_lshr_b32 s{s_t0}, s{s_t0}, 7"); k(f"s_lshr_b32 s{s_t1}, s{s_t1}, 7")
    k.label(k.L("fk"))
    k(f"v_mov_b32 v{vt[0]}, s{s_t0}"); k(f"v_mov_b32 v{vt[1]}, s{s_t1}")
    k(f"v_and_b32 v{vt[5]}, 16, v{v_lane}"); k(f"v_cmp_eq_u32 vcc, 0, v{vt[5]}")
    k(f"v_cndmask_b32 v{vt[5]}, v{vt[1]}, v{vt[0]}, vcc")
    k(f"v_and_b32 v{vt[1]}, 15, v{v_lane}")
    k(f"v_lshl_add_u32 v{vt[0]}, v{vt[1]}, 4, v{vt[5]}")
    k(f"v_add_u32 v{vt[0]}, 5, v{vt[0]}")
    k(f"v_and_b32 v{vt[1]}, 1, v{v_lane}"); k(f"s_lshl_b32 s{s_t0}, s{s_qb}, 1"); k(f"v_add_u32 v{vt[1]}, s{s_t0}, v{vt[1]}")
    k(f"v_lshl_add_u32 v{vt[1]}, v{vt[1]}, 4, v{vt[5]}")
    k(f"s_cmp_eq_u32 s{s_w}, 4"); k(f"s_cselect_b32 s{s_t0}, 32, 64")
    k(f"v_cmp_gt_u32 vcc, s{s_t0}, v{v_lane}")
    k(f"v_cndmask_b32 v{vt[0]}, v{vt[1]}, v{vt[0]}, vcc")
    k(f"v_lshlrev_b32 v{vt[0]}, 7, v{vt[0]}"); k(f"v_add_u32 v{vt[0]}, {FL_OFF}, v{vt[0]}")
    k.label(k.L("nt"))
    k("s_waitcnt vmcnt(0) lgkmcnt(0)")
    k("s_barrier")
    k.stamp(3, "st1" in X)
    k(f"s_and_b32 s{s_t0}, s{s_w}, 6"); k(f"s_cmp_lg_u32 s{s_t0}, 4"); k(f"s_cbranch_scc1 {k.L('nw')}")
    k(f"s_cmp_lg_u32 s{s_w}, 4"); k(f"s_cbranch_scc1 {k.L('npb')}")
    publish(k, sWW, 1, 94, s_t0, vt[4], vt[5])
    k.label(k.L("npb"))
    poll(k, sWW, [vt[0]], [vt[2]], s_it, "1")
    k.label(k.L("nw"))
    k("s_barrier")
    k.stamp(4, "st1" in X)
    SC = " sc1" if "kvsc1" in X else (" nt" if "kvnt" in X else "")
    def kload(b, pair=True):
        r = [f"buffer_load_dwordx4 {vr(K1[b],4)}, v{vK1}, {W}, s{s_ko} offen{SC}"]
        if b % 2 and pair: r.append(f"buffer_load_dwordx2 {vr(K2[b // 2],2)}, v{vK2p}, {W}, s{s_ko} offen{SC}")
        return r + [f"s_add_u32 s{s_ko}, s{s_ko}, 512"]
    def vload(b):
        return [f"s_mov_b64 exec, s[{s_vm}:{s_vm+1}]",
                f"buffer_load_dwordx4 {vr(VB[b],4)}, v{vV0}, {W}, s{s_vo} offen{SC}",
                f"buffer_load_dwordx4 {vr(VB[b]+4,4)}, v{vV1}, {W}, s{s_vo} offen{SC}",
                f"s_mov_b64 exec, -1",
                f"s_add_u32 s{s_vo}, s{s_vo}, s22"]
    def wdma(which):
        a, b_, sr_, so, step = (vD[0], vD[1], sP1, s_do, 128 * 1280) if which == 0 else (vD[2], vD[3], sP2, 59, 64 * F * 2)
        return [f"s_mov_b32 m0, s{s_dm}", f"s_add_u32 s{s_dm}, s{s_dm}, 16384",
                f"buffer_load_dwordx4 v{a}, s[{sr_}:{sr_+3}], s{so} offen lds",
                f"buffer_load_dwordx4 v{b_}, s[{sr_}:{sr_+3}], s{so} offen offset:1024 lds",
                f"s_add_u32 s{so}, s{so}, {step}"]
    k(f"buffer_load_dwordx2 {vr(K2[0],2)}, v{vK2p}, {W}, s{s_ko} offen offset:512{SC}")
    for l in kload(0): k(l)
    for qt in range(2):
        k(f"buffer_load_dwordx4 {vr(Q1[qt],4)}, v{vK1}, {W}, s{s_qo} offen offset:{qt*512} sc1")
        k(f"buffer_load_dwordx2 {vr(Q2B[qt],2)}, v{vK2}, {W}, s{s_qo} offen offset:{qt*512} sc1")
    rest = kload(1, False) + vload(0) + kload(2) + vload(1) + kload(3) + vload(2) + [f"buffer_load_dword v{v_pf}, v{vt[7]}, {W}, 0 offen"] * 2
    k(f"v_mov_b32 v{vt[7]}, 0x7ffffff0")
    NPRO = int(os.environ.get("NPRO", "3"))
    n = 0
    while n < NPRO or rest[0].startswith("s_mov_b64 exec, -1"):
        l = rest.pop(0); k(l); n += l.startswith("buffer")
        if not rest: break
    def qk(qt, b, c):
        cc = "0" if c is None else vr(c, 16)
        return [f"v_mfma_f32_32x32x16_bf16 {vr(Sx[qt],16)}, {vr(K1[b],4)}, {vr(Q1[qt],4)}, {cc}",
                f"v_mfma_f32_32x32x8_bf16 {vr(Sx[qt],16)}, {vr(K2[b // 2],2)}, {vr((Q2B if b % 2 else Q2)[qt],2)}, {vr(Sx[qt],16)}"]
    def pv(qt, b):
        return [f"v_mfma_f32_32x32x16_bf16 {vr(O[qt],16)}, {vr(VB[b],4)}, {vr(P[qt],4)}, {vr(O[qt],16)}",
                f"v_mfma_f32_32x32x16_bf16 {vr(O[qt],16)}, {vr(VB[b]+4,4)}, {vr(P[qt]+4,4)}, {vr(O[qt],16)}"]
    def rowmax(qt, dst, tmp):
        s = Sx[qt]
        k(f"v_max3_f32 v{dst}, v{s}, v{s+1}, v{s+2}")
        for r in range(3, 15, 2): k(f"v_max3_f32 v{dst}, v{dst}, v{s+r}, v{s+r+1}")
        k(f"v_max_f32 v{dst}, v{dst}, v{s+15}")
        k(f"v_mov_b32 v{tmp}, v{dst}")
        k(f"v_permlane32_swap_b32 v{dst}, v{tmp}")
        k(f"v_max_f32 v{dst}, v{dst}, v{tmp}")
    k(f"s_waitcnt vmcnt({n})")
    if "sta" in X: k.stamp(0)
    k("s_mov_b32 exec_hi, 0")
    for r in range(4): k(f"v_mov_b32 v{Q2[0] + r}, v{Q2B[0] + r}")
    for r in range(4): k(f"v_mov_b32 v{Q2B[0] + r}, 0")
    k("s_mov_b32 exec_hi, -1")
    for qt in range(2):
        for l in qk(qt, 0, None): k(l)
    for l in rest: k(l)
    for qt in range(2):
        rowmax(qt, vm[qt], vt[0])
        k(f"v_cvt_pk_bf16_f32 v{vOne+2}, -v{vm[qt]}, 0")
        k(f"v_mfma_f32_32x32x8_bf16 {vr(C[qt],16)}, {vr(vOne,2)}, {vr(vOne+2,2)}, 0")
        k(f"v_lshlrev_b32 v{vm[qt]}, 16, v{vOne+2}")
        k(f"v_xor_b32 v{vm[qt]}, 0x80000000, v{vm[qt]}")
    for l in qk(0, 0, C[0]): k(l)
    k("s_nop 7")
    k(f"s_mov_b32 s{s_it}, 0")
    if "sta" in X: k.stamp(2)
    k("s_nop 1")
    def slot(qt, mf, extra):
        s = Sx[qt]; p = P[qt]
        for i in range(16):
            for l in extra.get(i, []): k(l)
            if i % 4 == 0: k(mf[i // 4])
            k(f"v_exp_f32 v{s+i}, v{s+i}")
            if i % 2 == 1 and i >= 3:
                k(f"v_cvt_pk_bf16_f32 v{p + (i-3)//2}, v{s+i-3}, v{s+i-2}")
        for l in extra.get(16, []): k(l)
        k(f"v_cvt_pk_bf16_f32 v{p+7}, v{s+14}, v{s+15}")
    k(f"s_cmp_eq_u32 s{s_kh}, 0")
    k(f"s_cselect_b32 s31, 99, {int(os.environ.get('PRI', '6'))}")
    k(f"s_cbranch_scc1 {k.L('np')}")
    k("s_setprio 1")
    k.label(k.L("np"))
    k.label(k.L("loop"))
    for u in range(NBUF):
        b = u; bp = (u - 1) % NBUF; bn = (u + 1) % NBUF
        seq = []
        for i in range(3):
            for uu in range(4):
                kt = 4 * i + uu
                seq.append(("K", kt + 4))
                if uu % 2: seq.append(("P", (kt + 4) // 2))
                seq += [("V", kt + 3)] * 2
                if i == 2 and uu == u: break
            else:
                seq += [("W", i)] * 2
        kt = 8 + u
        last = max(len(seq) - 1 - seq[::-1].index(e) for e in (("K", kt + 1), ("P", (kt + 1) // 2), ("V", kt)))
        e1 = {0: [f"s_waitcnt vmcnt({len(seq) - 1 - last})"]}
        if "nopt" not in X:
            if u < 3: e1[7] = [f"s_buffer_load_dword s93, s[{sWW}:{sWW+3}], s92 offset:{u * 64}"]
        PU = int(os.environ.get("PU", "2"))
        if u == PU:
            k(f"s_cmp_lg_u32 s{s_it}, s31"); k(f"s_cbranch_scc1 {k.L('nph')}"); k("s_setprio 0"); k.label(k.L("nph"))
        slot(0, qk(1, b, C[1]) + pv(1, bp), {6: kload(b), 14: vload(bp)})
        slot(1, qk(0, bn, C[0]) + pv(0, b), e1)
    k(f"s_add_u32 s{s_it}, s{s_it}, 1")
    if PU == 4:
        k(f"s_cmp_lg_u32 s{s_it}, s31")
        k(f"s_cbranch_scc1 {k.L('noev')}")
        k("s_setprio 0")
        k.label(k.L("noev"))
    if W2L:
        k(f"s_sub_u32 s{s_t0}, s50, 1")
        k(f"s_cmp_lg_u32 s{s_it}, s{s_t0}"); k(f"s_cbranch_scc1 {k.L('noe0')}")
        k(f"buffer_load_dwordx2 {vr(v_pf, 2)}, v{v_pfc}, s[{sP3}:{sP3+3}], s48 offen")
        k.label(k.L("noe0"))
    k(f"s_cmp_lg_u32 s{s_it}, s50"); k(f"s_cbranch_scc1 {k.L('noe2')}")
    k(f"buffer_load_dwordx2 {vr(v_pf, 2)}, v{v_pfa}, s[{sP2}:{sP2+3}], s49 offen")
    if not W2L: k(f"buffer_load_dwordx2 {vr(v_pf, 2)}, v{v_pfc}, s[{sP3}:{sP3+3}], s48 offen")
    k(f"s_cmp_lg_u32 s{s_w}, 5"); k(f"s_cbranch_scc1 {k.L('noe1')}")
    k(f"s_lshl_b32 s{s_t0}, s2, 7"); k(f"s_add_u32 s{s_t0}, s{s_t0}, {FL_OFF + 32768}")
    for j in range(3): k(f"s_buffer_load_dword s93, s[{sWW}:{sWW+3}], s{s_t0} offset:{j * 32768}")
    k(f"buffer_load_dwordx2 {vr(vX, 2)}, v{v_fx}, s[{sWW}:{sWW+3}], 0 offen sc1")
    k.label(k.L("noe1"))
    k(f"s_cmp_lg_u32 s{s_w}, 3"); k(f"s_cbranch_scc1 {k.L('noe2')}")
    code_prefetch(k, "L_p2_merge", sP3, s_t0, vt[0], v_pf, v_lane, per=8)
    k.label(k.L("noe2"))
    if "nopt" not in X: k("s_add_u32 s92, s92, 192")
    k(f"s_cmp_ge_u32 s{s_it}, 6"); k(f"s_cbranch_scc1 {k.L('d1')}")
    for l in wdma(0): k(l)
    k(f"s_branch {k.L('loop')}")
    k.label(k.L("d1"))
    k(f"s_cmp_eq_u32 s{s_it}, 7")
    k(f"s_cselect_b32 s{s_ko}, 0x10000000, s{s_ko}"); k(f"s_cselect_b32 s22, 0x10000000, s22")
    for l in wdma(1): k(l)
    k(f"s_cmp_lt_u32 s{s_it}, 8"); k(f"s_cbranch_scc1 {k.L('loop')}")
    k.label(k.L("lend"))
    k.stamp(5)
    for l in pv(1, NBUF - 1): k(l)
    k(f"s_cmp_ge_u32 s{s_w}, 3"); k(f"s_cbranch_scc1 {k.L('d2')}")
    srd(k, sP3, 44, 45, S * D * 2)
    for c in range(4):
        k(f"buffer_load_dwordx4 {vr(XR + 4*c, 4)}, v{XRA}, s[{sP3}:{sP3+3}], 0 offen offset:{32*c}")
    k.label(k.L("d2"))
    k("s_nop 4")
    k(f"v_pk_add_f32 {vr(vt[0],2)}, {vr(O[0],2)}, {vr(O[0]+2,2)}")
    for r in range(4, 12, 2): k(f"v_pk_add_f32 {vr(vt[0],2)}, {vr(vt[0],2)}, {vr(O[0]+r,2)}")
    for r in range(0, 12, 2): k(f"v_pk_add_f32 {vr(vt[0],2)}, {vr(vt[0],2)}, {vr(O[1]+r,2)}")
    k(f"v_add_f32 v{vt[0]}, v{vt[0]}, v{vt[1]}")
    k(f"v_add_f32 v{vt[1]}, v{O[0]+8}, v{O[1]+8}")
    k(f"s_mov_b32 s{s_t0}, {f32(2.0**120)}")
    k(f"v_cmp_nlt_f32 s[{s_c}:{s_c+1}], |v{vt[0]}|, s{s_t0}")
    k(f"s_mov_b32 s{s_t0}, {f32(2.0**60)}")
    k(f"v_cmp_nlt_f32 vcc, |v{vt[1]}|, s{s_t0}")
    k(f"s_andn2_b64 vcc, vcc, s[{s_lo}:{s_lo+1}]")
    k(f"s_or_b64 s[{s_c}:{s_c+1}], s[{s_c}:{s_c+1}], vcc")
    if "forcefb" not in X: k(f"s_cbranch_scc0 {k.L('merge')}")
    k("s_waitcnt vmcnt(0)")
    k(f"s_mov_b32 s22, {1280 * 32}")
    k(f"s_mov_b32 s{s_ko}, s42"); k(f"s_mov_b32 s{s_vo}, s43")
    for qt in range(2):
        for r in range(16): k(f"v_mov_b32 v{O[qt] + r}, 0")
        k(f"v_mov_b32 v{vm[qt]}, 0xff800000")
    k(f"s_mov_b32 s{s_it}, 0")
    k.label(k.L("fb"))
    k(f"buffer_load_dwordx2 {vr(K2[0],2)}, v{vK2}, {W}, s{s_ko} offen")
    for l in kload(0) + vload(0): k(l)
    k("s_waitcnt vmcnt(0)")
    for qt in range(2):
        for l in qk(qt, 0, None): k(l)
    for qt in range(2):
        rowmax(qt, vt[2], vt[0])
        k(f"v_max_f32 v{vt[2]}, v{vt[2]}, v{vm[qt]}")
        k(f"v_sub_f32 v{vt[3]}, v{vm[qt]}, v{vt[2]}")
        k(f"v_exp_f32 v{vt[3]}, v{vt[3]}")
        k(f"v_mov_b32 v{vm[qt]}, v{vt[2]}")
        for r in range(16): k(f"v_mul_f32 v{O[qt]+r}, v{O[qt]+r}, v{vt[3]}")
        for r in range(16): k(f"v_sub_f32 v{Sx[qt]+r}, v{Sx[qt]+r}, v{vt[2]}")
        for r in range(16): k(f"v_exp_f32 v{Sx[qt]+r}, v{Sx[qt]+r}")
        for r in range(8): k(f"v_cvt_pk_bf16_f32 v{P[qt]+r}, v{Sx[qt]+2*r}, v{Sx[qt]+2*r+1}")
        for l in pv(qt, 0): k(l)
    k("s_nop 7"); k("s_nop 7")
    k(f"s_add_u32 s{s_it}, s{s_it}, 1")
    k(f"s_cmp_lt_u32 s{s_it}, 32")
    k(f"s_cbranch_scc1 {k.L('fb')}")
    k.label(k.L("merge"))
    k(f"s_cmp_eq_u32 s{s_kh}, 0")
    k(f"s_cbranch_scc1 {k.L('noswap')}")
    for r in range(12): k(f"v_swap_b32 v{O[0]+r}, v{O[1]+r}")
    k(f"v_swap_b32 v{vm[0]}, v{vm[1]}")
    k.label(k.L("noswap"))
    k(f"s_mul_i32 s{s_t0}, s{s_w}, 3328"); k(f"s_add_u32 s{s_t0}, s{s_t0}, {MRG}")
    k(f"s_xor_b32 s{s_t1}, s{s_w}, 4"); k(f"s_mul_i32 s{s_t1}, s{s_t1}, 3328"); k(f"s_add_u32 s{s_t1}, s{s_t1}, {MRG}")
    k(f"v_lshl_add_u32 v{vt[0]}, v{v_lane}, 4, s{s_t0}")
    k(f"v_lshl_add_u32 v{vt[2]}, v{v_lane}, 2, s{s_t0}")
    for q in range(3): k(f"ds_write_b128 v{vt[0]}, {vr(O[1] + 4*q, 4)} offset:{q*1024}")
    k(f"ds_write_b32 v{vt[2]}, v{vm[1]} offset:3072")
    k(f"v_lshl_add_u32 v{vt[1]}, v{v_lane}, 4, s{s_t1}")
    k(f"v_lshl_add_u32 v{vt[3]}, v{v_lane}, 2, s{s_t1}")
    k(f"v_mov_b32 v{vt[7]}, {LOCW}")
    k(f"s_cmp_lg_u32 s{s_w}, 5"); k(f"s_cbranch_scc1 {k.L('nl')}")
    k(f"v_cmp_ne_u32 vcc, s{S_TAG}, v{vX}")
    k(f"v_cmp_ne_u32 s[90:91], s51, v{vX+1}")
    k("s_or_b64 vcc, vcc, s[90:91]")
    k(f"s_cselect_b32 s{s_t0}, 0, 1")
    k(f"v_mov_b32 v{vX}, s{s_t0}"); k(f"v_mov_b32 v{vX+1}, s{S_TAG}")
    k(f"ds_write_b64 v{vt[7]}, {vr(vX, 2)}")
    k.label(k.L("nl"))
    k("s_waitcnt lgkmcnt(0)")
    k("s_barrier")
    if "sta" in X: k.stamp(3); k("s_waitcnt lgkmcnt(0)")
    mo = Sx[0] + 12
    k(f"ds_read_b32 v{mo}, v{vt[3]} offset:3072")
    for q in range(3): k(f"ds_read_b128 {vr(Sx[0] + 4*q, 4)}, v{vt[1]} offset:{q*1024}")
    k(f"ds_read_b64 {vr(vX, 2)}, v{vt[7]}")
    k(f"s_lshl_b32 s{s_t1}, s{s_kh}, 9"); k(f"s_add_u32 s{s_t0}, s{s_qo}, s{s_t1}"); k(f"s_add_u32 s{s_t0}, s{s_t0}, {O_OFF}")
    k("s_waitcnt lgkmcnt(4)")
    k(f"v_max_f32 v{vt[2]}, v{vm[0]}, v{mo}")
    k(f"v_sub_f32 v{vt[3]}, v{vm[0]}, v{vt[2]}"); k(f"v_sub_f32 v{vt[4]}, v{mo}, v{vt[2]}")
    k(f"v_exp_f32 v{vt[3]}, v{vt[3]}"); k(f"v_exp_f32 v{vt[4]}, v{vt[4]}")
    k(f"v_mul_f32 v{vt[5]}, v{O[0]+8}, v{vt[3]}")
    k("s_waitcnt lgkmcnt(0)")
    k(f"v_fmac_f32 v{vt[5]}, v{Sx[0]+8}, v{vt[4]}")
    k(f"v_readfirstlane_b32 s{S_LOC}, v{vX}"); k(f"v_readfirstlane_b32 s{S_TAG}, v{vX+1}")
    if "headmap" in X: k("s_mov_b64 vcc, 0")
    else: loc_vcc(k)
    k(f"v_mov_b32 v{vt[6]}, v{vt[5]}")
    k(f"v_permlane32_swap_b32 v{vt[5]}, v{vt[6]}")
    k(f"v_rcp_f32 v{vt[6]}, v{vt[6]}")
    k(f"v_mul_f32 v{vt[2]}, v{vt[3]}, v{vt[6]}"); k(f"v_mul_f32 v{vt[3]}, v{vt[4]}, v{vt[6]}")
    for r in range(0, 12, 2): k(f"v_pk_mul_f32 {vr(O[0]+r,2)}, {vr(O[0]+r,2)}, {vr(vt[2],2)} op_sel_hi:[1,0]")
    for r in range(0, 12, 2): k(f"v_pk_fma_f32 {vr(O[0]+r,2)}, {vr(Sx[0]+r,2)}, {vr(vt[2],2)}, {vr(O[0]+r,2)} op_sel:[0,1,0] op_sel_hi:[1,1,1]")
    for r in range(6): k(f"v_cvt_pk_bf16_f32 v{P[0]+r}, v{O[0]+2*r}, v{O[0]+2*r+1}")
    k(f"v_permlane32_swap_b32 v{P[0]}, v{P[0]+2}")
    k(f"v_permlane32_swap_b32 v{P[0]+1}, v{P[0]+3}")
    dstores(k, [f"buffer_store_dwordx4 {vr(P[0],4)}, v{vK1}, s[{sWW}:{sWW+3}], s{s_t0} offen",
                "s_mov_b32 exec_hi, 0",
                f"buffer_store_dwordx2 {vr(P[0]+4,2)}, v{vK2}, s[{sWW}:{sWW+3}], s{s_t0} offen",
                "s_mov_b32 exec_hi, -1"])
    k(f"s_lshl_b32 s94, s{s_qb}, 5"); k(f"s_add_u32 s94, s94, s{s_hd}")
    k.stamp(6)

def phase345(k):
    k.pref = "p3"
    GB = 16384; NSLOT = 8; SB = NSLOT * GB
    PH = {3: dict(NT=2, KK=D, A_OFF=O_OFF, base=0), 4: dict(NT=4, KK=D, A_OFF=H_OFF, base=5), 5: dict(NT=2, KK=F, A_OFF=G_OFF, base=7)}
    for p in PH.values():
        p["GS"] = 16 // p["NT"]; p["GR"] = p["GS"] * 16; p["NG"] = (p["KK"] + p["GR"] - 1) // p["GR"]; p["NKS"] = p["KK"] // 16
    sW, sB3, sB4, sB5, sX, sO, sBi = 4, 8, 12, 16, 8, 12, 16
    s_r, s_cb, s_w, s_t0, s_t1, s_offA, s_it, s_wid, s_r4, s_cb4, s_idx, s_x = 20, 21, 22, 23, 24, 26, 28, S_WID, 29, 30, 31, 32
    s_ob = {3: 25, 4: 26, 5: 27}; s_m0 = 33
    sPl, sSc = 96, 52
    ASC = os.environ.get("ASC", " sc1")
    v_lane, v_t, v_h = 1, 2, 3
    vt = [12, 13, 14, 15]
    k("s_load_dwordx2 s[42:43], s[0:1], 32")
    k("s_load_dwordx4 s[44:47], s[0:1], 48")
    k("s_load_dwordx2 s[56:57], s[0:1], 64")
    k(f"s_lshr_b32 s{s_idx}, s2, 3"); k(f"s_and_b32 s{s_x}, s2, 7")
    k(f"s_mul_i32 s{s_cb}, s{s_idx}, 43"); k(f"s_lshr_b32 s{s_cb}, s{s_cb}, 7")
    k(f"s_mul_i32 s{s_t1}, s{s_cb}, 3"); k(f"s_sub_u32 s{s_r}, s{s_idx}, s{s_t1}")
    k(f"s_and_b32 s{s_r4}, s{s_idx}, 1"); k(f"s_lshr_b32 s{s_cb4}, s{s_idx}, 1")
    k(f"s_and_b32 s{s_w}, s{s_wid}, 3")
    k(f"s_cmp_lt_u32 s{s_wid}, 4")
    k(f"s_cbranch_scc1 {k.L('compute')}")
    vB2 = [4, 5, 6, 7]; vB4 = [8, 9, 10, 11]
    k(f"v_lshrrev_b32 v{vt[0]}, 3, v{v_lane}")
    k(f"v_and_b32 v{vt[1]}, 7, v{v_lane}")
    k(f"v_bfe_u32 v{vt[2]}, v{v_lane}, 4, 1")
    k(f"v_lshlrev_b32 v{vt[2]}, 2, v{vt[2]}")
    k(f"v_xor_b32 v{vt[1]}, v{vt[1]}, v{vt[2]}")
    k(f"v_mul_u32_u24 v{vt[0]}, 1280, v{vt[0]}")
    k(f"v_lshl_add_u32 v{vB2[0]}, v{vt[1]}, 4, v{vt[0]}")
    for ii in range(1, 4): k(f"v_add_u32 v{vB2[ii]}, {ii * (8 * 1280 - 1024)}, v{vB2[0]}")
    k(f"s_mul_i32 s{s_ob[5]}, s{s_w}, {32 * 1280}"); k(f"s_lshl_b32 s{s_t1}, s{s_cb}, 7"); k(f"s_add_u32 s{s_ob[5]}, s{s_ob[5]}, s{s_t1}")
    k(f"s_add_u32 s37, s{s_ob[5]}, {(14 - int(os.environ.get('NSTASH', '0'))) * 128 * 1280}")
    k(f"s_lshl_b32 s{s_m0}, s{s_w}, 12")
    k(f"v_lshrrev_b32 v{vt[0]}, 4, v{v_lane}")
    k(f"v_and_b32 v{vt[1]}, 15, v{v_lane}")
    k(f"v_lshlrev_b32 v{vt[2]}, 2, v{vt[0]}")
    k(f"v_xor_b32 v{vt[1]}, v{vt[1]}, v{vt[2]}")
    k(f"v_mul_u32_u24 v{vt[0]}, {F * 2}, v{vt[0]}")
    k(f"v_lshl_add_u32 v{vB4[0]}, v{vt[1]}, 4, v{vt[0]}")
    for ii in range(1, 4): k(f"v_add_u32 v{vB4[ii]}, {ii * (4 * F * 2 - 1024)}, v{vB4[0]}")
    k(f"s_mul_i32 s{s_ob[4]}, s{s_w}, {16 * F * 2}"); k(f"s_lshl_b32 s{s_t1}, s{s_cb4}, 8"); k(f"s_add_u32 s{s_ob[4]}, s{s_ob[4]}, s{s_t1}")
    k(f"s_add_u32 s{s_ob[4]}, s{s_ob[4]}, {192 * F * 2}")
    k(f"s_lshl_b32 s{s_t0}, s{s_cb4}, 10"); k(f"s_lshl_b32 s{s_t1}, s{s_w}, 8"); k(f"s_add_u32 s{s_t0}, s{s_t0}, s{s_t1}")
    k(f"s_add_u32 s{s_t0}, s{s_t0}, {C1_OFF}")
    k(f"v_lshlrev_b32 v{vt[3]}, 2, v{v_lane}")
    k(f"v_add_u32 v{vt[2]}, s{s_t1}, v{vt[3]}"); k(f"v_add_u32 v{vt[2]}, {SB}, v{vt[2]}")
    k("s_waitcnt lgkmcnt(0)")
    srd(k, sB4, 42, 43, D * F * 2); srd(k, sB5, 44, 45, D * F * 2); srd(k, sW, 40, 41, WS_END)
    q = []
    def issue(p, j):
        P = PH[p]; slot = (P["base"] + j) % NSLOT
        vB = vB4 if p == 4 else vB2; sB = {4: sB4, 5: sB5}[p]
        k(f"s_add_u32 m0, s{s_m0}, {slot * GB}")
        for ii in range(4):
            k(f"buffer_load_dwordx4 v{vB[ii]}, s[{sB}:{sB+3}], s{s_ob[p]} offen offset:{ii*1024} lds")
            q.append((p, j))
        k(f"s_add_u32 s{s_ob[p]}, s{s_ob[p]}, {P['GR'] * (F if p == 4 else D) * 2}")
    def need(item):
        if item in q:
            last = len(q) - 1 - q[::-1].index(item)
            k(f"s_waitcnt vmcnt({len(q) - 1 - last})")
            del q[:last + 1]
    def bar(item=None):
        if item is not None: need(item)
        k("s_barrier")
    vP = 16; s_q = 34
    k(f"s_lshl_b32 s{s_q}, s{s_idx}, 2"); k(f"s_add_u32 s{s_q}, s{s_q}, s{s_w}")
    k(f"s_lshl_b32 s{s_it}, s{s_x}, 12")
    k(f"v_lshl_add_u32 v{vP}, v{v_t}, 7, s{s_it}")
    k(f"v_lshl_add_u32 v{vP+1}, v{v_h}, 15, v{vP}")
    def apf(p):
        if ("apf%d" % p) not in X: return
        lab = k.L("apf%d_%d" % (p, k.uid)); k.uid += 1
        k(f"s_cmp_ge_u32 s{s_q}, {108 if p == 5 else 80}"); k(f"s_cbranch_scc1 {lab}")
        k(f"s_lshl_b32 s{s_it}, s{s_q}, {16 if p == 5 else 15}"); k(f"s_add_u32 s{s_it}, s{s_it}, {PH[p]['A_OFF']}")
        k(f"buffer_load_dword v{vP+2}, v{vP + (1 if p == 5 else 0)}, s[{sW}:{sW+3}], s{s_it} offen sc1")
        k.label(lab)
        k("s_waitcnt vmcnt(0)"); q[:] = []
    k("s_waitcnt vmcnt(0)")
    bar()
    k(f"s_cmp_ge_u32 s{s_idx}, 30"); k(f"s_cbranch_scc1 L_exit")
    if "cpf2" in X:
        k(f"s_cmp_lg_u32 s{s_w}, 0"); k(f"s_cbranch_scc1 {k.L('ncp')}")
        code_prefetch(k, "L_p3_pb3", sB3, s_it, 24, 25, v_lane, per=6)
        k.label(k.L("ncp"))
    bar()
    k(f"s_cmp_ge_u32 s{s_idx}, 28"); k(f"s_cbranch_scc1 {k.L('lskip4')}")
    def piece(p, g, ii):
        P = PH[p]; vB = vB4 if p == 4 else vB2; sB = {4: sB4, 5: sB5}[p]
        if ii == 0: k(f"s_add_u32 m0, s{s_m0}, {((P['base'] + g) % NSLOT) * GB}")
        k(f"buffer_load_dwordx4 v{vB[ii]}, s[{sB}:{sB+3}], s{s_ob[p]} offen offset:{ii*1024} lds")
        q.append((p, g))
        if ii == 3: k(f"s_add_u32 s{s_ob[p]}, s{s_ob[p]}, {P['GR'] * (F if p == 4 else D) * 2}")
    todo = [(4, g, ii) for g in range(3, 10) for ii in range(4)] + [(5, g, ii) for g in range(8) for ii in range(4)]
    P3 = [int(v) for v in os.environ.get("P3", "0,0,0,0,12,0").split(",")]
    for j in range(6):
        bar()
        for _ in range(P3[j]):
            p_, g, ii = todo.pop(0)
            assert p_ == 4 and (g - 3 + 2 <= j or (j == 5 and g < 8))
            piece(p_, g, ii)
    bar()
    k(f"buffer_load_dword v{vt[1]}, v{vt[3]}, s[{sW}:{sW+3}], s{s_t0} offen sc1"); q.append(("c", 0))
    P4 = [int(v) for v in os.environ.get("P4", "3,3,3,3,3,3,3,3,3,3").split(",")]
    for j in range(10):
        assert (4, j, 3) not in todo
        bar((4, j))
        if j == 6:
            need(("c", 0))
            k(f"ds_write_b32 v{vt[2]}, v{vt[1]}")
            k(f"v_and_b32 v20, 7, v{v_lane}"); k(f"v_lshlrev_b32 v20, 7, v20"); k(f"v_add_u32 v20, {GD_OFF}, v20")
            k(f"buffer_load_dword v21, v20, s[{sW}:{sW+3}], 0 offen sc1"); q.append(("g", 0))
        for _ in range(P4[j]):
            p_, g, ii = todo[0]
            if (p_ == 4 and g >= 8 and g - 8 + 2 > j) or (p_ == 5 and g + 4 > j): break
            piece(*todo.pop(0))
            if "psl4" in X: k("s_nop 15")
    need(("g", 0))
    k(f"v_cmp_ne_u32 vcc, s{S_TAG}, v21")
    k(f"s_cbranch_vccz {k.L('gdok')}")
    poll(k, sW, [20], [21], s_it, "gd", 2)
    k.label(k.L("gdok"))
    k("s_waitcnt lgkmcnt(0)")
    bar()
    THIN = int(os.environ.get("THIN", "6"))
    while todo:
        if THIN >= 0 and todo[0][2] % 2 == 0: k(f"s_waitcnt vmcnt({THIN})")
        piece(*todo.pop(0))
    bar()
    k(f"s_branch {k.L('l5')}")
    k.label(k.L("lskip4"))
    for j in range(6): bar()
    for j in range(8): issue(5, j)
    k.label(k.L("l5"))
    k("s_waitcnt vmcnt(0)"); q[:] = []
    bar()
    k(f"s_cmp_lg_u32 s{s_w}, 3"); k("s_cbranch_scc1 L_exit")
    k(f"s_sub_u32 s{s_ob[5]}, s{s_ob[5]}, {3 * 32 * 1280}")
    pieces = [(g, ww, ii) for g in range(8, 14) for ww in range(4 if g < 13 else 2) for ii in range(4)]
    PPB = int(os.environ.get("PPB", "9"))
    for j in range(14):
        bar((5, j))
        n = 0
        while pieces and n < PPB and pieces[0][0] - 8 + 2 <= j:
            g, ww, ii = pieces.pop(0); n += 1
            assert g > j
            if ii == 0: k(f"s_mov_b32 m0, {((7 + g) % NSLOT) * GB + ww * 4096}")
            k(f"buffer_load_dwordx4 v{vB2[ii]}, s[{sB5}:{sB5+3}], s{s_ob[5]} offen offset:{ii*1024} lds")
            q.append((5, g))
            if ii == 3: k(f"s_add_u32 s{s_ob[5]}, s{s_ob[5]}, {32 * 1280}")
        if len(q) > 40:
            k("s_waitcnt vmcnt(40)"); del q[:len(q) - 40]
    assert not pieces
    if "sta" in X: k.dump(0, 14, s_wid)
    k("s_endpgm")

    k.label(k.L("compute"))
    vBr = [4, 5, 6, 7]; vA = 8; vS = 9; vO = 10; v_tag = 11
    RES = 16; BI = 32; ACC = 48
    DIST = int(os.environ.get('DIST', '6')); NFB = 8
    NFAS = {3: 32, 4: int(os.environ.get('NFA4', '24')), 5: int(os.environ.get('NFA5', '32'))}
    s_tok3 = 34; s_act = 25
    k(f"s_mul_i32 s{s_t0}, s{s_r}, 3"); k(f"s_add_u32 s{s_t0}, s{s_t0}, s{s_w}")
    k(f"s_cmp_eq_u32 s{s_w}, 3"); k(f"s_cselect_b32 s{s_act}, 8, s{s_t0}")
    k(f"s_lshl_b32 s{s_t1}, s{s_x}, 3"); k(f"s_add_u32 s{s_t0}, s{s_t0}, s{s_t1}"); k(f"s_lshl_b32 s{s_tok3}, s{s_t0}, 5")
    for c in range(4): k(f"s_mov_b32 s{48 + c}, {2*c*CH}")
    def nbar(n):
        for _ in range(n): k("s_barrier")
    def setup(p):
        if p == 4:
            k(f"s_lshl_b32 s{s_t0}, s{s_x}, 1"); k(f"s_add_u32 s{s_t0}, s{s_t0}, s{s_r4}"); k(f"s_lshl_b32 s{s_t0}, s{s_t0}, 2")
            k(f"s_add_u32 s{s_t0}, s{s_t0}, s{s_w}"); k(f"s_lshl_b32 s{s_t0}, s{s_t0}, 5")
            k(f"v_add_u32 v{vt[0]}, s{s_t0}, v{v_t}")
        else:
            k(f"v_add_u32 v{vt[0]}, s{s_tok3}, v{v_t}")
        k(f"v_lshlrev_b32 v{vA}, 15, v{v_h}")
        k(f"v_lshl_add_u32 v{vA}, v{vt[0]}, 4, v{vA}")
        k(f"s_mov_b32 s{s_offA}, {PH[p]['A_OFF']}")
    def setup2(p):
        late = []
        if p == 4:
            k(f"s_lshl_b32 s{s_t0}, s{s_cb4}, 19"); k(f"s_add_u32 s{s_t0}, s{s_t0}, {G_OFF}")
            k(f"v_add_u32 v{vO}, s{s_t0}, v{vA}")
            k(f"v_mul_u32_u24 v{vt[1]}, {5 * 16384}, v{v_h}")
            k(f"v_lshl_add_u32 v{vS}, v{vt[0]}, 3, v{vt[1]}")
            for i in range(5):
                late.append([f"s_mov_b32 s{s_t0}, {HS_OFF + i * 16384}",
                             f"buffer_load_dwordx2 {vr(BI + 2*i, 2)}, v{vS}, s[{sW}:{sW+3}], s{s_t0} offen sc1"])
            k(f"v_bfe_u32 v{vt[0]}, v{v_lane}, 2, 2")
            k(f"v_lshl_add_u32 v{vt[1]}, v{v_h}, 2, v{vt[0]}")
            k(f"v_lshlrev_b32 v{vt[1]}, 8, v{vt[1]}")
            k(f"v_lshl_add_u32 v{vt[0]}, v{vt[0]}, 6, v{vt[1]}")
        else:
            k(f"s_lshl_b32 s{s_t1}, s{s_cb}, 7")
            k(f"v_mul_u32_u24 v{vt[1]}, 1280, v{vt[0]}")
            k(f"v_lshl_add_u32 v{vt[1]}, v{v_h}, 4, v{vt[1]}")
            if p == 3:
                k(f"v_add_u32 v{vt[1]}, s{s_t1}, v{vt[1]}")
                k(f"s_lshl_b32 s{s_t0}, s{s_cb}, 18"); k(f"s_add_u32 s{s_t0}, s{s_t0}, {H_OFF}")
                k(f"v_add_u32 v{vO}, s{s_t0}, v{vA}")
                k(f"s_lshl_b32 s{s_t0}, s{s_cb}, 14"); k(f"s_add_u32 s{s_t0}, s{s_t0}, {HS_OFF}")
                k(f"v_lshl_add_u32 v{vS}, v{vt[0]}, 3, s{s_t0}")
            else:
                k(f"v_add_u32 v{vO}, s{s_t1}, v{vt[1]}")
                srd(k, sO, 56, 57, S * D * 2); srd(k, sBi, 46, 47, D * 2)
                k(f"v_lshlrev_b32 v{vt[2]}, 3, v{v_h}")
                for c in range(8):
                    k(f"buffer_load_dwordx2 {vr(BI + 2*c, 2)}, v{vt[2]}, s[{sBi}:{sBi+3}], s{s_t1} offen offset:{16*c}")
            k(f"v_bfe_u32 v{vt[0]}, v{v_lane}, 2, 2")
            k(f"v_lshl_add_u32 v{vt[0]}, v{v_h}, {3 if p == 3 else 2}, v{vt[0]}")
            k(f"v_lshlrev_b32 v{vt[0]}, 7, v{vt[0]}")
            k(f"v_bfe_u32 v{vt[3]}, v{v_lane}, 3, 1")
            k(f"v_lshl_add_u32 v{vt[0]}, v{vt[3]}, 6, v{vt[0]}")
        k(f"v_bfe_u32 v{vt[3]}, v{v_lane}, 4, 1")
        k(f"v_lshl_add_u32 v{vt[0]}, v{vt[3]}, 5, v{vt[0]}")
        k(f"v_and_b32 v{vt[3]}, 3, v{v_lane}")
        k(f"v_lshl_add_u32 v{vBr[0]}, v{vt[3]}, 3, v{vt[0]}")
        for j in range(1, PH[p]["NT"]): k(f"v_xor_b32 v{vBr[j]}, {64 * j}, v{vBr[0]}")
        return late
    def aload(p, i, FA):
        NFA = NFAS[p]
        return [f"buffer_load_dwordx4 {vr(FA + (i % NFA) * 4, 4)}, v{vA}, s[{sW}:{sW+3}], s{s_offA} offen{ASC}",
                f"s_add_u32 s{s_offA}, s{s_offA}, {2 * CH}"]
    def gemm(p, late, pre_issued, mid={}):
        P = PH[p]; NT = P["NT"]; GS = P["GS"]; NKS = P["NKS"]
        FB = ACC + 16 * NT; FA = FB + NFB * 4
        NFA = NFAS[p]; LA = min(NFA - 2, int(os.environ.get("LA%d" % p, "10" if p == 4 else "14"))); LI = int(os.environ.get("LI%d" % p, "6" if p == 4 else "8"))
        for i in range(LI):
            for l in aload(p, i, FA): k(l)
        nis = LI
        cur = [0]
        NM = NKS * NT; KSB = GB // GS
        def bread(m):
            ks, j = divmod(m, NT)
            G, qq = divmod(ks, GS)
            off = ((P["base"] + G) % NSLOT) * GB + qq * KSB
            r = []
            if qq == 0 and j == 0: r.append("s_barrier")
            base = (off // 65536) * 65536
            if base != cur[0]:
                for a in vBr[:NT]: r.append(f"v_add_u32 v{a}, {(base - cur[0]) & 0xffffffff:#x}, v{a}")
                cur[0] = base
            for e in range(2):
                r.append(f"ds_read_b64_tr_b16 {vr(FB + (m % NFB) * 4 + 2*e, 2)}, v{vBr[j]} offset:{off - base + e * (KSB // (4 if p == 3 else 2))}")
            return r
        if K.prof: k("s_waitcnt lgkmcnt(0)")
        for m in range(DIST):
            for l in bread(m): k(l)
        vq = [("A", i) for i in range(LI)]
        for m in range(NM):
            ks, j = divmod(m, NT)
            nout = 2 * (min(NM, m + DIST) - m - 1)
            if j == 0:
                pos = vq.index(("A", ks))
                k(f"s_waitcnt vmcnt({len(vq) - 1 - pos}) lgkmcnt({nout})")
            else:
                k(f"s_waitcnt lgkmcnt({nout})")
            cc = vr(ACC + 16*j, 16) if (ks or p != 4) else "0"
            k(f"v_mfma_f32_32x32x16_bf16 {vr(ACC + 16*j, 16)}, {vr(FB + (m % NFB) * 4, 4)}, {vr(FA + (ks % NFA) * 4, 4)}, {cc}")
            if ("stg%d" % p) in X and j == 0 and ks in (0, NKS // 5, 2 * NKS // 5, 3 * NKS // 5, 4 * NKS // 5):
                k.stamp(2 + [0, NKS // 5, 2 * NKS // 5, 3 * NKS // 5, 4 * NKS // 5].index(ks))
            if m + DIST < NM:
                for l in bread(m + DIST): k(l)
            if m in mid:
                for l in mid[m](len(vq) - 1 - max(i for i, e in enumerate(vq) if e[0] == "R") if any(e[0] == "R" for e in vq) else 0): k(l)
            if j in (0, NT // 2) and nis < min(NKS, ks + 1 + LA):
                for l in aload(p, nis, FA): k(l)
                vq.append(("A", nis)); nis += 1
            if j == 0 and late and ks + LA + 4 >= NKS:
                for l in late.pop(0): k(l)
                vq.append(("R", 0))
        assert not late
        if ("stg%d" % p) in X: k.stamp(0)
        return FB, FA
    def sync(pdone, pwait, nflags, name, slp=0, extra=False):
        publish(k, sW, pdone, 94, s_t0, vt[0], vt[1], not (pdone == 2 and "headmap" in X))
        k(f"v_min_u32 v{vt[0]}, {nflags - 1}, v{v_lane}")
        k(f"s_lshl_b32 s{s_t0}, s{s_x}, 12"); k(f"s_add_u32 s{s_t0}, s{s_t0}, {FL_OFF + (pwait - 1) * 32768}")
        k(f"v_lshl_add_u32 v{vt[0]}, v{vt[0]}, 7, s{s_t0}")
        if extra:
            k(f"s_lshl_b32 s{s_t0}, s{s_cb4}, 11"); k(f"s_add_u32 s{s_t0}, s{s_t0}, {FL_OFF + 15 * 128}")
            k(f"v_writelane_b32 v{vt[0]}, s{s_t0}, 63")
        poll(k, sW, [vt[0]], [vt[1]], s_it, name, slp)

    setup(3)
    k("s_waitcnt lgkmcnt(0)")
    srd(k, sW, 40, 41, WS_END)
    late = setup2(3)
    k(f"s_cmp_ge_u32 s{s_act}, 8"); k(f"s_cbranch_scc1 {k.L('nores')}")
    def res_to_acc(R):
        for c in range(4 if R == XR else 0):
            k(f"v_permlane32_swap_b32 v{R + 4*c}, v{R + 4*c + 2}")
            k(f"v_permlane32_swap_b32 v{R + 4*c + 1}, v{R + 4*c + 3}")
        for r in range(16):
            k(f"v_lshlrev_b32 v{ACC + 2*r}, 16, v{R + r}")
            k(f"v_and_b32 v{ACC + 2*r + 1}, 0xffff0000, v{R + r}")
    k("s_waitcnt vmcnt(0)")
    k("s_barrier")
    k(f"s_cmp_ge_u32 s{s_idx}, 30"); k(f"s_cbranch_scc1 L_exit")
    res_to_acc(XR)
    k("s_barrier")
    k.stamp(7)
    FB, FA = gemm(3, late, False)
    if "st45" in X: k.stamp(2)
    k(f"v_mov_b32 v{vt[0]}, 0"); k(f"v_mov_b32 v{vt[1]}, 0"); k(f"s_mov_b32 s{s_t1}, 0x3f803f80")
    loc_vcc(k)
    for hf in range(2):
        for r in range(8*hf, 8*hf + 8):
            k(f"v_cvt_pk_bf16_f32 v{RES + r}, v{ACC + 2*r}, v{ACC + 2*r + 1}")
        dstores(k, [f"buffer_store_dwordx4 {vr(RES + 4*c, 4)}, v{vO}, s[{sW}:{sW+3}], s{48 + c} offen" for c in (2*hf, 2*hf + 1)])
    for r in range(16):
        k(f"v_dot2c_f32_bf16 v{vt[0]}, s{s_t1}, v{RES + r}")
        k(f"v_dot2c_f32_bf16 v{vt[1]}, v{RES + r}, v{RES + r}")
    k(f"v_mov_b32 v{vt[2]}, v{vt[0]}"); k(f"v_mov_b32 v{vt[3]}, v{vt[1]}")
    k(f"v_permlane32_swap_b32 v{vt[0]}, v{vt[2]}"); k(f"v_permlane32_swap_b32 v{vt[1]}, v{vt[3]}")
    k(f"v_add_f32 v{vt[0]}, v{vt[0]}, v{vt[2]}"); k(f"v_add_f32 v{vt[1]}, v{vt[1]}, v{vt[3]}")
    k("s_mov_b32 exec_hi, 0")
    dstores(k, [f"buffer_store_dwordx2 {vr(vt[0], 2)}, v{vS}, s[{sW}:{sW+3}], 0 offen"])
    k("s_mov_b32 exec_hi, -1")
    k(f"s_branch {k.L('pb3')}")
    k.label(k.L("nores"))
    k("s_waitcnt vmcnt(0)")
    k("s_barrier")
    k(f"s_cmp_lg_u32 s{s_w}, 3"); k(f"s_cbranch_scc1 {k.L('ns3')}")
    k(f"s_cmp_lt_u32 s{s_idx}, 30"); k(f"s_cbranch_scc1 {k.L('s3')}")
    publish(k, sW, 2, 94, s_t0, vt[0], vt[1], "headmap" not in X)
    k("s_endpgm")
    k.label(k.L("s3"))
    sync(2, 2, 32, "3")
    k(f"s_cmp_lg_u32 s{s_idx}, 0"); k(f"s_cbranch_scc1 {k.L('ns3')}")
    k(f"s_lshl_b32 s{s_t0}, s{s_x}, 7"); k(f"s_add_u32 s{s_t0}, s{s_t0}, {GD_OFF}")
    k(f"v_mov_b32 v{vt[0]}, 0"); k(f"v_mov_b32 v{vt[1]}, s{S_TAG}")
    k("s_mov_b64 exec, 1")
    k(f"buffer_store_dword v{vt[1]}, v{vt[0]}, s[{sW}:{sW+3}], s{s_t0} offen sc1")
    k("s_mov_b64 exec, -1")
    k.label(k.L("ns3"))
    k(f"s_cmp_ge_u32 s{s_idx}, 30"); k(f"s_cbranch_scc1 L_exit")
    nbar(6)
    k.label(k.L("pb3"))
    k(f"s_lshl_b32 s94, s{s_x}, 5"); k(f"s_add_u32 s94, s94, s{s_idx}")
    k(f"s_cmp_ge_u32 s{s_idx}, 28"); k(f"s_cbranch_scc1 {k.L('skip4')}")
    setup(4)
    late = setup2(4)
    k("s_waitcnt vmcnt(0)")
    k("s_barrier")
    if "st2" not in X: k.stamp(8)
    k(f"s_cmp_lg_u32 s{s_w}, 3"); k(f"s_cbranch_scc1 {k.L('ns4')}")
    sync(3, 3, 30, "4", extra=True)
    k.label(k.L("ns4"))
    k("s_barrier")
    if "cprio" in X: k("s_setprio 2")
    if "st2" not in X: k.stamp(9)
    PS = BI; MR = BI + 12
    kk = K("tmp")
    for i in range(1, 5): kk(f"v_add_f32 v{PS}, v{PS}, v{PS + 2*i}"); kk(f"v_add_f32 v{PS+1}, v{PS+1}, v{PS + 2*i + 1}")
    kk(f"v_mov_b32 v{PS+2}, v{PS}"); kk(f"v_mov_b32 v{PS+3}, v{PS+1}")
    kk(f"v_permlane32_swap_b32 v{PS}, v{PS+2}"); kk(f"v_permlane32_swap_b32 v{PS+1}, v{PS+3}")
    kk(f"v_add_f32 v{PS}, v{PS}, v{PS+2}"); kk(f"v_add_f32 v{PS+1}, v{PS+1}, v{PS+3}")
    rowstat_math(kk, PS, PS + 1, MR, MR + 1, PS + 2, True)
    kk(f"v_mul_f32 v{MR+1}, {f32(GS)}, v{MR+1}")
    kk(f"v_lshlrev_b32 v{vt[0]}, 4, v{v_h}"); kk(f"v_add_u32 v{vt[0]}, {SB}, v{vt[0]}")
    st = kk.lines; mid = {}
    m0_ = 160 - (len(st) + 1) // 2 - 1
    for i in range(0, len(st), 2):
        mid[m0_ + i // 2] = (lambda n, i=i: ([f"s_waitcnt vmcnt({n})"] if i == 0 else []) + st[i:i + 2])
    FB, FA = gemm(4, late, False, mid)
    if "st45" in X: k.stamp(3)
    if "st4" in X: k.stamp(2)
    k("s_barrier")
    if "st4" in X: k.stamp(3)
    T = FB; CSB = [FB + 32, FB + 64]
    def csread(nt):
        for rq in range(8):
            k(f"ds_read_b128 {vr(CSB[nt % 2] + rq*4, 4)}, v{vt[0]} offset:{(rq // 4) * 512 + nt*128 + (rq % 4)*32}")
    csread(0)
    k(f"s_mov_b32 s58, {f32(GC0 / GS)}"); k(f"s_mov_b32 s59, {f32(math.log2(GS))}")
    k(f"s_mov_b32 s36, {f32(GS)}")
    if "gsc1" in X: k(f"s_mov_b32 s{S_LOC}, 0")
    loc_vcc(k)
    for nt in range(4):
        if nt == 2:
            k(f"s_cmp_eq_u32 s{s_cb4}, 13"); k(f"s_cbranch_scc1 {k.L('done4')}")
            k(f"v_add_u32 v{vO}, {8 * CH}, v{vO}")
        k("s_waitcnt lgkmcnt(0)")
        if nt < 3: csread(nt + 1)
        a = ACC + 16 * nt; CS = CSB[nt % 2]; B1 = CS + 16
        for p in range(8):
            x = vr(a + 2*p, 2)
            k(f"v_pk_fma_f32 {x}, {vr(CS + 2*p, 2)}, {vr(MR,2)}, {x} op_sel_hi:[1,0,1]")
        for p in range(8):
            x = vr(a + 2*p, 2)
            k(f"v_pk_fma_f32 {x}, {x}, {vr(MR,2)}, {vr(B1 + 2*p, 2)} op_sel:[0,1,0] op_sel_hi:[1,1,1]")
        for p in range(8):
            x = vr(a + 2*p, 2); t = vr(T + 2*p, 2)
            k(f"v_pk_fma_f32 {t}, {x}, {x}, s[58:59] op_sel_hi:[1,1,0]")
        for p in range(8):
            x = vr(a + 2*p, 2); t = vr(T + 2*p, 2)
            k(f"v_pk_fma_f32 {t}, {t}, {x}, s[58:59] op_sel:[0,0,1] op_sel_hi:[1,1,1] neg_lo:[0,1,0] neg_hi:[0,1,0]")
        for r in range(16): k(f"v_exp_f32 v{T + r}, v{T + r}")
        for p in range(8):
            t = vr(T + 2*p, 2)
            k(f"v_pk_add_f32 {t}, {t}, s[36:37] op_sel_hi:[1,0]")
        for r in range(16): k(f"v_rcp_f32 v{T + r}, v{T + r}")
        for p in range(8):
            x = vr(a + 2*p, 2); t = vr(T + 2*p, 2)
            k(f"v_pk_mul_f32 {x}, {x}, {t}")
        Pk = T + 16 + (nt % 2) * 8
        for p in range(8):
            k(f"v_cvt_pk_bf16_f32 v{Pk + p}, v{a + 2*p}, v{a + 2*p + 1}")
        sts = [f"buffer_store_dwordx4 {vr(Pk + 4*pq,4)}, v{vO}, s[{sW}:{sW+3}], s{48 + (nt % 2)*2 + pq} offen" for pq in range(2)]
        if nt < int(os.environ.get("GWT", "0")):
            for l in sts: k(l + " sc1")
        else:
            dstores(k, sts)
    k.label(k.L("done4"))
    if "st4" in X: k.stamp(4)
    k("s_waitcnt vmcnt(0) lgkmcnt(0)")
    if "st4" in X: k.stamp(5)
    k("s_barrier")
    k.stamp(10)
    k(f"s_cmp_lg_u32 s{s_w}, 3"); k(f"s_cbranch_scc1 {k.L('p5')}")
    sync(4, 4, 28, "5")
    k(f"s_branch {k.L('p5')}")
    k.label(k.L("skip4"))
    k("s_waitcnt vmcnt(0)")
    k("s_barrier")
    k(f"s_cmp_lg_u32 s{s_w}, 3"); k(f"s_cbranch_scc1 {k.L('p5')}")
    sync(3, 4, 28, "6", 8)
    k.label(k.L("p5"))
    k(f"s_cmp_ge_u32 s{s_act}, 8"); k(f"s_cbranch_scc1 {k.L('idle5')}")
    setup(5)
    late = setup2(5)
    res_to_acc(RES)
    k("s_waitcnt vmcnt(0)")
    T = ACC + 64
    for r in range(16):
        k(f"v_lshlrev_b32 v{T + 2*r}, 16, v{BI + r}")
        k(f"v_and_b32 v{T + 2*r + 1}, 0xffff0000, v{BI + r}")
    for r in range(16):
        k(f"v_pk_add_f32 {vr(ACC + 2*r, 2)}, {vr(ACC + 2*r, 2)}, {vr(T + 2*r, 2)}")
    k("s_barrier")
    k.stamp(11)
    FB, FA = gemm(5, late, False)
    if "st4" in X: k.stamp(6)
    if "st45" in X: k.stamp(4)
    for c in range(4):
        for r in range(4*c, 4*c + 4):
            k(f"v_cvt_pk_bf16_f32 v{RES + r}, v{ACC + 2*r}, v{ACC + 2*r + 1}")
        k(f"v_permlane32_swap_b32 v{RES + 4*c}, v{RES + 4*c + 2}")
        k(f"v_permlane32_swap_b32 v{RES + 4*c + 1}, v{RES + 4*c + 3}")
        k(f"buffer_store_dwordx4 {vr(RES + 4*c, 4)}, v{vO}, s[{sO}:{sO+3}], 0 offen offset:{32*c}{os.environ.get('OSC', '')}")
    if "g3" in X: gate(k, 70)
    k.dump(0, 14, s_wid)
    k("s_endpgm")
    k.label(k.L("idle5"))
    k("s_barrier")
    if "wbl2" in X:
        k(f"s_cmp_lg_u32 s{s_idx}, 0"); k("s_cbranch_scc1 L_exit")
        k("buffer_wbl2 sc1")
    k.label("L_exit")
    k("s_endpgm")
    emit_slow(k)

NAME = "sequential_preLN__mha_block__mixer_channel_mlp__prompt"
HEADER = open(f"cdna_kernels/{NAME}.s.ref").read().split("; Override")[0]

def build(path):
    k = K(NAME)
    phase1(k); phase2(k); phase345(k)
    lds = MRG + 8 * 3328
    t = HEADER
    if "aslist" in X:
        t += f"; @launch kernel={k.name}_kernel grid=(256,1,1) block=(512,1,1) lds={lds}\n"
    else:
        t += f"; @launch grid=(256,1,1) block=(512,1,1) lds={lds}\n"
    t += '.amdgcn_target "amdgcn-amd-amdhsa--gfx950"\n.text\n'
    t += kernel_text(k, 256)
    t += "L_code_end:\n"
    t += '.section .rodata,"a"\n'
    t += kernel_desc(k, 256, 96)
    open(path, "w").write(t)

if __name__ == "__main__":
    if len(sys.argv) > 2 and sys.argv[2] == "prof": K.prof = True
    build(sys.argv[1] if len(sys.argv) > 1 else f"cdna_kernels/{NAME}.s")
```

```python
import sys, math, struct, os
X = set(os.environ.get("EXP", "").split(","))
from asmlib import K, vr, sr, kernel_text, kernel_desc

S = 2048; D = 640; F = 1728; H = 32; DH = 20
QK_OFF = 0x0
V_OFF = 0x500000
QKV_END = 0x780000
O_OFF = 0x0
H_OFF = 0x280000
G_OFF = 0x780000
HS_OFF = 0x500000
C1_OFF = 0x1370000
ST_OFF = 0x1378000
FL_OFF = 0x1400000
FX_OFF = 0x1420000
TAG_OFF = 0x1428000
GD_OFF = 0x1428400
WS_END = 0x1428800
S_LOC = 95
LOCW = 131072 + 1024
S_TAG = 88; S_WID = 89
XR = 216; XRA = 215
MRG = 131072 + 2048
G_END = 0x1340000
CH = S * 16
EPS = 1e-5
GC0 = 2.0 * math.log2(math.e) * math.sqrt(2.0 / math.pi)
GS = (GC0 * 0.044715) ** (1.0 / 3.0)

def f32(x):
    return "0x%08x" % struct.unpack("<I", struct.pack("<f", x))[0]

def srd(k, d, lo, hi, size):
    k(f"s_mov_b32 s{d}, s{lo}")
    k(f"s_and_b32 s{d+1}, s{hi}, 0xffff")
    k(f"s_mov_b32 s{d+2}, {size:#x}")
    k(f"s_mov_b32 s{d+3}, 0x00020000")

def code_prefetch(k, first, sd, st, vaddr, vdst, v_lane, per=12):
    lab = k.L("pc%d" % k.uid); k.uid += 1
    k(f"s_getpc_b64 s[{sd}:{sd+1}]")
    k.label(lab)
    k(f"s_add_u32 s{sd}, s{sd}, {first}-{lab}")
    k(f"s_addc_u32 s{sd+1}, s{sd+1}, {'-1' if first == k.name + '_kernel' else '0'}")
    k(f"s_and_b32 s{sd+1}, s{sd+1}, 0xffff")
    k(f"s_mov_b32 s{sd+2}, L_code_end-{first}")
    k(f"s_mov_b32 s{sd+3}, 0x00020000")
    k(f"s_lshr_b32 s{st}, s2, 3"); k(f"s_mul_i32 s{st}, s{st}, {per * 128}")
    k(f"v_lshlrev_b32 v{vaddr}, 7, v{v_lane}")
    k(f"s_mov_b64 exec, {(1 << per) - 1:#x}")
    k(f"buffer_load_dword v{vdst}, v{vaddr}, s[{sd}:{sd+3}], s{st} offen")
    k("s_mov_b64 exec, -1")

def gate(k, us):
    lab = k.L("gate%d" % k.uid); k.uid += 1
    k("s_load_dwordx2 s[80:81], s[0:1], 80"); k("s_waitcnt lgkmcnt(0)")
    k(f"s_add_u32 s80, s80, {TAG_OFF + 4}"); k("s_addc_u32 s81, s81, 0")
    k("s_load_dword s82, s[80:81], 0"); k("s_waitcnt lgkmcnt(0)")
    k.label(lab)
    k("s_memrealtime s[84:85]"); k("s_waitcnt lgkmcnt(0)")
    k("s_sub_u32 s84, s84, s82")
    k(f"s_cmp_lt_u32 s84, {us * 100}"); k(f"s_cbranch_scc1 {lab}")

def rowstat_math(k, s_, q_, nm, rs, t, double):
    k(f"v_mul_f32 v{nm}, {f32(-1.0 / D)}, v{s_}")
    k(f"v_mul_f32 v{q_}, {f32(1.0 / D)}, v{q_}")
    k(f"v_fma_f32 v{q_}, -v{nm}, v{nm}, v{q_}")
    k(f"v_max_f32 v{q_}, 0, v{q_}")
    k(f"v_add_f32 v{t}, {f32(EPS)}, v{q_}")
    k(f"v_rsq_f32 v{rs}, v{t}")
    if double:
        k(f"v_mul_f32 v{t}, v{rs}, v{rs}")
        k(f"v_mul_f32 v{t}, v{t}, v{q_}")
        k(f"v_add_f32 v{t}, {f32(EPS)}, v{t}")
        k(f"v_rsq_f32 v{t}, v{t}")
        k(f"v_mul_f32 v{rs}, v{rs}, v{t}")


SLOW = []

def loc_vcc(k):
    if "noloc" in X: k(f"s_mov_b32 s{S_LOC}, 0")
    k(f"s_cmp_lg_u32 s{S_LOC}, 0"); k("s_cselect_b64 vcc, -1, 0")

def dstores(k, lines):
    n = len(SLOW)
    k(f"s_cbranch_vccz L_slow{n}")
    for l in lines: k(l)
    k.label(f"L_back{n}")
    SLOW.append([l + (" sc1" if l.startswith("buffer") else "") for l in lines])

def emit_slow(k):
    for n, lines in enumerate(SLOW):
        k.label(f"L_slow{n}")
        for l in lines: k(l)
        k(f"s_branch L_back{n}")

def publish(k, sW, ph, s_idx, s_t, v0_, v1_, local=False):
    k(f"s_lshl_b32 s{s_t}, s{s_idx}, 7"); k(f"s_add_u32 s{s_t}, s{s_t}, {FL_OFF + (ph - 1) * 32768}")
    k(f"v_mov_b32 v{v0_}, 0"); k(f"v_mov_b32 v{v1_}, s{S_TAG}")
    k("s_mov_b64 exec, 1")
    st = f"buffer_store_dword v{v1_}, v{v0_}, s[{sW}:{sW+3}], s{s_t} offen"
    if local:
        loc_vcc(k); dstores(k, [st])
    else:
        k(st + " sc1")
    k("s_mov_b64 exec, -1")

def poll(k, sW, vaddrs, vdsts, s_it, name, slp=0):
    if len(vaddrs) > 1 and "nopp" not in X:
        k(f"buffer_load_dword v{vdsts[1]}, v{vaddrs[1]}, s[{sW}:{sW+3}], 0 offen sc1")
    if "nopp" not in X:
        ND = int(os.environ.get("PPD", "0")); R = [248 + i for i in range(ND + 1)]
        gap = slp or int(os.environ.get("PPS", "1"))
        k(f"s_mov_b32 s{s_it}, 0")
        k("s_mov_b64 s[90:91], -1")
        for i in range(ND):
            k(f"buffer_load_dword v{R[i]}, v{vaddrs[0]}, s[{sW}:{sW+3}], 0 offen sc1")
            k(f"s_sleep {gap}")
        k.label(k.L("poll" + name))
        for i in range(ND + 1):
            k(f"buffer_load_dword v{R[(i + ND) % (ND + 1)]}, v{vaddrs[0]}, s[{sW}:{sW+3}], 0 offen sc1")
            k(f"s_waitcnt vmcnt({ND})")
            k(f"v_cmp_ne_u32 vcc, s{S_TAG}, v{R[i]}")
            k("s_and_b64 exec, exec, vcc")
            k(f"s_cbranch_execz {k.L('go' + name)}")
            k(f"s_sleep {gap}")
        k(f"s_add_u32 s{s_it}, s{s_it}, 1")
        k(f"s_cmp_lt_u32 s{s_it}, 0x4000")
        k(f"s_cbranch_scc1 {k.L('poll' + name)}")
        k.label(k.L("go" + name))
        k("s_mov_b64 exec, -1")
        if len(vaddrs) == 1: return
        vaddrs = vaddrs[1:]; vdsts = vdsts[1:]; name += "b"
        k(f"v_cmp_ne_u32 vcc, s{S_TAG}, v{vdsts[0]}")
        k(f"s_cbranch_vccz {k.L('go' + name)}")
    k(f"s_mov_b32 s{s_it}, 0")
    k.label(k.L("poll" + name))
    for va, vd in zip(vaddrs, vdsts):
        k(f"buffer_load_dword v{vd}, v{va}, s[{sW}:{sW+3}], 0 offen sc1")
    k(f"s_add_u32 s{s_it}, s{s_it}, 1")
    k("s_waitcnt vmcnt(0)")
    k(f"v_cmp_ne_u32 vcc, s{S_TAG}, v{vdsts[0]}")
    for vd in vdsts[1:]:
        k(f"v_cmp_ne_u32 s[90:91], s{S_TAG}, v{vd}")
        k("s_or_b64 vcc, vcc, s[90:91]")
    k(f"s_cbranch_vccz {k.L('go' + name)}")
    if slp: k(f"s_sleep {slp}")
    k(f"s_cmp_lt_u32 s{s_it}, 0x8000")
    k(f"s_cbranch_scc1 {k.L('poll' + name)}")
    k.label(k.L("go" + name))

def phase1(k):
    k.pref = "p1"
    kind = "qkv"; qkv = True
    NB = 1920 if qkv else F
    BROW = NB * 2
    DEEP = int(os.environ.get("DEEP", "0"))
    NS = 5 if DEEP else 4; SLOT = 32768; NST = 10
    SB = 0 if DEEP else NS * SLOT
    SL = SB + 2048
    sA, sB, sW, sBi = 4, 8, 12, 16
    s_mb, s_nb, s_w = 20, 21, 22
    s_wm, s_wn = 23, 24
    s_offA, s_offB, s_m0, s_it, s_delta, s_t0, s_t1, s_slot = 25, 26, 27, 28, 29, 30, 31, 32
    s_ones = 33
    s_wid = S_WID
    v_lane, v_t, v_h = 1, 2, 3
    vAd = [4, 5, 6, 7]; vBd = [8, 9, 10, 11]
    vBr = [12, 13]
    v_b1 = 17
    vt = [18, 19, 20, 21, 22, 23]
    vAr = [24, 25, 26, 27]
    FA = [[32 + 16 * i, 36 + 16 * i] for i in range(4)]
    FB = [[40 + 16 * i, 44 + 16 * i] for i in range(4)]
    ACC = 96
    def acc(mt, nt): return ACC + (mt * 2 + nt) * 16
    EP = 160
    kidx = 0 if qkv else 3

    if "early" in X: k("s_memrealtime s[86:87]")
    if "perm" in X:
        k("s_lshr_b32 s3, s2, 3"); k("s_and_b32 s3, s3, 7"); k("s_xor_b32 s2, s2, s3")
    k.stamp(0); k.stamp(1, True)
    k(f"s_cmp_ge_u32 s2, 256"); k(f"s_cbranch_scc1 L_exit")
    if qkv:
        k("s_load_dwordx4 s[36:39], s[0:1], 0")
        k("s_load_dwordx4 s[40:43], s[0:1], 72")
        WSL = 42
    else:
        k("s_load_dwordx2 s[36:37], s[0:1], 32")
        k("s_load_dwordx2 s[40:41], s[0:1], 80")
        WSL = 40
    k(f"s_and_b32 s{s_t0}, s2, 7"); k(f"s_lshr_b32 s{s_t1}, s2, 3")
    if qkv:
        k(f"s_lshr_b32 s{s_mb}, s{s_t0}, 1"); k(f"s_lshl_b32 s{s_mb}, s{s_mb}, 2")
        k(f"s_and_b32 s{s_nb}, s{s_t1}, 3"); k(f"s_add_u32 s{s_mb}, s{s_mb}, s{s_nb}")
        k(f"s_and_b32 s{s_nb}, s{s_t0}, 1"); k(f"s_lshl_b32 s{s_nb}, s{s_nb}, 3")
        k(f"s_lshr_b32 s{s_t1}, s{s_t1}, 2"); k(f"s_add_u32 s{s_nb}, s{s_nb}, s{s_t1}")
    else:
        k(f"s_lshl_b32 s{s_mb}, s{s_t0}, 1"); k(f"s_and_b32 s{s_nb}, s{s_t1}, 1"); k(f"s_add_u32 s{s_mb}, s{s_mb}, s{s_nb}")
        k(f"s_lshr_b32 s{s_nb}, s{s_t1}, 1")
    k(f"v_lshrrev_b32 v{vt[0]}, 6, v0")
    k(f"v_and_b32 v{v_lane}, 63, v0")
    k(f"v_readfirstlane_b32 s{s_wid}, v{vt[0]}")
    k(f"v_and_b32 v{v_t}, 31, v0")
    k(f"v_bfe_u32 v{v_h}, v0, 5, 1")
    k(f"s_and_b32 s{s_w}, s{s_wid}, 3")
    k(f"s_cmp_lt_u32 s{s_wid}, 4")
    k(f"s_cbranch_scc1 {k.L('compute')}")
    if qkv:
        k(f"s_cmp_ge_u32 s{s_nb}, 15"); k(f"s_cbranch_scc1 {k.L('auxl')}")
        k(f"v_lshrrev_b32 v{vt[0]}, 3, v{v_lane}")
        k(f"v_and_b32 v{vt[1]}, 7, v{v_lane}")
        k(f"v_lshrrev_b32 v{vt[2]}, 1, v{vt[0]}")
        k(f"v_xor_b32 v{vt[2]}, v{vt[2]}, v{vt[1]}")
        k(f"v_xor_b32 v{vt[3]}, 4, v{vt[2]}")
        k(f"s_lshl_b32 s{s_t0}, s{s_mb}, 7"); k(f"s_lshl_b32 s{s_t1}, s{s_w}, 5"); k(f"s_add_u32 s{s_t0}, s{s_t0}, s{s_t1}")
        k(f"v_add_u32 v{vt[0]}, s{s_t0}, v{vt[0]}")
        k(f"v_mul_u32_u24 v{vt[0]}, 1280, v{vt[0]}")
        for ii in range(4):
            k(f"v_lshl_add_u32 v{vAd[ii]}, v{vt[2 + (ii & 1)]}, 4, v{vt[0]}")
            if ii: k(f"v_add_u32 v{vAd[ii]}, {ii * (8 * 1280 - 1024)}, v{vAd[ii]}")
        stepA = 128
    else:
        k(f"s_lshl_b32 s{s_t0}, s{s_mb}, 11")
        k(f"s_mul_i32 s{s_t1}, s{s_w}, {2 * CH}")
        k(f"s_add_u32 s{s_t0}, s{s_t0}, s{s_t1}")
        k(f"s_add_u32 s{s_t0}, s{s_t0}, {H_OFF}")
        k(f"v_lshl_add_u32 v{vAd[0]}, v{v_lane}, 4, s{s_t0}")
        k(f"v_mov_b32 v{vAd[1]}, v{vAd[0]}")
        k(f"v_add_u32 v{vAd[2]}, {CH - 2048}, v{vAd[0]}")
        k(f"v_add_u32 v{vAd[3]}, {CH - 2048}, v{vAd[0]}")
        stepA = 8 * CH
    k(f"v_lshrrev_b32 v{vt[0]}, 4, v{v_lane}")
    k(f"v_and_b32 v{vt[1]}, 15, v{v_lane}")
    k(f"v_lshlrev_b32 v{vt[2]}, 2, v{vt[0]}")
    k(f"v_xor_b32 v{vt[1]}, v{vt[1]}, v{vt[2]}")
    k(f"s_lshl_b32 s{s_t0}, s{s_w}, 4")
    k(f"v_add_u32 v{vt[0]}, s{s_t0}, v{vt[0]}")
    k(f"v_mul_u32_u24 v{vt[0]}, {BROW}, v{vt[0]}")
    k(f"v_lshl_add_u32 v{vt[0]}, v{vt[1]}, 4, v{vt[0]}")
    k(f"s_lshl_b32 s{s_t0}, s{s_nb}, 8")
    k(f"v_add_u32 v{vBd[0]}, s{s_t0}, v{vt[0]}")
    for ii in range(1, 4):
        k(f"v_add_u32 v{vBd[ii]}, {ii * (4 * BROW - 1024)}, v{vBd[0]}")
    stepB = 64 * BROW
    ROT = os.environ.get("ROT", "2x1")
    if ROT:
        ncls, stp = (int(v) for v in ROT.split("x"))
        k(f"s_add_u32 s{s_slot}, s{s_mb}, s{s_nb}"); k(f"s_and_b32 s{s_slot}, s{s_slot}, {ncls - 1}"); k(f"s_mul_i32 s{s_slot}, s{s_slot}, {stp}")
        k(f"s_mul_i32 s{s_offA}, s{s_slot}, {stepA}"); k(f"s_mul_i32 s{s_offB}, s{s_slot}, {stepB}")
    else:
        k(f"s_mov_b32 s{s_offA}, 0"); k(f"s_mov_b32 s{s_offB}, 0")
    k(f"s_lshl_b32 s{s_m0}, s{s_w}, 12")
    k(f"s_mov_b32 s{s_it}, 0")
    k("s_waitcnt lgkmcnt(0)")
    if qkv:
        srd(k, sA, 36, 37, S * D * 2); srd(k, sB, 38, 39, D * NB * 2)
    else:
        srd(k, sB, 36, 37, D * NB * 2); srd(k, sW, WSL, WSL + 1, WS_END)
        sA = sW
    def dma_stage():
        r = []
        r.append(f"s_mov_b32 m0, s{s_m0}")
        for ii in range(4):
            r.append(f"buffer_load_dwordx4 v{vAd[ii]}, s[{sA}:{sA+3}], s{s_offA} offen offset:{ii*1024} lds")
        r.append(f"s_add_u32 m0, s{s_m0}, 16384")
        for ii in range(4):
            r.append(f"buffer_load_dwordx4 v{vBd[ii]}, s[{sB}:{sB+3}], s{s_offB} offen offset:{ii*1024} lds")
        r.append(f"s_add_u32 s{s_offA}, s{s_offA}, {stepA}")
        r.append(f"s_add_u32 s{s_offB}, s{s_offB}, {stepB}")
        if ROT:
            r.append(f"s_cmp_lg_u32 s{s_offA}, {10 * stepA}")
            r.append(f"s_cselect_b32 s{s_offA}, s{s_offA}, 0")
            r.append(f"s_cselect_b32 s{s_offB}, s{s_offB}, 0")
        r.append(f"s_add_u32 s{s_m0}, s{s_m0}, {SLOT}")
        r.append(f"s_and_b32 s{s_m0}, s{s_m0}, {NS * SLOT - 1}")
        return r
    def lstep(n=8, dma=True):
        if dma:
            for l in dma_stage(): k(l)
        k(f"s_waitcnt vmcnt({n})")
        k("s_barrier")
    def lloop(tag, n):
        k(f"s_mov_b32 s{s_it}, 0")
        k.label(k.L("lloop" + tag))
        lstep()
        k(f"s_add_u32 s{s_it}, s{s_it}, 1")
        k(f"s_cmp_lt_u32 s{s_it}, {n}")
        k(f"s_cbranch_scc1 {k.L('lloop' + tag)}")
    XS = 32
    v_tag = 16
    RG_OFF = ST_OFF; CG_OFF = ST_OFF + 32768
    def slice_addr_rows():
        k(f"v_lshrrev_b32 v{vt[4]}, 4, v{v_lane}")
        k(f"v_and_b32 v{vt[5]}, 15, v{v_lane}")
        k(f"v_mul_u32_u24 v{vt[4]}, 1280, v{vt[4]}")
        k(f"v_lshl_add_u32 v{vt[4]}, v{vt[5]}, 4, v{vt[4]}")
        k(f"s_lshl_b32 s{s_t0}, s{s_mb}, 5"); k(f"s_lshl_b32 s{s_t1}, s{s_nb}, 1"); k(f"s_add_u32 s{s_t0}, s{s_t0}, s{s_t1}")
        k(f"s_add_u32 s{s_delta}, s{s_t0}, s{s_w}"); k(f"s_mul_i32 s{s_t0}, s{s_delta}, {4 * 1280}")
    def slice_load_rows():
        for i in range(5):
            k(f"buffer_load_dwordx4 {vr(XS + 4*i, 4)}, v{vt[4]}, s[{sA}:{sA+3}], s{s_t0} offen offset:{256 * i}")
    def tag_load():
        k(f"v_mov_b32 v15, 0")
        k(f"buffer_load_dword v{v_tag}, v15, s[{sBi}:{sBi+3}], 0 offen sc1")
    def tag_wait(tag):
        k(f"s_mov_b32 s{s_it}, 0")
        k.label(k.L("tw" + tag))
        k(f"v_cmp_eq_u32 vcc, 0, v{v_tag}")
        k(f"s_cbranch_vccz {k.L('tr' + tag)}")
        k("s_sleep 2")
        k(f"buffer_load_dword v{v_tag}, v15, s[{sBi}:{sBi+3}], 0 offen sc1")
        k(f"s_add_u32 s{s_it}, s{s_it}, 1")
        k("s_waitcnt vmcnt(0)")
        k(f"s_cmp_lt_u32 s{s_it}, 0x4000")
        k(f"s_cbranch_scc1 {k.L('tw' + tag)}")
        k.label(k.L("tr" + tag))
    def slice_rows(part):
        if part == 0:
            k("v_mov_b32 v56, 0"); k("v_mov_b32 v57, 0"); k("v_mov_b32 v58, 0"); k("v_mov_b32 v59, 0")
        for r in (range(13) if part == 0 else range(13, 20)):
            k(f"v_lshlrev_b32 v52, 16, v{XS + r}")
            k(f"v_and_b32 v53, 0xffff0000, v{XS + r}")
            k("v_add_f32 v56, v56, v52"); k("v_fmac_f32 v57, v52, v52")
            k("v_add_f32 v58, v58, v53"); k("v_fmac_f32 v59, v53, v53")
        if part == 0: return
        k("v_add_f32 v56, v56, v58"); k("v_add_f32 v57, v57, v59")
        for sh in (8, 4, 2, 1):
            k(f"v_add_f32_dpp v56, v56, v56 row_ror:{sh} row_mask:0xf bank_mask:0xf")
            k(f"v_add_f32_dpp v57, v57, v57 row_ror:{sh} row_mask:0xf bank_mask:0xf")
        rowstat_math(k, 56, 57, 60, 62, 52, False)
        k(f"v_mov_b32 v61, v{v_tag}"); k(f"v_mov_b32 v63, v{v_tag}")
        k(f"s_lshl_b32 s{s_t0}, s{s_delta}, 6"); k(f"s_add_u32 s{s_t0}, s{s_t0}, {RG_OFF}")
        k("s_mov_b32 exec_lo, 0x00010001"); k("s_mov_b32 exec_hi, 0x00010001")
        k(f"buffer_store_dwordx4 v[60:63], v{v_lane}, s[{sW}:{sW+3}], s{s_t0} offen sc1")
        k("s_mov_b64 exec, -1")
    def slice_cols(part):
        if part == 0:
            for r in range(4):
                k(f"v_lshlrev_b32 v{56 + 2*r}, 16, v{XS + r}"); k(f"v_and_b32 v{57 + 2*r}, 0xffff0000, v{XS + r}")
            for i in range(1, 5):
                for r in range(4):
                    k(f"v_lshlrev_b32 v52, 16, v{XS + 4*i + r}"); k(f"v_and_b32 v53, 0xffff0000, v{XS + 4*i + r}")
                    k(f"v_add_f32 v{56 + 2*r}, v{56 + 2*r}, v52"); k(f"v_add_f32 v{57 + 2*r}, v{57 + 2*r}, v53")
            return
        for r in range(4): k(f"v_permlane32_swap_b32 v{56 + r}, v{60 + r}")
        for r in range(4): k(f"v_add_f32 v{56 + r}, v{56 + r}, v{60 + r}")
        for r in range(2): k(f"v_permlane16_swap_b32 v{56 + r}, v{58 + r}")
        k("v_add_f32 v56, v56, v58"); k("v_add_f32 v58, v57, v59")
        k(f"v_mov_b32 v57, v{v_tag}"); k(f"v_mov_b32 v59, v{v_tag}")
        k(f"v_and_b32 v{vt[4]}, 48, v{v_lane}")
        k(f"v_lshl_add_u32 v{vt[4]}, v{vt[5]}, 6, v{vt[4]}")
        k(f"s_mul_i32 s{s_t0}, s{s_delta}, 15360"); k(f"s_lshl_b32 s{s_t1}, s{s_nb}, 10"); k(f"s_add_u32 s{s_t0}, s{s_t0}, s{s_t1}")
        k(f"s_add_u32 s{s_t0}, s{s_t0}, {CG_OFF}")
        k(f"buffer_store_dwordx4 v[56:59], v{vt[4]}, s[{sW}:{sW+3}], s{s_t0} offen sc1")
    def slice_part(part):
        k(f"s_cmp_ge_u32 s{s_w}, 2"); k(f"s_cbranch_scc1 {k.L('slc%d' % part)}")
        slice_rows(part)
        k(f"s_branch {k.L('sld%d' % part)}")
        k.label(k.L("slc%d" % part))
        slice_cols(part)
        k.label(k.L("sld%d" % part))
    q = []; nh = [0]
    def half():
        st, hb = divmod(nh[0], 2); nh[0] += 1
        k(f"s_add_u32 m0, s{s_m0}, {(st % NS) * SLOT + hb * 16384}")
        vD_, sD, so, step = (vBd, sB, s_offB, stepB) if hb else (vAd, sA, s_offA, stepA)
        for ii in range(4):
            k(f"buffer_load_dwordx4 v{vD_[ii]}, s[{sD}:{sD+3}], s{so} offen offset:{ii*1024} lds"); q.append(("st", st))
        k(f"s_add_u32 s{so}, s{so}, {step}")
        if ROT:
            k(f"s_cmp_lg_u32 s{so}, {10 * step}"); k(f"s_cselect_b32 s{so}, s{so}, 0")
    def upto(n):
        while nh[0] < min(n, 20): half()
    def need(*items):
        last = max((len(q) - 1 - q[::-1].index(it) for it in items if it in q), default=-1)
        if last >= 0:
            k(f"s_waitcnt vmcnt({len(q) - 1 - last})"); del q[:last + 1]
    def bar(j, *more):
        need(("st", j), *more); k("s_barrier")
    upto(4)
    if qkv:
        k(f"s_cmp_ge_u32 s{s_w}, 2"); k(f"s_cbranch_scc1 {k.L('slc')}")
        slice_addr_rows(); slice_load_rows()
        k(f"s_branch {k.L('sll')}")
        k.label(k.L("slc"))
        k(f"v_lshrrev_b32 v{vt[4]}, 4, v{v_lane}")
        k(f"v_and_b32 v{vt[5]}, 15, v{v_lane}")
        k(f"v_mul_u32_u24 v{vt[4]}, {BROW}, v{vt[4]}")
        k(f"v_lshl_add_u32 v{vt[4]}, v{vt[5]}, 4, v{vt[4]}")
        k(f"s_lshl_b32 s{s_delta}, s{s_mb}, 1"); k(f"s_add_u32 s{s_delta}, s{s_delta}, s{s_w}"); k(f"s_sub_u32 s{s_delta}, s{s_delta}, 2")
        k(f"s_mul_i32 s{s_t0}, s{s_delta}, {20 * BROW}"); k(f"s_lshl_b32 s{s_t1}, s{s_nb}, 8"); k(f"s_add_u32 s{s_t0}, s{s_t0}, s{s_t1}")
        for i in range(5):
            k(f"buffer_load_dwordx4 {vr(XS + 4*i, 4)}, v{vt[4]}, s[{sB}:{sB+3}], s{s_t0} offen")
            k(f"s_add_u32 s{s_t0}, s{s_t0}, {4 * BROW}")
        k.label(k.L("sll"))
        q += [("sl", 0)] * 5
        srd(k, sW, WSL, WSL + 1, WS_END); srd(k, sBi, 40, 41, 256)
        bar(0)
        tag_load(); q.append(("tag", 0))
        upto(6 + DEEP); bar(1)
        upto(8 + DEEP); bar(2)
        upto(10 + DEEP)
        slice_part(0)
        bar(3)
        upto(12 + DEEP)
        tag_wait("a")
        slice_part(1); q.append(("pub", 0))
        bar(4)
        for j in range(5, 8):
            upto(2 * j + 4 + DEEP); bar(j)
        upto(20)
        k(f"s_lshl_b32 s{s_t0}, s{s_mb}, 11"); k(f"s_lshl_b32 s{s_t1}, s{s_w}, 9"); k(f"s_add_u32 s{s_t0}, s{s_t0}, s{s_t1}")
        k(f"s_add_u32 s{s_offA}, s{s_t0}, {RG_OFF}")
        k(f"v_lshlrev_b32 v{vt[0]}, 4, v{v_t}")
        k(f"v_lshrrev_b32 v{vt[1]}, 4, v{v_lane}")
        k(f"v_mul_u32_u24 v{vt[1]}, {8 * 15360}, v{vt[1]}")
        k(f"v_lshl_add_u32 v{vt[1]}, v{vt[5]}, 4, v{vt[1]}")
        k(f"s_lshl_b32 s{s_t0}, s{s_nb}, 10"); k(f"s_lshl_b32 s{s_t1}, s{s_w}, 8"); k(f"s_add_u32 s{s_t0}, s{s_t0}, s{s_t1}")
        k(f"s_add_u32 s{s_offB}, s{s_t0}, {CG_OFF}")
        def gather():
            k(f"buffer_load_dwordx4 v[64:67], v{vt[0]}, s[{sW}:{sW+3}], s{s_offA} offen sc1")
            k(f"s_mov_b32 s{s_t0}, s{s_offB}")
            for i in range(8):
                k(f"buffer_load_dwordx4 {vr(32 + 4*i, 4)}, v{vt[1]}, s[{sW}:{sW+3}], s{s_t0} offen sc1")
                k(f"s_add_u32 s{s_t0}, s{s_t0}, 15360")
        gather(); q += [("ga", 0)] * 9
        bar(8); bar(9)
        k(f"s_mov_b32 s{s_it}, 0")
        k.label(k.L("poll"))
        k("s_waitcnt vmcnt(0)")
        k(f"v_and_b32 v68, v65, v67"); k(f"v_or_b32 v69, v65, v67")
        for i in range(16):
            k(f"v_and_b32 v68, v68, v{33 + 2*i}"); k(f"v_or_b32 v69, v69, v{33 + 2*i}")
        k(f"v_xor_b32 v68, v68, v{v_tag}"); k(f"v_xor_b32 v69, v69, v{v_tag}"); k("v_or_b32 v68, v68, v69")
        k(f"v_cmp_ne_u32 vcc, 0, v68")
        k(f"s_cbranch_vccz {k.L('ready')}")
        k("s_sleep 2")
        gather()
        k(f"s_add_u32 s{s_it}, s{s_it}, 1")
        k(f"s_cmp_lt_u32 s{s_it}, 0x2000")
        k(f"s_cbranch_scc1 {k.L('poll')}")
        k("s_waitcnt vmcnt(0)")
        k.label(k.L("ready"))
        k("v_add_f32 v33, v34, v38")
        for i in range(1, 8):
            k(f"v_add_f32 v32, v32, v{32 + 4*i}")
            if i > 1: k(f"v_add_f32 v33, v33, v{34 + 4*i}")
        k(f"s_cmp_lt_u32 s{s_nb}, 5")
        k(f"s_cselect_b32 s{s_t0}, {f32(math.log2(math.e) / math.sqrt(DH))}, 1.0")
        k(f"v_mul_f32 v65, s{s_t0}, v66")
        k(f"s_lshl_b32 s{s_t1}, s{s_w}, 7"); k(f"s_add_u32 s{s_t1}, s{s_t1}, {SB}")
        k(f"v_lshl_add_u32 v{vt[0]}, v{v_t}, 2, s{s_t1}")
        k(f"ds_write2_b32 v{vt[0]}, v64, v65 offset0:0 offset1:128")
        for sw in ("v_permlane32_swap_b32", "v_permlane16_swap_b32"):
            k("v_mov_b32 v34, v32"); k("v_mov_b32 v35, v33")
            k(f"{sw} v32, v34"); k(f"{sw} v33, v35")
            k("v_add_f32 v32, v32, v34"); k("v_add_f32 v33, v33, v35")
        k(f"v_lshl_add_u32 v{vt[1]}, v{vt[5]}, 3, s{s_t1}")
        k(f"ds_write_b64 v{vt[1]}, v[32:33] offset:1024")
        k("s_waitcnt lgkmcnt(0)")
        k("s_barrier")
    else:
        lloop("", 8)
        for l in dma_stage(): k(l)
        PS = 32
        k(f"s_lshl_b32 s{s_t0}, s{s_mb}, 7"); k(f"s_lshl_b32 s{s_t1}, s{s_w}, 5"); k(f"s_add_u32 s{s_t0}, s{s_t0}, s{s_t1}")
        k(f"v_add_lshl_u32 v{vt[2]}, v{v_t}, s{s_t0}, 3")
        k(f"v_mul_u32_u24 v{vt[1]}, {5 * 16384}, v{v_h}")
        k(f"v_add_u32 v{vt[2]}, v{vt[2]}, v{vt[1]}")
        for i in range(5):
            k(f"s_mov_b32 s{s_t0}, {HS_OFF + i * 16384}")
            k(f"buffer_load_dwordx2 {vr(PS + 2*i, 2)}, v{vt[2]}, s[{sW}:{sW+3}], s{s_t0} offen")
        k(f"s_lshl_b32 s{s_t0}, s{s_nb}, 10"); k(f"s_lshl_b32 s{s_t1}, s{s_w}, 8"); k(f"s_add_u32 s{s_t0}, s{s_t0}, s{s_t1}")
        k(f"s_add_u32 s{s_t0}, s{s_t0}, {C1_OFF}")
        k(f"s_add_u32 m0, s{s_t1}, {SB + 1024}")
        k(f"v_lshlrev_b32 v{vt[3]}, 2, v{v_lane}")
        k(f"buffer_load_dword v{vt[3]}, s[{sW}:{sW+3}], s{s_t0} offen lds")
        lstep(14, False)
        lstep(6, False)
        k("s_waitcnt vmcnt(0)")
        for i in range(1, 5):
            k(f"v_add_f32 v{PS}, v{PS}, v{PS + 2*i}"); k(f"v_add_f32 v{PS+1}, v{PS+1}, v{PS + 2*i + 1}")
        k(f"v_mov_b32 v{PS+2}, v{PS}"); k(f"v_mov_b32 v{PS+3}, v{PS+1}")
        k(f"v_permlane32_swap_b32 v{PS}, v{PS+2}"); k(f"v_permlane32_swap_b32 v{PS+1}, v{PS+3}")
        k(f"v_add_f32 v{PS}, v{PS}, v{PS+2}"); k(f"v_add_f32 v{PS+1}, v{PS+1}, v{PS+3}")
        rowstat_math(k, PS, PS + 1, 44, 45, PS + 2, True)
        k(f"s_lshl_b32 s{s_t1}, s{s_w}, 7"); k(f"s_add_u32 s{s_t1}, s{s_t1}, {SB}")
        k(f"v_lshl_add_u32 v{vt[3]}, v{v_t}, 2, s{s_t1}")
        k(f"ds_write_b32 v{vt[3]}, v44")
        k(f"ds_write_b32 v{vt[3]}, v45 offset:512")
        k("s_waitcnt lgkmcnt(0)")
        k("s_barrier")
    if not qkv: k.stamp(3); k.stamp(4); k.stamp(5); k.stamp(6)
    k(f"s_branch {k.L('end')}")
    k.label(k.L("compute"))
    if qkv:
        k(f"s_or_b32 s{s_t0}, s2, s{s_w}")
        k(f"s_cbranch_scc1 {k.L('notag')}")
        k("s_memrealtime s[44:45]")
        k("s_waitcnt lgkmcnt(0)")
        srd(k, sBi, 40, 41, 256)
        if "gate" in X: k(f"v_mov_b32 v{vt[2]}, s{86 if 'early' in X else 44}")
        k("s_mul_i32 s44, s44, 0x9e3779b1"); k("s_or_b32 s44, s44, 1")
        k(f"v_mov_b32 v{vt[0]}, 0"); k(f"v_mov_b32 v{vt[1]}, s44")
        k("s_mov_b64 exec, 1")
        k(f"buffer_store_dword v{vt[1]}, v{vt[0]}, s[{sBi}:{sBi+3}], 0 offen sc1")
        srd(k, sW, WSL, WSL + 1, WS_END)
        k(f"s_mov_b32 s{s_t0}, {TAG_OFF}")
        k(f"buffer_store_dword v{vt[1]}, v{vt[0]}, s[{sW}:{sW+3}], s{s_t0} offen sc1")
        if "gate" in X: k(f"buffer_store_dword v{vt[2]}, v{vt[0]}, s[{sW}:{sW+3}], s{s_t0} offen offset:4 sc1")
        k("s_mov_b64 exec, -1")
        k.label(k.L("notag"))
        if "nocpf" not in X:
            k(f"s_cmp_lg_u32 s{s_w}, 1"); k(f"s_cbranch_scc1 {k.L('nocpf')}")
            code_prefetch(k, k.name + "_kernel", sB, s_t0, vt[0], 14, v_lane)
            k.label(k.L("nocpf"))
        k(f"s_cmp_ge_u32 s{s_nb}, 15"); k(f"s_cbranch_scc1 {k.L('aux')}")
    k(f"s_lshr_b32 s{s_wm}, s{s_w}, 1"); k(f"s_and_b32 s{s_wn}, s{s_w}, 1")
    k(f"s_mov_b32 s34, {SLOT}")
    if qkv:
        k(f"v_bfe_u32 v{vt[0]}, v{v_t}, 1, 3")
        k(f"v_xor_b32 v{vt[0]}, v{vt[0]}, v{v_h}")
        k(f"s_lshl_b32 s{s_t0}, s{s_wm}, 13")
        k(f"v_lshl_add_u32 v{vt[1]}, v{v_t}, 7, s{s_t0}")
        for ks in range(4):
            k(f"v_xor_b32 v{vt[2]}, {2*ks}, v{vt[0]}")
            k(f"v_lshl_add_u32 v{vAr[ks]}, v{vt[2]}, 4, v{vt[1]}")
        def a_read(dst, ks, mt): return f"ds_read_b128 {vr(dst,4)}, v{vAr[ks]} offset:{mt*4096}"
        def a_upd(ks): return [vAr[ks]]
    else:
        k(f"s_lshl_b32 s{s_t0}, s{s_wm}, 10")
        k(f"v_lshl_add_u32 v{vt[0]}, v{v_t}, 4, s{s_t0}")
        k(f"v_lshl_add_u32 v{vAr[0]}, v{v_h}, 11, v{vt[0]}")
        def a_read(dst, ks, mt): return f"ds_read_b128 {vr(dst,4)}, v{vAr[0]} offset:{ks*4096 + mt*512}"
        def a_upd(ks): return [vAr[0]] if ks == 0 else []
    k(f"v_bfe_u32 v{vt[0]}, v{v_lane}, 2, 2")
    k(f"v_lshl_add_u32 v{vt[1]}, v{v_h}, 3, v{vt[0]}")
    k(f"v_lshlrev_b32 v{vt[1]}, 8, v{vt[1]}")
    k(f"v_bfe_u32 v{vt[2]}, v{v_lane}, 4, 1")
    k(f"v_lshl_add_u32 v{vt[1]}, v{vt[2]}, 5, v{vt[1]}")
    k(f"v_and_b32 v{vt[2]}, 3, v{v_lane}")
    k(f"v_lshl_add_u32 v{vt[1]}, v{vt[2]}, 3, v{vt[1]}")
    k(f"v_add_u32 v{vt[1]}, 16384, v{vt[1]}")
    k(f"s_lshl_b32 s{s_t0}, s{s_wn}, 1")
    k(f"v_xor_b32 v{vt[2]}, s{s_t0}, v{vt[0]}")
    k(f"v_lshl_add_u32 v{vBr[0]}, v{vt[2]}, 6, v{vt[1]}")
    k(f"v_xor_b32 v{vBr[1]}, 64, v{vBr[0]}")
    def b_read(dst, ks, nt, e): return f"ds_read_b64_tr_b16 {vr(dst + 2*e, 2)}, v{vBr[nt]} offset:{ks*4096 + e*1024}"
    for r in range(64): k(f"v_mov_b32 v{ACC + r}, 0")
    k(f"s_mov_b32 s{s_it}, 0"); k(f"s_mov_b32 s{s_slot}, 0")
    k("s_waitcnt lgkmcnt(0)")
    srd(k, sW, WSL, WSL + 1, WS_END)

    def reads(ks):
        return [a_read(FA[ks][0], ks, 0), b_read(FB[ks][0], ks, 0, 0), b_read(FB[ks][0], ks, 0, 1),
                b_read(FB[ks][1], ks, 1, 0), b_read(FB[ks][1], ks, 1, 1), a_read(FA[ks][1], ks, 1)]
    k("s_waitcnt lgkmcnt(0)")
    k("s_barrier")
    for l in reads(0) + reads(1): k(l)

    def mainloop(tag, vorient):
        k.label(k.L("loop" + tag))
        for ks in range(4):
            mf = []
            for mt in range(2):
                for nt in range(2):
                    a, b = FA[ks][mt], FB[ks][nt]
                    s0, s1 = (a, b) if vorient else (b, a)
                    mf.append(f"v_mfma_f32_32x32x16_bf16 {vr(acc(mt,nt),16)}, {vr(s0,4)}, {vr(s1,4)}, {vr(acc(mt,nt),16)}")
            pre = []
            if ks == 2:
                k("s_barrier")
                if NS == 4: pre += [f"s_add_u32 s{s_slot}, s{s_slot}, 1", f"s_and_b32 s{s_slot}, s{s_slot}, {NS - 1}"]
                else: pre += [f"s_cmp_lg_u32 s{s_it}, 4"]
                pre += [
                        f"s_cselect_b32 s{s_delta}, s34, {(-(NS - 1) * SLOT) & 0xffffffff:#x}"]
                pre += [f"v_add_u32 v{a}, s{s_delta}, v{a}" for a in vBr]
            nk = (ks + 2) % 4
            if ks >= 2:
                pre += [f"v_add_u32 v{a}, s{s_delta}, v{a}" for a in a_upd(nk)]
            post = []
            if ks == 3:
                post = [f"v_add_u32 v{a}, s{s_delta}, v{a}" for a in a_upd(2) + a_upd(3)]
                post += [f"s_add_u32 s{s_it}, s{s_it}, 1", f"s_cmp_lt_u32 s{s_it}, {NST}"]
            rd = reads(nk)
            k("s_waitcnt lgkmcnt(6)")
            seq = [mf[0]] + pre + rd[0:2] + [mf[1]] + rd[2:4] + [mf[2]] + rd[4:6] + post + [mf[3]]
            for l in seq: k(l)
        k(f"s_cbranch_scc1 {k.L('loop' + tag)}")
        if "st1" in X: k.stamp(0, True)

    def epi_nm():
        MR = [28, 30]
        CS = EP; B1 = EP + 32
        k(f"s_lshl_b32 s{s_t0}, s{s_wm}, 8"); k(f"s_add_u32 s{s_t0}, s{s_t0}, {SB}")
        k(f"v_lshl_add_u32 v{vt[4]}, v{v_t}, 2, s{s_t0}")
        for mt in range(2):
            k(f"ds_read2_b32 {vr(MR[mt],2)}, v{vt[4]} offset0:{mt*32} offset1:{128 + mt*32}")
        k(f"s_lshl_b32 s{s_t0}, s{s_wn}, 8"); k(f"s_add_u32 s{s_t0}, s{s_t0}, {SB}")
        k(f"v_lshl_add_u32 v{vt[0]}, v{v_h}, 4, s{s_t0}")
        for nt in range(2):
            for rq in range(4):
                k(f"ds_read_b128 {vr(CS + nt*16 + rq*4, 4)}, v{vt[0]} offset:{1024 + nt*128 + rq*32}")
            if not qkv:
                for rq in range(4):
                    k(f"ds_read_b128 {vr(B1 + nt*16 + rq*4, 4)}, v{vt[0]} offset:{1536 + nt*128 + rq*32}")
        OFF = QK_OFF if qkv else G_OFF
        k(f"s_lshl_b32 s{s_t0}, s{s_nb}, 4"); k(f"s_lshl_b32 s{s_t1}, s{s_wn}, 3"); k(f"s_add_u32 s{s_t0}, s{s_t0}, s{s_t1}")
        k(f"v_add_lshl_u32 v{vt[2]}, v{v_h}, s{s_t0}, 15")
        k(f"s_lshl_b32 s{s_t0}, s{s_mb}, 7"); k(f"s_lshl_b32 s{s_t1}, s{s_wm}, 6"); k(f"s_add_u32 s{s_t0}, s{s_t0}, s{s_t1}")
        k(f"v_add_u32 v{vt[3]}, s{s_t0}, v{v_t}")
        k(f"v_lshl_add_u32 v{vt[2]}, v{vt[3]}, 4, v{vt[2]}")
        so = 46
        for c in range(4): k(f"s_mov_b32 s{so + c}, {OFF + 2*c*CH}")
        if not qkv:
            C0 = -2.0 * math.log2(math.e) * math.sqrt(2.0 / math.pi)
            k(f"s_mov_b32 s44, {f32(C0 * 0.044715)}"); k(f"s_mov_b32 s45, {f32(C0 * 0.044715)}")
            k(f"v_mov_b32 v{vt[4]}, {f32(C0)}"); k(f"v_mov_b32 v{vt[5]}, {f32(C0)}")
        k("s_waitcnt lgkmcnt(0)")
        T = EP + 64
        n_st = 0
        for nt in range(2):
            for mt in range(2):
                a = acc(mt, nt); mr = MR[mt]
                for p in range(8):
                    x = vr(a + 2*p, 2)
                    k(f"v_pk_fma_f32 {x}, {vr(CS + nt*16 + 2*p, 2)}, {vr(mr,2)}, {x} op_sel_hi:[1,0,1]")
                for p in range(8):
                    x = vr(a + 2*p, 2)
                    if qkv:
                        k(f"v_pk_mul_f32 {x}, {x}, {vr(mr,2)} op_sel:[0,1] op_sel_hi:[1,1]")
                    else:
                        k(f"v_pk_fma_f32 {x}, {x}, {vr(mr,2)}, {vr(B1 + nt*16 + 2*p, 2)} op_sel:[0,1,0] op_sel_hi:[1,1,1]")
                if not qkv:
                    for p in range(8):
                        x = vr(a + 2*p, 2); t = vr(T + 2*p, 2)
                        k(f"v_pk_mul_f32 {t}, {x}, {x}")
                    for p in range(8):
                        t = vr(T + 2*p, 2)
                        k(f"v_pk_fma_f32 {t}, {t}, s[44:45], {vr(vt[4],2)}")
                    for p in range(8):
                        x = vr(a + 2*p, 2); t = vr(T + 2*p, 2)
                        k(f"v_pk_mul_f32 {t}, {t}, {x}")
                    for r in range(16): k(f"v_exp_f32 v{T + r}, v{T + r}")
                    for p in range(8):
                        t = vr(T + 2*p, 2)
                        k(f"v_pk_add_f32 {t}, {t}, 1.0 op_sel_hi:[1,0]")
                    for r in range(16): k(f"v_rcp_f32 v{T + r}, v{T + r}")
                    for p in range(8):
                        x = vr(a + 2*p, 2); t = vr(T + 2*p, 2)
                        k(f"v_pk_mul_f32 {x}, {x}, {t}")
                Pk = T + 16 + (n_st % 2) * 8
                for p in range(8):
                    k(f"v_cvt_pk_bf16_f32 v{Pk + p}, v{a + 2*p}, v{a + 2*p + 1}")
                for pq in range(2):
                    b = Pk + 4*pq
                    k(f"v_permlane32_swap_b32 v{b}, v{b+2}")
                    k(f"v_permlane32_swap_b32 v{b+1}, v{b+3}")
                for pq in range(2):
                    b = Pk + 4*pq
                    k(f"buffer_store_dwordx4 {vr(b,4)}, v{vt[2]}, s[{sW}:{sW+3}], s{so + nt*2 + pq} offen offset:{mt*512} sc1")
                n_st += 1

    def epi_v():
        NM = EP; RS = EP + 32; CSV = [28, 30]
        k(f"s_lshl_b32 s{s_t0}, s{s_wm}, 8"); k(f"s_add_u32 s{s_t0}, s{s_t0}, {SB}")
        k(f"v_lshl_add_u32 v{vt[0]}, v{v_h}, 4, s{s_t0}")
        k(f"s_lshl_b32 s{s_t0}, s{s_wn}, 8"); k(f"s_add_u32 s{s_t0}, s{s_t0}, {SB}")
        k(f"v_lshl_add_u32 v{vt[1]}, v{v_t}, 2, s{s_t0}")
        for nt in range(2):
            k(f"ds_read_b32 v{CSV[nt]}, v{vt[1]} offset:{1024 + nt*128}")
        for mt in range(2):
            for rq in range(4):
                k(f"ds_read_b128 {vr(NM + mt*16 + rq*4, 4)}, v{vt[0]} offset:{mt*128 + rq*32}")
                k(f"ds_read_b128 {vr(RS + mt*16 + rq*4, 4)}, v{vt[0]} offset:{512 + mt*128 + rq*32}")
        k(f"s_lshl_b32 s{s_t0}, s{s_mb}, 1"); k(f"s_add_u32 s{s_t0}, s{s_t0}, s{s_wm}"); k(f"s_mul_i32 s{s_t0}, s{s_t0}, 5120")
        k(f"s_lshl_b32 s{s_t1}, s{s_nb}, 7"); k(f"s_add_u32 s{s_t0}, s{s_t0}, s{s_t1}"); k(f"s_sub_u32 s{s_t0}, s{s_t0}, 1280")
        k(f"s_lshl_b32 s{s_t1}, s{s_wn}, 6"); k(f"s_add_u32 s{s_t0}, s{s_t0}, s{s_t1}")
        k(f"v_mul_u32_u24 v{vt[3]}, 640, v{v_h}")
        k(f"v_add3_u32 v{vt[2]}, v{v_t}, s{s_t0}, v{vt[3]}")
        k(f"v_lshlrev_b32 v{vt[2]}, 4, v{vt[2]}")
        so = 46
        for c in range(4): k(f"s_mov_b32 s{so + c}, {V_OFF + c * 640 * 32}")
        k("s_waitcnt lgkmcnt(0)")
        T = EP + 64; n_st = 0
        for mt in range(2):
            for nt in range(2):
                a = acc(mt, nt)
                for p in range(8):
                    x = vr(a + 2*p, 2)
                    k(f"v_pk_fma_f32 {x}, {vr(NM + mt*16 + 2*p, 2)}, {vr(CSV[nt],2)}, {x} op_sel_hi:[1,0,1]")
                for p in range(8):
                    x = vr(a + 2*p, 2)
                    k(f"v_pk_mul_f32 {x}, {x}, {vr(RS + mt*16 + 2*p, 2)}")
                Pk = T + (n_st % 2) * 8
                for p in range(8):
                    k(f"v_cvt_pk_bf16_f32 v{Pk + p}, v{a + 2*p}, v{a + 2*p + 1}")
                for jj in range(2):
                    k(f"buffer_store_dwordx4 {vr(Pk + 4*jj, 4)}, v{vt[2]}, s[{sW}:{sW+3}], s{so + mt*2 + jj} offen offset:{nt*512} sc1")
                n_st += 1

    if qkv:
        k(f"s_cmp_ge_u32 s{s_nb}, 10")
        k(f"s_cbranch_scc1 {k.L('loopv')}")
        mainloop("q", False); epi_nm()
        k(f"s_branch {k.L('end')}")
        mainloop("v", True); epi_v()
        k(f"s_branch {k.L('end')}")
        k.label(k.L("auxl"))
        k(f"s_cmp_ge_u32 s{s_w}, 2"); k(f"s_cbranch_scc1 {k.L('aux')}")
        slice_addr_rows()
        k("s_waitcnt lgkmcnt(0)")
        srd(k, sA, 36, 37, S * D * 2); srd(k, sW, WSL, WSL + 1, WS_END); srd(k, sBi, 40, 41, 256)
        slice_load_rows()
        k("s_waitcnt vmcnt(0)")
        tag_load()
        slice_rows(0)
        k("s_waitcnt vmcnt(0)")
        tag_wait("x")
        slice_rows(1)
        k.label(k.L("aux"))
        k("s_load_dwordx4 s[44:47], s[0:1], 32")
        k(f"v_lshrrev_b32 v{vt[0]}, 4, v{v_lane}")
        k(f"v_and_b32 v{vt[1]}, 15, v{v_lane}")
        k(f"v_mul_u32_u24 v{vt[2]}, {F * 2}, v{vt[0]}")
        k(f"v_lshl_add_u32 v{vt[2]}, v{vt[1]}, 4, v{vt[2]}")
        k(f"v_lshlrev_b32 v{vt[3]}, 1, v0")
        k("s_waitcnt lgkmcnt(0)")
        srd(k, sW, WSL, WSL + 1, WS_END)
        k(f"s_cmp_ge_u32 s{s_mb}, 14"); k(f"s_cbranch_scc1 {k.L('end')}")
        srd(k, sB, 44, 45, D * F * 2); srd(k, sA, 46, 47, F * 2)
        k(f"s_mul_i32 s{s_t0}, s{s_wid}, {80 * F * 2}"); k(f"s_lshl_b32 s{s_t1}, s{s_mb}, 8"); k(f"s_add_u32 s{s_t0}, s{s_t0}, s{s_t1}")
        k(f"buffer_load_ushort v{v_b1}, v{vt[3]}, s[{sA}:{sA+3}], s{s_t1} offen")
        for i in range(20):
            k(f"buffer_load_dwordx4 {vr(40 + 4*i, 4)}, v{vt[2]}, s[{sB}:{sB+3}], s{s_t0} offen")
            k(f"s_add_u32 s{s_t0}, s{s_t0}, {4 * F * 2}")
        for r in range(8): k(f"v_mov_b32 v{24 + r}, 0")
        for i in range(20):
            k(f"s_waitcnt vmcnt({19 - i})")
            for r in range(4):
                k(f"v_lshlrev_b32 v{32 + 2*r}, 16, v{40 + 4*i + r}")
                k(f"v_and_b32 v{33 + 2*r}, 0xffff0000, v{40 + 4*i + r}")
            for r in range(4):
                k(f"v_pk_add_f32 {vr(24 + 2*r, 2)}, {vr(24 + 2*r, 2)}, {vr(32 + 2*r, 2)}")
        k(f"v_lshlrev_b32 v{vt[0]}, 5, v0")
        k(f"ds_write_b128 v{vt[0]}, v[24:27]")
        k(f"ds_write_b128 v{vt[0]}, v[28:31] offset:16")
        k("s_waitcnt lgkmcnt(0)")
        k("s_barrier")
        k(f"s_cmp_ge_u32 s{s_wid}, 2"); k(f"s_cbranch_scc1 {k.L('end')}")
        k(f"v_lshlrev_b32 v{vt[0]}, 2, v0")
        for i in range(32):
            k(f"ds_read_b32 v{40 + i}, v{vt[0]} offset:{i * 512}")
            if i % 8 == 7: k("s_waitcnt lgkmcnt(0)")
        for i in range(1, 32): k(f"v_add_f32 v40, v40, v{40 + i}")
        k(f"v_lshlrev_b32 v{v_b1}, 16, v{v_b1}")
        k(f"v_mul_f32 v{v_b1}, {f32(GS)}, v{v_b1}")
        k(f"s_lshl_b32 s{s_t0}, s{s_mb}, 10"); k(f"s_add_u32 s{s_t0}, s{s_t0}, {C1_OFF}"); k(f"s_add_u32 s{s_t1}, s{s_t0}, 512")
        k(f"buffer_store_dword v40, v{vt[0]}, s[{sW}:{sW+3}], s{s_t0} offen sc1")
        k(f"buffer_store_dword v{v_b1}, v{vt[0]}, s[{sW}:{sW+3}], s{s_t1} offen sc1")
    k.label(k.L("end"))
    k(f"s_lshl_b32 s94, s{s_mb}, 4"); k(f"s_add_u32 s94, s94, s{s_nb}")
    k(f"v_readfirstlane_b32 s{S_TAG}, v{v_tag}")
    k.stamp(2, "st1" in X)

def phase2(k):
    k.pref = "p2"
    sW = 4; sP1 = 8; sP2 = 12; sP3 = 16; sWW = 52
    s_hd, s_qb, s_w, s_qs, s_kh, s_t0, s_t1, s_it = 20, 21, S_WID, 23, 24, 25, 26, 27
    s_ko, s_vo, s_odd = 28, 29, 30
    s_vm = 32; s_lo = 34; s_c = 36
    s_do, s_dm, s_qo = 56, 57, 58
    v_lane, v_t, v_h = 1, 2, 3
    vK1, vK2, vV0, vV1 = 4, 5, 6, 7
    vt = [8, 9, 10, 11, 12, 13, 14, 15]
    vm = [16, 17]
    v_pfa, v_pfc, v_pf = 18, 19, 200
    vD = [202, 203, 204, 205]
    v_fx, vX, vOne = 206, 208, 210
    Q1 = [20, 24]; Q2 = [28, 30]
    NBUF = 4
    K1 = [32, 36, 40, 44]; K2 = [48, 50]; Q2B = [52, 54]; vK2p = 207
    VB = [56, 64, 72, 80]
    C = [88, 104]; Sx = [120, 136]; P = [152, 160]; O = [168, 184]
    k("s_load_dwordx2 s[40:41], s[0:1], 80")
    k("s_load_dwordx2 s[44:45], s[0:1], 16")
    k("s_load_dwordx2 s[46:47], s[0:1], 32")
    k("s_load_dwordx2 s[38:39], s[0:1], 48")
    if "rowmap" not in X:
        k(f"s_and_b32 s{s_hd}, s2, 7"); k(f"s_lshl_b32 s{s_hd}, s{s_hd}, 2")
        k(f"s_bfe_u32 s{s_t0}, s2, 0x20003"); k(f"s_add_u32 s{s_hd}, s{s_hd}, s{s_t0}")
        k(f"s_lshr_b32 s{s_qb}, s2, 5")
    else:
        k(f"s_lshr_b32 s{s_hd}, s2, 3"); k(f"s_and_b32 s{s_qb}, s2, 7")
    k(f"s_and_b32 s{s_qs}, s{s_w}, 3"); k(f"s_lshr_b32 s{s_kh}, s{s_w}, 2")
    k(f"s_and_b32 s{s_odd}, s{s_hd}, 1")
    k(f"s_mov_b32 s{s_lo}, -1"); k(f"s_mov_b32 s{s_lo+1}, 0")
    k(f"s_lshr_b32 s{s_t0}, s{s_hd}, 1"); k(f"s_mul_i32 s{s_t0}, s{s_t0}, 5")
    k(f"s_mul_i32 s{s_t1}, s{s_odd}, 3"); k(f"s_add_u32 s{s_t1}, s{s_t1}, s{s_t0}")
    k(f"v_add_lshl_u32 v{vK1}, v{v_h}, s{s_t1}, 15")
    k(f"v_lshl_add_u32 v{vK1}, v{v_t}, 4, v{vK1}")
    k(f"s_add_u32 s{s_t0}, s{s_t0}, 2"); k(f"s_lshl_b32 s{s_t0}, s{s_t0}, 15")
    k(f"s_lshl_b32 s{s_t1}, s{s_odd}, 3"); k(f"s_add_u32 s{s_t0}, s{s_t0}, s{s_t1}")
    k(f"v_lshl_add_u32 v{vK2}, v{v_t}, 4, s{s_t0}")
    k(f"s_sub_u32 s{s_t0}, s{s_t0}, 512")
    k(f"v_lshl_add_u32 v{vK2p}, v{v_lane}, 4, s{s_t0}")
    k(f"s_lshl_b32 s{s_ko}, s{s_kh}, 14"); k(f"s_add_u32 s{s_ko}, s{s_ko}, {QK_OFF + 80 * CH}")
    k(f"s_lshl_b32 s{s_qo}, s{s_qb}, 12"); k(f"s_lshl_b32 s{s_t1}, s{s_qs}, 10"); k(f"s_add_u32 s{s_qo}, s{s_qo}, s{s_t1}")
    for qt in range(2):
        k(f"v_mov_b32 v{Q2[qt]}, 0"); k(f"v_mov_b32 v{Q2[qt]+1}, 0")
    k(f"s_mov_b32 s42, s{s_ko}")
    k(f"s_mov_b32 s{s_vm}, 0xfffff"); k(f"s_mov_b32 s{s_vm+1}, 0xfffff")
    k(f"v_add_u32 v{vt[0]}, 4, v{v_t}")
    k(f"v_subrev_u32 v{vt[1]}, 16, v{v_t}")
    k(f"v_cmp_gt_u32 vcc, 16, v{v_t}")
    k(f"v_cndmask_b32 v{vt[0]}, v{vt[1]}, v{vt[0]}, vcc")
    k(f"s_cmp_eq_u32 s{s_odd}, 1")
    k(f"s_cselect_b64 vcc, -1, 0")
    k(f"v_cndmask_b32 v{vt[0]}, v{v_t}, v{vt[0]}, vcc")
    k(f"s_mul_i32 s{s_t0}, s{s_hd}, 20")
    k(f"v_mul_u32_u24 v{vt[1]}, 640, v{v_h}")
    k(f"v_add3_u32 v{vV0}, v{vt[0]}, s{s_t0}, v{vt[1]}")
    k(f"v_lshlrev_b32 v{vV0}, 4, v{vV0}")
    k(f"v_add_u32 v{vV1}, {640 * 32}, v{vV0}")
    k(f"s_mul_i32 s{s_vo}, s{s_kh}, {32 * 1280 * 32}"); k(f"s_add_u32 s{s_vo}, s{s_vo}, {V_OFF}")
    k(f"s_mov_b32 s43, s{s_vo}"); k(f"s_mov_b32 s22, {1280 * 32}")
    k(f"v_cmp_eq_u32 vcc, 0, v{v_h}"); k(f"v_mov_b32 v{vOne}, 0x3f80"); k(f"v_cndmask_b32 v{vOne}, 0, v{vOne}, vcc")
    k(f"v_mov_b32 v{vOne+1}, 0"); k(f"v_mov_b32 v{vOne+3}, 0")
    k(f"v_cmp_eq_u32 vcc, 20, v{v_t}")
    k(f"v_mov_b32 v{vt[1]}, 0x3f803f80")
    k(f"v_cndmask_b32 v{vt[1]}, 0, v{vt[1]}, vcc")
    for b in range(NBUF):
        for r in range(8): k(f"v_mov_b32 v{VB[b] + r}, v{vt[1]}")
    for qt in range(2):
        for r in range(16): k(f"v_mov_b32 v{O[qt] + r}, 0")
    for r in range(8): k(f"v_mov_b32 v{P[1] + r}, 0")
    k(f"s_lshr_b32 s{s_t0}, s2, 3"); k(f"s_lshl_b32 s{s_t0}, s{s_t0}, 3"); k(f"s_add_u32 s{s_t0}, s{s_t0}, s{s_w}")
    k(f"s_mul_i32 s49, s{s_t0}, {48 * 128}"); k(f"s_add_u32 s49, s49, {192 * F * 2}")
    k(f"v_lshlrev_b32 v{vt[2]}, 8, v{v_lane}"); k(f"v_add_u32 v{vt[2]}, 124, v{vt[2]}")
    k(f"v_mov_b32 v{vt[3]}, 0x7ffffff0")
    k(f"v_cmp_gt_u32 vcc, 24, v{v_lane}")
    k(f"v_cndmask_b32 v{v_pfa}, v{vt[3]}, v{vt[2]}, vcc")
    W2L = int(os.environ.get("W2L", "0"))
    if W2L:
        k(f"s_mul_i32 s48, s{s_t0}, {2 * W2L * 128}")
    else:
        k(f"s_lshl_b32 s48, s2, 3"); k(f"s_add_u32 s48, s48, s{s_w}"); k(f"s_mul_i32 s48, s48, {10 * 128}")
    k(f"v_cmp_gt_u32 vcc, {W2L or 5}, v{v_lane}")
    k(f"v_cndmask_b32 v{v_pfc}, v{vt[3]}, v{vt[2]}, vcc")
    k(f"s_sub_u32 s50, s{s_qs}, s{s_kh}"); k(f"s_add_u32 s50, s50, 3")
    k(f"s_lshl_b32 s92, s2, 3"); k(f"s_add_u32 s92, s92, s{s_w}"); k(f"s_mul_i32 s92, s92, 1536"); k(f"s_add_u32 s92, s92, {H_OFF}")
    k(f"v_lshrrev_b32 v{vt[0]}, 3, v{v_lane}")
    k(f"v_and_b32 v{vt[1]}, 7, v{v_lane}")
    k(f"v_bfe_u32 v{vt[2]}, v{v_lane}, 4, 1")
    k(f"v_lshlrev_b32 v{vt[2]}, 2, v{vt[2]}")
    k(f"v_xor_b32 v{vt[1]}, v{vt[1]}, v{vt[2]}")
    k(f"v_mul_u32_u24 v{vt[0]}, 1280, v{vt[0]}")
    k(f"v_lshl_add_u32 v{vD[0]}, v{vt[1]}, 4, v{vt[0]}")
    k(f"v_add_u32 v{vD[1]}, {8 * 1280 - 1024}, v{vD[0]}")
    k(f"v_lshrrev_b32 v{vt[0]}, 4, v{v_lane}")
    k(f"v_and_b32 v{vt[1]}, 15, v{v_lane}")
    k(f"v_lshlrev_b32 v{vt[2]}, 2, v{vt[0]}")
    k(f"v_xor_b32 v{vt[1]}, v{vt[1]}, v{vt[2]}")
    k(f"v_mul_u32_u24 v{vt[0]}, {F * 2}, v{vt[0]}")
    k(f"v_lshl_add_u32 v{vD[2]}, v{vt[1]}, 4, v{vt[0]}")
    k(f"v_add_u32 v{vD[3]}, {4 * F * 2 - 1024}, v{vD[2]}")
    k(f"s_lshr_b32 s{s_t0}, s2, 3")
    k(f"s_mul_i32 s{s_t1}, s{s_t0}, 43"); k(f"s_lshr_b32 s{s_t1}, s{s_t1}, 7"); k(f"s_lshl_b32 s{s_t1}, s{s_t1}, 7")
    k(f"s_mul_i32 s{s_do}, s{s_w}, {16 * 1280}"); k(f"s_add_u32 s{s_do}, s{s_do}, s{s_t1}")
    k(f"s_lshr_b32 s{s_t0}, s{s_t0}, 1"); k(f"s_lshl_b32 s{s_t0}, s{s_t0}, 8")
    k(f"s_mul_i32 s59, s{s_w}, {8 * F * 2}"); k(f"s_add_u32 s59, s59, s{s_t0}")
    k(f"s_lshl_b32 s{s_dm}, s{s_w}, 11")
    k("s_waitcnt lgkmcnt(0)")
    srd(k, sW, 40, 41, QKV_END); srd(k, sWW, 40, 41, WS_END)
    srd(k, sP1, 44, 45, D * D * 2); srd(k, sP2, 46, 47, D * F * 2)
    W = f"s[{sW}:{sW+3}]"
    k("s_load_dwordx2 s[44:45], s[0:1], 0")
    k(f"s_lshr_b32 s{s_t0}, s2, 3"); k(f"s_mul_i32 s{s_t1}, s{s_t0}, 43"); k(f"s_lshr_b32 s{s_t1}, s{s_t1}, 7")
    k(f"s_mul_i32 s46, s{s_t1}, 3"); k(f"s_sub_u32 s{s_t0}, s{s_t0}, s46"); k(f"s_mul_i32 s{s_t0}, s{s_t0}, 3"); k(f"s_add_u32 s{s_t0}, s{s_t0}, s{s_w}")
    k(f"s_and_b32 s46, s2, 7"); k(f"s_lshl_b32 s46, s46, 3"); k(f"s_add_u32 s{s_t0}, s{s_t0}, s46"); k(f"s_lshl_b32 s{s_t0}, s{s_t0}, 5")
    k(f"v_add_u32 v{XRA}, s{s_t0}, v{v_t}"); k(f"v_mul_u32_u24 v{XRA}, 1280, v{XRA}")
    k(f"v_lshl_add_u32 v{XRA}, v{v_h}, 4, v{XRA}")
    k(f"s_lshl_b32 s{s_t1}, s{s_t1}, 7"); k(f"v_add_u32 v{XRA}, s{s_t1}, v{XRA}")
    srd(k, sP3, 38, 39, D * F * 2)
    k(f"s_getreg_b32 s51, hwreg(HW_REG_XCC_ID)"); k(f"s_and_b32 s51, s51, 15")
    k(f"s_and_b32 s{s_t0}, s2, 7"); k(f"s_lshl_b32 s{s_t0}, s{s_t0}, 7"); k(f"s_add_u32 s{s_t0}, s{s_t0}, {FX_OFF}")
    k(f"v_lshl_add_u32 v{v_fx}, v{v_t}, 10, s{s_t0}")
    k(f"s_and_b32 s{s_t0}, s{s_w}, 6"); k(f"s_cmp_lg_u32 s{s_t0}, 4"); k(f"s_cbranch_scc1 {k.L('nt')}")
    k(f"s_lshr_b32 s{s_t0}, s{s_hd}, 1"); k(f"s_mul_i32 s{s_t0}, s{s_t0}, 5"); k(f"s_add_u32 s{s_t0}, s{s_t0}, s{s_odd}"); k(f"s_add_u32 s{s_t0}, s{s_t0}, s{s_odd}")
    k(f"s_add_u32 s{s_t1}, s{s_t0}, 2"); k(f"s_lshr_b32 s{s_t0}, s{s_t0}, 4"); k(f"s_lshr_b32 s{s_t1}, s{s_t1}, 4")
    k(f"s_cmp_eq_u32 s{s_w}, 4"); k(f"s_cbranch_scc1 {k.L('fk')}")
    k(f"s_lshl_b32 s{s_t0}, s2, 7"); k(f"s_add_u32 s{s_t0}, s{s_t0}, {FX_OFF}")
    k(f"v_mov_b32 v{vt[2]}, s{S_TAG}"); k(f"v_mov_b32 v{vt[3]}, s51"); k(f"v_mov_b32 v{vt[4]}, 0")
    k("s_mov_b64 exec, 1")
    k(f"buffer_store_dwordx2 {vr(vt[2], 2)}, v{vt[4]}, s[{sWW}:{sWW+3}], s{s_t0} offen sc1")
    k("s_mov_b64 exec, -1")
    k(f"s_mul_i32 s{s_t0}, s{s_hd}, 20"); k(f"s_add_u32 s{s_t1}, s{s_t0}, {19 + 640}"); k(f"s_add_u32 s{s_t0}, s{s_t0}, 640")
    k(f"s_lshr_b32 s{s_t0}, s{s_t0}, 7"); k(f"s_lshr_b32 s{s_t1}, s{s_t1}, 7")
    k.label(k.L("fk"))
    k(f"v_mov_b32 v{vt[0]}, s{s_t0}"); k(f"v_mov_b32 v{vt[1]}, s{s_t1}")
    k(f"v_and_b32 v{vt[5]}, 16, v{v_lane}"); k(f"v_cmp_eq_u32 vcc, 0, v{vt[5]}")
    k(f"v_cndmask_b32 v{vt[5]}, v{vt[1]}, v{vt[0]}, vcc")
    k(f"v_and_b32 v{vt[1]}, 15, v{v_lane}")
    k(f"v_lshl_add_u32 v{vt[0]}, v{vt[1]}, 4, v{vt[5]}")
    k(f"v_add_u32 v{vt[0]}, 5, v{vt[0]}")
    k(f"v_and_b32 v{vt[1]}, 1, v{v_lane}"); k(f"s_lshl_b32 s{s_t0}, s{s_qb}, 1"); k(f"v_add_u32 v{vt[1]}, s{s_t0}, v{vt[1]}")
    k(f"v_lshl_add_u32 v{vt[1]}, v{vt[1]}, 4, v{vt[5]}")
    k(f"s_cmp_eq_u32 s{s_w}, 4"); k(f"s_cselect_b32 s{s_t0}, 32, 64")
    k(f"v_cmp_gt_u32 vcc, s{s_t0}, v{v_lane}")
    k(f"v_cndmask_b32 v{vt[0]}, v{vt[1]}, v{vt[0]}, vcc")
    k(f"v_lshlrev_b32 v{vt[0]}, 7, v{vt[0]}"); k(f"v_add_u32 v{vt[0]}, {FL_OFF}, v{vt[0]}")
    k.label(k.L("nt"))
    k("s_waitcnt vmcnt(0) lgkmcnt(0)")
    k("s_barrier")
    k.stamp(3, "st1" in X)
    k(f"s_and_b32 s{s_t0}, s{s_w}, 6"); k(f"s_cmp_lg_u32 s{s_t0}, 4"); k(f"s_cbranch_scc1 {k.L('nw')}")
    k(f"s_cmp_lg_u32 s{s_w}, 4"); k(f"s_cbranch_scc1 {k.L('npb')}")
    publish(k, sWW, 1, 94, s_t0, vt[4], vt[5])
    k.label(k.L("npb"))
    poll(k, sWW, [vt[0]], [vt[2]], s_it, "1")
    k.label(k.L("nw"))
    k("s_barrier")
    k.stamp(4, "st1" in X)
    SC = " sc1" if "kvsc1" in X else (" nt" if "kvnt" in X else "")
    def kload(b, pair=True):
        r = [f"buffer_load_dwordx4 {vr(K1[b],4)}, v{vK1}, {W}, s{s_ko} offen{SC}"]
        if b % 2 and pair: r.append(f"buffer_load_dwordx2 {vr(K2[b // 2],2)}, v{vK2p}, {W}, s{s_ko} offen{SC}")
        return r + [f"s_add_u32 s{s_ko}, s{s_ko}, 512"]
    def vload(b):
        return [f"s_mov_b64 exec, s[{s_vm}:{s_vm+1}]",
                f"buffer_load_dwordx4 {vr(VB[b],4)}, v{vV0}, {W}, s{s_vo} offen{SC}",
                f"buffer_load_dwordx4 {vr(VB[b]+4,4)}, v{vV1}, {W}, s{s_vo} offen{SC}",
                f"s_mov_b64 exec, -1",
                f"s_add_u32 s{s_vo}, s{s_vo}, s22"]
    def wdma(which):
        a, b_, sr_, so, step = (vD[0], vD[1], sP1, s_do, 128 * 1280) if which == 0 else (vD[2], vD[3], sP2, 59, 64 * F * 2)
        return [f"s_mov_b32 m0, s{s_dm}", f"s_add_u32 s{s_dm}, s{s_dm}, 16384",
                f"buffer_load_dwordx4 v{a}, s[{sr_}:{sr_+3}], s{so} offen lds",
                f"buffer_load_dwordx4 v{b_}, s[{sr_}:{sr_+3}], s{so} offen offset:1024 lds",
                f"s_add_u32 s{so}, s{so}, {step}"]
    k(f"buffer_load_dwordx2 {vr(K2[0],2)}, v{vK2p}, {W}, s{s_ko} offen offset:512{SC}")
    for l in kload(0): k(l)
    for qt in range(2):
        k(f"buffer_load_dwordx4 {vr(Q1[qt],4)}, v{vK1}, {W}, s{s_qo} offen offset:{qt*512} sc1")
        k(f"buffer_load_dwordx2 {vr(Q2B[qt],2)}, v{vK2}, {W}, s{s_qo} offen offset:{qt*512} sc1")
    rest = kload(1, False) + vload(0) + kload(2) + vload(1) + kload(3) + vload(2) + [f"buffer_load_dword v{v_pf}, v{vt[7]}, {W}, 0 offen"] * 2
    k(f"v_mov_b32 v{vt[7]}, 0x7ffffff0")
    NPRO = int(os.environ.get("NPRO", "3"))
    n = 0
    while n < NPRO or rest[0].startswith("s_mov_b64 exec, -1"):
        l = rest.pop(0); k(l); n += l.startswith("buffer")
        if not rest: break
    def qk(qt, b, c):
        cc = "0" if c is None else vr(c, 16)
        return [f"v_mfma_f32_32x32x16_bf16 {vr(Sx[qt],16)}, {vr(K1[b],4)}, {vr(Q1[qt],4)}, {cc}",
                f"v_mfma_f32_32x32x8_bf16 {vr(Sx[qt],16)}, {vr(K2[b // 2],2)}, {vr((Q2B if b % 2 else Q2)[qt],2)}, {vr(Sx[qt],16)}"]
    def pv(qt, b):
        return [f"v_mfma_f32_32x32x16_bf16 {vr(O[qt],16)}, {vr(VB[b],4)}, {vr(P[qt],4)}, {vr(O[qt],16)}",
                f"v_mfma_f32_32x32x16_bf16 {vr(O[qt],16)}, {vr(VB[b]+4,4)}, {vr(P[qt]+4,4)}, {vr(O[qt],16)}"]
    def rowmax(qt, dst, tmp):
        s = Sx[qt]
        k(f"v_max3_f32 v{dst}, v{s}, v{s+1}, v{s+2}")
        for r in range(3, 15, 2): k(f"v_max3_f32 v{dst}, v{dst}, v{s+r}, v{s+r+1}")
        k(f"v_max_f32 v{dst}, v{dst}, v{s+15}")
        k(f"v_mov_b32 v{tmp}, v{dst}")
        k(f"v_permlane32_swap_b32 v{dst}, v{tmp}")
        k(f"v_max_f32 v{dst}, v{dst}, v{tmp}")
    k(f"s_waitcnt vmcnt({n})")
    if "sta" in X: k.stamp(0)
    k("s_mov_b32 exec_hi, 0")
    for r in range(4): k(f"v_mov_b32 v{Q2[0] + r}, v{Q2B[0] + r}")
    for r in range(4): k(f"v_mov_b32 v{Q2B[0] + r}, 0")
    k("s_mov_b32 exec_hi, -1")
    for qt in range(2):
        for l in qk(qt, 0, None): k(l)
    for l in rest: k(l)
    for qt in range(2):
        rowmax(qt, vm[qt], vt[0])
        k(f"v_cvt_pk_bf16_f32 v{vOne+2}, -v{vm[qt]}, 0")
        k(f"v_mfma_f32_32x32x8_bf16 {vr(C[qt],16)}, {vr(vOne,2)}, {vr(vOne+2,2)}, 0")
        k(f"v_lshlrev_b32 v{vm[qt]}, 16, v{vOne+2}")
        k(f"v_xor_b32 v{vm[qt]}, 0x80000000, v{vm[qt]}")
    for l in qk(0, 0, C[0]): k(l)
    k("s_nop 7")
    k(f"s_mov_b32 s{s_it}, 0")
    if "sta" in X: k.stamp(2)
    k("s_nop 1")
    def slot(qt, mf, extra):
        s = Sx[qt]; p = P[qt]
        for i in range(16):
            for l in extra.get(i, []): k(l)
            if i % 4 == 0: k(mf[i // 4])
            k(f"v_exp_f32 v{s+i}, v{s+i}")
            if i % 2 == 1 and i >= 3:
                k(f"v_cvt_pk_bf16_f32 v{p + (i-3)//2}, v{s+i-3}, v{s+i-2}")
        for l in extra.get(16, []): k(l)
        k(f"v_cvt_pk_bf16_f32 v{p+7}, v{s+14}, v{s+15}")
    k(f"s_cmp_eq_u32 s{s_kh}, 0")
    k(f"s_cselect_b32 s31, 99, {int(os.environ.get('PRI', '6'))}")
    k(f"s_cbranch_scc1 {k.L('np')}")
    k("s_setprio 1")
    k.label(k.L("np"))
    k.label(k.L("loop"))
    for u in range(NBUF):
        b = u; bp = (u - 1) % NBUF; bn = (u + 1) % NBUF
        seq = []
        for i in range(3):
            for uu in range(4):
                kt = 4 * i + uu
                seq.append(("K", kt + 4))
                if uu % 2: seq.append(("P", (kt + 4) // 2))
                seq += [("V", kt + 3)] * 2
                if i == 2 and uu == u: break
            else:
                seq += [("W", i)] * 2
        kt = 8 + u
        last = max(len(seq) - 1 - seq[::-1].index(e) for e in (("K", kt + 1), ("P", (kt + 1) // 2), ("V", kt)))
        e1 = {0: [f"s_waitcnt vmcnt({len(seq) - 1 - last})"]}
        if "pt" in X:
            if u < 3: e1[7] = [f"s_buffer_load_dword s93, s[{sWW}:{sWW+3}], s92 offset:{u * 64}"]
        PU = int(os.environ.get("PU", "2"))
        if u == PU:
            k(f"s_cmp_lg_u32 s{s_it}, s31"); k(f"s_cbranch_scc1 {k.L('nph')}"); k("s_setprio 0"); k.label(k.L("nph"))
        slot(0, qk(1, b, C[1]) + pv(1, bp), {6: kload(b), 14: vload(bp)})
        slot(1, qk(0, bn, C[0]) + pv(0, b), e1)
    k(f"s_add_u32 s{s_it}, s{s_it}, 1")
    if PU == 4:
        k(f"s_cmp_lg_u32 s{s_it}, s31")
        k(f"s_cbranch_scc1 {k.L('noev')}")
        k("s_setprio 0")
        k.label(k.L("noev"))
    if W2L:
        k(f"s_sub_u32 s{s_t0}, s50, 1")
        k(f"s_cmp_lg_u32 s{s_it}, s{s_t0}"); k(f"s_cbranch_scc1 {k.L('noe0')}")
        k(f"buffer_load_dwordx2 {vr(v_pf, 2)}, v{v_pfc}, s[{sP3}:{sP3+3}], s48 offen")
        k.label(k.L("noe0"))
    k(f"s_cmp_lg_u32 s{s_it}, s50"); k(f"s_cbranch_scc1 {k.L('noe2')}")
    k(f"buffer_load_dwordx2 {vr(v_pf, 2)}, v{v_pfa}, s[{sP2}:{sP2+3}], s49 offen")
    if not W2L: k(f"buffer_load_dwordx2 {vr(v_pf, 2)}, v{v_pfc}, s[{sP3}:{sP3+3}], s48 offen")
    k(f"s_cmp_lg_u32 s{s_w}, 5"); k(f"s_cbranch_scc1 {k.L('noe1')}")
    k(f"s_lshl_b32 s{s_t0}, s2, 7"); k(f"s_add_u32 s{s_t0}, s{s_t0}, {FL_OFF + 32768}")
    for j in range(3): k(f"s_buffer_load_dword s93, s[{sWW}:{sWW+3}], s{s_t0} offset:{j * 32768}")
    k(f"buffer_load_dwordx2 {vr(vX, 2)}, v{v_fx}, s[{sWW}:{sWW+3}], 0 offen sc1")
    k.label(k.L("noe1"))
    k(f"s_cmp_lg_u32 s{s_w}, 3"); k(f"s_cbranch_scc1 {k.L('noe2')}")
    code_prefetch(k, "L_p2_merge", sP3, s_t0, vt[0], v_pf, v_lane, per=8)
    k.label(k.L("noe2"))
    if "pt" in X: k("s_add_u32 s92, s92, 192")
    k(f"s_cmp_ge_u32 s{s_it}, 6"); k(f"s_cbranch_scc1 {k.L('d1')}")
    for l in wdma(0): k(l)
    k(f"s_branch {k.L('loop')}")
    k.label(k.L("d1"))
    k(f"s_cmp_eq_u32 s{s_it}, 7")
    k(f"s_cselect_b32 s{s_ko}, 0x10000000, s{s_ko}"); k(f"s_cselect_b32 s22, 0x10000000, s22")
    for l in wdma(1): k(l)
    k(f"s_cmp_lt_u32 s{s_it}, 8"); k(f"s_cbranch_scc1 {k.L('loop')}")
    k.label(k.L("lend"))
    k.stamp(5)
    for l in pv(1, NBUF - 1): k(l)
    k(f"s_cmp_ge_u32 s{s_w}, 3"); k(f"s_cbranch_scc1 {k.L('d2')}")
    srd(k, sP3, 44, 45, S * D * 2)
    for c in range(4):
        k(f"buffer_load_dwordx4 {vr(XR + 4*c, 4)}, v{XRA}, s[{sP3}:{sP3+3}], 0 offen offset:{32*c}")
    k.label(k.L("d2"))
    k("s_nop 4")
    k(f"v_pk_add_f32 {vr(vt[0],2)}, {vr(O[0],2)}, {vr(O[0]+2,2)}")
    for r in range(4, 12, 2): k(f"v_pk_add_f32 {vr(vt[0],2)}, {vr(vt[0],2)}, {vr(O[0]+r,2)}")
    for r in range(0, 12, 2): k(f"v_pk_add_f32 {vr(vt[0],2)}, {vr(vt[0],2)}, {vr(O[1]+r,2)}")
    k(f"v_add_f32 v{vt[0]}, v{vt[0]}, v{vt[1]}")
    k(f"v_add_f32 v{vt[1]}, v{O[0]+8}, v{O[1]+8}")
    k(f"s_mov_b32 s{s_t0}, {f32(2.0**120)}")
    k(f"v_cmp_nlt_f32 s[{s_c}:{s_c+1}], |v{vt[0]}|, s{s_t0}")
    k(f"s_mov_b32 s{s_t0}, {f32(2.0**60)}")
    k(f"v_cmp_nlt_f32 vcc, |v{vt[1]}|, s{s_t0}")
    k(f"s_andn2_b64 vcc, vcc, s[{s_lo}:{s_lo+1}]")
    k(f"s_or_b64 s[{s_c}:{s_c+1}], s[{s_c}:{s_c+1}], vcc")
    if "forcefb" not in X: k(f"s_cbranch_scc0 {k.L('merge')}")
    k("s_waitcnt vmcnt(0)")
    k(f"s_mov_b32 s22, {1280 * 32}")
    k(f"s_mov_b32 s{s_ko}, s42"); k(f"s_mov_b32 s{s_vo}, s43")
    for qt in range(2):
        for r in range(16): k(f"v_mov_b32 v{O[qt] + r}, 0")
        k(f"v_mov_b32 v{vm[qt]}, 0xff800000")
    k(f"s_mov_b32 s{s_it}, 0")
    k.label(k.L("fb"))
    k(f"buffer_load_dwordx2 {vr(K2[0],2)}, v{vK2}, {W}, s{s_ko} offen")
    for l in kload(0) + vload(0): k(l)
    k("s_waitcnt vmcnt(0)")
    for qt in range(2):
        for l in qk(qt, 0, None): k(l)
    for qt in range(2):
        rowmax(qt, vt[2], vt[0])
        k(f"v_max_f32 v{vt[2]}, v{vt[2]}, v{vm[qt]}")
        k(f"v_sub_f32 v{vt[3]}, v{vm[qt]}, v{vt[2]}")
        k(f"v_exp_f32 v{vt[3]}, v{vt[3]}")
        k(f"v_mov_b32 v{vm[qt]}, v{vt[2]}")
        for r in range(16): k(f"v_mul_f32 v{O[qt]+r}, v{O[qt]+r}, v{vt[3]}")
        for r in range(16): k(f"v_sub_f32 v{Sx[qt]+r}, v{Sx[qt]+r}, v{vt[2]}")
        for r in range(16): k(f"v_exp_f32 v{Sx[qt]+r}, v{Sx[qt]+r}")
        for r in range(8): k(f"v_cvt_pk_bf16_f32 v{P[qt]+r}, v{Sx[qt]+2*r}, v{Sx[qt]+2*r+1}")
        for l in pv(qt, 0): k(l)
    k("s_nop 7"); k("s_nop 7")
    k(f"s_add_u32 s{s_it}, s{s_it}, 1")
    k(f"s_cmp_lt_u32 s{s_it}, 32")
    k(f"s_cbranch_scc1 {k.L('fb')}")
    k.label(k.L("merge"))
    k(f"s_cmp_eq_u32 s{s_kh}, 0")
    k(f"s_cbranch_scc1 {k.L('noswap')}")
    for r in range(12): k(f"v_swap_b32 v{O[0]+r}, v{O[1]+r}")
    k(f"v_swap_b32 v{vm[0]}, v{vm[1]}")
    k.label(k.L("noswap"))
    k(f"s_mul_i32 s{s_t0}, s{s_w}, 3328"); k(f"s_add_u32 s{s_t0}, s{s_t0}, {MRG}")
    k(f"s_xor_b32 s{s_t1}, s{s_w}, 4"); k(f"s_mul_i32 s{s_t1}, s{s_t1}, 3328"); k(f"s_add_u32 s{s_t1}, s{s_t1}, {MRG}")
    k(f"v_lshl_add_u32 v{vt[0]}, v{v_lane}, 4, s{s_t0}")
    k(f"v_lshl_add_u32 v{vt[2]}, v{v_lane}, 2, s{s_t0}")
    for q in range(3): k(f"ds_write_b128 v{vt[0]}, {vr(O[1] + 4*q, 4)} offset:{q*1024}")
    k(f"ds_write_b32 v{vt[2]}, v{vm[1]} offset:3072")
    k(f"v_lshl_add_u32 v{vt[1]}, v{v_lane}, 4, s{s_t1}")
    k(f"v_lshl_add_u32 v{vt[3]}, v{v_lane}, 2, s{s_t1}")
    k(f"v_mov_b32 v{vt[7]}, {LOCW}")
    k(f"s_cmp_lg_u32 s{s_w}, 5"); k(f"s_cbranch_scc1 {k.L('nl')}")
    k(f"v_cmp_ne_u32 vcc, s{S_TAG}, v{vX}")
    k(f"v_cmp_ne_u32 s[90:91], s51, v{vX+1}")
    k("s_or_b64 vcc, vcc, s[90:91]")
    k(f"s_cselect_b32 s{s_t0}, 0, 1")
    k(f"v_mov_b32 v{vX}, s{s_t0}"); k(f"v_mov_b32 v{vX+1}, s{S_TAG}")
    k(f"ds_write_b64 v{vt[7]}, {vr(vX, 2)}")
    k.label(k.L("nl"))
    k("s_waitcnt lgkmcnt(0)")
    k("s_barrier")
    if "sta" in X: k.stamp(3); k("s_waitcnt lgkmcnt(0)")
    mo = Sx[0] + 12
    k(f"ds_read_b32 v{mo}, v{vt[3]} offset:3072")
    for q in range(3): k(f"ds_read_b128 {vr(Sx[0] + 4*q, 4)}, v{vt[1]} offset:{q*1024}")
    k(f"ds_read_b64 {vr(vX, 2)}, v{vt[7]}")
    k(f"s_lshl_b32 s{s_t1}, s{s_kh}, 9"); k(f"s_add_u32 s{s_t0}, s{s_qo}, s{s_t1}"); k(f"s_add_u32 s{s_t0}, s{s_t0}, {O_OFF}")
    k("s_waitcnt lgkmcnt(4)")
    k(f"v_max_f32 v{vt[2]}, v{vm[0]}, v{mo}")
    k(f"v_sub_f32 v{vt[3]}, v{vm[0]}, v{vt[2]}"); k(f"v_sub_f32 v{vt[4]}, v{mo}, v{vt[2]}")
    k(f"v_exp_f32 v{vt[3]}, v{vt[3]}"); k(f"v_exp_f32 v{vt[4]}, v{vt[4]}")
    k(f"v_mul_f32 v{vt[5]}, v{O[0]+8}, v{vt[3]}")
    k("s_waitcnt lgkmcnt(0)")
    k(f"v_fmac_f32 v{vt[5]}, v{Sx[0]+8}, v{vt[4]}")
    k(f"v_readfirstlane_b32 s{S_LOC}, v{vX}"); k(f"v_readfirstlane_b32 s{S_TAG}, v{vX+1}")
    if "rowmap" not in X: k("s_mov_b64 vcc, 0")
    else: loc_vcc(k)
    k(f"v_mov_b32 v{vt[6]}, v{vt[5]}")
    k(f"v_permlane32_swap_b32 v{vt[5]}, v{vt[6]}")
    k(f"v_rcp_f32 v{vt[6]}, v{vt[6]}")
    k(f"v_mul_f32 v{vt[2]}, v{vt[3]}, v{vt[6]}"); k(f"v_mul_f32 v{vt[3]}, v{vt[4]}, v{vt[6]}")
    for r in range(0, 12, 2): k(f"v_pk_mul_f32 {vr(O[0]+r,2)}, {vr(O[0]+r,2)}, {vr(vt[2],2)} op_sel_hi:[1,0]")
    for r in range(0, 12, 2): k(f"v_pk_fma_f32 {vr(O[0]+r,2)}, {vr(Sx[0]+r,2)}, {vr(vt[2],2)}, {vr(O[0]+r,2)} op_sel:[0,1,0] op_sel_hi:[1,1,1]")
    for r in range(6): k(f"v_cvt_pk_bf16_f32 v{P[0]+r}, v{O[0]+2*r}, v{O[0]+2*r+1}")
    k(f"v_permlane32_swap_b32 v{P[0]}, v{P[0]+2}")
    k(f"v_permlane32_swap_b32 v{P[0]+1}, v{P[0]+3}")
    dstores(k, [f"buffer_store_dwordx4 {vr(P[0],4)}, v{vK1}, s[{sWW}:{sWW+3}], s{s_t0} offen",
                "s_mov_b32 exec_hi, 0",
                f"buffer_store_dwordx2 {vr(P[0]+4,2)}, v{vK2}, s[{sWW}:{sWW+3}], s{s_t0} offen",
                "s_mov_b32 exec_hi, -1"])
    k(f"s_lshl_b32 s94, s{s_qb}, 5"); k(f"s_add_u32 s94, s94, s{s_hd}")
    k.stamp(6)

def phase345(k):
    k.pref = "p3"
    GB = 16384; NSLOT = 8; SB = NSLOT * GB
    PH = {3: dict(NT=2, KK=D, A_OFF=O_OFF, base=0), 4: dict(NT=4, KK=D, A_OFF=H_OFF, base=5), 5: dict(NT=2, KK=F, A_OFF=G_OFF, base=7)}
    for p in PH.values():
        p["GS"] = 16 // p["NT"]; p["GR"] = p["GS"] * 16; p["NG"] = (p["KK"] + p["GR"] - 1) // p["GR"]; p["NKS"] = p["KK"] // 16
    sW, sB3, sB4, sB5, sX, sO, sBi = 4, 8, 12, 16, 8, 12, 16
    s_r, s_cb, s_w, s_t0, s_t1, s_offA, s_it, s_wid, s_r4, s_cb4, s_idx, s_x = 20, 21, 22, 23, 24, 26, 28, S_WID, 29, 30, 31, 32
    s_ob = {3: 25, 4: 26, 5: 27}; s_m0 = 33
    sPl, sSc = 96, 52
    ASC = os.environ.get("ASC", " sc1")
    v_lane, v_t, v_h = 1, 2, 3
    vt = [12, 13, 14, 15]
    k("s_load_dwordx2 s[42:43], s[0:1], 32")
    k("s_load_dwordx4 s[44:47], s[0:1], 48")
    k("s_load_dwordx2 s[56:57], s[0:1], 64")
    k(f"s_lshr_b32 s{s_idx}, s2, 3"); k(f"s_and_b32 s{s_x}, s2, 7")
    k(f"s_mul_i32 s{s_cb}, s{s_idx}, 43"); k(f"s_lshr_b32 s{s_cb}, s{s_cb}, 7")
    k(f"s_mul_i32 s{s_t1}, s{s_cb}, 3"); k(f"s_sub_u32 s{s_r}, s{s_idx}, s{s_t1}")
    k(f"s_and_b32 s{s_r4}, s{s_idx}, 1"); k(f"s_lshr_b32 s{s_cb4}, s{s_idx}, 1")
    k(f"s_and_b32 s{s_w}, s{s_wid}, 3")
    k(f"s_cmp_lt_u32 s{s_wid}, 4")
    k(f"s_cbranch_scc1 {k.L('compute')}")
    vB2 = [4, 5, 6, 7]; vB4 = [8, 9, 10, 11]
    k(f"v_lshrrev_b32 v{vt[0]}, 3, v{v_lane}")
    k(f"v_and_b32 v{vt[1]}, 7, v{v_lane}")
    k(f"v_bfe_u32 v{vt[2]}, v{v_lane}, 4, 1")
    k(f"v_lshlrev_b32 v{vt[2]}, 2, v{vt[2]}")
    k(f"v_xor_b32 v{vt[1]}, v{vt[1]}, v{vt[2]}")
    k(f"v_mul_u32_u24 v{vt[0]}, 1280, v{vt[0]}")
    k(f"v_lshl_add_u32 v{vB2[0]}, v{vt[1]}, 4, v{vt[0]}")
    for ii in range(1, 4): k(f"v_add_u32 v{vB2[ii]}, {ii * (8 * 1280 - 1024)}, v{vB2[0]}")
    k(f"s_mul_i32 s{s_ob[5]}, s{s_w}, {32 * 1280}"); k(f"s_lshl_b32 s{s_t1}, s{s_cb}, 7"); k(f"s_add_u32 s{s_ob[5]}, s{s_ob[5]}, s{s_t1}")
    k(f"s_add_u32 s37, s{s_ob[5]}, {(14 - int(os.environ.get('NSTASH', '0'))) * 128 * 1280}")
    k(f"s_lshl_b32 s{s_m0}, s{s_w}, 12")
    k(f"v_lshrrev_b32 v{vt[0]}, 4, v{v_lane}")
    k(f"v_and_b32 v{vt[1]}, 15, v{v_lane}")
    k(f"v_lshlrev_b32 v{vt[2]}, 2, v{vt[0]}")
    k(f"v_xor_b32 v{vt[1]}, v{vt[1]}, v{vt[2]}")
    k(f"v_mul_u32_u24 v{vt[0]}, {F * 2}, v{vt[0]}")
    k(f"v_lshl_add_u32 v{vB4[0]}, v{vt[1]}, 4, v{vt[0]}")
    for ii in range(1, 4): k(f"v_add_u32 v{vB4[ii]}, {ii * (4 * F * 2 - 1024)}, v{vB4[0]}")
    k(f"s_mul_i32 s{s_ob[4]}, s{s_w}, {16 * F * 2}"); k(f"s_lshl_b32 s{s_t1}, s{s_cb4}, 8"); k(f"s_add_u32 s{s_ob[4]}, s{s_ob[4]}, s{s_t1}")
    k(f"s_add_u32 s{s_ob[4]}, s{s_ob[4]}, {192 * F * 2}")
    k(f"s_lshl_b32 s{s_t0}, s{s_cb4}, 10"); k(f"s_lshl_b32 s{s_t1}, s{s_w}, 8"); k(f"s_add_u32 s{s_t0}, s{s_t0}, s{s_t1}")
    k(f"s_add_u32 s{s_t0}, s{s_t0}, {C1_OFF}")
    k(f"v_lshlrev_b32 v{vt[3]}, 2, v{v_lane}")
    k(f"v_add_u32 v{vt[2]}, s{s_t1}, v{vt[3]}"); k(f"v_add_u32 v{vt[2]}, {SB}, v{vt[2]}")
    k("s_waitcnt lgkmcnt(0)")
    srd(k, sB4, 42, 43, D * F * 2); srd(k, sB5, 44, 45, D * F * 2); srd(k, sW, 40, 41, WS_END)
    q = []
    def issue(p, j):
        P = PH[p]; slot = (P["base"] + j) % NSLOT
        vB = vB4 if p == 4 else vB2; sB = {4: sB4, 5: sB5}[p]
        k(f"s_add_u32 m0, s{s_m0}, {slot * GB}")
        for ii in range(4):
            k(f"buffer_load_dwordx4 v{vB[ii]}, s[{sB}:{sB+3}], s{s_ob[p]} offen offset:{ii*1024} lds")
            q.append((p, j))
        k(f"s_add_u32 s{s_ob[p]}, s{s_ob[p]}, {P['GR'] * (F if p == 4 else D) * 2}")
    def need(item):
        if item in q:
            last = len(q) - 1 - q[::-1].index(item)
            k(f"s_waitcnt vmcnt({len(q) - 1 - last})")
            del q[:last + 1]
    def bar(item=None):
        if item is not None: need(item)
        k("s_barrier")
    vP = 16; s_q = 34
    k(f"s_lshl_b32 s{s_q}, s{s_idx}, 2"); k(f"s_add_u32 s{s_q}, s{s_q}, s{s_w}")
    k(f"s_lshl_b32 s{s_it}, s{s_x}, 12")
    k(f"v_lshl_add_u32 v{vP}, v{v_t}, 7, s{s_it}")
    k(f"v_lshl_add_u32 v{vP+1}, v{v_h}, 15, v{vP}")
    def apf(p):
        if ("apf%d" % p) not in X: return
        lab = k.L("apf%d_%d" % (p, k.uid)); k.uid += 1
        k(f"s_cmp_ge_u32 s{s_q}, {108 if p == 5 else 80}"); k(f"s_cbranch_scc1 {lab}")
        k(f"s_lshl_b32 s{s_it}, s{s_q}, {16 if p == 5 else 15}"); k(f"s_add_u32 s{s_it}, s{s_it}, {PH[p]['A_OFF']}")
        k(f"buffer_load_dword v{vP+2}, v{vP + (1 if p == 5 else 0)}, s[{sW}:{sW+3}], s{s_it} offen sc1")
        k.label(lab)
        k("s_waitcnt vmcnt(0)"); q[:] = []
    k("s_waitcnt vmcnt(0)")
    bar()
    k(f"s_cmp_ge_u32 s{s_idx}, 30"); k(f"s_cbranch_scc1 L_exit")
    if "cpf2" in X:
        k(f"s_cmp_lg_u32 s{s_w}, 0"); k(f"s_cbranch_scc1 {k.L('ncp')}")
        code_prefetch(k, "L_p3_pb3", sB3, s_it, 24, 25, v_lane, per=6)
        k.label(k.L("ncp"))
    bar()
    k(f"s_cmp_ge_u32 s{s_idx}, 28"); k(f"s_cbranch_scc1 {k.L('lskip4')}")
    def piece(p, g, ii):
        P = PH[p]; vB = vB4 if p == 4 else vB2; sB = {4: sB4, 5: sB5}[p]
        if ii == 0: k(f"s_add_u32 m0, s{s_m0}, {((P['base'] + g) % NSLOT) * GB}")
        k(f"buffer_load_dwordx4 v{vB[ii]}, s[{sB}:{sB+3}], s{s_ob[p]} offen offset:{ii*1024} lds")
        q.append((p, g))
        if ii == 3: k(f"s_add_u32 s{s_ob[p]}, s{s_ob[p]}, {P['GR'] * (F if p == 4 else D) * 2}")
    todo = [(4, g, ii) for g in range(3, 10) for ii in range(4)] + [(5, g, ii) for g in range(8) for ii in range(4)]
    P3 = [int(v) for v in os.environ.get("P3", "0,0,0,0,12,0").split(",")]
    for j in range(6):
        bar()
        for _ in range(P3[j]):
            p_, g, ii = todo.pop(0)
            assert p_ == 4 and (g - 3 + 2 <= j or (j == 5 and g < 8))
            piece(p_, g, ii)
    bar()
    k(f"buffer_load_dword v{vt[1]}, v{vt[3]}, s[{sW}:{sW+3}], s{s_t0} offen sc1"); q.append(("c", 0))
    P4 = [int(v) for v in os.environ.get("P4", "3,3,3,3,3,3,3,3,3,3").split(",")]
    for j in range(10):
        assert (4, j, 3) not in todo
        bar((4, j))
        if j == 6:
            need(("c", 0))
            k(f"ds_write_b32 v{vt[2]}, v{vt[1]}")
        for _ in range(P4[j]):
            p_, g, ii = todo[0]
            if (p_ == 4 and g >= 8 and g - 8 + 2 > j) or (p_ == 5 and g + 4 > j): break
            piece(*todo.pop(0))
            if "psl4" in X: k("s_nop 15")
    k("s_waitcnt lgkmcnt(0)")
    bar()
    THIN = int(os.environ.get("THIN", "6"))
    while todo:
        if THIN >= 0 and todo[0][2] % 2 == 0: k(f"s_waitcnt vmcnt({THIN})")
        piece(*todo.pop(0))
    bar()
    k(f"s_branch {k.L('l5')}")
    k.label(k.L("lskip4"))
    for j in range(6): bar()
    for j in range(8): issue(5, j)
    if "wbh" in X:
        k(f"s_cmp_lg_u32 s{s_q}, 112"); k(f"s_cbranch_scc1 {k.L('l5')}")
        k("s_waitcnt vmcnt(0)"); k("s_sleep 64")
        k("buffer_wbl2 sc1")
    k.label(k.L("l5"))
    k("s_waitcnt vmcnt(0)"); q[:] = []
    bar()
    k(f"s_cmp_lg_u32 s{s_w}, 3"); k("s_cbranch_scc1 L_exit")
    k(f"s_sub_u32 s{s_ob[5]}, s{s_ob[5]}, {3 * 32 * 1280}")
    pieces = [(g, ww, ii) for g in range(8, 14) for ww in range(4 if g < 13 else 2) for ii in range(4)]
    PPB = int(os.environ.get("PPB", "9"))
    for j in range(14):
        bar((5, j))
        n = 0
        while pieces and n < PPB and pieces[0][0] - 8 + 2 <= j:
            g, ww, ii = pieces.pop(0); n += 1
            assert g > j
            if ii == 0: k(f"s_mov_b32 m0, {((7 + g) % NSLOT) * GB + ww * 4096}")
            k(f"buffer_load_dwordx4 v{vB2[ii]}, s[{sB5}:{sB5+3}], s{s_ob[5]} offen offset:{ii*1024} lds")
            q.append((5, g))
            if ii == 3: k(f"s_add_u32 s{s_ob[5]}, s{s_ob[5]}, {32 * 1280}")
        if len(q) > 40:
            k("s_waitcnt vmcnt(40)"); del q[:len(q) - 40]
    assert not pieces
    if "sta" in X: k.dump(0, 14, s_wid)
    k("s_endpgm")

    k.label(k.L("compute"))
    vBr = [4, 5, 6, 7]; vA = 8; vS = 9; vO = 10; v_tag = 11
    RES = 16; BI = 32; ACC = 48
    DIST = int(os.environ.get('DIST', '6')); NFB = 8
    NFAS = {3: 32, 4: int(os.environ.get('NFA4', '24')), 5: int(os.environ.get('NFA5', '32'))}
    s_tok3 = 34; s_act = 25
    k(f"s_mul_i32 s{s_t0}, s{s_r}, 3"); k(f"s_add_u32 s{s_t0}, s{s_t0}, s{s_w}")
    k(f"s_cmp_eq_u32 s{s_w}, 3"); k(f"s_cselect_b32 s{s_act}, 8, s{s_t0}")
    k(f"s_lshl_b32 s{s_t1}, s{s_x}, 3"); k(f"s_add_u32 s{s_t0}, s{s_t0}, s{s_t1}"); k(f"s_lshl_b32 s{s_tok3}, s{s_t0}, 5")
    for c in range(4): k(f"s_mov_b32 s{48 + c}, {2*c*CH}")
    def nbar(n):
        for _ in range(n): k("s_barrier")
    def setup(p):
        if p == 4:
            k(f"s_lshl_b32 s{s_t0}, s{s_x}, 1"); k(f"s_add_u32 s{s_t0}, s{s_t0}, s{s_r4}"); k(f"s_lshl_b32 s{s_t0}, s{s_t0}, 2")
            k(f"s_add_u32 s{s_t0}, s{s_t0}, s{s_w}"); k(f"s_lshl_b32 s{s_t0}, s{s_t0}, 5")
            k(f"v_add_u32 v{vt[0]}, s{s_t0}, v{v_t}")
        else:
            k(f"v_add_u32 v{vt[0]}, s{s_tok3}, v{v_t}")
        k(f"v_lshlrev_b32 v{vA}, 15, v{v_h}")
        k(f"v_lshl_add_u32 v{vA}, v{vt[0]}, 4, v{vA}")
        k(f"s_mov_b32 s{s_offA}, {PH[p]['A_OFF']}")
    def setup2(p):
        late = []
        if p == 4:
            k(f"s_lshl_b32 s{s_t0}, s{s_cb4}, 19"); k(f"s_add_u32 s{s_t0}, s{s_t0}, {G_OFF}")
            k(f"v_add_u32 v{vO}, s{s_t0}, v{vA}")
            k(f"v_mul_u32_u24 v{vt[1]}, {5 * 16384}, v{v_h}")
            k(f"v_lshl_add_u32 v{vS}, v{vt[0]}, 3, v{vt[1]}")
            for i in range(5):
                late.append([f"s_mov_b32 s{s_t0}, {HS_OFF + i * 16384}",
                             f"buffer_load_dwordx2 {vr(BI + 2*i, 2)}, v{vS}, s[{sW}:{sW+3}], s{s_t0} offen sc1"])
            k(f"v_bfe_u32 v{vt[0]}, v{v_lane}, 2, 2")
            k(f"v_lshl_add_u32 v{vt[1]}, v{v_h}, 2, v{vt[0]}")
            k(f"v_lshlrev_b32 v{vt[1]}, 8, v{vt[1]}")
            k(f"v_lshl_add_u32 v{vt[0]}, v{vt[0]}, 6, v{vt[1]}")
        else:
            k(f"s_lshl_b32 s{s_t1}, s{s_cb}, 7")
            k(f"v_mul_u32_u24 v{vt[1]}, 1280, v{vt[0]}")
            k(f"v_lshl_add_u32 v{vt[1]}, v{v_h}, 4, v{vt[1]}")
            if p == 3:
                k(f"v_add_u32 v{vt[1]}, s{s_t1}, v{vt[1]}")
                k(f"s_lshl_b32 s{s_t0}, s{s_cb}, 18"); k(f"s_add_u32 s{s_t0}, s{s_t0}, {H_OFF}")
                k(f"v_add_u32 v{vO}, s{s_t0}, v{vA}")
                k(f"s_lshl_b32 s{s_t0}, s{s_cb}, 14"); k(f"s_add_u32 s{s_t0}, s{s_t0}, {HS_OFF}")
                k(f"v_lshl_add_u32 v{vS}, v{vt[0]}, 3, s{s_t0}")
            else:
                k(f"v_add_u32 v{vO}, s{s_t1}, v{vt[1]}")
                srd(k, sO, 56, 57, S * D * 2); srd(k, sBi, 46, 47, D * 2)
                k(f"v_lshlrev_b32 v{vt[2]}, 3, v{v_h}")
                for c in range(8):
                    k(f"buffer_load_dwordx2 {vr(BI + 2*c, 2)}, v{vt[2]}, s[{sBi}:{sBi+3}], s{s_t1} offen offset:{16*c}")
            k(f"v_bfe_u32 v{vt[0]}, v{v_lane}, 2, 2")
            k(f"v_lshl_add_u32 v{vt[0]}, v{v_h}, {3 if p == 3 else 2}, v{vt[0]}")
            k(f"v_lshlrev_b32 v{vt[0]}, 7, v{vt[0]}")
            k(f"v_bfe_u32 v{vt[3]}, v{v_lane}, 3, 1")
            k(f"v_lshl_add_u32 v{vt[0]}, v{vt[3]}, 6, v{vt[0]}")
        k(f"v_bfe_u32 v{vt[3]}, v{v_lane}, 4, 1")
        k(f"v_lshl_add_u32 v{vt[0]}, v{vt[3]}, 5, v{vt[0]}")
        k(f"v_and_b32 v{vt[3]}, 3, v{v_lane}")
        k(f"v_lshl_add_u32 v{vBr[0]}, v{vt[3]}, 3, v{vt[0]}")
        for j in range(1, PH[p]["NT"]): k(f"v_xor_b32 v{vBr[j]}, {64 * j}, v{vBr[0]}")
        return late
    def aload(p, i, FA):
        NFA = NFAS[p]
        return [f"buffer_load_dwordx4 {vr(FA + (i % NFA) * 4, 4)}, v{vA}, s[{sW}:{sW+3}], s{s_offA} offen{ASC}",
                f"s_add_u32 s{s_offA}, s{s_offA}, {2 * CH}"]
    def gemm(p, late, pre_issued, mid={}):
        P = PH[p]; NT = P["NT"]; GS = P["GS"]; NKS = P["NKS"]
        FB = ACC + 16 * NT; FA = FB + NFB * 4
        NFA = NFAS[p]; LA = min(NFA - 2, int(os.environ.get("LA%d" % p, "10" if p == 4 else "14"))); LI = int(os.environ.get("LI%d" % p, "6" if p == 4 else "8"))
        for i in range(LI):
            for l in aload(p, i, FA): k(l)
        nis = LI
        cur = [0]
        NM = NKS * NT; KSB = GB // GS
        def bread(m):
            ks, j = divmod(m, NT)
            G, qq = divmod(ks, GS)
            off = ((P["base"] + G) % NSLOT) * GB + qq * KSB
            r = []
            if qq == 0 and j == 0: r.append("s_barrier")
            base = (off // 65536) * 65536
            if base != cur[0]:
                for a in vBr[:NT]: r.append(f"v_add_u32 v{a}, {(base - cur[0]) & 0xffffffff:#x}, v{a}")
                cur[0] = base
            for e in range(2):
                r.append(f"ds_read_b64_tr_b16 {vr(FB + (m % NFB) * 4 + 2*e, 2)}, v{vBr[j]} offset:{off - base + e * (KSB // (4 if p == 3 else 2))}")
            return r
        if K.prof: k("s_waitcnt lgkmcnt(0)")
        for m in range(DIST):
            for l in bread(m): k(l)
        vq = [("A", i) for i in range(LI)]
        for m in range(NM):
            ks, j = divmod(m, NT)
            nout = 2 * (min(NM, m + DIST) - m - 1)
            if j == 0:
                pos = vq.index(("A", ks))
                k(f"s_waitcnt vmcnt({len(vq) - 1 - pos}) lgkmcnt({nout})")
            else:
                k(f"s_waitcnt lgkmcnt({nout})")
            cc = vr(ACC + 16*j, 16) if (ks or p != 4) else "0"
            k(f"v_mfma_f32_32x32x16_bf16 {vr(ACC + 16*j, 16)}, {vr(FB + (m % NFB) * 4, 4)}, {vr(FA + (ks % NFA) * 4, 4)}, {cc}")
            if ("stg%d" % p) in X and j == 0 and ks in (0, NKS // 5, 2 * NKS // 5, 3 * NKS // 5, 4 * NKS // 5):
                k.stamp(2 + [0, NKS // 5, 2 * NKS // 5, 3 * NKS // 5, 4 * NKS // 5].index(ks))
            if m + DIST < NM:
                for l in bread(m + DIST): k(l)
            if m in mid:
                for l in mid[m](len(vq) - 1 - max(i for i, e in enumerate(vq) if e[0] == "R") if any(e[0] == "R" for e in vq) else 0): k(l)
            if j in (0, NT // 2) and nis < min(NKS, ks + 1 + LA):
                for l in aload(p, nis, FA): k(l)
                vq.append(("A", nis)); nis += 1
            if j == 0 and late and ks + LA + 4 >= NKS:
                for l in late.pop(0): k(l)
                vq.append(("R", 0))
        assert not late
        if ("stg%d" % p) in X: k.stamp(0)
        return FB, FA
    def sync(pdone, pwait, nflags, name, slp=0, extra=False):
        publish(k, sW, pdone, 94, s_t0, vt[0], vt[1], not (pdone == 2 and "rowmap" not in X))
        k(f"v_min_u32 v{vt[0]}, {nflags - 1}, v{v_lane}")
        k(f"s_lshl_b32 s{s_t0}, s{s_x}, 12"); k(f"s_add_u32 s{s_t0}, s{s_t0}, {FL_OFF + (pwait - 1) * 32768}")
        k(f"v_lshl_add_u32 v{vt[0]}, v{vt[0]}, 7, s{s_t0}")
        if extra:
            k(f"s_lshl_b32 s{s_t0}, s{s_cb4}, 11"); k(f"s_add_u32 s{s_t0}, s{s_t0}, {FL_OFF + 15 * 128}")
            k(f"v_writelane_b32 v{vt[0]}, s{s_t0}, 63")
        poll(k, sW, [vt[0]], [vt[1]], s_it, name, slp)

    setup(3)
    k("s_waitcnt lgkmcnt(0)")
    srd(k, sW, 40, 41, WS_END)
    late = setup2(3)
    k(f"s_cmp_ge_u32 s{s_act}, 8"); k(f"s_cbranch_scc1 {k.L('nores')}")
    def res_to_acc(R):
        for c in range(4 if R == XR else 0):
            k(f"v_permlane32_swap_b32 v{R + 4*c}, v{R + 4*c + 2}")
            k(f"v_permlane32_swap_b32 v{R + 4*c + 1}, v{R + 4*c + 3}")
        for r in range(16):
            k(f"v_lshlrev_b32 v{ACC + 2*r}, 16, v{R + r}")
            k(f"v_and_b32 v{ACC + 2*r + 1}, 0xffff0000, v{R + r}")
    k("s_waitcnt vmcnt(0)")
    k("s_barrier")
    k(f"s_cmp_ge_u32 s{s_idx}, 30"); k(f"s_cbranch_scc1 L_exit")
    res_to_acc(XR)
    k("s_barrier")
    k.stamp(7)
    FB, FA = gemm(3, late, False)
    if "st45" in X: k.stamp(2)
    k(f"v_mov_b32 v{vt[0]}, 0"); k(f"v_mov_b32 v{vt[1]}, 0"); k(f"s_mov_b32 s{s_t1}, 0x3f803f80")
    loc_vcc(k)
    for hf in range(2):
        for r in range(8*hf, 8*hf + 8):
            k(f"v_cvt_pk_bf16_f32 v{RES + r}, v{ACC + 2*r}, v{ACC + 2*r + 1}")
        dstores(k, [f"buffer_store_dwordx4 {vr(RES + 4*c, 4)}, v{vO}, s[{sW}:{sW+3}], s{48 + c} offen" for c in (2*hf, 2*hf + 1)])
    for r in range(16):
        k(f"v_dot2c_f32_bf16 v{vt[0]}, s{s_t1}, v{RES + r}")
        k(f"v_dot2c_f32_bf16 v{vt[1]}, v{RES + r}, v{RES + r}")
    k(f"v_mov_b32 v{vt[2]}, v{vt[0]}"); k(f"v_mov_b32 v{vt[3]}, v{vt[1]}")
    k(f"v_permlane32_swap_b32 v{vt[0]}, v{vt[2]}"); k(f"v_permlane32_swap_b32 v{vt[1]}, v{vt[3]}")
    k(f"v_add_f32 v{vt[0]}, v{vt[0]}, v{vt[2]}"); k(f"v_add_f32 v{vt[1]}, v{vt[1]}, v{vt[3]}")
    k("s_mov_b32 exec_hi, 0")
    dstores(k, [f"buffer_store_dwordx2 {vr(vt[0], 2)}, v{vS}, s[{sW}:{sW+3}], 0 offen"])
    k("s_mov_b32 exec_hi, -1")
    k(f"s_branch {k.L('pb3')}")
    k.label(k.L("nores"))
    k("s_waitcnt vmcnt(0)")
    k("s_barrier")
    k(f"s_cmp_lg_u32 s{s_w}, 3"); k(f"s_cbranch_scc1 {k.L('ns3')}")
    k(f"s_cmp_lt_u32 s{s_idx}, 30"); k(f"s_cbranch_scc1 {k.L('s3')}")
    publish(k, sW, 2, 94, s_t0, vt[0], vt[1], "rowmap" in X)
    k("s_endpgm")
    k.label(k.L("s3"))
    sync(2, 2, 32, "3")
    k(f"s_cmp_lg_u32 s{s_idx}, 0"); k(f"s_cbranch_scc1 {k.L('ns3')}")
    k(f"s_lshl_b32 s{s_t0}, s{s_x}, 7"); k(f"s_add_u32 s{s_t0}, s{s_t0}, {GD_OFF}")
    k(f"v_mov_b32 v{vt[0]}, 0"); k(f"v_mov_b32 v{vt[1]}, s{S_TAG}")
    k("s_mov_b64 exec, 1")
    k(f"buffer_store_dword v{vt[1]}, v{vt[0]}, s[{sW}:{sW+3}], s{s_t0} offen sc1")
    k("s_mov_b64 exec, -1")
    k.label(k.L("ns3"))
    k(f"s_cmp_ge_u32 s{s_idx}, 30"); k(f"s_cbranch_scc1 L_exit")
    nbar(4)
    k(f"s_cmp_lg_u32 s{s_w}, 3"); k(f"s_cbranch_scc1 {k.L('ngd')}")
    k(f"v_and_b32 v{vt[0]}, 7, v{v_lane}"); k(f"v_lshlrev_b32 v{vt[0]}, 7, v{vt[0]}"); k(f"v_add_u32 v{vt[0]}, {GD_OFF}, v{vt[0]}")
    k(f"buffer_load_dword v{vt[1]}, v{vt[0]}, s[{sW}:{sW+3}], 0 offen sc1")
    k("s_barrier")
    k("s_waitcnt vmcnt(0)")
    k(f"v_cmp_ne_u32 vcc, s{S_TAG}, v{vt[1]}")
    k(f"s_cbranch_vccz {k.L('gdok')}")
    poll(k, sW, [vt[0]], [vt[1]], s_it, "gd")
    k(f"s_branch {k.L('gdok')}")
    k.label(k.L("ngd"))
    k("s_barrier")
    k.label(k.L("gdok"))
    k("s_barrier")
    k.label(k.L("pb3"))
    k(f"s_lshl_b32 s94, s{s_x}, 5"); k(f"s_add_u32 s94, s94, s{s_idx}")
    k(f"s_cmp_ge_u32 s{s_idx}, 28"); k(f"s_cbranch_scc1 {k.L('skip4')}")
    setup(4)
    late = setup2(4)
    k("s_waitcnt vmcnt(0)")
    k("s_barrier")
    if "st2" not in X: k.stamp(8)
    k(f"s_cmp_lg_u32 s{s_w}, 3"); k(f"s_cbranch_scc1 {k.L('ns4')}")
    sync(3, 3, 30, "4", extra=True)
    k.label(k.L("ns4"))
    k("s_barrier")
    if "cprio" in X: k("s_setprio 2")
    if "st2" not in X: k.stamp(9)
    PS = BI; MR = BI + 12
    kk = K("tmp")
    for i in range(1, 5): kk(f"v_add_f32 v{PS}, v{PS}, v{PS + 2*i}"); kk(f"v_add_f32 v{PS+1}, v{PS+1}, v{PS + 2*i + 1}")
    kk(f"v_mov_b32 v{PS+2}, v{PS}"); kk(f"v_mov_b32 v{PS+3}, v{PS+1}")
    kk(f"v_permlane32_swap_b32 v{PS}, v{PS+2}"); kk(f"v_permlane32_swap_b32 v{PS+1}, v{PS+3}")
    kk(f"v_add_f32 v{PS}, v{PS}, v{PS+2}"); kk(f"v_add_f32 v{PS+1}, v{PS+1}, v{PS+3}")
    rowstat_math(kk, PS, PS + 1, MR, MR + 1, PS + 2, True)
    kk(f"v_mul_f32 v{MR+1}, {f32(GS)}, v{MR+1}")
    kk(f"v_lshlrev_b32 v{vt[0]}, 4, v{v_h}"); kk(f"v_add_u32 v{vt[0]}, {SB}, v{vt[0]}")
    st = kk.lines; mid = {}
    m0_ = 160 - (len(st) + 1) // 2 - 1
    for i in range(0, len(st), 2):
        mid[m0_ + i // 2] = (lambda n, i=i: ([f"s_waitcnt vmcnt({n})"] if i == 0 else []) + st[i:i + 2])
    FB, FA = gemm(4, late, False, mid)
    if "st45" in X: k.stamp(3)
    if "st4" in X: k.stamp(2)
    k("s_barrier")
    if "st4" in X: k.stamp(3)
    T = FB; CSB = [FB + 32, FB + 64]
    def csread(nt):
        for rq in range(8):
            k(f"ds_read_b128 {vr(CSB[nt % 2] + rq*4, 4)}, v{vt[0]} offset:{(rq // 4) * 512 + nt*128 + (rq % 4)*32}")
    csread(0)
    k(f"s_mov_b32 s58, {f32(GC0 / GS)}"); k(f"s_mov_b32 s59, {f32(math.log2(GS))}")
    k(f"s_mov_b32 s36, {f32(GS)}")
    if "gsc1" in X: k(f"s_mov_b32 s{S_LOC}, 0")
    loc_vcc(k)
    for nt in range(4):
        if nt == 2:
            k(f"s_cmp_eq_u32 s{s_cb4}, 13"); k(f"s_cbranch_scc1 {k.L('done4')}")
            k(f"v_add_u32 v{vO}, {8 * CH}, v{vO}")
        k("s_waitcnt lgkmcnt(0)")
        if nt < 3: csread(nt + 1)
        a = ACC + 16 * nt; CS = CSB[nt % 2]; B1 = CS + 16
        for p in range(8):
            x = vr(a + 2*p, 2)
            k(f"v_pk_fma_f32 {x}, {vr(CS + 2*p, 2)}, {vr(MR,2)}, {x} op_sel_hi:[1,0,1]")
        for p in range(8):
            x = vr(a + 2*p, 2)
            k(f"v_pk_fma_f32 {x}, {x}, {vr(MR,2)}, {vr(B1 + 2*p, 2)} op_sel:[0,1,0] op_sel_hi:[1,1,1]")
        for p in range(8):
            x = vr(a + 2*p, 2); t = vr(T + 2*p, 2)
            k(f"v_pk_fma_f32 {t}, {x}, {x}, s[58:59] op_sel_hi:[1,1,0]")
        for p in range(8):
            x = vr(a + 2*p, 2); t = vr(T + 2*p, 2)
            k(f"v_pk_fma_f32 {t}, {t}, {x}, s[58:59] op_sel:[0,0,1] op_sel_hi:[1,1,1] neg_lo:[0,1,0] neg_hi:[0,1,0]")
        for r in range(16): k(f"v_exp_f32 v{T + r}, v{T + r}")
        for p in range(8):
            t = vr(T + 2*p, 2)
            k(f"v_pk_add_f32 {t}, {t}, s[36:37] op_sel_hi:[1,0]")
        for r in range(16): k(f"v_rcp_f32 v{T + r}, v{T + r}")
        for p in range(8):
            x = vr(a + 2*p, 2); t = vr(T + 2*p, 2)
            k(f"v_pk_mul_f32 {x}, {x}, {t}")
        Pk = T + 16 + (nt % 2) * 8
        for p in range(8):
            k(f"v_cvt_pk_bf16_f32 v{Pk + p}, v{a + 2*p}, v{a + 2*p + 1}")
        sts = [f"buffer_store_dwordx4 {vr(Pk + 4*pq,4)}, v{vO}, s[{sW}:{sW+3}], s{48 + (nt % 2)*2 + pq} offen" for pq in range(2)]
        if nt < int(os.environ.get("GWT", "4")):
            for l in sts: k(l + " sc1")
        else:
            dstores(k, sts)
    k.label(k.L("done4"))
    if "st4" in X: k.stamp(4)
    k("s_waitcnt vmcnt(0) lgkmcnt(0)")
    if "st4" in X: k.stamp(5)
    k("s_barrier")
    k.stamp(10)
    k(f"s_cmp_lg_u32 s{s_w}, 3"); k(f"s_cbranch_scc1 {k.L('p5')}")
    sync(4, 4, 28, "5")
    k(f"s_branch {k.L('p5')}")
    k.label(k.L("skip4"))
    k("s_waitcnt vmcnt(0)")
    k("s_barrier")
    k(f"s_cmp_lg_u32 s{s_w}, 3"); k(f"s_cbranch_scc1 {k.L('p5')}")
    sync(3, 4, 28, "6", 8)
    k.label(k.L("p5"))
    k(f"s_cmp_ge_u32 s{s_act}, 8"); k(f"s_cbranch_scc1 {k.L('idle5')}")
    setup(5)
    if "hclean" in X:
        k(f"s_lshl_b32 s{s_t0}, s{s_cb}, 18"); k(f"s_add_u32 s{s_t0}, s{s_t0}, {H_OFF}")
        k(f"v_add_u32 v{vS}, s{s_t0}, v{vA}")
    late = setup2(5)
    if "hclean" in X:
        for c in range(4):
            late.append([f"s_mov_b32 s{s_t0}, {2*c*CH}", f"buffer_store_dwordx4 {vr(RES + 4*c, 4)}, v{vS}, s[{sW}:{sW+3}], s{s_t0} offen sc1"])
    res_to_acc(RES)
    k("s_waitcnt vmcnt(0)")
    T = ACC + 64
    for r in range(16):
        k(f"v_lshlrev_b32 v{T + 2*r}, 16, v{BI + r}")
        k(f"v_and_b32 v{T + 2*r + 1}, 0xffff0000, v{BI + r}")
    for r in range(16):
        k(f"v_pk_add_f32 {vr(ACC + 2*r, 2)}, {vr(ACC + 2*r, 2)}, {vr(T + 2*r, 2)}")
    if "nootr" not in X:
        k(f"s_lshl_b32 s{s_t0}, s{s_w}, 12"); k(f"s_add_u32 s{s_t0}, s{s_t0}, {MRG}")
        k(f"v_and_b32 v{vt[0]}, 7, v{v_lane}"); k(f"v_xor_b32 v{vt[1]}, v{vt[0]}, v{v_h}")
        k(f"v_lshl_add_u32 v{vt[2]}, v{v_t}, 7, s{s_t0}")
        for c in range(4):
            k(f"v_xor_b32 v{vt[3]}, {2 * c}, v{vt[1]}"); k(f"v_lshl_add_u32 v{BI + c}, v{vt[3]}, 4, v{vt[2]}")
        k(f"v_lshrrev_b32 v{vt[1]}, 3, v{v_lane}")
        k(f"v_xor_b32 v{vt[3]}, v{vt[0]}, v{vt[1]}")
        k(f"v_lshl_add_u32 v{vt[2]}, v{vt[1]}, 7, s{s_t0}"); k(f"v_lshl_add_u32 v{BI + 4}, v{vt[3]}, 4, v{vt[2]}")
        k(f"v_add_u32 v{vt[1]}, s{s_tok3}, v{vt[1]}"); k(f"v_mul_u32_u24 v{vt[1]}, 1280, v{vt[1]}")
        k(f"v_lshl_add_u32 v{vt[1]}, v{vt[0]}, 4, v{vt[1]}"); k(f"v_add_u32 v{BI + 5}, s{s_t1}, v{vt[1]}")
        for i in range(4): k(f"s_mov_b32 s{48 + i}, {i * 8 * 1280}")
    k("s_barrier")
    k.stamp(11)
    FB, FA = gemm(5, late, False)
    if "st4" in X: k.stamp(6)
    if "st45" in X: k.stamp(4)
    OSC = os.environ.get("OSC", " sc1")
    for c in range(4):
        for r in range(4*c, 4*c + 4):
            k(f"v_cvt_pk_bf16_f32 v{RES + r}, v{ACC + 2*r}, v{ACC + 2*r + 1}")
        k(f"v_permlane32_swap_b32 v{RES + 4*c}, v{RES + 4*c + 2}")
        k(f"v_permlane32_swap_b32 v{RES + 4*c + 1}, v{RES + 4*c + 3}")
        if "nootr" not in X:
            k(f"ds_write_b128 v{BI + c}, {vr(RES + 4*c, 4)}")
        else:
            k(f"buffer_store_dwordx4 {vr(RES + 4*c, 4)}, v{vO}, s[{sO}:{sO+3}], 0 offen offset:{32*c}{OSC}")
    if "nootr" not in X:
        for i in range(4): k(f"ds_read_b128 {vr(ACC + 4*i, 4)}, v{BI + 4} offset:{i * 1024}")
        for i in range(4):
            k(f"s_waitcnt lgkmcnt({3 - i})")
            k(f"buffer_store_dwordx4 {vr(ACC + 4*i, 4)}, v{BI + 5}, s[{sO}:{sO+3}], s{48 + i} offen{OSC}")
    if "g3" in X: gate(k, 70)
    k.dump(0, 14, s_wid)
    k("s_endpgm")
    k.label(k.L("idle5"))
    k("s_barrier")
    if "wbl2" in X:
        k(f"s_cmp_lg_u32 s{s_idx}, 0"); k("s_cbranch_scc1 L_exit")
        k("buffer_wbl2 sc1")
    k.label("L_exit")
    k("s_endpgm")
    emit_slow(k)

NAME = "sequential_preLN__mha_block__mixer_channel_mlp__prompt"
HEADER = open(f"cdna_kernels/{NAME}.s.ref").read().split("; Override")[0]

def build(path):
    k = K(NAME)
    phase1(k); phase2(k); phase345(k)
    lds = 163840 if int(os.environ.get('DEEP', '0')) else MRG + 8 * 3328
    t = HEADER
    if "aslist" in X:
        t += f"; @launch kernel={k.name}_kernel grid=(256,1,1) block=(512,1,1) lds={lds}\n"
    else:
        t += f"; @launch grid=(256,1,1) block=(512,1,1) lds={lds}\n"
    t += '.amdgcn_target "amdgcn-amd-amdhsa--gfx950"\n.text\n'
    t += kernel_text(k, 256)
    t += "L_code_end:\n"
    t += '.section .rodata,"a"\n'
    t += kernel_desc(k, 256, 96)
    open(path, "w").write(t)

if __name__ == "__main__":
    if len(sys.argv) > 2 and sys.argv[2] == "prof": K.prof = True
    build(sys.argv[1] if len(sys.argv) > 1 else f"cdna_kernels/{NAME}.s")
```

```python
import sys, math, struct, os
X = set(os.environ.get("EXP", "").split(","))
from asmlib import K, vr, sr, kernel_text, kernel_desc

S = 2048; D = 640; F = 1728; H = 32; DH = 20
QK_OFF = 0x0
V_OFF = 0x500000
QKV_END = 0x780000
O_OFF = 0x0
H_OFF = 0x280000
G_OFF = 0x780000
HS_OFF = 0x500000
C1_OFF = 0x1370000
ST_OFF = 0x1378000
FL_OFF = 0x1400000
FX_OFF = 0x1420000
TAG_OFF = 0x1428000
GD_OFF = 0x1428400
WS_END = 0x1428800
S_LOC = 95
LOCW = 131072 + 1024
S_TAG = 88; S_WID = 89
XR = 216; XRA = 215
MRG = 131072 + 2048
G_END = 0x1340000
CH = S * 16
EPS = 1e-5
GC0 = 2.0 * math.log2(math.e) * math.sqrt(2.0 / math.pi)
GS = (GC0 * 0.044715) ** (1.0 / 3.0)

def f32(x):
    return "0x%08x" % struct.unpack("<I", struct.pack("<f", x))[0]

def srd(k, d, lo, hi, size):
    k(f"s_mov_b32 s{d}, s{lo}")
    k(f"s_and_b32 s{d+1}, s{hi}, 0xffff")
    k(f"s_mov_b32 s{d+2}, {size:#x}")
    k(f"s_mov_b32 s{d+3}, 0x00020000")

def code_prefetch(k, first, sd, st, vaddr, vdst, v_lane, per=12):
    lab = k.L("pc%d" % k.uid); k.uid += 1
    k(f"s_getpc_b64 s[{sd}:{sd+1}]")
    k.label(lab)
    k(f"s_add_u32 s{sd}, s{sd}, {first}-{lab}")
    k(f"s_addc_u32 s{sd+1}, s{sd+1}, {'-1' if first == k.name + '_kernel' else '0'}")
    k(f"s_and_b32 s{sd+1}, s{sd+1}, 0xffff")
    k(f"s_mov_b32 s{sd+2}, L_code_end-{first}")
    k(f"s_mov_b32 s{sd+3}, 0x00020000")
    k(f"s_lshr_b32 s{st}, s2, 3"); k(f"s_mul_i32 s{st}, s{st}, {per * 128}")
    k(f"v_lshlrev_b32 v{vaddr}, 7, v{v_lane}")
    k(f"s_mov_b64 exec, {(1 << per) - 1:#x}")
    k(f"buffer_load_dword v{vdst}, v{vaddr}, s[{sd}:{sd+3}], s{st} offen")
    k("s_mov_b64 exec, -1")

def gate(k, us):
    lab = k.L("gate%d" % k.uid); k.uid += 1
    k("s_load_dwordx2 s[80:81], s[0:1], 80"); k("s_waitcnt lgkmcnt(0)")
    k(f"s_add_u32 s80, s80, {TAG_OFF + 4}"); k("s_addc_u32 s81, s81, 0")
    k("s_load_dword s82, s[80:81], 0"); k("s_waitcnt lgkmcnt(0)")
    k.label(lab)
    k("s_memrealtime s[84:85]"); k("s_waitcnt lgkmcnt(0)")
    k("s_sub_u32 s84, s84, s82")
    k(f"s_cmp_lt_u32 s84, {us * 100}"); k(f"s_cbranch_scc1 {lab}")

def rowstat_math(k, s_, q_, nm, rs, t, double):
    k(f"v_mul_f32 v{nm}, {f32(-1.0 / D)}, v{s_}")
    k(f"v_mul_f32 v{q_}, {f32(1.0 / D)}, v{q_}")
    k(f"v_fma_f32 v{q_}, -v{nm}, v{nm}, v{q_}")
    k(f"v_max_f32 v{q_}, 0, v{q_}")
    k(f"v_add_f32 v{t}, {f32(EPS)}, v{q_}")
    k(f"v_rsq_f32 v{rs}, v{t}")
    if double:
        k(f"v_mul_f32 v{t}, v{rs}, v{rs}")
        k(f"v_mul_f32 v{t}, v{t}, v{q_}")
        k(f"v_add_f32 v{t}, {f32(EPS)}, v{t}")
        k(f"v_rsq_f32 v{t}, v{t}")
        k(f"v_mul_f32 v{rs}, v{rs}, v{t}")


SLOW = []

def loc_vcc(k):
    if "noloc" in X: k(f"s_mov_b32 s{S_LOC}, 0")
    k(f"s_cmp_lg_u32 s{S_LOC}, 0"); k("s_cselect_b64 vcc, -1, 0")

def dstores(k, lines):
    n = len(SLOW)
    k(f"s_cbranch_vccz L_slow{n}")
    for l in lines: k(l)
    k.label(f"L_back{n}")
    SLOW.append([l + (" sc1" if l.startswith("buffer") else "") for l in lines])

def emit_slow(k):
    for n, lines in enumerate(SLOW):
        k.label(f"L_slow{n}")
        for l in lines: k(l)
        k(f"s_branch L_back{n}")

def publish(k, sW, ph, s_idx, s_t, v0_, v1_, local=False):
    k(f"s_lshl_b32 s{s_t}, s{s_idx}, 7"); k(f"s_add_u32 s{s_t}, s{s_t}, {FL_OFF + (ph - 1) * 32768}")
    k(f"v_mov_b32 v{v0_}, 0"); k(f"v_mov_b32 v{v1_}, s{S_TAG}")
    k("s_mov_b64 exec, 1")
    st = f"buffer_store_dword v{v1_}, v{v0_}, s[{sW}:{sW+3}], s{s_t} offen"
    if local:
        loc_vcc(k); dstores(k, [st])
    else:
        k(st + " sc1")
    k("s_mov_b64 exec, -1")

def poll(k, sW, vaddrs, vdsts, s_it, name, slp=0):
    if len(vaddrs) > 1 and "nopp" not in X:
        k(f"buffer_load_dword v{vdsts[1]}, v{vaddrs[1]}, s[{sW}:{sW+3}], 0 offen sc1")
    if "nopp" not in X:
        ND = int(os.environ.get("PPD", "0")); R = [248 + i for i in range(ND + 1)]
        gap = slp or int(os.environ.get("PPS", "1"))
        k(f"s_mov_b32 s{s_it}, 0")
        k("s_mov_b64 s[90:91], -1")
        for i in range(ND):
            k(f"buffer_load_dword v{R[i]}, v{vaddrs[0]}, s[{sW}:{sW+3}], 0 offen sc1")
            k(f"s_sleep {gap}")
        k.label(k.L("poll" + name))
        for i in range(ND + 1):
            k(f"buffer_load_dword v{R[(i + ND) % (ND + 1)]}, v{vaddrs[0]}, s[{sW}:{sW+3}], 0 offen sc1")
            k(f"s_waitcnt vmcnt({ND})")
            k(f"v_cmp_ne_u32 vcc, s{S_TAG}, v{R[i]}")
            k("s_and_b64 exec, exec, vcc")
            k(f"s_cbranch_execz {k.L('go' + name)}")
            k(f"s_sleep {gap}")
        k(f"s_add_u32 s{s_it}, s{s_it}, 1")
        k(f"s_cmp_lt_u32 s{s_it}, 0x4000")
        k(f"s_cbranch_scc1 {k.L('poll' + name)}")
        k.label(k.L("go" + name))
        k("s_mov_b64 exec, -1")
        if len(vaddrs) == 1: return
        vaddrs = vaddrs[1:]; vdsts = vdsts[1:]; name += "b"
        k(f"v_cmp_ne_u32 vcc, s{S_TAG}, v{vdsts[0]}")
        k(f"s_cbranch_vccz {k.L('go' + name)}")
    k(f"s_mov_b32 s{s_it}, 0")
    k.label(k.L("poll" + name))
    for va, vd in zip(vaddrs, vdsts):
        k(f"buffer_load_dword v{vd}, v{va}, s[{sW}:{sW+3}], 0 offen sc1")
    k(f"s_add_u32 s{s_it}, s{s_it}, 1")
    k("s_waitcnt vmcnt(0)")
    k(f"v_cmp_ne_u32 vcc, s{S_TAG}, v{vdsts[0]}")
    for vd in vdsts[1:]:
        k(f"v_cmp_ne_u32 s[90:91], s{S_TAG}, v{vd}")
        k("s_or_b64 vcc, vcc, s[90:91]")
    k(f"s_cbranch_vccz {k.L('go' + name)}")
    if slp: k(f"s_sleep {slp}")
    k(f"s_cmp_lt_u32 s{s_it}, 0x8000")
    k(f"s_cbranch_scc1 {k.L('poll' + name)}")
    k.label(k.L("go" + name))

def phase1(k):
    k.pref = "p1"
    kind = "qkv"; qkv = True
    NB = 1920 if qkv else F
    BROW = NB * 2
    DEEP = int(os.environ.get("DEEP", "0"))
    NS = 5 if DEEP else 4; SLOT = 32768; NST = 10
    SB = 0 if DEEP else NS * SLOT
    SL = SB + 2048
    sA, sB, sW, sBi = 4, 8, 12, 16
    s_mb, s_nb, s_w = 20, 21, 22
    s_wm, s_wn = 23, 24
    s_offA, s_offB, s_m0, s_it, s_delta, s_t0, s_t1, s_slot = 25, 26, 27, 28, 29, 30, 31, 32
    s_ones = 33
    s_wid = S_WID
    v_lane, v_t, v_h = 1, 2, 3
    vAd = [4, 5, 6, 7]; vBd = [8, 9, 10, 11]
    vBr = [12, 13]
    v_b1 = 17
    vt = [18, 19, 20, 21, 22, 23]
    vAr = [24, 25, 26, 27]
    FA = [[32 + 16 * i, 36 + 16 * i] for i in range(4)]
    FB = [[40 + 16 * i, 44 + 16 * i] for i in range(4)]
    ACC = 96
    def acc(mt, nt): return ACC + (mt * 2 + nt) * 16
    EP = 160
    kidx = 0 if qkv else 3

    if "early" in X: k("s_memrealtime s[86:87]")
    if "perm" in X:
        k("s_lshr_b32 s3, s2, 3"); k("s_and_b32 s3, s3, 7"); k("s_xor_b32 s2, s2, s3")
    k.stamp(0); k.stamp(1, True)
    k(f"s_cmp_ge_u32 s2, 256"); k(f"s_cbranch_scc1 L_exit")
    if qkv:
        k("s_load_dwordx4 s[36:39], s[0:1], 0")
        k("s_load_dwordx4 s[40:43], s[0:1], 72")
        WSL = 42
    else:
        k("s_load_dwordx2 s[36:37], s[0:1], 32")
        k("s_load_dwordx2 s[40:41], s[0:1], 80")
        WSL = 40
    k(f"s_and_b32 s{s_t0}, s2, 7"); k(f"s_lshr_b32 s{s_t1}, s2, 3")
    if qkv:
        k(f"s_lshr_b32 s{s_mb}, s{s_t0}, 1"); k(f"s_lshl_b32 s{s_mb}, s{s_mb}, 2")
        k(f"s_and_b32 s{s_nb}, s{s_t1}, 3"); k(f"s_add_u32 s{s_mb}, s{s_mb}, s{s_nb}")
        k(f"s_and_b32 s{s_nb}, s{s_t0}, 1"); k(f"s_lshl_b32 s{s_nb}, s{s_nb}, 3")
        k(f"s_lshr_b32 s{s_t1}, s{s_t1}, 2"); k(f"s_add_u32 s{s_nb}, s{s_nb}, s{s_t1}")
    else:
        k(f"s_lshl_b32 s{s_mb}, s{s_t0}, 1"); k(f"s_and_b32 s{s_nb}, s{s_t1}, 1"); k(f"s_add_u32 s{s_mb}, s{s_mb}, s{s_nb}")
        k(f"s_lshr_b32 s{s_nb}, s{s_t1}, 1")
    k(f"v_lshrrev_b32 v{vt[0]}, 6, v0")
    k(f"v_and_b32 v{v_lane}, 63, v0")
    k(f"v_readfirstlane_b32 s{s_wid}, v{vt[0]}")
    k(f"v_and_b32 v{v_t}, 31, v0")
    k(f"v_bfe_u32 v{v_h}, v0, 5, 1")
    k(f"s_and_b32 s{s_w}, s{s_wid}, 3")
    k(f"s_cmp_lt_u32 s{s_wid}, 4")
    k(f"s_cbranch_scc1 {k.L('compute')}")
    if qkv:
        k(f"s_cmp_ge_u32 s{s_nb}, 15"); k(f"s_cbranch_scc1 {k.L('auxl')}")
        k(f"v_lshrrev_b32 v{vt[0]}, 3, v{v_lane}")
        k(f"v_and_b32 v{vt[1]}, 7, v{v_lane}")
        k(f"v_lshrrev_b32 v{vt[2]}, 1, v{vt[0]}")
        k(f"v_xor_b32 v{vt[2]}, v{vt[2]}, v{vt[1]}")
        k(f"v_xor_b32 v{vt[3]}, 4, v{vt[2]}")
        k(f"s_lshl_b32 s{s_t0}, s{s_mb}, 7"); k(f"s_lshl_b32 s{s_t1}, s{s_w}, 5"); k(f"s_add_u32 s{s_t0}, s{s_t0}, s{s_t1}")
        k(f"v_add_u32 v{vt[0]}, s{s_t0}, v{vt[0]}")
        k(f"v_mul_u32_u24 v{vt[0]}, 1280, v{vt[0]}")
        for ii in range(4):
            k(f"v_lshl_add_u32 v{vAd[ii]}, v{vt[2 + (ii & 1)]}, 4, v{vt[0]}")
            if ii: k(f"v_add_u32 v{vAd[ii]}, {ii * (8 * 1280 - 1024)}, v{vAd[ii]}")
        stepA = 128
    else:
        k(f"s_lshl_b32 s{s_t0}, s{s_mb}, 11")
        k(f"s_mul_i32 s{s_t1}, s{s_w}, {2 * CH}")
        k(f"s_add_u32 s{s_t0}, s{s_t0}, s{s_t1}")
        k(f"s_add_u32 s{s_t0}, s{s_t0}, {H_OFF}")
        k(f"v_lshl_add_u32 v{vAd[0]}, v{v_lane}, 4, s{s_t0}")
        k(f"v_mov_b32 v{vAd[1]}, v{vAd[0]}")
        k(f"v_add_u32 v{vAd[2]}, {CH - 2048}, v{vAd[0]}")
        k(f"v_add_u32 v{vAd[3]}, {CH - 2048}, v{vAd[0]}")
        stepA = 8 * CH
    k(f"v_lshrrev_b32 v{vt[0]}, 4, v{v_lane}")
    k(f"v_and_b32 v{vt[1]}, 15, v{v_lane}")
    k(f"v_lshlrev_b32 v{vt[2]}, 2, v{vt[0]}")
    k(f"v_xor_b32 v{vt[1]}, v{vt[1]}, v{vt[2]}")
    k(f"s_lshl_b32 s{s_t0}, s{s_w}, 4")
    k(f"v_add_u32 v{vt[0]}, s{s_t0}, v{vt[0]}")
    k(f"v_mul_u32_u24 v{vt[0]}, {BROW}, v{vt[0]}")
    k(f"v_lshl_add_u32 v{vt[0]}, v{vt[1]}, 4, v{vt[0]}")
    k(f"s_lshl_b32 s{s_t0}, s{s_nb}, 8")
    k(f"v_add_u32 v{vBd[0]}, s{s_t0}, v{vt[0]}")
    for ii in range(1, 4):
        k(f"v_add_u32 v{vBd[ii]}, {ii * (4 * BROW - 1024)}, v{vBd[0]}")
    stepB = 64 * BROW
    ROT = os.environ.get("ROT", "2x1")
    if ROT:
        ncls, stp = (int(v) for v in ROT.split("x"))
        k(f"s_add_u32 s{s_slot}, s{s_mb}, s{s_nb}"); k(f"s_and_b32 s{s_slot}, s{s_slot}, {ncls - 1}"); k(f"s_mul_i32 s{s_slot}, s{s_slot}, {stp}")
        k(f"s_mul_i32 s{s_offA}, s{s_slot}, {stepA}"); k(f"s_mul_i32 s{s_offB}, s{s_slot}, {stepB}")
    else:
        k(f"s_mov_b32 s{s_offA}, 0"); k(f"s_mov_b32 s{s_offB}, 0")
    k(f"s_lshl_b32 s{s_m0}, s{s_w}, 12")
    k(f"s_mov_b32 s{s_it}, 0")
    k("s_waitcnt lgkmcnt(0)")
    if qkv:
        srd(k, sA, 36, 37, S * D * 2); srd(k, sB, 38, 39, D * NB * 2)
    else:
        srd(k, sB, 36, 37, D * NB * 2); srd(k, sW, WSL, WSL + 1, WS_END)
        sA = sW
    def dma_stage():
        r = []
        r.append(f"s_mov_b32 m0, s{s_m0}")
        for ii in range(4):
            r.append(f"buffer_load_dwordx4 v{vAd[ii]}, s[{sA}:{sA+3}], s{s_offA} offen offset:{ii*1024} lds")
        r.append(f"s_add_u32 m0, s{s_m0}, 16384")
        for ii in range(4):
            r.append(f"buffer_load_dwordx4 v{vBd[ii]}, s[{sB}:{sB+3}], s{s_offB} offen offset:{ii*1024} lds")
        r.append(f"s_add_u32 s{s_offA}, s{s_offA}, {stepA}")
        r.append(f"s_add_u32 s{s_offB}, s{s_offB}, {stepB}")
        if ROT:
            r.append(f"s_cmp_lg_u32 s{s_offA}, {10 * stepA}")
            r.append(f"s_cselect_b32 s{s_offA}, s{s_offA}, 0")
            r.append(f"s_cselect_b32 s{s_offB}, s{s_offB}, 0")
        r.append(f"s_add_u32 s{s_m0}, s{s_m0}, {SLOT}")
        r.append(f"s_and_b32 s{s_m0}, s{s_m0}, {NS * SLOT - 1}")
        return r
    def lstep(n=8, dma=True):
        if dma:
            for l in dma_stage(): k(l)
        k(f"s_waitcnt vmcnt({n})")
        k("s_barrier")
    def lloop(tag, n):
        k(f"s_mov_b32 s{s_it}, 0")
        k.label(k.L("lloop" + tag))
        lstep()
        k(f"s_add_u32 s{s_it}, s{s_it}, 1")
        k(f"s_cmp_lt_u32 s{s_it}, {n}")
        k(f"s_cbranch_scc1 {k.L('lloop' + tag)}")
    XS = 32
    v_tag = 16
    RG_OFF = ST_OFF; CG_OFF = ST_OFF + 32768
    def slice_addr_rows():
        k(f"v_lshrrev_b32 v{vt[4]}, 4, v{v_lane}")
        k(f"v_and_b32 v{vt[5]}, 15, v{v_lane}")
        k(f"v_mul_u32_u24 v{vt[4]}, 1280, v{vt[4]}")
        k(f"v_lshl_add_u32 v{vt[4]}, v{vt[5]}, 4, v{vt[4]}")
        k(f"s_lshl_b32 s{s_t0}, s{s_mb}, 5"); k(f"s_lshl_b32 s{s_t1}, s{s_nb}, 1"); k(f"s_add_u32 s{s_t0}, s{s_t0}, s{s_t1}")
        k(f"s_add_u32 s{s_delta}, s{s_t0}, s{s_w}"); k(f"s_mul_i32 s{s_t0}, s{s_delta}, {4 * 1280}")
    def slice_load_rows():
        for i in range(5):
            k(f"buffer_load_dwordx4 {vr(XS + 4*i, 4)}, v{vt[4]}, s[{sA}:{sA+3}], s{s_t0} offen offset:{256 * i}")
    def tag_load():
        k(f"v_mov_b32 v15, 0")
        k(f"buffer_load_dword v{v_tag}, v15, s[{sBi}:{sBi+3}], 0 offen sc1")
    def tag_wait(tag):
        k(f"s_mov_b32 s{s_it}, 0")
        k.label(k.L("tw" + tag))
        k(f"v_cmp_eq_u32 vcc, 0, v{v_tag}")
        k(f"s_cbranch_vccz {k.L('tr' + tag)}")
        k("s_sleep 2")
        k(f"buffer_load_dword v{v_tag}, v15, s[{sBi}:{sBi+3}], 0 offen sc1")
        k(f"s_add_u32 s{s_it}, s{s_it}, 1")
        k("s_waitcnt vmcnt(0)")
        k(f"s_cmp_lt_u32 s{s_it}, 0x4000")
        k(f"s_cbranch_scc1 {k.L('tw' + tag)}")
        k.label(k.L("tr" + tag))
    def slice_rows(part):
        if part == 0:
            k("v_mov_b32 v56, 0"); k("v_mov_b32 v57, 0"); k("v_mov_b32 v58, 0"); k("v_mov_b32 v59, 0")
        for r in (range(13) if part == 0 else range(13, 20)):
            k(f"v_lshlrev_b32 v52, 16, v{XS + r}")
            k(f"v_and_b32 v53, 0xffff0000, v{XS + r}")
            k("v_add_f32 v56, v56, v52"); k("v_fmac_f32 v57, v52, v52")
            k("v_add_f32 v58, v58, v53"); k("v_fmac_f32 v59, v53, v53")
        if part == 0: return
        k("v_add_f32 v56, v56, v58"); k("v_add_f32 v57, v57, v59")
        for sh in (8, 4, 2, 1):
            k(f"v_add_f32_dpp v56, v56, v56 row_ror:{sh} row_mask:0xf bank_mask:0xf")
            k(f"v_add_f32_dpp v57, v57, v57 row_ror:{sh} row_mask:0xf bank_mask:0xf")
        rowstat_math(k, 56, 57, 60, 62, 52, False)
        k(f"v_mov_b32 v61, v{v_tag}"); k(f"v_mov_b32 v63, v{v_tag}")
        k(f"s_lshl_b32 s{s_t0}, s{s_delta}, 6"); k(f"s_add_u32 s{s_t0}, s{s_t0}, {RG_OFF}")
        k("s_mov_b32 exec_lo, 0x00010001"); k("s_mov_b32 exec_hi, 0x00010001")
        k(f"buffer_store_dwordx4 v[60:63], v{v_lane}, s[{sW}:{sW+3}], s{s_t0} offen sc1")
        k("s_mov_b64 exec, -1")
    def slice_cols(part):
        if part == 0:
            for r in range(4):
                k(f"v_lshlrev_b32 v{56 + 2*r}, 16, v{XS + r}"); k(f"v_and_b32 v{57 + 2*r}, 0xffff0000, v{XS + r}")
            for i in range(1, 5):
                for r in range(4):
                    k(f"v_lshlrev_b32 v52, 16, v{XS + 4*i + r}"); k(f"v_and_b32 v53, 0xffff0000, v{XS + 4*i + r}")
                    k(f"v_add_f32 v{56 + 2*r}, v{56 + 2*r}, v52"); k(f"v_add_f32 v{57 + 2*r}, v{57 + 2*r}, v53")
            return
        for r in range(4): k(f"v_permlane32_swap_b32 v{56 + r}, v{60 + r}")
        for r in range(4): k(f"v_add_f32 v{56 + r}, v{56 + r}, v{60 + r}")
        for r in range(2): k(f"v_permlane16_swap_b32 v{56 + r}, v{58 + r}")
        k("v_add_f32 v56, v56, v58"); k("v_add_f32 v58, v57, v59")
        k(f"v_mov_b32 v57, v{v_tag}"); k(f"v_mov_b32 v59, v{v_tag}")
        k(f"v_and_b32 v{vt[4]}, 48, v{v_lane}")
        k(f"v_lshl_add_u32 v{vt[4]}, v{vt[5]}, 6, v{vt[4]}")
        k(f"s_mul_i32 s{s_t0}, s{s_delta}, 15360"); k(f"s_lshl_b32 s{s_t1}, s{s_nb}, 10"); k(f"s_add_u32 s{s_t0}, s{s_t0}, s{s_t1}")
        k(f"s_add_u32 s{s_t0}, s{s_t0}, {CG_OFF}")
        k(f"buffer_store_dwordx4 v[56:59], v{vt[4]}, s[{sW}:{sW+3}], s{s_t0} offen sc1")
    def slice_part(part):
        k(f"s_cmp_ge_u32 s{s_w}, 2"); k(f"s_cbranch_scc1 {k.L('slc%d' % part)}")
        slice_rows(part)
        k(f"s_branch {k.L('sld%d' % part)}")
        k.label(k.L("slc%d" % part))
        slice_cols(part)
        k.label(k.L("sld%d" % part))
    q = []; nh = [0]
    def half():
        st, hb = divmod(nh[0], 2); nh[0] += 1
        k(f"s_add_u32 m0, s{s_m0}, {(st % NS) * SLOT + hb * 16384}")
        vD_, sD, so, step = (vBd, sB, s_offB, stepB) if hb else (vAd, sA, s_offA, stepA)
        for ii in range(4):
            k(f"buffer_load_dwordx4 v{vD_[ii]}, s[{sD}:{sD+3}], s{so} offen offset:{ii*1024} lds"); q.append(("st", st))
        k(f"s_add_u32 s{so}, s{so}, {step}")
        if ROT:
            k(f"s_cmp_lg_u32 s{so}, {10 * step}"); k(f"s_cselect_b32 s{so}, s{so}, 0")
    def upto(n):
        while nh[0] < min(n, 20): half()
    def need(*items):
        last = max((len(q) - 1 - q[::-1].index(it) for it in items if it in q), default=-1)
        if last >= 0:
            k(f"s_waitcnt vmcnt({len(q) - 1 - last})"); del q[:last + 1]
    def bar(j, *more):
        need(("st", j), *more); k("s_barrier")
    upto(4)
    if qkv:
        k(f"s_cmp_ge_u32 s{s_w}, 2"); k(f"s_cbranch_scc1 {k.L('slc')}")
        slice_addr_rows(); slice_load_rows()
        k(f"s_branch {k.L('sll')}")
        k.label(k.L("slc"))
        k(f"v_lshrrev_b32 v{vt[4]}, 4, v{v_lane}")
        k(f"v_and_b32 v{vt[5]}, 15, v{v_lane}")
        k(f"v_mul_u32_u24 v{vt[4]}, {BROW}, v{vt[4]}")
        k(f"v_lshl_add_u32 v{vt[4]}, v{vt[5]}, 4, v{vt[4]}")
        k(f"s_lshl_b32 s{s_delta}, s{s_mb}, 1"); k(f"s_add_u32 s{s_delta}, s{s_delta}, s{s_w}"); k(f"s_sub_u32 s{s_delta}, s{s_delta}, 2")
        k(f"s_mul_i32 s{s_t0}, s{s_delta}, {20 * BROW}"); k(f"s_lshl_b32 s{s_t1}, s{s_nb}, 8"); k(f"s_add_u32 s{s_t0}, s{s_t0}, s{s_t1}")
        for i in range(5):
            k(f"buffer_load_dwordx4 {vr(XS + 4*i, 4)}, v{vt[4]}, s[{sB}:{sB+3}], s{s_t0} offen")
            k(f"s_add_u32 s{s_t0}, s{s_t0}, {4 * BROW}")
        k.label(k.L("sll"))
        q += [("sl", 0)] * 5
        srd(k, sW, WSL, WSL + 1, WS_END); srd(k, sBi, 40, 41, 256)
        bar(0)
        tag_load(); q.append(("tag", 0))
        upto(6 + DEEP); bar(1)
        upto(8 + DEEP); bar(2)
        upto(10 + DEEP)
        slice_part(0)
        bar(3)
        upto(12 + DEEP)
        tag_wait("a")
        slice_part(1); q.append(("pub", 0))
        bar(4)
        for j in range(5, 8):
            upto(2 * j + 4 + DEEP); bar(j)
        upto(20)
        k(f"s_lshl_b32 s{s_t0}, s{s_mb}, 11"); k(f"s_lshl_b32 s{s_t1}, s{s_w}, 9"); k(f"s_add_u32 s{s_t0}, s{s_t0}, s{s_t1}")
        k(f"s_add_u32 s{s_offA}, s{s_t0}, {RG_OFF}")
        k(f"v_lshlrev_b32 v{vt[0]}, 4, v{v_t}")
        k(f"v_lshrrev_b32 v{vt[1]}, 4, v{v_lane}")
        k(f"v_mul_u32_u24 v{vt[1]}, {8 * 15360}, v{vt[1]}")
        k(f"v_lshl_add_u32 v{vt[1]}, v{vt[5]}, 4, v{vt[1]}")
        k(f"s_lshl_b32 s{s_t0}, s{s_nb}, 10"); k(f"s_lshl_b32 s{s_t1}, s{s_w}, 8"); k(f"s_add_u32 s{s_t0}, s{s_t0}, s{s_t1}")
        k(f"s_add_u32 s{s_offB}, s{s_t0}, {CG_OFF}")
        def gather():
            k(f"buffer_load_dwordx4 v[64:67], v{vt[0]}, s[{sW}:{sW+3}], s{s_offA} offen sc1")
            k(f"s_mov_b32 s{s_t0}, s{s_offB}")
            for i in range(8):
                k(f"buffer_load_dwordx4 {vr(32 + 4*i, 4)}, v{vt[1]}, s[{sW}:{sW+3}], s{s_t0} offen sc1")
                k(f"s_add_u32 s{s_t0}, s{s_t0}, 15360")
        gather(); q += [("ga", 0)] * 9
        bar(8); bar(9)
        k(f"s_mov_b32 s{s_it}, 0")
        k.label(k.L("poll"))
        k("s_waitcnt vmcnt(0)")
        k(f"v_and_b32 v68, v65, v67"); k(f"v_or_b32 v69, v65, v67")
        for i in range(16):
            k(f"v_and_b32 v68, v68, v{33 + 2*i}"); k(f"v_or_b32 v69, v69, v{33 + 2*i}")
        k(f"v_xor_b32 v68, v68, v{v_tag}"); k(f"v_xor_b32 v69, v69, v{v_tag}"); k("v_or_b32 v68, v68, v69")
        k(f"v_cmp_ne_u32 vcc, 0, v68")
        k(f"s_cbranch_vccz {k.L('ready')}")
        k("s_sleep 2")
        gather()
        k(f"s_add_u32 s{s_it}, s{s_it}, 1")
        k(f"s_cmp_lt_u32 s{s_it}, 0x2000")
        k(f"s_cbranch_scc1 {k.L('poll')}")
        k("s_waitcnt vmcnt(0)")
        k.label(k.L("ready"))
        k("v_add_f32 v33, v34, v38")
        for i in range(1, 8):
            k(f"v_add_f32 v32, v32, v{32 + 4*i}")
            if i > 1: k(f"v_add_f32 v33, v33, v{34 + 4*i}")
        k(f"s_cmp_lt_u32 s{s_nb}, 5")
        k(f"s_cselect_b32 s{s_t0}, {f32(math.log2(math.e) / math.sqrt(DH))}, 1.0")
        k(f"v_mul_f32 v65, s{s_t0}, v66")
        k(f"s_lshl_b32 s{s_t1}, s{s_w}, 7"); k(f"s_add_u32 s{s_t1}, s{s_t1}, {SB}")
        k(f"v_lshl_add_u32 v{vt[0]}, v{v_t}, 2, s{s_t1}")
        k(f"ds_write2_b32 v{vt[0]}, v64, v65 offset0:0 offset1:128")
        for sw in ("v_permlane32_swap_b32", "v_permlane16_swap_b32"):
            k("v_mov_b32 v34, v32"); k("v_mov_b32 v35, v33")
            k(f"{sw} v32, v34"); k(f"{sw} v33, v35")
            k("v_add_f32 v32, v32, v34"); k("v_add_f32 v33, v33, v35")
        k(f"v_lshl_add_u32 v{vt[1]}, v{vt[5]}, 3, s{s_t1}")
        k(f"ds_write_b64 v{vt[1]}, v[32:33] offset:1024")
        k("s_waitcnt lgkmcnt(0)")
        k("s_barrier")
    else:
        lloop("", 8)
        for l in dma_stage(): k(l)
        PS = 32
        k(f"s_lshl_b32 s{s_t0}, s{s_mb}, 7"); k(f"s_lshl_b32 s{s_t1}, s{s_w}, 5"); k(f"s_add_u32 s{s_t0}, s{s_t0}, s{s_t1}")
        k(f"v_add_lshl_u32 v{vt[2]}, v{v_t}, s{s_t0}, 3")
        k(f"v_mul_u32_u24 v{vt[1]}, {5 * 16384}, v{v_h}")
        k(f"v_add_u32 v{vt[2]}, v{vt[2]}, v{vt[1]}")
        for i in range(5):
            k(f"s_mov_b32 s{s_t0}, {HS_OFF + i * 16384}")
            k(f"buffer_load_dwordx2 {vr(PS + 2*i, 2)}, v{vt[2]}, s[{sW}:{sW+3}], s{s_t0} offen")
        k(f"s_lshl_b32 s{s_t0}, s{s_nb}, 10"); k(f"s_lshl_b32 s{s_t1}, s{s_w}, 8"); k(f"s_add_u32 s{s_t0}, s{s_t0}, s{s_t1}")
        k(f"s_add_u32 s{s_t0}, s{s_t0}, {C1_OFF}")
        k(f"s_add_u32 m0, s{s_t1}, {SB + 1024}")
        k(f"v_lshlrev_b32 v{vt[3]}, 2, v{v_lane}")
        k(f"buffer_load_dword v{vt[3]}, s[{sW}:{sW+3}], s{s_t0} offen lds")
        lstep(14, False)
        lstep(6, False)
        k("s_waitcnt vmcnt(0)")
        for i in range(1, 5):
            k(f"v_add_f32 v{PS}, v{PS}, v{PS + 2*i}"); k(f"v_add_f32 v{PS+1}, v{PS+1}, v{PS + 2*i + 1}")
        k(f"v_mov_b32 v{PS+2}, v{PS}"); k(f"v_mov_b32 v{PS+3}, v{PS+1}")
        k(f"v_permlane32_swap_b32 v{PS}, v{PS+2}"); k(f"v_permlane32_swap_b32 v{PS+1}, v{PS+3}")
        k(f"v_add_f32 v{PS}, v{PS}, v{PS+2}"); k(f"v_add_f32 v{PS+1}, v{PS+1}, v{PS+3}")
        rowstat_math(k, PS, PS + 1, 44, 45, PS + 2, True)
        k(f"s_lshl_b32 s{s_t1}, s{s_w}, 7"); k(f"s_add_u32 s{s_t1}, s{s_t1}, {SB}")
        k(f"v_lshl_add_u32 v{vt[3]}, v{v_t}, 2, s{s_t1}")
        k(f"ds_write_b32 v{vt[3]}, v44")
        k(f"ds_write_b32 v{vt[3]}, v45 offset:512")
        k("s_waitcnt lgkmcnt(0)")
        k("s_barrier")
    if not qkv: k.stamp(3); k.stamp(4); k.stamp(5); k.stamp(6)
    k(f"s_branch {k.L('end')}")
    k.label(k.L("compute"))
    if qkv:
        k(f"s_or_b32 s{s_t0}, s2, s{s_w}")
        k(f"s_cbranch_scc1 {k.L('notag')}")
        k("s_memrealtime s[44:45]")
        k("s_waitcnt lgkmcnt(0)")
        srd(k, sBi, 40, 41, 256)
        if "gate" in X: k(f"v_mov_b32 v{vt[2]}, s{86 if 'early' in X else 44}")
        k("s_mul_i32 s44, s44, 0x9e3779b1"); k("s_or_b32 s44, s44, 1")
        k(f"v_mov_b32 v{vt[0]}, 0"); k(f"v_mov_b32 v{vt[1]}, s44")
        k("s_mov_b64 exec, 1")
        k(f"buffer_store_dword v{vt[1]}, v{vt[0]}, s[{sBi}:{sBi+3}], 0 offen sc1")
        srd(k, sW, WSL, WSL + 1, WS_END)
        k(f"s_mov_b32 s{s_t0}, {TAG_OFF}")
        k(f"buffer_store_dword v{vt[1]}, v{vt[0]}, s[{sW}:{sW+3}], s{s_t0} offen sc1")
        if "gate" in X: k(f"buffer_store_dword v{vt[2]}, v{vt[0]}, s[{sW}:{sW+3}], s{s_t0} offen offset:4 sc1")
        k("s_mov_b64 exec, -1")
        k.label(k.L("notag"))
        if "nocpf" not in X:
            k(f"s_cmp_lg_u32 s{s_w}, 1"); k(f"s_cbranch_scc1 {k.L('nocpf')}")
            code_prefetch(k, k.name + "_kernel", sB, s_t0, vt[0], 14, v_lane)
            k.label(k.L("nocpf"))
        k(f"s_cmp_ge_u32 s{s_nb}, 15"); k(f"s_cbranch_scc1 {k.L('aux')}")
    k(f"s_lshr_b32 s{s_wm}, s{s_w}, 1"); k(f"s_and_b32 s{s_wn}, s{s_w}, 1")
    k(f"s_mov_b32 s34, {SLOT}")
    if qkv:
        k(f"v_bfe_u32 v{vt[0]}, v{v_t}, 1, 3")
        k(f"v_xor_b32 v{vt[0]}, v{vt[0]}, v{v_h}")
        k(f"s_lshl_b32 s{s_t0}, s{s_wm}, 13")
        k(f"v_lshl_add_u32 v{vt[1]}, v{v_t}, 7, s{s_t0}")
        for ks in range(4):
            k(f"v_xor_b32 v{vt[2]}, {2*ks}, v{vt[0]}")
            k(f"v_lshl_add_u32 v{vAr[ks]}, v{vt[2]}, 4, v{vt[1]}")
        def a_read(dst, ks, mt): return f"ds_read_b128 {vr(dst,4)}, v{vAr[ks]} offset:{mt*4096}"
        def a_upd(ks): return [vAr[ks]]
    else:
        k(f"s_lshl_b32 s{s_t0}, s{s_wm}, 10")
        k(f"v_lshl_add_u32 v{vt[0]}, v{v_t}, 4, s{s_t0}")
        k(f"v_lshl_add_u32 v{vAr[0]}, v{v_h}, 11, v{vt[0]}")
        def a_read(dst, ks, mt): return f"ds_read_b128 {vr(dst,4)}, v{vAr[0]} offset:{ks*4096 + mt*512}"
        def a_upd(ks): return [vAr[0]] if ks == 0 else []
    k(f"v_bfe_u32 v{vt[0]}, v{v_lane}, 2, 2")
    k(f"v_lshl_add_u32 v{vt[1]}, v{v_h}, 3, v{vt[0]}")
    k(f"v_lshlrev_b32 v{vt[1]}, 8, v{vt[1]}")
    k(f"v_bfe_u32 v{vt[2]}, v{v_lane}, 4, 1")
    k(f"v_lshl_add_u32 v{vt[1]}, v{vt[2]}, 5, v{vt[1]}")
    k(f"v_and_b32 v{vt[2]}, 3, v{v_lane}")
    k(f"v_lshl_add_u32 v{vt[1]}, v{vt[2]}, 3, v{vt[1]}")
    k(f"v_add_u32 v{vt[1]}, 16384, v{vt[1]}")
    k(f"s_lshl_b32 s{s_t0}, s{s_wn}, 1")
    k(f"v_xor_b32 v{vt[2]}, s{s_t0}, v{vt[0]}")
    k(f"v_lshl_add_u32 v{vBr[0]}, v{vt[2]}, 6, v{vt[1]}")
    k(f"v_xor_b32 v{vBr[1]}, 64, v{vBr[0]}")
    def b_read(dst, ks, nt, e): return f"ds_read_b64_tr_b16 {vr(dst + 2*e, 2)}, v{vBr[nt]} offset:{ks*4096 + e*1024}"
    for r in range(64): k(f"v_mov_b32 v{ACC + r}, 0")
    k(f"s_mov_b32 s{s_it}, 0"); k(f"s_mov_b32 s{s_slot}, 0")
    k("s_waitcnt lgkmcnt(0)")
    srd(k, sW, WSL, WSL + 1, WS_END)

    def reads(ks):
        return [a_read(FA[ks][0], ks, 0), b_read(FB[ks][0], ks, 0, 0), b_read(FB[ks][0], ks, 0, 1),
                b_read(FB[ks][1], ks, 1, 0), b_read(FB[ks][1], ks, 1, 1), a_read(FA[ks][1], ks, 1)]
    k("s_waitcnt lgkmcnt(0)")
    k("s_barrier")
    for l in reads(0) + reads(1): k(l)

    def mainloop(tag, vorient):
        k.label(k.L("loop" + tag))
        for ks in range(4):
            mf = []
            for mt in range(2):
                for nt in range(2):
                    a, b = FA[ks][mt], FB[ks][nt]
                    s0, s1 = (a, b) if vorient else (b, a)
                    mf.append(f"v_mfma_f32_32x32x16_bf16 {vr(acc(mt,nt),16)}, {vr(s0,4)}, {vr(s1,4)}, {vr(acc(mt,nt),16)}")
            pre = []
            if ks == 2:
                k("s_barrier")
                if NS == 4: pre += [f"s_add_u32 s{s_slot}, s{s_slot}, 1", f"s_and_b32 s{s_slot}, s{s_slot}, {NS - 1}"]
                else: pre += [f"s_cmp_lg_u32 s{s_it}, 4"]
                pre += [
                        f"s_cselect_b32 s{s_delta}, s34, {(-(NS - 1) * SLOT) & 0xffffffff:#x}"]
                pre += [f"v_add_u32 v{a}, s{s_delta}, v{a}" for a in vBr]
            nk = (ks + 2) % 4
            if ks >= 2:
                pre += [f"v_add_u32 v{a}, s{s_delta}, v{a}" for a in a_upd(nk)]
            post = []
            if ks == 3:
                post = [f"v_add_u32 v{a}, s{s_delta}, v{a}" for a in a_upd(2) + a_upd(3)]
                post += [f"s_add_u32 s{s_it}, s{s_it}, 1", f"s_cmp_lt_u32 s{s_it}, {NST}"]
            rd = reads(nk)
            k("s_waitcnt lgkmcnt(6)")
            seq = [mf[0]] + pre + rd[0:2] + [mf[1]] + rd[2:4] + [mf[2]] + rd[4:6] + post + [mf[3]]
            for l in seq: k(l)
        k(f"s_cbranch_scc1 {k.L('loop' + tag)}")
        if "st1" in X: k.stamp(0, True)

    def epi_nm():
        MR = [28, 30]
        CS = EP; B1 = EP + 32
        k(f"s_lshl_b32 s{s_t0}, s{s_wm}, 8"); k(f"s_add_u32 s{s_t0}, s{s_t0}, {SB}")
        k(f"v_lshl_add_u32 v{vt[4]}, v{v_t}, 2, s{s_t0}")
        for mt in range(2):
            k(f"ds_read2_b32 {vr(MR[mt],2)}, v{vt[4]} offset0:{mt*32} offset1:{128 + mt*32}")
        k(f"s_lshl_b32 s{s_t0}, s{s_wn}, 8"); k(f"s_add_u32 s{s_t0}, s{s_t0}, {SB}")
        k(f"v_lshl_add_u32 v{vt[0]}, v{v_h}, 4, s{s_t0}")
        for nt in range(2):
            for rq in range(4):
                k(f"ds_read_b128 {vr(CS + nt*16 + rq*4, 4)}, v{vt[0]} offset:{1024 + nt*128 + rq*32}")
            if not qkv:
                for rq in range(4):
                    k(f"ds_read_b128 {vr(B1 + nt*16 + rq*4, 4)}, v{vt[0]} offset:{1536 + nt*128 + rq*32}")
        OFF = QK_OFF if qkv else G_OFF
        k(f"s_lshl_b32 s{s_t0}, s{s_nb}, 4"); k(f"s_lshl_b32 s{s_t1}, s{s_wn}, 3"); k(f"s_add_u32 s{s_t0}, s{s_t0}, s{s_t1}")
        k(f"v_add_lshl_u32 v{vt[2]}, v{v_h}, s{s_t0}, 15")
        k(f"s_lshl_b32 s{s_t0}, s{s_mb}, 7"); k(f"s_lshl_b32 s{s_t1}, s{s_wm}, 6"); k(f"s_add_u32 s{s_t0}, s{s_t0}, s{s_t1}")
        k(f"v_add_u32 v{vt[3]}, s{s_t0}, v{v_t}")
        k(f"v_lshl_add_u32 v{vt[2]}, v{vt[3]}, 4, v{vt[2]}")
        so = 46
        for c in range(4): k(f"s_mov_b32 s{so + c}, {OFF + 2*c*CH}")
        if not qkv:
            C0 = -2.0 * math.log2(math.e) * math.sqrt(2.0 / math.pi)
            k(f"s_mov_b32 s44, {f32(C0 * 0.044715)}"); k(f"s_mov_b32 s45, {f32(C0 * 0.044715)}")
            k(f"v_mov_b32 v{vt[4]}, {f32(C0)}"); k(f"v_mov_b32 v{vt[5]}, {f32(C0)}")
        k("s_waitcnt lgkmcnt(0)")
        T = EP + 64
        n_st = 0
        for nt in range(2):
            for mt in range(2):
                a = acc(mt, nt); mr = MR[mt]
                for p in range(8):
                    x = vr(a + 2*p, 2)
                    k(f"v_pk_fma_f32 {x}, {vr(CS + nt*16 + 2*p, 2)}, {vr(mr,2)}, {x} op_sel_hi:[1,0,1]")
                for p in range(8):
                    x = vr(a + 2*p, 2)
                    if qkv:
                        k(f"v_pk_mul_f32 {x}, {x}, {vr(mr,2)} op_sel:[0,1] op_sel_hi:[1,1]")
                    else:
                        k(f"v_pk_fma_f32 {x}, {x}, {vr(mr,2)}, {vr(B1 + nt*16 + 2*p, 2)} op_sel:[0,1,0] op_sel_hi:[1,1,1]")
                if not qkv:
                    for p in range(8):
                        x = vr(a + 2*p, 2); t = vr(T + 2*p, 2)
                        k(f"v_pk_mul_f32 {t}, {x}, {x}")
                    for p in range(8):
                        t = vr(T + 2*p, 2)
                        k(f"v_pk_fma_f32 {t}, {t}, s[44:45], {vr(vt[4],2)}")
                    for p in range(8):
                        x = vr(a + 2*p, 2); t = vr(T + 2*p, 2)
                        k(f"v_pk_mul_f32 {t}, {t}, {x}")
                    for r in range(16): k(f"v_exp_f32 v{T + r}, v{T + r}")
                    for p in range(8):
                        t = vr(T + 2*p, 2)
                        k(f"v_pk_add_f32 {t}, {t}, 1.0 op_sel_hi:[1,0]")
                    for r in range(16): k(f"v_rcp_f32 v{T + r}, v{T + r}")
                    for p in range(8):
                        x = vr(a + 2*p, 2); t = vr(T + 2*p, 2)
                        k(f"v_pk_mul_f32 {x}, {x}, {t}")
                Pk = T + 16 + (n_st % 2) * 8
                for p in range(8):
                    k(f"v_cvt_pk_bf16_f32 v{Pk + p}, v{a + 2*p}, v{a + 2*p + 1}")
                for pq in range(2):
                    b = Pk + 4*pq
                    k(f"v_permlane32_swap_b32 v{b}, v{b+2}")
                    k(f"v_permlane32_swap_b32 v{b+1}, v{b+3}")
                for pq in range(2):
                    b = Pk + 4*pq
                    k(f"buffer_store_dwordx4 {vr(b,4)}, v{vt[2]}, s[{sW}:{sW+3}], s{so + nt*2 + pq} offen offset:{mt*512} sc1")
                n_st += 1

    def epi_v():
        NM = EP; RS = EP + 32; CSV = [28, 30]
        k(f"s_lshl_b32 s{s_t0}, s{s_wm}, 8"); k(f"s_add_u32 s{s_t0}, s{s_t0}, {SB}")
        k(f"v_lshl_add_u32 v{vt[0]}, v{v_h}, 4, s{s_t0}")
        k(f"s_lshl_b32 s{s_t0}, s{s_wn}, 8"); k(f"s_add_u32 s{s_t0}, s{s_t0}, {SB}")
        k(f"v_lshl_add_u32 v{vt[1]}, v{v_t}, 2, s{s_t0}")
        for nt in range(2):
            k(f"ds_read_b32 v{CSV[nt]}, v{vt[1]} offset:{1024 + nt*128}")
        for mt in range(2):
            for rq in range(4):
                k(f"ds_read_b128 {vr(NM + mt*16 + rq*4, 4)}, v{vt[0]} offset:{mt*128 + rq*32}")
                k(f"ds_read_b128 {vr(RS + mt*16 + rq*4, 4)}, v{vt[0]} offset:{512 + mt*128 + rq*32}")
        k(f"s_lshl_b32 s{s_t0}, s{s_mb}, 1"); k(f"s_add_u32 s{s_t0}, s{s_t0}, s{s_wm}"); k(f"s_mul_i32 s{s_t0}, s{s_t0}, 5120")
        k(f"s_lshl_b32 s{s_t1}, s{s_nb}, 7"); k(f"s_add_u32 s{s_t0}, s{s_t0}, s{s_t1}"); k(f"s_sub_u32 s{s_t0}, s{s_t0}, 1280")
        k(f"s_lshl_b32 s{s_t1}, s{s_wn}, 6"); k(f"s_add_u32 s{s_t0}, s{s_t0}, s{s_t1}")
        k(f"v_mul_u32_u24 v{vt[3]}, 640, v{v_h}")
        k(f"v_add3_u32 v{vt[2]}, v{v_t}, s{s_t0}, v{vt[3]}")
        k(f"v_lshlrev_b32 v{vt[2]}, 4, v{vt[2]}")
        so = 46
        for c in range(4): k(f"s_mov_b32 s{so + c}, {V_OFF + c * 640 * 32}")
        k("s_waitcnt lgkmcnt(0)")
        T = EP + 64; n_st = 0
        for mt in range(2):
            for nt in range(2):
                a = acc(mt, nt)
                for p in range(8):
                    x = vr(a + 2*p, 2)
                    k(f"v_pk_fma_f32 {x}, {vr(NM + mt*16 + 2*p, 2)}, {vr(CSV[nt],2)}, {x} op_sel_hi:[1,0,1]")
                for p in range(8):
                    x = vr(a + 2*p, 2)
                    k(f"v_pk_mul_f32 {x}, {x}, {vr(RS + mt*16 + 2*p, 2)}")
                Pk = T + (n_st % 2) * 8
                for p in range(8):
                    k(f"v_cvt_pk_bf16_f32 v{Pk + p}, v{a + 2*p}, v{a + 2*p + 1}")
                for jj in range(2):
                    k(f"buffer_store_dwordx4 {vr(Pk + 4*jj, 4)}, v{vt[2]}, s[{sW}:{sW+3}], s{so + mt*2 + jj} offen offset:{nt*512} sc1")
                n_st += 1

    if qkv:
        k(f"s_cmp_ge_u32 s{s_nb}, 10")
        k(f"s_cbranch_scc1 {k.L('loopv')}")
        mainloop("q", False); epi_nm()
        k(f"s_branch {k.L('end')}")
        mainloop("v", True); epi_v()
        k(f"s_branch {k.L('end')}")
        k.label(k.L("auxl"))
        k(f"s_cmp_ge_u32 s{s_w}, 2"); k(f"s_cbranch_scc1 {k.L('aux')}")
        slice_addr_rows()
        k("s_waitcnt lgkmcnt(0)")
        srd(k, sA, 36, 37, S * D * 2); srd(k, sW, WSL, WSL + 1, WS_END); srd(k, sBi, 40, 41, 256)
        slice_load_rows()
        k("s_waitcnt vmcnt(0)")
        tag_load()
        slice_rows(0)
        k("s_waitcnt vmcnt(0)")
        tag_wait("x")
        slice_rows(1)
        k.label(k.L("aux"))
        k("s_load_dwordx4 s[44:47], s[0:1], 32")
        k(f"v_lshrrev_b32 v{vt[0]}, 4, v{v_lane}")
        k(f"v_and_b32 v{vt[1]}, 15, v{v_lane}")
        k(f"v_mul_u32_u24 v{vt[2]}, {F * 2}, v{vt[0]}")
        k(f"v_lshl_add_u32 v{vt[2]}, v{vt[1]}, 4, v{vt[2]}")
        k(f"v_lshlrev_b32 v{vt[3]}, 1, v0")
        k("s_waitcnt lgkmcnt(0)")
        srd(k, sW, WSL, WSL + 1, WS_END)
        k(f"s_cmp_ge_u32 s{s_mb}, 14"); k(f"s_cbranch_scc1 {k.L('end')}")
        srd(k, sB, 44, 45, D * F * 2); srd(k, sA, 46, 47, F * 2)
        k(f"s_mul_i32 s{s_t0}, s{s_wid}, {80 * F * 2}"); k(f"s_lshl_b32 s{s_t1}, s{s_mb}, 8"); k(f"s_add_u32 s{s_t0}, s{s_t0}, s{s_t1}")
        k(f"buffer_load_ushort v{v_b1}, v{vt[3]}, s[{sA}:{sA+3}], s{s_t1} offen")
        for i in range(20):
            k(f"buffer_load_dwordx4 {vr(40 + 4*i, 4)}, v{vt[2]}, s[{sB}:{sB+3}], s{s_t0} offen")
            k(f"s_add_u32 s{s_t0}, s{s_t0}, {4 * F * 2}")
        for r in range(8): k(f"v_mov_b32 v{24 + r}, 0")
        for i in range(20):
            k(f"s_waitcnt vmcnt({19 - i})")
            for r in range(4):
                k(f"v_lshlrev_b32 v{32 + 2*r}, 16, v{40 + 4*i + r}")
                k(f"v_and_b32 v{33 + 2*r}, 0xffff0000, v{40 + 4*i + r}")
            for r in range(4):
                k(f"v_pk_add_f32 {vr(24 + 2*r, 2)}, {vr(24 + 2*r, 2)}, {vr(32 + 2*r, 2)}")
        k(f"v_lshlrev_b32 v{vt[0]}, 5, v0")
        k(f"ds_write_b128 v{vt[0]}, v[24:27]")
        k(f"ds_write_b128 v{vt[0]}, v[28:31] offset:16")
        k("s_waitcnt lgkmcnt(0)")
        k("s_barrier")
        k(f"s_cmp_ge_u32 s{s_wid}, 2"); k(f"s_cbranch_scc1 {k.L('end')}")
        k(f"v_lshlrev_b32 v{vt[0]}, 2, v0")
        for i in range(32):
            k(f"ds_read_b32 v{40 + i}, v{vt[0]} offset:{i * 512}")
            if i % 8 == 7: k("s_waitcnt lgkmcnt(0)")
        for i in range(1, 32): k(f"v_add_f32 v40, v40, v{40 + i}")
        k(f"v_lshlrev_b32 v{v_b1}, 16, v{v_b1}")
        k(f"v_mul_f32 v{v_b1}, {f32(GS)}, v{v_b1}")
        k(f"s_lshl_b32 s{s_t0}, s{s_mb}, 10"); k(f"s_add_u32 s{s_t0}, s{s_t0}, {C1_OFF}"); k(f"s_add_u32 s{s_t1}, s{s_t0}, 512")
        k(f"buffer_store_dword v40, v{vt[0]}, s[{sW}:{sW+3}], s{s_t0} offen sc1")
        k(f"buffer_store_dword v{v_b1}, v{vt[0]}, s[{sW}:{sW+3}], s{s_t1} offen sc1")
    k.label(k.L("end"))
    k(f"s_lshl_b32 s94, s{s_mb}, 4"); k(f"s_add_u32 s94, s94, s{s_nb}")
    k(f"v_readfirstlane_b32 s{S_TAG}, v{v_tag}")
    k.stamp(2, "st1" in X)

def phase2(k):
    k.pref = "p2"
    sW = 4; sP1 = 8; sP2 = 12; sP3 = 16; sWW = 52
    s_hd, s_qb, s_w, s_qs, s_kh, s_t0, s_t1, s_it = 20, 21, S_WID, 23, 24, 25, 26, 27
    s_ko, s_vo, s_odd = 28, 29, 30
    s_vm = 32; s_lo = 34; s_c = 36
    s_do, s_dm, s_qo = 56, 57, 58
    v_lane, v_t, v_h = 1, 2, 3
    vK1, vK2, vV0, vV1 = 4, 5, 6, 7
    vt = [8, 9, 10, 11, 12, 13, 14, 15]
    vm = [16, 17]
    v_pfa, v_pfc, v_pf = 18, 19, 200
    vD = [202, 203, 204, 205]
    v_fx, vX, vOne = 206, 208, 210
    Q1 = [20, 24]; Q2 = [28, 30]
    NBUF = 4
    K1 = [32, 36, 40, 44]; K2 = [48, 50]; Q2B = [52, 54]; vK2p = 207
    VB = [56, 64, 72, 80]
    C = [88, 104]; Sx = [120, 136]; P = [152, 160]; O = [168, 184]
    k("s_load_dwordx2 s[40:41], s[0:1], 80")
    k("s_load_dwordx2 s[44:45], s[0:1], 16")
    k("s_load_dwordx2 s[46:47], s[0:1], 32")
    k("s_load_dwordx2 s[38:39], s[0:1], 48")
    if "rowmap" not in X:
        k(f"s_and_b32 s{s_hd}, s2, 7"); k(f"s_lshl_b32 s{s_hd}, s{s_hd}, 2")
        k(f"s_bfe_u32 s{s_t0}, s2, 0x20003"); k(f"s_add_u32 s{s_hd}, s{s_hd}, s{s_t0}")
        k(f"s_lshr_b32 s{s_qb}, s2, 5")
    else:
        k(f"s_lshr_b32 s{s_hd}, s2, 3"); k(f"s_and_b32 s{s_qb}, s2, 7")
    k(f"s_and_b32 s{s_qs}, s{s_w}, 3"); k(f"s_lshr_b32 s{s_kh}, s{s_w}, 2")
    k(f"s_and_b32 s{s_odd}, s{s_hd}, 1")
    k(f"s_mov_b32 s{s_lo}, -1"); k(f"s_mov_b32 s{s_lo+1}, 0")
    k(f"s_lshr_b32 s{s_t0}, s{s_hd}, 1"); k(f"s_mul_i32 s{s_t0}, s{s_t0}, 5")
    k(f"s_mul_i32 s{s_t1}, s{s_odd}, 3"); k(f"s_add_u32 s{s_t1}, s{s_t1}, s{s_t0}")
    k(f"v_add_lshl_u32 v{vK1}, v{v_h}, s{s_t1}, 15")
    k(f"v_lshl_add_u32 v{vK1}, v{v_t}, 4, v{vK1}")
    k(f"s_add_u32 s{s_t0}, s{s_t0}, 2"); k(f"s_lshl_b32 s{s_t0}, s{s_t0}, 15")
    k(f"s_lshl_b32 s{s_t1}, s{s_odd}, 3"); k(f"s_add_u32 s{s_t0}, s{s_t0}, s{s_t1}")
    k(f"v_lshl_add_u32 v{vK2}, v{v_t}, 4, s{s_t0}")
    k(f"s_sub_u32 s{s_t0}, s{s_t0}, 512")
    k(f"v_lshl_add_u32 v{vK2p}, v{v_lane}, 4, s{s_t0}")
    k(f"s_lshl_b32 s{s_ko}, s{s_kh}, 14"); k(f"s_add_u32 s{s_ko}, s{s_ko}, {QK_OFF + 80 * CH}")
    k(f"s_lshl_b32 s{s_qo}, s{s_qb}, 12"); k(f"s_lshl_b32 s{s_t1}, s{s_qs}, 10"); k(f"s_add_u32 s{s_qo}, s{s_qo}, s{s_t1}")
    for qt in range(2):
        k(f"v_mov_b32 v{Q2[qt]}, 0"); k(f"v_mov_b32 v{Q2[qt]+1}, 0")
    k(f"s_mov_b32 s42, s{s_ko}")
    k(f"s_mov_b32 s{s_vm}, 0xfffff"); k(f"s_mov_b32 s{s_vm+1}, 0xfffff")
    k(f"v_add_u32 v{vt[0]}, 4, v{v_t}")
    k(f"v_subrev_u32 v{vt[1]}, 16, v{v_t}")
    k(f"v_cmp_gt_u32 vcc, 16, v{v_t}")
    k(f"v_cndmask_b32 v{vt[0]}, v{vt[1]}, v{vt[0]}, vcc")
    k(f"s_cmp_eq_u32 s{s_odd}, 1")
    k(f"s_cselect_b64 vcc, -1, 0")
    k(f"v_cndmask_b32 v{vt[0]}, v{v_t}, v{vt[0]}, vcc")
    k(f"s_mul_i32 s{s_t0}, s{s_hd}, 20")
    k(f"v_mul_u32_u24 v{vt[1]}, 640, v{v_h}")
    k(f"v_add3_u32 v{vV0}, v{vt[0]}, s{s_t0}, v{vt[1]}")
    k(f"v_lshlrev_b32 v{vV0}, 4, v{vV0}")
    k(f"v_add_u32 v{vV1}, {640 * 32}, v{vV0}")
    k(f"s_mul_i32 s{s_vo}, s{s_kh}, {32 * 1280 * 32}"); k(f"s_add_u32 s{s_vo}, s{s_vo}, {V_OFF}")
    k(f"s_mov_b32 s43, s{s_vo}"); k(f"s_mov_b32 s22, {1280 * 32}")
    k(f"v_cmp_eq_u32 vcc, 0, v{v_h}"); k(f"v_mov_b32 v{vOne}, 0x3f80"); k(f"v_cndmask_b32 v{vOne}, 0, v{vOne}, vcc")
    k(f"v_mov_b32 v{vOne+1}, 0"); k(f"v_mov_b32 v{vOne+3}, 0")
    k(f"v_cmp_eq_u32 vcc, 20, v{v_t}")
    k(f"v_mov_b32 v{vt[1]}, 0x3f803f80")
    k(f"v_cndmask_b32 v{vt[1]}, 0, v{vt[1]}, vcc")
    for b in range(NBUF):
        for r in range(8): k(f"v_mov_b32 v{VB[b] + r}, v{vt[1]}")
    for qt in range(2):
        for r in range(16): k(f"v_mov_b32 v{O[qt] + r}, 0")
    for r in range(8): k(f"v_mov_b32 v{P[1] + r}, 0")
    k(f"s_lshr_b32 s{s_t0}, s2, 3"); k(f"s_lshl_b32 s{s_t0}, s{s_t0}, 3"); k(f"s_add_u32 s{s_t0}, s{s_t0}, s{s_w}")
    k(f"s_mul_i32 s49, s{s_t0}, {48 * 128}"); k(f"s_add_u32 s49, s49, {192 * F * 2}")
    k(f"v_lshlrev_b32 v{vt[2]}, 8, v{v_lane}"); k(f"v_add_u32 v{vt[2]}, 124, v{vt[2]}")
    k(f"v_mov_b32 v{vt[3]}, 0x7ffffff0")
    k(f"v_cmp_gt_u32 vcc, 24, v{v_lane}")
    k(f"v_cndmask_b32 v{v_pfa}, v{vt[3]}, v{vt[2]}, vcc")
    W2L = int(os.environ.get("W2L", "0"))
    if W2L:
        k(f"s_mul_i32 s48, s{s_t0}, {2 * W2L * 128}")
    else:
        k(f"s_lshl_b32 s48, s2, 3"); k(f"s_add_u32 s48, s48, s{s_w}"); k(f"s_mul_i32 s48, s48, {10 * 128}")
    k(f"v_cmp_gt_u32 vcc, {W2L or 5}, v{v_lane}")
    k(f"v_cndmask_b32 v{v_pfc}, v{vt[3]}, v{vt[2]}, vcc")
    k(f"s_sub_u32 s50, s{s_qs}, s{s_kh}"); k(f"s_add_u32 s50, s50, 3")
    k(f"s_lshl_b32 s92, s2, 3"); k(f"s_add_u32 s92, s92, s{s_w}"); k(f"s_mul_i32 s92, s92, 1536"); k(f"s_add_u32 s92, s92, {H_OFF}")
    k(f"v_lshrrev_b32 v{vt[0]}, 3, v{v_lane}")
    k(f"v_and_b32 v{vt[1]}, 7, v{v_lane}")
    k(f"v_bfe_u32 v{vt[2]}, v{v_lane}, 4, 1")
    k(f"v_lshlrev_b32 v{vt[2]}, 2, v{vt[2]}")
    k(f"v_xor_b32 v{vt[1]}, v{vt[1]}, v{vt[2]}")
    k(f"v_mul_u32_u24 v{vt[0]}, 1280, v{vt[0]}")
    k(f"v_lshl_add_u32 v{vD[0]}, v{vt[1]}, 4, v{vt[0]}")
    k(f"v_add_u32 v{vD[1]}, {8 * 1280 - 1024}, v{vD[0]}")
    k(f"v_lshrrev_b32 v{vt[0]}, 4, v{v_lane}")
    k(f"v_and_b32 v{vt[1]}, 15, v{v_lane}")
    k(f"v_lshlrev_b32 v{vt[2]}, 2, v{vt[0]}")
    k(f"v_xor_b32 v{vt[1]}, v{vt[1]}, v{vt[2]}")
    k(f"v_mul_u32_u24 v{vt[0]}, {F * 2}, v{vt[0]}")
    k(f"v_lshl_add_u32 v{vD[2]}, v{vt[1]}, 4, v{vt[0]}")
    k(f"v_add_u32 v{vD[3]}, {4 * F * 2 - 1024}, v{vD[2]}")
    k(f"s_lshr_b32 s{s_t0}, s2, 3")
    k(f"s_mul_i32 s{s_t1}, s{s_t0}, 43"); k(f"s_lshr_b32 s{s_t1}, s{s_t1}, 7"); k(f"s_lshl_b32 s{s_t1}, s{s_t1}, 7")
    k(f"s_mul_i32 s{s_do}, s{s_w}, {16 * 1280}"); k(f"s_add_u32 s{s_do}, s{s_do}, s{s_t1}")
    k(f"s_lshr_b32 s{s_t0}, s{s_t0}, 1"); k(f"s_lshl_b32 s{s_t0}, s{s_t0}, 8")
    k(f"s_mul_i32 s59, s{s_w}, {8 * F * 2}"); k(f"s_add_u32 s59, s59, s{s_t0}")
    k(f"s_lshl_b32 s{s_dm}, s{s_w}, 11")
    k("s_waitcnt lgkmcnt(0)")
    srd(k, sW, 40, 41, QKV_END); srd(k, sWW, 40, 41, WS_END)
    srd(k, sP1, 44, 45, D * D * 2); srd(k, sP2, 46, 47, D * F * 2)
    W = f"s[{sW}:{sW+3}]"
    k("s_load_dwordx2 s[44:45], s[0:1], 0")
    k(f"s_lshr_b32 s{s_t0}, s2, 3"); k(f"s_mul_i32 s{s_t1}, s{s_t0}, 43"); k(f"s_lshr_b32 s{s_t1}, s{s_t1}, 7")
    k(f"s_mul_i32 s46, s{s_t1}, 3"); k(f"s_sub_u32 s{s_t0}, s{s_t0}, s46"); k(f"s_mul_i32 s{s_t0}, s{s_t0}, 3"); k(f"s_add_u32 s{s_t0}, s{s_t0}, s{s_w}")
    k(f"s_and_b32 s46, s2, 7"); k(f"s_lshl_b32 s46, s46, 3"); k(f"s_add_u32 s{s_t0}, s{s_t0}, s46"); k(f"s_lshl_b32 s{s_t0}, s{s_t0}, 5")
    k(f"v_add_u32 v{XRA}, s{s_t0}, v{v_t}"); k(f"v_mul_u32_u24 v{XRA}, 1280, v{XRA}")
    k(f"v_lshl_add_u32 v{XRA}, v{v_h}, 4, v{XRA}")
    k(f"s_lshl_b32 s{s_t1}, s{s_t1}, 7"); k(f"v_add_u32 v{XRA}, s{s_t1}, v{XRA}")
    k(f"s_lshl_b32 s{s_t1}, s{s_kh}, 9"); k(f"s_add_u32 s{s_qo}, s{s_qo}, s{s_t1}"); k(f"s_xor_b32 s47, s{s_qo}, 512")
    srd(k, sP3, 38, 39, D * F * 2)
    k(f"s_getreg_b32 s51, hwreg(HW_REG_XCC_ID)"); k(f"s_and_b32 s51, s51, 15")
    k(f"s_and_b32 s{s_t0}, s2, 7"); k(f"s_lshl_b32 s{s_t0}, s{s_t0}, 7"); k(f"s_add_u32 s{s_t0}, s{s_t0}, {FX_OFF}")
    k(f"v_lshl_add_u32 v{v_fx}, v{v_t}, 10, s{s_t0}")
    k(f"s_and_b32 s{s_t0}, s{s_w}, 6"); k(f"s_cmp_lg_u32 s{s_t0}, 4"); k(f"s_cbranch_scc1 {k.L('nt')}")
    k(f"s_lshr_b32 s{s_t0}, s{s_hd}, 1"); k(f"s_mul_i32 s{s_t0}, s{s_t0}, 5"); k(f"s_add_u32 s{s_t0}, s{s_t0}, s{s_odd}"); k(f"s_add_u32 s{s_t0}, s{s_t0}, s{s_odd}")
    k(f"s_add_u32 s{s_t1}, s{s_t0}, 2"); k(f"s_lshr_b32 s{s_t0}, s{s_t0}, 4"); k(f"s_lshr_b32 s{s_t1}, s{s_t1}, 4")
    k(f"s_cmp_eq_u32 s{s_w}, 4"); k(f"s_cbranch_scc1 {k.L('fk')}")
    k(f"s_lshl_b32 s{s_t0}, s2, 7"); k(f"s_add_u32 s{s_t0}, s{s_t0}, {FX_OFF}")
    k(f"v_mov_b32 v{vt[2]}, s{S_TAG}"); k(f"v_mov_b32 v{vt[3]}, s51"); k(f"v_mov_b32 v{vt[4]}, 0")
    k("s_mov_b64 exec, 1")
    k(f"buffer_store_dwordx2 {vr(vt[2], 2)}, v{vt[4]}, s[{sWW}:{sWW+3}], s{s_t0} offen sc1")
    k("s_mov_b64 exec, -1")
    k(f"s_mul_i32 s{s_t0}, s{s_hd}, 20"); k(f"s_add_u32 s{s_t1}, s{s_t0}, {19 + 640}"); k(f"s_add_u32 s{s_t0}, s{s_t0}, 640")
    k(f"s_lshr_b32 s{s_t0}, s{s_t0}, 7"); k(f"s_lshr_b32 s{s_t1}, s{s_t1}, 7")
    k.label(k.L("fk"))
    k(f"v_mov_b32 v{vt[0]}, s{s_t0}"); k(f"v_mov_b32 v{vt[1]}, s{s_t1}")
    k(f"v_and_b32 v{vt[5]}, 16, v{v_lane}"); k(f"v_cmp_eq_u32 vcc, 0, v{vt[5]}")
    k(f"v_cndmask_b32 v{vt[5]}, v{vt[1]}, v{vt[0]}, vcc")
    k(f"v_and_b32 v{vt[1]}, 15, v{v_lane}")
    k(f"v_lshl_add_u32 v{vt[0]}, v{vt[1]}, 4, v{vt[5]}")
    k(f"v_add_u32 v{vt[0]}, 5, v{vt[0]}")
    k(f"v_and_b32 v{vt[1]}, 1, v{v_lane}"); k(f"s_lshl_b32 s{s_t0}, s{s_qb}, 1"); k(f"v_add_u32 v{vt[1]}, s{s_t0}, v{vt[1]}")
    k(f"v_lshl_add_u32 v{vt[1]}, v{vt[1]}, 4, v{vt[5]}")
    k(f"s_cmp_eq_u32 s{s_w}, 4"); k(f"s_cselect_b32 s{s_t0}, 32, 64")
    k(f"v_cmp_gt_u32 vcc, s{s_t0}, v{v_lane}")
    k(f"v_cndmask_b32 v{vt[0]}, v{vt[1]}, v{vt[0]}, vcc")
    k(f"v_lshlrev_b32 v{vt[0]}, 7, v{vt[0]}"); k(f"v_add_u32 v{vt[0]}, {FL_OFF}, v{vt[0]}")
    k.label(k.L("nt"))
    k("s_waitcnt vmcnt(0) lgkmcnt(0)")
    k("s_barrier")
    k.stamp(3, "st1" in X)
    k(f"s_and_b32 s{s_t0}, s{s_w}, 6"); k(f"s_cmp_lg_u32 s{s_t0}, 4"); k(f"s_cbranch_scc1 {k.L('nw')}")
    k(f"s_cmp_lg_u32 s{s_w}, 4"); k(f"s_cbranch_scc1 {k.L('npb')}")
    publish(k, sWW, 1, 94, s_t0, vt[4], vt[5])
    k.label(k.L("npb"))
    poll(k, sWW, [vt[0]], [vt[2]], s_it, "1")
    k.label(k.L("nw"))
    k("s_barrier")
    k.stamp(4, "st1" in X)
    SC = " sc1" if "kvsc1" in X else (" nt" if "kvnt" in X else "")
    def kload(b, pair=True):
        r = [f"buffer_load_dwordx4 {vr(K1[b],4)}, v{vK1}, {W}, s{s_ko} offen{SC}"]
        if b % 2 and pair: r.append(f"buffer_load_dwordx2 {vr(K2[b // 2],2)}, v{vK2p}, {W}, s{s_ko} offen{SC}")
        return r + [f"s_add_u32 s{s_ko}, s{s_ko}, 512"]
    def vload(b):
        return [f"s_mov_b64 exec, s[{s_vm}:{s_vm+1}]",
                f"buffer_load_dwordx4 {vr(VB[b],4)}, v{vV0}, {W}, s{s_vo} offen{SC}",
                f"buffer_load_dwordx4 {vr(VB[b]+4,4)}, v{vV1}, {W}, s{s_vo} offen{SC}",
                f"s_mov_b64 exec, -1",
                f"s_add_u32 s{s_vo}, s{s_vo}, s22"]
    def wdma(which):
        a, b_, sr_, so, step = (vD[0], vD[1], sP1, s_do, 128 * 1280) if which == 0 else (vD[2], vD[3], sP2, 59, 64 * F * 2)
        return [f"s_mov_b32 m0, s{s_dm}", f"s_add_u32 s{s_dm}, s{s_dm}, 16384",
                f"buffer_load_dwordx4 v{a}, s[{sr_}:{sr_+3}], s{so} offen lds",
                f"buffer_load_dwordx4 v{b_}, s[{sr_}:{sr_+3}], s{so} offen offset:1024 lds",
                f"s_add_u32 s{so}, s{so}, {step}"]
    k(f"buffer_load_dwordx2 {vr(K2[0],2)}, v{vK2p}, {W}, s{s_ko} offen offset:512{SC}")
    for l in kload(0): k(l)
    for qt in range(2):
        k(f"buffer_load_dwordx4 {vr(Q1[qt],4)}, v{vK1}, {W}, s{s_qo if qt else 47} offen sc1")
        k(f"buffer_load_dwordx2 {vr(Q2B[qt],2)}, v{vK2}, {W}, s{s_qo if qt else 47} offen sc1")
    rest = kload(1, False) + vload(0) + kload(2) + vload(1) + kload(3) + vload(2) + [f"buffer_load_dword v{v_pf}, v{vt[7]}, {W}, 0 offen"] * 2
    k(f"v_mov_b32 v{vt[7]}, 0x7ffffff0")
    NPRO = int(os.environ.get("NPRO", "3"))
    n = 0
    while n < NPRO or (NPRO and rest[0].startswith("s_mov_b64 exec, -1")):
        l = rest.pop(0); k(l); n += l.startswith("buffer")
        if not rest: break
    def qk(qt, b, c):
        cc = "0" if c is None else vr(c, 16)
        return [f"v_mfma_f32_32x32x16_bf16 {vr(Sx[qt],16)}, {vr(K1[b],4)}, {vr(Q1[qt],4)}, {cc}",
                f"v_mfma_f32_32x32x8_bf16 {vr(Sx[qt],16)}, {vr(K2[b // 2],2)}, {vr((Q2B if b % 2 else Q2)[qt],2)}, {vr(Sx[qt],16)}"]
    def pv(qt, b):
        return [f"v_mfma_f32_32x32x16_bf16 {vr(O[qt],16)}, {vr(VB[b],4)}, {vr(P[qt],4)}, {vr(O[qt],16)}",
                f"v_mfma_f32_32x32x16_bf16 {vr(O[qt],16)}, {vr(VB[b]+4,4)}, {vr(P[qt]+4,4)}, {vr(O[qt],16)}"]
    def rowmax(qt, dst, tmp):
        s = Sx[qt]
        k(f"v_max3_f32 v{dst}, v{s}, v{s+1}, v{s+2}")
        for r in range(3, 15, 2): k(f"v_max3_f32 v{dst}, v{dst}, v{s+r}, v{s+r+1}")
        k(f"v_max_f32 v{dst}, v{dst}, v{s+15}")
        k(f"v_mov_b32 v{tmp}, v{dst}")
        k(f"v_permlane32_swap_b32 v{dst}, v{tmp}")
        k(f"v_max_f32 v{dst}, v{dst}, v{tmp}")
    k(f"s_waitcnt vmcnt({n})")
    if "sta" in X: k.stamp(0)
    k("s_mov_b32 exec_hi, 0")
    for r in range(4): k(f"v_mov_b32 v{Q2[0] + r}, v{Q2B[0] + r}")
    for r in range(4): k(f"v_mov_b32 v{Q2B[0] + r}, 0")
    k("s_mov_b32 exec_hi, -1")
    for qt in range(2):
        for l in qk(qt, 0, None): k(l)
    for l in rest: k(l)
    for qt in range(2):
        rowmax(qt, vm[qt], vt[0])
        k(f"v_cvt_pk_bf16_f32 v{vOne+2}, -v{vm[qt]}, 0")
        k(f"v_mfma_f32_32x32x8_bf16 {vr(C[qt],16)}, {vr(vOne,2)}, {vr(vOne+2,2)}, 0")
        k(f"v_lshlrev_b32 v{vm[qt]}, 16, v{vOne+2}")
        k(f"v_xor_b32 v{vm[qt]}, 0x80000000, v{vm[qt]}")
    for l in qk(0, 0, C[0]): k(l)
    k("s_nop 7")
    k(f"s_mov_b32 s{s_it}, 0")
    if "sta" in X: k.stamp(2)
    k("s_nop 1")
    def slot(qt, mf, extra):
        s = Sx[qt]; p = P[qt]
        for i in range(16):
            for l in extra.get(i, []): k(l)
            if i % 4 == 0: k(mf[i // 4])
            k(f"v_exp_f32 v{s+i}, v{s+i}")
            if i % 2 == 1 and i >= 3:
                k(f"v_cvt_pk_bf16_f32 v{p + (i-3)//2}, v{s+i-3}, v{s+i-2}")
        for l in extra.get(16, []): k(l)
        k(f"v_cvt_pk_bf16_f32 v{p+7}, v{s+14}, v{s+15}")
    k(f"s_cmp_eq_u32 s{s_kh}, 0")
    k(f"s_cselect_b32 s31, 99, {int(os.environ.get('PRI', '6'))}")
    k(f"s_cbranch_scc1 {k.L('np')}")
    k("s_setprio 1")
    k.label(k.L("np"))
    k.label(k.L("loop"))
    for u in range(NBUF):
        b = u; bp = (u - 1) % NBUF; bn = (u + 1) % NBUF
        seq = []
        for i in range(3):
            for uu in range(4):
                kt = 4 * i + uu
                seq.append(("K", kt + 4))
                if uu % 2: seq.append(("P", (kt + 4) // 2))
                seq += [("V", kt + 3)] * 2
                if i == 2 and uu == u: break
            else:
                seq += [("W", i)] * 2
        kt = 8 + u
        last = max(len(seq) - 1 - seq[::-1].index(e) for e in (("K", kt + 1), ("P", (kt + 1) // 2), ("V", kt)))
        e1 = {0: [f"s_waitcnt vmcnt({len(seq) - 1 - last})"]}
        if "pt" in X:
            if u < 3: e1[7] = [f"s_buffer_load_dword s93, s[{sWW}:{sWW+3}], s92 offset:{u * 64}"]
        PU = int(os.environ.get("PU", "2"))
        if u == PU:
            k(f"s_cmp_lg_u32 s{s_it}, s31"); k(f"s_cbranch_scc1 {k.L('nph')}"); k("s_setprio 0"); k.label(k.L("nph"))
        slot(0, qk(1, b, C[1]) + pv(1, bp), {6: kload(b), 14: vload(bp)})
        slot(1, qk(0, bn, C[0]) + pv(0, b), e1)
    k(f"s_add_u32 s{s_it}, s{s_it}, 1")
    if PU == 4:
        k(f"s_cmp_lg_u32 s{s_it}, s31")
        k(f"s_cbranch_scc1 {k.L('noev')}")
        k("s_setprio 0")
        k.label(k.L("noev"))
    if W2L:
        k(f"s_sub_u32 s{s_t0}, s50, 1")
        k(f"s_cmp_lg_u32 s{s_it}, s{s_t0}"); k(f"s_cbranch_scc1 {k.L('noe0')}")
        k(f"buffer_load_dwordx2 {vr(v_pf, 2)}, v{v_pfc}, s[{sP3}:{sP3+3}], s48 offen")
        k.label(k.L("noe0"))
    k(f"s_cmp_lg_u32 s{s_it}, s50"); k(f"s_cbranch_scc1 {k.L('noe2')}")
    k(f"buffer_load_dwordx2 {vr(v_pf, 2)}, v{v_pfa}, s[{sP2}:{sP2+3}], s49 offen")
    if not W2L: k(f"buffer_load_dwordx2 {vr(v_pf, 2)}, v{v_pfc}, s[{sP3}:{sP3+3}], s48 offen")
    k(f"s_cmp_lg_u32 s{s_w}, 5"); k(f"s_cbranch_scc1 {k.L('noe1')}")
    k(f"s_lshl_b32 s{s_t0}, s2, 7"); k(f"s_add_u32 s{s_t0}, s{s_t0}, {FL_OFF + 32768}")
    for j in range(3): k(f"s_buffer_load_dword s93, s[{sWW}:{sWW+3}], s{s_t0} offset:{j * 32768}")
    k(f"buffer_load_dwordx2 {vr(vX, 2)}, v{v_fx}, s[{sWW}:{sWW+3}], 0 offen sc1")
    k.label(k.L("noe1"))
    k(f"s_cmp_lg_u32 s{s_w}, 3"); k(f"s_cbranch_scc1 {k.L('noe2')}")
    code_prefetch(k, "L_p2_merge", sP3, s_t0, vt[0], v_pf, v_lane, per=8)
    k.label(k.L("noe2"))
    if "pt" in X: k("s_add_u32 s92, s92, 192")
    k(f"s_cmp_ge_u32 s{s_it}, 6"); k(f"s_cbranch_scc1 {k.L('d1')}")
    for l in wdma(0): k(l)
    k(f"s_branch {k.L('loop')}")
    k.label(k.L("d1"))
    k(f"s_cmp_eq_u32 s{s_it}, 7")
    k(f"s_cselect_b32 s{s_ko}, 0x10000000, s{s_ko}"); k(f"s_cselect_b32 s22, 0x10000000, s22")
    for l in wdma(1): k(l)
    k(f"s_cmp_lt_u32 s{s_it}, 8"); k(f"s_cbranch_scc1 {k.L('loop')}")
    k.label(k.L("lend"))
    k.stamp(5)
    for l in pv(1, NBUF - 1): k(l)
    k(f"s_cmp_ge_u32 s{s_w}, 3"); k(f"s_cbranch_scc1 {k.L('d2')}")
    srd(k, sP3, 44, 45, S * D * 2)
    for c in range(4):
        k(f"buffer_load_dwordx4 {vr(XR + 4*c, 4)}, v{XRA}, s[{sP3}:{sP3+3}], 0 offen offset:{32*c}")
    k.label(k.L("d2"))
    k("s_nop 4")
    k(f"v_pk_add_f32 {vr(vt[0],2)}, {vr(O[0],2)}, {vr(O[0]+2,2)}")
    for r in range(4, 12, 2): k(f"v_pk_add_f32 {vr(vt[0],2)}, {vr(vt[0],2)}, {vr(O[0]+r,2)}")
    for r in range(0, 12, 2): k(f"v_pk_add_f32 {vr(vt[0],2)}, {vr(vt[0],2)}, {vr(O[1]+r,2)}")
    k(f"v_add_f32 v{vt[0]}, v{vt[0]}, v{vt[1]}")
    k(f"v_add_f32 v{vt[1]}, v{O[0]+8}, v{O[1]+8}")
    k(f"s_mov_b32 s{s_t0}, {f32(2.0**120)}")
    k(f"v_cmp_nlt_f32 s[{s_c}:{s_c+1}], |v{vt[0]}|, s{s_t0}")
    k(f"s_mov_b32 s{s_t0}, {f32(2.0**60)}")
    k(f"v_cmp_nlt_f32 vcc, |v{vt[1]}|, s{s_t0}")
    k(f"s_andn2_b64 vcc, vcc, s[{s_lo}:{s_lo+1}]")
    k(f"s_or_b64 s[{s_c}:{s_c+1}], s[{s_c}:{s_c+1}], vcc")
    if "forcefb" not in X: k(f"s_cbranch_scc0 {k.L('merge')}")
    k("s_waitcnt vmcnt(0)")
    k(f"s_mov_b32 s22, {1280 * 32}")
    k(f"s_mov_b32 s{s_ko}, s42"); k(f"s_mov_b32 s{s_vo}, s43")
    for qt in range(2):
        for r in range(16): k(f"v_mov_b32 v{O[qt] + r}, 0")
        k(f"v_mov_b32 v{vm[qt]}, 0xff800000")
    k(f"s_mov_b32 s{s_it}, 0")
    k.label(k.L("fb"))
    k(f"buffer_load_dwordx2 {vr(K2[0],2)}, v{vK2}, {W}, s{s_ko} offen")
    for l in kload(0) + vload(0): k(l)
    k("s_waitcnt vmcnt(0)")
    for qt in range(2):
        for l in qk(qt, 0, None): k(l)
    for qt in range(2):
        rowmax(qt, vt[2], vt[0])
        k(f"v_max_f32 v{vt[2]}, v{vt[2]}, v{vm[qt]}")
        k(f"v_sub_f32 v{vt[3]}, v{vm[qt]}, v{vt[2]}")
        k(f"v_exp_f32 v{vt[3]}, v{vt[3]}")
        k(f"v_mov_b32 v{vm[qt]}, v{vt[2]}")
        for r in range(16): k(f"v_mul_f32 v{O[qt]+r}, v{O[qt]+r}, v{vt[3]}")
        for r in range(16): k(f"v_sub_f32 v{Sx[qt]+r}, v{Sx[qt]+r}, v{vt[2]}")
        for r in range(16): k(f"v_exp_f32 v{Sx[qt]+r}, v{Sx[qt]+r}")
        for r in range(8): k(f"v_cvt_pk_bf16_f32 v{P[qt]+r}, v{Sx[qt]+2*r}, v{Sx[qt]+2*r+1}")
        for l in pv(qt, 0): k(l)
    k("s_nop 7"); k("s_nop 7")
    k(f"s_add_u32 s{s_it}, s{s_it}, 1")
    k(f"s_cmp_lt_u32 s{s_it}, 32")
    k(f"s_cbranch_scc1 {k.L('fb')}")
    k.label(k.L("merge"))
    O = [O[1], O[0]]; vm = [vm[1], vm[0]]
    k(f"s_mul_i32 s{s_t0}, s{s_w}, 3328"); k(f"s_add_u32 s{s_t0}, s{s_t0}, {MRG}")
    k(f"s_xor_b32 s{s_t1}, s{s_w}, 4"); k(f"s_mul_i32 s{s_t1}, s{s_t1}, 3328"); k(f"s_add_u32 s{s_t1}, s{s_t1}, {MRG}")
    k(f"v_lshl_add_u32 v{vt[0]}, v{v_lane}, 4, s{s_t0}")
    k(f"v_lshl_add_u32 v{vt[2]}, v{v_lane}, 2, s{s_t0}")
    for q in range(3): k(f"ds_write_b128 v{vt[0]}, {vr(O[1] + 4*q, 4)} offset:{q*1024}")
    k(f"ds_write_b32 v{vt[2]}, v{vm[1]} offset:3072")
    k(f"v_lshl_add_u32 v{vt[1]}, v{v_lane}, 4, s{s_t1}")
    k(f"v_lshl_add_u32 v{vt[3]}, v{v_lane}, 2, s{s_t1}")
    k(f"v_mov_b32 v{vt[7]}, {LOCW}")
    k(f"s_cmp_lg_u32 s{s_w}, 5"); k(f"s_cbranch_scc1 {k.L('nl')}")
    k(f"v_cmp_ne_u32 vcc, s{S_TAG}, v{vX}")
    k(f"v_cmp_ne_u32 s[90:91], s51, v{vX+1}")
    k("s_or_b64 vcc, vcc, s[90:91]")
    k(f"s_cselect_b32 s{s_t0}, 0, 1")
    k(f"v_mov_b32 v{vX}, s{s_t0}"); k(f"v_mov_b32 v{vX+1}, s{S_TAG}")
    k(f"ds_write_b64 v{vt[7]}, {vr(vX, 2)}")
    k.label(k.L("nl"))
    k("s_waitcnt lgkmcnt(0)")
    k("s_barrier")
    if "sta" in X: k.stamp(3); k("s_waitcnt lgkmcnt(0)")
    mo = Sx[0] + 12
    k(f"ds_read_b32 v{mo}, v{vt[3]} offset:3072")
    for q in range(3): k(f"ds_read_b128 {vr(Sx[0] + 4*q, 4)}, v{vt[1]} offset:{q*1024}")
    k(f"ds_read_b64 {vr(vX, 2)}, v{vt[7]}")
    k(f"s_add_u32 s{s_t0}, s{s_qo}, {O_OFF}")
    k("s_waitcnt lgkmcnt(4)")
    k(f"v_max_f32 v{vt[2]}, v{vm[0]}, v{mo}")
    k(f"v_sub_f32 v{vt[3]}, v{vm[0]}, v{vt[2]}"); k(f"v_sub_f32 v{vt[4]}, v{mo}, v{vt[2]}")
    k(f"v_exp_f32 v{vt[3]}, v{vt[3]}"); k(f"v_exp_f32 v{vt[4]}, v{vt[4]}")
    k(f"v_mul_f32 v{vt[5]}, v{O[0]+8}, v{vt[3]}")
    k("s_waitcnt lgkmcnt(0)")
    k(f"v_fmac_f32 v{vt[5]}, v{Sx[0]+8}, v{vt[4]}")
    k(f"v_readfirstlane_b32 s{S_LOC}, v{vX}"); k(f"v_readfirstlane_b32 s{S_TAG}, v{vX+1}")
    if "rowmap" not in X: k("s_mov_b64 vcc, 0")
    else: loc_vcc(k)
    k(f"v_mov_b32 v{vt[6]}, v{vt[5]}")
    k(f"v_permlane32_swap_b32 v{vt[5]}, v{vt[6]}")
    k(f"v_rcp_f32 v{vt[6]}, v{vt[6]}")
    k(f"v_mul_f32 v{vt[2]}, v{vt[3]}, v{vt[6]}"); k(f"v_mul_f32 v{vt[3]}, v{vt[4]}, v{vt[6]}")
    for r in range(0, 12, 2): k(f"v_pk_mul_f32 {vr(O[0]+r,2)}, {vr(O[0]+r,2)}, {vr(vt[2],2)} op_sel_hi:[1,0]")
    for r in range(0, 12, 2): k(f"v_pk_fma_f32 {vr(O[0]+r,2)}, {vr(Sx[0]+r,2)}, {vr(vt[2],2)}, {vr(O[0]+r,2)} op_sel:[0,1,0] op_sel_hi:[1,1,1]")
    for r in range(6): k(f"v_cvt_pk_bf16_f32 v{P[0]+r}, v{O[0]+2*r}, v{O[0]+2*r+1}")
    k(f"v_permlane32_swap_b32 v{P[0]}, v{P[0]+2}")
    k(f"v_permlane32_swap_b32 v{P[0]+1}, v{P[0]+3}")
    dstores(k, [f"buffer_store_dwordx4 {vr(P[0],4)}, v{vK1}, s[{sWW}:{sWW+3}], s{s_t0} offen",
                "s_mov_b32 exec_hi, 0",
                f"buffer_store_dwordx2 {vr(P[0]+4,2)}, v{vK2}, s[{sWW}:{sWW+3}], s{s_t0} offen",
                "s_mov_b32 exec_hi, -1"])
    k(f"s_lshl_b32 s94, s{s_qb}, 5"); k(f"s_add_u32 s94, s94, s{s_hd}")
    k.stamp(6)

def phase345(k):
    k.pref = "p3"
    GB = 16384; NSLOT = 8; SB = NSLOT * GB
    PH = {3: dict(NT=2, KK=D, A_OFF=O_OFF, base=0), 4: dict(NT=4, KK=D, A_OFF=H_OFF, base=5), 5: dict(NT=2, KK=F, A_OFF=G_OFF, base=7)}
    for p in PH.values():
        p["GS"] = 16 // p["NT"]; p["GR"] = p["GS"] * 16; p["NG"] = (p["KK"] + p["GR"] - 1) // p["GR"]; p["NKS"] = p["KK"] // 16
    sW, sB3, sB4, sB5, sX, sO, sBi = 4, 8, 12, 16, 8, 12, 16
    s_r, s_cb, s_w, s_t0, s_t1, s_offA, s_it, s_wid, s_r4, s_cb4, s_idx, s_x = 20, 21, 22, 23, 24, 26, 28, S_WID, 29, 30, 31, 32
    s_ob = {3: 25, 4: 26, 5: 27}; s_m0 = 33
    sPl, sSc = 96, 52
    ASC = os.environ.get("ASC", " sc1")
    v_lane, v_t, v_h = 1, 2, 3
    vt = [12, 13, 14, 15]
    k("s_load_dwordx2 s[42:43], s[0:1], 32")
    k("s_load_dwordx4 s[44:47], s[0:1], 48")
    k("s_load_dwordx2 s[56:57], s[0:1], 64")
    k(f"s_lshr_b32 s{s_idx}, s2, 3"); k(f"s_and_b32 s{s_x}, s2, 7")
    k(f"s_mul_i32 s{s_cb}, s{s_idx}, 43"); k(f"s_lshr_b32 s{s_cb}, s{s_cb}, 7")
    k(f"s_mul_i32 s{s_t1}, s{s_cb}, 3"); k(f"s_sub_u32 s{s_r}, s{s_idx}, s{s_t1}")
    k(f"s_and_b32 s{s_r4}, s{s_idx}, 1"); k(f"s_lshr_b32 s{s_cb4}, s{s_idx}, 1")
    k(f"s_and_b32 s{s_w}, s{s_wid}, 3")
    k(f"s_cmp_lt_u32 s{s_wid}, 4")
    k(f"s_cbranch_scc1 {k.L('compute')}")
    vB2 = [4, 5, 6, 7]; vB4 = [8, 9, 10, 11]
    k(f"v_lshrrev_b32 v{vt[0]}, 3, v{v_lane}")
    k(f"v_and_b32 v{vt[1]}, 7, v{v_lane}")
    k(f"v_bfe_u32 v{vt[2]}, v{v_lane}, 4, 1")
    k(f"v_lshlrev_b32 v{vt[2]}, 2, v{vt[2]}")
    k(f"v_xor_b32 v{vt[1]}, v{vt[1]}, v{vt[2]}")
    k(f"v_mul_u32_u24 v{vt[0]}, 1280, v{vt[0]}")
    k(f"v_lshl_add_u32 v{vB2[0]}, v{vt[1]}, 4, v{vt[0]}")
    for ii in range(1, 4): k(f"v_add_u32 v{vB2[ii]}, {ii * (8 * 1280 - 1024)}, v{vB2[0]}")
    k(f"s_mul_i32 s{s_ob[5]}, s{s_w}, {32 * 1280}"); k(f"s_lshl_b32 s{s_t1}, s{s_cb}, 7"); k(f"s_add_u32 s{s_ob[5]}, s{s_ob[5]}, s{s_t1}")
    k(f"s_add_u32 s37, s{s_ob[5]}, {(14 - int(os.environ.get('NSTASH', '0'))) * 128 * 1280}")
    k(f"s_lshl_b32 s{s_m0}, s{s_w}, 12")
    k(f"v_lshrrev_b32 v{vt[0]}, 4, v{v_lane}")
    k(f"v_and_b32 v{vt[1]}, 15, v{v_lane}")
    k(f"v_lshlrev_b32 v{vt[2]}, 2, v{vt[0]}")
    k(f"v_xor_b32 v{vt[1]}, v{vt[1]}, v{vt[2]}")
    k(f"v_mul_u32_u24 v{vt[0]}, {F * 2}, v{vt[0]}")
    k(f"v_lshl_add_u32 v{vB4[0]}, v{vt[1]}, 4, v{vt[0]}")
    for ii in range(1, 4): k(f"v_add_u32 v{vB4[ii]}, {ii * (4 * F * 2 - 1024)}, v{vB4[0]}")
    k(f"s_mul_i32 s{s_ob[4]}, s{s_w}, {16 * F * 2}"); k(f"s_lshl_b32 s{s_t1}, s{s_cb4}, 8"); k(f"s_add_u32 s{s_ob[4]}, s{s_ob[4]}, s{s_t1}")
    k(f"s_add_u32 s{s_ob[4]}, s{s_ob[4]}, {192 * F * 2}")
    k(f"s_lshl_b32 s{s_t0}, s{s_cb4}, 10"); k(f"s_lshl_b32 s{s_t1}, s{s_w}, 8"); k(f"s_add_u32 s{s_t0}, s{s_t0}, s{s_t1}")
    k(f"s_add_u32 s{s_t0}, s{s_t0}, {C1_OFF}")
    k(f"v_lshlrev_b32 v{vt[3]}, 2, v{v_lane}")
    k(f"v_add_u32 v{vt[2]}, s{s_t1}, v{vt[3]}"); k(f"v_add_u32 v{vt[2]}, {SB}, v{vt[2]}")
    k("s_waitcnt lgkmcnt(0)")
    srd(k, sB4, 42, 43, D * F * 2); srd(k, sB5, 44, 45, D * F * 2); srd(k, sW, 40, 41, WS_END)
    q = []
    def issue(p, j):
        P = PH[p]; slot = (P["base"] + j) % NSLOT
        vB = vB4 if p == 4 else vB2; sB = {4: sB4, 5: sB5}[p]
        k(f"s_add_u32 m0, s{s_m0}, {slot * GB}")
        for ii in range(4):
            k(f"buffer_load_dwordx4 v{vB[ii]}, s[{sB}:{sB+3}], s{s_ob[p]} offen offset:{ii*1024} lds")
            q.append((p, j))
        k(f"s_add_u32 s{s_ob[p]}, s{s_ob[p]}, {P['GR'] * (F if p == 4 else D) * 2}")
    def need(item):
        if item in q:
            last = len(q) - 1 - q[::-1].index(item)
            k(f"s_waitcnt vmcnt({len(q) - 1 - last})")
            del q[:last + 1]
    def bar(item=None):
        if item is not None: need(item)
        k("s_barrier")
    vP = 16; s_q = 34
    k(f"s_lshl_b32 s{s_q}, s{s_idx}, 2"); k(f"s_add_u32 s{s_q}, s{s_q}, s{s_w}")
    k(f"s_lshl_b32 s{s_it}, s{s_x}, 12")
    k(f"v_lshl_add_u32 v{vP}, v{v_t}, 7, s{s_it}")
    k(f"v_lshl_add_u32 v{vP+1}, v{v_h}, 15, v{vP}")
    def apf(p):
        if ("apf%d" % p) not in X: return
        lab = k.L("apf%d_%d" % (p, k.uid)); k.uid += 1
        k(f"s_cmp_ge_u32 s{s_q}, {108 if p == 5 else 80}"); k(f"s_cbranch_scc1 {lab}")
        k(f"s_lshl_b32 s{s_it}, s{s_q}, {16 if p == 5 else 15}"); k(f"s_add_u32 s{s_it}, s{s_it}, {PH[p]['A_OFF']}")
        k(f"buffer_load_dword v{vP+2}, v{vP + (1 if p == 5 else 0)}, s[{sW}:{sW+3}], s{s_it} offen sc1")
        k.label(lab)
        k("s_waitcnt vmcnt(0)"); q[:] = []
    k("s_waitcnt vmcnt(0)")
    bar()
    k(f"s_cmp_ge_u32 s{s_idx}, 30"); k(f"s_cbranch_scc1 L_exit")
    if "cpf2" in X:
        k(f"s_cmp_lg_u32 s{s_w}, 0"); k(f"s_cbranch_scc1 {k.L('ncp')}")
        code_prefetch(k, "L_p3_pb3", sB3, s_it, 24, 25, v_lane, per=6)
        k.label(k.L("ncp"))
    bar()
    k(f"s_cmp_ge_u32 s{s_idx}, 28"); k(f"s_cbranch_scc1 {k.L('lskip4')}")
    def piece(p, g, ii):
        P = PH[p]; vB = vB4 if p == 4 else vB2; sB = {4: sB4, 5: sB5}[p]
        if ii == 0: k(f"s_add_u32 m0, s{s_m0}, {((P['base'] + g) % NSLOT) * GB}")
        k(f"buffer_load_dwordx4 v{vB[ii]}, s[{sB}:{sB+3}], s{s_ob[p]} offen offset:{ii*1024} lds")
        q.append((p, g))
        if ii == 3: k(f"s_add_u32 s{s_ob[p]}, s{s_ob[p]}, {P['GR'] * (F if p == 4 else D) * 2}")
    todo = [(4, g, ii) for g in range(3, 10) for ii in range(4)] + [(5, g, ii) for g in range(8) for ii in range(4)]
    P3 = [int(v) for v in os.environ.get("P3", "0,0,0,0,12,0").split(",")]
    for j in range(6):
        bar()
        for _ in range(P3[j]):
            p_, g, ii = todo.pop(0)
            assert p_ == 4 and (g - 3 + 2 <= j or (j == 5 and g < 8))
            piece(p_, g, ii)
    bar()
    k(f"buffer_load_dword v{vt[1]}, v{vt[3]}, s[{sW}:{sW+3}], s{s_t0} offen sc1"); q.append(("c", 0))
    P4 = [int(v) for v in os.environ.get("P4", "3,3,3,3,3,3,3,3,3,3").split(",")]
    for j in range(10):
        assert (4, j, 3) not in todo
        bar((4, j))
        if j == 6:
            need(("c", 0))
            k(f"ds_write_b32 v{vt[2]}, v{vt[1]}")
        for _ in range(P4[j]):
            p_, g, ii = todo[0]
            if (p_ == 4 and g >= 8 and g - 8 + 2 > j) or (p_ == 5 and g + 4 > j): break
            piece(*todo.pop(0))
            if "psl4" in X: k("s_nop 15")
    k("s_waitcnt lgkmcnt(0)")
    bar()
    THIN = int(os.environ.get("THIN", "6"))
    while todo:
        if THIN >= 0 and todo[0][2] % 2 == 0: k(f"s_waitcnt vmcnt({THIN})")
        piece(*todo.pop(0))
    bar()
    k(f"s_branch {k.L('l5')}")
    k.label(k.L("lskip4"))
    for j in range(6): bar()
    for j in range(8): issue(5, j)
    if "wbh" in X:
        k(f"s_cmp_lg_u32 s{s_q}, 112"); k(f"s_cbranch_scc1 {k.L('l5')}")
        k("s_waitcnt vmcnt(0)"); k("s_sleep 64")
        k("buffer_wbl2 sc1")
    k.label(k.L("l5"))
    k("s_waitcnt vmcnt(0)"); q[:] = []
    bar()
    k(f"s_cmp_lg_u32 s{s_w}, 3"); k("s_cbranch_scc1 L_exit")
    k(f"s_sub_u32 s{s_ob[5]}, s{s_ob[5]}, {3 * 32 * 1280}")
    pieces = [(g, ww, ii) for g in range(8, 14) for ww in range(4 if g < 13 else 2) for ii in range(4)]
    PPB = int(os.environ.get("PPB", "9"))
    for j in range(14):
        bar((5, j))
        n = 0
        while pieces and n < PPB and pieces[0][0] - 8 + 2 <= j:
            g, ww, ii = pieces.pop(0); n += 1
            assert g > j
            if ii == 0: k(f"s_mov_b32 m0, {((7 + g) % NSLOT) * GB + ww * 4096}")
            k(f"buffer_load_dwordx4 v{vB2[ii]}, s[{sB5}:{sB5+3}], s{s_ob[5]} offen offset:{ii*1024} lds")
            q.append((5, g))
            if ii == 3: k(f"s_add_u32 s{s_ob[5]}, s{s_ob[5]}, {32 * 1280}")
        if len(q) > 40:
            k("s_waitcnt vmcnt(40)"); del q[:len(q) - 40]
    assert not pieces
    if "sta" in X: k.dump(0, 14, s_wid)
    k("s_endpgm")

    k.label(k.L("compute"))
    vBr = [4, 5, 6, 7]; vA = 8; vS = 9; vO = 10; v_tag = 11
    RES = 16; BI = 32; ACC = 48
    DIST = int(os.environ.get('DIST', '6')); NFB = 8
    NFAS = {3: 32, 4: int(os.environ.get('NFA4', '24')), 5: int(os.environ.get('NFA5', '32'))}
    s_tok3 = 34; s_act = 25
    k(f"s_mul_i32 s{s_t0}, s{s_r}, 3"); k(f"s_add_u32 s{s_t0}, s{s_t0}, s{s_w}")
    k(f"s_cmp_eq_u32 s{s_w}, 3"); k(f"s_cselect_b32 s{s_act}, 8, s{s_t0}")
    k(f"s_lshl_b32 s{s_t1}, s{s_x}, 3"); k(f"s_add_u32 s{s_t0}, s{s_t0}, s{s_t1}"); k(f"s_lshl_b32 s{s_tok3}, s{s_t0}, 5")
    for c in range(4): k(f"s_mov_b32 s{48 + c}, {2*c*CH}")
    def nbar(n):
        for _ in range(n): k("s_barrier")
    def setup(p):
        if p == 4:
            k(f"s_lshl_b32 s{s_t0}, s{s_x}, 1"); k(f"s_add_u32 s{s_t0}, s{s_t0}, s{s_r4}"); k(f"s_lshl_b32 s{s_t0}, s{s_t0}, 2")
            k(f"s_add_u32 s{s_t0}, s{s_t0}, s{s_w}"); k(f"s_lshl_b32 s{s_t0}, s{s_t0}, 5")
            k(f"v_add_u32 v{vt[0]}, s{s_t0}, v{v_t}")
        else:
            k(f"v_add_u32 v{vt[0]}, s{s_tok3}, v{v_t}")
        k(f"v_lshlrev_b32 v{vA}, 15, v{v_h}")
        k(f"v_lshl_add_u32 v{vA}, v{vt[0]}, 4, v{vA}")
        k(f"s_mov_b32 s{s_offA}, {PH[p]['A_OFF']}")
    def setup2(p):
        late = []
        if p == 4:
            k(f"s_lshl_b32 s{s_t0}, s{s_cb4}, 19"); k(f"s_add_u32 s{s_t0}, s{s_t0}, {G_OFF}")
            k(f"v_add_u32 v{vO}, s{s_t0}, v{vA}")
            k(f"v_mul_u32_u24 v{vt[1]}, {5 * 16384}, v{v_h}")
            k(f"v_lshl_add_u32 v{vS}, v{vt[0]}, 3, v{vt[1]}")
            for i in range(5):
                late.append([f"s_mov_b32 s{s_t0}, {HS_OFF + i * 16384}",
                             f"buffer_load_dwordx2 {vr(BI + 2*i, 2)}, v{vS}, s[{sW}:{sW+3}], s{s_t0} offen sc1"])
            k(f"v_bfe_u32 v{vt[0]}, v{v_lane}, 2, 2")
            k(f"v_lshl_add_u32 v{vt[1]}, v{v_h}, 2, v{vt[0]}")
            k(f"v_lshlrev_b32 v{vt[1]}, 8, v{vt[1]}")
            k(f"v_lshl_add_u32 v{vt[0]}, v{vt[0]}, 6, v{vt[1]}")
        else:
            k(f"s_lshl_b32 s{s_t1}, s{s_cb}, 7")
            k(f"v_mul_u32_u24 v{vt[1]}, 1280, v{vt[0]}")
            k(f"v_lshl_add_u32 v{vt[1]}, v{v_h}, 4, v{vt[1]}")
            if p == 3:
                k(f"v_add_u32 v{vt[1]}, s{s_t1}, v{vt[1]}")
                k(f"s_lshl_b32 s{s_t0}, s{s_cb}, 18"); k(f"s_add_u32 s{s_t0}, s{s_t0}, {H_OFF}")
                k(f"v_add_u32 v{vO}, s{s_t0}, v{vA}")
                k(f"s_lshl_b32 s{s_t0}, s{s_cb}, 14"); k(f"s_add_u32 s{s_t0}, s{s_t0}, {HS_OFF}")
                k(f"v_lshl_add_u32 v{vS}, v{vt[0]}, 3, s{s_t0}")
            else:
                k(f"v_add_u32 v{vO}, s{s_t1}, v{vt[1]}")
                srd(k, sO, 56, 57, S * D * 2); srd(k, sBi, 46, 47, D * 2)
                k(f"v_lshlrev_b32 v{vt[2]}, 3, v{v_h}")
                for c in range(8):
                    k(f"buffer_load_dwordx2 {vr(BI + 2*c, 2)}, v{vt[2]}, s[{sBi}:{sBi+3}], s{s_t1} offen offset:{16*c}")
            k(f"v_bfe_u32 v{vt[0]}, v{v_lane}, 2, 2")
            k(f"v_lshl_add_u32 v{vt[0]}, v{v_h}, {3 if p == 3 else 2}, v{vt[0]}")
            k(f"v_lshlrev_b32 v{vt[0]}, 7, v{vt[0]}")
            k(f"v_bfe_u32 v{vt[3]}, v{v_lane}, 3, 1")
            k(f"v_lshl_add_u32 v{vt[0]}, v{vt[3]}, 6, v{vt[0]}")
        k(f"v_bfe_u32 v{vt[3]}, v{v_lane}, 4, 1")
        k(f"v_lshl_add_u32 v{vt[0]}, v{vt[3]}, 5, v{vt[0]}")
        k(f"v_and_b32 v{vt[3]}, 3, v{v_lane}")
        k(f"v_lshl_add_u32 v{vBr[0]}, v{vt[3]}, 3, v{vt[0]}")
        for j in range(1, PH[p]["NT"]): k(f"v_xor_b32 v{vBr[j]}, {64 * j}, v{vBr[0]}")
        return late
    def aload(p, i, FA):
        NFA = NFAS[p]
        return [f"buffer_load_dwordx4 {vr(FA + (i % NFA) * 4, 4)}, v{vA}, s[{sW}:{sW+3}], s{s_offA} offen{ASC}",
                f"s_add_u32 s{s_offA}, s{s_offA}, {2 * CH}"]
    def gemm(p, late, pre_issued, mid={}):
        P = PH[p]; NT = P["NT"]; GS = P["GS"]; NKS = P["NKS"]
        FB = ACC + 16 * NT; FA = FB + NFB * 4
        NFA = NFAS[p]; LA = min(NFA - 2, int(os.environ.get("LA%d" % p, "10" if p == 4 else "14"))); LI = int(os.environ.get("LI%d" % p, "6" if p == 4 else "8"))
        for i in range(LI):
            for l in aload(p, i, FA): k(l)
        nis = LI
        cur = [0]
        NM = NKS * NT; KSB = GB // GS
        def bread(m):
            ks, j = divmod(m, NT)
            G, qq = divmod(ks, GS)
            off = ((P["base"] + G) % NSLOT) * GB + qq * KSB
            r = []
            if qq == 0 and j == 0: r.append("s_barrier")
            base = (off // 65536) * 65536
            if base != cur[0]:
                for a in vBr[:NT]: r.append(f"v_add_u32 v{a}, {(base - cur[0]) & 0xffffffff:#x}, v{a}")
                cur[0] = base
            for e in range(2):
                r.append(f"ds_read_b64_tr_b16 {vr(FB + (m % NFB) * 4 + 2*e, 2)}, v{vBr[j]} offset:{off - base + e * (KSB // (4 if p == 3 else 2))}")
            return r
        if K.prof: k("s_waitcnt lgkmcnt(0)")
        for m in range(DIST):
            for l in bread(m): k(l)
        vq = [("A", i) for i in range(LI)]
        for m in range(NM):
            ks, j = divmod(m, NT)
            nout = 2 * (min(NM, m + DIST) - m - 1)
            if j == 0:
                pos = vq.index(("A", ks))
                k(f"s_waitcnt vmcnt({len(vq) - 1 - pos}) lgkmcnt({nout})")
            else:
                k(f"s_waitcnt lgkmcnt({nout})")
            cc = vr(ACC + 16*j, 16) if (ks or p != 4) else "0"
            k(f"v_mfma_f32_32x32x16_bf16 {vr(ACC + 16*j, 16)}, {vr(FB + (m % NFB) * 4, 4)}, {vr(FA + (ks % NFA) * 4, 4)}, {cc}")
            if ("stg%d" % p) in X and j == 0 and ks in (0, NKS // 5, 2 * NKS // 5, 3 * NKS // 5, 4 * NKS // 5):
                k.stamp(2 + [0, NKS // 5, 2 * NKS // 5, 3 * NKS // 5, 4 * NKS // 5].index(ks))
            if m + DIST < NM:
                for l in bread(m + DIST): k(l)
            if m in mid:
                for l in mid[m](len(vq) - 1 - max(i for i, e in enumerate(vq) if e[0] == "R") if any(e[0] == "R" for e in vq) else 0): k(l)
            if j in (0, NT // 2) and nis < min(NKS, ks + 1 + LA):
                for l in aload(p, nis, FA): k(l)
                vq.append(("A", nis)); nis += 1
            if j == 0 and late and ks + LA + 4 >= NKS:
                for l in late.pop(0): k(l)
                vq.append(("R", 0))
        assert not late
        if ("stg%d" % p) in X: k.stamp(0)
        return FB, FA
    def sync(pdone, pwait, nflags, name, slp=0, extra=False):
        publish(k, sW, pdone, 94, s_t0, vt[0], vt[1], not (pdone == 2 and "rowmap" not in X))
        k(f"v_min_u32 v{vt[0]}, {nflags - 1}, v{v_lane}")
        k(f"s_lshl_b32 s{s_t0}, s{s_x}, 12"); k(f"s_add_u32 s{s_t0}, s{s_t0}, {FL_OFF + (pwait - 1) * 32768}")
        k(f"v_lshl_add_u32 v{vt[0]}, v{vt[0]}, 7, s{s_t0}")
        if extra:
            k(f"s_lshl_b32 s{s_t0}, s{s_cb4}, 11"); k(f"s_add_u32 s{s_t0}, s{s_t0}, {FL_OFF + 15 * 128}")
            k(f"v_writelane_b32 v{vt[0]}, s{s_t0}, 63")
        poll(k, sW, [vt[0]], [vt[1]], s_it, name, slp)

    setup(3)
    k("s_waitcnt lgkmcnt(0)")
    srd(k, sW, 40, 41, WS_END)
    late = setup2(3)
    k(f"s_cmp_ge_u32 s{s_act}, 8"); k(f"s_cbranch_scc1 {k.L('nores')}")
    def res_to_acc(R):
        for c in range(4 if R == XR else 0):
            k(f"v_permlane32_swap_b32 v{R + 4*c}, v{R + 4*c + 2}")
            k(f"v_permlane32_swap_b32 v{R + 4*c + 1}, v{R + 4*c + 3}")
        for r in range(16):
            k(f"v_lshlrev_b32 v{ACC + 2*r}, 16, v{R + r}")
            k(f"v_and_b32 v{ACC + 2*r + 1}, 0xffff0000, v{R + r}")
    k("s_waitcnt vmcnt(0)")
    k("s_barrier")
    k(f"s_cmp_ge_u32 s{s_idx}, 30"); k(f"s_cbranch_scc1 L_exit")
    res_to_acc(XR)
    k("s_barrier")
    k.stamp(7)
    FB, FA = gemm(3, late, False)
    if "st45" in X: k.stamp(2)
    k(f"v_mov_b32 v{vt[0]}, 0"); k(f"v_mov_b32 v{vt[1]}, 0"); k(f"s_mov_b32 s{s_t1}, 0x3f803f80")
    loc_vcc(k)
    for hf in range(2):
        for r in range(8*hf, 8*hf + 8):
            k(f"v_cvt_pk_bf16_f32 v{RES + r}, v{ACC + 2*r}, v{ACC + 2*r + 1}")
        dstores(k, [f"buffer_store_dwordx4 {vr(RES + 4*c, 4)}, v{vO}, s[{sW}:{sW+3}], s{48 + c} offen" for c in (2*hf, 2*hf + 1)])
    for r in range(16):
        k(f"v_dot2c_f32_bf16 v{vt[0]}, s{s_t1}, v{RES + r}")
        k(f"v_dot2c_f32_bf16 v{vt[1]}, v{RES + r}, v{RES + r}")
    k(f"v_mov_b32 v{vt[2]}, v{vt[0]}"); k(f"v_mov_b32 v{vt[3]}, v{vt[1]}")
    k(f"v_permlane32_swap_b32 v{vt[0]}, v{vt[2]}"); k(f"v_permlane32_swap_b32 v{vt[1]}, v{vt[3]}")
    k(f"v_add_f32 v{vt[0]}, v{vt[0]}, v{vt[2]}"); k(f"v_add_f32 v{vt[1]}, v{vt[1]}, v{vt[3]}")
    k("s_mov_b32 exec_hi, 0")
    dstores(k, [f"buffer_store_dwordx2 {vr(vt[0], 2)}, v{vS}, s[{sW}:{sW+3}], 0 offen"])
    k("s_mov_b32 exec_hi, -1")
    k(f"s_branch {k.L('pb3')}")
    k.label(k.L("nores"))
    k("s_waitcnt vmcnt(0)")
    k("s_barrier")
    k(f"s_cmp_lg_u32 s{s_w}, 3"); k(f"s_cbranch_scc1 {k.L('ns3')}")
    k(f"s_cmp_lt_u32 s{s_idx}, 30"); k(f"s_cbranch_scc1 {k.L('s3')}")
    publish(k, sW, 2, 94, s_t0, vt[0], vt[1], "rowmap" in X)
    k("s_endpgm")
    k.label(k.L("s3"))
    sync(2, 2, 32, "3")
    k(f"s_cmp_lg_u32 s{s_idx}, 0"); k(f"s_cbranch_scc1 {k.L('ns3')}")
    k(f"s_lshl_b32 s{s_t0}, s{s_x}, 7"); k(f"s_add_u32 s{s_t0}, s{s_t0}, {GD_OFF}")
    k(f"v_mov_b32 v{vt[0]}, 0"); k(f"v_mov_b32 v{vt[1]}, s{S_TAG}")
    k("s_mov_b64 exec, 1")
    k(f"buffer_store_dword v{vt[1]}, v{vt[0]}, s[{sW}:{sW+3}], s{s_t0} offen sc1")
    k("s_mov_b64 exec, -1")
    k.label(k.L("ns3"))
    k(f"s_cmp_ge_u32 s{s_idx}, 30"); k(f"s_cbranch_scc1 L_exit")
    nbar(4)
    k(f"s_cmp_lg_u32 s{s_w}, 3"); k(f"s_cbranch_scc1 {k.L('ngd')}")
    k(f"v_and_b32 v{vt[0]}, 7, v{v_lane}"); k(f"v_lshlrev_b32 v{vt[0]}, 7, v{vt[0]}"); k(f"v_add_u32 v{vt[0]}, {GD_OFF}, v{vt[0]}")
    k(f"buffer_load_dword v{vt[1]}, v{vt[0]}, s[{sW}:{sW+3}], 0 offen sc1")
    k("s_barrier")
    k("s_waitcnt vmcnt(0)")
    k(f"v_cmp_ne_u32 vcc, s{S_TAG}, v{vt[1]}")
    k(f"s_cbranch_vccz {k.L('gdok')}")
    poll(k, sW, [vt[0]], [vt[1]], s_it, "gd")
    k(f"s_branch {k.L('gdok')}")
    k.label(k.L("ngd"))
    k("s_barrier")
    k.label(k.L("gdok"))
    k("s_barrier")
    k.label(k.L("pb3"))
    k(f"s_lshl_b32 s94, s{s_x}, 5"); k(f"s_add_u32 s94, s94, s{s_idx}")
    k(f"s_cmp_ge_u32 s{s_idx}, 28"); k(f"s_cbranch_scc1 {k.L('skip4')}")
    setup(4)
    late = setup2(4)
    k("s_waitcnt vmcnt(0)")
    k("s_barrier")
    if "st2" not in X: k.stamp(8)
    k(f"s_cmp_lg_u32 s{s_w}, 3"); k(f"s_cbranch_scc1 {k.L('ns4')}")
    sync(3, 3, 30, "4", extra=True)
    k.label(k.L("ns4"))
    k("s_barrier")
    if "cprio" in X: k("s_setprio 2")
    if "st2" not in X: k.stamp(9)
    PS = BI; MR = BI + 12
    kk = K("tmp")
    for i in range(1, 5): kk(f"v_add_f32 v{PS}, v{PS}, v{PS + 2*i}"); kk(f"v_add_f32 v{PS+1}, v{PS+1}, v{PS + 2*i + 1}")
    kk(f"v_mov_b32 v{PS+2}, v{PS}"); kk(f"v_mov_b32 v{PS+3}, v{PS+1}")
    kk(f"v_permlane32_swap_b32 v{PS}, v{PS+2}"); kk(f"v_permlane32_swap_b32 v{PS+1}, v{PS+3}")
    kk(f"v_add_f32 v{PS}, v{PS}, v{PS+2}"); kk(f"v_add_f32 v{PS+1}, v{PS+1}, v{PS+3}")
    rowstat_math(kk, PS, PS + 1, MR, MR + 1, PS + 2, True)
    kk(f"v_mul_f32 v{MR+1}, {f32(GS)}, v{MR+1}")
    kk(f"v_lshlrev_b32 v{vt[0]}, 4, v{v_h}"); kk(f"v_add_u32 v{vt[0]}, {SB}, v{vt[0]}")
    st = kk.lines; mid = {}
    m0_ = 160 - (len(st) + 1) // 2 - 1
    for i in range(0, len(st), 2):
        mid[m0_ + i // 2] = (lambda n, i=i: ([f"s_waitcnt vmcnt({n})"] if i == 0 else []) + st[i:i + 2])
    FB, FA = gemm(4, late, False, mid)
    if "st45" in X: k.stamp(3)
    if "st4" in X: k.stamp(2)
    k("s_barrier")
    if "st4" in X: k.stamp(3)
    T = FB; CSB = [FB + 32, FB + 64]
    def csread(nt):
        for rq in range(8):
            k(f"ds_read_b128 {vr(CSB[nt % 2] + rq*4, 4)}, v{vt[0]} offset:{(rq // 4) * 512 + nt*128 + (rq % 4)*32}")
    csread(0)
    k(f"s_mov_b32 s58, {f32(GC0 / GS)}"); k(f"s_mov_b32 s59, {f32(math.log2(GS))}")
    k(f"s_mov_b32 s36, {f32(GS)}")
    if "gsc1" in X: k(f"s_mov_b32 s{S_LOC}, 0")
    loc_vcc(k)
    for nt in range(4):
        if nt == 2:
            k(f"s_cmp_eq_u32 s{s_cb4}, 13"); k(f"s_cbranch_scc1 {k.L('done4')}")
            k(f"v_add_u32 v{vO}, {8 * CH}, v{vO}")
        k("s_waitcnt lgkmcnt(0)")
        if nt < 3: csread(nt + 1)
        a = ACC + 16 * nt; CS = CSB[nt % 2]; B1 = CS + 16
        for p in range(8):
            x = vr(a + 2*p, 2)
            k(f"v_pk_fma_f32 {x}, {vr(CS + 2*p, 2)}, {vr(MR,2)}, {x} op_sel_hi:[1,0,1]")
        for p in range(8):
            x = vr(a + 2*p, 2)
            k(f"v_pk_fma_f32 {x}, {x}, {vr(MR,2)}, {vr(B1 + 2*p, 2)} op_sel:[0,1,0] op_sel_hi:[1,1,1]")
        for p in range(8):
            x = vr(a + 2*p, 2); t = vr(T + 2*p, 2)
            k(f"v_pk_fma_f32 {t}, {x}, {x}, s[58:59] op_sel_hi:[1,1,0]")
        for p in range(8):
            x = vr(a + 2*p, 2); t = vr(T + 2*p, 2)
            k(f"v_pk_fma_f32 {t}, {t}, {x}, s[58:59] op_sel:[0,0,1] op_sel_hi:[1,1,1] neg_lo:[0,1,0] neg_hi:[0,1,0]")
        for r in range(16): k(f"v_exp_f32 v{T + r}, v{T + r}")
        for p in range(8):
            t = vr(T + 2*p, 2)
            k(f"v_pk_add_f32 {t}, {t}, s[36:37] op_sel_hi:[1,0]")
        for r in range(16): k(f"v_rcp_f32 v{T + r}, v{T + r}")
        for p in range(8):
            x = vr(a + 2*p, 2); t = vr(T + 2*p, 2)
            k(f"v_pk_mul_f32 {x}, {x}, {t}")
        Pk = T + 16 + (nt % 2) * 8
        for p in range(8):
            k(f"v_cvt_pk_bf16_f32 v{Pk + p}, v{a + 2*p}, v{a + 2*p + 1}")
        sts = [f"buffer_store_dwordx4 {vr(Pk + 4*pq,4)}, v{vO}, s[{sW}:{sW+3}], s{48 + (nt % 2)*2 + pq} offen" for pq in range(2)]
        if nt < int(os.environ.get("GWT", "4")):
            for l in sts: k(l + " sc1")
        else:
            dstores(k, sts)
    k.label(k.L("done4"))
    if "st4" in X: k.stamp(4)
    k("s_waitcnt vmcnt(0) lgkmcnt(0)")
    if "st4" in X: k.stamp(5)
    k("s_barrier")
    k.stamp(10)
    k(f"s_cmp_lg_u32 s{s_w}, 3"); k(f"s_cbranch_scc1 {k.L('p5')}")
    sync(4, 4, 28, "5")
    k(f"s_branch {k.L('p5')}")
    k.label(k.L("skip4"))
    k("s_waitcnt vmcnt(0)")
    k("s_barrier")
    k(f"s_cmp_lg_u32 s{s_w}, 3"); k(f"s_cbranch_scc1 {k.L('p5')}")
    sync(3, 4, 28, "6", 8)
    k.label(k.L("p5"))
    k(f"s_cmp_ge_u32 s{s_act}, 8"); k(f"s_cbranch_scc1 {k.L('idle5')}")
    setup(5)
    if "hclean" in X:
        k(f"s_lshl_b32 s{s_t0}, s{s_cb}, 18"); k(f"s_add_u32 s{s_t0}, s{s_t0}, {H_OFF}")
        k(f"v_add_u32 v{vS}, s{s_t0}, v{vA}")
    late = setup2(5)
    if "hclean" in X:
        for c in range(4):
            late.append([f"s_mov_b32 s{s_t0}, {2*c*CH}", f"buffer_store_dwordx4 {vr(RES + 4*c, 4)}, v{vS}, s[{sW}:{sW+3}], s{s_t0} offen sc1"])
    res_to_acc(RES)
    k("s_waitcnt vmcnt(0)")
    T = ACC + 64
    for r in range(16):
        k(f"v_lshlrev_b32 v{T + 2*r}, 16, v{BI + r}")
        k(f"v_and_b32 v{T + 2*r + 1}, 0xffff0000, v{BI + r}")
    for r in range(16):
        k(f"v_pk_add_f32 {vr(ACC + 2*r, 2)}, {vr(ACC + 2*r, 2)}, {vr(T + 2*r, 2)}")
    if "nootr" not in X:
        k(f"s_lshl_b32 s{s_t0}, s{s_w}, 12"); k(f"s_add_u32 s{s_t0}, s{s_t0}, {MRG}")
        k(f"v_and_b32 v{vt[0]}, 7, v{v_lane}"); k(f"v_xor_b32 v{vt[1]}, v{vt[0]}, v{v_h}")
        k(f"v_lshl_add_u32 v{vt[2]}, v{v_t}, 7, s{s_t0}")
        for c in range(4):
            k(f"v_xor_b32 v{vt[3]}, {2 * c}, v{vt[1]}"); k(f"v_lshl_add_u32 v{BI + c}, v{vt[3]}, 4, v{vt[2]}")
        k(f"v_lshrrev_b32 v{vt[1]}, 3, v{v_lane}")
        k(f"v_xor_b32 v{vt[3]}, v{vt[0]}, v{vt[1]}")
        k(f"v_lshl_add_u32 v{vt[2]}, v{vt[1]}, 7, s{s_t0}"); k(f"v_lshl_add_u32 v{BI + 4}, v{vt[3]}, 4, v{vt[2]}")
        k(f"v_add_u32 v{vt[1]}, s{s_tok3}, v{vt[1]}"); k(f"v_mul_u32_u24 v{vt[1]}, 1280, v{vt[1]}")
        k(f"v_lshl_add_u32 v{vt[1]}, v{vt[0]}, 4, v{vt[1]}"); k(f"v_add_u32 v{BI + 5}, s{s_t1}, v{vt[1]}")
        for i in range(4): k(f"s_mov_b32 s{48 + i}, {i * 8 * 1280}")
    k("s_barrier")
    k.stamp(11)
    FB, FA = gemm(5, late, False)
    if "st4" in X: k.stamp(6)
    if "st45" in X: k.stamp(4)
    OSC = os.environ.get("OSC", " sc1")
    for c in range(4):
        for r in range(4*c, 4*c + 4):
            k(f"v_cvt_pk_bf16_f32 v{RES + r}, v{ACC + 2*r}, v{ACC + 2*r + 1}")
        k(f"v_permlane32_swap_b32 v{RES + 4*c}, v{RES + 4*c + 2}")
        k(f"v_permlane32_swap_b32 v{RES + 4*c + 1}, v{RES + 4*c + 3}")
        if "nootr" not in X:
            k(f"ds_write_b128 v{BI + c}, {vr(RES + 4*c, 4)}")
        else:
            k(f"buffer_store_dwordx4 {vr(RES + 4*c, 4)}, v{vO}, s[{sO}:{sO+3}], 0 offen offset:{32*c}{OSC}")
    if "nootr" not in X:
        for i in range(4): k(f"ds_read_b128 {vr(ACC + 4*i, 4)}, v{BI + 4} offset:{i * 1024}")
        for i in range(4):
            k(f"s_waitcnt lgkmcnt({3 - i})")
            k(f"buffer_store_dwordx4 {vr(ACC + 4*i, 4)}, v{BI + 5}, s[{sO}:{sO+3}], s{48 + i} offen{OSC}")
    if "g3" in X: gate(k, 70)
    k.dump(0, 14, s_wid)
    k("s_endpgm")
    k.label(k.L("idle5"))
    k("s_barrier")
    if "wbl2" in X:
        k(f"s_cmp_lg_u32 s{s_idx}, 0"); k("s_cbranch_scc1 L_exit")
        k("buffer_wbl2 sc1")
    k.label("L_exit")
    k("s_endpgm")
    emit_slow(k)

NAME = "sequential_preLN__mha_block__mixer_channel_mlp__prompt"
HEADER = open(f"cdna_kernels/{NAME}.s.ref").read().split("; Override")[0]

def build(path):
    k = K(NAME)
    phase1(k); phase2(k); phase345(k)
    lds = 163840 if int(os.environ.get('DEEP', '0')) else MRG + 8 * 3328
    t = HEADER
    if "aslist" in X:
        t += f"; @launch kernel={k.name}_kernel grid=(256,1,1) block=(512,1,1) lds={lds}\n"
    else:
        t += f"; @launch grid=(256,1,1) block=(512,1,1) lds={lds}\n"
    t += '.amdgcn_target "amdgcn-amd-amdhsa--gfx950"\n.text\n'
    t += kernel_text(k, 256)
    t += "L_code_end:\n"
    t += '.section .rodata,"a"\n'
    t += kernel_desc(k, 256, 96)
    open(path, "w").write(t)

if __name__ == "__main__":
    if len(sys.argv) > 2 and sys.argv[2] == "prof": K.prof = True
    build(sys.argv[1] if len(sys.argv) > 1 else f"cdna_kernels/{NAME}.s")
```

```python
import sys, math, struct, os
X = set(os.environ.get("EXP", "").split(","))
from asmlib import K, vr, sr, kernel_text, kernel_desc

S = 2048; D = 640; F = 1728; H = 32; DH = 20
QK_OFF = 0x0
V_OFF = 0x500000
QKV_END = 0x780000
O_OFF = 0x0
H_OFF = 0x280000
G_OFF = 0x780000
HS_OFF = 0x500000
C1_OFF = 0x1370000
ST_OFF = 0x1378000
FL_OFF = 0x1400000
FX_OFF = 0x1420000
TAG_OFF = 0x1428000
GD_OFF = 0x1428400
WS_END = 0x1428800
S_LOC = 95
LOCW = 131072 + 1024
S_TAG = 88; S_WID = 89
XR = 216; XRA = 215
MRG = 131072 + 2048
G_END = 0x1340000
CH = S * 16
EPS = 1e-5
GC0 = 2.0 * math.log2(math.e) * math.sqrt(2.0 / math.pi)
GS = (GC0 * 0.044715) ** (1.0 / 3.0)

def f32(x):
    return "0x%08x" % struct.unpack("<I", struct.pack("<f", x))[0]

def srd(k, d, lo, hi, size):
    k(f"s_mov_b32 s{d}, s{lo}")
    k(f"s_and_b32 s{d+1}, s{hi}, 0xffff")
    k(f"s_mov_b32 s{d+2}, {size:#x}")
    k(f"s_mov_b32 s{d+3}, 0x00020000")

def code_prefetch(k, first, sd, st, vaddr, vdst, v_lane, per=12):
    lab = k.L("pc%d" % k.uid); k.uid += 1
    k(f"s_getpc_b64 s[{sd}:{sd+1}]")
    k.label(lab)
    k(f"s_add_u32 s{sd}, s{sd}, {first}-{lab}")
    k(f"s_addc_u32 s{sd+1}, s{sd+1}, {'-1' if first == k.name + '_kernel' else '0'}")
    k(f"s_and_b32 s{sd+1}, s{sd+1}, 0xffff")
    k(f"s_mov_b32 s{sd+2}, L_code_end-{first}")
    k(f"s_mov_b32 s{sd+3}, 0x00020000")
    k(f"s_lshr_b32 s{st}, s2, 3"); k(f"s_mul_i32 s{st}, s{st}, {per * 128}")
    k(f"v_lshlrev_b32 v{vaddr}, 7, v{v_lane}")
    k(f"s_mov_b64 exec, {(1 << per) - 1:#x}")
    k(f"buffer_load_dword v{vdst}, v{vaddr}, s[{sd}:{sd+3}], s{st} offen")
    k("s_mov_b64 exec, -1")

def gate(k, us):
    lab = k.L("gate%d" % k.uid); k.uid += 1
    k("s_load_dwordx2 s[80:81], s[0:1], 80"); k("s_waitcnt lgkmcnt(0)")
    k(f"s_add_u32 s80, s80, {TAG_OFF + 4}"); k("s_addc_u32 s81, s81, 0")
    k("s_load_dword s82, s[80:81], 0"); k("s_waitcnt lgkmcnt(0)")
    k.label(lab)
    k("s_memrealtime s[84:85]"); k("s_waitcnt lgkmcnt(0)")
    k("s_sub_u32 s84, s84, s82")
    k(f"s_cmp_lt_u32 s84, {us * 100}"); k(f"s_cbranch_scc1 {lab}")

def gate2(k, us):
    lab = k.L("gt%d" % k.uid); k.uid += 1
    k.label(lab)
    k("s_memrealtime s[84:85]"); k("s_waitcnt lgkmcnt(0)")
    k("s_sub_u32 s84, s84, s86")
    k(f"s_cmp_lt_u32 s84, {us * 100}"); k(f"s_cbranch_scc1 {lab}")

def rowstat_math(k, s_, q_, nm, rs, t, double):
    k(f"v_mul_f32 v{nm}, {f32(-1.0 / D)}, v{s_}")
    k(f"v_mul_f32 v{q_}, {f32(1.0 / D)}, v{q_}")
    k(f"v_fma_f32 v{q_}, -v{nm}, v{nm}, v{q_}")
    k(f"v_max_f32 v{q_}, 0, v{q_}")
    k(f"v_add_f32 v{t}, {f32(EPS)}, v{q_}")
    k(f"v_rsq_f32 v{rs}, v{t}")
    if double:
        k(f"v_mul_f32 v{t}, v{rs}, v{rs}")
        k(f"v_mul_f32 v{t}, v{t}, v{q_}")
        k(f"v_add_f32 v{t}, {f32(EPS)}, v{t}")
        k(f"v_rsq_f32 v{t}, v{t}")
        k(f"v_mul_f32 v{rs}, v{rs}, v{t}")


SLOW = []

def loc_vcc(k):
    if "noloc" in X: k(f"s_mov_b32 s{S_LOC}, 0")
    k(f"s_cmp_lg_u32 s{S_LOC}, 0"); k("s_cselect_b64 vcc, -1, 0")

def dstores(k, lines):
    n = len(SLOW)
    k(f"s_cbranch_vccz L_slow{n}")
    for l in lines: k(l)
    k.label(f"L_back{n}")
    SLOW.append([l + (" sc1" if l.startswith("buffer") else "") for l in lines])

def emit_slow(k):
    for n, lines in enumerate(SLOW):
        k.label(f"L_slow{n}")
        for l in lines: k(l)
        k(f"s_branch L_back{n}")

def publish(k, sW, ph, s_idx, s_t, v0_, v1_, local=False):
    k(f"s_lshl_b32 s{s_t}, s{s_idx}, 7"); k(f"s_add_u32 s{s_t}, s{s_t}, {FL_OFF + (ph - 1) * 32768}")
    k(f"v_mov_b32 v{v0_}, 0"); k(f"v_mov_b32 v{v1_}, s{S_TAG}")
    k("s_mov_b64 exec, 1")
    st = f"buffer_store_dword v{v1_}, v{v0_}, s[{sW}:{sW+3}], s{s_t} offen"
    if local:
        loc_vcc(k); dstores(k, [st])
    else:
        k(st + " sc1")
    k("s_mov_b64 exec, -1")

def poll(k, sW, vaddrs, vdsts, s_it, name, slp=0):
    if len(vaddrs) > 1 and "nopp" not in X:
        k(f"buffer_load_dword v{vdsts[1]}, v{vaddrs[1]}, s[{sW}:{sW+3}], 0 offen sc1")
    if "nopp" not in X:
        ND = int(os.environ.get("PPD", "0")); R = [248 + i for i in range(ND + 1)]
        gap = slp or int(os.environ.get("PPS", "1"))
        k(f"s_mov_b32 s{s_it}, 0")
        k("s_mov_b64 s[90:91], -1")
        for i in range(ND):
            k(f"buffer_load_dword v{R[i]}, v{vaddrs[0]}, s[{sW}:{sW+3}], 0 offen sc1")
            k(f"s_sleep {gap}")
        k.label(k.L("poll" + name))
        for i in range(ND + 1):
            k(f"buffer_load_dword v{R[(i + ND) % (ND + 1)]}, v{vaddrs[0]}, s[{sW}:{sW+3}], 0 offen sc1")
            k(f"s_waitcnt vmcnt({ND})")
            k(f"v_cmp_ne_u32 vcc, s{S_TAG}, v{R[i]}")
            k("s_and_b64 exec, exec, vcc")
            k(f"s_cbranch_execz {k.L('go' + name)}")
            k(f"s_sleep {gap}")
        k(f"s_add_u32 s{s_it}, s{s_it}, 1")
        k(f"s_cmp_lt_u32 s{s_it}, 0x4000")
        k(f"s_cbranch_scc1 {k.L('poll' + name)}")
        k.label(k.L("go" + name))
        k("s_mov_b64 exec, -1")
        if len(vaddrs) == 1: return
        vaddrs = vaddrs[1:]; vdsts = vdsts[1:]; name += "b"
        k(f"v_cmp_ne_u32 vcc, s{S_TAG}, v{vdsts[0]}")
        k(f"s_cbranch_vccz {k.L('go' + name)}")
    k(f"s_mov_b32 s{s_it}, 0")
    k.label(k.L("poll" + name))
    for va, vd in zip(vaddrs, vdsts):
        k(f"buffer_load_dword v{vd}, v{va}, s[{sW}:{sW+3}], 0 offen sc1")
    k(f"s_add_u32 s{s_it}, s{s_it}, 1")
    k("s_waitcnt vmcnt(0)")
    k(f"v_cmp_ne_u32 vcc, s{S_TAG}, v{vdsts[0]}")
    for vd in vdsts[1:]:
        k(f"v_cmp_ne_u32 s[90:91], s{S_TAG}, v{vd}")
        k("s_or_b64 vcc, vcc, s[90:91]")
    k(f"s_cbranch_vccz {k.L('go' + name)}")
    if slp: k(f"s_sleep {slp}")
    k(f"s_cmp_lt_u32 s{s_it}, 0x8000")
    k(f"s_cbranch_scc1 {k.L('poll' + name)}")
    k.label(k.L("go" + name))

def phase1(k):
    k.pref = "p1"
    kind = "qkv"; qkv = True
    NB = 1920 if qkv else F
    BROW = NB * 2
    DEEP = int(os.environ.get("DEEP", "0"))
    NS = 5 if DEEP else 4; SLOT = 32768; NST = 10
    SB = 0 if DEEP else NS * SLOT
    SL = SB + 2048
    sA, sB, sW, sBi = 4, 8, 12, 16
    s_mb, s_nb, s_w = 20, 21, 22
    s_wm, s_wn = 23, 24
    s_offA, s_offB, s_m0, s_it, s_delta, s_t0, s_t1, s_slot = 25, 26, 27, 28, 29, 30, 31, 32
    s_ones = 33
    s_wid = S_WID
    v_lane, v_t, v_h = 1, 2, 3
    vAd = [4, 5, 6, 7]; vBd = [8, 9, 10, 11]
    vBr = [12, 13]
    v_b1 = 17
    vt = [18, 19, 20, 21, 22, 23]
    vAr = [24, 25, 26, 27]
    FA = [[32 + 16 * i, 36 + 16 * i] for i in range(4)]
    FB = [[40 + 16 * i, 44 + 16 * i] for i in range(4)]
    ACC = 96
    def acc(mt, nt): return ACC + (mt * 2 + nt) * 16
    EP = 160
    kidx = 0 if qkv else 3

    if "early" in X: k("s_memrealtime s[86:87]")
    if "perm" in X:
        k("s_lshr_b32 s3, s2, 3"); k("s_and_b32 s3, s3, 7"); k("s_xor_b32 s2, s2, s3")
    k.stamp(0); k.stamp(1, True)
    k(f"s_cmp_ge_u32 s2, 256"); k(f"s_cbranch_scc1 L_exit")
    if qkv:
        k("s_load_dwordx4 s[36:39], s[0:1], 0")
        k("s_load_dwordx4 s[40:43], s[0:1], 72")
        WSL = 42
    else:
        k("s_load_dwordx2 s[36:37], s[0:1], 32")
        k("s_load_dwordx2 s[40:41], s[0:1], 80")
        WSL = 40
    k(f"s_and_b32 s{s_t0}, s2, 7"); k(f"s_lshr_b32 s{s_t1}, s2, 3")
    if qkv:
        k(f"s_lshr_b32 s{s_mb}, s{s_t0}, 1"); k(f"s_lshl_b32 s{s_mb}, s{s_mb}, 2")
        k(f"s_and_b32 s{s_nb}, s{s_t1}, 3"); k(f"s_add_u32 s{s_mb}, s{s_mb}, s{s_nb}")
        k(f"s_and_b32 s{s_nb}, s{s_t0}, 1"); k(f"s_lshl_b32 s{s_nb}, s{s_nb}, 3")
        k(f"s_lshr_b32 s{s_t1}, s{s_t1}, 2"); k(f"s_add_u32 s{s_nb}, s{s_nb}, s{s_t1}")
    else:
        k(f"s_lshl_b32 s{s_mb}, s{s_t0}, 1"); k(f"s_and_b32 s{s_nb}, s{s_t1}, 1"); k(f"s_add_u32 s{s_mb}, s{s_mb}, s{s_nb}")
        k(f"s_lshr_b32 s{s_nb}, s{s_t1}, 1")
    k(f"v_lshrrev_b32 v{vt[0]}, 6, v0")
    k(f"v_and_b32 v{v_lane}, 63, v0")
    k(f"v_readfirstlane_b32 s{s_wid}, v{vt[0]}")
    k(f"v_and_b32 v{v_t}, 31, v0")
    k(f"v_bfe_u32 v{v_h}, v0, 5, 1")
    k(f"s_and_b32 s{s_w}, s{s_wid}, 3")
    k(f"s_cmp_lt_u32 s{s_wid}, 4")
    k(f"s_cbranch_scc1 {k.L('compute')}")
    if qkv:
        k(f"s_cmp_ge_u32 s{s_nb}, 15"); k(f"s_cbranch_scc1 {k.L('auxl')}")
        k(f"v_lshrrev_b32 v{vt[0]}, 3, v{v_lane}")
        k(f"v_and_b32 v{vt[1]}, 7, v{v_lane}")
        k(f"v_lshrrev_b32 v{vt[2]}, 1, v{vt[0]}")
        k(f"v_xor_b32 v{vt[2]}, v{vt[2]}, v{vt[1]}")
        k(f"v_xor_b32 v{vt[3]}, 4, v{vt[2]}")
        k(f"s_lshl_b32 s{s_t0}, s{s_mb}, 7"); k(f"s_lshl_b32 s{s_t1}, s{s_w}, 5"); k(f"s_add_u32 s{s_t0}, s{s_t0}, s{s_t1}")
        k(f"v_add_u32 v{vt[0]}, s{s_t0}, v{vt[0]}")
        k(f"v_mul_u32_u24 v{vt[0]}, 1280, v{vt[0]}")
        for ii in range(4):
            k(f"v_lshl_add_u32 v{vAd[ii]}, v{vt[2 + (ii & 1)]}, 4, v{vt[0]}")
            if ii: k(f"v_add_u32 v{vAd[ii]}, {ii * (8 * 1280 - 1024)}, v{vAd[ii]}")
        stepA = 128
    else:
        k(f"s_lshl_b32 s{s_t0}, s{s_mb}, 11")
        k(f"s_mul_i32 s{s_t1}, s{s_w}, {2 * CH}")
        k(f"s_add_u32 s{s_t0}, s{s_t0}, s{s_t1}")
        k(f"s_add_u32 s{s_t0}, s{s_t0}, {H_OFF}")
        k(f"v_lshl_add_u32 v{vAd[0]}, v{v_lane}, 4, s{s_t0}")
        k(f"v_mov_b32 v{vAd[1]}, v{vAd[0]}")
        k(f"v_add_u32 v{vAd[2]}, {CH - 2048}, v{vAd[0]}")
        k(f"v_add_u32 v{vAd[3]}, {CH - 2048}, v{vAd[0]}")
        stepA = 8 * CH
    k(f"v_lshrrev_b32 v{vt[0]}, 4, v{v_lane}")
    k(f"v_and_b32 v{vt[1]}, 15, v{v_lane}")
    k(f"v_lshlrev_b32 v{vt[2]}, 2, v{vt[0]}")
    k(f"v_xor_b32 v{vt[1]}, v{vt[1]}, v{vt[2]}")
    k(f"s_lshl_b32 s{s_t0}, s{s_w}, 4")
    k(f"v_add_u32 v{vt[0]}, s{s_t0}, v{vt[0]}")
    k(f"v_mul_u32_u24 v{vt[0]}, {BROW}, v{vt[0]}")
    k(f"v_lshl_add_u32 v{vt[0]}, v{vt[1]}, 4, v{vt[0]}")
    k(f"s_lshl_b32 s{s_t0}, s{s_nb}, 8")
    k(f"v_add_u32 v{vBd[0]}, s{s_t0}, v{vt[0]}")
    for ii in range(1, 4):
        k(f"v_add_u32 v{vBd[ii]}, {ii * (4 * BROW - 1024)}, v{vBd[0]}")
    stepB = 64 * BROW
    ROT = os.environ.get("ROT", "2x1")
    if ROT:
        ncls, stp = (int(v) for v in ROT.split("x"))
        k(f"s_add_u32 s{s_slot}, s{s_mb}, s{s_nb}"); k(f"s_and_b32 s{s_slot}, s{s_slot}, {ncls - 1}"); k(f"s_mul_i32 s{s_slot}, s{s_slot}, {stp}")
        k(f"s_mul_i32 s{s_offA}, s{s_slot}, {stepA}"); k(f"s_mul_i32 s{s_offB}, s{s_slot}, {stepB}")
    else:
        k(f"s_mov_b32 s{s_offA}, 0"); k(f"s_mov_b32 s{s_offB}, 0")
    k(f"s_lshl_b32 s{s_m0}, s{s_w}, 12")
    k(f"s_mov_b32 s{s_it}, 0")
    k("s_waitcnt lgkmcnt(0)")
    if qkv:
        srd(k, sA, 36, 37, S * D * 2); srd(k, sB, 38, 39, D * NB * 2)
    else:
        srd(k, sB, 36, 37, D * NB * 2); srd(k, sW, WSL, WSL + 1, WS_END)
        sA = sW
    def dma_stage():
        r = []
        r.append(f"s_mov_b32 m0, s{s_m0}")
        for ii in range(4):
            r.append(f"buffer_load_dwordx4 v{vAd[ii]}, s[{sA}:{sA+3}], s{s_offA} offen offset:{ii*1024} lds")
        r.append(f"s_add_u32 m0, s{s_m0}, 16384")
        for ii in range(4):
            r.append(f"buffer_load_dwordx4 v{vBd[ii]}, s[{sB}:{sB+3}], s{s_offB} offen offset:{ii*1024} lds")
        r.append(f"s_add_u32 s{s_offA}, s{s_offA}, {stepA}")
        r.append(f"s_add_u32 s{s_offB}, s{s_offB}, {stepB}")
        if ROT:
            r.append(f"s_cmp_lg_u32 s{s_offA}, {10 * stepA}")
            r.append(f"s_cselect_b32 s{s_offA}, s{s_offA}, 0")
            r.append(f"s_cselect_b32 s{s_offB}, s{s_offB}, 0")
        r.append(f"s_add_u32 s{s_m0}, s{s_m0}, {SLOT}")
        r.append(f"s_and_b32 s{s_m0}, s{s_m0}, {NS * SLOT - 1}")
        return r
    def lstep(n=8, dma=True):
        if dma:
            for l in dma_stage(): k(l)
        k(f"s_waitcnt vmcnt({n})")
        k("s_barrier")
    def lloop(tag, n):
        k(f"s_mov_b32 s{s_it}, 0")
        k.label(k.L("lloop" + tag))
        lstep()
        k(f"s_add_u32 s{s_it}, s{s_it}, 1")
        k(f"s_cmp_lt_u32 s{s_it}, {n}")
        k(f"s_cbranch_scc1 {k.L('lloop' + tag)}")
    XS = 32
    v_tag = 16
    RG_OFF = ST_OFF; CG_OFF = ST_OFF + 32768
    def slice_addr_rows():
        k(f"v_lshrrev_b32 v{vt[4]}, 4, v{v_lane}")
        k(f"v_and_b32 v{vt[5]}, 15, v{v_lane}")
        k(f"v_mul_u32_u24 v{vt[4]}, 1280, v{vt[4]}")
        k(f"v_lshl_add_u32 v{vt[4]}, v{vt[5]}, 4, v{vt[4]}")
        k(f"s_lshl_b32 s{s_t0}, s{s_mb}, 5"); k(f"s_lshl_b32 s{s_t1}, s{s_nb}, 1"); k(f"s_add_u32 s{s_t0}, s{s_t0}, s{s_t1}")
        k(f"s_add_u32 s{s_delta}, s{s_t0}, s{s_w}"); k(f"s_mul_i32 s{s_t0}, s{s_delta}, {4 * 1280}")
    def slice_load_rows():
        for i in range(5):
            k(f"buffer_load_dwordx4 {vr(XS + 4*i, 4)}, v{vt[4]}, s[{sA}:{sA+3}], s{s_t0} offen offset:{256 * i}")
    def tag_load():
        k(f"v_mov_b32 v15, 0")
        k(f"buffer_load_dword v{v_tag}, v15, s[{sBi}:{sBi+3}], 0 offen sc1")
    def tag_wait(tag):
        k(f"s_mov_b32 s{s_it}, 0")
        k.label(k.L("tw" + tag))
        k(f"v_cmp_eq_u32 vcc, 0, v{v_tag}")
        k(f"s_cbranch_vccz {k.L('tr' + tag)}")
        k("s_sleep 2")
        k(f"buffer_load_dword v{v_tag}, v15, s[{sBi}:{sBi+3}], 0 offen sc1")
        k(f"s_add_u32 s{s_it}, s{s_it}, 1")
        k("s_waitcnt vmcnt(0)")
        k(f"s_cmp_lt_u32 s{s_it}, 0x4000")
        k(f"s_cbranch_scc1 {k.L('tw' + tag)}")
        k.label(k.L("tr" + tag))
    def slice_rows(part):
        if part == 0:
            k("v_mov_b32 v56, 0"); k("v_mov_b32 v57, 0"); k("v_mov_b32 v58, 0"); k("v_mov_b32 v59, 0")
        for r in (range(13) if part == 0 else range(13, 20)):
            k(f"v_lshlrev_b32 v52, 16, v{XS + r}")
            k(f"v_and_b32 v53, 0xffff0000, v{XS + r}")
            k("v_add_f32 v56, v56, v52"); k("v_fmac_f32 v57, v52, v52")
            k("v_add_f32 v58, v58, v53"); k("v_fmac_f32 v59, v53, v53")
        if part == 0: return
        k("v_add_f32 v56, v56, v58"); k("v_add_f32 v57, v57, v59")
        for sh in (8, 4, 2, 1):
            k(f"v_add_f32_dpp v56, v56, v56 row_ror:{sh} row_mask:0xf bank_mask:0xf")
            k(f"v_add_f32_dpp v57, v57, v57 row_ror:{sh} row_mask:0xf bank_mask:0xf")
        rowstat_math(k, 56, 57, 60, 62, 52, False)
        k(f"v_mov_b32 v61, v{v_tag}"); k(f"v_mov_b32 v63, v{v_tag}")
        k(f"s_lshl_b32 s{s_t0}, s{s_delta}, 6"); k(f"s_add_u32 s{s_t0}, s{s_t0}, {RG_OFF}")
        k("s_mov_b32 exec_lo, 0x00010001"); k("s_mov_b32 exec_hi, 0x00010001")
        k(f"buffer_store_dwordx4 v[60:63], v{v_lane}, s[{sW}:{sW+3}], s{s_t0} offen sc1")
        k("s_mov_b64 exec, -1")
    def slice_cols(part):
        if part == 0:
            for r in range(4):
                k(f"v_lshlrev_b32 v{56 + 2*r}, 16, v{XS + r}"); k(f"v_and_b32 v{57 + 2*r}, 0xffff0000, v{XS + r}")
            for i in range(1, 5):
                for r in range(4):
                    k(f"v_lshlrev_b32 v52, 16, v{XS + 4*i + r}"); k(f"v_and_b32 v53, 0xffff0000, v{XS + 4*i + r}")
                    k(f"v_add_f32 v{56 + 2*r}, v{56 + 2*r}, v52"); k(f"v_add_f32 v{57 + 2*r}, v{57 + 2*r}, v53")
            return
        for r in range(4): k(f"v_permlane32_swap_b32 v{56 + r}, v{60 + r}")
        for r in range(4): k(f"v_add_f32 v{56 + r}, v{56 + r}, v{60 + r}")
        for r in range(2): k(f"v_permlane16_swap_b32 v{56 + r}, v{58 + r}")
        k("v_add_f32 v56, v56, v58"); k("v_add_f32 v58, v57, v59")
        k(f"v_mov_b32 v57, v{v_tag}"); k(f"v_mov_b32 v59, v{v_tag}")
        k(f"v_and_b32 v{vt[4]}, 48, v{v_lane}")
        k(f"v_lshl_add_u32 v{vt[4]}, v{vt[5]}, 6, v{vt[4]}")
        k(f"s_mul_i32 s{s_t0}, s{s_delta}, 15360"); k(f"s_lshl_b32 s{s_t1}, s{s_nb}, 10"); k(f"s_add_u32 s{s_t0}, s{s_t0}, s{s_t1}")
        k(f"s_add_u32 s{s_t0}, s{s_t0}, {CG_OFF}")
        k(f"buffer_store_dwordx4 v[56:59], v{vt[4]}, s[{sW}:{sW+3}], s{s_t0} offen sc1")
    def slice_part(part):
        k(f"s_cmp_ge_u32 s{s_w}, 2"); k(f"s_cbranch_scc1 {k.L('slc%d' % part)}")
        slice_rows(part)
        k(f"s_branch {k.L('sld%d' % part)}")
        k.label(k.L("slc%d" % part))
        slice_cols(part)
        k.label(k.L("sld%d" % part))
    q = []; nh = [0]
    def half():
        st, hb = divmod(nh[0], 2); nh[0] += 1
        k(f"s_add_u32 m0, s{s_m0}, {(st % NS) * SLOT + hb * 16384}")
        vD_, sD, so, step = (vBd, sB, s_offB, stepB) if hb else (vAd, sA, s_offA, stepA)
        for ii in range(4):
            k(f"buffer_load_dwordx4 v{vD_[ii]}, s[{sD}:{sD+3}], s{so} offen offset:{ii*1024} lds"); q.append(("st", st))
        k(f"s_add_u32 s{so}, s{so}, {step}")
        if ROT:
            k(f"s_cmp_lg_u32 s{so}, {10 * step}"); k(f"s_cselect_b32 s{so}, s{so}, 0")
    def upto(n):
        while nh[0] < min(n, 20): half()
    def need(*items):
        last = max((len(q) - 1 - q[::-1].index(it) for it in items if it in q), default=-1)
        if last >= 0:
            k(f"s_waitcnt vmcnt({len(q) - 1 - last})"); del q[:last + 1]
    def bar(j, *more):
        need(("st", j), *more); k("s_barrier")
    upto(4)
    if qkv:
        k(f"s_cmp_ge_u32 s{s_w}, 2"); k(f"s_cbranch_scc1 {k.L('slc')}")
        slice_addr_rows(); slice_load_rows()
        k(f"s_branch {k.L('sll')}")
        k.label(k.L("slc"))
        k(f"v_lshrrev_b32 v{vt[4]}, 4, v{v_lane}")
        k(f"v_and_b32 v{vt[5]}, 15, v{v_lane}")
        k(f"v_mul_u32_u24 v{vt[4]}, {BROW}, v{vt[4]}")
        k(f"v_lshl_add_u32 v{vt[4]}, v{vt[5]}, 4, v{vt[4]}")
        k(f"s_lshl_b32 s{s_delta}, s{s_mb}, 1"); k(f"s_add_u32 s{s_delta}, s{s_delta}, s{s_w}"); k(f"s_sub_u32 s{s_delta}, s{s_delta}, 2")
        k(f"s_mul_i32 s{s_t0}, s{s_delta}, {20 * BROW}"); k(f"s_lshl_b32 s{s_t1}, s{s_nb}, 8"); k(f"s_add_u32 s{s_t0}, s{s_t0}, s{s_t1}")
        for i in range(5):
            k(f"buffer_load_dwordx4 {vr(XS + 4*i, 4)}, v{vt[4]}, s[{sB}:{sB+3}], s{s_t0} offen")
            k(f"s_add_u32 s{s_t0}, s{s_t0}, {4 * BROW}")
        k.label(k.L("sll"))
        q += [("sl", 0)] * 5
        srd(k, sW, WSL, WSL + 1, WS_END); srd(k, sBi, 40, 41, 256)
        if "pgw" in X:
            PG = int(os.environ.get("PG", "16"))
            k(f"s_lshr_b32 s{s_t0}, s2, 3"); k(f"s_lshl_b32 s{s_t0}, s{s_t0}, 2"); k(f"s_add_u32 s{s_t0}, s{s_t0}, s{s_w}")
            k(f"s_lshl_b32 s{s_t0}, s{s_t0}, {PG}")
            for j in range((0xE40000 >> PG) // 112 + 1):
                k(f"s_buffer_load_dword s50, s[{sW}:{sW+3}], s{s_t0}")
                k(f"s_add_u32 s{s_t0}, s{s_t0}, {112 << PG}")
        bar(0)
        tag_load(); q.append(("tag", 0))
        upto(6 + DEEP); bar(1)
        upto(8 + DEEP); bar(2)
        upto(10 + DEEP)
        slice_part(0)
        bar(3)
        upto(12 + DEEP)
        tag_wait("a")
        slice_part(1); q.append(("pub", 0))
        bar(4)
        for j in range(5, 8):
            upto(2 * j + 4 + DEEP); bar(j)
        upto(20)
        k(f"s_lshl_b32 s{s_t0}, s{s_mb}, 11"); k(f"s_lshl_b32 s{s_t1}, s{s_w}, 9"); k(f"s_add_u32 s{s_t0}, s{s_t0}, s{s_t1}")
        k(f"s_add_u32 s{s_offA}, s{s_t0}, {RG_OFF}")
        k(f"v_lshlrev_b32 v{vt[0]}, 4, v{v_t}")
        k(f"v_lshrrev_b32 v{vt[1]}, 4, v{v_lane}")
        k(f"v_mul_u32_u24 v{vt[1]}, {8 * 15360}, v{vt[1]}")
        k(f"v_lshl_add_u32 v{vt[1]}, v{vt[5]}, 4, v{vt[1]}")
        k(f"s_lshl_b32 s{s_t0}, s{s_nb}, 10"); k(f"s_lshl_b32 s{s_t1}, s{s_w}, 8"); k(f"s_add_u32 s{s_t0}, s{s_t0}, s{s_t1}")
        k(f"s_add_u32 s{s_offB}, s{s_t0}, {CG_OFF}")
        def gather():
            k(f"buffer_load_dwordx4 v[64:67], v{vt[0]}, s[{sW}:{sW+3}], s{s_offA} offen sc1")
            k(f"s_mov_b32 s{s_t0}, s{s_offB}")
            for i in range(8):
                k(f"buffer_load_dwordx4 {vr(32 + 4*i, 4)}, v{vt[1]}, s[{sW}:{sW+3}], s{s_t0} offen sc1")
                k(f"s_add_u32 s{s_t0}, s{s_t0}, 15360")
        gather(); q += [("ga", 0)] * 9
        bar(8); bar(9)
        k(f"s_mov_b32 s{s_it}, 0")
        k.label(k.L("poll"))
        k("s_waitcnt vmcnt(0)")
        k(f"v_and_b32 v68, v65, v67"); k(f"v_or_b32 v69, v65, v67")
        for i in range(16):
            k(f"v_and_b32 v68, v68, v{33 + 2*i}"); k(f"v_or_b32 v69, v69, v{33 + 2*i}")
        k(f"v_xor_b32 v68, v68, v{v_tag}"); k(f"v_xor_b32 v69, v69, v{v_tag}"); k("v_or_b32 v68, v68, v69")
        k(f"v_cmp_ne_u32 vcc, 0, v68")
        k(f"s_cbranch_vccz {k.L('ready')}")
        k("s_sleep 2")
        gather()
        k(f"s_add_u32 s{s_it}, s{s_it}, 1")
        k(f"s_cmp_lt_u32 s{s_it}, 0x2000")
        k(f"s_cbranch_scc1 {k.L('poll')}")
        k("s_waitcnt vmcnt(0)")
        k.label(k.L("ready"))
        k("v_add_f32 v33, v34, v38")
        for i in range(1, 8):
            k(f"v_add_f32 v32, v32, v{32 + 4*i}")
            if i > 1: k(f"v_add_f32 v33, v33, v{34 + 4*i}")
        k(f"s_cmp_lt_u32 s{s_nb}, 5")
        k(f"s_cselect_b32 s{s_t0}, {f32(math.log2(math.e) / math.sqrt(DH))}, 1.0")
        k(f"v_mul_f32 v65, s{s_t0}, v66")
        k(f"s_lshl_b32 s{s_t1}, s{s_w}, 7"); k(f"s_add_u32 s{s_t1}, s{s_t1}, {SB}")
        k(f"v_lshl_add_u32 v{vt[0]}, v{v_t}, 2, s{s_t1}")
        k(f"ds_write2_b32 v{vt[0]}, v64, v65 offset0:0 offset1:128")
        for sw in ("v_permlane32_swap_b32", "v_permlane16_swap_b32"):
            k("v_mov_b32 v34, v32"); k("v_mov_b32 v35, v33")
            k(f"{sw} v32, v34"); k(f"{sw} v33, v35")
            k("v_add_f32 v32, v32, v34"); k("v_add_f32 v33, v33, v35")
        k(f"v_lshl_add_u32 v{vt[1]}, v{vt[5]}, 3, s{s_t1}")
        k(f"ds_write_b64 v{vt[1]}, v[32:33] offset:1024")
        k("s_waitcnt lgkmcnt(0)")
        k("s_barrier")
    else:
        lloop("", 8)
        for l in dma_stage(): k(l)
        PS = 32
        k(f"s_lshl_b32 s{s_t0}, s{s_mb}, 7"); k(f"s_lshl_b32 s{s_t1}, s{s_w}, 5"); k(f"s_add_u32 s{s_t0}, s{s_t0}, s{s_t1}")
        k(f"v_add_lshl_u32 v{vt[2]}, v{v_t}, s{s_t0}, 3")
        k(f"v_mul_u32_u24 v{vt[1]}, {5 * 16384}, v{v_h}")
        k(f"v_add_u32 v{vt[2]}, v{vt[2]}, v{vt[1]}")
        for i in range(5):
            k(f"s_mov_b32 s{s_t0}, {HS_OFF + i * 16384}")
            k(f"buffer_load_dwordx2 {vr(PS + 2*i, 2)}, v{vt[2]}, s[{sW}:{sW+3}], s{s_t0} offen")
        k(f"s_lshl_b32 s{s_t0}, s{s_nb}, 10"); k(f"s_lshl_b32 s{s_t1}, s{s_w}, 8"); k(f"s_add_u32 s{s_t0}, s{s_t0}, s{s_t1}")
        k(f"s_add_u32 s{s_t0}, s{s_t0}, {C1_OFF}")
        k(f"s_add_u32 m0, s{s_t1}, {SB + 1024}")
        k(f"v_lshlrev_b32 v{vt[3]}, 2, v{v_lane}")
        k(f"buffer_load_dword v{vt[3]}, s[{sW}:{sW+3}], s{s_t0} offen lds")
        lstep(14, False)
        lstep(6, False)
        k("s_waitcnt vmcnt(0)")
        for i in range(1, 5):
            k(f"v_add_f32 v{PS}, v{PS}, v{PS + 2*i}"); k(f"v_add_f32 v{PS+1}, v{PS+1}, v{PS + 2*i + 1}")
        k(f"v_mov_b32 v{PS+2}, v{PS}"); k(f"v_mov_b32 v{PS+3}, v{PS+1}")
        k(f"v_permlane32_swap_b32 v{PS}, v{PS+2}"); k(f"v_permlane32_swap_b32 v{PS+1}, v{PS+3}")
        k(f"v_add_f32 v{PS}, v{PS}, v{PS+2}"); k(f"v_add_f32 v{PS+1}, v{PS+1}, v{PS+3}")
        rowstat_math(k, PS, PS + 1, 44, 45, PS + 2, True)
        k(f"s_lshl_b32 s{s_t1}, s{s_w}, 7"); k(f"s_add_u32 s{s_t1}, s{s_t1}, {SB}")
        k(f"v_lshl_add_u32 v{vt[3]}, v{v_t}, 2, s{s_t1}")
        k(f"ds_write_b32 v{vt[3]}, v44")
        k(f"ds_write_b32 v{vt[3]}, v45 offset:512")
        k("s_waitcnt lgkmcnt(0)")
        k("s_barrier")
    if not qkv: k.stamp(3); k.stamp(4); k.stamp(5); k.stamp(6)
    k(f"s_branch {k.L('end')}")
    k.label(k.L("compute"))
    if qkv:
        k(f"s_or_b32 s{s_t0}, s2, s{s_w}")
        k(f"s_cbranch_scc1 {k.L('notag')}")
        k("s_memrealtime s[44:45]")
        k("s_waitcnt lgkmcnt(0)")
        srd(k, sBi, 40, 41, 256)
        if "gate" in X: k(f"v_mov_b32 v{vt[2]}, s{86 if 'early' in X else 44}")
        k("s_mul_i32 s44, s44, 0x9e3779b1"); k("s_or_b32 s44, s44, 1")
        k(f"v_mov_b32 v{vt[0]}, 0"); k(f"v_mov_b32 v{vt[1]}, s44")
        k("s_mov_b64 exec, 1")
        k(f"buffer_store_dword v{vt[1]}, v{vt[0]}, s[{sBi}:{sBi+3}], 0 offen sc1")
        srd(k, sW, WSL, WSL + 1, WS_END)
        k(f"s_mov_b32 s{s_t0}, {TAG_OFF}")
        k(f"buffer_store_dword v{vt[1]}, v{vt[0]}, s[{sW}:{sW+3}], s{s_t0} offen sc1")
        if "gate" in X: k(f"buffer_store_dword v{vt[2]}, v{vt[0]}, s[{sW}:{sW+3}], s{s_t0} offen offset:4 sc1")
        k("s_mov_b64 exec, -1")
        k.label(k.L("notag"))
        if "nocpf" not in X:
            k(f"s_cmp_lg_u32 s{s_w}, 1"); k(f"s_cbranch_scc1 {k.L('nocpf')}")
            code_prefetch(k, k.name + "_kernel", sB, s_t0, vt[0], 14, v_lane)
            k.label(k.L("nocpf"))
        k(f"s_cmp_ge_u32 s{s_nb}, 15"); k(f"s_cbranch_scc1 {k.L('aux')}")
    k(f"s_lshr_b32 s{s_wm}, s{s_w}, 1"); k(f"s_and_b32 s{s_wn}, s{s_w}, 1")
    k(f"s_mov_b32 s34, {SLOT}")
    if qkv:
        k(f"v_bfe_u32 v{vt[0]}, v{v_t}, 1, 3")
        k(f"v_xor_b32 v{vt[0]}, v{vt[0]}, v{v_h}")
        k(f"s_lshl_b32 s{s_t0}, s{s_wm}, 13")
        k(f"v_lshl_add_u32 v{vt[1]}, v{v_t}, 7, s{s_t0}")
        for ks in range(4):
            k(f"v_xor_b32 v{vt[2]}, {2*ks}, v{vt[0]}")
            k(f"v_lshl_add_u32 v{vAr[ks]}, v{vt[2]}, 4, v{vt[1]}")
        def a_read(dst, ks, mt): return f"ds_read_b128 {vr(dst,4)}, v{vAr[ks]} offset:{mt*4096}"
        def a_upd(ks): return [vAr[ks]]
    else:
        k(f"s_lshl_b32 s{s_t0}, s{s_wm}, 10")
        k(f"v_lshl_add_u32 v{vt[0]}, v{v_t}, 4, s{s_t0}")
        k(f"v_lshl_add_u32 v{vAr[0]}, v{v_h}, 11, v{vt[0]}")
        def a_read(dst, ks, mt): return f"ds_read_b128 {vr(dst,4)}, v{vAr[0]} offset:{ks*4096 + mt*512}"
        def a_upd(ks): return [vAr[0]] if ks == 0 else []
    k(f"v_bfe_u32 v{vt[0]}, v{v_lane}, 2, 2")
    k(f"v_lshl_add_u32 v{vt[1]}, v{v_h}, 3, v{vt[0]}")
    k(f"v_lshlrev_b32 v{vt[1]}, 8, v{vt[1]}")
    k(f"v_bfe_u32 v{vt[2]}, v{v_lane}, 4, 1")
    k(f"v_lshl_add_u32 v{vt[1]}, v{vt[2]}, 5, v{vt[1]}")
    k(f"v_and_b32 v{vt[2]}, 3, v{v_lane}")
    k(f"v_lshl_add_u32 v{vt[1]}, v{vt[2]}, 3, v{vt[1]}")
    k(f"v_add_u32 v{vt[1]}, 16384, v{vt[1]}")
    k(f"s_lshl_b32 s{s_t0}, s{s_wn}, 1")
    k(f"v_xor_b32 v{vt[2]}, s{s_t0}, v{vt[0]}")
    k(f"v_lshl_add_u32 v{vBr[0]}, v{vt[2]}, 6, v{vt[1]}")
    k(f"v_xor_b32 v{vBr[1]}, 64, v{vBr[0]}")
    def b_read(dst, ks, nt, e): return f"ds_read_b64_tr_b16 {vr(dst + 2*e, 2)}, v{vBr[nt]} offset:{ks*4096 + e*1024}"
    for r in range(64): k(f"v_mov_b32 v{ACC + r}, 0")
    k(f"s_mov_b32 s{s_it}, 0"); k(f"s_mov_b32 s{s_slot}, 0")
    k("s_waitcnt lgkmcnt(0)")
    srd(k, sW, WSL, WSL + 1, WS_END)

    def reads(ks):
        return [a_read(FA[ks][0], ks, 0), b_read(FB[ks][0], ks, 0, 0), b_read(FB[ks][0], ks, 0, 1),
                b_read(FB[ks][1], ks, 1, 0), b_read(FB[ks][1], ks, 1, 1), a_read(FA[ks][1], ks, 1)]
    k("s_waitcnt lgkmcnt(0)")
    k("s_barrier")
    for l in reads(0) + reads(1): k(l)

    def mainloop(tag, vorient):
        k.label(k.L("loop" + tag))
        for ks in range(4):
            mf = []
            for mt in range(2):
                for nt in range(2):
                    a, b = FA[ks][mt], FB[ks][nt]
                    s0, s1 = (a, b) if vorient else (b, a)
                    mf.append(f"v_mfma_f32_32x32x16_bf16 {vr(acc(mt,nt),16)}, {vr(s0,4)}, {vr(s1,4)}, {vr(acc(mt,nt),16)}")
            pre = []
            if ks == 2:
                k("s_barrier")
                if NS == 4: pre += [f"s_add_u32 s{s_slot}, s{s_slot}, 1", f"s_and_b32 s{s_slot}, s{s_slot}, {NS - 1}"]
                else: pre += [f"s_cmp_lg_u32 s{s_it}, 4"]
                pre += [
                        f"s_cselect_b32 s{s_delta}, s34, {(-(NS - 1) * SLOT) & 0xffffffff:#x}"]
                pre += [f"v_add_u32 v{a}, s{s_delta}, v{a}" for a in vBr]
            nk = (ks + 2) % 4
            if ks >= 2:
                pre += [f"v_add_u32 v{a}, s{s_delta}, v{a}" for a in a_upd(nk)]
            post = []
            if ks == 3:
                post = [f"v_add_u32 v{a}, s{s_delta}, v{a}" for a in a_upd(2) + a_upd(3)]
                post += [f"s_add_u32 s{s_it}, s{s_it}, 1", f"s_cmp_lt_u32 s{s_it}, {NST}"]
            rd = reads(nk)
            k("s_waitcnt lgkmcnt(6)")
            seq = [mf[0]] + pre + rd[0:2] + [mf[1]] + rd[2:4] + [mf[2]] + rd[4:6] + post + [mf[3]]
            for l in seq: k(l)
        k(f"s_cbranch_scc1 {k.L('loop' + tag)}")
        if "st1" in X: k.stamp(0, True)

    def epi_nm():
        MR = [28, 30]
        CS = EP; B1 = EP + 32
        k(f"s_lshl_b32 s{s_t0}, s{s_wm}, 8"); k(f"s_add_u32 s{s_t0}, s{s_t0}, {SB}")
        k(f"v_lshl_add_u32 v{vt[4]}, v{v_t}, 2, s{s_t0}")
        for mt in range(2):
            k(f"ds_read2_b32 {vr(MR[mt],2)}, v{vt[4]} offset0:{mt*32} offset1:{128 + mt*32}")
        k(f"s_lshl_b32 s{s_t0}, s{s_wn}, 8"); k(f"s_add_u32 s{s_t0}, s{s_t0}, {SB}")
        k(f"v_lshl_add_u32 v{vt[0]}, v{v_h}, 4, s{s_t0}")
        for nt in range(2):
            for rq in range(4):
                k(f"ds_read_b128 {vr(CS + nt*16 + rq*4, 4)}, v{vt[0]} offset:{1024 + nt*128 + rq*32}")
            if not qkv:
                for rq in range(4):
                    k(f"ds_read_b128 {vr(B1 + nt*16 + rq*4, 4)}, v{vt[0]} offset:{1536 + nt*128 + rq*32}")
        OFF = QK_OFF if qkv else G_OFF
        k(f"s_lshl_b32 s{s_t0}, s{s_nb}, 4"); k(f"s_lshl_b32 s{s_t1}, s{s_wn}, 3"); k(f"s_add_u32 s{s_t0}, s{s_t0}, s{s_t1}")
        k(f"v_add_lshl_u32 v{vt[2]}, v{v_h}, s{s_t0}, 15")
        k(f"s_lshl_b32 s{s_t0}, s{s_mb}, 7"); k(f"s_lshl_b32 s{s_t1}, s{s_wm}, 6"); k(f"s_add_u32 s{s_t0}, s{s_t0}, s{s_t1}")
        k(f"v_add_u32 v{vt[3]}, s{s_t0}, v{v_t}")
        k(f"v_lshl_add_u32 v{vt[2]}, v{vt[3]}, 4, v{vt[2]}")
        so = 46
        for c in range(4): k(f"s_mov_b32 s{so + c}, {OFF + 2*c*CH}")
        if not qkv:
            C0 = -2.0 * math.log2(math.e) * math.sqrt(2.0 / math.pi)
            k(f"s_mov_b32 s44, {f32(C0 * 0.044715)}"); k(f"s_mov_b32 s45, {f32(C0 * 0.044715)}")
            k(f"v_mov_b32 v{vt[4]}, {f32(C0)}"); k(f"v_mov_b32 v{vt[5]}, {f32(C0)}")
        k("s_waitcnt lgkmcnt(0)")
        T = EP + 64
        n_st = 0
        for nt in range(2):
            for mt in range(2):
                a = acc(mt, nt); mr = MR[mt]
                for p in range(8):
                    x = vr(a + 2*p, 2)
                    k(f"v_pk_fma_f32 {x}, {vr(CS + nt*16 + 2*p, 2)}, {vr(mr,2)}, {x} op_sel_hi:[1,0,1]")
                for p in range(8):
                    x = vr(a + 2*p, 2)
                    if qkv:
                        k(f"v_pk_mul_f32 {x}, {x}, {vr(mr,2)} op_sel:[0,1] op_sel_hi:[1,1]")
                    else:
                        k(f"v_pk_fma_f32 {x}, {x}, {vr(mr,2)}, {vr(B1 + nt*16 + 2*p, 2)} op_sel:[0,1,0] op_sel_hi:[1,1,1]")
                if not qkv:
                    for p in range(8):
                        x = vr(a + 2*p, 2); t = vr(T + 2*p, 2)
                        k(f"v_pk_mul_f32 {t}, {x}, {x}")
                    for p in range(8):
                        t = vr(T + 2*p, 2)
                        k(f"v_pk_fma_f32 {t}, {t}, s[44:45], {vr(vt[4],2)}")
                    for p in range(8):
                        x = vr(a + 2*p, 2); t = vr(T + 2*p, 2)
                        k(f"v_pk_mul_f32 {t}, {t}, {x}")
                    for r in range(16): k(f"v_exp_f32 v{T + r}, v{T + r}")
                    for p in range(8):
                        t = vr(T + 2*p, 2)
                        k(f"v_pk_add_f32 {t}, {t}, 1.0 op_sel_hi:[1,0]")
                    for r in range(16): k(f"v_rcp_f32 v{T + r}, v{T + r}")
                    for p in range(8):
                        x = vr(a + 2*p, 2); t = vr(T + 2*p, 2)
                        k(f"v_pk_mul_f32 {x}, {x}, {t}")
                Pk = T + 16 + (n_st % 2) * 8
                for p in range(8):
                    k(f"v_cvt_pk_bf16_f32 v{Pk + p}, v{a + 2*p}, v{a + 2*p + 1}")
                for pq in range(2):
                    b = Pk + 4*pq
                    k(f"v_permlane32_swap_b32 v{b}, v{b+2}")
                    k(f"v_permlane32_swap_b32 v{b+1}, v{b+3}")
                for pq in range(2):
                    b = Pk + 4*pq
                    k(f"buffer_store_dwordx4 {vr(b,4)}, v{vt[2]}, s[{sW}:{sW+3}], s{so + nt*2 + pq} offen offset:{mt*512} {os.environ.get('QSC', 'sc1')}")
                n_st += 1

    def epi_v():
        NM = EP; RS = EP + 32; CSV = [28, 30]
        k(f"s_lshl_b32 s{s_t0}, s{s_wm}, 8"); k(f"s_add_u32 s{s_t0}, s{s_t0}, {SB}")
        k(f"v_lshl_add_u32 v{vt[0]}, v{v_h}, 4, s{s_t0}")
        k(f"s_lshl_b32 s{s_t0}, s{s_wn}, 8"); k(f"s_add_u32 s{s_t0}, s{s_t0}, {SB}")
        k(f"v_lshl_add_u32 v{vt[1]}, v{v_t}, 2, s{s_t0}")
        for nt in range(2):
            k(f"ds_read_b32 v{CSV[nt]}, v{vt[1]} offset:{1024 + nt*128}")
        for mt in range(2):
            for rq in range(4):
                k(f"ds_read_b128 {vr(NM + mt*16 + rq*4, 4)}, v{vt[0]} offset:{mt*128 + rq*32}")
                k(f"ds_read_b128 {vr(RS + mt*16 + rq*4, 4)}, v{vt[0]} offset:{512 + mt*128 + rq*32}")
        k(f"s_lshl_b32 s{s_t0}, s{s_mb}, 1"); k(f"s_add_u32 s{s_t0}, s{s_t0}, s{s_wm}"); k(f"s_mul_i32 s{s_t0}, s{s_t0}, 5120")
        k(f"s_lshl_b32 s{s_t1}, s{s_nb}, 7"); k(f"s_add_u32 s{s_t0}, s{s_t0}, s{s_t1}"); k(f"s_sub_u32 s{s_t0}, s{s_t0}, 1280")
        k(f"s_lshl_b32 s{s_t1}, s{s_wn}, 6"); k(f"s_add_u32 s{s_t0}, s{s_t0}, s{s_t1}")
        k(f"v_mul_u32_u24 v{vt[3]}, 640, v{v_h}")
        k(f"v_add3_u32 v{vt[2]}, v{v_t}, s{s_t0}, v{vt[3]}")
        k(f"v_lshlrev_b32 v{vt[2]}, 4, v{vt[2]}")
        so = 46
        for c in range(4): k(f"s_mov_b32 s{so + c}, {V_OFF + c * 640 * 32}")
        k("s_waitcnt lgkmcnt(0)")
        T = EP + 64; n_st = 0
        for mt in range(2):
            for nt in range(2):
                a = acc(mt, nt)
                for p in range(8):
                    x = vr(a + 2*p, 2)
                    k(f"v_pk_fma_f32 {x}, {vr(NM + mt*16 + 2*p, 2)}, {vr(CSV[nt],2)}, {x} op_sel_hi:[1,0,1]")
                for p in range(8):
                    x = vr(a + 2*p, 2)
                    k(f"v_pk_mul_f32 {x}, {x}, {vr(RS + mt*16 + 2*p, 2)}")
                Pk = T + (n_st % 2) * 8
                for p in range(8):
                    k(f"v_cvt_pk_bf16_f32 v{Pk + p}, v{a + 2*p}, v{a + 2*p + 1}")
                for jj in range(2):
                    k(f"buffer_store_dwordx4 {vr(Pk + 4*jj, 4)}, v{vt[2]}, s[{sW}:{sW+3}], s{so + mt*2 + jj} offen offset:{nt*512} {os.environ.get('QSC', 'sc1')}")
                n_st += 1

    if qkv:
        k(f"s_cmp_ge_u32 s{s_nb}, 10")
        k(f"s_cbranch_scc1 {k.L('loopv')}")
        mainloop("q", False); epi_nm()
        k(f"s_branch {k.L('end')}")
        mainloop("v", True); epi_v()
        k(f"s_branch {k.L('end')}")
        k.label(k.L("auxl"))
        k(f"s_cmp_ge_u32 s{s_w}, 2"); k(f"s_cbranch_scc1 {k.L('aux')}")
        slice_addr_rows()
        k("s_waitcnt lgkmcnt(0)")
        srd(k, sA, 36, 37, S * D * 2); srd(k, sW, WSL, WSL + 1, WS_END); srd(k, sBi, 40, 41, 256)
        slice_load_rows()
        k("s_waitcnt vmcnt(0)")
        tag_load()
        slice_rows(0)
        k("s_waitcnt vmcnt(0)")
        tag_wait("x")
        slice_rows(1)
        k.label(k.L("aux"))
        k("s_load_dwordx4 s[44:47], s[0:1], 32")
        k(f"v_lshrrev_b32 v{vt[0]}, 4, v{v_lane}")
        k(f"v_and_b32 v{vt[1]}, 15, v{v_lane}")
        k(f"v_mul_u32_u24 v{vt[2]}, {F * 2}, v{vt[0]}")
        k(f"v_lshl_add_u32 v{vt[2]}, v{vt[1]}, 4, v{vt[2]}")
        k(f"v_lshlrev_b32 v{vt[3]}, 1, v0")
        k("s_waitcnt lgkmcnt(0)")
        srd(k, sW, WSL, WSL + 1, WS_END)
        k(f"s_cmp_ge_u32 s{s_mb}, 14"); k(f"s_cbranch_scc1 {k.L('end')}")
        srd(k, sB, 44, 45, D * F * 2); srd(k, sA, 46, 47, F * 2)
        k(f"s_mul_i32 s{s_t0}, s{s_wid}, {80 * F * 2}"); k(f"s_lshl_b32 s{s_t1}, s{s_mb}, 8"); k(f"s_add_u32 s{s_t0}, s{s_t0}, s{s_t1}")
        k(f"buffer_load_ushort v{v_b1}, v{vt[3]}, s[{sA}:{sA+3}], s{s_t1} offen")
        for i in range(20):
            k(f"buffer_load_dwordx4 {vr(40 + 4*i, 4)}, v{vt[2]}, s[{sB}:{sB+3}], s{s_t0} offen")
            k(f"s_add_u32 s{s_t0}, s{s_t0}, {4 * F * 2}")
        for r in range(8): k(f"v_mov_b32 v{24 + r}, 0")
        for i in range(20):
            k(f"s_waitcnt vmcnt({19 - i})")
            for r in range(4):
                k(f"v_lshlrev_b32 v{32 + 2*r}, 16, v{40 + 4*i + r}")
                k(f"v_and_b32 v{33 + 2*r}, 0xffff0000, v{40 + 4*i + r}")
            for r in range(4):
                k(f"v_pk_add_f32 {vr(24 + 2*r, 2)}, {vr(24 + 2*r, 2)}, {vr(32 + 2*r, 2)}")
        k(f"v_lshlrev_b32 v{vt[0]}, 5, v0")
        k(f"ds_write_b128 v{vt[0]}, v[24:27]")
        k(f"ds_write_b128 v{vt[0]}, v[28:31] offset:16")
        k("s_waitcnt lgkmcnt(0)")
        k("s_barrier")
        k(f"s_cmp_ge_u32 s{s_wid}, 2"); k(f"s_cbranch_scc1 {k.L('end')}")
        k(f"v_lshlrev_b32 v{vt[0]}, 2, v0")
        for i in range(32):
            k(f"ds_read_b32 v{40 + i}, v{vt[0]} offset:{i * 512}")
            if i % 8 == 7: k("s_waitcnt lgkmcnt(0)")
        for i in range(1, 32): k(f"v_add_f32 v40, v40, v{40 + i}")
        k(f"v_lshlrev_b32 v{v_b1}, 16, v{v_b1}")
        k(f"v_mul_f32 v{v_b1}, {f32(GS)}, v{v_b1}")
        k(f"s_lshl_b32 s{s_t0}, s{s_mb}, 10"); k(f"s_add_u32 s{s_t0}, s{s_t0}, {C1_OFF}"); k(f"s_add_u32 s{s_t1}, s{s_t0}, 512")
        k(f"buffer_store_dword v40, v{vt[0]}, s[{sW}:{sW+3}], s{s_t0} offen sc1")
        k(f"buffer_store_dword v{v_b1}, v{vt[0]}, s[{sW}:{sW+3}], s{s_t1} offen sc1")
    k.label(k.L("end"))
    k(f"s_lshl_b32 s94, s{s_mb}, 4"); k(f"s_add_u32 s94, s94, s{s_nb}")
    k(f"v_readfirstlane_b32 s{S_TAG}, v{v_tag}")
    k.stamp(2, "st1" in X)

def phase2(k):
    k.pref = "p2"
    sW = 4; sP1 = 8; sP2 = 12; sP3 = 16; sWW = 52
    s_hd, s_qb, s_w, s_qs, s_kh, s_t0, s_t1, s_it = 20, 21, S_WID, 23, 24, 25, 26, 27
    s_ko, s_vo, s_odd = 28, 29, 30
    s_vm = 32; s_lo = 34; s_c = 36
    s_do, s_dm, s_qo = 56, 57, 58
    v_lane, v_t, v_h = 1, 2, 3
    vK1, vK2, vV0, vV1 = 4, 5, 6, 7
    vt = [8, 9, 10, 11, 12, 13, 14, 15]
    vm = [16, 17]
    v_pfa, v_pfc, v_pf = 18, 19, 200
    vD = [202, 203, 204, 205]
    v_fx, vX, vOne = 206, 208, 210
    Q1 = [20, 24]; Q2 = [28, 30]
    NBUF = 4
    K1 = [32, 36, 40, 44]; K2 = [48, 50]; Q2B = [52, 54]; vK2p = 207
    VB = [56, 64, 72, 80]
    C = [88, 104]; Sx = [120, 136]; P = [152, 160]; O = [168, 184]
    k("s_load_dwordx2 s[40:41], s[0:1], 80")
    k("s_load_dwordx2 s[44:45], s[0:1], 16")
    k("s_load_dwordx2 s[46:47], s[0:1], 32")
    k("s_load_dwordx2 s[38:39], s[0:1], 48")
    if "rowmap" not in X:
        k(f"s_and_b32 s{s_hd}, s2, 7"); k(f"s_lshl_b32 s{s_hd}, s{s_hd}, 2")
        k(f"s_bfe_u32 s{s_t0}, s2, 0x20003"); k(f"s_add_u32 s{s_hd}, s{s_hd}, s{s_t0}")
        k(f"s_lshr_b32 s{s_qb}, s2, 5")
    else:
        k(f"s_lshr_b32 s{s_hd}, s2, 3"); k(f"s_and_b32 s{s_qb}, s2, 7")
    k(f"s_and_b32 s{s_qs}, s{s_w}, 3"); k(f"s_lshr_b32 s{s_kh}, s{s_w}, 2")
    k(f"s_and_b32 s{s_odd}, s{s_hd}, 1")
    k(f"s_mov_b32 s{s_lo}, -1"); k(f"s_mov_b32 s{s_lo+1}, 0")
    k(f"s_lshr_b32 s{s_t0}, s{s_hd}, 1"); k(f"s_mul_i32 s{s_t0}, s{s_t0}, 5")
    k(f"s_mul_i32 s{s_t1}, s{s_odd}, 3"); k(f"s_add_u32 s{s_t1}, s{s_t1}, s{s_t0}")
    k(f"v_add_lshl_u32 v{vK1}, v{v_h}, s{s_t1}, 15")
    k(f"v_lshl_add_u32 v{vK1}, v{v_t}, 4, v{vK1}")
    k(f"s_add_u32 s{s_t0}, s{s_t0}, 2"); k(f"s_lshl_b32 s{s_t0}, s{s_t0}, 15")
    k(f"s_lshl_b32 s{s_t1}, s{s_odd}, 3"); k(f"s_add_u32 s{s_t0}, s{s_t0}, s{s_t1}")
    k(f"v_lshl_add_u32 v{vK2}, v{v_t}, 4, s{s_t0}")
    k(f"s_sub_u32 s{s_t0}, s{s_t0}, 512")
    k(f"v_lshl_add_u32 v{vK2p}, v{v_lane}, 4, s{s_t0}")
    k(f"s_lshl_b32 s{s_ko}, s{s_kh}, 14"); k(f"s_add_u32 s{s_ko}, s{s_ko}, {QK_OFF + 80 * CH}")
    k(f"s_lshl_b32 s{s_qo}, s{s_qb}, 12"); k(f"s_lshl_b32 s{s_t1}, s{s_qs}, 10"); k(f"s_add_u32 s{s_qo}, s{s_qo}, s{s_t1}")
    for qt in range(2):
        k(f"v_mov_b32 v{Q2[qt]}, 0"); k(f"v_mov_b32 v{Q2[qt]+1}, 0")
    k(f"s_mov_b32 s42, s{s_ko}")
    k(f"s_mov_b32 s{s_vm}, 0xfffff"); k(f"s_mov_b32 s{s_vm+1}, 0xfffff")
    k(f"v_add_u32 v{vt[0]}, 4, v{v_t}")
    k(f"v_subrev_u32 v{vt[1]}, 16, v{v_t}")
    k(f"v_cmp_gt_u32 vcc, 16, v{v_t}")
    k(f"v_cndmask_b32 v{vt[0]}, v{vt[1]}, v{vt[0]}, vcc")
    k(f"s_cmp_eq_u32 s{s_odd}, 1")
    k(f"s_cselect_b64 vcc, -1, 0")
    k(f"v_cndmask_b32 v{vt[0]}, v{v_t}, v{vt[0]}, vcc")
    k(f"s_mul_i32 s{s_t0}, s{s_hd}, 20")
    k(f"v_mul_u32_u24 v{vt[1]}, 640, v{v_h}")
    k(f"v_add3_u32 v{vV0}, v{vt[0]}, s{s_t0}, v{vt[1]}")
    k(f"v_lshlrev_b32 v{vV0}, 4, v{vV0}")
    k(f"v_add_u32 v{vV1}, {640 * 32}, v{vV0}")
    k(f"s_mul_i32 s{s_vo}, s{s_kh}, {32 * 1280 * 32}"); k(f"s_add_u32 s{s_vo}, s{s_vo}, {V_OFF}")
    k(f"s_mov_b32 s43, s{s_vo}"); k(f"s_mov_b32 s22, {1280 * 32}")
    k(f"v_cmp_eq_u32 vcc, 0, v{v_h}"); k(f"v_mov_b32 v{vOne}, 0x3f80"); k(f"v_cndmask_b32 v{vOne}, 0, v{vOne}, vcc")
    k(f"v_mov_b32 v{vOne+1}, 0"); k(f"v_mov_b32 v{vOne+3}, 0")
    k(f"v_cmp_eq_u32 vcc, 20, v{v_t}")
    k(f"v_mov_b32 v{vt[1]}, 0x3f803f80")
    k(f"v_cndmask_b32 v{vt[1]}, 0, v{vt[1]}, vcc")
    for b in range(NBUF):
        for r in range(8): k(f"v_mov_b32 v{VB[b] + r}, v{vt[1]}")
    for qt in range(2):
        for r in range(16): k(f"v_mov_b32 v{O[qt] + r}, 0")
    for r in range(8): k(f"v_mov_b32 v{P[1] + r}, 0")
    k(f"s_lshr_b32 s{s_t0}, s2, 3"); k(f"s_lshl_b32 s{s_t0}, s{s_t0}, 3"); k(f"s_add_u32 s{s_t0}, s{s_t0}, s{s_w}")
    k(f"s_mul_i32 s49, s{s_t0}, {48 * 128}"); k(f"s_add_u32 s49, s49, {192 * F * 2}")
    k(f"v_lshlrev_b32 v{vt[2]}, 8, v{v_lane}"); k(f"v_add_u32 v{vt[2]}, 124, v{vt[2]}")
    k(f"v_mov_b32 v{vt[3]}, 0x7ffffff0")
    k(f"v_cmp_gt_u32 vcc, 24, v{v_lane}")
    k(f"v_cndmask_b32 v{v_pfa}, v{vt[3]}, v{vt[2]}, vcc")
    W2L = int(os.environ.get("W2L", "0"))
    if W2L:
        k(f"s_mul_i32 s48, s{s_t0}, {2 * W2L * 128}")
    else:
        k(f"s_lshl_b32 s48, s2, 3"); k(f"s_add_u32 s48, s48, s{s_w}"); k(f"s_mul_i32 s48, s48, {10 * 128}")
    k(f"v_cmp_gt_u32 vcc, {W2L or 5}, v{v_lane}")
    k(f"v_cndmask_b32 v{v_pfc}, v{vt[3]}, v{vt[2]}, vcc")
    k(f"s_sub_u32 s50, s{s_qs}, s{s_kh}"); k(f"s_add_u32 s50, s50, 3")
    k(f"s_lshl_b32 s92, s2, 3"); k(f"s_add_u32 s92, s92, s{s_w}"); k(f"s_mul_i32 s92, s92, 1536"); k(f"s_add_u32 s92, s92, {H_OFF}")
    k(f"v_lshrrev_b32 v{vt[0]}, 3, v{v_lane}")
    k(f"v_and_b32 v{vt[1]}, 7, v{v_lane}")
    k(f"v_bfe_u32 v{vt[2]}, v{v_lane}, 4, 1")
    k(f"v_lshlrev_b32 v{vt[2]}, 2, v{vt[2]}")
    k(f"v_xor_b32 v{vt[1]}, v{vt[1]}, v{vt[2]}")
    k(f"v_mul_u32_u24 v{vt[0]}, 1280, v{vt[0]}")
    k(f"v_lshl_add_u32 v{vD[0]}, v{vt[1]}, 4, v{vt[0]}")
    k(f"v_add_u32 v{vD[1]}, {8 * 1280 - 1024}, v{vD[0]}")
    k(f"v_lshrrev_b32 v{vt[0]}, 4, v{v_lane}")
    k(f"v_and_b32 v{vt[1]}, 15, v{v_lane}")
    k(f"v_lshlrev_b32 v{vt[2]}, 2, v{vt[0]}")
    k(f"v_xor_b32 v{vt[1]}, v{vt[1]}, v{vt[2]}")
    k(f"v_mul_u32_u24 v{vt[0]}, {F * 2}, v{vt[0]}")
    k(f"v_lshl_add_u32 v{vD[2]}, v{vt[1]}, 4, v{vt[0]}")
    k(f"v_add_u32 v{vD[3]}, {4 * F * 2 - 1024}, v{vD[2]}")
    k(f"s_lshr_b32 s{s_t0}, s2, 3")
    k(f"s_mul_i32 s{s_t1}, s{s_t0}, 43"); k(f"s_lshr_b32 s{s_t1}, s{s_t1}, 7"); k(f"s_lshl_b32 s{s_t1}, s{s_t1}, 7")
    k(f"s_mul_i32 s{s_do}, s{s_w}, {16 * 1280}"); k(f"s_add_u32 s{s_do}, s{s_do}, s{s_t1}")
    k(f"s_lshr_b32 s{s_t0}, s{s_t0}, 1"); k(f"s_lshl_b32 s{s_t0}, s{s_t0}, 8")
    k(f"s_mul_i32 s59, s{s_w}, {8 * F * 2}"); k(f"s_add_u32 s59, s59, s{s_t0}")
    k(f"s_lshl_b32 s{s_dm}, s{s_w}, 11")
    k("s_waitcnt lgkmcnt(0)")
    srd(k, sW, 40, 41, QKV_END); srd(k, sWW, 40, 41, WS_END)
    srd(k, sP1, 44, 45, D * D * 2); srd(k, sP2, 46, 47, D * F * 2)
    W = f"s[{sW}:{sW+3}]"
    k("s_load_dwordx2 s[44:45], s[0:1], 0")
    k(f"s_lshr_b32 s{s_t0}, s2, 3"); k(f"s_mul_i32 s{s_t1}, s{s_t0}, 43"); k(f"s_lshr_b32 s{s_t1}, s{s_t1}, 7")
    k(f"s_mul_i32 s46, s{s_t1}, 3"); k(f"s_sub_u32 s{s_t0}, s{s_t0}, s46"); k(f"s_mul_i32 s{s_t0}, s{s_t0}, 3"); k(f"s_add_u32 s{s_t0}, s{s_t0}, s{s_w}")
    k(f"s_and_b32 s46, s2, 7"); k(f"s_lshl_b32 s46, s46, 3"); k(f"s_add_u32 s{s_t0}, s{s_t0}, s46"); k(f"s_lshl_b32 s{s_t0}, s{s_t0}, 5")
    k(f"v_add_u32 v{XRA}, s{s_t0}, v{v_t}"); k(f"v_mul_u32_u24 v{XRA}, 1280, v{XRA}")
    k(f"v_lshl_add_u32 v{XRA}, v{v_h}, 4, v{XRA}")
    k(f"s_lshl_b32 s{s_t1}, s{s_t1}, 7"); k(f"v_add_u32 v{XRA}, s{s_t1}, v{XRA}")
    k(f"s_lshl_b32 s{s_t1}, s{s_kh}, 9"); k(f"s_add_u32 s{s_qo}, s{s_qo}, s{s_t1}"); k(f"s_xor_b32 s47, s{s_qo}, 512")
    srd(k, sP3, 38, 39, D * F * 2)
    k(f"s_getreg_b32 s51, hwreg(HW_REG_XCC_ID)"); k(f"s_and_b32 s51, s51, 15")
    k(f"s_and_b32 s{s_t0}, s2, 7"); k(f"s_lshl_b32 s{s_t0}, s{s_t0}, 7"); k(f"s_add_u32 s{s_t0}, s{s_t0}, {FX_OFF}")
    k(f"v_lshl_add_u32 v{v_fx}, v{v_t}, 10, s{s_t0}")
    k(f"s_and_b32 s{s_t0}, s{s_w}, 6"); k(f"s_cmp_lg_u32 s{s_t0}, 4"); k(f"s_cbranch_scc1 {k.L('nt')}")
    k(f"s_lshr_b32 s{s_t0}, s{s_hd}, 1"); k(f"s_mul_i32 s{s_t0}, s{s_t0}, 5"); k(f"s_add_u32 s{s_t0}, s{s_t0}, s{s_odd}"); k(f"s_add_u32 s{s_t0}, s{s_t0}, s{s_odd}")
    k(f"s_add_u32 s{s_t1}, s{s_t0}, 2"); k(f"s_lshr_b32 s{s_t0}, s{s_t0}, 4"); k(f"s_lshr_b32 s{s_t1}, s{s_t1}, 4")
    k(f"s_cmp_eq_u32 s{s_w}, 4"); k(f"s_cbranch_scc1 {k.L('fk')}")
    k(f"s_lshl_b32 s{s_t0}, s2, 7"); k(f"s_add_u32 s{s_t0}, s{s_t0}, {FX_OFF}")
    k(f"v_mov_b32 v{vt[2]}, s{S_TAG}"); k(f"v_mov_b32 v{vt[3]}, s51"); k(f"v_mov_b32 v{vt[4]}, 0")
    k("s_mov_b64 exec, 1")
    k(f"buffer_store_dwordx2 {vr(vt[2], 2)}, v{vt[4]}, s[{sWW}:{sWW+3}], s{s_t0} offen sc1")
    k("s_mov_b64 exec, -1")
    k(f"s_mul_i32 s{s_t0}, s{s_hd}, 20"); k(f"s_add_u32 s{s_t1}, s{s_t0}, {19 + 640}"); k(f"s_add_u32 s{s_t0}, s{s_t0}, 640")
    k(f"s_lshr_b32 s{s_t0}, s{s_t0}, 7"); k(f"s_lshr_b32 s{s_t1}, s{s_t1}, 7")
    k.label(k.L("fk"))
    k(f"v_mov_b32 v{vt[0]}, s{s_t0}"); k(f"v_mov_b32 v{vt[1]}, s{s_t1}")
    k(f"v_and_b32 v{vt[5]}, 16, v{v_lane}"); k(f"v_cmp_eq_u32 vcc, 0, v{vt[5]}")
    k(f"v_cndmask_b32 v{vt[5]}, v{vt[1]}, v{vt[0]}, vcc")
    k(f"v_and_b32 v{vt[1]}, 15, v{v_lane}")
    k(f"v_lshl_add_u32 v{vt[0]}, v{vt[1]}, 4, v{vt[5]}")
    k(f"v_add_u32 v{vt[0]}, 5, v{vt[0]}")
    k(f"v_and_b32 v{vt[1]}, 1, v{v_lane}"); k(f"s_lshl_b32 s{s_t0}, s{s_qb}, 1"); k(f"v_add_u32 v{vt[1]}, s{s_t0}, v{vt[1]}")
    k(f"v_lshl_add_u32 v{vt[1]}, v{vt[1]}, 4, v{vt[5]}")
    k(f"s_cmp_eq_u32 s{s_w}, 4"); k(f"s_cselect_b32 s{s_t0}, 32, 64")
    k(f"v_cmp_gt_u32 vcc, s{s_t0}, v{v_lane}")
    k(f"v_cndmask_b32 v{vt[0]}, v{vt[1]}, v{vt[0]}, vcc")
    k(f"v_lshlrev_b32 v{vt[0]}, 7, v{vt[0]}"); k(f"v_add_u32 v{vt[0]}, {FL_OFF}, v{vt[0]}")
    k.label(k.L("nt"))
    k("s_waitcnt vmcnt(0) lgkmcnt(0)")
    k("s_barrier")
    k.stamp(3, "st1" in X)
    k(f"s_and_b32 s{s_t0}, s{s_w}, 6"); k(f"s_cmp_lg_u32 s{s_t0}, 4"); k(f"s_cbranch_scc1 {k.L('nw')}")
    k(f"s_cmp_lg_u32 s{s_w}, 4"); k(f"s_cbranch_scc1 {k.L('npb')}")
    publish(k, sWW, 1, 94, s_t0, vt[4], vt[5])
    k.label(k.L("npb"))
    poll(k, sWW, [vt[0]], [vt[2]], s_it, "1")
    k.label(k.L("nw"))
    if "h1" in X: gate2(k, 20)
    k("s_barrier")
    k.stamp(4, "st1" in X)
    SC = " sc1" if "kvsc1" in X else (" nt" if "kvnt" in X else "")
    def kload(b, pair=True):
        r = [f"buffer_load_dwordx4 {vr(K1[b],4)}, v{vK1}, {W}, s{s_ko} offen{SC}"]
        if b % 2 and pair: r.append(f"buffer_load_dwordx2 {vr(K2[b // 2],2)}, v{vK2p}, {W}, s{s_ko} offen{SC}")
        return r + [f"s_add_u32 s{s_ko}, s{s_ko}, 512"]
    def vload(b):
        return [f"s_mov_b64 exec, s[{s_vm}:{s_vm+1}]",
                f"buffer_load_dwordx4 {vr(VB[b],4)}, v{vV0}, {W}, s{s_vo} offen{SC}",
                f"buffer_load_dwordx4 {vr(VB[b]+4,4)}, v{vV1}, {W}, s{s_vo} offen{SC}",
                f"s_mov_b64 exec, -1",
                f"s_add_u32 s{s_vo}, s{s_vo}, s22"]
    def wdma(which):
        a, b_, sr_, so, step = (vD[0], vD[1], sP1, s_do, 128 * 1280) if which == 0 else (vD[2], vD[3], sP2, 59, 64 * F * 2)
        return [f"s_mov_b32 m0, s{s_dm}", f"s_add_u32 s{s_dm}, s{s_dm}, 16384",
                f"buffer_load_dwordx4 v{a}, s[{sr_}:{sr_+3}], s{so} offen lds",
                f"buffer_load_dwordx4 v{b_}, s[{sr_}:{sr_+3}], s{so} offen offset:1024 lds",
                f"s_add_u32 s{so}, s{so}, {step}"]
    k(f"buffer_load_dwordx2 {vr(K2[0],2)}, v{vK2p}, {W}, s{s_ko} offen offset:512{SC}")
    for l in kload(0): k(l)
    for qt in range(2):
        k(f"buffer_load_dwordx4 {vr(Q1[qt],4)}, v{vK1}, {W}, s{s_qo if qt else 47} offen sc1")
        k(f"buffer_load_dwordx2 {vr(Q2B[qt],2)}, v{vK2}, {W}, s{s_qo if qt else 47} offen sc1")
    rest = kload(1, False) + vload(0) + kload(2) + vload(1) + kload(3) + vload(2) + [f"buffer_load_dword v{v_pf}, v{vt[7]}, {W}, 0 offen"] * 2
    k(f"v_mov_b32 v{vt[7]}, 0x7ffffff0")
    NPRO = int(os.environ.get("NPRO", "3"))
    n = 0
    while n < NPRO or (NPRO and rest[0].startswith("s_mov_b64 exec, -1")):
        l = rest.pop(0); k(l); n += l.startswith("buffer")
        if not rest: break
    def qk(qt, b, c):
        cc = "0" if c is None else vr(c, 16)
        return [f"v_mfma_f32_32x32x16_bf16 {vr(Sx[qt],16)}, {vr(K1[b],4)}, {vr(Q1[qt],4)}, {cc}",
                f"v_mfma_f32_32x32x8_bf16 {vr(Sx[qt],16)}, {vr(K2[b // 2],2)}, {vr((Q2B if b % 2 else Q2)[qt],2)}, {vr(Sx[qt],16)}"]
    def pv(qt, b):
        return [f"v_mfma_f32_32x32x16_bf16 {vr(O[qt],16)}, {vr(VB[b],4)}, {vr(P[qt],4)}, {vr(O[qt],16)}",
                f"v_mfma_f32_32x32x16_bf16 {vr(O[qt],16)}, {vr(VB[b]+4,4)}, {vr(P[qt]+4,4)}, {vr(O[qt],16)}"]
    def rowmax(qt, dst, tmp):
        s = Sx[qt]
        k(f"v_max3_f32 v{dst}, v{s}, v{s+1}, v{s+2}")
        for r in range(3, 15, 2): k(f"v_max3_f32 v{dst}, v{dst}, v{s+r}, v{s+r+1}")
        k(f"v_max_f32 v{dst}, v{dst}, v{s+15}")
        k(f"v_mov_b32 v{tmp}, v{dst}")
        k(f"v_permlane32_swap_b32 v{dst}, v{tmp}")
        k(f"v_max_f32 v{dst}, v{dst}, v{tmp}")
    k(f"s_waitcnt vmcnt({n})")
    if "sta" in X: k.stamp(0)
    k("s_mov_b32 exec_hi, 0")
    for r in range(4): k(f"v_mov_b32 v{Q2[0] + r}, v{Q2B[0] + r}")
    for r in range(4): k(f"v_mov_b32 v{Q2B[0] + r}, 0")
    k("s_mov_b32 exec_hi, -1")
    for qt in range(2):
        for l in qk(qt, 0, None): k(l)
    for l in rest: k(l)
    for qt in range(2):
        rowmax(qt, vm[qt], vt[0])
        k(f"v_cvt_pk_bf16_f32 v{vOne+2}, -v{vm[qt]}, 0")
        k(f"v_mfma_f32_32x32x8_bf16 {vr(C[qt],16)}, {vr(vOne,2)}, {vr(vOne+2,2)}, 0")
        k(f"v_lshlrev_b32 v{vm[qt]}, 16, v{vOne+2}")
        k(f"v_xor_b32 v{vm[qt]}, 0x80000000, v{vm[qt]}")
    for l in qk(0, 0, C[0]): k(l)
    k("s_nop 7")
    k(f"s_mov_b32 s{s_it}, 0")
    if "sta" in X: k.stamp(2)
    k("s_nop 1")
    def slot(qt, mf, extra):
        s = Sx[qt]; p = P[qt]
        for i in range(16):
            for l in extra.get(i, []): k(l)
            if i % 4 == 0: k(mf[i // 4])
            k(f"v_exp_f32 v{s+i}, v{s+i}")
            if i % 2 == 1 and i >= 3:
                k(f"v_cvt_pk_bf16_f32 v{p + (i-3)//2}, v{s+i-3}, v{s+i-2}")
        for l in extra.get(16, []): k(l)
        k(f"v_cvt_pk_bf16_f32 v{p+7}, v{s+14}, v{s+15}")
    k(f"s_cmp_eq_u32 s{s_kh}, 0")
    k(f"s_cselect_b32 s31, 99, {int(os.environ.get('PRI', '6'))}")
    k(f"s_cbranch_scc1 {k.L('np')}")
    k("s_setprio 1")
    k.label(k.L("np"))
    k.label(k.L("loop"))
    for u in range(NBUF):
        b = u; bp = (u - 1) % NBUF; bn = (u + 1) % NBUF
        seq = []
        for i in range(3):
            for uu in range(4):
                kt = 4 * i + uu
                seq.append(("K", kt + 4))
                if uu % 2: seq.append(("P", (kt + 4) // 2))
                seq += [("V", kt + 3)] * 2
                if i == 2 and uu == u: break
            else:
                seq += [("W", i)] * 2
        kt = 8 + u
        last = max(len(seq) - 1 - seq[::-1].index(e) for e in (("K", kt + 1), ("P", (kt + 1) // 2), ("V", kt)))
        e1 = {0: [f"s_waitcnt vmcnt({len(seq) - 1 - last})"]}
        if "pt" in X:
            if u < 3: e1[7] = [f"s_buffer_load_dword s93, s[{sWW}:{sWW+3}], s92 offset:{u * 64}"]
        PU = int(os.environ.get("PU", "2"))
        if u == PU:
            k(f"s_cmp_lg_u32 s{s_it}, s31"); k(f"s_cbranch_scc1 {k.L('nph')}"); k("s_setprio 0"); k.label(k.L("nph"))
        slot(0, qk(1, b, C[1]) + pv(1, bp), {6: kload(b), 14: vload(bp)})
        slot(1, qk(0, bn, C[0]) + pv(0, b), e1)
    k(f"s_add_u32 s{s_it}, s{s_it}, 1")
    if PU == 4:
        k(f"s_cmp_lg_u32 s{s_it}, s31")
        k(f"s_cbranch_scc1 {k.L('noev')}")
        k("s_setprio 0")
        k.label(k.L("noev"))
    if W2L:
        k(f"s_sub_u32 s{s_t0}, s50, 1")
        k(f"s_cmp_lg_u32 s{s_it}, s{s_t0}"); k(f"s_cbranch_scc1 {k.L('noe0')}")
        k(f"buffer_load_dwordx2 {vr(v_pf, 2)}, v{v_pfc}, s[{sP3}:{sP3+3}], s48 offen")
        k.label(k.L("noe0"))
    k(f"s_cmp_lg_u32 s{s_it}, s50"); k(f"s_cbranch_scc1 {k.L('noe2')}")
    k(f"buffer_load_dwordx2 {vr(v_pf, 2)}, v{v_pfa}, s[{sP2}:{sP2+3}], s49 offen")
    if not W2L: k(f"buffer_load_dwordx2 {vr(v_pf, 2)}, v{v_pfc}, s[{sP3}:{sP3+3}], s48 offen")
    k(f"s_cmp_lg_u32 s{s_w}, 5"); k(f"s_cbranch_scc1 {k.L('noe1')}")
    k(f"s_lshl_b32 s{s_t0}, s2, 7"); k(f"s_add_u32 s{s_t0}, s{s_t0}, {FL_OFF + 32768}")
    for j in range(3): k(f"s_buffer_load_dword s93, s[{sWW}:{sWW+3}], s{s_t0} offset:{j * 32768}")
    k(f"buffer_load_dwordx2 {vr(vX, 2)}, v{v_fx}, s[{sWW}:{sWW+3}], 0 offen sc1")
    k.label(k.L("noe1"))
    k(f"s_cmp_lg_u32 s{s_w}, 3"); k(f"s_cbranch_scc1 {k.L('noe2')}")
    code_prefetch(k, "L_p2_merge", sP3, s_t0, vt[0], v_pf, v_lane, per=8)
    k.label(k.L("noe2"))
    if "pt" in X: k("s_add_u32 s92, s92, 192")
    k(f"s_cmp_ge_u32 s{s_it}, 6"); k(f"s_cbranch_scc1 {k.L('d1')}")
    for l in wdma(0): k(l)
    k(f"s_branch {k.L('loop')}")
    k.label(k.L("d1"))
    k(f"s_cmp_eq_u32 s{s_it}, 7")
    k(f"s_cselect_b32 s{s_ko}, 0x10000000, s{s_ko}"); k(f"s_cselect_b32 s22, 0x10000000, s22")
    for l in wdma(1): k(l)
    k(f"s_cmp_lt_u32 s{s_it}, 8"); k(f"s_cbranch_scc1 {k.L('loop')}")
    k.label(k.L("lend"))
    k.stamp(5)
    for l in pv(1, NBUF - 1): k(l)
    k(f"s_cmp_ge_u32 s{s_w}, 3"); k(f"s_cbranch_scc1 {k.L('d2')}")
    srd(k, sP3, 44, 45, S * D * 2)
    for c in range(4):
        k(f"buffer_load_dwordx4 {vr(XR + 4*c, 4)}, v{XRA}, s[{sP3}:{sP3+3}], 0 offen offset:{32*c}")
    k.label(k.L("d2"))
    k("s_nop 4")
    k(f"v_pk_add_f32 {vr(vt[0],2)}, {vr(O[0],2)}, {vr(O[0]+2,2)}")
    for r in range(4, 12, 2): k(f"v_pk_add_f32 {vr(vt[0],2)}, {vr(vt[0],2)}, {vr(O[0]+r,2)}")
    for r in range(0, 12, 2): k(f"v_pk_add_f32 {vr(vt[0],2)}, {vr(vt[0],2)}, {vr(O[1]+r,2)}")
    k(f"v_add_f32 v{vt[0]}, v{vt[0]}, v{vt[1]}")
    k(f"v_add_f32 v{vt[1]}, v{O[0]+8}, v{O[1]+8}")
    k(f"s_mov_b32 s{s_t0}, {f32(2.0**120)}")
    k(f"v_cmp_nlt_f32 s[{s_c}:{s_c+1}], |v{vt[0]}|, s{s_t0}")
    k(f"s_mov_b32 s{s_t0}, {f32(2.0**60)}")
    k(f"v_cmp_nlt_f32 vcc, |v{vt[1]}|, s{s_t0}")
    k(f"s_andn2_b64 vcc, vcc, s[{s_lo}:{s_lo+1}]")
    k(f"s_or_b64 s[{s_c}:{s_c+1}], s[{s_c}:{s_c+1}], vcc")
    if "forcefb" not in X: k(f"s_cbranch_scc0 {k.L('merge')}")
    k("s_waitcnt vmcnt(0)")
    k(f"s_mov_b32 s22, {1280 * 32}")
    k(f"s_mov_b32 s{s_ko}, s42"); k(f"s_mov_b32 s{s_vo}, s43")
    for qt in range(2):
        for r in range(16): k(f"v_mov_b32 v{O[qt] + r}, 0")
        k(f"v_mov_b32 v{vm[qt]}, 0xff800000")
    k(f"s_mov_b32 s{s_it}, 0")
    k.label(k.L("fb"))
    k(f"buffer_load_dwordx2 {vr(K2[0],2)}, v{vK2}, {W}, s{s_ko} offen")
    for l in kload(0) + vload(0): k(l)
    k("s_waitcnt vmcnt(0)")
    for qt in range(2):
        for l in qk(qt, 0, None): k(l)
    for qt in range(2):
        rowmax(qt, vt[2], vt[0])
        k(f"v_max_f32 v{vt[2]}, v{vt[2]}, v{vm[qt]}")
        k(f"v_sub_f32 v{vt[3]}, v{vm[qt]}, v{vt[2]}")
        k(f"v_exp_f32 v{vt[3]}, v{vt[3]}")
        k(f"v_mov_b32 v{vm[qt]}, v{vt[2]}")
        for r in range(16): k(f"v_mul_f32 v{O[qt]+r}, v{O[qt]+r}, v{vt[3]}")
        for r in range(16): k(f"v_sub_f32 v{Sx[qt]+r}, v{Sx[qt]+r}, v{vt[2]}")
        for r in range(16): k(f"v_exp_f32 v{Sx[qt]+r}, v{Sx[qt]+r}")
        for r in range(8): k(f"v_cvt_pk_bf16_f32 v{P[qt]+r}, v{Sx[qt]+2*r}, v{Sx[qt]+2*r+1}")
        for l in pv(qt, 0): k(l)
    k("s_nop 7"); k("s_nop 7")
    k(f"s_add_u32 s{s_it}, s{s_it}, 1")
    k(f"s_cmp_lt_u32 s{s_it}, 32")
    k(f"s_cbranch_scc1 {k.L('fb')}")
    k.label(k.L("merge"))
    O = [O[1], O[0]]; vm = [vm[1], vm[0]]
    k(f"s_mul_i32 s{s_t0}, s{s_w}, 3328"); k(f"s_add_u32 s{s_t0}, s{s_t0}, {MRG}")
    k(f"s_xor_b32 s{s_t1}, s{s_w}, 4"); k(f"s_mul_i32 s{s_t1}, s{s_t1}, 3328"); k(f"s_add_u32 s{s_t1}, s{s_t1}, {MRG}")
    k(f"v_lshl_add_u32 v{vt[0]}, v{v_lane}, 4, s{s_t0}")
    k(f"v_lshl_add_u32 v{vt[2]}, v{v_lane}, 2, s{s_t0}")
    for q in range(3): k(f"ds_write_b128 v{vt[0]}, {vr(O[1] + 4*q, 4)} offset:{q*1024}")
    k(f"ds_write_b32 v{vt[2]}, v{vm[1]} offset:3072")
    k(f"v_lshl_add_u32 v{vt[1]}, v{v_lane}, 4, s{s_t1}")
    k(f"v_lshl_add_u32 v{vt[3]}, v{v_lane}, 2, s{s_t1}")
    k(f"v_mov_b32 v{vt[7]}, {LOCW}")
    k(f"s_cmp_lg_u32 s{s_w}, 5"); k(f"s_cbranch_scc1 {k.L('nl')}")
    k(f"v_cmp_ne_u32 vcc, s{S_TAG}, v{vX}")
    k(f"v_cmp_ne_u32 s[90:91], s51, v{vX+1}")
    k("s_or_b64 vcc, vcc, s[90:91]")
    k(f"s_cselect_b32 s{s_t0}, 0, 1")
    k(f"v_mov_b32 v{vX}, s{s_t0}"); k(f"v_mov_b32 v{vX+1}, s{S_TAG}")
    k(f"ds_write_b64 v{vt[7]}, {vr(vX, 2)}")
    k.label(k.L("nl"))
    k("s_waitcnt lgkmcnt(0)")
    k("s_barrier")
    if "sta" in X: k.stamp(3); k("s_waitcnt lgkmcnt(0)")
    mo = Sx[0] + 12
    k(f"ds_read_b32 v{mo}, v{vt[3]} offset:3072")
    for q in range(3): k(f"ds_read_b128 {vr(Sx[0] + 4*q, 4)}, v{vt[1]} offset:{q*1024}")
    k(f"ds_read_b64 {vr(vX, 2)}, v{vt[7]}")
    k(f"s_add_u32 s{s_t0}, s{s_qo}, {O_OFF}")
    k("s_waitcnt lgkmcnt(4)")
    k(f"v_max_f32 v{vt[2]}, v{vm[0]}, v{mo}")
    k(f"v_sub_f32 v{vt[3]}, v{vm[0]}, v{vt[2]}"); k(f"v_sub_f32 v{vt[4]}, v{mo}, v{vt[2]}")
    k(f"v_exp_f32 v{vt[3]}, v{vt[3]}"); k(f"v_exp_f32 v{vt[4]}, v{vt[4]}")
    k(f"v_mul_f32 v{vt[5]}, v{O[0]+8}, v{vt[3]}")
    k("s_waitcnt lgkmcnt(0)")
    k(f"v_fmac_f32 v{vt[5]}, v{Sx[0]+8}, v{vt[4]}")
    k(f"v_readfirstlane_b32 s{S_LOC}, v{vX}"); k(f"v_readfirstlane_b32 s{S_TAG}, v{vX+1}")
    if "rowmap" not in X: k("s_mov_b64 vcc, 0")
    else: loc_vcc(k)
    k(f"v_mov_b32 v{vt[6]}, v{vt[5]}")
    k(f"v_permlane32_swap_b32 v{vt[5]}, v{vt[6]}")
    k(f"v_rcp_f32 v{vt[6]}, v{vt[6]}")
    k(f"v_mul_f32 v{vt[2]}, v{vt[3]}, v{vt[6]}"); k(f"v_mul_f32 v{vt[3]}, v{vt[4]}, v{vt[6]}")
    for r in range(0, 12, 2): k(f"v_pk_mul_f32 {vr(O[0]+r,2)}, {vr(O[0]+r,2)}, {vr(vt[2],2)} op_sel_hi:[1,0]")
    for r in range(0, 12, 2): k(f"v_pk_fma_f32 {vr(O[0]+r,2)}, {vr(Sx[0]+r,2)}, {vr(vt[2],2)}, {vr(O[0]+r,2)} op_sel:[0,1,0] op_sel_hi:[1,1,1]")
    for r in range(6): k(f"v_cvt_pk_bf16_f32 v{P[0]+r}, v{O[0]+2*r}, v{O[0]+2*r+1}")
    k(f"v_permlane32_swap_b32 v{P[0]}, v{P[0]+2}")
    k(f"v_permlane32_swap_b32 v{P[0]+1}, v{P[0]+3}")
    dstores(k, [f"buffer_store_dwordx4 {vr(P[0],4)}, v{vK1}, s[{sWW}:{sWW+3}], s{s_t0} offen",
                "s_mov_b32 exec_hi, 0",
                f"buffer_store_dwordx2 {vr(P[0]+4,2)}, v{vK2}, s[{sWW}:{sWW+3}], s{s_t0} offen",
                "s_mov_b32 exec_hi, -1"])
    k(f"s_lshl_b32 s94, s{s_qb}, 5"); k(f"s_add_u32 s94, s94, s{s_hd}")
    k.stamp(6)

def phase345(k):
    k.pref = "p3"
    GB = 16384; NSLOT = 8; SB = NSLOT * GB
    PH = {3: dict(NT=2, KK=D, A_OFF=O_OFF, base=0), 4: dict(NT=4, KK=D, A_OFF=H_OFF, base=5), 5: dict(NT=2, KK=F, A_OFF=G_OFF, base=7)}
    for p in PH.values():
        p["GS"] = 16 // p["NT"]; p["GR"] = p["GS"] * 16; p["NG"] = (p["KK"] + p["GR"] - 1) // p["GR"]; p["NKS"] = p["KK"] // 16
    sW, sB3, sB4, sB5, sX, sO, sBi = 4, 8, 12, 16, 8, 12, 16
    s_r, s_cb, s_w, s_t0, s_t1, s_offA, s_it, s_wid, s_r4, s_cb4, s_idx, s_x = 20, 21, 22, 23, 24, 26, 28, S_WID, 29, 30, 31, 32
    s_ob = {3: 25, 4: 26, 5: 27}; s_m0 = 33
    sPl, sSc = 96, 52
    ASC = os.environ.get("ASC", " sc1")
    v_lane, v_t, v_h = 1, 2, 3
    vt = [12, 13, 14, 15]
    k("s_load_dwordx2 s[42:43], s[0:1], 32")
    k("s_load_dwordx4 s[44:47], s[0:1], 48")
    k("s_load_dwordx2 s[56:57], s[0:1], 64")
    k(f"s_lshr_b32 s{s_idx}, s2, 3"); k(f"s_and_b32 s{s_x}, s2, 7")
    k(f"s_mul_i32 s{s_cb}, s{s_idx}, 43"); k(f"s_lshr_b32 s{s_cb}, s{s_cb}, 7")
    k(f"s_mul_i32 s{s_t1}, s{s_cb}, 3"); k(f"s_sub_u32 s{s_r}, s{s_idx}, s{s_t1}")
    k(f"s_and_b32 s{s_r4}, s{s_idx}, 1"); k(f"s_lshr_b32 s{s_cb4}, s{s_idx}, 1")
    k(f"s_and_b32 s{s_w}, s{s_wid}, 3")
    k(f"s_cmp_lt_u32 s{s_wid}, 4")
    k(f"s_cbranch_scc1 {k.L('compute')}")
    vB2 = [4, 5, 6, 7]; vB4 = [8, 9, 10, 11]
    k(f"v_lshrrev_b32 v{vt[0]}, 3, v{v_lane}")
    k(f"v_and_b32 v{vt[1]}, 7, v{v_lane}")
    k(f"v_bfe_u32 v{vt[2]}, v{v_lane}, 4, 1")
    k(f"v_lshlrev_b32 v{vt[2]}, 2, v{vt[2]}")
    k(f"v_xor_b32 v{vt[1]}, v{vt[1]}, v{vt[2]}")
    k(f"v_mul_u32_u24 v{vt[0]}, 1280, v{vt[0]}")
    k(f"v_lshl_add_u32 v{vB2[0]}, v{vt[1]}, 4, v{vt[0]}")
    for ii in range(1, 4): k(f"v_add_u32 v{vB2[ii]}, {ii * (8 * 1280 - 1024)}, v{vB2[0]}")
    k(f"s_mul_i32 s{s_ob[5]}, s{s_w}, {32 * 1280}"); k(f"s_lshl_b32 s{s_t1}, s{s_cb}, 7"); k(f"s_add_u32 s{s_ob[5]}, s{s_ob[5]}, s{s_t1}")
    k(f"s_add_u32 s37, s{s_ob[5]}, {(14 - int(os.environ.get('NSTASH', '0'))) * 128 * 1280}")
    k(f"s_lshl_b32 s{s_m0}, s{s_w}, 12")
    k(f"v_lshrrev_b32 v{vt[0]}, 4, v{v_lane}")
    k(f"v_and_b32 v{vt[1]}, 15, v{v_lane}")
    k(f"v_lshlrev_b32 v{vt[2]}, 2, v{vt[0]}")
    k(f"v_xor_b32 v{vt[1]}, v{vt[1]}, v{vt[2]}")
    k(f"v_mul_u32_u24 v{vt[0]}, {F * 2}, v{vt[0]}")
    k(f"v_lshl_add_u32 v{vB4[0]}, v{vt[1]}, 4, v{vt[0]}")
    for ii in range(1, 4): k(f"v_add_u32 v{vB4[ii]}, {ii * (4 * F * 2 - 1024)}, v{vB4[0]}")
    k(f"s_mul_i32 s{s_ob[4]}, s{s_w}, {16 * F * 2}"); k(f"s_lshl_b32 s{s_t1}, s{s_cb4}, 8"); k(f"s_add_u32 s{s_ob[4]}, s{s_ob[4]}, s{s_t1}")
    k(f"s_add_u32 s{s_ob[4]}, s{s_ob[4]}, {192 * F * 2}")
    k(f"s_lshl_b32 s{s_t0}, s{s_cb4}, 10"); k(f"s_lshl_b32 s{s_t1}, s{s_w}, 8"); k(f"s_add_u32 s{s_t0}, s{s_t0}, s{s_t1}")
    k(f"s_add_u32 s{s_t0}, s{s_t0}, {C1_OFF}")
    k(f"v_lshlrev_b32 v{vt[3]}, 2, v{v_lane}")
    k(f"v_add_u32 v{vt[2]}, s{s_t1}, v{vt[3]}"); k(f"v_add_u32 v{vt[2]}, {SB}, v{vt[2]}")
    k("s_waitcnt lgkmcnt(0)")
    srd(k, sB4, 42, 43, D * F * 2); srd(k, sB5, 44, 45, D * F * 2); srd(k, sW, 40, 41, WS_END)
    q = []
    def issue(p, j):
        P = PH[p]; slot = (P["base"] + j) % NSLOT
        vB = vB4 if p == 4 else vB2; sB = {4: sB4, 5: sB5}[p]
        k(f"s_add_u32 m0, s{s_m0}, {slot * GB}")
        for ii in range(4):
            k(f"buffer_load_dwordx4 v{vB[ii]}, s[{sB}:{sB+3}], s{s_ob[p]} offen offset:{ii*1024} lds")
            q.append((p, j))
        k(f"s_add_u32 s{s_ob[p]}, s{s_ob[p]}, {P['GR'] * (F if p == 4 else D) * 2}")
    def need(item):
        if item in q:
            last = len(q) - 1 - q[::-1].index(item)
            k(f"s_waitcnt vmcnt({len(q) - 1 - last})")
            del q[:last + 1]
    def bar(item=None):
        if item is not None: need(item)
        k("s_barrier")
    vP = 16; s_q = 34
    k(f"s_lshl_b32 s{s_q}, s{s_idx}, 2"); k(f"s_add_u32 s{s_q}, s{s_q}, s{s_w}")
    k(f"s_lshl_b32 s{s_it}, s{s_x}, 12")
    k(f"v_lshl_add_u32 v{vP}, v{v_t}, 7, s{s_it}")
    k(f"v_lshl_add_u32 v{vP+1}, v{v_h}, 15, v{vP}")
    def apf(p):
        if ("apf%d" % p) not in X: return
        lab = k.L("apf%d_%d" % (p, k.uid)); k.uid += 1
        k(f"s_cmp_ge_u32 s{s_q}, {108 if p == 5 else 80}"); k(f"s_cbranch_scc1 {lab}")
        k(f"s_lshl_b32 s{s_it}, s{s_q}, {16 if p == 5 else 15}"); k(f"s_add_u32 s{s_it}, s{s_it}, {PH[p]['A_OFF']}")
        k(f"buffer_load_dword v{vP+2}, v{vP + (1 if p == 5 else 0)}, s[{sW}:{sW+3}], s{s_it} offen sc1")
        k.label(lab)
        k("s_waitcnt vmcnt(0)"); q[:] = []
    k("s_waitcnt vmcnt(0)")
    bar()
    k(f"s_cmp_ge_u32 s{s_idx}, 30"); k(f"s_cbranch_scc1 L_exit")
    if "cpf2" in X:
        k(f"s_cmp_lg_u32 s{s_w}, 0"); k(f"s_cbranch_scc1 {k.L('ncp')}")
        code_prefetch(k, "L_p3_pb3", sB3, s_it, 24, 25, v_lane, per=6)
        k.label(k.L("ncp"))
    bar()
    k(f"s_cmp_ge_u32 s{s_idx}, 28"); k(f"s_cbranch_scc1 {k.L('lskip4')}")
    def piece(p, g, ii):
        P = PH[p]; vB = vB4 if p == 4 else vB2; sB = {4: sB4, 5: sB5}[p]
        if ii == 0: k(f"s_add_u32 m0, s{s_m0}, {((P['base'] + g) % NSLOT) * GB}")
        k(f"buffer_load_dwordx4 v{vB[ii]}, s[{sB}:{sB+3}], s{s_ob[p]} offen offset:{ii*1024} lds")
        q.append((p, g))
        if ii == 3: k(f"s_add_u32 s{s_ob[p]}, s{s_ob[p]}, {P['GR'] * (F if p == 4 else D) * 2}")
    todo = [(4, g, ii) for g in range(3, 10) for ii in range(4)] + [(5, g, ii) for g in range(8) for ii in range(4)]
    P3 = [int(v) for v in os.environ.get("P3", "0,0,0,0,12,0").split(",")]
    for j in range(6):
        bar()
        for _ in range(P3[j]):
            p_, g, ii = todo.pop(0)
            assert p_ == 4 and (g - 3 + 2 <= j or (j == 5 and g < 8))
            piece(p_, g, ii)
    bar()
    k(f"buffer_load_dword v{vt[1]}, v{vt[3]}, s[{sW}:{sW+3}], s{s_t0} offen sc1"); q.append(("c", 0))
    P4 = [int(v) for v in os.environ.get("P4", "3,3,3,3,3,3,3,3,3,3").split(",")]
    for j in range(10):
        assert (4, j, 3) not in todo
        bar((4, j))
        if j == 6:
            need(("c", 0))
            k(f"ds_write_b32 v{vt[2]}, v{vt[1]}")
        for _ in range(P4[j]):
            p_, g, ii = todo[0]
            if (p_ == 4 and g >= 8 and g - 8 + 2 > j) or (p_ == 5 and g + 4 > j): break
            piece(*todo.pop(0))
            if "psl4" in X: k("s_nop 15")
    k("s_waitcnt lgkmcnt(0)")
    bar()
    THIN = int(os.environ.get("THIN", "6"))
    while todo:
        if THIN >= 0 and todo[0][2] % 2 == 0: k(f"s_waitcnt vmcnt({THIN})")
        piece(*todo.pop(0))
    bar()
    k(f"s_branch {k.L('l5')}")
    k.label(k.L("lskip4"))
    for j in range(6): bar()
    for j in range(8): issue(5, j)
    if "wbh" in X:
        k(f"s_cmp_lg_u32 s{s_q}, 112"); k(f"s_cbranch_scc1 {k.L('l5')}")
        k("s_waitcnt vmcnt(0)"); k("s_sleep 64")
        k("buffer_wbl2 sc1")
    k.label(k.L("l5"))
    k("s_waitcnt vmcnt(0)"); q[:] = []
    bar()
    k(f"s_cmp_lg_u32 s{s_w}, 3"); k("s_cbranch_scc1 L_exit")
    k(f"s_sub_u32 s{s_ob[5]}, s{s_ob[5]}, {3 * 32 * 1280}")
    pieces = [(g, ww, ii) for g in range(8, 14) for ww in range(4 if g < 13 else 2) for ii in range(4)]
    PPB = int(os.environ.get("PPB", "9"))
    for j in range(14):
        bar((5, j))
        n = 0
        while pieces and n < PPB and pieces[0][0] - 8 + 2 <= j:
            g, ww, ii = pieces.pop(0); n += 1
            assert g > j
            if ii == 0: k(f"s_mov_b32 m0, {((7 + g) % NSLOT) * GB + ww * 4096}")
            k(f"buffer_load_dwordx4 v{vB2[ii]}, s[{sB5}:{sB5+3}], s{s_ob[5]} offen offset:{ii*1024} lds")
            q.append((5, g))
            if ii == 3: k(f"s_add_u32 s{s_ob[5]}, s{s_ob[5]}, {32 * 1280}")
        if len(q) > 40:
            k("s_waitcnt vmcnt(40)"); del q[:len(q) - 40]
    assert not pieces
    if "sta" in X: k.dump(0, 14, s_wid)
    k("s_endpgm")

    k.label(k.L("compute"))
    vBr = [4, 5, 6, 7]; vA = 8; vS = 9; vO = 10; v_tag = 11
    RES = 16; BI = 32; ACC = 48
    DIST = int(os.environ.get('DIST', '6')); NFB = 8
    NFAS = {3: 32, 4: int(os.environ.get('NFA4', '24')), 5: int(os.environ.get('NFA5', '32'))}
    s_tok3 = 34; s_act = 25
    k(f"s_mul_i32 s{s_t0}, s{s_r}, 3"); k(f"s_add_u32 s{s_t0}, s{s_t0}, s{s_w}")
    k(f"s_cmp_eq_u32 s{s_w}, 3"); k(f"s_cselect_b32 s{s_act}, 8, s{s_t0}")
    k(f"s_lshl_b32 s{s_t1}, s{s_x}, 3"); k(f"s_add_u32 s{s_t0}, s{s_t0}, s{s_t1}"); k(f"s_lshl_b32 s{s_tok3}, s{s_t0}, 5")
    for c in range(4): k(f"s_mov_b32 s{48 + c}, {2*c*CH}")
    def nbar(n):
        for _ in range(n): k("s_barrier")
    def setup(p):
        if p == 4:
            k(f"s_lshl_b32 s{s_t0}, s{s_x}, 1"); k(f"s_add_u32 s{s_t0}, s{s_t0}, s{s_r4}"); k(f"s_lshl_b32 s{s_t0}, s{s_t0}, 2")
            k(f"s_add_u32 s{s_t0}, s{s_t0}, s{s_w}"); k(f"s_lshl_b32 s{s_t0}, s{s_t0}, 5")
            k(f"v_add_u32 v{vt[0]}, s{s_t0}, v{v_t}")
        else:
            k(f"v_add_u32 v{vt[0]}, s{s_tok3}, v{v_t}")
        k(f"v_lshlrev_b32 v{vA}, 15, v{v_h}")
        k(f"v_lshl_add_u32 v{vA}, v{vt[0]}, 4, v{vA}")
        k(f"s_mov_b32 s{s_offA}, {PH[p]['A_OFF']}")
    def setup2(p):
        late = []
        if p == 4:
            k(f"s_lshl_b32 s{s_t0}, s{s_cb4}, 19"); k(f"s_add_u32 s{s_t0}, s{s_t0}, {G_OFF}")
            k(f"v_add_u32 v{vO}, s{s_t0}, v{vA}")
            k(f"v_mul_u32_u24 v{vt[1]}, {5 * 16384}, v{v_h}")
            k(f"v_lshl_add_u32 v{vS}, v{vt[0]}, 3, v{vt[1]}")
            for i in range(5):
                late.append([f"s_mov_b32 s{s_t0}, {HS_OFF + i * 16384}",
                             f"buffer_load_dwordx2 {vr(BI + 2*i, 2)}, v{vS}, s[{sW}:{sW+3}], s{s_t0} offen sc1"])
            k(f"v_bfe_u32 v{vt[0]}, v{v_lane}, 2, 2")
            k(f"v_lshl_add_u32 v{vt[1]}, v{v_h}, 2, v{vt[0]}")
            k(f"v_lshlrev_b32 v{vt[1]}, 8, v{vt[1]}")
            k(f"v_lshl_add_u32 v{vt[0]}, v{vt[0]}, 6, v{vt[1]}")
        else:
            k(f"s_lshl_b32 s{s_t1}, s{s_cb}, 7")
            k(f"v_mul_u32_u24 v{vt[1]}, 1280, v{vt[0]}")
            k(f"v_lshl_add_u32 v{vt[1]}, v{v_h}, 4, v{vt[1]}")
            if p == 3:
                k(f"v_add_u32 v{vt[1]}, s{s_t1}, v{vt[1]}")
                k(f"s_lshl_b32 s{s_t0}, s{s_cb}, 18"); k(f"s_add_u32 s{s_t0}, s{s_t0}, {H_OFF}")
                k(f"v_add_u32 v{vO}, s{s_t0}, v{vA}")
                k(f"s_lshl_b32 s{s_t0}, s{s_cb}, 14"); k(f"s_add_u32 s{s_t0}, s{s_t0}, {HS_OFF}")
                k(f"v_lshl_add_u32 v{vS}, v{vt[0]}, 3, s{s_t0}")
            else:
                k(f"v_add_u32 v{vO}, s{s_t1}, v{vt[1]}")
                srd(k, sO, 56, 57, S * D * 2); srd(k, sBi, 46, 47, D * 2)
                k(f"v_lshlrev_b32 v{vt[2]}, 3, v{v_h}")
                for c in range(8):
                    k(f"buffer_load_dwordx2 {vr(BI + 2*c, 2)}, v{vt[2]}, s[{sBi}:{sBi+3}], s{s_t1} offen offset:{16*c}")
            k(f"v_bfe_u32 v{vt[0]}, v{v_lane}, 2, 2")
            k(f"v_lshl_add_u32 v{vt[0]}, v{v_h}, {3 if p == 3 else 2}, v{vt[0]}")
            k(f"v_lshlrev_b32 v{vt[0]}, 7, v{vt[0]}")
            k(f"v_bfe_u32 v{vt[3]}, v{v_lane}, 3, 1")
            k(f"v_lshl_add_u32 v{vt[0]}, v{vt[3]}, 6, v{vt[0]}")
        k(f"v_bfe_u32 v{vt[3]}, v{v_lane}, 4, 1")
        k(f"v_lshl_add_u32 v{vt[0]}, v{vt[3]}, 5, v{vt[0]}")
        k(f"v_and_b32 v{vt[3]}, 3, v{v_lane}")
        k(f"v_lshl_add_u32 v{vBr[0]}, v{vt[3]}, 3, v{vt[0]}")
        for j in range(1, PH[p]["NT"]): k(f"v_xor_b32 v{vBr[j]}, {64 * j}, v{vBr[0]}")
        return late
    def aload(p, i, FA):
        NFA = NFAS[p]
        return [f"buffer_load_dwordx4 {vr(FA + (i % NFA) * 4, 4)}, v{vA}, s[{sW}:{sW+3}], s{s_offA} offen{ASC}",
                f"s_add_u32 s{s_offA}, s{s_offA}, {2 * CH}"]
    def gemm(p, late, pre_issued, mid={}):
        P = PH[p]; NT = P["NT"]; GS = P["GS"]; NKS = P["NKS"]
        FB = ACC + 16 * NT; FA = FB + NFB * 4
        NFA = NFAS[p]; LA = min(NFA - 2, int(os.environ.get("LA%d" % p, "10" if p == 4 else "14"))); LI = int(os.environ.get("LI%d" % p, "6" if p == 4 else "8"))
        for i in range(LI):
            for l in aload(p, i, FA): k(l)
        nis = LI
        cur = [0]
        NM = NKS * NT; KSB = GB // GS
        def bread(m):
            ks, j = divmod(m, NT)
            G, qq = divmod(ks, GS)
            off = ((P["base"] + G) % NSLOT) * GB + qq * KSB
            r = []
            if qq == 0 and j == 0: r.append("s_barrier")
            base = (off // 65536) * 65536
            if base != cur[0]:
                for a in vBr[:NT]: r.append(f"v_add_u32 v{a}, {(base - cur[0]) & 0xffffffff:#x}, v{a}")
                cur[0] = base
            for e in range(2):
                r.append(f"ds_read_b64_tr_b16 {vr(FB + (m % NFB) * 4 + 2*e, 2)}, v{vBr[j]} offset:{off - base + e * (KSB // (4 if p == 3 else 2))}")
            return r
        if K.prof: k("s_waitcnt lgkmcnt(0)")
        for m in range(DIST):
            for l in bread(m): k(l)
        vq = [("A", i) for i in range(LI)]
        for m in range(NM):
            ks, j = divmod(m, NT)
            nout = 2 * (min(NM, m + DIST) - m - 1)
            if j == 0:
                pos = vq.index(("A", ks))
                k(f"s_waitcnt vmcnt({len(vq) - 1 - pos}) lgkmcnt({nout})")
            else:
                k(f"s_waitcnt lgkmcnt({nout})")
            cc = vr(ACC + 16*j, 16) if (ks or p != 4) else "0"
            k(f"v_mfma_f32_32x32x16_bf16 {vr(ACC + 16*j, 16)}, {vr(FB + (m % NFB) * 4, 4)}, {vr(FA + (ks % NFA) * 4, 4)}, {cc}")
            if ("stg%d" % p) in X and j == 0 and ks in (0, NKS // 5, 2 * NKS // 5, 3 * NKS // 5, 4 * NKS // 5):
                k.stamp(2 + [0, NKS // 5, 2 * NKS // 5, 3 * NKS // 5, 4 * NKS // 5].index(ks))
            if m + DIST < NM:
                for l in bread(m + DIST): k(l)
            if m in mid:
                for l in mid[m](len(vq) - 1 - max(i for i, e in enumerate(vq) if e[0] == "R") if any(e[0] == "R" for e in vq) else 0): k(l)
            if j in (0, NT // 2) and nis < min(NKS, ks + 1 + LA):
                for l in aload(p, nis, FA): k(l)
                vq.append(("A", nis)); nis += 1
            if j == 0 and late and ks + LA + 4 >= NKS:
                for l in late.pop(0): k(l)
                vq.append(("R", 0))
        assert not late
        if ("stg%d" % p) in X: k.stamp(0)
        return FB, FA
    def sync(pdone, pwait, nflags, name, slp=0, extra=False):
        publish(k, sW, pdone, 94, s_t0, vt[0], vt[1], not (pdone == 2 and "rowmap" not in X))
        k(f"v_min_u32 v{vt[0]}, {nflags - 1}, v{v_lane}")
        k(f"s_lshl_b32 s{s_t0}, s{s_x}, 12"); k(f"s_add_u32 s{s_t0}, s{s_t0}, {FL_OFF + (pwait - 1) * 32768}")
        k(f"v_lshl_add_u32 v{vt[0]}, v{vt[0]}, 7, s{s_t0}")
        if extra:
            k(f"s_lshl_b32 s{s_t0}, s{s_cb4}, 11"); k(f"s_add_u32 s{s_t0}, s{s_t0}, {FL_OFF + 15 * 128}")
            k(f"v_writelane_b32 v{vt[0]}, s{s_t0}, 63")
        poll(k, sW, [vt[0]], [vt[1]], s_it, name, slp)

    setup(3)
    k("s_waitcnt lgkmcnt(0)")
    srd(k, sW, 40, 41, WS_END)
    late = setup2(3)
    k(f"s_cmp_ge_u32 s{s_act}, 8"); k(f"s_cbranch_scc1 {k.L('nores')}")
    def res_to_acc(R):
        for c in range(4 if R == XR else 0):
            k(f"v_permlane32_swap_b32 v{R + 4*c}, v{R + 4*c + 2}")
            k(f"v_permlane32_swap_b32 v{R + 4*c + 1}, v{R + 4*c + 3}")
        for r in range(16):
            k(f"v_lshlrev_b32 v{ACC + 2*r}, 16, v{R + r}")
            k(f"v_and_b32 v{ACC + 2*r + 1}, 0xffff0000, v{R + r}")
    k("s_waitcnt vmcnt(0)")
    k("s_barrier")
    k(f"s_cmp_ge_u32 s{s_idx}, 30"); k(f"s_cbranch_scc1 L_exit")
    res_to_acc(XR)
    if "h2" in X: gate2(k, 40)
    k("s_barrier")
    k.stamp(7)
    FB, FA = gemm(3, late, False)
    if "st45" in X: k.stamp(2)
    k(f"v_mov_b32 v{vt[0]}, 0"); k(f"v_mov_b32 v{vt[1]}, 0"); k(f"s_mov_b32 s{s_t1}, 0x3f803f80")
    loc_vcc(k)
    for hf in range(2):
        for r in range(8*hf, 8*hf + 8):
            k(f"v_cvt_pk_bf16_f32 v{RES + r}, v{ACC + 2*r}, v{ACC + 2*r + 1}")
        dstores(k, [f"buffer_store_dwordx4 {vr(RES + 4*c, 4)}, v{vO}, s[{sW}:{sW+3}], s{48 + c} offen" for c in (2*hf, 2*hf + 1)])
    for r in range(16):
        k(f"v_dot2c_f32_bf16 v{vt[0]}, s{s_t1}, v{RES + r}")
        k(f"v_dot2c_f32_bf16 v{vt[1]}, v{RES + r}, v{RES + r}")
    k(f"v_mov_b32 v{vt[2]}, v{vt[0]}"); k(f"v_mov_b32 v{vt[3]}, v{vt[1]}")
    k(f"v_permlane32_swap_b32 v{vt[0]}, v{vt[2]}"); k(f"v_permlane32_swap_b32 v{vt[1]}, v{vt[3]}")
    k(f"v_add_f32 v{vt[0]}, v{vt[0]}, v{vt[2]}"); k(f"v_add_f32 v{vt[1]}, v{vt[1]}, v{vt[3]}")
    k("s_mov_b32 exec_hi, 0")
    dstores(k, [f"buffer_store_dwordx2 {vr(vt[0], 2)}, v{vS}, s[{sW}:{sW+3}], 0 offen"])
    k("s_mov_b32 exec_hi, -1")
    k(f"s_branch {k.L('pb3')}")
    k.label(k.L("nores"))
    k("s_waitcnt vmcnt(0)")
    k("s_barrier")
    k(f"s_cmp_lg_u32 s{s_w}, 3"); k(f"s_cbranch_scc1 {k.L('ns3')}")
    k(f"s_cmp_lt_u32 s{s_idx}, 30"); k(f"s_cbranch_scc1 {k.L('s3')}")
    publish(k, sW, 2, 94, s_t0, vt[0], vt[1], "rowmap" in X)
    k("s_endpgm")
    k.label(k.L("s3"))
    sync(2, 2, 32, "3")
    k(f"s_cmp_lg_u32 s{s_idx}, 0"); k(f"s_cbranch_scc1 {k.L('ns3')}")
    k(f"s_lshl_b32 s{s_t0}, s{s_x}, 7"); k(f"s_add_u32 s{s_t0}, s{s_t0}, {GD_OFF}")
    k(f"v_mov_b32 v{vt[0]}, 0"); k(f"v_mov_b32 v{vt[1]}, s{S_TAG}")
    k("s_mov_b64 exec, 1")
    k(f"buffer_store_dword v{vt[1]}, v{vt[0]}, s[{sW}:{sW+3}], s{s_t0} offen sc1")
    k("s_mov_b64 exec, -1")
    k.label(k.L("ns3"))
    k(f"s_cmp_ge_u32 s{s_idx}, 30"); k(f"s_cbranch_scc1 L_exit")
    nbar(4)
    k(f"s_cmp_lg_u32 s{s_w}, 3"); k(f"s_cbranch_scc1 {k.L('ngd')}")
    k(f"v_and_b32 v{vt[0]}, 7, v{v_lane}"); k(f"v_lshlrev_b32 v{vt[0]}, 7, v{vt[0]}"); k(f"v_add_u32 v{vt[0]}, {GD_OFF}, v{vt[0]}")
    k(f"buffer_load_dword v{vt[1]}, v{vt[0]}, s[{sW}:{sW+3}], 0 offen sc1")
    k("s_barrier")
    k("s_waitcnt vmcnt(0)")
    k(f"v_cmp_ne_u32 vcc, s{S_TAG}, v{vt[1]}")
    k(f"s_cbranch_vccz {k.L('gdok')}")
    poll(k, sW, [vt[0]], [vt[1]], s_it, "gd")
    k(f"s_branch {k.L('gdok')}")
    k.label(k.L("ngd"))
    k("s_barrier")
    k.label(k.L("gdok"))
    k("s_barrier")
    k.label(k.L("pb3"))
    k(f"s_lshl_b32 s94, s{s_x}, 5"); k(f"s_add_u32 s94, s94, s{s_idx}")
    k(f"s_cmp_ge_u32 s{s_idx}, 28"); k(f"s_cbranch_scc1 {k.L('skip4')}")
    setup(4)
    late = setup2(4)
    k("s_waitcnt vmcnt(0)")
    k("s_barrier")
    if "st2" not in X: k.stamp(8)
    k(f"s_cmp_lg_u32 s{s_w}, 3"); k(f"s_cbranch_scc1 {k.L('ns4')}")
    sync(3, 3, 30, "4", extra=True)
    k.label(k.L("ns4"))
    if "h3" in X: gate2(k, 45)
    k("s_barrier")
    if "cprio" in X: k("s_setprio 2")
    if "st2" not in X: k.stamp(9)
    PS = BI; MR = BI + 12
    kk = K("tmp")
    for i in range(1, 5): kk(f"v_add_f32 v{PS}, v{PS}, v{PS + 2*i}"); kk(f"v_add_f32 v{PS+1}, v{PS+1}, v{PS + 2*i + 1}")
    kk(f"v_mov_b32 v{PS+2}, v{PS}"); kk(f"v_mov_b32 v{PS+3}, v{PS+1}")
    kk(f"v_permlane32_swap_b32 v{PS}, v{PS+2}"); kk(f"v_permlane32_swap_b32 v{PS+1}, v{PS+3}")
    kk(f"v_add_f32 v{PS}, v{PS}, v{PS+2}"); kk(f"v_add_f32 v{PS+1}, v{PS+1}, v{PS+3}")
    rowstat_math(kk, PS, PS + 1, MR, MR + 1, PS + 2, True)
    kk(f"v_mul_f32 v{MR+1}, {f32(GS)}, v{MR+1}")
    kk(f"v_lshlrev_b32 v{vt[0]}, 4, v{v_h}"); kk(f"v_add_u32 v{vt[0]}, {SB}, v{vt[0]}")
    st = kk.lines; mid = {}
    m0_ = 160 - (len(st) + 1) // 2 - 1
    for i in range(0, len(st), 2):
        mid[m0_ + i // 2] = (lambda n, i=i: ([f"s_waitcnt vmcnt({n})"] if i == 0 else []) + st[i:i + 2])
    FB, FA = gemm(4, late, False, mid)
    if "st45" in X: k.stamp(3)
    if "st4" in X: k.stamp(2)
    k("s_barrier")
    if "st4" in X: k.stamp(3)
    T = FB; CSB = [FB + 32, FB + 64]
    def csread(nt):
        for rq in range(8):
            k(f"ds_read_b128 {vr(CSB[nt % 2] + rq*4, 4)}, v{vt[0]} offset:{(rq // 4) * 512 + nt*128 + (rq % 4)*32}")
    csread(0)
    k(f"s_mov_b32 s58, {f32(GC0 / GS)}"); k(f"s_mov_b32 s59, {f32(math.log2(GS))}")
    k(f"s_mov_b32 s36, {f32(GS)}")
    if "gsc1" in X: k(f"s_mov_b32 s{S_LOC}, 0")
    loc_vcc(k)
    for nt in range(4):
        if nt == 2:
            k(f"s_cmp_eq_u32 s{s_cb4}, 13"); k(f"s_cbranch_scc1 {k.L('done4')}")
            k(f"v_add_u32 v{vO}, {8 * CH}, v{vO}")
        k("s_waitcnt lgkmcnt(0)")
        if nt < 3: csread(nt + 1)
        a = ACC + 16 * nt; CS = CSB[nt % 2]; B1 = CS + 16
        for p in range(8):
            x = vr(a + 2*p, 2)
            k(f"v_pk_fma_f32 {x}, {vr(CS + 2*p, 2)}, {vr(MR,2)}, {x} op_sel_hi:[1,0,1]")
        for p in range(8):
            x = vr(a + 2*p, 2)
            k(f"v_pk_fma_f32 {x}, {x}, {vr(MR,2)}, {vr(B1 + 2*p, 2)} op_sel:[0,1,0] op_sel_hi:[1,1,1]")
        for p in range(8):
            x = vr(a + 2*p, 2); t = vr(T + 2*p, 2)
            k(f"v_pk_fma_f32 {t}, {x}, {x}, s[58:59] op_sel_hi:[1,1,0]")
        for p in range(8):
            x = vr(a + 2*p, 2); t = vr(T + 2*p, 2)
            k(f"v_pk_fma_f32 {t}, {t}, {x}, s[58:59] op_sel:[0,0,1] op_sel_hi:[1,1,1] neg_lo:[0,1,0] neg_hi:[0,1,0]")
        for r in range(16): k(f"v_exp_f32 v{T + r}, v{T + r}")
        for p in range(8):
            t = vr(T + 2*p, 2)
            k(f"v_pk_add_f32 {t}, {t}, s[36:37] op_sel_hi:[1,0]")
        for r in range(16): k(f"v_rcp_f32 v{T + r}, v{T + r}")
        for p in range(8):
            x = vr(a + 2*p, 2); t = vr(T + 2*p, 2)
            k(f"v_pk_mul_f32 {x}, {x}, {t}")
        Pk = T + 16 + (nt % 2) * 8
        for p in range(8):
            k(f"v_cvt_pk_bf16_f32 v{Pk + p}, v{a + 2*p}, v{a + 2*p + 1}")
        sts = [f"buffer_store_dwordx4 {vr(Pk + 4*pq,4)}, v{vO}, s[{sW}:{sW+3}], s{48 + (nt % 2)*2 + pq} offen" for pq in range(2)]
        if nt < int(os.environ.get("GWT", "4")):
            for l in sts: k(l + " sc1")
        else:
            dstores(k, sts)
    k.label(k.L("done4"))
    if "st4" in X: k.stamp(4)
    k("s_waitcnt vmcnt(0) lgkmcnt(0)")
    if "st4" in X: k.stamp(5)
    k("s_barrier")
    k.stamp(10)
    k(f"s_cmp_lg_u32 s{s_w}, 3"); k(f"s_cbranch_scc1 {k.L('p5')}")
    sync(4, 4, 28, "5")
    k(f"s_branch {k.L('p5')}")
    k.label(k.L("skip4"))
    k("s_waitcnt vmcnt(0)")
    k("s_barrier")
    k(f"s_cmp_lg_u32 s{s_w}, 3"); k(f"s_cbranch_scc1 {k.L('p5')}")
    sync(3, 4, 28, "6", 8)
    k.label(k.L("p5"))
    k(f"s_cmp_ge_u32 s{s_act}, 8"); k(f"s_cbranch_scc1 {k.L('idle5')}")
    setup(5)
    if "hclean" in X:
        k(f"s_lshl_b32 s{s_t0}, s{s_cb}, 18"); k(f"s_add_u32 s{s_t0}, s{s_t0}, {H_OFF}")
        k(f"v_add_u32 v{vS}, s{s_t0}, v{vA}")
    late = setup2(5)
    if "hclean" in X:
        for c in range(4):
            late.append([f"s_mov_b32 s{s_t0}, {2*c*CH}", f"buffer_store_dwordx4 {vr(RES + 4*c, 4)}, v{vS}, s[{sW}:{sW+3}], s{s_t0} offen sc1"])
    res_to_acc(RES)
    k("s_waitcnt vmcnt(0)")
    T = ACC + 64
    for r in range(16):
        k(f"v_lshlrev_b32 v{T + 2*r}, 16, v{BI + r}")
        k(f"v_and_b32 v{T + 2*r + 1}, 0xffff0000, v{BI + r}")
    for r in range(16):
        k(f"v_pk_add_f32 {vr(ACC + 2*r, 2)}, {vr(ACC + 2*r, 2)}, {vr(T + 2*r, 2)}")
    if "nootr" not in X:
        k(f"s_lshl_b32 s{s_t0}, s{s_w}, 12"); k(f"s_add_u32 s{s_t0}, s{s_t0}, {MRG}")
        k(f"v_and_b32 v{vt[0]}, 7, v{v_lane}"); k(f"v_xor_b32 v{vt[1]}, v{vt[0]}, v{v_h}")
        k(f"v_lshl_add_u32 v{vt[2]}, v{v_t}, 7, s{s_t0}")
        for c in range(4):
            k(f"v_xor_b32 v{vt[3]}, {2 * c}, v{vt[1]}"); k(f"v_lshl_add_u32 v{BI + c}, v{vt[3]}, 4, v{vt[2]}")
        k(f"v_lshrrev_b32 v{vt[1]}, 3, v{v_lane}")
        k(f"v_xor_b32 v{vt[3]}, v{vt[0]}, v{vt[1]}")
        k(f"v_lshl_add_u32 v{vt[2]}, v{vt[1]}, 7, s{s_t0}"); k(f"v_lshl_add_u32 v{BI + 4}, v{vt[3]}, 4, v{vt[2]}")
        k(f"v_add_u32 v{vt[1]}, s{s_tok3}, v{vt[1]}"); k(f"v_mul_u32_u24 v{vt[1]}, 1280, v{vt[1]}")
        k(f"v_lshl_add_u32 v{vt[1]}, v{vt[0]}, 4, v{vt[1]}"); k(f"v_add_u32 v{BI + 5}, s{s_t1}, v{vt[1]}")
        for i in range(4): k(f"s_mov_b32 s{48 + i}, {i * 8 * 1280}")
    if "h4" in X: gate2(k, 50)
    k("s_barrier")
    k.stamp(11)
    FB, FA = gemm(5, late, False)
    if "st4" in X: k.stamp(6)
    if "st45" in X: k.stamp(4)
    OSC = os.environ.get("OSC", " sc1")
    for c in range(4):
        for r in range(4*c, 4*c + 4):
            k(f"v_cvt_pk_bf16_f32 v{RES + r}, v{ACC + 2*r}, v{ACC + 2*r + 1}")
        k(f"v_permlane32_swap_b32 v{RES + 4*c}, v{RES + 4*c + 2}")
        k(f"v_permlane32_swap_b32 v{RES + 4*c + 1}, v{RES + 4*c + 3}")
        if "nootr" not in X:
            k(f"ds_write_b128 v{BI + c}, {vr(RES + 4*c, 4)}")
        else:
            k(f"buffer_store_dwordx4 {vr(RES + 4*c, 4)}, v{vO}, s[{sO}:{sO+3}], 0 offen offset:{32*c}{OSC}")
    if "nootr" not in X:
        for i in range(4): k(f"ds_read_b128 {vr(ACC + 4*i, 4)}, v{BI + 4} offset:{i * 1024}")
        for i in range(4):
            k(f"s_waitcnt lgkmcnt({3 - i})")
            k(f"buffer_store_dwordx4 {vr(ACC + 4*i, 4)}, v{BI + 5}, s[{sO}:{sO+3}], s{48 + i} offen{OSC}")
    if "h5" in X: gate2(k, 60)
    k.dump(0, 14, s_wid)
    k("s_endpgm")
    k.label(k.L("idle5"))
    k("s_barrier")
    if "wbl2" in X:
        k(f"s_cmp_lg_u32 s{s_idx}, 0"); k("s_cbranch_scc1 L_exit")
        k("buffer_wbl2 sc1")
    k.label("L_exit")
    k("s_endpgm")
    emit_slow(k)

NAME = "sequential_preLN__mha_block__mixer_channel_mlp__prompt"
HEADER = open(f"cdna_kernels/{NAME}.s.ref").read().split("; Override")[0]

def build(path):
    k = K(NAME)
    phase1(k); phase2(k); phase345(k)
    lds = 163840 if int(os.environ.get('DEEP', '0')) else MRG + 8 * 3328
    t = HEADER
    if "aslist" in X:
        t += f"; @launch kernel={k.name}_kernel grid=(256,1,1) block=(512,1,1) lds={lds}\n"
    else:
        t += f"; @launch grid=(256,1,1) block=(512,1,1) lds={lds}\n"
    t += '.amdgcn_target "amdgcn-amd-amdhsa--gfx950"\n.text\n'
    t += kernel_text(k, 256)
    t += "L_code_end:\n"
    t += '.section .rodata,"a"\n'
    t += kernel_desc(k, 256, 96)
    open(path, "w").write(t)

if __name__ == "__main__":
    if len(sys.argv) > 2 and sys.argv[2] == "prof": K.prof = True
    build(sys.argv[1] if len(sys.argv) > 1 else f"cdna_kernels/{NAME}.s")
```

```python
import sys, math, struct, os
X = set(os.environ.get("EXP", "").split(","))
from asmlib import K, vr, sr, kernel_text, kernel_desc

S = 2048; D = 640; F = 1728; H = 32; DH = 20
QK_OFF = 0x0
V_OFF = 0x500000
QKV_END = 0x780000
O_OFF = 0x0
H_OFF = 0x280000
G_OFF = 0x780000
HS_OFF = 0x500000
C1_OFF = 0x1370000
ST_OFF = 0x1378000
FL_OFF = 0x1400000
FX_OFF = 0x1420000
TAG_OFF = 0x1428000
GD_OFF = 0x1428400
WS_END = 0x1428800
S_LOC = 95
LOCW = 131072 + 1024
S_TAG = 88; S_WID = 89
XR = 216; XRA = 215
MRG = 131072 + 2048
G_END = 0x1340000
CH = S * 16
EPS = 1e-5
GC0 = 2.0 * math.log2(math.e) * math.sqrt(2.0 / math.pi)
GS = (GC0 * 0.044715) ** (1.0 / 3.0)

def f32(x):
    return "0x%08x" % struct.unpack("<I", struct.pack("<f", x))[0]

def srd(k, d, lo, hi, size):
    k(f"s_mov_b32 s{d}, s{lo}")
    k(f"s_and_b32 s{d+1}, s{hi}, 0xffff")
    k(f"s_mov_b32 s{d+2}, {size:#x}")
    k(f"s_mov_b32 s{d+3}, 0x00020000")

def code_prefetch(k, first, sd, st, vaddr, vdst, v_lane, per=12):
    lab = k.L("pc%d" % k.uid); k.uid += 1
    k(f"s_getpc_b64 s[{sd}:{sd+1}]")
    k.label(lab)
    k(f"s_add_u32 s{sd}, s{sd}, {first}-{lab}")
    k(f"s_addc_u32 s{sd+1}, s{sd+1}, {'-1' if first == k.name + '_kernel' else '0'}")
    k(f"s_and_b32 s{sd+1}, s{sd+1}, 0xffff")
    k(f"s_mov_b32 s{sd+2}, L_code_end-{first}")
    k(f"s_mov_b32 s{sd+3}, 0x00020000")
    k(f"s_lshr_b32 s{st}, s2, 3"); k(f"s_mul_i32 s{st}, s{st}, {per * 128}")
    k(f"v_lshlrev_b32 v{vaddr}, 7, v{v_lane}")
    k(f"s_mov_b64 exec, {(1 << per) - 1:#x}")
    k(f"buffer_load_dword v{vdst}, v{vaddr}, s[{sd}:{sd+3}], s{st} offen")
    k("s_mov_b64 exec, -1")

def gate(k, us):
    lab = k.L("gate%d" % k.uid); k.uid += 1
    k("s_load_dwordx2 s[80:81], s[0:1], 80"); k("s_waitcnt lgkmcnt(0)")
    k(f"s_add_u32 s80, s80, {TAG_OFF + 4}"); k("s_addc_u32 s81, s81, 0")
    k("s_load_dword s82, s[80:81], 0"); k("s_waitcnt lgkmcnt(0)")
    k.label(lab)
    k("s_memrealtime s[84:85]"); k("s_waitcnt lgkmcnt(0)")
    k("s_sub_u32 s84, s84, s82")
    k(f"s_cmp_lt_u32 s84, {us * 100}"); k(f"s_cbranch_scc1 {lab}")

def rowstat_math(k, s_, q_, nm, rs, t, double):
    k(f"v_mul_f32 v{nm}, {f32(-1.0 / D)}, v{s_}")
    k(f"v_mul_f32 v{q_}, {f32(1.0 / D)}, v{q_}")
    k(f"v_fma_f32 v{q_}, -v{nm}, v{nm}, v{q_}")
    k(f"v_max_f32 v{q_}, 0, v{q_}")
    k(f"v_add_f32 v{t}, {f32(EPS)}, v{q_}")
    k(f"v_rsq_f32 v{rs}, v{t}")
    if double:
        k(f"v_mul_f32 v{t}, v{rs}, v{rs}")
        k(f"v_mul_f32 v{t}, v{t}, v{q_}")
        k(f"v_add_f32 v{t}, {f32(EPS)}, v{t}")
        k(f"v_rsq_f32 v{t}, v{t}")
        k(f"v_mul_f32 v{rs}, v{rs}, v{t}")


SLOW = []

def loc_vcc(k):
    if "noloc" in X: k(f"s_mov_b32 s{S_LOC}, 0")
    k(f"s_cmp_lg_u32 s{S_LOC}, 0"); k("s_cselect_b64 vcc, -1, 0")

def dstores(k, lines):
    n = len(SLOW)
    k(f"s_cbranch_vccz L_slow{n}")
    for l in lines: k(l)
    k.label(f"L_back{n}")
    SLOW.append([l + (" sc1" if l.startswith("buffer") else "") for l in lines])

def emit_slow(k):
    for n, lines in enumerate(SLOW):
        k.label(f"L_slow{n}")
        for l in lines: k(l)
        k(f"s_branch L_back{n}")

def publish(k, sW, ph, s_idx, s_t, v0_, v1_, local=False):
    k(f"s_lshl_b32 s{s_t}, s{s_idx}, 7"); k(f"s_add_u32 s{s_t}, s{s_t}, {FL_OFF + (ph - 1) * 32768}")
    k(f"v_mov_b32 v{v0_}, 0"); k(f"v_mov_b32 v{v1_}, s{S_TAG}")
    k("s_mov_b64 exec, 1")
    st = f"buffer_store_dword v{v1_}, v{v0_}, s[{sW}:{sW+3}], s{s_t} offen"
    if local:
        loc_vcc(k); dstores(k, [st])
    else:
        k(st + " sc1")
    k("s_mov_b64 exec, -1")

def poll(k, sW, vaddrs, vdsts, s_it, name, slp=0):
    if len(vaddrs) > 1 and "nopp" not in X:
        k(f"buffer_load_dword v{vdsts[1]}, v{vaddrs[1]}, s[{sW}:{sW+3}], 0 offen sc1")
    if "nopp" not in X:
        ND = int(os.environ.get("PPD", "0")); R = [248 + i for i in range(ND + 1)]
        gap = slp or int(os.environ.get("PPS", "1"))
        k(f"s_mov_b32 s{s_it}, 0")
        k("s_mov_b64 s[90:91], -1")
        for i in range(ND):
            k(f"buffer_load_dword v{R[i]}, v{vaddrs[0]}, s[{sW}:{sW+3}], 0 offen sc1")
            k(f"s_sleep {gap}")
        k.label(k.L("poll" + name))
        for i in range(ND + 1):
            k(f"buffer_load_dword v{R[(i + ND) % (ND + 1)]}, v{vaddrs[0]}, s[{sW}:{sW+3}], 0 offen sc1")
            k(f"s_waitcnt vmcnt({ND})")
            k(f"v_cmp_ne_u32 vcc, s{S_TAG}, v{R[i]}")
            k("s_and_b64 exec, exec, vcc")
            k(f"s_cbranch_execz {k.L('go' + name)}")
            k(f"s_sleep {gap}")
        k(f"s_add_u32 s{s_it}, s{s_it}, 1")
        k(f"s_cmp_lt_u32 s{s_it}, 0x4000")
        k(f"s_cbranch_scc1 {k.L('poll' + name)}")
        k.label(k.L("go" + name))
        k("s_mov_b64 exec, -1")
        if len(vaddrs) == 1: return
        vaddrs = vaddrs[1:]; vdsts = vdsts[1:]; name += "b"
        k(f"v_cmp_ne_u32 vcc, s{S_TAG}, v{vdsts[0]}")
        k(f"s_cbranch_vccz {k.L('go' + name)}")
    k(f"s_mov_b32 s{s_it}, 0")
    k.label(k.L("poll" + name))
    for va, vd in zip(vaddrs, vdsts):
        k(f"buffer_load_dword v{vd}, v{va}, s[{sW}:{sW+3}], 0 offen sc1")
    k(f"s_add_u32 s{s_it}, s{s_it}, 1")
    k("s_waitcnt vmcnt(0)")
    k(f"v_cmp_ne_u32 vcc, s{S_TAG}, v{vdsts[0]}")
    for vd in vdsts[1:]:
        k(f"v_cmp_ne_u32 s[90:91], s{S_TAG}, v{vd}")
        k("s_or_b64 vcc, vcc, s[90:91]")
    k(f"s_cbranch_vccz {k.L('go' + name)}")
    if slp: k(f"s_sleep {slp}")
    k(f"s_cmp_lt_u32 s{s_it}, 0x8000")
    k(f"s_cbranch_scc1 {k.L('poll' + name)}")
    k.label(k.L("go" + name))

def phase1(k):
    k.pref = "p1"
    kind = "qkv"; qkv = True
    NB = 1920 if qkv else F
    BROW = NB * 2
    DEEP = int(os.environ.get("DEEP", "0"))
    NS = 5 if DEEP else 4; SLOT = 32768; NST = 10
    SB = 0 if DEEP else NS * SLOT
    SL = SB + 2048
    sA, sB, sW, sBi = 4, 8, 12, 16
    s_mb, s_nb, s_w = 20, 21, 22
    s_wm, s_wn = 23, 24
    s_offA, s_offB, s_m0, s_it, s_delta, s_t0, s_t1, s_slot = 25, 26, 27, 28, 29, 30, 31, 32
    s_ones = 33
    s_wid = S_WID
    v_lane, v_t, v_h = 1, 2, 3
    vAd = [4, 5, 6, 7]; vBd = [8, 9, 10, 11]
    vBr = [12, 13]
    v_b1 = 17
    vt = [18, 19, 20, 21, 22, 23]
    vAr = [24, 25, 26, 27]
    FA = [[32 + 16 * i, 36 + 16 * i] for i in range(4)]
    FB = [[40 + 16 * i, 44 + 16 * i] for i in range(4)]
    ACC = 96
    def acc(mt, nt): return ACC + (mt * 2 + nt) * 16
    EP = 160
    kidx = 0 if qkv else 3

    if "early" in X: k("s_memrealtime s[86:87]")
    if "perm" in X:
        k("s_lshr_b32 s3, s2, 3"); k("s_and_b32 s3, s3, 7"); k("s_xor_b32 s2, s2, s3")
    k.stamp(0); k.stamp(1, True)
    k(f"s_cmp_ge_u32 s2, 256"); k(f"s_cbranch_scc1 L_exit")
    if qkv:
        k("s_load_dwordx4 s[36:39], s[0:1], 0")
        k("s_load_dwordx4 s[40:43], s[0:1], 72")
        WSL = 42
    else:
        k("s_load_dwordx2 s[36:37], s[0:1], 32")
        k("s_load_dwordx2 s[40:41], s[0:1], 80")
        WSL = 40
    k(f"s_and_b32 s{s_t0}, s2, 7"); k(f"s_lshr_b32 s{s_t1}, s2, 3")
    if qkv:
        k(f"s_lshr_b32 s{s_mb}, s{s_t0}, 1"); k(f"s_lshl_b32 s{s_mb}, s{s_mb}, 2")
        k(f"s_and_b32 s{s_nb}, s{s_t1}, 3"); k(f"s_add_u32 s{s_mb}, s{s_mb}, s{s_nb}")
        k(f"s_and_b32 s{s_nb}, s{s_t0}, 1"); k(f"s_lshl_b32 s{s_nb}, s{s_nb}, 3")
        k(f"s_lshr_b32 s{s_t1}, s{s_t1}, 2"); k(f"s_add_u32 s{s_nb}, s{s_nb}, s{s_t1}")
    else:
        k(f"s_lshl_b32 s{s_mb}, s{s_t0}, 1"); k(f"s_and_b32 s{s_nb}, s{s_t1}, 1"); k(f"s_add_u32 s{s_mb}, s{s_mb}, s{s_nb}")
        k(f"s_lshr_b32 s{s_nb}, s{s_t1}, 1")
    k(f"v_lshrrev_b32 v{vt[0]}, 6, v0")
    k(f"v_and_b32 v{v_lane}, 63, v0")
    k(f"v_readfirstlane_b32 s{s_wid}, v{vt[0]}")
    k(f"v_and_b32 v{v_t}, 31, v0")
    k(f"v_bfe_u32 v{v_h}, v0, 5, 1")
    k(f"s_and_b32 s{s_w}, s{s_wid}, 3")
    k(f"s_cmp_lt_u32 s{s_wid}, 4")
    k(f"s_cbranch_scc1 {k.L('compute')}")
    if qkv:
        k(f"s_cmp_ge_u32 s{s_nb}, 15"); k(f"s_cbranch_scc1 {k.L('auxl')}")
        k(f"v_lshrrev_b32 v{vt[0]}, 3, v{v_lane}")
        k(f"v_and_b32 v{vt[1]}, 7, v{v_lane}")
        k(f"v_lshrrev_b32 v{vt[2]}, 1, v{vt[0]}")
        k(f"v_xor_b32 v{vt[2]}, v{vt[2]}, v{vt[1]}")
        k(f"v_xor_b32 v{vt[3]}, 4, v{vt[2]}")
        k(f"s_lshl_b32 s{s_t0}, s{s_mb}, 7"); k(f"s_lshl_b32 s{s_t1}, s{s_w}, 5"); k(f"s_add_u32 s{s_t0}, s{s_t0}, s{s_t1}")
        k(f"v_add_u32 v{vt[0]}, s{s_t0}, v{vt[0]}")
        k(f"v_mul_u32_u24 v{vt[0]}, 1280, v{vt[0]}")
        for ii in range(4):
            k(f"v_lshl_add_u32 v{vAd[ii]}, v{vt[2 + (ii & 1)]}, 4, v{vt[0]}")
            if ii: k(f"v_add_u32 v{vAd[ii]}, {ii * (8 * 1280 - 1024)}, v{vAd[ii]}")
        stepA = 128
    else:
        k(f"s_lshl_b32 s{s_t0}, s{s_mb}, 11")
        k(f"s_mul_i32 s{s_t1}, s{s_w}, {2 * CH}")
        k(f"s_add_u32 s{s_t0}, s{s_t0}, s{s_t1}")
        k(f"s_add_u32 s{s_t0}, s{s_t0}, {H_OFF}")
        k(f"v_lshl_add_u32 v{vAd[0]}, v{v_lane}, 4, s{s_t0}")
        k(f"v_mov_b32 v{vAd[1]}, v{vAd[0]}")
        k(f"v_add_u32 v{vAd[2]}, {CH - 2048}, v{vAd[0]}")
        k(f"v_add_u32 v{vAd[3]}, {CH - 2048}, v{vAd[0]}")
        stepA = 8 * CH
    k(f"v_lshrrev_b32 v{vt[0]}, 4, v{v_lane}")
    k(f"v_and_b32 v{vt[1]}, 15, v{v_lane}")
    k(f"v_lshlrev_b32 v{vt[2]}, 2, v{vt[0]}")
    k(f"v_xor_b32 v{vt[1]}, v{vt[1]}, v{vt[2]}")
    k(f"s_lshl_b32 s{s_t0}, s{s_w}, 4")
    k(f"v_add_u32 v{vt[0]}, s{s_t0}, v{vt[0]}")
    k(f"v_mul_u32_u24 v{vt[0]}, {BROW}, v{vt[0]}")
    k(f"v_lshl_add_u32 v{vt[0]}, v{vt[1]}, 4, v{vt[0]}")
    k(f"s_lshl_b32 s{s_t0}, s{s_nb}, 8")
    k(f"v_add_u32 v{vBd[0]}, s{s_t0}, v{vt[0]}")
    for ii in range(1, 4):
        k(f"v_add_u32 v{vBd[ii]}, {ii * (4 * BROW - 1024)}, v{vBd[0]}")
    stepB = 64 * BROW
    ROT = os.environ.get("ROT", "2x1")
    if ROT:
        ncls, stp = (int(v) for v in ROT.split("x"))
        k(f"s_add_u32 s{s_slot}, s{s_mb}, s{s_nb}"); k(f"s_and_b32 s{s_slot}, s{s_slot}, {ncls - 1}"); k(f"s_mul_i32 s{s_slot}, s{s_slot}, {stp}")
        k(f"s_mul_i32 s{s_offA}, s{s_slot}, {stepA}"); k(f"s_mul_i32 s{s_offB}, s{s_slot}, {stepB}")
    else:
        k(f"s_mov_b32 s{s_offA}, 0"); k(f"s_mov_b32 s{s_offB}, 0")
    k(f"s_lshl_b32 s{s_m0}, s{s_w}, 12")
    k(f"s_mov_b32 s{s_it}, 0")
    k("s_waitcnt lgkmcnt(0)")
    if qkv:
        srd(k, sA, 36, 37, S * D * 2); srd(k, sB, 38, 39, D * NB * 2)
    else:
        srd(k, sB, 36, 37, D * NB * 2); srd(k, sW, WSL, WSL + 1, WS_END)
        sA = sW
    def dma_stage():
        r = []
        r.append(f"s_mov_b32 m0, s{s_m0}")
        for ii in range(4):
            r.append(f"buffer_load_dwordx4 v{vAd[ii]}, s[{sA}:{sA+3}], s{s_offA} offen offset:{ii*1024} lds")
        r.append(f"s_add_u32 m0, s{s_m0}, 16384")
        for ii in range(4):
            r.append(f"buffer_load_dwordx4 v{vBd[ii]}, s[{sB}:{sB+3}], s{s_offB} offen offset:{ii*1024} lds")
        r.append(f"s_add_u32 s{s_offA}, s{s_offA}, {stepA}")
        r.append(f"s_add_u32 s{s_offB}, s{s_offB}, {stepB}")
        if ROT:
            r.append(f"s_cmp_lg_u32 s{s_offA}, {10 * stepA}")
            r.append(f"s_cselect_b32 s{s_offA}, s{s_offA}, 0")
            r.append(f"s_cselect_b32 s{s_offB}, s{s_offB}, 0")
        r.append(f"s_add_u32 s{s_m0}, s{s_m0}, {SLOT}")
        r.append(f"s_and_b32 s{s_m0}, s{s_m0}, {NS * SLOT - 1}")
        return r
    def lstep(n=8, dma=True):
        if dma:
            for l in dma_stage(): k(l)
        k(f"s_waitcnt vmcnt({n})")
        k("s_barrier")
    def lloop(tag, n):
        k(f"s_mov_b32 s{s_it}, 0")
        k.label(k.L("lloop" + tag))
        lstep()
        k(f"s_add_u32 s{s_it}, s{s_it}, 1")
        k(f"s_cmp_lt_u32 s{s_it}, {n}")
        k(f"s_cbranch_scc1 {k.L('lloop' + tag)}")
    XS = 32
    v_tag = 16
    RG_OFF = ST_OFF; CG_OFF = ST_OFF + 32768
    def slice_addr_rows():
        k(f"v_lshrrev_b32 v{vt[4]}, 4, v{v_lane}")
        k(f"v_and_b32 v{vt[5]}, 15, v{v_lane}")
        k(f"v_mul_u32_u24 v{vt[4]}, 1280, v{vt[4]}")
        k(f"v_lshl_add_u32 v{vt[4]}, v{vt[5]}, 4, v{vt[4]}")
        k(f"s_lshl_b32 s{s_t0}, s{s_mb}, 5"); k(f"s_lshl_b32 s{s_t1}, s{s_nb}, 1"); k(f"s_add_u32 s{s_t0}, s{s_t0}, s{s_t1}")
        k(f"s_add_u32 s{s_delta}, s{s_t0}, s{s_w}"); k(f"s_mul_i32 s{s_t0}, s{s_delta}, {4 * 1280}")
    def slice_load_rows():
        for i in range(5):
            k(f"buffer_load_dwordx4 {vr(XS + 4*i, 4)}, v{vt[4]}, s[{sA}:{sA+3}], s{s_t0} offen offset:{256 * i}")
    def tag_load():
        k(f"v_mov_b32 v15, 0")
        k(f"buffer_load_dword v{v_tag}, v15, s[{sBi}:{sBi+3}], 0 offen sc1")
    def tag_wait(tag):
        k(f"s_mov_b32 s{s_it}, 0")
        k.label(k.L("tw" + tag))
        k(f"v_cmp_eq_u32 vcc, 0, v{v_tag}")
        k(f"s_cbranch_vccz {k.L('tr' + tag)}")
        k("s_sleep 2")
        k(f"buffer_load_dword v{v_tag}, v15, s[{sBi}:{sBi+3}], 0 offen sc1")
        k(f"s_add_u32 s{s_it}, s{s_it}, 1")
        k("s_waitcnt vmcnt(0)")
        k(f"s_cmp_lt_u32 s{s_it}, 0x4000")
        k(f"s_cbranch_scc1 {k.L('tw' + tag)}")
        k.label(k.L("tr" + tag))
    def slice_rows(part):
        if part == 0:
            k("v_mov_b32 v56, 0"); k("v_mov_b32 v57, 0"); k("v_mov_b32 v58, 0"); k("v_mov_b32 v59, 0")
        for r in (range(13) if part == 0 else range(13, 20)):
            k(f"v_lshlrev_b32 v52, 16, v{XS + r}")
            k(f"v_and_b32 v53, 0xffff0000, v{XS + r}")
            k("v_add_f32 v56, v56, v52"); k("v_fmac_f32 v57, v52, v52")
            k("v_add_f32 v58, v58, v53"); k("v_fmac_f32 v59, v53, v53")
        if part == 0: return
        k("v_add_f32 v56, v56, v58"); k("v_add_f32 v57, v57, v59")
        for sh in (8, 4, 2, 1):
            k(f"v_add_f32_dpp v56, v56, v56 row_ror:{sh} row_mask:0xf bank_mask:0xf")
            k(f"v_add_f32_dpp v57, v57, v57 row_ror:{sh} row_mask:0xf bank_mask:0xf")
        rowstat_math(k, 56, 57, 60, 62, 52, False)
        k(f"v_mov_b32 v61, v{v_tag}"); k(f"v_mov_b32 v63, v{v_tag}")
        k(f"s_lshl_b32 s{s_t0}, s{s_delta}, 6"); k(f"s_add_u32 s{s_t0}, s{s_t0}, {RG_OFF}")
        k("s_mov_b32 exec_lo, 0x00010001"); k("s_mov_b32 exec_hi, 0x00010001")
        k(f"buffer_store_dwordx4 v[60:63], v{v_lane}, s[{sW}:{sW+3}], s{s_t0} offen sc1")
        k("s_mov_b64 exec, -1")
    def slice_cols(part):
        if part == 0:
            for r in range(4):
                k(f"v_lshlrev_b32 v{56 + 2*r}, 16, v{XS + r}"); k(f"v_and_b32 v{57 + 2*r}, 0xffff0000, v{XS + r}")
            for i in range(1, 5):
                for r in range(4):
                    k(f"v_lshlrev_b32 v52, 16, v{XS + 4*i + r}"); k(f"v_and_b32 v53, 0xffff0000, v{XS + 4*i + r}")
                    k(f"v_add_f32 v{56 + 2*r}, v{56 + 2*r}, v52"); k(f"v_add_f32 v{57 + 2*r}, v{57 + 2*r}, v53")
            return
        for r in range(4): k(f"v_permlane32_swap_b32 v{56 + r}, v{60 + r}")
        for r in range(4): k(f"v_add_f32 v{56 + r}, v{56 + r}, v{60 + r}")
        for r in range(2): k(f"v_permlane16_swap_b32 v{56 + r}, v{58 + r}")
        k("v_add_f32 v56, v56, v58"); k("v_add_f32 v58, v57, v59")
        k(f"v_mov_b32 v57, v{v_tag}"); k(f"v_mov_b32 v59, v{v_tag}")
        k(f"v_and_b32 v{vt[4]}, 48, v{v_lane}")
        k(f"v_lshl_add_u32 v{vt[4]}, v{vt[5]}, 6, v{vt[4]}")
        k(f"s_mul_i32 s{s_t0}, s{s_delta}, 15360"); k(f"s_lshl_b32 s{s_t1}, s{s_nb}, 10"); k(f"s_add_u32 s{s_t0}, s{s_t0}, s{s_t1}")
        k(f"s_add_u32 s{s_t0}, s{s_t0}, {CG_OFF}")
        k(f"buffer_store_dwordx4 v[56:59], v{vt[4]}, s[{sW}:{sW+3}], s{s_t0} offen sc1")
    def slice_part(part):
        k(f"s_cmp_ge_u32 s{s_w}, 2"); k(f"s_cbranch_scc1 {k.L('slc%d' % part)}")
        slice_rows(part)
        k(f"s_branch {k.L('sld%d' % part)}")
        k.label(k.L("slc%d" % part))
        slice_cols(part)
        k.label(k.L("sld%d" % part))
    q = []; nh = [0]
    def half():
        st, hb = divmod(nh[0], 2); nh[0] += 1
        k(f"s_add_u32 m0, s{s_m0}, {(st % NS) * SLOT + hb * 16384}")
        vD_, sD, so, step = (vBd, sB, s_offB, stepB) if hb else (vAd, sA, s_offA, stepA)
        for ii in range(4):
            k(f"buffer_load_dwordx4 v{vD_[ii]}, s[{sD}:{sD+3}], s{so} offen offset:{ii*1024} lds"); q.append(("st", st))
        k(f"s_add_u32 s{so}, s{so}, {step}")
        if ROT:
            k(f"s_cmp_lg_u32 s{so}, {10 * step}"); k(f"s_cselect_b32 s{so}, s{so}, 0")
    def upto(n):
        while nh[0] < min(n, 20): half()
    def need(*items):
        last = max((len(q) - 1 - q[::-1].index(it) for it in items if it in q), default=-1)
        if last >= 0:
            k(f"s_waitcnt vmcnt({len(q) - 1 - last})"); del q[:last + 1]
    def bar(j, *more):
        need(("st", j), *more); k("s_barrier")
    upto(4)
    if qkv:
        k(f"s_cmp_ge_u32 s{s_w}, 2"); k(f"s_cbranch_scc1 {k.L('slc')}")
        slice_addr_rows(); slice_load_rows()
        k(f"s_branch {k.L('sll')}")
        k.label(k.L("slc"))
        k(f"v_lshrrev_b32 v{vt[4]}, 4, v{v_lane}")
        k(f"v_and_b32 v{vt[5]}, 15, v{v_lane}")
        k(f"v_mul_u32_u24 v{vt[4]}, {BROW}, v{vt[4]}")
        k(f"v_lshl_add_u32 v{vt[4]}, v{vt[5]}, 4, v{vt[4]}")
        k(f"s_lshl_b32 s{s_delta}, s{s_mb}, 1"); k(f"s_add_u32 s{s_delta}, s{s_delta}, s{s_w}"); k(f"s_sub_u32 s{s_delta}, s{s_delta}, 2")
        k(f"s_mul_i32 s{s_t0}, s{s_delta}, {20 * BROW}"); k(f"s_lshl_b32 s{s_t1}, s{s_nb}, 8"); k(f"s_add_u32 s{s_t0}, s{s_t0}, s{s_t1}")
        for i in range(5):
            k(f"buffer_load_dwordx4 {vr(XS + 4*i, 4)}, v{vt[4]}, s[{sB}:{sB+3}], s{s_t0} offen")
            k(f"s_add_u32 s{s_t0}, s{s_t0}, {4 * BROW}")
        k.label(k.L("sll"))
        q += [("sl", 0)] * 5
        srd(k, sW, WSL, WSL + 1, WS_END); srd(k, sBi, 40, 41, 256)
        bar(0)
        tag_load(); q.append(("tag", 0))
        upto(6 + DEEP); bar(1)
        upto(8 + DEEP); bar(2)
        upto(10 + DEEP)
        slice_part(0)
        bar(3)
        upto(12 + DEEP)
        tag_wait("a")
        slice_part(1); q.append(("pub", 0))
        bar(4)
        for j in range(5, 8):
            upto(2 * j + 4 + DEEP); bar(j)
        upto(20)
        k(f"s_lshl_b32 s{s_t0}, s{s_mb}, 11"); k(f"s_lshl_b32 s{s_t1}, s{s_w}, 9"); k(f"s_add_u32 s{s_t0}, s{s_t0}, s{s_t1}")
        k(f"s_add_u32 s{s_offA}, s{s_t0}, {RG_OFF}")
        k(f"v_lshlrev_b32 v{vt[0]}, 4, v{v_t}")
        k(f"v_lshrrev_b32 v{vt[1]}, 4, v{v_lane}")
        k(f"v_mul_u32_u24 v{vt[1]}, {8 * 15360}, v{vt[1]}")
        k(f"v_lshl_add_u32 v{vt[1]}, v{vt[5]}, 4, v{vt[1]}")
        k(f"s_lshl_b32 s{s_t0}, s{s_nb}, 10"); k(f"s_lshl_b32 s{s_t1}, s{s_w}, 8"); k(f"s_add_u32 s{s_t0}, s{s_t0}, s{s_t1}")
        k(f"s_add_u32 s{s_offB}, s{s_t0}, {CG_OFF}")
        def gather():
            k(f"buffer_load_dwordx4 v[64:67], v{vt[0]}, s[{sW}:{sW+3}], s{s_offA} offen sc1")
            k(f"s_mov_b32 s{s_t0}, s{s_offB}")
            for i in range(8):
                k(f"buffer_load_dwordx4 {vr(32 + 4*i, 4)}, v{vt[1]}, s[{sW}:{sW+3}], s{s_t0} offen sc1")
                k(f"s_add_u32 s{s_t0}, s{s_t0}, 15360")
        gather(); q += [("ga", 0)] * 9
        bar(8); bar(9)
        k(f"s_mov_b32 s{s_it}, 0")
        k.label(k.L("poll"))
        k("s_waitcnt vmcnt(0)")
        k(f"v_and_b32 v68, v65, v67"); k(f"v_or_b32 v69, v65, v67")
        for i in range(16):
            k(f"v_and_b32 v68, v68, v{33 + 2*i}"); k(f"v_or_b32 v69, v69, v{33 + 2*i}")
        k(f"v_xor_b32 v68, v68, v{v_tag}"); k(f"v_xor_b32 v69, v69, v{v_tag}"); k("v_or_b32 v68, v68, v69")
        k(f"v_cmp_ne_u32 vcc, 0, v68")
        k(f"s_cbranch_vccz {k.L('ready')}")
        k("s_sleep 2")
        gather()
        k(f"s_add_u32 s{s_it}, s{s_it}, 1")
        k(f"s_cmp_lt_u32 s{s_it}, 0x2000")
        k(f"s_cbranch_scc1 {k.L('poll')}")
        k("s_waitcnt vmcnt(0)")
        k.label(k.L("ready"))
        k("v_add_f32 v33, v34, v38")
        for i in range(1, 8):
            k(f"v_add_f32 v32, v32, v{32 + 4*i}")
            if i > 1: k(f"v_add_f32 v33, v33, v{34 + 4*i}")
        k(f"s_cmp_lt_u32 s{s_nb}, 5")
        k(f"s_cselect_b32 s{s_t0}, {f32(math.log2(math.e) / math.sqrt(DH))}, 1.0")
        k(f"v_mul_f32 v65, s{s_t0}, v66")
        k(f"s_lshl_b32 s{s_t1}, s{s_w}, 7"); k(f"s_add_u32 s{s_t1}, s{s_t1}, {SB}")
        k(f"v_lshl_add_u32 v{vt[0]}, v{v_t}, 2, s{s_t1}")
        k(f"ds_write2_b32 v{vt[0]}, v64, v65 offset0:0 offset1:128")
        for sw in ("v_permlane32_swap_b32", "v_permlane16_swap_b32"):
            k("v_mov_b32 v34, v32"); k("v_mov_b32 v35, v33")
            k(f"{sw} v32, v34"); k(f"{sw} v33, v35")
            k("v_add_f32 v32, v32, v34"); k("v_add_f32 v33, v33, v35")
        k(f"v_lshl_add_u32 v{vt[1]}, v{vt[5]}, 3, s{s_t1}")
        k(f"ds_write_b64 v{vt[1]}, v[32:33] offset:1024")
        k("s_waitcnt lgkmcnt(0)")
        k("s_barrier")
    else:
        lloop("", 8)
        for l in dma_stage(): k(l)
        PS = 32
        k(f"s_lshl_b32 s{s_t0}, s{s_mb}, 7"); k(f"s_lshl_b32 s{s_t1}, s{s_w}, 5"); k(f"s_add_u32 s{s_t0}, s{s_t0}, s{s_t1}")
        k(f"v_add_lshl_u32 v{vt[2]}, v{v_t}, s{s_t0}, 3")
        k(f"v_mul_u32_u24 v{vt[1]}, {5 * 16384}, v{v_h}")
        k(f"v_add_u32 v{vt[2]}, v{vt[2]}, v{vt[1]}")
        for i in range(5):
            k(f"s_mov_b32 s{s_t0}, {HS_OFF + i * 16384}")
            k(f"buffer_load_dwordx2 {vr(PS + 2*i, 2)}, v{vt[2]}, s[{sW}:{sW+3}], s{s_t0} offen")
        k(f"s_lshl_b32 s{s_t0}, s{s_nb}, 10"); k(f"s_lshl_b32 s{s_t1}, s{s_w}, 8"); k(f"s_add_u32 s{s_t0}, s{s_t0}, s{s_t1}")
        k(f"s_add_u32 s{s_t0}, s{s_t0}, {C1_OFF}")
        k(f"s_add_u32 m0, s{s_t1}, {SB + 1024}")
        k(f"v_lshlrev_b32 v{vt[3]}, 2, v{v_lane}")
        k(f"buffer_load_dword v{vt[3]}, s[{sW}:{sW+3}], s{s_t0} offen lds")
        lstep(14, False)
        lstep(6, False)
        k("s_waitcnt vmcnt(0)")
        for i in range(1, 5):
            k(f"v_add_f32 v{PS}, v{PS}, v{PS + 2*i}"); k(f"v_add_f32 v{PS+1}, v{PS+1}, v{PS + 2*i + 1}")
        k(f"v_mov_b32 v{PS+2}, v{PS}"); k(f"v_mov_b32 v{PS+3}, v{PS+1}")
        k(f"v_permlane32_swap_b32 v{PS}, v{PS+2}"); k(f"v_permlane32_swap_b32 v{PS+1}, v{PS+3}")
        k(f"v_add_f32 v{PS}, v{PS}, v{PS+2}"); k(f"v_add_f32 v{PS+1}, v{PS+1}, v{PS+3}")
        rowstat_math(k, PS, PS + 1, 44, 45, PS + 2, True)
        k(f"s_lshl_b32 s{s_t1}, s{s_w}, 7"); k(f"s_add_u32 s{s_t1}, s{s_t1}, {SB}")
        k(f"v_lshl_add_u32 v{vt[3]}, v{v_t}, 2, s{s_t1}")
        k(f"ds_write_b32 v{vt[3]}, v44")
        k(f"ds_write_b32 v{vt[3]}, v45 offset:512")
        k("s_waitcnt lgkmcnt(0)")
        k("s_barrier")
    if not qkv: k.stamp(3); k.stamp(4); k.stamp(5); k.stamp(6)
    k(f"s_branch {k.L('end')}")
    k.label(k.L("compute"))
    if qkv:
        k(f"s_or_b32 s{s_t0}, s2, s{s_w}")
        k(f"s_cbranch_scc1 {k.L('notag')}")
        k("s_memrealtime s[44:45]")
        k("s_waitcnt lgkmcnt(0)")
        srd(k, sBi, 40, 41, 256)
        if "gate" in X: k(f"v_mov_b32 v{vt[2]}, s{86 if 'early' in X else 44}")
        k("s_mul_i32 s44, s44, 0x9e3779b1"); k("s_or_b32 s44, s44, 1")
        k(f"v_mov_b32 v{vt[0]}, 0"); k(f"v_mov_b32 v{vt[1]}, s44")
        k("s_mov_b64 exec, 1")
        k(f"buffer_store_dword v{vt[1]}, v{vt[0]}, s[{sBi}:{sBi+3}], 0 offen sc1")
        srd(k, sW, WSL, WSL + 1, WS_END)
        k(f"s_mov_b32 s{s_t0}, {TAG_OFF}")
        k(f"buffer_store_dword v{vt[1]}, v{vt[0]}, s[{sW}:{sW+3}], s{s_t0} offen sc1")
        if "gate" in X: k(f"buffer_store_dword v{vt[2]}, v{vt[0]}, s[{sW}:{sW+3}], s{s_t0} offen offset:4 sc1")
        k("s_mov_b64 exec, -1")
        k.label(k.L("notag"))
        if "nocpf" not in X:
            k(f"s_cmp_lg_u32 s{s_w}, 1"); k(f"s_cbranch_scc1 {k.L('nocpf')}")
            code_prefetch(k, k.name + "_kernel", sB, s_t0, vt[0], 14, v_lane)
            k.label(k.L("nocpf"))
        k(f"s_cmp_ge_u32 s{s_nb}, 15"); k(f"s_cbranch_scc1 {k.L('aux')}")
    k(f"s_lshr_b32 s{s_wm}, s{s_w}, 1"); k(f"s_and_b32 s{s_wn}, s{s_w}, 1")
    k(f"s_mov_b32 s34, {SLOT}")
    if qkv:
        k(f"v_bfe_u32 v{vt[0]}, v{v_t}, 1, 3")
        k(f"v_xor_b32 v{vt[0]}, v{vt[0]}, v{v_h}")
        k(f"s_lshl_b32 s{s_t0}, s{s_wm}, 13")
        k(f"v_lshl_add_u32 v{vt[1]}, v{v_t}, 7, s{s_t0}")
        for ks in range(4):
            k(f"v_xor_b32 v{vt[2]}, {2*ks}, v{vt[0]}")
            k(f"v_lshl_add_u32 v{vAr[ks]}, v{vt[2]}, 4, v{vt[1]}")
        def a_read(dst, ks, mt): return f"ds_read_b128 {vr(dst,4)}, v{vAr[ks]} offset:{mt*4096}"
        def a_upd(ks): return [vAr[ks]]
    else:
        k(f"s_lshl_b32 s{s_t0}, s{s_wm}, 10")
        k(f"v_lshl_add_u32 v{vt[0]}, v{v_t}, 4, s{s_t0}")
        k(f"v_lshl_add_u32 v{vAr[0]}, v{v_h}, 11, v{vt[0]}")
        def a_read(dst, ks, mt): return f"ds_read_b128 {vr(dst,4)}, v{vAr[0]} offset:{ks*4096 + mt*512}"
        def a_upd(ks): return [vAr[0]] if ks == 0 else []
    k(f"v_bfe_u32 v{vt[0]}, v{v_lane}, 2, 2")
    k(f"v_lshl_add_u32 v{vt[1]}, v{v_h}, 3, v{vt[0]}")
    k(f"v_lshlrev_b32 v{vt[1]}, 8, v{vt[1]}")
    k(f"v_bfe_u32 v{vt[2]}, v{v_lane}, 4, 1")
    k(f"v_lshl_add_u32 v{vt[1]}, v{vt[2]}, 5, v{vt[1]}")
    k(f"v_and_b32 v{vt[2]}, 3, v{v_lane}")
    k(f"v_lshl_add_u32 v{vt[1]}, v{vt[2]}, 3, v{vt[1]}")
    k(f"v_add_u32 v{vt[1]}, 16384, v{vt[1]}")
    k(f"s_lshl_b32 s{s_t0}, s{s_wn}, 1")
    k(f"v_xor_b32 v{vt[2]}, s{s_t0}, v{vt[0]}")
    k(f"v_lshl_add_u32 v{vBr[0]}, v{vt[2]}, 6, v{vt[1]}")
    k(f"v_xor_b32 v{vBr[1]}, 64, v{vBr[0]}")
    def b_read(dst, ks, nt, e): return f"ds_read_b64_tr_b16 {vr(dst + 2*e, 2)}, v{vBr[nt]} offset:{ks*4096 + e*1024}"
    for r in range(64): k(f"v_mov_b32 v{ACC + r}, 0")
    k(f"s_mov_b32 s{s_it}, 0"); k(f"s_mov_b32 s{s_slot}, 0")
    k("s_waitcnt lgkmcnt(0)")
    srd(k, sW, WSL, WSL + 1, WS_END)

    def reads(ks):
        return [a_read(FA[ks][0], ks, 0), b_read(FB[ks][0], ks, 0, 0), b_read(FB[ks][0], ks, 0, 1),
                b_read(FB[ks][1], ks, 1, 0), b_read(FB[ks][1], ks, 1, 1), a_read(FA[ks][1], ks, 1)]
    k("s_waitcnt lgkmcnt(0)")
    k("s_barrier")
    for l in reads(0) + reads(1): k(l)

    def mainloop(tag, vorient):
        k.label(k.L("loop" + tag))
        for ks in range(4):
            mf = []
            for mt in range(2):
                for nt in range(2):
                    a, b = FA[ks][mt], FB[ks][nt]
                    s0, s1 = (a, b) if vorient else (b, a)
                    mf.append(f"v_mfma_f32_32x32x16_bf16 {vr(acc(mt,nt),16)}, {vr(s0,4)}, {vr(s1,4)}, {vr(acc(mt,nt),16)}")
            pre = []
            if ks == 2:
                k("s_barrier")
                if NS == 4: pre += [f"s_add_u32 s{s_slot}, s{s_slot}, 1", f"s_and_b32 s{s_slot}, s{s_slot}, {NS - 1}"]
                else: pre += [f"s_cmp_lg_u32 s{s_it}, 4"]
                pre += [
                        f"s_cselect_b32 s{s_delta}, s34, {(-(NS - 1) * SLOT) & 0xffffffff:#x}"]
                pre += [f"v_add_u32 v{a}, s{s_delta}, v{a}" for a in vBr]
            nk = (ks + 2) % 4
            if ks >= 2:
                pre += [f"v_add_u32 v{a}, s{s_delta}, v{a}" for a in a_upd(nk)]
            post = []
            if ks == 3:
                post = [f"v_add_u32 v{a}, s{s_delta}, v{a}" for a in a_upd(2) + a_upd(3)]
                post += [f"s_add_u32 s{s_it}, s{s_it}, 1", f"s_cmp_lt_u32 s{s_it}, {NST}"]
            rd = reads(nk)
            k("s_waitcnt lgkmcnt(6)")
            seq = [mf[0]] + pre + rd[0:2] + [mf[1]] + rd[2:4] + [mf[2]] + rd[4:6] + post + [mf[3]]
            for l in seq: k(l)
        k(f"s_cbranch_scc1 {k.L('loop' + tag)}")
        if "st1" in X: k.stamp(0, True)

    def epi_nm():
        MR = [28, 30]
        CS = EP; B1 = EP + 32
        k(f"s_lshl_b32 s{s_t0}, s{s_wm}, 8"); k(f"s_add_u32 s{s_t0}, s{s_t0}, {SB}")
        k(f"v_lshl_add_u32 v{vt[4]}, v{v_t}, 2, s{s_t0}")
        for mt in range(2):
            k(f"ds_read2_b32 {vr(MR[mt],2)}, v{vt[4]} offset0:{mt*32} offset1:{128 + mt*32}")
        k(f"s_lshl_b32 s{s_t0}, s{s_wn}, 8"); k(f"s_add_u32 s{s_t0}, s{s_t0}, {SB}")
        k(f"v_lshl_add_u32 v{vt[0]}, v{v_h}, 4, s{s_t0}")
        for nt in range(2):
            for rq in range(4):
                k(f"ds_read_b128 {vr(CS + nt*16 + rq*4, 4)}, v{vt[0]} offset:{1024 + nt*128 + rq*32}")
            if not qkv:
                for rq in range(4):
                    k(f"ds_read_b128 {vr(B1 + nt*16 + rq*4, 4)}, v{vt[0]} offset:{1536 + nt*128 + rq*32}")
        OFF = QK_OFF if qkv else G_OFF
        k(f"s_lshl_b32 s{s_t0}, s{s_nb}, 4"); k(f"s_lshl_b32 s{s_t1}, s{s_wn}, 3"); k(f"s_add_u32 s{s_t0}, s{s_t0}, s{s_t1}")
        k(f"v_add_lshl_u32 v{vt[2]}, v{v_h}, s{s_t0}, 15")
        k(f"s_lshl_b32 s{s_t0}, s{s_mb}, 7"); k(f"s_lshl_b32 s{s_t1}, s{s_wm}, 6"); k(f"s_add_u32 s{s_t0}, s{s_t0}, s{s_t1}")
        k(f"v_add_u32 v{vt[3]}, s{s_t0}, v{v_t}")
        k(f"v_lshl_add_u32 v{vt[2]}, v{vt[3]}, 4, v{vt[2]}")
        so = 46
        for c in range(4): k(f"s_mov_b32 s{so + c}, {OFF + 2*c*CH}")
        if not qkv:
            C0 = -2.0 * math.log2(math.e) * math.sqrt(2.0 / math.pi)
            k(f"s_mov_b32 s44, {f32(C0 * 0.044715)}"); k(f"s_mov_b32 s45, {f32(C0 * 0.044715)}")
            k(f"v_mov_b32 v{vt[4]}, {f32(C0)}"); k(f"v_mov_b32 v{vt[5]}, {f32(C0)}")
        k("s_waitcnt lgkmcnt(0)")
        T = EP + 64
        n_st = 0
        for nt in range(2):
            for mt in range(2):
                a = acc(mt, nt); mr = MR[mt]
                for p in range(8):
                    x = vr(a + 2*p, 2)
                    k(f"v_pk_fma_f32 {x}, {vr(CS + nt*16 + 2*p, 2)}, {vr(mr,2)}, {x} op_sel_hi:[1,0,1]")
                for p in range(8):
                    x = vr(a + 2*p, 2)
                    if qkv:
                        k(f"v_pk_mul_f32 {x}, {x}, {vr(mr,2)} op_sel:[0,1] op_sel_hi:[1,1]")
                    else:
                        k(f"v_pk_fma_f32 {x}, {x}, {vr(mr,2)}, {vr(B1 + nt*16 + 2*p, 2)} op_sel:[0,1,0] op_sel_hi:[1,1,1]")
                if not qkv:
                    for p in range(8):
                        x = vr(a + 2*p, 2); t = vr(T + 2*p, 2)
                        k(f"v_pk_mul_f32 {t}, {x}, {x}")
                    for p in range(8):
                        t = vr(T + 2*p, 2)
                        k(f"v_pk_fma_f32 {t}, {t}, s[44:45], {vr(vt[4],2)}")
                    for p in range(8):
                        x = vr(a + 2*p, 2); t = vr(T + 2*p, 2)
                        k(f"v_pk_mul_f32 {t}, {t}, {x}")
                    for r in range(16): k(f"v_exp_f32 v{T + r}, v{T + r}")
                    for p in range(8):
                        t = vr(T + 2*p, 2)
                        k(f"v_pk_add_f32 {t}, {t}, 1.0 op_sel_hi:[1,0]")
                    for r in range(16): k(f"v_rcp_f32 v{T + r}, v{T + r}")
                    for p in range(8):
                        x = vr(a + 2*p, 2); t = vr(T + 2*p, 2)
                        k(f"v_pk_mul_f32 {x}, {x}, {t}")
                Pk = T + 16 + (n_st % 2) * 8
                for p in range(8):
                    k(f"v_cvt_pk_bf16_f32 v{Pk + p}, v{a + 2*p}, v{a + 2*p + 1}")
                for pq in range(2):
                    b = Pk + 4*pq
                    k(f"v_permlane32_swap_b32 v{b}, v{b+2}")
                    k(f"v_permlane32_swap_b32 v{b+1}, v{b+3}")
                for pq in range(2):
                    b = Pk + 4*pq
                    k(f"buffer_store_dwordx4 {vr(b,4)}, v{vt[2]}, s[{sW}:{sW+3}], s{so + nt*2 + pq} offen offset:{mt*512} sc1")
                n_st += 1

    def epi_v():
        NM = EP; RS = EP + 32; CSV = [28, 30]
        k(f"s_lshl_b32 s{s_t0}, s{s_wm}, 8"); k(f"s_add_u32 s{s_t0}, s{s_t0}, {SB}")
        k(f"v_lshl_add_u32 v{vt[0]}, v{v_h}, 4, s{s_t0}")
        k(f"s_lshl_b32 s{s_t0}, s{s_wn}, 8"); k(f"s_add_u32 s{s_t0}, s{s_t0}, {SB}")
        k(f"v_lshl_add_u32 v{vt[1]}, v{v_t}, 2, s{s_t0}")
        for nt in range(2):
            k(f"ds_read_b32 v{CSV[nt]}, v{vt[1]} offset:{1024 + nt*128}")
        for mt in range(2):
            for rq in range(4):
                k(f"ds_read_b128 {vr(NM + mt*16 + rq*4, 4)}, v{vt[0]} offset:{mt*128 + rq*32}")
                k(f"ds_read_b128 {vr(RS + mt*16 + rq*4, 4)}, v{vt[0]} offset:{512 + mt*128 + rq*32}")
        k(f"s_lshl_b32 s{s_t0}, s{s_mb}, 1"); k(f"s_add_u32 s{s_t0}, s{s_t0}, s{s_wm}"); k(f"s_mul_i32 s{s_t0}, s{s_t0}, 5120")
        k(f"s_lshl_b32 s{s_t1}, s{s_nb}, 7"); k(f"s_add_u32 s{s_t0}, s{s_t0}, s{s_t1}"); k(f"s_sub_u32 s{s_t0}, s{s_t0}, 1280")
        k(f"s_lshl_b32 s{s_t1}, s{s_wn}, 6"); k(f"s_add_u32 s{s_t0}, s{s_t0}, s{s_t1}")
        k(f"v_mul_u32_u24 v{vt[3]}, 640, v{v_h}")
        k(f"v_add3_u32 v{vt[2]}, v{v_t}, s{s_t0}, v{vt[3]}")
        k(f"v_lshlrev_b32 v{vt[2]}, 4, v{vt[2]}")
        so = 46
        for c in range(4): k(f"s_mov_b32 s{so + c}, {V_OFF + c * 640 * 32}")
        k("s_waitcnt lgkmcnt(0)")
        T = EP + 64; n_st = 0
        for mt in range(2):
            for nt in range(2):
                a = acc(mt, nt)
                for p in range(8):
                    x = vr(a + 2*p, 2)
                    k(f"v_pk_fma_f32 {x}, {vr(NM + mt*16 + 2*p, 2)}, {vr(CSV[nt],2)}, {x} op_sel_hi:[1,0,1]")
                for p in range(8):
                    x = vr(a + 2*p, 2)
                    k(f"v_pk_mul_f32 {x}, {x}, {vr(RS + mt*16 + 2*p, 2)}")
                Pk = T + (n_st % 2) * 8
                for p in range(8):
                    k(f"v_cvt_pk_bf16_f32 v{Pk + p}, v{a + 2*p}, v{a + 2*p + 1}")
                for jj in range(2):
                    k(f"buffer_store_dwordx4 {vr(Pk + 4*jj, 4)}, v{vt[2]}, s[{sW}:{sW+3}], s{so + mt*2 + jj} offen offset:{nt*512} sc1")
                n_st += 1

    if qkv:
        k(f"s_cmp_ge_u32 s{s_nb}, 10")
        k(f"s_cbranch_scc1 {k.L('loopv')}")
        mainloop("q", False); epi_nm()
        k(f"s_branch {k.L('end')}")
        mainloop("v", True); epi_v()
        k(f"s_branch {k.L('end')}")
        k.label(k.L("auxl"))
        k(f"s_cmp_ge_u32 s{s_w}, 2"); k(f"s_cbranch_scc1 {k.L('aux')}")
        slice_addr_rows()
        k("s_waitcnt lgkmcnt(0)")
        srd(k, sA, 36, 37, S * D * 2); srd(k, sW, WSL, WSL + 1, WS_END); srd(k, sBi, 40, 41, 256)
        slice_load_rows()
        k("s_waitcnt vmcnt(0)")
        tag_load()
        slice_rows(0)
        k("s_waitcnt vmcnt(0)")
        tag_wait("x")
        slice_rows(1)
        k.label(k.L("aux"))
        k("s_load_dwordx4 s[44:47], s[0:1], 32")
        k(f"v_lshrrev_b32 v{vt[0]}, 4, v{v_lane}")
        k(f"v_and_b32 v{vt[1]}, 15, v{v_lane}")
        k(f"v_mul_u32_u24 v{vt[2]}, {F * 2}, v{vt[0]}")
        k(f"v_lshl_add_u32 v{vt[2]}, v{vt[1]}, 4, v{vt[2]}")
        k(f"v_lshlrev_b32 v{vt[3]}, 1, v0")
        k("s_waitcnt lgkmcnt(0)")
        srd(k, sW, WSL, WSL + 1, WS_END)
        k(f"s_cmp_ge_u32 s{s_mb}, 14"); k(f"s_cbranch_scc1 {k.L('end')}")
        srd(k, sB, 44, 45, D * F * 2); srd(k, sA, 46, 47, F * 2)
        k(f"s_mul_i32 s{s_t0}, s{s_wid}, {80 * F * 2}"); k(f"s_lshl_b32 s{s_t1}, s{s_mb}, 8"); k(f"s_add_u32 s{s_t0}, s{s_t0}, s{s_t1}")
        k(f"buffer_load_ushort v{v_b1}, v{vt[3]}, s[{sA}:{sA+3}], s{s_t1} offen")
        for i in range(20):
            k(f"buffer_load_dwordx4 {vr(40 + 4*i, 4)}, v{vt[2]}, s[{sB}:{sB+3}], s{s_t0} offen")
            k(f"s_add_u32 s{s_t0}, s{s_t0}, {4 * F * 2}")
        for r in range(8): k(f"v_mov_b32 v{24 + r}, 0")
        for i in range(20):
            k(f"s_waitcnt vmcnt({19 - i})")
            for r in range(4):
                k(f"v_lshlrev_b32 v{32 + 2*r}, 16, v{40 + 4*i + r}")
                k(f"v_and_b32 v{33 + 2*r}, 0xffff0000, v{40 + 4*i + r}")
            for r in range(4):
                k(f"v_pk_add_f32 {vr(24 + 2*r, 2)}, {vr(24 + 2*r, 2)}, {vr(32 + 2*r, 2)}")
        k(f"v_lshlrev_b32 v{vt[0]}, 5, v0")
        k(f"ds_write_b128 v{vt[0]}, v[24:27]")
        k(f"ds_write_b128 v{vt[0]}, v[28:31] offset:16")
        k("s_waitcnt lgkmcnt(0)")
        k("s_barrier")
        k(f"s_cmp_ge_u32 s{s_wid}, 2"); k(f"s_cbranch_scc1 {k.L('end')}")
        k(f"v_lshlrev_b32 v{vt[0]}, 2, v0")
        for i in range(32):
            k(f"ds_read_b32 v{40 + i}, v{vt[0]} offset:{i * 512}")
            if i % 8 == 7: k("s_waitcnt lgkmcnt(0)")
        for i in range(1, 32): k(f"v_add_f32 v40, v40, v{40 + i}")
        k(f"v_lshlrev_b32 v{v_b1}, 16, v{v_b1}")
        k(f"v_mul_f32 v{v_b1}, {f32(GS)}, v{v_b1}")
        k(f"s_lshl_b32 s{s_t0}, s{s_mb}, 10"); k(f"s_add_u32 s{s_t0}, s{s_t0}, {C1_OFF}"); k(f"s_add_u32 s{s_t1}, s{s_t0}, 512")
        k(f"buffer_store_dword v40, v{vt[0]}, s[{sW}:{sW+3}], s{s_t0} offen sc1")
        k(f"buffer_store_dword v{v_b1}, v{vt[0]}, s[{sW}:{sW+3}], s{s_t1} offen sc1")
    k.label(k.L("end"))
    k(f"s_lshl_b32 s94, s{s_mb}, 4"); k(f"s_add_u32 s94, s94, s{s_nb}")
    k(f"v_readfirstlane_b32 s{S_TAG}, v{v_tag}")
    k.stamp(2, "st1" in X)

def phase2(k):
    k.pref = "p2"
    sW = 4; sP1 = 8; sP2 = 12; sP3 = 16; sWW = 52
    s_hd, s_qb, s_w, s_qs, s_kh, s_t0, s_t1, s_it = 20, 21, S_WID, 23, 24, 25, 26, 27
    s_ko, s_vo, s_odd = 28, 29, 30
    s_vm = 32; s_lo = 34; s_c = 36
    s_do, s_dm, s_qo = 56, 57, 58
    v_lane, v_t, v_h = 1, 2, 3
    vK1, vK2, vV0, vV1 = 4, 5, 6, 7
    vt = [8, 9, 10, 11, 12, 13, 14, 15]
    vm = [16, 17]
    v_pfa, v_pfc, v_pf = 18, 19, 200
    vD = [202, 203, 204, 205]
    v_fx, vX, vOne = 206, 208, 210
    Q1 = [20, 24]; Q2 = [28, 30]
    NBUF = 4
    K1 = [32, 36, 40, 44]; K2 = [48, 50]; Q2B = [52, 54]; vK2p = 207
    VB = [56, 64, 72, 80]
    C = [88, 104]; Sx = [120, 136]; P = [152, 160]; O = [168, 184]
    k("s_load_dwordx2 s[40:41], s[0:1], 80")
    k("s_load_dwordx2 s[44:45], s[0:1], 16")
    k("s_load_dwordx2 s[46:47], s[0:1], 32")
    k("s_load_dwordx2 s[38:39], s[0:1], 48")
    if "rowmap" not in X:
        k(f"s_and_b32 s{s_hd}, s2, 7"); k(f"s_lshl_b32 s{s_hd}, s{s_hd}, 2")
        k(f"s_bfe_u32 s{s_t0}, s2, 0x20003"); k(f"s_add_u32 s{s_hd}, s{s_hd}, s{s_t0}")
        k(f"s_lshr_b32 s{s_qb}, s2, 5")
    else:
        k(f"s_lshr_b32 s{s_hd}, s2, 3"); k(f"s_and_b32 s{s_qb}, s2, 7")
    k(f"s_and_b32 s{s_qs}, s{s_w}, 3"); k(f"s_lshr_b32 s{s_kh}, s{s_w}, 2")
    k(f"s_and_b32 s{s_odd}, s{s_hd}, 1")
    k(f"s_mov_b32 s{s_lo}, -1"); k(f"s_mov_b32 s{s_lo+1}, 0")
    k(f"s_lshr_b32 s{s_t0}, s{s_hd}, 1"); k(f"s_mul_i32 s{s_t0}, s{s_t0}, 5")
    k(f"s_mul_i32 s{s_t1}, s{s_odd}, 3"); k(f"s_add_u32 s{s_t1}, s{s_t1}, s{s_t0}")
    k(f"v_add_lshl_u32 v{vK1}, v{v_h}, s{s_t1}, 15")
    k(f"v_lshl_add_u32 v{vK1}, v{v_t}, 4, v{vK1}")
    k(f"s_add_u32 s{s_t0}, s{s_t0}, 2"); k(f"s_lshl_b32 s{s_t0}, s{s_t0}, 15")
    k(f"s_lshl_b32 s{s_t1}, s{s_odd}, 3"); k(f"s_add_u32 s{s_t0}, s{s_t0}, s{s_t1}")
    k(f"v_lshl_add_u32 v{vK2}, v{v_t}, 4, s{s_t0}")
    k(f"s_sub_u32 s{s_t0}, s{s_t0}, 512")
    k(f"v_lshl_add_u32 v{vK2p}, v{v_lane}, 4, s{s_t0}")
    k(f"s_lshl_b32 s{s_ko}, s{s_kh}, 14"); k(f"s_add_u32 s{s_ko}, s{s_ko}, {QK_OFF + 80 * CH}")
    k(f"s_lshl_b32 s{s_qo}, s{s_qb}, 12"); k(f"s_lshl_b32 s{s_t1}, s{s_qs}, 10"); k(f"s_add_u32 s{s_qo}, s{s_qo}, s{s_t1}")
    for qt in range(2):
        k(f"v_mov_b32 v{Q2[qt]}, 0"); k(f"v_mov_b32 v{Q2[qt]+1}, 0")
    k(f"s_mov_b32 s42, s{s_ko}")
    k(f"s_mov_b32 s{s_vm}, 0xfffff"); k(f"s_mov_b32 s{s_vm+1}, 0xfffff")
    k(f"v_add_u32 v{vt[0]}, 4, v{v_t}")
    k(f"v_subrev_u32 v{vt[1]}, 16, v{v_t}")
    k(f"v_cmp_gt_u32 vcc, 16, v{v_t}")
    k(f"v_cndmask_b32 v{vt[0]}, v{vt[1]}, v{vt[0]}, vcc")
    k(f"s_cmp_eq_u32 s{s_odd}, 1")
    k(f"s_cselect_b64 vcc, -1, 0")
    k(f"v_cndmask_b32 v{vt[0]}, v{v_t}, v{vt[0]}, vcc")
    k(f"s_mul_i32 s{s_t0}, s{s_hd}, 20")
    k(f"v_mul_u32_u24 v{vt[1]}, 640, v{v_h}")
    k(f"v_add3_u32 v{vV0}, v{vt[0]}, s{s_t0}, v{vt[1]}")
    k(f"v_lshlrev_b32 v{vV0}, 4, v{vV0}")
    k(f"v_add_u32 v{vV1}, {640 * 32}, v{vV0}")
    k(f"s_mul_i32 s{s_vo}, s{s_kh}, {32 * 1280 * 32}"); k(f"s_add_u32 s{s_vo}, s{s_vo}, {V_OFF}")
    k(f"s_mov_b32 s43, s{s_vo}"); k(f"s_mov_b32 s22, {1280 * 32}")
    k(f"v_cmp_eq_u32 vcc, 0, v{v_h}"); k(f"v_mov_b32 v{vOne}, 0x3f80"); k(f"v_cndmask_b32 v{vOne}, 0, v{vOne}, vcc")
    k(f"v_mov_b32 v{vOne+1}, 0"); k(f"v_mov_b32 v{vOne+3}, 0")
    k(f"v_cmp_eq_u32 vcc, 20, v{v_t}")
    k(f"v_mov_b32 v{vt[1]}, 0x3f803f80")
    k(f"v_cndmask_b32 v{vt[1]}, 0, v{vt[1]}, vcc")
    for b in range(NBUF):
        for r in range(8): k(f"v_mov_b32 v{VB[b] + r}, v{vt[1]}")
    for qt in range(2):
        for r in range(16): k(f"v_mov_b32 v{O[qt] + r}, 0")
    for r in range(8): k(f"v_mov_b32 v{P[1] + r}, 0")
    k(f"s_lshr_b32 s{s_t0}, s2, 3"); k(f"s_lshl_b32 s{s_t0}, s{s_t0}, 3"); k(f"s_add_u32 s{s_t0}, s{s_t0}, s{s_w}")
    k(f"s_mul_i32 s49, s{s_t0}, {48 * 128}"); k(f"s_add_u32 s49, s49, {192 * F * 2}")
    k(f"v_lshlrev_b32 v{vt[2]}, 8, v{v_lane}"); k(f"v_add_u32 v{vt[2]}, 124, v{vt[2]}")
    k(f"v_mov_b32 v{vt[3]}, 0x7ffffff0")
    k(f"v_cmp_gt_u32 vcc, 24, v{v_lane}")
    k(f"v_cndmask_b32 v{v_pfa}, v{vt[3]}, v{vt[2]}, vcc")
    W2L = int(os.environ.get("W2L", "0"))
    if W2L:
        k(f"s_mul_i32 s48, s{s_t0}, {2 * W2L * 128}")
    else:
        k(f"s_lshl_b32 s48, s2, 3"); k(f"s_add_u32 s48, s48, s{s_w}"); k(f"s_mul_i32 s48, s48, {10 * 128}")
    k(f"v_cmp_gt_u32 vcc, {W2L or 5}, v{v_lane}")
    k(f"v_cndmask_b32 v{v_pfc}, v{vt[3]}, v{vt[2]}, vcc")
    k(f"s_sub_u32 s50, s{s_qs}, s{s_kh}"); k(f"s_add_u32 s50, s50, 3")
    k(f"s_lshl_b32 s92, s2, 3"); k(f"s_add_u32 s92, s92, s{s_w}"); k(f"s_mul_i32 s92, s92, 1536"); k(f"s_add_u32 s92, s92, {H_OFF}")
    k(f"v_lshrrev_b32 v{vt[0]}, 3, v{v_lane}")
    k(f"v_and_b32 v{vt[1]}, 7, v{v_lane}")
    k(f"v_bfe_u32 v{vt[2]}, v{v_lane}, 4, 1")
    k(f"v_lshlrev_b32 v{vt[2]}, 2, v{vt[2]}")
    k(f"v_xor_b32 v{vt[1]}, v{vt[1]}, v{vt[2]}")
    k(f"v_mul_u32_u24 v{vt[0]}, 1280, v{vt[0]}")
    k(f"v_lshl_add_u32 v{vD[0]}, v{vt[1]}, 4, v{vt[0]}")
    k(f"v_add_u32 v{vD[1]}, {8 * 1280 - 1024}, v{vD[0]}")
    k(f"v_lshrrev_b32 v{vt[0]}, 4, v{v_lane}")
    k(f"v_and_b32 v{vt[1]}, 15, v{v_lane}")
    k(f"v_lshlrev_b32 v{vt[2]}, 2, v{vt[0]}")
    k(f"v_xor_b32 v{vt[1]}, v{vt[1]}, v{vt[2]}")
    k(f"v_mul_u32_u24 v{vt[0]}, {F * 2}, v{vt[0]}")
    k(f"v_lshl_add_u32 v{vD[2]}, v{vt[1]}, 4, v{vt[0]}")
    k(f"v_add_u32 v{vD[3]}, {4 * F * 2 - 1024}, v{vD[2]}")
    k(f"s_lshr_b32 s{s_t0}, s2, 3")
    k(f"s_mul_i32 s{s_t1}, s{s_t0}, 43"); k(f"s_lshr_b32 s{s_t1}, s{s_t1}, 7"); k(f"s_lshl_b32 s{s_t1}, s{s_t1}, 7")
    k(f"s_mul_i32 s{s_do}, s{s_w}, {16 * 1280}"); k(f"s_add_u32 s{s_do}, s{s_do}, s{s_t1}")
    k(f"s_lshr_b32 s{s_t0}, s{s_t0}, 1"); k(f"s_lshl_b32 s{s_t0}, s{s_t0}, 8")
    k(f"s_mul_i32 s59, s{s_w}, {8 * F * 2}"); k(f"s_add_u32 s59, s59, s{s_t0}")
    k(f"s_lshl_b32 s{s_dm}, s{s_w}, 11")
    k("s_waitcnt lgkmcnt(0)")
    srd(k, sW, 40, 41, QKV_END); srd(k, sWW, 40, 41, WS_END)
    srd(k, sP1, 44, 45, D * D * 2); srd(k, sP2, 46, 47, D * F * 2)
    W = f"s[{sW}:{sW+3}]"
    k("s_load_dwordx2 s[44:45], s[0:1], 0")
    k(f"s_lshr_b32 s{s_t0}, s2, 3"); k(f"s_mul_i32 s{s_t1}, s{s_t0}, 43"); k(f"s_lshr_b32 s{s_t1}, s{s_t1}, 7")
    k(f"s_mul_i32 s46, s{s_t1}, 3"); k(f"s_sub_u32 s{s_t0}, s{s_t0}, s46"); k(f"s_mul_i32 s{s_t0}, s{s_t0}, 3"); k(f"s_add_u32 s{s_t0}, s{s_t0}, s{s_w}")
    k(f"s_and_b32 s46, s2, 7"); k(f"s_lshl_b32 s46, s46, 3"); k(f"s_add_u32 s{s_t0}, s{s_t0}, s46"); k(f"s_lshl_b32 s{s_t0}, s{s_t0}, 5")
    k(f"v_add_u32 v{XRA}, s{s_t0}, v{v_t}"); k(f"v_mul_u32_u24 v{XRA}, 1280, v{XRA}")
    k(f"v_lshl_add_u32 v{XRA}, v{v_h}, 4, v{XRA}")
    k(f"s_lshl_b32 s{s_t1}, s{s_t1}, 7"); k(f"v_add_u32 v{XRA}, s{s_t1}, v{XRA}")
    k(f"s_lshl_b32 s{s_t1}, s{s_kh}, 9"); k(f"s_add_u32 s{s_qo}, s{s_qo}, s{s_t1}"); k(f"s_xor_b32 s47, s{s_qo}, 512")
    srd(k, sP3, 38, 39, D * F * 2)
    k(f"s_getreg_b32 s51, hwreg(HW_REG_XCC_ID)"); k(f"s_and_b32 s51, s51, 15")
    k(f"s_and_b32 s{s_t0}, s2, 7"); k(f"s_lshl_b32 s{s_t0}, s{s_t0}, 7"); k(f"s_add_u32 s{s_t0}, s{s_t0}, {FX_OFF}")
    k(f"v_lshl_add_u32 v{v_fx}, v{v_t}, 10, s{s_t0}")
    k(f"s_and_b32 s{s_t0}, s{s_w}, 6"); k(f"s_cmp_lg_u32 s{s_t0}, 4"); k(f"s_cbranch_scc1 {k.L('nt')}")
    k(f"s_lshr_b32 s{s_t0}, s{s_hd}, 1"); k(f"s_mul_i32 s{s_t0}, s{s_t0}, 5"); k(f"s_add_u32 s{s_t0}, s{s_t0}, s{s_odd}"); k(f"s_add_u32 s{s_t0}, s{s_t0}, s{s_odd}")
    k(f"s_add_u32 s{s_t1}, s{s_t0}, 2"); k(f"s_lshr_b32 s{s_t0}, s{s_t0}, 4"); k(f"s_lshr_b32 s{s_t1}, s{s_t1}, 4")
    k(f"s_cmp_eq_u32 s{s_w}, 4"); k(f"s_cbranch_scc1 {k.L('fk')}")
    k(f"s_lshl_b32 s{s_t0}, s2, 7"); k(f"s_add_u32 s{s_t0}, s{s_t0}, {FX_OFF}")
    k(f"v_mov_b32 v{vt[2]}, s{S_TAG}"); k(f"v_mov_b32 v{vt[3]}, s51"); k(f"v_mov_b32 v{vt[4]}, 0")
    k("s_mov_b64 exec, 1")
    k(f"buffer_store_dwordx2 {vr(vt[2], 2)}, v{vt[4]}, s[{sWW}:{sWW+3}], s{s_t0} offen sc1")
    k("s_mov_b64 exec, -1")
    k(f"s_mul_i32 s{s_t0}, s{s_hd}, 20"); k(f"s_add_u32 s{s_t1}, s{s_t0}, {19 + 640}"); k(f"s_add_u32 s{s_t0}, s{s_t0}, 640")
    k(f"s_lshr_b32 s{s_t0}, s{s_t0}, 7"); k(f"s_lshr_b32 s{s_t1}, s{s_t1}, 7")
    k.label(k.L("fk"))
    k(f"v_mov_b32 v{vt[0]}, s{s_t0}"); k(f"v_mov_b32 v{vt[1]}, s{s_t1}")
    k(f"v_and_b32 v{vt[5]}, 16, v{v_lane}"); k(f"v_cmp_eq_u32 vcc, 0, v{vt[5]}")
    k(f"v_cndmask_b32 v{vt[5]}, v{vt[1]}, v{vt[0]}, vcc")
    k(f"v_and_b32 v{vt[1]}, 15, v{v_lane}")
    k(f"v_lshl_add_u32 v{vt[0]}, v{vt[1]}, 4, v{vt[5]}")
    k(f"v_add_u32 v{vt[0]}, 5, v{vt[0]}")
    k(f"v_and_b32 v{vt[1]}, 1, v{v_lane}"); k(f"s_lshl_b32 s{s_t0}, s{s_qb}, 1"); k(f"v_add_u32 v{vt[1]}, s{s_t0}, v{vt[1]}")
    k(f"v_lshl_add_u32 v{vt[1]}, v{vt[1]}, 4, v{vt[5]}")
    k(f"s_cmp_eq_u32 s{s_w}, 4"); k(f"s_cselect_b32 s{s_t0}, 32, 64")
    k(f"v_cmp_gt_u32 vcc, s{s_t0}, v{v_lane}")
    k(f"v_cndmask_b32 v{vt[0]}, v{vt[1]}, v{vt[0]}, vcc")
    k(f"v_lshlrev_b32 v{vt[0]}, 7, v{vt[0]}"); k(f"v_add_u32 v{vt[0]}, {FL_OFF}, v{vt[0]}")
    k.label(k.L("nt"))
    k("s_waitcnt vmcnt(0) lgkmcnt(0)")
    k("s_barrier")
    k.stamp(3, "st1" in X)
    k(f"s_and_b32 s{s_t0}, s{s_w}, 6"); k(f"s_cmp_lg_u32 s{s_t0}, 4"); k(f"s_cbranch_scc1 {k.L('nw')}")
    k(f"s_cmp_lg_u32 s{s_w}, 4"); k(f"s_cbranch_scc1 {k.L('npb')}")
    publish(k, sWW, 1, 94, s_t0, vt[4], vt[5])
    k.label(k.L("npb"))
    poll(k, sWW, [vt[0]], [vt[2]], s_it, "1")
    k.label(k.L("nw"))
    k("s_barrier")
    k.stamp(4, "st1" in X)
    SC = " sc1" if "kvsc1" in X else (" nt" if "kvnt" in X else "")
    def kload(b, pair=True):
        r = [f"buffer_load_dwordx4 {vr(K1[b],4)}, v{vK1}, {W}, s{s_ko} offen{SC}"]
        if b % 2 and pair: r.append(f"buffer_load_dwordx2 {vr(K2[b // 2],2)}, v{vK2p}, {W}, s{s_ko} offen{SC}")
        return r + [f"s_add_u32 s{s_ko}, s{s_ko}, 512"]
    def vload(b):
        return [f"s_mov_b64 exec, s[{s_vm}:{s_vm+1}]",
                f"buffer_load_dwordx4 {vr(VB[b],4)}, v{vV0}, {W}, s{s_vo} offen{SC}",
                f"buffer_load_dwordx4 {vr(VB[b]+4,4)}, v{vV1}, {W}, s{s_vo} offen{SC}",
                f"s_mov_b64 exec, -1",
                f"s_add_u32 s{s_vo}, s{s_vo}, s22"]
    def wdma(which):
        a, b_, sr_, so, step = (vD[0], vD[1], sP1, s_do, 128 * 1280) if which == 0 else (vD[2], vD[3], sP2, 59, 64 * F * 2)
        return [f"s_mov_b32 m0, s{s_dm}", f"s_add_u32 s{s_dm}, s{s_dm}, 16384",
                f"buffer_load_dwordx4 v{a}, s[{sr_}:{sr_+3}], s{so} offen lds",
                f"buffer_load_dwordx4 v{b_}, s[{sr_}:{sr_+3}], s{so} offen offset:1024 lds",
                f"s_add_u32 s{so}, s{so}, {step}"]
    k(f"buffer_load_dwordx2 {vr(K2[0],2)}, v{vK2p}, {W}, s{s_ko} offen offset:512{SC}")
    for l in kload(0): k(l)
    for qt in range(2):
        k(f"buffer_load_dwordx4 {vr(Q1[qt],4)}, v{vK1}, {W}, s{s_qo if qt else 47} offen sc1")
        k(f"buffer_load_dwordx2 {vr(Q2B[qt],2)}, v{vK2}, {W}, s{s_qo if qt else 47} offen sc1")
    rest = kload(1, False) + vload(0) + kload(2) + vload(1) + kload(3) + vload(2) + [f"buffer_load_dword v{v_pf}, v{vt[7]}, {W}, 0 offen"] * 2
    k(f"v_mov_b32 v{vt[7]}, 0x7ffffff0")
    NPRO = int(os.environ.get("NPRO", "3"))
    n = 0
    while n < NPRO or (NPRO and rest[0].startswith("s_mov_b64 exec, -1")):
        l = rest.pop(0); k(l); n += l.startswith("buffer")
        if not rest: break
    def qk(qt, b, c):
        cc = "0" if c is None else vr(c, 16)
        return [f"v_mfma_f32_32x32x16_bf16 {vr(Sx[qt],16)}, {vr(K1[b],4)}, {vr(Q1[qt],4)}, {cc}",
                f"v_mfma_f32_32x32x8_bf16 {vr(Sx[qt],16)}, {vr(K2[b // 2],2)}, {vr((Q2B if b % 2 else Q2)[qt],2)}, {vr(Sx[qt],16)}"]
    def pv(qt, b):
        return [f"v_mfma_f32_32x32x16_bf16 {vr(O[qt],16)}, {vr(VB[b],4)}, {vr(P[qt],4)}, {vr(O[qt],16)}",
                f"v_mfma_f32_32x32x16_bf16 {vr(O[qt],16)}, {vr(VB[b]+4,4)}, {vr(P[qt]+4,4)}, {vr(O[qt],16)}"]
    def rowmax(qt, dst, tmp):
        s = Sx[qt]
        k(f"v_max3_f32 v{dst}, v{s}, v{s+1}, v{s+2}")
        for r in range(3, 15, 2): k(f"v_max3_f32 v{dst}, v{dst}, v{s+r}, v{s+r+1}")
        k(f"v_max_f32 v{dst}, v{dst}, v{s+15}")
        k(f"v_mov_b32 v{tmp}, v{dst}")
        k(f"v_permlane32_swap_b32 v{dst}, v{tmp}")
        k(f"v_max_f32 v{dst}, v{dst}, v{tmp}")
    k(f"s_waitcnt vmcnt({n})")
    if "sta" in X: k.stamp(0)
    k("s_mov_b32 exec_hi, 0")
    for r in range(4): k(f"v_mov_b32 v{Q2[0] + r}, v{Q2B[0] + r}")
    for r in range(4): k(f"v_mov_b32 v{Q2B[0] + r}, 0")
    k("s_mov_b32 exec_hi, -1")
    for qt in range(2):
        for l in qk(qt, 0, None): k(l)
    for l in rest: k(l)
    for qt in range(2):
        rowmax(qt, vm[qt], vt[0])
        k(f"v_cvt_pk_bf16_f32 v{vOne+2}, -v{vm[qt]}, 0")
        k(f"v_mfma_f32_32x32x8_bf16 {vr(C[qt],16)}, {vr(vOne,2)}, {vr(vOne+2,2)}, 0")
        k(f"v_lshlrev_b32 v{vm[qt]}, 16, v{vOne+2}")
        k(f"v_xor_b32 v{vm[qt]}, 0x80000000, v{vm[qt]}")
    for l in qk(0, 0, C[0]): k(l)
    k("s_nop 7")
    k(f"s_mov_b32 s{s_it}, 0")
    if "sta" in X: k.stamp(2)
    k("s_nop 1")
    def slot(qt, mf, extra):
        s = Sx[qt]; p = P[qt]
        for i in range(16):
            for l in extra.get(i, []): k(l)
            if i % 4 == 0: k(mf[i // 4])
            k(f"v_exp_f32 v{s+i}, v{s+i}")
            if i % 2 == 1 and i >= 3:
                k(f"v_cvt_pk_bf16_f32 v{p + (i-3)//2}, v{s+i-3}, v{s+i-2}")
        for l in extra.get(16, []): k(l)
        k(f"v_cvt_pk_bf16_f32 v{p+7}, v{s+14}, v{s+15}")
    k(f"s_cmp_eq_u32 s{s_kh}, 0")
    k(f"s_cselect_b32 s31, 99, {int(os.environ.get('PRI', '6'))}")
    k(f"s_cbranch_scc1 {k.L('np')}")
    k("s_setprio 1")
    k.label(k.L("np"))
    k.label(k.L("loop"))
    for u in range(NBUF):
        b = u; bp = (u - 1) % NBUF; bn = (u + 1) % NBUF
        seq = []
        for i in range(3):
            for uu in range(4):
                kt = 4 * i + uu
                seq.append(("K", kt + 4))
                if uu % 2: seq.append(("P", (kt + 4) // 2))
                seq += [("V", kt + 3)] * 2
                if i == 2 and uu == u: break
            else:
                seq += [("W", i)] * 2
        kt = 8 + u
        last = max(len(seq) - 1 - seq[::-1].index(e) for e in (("K", kt + 1), ("P", (kt + 1) // 2), ("V", kt)))
        e1 = {0: [f"s_waitcnt vmcnt({len(seq) - 1 - last})"]}
        if "pt" in X:
            if u < 3: e1[7] = [f"s_buffer_load_dword s93, s[{sWW}:{sWW+3}], s92 offset:{u * 64}"]
        PU = int(os.environ.get("PU", "2"))
        if u == PU:
            k(f"s_cmp_lg_u32 s{s_it}, s31"); k(f"s_cbranch_scc1 {k.L('nph')}"); k("s_setprio 0"); k.label(k.L("nph"))
        slot(0, qk(1, b, C[1]) + pv(1, bp), {6: kload(b), 14: vload(bp)})
        slot(1, qk(0, bn, C[0]) + pv(0, b), e1)
    k(f"s_add_u32 s{s_it}, s{s_it}, 1")
    if PU == 4:
        k(f"s_cmp_lg_u32 s{s_it}, s31")
        k(f"s_cbranch_scc1 {k.L('noev')}")
        k("s_setprio 0")
        k.label(k.L("noev"))
    if W2L:
        k(f"s_sub_u32 s{s_t0}, s50, 1")
        k(f"s_cmp_lg_u32 s{s_it}, s{s_t0}"); k(f"s_cbranch_scc1 {k.L('noe0')}")
        k(f"buffer_load_dwordx2 {vr(v_pf, 2)}, v{v_pfc}, s[{sP3}:{sP3+3}], s48 offen")
        k.label(k.L("noe0"))
    k(f"s_cmp_lg_u32 s{s_it}, s50"); k(f"s_cbranch_scc1 {k.L('noe2')}")
    k(f"buffer_load_dwordx2 {vr(v_pf, 2)}, v{v_pfa}, s[{sP2}:{sP2+3}], s49 offen")
    if not W2L: k(f"buffer_load_dwordx2 {vr(v_pf, 2)}, v{v_pfc}, s[{sP3}:{sP3+3}], s48 offen")
    k(f"s_cmp_lg_u32 s{s_w}, 5"); k(f"s_cbranch_scc1 {k.L('noe1')}")
    k(f"s_lshl_b32 s{s_t0}, s2, 7"); k(f"s_add_u32 s{s_t0}, s{s_t0}, {FL_OFF + 32768}")
    for j in range(3): k(f"s_buffer_load_dword s93, s[{sWW}:{sWW+3}], s{s_t0} offset:{j * 32768}")
    k(f"buffer_load_dwordx2 {vr(vX, 2)}, v{v_fx}, s[{sWW}:{sWW+3}], 0 offen sc1")
    k.label(k.L("noe1"))
    k(f"s_cmp_lg_u32 s{s_w}, 3"); k(f"s_cbranch_scc1 {k.L('noe2')}")
    code_prefetch(k, "L_p2_merge", sP3, s_t0, vt[0], v_pf, v_lane, per=8)
    k.label(k.L("noe2"))
    if "pt" in X: k("s_add_u32 s92, s92, 192")
    k(f"s_cmp_ge_u32 s{s_it}, 6"); k(f"s_cbranch_scc1 {k.L('d1')}")
    for l in wdma(0): k(l)
    k(f"s_branch {k.L('loop')}")
    k.label(k.L("d1"))
    k(f"s_cmp_eq_u32 s{s_it}, 7")
    k(f"s_cselect_b32 s{s_ko}, 0x10000000, s{s_ko}"); k(f"s_cselect_b32 s22, 0x10000000, s22")
    for l in wdma(1): k(l)
    k(f"s_cmp_lt_u32 s{s_it}, 8"); k(f"s_cbranch_scc1 {k.L('loop')}")
    k.label(k.L("lend"))
    k.stamp(5)
    for l in pv(1, NBUF - 1): k(l)
    k(f"s_cmp_ge_u32 s{s_w}, 3"); k(f"s_cbranch_scc1 {k.L('d2')}")
    srd(k, sP3, 44, 45, S * D * 2)
    for c in range(4):
        k(f"buffer_load_dwordx4 {vr(XR + 4*c, 4)}, v{XRA}, s[{sP3}:{sP3+3}], 0 offen offset:{32*c}")
    k.label(k.L("d2"))
    k("s_nop 4")
    k(f"v_pk_add_f32 {vr(vt[0],2)}, {vr(O[0],2)}, {vr(O[0]+2,2)}")
    for r in range(4, 12, 2): k(f"v_pk_add_f32 {vr(vt[0],2)}, {vr(vt[0],2)}, {vr(O[0]+r,2)}")
    for r in range(0, 12, 2): k(f"v_pk_add_f32 {vr(vt[0],2)}, {vr(vt[0],2)}, {vr(O[1]+r,2)}")
    k(f"v_add_f32 v{vt[0]}, v{vt[0]}, v{vt[1]}")
    k(f"v_add_f32 v{vt[1]}, v{O[0]+8}, v{O[1]+8}")
    k(f"v_min_f32 v{vt[2]}, v{O[0]+8}, v{O[1]+8}")
    k(f"s_mov_b32 s{s_t0}, {f32(2.0**120)}")
    k(f"v_cmp_nlt_f32 s[{s_c}:{s_c+1}], |v{vt[0]}|, s{s_t0}")
    k(f"s_mov_b32 s{s_t0}, {f32(2.0**60)}"); k(f"s_mov_b32 s{s_t1}, {f32(2.0**-60)}")
    k(f"v_cmp_nlt_f32 vcc, |v{vt[1]}|, s{s_t0}")
    k(f"v_cmp_ngt_f32 s[90:91], v{vt[2]}, s{s_t1}")
    k("s_or_b64 vcc, vcc, s[90:91]")
    k(f"s_andn2_b64 vcc, vcc, s[{s_lo}:{s_lo+1}]")
    k(f"s_or_b64 s[{s_c}:{s_c+1}], s[{s_c}:{s_c+1}], vcc")
    if "forcefb" not in X: k(f"s_cbranch_scc0 {k.L('merge')}")
    k("s_waitcnt vmcnt(0)")
    k(f"s_mov_b32 s22, {1280 * 32}")
    k(f"s_mov_b32 s{s_ko}, s42"); k(f"s_mov_b32 s{s_vo}, s43")
    for qt in range(2):
        for r in range(16): k(f"v_mov_b32 v{O[qt] + r}, 0")
        k(f"v_mov_b32 v{vm[qt]}, 0xff800000")
    k(f"s_mov_b32 s{s_it}, 0")
    k.label(k.L("fb"))
    k(f"buffer_load_dwordx2 {vr(K2[0],2)}, v{vK2}, {W}, s{s_ko} offen")
    for l in kload(0) + vload(0): k(l)
    k("s_waitcnt vmcnt(0)")
    for qt in range(2):
        for l in qk(qt, 0, None): k(l)
    for qt in range(2):
        rowmax(qt, vt[2], vt[0])
        k(f"v_max_f32 v{vt[2]}, v{vt[2]}, v{vm[qt]}")
        k(f"v_sub_f32 v{vt[3]}, v{vm[qt]}, v{vt[2]}")
        k(f"v_exp_f32 v{vt[3]}, v{vt[3]}")
        k(f"v_mov_b32 v{vm[qt]}, v{vt[2]}")
        for r in range(16): k(f"v_mul_f32 v{O[qt]+r}, v{O[qt]+r}, v{vt[3]}")
        for r in range(16): k(f"v_sub_f32 v{Sx[qt]+r}, v{Sx[qt]+r}, v{vt[2]}")
        for r in range(16): k(f"v_exp_f32 v{Sx[qt]+r}, v{Sx[qt]+r}")
        for r in range(8): k(f"v_cvt_pk_bf16_f32 v{P[qt]+r}, v{Sx[qt]+2*r}, v{Sx[qt]+2*r+1}")
        for l in pv(qt, 0): k(l)
    k("s_nop 7"); k("s_nop 7")
    k(f"s_add_u32 s{s_it}, s{s_it}, 1")
    k(f"s_cmp_lt_u32 s{s_it}, 32")
    k(f"s_cbranch_scc1 {k.L('fb')}")
    k.label(k.L("merge"))
    O = [O[1], O[0]]; vm = [vm[1], vm[0]]
    k(f"s_mul_i32 s{s_t0}, s{s_w}, 3328"); k(f"s_add_u32 s{s_t0}, s{s_t0}, {MRG}")
    k(f"s_xor_b32 s{s_t1}, s{s_w}, 4"); k(f"s_mul_i32 s{s_t1}, s{s_t1}, 3328"); k(f"s_add_u32 s{s_t1}, s{s_t1}, {MRG}")
    k(f"v_lshl_add_u32 v{vt[0]}, v{v_lane}, 4, s{s_t0}")
    k(f"v_lshl_add_u32 v{vt[2]}, v{v_lane}, 2, s{s_t0}")
    for q in range(3): k(f"ds_write_b128 v{vt[0]}, {vr(O[1] + 4*q, 4)} offset:{q*1024}")
    k(f"ds_write_b32 v{vt[2]}, v{vm[1]} offset:3072")
    k(f"v_lshl_add_u32 v{vt[1]}, v{v_lane}, 4, s{s_t1}")
    k(f"v_lshl_add_u32 v{vt[3]}, v{v_lane}, 2, s{s_t1}")
    k(f"v_mov_b32 v{vt[7]}, {LOCW}")
    k(f"s_cmp_lg_u32 s{s_w}, 5"); k(f"s_cbranch_scc1 {k.L('nl')}")
    k(f"v_cmp_ne_u32 vcc, s{S_TAG}, v{vX}")
    k(f"v_cmp_ne_u32 s[90:91], s51, v{vX+1}")
    k("s_or_b64 vcc, vcc, s[90:91]")
    k(f"s_cselect_b32 s{s_t0}, 0, 1")
    k(f"v_mov_b32 v{vX}, s{s_t0}"); k(f"v_mov_b32 v{vX+1}, s{S_TAG}")
    k(f"ds_write_b64 v{vt[7]}, {vr(vX, 2)}")
    k.label(k.L("nl"))
    k("s_waitcnt lgkmcnt(0)")
    k("s_barrier")
    if "sta" in X: k.stamp(3); k("s_waitcnt lgkmcnt(0)")
    mo = Sx[0] + 12
    k(f"ds_read_b32 v{mo}, v{vt[3]} offset:3072")
    for q in range(3): k(f"ds_read_b128 {vr(Sx[0] + 4*q, 4)}, v{vt[1]} offset:{q*1024}")
    k(f"ds_read_b64 {vr(vX, 2)}, v{vt[7]}")
    k(f"s_add_u32 s{s_t0}, s{s_qo}, {O_OFF}")
    k("s_waitcnt lgkmcnt(4)")
    k(f"v_max_f32 v{vt[2]}, v{vm[0]}, v{mo}")
    k(f"v_sub_f32 v{vt[3]}, v{vm[0]}, v{vt[2]}"); k(f"v_sub_f32 v{vt[4]}, v{mo}, v{vt[2]}")
    k(f"v_exp_f32 v{vt[3]}, v{vt[3]}"); k(f"v_exp_f32 v{vt[4]}, v{vt[4]}")
    k(f"v_mul_f32 v{vt[5]}, v{O[0]+8}, v{vt[3]}")
    k("s_waitcnt lgkmcnt(0)")
    k(f"v_fmac_f32 v{vt[5]}, v{Sx[0]+8}, v{vt[4]}")
    k(f"v_readfirstlane_b32 s{S_LOC}, v{vX}"); k(f"v_readfirstlane_b32 s{S_TAG}, v{vX+1}")
    if "rowmap" not in X: k("s_mov_b64 vcc, 0")
    else: loc_vcc(k)
    k(f"v_mov_b32 v{vt[6]}, v{vt[5]}")
    k(f"v_permlane32_swap_b32 v{vt[5]}, v{vt[6]}")
    k(f"v_rcp_f32 v{vt[6]}, v{vt[6]}")
    k(f"v_mul_f32 v{vt[2]}, v{vt[3]}, v{vt[6]}"); k(f"v_mul_f32 v{vt[3]}, v{vt[4]}, v{vt[6]}")
    for r in range(0, 12, 2): k(f"v_pk_mul_f32 {vr(O[0]+r,2)}, {vr(O[0]+r,2)}, {vr(vt[2],2)} op_sel_hi:[1,0]")
    for r in range(0, 12, 2): k(f"v_pk_fma_f32 {vr(O[0]+r,2)}, {vr(Sx[0]+r,2)}, {vr(vt[2],2)}, {vr(O[0]+r,2)} op_sel:[0,1,0] op_sel_hi:[1,1,1]")
    for r in range(6): k(f"v_cvt_pk_bf16_f32 v{P[0]+r}, v{O[0]+2*r}, v{O[0]+2*r+1}")
    k(f"v_permlane32_swap_b32 v{P[0]}, v{P[0]+2}")
    k(f"v_permlane32_swap_b32 v{P[0]+1}, v{P[0]+3}")
    dstores(k, [f"buffer_store_dwordx4 {vr(P[0],4)}, v{vK1}, s[{sWW}:{sWW+3}], s{s_t0} offen",
                "s_mov_b32 exec_hi, 0",
                f"buffer_store_dwordx2 {vr(P[0]+4,2)}, v{vK2}, s[{sWW}:{sWW+3}], s{s_t0} offen",
                "s_mov_b32 exec_hi, -1"])
    k(f"s_lshl_b32 s94, s{s_qb}, 5"); k(f"s_add_u32 s94, s94, s{s_hd}")
    k.stamp(6)

def phase345(k):
    k.pref = "p3"
    GB = 16384; NSLOT = 8; SB = NSLOT * GB
    PH = {3: dict(NT=2, KK=D, A_OFF=O_OFF, base=0), 4: dict(NT=4, KK=D, A_OFF=H_OFF, base=5), 5: dict(NT=2, KK=F, A_OFF=G_OFF, base=7)}
    for p in PH.values():
        p["GS"] = 16 // p["NT"]; p["GR"] = p["GS"] * 16; p["NG"] = (p["KK"] + p["GR"] - 1) // p["GR"]; p["NKS"] = p["KK"] // 16
    sW, sB3, sB4, sB5, sX, sO, sBi = 4, 8, 12, 16, 8, 12, 16
    s_r, s_cb, s_w, s_t0, s_t1, s_offA, s_it, s_wid, s_r4, s_cb4, s_idx, s_x = 20, 21, 22, 23, 24, 26, 28, S_WID, 29, 30, 31, 32
    s_ob = {3: 25, 4: 26, 5: 27}; s_m0 = 33
    sPl, sSc = 96, 52
    ASC = os.environ.get("ASC", " sc1")
    v_lane, v_t, v_h = 1, 2, 3
    vt = [12, 13, 14, 15]
    k("s_load_dwordx2 s[42:43], s[0:1], 32")
    k("s_load_dwordx4 s[44:47], s[0:1], 48")
    k("s_load_dwordx2 s[56:57], s[0:1], 64")
    k(f"s_lshr_b32 s{s_idx}, s2, 3"); k(f"s_and_b32 s{s_x}, s2, 7")
    k(f"s_mul_i32 s{s_cb}, s{s_idx}, 43"); k(f"s_lshr_b32 s{s_cb}, s{s_cb}, 7")
    k(f"s_mul_i32 s{s_t1}, s{s_cb}, 3"); k(f"s_sub_u32 s{s_r}, s{s_idx}, s{s_t1}")
    k(f"s_and_b32 s{s_r4}, s{s_idx}, 1"); k(f"s_lshr_b32 s{s_cb4}, s{s_idx}, 1")
    k(f"s_and_b32 s{s_w}, s{s_wid}, 3")
    k(f"s_cmp_lt_u32 s{s_wid}, 4")
    k(f"s_cbranch_scc1 {k.L('compute')}")
    vB2 = [4, 5, 6, 7]; vB4 = [8, 9, 10, 11]
    k(f"v_lshrrev_b32 v{vt[0]}, 3, v{v_lane}")
    k(f"v_and_b32 v{vt[1]}, 7, v{v_lane}")
    k(f"v_bfe_u32 v{vt[2]}, v{v_lane}, 4, 1")
    k(f"v_lshlrev_b32 v{vt[2]}, 2, v{vt[2]}")
    k(f"v_xor_b32 v{vt[1]}, v{vt[1]}, v{vt[2]}")
    k(f"v_mul_u32_u24 v{vt[0]}, 1280, v{vt[0]}")
    k(f"v_lshl_add_u32 v{vB2[0]}, v{vt[1]}, 4, v{vt[0]}")
    for ii in range(1, 4): k(f"v_add_u32 v{vB2[ii]}, {ii * (8 * 1280 - 1024)}, v{vB2[0]}")
    k(f"s_mul_i32 s{s_ob[5]}, s{s_w}, {32 * 1280}"); k(f"s_lshl_b32 s{s_t1}, s{s_cb}, 7"); k(f"s_add_u32 s{s_ob[5]}, s{s_ob[5]}, s{s_t1}")
    k(f"s_add_u32 s37, s{s_ob[5]}, {(14 - int(os.environ.get('NSTASH', '0'))) * 128 * 1280}")
    k(f"s_lshl_b32 s{s_m0}, s{s_w}, 12")
    k(f"v_lshrrev_b32 v{vt[0]}, 4, v{v_lane}")
    k(f"v_and_b32 v{vt[1]}, 15, v{v_lane}")
    k(f"v_lshlrev_b32 v{vt[2]}, 2, v{vt[0]}")
    k(f"v_xor_b32 v{vt[1]}, v{vt[1]}, v{vt[2]}")
    k(f"v_mul_u32_u24 v{vt[0]}, {F * 2}, v{vt[0]}")
    k(f"v_lshl_add_u32 v{vB4[0]}, v{vt[1]}, 4, v{vt[0]}")
    for ii in range(1, 4): k(f"v_add_u32 v{vB4[ii]}, {ii * (4 * F * 2 - 1024)}, v{vB4[0]}")
    k(f"s_mul_i32 s{s_ob[4]}, s{s_w}, {16 * F * 2}"); k(f"s_lshl_b32 s{s_t1}, s{s_cb4}, 8"); k(f"s_add_u32 s{s_ob[4]}, s{s_ob[4]}, s{s_t1}")
    k(f"s_add_u32 s{s_ob[4]}, s{s_ob[4]}, {192 * F * 2}")
    k(f"s_lshl_b32 s{s_t0}, s{s_cb4}, 10"); k(f"s_lshl_b32 s{s_t1}, s{s_w}, 8"); k(f"s_add_u32 s{s_t0}, s{s_t0}, s{s_t1}")
    k(f"s_add_u32 s{s_t0}, s{s_t0}, {C1_OFF}")
    k(f"v_lshlrev_b32 v{vt[3]}, 2, v{v_lane}")
    k(f"v_add_u32 v{vt[2]}, s{s_t1}, v{vt[3]}"); k(f"v_add_u32 v{vt[2]}, {SB}, v{vt[2]}")
    k("s_waitcnt lgkmcnt(0)")
    srd(k, sB4, 42, 43, D * F * 2); srd(k, sB5, 44, 45, D * F * 2); srd(k, sW, 40, 41, WS_END)
    q = []
    def issue(p, j):
        P = PH[p]; slot = (P["base"] + j) % NSLOT
        vB = vB4 if p == 4 else vB2; sB = {4: sB4, 5: sB5}[p]
        k(f"s_add_u32 m0, s{s_m0}, {slot * GB}")
        for ii in range(4):
            k(f"buffer_load_dwordx4 v{vB[ii]}, s[{sB}:{sB+3}], s{s_ob[p]} offen offset:{ii*1024} lds")
            q.append((p, j))
        k(f"s_add_u32 s{s_ob[p]}, s{s_ob[p]}, {P['GR'] * (F if p == 4 else D) * 2}")
    def need(item):
        if item in q:
            last = len(q) - 1 - q[::-1].index(item)
            k(f"s_waitcnt vmcnt({len(q) - 1 - last})")
            del q[:last + 1]
    def bar(item=None):
        if item is not None: need(item)
        k("s_barrier")
    vP = 16; s_q = 34
    k(f"s_lshl_b32 s{s_q}, s{s_idx}, 2"); k(f"s_add_u32 s{s_q}, s{s_q}, s{s_w}")
    k(f"s_lshl_b32 s{s_it}, s{s_x}, 12")
    k(f"v_lshl_add_u32 v{vP}, v{v_t}, 7, s{s_it}")
    k(f"v_lshl_add_u32 v{vP+1}, v{v_h}, 15, v{vP}")
    def apf(p):
        if ("apf%d" % p) not in X: return
        lab = k.L("apf%d_%d" % (p, k.uid)); k.uid += 1
        k(f"s_cmp_ge_u32 s{s_q}, {108 if p == 5 else 80}"); k(f"s_cbranch_scc1 {lab}")
        k(f"s_lshl_b32 s{s_it}, s{s_q}, {16 if p == 5 else 15}"); k(f"s_add_u32 s{s_it}, s{s_it}, {PH[p]['A_OFF']}")
        k(f"buffer_load_dword v{vP+2}, v{vP + (1 if p == 5 else 0)}, s[{sW}:{sW+3}], s{s_it} offen sc1")
        k.label(lab)
        k("s_waitcnt vmcnt(0)"); q[:] = []
    k("s_waitcnt vmcnt(0)")
    bar()
    k(f"s_cmp_ge_u32 s{s_idx}, 30"); k(f"s_cbranch_scc1 L_exit")
    if "cpf2" in X:
        k(f"s_cmp_lg_u32 s{s_w}, 0"); k(f"s_cbranch_scc1 {k.L('ncp')}")
        code_prefetch(k, "L_p3_pb3", sB3, s_it, 24, 25, v_lane, per=6)
        k.label(k.L("ncp"))
    bar()
    k(f"s_cmp_ge_u32 s{s_idx}, 28"); k(f"s_cbranch_scc1 {k.L('lskip4')}")
    def piece(p, g, ii):
        P = PH[p]; vB = vB4 if p == 4 else vB2; sB = {4: sB4, 5: sB5}[p]
        if ii == 0: k(f"s_add_u32 m0, s{s_m0}, {((P['base'] + g) % NSLOT) * GB}")
        k(f"buffer_load_dwordx4 v{vB[ii]}, s[{sB}:{sB+3}], s{s_ob[p]} offen offset:{ii*1024} lds")
        q.append((p, g))
        if ii == 3: k(f"s_add_u32 s{s_ob[p]}, s{s_ob[p]}, {P['GR'] * (F if p == 4 else D) * 2}")
    todo = [(4, g, ii) for g in range(3, 10) for ii in range(4)] + [(5, g, ii) for g in range(8) for ii in range(4)]
    P3 = [int(v) for v in os.environ.get("P3", "0,0,0,0,12,0").split(",")]
    for j in range(6):
        bar()
        for _ in range(P3[j]):
            p_, g, ii = todo.pop(0)
            assert p_ == 4 and (g - 3 + 2 <= j or (j == 5 and g < 8))
            piece(p_, g, ii)
    bar()
    k(f"buffer_load_dword v{vt[1]}, v{vt[3]}, s[{sW}:{sW+3}], s{s_t0} offen sc1"); q.append(("c", 0))
    P4 = [int(v) for v in os.environ.get("P4", "3,3,3,3,3,3,3,3,3,3").split(",")]
    for j in range(10):
        assert (4, j, 3) not in todo
        bar((4, j))
        if j == 6:
            need(("c", 0))
            k(f"ds_write_b32 v{vt[2]}, v{vt[1]}")
        for _ in range(P4[j]):
            p_, g, ii = todo[0]
            if (p_ == 4 and g >= 8 and g - 8 + 2 > j) or (p_ == 5 and g + 4 > j): break
            piece(*todo.pop(0))
            if "psl4" in X: k("s_nop 15")
    k("s_waitcnt lgkmcnt(0)")
    bar()
    THIN = int(os.environ.get("THIN", "6"))
    while todo:
        if THIN >= 0 and todo[0][2] % 2 == 0: k(f"s_waitcnt vmcnt({THIN})")
        piece(*todo.pop(0))
    bar()
    k(f"s_branch {k.L('l5')}")
    k.label(k.L("lskip4"))
    for j in range(6): bar()
    for j in range(8): issue(5, j)
    if "wbh" in X:
        k(f"s_cmp_lg_u32 s{s_q}, 112"); k(f"s_cbranch_scc1 {k.L('l5')}")
        k("s_waitcnt vmcnt(0)"); k("s_sleep 64")
        k("buffer_wbl2 sc1")
    k.label(k.L("l5"))
    k("s_waitcnt vmcnt(0)"); q[:] = []
    bar()
    k(f"s_cmp_lg_u32 s{s_w}, 3"); k("s_cbranch_scc1 L_exit")
    k(f"s_sub_u32 s{s_ob[5]}, s{s_ob[5]}, {3 * 32 * 1280}")
    pieces = [(g, ww, ii) for g in range(8, 14) for ww in range(4 if g < 13 else 2) for ii in range(4)]
    PPB = int(os.environ.get("PPB", "9"))
    for j in range(14):
        bar((5, j))
        n = 0
        while pieces and n < PPB and pieces[0][0] - 8 + 2 <= j:
            g, ww, ii = pieces.pop(0); n += 1
            assert g > j
            if ii == 0: k(f"s_mov_b32 m0, {((7 + g) % NSLOT) * GB + ww * 4096}")
            k(f"buffer_load_dwordx4 v{vB2[ii]}, s[{sB5}:{sB5+3}], s{s_ob[5]} offen offset:{ii*1024} lds")
            q.append((5, g))
            if ii == 3: k(f"s_add_u32 s{s_ob[5]}, s{s_ob[5]}, {32 * 1280}")
        if len(q) > 40:
            k("s_waitcnt vmcnt(40)"); del q[:len(q) - 40]
    assert not pieces
    if "sta" in X: k.dump(0, 14, s_wid)
    k("s_endpgm")

    k.label(k.L("compute"))
    vBr = [4, 5, 6, 7]; vA = 8; vS = 9; vO = 10; v_tag = 11
    RES = 16; BI = 32; ACC = 48
    DIST = int(os.environ.get('DIST', '6')); NFB = 8
    NFAS = {3: 32, 4: int(os.environ.get('NFA4', '24')), 5: int(os.environ.get('NFA5', '32'))}
    s_tok3 = 34; s_act = 25
    k(f"s_mul_i32 s{s_t0}, s{s_r}, 3"); k(f"s_add_u32 s{s_t0}, s{s_t0}, s{s_w}")
    k(f"s_cmp_eq_u32 s{s_w}, 3"); k(f"s_cselect_b32 s{s_act}, 8, s{s_t0}")
    k(f"s_lshl_b32 s{s_t1}, s{s_x}, 3"); k(f"s_add_u32 s{s_t0}, s{s_t0}, s{s_t1}"); k(f"s_lshl_b32 s{s_tok3}, s{s_t0}, 5")
    for c in range(4): k(f"s_mov_b32 s{48 + c}, {2*c*CH}")
    def nbar(n):
        for _ in range(n): k("s_barrier")
    def setup(p):
        if p == 4:
            k(f"s_lshl_b32 s{s_t0}, s{s_x}, 1"); k(f"s_add_u32 s{s_t0}, s{s_t0}, s{s_r4}"); k(f"s_lshl_b32 s{s_t0}, s{s_t0}, 2")
            k(f"s_add_u32 s{s_t0}, s{s_t0}, s{s_w}"); k(f"s_lshl_b32 s{s_t0}, s{s_t0}, 5")
            k(f"v_add_u32 v{vt[0]}, s{s_t0}, v{v_t}")
        else:
            k(f"v_add_u32 v{vt[0]}, s{s_tok3}, v{v_t}")
        k(f"v_lshlrev_b32 v{vA}, 15, v{v_h}")
        k(f"v_lshl_add_u32 v{vA}, v{vt[0]}, 4, v{vA}")
        k(f"s_mov_b32 s{s_offA}, {PH[p]['A_OFF']}")
    def setup2(p):
        late = []
        if p == 4:
            k(f"s_lshl_b32 s{s_t0}, s{s_cb4}, 19"); k(f"s_add_u32 s{s_t0}, s{s_t0}, {G_OFF}")
            k(f"v_add_u32 v{vO}, s{s_t0}, v{vA}")
            k(f"v_mul_u32_u24 v{vt[1]}, {5 * 16384}, v{v_h}")
            k(f"v_lshl_add_u32 v{vS}, v{vt[0]}, 3, v{vt[1]}")
            for i in range(5):
                late.append([f"s_mov_b32 s{s_t0}, {HS_OFF + i * 16384}",
                             f"buffer_load_dwordx2 {vr(BI + 2*i, 2)}, v{vS}, s[{sW}:{sW+3}], s{s_t0} offen sc1"])
            k(f"v_bfe_u32 v{vt[0]}, v{v_lane}, 2, 2")
            k(f"v_lshl_add_u32 v{vt[1]}, v{v_h}, 2, v{vt[0]}")
            k(f"v_lshlrev_b32 v{vt[1]}, 8, v{vt[1]}")
            k(f"v_lshl_add_u32 v{vt[0]}, v{vt[0]}, 6, v{vt[1]}")
        else:
            k(f"s_lshl_b32 s{s_t1}, s{s_cb}, 7")
            k(f"v_mul_u32_u24 v{vt[1]}, 1280, v{vt[0]}")
            k(f"v_lshl_add_u32 v{vt[1]}, v{v_h}, 4, v{vt[1]}")
            if p == 3:
                k(f"v_add_u32 v{vt[1]}, s{s_t1}, v{vt[1]}")
                k(f"s_lshl_b32 s{s_t0}, s{s_cb}, 18"); k(f"s_add_u32 s{s_t0}, s{s_t0}, {H_OFF}")
                k(f"v_add_u32 v{vO}, s{s_t0}, v{vA}")
                k(f"s_lshl_b32 s{s_t0}, s{s_cb}, 14"); k(f"s_add_u32 s{s_t0}, s{s_t0}, {HS_OFF}")
                k(f"v_lshl_add_u32 v{vS}, v{vt[0]}, 3, s{s_t0}")
            else:
                k(f"v_add_u32 v{vO}, s{s_t1}, v{vt[1]}")
                srd(k, sO, 56, 57, S * D * 2); srd(k, sBi, 46, 47, D * 2)
                k(f"v_lshlrev_b32 v{vt[2]}, 3, v{v_h}")
                for c in range(8):
                    k(f"buffer_load_dwordx2 {vr(BI + 2*c, 2)}, v{vt[2]}, s[{sBi}:{sBi+3}], s{s_t1} offen offset:{16*c}")
            k(f"v_bfe_u32 v{vt[0]}, v{v_lane}, 2, 2")
            k(f"v_lshl_add_u32 v{vt[0]}, v{v_h}, {3 if p == 3 else 2}, v{vt[0]}")
            k(f"v_lshlrev_b32 v{vt[0]}, 7, v{vt[0]}")
            k(f"v_bfe_u32 v{vt[3]}, v{v_lane}, 3, 1")
            k(f"v_lshl_add_u32 v{vt[0]}, v{vt[3]}, 6, v{vt[0]}")
        k(f"v_bfe_u32 v{vt[3]}, v{v_lane}, 4, 1")
        k(f"v_lshl_add_u32 v{vt[0]}, v{vt[3]}, 5, v{vt[0]}")
        k(f"v_and_b32 v{vt[3]}, 3, v{v_lane}")
        k(f"v_lshl_add_u32 v{vBr[0]}, v{vt[3]}, 3, v{vt[0]}")
        for j in range(1, PH[p]["NT"]): k(f"v_xor_b32 v{vBr[j]}, {64 * j}, v{vBr[0]}")
        return late
    def aload(p, i, FA):
        NFA = NFAS[p]
        return [f"buffer_load_dwordx4 {vr(FA + (i % NFA) * 4, 4)}, v{vA}, s[{sW}:{sW+3}], s{s_offA} offen{ASC}",
                f"s_add_u32 s{s_offA}, s{s_offA}, {2 * CH}"]
    def gemm(p, late, pre_issued, mid={}):
        P = PH[p]; NT = P["NT"]; GS = P["GS"]; NKS = P["NKS"]
        FB = ACC + 16 * NT; FA = FB + NFB * 4
        NFA = NFAS[p]; LA = min(NFA - 2, int(os.environ.get("LA%d" % p, "10" if p == 4 else "14"))); LI = int(os.environ.get("LI%d" % p, "6" if p == 4 else "8"))
        for i in range(LI):
            for l in aload(p, i, FA): k(l)
        nis = LI
        cur = [0]
        NM = NKS * NT; KSB = GB // GS
        def bread(m):
            ks, j = divmod(m, NT)
            G, qq = divmod(ks, GS)
            off = ((P["base"] + G) % NSLOT) * GB + qq * KSB
            r = []
            if qq == 0 and j == 0: r.append("s_barrier")
            base = (off // 65536) * 65536
            if base != cur[0]:
                for a in vBr[:NT]: r.append(f"v_add_u32 v{a}, {(base - cur[0]) & 0xffffffff:#x}, v{a}")
                cur[0] = base
            for e in range(2):
                r.append(f"ds_read_b64_tr_b16 {vr(FB + (m % NFB) * 4 + 2*e, 2)}, v{vBr[j]} offset:{off - base + e * (KSB // (4 if p == 3 else 2))}")
            return r
        if K.prof: k("s_waitcnt lgkmcnt(0)")
        for m in range(DIST):
            for l in bread(m): k(l)
        vq = [("A", i) for i in range(LI)]
        for m in range(NM):
            ks, j = divmod(m, NT)
            nout = 2 * (min(NM, m + DIST) - m - 1)
            if j == 0:
                pos = vq.index(("A", ks))
                k(f"s_waitcnt vmcnt({len(vq) - 1 - pos}) lgkmcnt({nout})")
            else:
                k(f"s_waitcnt lgkmcnt({nout})")
            cc = vr(ACC + 16*j, 16) if (ks or p != 4) else "0"
            k(f"v_mfma_f32_32x32x16_bf16 {vr(ACC + 16*j, 16)}, {vr(FB + (m % NFB) * 4, 4)}, {vr(FA + (ks % NFA) * 4, 4)}, {cc}")
            if ("stg%d" % p) in X and j == 0 and ks in (0, NKS // 5, 2 * NKS // 5, 3 * NKS // 5, 4 * NKS // 5):
                k.stamp(2 + [0, NKS // 5, 2 * NKS // 5, 3 * NKS // 5, 4 * NKS // 5].index(ks))
            if m + DIST < NM:
                for l in bread(m + DIST): k(l)
            if m in mid:
                for l in mid[m](len(vq) - 1 - max(i for i, e in enumerate(vq) if e[0] == "R") if any(e[0] == "R" for e in vq) else 0): k(l)
            if j in (0, NT // 2) and nis < min(NKS, ks + 1 + LA):
                for l in aload(p, nis, FA): k(l)
                vq.append(("A", nis)); nis += 1
            if j == 0 and late and ks + LA + 4 >= NKS:
                for l in late.pop(0): k(l)
                vq.append(("R", 0))
        assert not late
        if ("stg%d" % p) in X: k.stamp(0)
        return FB, FA
    def sync(pdone, pwait, nflags, name, slp=0, extra=False):
        publish(k, sW, pdone, 94, s_t0, vt[0], vt[1], not (pdone == 2 and "rowmap" not in X))
        k(f"v_min_u32 v{vt[0]}, {nflags - 1}, v{v_lane}")
        k(f"s_lshl_b32 s{s_t0}, s{s_x}, 12"); k(f"s_add_u32 s{s_t0}, s{s_t0}, {FL_OFF + (pwait - 1) * 32768}")
        k(f"v_lshl_add_u32 v{vt[0]}, v{vt[0]}, 7, s{s_t0}")
        if extra:
            k(f"s_lshl_b32 s{s_t0}, s{s_cb4}, 11"); k(f"s_add_u32 s{s_t0}, s{s_t0}, {FL_OFF + 15 * 128}")
            k(f"v_writelane_b32 v{vt[0]}, s{s_t0}, 63")
        poll(k, sW, [vt[0]], [vt[1]], s_it, name, slp)

    setup(3)
    k("s_waitcnt lgkmcnt(0)")
    srd(k, sW, 40, 41, WS_END)
    late = setup2(3)
    k(f"s_cmp_ge_u32 s{s_act}, 8"); k(f"s_cbranch_scc1 {k.L('nores')}")
    def res_to_acc(R):
        for c in range(4 if R == XR else 0):
            k(f"v_permlane32_swap_b32 v{R + 4*c}, v{R + 4*c + 2}")
            k(f"v_permlane32_swap_b32 v{R + 4*c + 1}, v{R + 4*c + 3}")
        for r in range(16):
            k(f"v_lshlrev_b32 v{ACC + 2*r}, 16, v{R + r}")
            k(f"v_and_b32 v{ACC + 2*r + 1}, 0xffff0000, v{R + r}")
    k("s_waitcnt vmcnt(0)")
    k("s_barrier")
    k(f"s_cmp_ge_u32 s{s_idx}, 30"); k(f"s_cbranch_scc1 L_exit")
    res_to_acc(XR)
    k("s_barrier")
    k.stamp(7)
    FB, FA = gemm(3, late, False)
    if "st45" in X: k.stamp(2)
    k(f"v_mov_b32 v{vt[0]}, 0"); k(f"v_mov_b32 v{vt[1]}, 0"); k(f"s_mov_b32 s{s_t1}, 0x3f803f80")
    loc_vcc(k)
    for hf in range(2):
        for r in range(8*hf, 8*hf + 8):
            k(f"v_cvt_pk_bf16_f32 v{RES + r}, v{ACC + 2*r}, v{ACC + 2*r + 1}")
        dstores(k, [f"buffer_store_dwordx4 {vr(RES + 4*c, 4)}, v{vO}, s[{sW}:{sW+3}], s{48 + c} offen" for c in (2*hf, 2*hf + 1)])
    for r in range(16):
        k(f"v_dot2c_f32_bf16 v{vt[0]}, s{s_t1}, v{RES + r}")
        k(f"v_dot2c_f32_bf16 v{vt[1]}, v{RES + r}, v{RES + r}")
    k(f"v_mov_b32 v{vt[2]}, v{vt[0]}"); k(f"v_mov_b32 v{vt[3]}, v{vt[1]}")
    k(f"v_permlane32_swap_b32 v{vt[0]}, v{vt[2]}"); k(f"v_permlane32_swap_b32 v{vt[1]}, v{vt[3]}")
    k(f"v_add_f32 v{vt[0]}, v{vt[0]}, v{vt[2]}"); k(f"v_add_f32 v{vt[1]}, v{vt[1]}, v{vt[3]}")
    k("s_mov_b32 exec_hi, 0")
    dstores(k, [f"buffer_store_dwordx2 {vr(vt[0], 2)}, v{vS}, s[{sW}:{sW+3}], 0 offen"])
    k("s_mov_b32 exec_hi, -1")
    k(f"s_branch {k.L('pb3')}")
    k.label(k.L("nores"))
    k("s_waitcnt vmcnt(0)")
    k("s_barrier")
    k(f"s_cmp_lg_u32 s{s_w}, 3"); k(f"s_cbranch_scc1 {k.L('ns3')}")
    k(f"s_cmp_lt_u32 s{s_idx}, 30"); k(f"s_cbranch_scc1 {k.L('s3')}")
    publish(k, sW, 2, 94, s_t0, vt[0], vt[1], "rowmap" in X)
    k("s_endpgm")
    k.label(k.L("s3"))
    sync(2, 2, 32, "3")
    k(f"s_cmp_lg_u32 s{s_idx}, 0"); k(f"s_cbranch_scc1 {k.L('ns3')}")
    k(f"s_lshl_b32 s{s_t0}, s{s_x}, 7"); k(f"s_add_u32 s{s_t0}, s{s_t0}, {GD_OFF}")
    k(f"v_mov_b32 v{vt[0]}, 0"); k(f"v_mov_b32 v{vt[1]}, s{S_TAG}")
    k("s_mov_b64 exec, 1")
    k(f"buffer_store_dword v{vt[1]}, v{vt[0]}, s[{sW}:{sW+3}], s{s_t0} offen sc1")
    k("s_mov_b64 exec, -1")
    k.label(k.L("ns3"))
    k(f"s_cmp_ge_u32 s{s_idx}, 30"); k(f"s_cbranch_scc1 L_exit")
    nbar(4)
    k(f"s_cmp_lg_u32 s{s_w}, 3"); k(f"s_cbranch_scc1 {k.L('ngd')}")
    k(f"v_and_b32 v{vt[0]}, 7, v{v_lane}"); k(f"v_lshlrev_b32 v{vt[0]}, 7, v{vt[0]}"); k(f"v_add_u32 v{vt[0]}, {GD_OFF}, v{vt[0]}")
    k(f"buffer_load_dword v{vt[1]}, v{vt[0]}, s[{sW}:{sW+3}], 0 offen sc1")
    k("s_barrier")
    k("s_waitcnt vmcnt(0)")
    k(f"v_cmp_ne_u32 vcc, s{S_TAG}, v{vt[1]}")
    k(f"s_cbranch_vccz {k.L('gdok')}")
    poll(k, sW, [vt[0]], [vt[1]], s_it, "gd")
    k(f"s_branch {k.L('gdok')}")
    k.label(k.L("ngd"))
    k("s_barrier")
    k.label(k.L("gdok"))
    k("s_barrier")
    k.label(k.L("pb3"))
    k(f"s_lshl_b32 s94, s{s_x}, 5"); k(f"s_add_u32 s94, s94, s{s_idx}")
    k(f"s_cmp_ge_u32 s{s_idx}, 28"); k(f"s_cbranch_scc1 {k.L('skip4')}")
    setup(4)
    late = setup2(4)
    k("s_waitcnt vmcnt(0)")
    k("s_barrier")
    if "st2" not in X: k.stamp(8)
    k(f"s_cmp_lg_u32 s{s_w}, 3"); k(f"s_cbranch_scc1 {k.L('ns4')}")
    sync(3, 3, 30, "4", extra=True)
    k.label(k.L("ns4"))
    k("s_barrier")
    if "cprio" in X: k("s_setprio 2")
    if "st2" not in X: k.stamp(9)
    PS = BI; MR = BI + 12
    kk = K("tmp")
    for i in range(1, 5): kk(f"v_add_f32 v{PS}, v{PS}, v{PS + 2*i}"); kk(f"v_add_f32 v{PS+1}, v{PS+1}, v{PS + 2*i + 1}")
    kk(f"v_mov_b32 v{PS+2}, v{PS}"); kk(f"v_mov_b32 v{PS+3}, v{PS+1}")
    kk(f"v_permlane32_swap_b32 v{PS}, v{PS+2}"); kk(f"v_permlane32_swap_b32 v{PS+1}, v{PS+3}")
    kk(f"v_add_f32 v{PS}, v{PS}, v{PS+2}"); kk(f"v_add_f32 v{PS+1}, v{PS+1}, v{PS+3}")
    rowstat_math(kk, PS, PS + 1, MR, MR + 1, PS + 2, True)
    kk(f"v_mul_f32 v{MR+1}, {f32(GS)}, v{MR+1}")
    kk(f"v_lshlrev_b32 v{vt[0]}, 4, v{v_h}"); kk(f"v_add_u32 v{vt[0]}, {SB}, v{vt[0]}")
    st = kk.lines; mid = {}
    m0_ = 160 - (len(st) + 1) // 2 - 1
    for i in range(0, len(st), 2):
        mid[m0_ + i // 2] = (lambda n, i=i: ([f"s_waitcnt vmcnt({n})"] if i == 0 else []) + st[i:i + 2])
    FB, FA = gemm(4, late, False, mid)
    if "st45" in X: k.stamp(3)
    if "st4" in X: k.stamp(2)
    k("s_barrier")
    if "st4" in X: k.stamp(3)
    T = FB; CSB = [FB + 32, FB + 64]
    def csread(nt):
        for rq in range(8):
            k(f"ds_read_b128 {vr(CSB[nt % 2] + rq*4, 4)}, v{vt[0]} offset:{(rq // 4) * 512 + nt*128 + (rq % 4)*32}")
    csread(0)
    k(f"s_mov_b32 s58, {f32(GC0 / GS)}"); k(f"s_mov_b32 s59, {f32(math.log2(GS))}")
    k(f"s_mov_b32 s36, {f32(GS)}")
    if "gsc1" in X: k(f"s_mov_b32 s{S_LOC}, 0")
    loc_vcc(k)
    for nt in range(4):
        if nt == 2:
            k(f"s_cmp_eq_u32 s{s_cb4}, 13"); k(f"s_cbranch_scc1 {k.L('done4')}")
            k(f"v_add_u32 v{vO}, {8 * CH}, v{vO}")
        k("s_waitcnt lgkmcnt(0)")
        if nt < 3: csread(nt + 1)
        a = ACC + 16 * nt; CS = CSB[nt % 2]; B1 = CS + 16
        for p in range(8):
            x = vr(a + 2*p, 2)
            k(f"v_pk_fma_f32 {x}, {vr(CS + 2*p, 2)}, {vr(MR,2)}, {x} op_sel_hi:[1,0,1]")
        for p in range(8):
            x = vr(a + 2*p, 2)
            k(f"v_pk_fma_f32 {x}, {x}, {vr(MR,2)}, {vr(B1 + 2*p, 2)} op_sel:[0,1,0] op_sel_hi:[1,1,1]")
        for p in range(8):
            x = vr(a + 2*p, 2); t = vr(T + 2*p, 2)
            k(f"v_pk_fma_f32 {t}, {x}, {x}, s[58:59] op_sel_hi:[1,1,0]")
        for p in range(8):
            x = vr(a + 2*p, 2); t = vr(T + 2*p, 2)
            k(f"v_pk_fma_f32 {t}, {t}, {x}, s[58:59] op_sel:[0,0,1] op_sel_hi:[1,1,1] neg_lo:[0,1,0] neg_hi:[0,1,0]")
        for r in range(16): k(f"v_exp_f32 v{T + r}, v{T + r}")
        for p in range(8):
            t = vr(T + 2*p, 2)
            k(f"v_pk_add_f32 {t}, {t}, s[36:37] op_sel_hi:[1,0]")
        for r in range(16): k(f"v_rcp_f32 v{T + r}, v{T + r}")
        for p in range(8):
            x = vr(a + 2*p, 2); t = vr(T + 2*p, 2)
            k(f"v_pk_mul_f32 {x}, {x}, {t}")
        Pk = T + 16 + (nt % 2) * 8
        for p in range(8):
            k(f"v_cvt_pk_bf16_f32 v{Pk + p}, v{a + 2*p}, v{a + 2*p + 1}")
        sts = [f"buffer_store_dwordx4 {vr(Pk + 4*pq,4)}, v{vO}, s[{sW}:{sW+3}], s{48 + (nt % 2)*2 + pq} offen" for pq in range(2)]
        if nt < int(os.environ.get("GWT", "4")):
            for l in sts: k(l + " sc1")
        else:
            dstores(k, sts)
    k.label(k.L("done4"))
    if "st4" in X: k.stamp(4)
    k("s_waitcnt vmcnt(0) lgkmcnt(0)")
    if "st4" in X: k.stamp(5)
    k("s_barrier")
    k.stamp(10)
    k(f"s_cmp_lg_u32 s{s_w}, 3"); k(f"s_cbranch_scc1 {k.L('p5')}")
    sync(4, 4, 28, "5")
    k(f"s_branch {k.L('p5')}")
    k.label(k.L("skip4"))
    k("s_waitcnt vmcnt(0)")
    k("s_barrier")
    k(f"s_cmp_lg_u32 s{s_w}, 3"); k(f"s_cbranch_scc1 {k.L('p5')}")
    sync(3, 4, 28, "6", 8)
    k.label(k.L("p5"))
    k(f"s_cmp_ge_u32 s{s_act}, 8"); k(f"s_cbranch_scc1 {k.L('idle5')}")
    setup(5)
    if "hclean" in X:
        k(f"s_lshl_b32 s{s_t0}, s{s_cb}, 18"); k(f"s_add_u32 s{s_t0}, s{s_t0}, {H_OFF}")
        k(f"v_add_u32 v{vS}, s{s_t0}, v{vA}")
    late = setup2(5)
    if "hclean" in X:
        for c in range(4):
            late.append([f"s_mov_b32 s{s_t0}, {2*c*CH}", f"buffer_store_dwordx4 {vr(RES + 4*c, 4)}, v{vS}, s[{sW}:{sW+3}], s{s_t0} offen sc1"])
    res_to_acc(RES)
    k("s_waitcnt vmcnt(0)")
    T = ACC + 64
    for r in range(16):
        k(f"v_lshlrev_b32 v{T + 2*r}, 16, v{BI + r}")
        k(f"v_and_b32 v{T + 2*r + 1}, 0xffff0000, v{BI + r}")
    for r in range(16):
        k(f"v_pk_add_f32 {vr(ACC + 2*r, 2)}, {vr(ACC + 2*r, 2)}, {vr(T + 2*r, 2)}")
    if "nootr" not in X:
        k(f"s_lshl_b32 s{s_t0}, s{s_w}, 12"); k(f"s_add_u32 s{s_t0}, s{s_t0}, {MRG}")
        k(f"v_and_b32 v{vt[0]}, 7, v{v_lane}"); k(f"v_xor_b32 v{vt[1]}, v{vt[0]}, v{v_h}")
        k(f"v_lshl_add_u32 v{vt[2]}, v{v_t}, 7, s{s_t0}")
        for c in range(4):
            k(f"v_xor_b32 v{vt[3]}, {2 * c}, v{vt[1]}"); k(f"v_lshl_add_u32 v{BI + c}, v{vt[3]}, 4, v{vt[2]}")
        k(f"v_lshrrev_b32 v{vt[1]}, 3, v{v_lane}")
        k(f"v_xor_b32 v{vt[3]}, v{vt[0]}, v{vt[1]}")
        k(f"v_lshl_add_u32 v{vt[2]}, v{vt[1]}, 7, s{s_t0}"); k(f"v_lshl_add_u32 v{BI + 4}, v{vt[3]}, 4, v{vt[2]}")
        k(f"v_add_u32 v{vt[1]}, s{s_tok3}, v{vt[1]}"); k(f"v_mul_u32_u24 v{vt[1]}, 1280, v{vt[1]}")
        k(f"v_lshl_add_u32 v{vt[1]}, v{vt[0]}, 4, v{vt[1]}"); k(f"v_add_u32 v{BI + 5}, s{s_t1}, v{vt[1]}")
        for i in range(4): k(f"s_mov_b32 s{48 + i}, {i * 8 * 1280}")
    k("s_barrier")
    k.stamp(11)
    FB, FA = gemm(5, late, False)
    if "st4" in X: k.stamp(6)
    if "st45" in X: k.stamp(4)
    OSC = os.environ.get("OSC", " sc1")
    for c in range(4):
        for r in range(4*c, 4*c + 4):
            k(f"v_cvt_pk_bf16_f32 v{RES + r}, v{ACC + 2*r}, v{ACC + 2*r + 1}")
        k(f"v_permlane32_swap_b32 v{RES + 4*c}, v{RES + 4*c + 2}")
        k(f"v_permlane32_swap_b32 v{RES + 4*c + 1}, v{RES + 4*c + 3}")
        if "nootr" not in X:
            k(f"ds_write_b128 v{BI + c}, {vr(RES + 4*c, 4)}")
        else:
            k(f"buffer_store_dwordx4 {vr(RES + 4*c, 4)}, v{vO}, s[{sO}:{sO+3}], 0 offen offset:{32*c}{OSC}")
    if "nootr" not in X:
        for i in range(4): k(f"ds_read_b128 {vr(ACC + 4*i, 4)}, v{BI + 4} offset:{i * 1024}")
        for i in range(4):
            k(f"s_waitcnt lgkmcnt({3 - i})")
            k(f"buffer_store_dwordx4 {vr(ACC + 4*i, 4)}, v{BI + 5}, s[{sO}:{sO+3}], s{48 + i} offen{OSC}")
    if "g3" in X: gate(k, 70)
    k.dump(0, 14, s_wid)
    k("s_endpgm")
    k.label(k.L("idle5"))
    k("s_barrier")
    if "wbl2" in X:
        k(f"s_cmp_lg_u32 s{s_idx}, 0"); k("s_cbranch_scc1 L_exit")
        k("buffer_wbl2 sc1")
    k.label("L_exit")
    k("s_endpgm")
    emit_slow(k)

DOC = """;
;                             computes a slice of the row statistics / column sums and shares it as tagged granules.
"""
NAME = "sequential_preLN__mha_block__mixer_channel_mlp__prompt"
HEADER = open(f"cdna_kernels/{NAME}.s.ref").read().split("; Override")[0]

def build(path):
    k = K(NAME)
    phase1(k); phase2(k); phase345(k)
    lds = 163840 if int(os.environ.get('DEEP', '0')) else MRG + 8 * 3328
    t = HEADER
    if "aslist" in X:
        t += f"; @launch kernel={k.name}_kernel grid=(256,1,1) block=(512,1,1) lds={lds}\n"
    else:
        t += f"; @launch grid=(256,1,1) block=(512,1,1) lds={lds}\n"
    t += DOC
    t += '.amdgcn_target "amdgcn-amd-amdhsa--gfx950"\n.text\n'
    t += kernel_text(k, 256)
    t += "L_code_end:\n"
    t += '.section .rodata,"a"\n'
    t += kernel_desc(k, 256, 96)
    open(path, "w").write(t)

if __name__ == "__main__":
    if len(sys.argv) > 2 and sys.argv[2] == "prof": K.prof = True
    build(sys.argv[1] if len(sys.argv) > 1 else f"cdna_kernels/{NAME}.s")
```
